```python
import torch

def _softmax(x, axis=-1):
    return torch.softmax(x, dim=axis)
def _gelu(x):
    return torch.nn.functional.gelu(x, approximate="tanh")
def _silu(x):
    return torch.nn.functional.silu(x)
def _sigmoid(x):
    return torch.sigmoid(x)
def _layernorm(x, axis=-1, eps=1e-5):
    m = x.mean(dim=axis, keepdim=True)
    v = x.var(dim=axis, keepdim=True, unbiased=False)
    return (x - m) / torch.sqrt(v + eps)
def _scatter_add(tgt, idx, src, axis=0):
    return tgt.clone().index_add_(axis, idx, src)
def _segment_sum(src, seg, n):
    out = torch.zeros((n,) + src.shape[1:], dtype=src.dtype)
    return out.index_add_(0, seg, src)
def _pad(x, pw):
    flat = tuple(v for pair in reversed(pw) for v in pair)
    return torch.nn.functional.pad(x, flat)

kernel_name = 'recurrent_scan__sliding_block_cached__glu_gated_swiglu__prompt'

def setup_inputs():

    _w = (lambda a: (lambda t: t.to(torch.bfloat16) if t.is_floating_point() else t)(torch.as_tensor(a)))
    def _A_setup():
        B, Sq, D = 1, 2048, 640
        Hq, Hkv, Sk, Dh = 32, 32, 2048, 128
        assert Hq % Hkv == 0, (Hq, Hkv)
        return {
            "x": _w((lambda *s: torch.randn(*s, dtype=torch.bfloat16) * 0.05)(B, Sq, D)),
            "k_cache": _w((lambda *s: torch.randn(*s, dtype=torch.bfloat16) * 1.6)(B, Hkv, Sk, Dh)),
            "v_cache": _w((lambda *s: torch.randn(*s, dtype=torch.bfloat16) * 1.6)(B, Hkv, Sk, Dh)),
            "wq": _w((lambda *s: torch.randn(*s, dtype=torch.bfloat16) * 1.6)(D, Hq * Dh) * (D ** -0.5)),
            "wo": _w((lambda *s: torch.randn(*s, dtype=torch.bfloat16) * 1.6)(Hq * Dh, D) * ((Hq * Dh) ** -0.5)),
        }
    _A_in = _A_setup()

    def _B_setup():
        B, S, D, F = 1, 2048, 640, 1728
        return {
            "x": _w((lambda *s: torch.randn(*s, dtype=torch.bfloat16) * 0.05)(B, S, D)),
            "w1": _w((lambda *s: torch.randn(*s, dtype=torch.bfloat16) * 0.2)(D, F) * (2.0 / D) ** 0.5),
            "w3": _w((lambda *s: torch.randn(*s, dtype=torch.bfloat16) * 0.2)(D, F) * (2.0 / D) ** 0.5),
            "w2": _w((lambda *s: torch.randn(*s, dtype=torch.bfloat16) * 0.2)(F, D) * (2.0 / F) ** 0.5),
        }
    _B_in = _B_setup()

    return {
        "A_x": _A_in["x"],
        "A_k_cache": _A_in["k_cache"],
        "A_v_cache": _A_in["v_cache"],
        "A_wq": _A_in["wq"],
        "A_wo": _A_in["wo"],
        "B_x": _B_in["x"],
        "B_w1": _B_in["w1"],
        "B_w3": _B_in["w3"],
        "B_w2": _B_in["w2"],
    }

def reference(A_x, A_k_cache, A_v_cache, A_wq, A_wo, B_x, B_w1, B_w3, B_w2):
    def _A_ref(x, k_cache, v_cache, wq, wo):
        B, Sq, D = x.shape
        Hq, Dh = 32, 128
        Hkv, Sk = k_cache.shape[1], k_cache.shape[2]
        W = min(4096, max(256, Sk // 4))
        rep = Hq // Hkv
        q = (lambda x, *d: x.permute(*d))((x @ wq).reshape(B, Sq, Hq, Dh), 0, 2, 1, 3)
        k = (lambda x, n, axis: torch.repeat_interleave(x, n, dim=axis))(k_cache[:, :, Sk - W:, :], rep, axis=1)
        v = (lambda x, n, axis: torch.repeat_interleave(x, n, dim=axis))(v_cache[:, :, Sk - W:, :], rep, axis=1)
        scores = torch.einsum("bhqd,bhkd->bhqk", q, k) * (Dh ** -0.5)
        p = _softmax(scores, axis=-1)
        o = torch.einsum("bhqk,bhkd->bhqd", p, v)
        return (lambda x, *d: x.permute(*d))(o, 0, 2, 1, 3).reshape(B, Sq, Hq * Dh) @ wo

    def _B_ref(x, w1, w3, w2):
        gate = torch.einsum("bsd,df->bsf", x, w1)
        up = torch.einsum("bsd,df->bsf", x, w3)
        h = _silu(gate) * up
        out = torch.einsum("bsf,fd->bsd", h, w2)
        return out

    x = A_x
    xn = _layernorm(x, axis=-1)
    s = _A_ref(xn, A_k_cache, A_v_cache, A_wq, A_wo)
    g = _silu(_B_ref(xn, B_w1, B_w3, B_w2))
    return x + s * g
```

```python
import re

class Asm:
    def __init__(self):
        self.lines = []
    def __call__(self, s):
        for l in s.split("\n"):
            l = l.strip()
            if l:
                self.lines.append(l)
    def text(self):
        out = []
        for l in self.lines:
            if l.endswith(":") or l.startswith(".") or l.startswith(";"):
                out.append(l)
            else:
                out.append("    " + l)
        return "\n".join(out) + "\n"

def vr(base, n=1, k='v'):
    return f"{k}{base}" if n == 1 else f"{k}[{base}:{base+n-1}]"
def ar(base, n=1):
    return vr(base, n, 'a')
def sr(base, n=1):
    return vr(base, n, 's')

REG = re.compile(r"(?<![\w.])([vas])(?:(\d+)\b|\[(\d+):(\d+)\])")
def regs_of(op):
    out = set()
    for m in REG.finditer(op):
        k = m.group(1)
        if m.group(2) is not None:
            out.add((k, int(m.group(2))))
        else:
            for i in range(int(m.group(3)), int(m.group(4)) + 1):
                out.add((k, i))
    for nm in ("vcc", "exec", "m0"):
        if re.search(r"\b" + nm + r"(_lo|_hi)?\b", op):
            out.add((nm, 0))
    return out

TRANS = ("v_exp_f32", "v_log_f32", "v_rcp_f32", "v_rsq_f32", "v_sqrt_f32", "v_sin_f32", "v_cos_f32", "v_rcp_iflag_f32")

class Ins:
    def __init__(self, text, idx):
        self.text = text
        self.idx = idx
        t = text.split(";")[0].strip()
        parts = t.split(None, 1)
        self.op = parts[0]
        self.opn = re.sub(r"_(e32|e64|dpp|sdwa)$", "", self.op)
        rest = parts[1] if len(parts) > 1 else ""
        self.rest = rest
        ops = [o.strip() for o in rest.split(",")] if rest else []
        self.ops = ops
        op = self.opn
        self.kind = "other"
        self.w = set(); self.r = set()
        self.srcc = set(); self.srcab = set(); self.passes = 0
        self.storedata = set()
        R = [regs_of(o) for o in ops]
        allr = set().union(*R) if R else set()
        if op.startswith("v_mfma"):
            self.kind = "mfma"
            self.passes = 8 if "32x32x16" in op else (4 if "16x16x32" in op else (2 if "4x4x4" in op else None))
            assert self.passes, op
            self.w = R[0]; self.srcab = R[1] | R[2]; self.srcc = R[3]; self.r = self.srcab | self.srcc
        elif op.startswith("v_"):
            self.kind = "valu"
            self.trans = op in TRANS
            self.dpp = bool(re.search(r"row_|quad_perm|wave_|bank_mask", rest))
            if op.startswith("v_cmp"):
                self.w = R[0]; self.r = set().union(*R[1:])
                if op.startswith("v_cmpx"): self.w |= {("exec", 0)}
            elif op in ("v_permlane16_swap_b32", "v_permlane32_swap_b32", "v_swap_b32"):
                self.w = R[0] | R[1]; self.r = R[0] | R[1]
            elif op in ("v_add_co_u32", "v_sub_co_u32", "v_addc_co_u32"):
                self.w = R[0] | R[1]; self.r = set().union(*R[2:])
            elif op in ("v_fmac_f32", "v_dot2c_f32_bf16", "v_pk_fmac_f16"):
                self.w = R[0]; self.r = allr
            elif op == "v_nop":
                pass
            else:
                self.w = R[0]; self.r = set().union(*R[1:]) if len(R) > 1 else set()
                if self.dpp: self.r |= R[0]
                if op == "v_cndmask_b32" and len(ops) == 3: self.r |= {("vcc", 0)}
        elif op.startswith("ds_"):
            self.kind = "ds"
            if op.startswith("ds_read") or op.startswith("ds_bpermute") or op.startswith("ds_swizzle") or op.startswith("ds_permute"):
                self.w = R[0]; self.r = set().union(*R[1:])
            else:
                self.r = allr; self.storedata = set().union(*R[1:])
        elif op.startswith("buffer_") or op.startswith("global_"):
            self.kind = "vmem"
            lds = bool(re.search(r"\blds\b", rest)) or "_lds_" in op
            self.lds = lds
            if op in ("buffer_inv", "buffer_wbl2"):
                pass
            elif "load" in op and not lds:
                self.w = R[0]; self.r = set().union(*R[1:])
            elif "load" in op:
                self.r = allr | {("m0", 0)}
            elif "atomic" in op:
                ret = bool(re.search(r"\bsc0\b", rest))
                if op.startswith("buffer_"):
                    self.r = allr; self.storedata = R[0]
                    if ret: self.w = R[0]
                else:
                    if ret: self.w = R[0]; self.r = set().union(*R[1:])
                    else: self.r = allr
            else:
                self.r = allr
                self.storedata = R[0] if op.startswith("buffer_") else R[1]
                self.wide = "x4" in op or "x3" in op
        elif op.startswith("s_"):
            self.kind = "salu"
            if op in ("s_waitcnt", "s_barrier", "s_nop", "s_endpgm", "s_setprio", "s_sleep", "s_branch") or op.startswith("s_cbranch"):
                self.kind = "ctl"
                if op in ("s_cbranch_vccz", "s_cbranch_vccnz"): self.r = {("vcc", 0)}
                if op in ("s_cbranch_execz", "s_cbranch_execnz"): self.r = {("exec", 0)}
            elif op.startswith("s_load") or op.startswith("s_memtime") or op.startswith("s_memrealtime") or op.startswith("s_buffer_load"):
                self.kind = "smem"; self.w = R[0]; self.r = set().union(*R[1:]) if len(R) > 1 else set()
            elif op.startswith("s_cmp") or op.startswith("s_bitcmp"):
                self.r = allr
            elif op.endswith("saveexec_b64"):
                self.w = R[0] | {("exec", 0)}; self.r = R[1] | {("exec", 0)}
            elif op in ("s_setpc_b64",):
                self.r = allr
            else:
                self.w = R[0]; self.r = set().union(*R[1:]) if len(R) > 1 else set()
                if op in ("s_addk_i32", "s_mulk_i32"): self.r |= R[0]
        else:
            raise ValueError("unknown op " + text)
    def states(self):
        if self.op == "s_nop":
            return int(self.ops[0], 0) + 1
        return 1

def parse(lines):
    ins = []; labels = {}
    for l in lines:
        t = l.split(";")[0].strip()
        if not t: continue
        if t.endswith(":"):
            labels[t[:-1]] = len(ins); continue
        if t.startswith("."):
            continue
        ins.append(Ins(l, len(ins)))
    return ins, labels

def succs(ins, labels, i):
    x = ins[i]
    if x.op == "s_endpgm": return []
    if x.op == "s_branch": return [labels[x.ops[0]]]
    if x.op.startswith("s_cbranch"): return [i + 1, labels[x.ops[0]]]
    if x.op == "s_setpc_b64": return []
    return [i + 1] if i + 1 < len(ins) else []

def isv(s): return {r for r in s if r[0] in "va"}
def iss(s): return {r for r in s if r[0] == "s" or r[0] == "vcc"}

def need(p, c):
    n = 0
    if p.kind == "mfma":
        D = p.w
        tbl_v = {2: 5, 4: 8, 8: 12}[p.passes]
        if c.kind == "mfma":
            if c.srcab & D: n = max(n, tbl_v)
            if c.srcc & D:
                if c.srcc == D and c.passes == p.passes: n = max(n, 2 if p.passes == 2 else 0)
                else: n = max(n, {2: 4, 4: 6, 8: 10}[p.passes])
            elif c.w & D:
                n = max(n, tbl_v)
        elif c.kind in ("valu", "ds", "vmem"):
            if (c.r | c.w) & D: n = max(n, tbl_v)
        if c.kind == "valu" and (c.w & p.srcc): n = max(n, {2: 1, 4: 3, 8: 7}[p.passes])
    if p.kind == "valu":
        W = isv(p.w); S = iss(p.w)
        if c.kind == "mfma" and (c.r & W): n = max(n, 2)
        if c.kind == "mfma" and ("exec", 0) in p.w: n = max(n, 4)
        if c.kind == "valu":
            if p.trans and not c.trans and (c.r & W): n = max(n, 1)
            if c.dpp and (c.r & W): n = max(n, 2)
            if c.opn.startswith("v_permlane") and (c.r & W): n = max(n, 2)
            if c.opn in ("v_readlane_b32", "v_readfirstlane_b32") and (c.r & W): n = max(n, 1)
            if c.r & S: n = max(n, 4 if c.opn in ("v_readlane_b32", "v_writelane_b32") else 2)
            if ("exec", 0) in p.w and (c.dpp): n = max(n, 5)
            if ("exec", 0) in p.w and (c.opn.startswith("v_permlane") or c.opn in ("v_readlane_b32", "v_readfirstlane_b32")): n = max(n, 4)
        if c.kind == "vmem" and (c.r & S): n = max(n, 5)
        if c.kind in ("salu", "ctl") and (c.r & (S | ({("exec",0)} & p.w))): n = max(n, 4)
    if p.kind == "salu":
        if ("m0", 0) in p.w and c.kind == "vmem" and getattr(c, "lds", False): n = max(n, 1)
    if p.kind == "vmem" and getattr(p, "wide", False) and p.storedata:
        if c.w & p.storedata: n = max(n, 2 if c.kind == "valu" else 1)
    return n

def check_hazards(lines, verbose=True):
    ins, labels = parse(lines)
    bad = []
    MAXD = 13
    for i, p in enumerate(ins):
        if p.kind not in ("mfma", "valu", "salu", "vmem"): continue
        stack = [(s, 0) for s in succs(ins, labels, i)]
        seen = {}
        while stack:
            j, d = stack.pop()
            if d >= MAXD or j >= len(ins): continue
            if seen.get(j, 99) <= d: continue
            seen[j] = d
            c = ins[j]
            n = need(p, c)
            if n > d:
                bad.append((i, j, n, d))
            for s in succs(ins, labels, j):
                stack.append((s, d + c.states()))
    for i, j, n, d in bad[:40]:
        print(f"HAZARD need {n} have {d}:\n   [{i}] {ins[i].text}\n   [{j}] {ins[j].text}")
    return len(bad)

M32 = 0xffffffff
def check_waits(lines, entry, init_s, hooks=None, maxsteps=400000, trace=None):
    ins, labels = parse(lines)
    S = dict(init_s); scc = 0
    vm = []; lg = []
    pc = labels[entry]; steps = 0; probs = 0
    cnt = {}
    def val(o):
        o = o.strip()
        m = re.fullmatch(r"s(\d+)", o)
        if m: return S.get(int(m.group(1)))
        if o == "m0": return S.get("m0")
        try: return int(o, 0) & M32
        except ValueError: return None
    def setv(o, v):
        m = re.fullmatch(r"s(\d+)", o)
        if m: S[int(m.group(1))] = None if v is None else v & M32
        elif o == "m0": S["m0"] = None if v is None else v & M32
        else:
            for r in regs_of(o):
                if r[0] == "s": S[r[1]] = None
    while True:
        steps += 1
        if steps > maxsteps: print("check_waits: too many steps"); return probs + 1, cnt
        x = ins[pc]
        cnt[x.kind] = cnt.get(x.kind, 0) + 1
        touched = x.r | x.w
        for q, nm in ((vm, "vm"), (lg, "lgkm")):
            for (k, d) in q:
                if d & touched:
                    if not (x.kind == ins[k].kind and x.kind in ("ds", "vmem") and not (d & x.r)):
                        print(f"WAIT({nm}): [{pc}] {x.text}\n     touches pending [{k}] {ins[k].text}")
                        probs += 1
                        if probs > 20: return probs, cnt
        op = x.opn; nxt = pc + 1
        for cls, mm in re.findall(r"@need (\w+) (\d+)", x.text):
            pend = [k for (k, d) in vm if re.search(r"@put " + cls + r"\b", ins[k].text)]
            if len(pend) > int(mm):
                print(f"NEED {cls}: {len(pend)} pending > {mm} at [{pc}] {x.text}")
                probs += 1
        if x.kind == "vmem":
            vm.append((pc, set(x.w)))
            if len(vm) > 63: print(f"vmcnt overflow at [{pc}] {x.text}"); probs += 1
        elif x.kind == "ds": lg.append((pc, set(x.w)))
        elif x.kind == "smem":
            lg.append((pc, set(x.w)))
            for r in x.w:
                if r[0] == "s": S[r[1]] = None
            if hooks: hooks(x, S)
        elif op == "s_waitcnt":
            m = re.search(r"vmcnt\((\d+)\)", x.rest)
            if m:
                n = int(m.group(1)); vm = vm[len(vm) - n:] if n < len(vm) and n > 0 else ([] if n == 0 else vm)
            m = re.search(r"lgkmcnt\((\d+)\)", x.rest)
            if m:
                n = int(m.group(1))
                if n > 0 and any(ins[k].kind == "smem" for k, _ in lg):
                    print(f"counted lgkmcnt with smem outstanding at [{pc}]"); probs += 1
                lg = lg[len(lg) - n:] if n < len(lg) and n > 0 else ([] if n == 0 else lg)
        elif op == "s_endpgm": return probs, cnt
        elif op == "s_branch": nxt = labels[x.ops[0]]
        elif op in ("s_cbranch_scc0", "s_cbranch_scc1"):
            if scc is None:
                d = hooks(x, S) if hooks else None
                assert d is not None, "unknown scc at " + x.text
                if d: nxt = labels[x.ops[0]]
            elif scc == int(op[-1]): nxt = labels[x.ops[0]]
        elif op.startswith("s_cbranch"):
            d = hooks(x, S) if hooks else None
            assert d is not None, "unknown branch " + x.text
            if d: nxt = labels[x.ops[0]]
        elif x.kind == "salu":
            o = x.ops
            a = val(o[1]) if len(o) > 1 else None
            b = val(o[2]) if len(o) > 2 else None
            two = a is not None and b is not None
            if op in ("s_mov_b32", "s_movk_i32"): setv(o[0], a)
            elif op in ("s_add_u32", "s_add_i32"):
                setv(o[0], a + b if two else None); scc = (int(a + b > M32) if two else None)
            elif op in ("s_sub_u32", "s_sub_i32"):
                setv(o[0], a - b if two else None); scc = (int(a < b) if two else None)
            elif op == "s_mul_i32": setv(o[0], a * b if two else None)
            elif op == "s_mul_hi_u32": setv(o[0], (a * b) >> 32 if two else None)
            elif op in ("s_and_b32", "s_or_b32", "s_xor_b32", "s_lshl_b32", "s_lshr_b32"):
                f = {"s_and_b32": lambda: a & b, "s_or_b32": lambda: a | b, "s_xor_b32": lambda: a ^ b,
                     "s_lshl_b32": lambda: a << (b & 31), "s_lshr_b32": lambda: a >> (b & 31)}[op]
                v = f() & M32 if two else None
                setv(o[0], v); scc = None if v is None else int(v != 0)
            elif op in ("s_max_u32", "s_min_u32"):
                setv(o[0], (max(a, b) if op == "s_max_u32" else min(a, b)) if two else None); scc = None
            elif op == "s_lshl2_add_u32":
                setv(o[0], (a << 2) + b if two else None); scc = None
            elif op == "s_cselect_b32":
                setv(o[0], None if scc is None else (a if scc else b))
            elif op.startswith("s_cmp"):
                a, b = val(o[0]), val(o[1])
                if a is None or b is None: scc = None
                else:
                    c = op.split("_")[2]
                    scc = int({"eq": a == b, "lg": a != b, "lt": a < b, "gt": a > b, "le": a <= b, "ge": a >= b}[c])
            elif op.startswith("s_bitcmp1"):
                a, b = val(o[0]), val(o[1]); scc = None if a is None else (a >> b) & 1
            else:
                setv(o[0], None); scc = None
        elif x.kind == "valu":
            for r in x.w:
                if r[0] == "s": S[r[1]] = None
            if hooks and any(r[0] == "s" for r in x.w): hooks(x, S)
        pc = nxt
```

```python
NAME = "recurrent_scan__sliding_block_cached__glu_gated_swiglu__prompt"
NKS = 182
A_OFF = 0
A_BLK = NKS * 4096
W_OFF = 0x1800000
W_SIZE = NKS * 40960
ST_OFF = 0x2000000
X_SIZE = 2048 * 640 * 2
LOG2E = 1.4426950408889634

def kd(A, name, nvgpr, accum, nsgpr=102):
    A('.section .rodata,"a"')
    A(".p2align 6")
    A(f".amdhsa_kernel {name}")
    A(f".amdhsa_next_free_vgpr {nvgpr}")
    A(f".amdhsa_next_free_sgpr {nsgpr}")
    A(f".amdhsa_accum_offset {accum}")
    A(".amdhsa_group_segment_fixed_size 0")
    A(".amdhsa_kernarg_size 96")
    A(".amdhsa_user_sgpr_count 2")
    A(".amdhsa_user_sgpr_kernarg_segment_ptr 1")
    A(".amdhsa_system_sgpr_workgroup_id_x 1")
    A(".amdhsa_float_denorm_mode_32 3")
    A(".end_amdhsa_kernel")
    A(".text")

def head(A, name):
    A(f".globl {name}")
    A(".p2align 8")
    A(f".type {name},@function")
    A(f"{name}:")

def srd(A, d, lo, hi, size):
    if lo != d: A(f"s_mov_b32 s{d}, s{lo}")
    A(f"s_and_b32 s{d+1}, s{hi}, 0xffff")
    A(f"s_mov_b32 s{d+2}, {size}")
    A(f"s_mov_b32 s{d+3}, 0x20000")

import struct
def f2u(x):
    return struct.unpack("<I", struct.pack("<f", x))[0]
IB_OFF = 0x2100000
IB_G = 4 * 3 * 10240
FL_OFF = 0x2080000
```

```python
from asmlib import *
from common import *

P1_LDS = 163840
R0, R1, R2, R3, R4 = 0, 32768, 65536, 98304, 131072
CS = R4
TAILBIT = 0x30000

class LQ:
    def __init__(s): s.q = []
    def issue(s, tag): s.q.append(tag)
    def wait(s, A, tags):
        idx = max([i for i, t in enumerate(s.q) if t in tags], default=-1)
        if idx < 0: return
        n = len(s.q) - 1 - idx
        assert n <= 15
        A(f"s_waitcnt lgkmcnt({n})")
        s.q = s.q[idx + 1:]
    def clear(s): s.q = []

sX, sWq, sW1, sW3, sK, sV, sA, sWp, sSrc, sSt = 8, 12, 16, 20, 24, 28, 32, 36, 40, 44
sWave, sHead, sRb, sFb, sHasF = 48, 49, 50, 51, 52
sXo, sWqo, sW13o, sM0X, sM0W, sD, sTail, sSlot = 53, 54, 55, 56, 57, 58, 59, 60
sT0, sT1, sT2 = 61, 62, 63
pX, pK, pV, pWq, pWo, pBx, pW1, pW3, pW2, pOut, pDbg, pWs = range(64, 88, 2)
sKVo, sKVm, sDelta, sT, sU, sMask, sXoT, sC0 = 88, 89, 90, 91, 92, 93, 94, 95
sE0 = 96
vLane = 1
vXd, vWqd, vW13d, vXr, vWqr, vW13r = 2, 10, 12, 13, 15, 23
vZero = 27
vSt = 28
vTm = 44
vQ = 64
vAcc = 128
aG, aUp, aCs, aXf, aWf, aOne, aWp = 0, 64, 128, 144, 176, 192, 196
vKr, vVr, vKd, vVd, vL, vOo = 2, 10, 14, 18, 20, 22
vS, vP, vF = 128, 192, 208
aO = 128

def mf16(A, d, a, b, c=None):
    A(f"v_mfma_f32_16x16x32_bf16 {d}, {a}, {b}, {d if c is None else c}")
def mf32(A, d, a, b, c=None):
    A(f"v_mfma_f32_32x32x16_bf16 {d}, {a}, {b}, {d if c is None else c}")

def spread(items, nslots):
    out = [[] for _ in range(nslots)]
    n = len(items)
    for i, it in enumerate(items):
        out[min(nslots - 1, (i * nslots) // n)].append(it)
    return out

def frag_list(ffn):
    fr = [("Q", p) for p in range(8)]
    if ffn:
        for p in range(4): fr += [("G", p), ("U", p)]
    return fr

def wread(fr, k, sec, buf):
    c, p = fr
    if c == "Q": ad, off = vWqr + p, sec * 1024
    else: ad, off = vW13r + p, (2048 if c == "G" else 3072) + sec * 512
    return f"ds_read_b64_tr_b16 {ar(aWf+buf*4+2*sec,2)}, v{ad} offset:{off + k*16384}"

def xread(s, st, rt):
    return f"ds_read_b128 {ar(aXf+st*16+rt*4,4)}, v{vXr+s} offset:{rt*2048}"

def dma_w(ffn, force=False):
    it = [f"s_max_u32 m0, s{sM0W}, s{sTail}",
          f"buffer_load_dwordx4 v{vWqd}, s[{sWq}:{sWq+3}], s{sWqo} offen lds ; @put W",
          f"buffer_load_dwordx4 v{vWqd+1}, s[{sWq}:{sWq+3}], s{sWqo} offen offset:1024 lds ; @put W"]
    if ffn or force:
        it += [f"buffer_load_dwordx4 v{vW13d}, s[{sW1}:{sW1+3}], s{sW13o} offen offset:2048 lds ; @put W",
               f"buffer_load_dwordx4 v{vW13d}, s[{sW3}:{sW3+3}], s{sW13o} offen offset:3072 lds ; @put W"]
    it += [f"s_add_u32 s{sWqo}, s{sWqo}, {32*8192}"]
    if ffn or force: it += [f"s_add_u32 s{sW13o}, s{sW13o}, {32*3456}"]
    it += [f"s_add_u32 s{sSlot}, s{sSlot}, 16384\ns_and_b32 s{sSlot}, s{sSlot}, 0xffff",
           f"s_add_u32 s{sM0W}, s{sSlot}, s{sC0}"]
    return it

def dma_x():
    it = [f"s_max_u32 m0, s{sM0X}, s{sTail}"]
    for j in range(8):
        if j == 4: it.append("s_add_u32 m0, m0, 4096")
        it.append(f"buffer_load_dwordx4 v{vXd+j}, s[{sX}:{sX+3}], s{sXoT} offen offset:{(j%4)*1024} lds ; @put X")
    it += [f"s_add_u32 s{sXo}, s{sXo}, 128", f"s_xor_b32 s{sM0X}, s{sM0X}, 0x18000"]
    return it

def gemm_loop(A, ffn, L):
    fr = frag_list(ffn); nf = len(fr)
    nw = 4 if ffn else 2
    ones = {("Q", 0): 0, ("Q", 1): 1, ("G", 0): 2, ("U", 0): 3}
    lq = LQ()
    for f in range(3):
        lq.issue(("w", f)); lq.issue(("w", f))
    A(".p2align 6")
    A(f"{L}:")
    A(f"s_bitcmp1_b32 s{sMask}, s{sD}")
    A(f"s_cbranch_scc1 {L}_ev")
    A(f"{L}_evret:")
    for k in range(2):
        items = [("x", rt) for rt in range(4)]
        if k == 0:
            items += [f"v_xor_b32 v{vXr}, 0x18000, v{vXr}"]
            items += dma_w(ffn)
            items += [f"s_cmp_ge_u32 s{sD}, 8\ns_cselect_b32 s{sTail}, {TAILBIT}, 0",
                      f"s_lshl_b32 s{sXoT}, s{sTail}, 8\ns_or_b32 s{sXoT}, s{sXoT}, s{sXo}"]
        else:
            items += [f"v_xor_b32 v{vXr+1}, 0x18000, v{vXr+1}"]
            items += dma_x() + dma_w(ffn)
            items += [f"s_add_u32 s{sD}, s{sD}, 1"]
        slots = spread(items, 2 * (nf - 2))
        tog = {}
        if k == 1:
            for f, (c, p) in enumerate(fr):
                if c == "G": continue
                reg = vWqr + p if c == "Q" else vW13r + p
                tog.setdefault(max(f - 3, -1) + 1, []).append(f"v_xor_b32 v{reg}, 0x38000, v{reg}")
        for f in range(nf):
            c, p = fr[f]
            lq.wait(A, [("w", f)] + ([("x", k)] if f == 0 else []))
            buf = f % 4
            for rt in range(4):
                if c == "Q": d = vr(vAcc + (p * 4 + rt) * 4, 4)
                else: d = ar((aG if c == "G" else aUp) + (p * 4 + rt) * 4, 4)
                mf16(A, d, ar(aWf + buf * 4, 4), ar(aXf + k * 16 + rt * 4, 4))
                if f + 3 < nf and rt < 2:
                    A(wread(fr[f + 3], k, rt, (f + 3) % 4)); lq.issue(("w", f + 3))
                if f == nf - 2:
                    A(wread(fr[rt // 2], 1 - k, rt % 2, (rt // 2) % 4)); lq.issue(("w", rt // 2))
                if f == nf - 1 and rt < 2:
                    A(wread(fr[2], 1 - k, rt, 2)); lq.issue(("w", 2))
                if rt >= 2 and f < nf - 2:
                    for it in slots[2 * f + rt - 2]:
                        if isinstance(it, tuple):
                            A(xread(1 - k, 1 - k, it[1])); lq.issue(("x", 1 - k))
                        else:
                            if "lds" in it and A.lines[-1].split()[1].startswith("m0"): A("s_nop 0")
                            A(it)
                if rt == 3:
                    for t in tog.get(f, []): A(t)
            if fr[f] in ones:
                mf16(A, ar(aCs + ones[fr[f]] * 4, 4), ar(aWf + buf * 4, 4), ar(aOne, 4))
            if f == nf - 3:
                n = 2 * nw if k == 0 else 2 * nw + 8
                A(f"s_waitcnt vmcnt({n}) lgkmcnt(0)")
                lq.clear()
                A(f"s_barrier ; @need W {2*nw}" + (" @need X 0" if k == 0 else ""))
    A(f"s_cmp_lt_u32 s{sD}, 10")
    A(f"s_cbranch_scc1 {L}")
    assert lq.q == [("w", 0), ("w", 0), ("w", 1), ("w", 1), ("w", 2), ("w", 2)], lq.q

def gemm_events(A, L):
    A(f"{L}_ev:")
    A(f"s_cmp_eq_u32 s{sD}, 7")
    A(f"s_cbranch_scc1 {L}_ev7")
    A(f"s_cmp_eq_u32 s{sD}, 8")
    A(f"s_cbranch_scc1 {L}_ev8")
    A(f"s_cmp_lg_u32 s{sWave}, 0 ; @need S 0")
    A(f"s_cbranch_scc1 {L}_evret")
    A(f"v_mov_b32 v{vTm+1}, 1")
    A(f"s_mov_b64 exec, 1")
    A(f"global_atomic_add v{vTm+2}, v{vTm+1}, s[{pDbg}:{pDbg+1}] sc1")
    A(f"s_mov_b64 exec, -1")
    A(f"s_branch {L}_evret")
    A(f"{L}_ev7:")
    A(f"global_load_dword v{vTm}, v{vTm+2}, s[{pDbg}:{pDbg+1}] sc1")
    A(f"s_branch {L}_evret")
    A(f"{L}_ev8:")
    A(f"s_waitcnt vmcnt(12)")
    A(f"s_mov_b32 s{sT1}, 0")
    A(f"{L}_chk:")
    A(f"v_readfirstlane_b32 s{sT0}, v{vTm} ; poll")
    A("s_nop 3")
    A(f"s_cmp_ge_u32 s{sT0}, 32")
    A(f"s_cbranch_scc1 {L}_rdy")
    A(f"s_add_u32 s{sT1}, s{sT1}, 1")
    A(f"s_cmp_ge_u32 s{sT1}, 0x40000")
    A(f"s_cbranch_scc1 {L}_rdy")
    A("s_sleep 2")
    A(f"global_load_dword v{vTm}, v{vTm+2}, s[{pDbg}:{pDbg+1}] sc1")
    A("s_waitcnt vmcnt(0)")
    A(f"s_branch {L}_chk")
    A(f"{L}_rdy:")
    A(f"s_lshl_b32 s{sT0}, s{sRb}, 2")
    A(f"s_add_u32 s{sT0}, s{sT0}, s{sWave}")
    A(f"s_lshl_b32 s{sT0}, s{sT0}, 10")
    for rt in range(4):
        A(f"buffer_load_dwordx4 {vr(vSt+4*rt,4)}, v{vTm+3}, s[{sSt}:{sSt+3}], s{sT0} offen offset:{rt*256} sc1")
    A(f"s_branch {L}_evret")

def kv_addr(A, base_expr_sgpr):
    t0, t1, t2, t3 = vTm + 12, vTm + 13, vTm + 14, vTm + 15
    A(f"v_and_b32 v{t0}, 31, v{vLane}")
    A(f"v_lshrrev_b32 v{t1}, 5, v{vLane}")
    A(f"v_and_b32 v{t2}, 15, v{vLane}")
    A(f"v_xor_b32 v{t2}, v{t2}, v{t1}")
    A(f"s_lshl_b32 s{sT0}, s{sWave}, 2")
    A(f"v_xor_b32 v{t2}, s{sT0}, v{t2}")
    A(f"v_lshlrev_b32 v{t2}, 4, v{t2}")
    A(f"v_lshl_add_u32 v{t2}, v{t0}, 8, v{t2}")
    A(f"v_add_u32 v{vKr}, s{base_expr_sgpr}, v{t2}")
    for p in range(1, 8): A(f"v_xor_b32 v{vKr+p}, {32*p}, v{vKr}")
    A(f"v_bfe_u32 v{t0}, v{vLane}, 2, 2")
    A(f"v_lshl_add_u32 v{t2}, v{t1}, 2, v{t0}")
    A(f"v_lshlrev_b32 v{t2}, 8, v{t2}")
    A(f"v_lshl_add_u32 v{t2}, v{t0}, 6, v{t2}")
    A(f"v_bfe_u32 v{t3}, v{vLane}, 1, 1")
    A(f"v_lshl_add_u32 v{t2}, v{t3}, 5, v{t2}")
    A(f"v_bfe_u32 v{t3}, v{vLane}, 4, 1")
    A(f"v_lshl_add_u32 v{t2}, v{t3}, 4, v{t2}")
    A(f"v_and_b32 v{t3}, 1, v{vLane}")
    A(f"v_lshl_add_u32 v{t2}, v{t3}, 3, v{t2}")
    A(f"s_add_u32 s{sT0}, s{base_expr_sgpr}, 16384")
    A(f"v_add_u32 v{vVr}, s{sT0}, v{t2}")
    for dt in range(1, 4): A(f"v_xor_b32 v{vVr+dt}, {64*dt}, v{vVr}")

def kv_dma():
    it = [f"s_mov_b32 m0, s{sKVm}"]
    for j in range(4):
        it.append(f"buffer_load_dwordx4 v{vKd+j}, s[{sK}:{sK+3}], s{sKVo} offen offset:{j*1024} lds")
    it.append("s_add_u32 m0, m0, 16384")
    for j in range(4):
        it.append(f"buffer_load_dwordx4 v{vVd}, s[{sV}:{sV+3}], s{sKVo} offen offset:{j*1024} lds")
    return it

def kread(p, tile, buf):
    return f"ds_read_b128 {vr(vF+buf*4,4)}, v{vKr+p} offset:{tile*8192}"
def vread(ks, dt, tile, sec, buf):
    return f"ds_read_b64_tr_b16 {vr(vF+buf*4+2*sec,2)}, v{vVr+dt} offset:{(32*tile+16*ks+8*sec)*256}"

def sm_reg(buf, e):
    qt = (e >> 3) & 1; ks = e >> 4
    return vS + (buf * 2 + qt) * 16 + ks * 8 + (e & 7), qt, ks
def sm_exp(buf, e):
    r, _, _ = sm_reg(buf, e); return [f"v_exp_f32 v{r}, v{r}"]
def sm_post(buf, e):
    r, qt, ks = sm_reg(buf, e)
    o = [f"v_add_f32 v{vL+qt}, v{vL+qt}, v{r}"]
    if e & 1: o.append(f"v_cvt_pk_bf16_f32 v{vP+(qt*2+ks)*4+((e&7)>>1)}, v{r-1}, v{r}")
    return o

def attn_seg(A, lq, seg, extra, mfma=True, sm_lo=0, sm_hi=64, look=True):
    def rd(phi, part):
        s = (phi // 8) % 4; i = phi % 8; buf = phi % 4
        if s in (0, 2):
            return kread(i, 1 if s == 0 else 0, buf) if part == 0 else None
        return vread(i // 4, i % 4, 0 if s == 1 else 1, part, buf)
    for i in range(8):
        phi = seg * 8 + i
        if mfma: lq.wait(A, [("f", phi)])
        for qt in range(2):
            slot = seg * 16 + 2 * i + qt
            if mfma:
                if seg in (0, 2):
                    sb = 1 if seg == 0 else 0
                    d = vr(vS + (sb * 2 + qt) * 16, 16)
                    mf32(A, d, vr(vF + (phi % 4) * 4, 4), vr(vQ + (qt * 8 + i) * 4, 4), "0" if i == 0 else None)
                else:
                    ks, dt = i // 4, i % 4
                    mf32(A, ar(aO + (qt * 4 + dt) * 16, 16), vr(vF + (phi % 4) * 4, 4), vr(vP + (qt * 2 + ks) * 4, 4))
            for it in extra.get((slot, "pre"), []): A(it)
            for (buf, start) in ((1, 22), (0, 54)):
                e = (slot - start) % 64
                if e < 32 and (buf, "exp") in sm_ok(slot, sm_lo, sm_hi, buf, e):
                    for x in sm_exp(buf, e): A(x)
            for (buf, start) in ((1, 22), (0, 54)):
                e = (slot - start - 1) % 64
                if e < 32 and (buf, "exp") in sm_ok((slot - 1) % 64, sm_lo, sm_hi, buf, e):
                    for x in sm_post(buf, e): A(x)
            nphi = (phi + 3) % 32
            nseg = nphi // 8
            if look is True or nseg in look:
                r = rd(nphi, qt)
                if r: A(r); lq.issue(("f", nphi))
            for it in extra.get(slot, []):
                if "lds" in it and A.lines[-1].split()[1].startswith("m0"): A("s_nop 0")
                A(it)
def sm_ok(slot, lo, hi, buf, e):
    return {(buf, "exp")} if (lo <= slot < hi) else set()

def gen_p1(A, name, stamps=False, code_bytes=20480):
    head(A, name)
    L = "p1_"
    A("s_cmp_ge_u32 s2, 256")
    A(f"s_cbranch_scc1 {L}end")
    A("s_load_dwordx16 s[64:79], s[0:1], 0")
    A("s_load_dwordx8 s[80:87], s[0:1], 64")
    def stamp(i):
        if not stamps: return
        A(f"s_memtime s[96:97]")
        A(f"s_memrealtime s[98:99]")
        A("s_waitcnt lgkmcnt(0)")
        A(f"v_mov_b32 v{vTm+18}, s96"); A(f"v_mov_b32 v{vTm+19}, s98")
        A(f"s_lshl_b32 s96, s2, 2"); A(f"s_add_u32 s96, s96, s{sWave}"); A("s_lshl_b32 s96, s96, 7")
        A(f"v_mov_b32 v{vTm+17}, s96")
        A(f"s_add_u32 s100, s{pWs}, 0x3100000"); A(f"s_addc_u32 s101, s{pWs+1}, 0")
        A(f"global_store_dwordx2 v{vTm+17}, {vr(vTm+18,2)}, s[100:101] offset:{i*8}")
    A(f"v_and_b32 v{vLane}, 63, v0")
    A("v_lshrrev_b32 v0, 6, v0")
    A("s_and_b32 s3, s2, 7")
    A(f"v_readfirstlane_b32 s{sWave}, v0")
    A(f"s_lshr_b32 s{sT0}, s2, 3")
    A(f"s_lshr_b32 s{sRb}, s{sT0}, 2")
    A(f"s_and_b32 s{sT1}, s{sT0}, 3")
    A(f"s_lshl2_add_u32 s{sHead}, s3, s{sT1}")
    A("s_getpc_b64 s[4:5]")
    A(f"s_and_b32 s6, s{sT0}, 7")
    A(f"s_lshl2_add_u32 s6, s6, s{sWave}")
    A("s_lshl_b32 s6, s6, 10")
    A(f"s_min_u32 s6, s6, {code_bytes-1024}")
    A(f"v_lshl_add_u32 v{vTm+4}, v{vLane}, 4, s6")
    A(f"global_load_dwordx4 {vr(vTm+8,4)}, v{vTm+4}, s[4:5]")
    A(f"s_sub_u32 s{sT2}, s3, s{sRb}")
    A(f"s_add_u32 s{sT2}, s{sT2}, 3")
    A(f"s_and_b32 s{sT2}, s{sT2}, 7")
    A(f"s_mul_i32 s{sFb}, s3, 3")
    A(f"s_add_u32 s{sFb}, s{sFb}, s{sT1}")
    A(f"s_add_u32 s6, s{sT2}, 24")
    A(f"s_cmp_eq_u32 s{sT1}, 3")
    A(f"s_cselect_b32 s{sFb}, s6, s{sFb}")
    A(f"s_cmp_lt_u32 s{sFb}, 27")
    A(f"s_cselect_b32 s{sHasF}, 1, 0")
    t = vTm
    A(f"v_lshrrev_b32 v{t+5}, 5, v{vLane}")
    A(f"v_and_b32 v{t+6}, 31, v{vLane}")
    A(f"v_mul_u32_u24 v{t+6}, 40, v{t+6}")
    A(f"s_movk_i32 s6, 1280")
    A(f"v_mad_u32_u24 v{t+6}, v{t+5}, s6, v{t+6}")
    A(f"s_lshl_b32 s6, s{sRb}, 5")
    A(f"s_add_u32 s6, s6, s{sHead}")
    A(f"s_lshl2_add_u32 s6, s6, s{sWave}")
    A(f"s_lshl_b32 s7, s6, 1")
    A(f"s_mul_i32 s6, s6, 2560")
    A("s_waitcnt lgkmcnt(0)")
    srd(A, sX, pX, pX + 1, X_SIZE)
    A(f"buffer_load_dwordx4 {vr(vQ,4)}, v{t+6}, s[{sX}:{sX+3}], s6 offen")
    A(f"buffer_load_dwordx4 {vr(vQ+4,4)}, v{t+6}, s[{sX}:{sX+3}], s6 offen offset:16")
    A(f"buffer_load_dwordx2 {vr(vQ+8,2)}, v{t+6}, s[{sX}:{sX+3}], s6 offen offset:32")
    stamp(0)
    A(f"v_add_u32 v{t+5}, s7, v{t+5}")
    A(f"v_lshlrev_b32 v{t+5}, 4, v{t+5}")
    A(f"v_lshrrev_b32 v{t+7}, 3, v{vLane}")
    A(f"v_and_b32 v{t+6}, 7, v{vLane}")
    A(f"v_lshrrev_b32 v{t+12}, 4, v{vLane}")
    A(f"v_xor_b32 v{t+13}, v{t+6}, v{t+12}")
    A(f"v_lshlrev_b32 v{t+13}, 4, v{t+13}")
    A(f"s_movk_i32 s6, 1280")
    A(f"v_mad_u32_u24 v{vXd}, v{t+7}, s6, v{t+13}")
    A(f"v_xor_b32 v{t+13}, 64, v{vXd}")
    for j in range(1, 8):
        A(f"v_add_u32 v{vXd+j}, {j*10240-(j%4)*1024}, v{(t+13) if j&1 else vXd}")
    A(f"s_lshl2_add_u32 s6, s{sRb}, s{sWave}")
    A(f"s_mul_i32 s{sXo}, s6, {64*1280}")
    A(f"s_mov_b32 s{sXoT}, s{sXo}")
    A(f"s_mul_i32 s7, s6, {A_BLK}")
    A(f"s_add_u32 s{sA}, s{pWs}, s7")
    A(f"s_addc_u32 s{sA+1}, s{pWs+1}, 0")
    srd(A, sA, sA, sA + 1, A_BLK)
    A(f"s_lshl_b32 s{sM0X}, s{sWave}, 13")
    A(f"s_add_u32 s{sM0X}, s{sM0X}, {R1}")
    A(f"s_mov_b32 s{sTail}, 0")
    def emit(items):
        for it in items:
            if "lds" in it and A.lines[-1].split()[1].startswith("m0"): A("s_nop 0")
            A(it)
    emit(dma_x())
    A(f"s_mov_b32 s{sXoT}, s{sXo}")
    A(f"s_and_b32 s6, s{sWave}, 1")
    A(f"s_lshl_b32 s7, s6, 2")
    A(f"v_add_u32 v{t+13}, s7, v{t+12}")
    A(f"v_lshlrev_b32 v{t+13}, 1, v{t+13}")
    A(f"v_and_b32 v{t+14}, 15, v{vLane}")
    A(f"v_xor_b32 v{t+13}, v{t+13}, v{t+14}")
    A(f"v_lshlrev_b32 v{t+13}, 4, v{t+13}")
    A(f"s_lshl_b32 s7, s{sWave}, 3")
    A(f"v_add_u32 v{t+15}, s7, v{t+12}")
    A(f"v_lshl_add_u32 v{vWqd}, v{t+15}, 13, v{t+13}")
    A(f"v_add_u32 v{vWqd+1}, {4*8192-1024}, v{vWqd}")
    A(f"v_bfe_u32 v{t+13}, v{vLane}, 4, 1")
    A(f"s_lshl_b32 s6, s6, 1")
    A(f"v_add_u32 v{t+13}, s6, v{t+13}")
    A(f"v_lshlrev_b32 v{t+13}, 1, v{t+13}")
    A(f"v_xor_b32 v{t+13}, v{t+13}, v{t+6}")
    A(f"v_lshlrev_b32 v{t+13}, 4, v{t+13}")
    A(f"v_add_u32 v{t+15}, s7, v{t+7}")
    A(f"s_movk_i32 s6, 3456")
    A(f"v_mad_u32_u24 v{vW13d}, v{t+15}, s6, v{t+13}")
    srd(A, sWq, pWq, pWq + 1, 640 * 8192)
    for (d, p, sh) in ((sW1, pW1, 2048), (sW3, pW3, 3072)):
        A(f"s_sub_u32 s{d}, s{p}, {sh}")
        A(f"s_subb_u32 s{d+1}, s{p+1}, 0")
        A(f"s_and_b32 s{d+1}, s{d+1}, 0xffff")
        A(f"s_mul_i32 s{d+2}, s{sHasF}, {640*3456+sh}")
        A(f"s_mov_b32 s{d+3}, 0x20000")
    A(f"s_lshl_b32 s{sWqo}, s{sHead}, 8")
    A(f"s_lshl_b32 s{sW13o}, s{sFb}, 7")
    A(f"s_lshl_b32 s{sC0}, s{sWave}, 12")
    A(f"s_add_u32 s{sC0}, s{sC0}, {R3}")
    A(f"s_mov_b32 s{sM0W}, s{sC0}")
    A(f"s_mov_b32 s{sSlot}, 0")
    emit(dma_w(True)); emit(dma_w(True)); emit(dma_x()); emit(dma_w(True))
    A(f"v_lshrrev_b32 v{t+13}, 4, v{vLane}")
    A(f"v_lshlrev_b32 v{t+13}, 1, v{t+13}")
    A(f"v_xor_b32 v{t+13}, v{t+13}, v{t+6}")
    A(f"v_lshlrev_b32 v{t+13}, 4, v{t+13}")
    A(f"s_movk_i32 s6, 1280")
    A(f"v_mad_u32_u24 v{t+13}, v{t+7}, s6, v{t+13}")
    A(f"s_lshl2_add_u32 s{sU}, s2, s{sWave}")
    A(f"s_lshl_b32 s{sU}, s{sU}, 1")
    for i in range(2):
        A(f"s_add_u32 s{sT0}, s{sU}, {i}")
        A(f"s_mul_hi_u32 s{sT1}, s{sT0}, 0x1999999a")
        A(f"s_mul_i32 s{sT2}, s{sT1}, 10")
        A(f"s_sub_u32 s{sT2}, s{sT0}, s{sT2}")
        A(f"s_lshl_b32 s{sT2}, s{sT2}, 7")
        A(f"s_cmp_lt_u32 s{sT1}, 128")
        A(f"s_cselect_b32 s{sSrc}, s{pWo}, s{pW2}")
        A(f"s_cselect_b32 s{sSrc+1}, s{pWo+1}, s{pW2+1}")
        A(f"s_mov_b32 s{sSrc+2}, {1728*1280}")
        A(f"s_cselect_b32 s{sSrc+2}, {4096*1280}, s{sSrc+2}")
        A(f"s_and_b32 s{sSrc+1}, s{sSrc+1}, 0xffff")
        A(f"s_mov_b32 s{sSrc+3}, 0x20000")
        A(f"s_and_b32 s{sT1}, s{sT1}, 127")
        A(f"s_mul_i32 s{sT1}, s{sT1}, 40960")
        A(f"s_add_u32 s{sT1}, s{sT1}, s{sT2}")
        A(f"s_lshl_b32 s{sT2}, s{sWave}, 13")
        A(f"s_add_u32 m0, s{sT2}, {R0 + i*4096}")
        for rg in range(4):
            if rg: A(f"s_add_u32 s{sT1}, s{sT1}, {10240-1024}")
            else: A("s_nop 0")
            A(f"buffer_load_dwordx4 v{t+13}, s[{sSrc}:{sSrc+3}], s{sT1} offen offset:{rg*1024} lds ; @put P")
    A(f"v_and_b32 v{t+14}, 15, v{vLane}")
    A(f"v_lshrrev_b32 v{t+13}, 1, v{t+14}")
    A(f"v_xor_b32 v{t+13}, v{t+13}, v{t+12}")
    A(f"v_lshlrev_b32 v{t+13}, 4, v{t+13}")
    A(f"v_lshl_add_u32 v{t+13}, v{t+14}, 7, v{t+13}")
    A(f"s_lshl_b32 s6, s{sWave}, 13")
    A(f"s_add_u32 s6, s6, {R1}")
    A(f"v_add_u32 v{vXr}, s6, v{t+13}")
    A(f"v_xor_b32 v{vXr+1}, 64, v{vXr}")
    A(f"v_lshlrev_b32 v{t+3}, 4, v{t+14}")
    A(f"v_bfe_u32 v{t+14}, v{vLane}, 2, 2")
    A(f"v_and_b32 v{t+15}, 3, v{vLane}")
    A(f"v_lshlrev_b32 v{t+15}, 3, v{t+15}")
    A(f"v_lshl_add_u32 v{t+15}, v{t+12}, 12, v{t+15}")
    A(f"v_add_u32 v{t+15}, {R3}, v{t+15}")
    A(f"v_bfe_u32 v{t+16}, v{vLane}, 4, 1")
    A(f"v_lshl_add_u32 v{t+13}, v{t+16}, 2, v{t+14}")
    A(f"s_lshl_b32 s6, s{sWave}, 1")
    A(f"v_xor_b32 v{t+13}, s6, v{t+13}")
    A(f"v_lshl_add_u32 v{t+13}, v{t+13}, 5, v{t+15}")
    A(f"v_lshl_add_u32 v{vWqr}, v{t+14}, 8, v{t+13}")
    for p in range(1, 8): A(f"v_xor_b32 v{vWqr+p}, {32*p}, v{vWqr}")
    A(f"v_lshrrev_b32 v{t+13}, 1, v{t+14}")
    A(f"v_lshl_add_u32 v{t+13}, v{t+16}, 1, v{t+13}")
    A(f"v_xor_b32 v{t+13}, s{sWave}, v{t+13}")
    A(f"v_lshl_add_u32 v{t+13}, v{t+13}, 5, v{t+15}")
    A(f"v_lshl_add_u32 v{vW13r}, v{t+14}, 7, v{t+13}")
    for p in range(1, 4): A(f"v_xor_b32 v{vW13r+p}, {32*p}, v{vW13r}")
    srd(A, sK, pK, pK + 1, 16777216)
    srd(A, sV, pV, pV + 1, 16777216)
    A(f"s_add_u32 s{sWp}, s{pWs}, {W_OFF}")
    A(f"s_addc_u32 s{sWp+1}, s{pWs+1}, 0")
    srd(A, sWp, sWp, sWp + 1, W_SIZE)
    A(f"s_add_u32 s{sSt}, s{pWs}, {ST_OFF}")
    A(f"s_addc_u32 s{sSt+1}, s{pWs+1}, 0")
    srd(A, sSt, sSt, sSt + 1, 2048 * 16)
    A(f"s_lshl_b32 s6, s{sRb}, 2")
    A(f"v_mov_b32 v{t+2}, s6")
    A(f"s_movk_i32 s{sMask}, 0x182")
    A(f"s_mov_b32 s{sD}, 0")
    for i in range(4): A(f"v_mov_b32 v{vSt+i}, 0")
    A(f"v_mov_b32 v{t+13}, 0x3f803f80")
    for i in range(4): A(f"v_accvgpr_write_b32 a{aOne+i}, v{t+13}")
    z = vr(vSt, 4)
    for i in range(8): mf32(A, vr(vAcc + 16 * i, 16), z, z, "0")
    for i in range(9): mf32(A, ar(16 * i, 16), z, z, "0")
    nvm = 8 + 4 + 4 + 8 + 4 + 8 + (1 if stamps else 0)
    A(f"s_waitcnt vmcnt({nvm})")
    u = vQ + 12
    for i in range(10):
        A(f"v_lshlrev_b32 v{u+2*i}, 16, v{vQ+i}")
        A(f"v_and_b32 v{u+2*i+1}, 0xffff0000, v{vQ+i}")
    a = vQ + 32
    def tree(dst):
        for i in range(5): A(f"v_pk_add_f32 {vr(a+2*i,2)}, {vr(dst+4*i,2)}, {vr(dst+4*i+2,2)}")
        A(f"v_pk_add_f32 {vr(a,2)}, {vr(a,2)}, {vr(a+2,2)}")
        A(f"v_pk_add_f32 {vr(a+4,2)}, {vr(a+4,2)}, {vr(a+6,2)}")
        A(f"v_pk_add_f32 {vr(a,2)}, {vr(a,2)}, {vr(a+8,2)}")
        A(f"v_pk_add_f32 {vr(a,2)}, {vr(a,2)}, {vr(a+4,2)}")
        A(f"v_add_f32 v{a}, v{a}, v{a+1}")
        for sh in (8, 4, 2, 1):
            A("s_nop 1")
            A(f"v_add_f32_dpp v{a}, v{a}, v{a} row_ror:{sh} row_mask:0xf bank_mask:0xf")
        A(f"v_mov_b32 v{a+1}, v{a}")
        A("s_nop 1")
        A(f"v_permlane16_swap_b32 v{a}, v{a+1}")
        A(f"v_add_f32 v{a}, v{a}, v{a+1}")
    tree(u)
    o = vQ + 44
    A(f"v_mul_f32 v{o}, {hex(f2u(-1.0/640))}, v{a}")
    for i in range(10): A(f"v_pk_add_f32 {vr(u+2*i,2)}, {vr(u+2*i,2)}, {vr(o,2)} op_sel_hi:[1,0]")
    for i in range(10): A(f"v_pk_mul_f32 {vr(u+2*i,2)}, {vr(u+2*i,2)}, {vr(u+2*i,2)}")
    tree(u)
    A(f"v_mov_b32 v{o+3}, {hex(f2u(1e-5))}")
    A(f"v_fmac_f32 v{o+3}, {hex(f2u(1.0/640))}, v{a}")
    A(f"v_mov_b32 v{o+2}, v{o+3}")
    A(f"v_rsq_f32 v{o+1}, v{o+3}")
    A("s_mov_b32 exec_lo, 1")
    A("s_mov_b32 exec_hi, 1")
    A(f"buffer_store_dwordx4 {vr(o,4)}, v{t+5}, s[{sSt}:{sSt+3}], 0 offen sc1 ; @put S")
    A("s_mov_b64 exec, -1")
    A(f"s_waitcnt vmcnt({4+8+4+8+1})")
    A("s_barrier")
    stamp(1)
    for rt in range(4): A(xread(0, 0, rt))
    A(f"s_cmp_eq_u32 s{sHasF}, 0")
    fr = frag_list(True)
    for f in range(3):
        for sec in range(2): A(wread(fr[f], 0, sec, f))
    A("s_waitcnt lgkmcnt(6)")
    A(f"s_cbranch_scc1 {L}gn")
    gemm_loop(A, True, L + "gf")
    A(f"s_branch {L}gdone")
    gemm_events(A, L + "gf")
    gemm_events(A, L + "gn")
    gemm_loop(A, False, L + "gn")
    A(f"{L}gdone:")
    stamp(2)
    A(f"v_bfe_u32 v{t+14}, v{vLane}, 2, 2")
    A(f"v_bfe_u32 v{t+16}, v{vLane}, 4, 1")
    A(f"v_lshl_add_u32 v{t+14}, v{t+16}, 2, v{t+14}")
    A(f"v_lshrrev_b32 v{t+13}, 1, v{t+14}")
    A(f"v_lshlrev_b32 v{t+13}, 5, v{t+13}")
    A(f"v_lshl_add_u32 v{t+13}, v{t+14}, 7, v{t+13}")
    A(f"v_lshrrev_b32 v{t+15}, 5, v{vLane}")
    A(f"v_lshl_add_u32 v{t+13}, v{t+15}, 10, v{t+13}")
    A(f"v_and_b32 v{t+15}, 3, v{vLane}")
    A(f"v_lshl_add_u32 v{t+13}, v{t+15}, 3, v{t+13}")
    A(f"s_lshl_b32 s6, s{sWave}, 13")
    A(f"v_add_u32 v{t+4}, s6, v{t+13} ; @need P 0")
    for i4 in range(1, 4): A(f"v_xor_b32 v{t+4+i4}, {32*i4}, v{t+4}")
    for su in range(2):
        for i4 in range(4):
            for sec in range(2):
                A(f"ds_read_b64_tr_b16 {ar(aWp+(su*4+i4)*4+2*sec,2)}, v{t+4+i4} offset:{R0+su*4096+sec*2048}")
    A(f"v_lshrrev_b32 v{t+12}, 4, v{vLane}")
    A(f"v_lshlrev_b32 v{t+12}, 4, v{t+12}")
    A(f"s_lshl_b32 s6, s{sWave}, 7")
    A(f"s_add_u32 s6, s6, {CS}")
    A(f"v_add_u32 v{t+8}, s6, v{t+12}")
    A(f"s_lshl_b32 s6, s{sWave}, 6")
    A(f"s_add_u32 s6, s6, {CS+512}")
    A(f"v_add_u32 v{t+9}, s6, v{t+12}")
    A("s_mov_b32 exec_lo, 0x00010001")
    A("s_mov_b32 exec_hi, 0x00010001")
    A(f"ds_write_b128 v{t+8}, {ar(aCs,4)}")
    A(f"ds_write_b128 v{t+8}, {ar(aCs+4,4)} offset:64")
    A(f"ds_write_b128 v{t+9}, {ar(aCs+8,4)}")
    A(f"ds_write_b128 v{t+9}, {ar(aCs+12,4)} offset:256")
    A("s_mov_b64 exec, -1")
    A(f"v_lshrrev_b32 v{t+12}, 4, v{vLane}")
    A(f"v_and_b32 v{t+14}, 15, v{vLane}")
    A(f"v_xor_b32 v{t+13}, v{t+14}, v{t+12}")
    A(f"v_lshlrev_b32 v{t+13}, 4, v{t+13}")
    A(f"v_lshl_add_u32 v{vKd}, v{t+12}, 8, v{t+13}")
    for j in range(1, 4): A(f"v_xor_b32 v{vKd+j}, {64*j}, v{vKd}")
    A(f"v_lshlrev_b32 v{t+13}, 2, v{t+12}")
    A(f"v_xor_b32 v{t+13}, v{t+13}, v{t+14}")
    A(f"v_lshlrev_b32 v{t+13}, 4, v{t+13}")
    A(f"v_lshl_add_u32 v{vVd}, v{t+12}, 8, v{t+13}")
    A(f"s_lshl_b32 s{sKVo}, s{sHead}, 19")
    A(f"s_lshl_b32 s{sKVm}, s{sWave}, 12")
    A(f"s_add_u32 s{sKVo}, s{sKVo}, s{sKVm}")
    A(f"s_add_u32 s{sKVo}, s{sKVo}, {1536*256}")
    A("s_waitcnt lgkmcnt(0)")
    A("s_barrier")
    for st in range(4):
        emit(kv_dma())
        A(f"s_add_u32 s{sKVo}, s{sKVo}, 16384")
        A(f"s_add_u32 s{sKVm}, s{sKVm}, 32768")
    A(f"v_lshlrev_b32 v{t+10}, 4, v{vLane}")
    A(f"s_lshl_b32 s6, s{sU}, 12")
    for su in range(2):
        for i4 in range(4):
            A(f"buffer_store_dwordx4 {ar(aWp+(su*4+i4)*4,4)}, v{t+10}, s[{sWp}:{sWp+3}], s6 offen offset:{i4*1024}")
        if su == 0: A("s_add_u32 s6, s6, 4096")
    csb = [vKr, vKr + 4, vVr + 0]
    lq = LQ()
    def csread_q(p):
        A(f"v_xor_b32 v{t+11}, {64*p}, v{t+8}")
        A(f"ds_read_b128 {vr(csb[p%3],4)}, v{t+11}"); lq.issue(("c", p))
    csread_q(0); csread_q(1)
    A("s_waitcnt vmcnt(40)")
    for rt in range(4):
        q = vSt + 4 * rt
        A(f"v_mul_f32 v{q+3}, {hex(f2u(LOG2E/128**0.5))}, v{q+1}")
        A(f"v_mul_f32 v{q+1}, {hex(f2u(-LOG2E))}, v{q+1}")
    z = vr(vTm + 12, 4)
    for i in range(4): A(f"v_mov_b32 v{vTm+12+i}, 0")
    for p in range(8):
        if p + 2 < 8: csread_q(p + 2)
        lq.wait(A, [("c", p)])
        c = csb[p % 3]
        for rt in range(4):
            d = vAcc + (p * 4 + rt) * 4; q = vSt + 4 * rt
            for h in range(2):
                A(f"v_pk_fma_f32 {vr(d+2*h,2)}, {vr(c+2*h,2)}, {vr(q,2)}, {vr(d+2*h,2)} op_sel_hi:[1,0,1]")
        mf32(A, ar(aO + 16 * p, 16), z, z, "0")
        for rt in range(4):
            d = vAcc + (p * 4 + rt) * 4; q = vSt + 4 * rt
            for h in range(2):
                A(f"v_pk_mul_f32 {vr(d+2*h,2)}, {vr(d+2*h,2)}, {vr(q+2,2)} op_sel:[0,1]")
        for rt in range(4):
            d = vAcc + (p * 4 + rt) * 4
            f = vQ + ((rt // 2) * 8 + p) * 4 + (rt & 1) * 2
            for h in range(2): A(f"v_cvt_pk_bf16_f32 v{f+h}, v{d+2*h}, v{d+2*h+1}")
        if p > 0:
            for qt in range(2):
                f = vQ + (qt * 8 + p - 1) * 4
                for h in range(2): A(f"v_permlane16_swap_b32 v{f+h}, v{f+2+h}")
    A("s_nop 0")
    for qt in range(2):
        f = vQ + (qt * 8 + 7) * 4
        for h in range(2): A(f"v_permlane16_swap_b32 v{f+h}, v{f+2+h}")
    stamp(3)
    A(f"s_cmp_eq_u32 s{sHasF}, 0")
    A(f"s_cbranch_scc1 {L}noffn")
    T = vAcc; H = vAcc + 64; C = vAcc + 96
    for p in range(4):
        A(f"v_xor_b32 v{t+11}, {64*p}, v{t+9}")
        A(f"ds_read_b128 {vr(C+8*p,4)}, v{t+11}")
        A(f"ds_read_b128 {vr(C+8*p+4,4)}, v{t+11} offset:256")
    A(f"s_lshr_b32 s7, s{sWave}, 1")
    A(f"s_lshl_b32 s6, s{sFb}, 1")
    A(f"s_add_u32 s6, s6, 128")
    A(f"s_add_u32 s{sT0}, s6, s7")
    A(f"s_xor_b32 s7, s7, 1")
    A(f"s_add_u32 s{sT1}, s6, s7")
    A(f"s_lshl_b32 s{sT0}, s{sT0}, 12")
    A(f"s_lshl_b32 s{sT1}, s{sT1}, 12")
    A("s_waitcnt lgkmcnt(0)")
    for p in range(4):
        for r2 in range(2):
            G = [(2 * r2 + i, T + 12 * i + 24 * ((p * 2 + r2) & 1)) for i in range(2)]
            for rt, b in G:
                for i in range(4): A(f"v_accvgpr_read_b32 v{b+i}, a{aG+(p*4+rt)*4+i}")
                for i in range(4): A(f"v_accvgpr_read_b32 v{b+4+i}, a{aUp+(p*4+rt)*4+i}")
            for rt, b in G:
                for h in range(4):
                    A(f"v_pk_fma_f32 {vr(b+2*h,2)}, {vr(C+8*p+2*h,2)}, {vr(vSt+4*rt,2)}, {vr(b+2*h,2)} op_sel_hi:[1,0,1]")
            for rt, b in G:
                for h in range(2): A(f"v_pk_mul_f32 {vr(b+8+2*h,2)}, {vr(b+2*h,2)}, {vr(vSt+4*rt,2)} op_sel:[0,1]")
            for rt, b in G:
                for i in range(4): A(f"v_exp_f32 v{b+8+i}, v{b+8+i}")
            for rt, b in G:
                for h in range(2): A(f"v_pk_mul_f32 {vr(b+2*h,2)}, {vr(b+2*h,2)}, {vr(b+4+2*h,2)}")
            for rt, b in G:
                for h in range(2):
                    A(f"v_pk_fma_f32 {vr(b+8+2*h,2)}, {vr(b+8+2*h,2)}, {vr(vSt+4*rt+2,2)}, {vr(vSt+4*rt+2,2)} op_sel_hi:[1,0,0]")
            for rt, b in G:
                for i in range(4): A(f"v_rcp_f32 v{b+8+i}, v{b+8+i}")
            for n, (rt, b) in enumerate(G):
                for h in range(2): A(f"v_pk_mul_f32 {vr(b+2*h,2)}, {vr(b+2*h,2)}, {vr(b+8+2*h,2)}")
            for rt, b in G:
                for h in range(2): A(f"v_cvt_pk_bf16_f32 v{H+(p//2)*16+rt*4+(p&1)*2+h}, v{b+2*h}, v{b+2*h+1}")
        if p & 1:
            pi = p // 2
            A(f"s_bitcmp1_b32 s{sWave}, 0")
            A(f"s_cbranch_scc0 {L}nsw{pi}")
            for rt in range(4):
                for h in range(2): A(f"v_swap_b32 v{H+pi*16+rt*4+h}, v{H+pi*16+rt*4+2+h}")
            A(f"{L}nsw{pi}:")
            for rt in range(4):
                A(f"buffer_store_dwordx4 {vr(H+pi*16+rt*4,4)}, v{t+10}, s[{sA}:{sA+3}], s{sT0+pi} offen offset:{rt*1024}")
    A(f"{L}noffn:")
    stamp(4)
    A(f"s_mov_b32 s{sT1}, {R0}")
    kv_addr(A, sT1)
    A(f"v_mov_b32 v{vL}, 0")
    A(f"v_mov_b32 v{vL+1}, 0")
    A(f"s_mov_b32 s{sT}, 0")
    A(f"s_mov_b32 s{sC0}, 32768")
    A("s_waitcnt vmcnt(32)")
    A("s_barrier")
    lq = LQ()
    for p in range(3):
        A(kread(p, 0, p)); lq.issue(("f", 16 + p))
    attn_seg(A, lq, 2, {}, sm_lo=0, sm_hi=0, look=[2])
    for p in range(3):
        A(kread(p, 1, p)); lq.issue(("f", p))
    A("s_nop 7")
    for e in range(10):
        for x in sm_exp(0, e): A(x)
        if e:
            for x in sm_post(0, e - 1): A(x)
    assert lq.q == [("f", 0), ("f", 1), ("f", 2)]
    dm = kv_dma()
    ex = {}
    for p in range(8):
        ex.setdefault(max(2 * (p - 3) + 1, 1) if p >= 3 else 2 * p, []).append(f"v_add_u32 v{vKr+p}, s{sDelta}, v{vKr+p}")
    for dt in range(4):
        ex.setdefault(2 * (28 + dt - 3) + 2, []).append(f"v_add_u32 v{vVr+dt}, s{sDelta}, v{vVr+dt}")
    ex[(26, "pre")] = ["s_waitcnt vmcnt(16)", "s_barrier"]
    for i, sl in enumerate([32, 33, 37, 41, 45, 47, 49, 53, 57, 61]): ex.setdefault(sl, []).append(dm[i])
    ex.setdefault(62, []).append(f"s_add_u32 s{sKVo}, s{sKVo}, 16384")
    ex.setdefault(20, []).append(f"s_add_u32 s{sT}, s{sT}, 1")
    A(".p2align 6")
    A(f"{L}at:")
    A(f"s_cmp_eq_u32 s{sT}, 4")
    A(f"s_cselect_b32 s{sDelta}, {hex((-131072) & 0xffffffff)}, s{sC0}")
    attn_seg(A, lq, 0, ex)
    attn_seg(A, lq, 1, ex)
    A(f"s_cmp_eq_u32 s{sT}, 8")
    A(f"s_cbranch_scc1 {L}attail")
    lq_exit = list(lq.q)
    attn_seg(A, lq, 2, ex)
    attn_seg(A, lq, 3, ex)
    A(f"s_cmp_eq_u32 s{sT}, 1")
    A(f"s_cselect_b32 s{sT0}, {hex((-131072) & 0xffffffff)}, s{sC0}")
    A(f"s_add_u32 s{sKVm}, s{sKVm}, s{sT0}")
    A(f"s_cmp_ge_u32 s{sT}, 4")
    A(f"s_cselect_b32 s{sKVm}, {TAILBIT}, s{sKVm}")
    A(f"s_cselect_b32 s{sKVo}, 0x3000000, s{sKVo}")
    A(f"s_branch {L}at")
    assert lq.q == [("f", 0), ("f", 1), ("f", 2)], lq.q
    A(f"{L}attail:")
    lq.q = lq_exit
    A("s_waitcnt lgkmcnt(0)"); lq.clear()
    attn_seg(A, lq, 2, {}, mfma=False, look=[3])
    attn_seg(A, lq, 3, {}, sm_hi=54, look=[3])
    stamp(5)
    A(f"v_mov_b32 v{t}, v{vL}")
    A(f"v_mov_b32 v{t+1}, v{vL+1}")
    A(f"v_bfe_u32 v{t+2}, v{vLane}, 4, 1")
    A(f"v_lshrrev_b32 v{t+3}, 5, v{vLane}")
    A(f"v_permlane32_swap_b32 v{t}, v{vL}")
    A(f"v_permlane32_swap_b32 v{t+1}, v{vL+1}")
    A(f"v_lshlrev_b32 v{t+3}, 8, v{t+3}")
    A(f"v_add_f32 v{vL}, v{vL}, v{t}")
    A(f"v_add_f32 v{vL+1}, v{vL+1}, v{t+1}")
    A(f"v_lshl_add_u32 v{t+3}, v{t+2}, 10, v{t+3}")
    A(f"v_and_b32 v{t+2}, 15, v{vLane}")
    A(f"v_lshl_add_u32 v{vOo}, v{t+2}, 4, v{t+3}")
    A(f"v_mov_b32 v{t+4}, {hex(f2u(2.0**-40))}")
    A(f"v_mov_b32 v{t+5}, {hex(f2u(2.0**40))}")
    A(f"v_cmp_gt_f32 s[{sE0}:{sE0+1}], v{vL}, v{t+4}")
    A(f"v_cmp_lt_f32 s[{sE0+2}:{sE0+3}], v{vL}, v{t+5}")
    A(f"v_cmp_gt_f32 s[4:5], v{vL+1}, v{t+4}")
    A(f"v_cmp_lt_f32 s[6:7], v{vL+1}, v{t+5}")
    A(f"v_rcp_f32 v{t}, v{vL}")
    A(f"v_rcp_f32 v{t+1}, v{vL+1}")
    A("s_nop 1")
    A(f"s_and_b64 s[{sE0}:{sE0+1}], s[{sE0}:{sE0+1}], s[{sE0+2}:{sE0+3}]")
    A(f"s_and_b64 s[4:5], s[4:5], s[6:7]")
    A(f"s_and_b64 s[4:5], s[4:5], s[{sE0}:{sE0+1}]")
    A(f"s_cmp_eq_u64 s[4:5], exec")
    A(f"s_cbranch_scc0 {L}slow ; slowbr")
    A(f"{L}oep:")
    A(f"s_lshl_b32 s6, s{sHead}, 14")
    n = 0
    for dt in range(4):
        for qt in range(2):
            b = vS + (n % 4) * 16; pk = vP + (n % 4) * 8; n += 1
            for i in range(16): A(f"v_accvgpr_read_b32 v{b+i}, a{aO+(qt*4+dt)*16+i}")
            for i in range(8):
                A(f"v_pk_mul_f32 {vr(b+2*i,2)}, {vr(b+2*i,2)}, {vr(t,2)} " + ("op_sel_hi:[1,0]" if qt == 0 else "op_sel:[0,1]"))
            for i in range(8): A(f"v_cvt_pk_bf16_f32 v{pk+i}, v{b+2*i}, v{b+2*i+1}")
            for j in range(2):
                A(f"buffer_store_dwordx4 {vr(pk+4*j,4)}, v{vOo}, s[{sA}:{sA+3}], s6 offen offset:{qt*2048+j*512}")
        if dt < 3: A("s_add_u32 s6, s6, 4096")
    stamp(6)
    A(f"{L}end:")
    A("s_endpgm")
    A(f"{L}slow:")
    A("s_waitcnt vmcnt(0) lgkmcnt(0)")
    A(f"s_lshl_b32 s{sT1}, s{sWave}, 14")
    A(f"s_add_u32 s{sT1}, s{sT1}, {R3}")
    kv_addr(A, sT1)
    for dt in range(4): A(f"v_subrev_u32 v{vVr+dt}, 8192, v{vVr+dt}")
    vM = vTm + 6
    A(f"v_mov_b32 v{vM}, 0xff800000")
    A(f"v_mov_b32 v{vM+1}, 0xff800000")
    A(f"v_mov_b32 v{vL}, 0")
    A(f"v_mov_b32 v{vL+1}, 0")
    for i in range(4): A(f"v_mov_b32 v{vTm+12+i}, 0")
    A("s_nop 1")
    for i in range(8): mf32(A, ar(aO + 16 * i, 16), vr(vTm + 12, 4), vr(vTm + 12, 4), "0")
    A(f"s_mov_b32 s{sT}, 0")
    A(f"{L}sl:")
    A(f"s_and_b32 s{sT0}, s{sT}, 15")
    A(f"s_lshl_b32 s{sT0}, s{sT0}, 13")
    A(f"s_lshl_b32 s{sKVo}, s{sHead}, 19")
    A(f"s_add_u32 s{sKVo}, s{sKVo}, s{sT0}")
    A(f"s_add_u32 s{sKVo}, s{sKVo}, {1536*256}")
    for hf in range(2):
        A(f"s_add_u32 m0, s{sT1}, {hf*4096}")
        A("s_nop 0")
        for j in range(4): A(f"buffer_load_dwordx4 v{vKd+j}, s[{sK}:{sK+3}], s{sKVo} offen offset:{j*1024} lds")
        A(f"s_add_u32 m0, s{sT1}, {8192+hf*4096}")
        A("s_nop 0")
        for j in range(4): A(f"buffer_load_dwordx4 v{vVd}, s[{sV}:{sV+3}], s{sKVo} offen offset:{j*1024} lds")
        if hf == 0: A(f"s_add_u32 s{sKVo}, s{sKVo}, 4096")
    A("s_waitcnt vmcnt(0)")
    for p in range(8):
        A(kread(p, 0, p % 4))
        A("s_waitcnt lgkmcnt(0)")
        for qt in range(2): mf32(A, vr(vS + qt * 16, 16), vr(vF + (p % 4) * 4, 4), vr(vQ + (qt * 8 + p) * 4, 4), "0" if p == 0 else None)
    A("s_nop 11")
    A(f"s_cmp_ge_u32 s{sT}, 16")
    A(f"s_cbranch_scc1 {L}sl2")
    for qt in range(2):
        for i in range(8): A(f"v_max3_f32 v{vM+qt}, v{vS+qt*16+2*i}, v{vS+qt*16+2*i+1}, v{vM+qt}")
    A(f"s_cmp_lg_u32 s{sT}, 15")
    A(f"s_cbranch_scc1 {L}sl3")
    A(f"v_mov_b32 v{vM+2}, v{vM}")
    A(f"v_mov_b32 v{vM+3}, v{vM+1}")
    A("s_nop 1")
    A(f"v_permlane32_swap_b32 v{vM+2}, v{vM}")
    A(f"v_permlane32_swap_b32 v{vM+3}, v{vM+1}")
    A(f"v_max_f32 v{vM}, v{vM}, v{vM+2}")
    A(f"v_max_f32 v{vM+1}, v{vM+1}, v{vM+3}")
    A(f"s_branch {L}sl3")
    A(f"{L}sl2:")
    for e in range(32):
        r, qt, ks = sm_reg(0, e)
        A(f"v_sub_f32 v{r}, v{r}, v{vM+qt}")
        A(f"v_exp_f32 v{r}, v{r}")
        A("s_nop 0")
        for x in sm_post(0, e): A(x)
    for i in range(8):
        for sec in range(2): A(vread(i // 4, i % 4, 0, sec, i % 4))
        A("s_waitcnt lgkmcnt(0)")
        for qt in range(2): mf32(A, ar(aO + (qt * 4 + i % 4) * 16, 16), vr(vF + (i % 4) * 4, 4), vr(vP + (qt * 2 + i // 4) * 4, 4))
    A(f"{L}sl3:")
    A(f"s_add_u32 s{sT}, s{sT}, 1")
    A(f"s_cmp_lt_u32 s{sT}, 32")
    A(f"s_cbranch_scc1 {L}sl")
    A(f"v_mov_b32 v{t}, v{vL}")
    A(f"v_mov_b32 v{t+1}, v{vL+1}")
    A("s_nop 1")
    A(f"v_permlane32_swap_b32 v{t}, v{vL}")
    A(f"v_permlane32_swap_b32 v{t+1}, v{vL+1}")
    A(f"v_add_f32 v{vL}, v{vL}, v{t}")
    A(f"v_add_f32 v{vL+1}, v{vL+1}, v{t+1}")
    A(f"v_rcp_f32 v{t}, v{vL}")
    A(f"v_rcp_f32 v{t+1}, v{vL+1}")
    A("s_nop 7")
    A(f"s_branch {L}oep")
    kd(A, name, 512, 256)

def checks(A, entry):
    nb = check_hazards(A.lines)
    tot = 0
    for wg in (5, 31, 24, 255):
        for w in (0, 3):
            for slow in (0, 1):
                def hk(x, S):
                    if x.opn == "v_readfirstlane_b32":
                        if "poll" in x.text: S[sT0] = 32
                        else: S[sWave] = w
                    if "slowbr" in x.text: return slow
                p, c = check_waits(A.lines, entry, {2: wg}, hk)
                tot += p
    print("hazards:", nb, "waits:", tot, c)
```

```python
from asmlib import *
from common import *

P2_LDS = 122880
def gen_p2(A, name, NS=4, stamps=False, SN=32, xmap=0, wrapA=False, wrapW=False, nomfma=False, lead=False, spf=0, spfD=2, spfA=True):
    head(A, name)
    L = name[:2] + "_"
    sA, sW, sX, sO = 8, 12, 16, 20
    sAo, sWo, sWv, sCnt, sN = 24, 25, 26, 27, 28
    vLane, vA, vW0, vW1, vLw, vLr, vXo = 1, 2, 6, 7, 8, 11, 12
    vX = 14
    vT = 24
    aS, aU = 64, 144
    RING = 0
    A("s_cmp_ge_u32 s2, 256")
    A(f"s_cbranch_scc1 {L}end")
    A("s_load_dwordx2 s[4:5], s[0:1], 0")
    A("s_load_dwordx2 s[6:7], s[0:1], 72")
    A("s_load_dwordx2 s[30:31], s[0:1], 88")
    if stamps:
        A("s_load_dwordx2 s[40:41], s[0:1], 80")
        A("s_memrealtime s[44:45]")
        A("s_memtime s[46:47]")
    A(f"v_and_b32 v{vLane}, 63, v0")
    A("v_lshrrev_b32 v0, 6, v0")
    A("s_and_b32 s3, s2, 7")
    A(f"v_readfirstlane_b32 s{sWv}, v0")
    A("s_lshr_b32 s32, s2, 3")
    A("s_lshl_b32 s3, s3, 2")
    A("s_and_b32 s33, s32, 3")
    A("s_add_u32 s33, s33, s3")
    A("s_lshr_b32 s34, s32, 2")
    if xmap == 1:
        A("s_and_b32 s3, s2, 7")
        A("s_lshr_b32 s35, s3, 1")
        A("s_lshl_b32 s35, s35, 3")
        A("s_and_b32 s33, s32, 7")
        A("s_add_u32 s33, s33, s35")
        A("s_and_b32 s35, s3, 1")
        A("s_lshl_b32 s35, s35, 2")
        A("s_lshr_b32 s34, s32, 3")
        A("s_add_u32 s34, s34, s35")
    A(f"v_lshlrev_b32 v{vW0}, 4, v{vLane}")
    A(f"v_add_u32 v{vW1}, 4096, v{vW0}")
    for p in range(4):
        A(f"s_xor_b32 s35, s{sWv}, {p}")
        A("s_lshl_b32 s35, s35, 10")
        A(f"v_add_u32 v{vA+p}, s35, v{vW0}")
    A("s_waitcnt lgkmcnt(0)")
    A(f"s_mul_i32 s35, s33, {A_BLK}")
    A(f"s_add_u32 s{sA}, s30, s35")
    A(f"s_addc_u32 s{sA+1}, s31, 0")
    srd(A, sA, sA, sA + 1, A_BLK)
    A(f"s_add_u32 s{sW}, s30, {W_OFF}")
    A(f"s_addc_u32 s{sW+1}, s31, 0")
    srd(A, sW, sW, sW + 1, W_SIZE)
    srd(A, sX, 4, 5, X_SIZE)
    srd(A, sO, 6, 7, X_SIZE)
    A(f"s_lshl_b32 s{sAo}, s{sWv}, 12")
    A(f"s_mul_i32 s{sWo}, s{sWv}, 40960")
    A("s_mul_i32 s35, s34, 5120")
    A(f"s_add_u32 s{sWo}, s{sWo}, s35")
    vTab, sIdx, sAb, sWb = 13, 29, 38, 39
    if lead:
        A("s_sub_u32 s35, s33, s34")
        A("s_and_b32 s35, s35, 3")
        A("s_lshl_b32 s35, s35, 1")
        A(f"s_lshr_b32 s37, s{sWv}, 1")
        A("s_add_u32 s35, s35, s37")
        A("s_lshl_b32 s35, s35, 8")
        A("s_getpc_b64 s[42:43]")
        A(f"{L}pc:")
        A(f"s_add_u32 s42, s42, {L}tab-{L}pc")
        A("s_addc_u32 s43, s43, 0")
        A(f"v_lshl_add_u32 v{vTab}, v{vLane}, 2, s35")
        A(f"global_load_dword v{vTab}, v{vTab}, s[42:43]")
        A(f"s_mov_b32 s{sAb}, s{sAo}")
        A(f"s_mov_b32 s{sWb}, s{sWo}")
        A(f"s_mov_b32 s{sIdx}, 0")
        A("s_waitcnt vmcnt(0)")
        A(f"v_readlane_b32 s37, v{vTab}, s{sIdx}")
        A("s_nop 3")
        A(f"s_lshl_b32 s{sAo}, s37, 14")
        A(f"s_mul_i32 s{sWo}, s37, 163840")
        A(f"s_add_u32 s{sAo}, s{sAo}, s{sAb}")
        A(f"s_add_u32 s{sWo}, s{sWo}, s{sWb}")
    def loadW(st, ct):
        r = RING + st * 36 + ct * 4
        if ct < 4: A(f"buffer_load_dwordx4 {ar(r,4)}, v{vW0}, s[{sW}:{sW+3}], s{sWo} offen offset:{ct*1024}")
        else: A(f"buffer_load_dwordx4 {ar(r,4)}, v{vW1}, s[{sW}:{sW+3}], s{sWo} offen")
    def loadA(st, p):
        r = RING + st * 36 + 20 + p * 4
        A(f"buffer_load_dwordx4 {ar(r,4)}, v{vA+p}, s[{sA}:{sA+3}], s{sAo} offen")
    def adv():
        if lead:
            A(f"s_add_u32 s{sIdx}, s{sIdx}, 1")
            A(f"v_readlane_b32 s37, v{vTab}, s{sIdx}")
            A("s_nop 3")
            A(f"s_lshl_b32 s{sAo}, s37, 14")
            A(f"s_mul_i32 s{sWo}, s37, 163840")
            A(f"s_add_u32 s{sAo}, s{sAo}, s{sAb}")
            A(f"s_add_u32 s{sWo}, s{sWo}, s{sWb}")
            return
        A(f"s_add_u32 s{sAo}, s{sAo}, 16384")
        A(f"s_add_u32 s{sWo}, s{sWo}, 163840")
        if wrapA: A(f"s_and_b32 s{sAo}, s{sAo}, 0xffff")
        if wrapW:
            A(f"s_cmp_ge_u32 s{sWo}, {163840*4}")
            A(f"s_cselect_b32 s37, {163840*4}, 0")
            A(f"s_sub_u32 s{sWo}, s{sWo}, s37")
    for st in range(NS):
        for ct in range(5): loadW(st, ct)
        for p in range(4): loadA(st, p)
        adv()
    A(f"v_and_b32 v{vT}, 15, v{vLane}")
    A(f"v_mul_u32_u24 v{vT}, 1280, v{vT}")
    A(f"v_lshrrev_b32 v{vT+1}, 4, v{vLane}")
    A(f"v_lshl_add_u32 v{vXo}, v{vT+1}, 3, v{vT}")
    A("s_lshl_b32 s35, s33, 2")
    A(f"s_add_u32 s35, s35, s{sWv}")
    A("s_mul_i32 s35, s35, 20480")
    A("s_mul_i32 s36, s34, 160")
    A("s_add_u32 s36, s36, s35")
    for p in range(1, 4):
        A(f"s_xor_b32 s35, s{sWv}, {p}")
        A("s_mul_i32 s35, s35, 30720")
        A(f"s_add_u32 s35, s35, {(p-1)*10240}")
        A(f"v_add_u32 v{vLw+p-1}, s35, v{vW0}")
    A(f"s_mul_i32 s35, s{sWv}, 30720")
    A(f"v_add_u32 v{vLr}, s35, v{vW0}")
    for i in range(160):
        A(f"v_mov_b32 v{aS+i}, 0")
    A(f"s_lshr_b32 s35, s{sWv}, 1")
    A(f"s_sub_u32 s{sN}, {14+32-SN}, s35")
    A(f"s_mov_b32 s{sCnt}, 0")
    if spf:
        A("s_lshl_b32 s56, s34, 9")
        A(f"s_add_u32 s56, s56, {spfD*16384}")
        A("s_and_b32 s57, s33, 3")
        A("s_mul_i32 s57, s57, 1280")
        A(f"s_add_u32 s57, s57, {spfD*163840}")
    def pf(ct, p):
        i = ct * 4 + p
        if i == 0:
            A(f"s_add_u32 s58, s{sAo}, s56")
            A(f"s_add_u32 s59, s{sWo}, s57")
        i -= 1
        if 0 <= i < 4 and spfA:
            for h in range(spf): A(f"s_buffer_load_dword s60, s[{sA}:{sA+3}], s58 offset:{i*128+h*64}")
        elif 4 <= i < 14:
            for h in range(spf): A(f"s_buffer_load_dword s60, s[{sW}:{sW+3}], s59 offset:{(i-4)*128+h*64}")
    def step(st, acc, extra=None):
        if spf: extra = pf
        A(f"s_waitcnt vmcnt({9*(NS-1)})")
        for ct in range(5):
            for p in range(4):
                d = acc + (p * 5 + ct) * 4
                if not nomfma: A(f"v_mfma_f32_16x16x32_bf16 {vr(d,4)}, {ar(RING+st*36+ct*4,4)}, {ar(RING+st*36+20+p*4,4)}, {vr(d,4)}")
                if p == 1 and ct > 0: loadW(st, ct - 1)
                if extra: extra(ct, p)
        loadW(st, 4)
        for p in range(4): loadA(st, p)
        adv()
    if stamps: A("s_memtime s[52:53]")
    A(".p2align 6")
    A(f"{L}sloop:")
    for st in range(NS): step(st, aS)
    A(f"s_add_u32 s{sCnt}, s{sCnt}, {NS}")
    A(f"s_cmp_lt_u32 s{sCnt}, {SN}")
    A(f"s_cbranch_scc1 {L}sloop")
    if spf: A("s_waitcnt lgkmcnt(0)")
    for ct in range(5):
        A(f"buffer_load_dwordx2 {vr(vX+2*ct,2)}, v{vXo}, s[{sX}:{sX+3}], s36 offen offset:{ct*32}")
    A("s_nop 1")
    for p in range(1, 4):
        for ct in range(5):
            A(f"ds_write_b128 v{vLw+p-1}, {vr(aS+(p*5+ct)*4,4)} offset:{ct*1024}")
    A(f"s_mov_b32 s{sCnt}, 0")
    A(f"{L}uloop:")
    for st in range(NS):
        step(st, aU)
        A(f"s_add_u32 s{sCnt}, s{sCnt}, 1")
        A(f"s_cmp_ge_u32 s{sCnt}, s{sN}")
        A(f"s_cbranch_scc1 {L}fin")
    A(f"s_branch {L}uloop")
    A(f"{L}fin:")
    if spf: A("s_waitcnt lgkmcnt(0)")
    if stamps:
        A("s_memtime s[54:55]")
        A("s_waitcnt lgkmcnt(0)")
    A("s_nop 1")
    for p in range(1, 4):
        for ct in range(5):
            A(f"ds_write_b128 v{vLw+p-1}, {vr(aU+(p*5+ct)*4,4)} offset:{5120+ct*1024}")
    A("s_waitcnt lgkmcnt(0)")
    A("s_barrier")
    for st_, acc in ((1, aU), (0, aS)):
        for sl in range(3):
            for ct in range(5):
                A(f"ds_read_b128 {vr(acc+((sl+1)*5+ct)*4,4)}, v{vLr} offset:{sl*10240+st_*5120+ct*1024}")
        if st_ == 1: pass
    A(f"s_mov_b32 s35, {hex(f2u(-LOG2E))}")
    A("s_waitcnt lgkmcnt(15)")
    for i in range(0, 20, 2):
        A(f"v_pk_add_f32 {vr(aU+20+i,2)}, {vr(aU+20+i,2)}, {vr(aU+40+i,2)}")
        A(f"v_pk_add_f32 {vr(aU+i,2)}, {vr(aU+i,2)}, {vr(aU+60+i,2)}")
    for i in range(0, 20, 2):
        A(f"v_pk_add_f32 {vr(aU+i,2)}, {vr(aU+i,2)}, {vr(aU+20+i,2)}")
    for i in range(20): A(f"v_mul_f32 v{vT+i}, s35, v{aU+i}")
    for i in range(20): A(f"v_exp_f32 v{vT+i}, v{vT+i}")
    for i in range(20): A(f"v_add_f32 v{vT+i}, 1.0, v{vT+i}")
    for i in range(20): A(f"v_rcp_f32 v{vT+i}, v{vT+i}")
    A("s_waitcnt lgkmcnt(0)")
    for i in range(0, 20, 2):
        A(f"v_pk_add_f32 {vr(aS+20+i,2)}, {vr(aS+20+i,2)}, {vr(aS+40+i,2)}")
        A(f"v_pk_add_f32 {vr(aS+i,2)}, {vr(aS+i,2)}, {vr(aS+60+i,2)}")
        A(f"v_pk_mul_f32 {vr(aU+i,2)}, {vr(aU+i,2)}, {vr(vT+i,2)}")
    for i in range(0, 20, 2):
        A(f"v_pk_add_f32 {vr(aS+i,2)}, {vr(aS+i,2)}, {vr(aS+20+i,2)}")
    A(f"s_waitcnt vmcnt({min(63, 9*NS)})")
    for i in range(10):
        A(f"v_lshlrev_b32 v{vT+2*i}, 16, v{vX+i}")
        A(f"v_and_b32 v{vT+2*i+1}, 0xffff0000, v{vX+i}")
    for i in range(0, 20, 2):
        A(f"v_pk_fma_f32 {vr(vT+i,2)}, {vr(aS+i,2)}, {vr(aU+i,2)}, {vr(vT+i,2)}")
    for i in range(10):
        A(f"v_cvt_pk_bf16_f32 v{vX+i}, v{vT+2*i}, v{vT+2*i+1}")
    for ct in range(5):
        A(f"buffer_store_dwordx2 {vr(vX+2*ct,2)}, v{vXo}, s[{sO}:{sO+3}], s36 offen offset:{ct*32}")
    if stamps:
        A("s_memrealtime s[48:49]")
        A("s_memtime s[50:51]")
        A("s_waitcnt lgkmcnt(0)")
        A("s_add_u32 s30, s30, 0x3000000")
        A("s_addc_u32 s31, s31, 0")
        A("s_sub_u32 s50, s50, s46")
        A("v_mov_b32 v2, s44"); A("v_mov_b32 v3, s48"); A("v_mov_b32 v4, s50")
        A("s_sub_u32 s52, s52, s46"); A("s_sub_u32 s54, s54, s46"); A("s_lshl_b32 s54, s54, 12"); A("s_or_b32 s52, s52, s54"); A("s_nop 0"); A("v_mov_b32 v5, s52")
        A("s_lshl_b32 s35, s2, 4")
        A("v_mov_b32 v6, s35")
        A("global_store_dwordx4 v6, v[2:5], s[30:31]")
    A(f"{L}end:")
    A("s_endpgm")
    if lead:
        def seq(n, phi, BL=4):
            o = [phi]; B = 0
            while len(o) < n:
                for pos in range(BL):
                    k = BL*(B+1)+phi if pos == phi else BL*B+pos
                    if k < n: o.append(k)
                B += 1
            assert sorted(o) == list(range(n)), o
            return o
        A(".p2align 2")
        A(f".type {L}tab,@object")
        A(f"{L}tab:")
        for phi in range(4):
            for var in range(2):
                o = seq(32, phi) + [32 + k for k in seq(14 - var, phi)]
                o += [60] * (64 - len(o))
                A(".long " + ", ".join(map(str, o)))
    kd(A, name, 256 + 36 * NS, 256)


def build(fn, **kw):
    A = Asm()
    A(f"; @launch kernel=p2_kernel grid=(256,1,1) block=(256,1,1) lds={P2_LDS}")
    A('.amdgcn_target "amdgcn-amd-amdhsa--gfx950"')
    A(".text")
    gen_p2(A, "p2_kernel", stamps=True, **kw)
    print("hazards:", check_hazards(A.lines))
    for w in range(4):
        def hk(x, S):
            if x.opn == "v_readfirstlane_b32": S[26] = w
        print("waits:", check_waits(A.lines, "p2_kernel", {2: 5}, hk)[0])
    open(fn, "w").write(A.text())


if __name__ == "__main__":
    build("p2.s", NS=2)
    build("p2_a.s", NS=2, spf=1, spfD=1)
    build("p2_b.s", NS=2, spf=1, spfD=2)
    build("p2_c.s", NS=2, spf=2, spfD=2)
    build("p2_d.s", NS=2, spf=1, spfD=4)
```

```python
import sys
from asmlib import *
from common import *
import p1, p2, p2s
HDR = open("cdna_kernels/" + NAME + ".s.ref").read().split("; Override")[0]
def build(fn, stamps=False):
    A = Asm()
    A(HDR)
    A(f"; @launch kernel=p1_kernel grid=(256,1,1) block=(256,1,1) lds={p1.P1_LDS}")
    A(f"; @launch kernel=p2_kernel grid=(256,1,1) block=(256,1,1) lds={p2s.P2S_LDS}")
    A('.amdgcn_target "amdgcn-amd-amdhsa--gfx950"')
    A(".text")
    p1.gen_p1(A, "p1_kernel", stamps=stamps)
    p1.checks(A, "p1_kernel")
    B = Asm(); p2s.gen_p2s(B, "p2_kernel", stamps=stamps); p2s.checks(B, "p2_kernel"); A.lines += B.lines
    open(fn, "w").write(A.text())
if __name__ == "__main__":
    build("full_st.s", stamps=True)
    build("full.s")
```

```python
import re

class Asm:
    def __init__(self):
        self.lines = []
    def __call__(self, s):
        for l in s.split("\n"):
            l = l.strip()
            if l:
                self.lines.append(l)
    def text(self):
        out = []
        for l in self.lines:
            if l.endswith(":") or l.startswith(".") or l.startswith(";"):
                out.append(l)
            else:
                out.append("    " + l)
        return "\n".join(out) + "\n"

def vr(base, n=1, k='v'):
    return f"{k}{base}" if n == 1 else f"{k}[{base}:{base+n-1}]"
def ar(base, n=1):
    return vr(base, n, 'a')
def sr(base, n=1):
    return vr(base, n, 's')

REG = re.compile(r"(?<![\w.])([vas])(?:(\d+)\b|\[(\d+):(\d+)\])")
def regs_of(op):
    out = set()
    for m in REG.finditer(op):
        k = m.group(1)
        if m.group(2) is not None:
            out.add((k, int(m.group(2))))
        else:
            for i in range(int(m.group(3)), int(m.group(4)) + 1):
                out.add((k, i))
    for nm in ("vcc", "exec", "m0"):
        if re.search(r"\b" + nm + r"(_lo|_hi)?\b", op):
            out.add((nm, 0))
    return out

TRANS = ("v_exp_f32", "v_log_f32", "v_rcp_f32", "v_rsq_f32", "v_sqrt_f32", "v_sin_f32", "v_cos_f32", "v_rcp_iflag_f32")

class Ins:
    def __init__(self, text, idx):
        self.text = text
        self.idx = idx
        t = text.split(";")[0].strip()
        parts = t.split(None, 1)
        self.op = parts[0]
        self.opn = re.sub(r"_(e32|e64|dpp|sdwa)$", "", self.op)
        rest = parts[1] if len(parts) > 1 else ""
        self.rest = rest
        ops = [o.strip() for o in rest.split(",")] if rest else []
        self.ops = ops
        op = self.opn
        self.kind = "other"
        self.w = set(); self.r = set()
        self.srcc = set(); self.srcab = set(); self.passes = 0
        self.storedata = set()
        R = [regs_of(o) for o in ops]
        allr = set().union(*R) if R else set()
        if op.startswith("v_mfma"):
            self.kind = "mfma"
            self.passes = 8 if "32x32x16" in op else (4 if "16x16x32" in op else (2 if "4x4x4" in op else None))
            assert self.passes, op
            self.w = R[0]; self.srcab = R[1] | R[2]; self.srcc = R[3]; self.r = self.srcab | self.srcc
        elif op.startswith("v_"):
            self.kind = "valu"
            self.trans = op in TRANS
            self.dpp = bool(re.search(r"row_|quad_perm|wave_|bank_mask", rest))
            if op.startswith("v_cmp"):
                self.w = R[0]; self.r = set().union(*R[1:])
                if op.startswith("v_cmpx"): self.w |= {("exec", 0)}
            elif op in ("v_permlane16_swap_b32", "v_permlane32_swap_b32", "v_swap_b32"):
                self.w = R[0] | R[1]; self.r = R[0] | R[1]
            elif op in ("v_add_co_u32", "v_sub_co_u32", "v_addc_co_u32"):
                self.w = R[0] | R[1]; self.r = set().union(*R[2:])
            elif op in ("v_fmac_f32", "v_dot2c_f32_bf16", "v_pk_fmac_f16"):
                self.w = R[0]; self.r = allr
            elif op == "v_nop":
                pass
            else:
                self.w = R[0]; self.r = set().union(*R[1:]) if len(R) > 1 else set()
                if self.dpp: self.r |= R[0]
                if op == "v_cndmask_b32" and len(ops) == 3: self.r |= {("vcc", 0)}
        elif op.startswith("ds_"):
            self.kind = "ds"
            if op.startswith("ds_read") or op.startswith("ds_bpermute") or op.startswith("ds_swizzle") or op.startswith("ds_permute"):
                self.w = R[0]; self.r = set().union(*R[1:])
            else:
                self.r = allr; self.storedata = set().union(*R[1:])
        elif op.startswith("buffer_") or op.startswith("global_"):
            self.kind = "vmem"
            lds = bool(re.search(r"\blds\b", rest)) or "_lds_" in op
            self.lds = lds
            if op in ("buffer_inv", "buffer_wbl2"):
                pass
            elif "load" in op and not lds:
                self.w = R[0]; self.r = set().union(*R[1:])
            elif "load" in op:
                self.r = allr | {("m0", 0)}
            elif "atomic" in op:
                ret = bool(re.search(r"\bsc0\b", rest))
                if op.startswith("buffer_"):
                    self.r = allr; self.storedata = R[0]
                    if ret: self.w = R[0]
                else:
                    if ret: self.w = R[0]; self.r = set().union(*R[1:])
                    else: self.r = allr
            else:
                self.r = allr
                self.storedata = R[0] if op.startswith("buffer_") else R[1]
                self.wide = "x4" in op or "x3" in op
        elif op.startswith("s_"):
            self.kind = "salu"
            if op in ("s_waitcnt", "s_barrier", "s_nop", "s_endpgm", "s_setprio", "s_sleep", "s_branch") or op.startswith("s_cbranch"):
                self.kind = "ctl"
                if op in ("s_cbranch_vccz", "s_cbranch_vccnz"): self.r = {("vcc", 0)}
                if op in ("s_cbranch_execz", "s_cbranch_execnz"): self.r = {("exec", 0)}
            elif op.startswith("s_load") or op.startswith("s_memtime") or op.startswith("s_memrealtime") or op.startswith("s_buffer_load"):
                self.kind = "smem"; self.w = R[0]; self.r = set().union(*R[1:]) if len(R) > 1 else set()
            elif op.startswith("s_cmp") or op.startswith("s_bitcmp"):
                self.r = allr
            elif op.endswith("saveexec_b64"):
                self.w = R[0] | {("exec", 0)}; self.r = R[1] | {("exec", 0)}
            elif op in ("s_setpc_b64",):
                self.r = allr
            else:
                self.w = R[0]; self.r = set().union(*R[1:]) if len(R) > 1 else set()
                if op in ("s_addk_i32", "s_mulk_i32"): self.r |= R[0]
        else:
            raise ValueError("unknown op " + text)
    def states(self):
        if self.op == "s_nop":
            return int(self.ops[0], 0) + 1
        return 1

def parse(lines):
    ins = []; labels = {}
    for l in lines:
        t = l.split(";")[0].strip()
        if not t: continue
        if t.endswith(":"):
            labels[t[:-1]] = len(ins); continue
        if t.startswith("."):
            continue
        ins.append(Ins(l, len(ins)))
    return ins, labels

def succs(ins, labels, i):
    x = ins[i]
    if x.op == "s_endpgm": return []
    if x.op == "s_branch": return [labels[x.ops[0]]]
    if x.op.startswith("s_cbranch"): return [i + 1, labels[x.ops[0]]]
    if x.op == "s_setpc_b64": return []
    return [i + 1] if i + 1 < len(ins) else []

def isv(s): return {r for r in s if r[0] in "va"}
def iss(s): return {r for r in s if r[0] == "s" or r[0] == "vcc"}

def need(p, c):
    n = 0
    if p.kind == "mfma":
        D = p.w
        tbl_v = {2: 5, 4: 8, 8: 12}[p.passes]
        if c.kind == "mfma":
            if c.srcab & D: n = max(n, tbl_v)
            if c.srcc & D:
                if c.srcc == D and c.passes == p.passes: n = max(n, 2 if p.passes == 2 else 0)
                else: n = max(n, {2: 4, 4: 6, 8: 10}[p.passes])
            elif c.w & D:
                n = max(n, tbl_v)
        elif c.kind in ("valu", "ds", "vmem"):
            if (c.r | c.w) & D: n = max(n, tbl_v)
        if c.kind == "valu" and (c.w & p.srcc): n = max(n, {2: 1, 4: 3, 8: 7}[p.passes])
    if p.kind == "valu":
        W = isv(p.w); S = iss(p.w)
        if c.kind == "mfma" and (c.r & W): n = max(n, 2)
        if c.kind == "mfma" and p.opn.startswith("v_pk_"): n = max(n, 2)
        if c.kind == "mfma" and ("exec", 0) in p.w: n = max(n, 4)
        if c.kind == "valu":
            if p.trans and not c.trans and (c.r & W): n = max(n, 1)
            if c.dpp and (c.r & W): n = max(n, 2)
            if c.opn.startswith("v_permlane") and (c.r & W): n = max(n, 2)
            if c.opn in ("v_readlane_b32", "v_readfirstlane_b32") and (c.r & W): n = max(n, 1)
            if c.r & S: n = max(n, 4 if c.opn in ("v_readlane_b32", "v_writelane_b32") else 2)
            if ("exec", 0) in p.w and (c.dpp): n = max(n, 5)
            if ("exec", 0) in p.w and (c.opn.startswith("v_permlane") or c.opn in ("v_readlane_b32", "v_readfirstlane_b32")): n = max(n, 4)
        if c.kind == "vmem" and (c.r & S): n = max(n, 5)
        if c.kind in ("salu", "ctl") and (c.r & (S | ({("exec",0)} & p.w))): n = max(n, 4)
    if p.kind == "salu":
        if ("m0", 0) in p.w and c.kind == "vmem" and getattr(c, "lds", False): n = max(n, 1)
    if p.kind == "vmem" and getattr(p, "wide", False) and p.storedata:
        if c.w & p.storedata: n = max(n, 2 if c.kind == "valu" else 1)
    return n

def check_hazards(lines, verbose=True):
    ins, labels = parse(lines)
    bad = []
    MAXD = 13
    for i, p in enumerate(ins):
        if p.kind not in ("mfma", "valu", "salu", "vmem"): continue
        stack = [(s, 0) for s in succs(ins, labels, i)]
        seen = {}
        while stack:
            j, d = stack.pop()
            if d >= MAXD or j >= len(ins): continue
            if seen.get(j, 99) <= d: continue
            seen[j] = d
            c = ins[j]
            n = need(p, c)
            if n > d:
                bad.append((i, j, n, d))
            for s in succs(ins, labels, j):
                stack.append((s, d + c.states()))
    for i, j, n, d in bad[:40]:
        print(f"HAZARD need {n} have {d}:\n   [{i}] {ins[i].text}\n   [{j}] {ins[j].text}")
    return len(bad)

M32 = 0xffffffff
_seen = set()
def print(*x, **k):
    import builtins
    m = ' '.join(map(str, x))
    if m not in _seen:
        _seen.add(m); builtins.print(m)

def check_waits(lines, entry, init_s, hooks=None, maxsteps=400000, trace=None):
    ins, labels = parse(lines)
    S = dict(init_s); scc = 0
    vm = []; lg = []
    pc = labels[entry]; steps = 0; probs = 0
    cnt = {}
    def val(o):
        o = o.strip()
        m = re.fullmatch(r"s(\d+)", o)
        if m: return S.get(int(m.group(1)))
        if o == "m0": return S.get("m0")
        try: return int(o, 0) & M32
        except ValueError: return None
    def setv(o, v):
        m = re.fullmatch(r"s(\d+)", o)
        if m: S[int(m.group(1))] = None if v is None else v & M32
        elif o == "m0": S["m0"] = None if v is None else v & M32
        else:
            for r in regs_of(o):
                if r[0] == "s": S[r[1]] = None
    while True:
        steps += 1
        if steps > maxsteps: print("check_waits: too many steps"); return probs + 1, cnt
        x = ins[pc]
        cnt[x.kind] = cnt.get(x.kind, 0) + 1
        touched = x.r | x.w
        for q, nm in ((vm, "vm"), (lg, "lgkm")):
            for (k, d) in q:
                if d & touched:
                    if not (x.kind == ins[k].kind and x.kind in ("ds", "vmem") and not (d & x.r)):
                        print(f"WAIT({nm}): [{pc}] {x.text}\n     touches pending [{k}] {ins[k].text}")
                        probs += 1
                        if probs > 20: return probs, cnt
        op = x.opn; nxt = pc + 1
        def needs():
            n_ = 0
            for cls, mm in re.findall(r"@need (\w+) (\d+)", x.text):
                pend = [k for (k, d) in vm if re.search(r"@put " + cls + r"\b", ins[k].text)]
                if len(pend) > int(mm):
                    print(f"NEED {cls}: {len(pend)} pending > {mm} at [{pc}] {x.text}")
                    n_ += 1
            return n_
        if op != "s_waitcnt": probs += needs()
        if x.kind == "vmem":
            vm.append((pc, set(x.w)))
            if len(vm) > 63: print(f"vmcnt overflow at [{pc}] {x.text}"); probs += 1
        elif x.kind == "ds": lg.append((pc, set(x.w)))
        elif x.kind == "smem":
            lg.append((pc, set(x.w)))
            for r in x.w:
                if r[0] == "s": S[r[1]] = None
            if hooks: hooks(x, S)
        elif op == "s_waitcnt":
            m = re.search(r"vmcnt\((\d+)\)", x.rest)
            if m:
                n = int(m.group(1)); vm = vm[len(vm) - n:] if n < len(vm) and n > 0 else ([] if n == 0 else vm)
            m = re.search(r"lgkmcnt\((\d+)\)", x.rest)
            if m:
                n = int(m.group(1))
                if n > 0 and any(ins[k].kind == "smem" for k, _ in lg):
                    print(f"counted lgkmcnt with smem outstanding at [{pc}]"); probs += 1
                lg = lg[len(lg) - n:] if n < len(lg) and n > 0 else ([] if n == 0 else lg)
            probs += needs()
        elif op == "s_endpgm": return probs, cnt
        elif op == "s_branch": nxt = labels[x.ops[0]]
        elif op in ("s_cbranch_scc0", "s_cbranch_scc1"):
            if scc is None:
                d = hooks(x, S) if hooks else None
                assert d is not None, "unknown scc at " + x.text
                if d: nxt = labels[x.ops[0]]
            elif scc == int(op[-1]): nxt = labels[x.ops[0]]
        elif op.startswith("s_cbranch"):
            d = hooks(x, S) if hooks else None
            assert d is not None, "unknown branch " + x.text
            if d: nxt = labels[x.ops[0]]
        elif x.kind == "salu":
            o = x.ops
            a = val(o[1]) if len(o) > 1 else None
            b = val(o[2]) if len(o) > 2 else None
            two = a is not None and b is not None
            if op in ("s_mov_b32", "s_movk_i32"): setv(o[0], a)
            elif op in ("s_add_u32", "s_add_i32"):
                setv(o[0], a + b if two else None); scc = (int(a + b > M32) if two else None)
            elif op in ("s_sub_u32", "s_sub_i32"):
                setv(o[0], a - b if two else None); scc = (int(a < b) if two else None)
            elif op == "s_mul_i32": setv(o[0], a * b if two else None)
            elif op == "s_mul_hi_u32": setv(o[0], (a * b) >> 32 if two else None)
            elif op in ("s_and_b32", "s_or_b32", "s_xor_b32", "s_lshl_b32", "s_lshr_b32"):
                f = {"s_and_b32": lambda: a & b, "s_or_b32": lambda: a | b, "s_xor_b32": lambda: a ^ b,
                     "s_lshl_b32": lambda: a << (b & 31), "s_lshr_b32": lambda: a >> (b & 31)}[op]
                v = f() & M32 if two else None
                setv(o[0], v); scc = None if v is None else int(v != 0)
            elif op in ("s_max_u32", "s_min_u32"):
                setv(o[0], (max(a, b) if op == "s_max_u32" else min(a, b)) if two else None); scc = None
            elif op == "s_bfe_u32":
                v = (a >> (b & 31)) & ((1 << ((b >> 16) & 0x7f)) - 1) if two else None
                setv(o[0], v); scc = None if v is None else int(v != 0)
            elif op == "s_lshl2_add_u32":
                setv(o[0], (a << 2) + b if two else None); scc = None
            elif op == "s_cselect_b32":
                setv(o[0], None if scc is None else (a if scc else b))
            elif op.startswith("s_cmp"):
                a, b = val(o[0]), val(o[1])
                if a is None or b is None: scc = None
                else:
                    c = op.split("_")[2]
                    scc = int({"eq": a == b, "lg": a != b, "lt": a < b, "gt": a > b, "le": a <= b, "ge": a >= b}[c])
            elif op.startswith("s_bitcmp1"):
                a, b = val(o[0]), val(o[1]); scc = None if a is None else (a >> b) & 1
            else:
                setv(o[0], None); scc = None
        elif x.kind == "valu":
            for r in x.w:
                if r[0] == "s": S[r[1]] = None
            if hooks and any(r[0] == "s" for r in x.w): hooks(x, S)
        pc = nxt
```

```python
from asmlib import *
from common import *

P1_LDS = 163840
R0, R1, R2, R3, R4 = 0, 32768, 65536, 98304, 131072
CS = R4
TAILBIT = 0x30000
ROT = False
TLBW = True
FLAG = 'byte'
FINE = False
EVMASK = 0x180
vFin = 60
XP = set()

class LQ:
    def __init__(s): s.q = []
    def issue(s, tag): s.q.append(tag)
    def wait(s, A, tags):
        idx = max([i for i, t in enumerate(s.q) if t in tags], default=-1)
        if idx < 0: return
        n = len(s.q) - 1 - idx
        assert n <= 15
        A(f"s_waitcnt lgkmcnt({n})")
        s.q = s.q[idx + 1:]
    def clear(s): s.q = []

sX, sWq, sW1, sW3, sK, sV, sA, sWp, sSrc, sSt = 8, 12, 16, 20, 24, 28, 32, 36, 40, 44
sWave, sHead, sRb, sFb, sHasF = 48, 49, 50, 51, 52
sXo, sWqo, sW13o, sM0X, sM0W, sD, sTail, sSlot = 53, 54, 55, 56, 57, 58, 59, 60
sT0, sT1, sT2 = 61, 62, 63
pX, pK, pV, pWq, pWo, pBx, pW1, pW3, pW2, pOut, pDbg, pWs = range(64, 88, 2)
sKVo, sKVm, sDelta, sT, sU, sMask, sXb, sC0 = 88, 89, 90, 91, 92, 93, 94, 95
sX2, sM0d, sXst, sM0t, sProd, sPo = 76, 74, 75, 3, 4, 5
sE0 = 96
vLane = 1
vXd, vWqd, vW13d, vXr, vWqr, vW13r = 2, 10, 12, 13, 15, 23
vZero = 27
vSt = 28
vTm = 44
vQ = 64
vAcc = 128
aG, aUp, aCs, aXf, aWf, aOne, aWp = 0, 64, 128, 144, 176, 192, 196
vKr, vVr, vKd, vVd, vL, vOo = 2, 10, 14, 18, 22, 24
vS, vP, vF = 128, 192, 208
aO = 128

def mf16(A, d, a, b, c=None):
    A(f"v_mfma_f32_16x16x32_bf16 {d}, {a}, {b}, {d if c is None else c}")
def mf32(A, d, a, b, c=None):
    A(f"v_mfma_f32_32x32x16_bf16 {d}, {a}, {b}, {d if c is None else c}")

def spread(items, nslots):
    out = [[] for _ in range(nslots)]
    n = len(items)
    for i, it in enumerate(items):
        out[min(nslots - 1, (i * nslots) // n)].append(it)
    return out

def frag_list(ffn):
    fr = [("Q", p) for p in range(8)]
    if ffn:
        for p in range(4): fr += [("G", p), ("U", p)]
    return fr

def wread(fr, k, sec, buf):
    c, p = fr
    if c == "Q": ad, off = vWqr + p, sec * 1024
    else: ad, off = vW13r + p, (2048 if c == "G" else 3072) + sec * 512
    return f"ds_read_b64_tr_b16 {ar(aWf+buf*4+2*sec,2)}, v{ad} offset:{off + k*16384}"

def xread(s, st, rt):
    return f"ds_read_b128 {ar(aXf+st*16+rt*4,4)}, v{vXr+s} offset:{rt*2048}"

def dma_w(ffn, force=False):
    it = [f"s_max_u32 m0, s{sM0W}, s{sTail}",
          f"buffer_load_dwordx4 v{vWqd}, s[{sWq}:{sWq+3}], s{sWqo} offen lds ; @put W",
          f"buffer_load_dwordx4 v{vWqd+1}, s[{sWq}:{sWq+3}], s{sWqo} offen offset:1024 lds ; @put W"]
    if ffn or force:
        it += [f"buffer_load_dwordx4 v{vW13d}, s[{sW1}:{sW1+3}], s{sW13o} offen offset:2048 lds ; @put W",
               f"buffer_load_dwordx4 v{vW13d}, s[{sW3}:{sW3+3}], s{sW13o} offen offset:3072 lds ; @put W"]
    it += [f"s_add_u32 s{sWqo}, s{sWqo}, {32*8192}"]
    if ffn or force: it += [f"s_add_u32 s{sW13o}, s{sW13o}, {32*3456}"]
    it += [f"s_add_u32 s{sSlot}, s{sSlot}, 16384\ns_and_b32 s{sSlot}, s{sSlot}, 0xffff",
           f"s_add_u32 s{sM0W}, s{sSlot}, s{sC0}"]
    return it

def dma_x(half):
    if half == 0: it = [f"s_mov_b32 m0, s{sM0X}"]
    else: it = [f"s_add_u32 m0, s{sM0X}, s{sM0d}"]
    sd = sX if half == 0 else sX2
    for j in range(4):
        it.append(f"buffer_load_dwordx4 v{vXd+4*half+j}, s[{sd}:{sd+3}], s{sXo} offen offset:{j*1024} lds")
    if half: it += [f"s_add_u32 s{sXo}, s{sXo}, s{sXst}\ns_xor_b32 s{sM0X}, s{sM0X}, s{sM0t}"]
    return it

def fine(A):
    A("s_memtime s[98:99]"); A("s_waitcnt lgkmcnt(0)")
    A("s_mov_b32 m0, s7")
    A(f"v_writelane_b32 v{vFin}, s96, m0")
    A(f"v_writelane_b32 v{vFin+1}, s100, m0")
    A(f"v_writelane_b32 v{vFin-1}, s98, m0")
    A("s_add_u32 s7, s7, 1")

def gemm_loop(A, ffn, L):
    fr = frag_list(ffn); nf = len(fr)
    nw = 4 if ffn else 2
    ones = {("Q", 0): 0, ("Q", 1): 1, ("G", 0): 2, ("U", 0): 3}
    lq = LQ()
    for f in range(3):
        lq.issue(("w", f)); lq.issue(("w", f))
    A(".p2align 6")
    A(f"{L}:")
    for k in range(2):
        if k == 1:
            A(f"s_bitcmp1_b32 s{sMask}, s{sD}")
            A(f"s_cbranch_scc1 {L}_ev")
            A(f"{L}_evret:")
        if k == 0:
            items = [("x", rt) for rt in range(4)] + dma_x(1) + dma_w(ffn)
            slots = spread(items, 2 * (nf - 2))
            tog = {2: [f"v_xor_b32 v{vXr}, 0x18000, v{vXr}"]}
        else:
            items = dma_x(0) + dma_w(ffn) + [f"s_add_u32 s{sD}, s{sD}, 1"]
            slots = spread(items, 2 * (nf - 5))
            slots += [[f"s_cmp_eq_u32 s{sD}, 10\ns_cbranch_scc1 {L}_nw\ns_waitcnt vmcnt({2*nw+4})\n{L}_nw:"],
                      [("x", 0)], [("x", 1)], [("x", 2)], [("x", 3)], []]
            tog = {0: [f"v_xor_b32 v{vXr+1}, 0x18000, v{vXr+1}"]}
            for f, (c, p) in enumerate(fr):
                if c == "G": continue
                reg = vWqr + p if c == "Q" else vW13r + p
                tog.setdefault(max(f - 3, -1) + 1, []).append(f"v_xor_b32 v{reg}, 0x38000, v{reg}")
        for f in range(nf):
            c, p = fr[f]
            lq.wait(A, [("w", f)] + ([("x", k)] if f == 0 else []))
            buf = f % 4
            for rt in range(4):
                r_ = rt if f % 2 == 0 else 3 - rt
                if c == "Q": d = vr(vAcc + (p * 4 + r_) * 4, 4)
                else: d = ar((aG if c == "G" else aUp) + (p * 4 + r_) * 4, 4)
                mf16(A, d, ar(aWf + buf * 4, 4), ar(aXf + k * 16 + r_ * 4, 4))
                if f + 3 < nf and rt < 2:
                    A(wread(fr[f + 3], k, rt, (f + 3) % 4)); lq.issue(("w", f + 3))
                if f == nf - 2:
                    A(wread(fr[rt // 2], 1 - k, rt % 2, (rt // 2) % 4)); lq.issue(("w", rt // 2))
                if f == nf - 1 and rt < 2:
                    A(wread(fr[2], 1 - k, rt, 2)); lq.issue(("w", 2))
                if rt >= 2 and f < nf - 2:
                    for it in slots[2 * f + rt - 2]:
                        if isinstance(it, tuple):
                            A(xread(1 - k, 1 - k, it[1]) + (" ; @chkx" if k == 1 else "")); lq.issue(("x", 1 - k))
                        else:
                            if "lds" in it and A.lines[-1].split()[1].startswith("m0"): A("s_nop 0")
                            A(it)
                if rt == 3:
                    for t in tog.get(f, []): A(t)
            if fr[f] in ones:
                mf16(A, ar(aCs + ones[fr[f]] * 4, 4), ar(aWf + buf * 4, 4), ar(aOne, 4))
            if f == nf - 3:
                n = 2 * nw + 8
                if FINE:
                    A("s_memtime s[96:97]"); A("s_waitcnt lgkmcnt(0)")
                A(f"s_waitcnt vmcnt({n}) lgkmcnt(0)")
                lq.clear()
                if FINE:
                    A("s_memtime s[100:101]"); A("s_waitcnt lgkmcnt(0)")
                A(f"s_barrier")
                if FINE: fine(A)
    A(f"s_cmp_lt_u32 s{sD}, 10")
    A(f"s_cbranch_scc1 {L}")
    assert lq.q == [("w", 0), ("w", 0), ("w", 1), ("w", 1), ("w", 2), ("w", 2)], lq.q

def kv_dma_voff(A, kd_, vd_):
    t = vTm
    A(f"v_lshrrev_b32 v{t+12}, 4, v{vLane}")
    A(f"v_and_b32 v{t+14}, 15, v{vLane}")
    A(f"v_xor_b32 v{t+13}, v{t+14}, v{t+12}")
    A(f"v_lshlrev_b32 v{t+13}, 4, v{t+13}")
    A(f"v_lshl_add_u32 v{kd_}, v{t+12}, 8, v{t+13}")
    for j in range(1, 4): A(f"v_xor_b32 v{kd_+j}, {64*j}, v{kd_}")
    A(f"v_lshlrev_b32 v{t+13}, 2, v{t+12}")
    A(f"v_xor_b32 v{t+13}, v{t+13}, v{t+14}")
    A(f"v_lshlrev_b32 v{t+13}, 4, v{t+13}")
    A(f"v_lshl_add_u32 v{vd_}, v{t+12}, 8, v{t+13}")
    for j in range(1, 4): A(f"v_mov_b32 v{vd_+j}, v{vd_}")

def gemm_events(A, L):
    A(f"{L}_ev:")
    A(f"s_cmp_eq_u32 s{sD}, 8")
    A(f"s_cbranch_scc1 {L}_ev8")
    A(f"global_load_dword v{vTm}, v{vTm+2}, s[{pDbg}:{pDbg+1}] sc1")
    A(f"s_branch {L}_evret")
    A(f"{L}_ev8:")
    A(f"s_mov_b32 s{sTail}, {TAILBIT}")
    for d in (sWq, sW1, sW3): A(f"s_mov_b32 s{d+2}, 0")
    srd(A, sX, pK, pK + 1, 16777216)
    srd(A, sX2, pV, pV + 1, 16777216)
    kv_dma_voff(A, vXd, vXd + 4)
    A(f"s_lshl_b32 s{sM0X}, s{sWave}, 12")
    A(f"s_lshl_b32 s{sXo}, s{sHead}, 19")
    A(f"s_add_u32 s{sXo}, s{sXo}, s{sM0X}")
    A(f"s_add_u32 s{sXo}, s{sXo}, {1536*256}")
    A(f"s_movk_i32 s{sM0d}, 16384")
    A(f"s_movk_i32 s{sXst}, 16384")
    A(f"s_mov_b32 s{sM0t}, 0x8000")
    A(f"s_mov_b32 s{sT1}, 0")
    A(f"s_waitcnt vmcnt(12)")
    A(f"{L}_chk:")
    A(f"v_cmp_ne_u32 vcc, 0x01010101, v{vTm}")
    A("s_nop 3")
    A(f"s_cbranch_vccz {L}_rdy ; pollbr")
    A(f"s_add_u32 s{sT1}, s{sT1}, 1")
    A(f"s_cmp_ge_u32 s{sT1}, 0x40000")
    A(f"s_cbranch_scc1 {L}_rdy")
    A("s_sleep 2")
    A(f"global_load_dword v{vTm}, v{vTm+2}, s[{pDbg}:{pDbg+1}] sc1")
    A("s_waitcnt vmcnt(0)")
    A(f"s_branch {L}_chk")
    A(f"{L}_rdy:")
    A(f"s_lshl2_add_u32 s{sT0}, s{sRb}, s{sWave}")
    A(f"s_lshl_b32 s{sT0}, s{sT0}, 10")
    for rt in range(4):
        A(f"buffer_load_dwordx4 {vr(vSt+4*rt,4)}, v{vTm+3}, s[{sSt}:{sSt+3}], s{sT0} offen offset:{rt*256} sc1")
    A(f"s_branch {L}_evret")

def kv_addr(A, base_expr_sgpr):
    t0, t1, t2, t3 = vTm + 12, vTm + 13, vTm + 14, vTm + 15
    A(f"v_and_b32 v{t0}, 31, v{vLane}")
    A(f"v_lshrrev_b32 v{t1}, 5, v{vLane}")
    A(f"v_and_b32 v{t2}, 15, v{vLane}")
    A(f"v_xor_b32 v{t2}, v{t2}, v{t1}")
    A(f"s_lshl_b32 s{sT0}, s{sWave}, 2")
    A(f"v_xor_b32 v{t2}, s{sT0}, v{t2}")
    A(f"v_lshlrev_b32 v{t2}, 4, v{t2}")
    A(f"v_lshl_add_u32 v{t2}, v{t0}, 8, v{t2}")
    A(f"v_add_u32 v{vKr}, s{base_expr_sgpr}, v{t2}")
    for p in range(1, 8): A(f"v_xor_b32 v{vKr+p}, {32*p}, v{vKr}")
    A(f"v_bfe_u32 v{t0}, v{vLane}, 2, 2")
    A(f"v_lshl_add_u32 v{t2}, v{t1}, 2, v{t0}")
    A(f"v_lshlrev_b32 v{t2}, 8, v{t2}")
    A(f"v_lshl_add_u32 v{t2}, v{t0}, 6, v{t2}")
    A(f"v_bfe_u32 v{t3}, v{vLane}, 1, 1")
    A(f"v_lshl_add_u32 v{t2}, v{t3}, 5, v{t2}")
    A(f"v_bfe_u32 v{t3}, v{vLane}, 4, 1")
    A(f"v_lshl_add_u32 v{t2}, v{t3}, 4, v{t2}")
    A(f"v_and_b32 v{t3}, 1, v{vLane}")
    A(f"v_lshl_add_u32 v{t2}, v{t3}, 3, v{t2}")
    A(f"s_add_u32 s{sT0}, s{base_expr_sgpr}, 16384")
    A(f"v_add_u32 v{vVr}, s{sT0}, v{t2}")
    for dt in range(1, 4): A(f"v_xor_b32 v{vVr+dt}, {64*dt}, v{vVr}")

def kv_dma():
    it = [f"s_mov_b32 m0, s{sKVm}"]
    for j in range(4):
        it.append(f"buffer_load_dwordx4 v{vKd+j}, s[{sK}:{sK+3}], s{sKVo} offen offset:{j*1024} lds")
    it.append("s_add_u32 m0, m0, 16384")
    for j in range(4):
        it.append(f"buffer_load_dwordx4 v{vVd+j}, s[{sV}:{sV+3}], s{sKVo} offen offset:{j*1024} lds")
    return it

def kread(p, tile, buf):
    return f"ds_read_b128 {vr(vF+buf*4,4)}, v{vKr+p} offset:{tile*8192}"
def vread(ks, dt, tile, sec, buf):
    return f"ds_read_b64_tr_b16 {vr(vF+buf*4+2*sec,2)}, v{vVr+dt} offset:{(32*tile+16*ks+8*sec)*256}"

def sm_reg(buf, e):
    qt = (e >> 3) & 1; ks = e >> 4
    return vS + (buf * 2 + qt) * 16 + ks * 8 + (e & 7), qt, ks
def sm_exp(buf, e):
    r, _, _ = sm_reg(buf, e)
    if "noexp" in XP: return []
    if "movexp" in XP: return [f"v_mov_b32 v{r}, v{r}"]
    return [f"v_exp_f32 v{r}, v{r}"]
def sm_post(buf, e):
    r, qt, ks = sm_reg(buf, e)
    o = [f"v_add_f32 v{vL+qt}, v{vL+qt}, v{r}"]
    if "noadd" in XP: o = []
    if e & 1 and "nocvt" not in XP: o.append(f"v_cvt_pk_bf16_f32 v{vP+(qt*2+ks)*4+((e&7)>>1)}, v{r-1}, v{r}")
    return o

def attn_seg(A, lq, seg, extra, mfma=True, sm_lo=0, sm_hi=64, look=True):
    def rd(phi, part):
        s = (phi // 8) % 4; i = phi % 8; buf = phi % 4
        if s in (0, 2):
            return kread(i, 1 if s == 0 else 0, buf) if part == 0 else None
        return vread(i // 4, i % 4, 0 if s == 1 else 1, part, buf)
    for i in range(8):
        phi = seg * 8 + i
        if mfma and "nowait" not in XP: lq.wait(A, [("f", phi)])
        for qt in range(2):
            slot = seg * 16 + 2 * i + qt
            if mfma:
                if seg in (0, 2):
                    sb = 1 if seg == 0 else 0
                    d = vr(vS + (sb * 2 + qt) * 16, 16)
                    mf32(A, d, vr(vF + (phi % 4) * 4, 4), vr(vQ + (qt * 8 + i) * 4, 4), "0" if i == 0 else None)
                else:
                    ks, dt = i // 4, i % 4
                    mf32(A, ar(aO + (qt * 4 + dt) * 16, 16), vr(vF + (phi % 4) * 4, 4), vr(vP + (qt * 2 + ks) * 4, 4))
            for it in extra.get((slot, "pre"), []): A(it)
            nphi = (phi + 3) % 32
            nseg = nphi // 8
            if look is True or nseg in look:
                r = rd(nphi, qt)
                if r and "noread" not in XP: A(r); lq.issue(("f", nphi))
            for it in extra.get(slot, []):
                if it.startswith("v_"): continue
                if "lds" in it and A.lines[-1].split()[1].startswith("m0"): A("s_nop 0")
                A(it)
            for (buf, start) in ((1, 22), (0, 54)):
                e = (slot - start) % 64
                if e < 32 and (buf, "exp") in sm_ok(slot, sm_lo, sm_hi, buf, e):
                    for x in sm_exp(buf, e): A(x)
            for (buf, start) in ((1, 22), (0, 54)):
                e = (slot - start - 1) % 64
                if e < 32 and (buf, "exp") in sm_ok((slot - 1) % 64, sm_lo, sm_hi, buf, e):
                    for x in sm_post(buf, e): A(x)
            for it in extra.get(slot, []):
                if it.startswith("v_"): A(it)
def sm_ok(slot, lo, hi, buf, e):
    return {(buf, "exp")} if (lo <= slot < hi) else set()

def gen_p1(A, name, stamps=False, code_bytes=25600):
    head(A, name)
    L = "p1_"
    A("s_cmp_ge_u32 s2, 256")
    A(f"s_cbranch_scc1 {L}end")
    A("s_load_dwordx16 s[64:79], s[0:1], 0")
    A("s_load_dwordx8 s[80:87], s[0:1], 64")
    if stamps: A("s_memtime s[100:101]")
    def stamp(i):
        if not stamps: return
        A(f"s_memtime s[96:97]")
        A(f"s_memrealtime s[98:99]")
        A("s_waitcnt lgkmcnt(0)")
        A(f"v_mov_b32 v{vTm+18}, s96"); A(f"v_mov_b32 v{vTm+19}, s98")
        A(f"s_lshl_b32 s96, s2, 2"); A(f"s_add_u32 s96, s96, s{sWave}"); A("s_lshl_b32 s96, s96, 7")
        A(f"v_mov_b32 v{vZero}, s96")
        if i == 0: A(f"v_mov_b32 v{vTm+16}, s100")
        A(f"s_add_u32 s100, s{pWs}, 0x3100000"); A(f"s_addc_u32 s101, s{pWs+1}, 0")
        A(f"global_store_dwordx2 v{vZero}, {vr(vTm+18,2)}, s[100:101] offset:{i*8}")
        if i == 0: A(f"global_store_dword v{vZero}, v{vTm+16}, s[100:101] offset:120")
    t = vTm
    def emit(items):
        for it in items:
            if "lds" in it and A.lines[-1].split()[1].startswith("m0"): A("s_nop 0")
            A(it)
    A(f"v_and_b32 v{vLane}, 63, v0")
    A("v_lshrrev_b32 v0, 6, v0")
    A("s_and_b32 s6, s2, 7")
    A(f"v_readfirstlane_b32 s{sWave}, v0")
    A(f"s_lshr_b32 s{sT0}, s2, 3")
    A(f"s_lshr_b32 s{sRb}, s{sT0}, 2")
    A(f"s_and_b32 s{sT1}, s{sT0}, 3")
    A(f"s_lshl2_add_u32 s{sHead}, s6, s{sT1}")
    A(f"s_sub_u32 s{sT2}, s6, s{sRb}")
    A(f"s_add_u32 s{sT2}, s{sT2}, 3")
    A(f"s_and_b32 s{sT2}, s{sT2}, 7")
    A(f"s_mul_i32 s{sFb}, s6, 3")
    A(f"s_add_u32 s{sFb}, s{sFb}, s{sT1}")
    A(f"s_add_u32 s7, s{sT2}, 24")
    A(f"s_cmp_eq_u32 s{sT1}, 3")
    A(f"s_cselect_b32 s{sFb}, s7, s{sFb}")
    A(f"s_cmp_lt_u32 s{sFb}, 27")
    A(f"s_cselect_b32 s{sHasF}, 1, 0")
    A(f"s_sub_u32 s{sProd}, s{sFb}, 27")
    A(f"v_lshrrev_b32 v{t+7}, 3, v{vLane}")
    A(f"v_and_b32 v{t+6}, 7, v{vLane}")
    A(f"v_lshrrev_b32 v{t+12}, 4, v{vLane}")
    A(f"v_xor_b32 v{t+13}, v{t+6}, v{t+12}")
    A(f"v_lshlrev_b32 v{t+13}, 4, v{t+13}")
    A(f"s_movk_i32 s6, 1280")
    A(f"v_mad_u32_u24 v{vXd}, v{t+7}, s6, v{t+13}")
    A(f"v_xor_b32 v{t+13}, 64, v{vXd}")
    for j in range(1, 8):
        A(f"v_add_u32 v{vXd+j}, {j*10240-(j%4)*1024}, v{(t+13) if j&1 else vXd}")
    A(f"s_lshl2_add_u32 s6, s{sRb}, s{sWave}")
    A(f"s_mul_i32 s{sXo}, s6, {64*1280}")
    A(f"s_mul_i32 s{sKVo}, s6, {A_BLK}")
    A(f"s_lshl_b32 s{sM0X}, s{sWave}, 13")
    A(f"s_add_u32 s{sM0X}, s{sM0X}, {R1}")
    A(f"s_mov_b32 s{sTail}, 0")
    A(f"s_and_b32 s6, s{sWave}, 1")
    A(f"s_lshl_b32 s7, s6, 2")
    A(f"v_add_u32 v{t+13}, s7, v{t+12}")
    A(f"v_lshlrev_b32 v{t+13}, 1, v{t+13}")
    A(f"v_and_b32 v{t+14}, 15, v{vLane}")
    A(f"v_xor_b32 v{t+13}, v{t+13}, v{t+14}")
    A(f"v_lshlrev_b32 v{t+13}, 4, v{t+13}")
    A(f"s_lshl_b32 s7, s{sWave}, 3")
    A(f"v_add_u32 v{t+15}, s7, v{t+12}")
    A(f"v_lshl_add_u32 v{vWqd}, v{t+15}, 13, v{t+13}")
    A(f"v_add_u32 v{vWqd+1}, {4*8192-1024}, v{vWqd}")
    A(f"v_bfe_u32 v{t+13}, v{vLane}, 4, 1")
    A(f"s_lshl_b32 s6, s6, 1")
    A(f"v_add_u32 v{t+13}, s6, v{t+13}")
    A(f"v_lshlrev_b32 v{t+13}, 1, v{t+13}")
    A(f"v_xor_b32 v{t+13}, v{t+13}, v{t+6}")
    A(f"v_lshlrev_b32 v{t+13}, 4, v{t+13}")
    A(f"v_add_u32 v{t+15}, s7, v{t+7}")
    A(f"s_movk_i32 s6, 3456")
    A(f"v_mad_u32_u24 v{vW13d}, v{t+15}, s6, v{t+13}")
    A(f"s_lshl_b32 s{sWqo}, s{sHead}, 8")
    A(f"s_lshl_b32 s{sW13o}, s{sFb}, 7")
    A(f"s_lshl_b32 s{sC0}, s{sWave}, 12")
    A(f"s_add_u32 s{sC0}, s{sC0}, {R3}")
    A(f"s_mov_b32 s{sM0W}, s{sC0}")
    A(f"s_mov_b32 s{sSlot}, 0")
    A("s_waitcnt lgkmcnt(0)")
    srd(A, sX, pX, pX + 1, X_SIZE)
    srd(A, sWq, pWq, pWq + 1, 640 * 8192)
    for (d, p, sh) in ((sW1, pW1, 2048), (sW3, pW3, 3072)):
        A(f"s_sub_u32 s{d}, s{p}, {sh}")
        A(f"s_subb_u32 s{d+1}, s{p+1}, 0")
        A(f"s_and_b32 s{d+1}, s{d+1}, 0xffff")
        A(f"s_mul_i32 s{d+2}, s{sHasF}, {640*3456+sh}")
        A(f"s_mov_b32 s{d+3}, 0x20000")
    srd(A, sX2, pX, pX + 1, X_SIZE)
    A(f"s_movk_i32 s{sM0d}, 4096")
    A(f"s_movk_i32 s{sXst}, 128")
    A(f"s_mov_b32 s{sM0t}, 0x18000")
    RAW, UNP = 64, 96
    A(f"v_mov_b32 v{t+5}, 0")
    A(f"s_cmp_ge_u32 s{sProd}, 4")
    A(f"s_cbranch_scc1 {L}np1")
    A(f"v_lshrrev_b32 v{t+5}, 2, v{vLane}")
    A(f"v_and_b32 v{t+13}, 3, v{vLane}")
    A(f"v_lshlrev_b32 v{t+13}, 4, v{t+13}")
    A(f"s_movk_i32 s6, 1280")
    A(f"v_mad_u32_u24 v{t+13}, v{t+5}, s6, v{t+13}")
    A(f"s_lshl2_add_u32 s6, s{sRb}, s{sProd}")
    A(f"s_lshl2_add_u32 s6, s6, s{sWave}")
    A(f"s_lshl_b32 s7, s6, 8")
    A(f"v_lshl_add_u32 v{t+5}, v{t+5}, 4, s7")
    A(f"s_mul_i32 s6, s6, {16*1280}")
    for i in range(20):
        A(f"buffer_load_dwordx4 {vr(RAW+4*i,4)}, v{t+13}, s[{sX}:{sX+3}], s6 offen offset:{i*64}")
    A(f"{L}np1:")
    emit(dma_w(True)); emit(dma_x(0)); emit(dma_x(1))
    stamp(0)
    A("s_getpc_b64 s[6:7]")
    A(f"s_and_b32 s{sT0}, s{sT0}, 7")
    A(f"s_lshl2_add_u32 s{sT0}, s{sT0}, s{sWave}")
    A(f"s_lshl_b32 s{sT0}, s{sT0}, 10")
    A(f"s_min_u32 s{sT0}, s{sT0}, {code_bytes-1024}")
    A(f"v_lshl_add_u32 v{vTm+4}, v{vLane}, 4, s{sT0}")
    A(f"global_load_dwordx4 {vr(vTm+8,4)}, v{vTm+4}, s[6:7]")
    emit(dma_w(True)); emit(dma_x(0)); emit(dma_w(True))
    A(f"s_add_u32 s{sA}, s{pWs}, s{sKVo}")
    A(f"s_addc_u32 s{sA+1}, s{pWs+1}, 0")
    srd(A, sA, sA, sA + 1, A_BLK)
    A(f"s_add_u32 s{sWp}, s{pWs}, {W_OFF}")
    A(f"s_addc_u32 s{sWp+1}, s{pWs+1}, 0")
    srd(A, sWp, sWp, sWp + 1, W_SIZE)
    A(f"s_lshl2_add_u32 s{sU}, s2, s{sWave}")
    A(f"s_lshl_b32 s{sU}, s{sU}, 1")
    A(f"s_mul_hi_u32 s{sT1}, s{sU}, 0x1999999a")
    A(f"s_mul_i32 s{sT2}, s{sT1}, 10")
    A(f"s_sub_u32 s{sT2}, s{sU}, s{sT2}")
    A(f"s_lshl_b32 s{sT2}, s{sT2}, 7")
    A(f"s_cmp_lt_u32 s{sT1}, 128")
    A(f"s_cselect_b32 s{sSrc}, s{pWo}, s{pW2}")
    A(f"s_cselect_b32 s{sSrc+1}, s{pWo+1}, s{pW2+1}")
    A(f"s_mov_b32 s{sSrc+2}, {1728*1280}")
    A(f"s_cselect_b32 s{sSrc+2}, {4096*1280}, s{sSrc+2}")
    A(f"s_and_b32 s{sSrc+1}, s{sSrc+1}, 0xffff")
    A(f"s_mov_b32 s{sSrc+3}, 0x20000")
    A(f"s_and_b32 s{sT1}, s{sT1}, 127")
    A(f"s_mul_i32 s{sT1}, s{sT1}, 40960")
    A(f"s_add_u32 s{sPo}, s{sT1}, s{sT2}")
    A(f"v_and_b32 v{t+14}, 15, v{vLane}")
    A(f"v_lshrrev_b32 v{t+13}, 1, v{t+14}")
    A(f"v_xor_b32 v{t+13}, v{t+13}, v{t+12}")
    A(f"v_lshlrev_b32 v{t+13}, 4, v{t+13}")
    A(f"v_lshl_add_u32 v{t+13}, v{t+14}, 7, v{t+13}")
    A(f"s_lshl_b32 s6, s{sWave}, 13")
    A(f"s_add_u32 s6, s6, {R1}")
    A(f"v_add_u32 v{vXr}, s6, v{t+13}")
    A(f"v_xor_b32 v{vXr+1}, 64, v{vXr}")
    A(f"v_lshlrev_b32 v{t+3}, 4, v{t+14}")
    A(f"v_bfe_u32 v{t+14}, v{vLane}, 2, 2")
    A(f"v_and_b32 v{t+15}, 3, v{vLane}")
    A(f"v_lshlrev_b32 v{t+15}, 3, v{t+15}")
    A(f"v_lshl_add_u32 v{t+15}, v{t+12}, 12, v{t+15}")
    A(f"v_add_u32 v{t+15}, {R3}, v{t+15}")
    A(f"v_bfe_u32 v{t+16}, v{vLane}, 4, 1")
    A(f"v_lshl_add_u32 v{t+13}, v{t+16}, 2, v{t+14}")
    A(f"s_lshl_b32 s6, s{sWave}, 1")
    A(f"v_xor_b32 v{t+13}, s6, v{t+13}")
    A(f"v_lshl_add_u32 v{t+13}, v{t+13}, 5, v{t+15}")
    A(f"v_lshl_add_u32 v{vWqr}, v{t+14}, 8, v{t+13}")
    for p in range(1, 8): A(f"v_xor_b32 v{vWqr+p}, {32*p}, v{vWqr}")
    A(f"v_lshrrev_b32 v{t+13}, 1, v{t+14}")
    A(f"v_lshl_add_u32 v{t+13}, v{t+16}, 1, v{t+13}")
    A(f"v_xor_b32 v{t+13}, s{sWave}, v{t+13}")
    A(f"v_lshl_add_u32 v{t+13}, v{t+13}, 5, v{t+15}")
    A(f"v_lshl_add_u32 v{vW13r}, v{t+14}, 7, v{t+13}")
    for p in range(1, 4): A(f"v_xor_b32 v{vW13r+p}, {32*p}, v{vW13r}")
    srd(A, sK, pK, pK + 1, 16777216)
    srd(A, sV, pV, pV + 1, 16777216)
    A(f"s_add_u32 s{sSt}, s{pWs}, {ST_OFF}")
    A(f"s_addc_u32 s{sSt+1}, s{pWs+1}, 0")
    srd(A, sSt, sSt, sSt + 1, 2048 * 16)
    A(f"s_lshl_b32 s6, s{sRb}, 2")
    A(f"v_mov_b32 v{t+2}, s6")
    A(f"s_movk_i32 s{sMask}, {EVMASK}")
    A(f"s_mov_b32 s{sD}, 0")
    A(f"s_cmp_ge_u32 s{sProd}, 4")
    A(f"s_cbranch_scc1 {L}np2")
    A("s_waitcnt vmcnt(25)")
    for i in range(79, -1, -1):
        A(f"v_and_b32 v{UNP+2*i+1}, 0xffff0000, v{RAW+i}")
        A(f"v_lshlrev_b32 v{UNP+2*i}, 16, v{RAW+i}")
    a = 64
    def red(first):
        for i in range(80):
            first(i)
        A(f"v_pk_add_f32 {vr(a,2)}, {vr(a,2)}, {vr(a+2,2)}")
        A(f"v_pk_add_f32 {vr(a+4,2)}, {vr(a+4,2)}, {vr(a+6,2)}")
        A(f"v_pk_add_f32 {vr(a,2)}, {vr(a,2)}, {vr(a+4,2)}")
        A(f"v_add_f32 v{a}, v{a}, v{a+1}")
        for qp in ("[1,0,3,2]", "[2,3,0,1]"):
            A("s_nop 1")
            A(f"v_add_f32_dpp v{a}, v{a}, v{a} quad_perm:{qp} row_mask:0xf bank_mask:0xf")
    def f1(i):
        d = vr(a + 2 * (i % 4), 2)
        if i < 4: A(f"v_pk_add_f32 {d}, {vr(UNP+2*i,2)}, {vr(UNP+2*i+8,2)}")
        elif i >= 8: A(f"v_pk_add_f32 {d}, {d}, {vr(UNP+2*i,2)}")
    red(f1)
    o = 72
    A(f"v_mul_f32 v{o}, {hex(f2u(-1.0/640))}, v{a}")
    for i in range(80): A(f"v_pk_add_f32 {vr(UNP+2*i,2)}, {vr(UNP+2*i,2)}, {vr(o,2)} op_sel_hi:[1,0]")
    def f2(i):
        d = vr(a + 2 * (i % 4), 2); x_ = vr(UNP + 2 * i, 2)
        if i < 4: A(f"v_pk_mul_f32 {d}, {x_}, {x_}")
        else: A(f"v_pk_fma_f32 {d}, {x_}, {x_}, {d}")
    red(f2)
    A(f"v_mov_b32 v{o+3}, {hex(f2u(1e-5))}")
    A(f"v_fmac_f32 v{o+3}, {hex(f2u(1.0/640))}, v{a}")
    A(f"v_mov_b32 v{o+2}, v{o+3}")
    A(f"v_rsq_f32 v{o+1}, v{o+3}")
    A("s_mov_b32 exec_lo, 0x11111111")
    A("s_mov_b32 exec_hi, 0x11111111")
    A(f"buffer_store_dwordx4 {vr(o,4)}, v{t+5}, s[{sSt}:{sSt+3}], 0 offen sc1 ; @put S")
    A("s_mov_b64 exec, -1")
    A("s_waitcnt vmcnt(0)")
    A(f"{L}np2:")
    for i in range(4): A(f"v_mov_b32 v{vSt+i}, 0")
    A(f"v_mov_b32 v{t+13}, 0x3f803f80")
    for i in range(4): A(f"v_accvgpr_write_b32 a{aOne+i}, v{t+13}")
    z = vr(vSt, 4)
    for i in range(8): mf32(A, vr(vAcc + 16 * i, 16), z, z, "0")
    for i in range(9): mf32(A, ar(16 * i, 16), z, z, "0")
    A(f"s_waitcnt vmcnt(12)")
    A("s_barrier")
    A(f"s_lshl2_add_u32 s6, s{sProd}, s{sWave}")
    A(f"s_and_b32 s6, s6, 0xfffffff3")
    A(f"s_cbranch_scc1 {L}np3")
    A(f"v_mov_b32 v{t+1}, 1")
    A(f"v_add_u32 v{t+7}, s{sProd}, v{t+2}")
    A(f"s_mov_b64 exec, 1")
    A(f"global_store_byte v{t+7}, v{t+1}, s[{pDbg}:{pDbg+1}] sc1")
    A(f"s_mov_b64 exec, -1")
    A(f"{L}np3:")
    stamp(1)
    for rt in range(4): A(xread(0, 0, rt))
    A(f"s_cmp_eq_u32 s{sHasF}, 0")
    fr = frag_list(True)
    for f in range(3):
        for sec in range(2): A(wread(fr[f], 0, sec, f))
    A("s_waitcnt lgkmcnt(6)")
    if FINE: A("s_mov_b32 s7, 0")
    A(f"s_cbranch_scc1 {L}gn")
    gemm_loop(A, True, L + "gf")
    A(f"s_branch {L}gdone")
    gemm_events(A, L + "gf")
    gemm_events(A, L + "gn")
    gemm_loop(A, False, L + "gn")
    A(f"{L}gdone:")
    if FINE:
        A(f"s_lshl_b32 s96, s2, 2"); A(f"s_add_u32 s96, s96, s{sWave}"); A("s_lshl_b32 s96, s96, 10")
        A(f"v_lshl_add_u32 v{vTm+12}, v{vLane}, 2, s96")
        A(f"s_add_u32 s100, s{pWs}, 0x3200000"); A(f"s_addc_u32 s101, s{pWs+1}, 0")
        A(f"global_store_dword v{vTm+12}, v{vFin}, s[100:101]")
        A(f"global_store_dword v{vTm+12}, v{vFin+1}, s[100:101] offset:256")
        A(f"global_store_dword v{vTm+12}, v{vFin-1}, s[100:101] offset:512")
    stamp(2)
    A(f"v_lshrrev_b32 v{t+12}, 4, v{vLane}")
    A(f"v_lshlrev_b32 v{t+12}, 4, v{t+12}")
    A(f"s_lshl_b32 s6, s{sWave}, 7")
    A(f"s_add_u32 s6, s6, {CS}")
    A(f"v_add_u32 v{t+8}, s6, v{t+12}")
    A(f"s_lshl_b32 s6, s{sWave}, 6")
    A(f"s_add_u32 s6, s6, {CS+512}")
    A(f"v_add_u32 v{t+9}, s6, v{t+12}")
    A("s_mov_b32 exec_lo, 0x00010001")
    A("s_mov_b32 exec_hi, 0x00010001")
    A(f"ds_write_b128 v{t+8}, {ar(aCs,4)}")
    A(f"ds_write_b128 v{t+8}, {ar(aCs+4,4)} offset:64")
    A(f"ds_write_b128 v{t+9}, {ar(aCs+8,4)}")
    A(f"ds_write_b128 v{t+9}, {ar(aCs+12,4)} offset:256")
    A("s_mov_b64 exec, -1")
    for j in range(8): A(f"v_mov_b32 v{vKd+j}, v{vXd+j}")
    A(f"s_mov_b32 s{sKVo}, s{sXo}")
    A(f"s_mov_b32 s{sKVm}, s{sM0X}")
    A(f"v_lshlrev_b32 v{t+10}, 4, v{vLane}")
    A("s_waitcnt lgkmcnt(0)")
    A("s_barrier")
    kvadv = [f"s_add_u32 s{sKVo}, s{sKVo}, 16384\ns_add_u32 s{sKVm}, s{sKVm}, 32768"]
    def kvq(): return kv_dma() + kvadv
    csb = [vKr, vKr + 4, vVr + 0]
    lq = LQ()
    def csread_q(p):
        A(f"v_xor_b32 v{t+11}, {64*p}, v{t+8}")
        A(f"ds_read_b128 {vr(csb[p%3],4)}, v{t+11}"); lq.issue(("c", p))
    csread_q(0); csread_q(1)
    kq = spread([f"s_add_u32 m0, s{sKVm}, 16384"] + kv_dma()[6:] + kvadv, 24)
    for rt in range(4):
        q = vSt + 4 * rt
        A(f"v_mul_f32 v{q+3}, {hex(f2u(LOG2E/128**0.5))}, v{q+1}")
        A(f"v_mul_f32 v{q+1}, {hex(f2u(-LOG2E))}, v{q+1}")
    z = vr(vTm + 12, 4)
    for i in range(4): A(f"v_mov_b32 v{vTm+12+i}, 0")
    for p in range(8):
        if p + 2 < 8: csread_q(p + 2)
        lq.wait(A, [("c", p)])
        c = csb[p % 3]
        for rt in range(4):
            d = vAcc + (p * 4 + rt) * 4; q = vSt + 4 * rt
            for h in range(2):
                A(f"v_pk_fma_f32 {vr(d+2*h,2)}, {vr(c+2*h,2)}, {vr(q,2)}, {vr(d+2*h,2)} op_sel_hi:[1,0,1]")
        mf32(A, ar(aO + 16 * p, 16), z, z, "0")
        emit(kq[3*p])
        for rt in range(4):
            d = vAcc + (p * 4 + rt) * 4; q = vSt + 4 * rt
            for h in range(2):
                A(f"v_pk_mul_f32 {vr(d+2*h,2)}, {vr(d+2*h,2)}, {vr(q+2,2)} op_sel:[0,1]")
        emit(kq[3*p+1])
        for rt in range(4):
            d = vAcc + (p * 4 + rt) * 4
            f = vQ + ((rt // 2) * 8 + p) * 4 + (rt & 1) * 2
            for h in range(2): A(f"v_cvt_pk_bf16_f32 v{f+h}, v{d+2*h}, v{d+2*h+1}")
        emit(kq[3*p+2])
        if p > 0:
            for qt in range(2):
                f = vQ + (qt * 8 + p - 1) * 4
                for h in range(2): A(f"v_permlane16_swap_b32 v{f+h}, v{f+2+h}")
    A("s_nop 0")
    for qt in range(2):
        f = vQ + (qt * 8 + 7) * 4
        for h in range(2): A(f"v_permlane16_swap_b32 v{f+h}, v{f+2+h}")
    stamp(3)
    A(f"s_cmp_eq_u32 s{sHasF}, 0")
    A(f"s_cbranch_scc1 {L}noffn")
    T = vAcc; H = vAcc + 64; C = vAcc + 96
    for p in range(4):
        A(f"v_xor_b32 v{t+11}, {64*p}, v{t+9}")
        A(f"ds_read_b128 {vr(C+8*p,4)}, v{t+11}")
        A(f"ds_read_b128 {vr(C+8*p+4,4)}, v{t+11} offset:256")
    A(f"s_lshr_b32 s7, s{sWave}, 1")
    A(f"s_lshl_b32 s6, s{sFb}, 1")
    A(f"s_add_u32 s6, s6, 128")
    A(f"s_add_u32 s{sT0}, s6, s7")
    A(f"s_xor_b32 s7, s7, 1")
    A(f"s_add_u32 s{sT1}, s6, s7")
    A(f"s_lshl_b32 s{sT0}, s{sT0}, 12")
    A(f"s_lshl_b32 s{sT1}, s{sT1}, 12")
    A("s_waitcnt lgkmcnt(0)")
    kq = spread(kvq(), 24)
    for p in range(4):
        for r2 in range(2):
            g_ = 3 * (p * 2 + r2)
            G = [(2 * r2 + i, T + 12 * i + 24 * ((p * 2 + r2) & 1)) for i in range(2)]
            for rt, b in G:
                for i in range(4): A(f"v_accvgpr_read_b32 v{b+i}, a{aG+(p*4+rt)*4+i}")
                for i in range(4): A(f"v_accvgpr_read_b32 v{b+4+i}, a{aUp+(p*4+rt)*4+i}")
            emit(kq[g_])
            for rt, b in G:
                for h in range(4):
                    A(f"v_pk_fma_f32 {vr(b+2*h,2)}, {vr(C+8*p+2*h,2)}, {vr(vSt+4*rt,2)}, {vr(b+2*h,2)} op_sel_hi:[1,0,1]")
            for rt, b in G:
                for h in range(2): A(f"v_pk_mul_f32 {vr(b+8+2*h,2)}, {vr(b+2*h,2)}, {vr(vSt+4*rt,2)} op_sel:[0,1]")
            for rt, b in G:
                for i in range(4): A(f"v_exp_f32 v{b+8+i}, v{b+8+i}")
            emit(kq[g_+1])
            for rt, b in G:
                for h in range(2): A(f"v_pk_mul_f32 {vr(b+2*h,2)}, {vr(b+2*h,2)}, {vr(b+4+2*h,2)}")
            for rt, b in G:
                for h in range(2):
                    A(f"v_pk_fma_f32 {vr(b+8+2*h,2)}, {vr(b+8+2*h,2)}, {vr(vSt+4*rt+2,2)}, {vr(vSt+4*rt+2,2)} op_sel_hi:[1,0,0]")
            for rt, b in G:
                for i in range(4): A(f"v_rcp_f32 v{b+8+i}, v{b+8+i}")
            emit(kq[g_+2])
            for n, (rt, b) in enumerate(G):
                for h in range(2): A(f"v_pk_mul_f32 {vr(b+2*h,2)}, {vr(b+2*h,2)}, {vr(b+8+2*h,2)}")
            for rt, b in G:
                for h in range(2): A(f"v_cvt_pk_bf16_f32 v{H+(p//2)*16+rt*4+(p&1)*2+h}, v{b+2*h}, v{b+2*h+1}")
        if p & 1:
            pi = p // 2
            A(f"s_bitcmp1_b32 s{sWave}, 0")
            A(f"s_cbranch_scc0 {L}nsw{pi}")
            for rt in range(4):
                for h in range(2): A(f"v_swap_b32 v{H+pi*16+rt*4+h}, v{H+pi*16+rt*4+2+h}")
            A(f"{L}nsw{pi}:")
            for rt in range(4):
                A(f"buffer_store_dwordx4 {vr(H+pi*16+rt*4,4)}, v{t+10}, s[{sA}:{sA+3}], s{sT0+pi} offen offset:{rt*1024}")
    A(f"s_branch {L}ffnd")
    A(f"{L}noffn:")
    emit(kvq())
    A(f"{L}ffnd:")
    stamp(4)
    A(f"s_mov_b32 s{sT1}, {R0}")
    kv_addr(A, sT1)
    A(f"v_mov_b32 v{vL}, 0")
    A(f"v_mov_b32 v{vL+1}, 0")
    A(f"s_mov_b32 s{sT}, 0")
    A(f"s_mov_b32 s{sC0}, 32768")
    A("s_waitcnt vmcnt(16)")
    A("s_barrier")
    lq = LQ()
    for p in range(3):
        A(kread(p, 0, p)); lq.issue(("f", 16 + p))
    attn_seg(A, lq, 2, {}, sm_lo=0, sm_hi=0, look=[2])
    for p in range(3):
        A(kread(p, 1, p)); lq.issue(("f", p))
    A("s_nop 7")
    for e in range(10):
        for x in sm_exp(0, e): A(x)
        if e:
            for x in sm_post(0, e - 1): A(x)
    assert XP or lq.q == [("f", 0), ("f", 1), ("f", 2)]
    dm = kv_dma()
    ex = {}
    for p in range(8):
        ex.setdefault(max(2 * (p - 3) + 1, 1) if p >= 3 else 2 * p, []).append(f"v_add_u32 v{vKr+p}, s{sDelta}, v{vKr+p}")
    for dt in range(4):
        ex.setdefault(2 * (28 + dt - 3) + 2, []).append(f"v_add_u32 v{vVr+dt}, s{sDelta}, v{vVr+dt}")
    ex[(26, "pre")] = ["s_waitcnt vmcnt(8)", "s_barrier"]
    for i, sl in enumerate([32, 33, 37, 41, 45, 47, 49, 53, 57, 61]): ex.setdefault(sl, []).append(dm[i])
    if "nodma" in XP:
        for k_ in list(ex):
            if not isinstance(k_, tuple): ex[k_] = [x for x in ex[k_] if "lds" not in x and "m0" not in x]
    if "nobar" in XP: ex[(26, "pre")] = []
    ex.setdefault(62, []).append(f"s_add_u32 s{sKVo}, s{sKVo}, 16384")
    ex.setdefault(20, []).append(f"s_add_u32 s{sT}, s{sT}, 1")
    A(".p2align 6")
    A(f"{L}at:")
    A(f"s_cmp_eq_u32 s{sT}, 4")
    A(f"s_cselect_b32 s{sDelta}, {hex((-131072) & 0xffffffff)}, s{sC0}")
    attn_seg(A, lq, 0, ex)
    attn_seg(A, lq, 1, ex)
    A(f"s_cmp_eq_u32 s{sT}, 8")
    A(f"s_cbranch_scc1 {L}attail")
    lq_exit = list(lq.q)
    attn_seg(A, lq, 2, ex)
    attn_seg(A, lq, 3, ex)
    A(f"s_cmp_eq_u32 s{sT}, 2")
    A(f"s_cselect_b32 s{sT0}, {hex((-131072) & 0xffffffff)}, s{sC0}")
    A(f"s_add_u32 s{sKVm}, s{sKVm}, s{sT0}")
    A(f"s_cmp_lt_u32 s{sT}, 5")
    A(f"s_cbranch_scc1 {L}at")
    A(f"s_cmp_eq_u32 s{sT}, 5")
    A(f"s_cbranch_scc1 {L}atp")
    A(f"s_mov_b32 s{sKVm}, {TAILBIT}")
    A(f"s_mov_b32 s{sK+2}, 0")
    A(f"s_mov_b32 s{sV+2}, 0")
    A(f"s_branch {L}at")
    A(f"{L}atp:")
    for i in range(4):
        A(f"s_mov_b32 s{sK+i}, s{sSrc+i}" if i < 3 else f"s_mov_b32 s{sK+3}, 0x20000")
        A(f"s_mov_b32 s{sV+i}, s{sSrc+i}" if i < 3 else f"s_mov_b32 s{sV+3}, 0x20000")
    A(f"s_mov_b32 s{sKVo}, s{sPo}")
    A(f"v_lshrrev_b32 v{t+12}, 4, v{vLane}")
    A(f"v_lshlrev_b32 v{t+12}, 1, v{t+12}")
    A(f"v_and_b32 v{t+13}, 7, v{vLane}")
    A(f"v_xor_b32 v{t+12}, v{t+12}, v{t+13}")
    A(f"v_lshlrev_b32 v{t+12}, 4, v{t+12}")
    A(f"v_lshrrev_b32 v{t+13}, 3, v{vLane}")
    A(f"v_mul_u32_u24 v{t+13}, 1280, v{t+13}")
    A(f"v_add_u32 v{vKd}, v{t+12}, v{t+13}")
    for j in range(1, 8): A(f"v_add_u32 v{vKd+j}, {(j%4)*9216 + (j//4)*128}, v{vKd}")
    A(f"s_branch {L}at")
    assert XP or lq.q == [("f", 0), ("f", 1), ("f", 2)], lq.q
    A(f"{L}attail:")
    lq.q = lq_exit
    A("s_waitcnt lgkmcnt(0)"); lq.clear()
    attn_seg(A, lq, 2, {}, mfma=False, look=[3])
    attn_seg(A, lq, 3, {}, sm_hi=54, look=[3])
    stamp(5)
    A(f"v_bfe_u32 v{t+14}, v{vLane}, 2, 2")
    A(f"v_bfe_u32 v{t+16}, v{vLane}, 4, 1")
    A(f"v_lshl_add_u32 v{t+14}, v{t+16}, 2, v{t+14}")
    A(f"v_lshrrev_b32 v{t+13}, 1, v{t+14}")
    A(f"v_lshlrev_b32 v{t+13}, 5, v{t+13}")
    A(f"v_lshl_add_u32 v{t+13}, v{t+14}, 7, v{t+13}")
    A(f"v_lshrrev_b32 v{t+15}, 5, v{vLane}")
    A(f"v_lshl_add_u32 v{t+13}, v{t+15}, 10, v{t+13}")
    A(f"v_and_b32 v{t+15}, 3, v{vLane}")
    A(f"v_lshl_add_u32 v{t+13}, v{t+15}, 3, v{t+13}")
    A(f"s_lshl_b32 s6, s{sWave}, 12")
    A(f"s_add_u32 s6, s6, {R3}")
    A(f"v_add_u32 v{t+4}, s6, v{t+13}")
    for i4 in range(1, 4): A(f"v_xor_b32 v{t+4+i4}, {32*i4}, v{t+4}")
    for su in range(2):
        for i4 in range(4):
            for sec in range(2):
                A(f"ds_read_b64_tr_b16 {ar((su*4+i4)*4+2*sec,2)}, v{t+4+i4} offset:{su*16384+sec*2048}")
    A(f"v_mov_b32 v{t}, v{vL}")
    A(f"v_mov_b32 v{t+1}, v{vL+1}")
    A(f"v_bfe_u32 v{t+2}, v{vLane}, 4, 1")
    A(f"v_lshrrev_b32 v{t+3}, 5, v{vLane}")
    A(f"v_permlane32_swap_b32 v{t}, v{vL}")
    A(f"v_permlane32_swap_b32 v{t+1}, v{vL+1}")
    A(f"v_lshlrev_b32 v{t+3}, 8, v{t+3}")
    A(f"v_add_f32 v{vL}, v{vL}, v{t}")
    A(f"v_add_f32 v{vL+1}, v{vL+1}, v{t+1}")
    A(f"v_lshl_add_u32 v{t+3}, v{t+2}, 10, v{t+3}")
    A(f"v_and_b32 v{t+2}, 15, v{vLane}")
    A(f"v_lshl_add_u32 v{vOo}, v{t+2}, 4, v{t+3}")
    A(f"v_mov_b32 v{t+8}, {hex(f2u(2.0**-40))}")
    A(f"v_mov_b32 v{t+9}, {hex(f2u(2.0**40))}")
    A(f"v_cmp_gt_f32 s[{sE0}:{sE0+1}], v{vL}, v{t+8}")
    A(f"v_cmp_lt_f32 s[{sE0+2}:{sE0+3}], v{vL}, v{t+9}")
    A(f"v_cmp_gt_f32 s[4:5], v{vL+1}, v{t+8}")
    A(f"v_cmp_lt_f32 s[6:7], v{vL+1}, v{t+9}")
    A(f"v_rcp_f32 v{t}, v{vL}")
    A(f"v_rcp_f32 v{t+1}, v{vL+1}")
    A("s_nop 1")
    A(f"s_and_b64 s[{sE0}:{sE0+1}], s[{sE0}:{sE0+1}], s[{sE0+2}:{sE0+3}]")
    A(f"s_and_b64 s[4:5], s[4:5], s[6:7]")
    A(f"s_and_b64 s[4:5], s[4:5], s[{sE0}:{sE0+1}]")
    A(f"s_lshl_b32 s6, s2, 7")
    A(f"s_add_u32 s6, s6, {FL_OFF - W_OFF}")
    A(f"s_add_u32 s{sE0+2}, s{sWp}, s6")
    A(f"s_addc_u32 s{sE0+3}, s{sWp+1}, 0")
    A(f"v_mov_b32 v{t+11}, 0")
    A("s_mov_b64 exec, 1")
    A(f"global_store_dword v{t+11}, v{t+11}, s[{sE0+2}:{sE0+3}]")
    A("s_mov_b64 exec, -1")
    A(f"s_lshl_b32 s6, s{sU}, 12")
    A("s_waitcnt lgkmcnt(0)")
    for su in range(2):
        for i4 in range(4):
            A(f"buffer_store_dwordx4 {ar((su*4+i4)*4,4)}, v{t+10}, s[{sWp}:{sWp+3}], s6 offen offset:{i4*1024}")
        if su == 0: A("s_add_u32 s6, s6, 4096")
    A(f"s_cmp_eq_u64 s[4:5], exec")
    if not XP: A(f"s_cbranch_scc0 {L}slow ; slowbr")
    A(f"{L}oep:")
    A(f"s_lshl_b32 s6, s{sHead}, 14")
    n = 0
    for dt in range(4):
        for qt in range(2):
            b = vS + (n % 4) * 16; pk = vP + (n % 4) * 8; n += 1
            for i in range(16): A(f"v_accvgpr_read_b32 v{b+i}, a{aO+(qt*4+dt)*16+i}")
            for i in range(8):
                A(f"v_pk_mul_f32 {vr(b+2*i,2)}, {vr(b+2*i,2)}, {vr(t,2)} " + ("op_sel_hi:[1,0]" if qt == 0 else "op_sel:[0,1]"))
            for i in range(8): A(f"v_cvt_pk_bf16_f32 v{pk+i}, v{b+2*i}, v{b+2*i+1}")
            for j in range(2):
                A(f"buffer_store_dwordx4 {vr(pk+4*j,4)}, v{vOo}, s[{sA}:{sA+3}], s6 offen offset:{qt*2048+j*512}")
        if dt < 3: A("s_add_u32 s6, s6, 4096")
    stamp(6)
    A(f"{L}end:")
    A("s_endpgm")
    A(f"{L}slow:")
    A("s_waitcnt vmcnt(0) lgkmcnt(0)")
    srd(A, sK, pK, pK + 1, 16777216)
    srd(A, sV, pV, pV + 1, 16777216)
    kv_dma_voff(A, vKd, vVd)
    A(f"s_lshl_b32 s{sT1}, s{sWave}, 14")
    A(f"s_add_u32 s{sT1}, s{sT1}, {R0}")
    kv_addr(A, sT1)
    for dt in range(4): A(f"v_subrev_u32 v{vVr+dt}, 8192, v{vVr+dt}")
    vM = vTm + 6
    A(f"v_mov_b32 v{vM}, 0xff800000")
    A(f"v_mov_b32 v{vM+1}, 0xff800000")
    A(f"v_mov_b32 v{vL}, 0")
    A(f"v_mov_b32 v{vL+1}, 0")
    for i in range(4): A(f"v_mov_b32 v{vTm+12+i}, 0")
    A("s_nop 1")
    for i in range(8): mf32(A, ar(aO + 16 * i, 16), vr(vTm + 12, 4), vr(vTm + 12, 4), "0")
    A(f"s_mov_b32 s{sT}, 0")
    A(f"{L}sl:")
    A(f"s_and_b32 s{sT0}, s{sT}, 15")
    A(f"s_lshl_b32 s{sT0}, s{sT0}, 13")
    A(f"s_lshl_b32 s{sKVo}, s{sHead}, 19")
    A(f"s_add_u32 s{sKVo}, s{sKVo}, s{sT0}")
    A(f"s_add_u32 s{sKVo}, s{sKVo}, {1536*256}")
    for hf in range(2):
        A(f"s_add_u32 m0, s{sT1}, {hf*4096}")
        A("s_nop 0")
        for j in range(4): A(f"buffer_load_dwordx4 v{vKd+j}, s[{sK}:{sK+3}], s{sKVo} offen offset:{j*1024} lds")
        A(f"s_add_u32 m0, s{sT1}, {8192+hf*4096}")
        A("s_nop 0")
        for j in range(4): A(f"buffer_load_dwordx4 v{vVd}, s[{sV}:{sV+3}], s{sKVo} offen offset:{j*1024} lds")
        if hf == 0: A(f"s_add_u32 s{sKVo}, s{sKVo}, 4096")
    A("s_waitcnt vmcnt(0)")
    for p in range(8):
        A(kread(p, 0, p % 4))
        A("s_waitcnt lgkmcnt(0)")
        for qt in range(2): mf32(A, vr(vS + qt * 16, 16), vr(vF + (p % 4) * 4, 4), vr(vQ + (qt * 8 + p) * 4, 4), "0" if p == 0 else None)
    A("s_nop 11")
    A(f"s_cmp_ge_u32 s{sT}, 16")
    A(f"s_cbranch_scc1 {L}sl2")
    for qt in range(2):
        for i in range(8): A(f"v_max3_f32 v{vM+qt}, v{vS+qt*16+2*i}, v{vS+qt*16+2*i+1}, v{vM+qt}")
    A(f"s_cmp_lg_u32 s{sT}, 15")
    A(f"s_cbranch_scc1 {L}sl3")
    A(f"v_mov_b32 v{vM+2}, v{vM}")
    A(f"v_mov_b32 v{vM+3}, v{vM+1}")
    A("s_nop 1")
    A(f"v_permlane32_swap_b32 v{vM+2}, v{vM}")
    A(f"v_permlane32_swap_b32 v{vM+3}, v{vM+1}")
    A(f"v_max_f32 v{vM}, v{vM}, v{vM+2}")
    A(f"v_max_f32 v{vM+1}, v{vM+1}, v{vM+3}")
    A(f"s_branch {L}sl3")
    A(f"{L}sl2:")
    for e in range(32):
        r, qt, ks = sm_reg(0, e)
        A(f"v_sub_f32 v{r}, v{r}, v{vM+qt}")
        A(f"v_exp_f32 v{r}, v{r}")
        A("s_nop 0")
        for x in sm_post(0, e): A(x)
    for i in range(8):
        for sec in range(2): A(vread(i // 4, i % 4, 0, sec, i % 4))
        A("s_waitcnt lgkmcnt(0)")
        for qt in range(2): mf32(A, ar(aO + (qt * 4 + i % 4) * 16, 16), vr(vF + (i % 4) * 4, 4), vr(vP + (qt * 2 + i // 4) * 4, 4))
    A(f"{L}sl3:")
    A(f"s_add_u32 s{sT}, s{sT}, 1")
    A(f"s_cmp_lt_u32 s{sT}, 32")
    A(f"s_cbranch_scc1 {L}sl")
    A(f"v_mov_b32 v{t}, v{vL}")
    A(f"v_mov_b32 v{t+1}, v{vL+1}")
    A("s_nop 1")
    A(f"v_permlane32_swap_b32 v{t}, v{vL}")
    A(f"v_permlane32_swap_b32 v{t+1}, v{vL+1}")
    A(f"v_add_f32 v{vL}, v{vL}, v{t}")
    A(f"v_add_f32 v{vL+1}, v{vL+1}, v{t+1}")
    A(f"v_rcp_f32 v{t}, v{vL}")
    A(f"v_rcp_f32 v{t+1}, v{vL+1}")
    A("s_nop 7")
    A(f"s_branch {L}oep")
    kd(A, name, 512, 256)

def checks(A, entry):
    if XP: return
    nb = check_hazards(A.lines)
    tot = 0
    for wg in (5, 31, 24, 28, 255):
        for w in (0, 3):
            for slow in (0, 1):
                def hk(x, S):
                    if x.opn == "v_readfirstlane_b32":
                        S[sWave] = w
                    if "slowbr" in x.text: return slow
                    if "pollbr" in x.text: return 1
                p, c = check_waits(A.lines, entry, {2: wg}, hk)
                tot += p
    print("hazards:", nb, "waits:", tot, c)
```

```python
from asmlib import *
from common import *
from p1 import LQ, mf16, spread

RING = 81920
OWN = RING
P2S_LDS = RING + 40960
TLBW = True

def gen_p2s(A, name, stamps=False):
    head(A, name)
    L = "q2_"
    sA, sW, sX, sO, sI = 8, 12, 16, 20, 24
    sWv, sP, sRb, sCb, sG = 28, 29, 30, 31, 32
    sAo, sWo, sWm, sN, sT0, sT1, sT2, sXo = 33, 34, 35, 36, 37, 38, 39, 40
    pX, pO, pWs = 4, 6, 42
    sAs, sWs, sAe, sWe, sNl, sPh, sSo = 52, 53, 54, 55, 56, 57, 58
    vLane, vL16, vL16b, vWr, vXo, vT = 1, 2, 3, 4, 6, 8
    acc = [64, 144]
    aA, aW = 0, 64
    def stamp(i):
        if not stamps: return
        A("s_memtime s[96:97]"); A("s_memrealtime s[98:99]"); A("s_waitcnt lgkmcnt(0)")
        A("v_mov_b32 v62, s96"); A("v_mov_b32 v63, s98")
        A("s_lshl_b32 s96, s2, 2"); A(f"s_add_u32 s96, s96, s{sWv}"); A("s_lshl_b32 s96, s96, 7")
        A("v_mov_b32 v61, s96")
        A(f"s_add_u32 s100, s{pWs}, 0x3300000"); A(f"s_addc_u32 s101, s{pWs+1}, 0")
        A(f"global_store_dwordx2 v61, v[62:63], s[100:101] offset:{i*8}")
    A("s_cmp_ge_u32 s2, 256")
    A(f"s_cbranch_scc1 {L}end")
    A(f"s_load_dwordx2 s[{pWs}:{pWs+1}], s[0:1], 88")
    A(f"s_load_dwordx2 s[{pX}:{pX+1}], s[0:1], 0")
    A(f"s_load_dwordx2 s[{pO}:{pO+1}], s[0:1], 72")
    A(f"v_and_b32 v{vLane}, 63, v0")
    A("v_lshrrev_b32 v0, 6, v0")
    A(f"s_and_b32 s{sP}, s2, 3")
    A(f"v_readfirstlane_b32 s{sWv}, v0")
    A(f"s_lshr_b32 s{sT0}, s2, 3")
    A(f"s_lshr_b32 s{sCb}, s{sT0}, 3")
    A(f"s_and_b32 s{sRb}, s{sT0}, 7")
    A(f"s_and_b32 s{sT1}, s2, 4")
    A(f"s_lshl_b32 s{sT1}, s{sT1}, 1")
    A(f"s_add_u32 s{sRb}, s{sRb}, s{sT1}")
    A(f"s_lshl2_add_u32 s{sG}, s{sRb}, s{sCb}")
    A(f"v_lshlrev_b32 v{vL16}, 4, v{vLane}")
    A(f"v_add_u32 v{vL16b}, 4096, v{vL16}")
    A(f"v_mov_b32 v{vWr}, v{vL16}")
    A(f"v_add_u32 v{vWr+1}, 40960, v{vL16}")
    A(f"s_mul_i32 s{sT0}, s{sP}, 14")
    A(f"s_add_u32 s{sT0}, s{sT0}, 128")
    A(f"s_lshl_b32 s{sT1}, s{sP}, 5")
    A(f"s_and_b32 s{sT2}, s{sWv}, 1")
    A(f"s_lshl_b32 s3, s{sT2}, 11")
    A(f"s_lshl_b32 s{sAo}, s{sT0}, 12")
    A(f"s_add_u32 s{sAo}, s{sAo}, s3")
    A(f"s_lshl_b32 s{sAs}, s{sT1}, 12")
    A(f"s_add_u32 s{sAs}, s{sAs}, s3")
    A(f"s_lshr_b32 s3, s{sWv}, 1")
    A(f"s_lshl_b32 s41, s{sCb}, 1")
    A(f"s_add_u32 s41, s41, s3")
    A(f"s_mul_i32 s41, s41, 5120")
    A(f"s_add_u32 s{sWo}, s{sT0}, s{sT2}")
    A(f"s_mul_i32 s{sWo}, s{sWo}, 40960")
    A(f"s_add_u32 s{sWo}, s{sWo}, s41")
    A(f"s_add_u32 s{sWs}, s{sT1}, s{sT2}")
    A(f"s_mul_i32 s{sWs}, s{sWs}, 40960")
    A(f"s_add_u32 s{sWs}, s{sWs}, s41")
    A(f"s_add_u32 s{sT1}, s{sT1}, 32")
    A(f"s_lshl_b32 s{sAe}, s{sT1}, 12")
    A(f"s_mul_i32 s{sWe}, s{sT1}, 40960")
    A(f"s_mul_i32 s{sWm}, s{sT2}, 10240")
    A(f"s_mul_i32 s41, s3, 5120")
    A(f"s_add_u32 s{sWm}, s{sWm}, s41")
    A(f"s_lshl_b32 s41, s{sRb}, 1")
    A(f"s_add_u32 s41, s41, s3")
    A(f"s_mul_i32 s41, s41, {A_BLK}")
    A(f"s_mov_b32 s{sA+2}, {A_BLK}")
    A(f"s_mov_b32 s{sW+2}, {W_SIZE}")
    A(f"s_mov_b32 s{sA+3}, 0x20000")
    A(f"s_mov_b32 s{sW+3}, 0x20000")
    A(f"s_mov_b32 s{sN}, 7")
    A(f"s_mov_b32 s{sNl}, 7")
    A("s_waitcnt lgkmcnt(0)")
    A(f"s_add_u32 s{sA}, s{pWs}, s41")
    A(f"s_addc_u32 s{sA+1}, s{pWs+1}, 0")
    A(f"s_and_b32 s{sA+1}, s{sA+1}, 0xffff")
    A(f"s_add_u32 s{sW}, s{pWs}, {W_OFF}")
    A(f"s_addc_u32 s{sW+1}, s{pWs+1}, 0")
    A(f"s_and_b32 s{sW+1}, s{sW+1}, 0xffff")
    def loads(slot):
        it = [f"s_add_u32 m0, s{sWm}, {slot*20480}"]
        for j in range(4):
            it.append(f"buffer_load_dwordx4 v{vL16}, s[{sW}:{sW+3}], s{sWo} offen offset:{j*1024} lds ; @put W")
        it.append(f"s_add_u32 m0, s{sWm}, {slot*20480+4096}")
        it.append(f"buffer_load_dwordx4 v{vL16b}, s[{sW}:{sW+3}], s{sWo} offen lds ; @put W")
        for k in range(2):
            for rt in range(2):
                it.append(f"buffer_load_dwordx4 {ar(aA+(slot*4+k*2+rt)*4,4)}, v{vL16+k}, s[{sA}:{sA+3}], s{sAo} offen offset:{rt*1024}")
        it.append(f"s_add_u32 s{sWo}, s{sWo}, 81920\ns_add_u32 s{sAo}, s{sAo}, 8192")
        it.append(f"s_sub_u32 s{sNl}, s{sNl}, 1\ns_cmp_eq_u32 s{sNl}, 0\ns_cselect_b32 s{sWo}, s{sWs}, s{sWo}")
        it.append(f"s_cselect_b32 s{sAo}, s{sAs}, s{sAo}\ns_cselect_b32 s{sW+2}, s{sWe}, s{sW+2}\ns_cselect_b32 s{sA+2}, s{sAe}, s{sA+2}")
        return it
    def emit(items):
        for it in items:
            if "lds" in it and A.lines[-1].split()[1].startswith("m0"): A("s_nop 0")
            A(it)
    for s_ in range(3): emit(loads(s_))
    stamp(0)
    srd(A, sX, pX, pX + 1, X_SIZE)
    srd(A, sO, pO, pO + 1, X_SIZE)
    A(f"s_mul_i32 s41, s{sG}, {IB_G}")
    A(f"s_add_u32 s41, s41, {IB_OFF}")
    A(f"s_add_u32 s{sI}, s{pWs}, s41")
    A(f"s_addc_u32 s{sI+1}, s{pWs+1}, 0")
    srd(A, sI, sI, sI + 1, IB_G)
    A(f"v_and_b32 v{vT}, 15, v{vLane}")
    A(f"v_mul_u32_u24 v{vT}, 1280, v{vT}")
    A(f"v_lshrrev_b32 v{vT+1}, 4, v{vLane}")
    A(f"v_lshl_add_u32 v{vXo}, v{vT+1}, 3, v{vT}")
    A(f"s_lshl2_add_u32 s41, s{sRb}, s{sP}")
    A(f"s_lshl_b32 s41, s41, 1")
    A(f"s_add_u32 s41, s41, s3")
    A(f"s_mul_i32 s{sXo}, s41, 20480")
    A(f"s_lshl_b32 s41, s{sCb}, 1")
    A(f"s_add_u32 s41, s41, s{sT2}")
    A(f"s_mul_i32 s41, s41, 160")
    A(f"s_add_u32 s{sXo}, s{sXo}, s41")
    vX = vT + 26
    for ct in range(5):
        A(f"buffer_load_dwordx2 {vr(vX+2*ct,2)}, v{vXo}, s[{sX}:{sX+3}], s{sXo} offen offset:{ct*32}")
    vZ = vT + 40
    for i in range(4): A(f"v_mov_b32 v{vZ+i}, 0")
    A(f"s_xor_b32 s{sT0}, s{sWv}, s{sP}")
    A(f"s_mul_i32 s{sT1}, s{sWv}, 6")
    A(f"s_add_u32 s{sT1}, s{sT1}, s{sT0}")
    A(f"s_sub_u32 s{sT1}, s{sT1}, 1")
    A(f"s_mul_i32 s{sT1}, s{sT1}, 10240")
    A(f"s_cmp_eq_u32 s{sT0}, 0")
    A(f"s_cselect_b32 s{sSo}, 0x100000, s{sT1}")
    A(f"s_lshl_b32 s{sT0}, s{sG}, 9")
    A(f"s_add_u32 s{sT0}, s{sT0}, {FL_OFF}")
    A(f"s_add_u32 s44, s{pWs}, s{sT0}")
    A(f"s_addc_u32 s45, s{pWs+1}, 0")
    A(f"s_lshl_b32 s{sT0}, s{sP}, 7")
    A(f"v_mov_b32 v{vT+48}, s{sT0}")
    A(f"v_and_b32 v{vT+47}, 3, v{vLane}")
    A(f"v_lshlrev_b32 v{vT+47}, 7, v{vT+47}")
    A(f"v_lshlrev_b32 v{vT+50}, 3, v{vLane}")
    A(f"v_add_u32 v{vT+51}, {OWN}, v{vL16}")
    A(f"s_mov_b32 s{sPh}, 0")
    if TLBW:
        A("s_mov_b64 exec, 1")
        A(f"s_max_u32 s{sT0}, s{sT1}, 0")
        A(f"buffer_load_dword v0, v{vZ}, s[{sI}:{sI+3}], 0 offen")
        A(f"buffer_load_dword v0, v{vZ}, s[{sO}:{sO+3}], s{sXo} offen")
        A(f"global_load_dword v0, v{vZ}, s[44:45] sc1")
        A("s_mov_b64 exec, -1")
    def zero():
        for i in range(5): A(f"v_mfma_f32_32x32x16_bf16 {vr(64+16*i,16)}, {vr(vZ,4)}, {vr(vZ,4)}, 0")
    zero()
    def wread(slot, f, buf):
        k, ct = f // 10, f % 10
        return f"ds_read_b128 {ar(aW+buf*4,4)}, v{vWr+slot//2} offset:{(slot%2)*20480+k*10240+ct*1024}"
    A(f"s_waitcnt vmcnt({18+5+(3 if TLBW else 0)})")
    A("s_barrier ; @need W 10")
    stamp(1)
    for f in range(3): A(wread(0, f, f))
    def stage(slot, ac, lq, nvm=18):
        ns = (slot + 1) % 4
        slots = spread(loads((slot + 3) % 4), 17)
        for f in range(20):
            k, ct = f // 10, f % 10
            lq.wait(A, [f])
            for r in range(2):
                rt = r if f % 2 == 0 else 1 - r
                mf16(A, vr(ac + (rt * 10 + ct) * 4, 4), ar(aW + (f % 4) * 4, 4), ar(aA + (slot * 4 + k * 2 + rt) * 4, 4))
                if r == 0 and f + 3 < 20:
                    A(wread(slot, f + 3, (f + 3) % 4)); lq.issue(f + 3)
                if f == 18:
                    A(wread(ns, r, r)); lq.issue(r)
                if f == 19 and r == 0:
                    A(wread(ns, 2, 2)); lq.issue(2)
                if r == 1 and f < 17: emit(slots[f])
            if f == 17:
                A(f"s_waitcnt vmcnt({nvm}) lgkmcnt(0)")
                lq.clear()
                A("s_barrier ; @need W 10")
    ac = 64
    def send(kind):
        A(f"s_add_u32 s{sT0}, s{sSo}, {kind*30720}")
        A(f"s_cmp_lg_u32 s{sWv}, s{sP}")
        A(f"s_cbranch_scc1 {L}no{kind}")
        A("s_nop 3")
        for i in range(20): A(f"ds_write_b128 v{vT+51}, {vr(ac+4*i,4)} offset:{kind*20480+i*1024}")
        A("s_waitcnt lgkmcnt(0)")
        A(f"{L}no{kind}:")
        for c in range(4):
            b = vT + (c % 2) * 12
            for i in range(10): A(f"v_cvt_pk_bf16_f32 v{b+i}, v{ac+c*20+2*i}, v{ac+c*20+2*i+1}")
            if c: A(f"s_add_u32 s{sT0}, s{sT0}, 2560")
            A(f"buffer_store_dwordx4 {vr(b,4)}, v{vL16}, s[{sI}:{sI+3}], s{sT0} offen sc1 ; @put I")
            A(f"buffer_store_dwordx4 {vr(b+4,4)}, v{vL16}, s[{sI}:{sI+3}], s{sT0} offen offset:1024 sc1 ; @put I")
            A(f"buffer_store_dwordx2 {vr(b+8,2)}, v{vT+50}, s[{sI}:{sI+3}], s{sT0} offen offset:2048 sc1 ; @put I")
    def setflag(val, lab):
        A(f"s_cmp_lg_u32 s{sWv}, 0 ; @need I 0")
        A(f"s_cbranch_scc1 {lab}")
        A(f"v_mov_b32 v{vT+49}, {val}")
        A("s_mov_b64 exec, 1")
        A(f"global_store_dword v{vT+48}, v{vT+49}, s[44:45] sc1")
        A("s_mov_b64 exec, -1")
    lq = LQ()
    for f in range(3): lq.issue(f)
    A(".p2align 6")
    A(f"{L}l:")
    for slot in range(4):
        A(f"{L}ls{slot}:")
        stage(slot, ac, lq)
        if slot == 1:
            A(f"s_cmp_eq_u32 s{sN}, 14")
            A(f"s_cbranch_scc1 {L}f1")
            A(f"{L}f1r:")
        A(f"s_sub_u32 s{sN}, s{sN}, 1")
        if slot == 2:
            A(f"s_cmp_eq_u32 s{sN}, 0")
            A(f"s_cbranch_scc1 {L}x")
    A(f"s_branch {L}l")
    A(f"{L}f1:")
    setflag(1, f"{L}f1r")
    A(f"s_branch {L}f1r")
    A(f"{L}x:")
    A(f"s_cmp_lg_u32 s{sPh}, 0")
    A(f"s_cbranch_scc1 {L}x1")
    stamp(6)
    send(1)
    zero()
    A(f"s_mov_b32 s{sPh}, 1")
    A(f"s_mov_b32 s{sN}, 14")
    A("s_nop 7")
    stage(3, ac, lq, 30)
    stage(0, ac, lq, 30)
    A(f"s_branch {L}ls1")
    A(f"{L}x1:")
    stamp(2)
    send(0)
    A(f"global_load_dword v{vT+46}, v{vT+47}, s[44:45] sc1")
    S, U, IN = 64, 84, 104
    A(f"s_mul_i32 s{sT0}, s{sWv}, 5120")
    A(f"v_add_u32 v{vT+51}, s{sT0}, v{vT+51}")
    A(f"s_mul_i32 s{sT0}, s{sP}, 61440")
    A(f"s_mul_i32 s{sT1}, s{sWv}, 2560")
    A(f"s_add_u32 s46, s{sT0}, s{sT1}")
    for sl in range(1, 6): A(f"s_add_u32 s{46+sl}, s46, {sl*10240}")
    A("s_waitcnt vmcnt(0) lgkmcnt(0)")
    A("s_barrier")
    stamp(3)
    setflag(2, f"{L}nf")
    A(f"{L}nf:")
    for i in range(5): A(f"ds_read_b128 {vr(U+4*i,4)}, v{vT+51} offset:{20480+i*1024}")
    for i in range(5): A(f"ds_read_b128 {vr(S+4*i,4)}, v{vT+51} offset:{i*1024}")
    def inload(sl):
        b = IN + sl * 10
        A(f"buffer_load_dwordx4 {vr(b,4)}, v{vL16}, s[{sI}:{sI+3}], s{46+sl} offen sc1")
        A(f"buffer_load_dwordx4 {vr(b+4,4)}, v{vL16}, s[{sI}:{sI+3}], s{46+sl} offen offset:1024 sc1")
        A(f"buffer_load_dwordx2 {vr(b+8,2)}, v{vT+50}, s[{sI}:{sI+3}], s{46+sl} offen offset:2048 sc1")
    def poll(val, n, first):
        A(f"s_mov_b32 s{sT1}, 0")
        if first: A(f"s_branch {L}pc{n}")
        A(f"{L}poll{n}:")
        A(f"global_load_dword v{vT+46}, v{vT+47}, s[44:45] sc1")
        A("s_waitcnt vmcnt(0)")
        A(f"{L}pc{n}:")
        A(f"v_cmp_gt_u32 vcc, {val}, v{vT+46}")
        A("s_nop 3")
        A(f"s_cbranch_vccz {L}rdy{n} ; pollbr")
        A(f"s_add_u32 s{sT1}, s{sT1}, 1")
        A(f"s_cmp_lt_u32 s{sT1}, 0x40000")
        A(f"s_cbranch_scc1 {L}poll{n}")
        A(f"{L}rdy{n}:")
    poll(1, 1, True)
    for sl in (3, 4, 5): inload(sl)
    A(f"global_load_dword v{vT+46}, v{vT+47}, s[44:45] sc1")
    T = vT
    for i in range(10):
        A(f"v_lshlrev_b32 v{170+2*i}, 16, v{vX+i}")
        A(f"v_and_b32 v{170+2*i+1}, 0xffff0000, v{vX+i}")
    def addin(sl, dst):
        b = IN + sl * 10
        for i in range(10):
            A(f"v_lshlrev_b32 v{T+2*i}, 16, v{b+i}")
            A(f"v_and_b32 v{T+2*i+1}, 0xffff0000, v{b+i}")
        for i in range(10): A(f"v_pk_add_f32 {vr(dst+2*i,2)}, {vr(dst+2*i,2)}, {vr(T+2*i,2)}")
    A(f"s_mov_b32 s{sT0}, {hex(f2u(-LOG2E))}")
    A("s_waitcnt vmcnt(7) lgkmcnt(0)"); addin(3, U)
    A("s_waitcnt vmcnt(4)"); addin(4, U)
    A("s_waitcnt vmcnt(1)"); addin(5, U)
    A("s_waitcnt vmcnt(0)")
    poll(2, 2, True)
    stamp(4)
    for sl in (0, 1, 2): inload(sl)
    E = 200
    for i in range(20): A(f"v_mul_f32 v{E+i}, s{sT0}, v{U+i}")
    for i in range(20): A(f"v_exp_f32 v{E+i}, v{E+i}")
    for i in range(20): A(f"v_add_f32 v{E+i}, 1.0, v{E+i}")
    for i in range(20): A(f"v_rcp_f32 v{E+i}, v{E+i}")
    A("s_waitcnt vmcnt(6)"); addin(0, S)
    for i in range(10): A(f"v_pk_mul_f32 {vr(U+2*i,2)}, {vr(U+2*i,2)}, {vr(E+2*i,2)}")
    A("s_waitcnt vmcnt(3)"); addin(1, S)
    A("s_waitcnt vmcnt(0)"); addin(2, S)
    for i in range(10): A(f"v_pk_fma_f32 {vr(170+2*i,2)}, {vr(S+2*i,2)}, {vr(U+2*i,2)}, {vr(170+2*i,2)}")
    for i in range(10): A(f"v_cvt_pk_bf16_f32 v{vX+i}, v{170+2*i}, v{170+2*i+1}")
    for ct in range(5):
        A(f"buffer_store_dwordx2 {vr(vX+2*ct,2)}, v{vXo}, s[{sO}:{sO+3}], s{sXo} offen offset:{ct*32}")
    stamp(5)
    A(f"{L}end:")
    A("s_endpgm")
    kd(A, name, 256 + 80, 256)

def checks(A, entry):
    nb = check_hazards(A.lines)
    tot = 0
    for wg in (0, 1, 2, 3, 255):
        for w in range(4):
            def hk(x, S):
                if x.opn == "v_readfirstlane_b32": S[28] = w
                if "pollbr" in x.text: return 1
            p, c = check_waits(A.lines, entry, {2: wg}, hk)
            tot += p
    print("p2s hazards:", nb, "waits:", tot, c)
```

```python
from asmlib import *
from common import *

P1_LDS = 163840
R0, R1, R2, R3, R4 = 0, 32768, 65536, 98304, 131072
CS = R4
TAILBIT = 0x30000
ROT = False
TLBW = True
FLAG = 'byte'
FINE = False
EVMASK = 0x180
vFin = 60
XP = set()

class LQ:
    def __init__(s): s.q = []
    def issue(s, tag): s.q.append(tag)
    def wait(s, A, tags):
        idx = max([i for i, t in enumerate(s.q) if t in tags], default=-1)
        if idx < 0: return
        n = len(s.q) - 1 - idx
        assert n <= 15
        A(f"s_waitcnt lgkmcnt({n})")
        s.q = s.q[idx + 1:]
    def clear(s): s.q = []

sX, sWq, sW1, sW3, sK, sV, sA, sWp, sSrc, sSt = 8, 12, 16, 20, 24, 28, 32, 36, 40, 44
sWave, sHead, sRb, sFb, sHasF = 48, 49, 50, 51, 52
sXo, sWqo, sW13o, sM0X, sM0W, sD, sTail, sSlot = 53, 54, 55, 56, 57, 58, 59, 60
sT0, sT1, sT2 = 61, 62, 63
pX, pK, pV, pWq, pWo, pBx, pW1, pW3, pW2, pOut, pDbg, pWs = range(64, 88, 2)
sKVo, sKVm, sDelta, sT, sU, sMask, sXb, sC0 = 88, 89, 90, 91, 92, 93, 94, 95
sX2, sM0d, sXst, sM0t, sProd, sPo = 76, 74, 75, 3, 4, 5
sE0 = 96
vLane = 1
vXd, vWqd, vW13d, vXr, vWqr, vW13r = 2, 10, 12, 13, 15, 23
vZero = 27
vSt = 28
vTm = 44
vQ = 64
vAcc = 128
aG, aUp, aCs, aXf, aWf, aOne, aWp = 0, 64, 128, 144, 176, 192, 196
vKr, vVr, vKd, vVd, vL, vOo = 2, 10, 14, 18, 22, 24
vS, vP, vF = 128, 192, 208
aO = 128
sNo = 100
pFl = 84
qA, qW, qX, qO, qI = 8, 12, 16, 20, 44
qP, qG, qAo, qWo, qWm, qN, qAs, qWs = 53, 54, 55, 56, 57, 58, 59, 60
qAe, qWe, qNl, qSo, qXo, qRb, qCb, qT0, qT1, qIn = 74, 75, 3, 93, 94, 76, 77, 78, 79, 24
vFo, vFv, vPa, vPb, vAa, vAb, vAo, vAp = 25, 28, 30, 32, 34, 35, 36, 37
vL16, vWr2, vXo2, vL8, vOwn = 54, 2, 4, 5, 6
aA2, aW2, aWq = 0, 64, 64
RING2 = 81920
vOnes = 40


def mf16(A, d, a, b, c=None):
    A(f"v_mfma_f32_16x16x32_bf16 {d}, {a}, {b}, {d if c is None else c}")
def mf32(A, d, a, b, c=None):
    A(f"v_mfma_f32_32x32x16_bf16 {d}, {a}, {b}, {d if c is None else c}")

def spread(items, nslots):
    out = [[] for _ in range(nslots)]
    n = len(items)
    for i, it in enumerate(items):
        out[min(nslots - 1, (i * nslots) // n)].append(it)
    return out

def frag_list(ffn):
    fr = [("Q", p) for p in range(8)]
    if ffn:
        for p in range(4): fr += [("G", p), ("U", p)]
    return fr

def wread(fr, k, sec, buf):
    c, p = fr
    if c == "Q": ad, off = vWqr + p, sec * 1024
    else: ad, off = vW13r + p, (2048 if c == "G" else 3072) + sec * 512
    return f"ds_read_b64_tr_b16 {ar(aWf+buf*4+2*sec,2)}, v{ad} offset:{off + k*16384}"

def xread(s, st, rt):
    return f"ds_read_b128 {ar(aXf+st*16+rt*4,4)}, v{vXr+s} offset:{rt*2048}"

def dma_w(ffn, force=False):
    it = [f"s_max_u32 m0, s{sM0W}, s{sTail}",
          f"buffer_load_dwordx4 v{vWqd}, s[{sWq}:{sWq+3}], s{sWqo} offen lds ; @put W",
          f"buffer_load_dwordx4 v{vWqd+1}, s[{sWq}:{sWq+3}], s{sWqo} offen offset:1024 lds ; @put W"]
    if ffn or force:
        it += [f"buffer_load_dwordx4 v{vW13d}, s[{sW1}:{sW1+3}], s{sW13o} offen offset:2048 lds ; @put W",
               f"buffer_load_dwordx4 v{vW13d}, s[{sW3}:{sW3+3}], s{sW13o} offen offset:3072 lds ; @put W"]
    it += [f"s_add_u32 s{sWqo}, s{sWqo}, {32*8192}"]
    if ffn or force: it += [f"s_add_u32 s{sW13o}, s{sW13o}, {32*3456}"]
    it += [f"s_add_u32 s{sSlot}, s{sSlot}, 16384\ns_and_b32 s{sSlot}, s{sSlot}, 0xffff",
           f"s_add_u32 s{sM0W}, s{sSlot}, s{sC0}"]
    return it

def dma_x(half):
    if half == 0: it = [f"s_mov_b32 m0, s{sM0X}"]
    else: it = [f"s_add_u32 m0, s{sM0X}, s{sM0d}"]
    sd = sX if half == 0 else sX2
    for j in range(4):
        it.append(f"buffer_load_dwordx4 v{vXd+4*half+j}, s[{sd}:{sd+3}], s{sXo} offen offset:{j*1024} lds")
    if half: it += [f"s_add_u32 s{sXo}, s{sXo}, s{sXst}\ns_xor_b32 s{sM0X}, s{sM0X}, s{sM0t}"]
    return it

def fine(A):
    A("s_memtime s[98:99]"); A("s_waitcnt lgkmcnt(0)")
    A("s_mov_b32 m0, s7")
    A(f"v_writelane_b32 v{vFin}, s96, m0")
    A(f"v_writelane_b32 v{vFin+1}, s100, m0")
    A(f"v_writelane_b32 v{vFin-1}, s98, m0")
    A("s_add_u32 s7, s7, 1")

def gemm_loop(A, ffn, L):
    fr = frag_list(ffn); nf = len(fr)
    nw = 4 if ffn else 2
    ones = {("Q", 0): 0, ("Q", 1): 1, ("G", 0): 2, ("U", 0): 3}
    lq = LQ()
    for f in range(3):
        lq.issue(("w", f)); lq.issue(("w", f))
    A(".p2align 6")
    A(f"{L}:")
    for k in range(2):
        if k == 1:
            A(f"s_bitcmp1_b32 s{sMask}, s{sD}")
            A(f"s_cbranch_scc1 {L}_ev")
            A(f"{L}_evret:")
        if k == 0:
            items = [("x", rt) for rt in range(4)] + dma_x(1) + dma_w(ffn)
            slots = spread(items, 2 * (nf - 2))
            tog = {2: [f"v_xor_b32 v{vXr}, 0x18000, v{vXr}"]}
        else:
            items = dma_x(0) + dma_w(ffn) + [f"s_add_u32 s{sD}, s{sD}, 1"]
            slots = spread(items, 2 * (nf - 5))
            slots += [[f"s_cmp_eq_u32 s{sD}, 10\ns_cbranch_scc1 {L}_nw\ns_waitcnt vmcnt({2*nw+4})\n{L}_nw:"],
                      [("x", 0)], [("x", 1)], [("x", 2)], [("x", 3)], []]
            tog = {0: [f"v_xor_b32 v{vXr+1}, 0x18000, v{vXr+1}"]}
            for f, (c, p) in enumerate(fr):
                if c == "G": continue
                reg = vWqr + p if c == "Q" else vW13r + p
                tog.setdefault(max(f - 3, -1) + 1, []).append(f"v_xor_b32 v{reg}, 0x38000, v{reg}")
        for f in range(nf):
            c, p = fr[f]
            lq.wait(A, [("w", f)] + ([("x", k)] if f == 0 else []))
            buf = f % 4
            for rt in range(4):
                r_ = rt if f % 2 == 0 else 3 - rt
                if c == "Q": d = vr(vAcc + (p * 4 + r_) * 4, 4)
                else: d = ar((aG if c == "G" else aUp) + (p * 4 + r_) * 4, 4)
                mf16(A, d, ar(aWf + buf * 4, 4), ar(aXf + k * 16 + r_ * 4, 4))
                if f + 3 < nf and rt < 2:
                    A(wread(fr[f + 3], k, rt, (f + 3) % 4)); lq.issue(("w", f + 3))
                if f == nf - 2:
                    A(wread(fr[rt // 2], 1 - k, rt % 2, (rt // 2) % 4)); lq.issue(("w", rt // 2))
                if f == nf - 1 and rt < 2:
                    A(wread(fr[2], 1 - k, rt, 2)); lq.issue(("w", 2))
                if rt >= 2 and f < nf - 2:
                    for it in slots[2 * f + rt - 2]:
                        if isinstance(it, tuple):
                            A(xread(1 - k, 1 - k, it[1]) + (" ; @chkx" if k == 1 else "")); lq.issue(("x", 1 - k))
                        else:
                            if "lds" in it and A.lines[-1].split()[1].startswith("m0"): A("s_nop 0")
                            A(it)
                if rt == 3:
                    for t in tog.get(f, []): A(t)
            if fr[f] in ones:
                mf16(A, ar(aCs + ones[fr[f]] * 4, 4), ar(aWf + buf * 4, 4), ar(aOne, 4))
            if f == nf - 3:
                n = 2 * nw + 8
                if FINE:
                    A("s_memtime s[96:97]"); A("s_waitcnt lgkmcnt(0)")
                A(f"s_waitcnt vmcnt({n}) lgkmcnt(0)")
                lq.clear()
                if FINE:
                    A("s_memtime s[100:101]"); A("s_waitcnt lgkmcnt(0)")
                A(f"s_barrier")
                if FINE: fine(A)
    A(f"s_cmp_lt_u32 s{sD}, 10")
    A(f"s_cbranch_scc1 {L}")
    assert lq.q == [("w", 0), ("w", 0), ("w", 1), ("w", 1), ("w", 2), ("w", 2)], lq.q

def kv_dma_voff(A, kd_, vd_):
    t = vTm
    A(f"v_lshrrev_b32 v{t+12}, 4, v{vLane}")
    A(f"v_and_b32 v{t+14}, 15, v{vLane}")
    A(f"v_xor_b32 v{t+13}, v{t+14}, v{t+12}")
    A(f"v_lshlrev_b32 v{t+13}, 4, v{t+13}")
    A(f"v_lshl_add_u32 v{kd_}, v{t+12}, 8, v{t+13}")
    for j in range(1, 4): A(f"v_xor_b32 v{kd_+j}, {64*j}, v{kd_}")
    A(f"v_lshlrev_b32 v{t+13}, 2, v{t+12}")
    A(f"v_xor_b32 v{t+13}, v{t+13}, v{t+14}")
    A(f"v_lshlrev_b32 v{t+13}, 4, v{t+13}")
    A(f"v_lshl_add_u32 v{vd_}, v{t+12}, 8, v{t+13}")
    for j in range(1, 4): A(f"v_mov_b32 v{vd_+j}, v{vd_}")

def gemm_events(A, L):
    A(f"{L}_ev:")
    A(f"s_cmp_eq_u32 s{sD}, 8")
    A(f"s_cbranch_scc1 {L}_ev8")
    A(f"global_load_dword v{vTm}, v{vTm+2}, s[{pDbg}:{pDbg+1}] sc1")
    A(f"global_load_dwordx2 {vr(vTm+4,2)}, v{vTm+6}, s[{pDbg}:{pDbg+1}] offset:128 sc1")
    A(f"s_branch {L}_evret")
    A(f"{L}_ev8:")
    A(f"s_mov_b32 s{sTail}, {TAILBIT}")
    for d in (sWq, sW1, sW3): A(f"s_mov_b32 s{d+2}, 0")
    srd(A, sX, pK, pK + 1, 16777216)
    srd(A, sX2, pV, pV + 1, 16777216)
    kv_dma_voff(A, vXd, vXd + 4)
    A(f"s_lshl_b32 s{sM0X}, s{sWave}, 12")
    A(f"s_lshl_b32 s{sXo}, s{sHead}, 19")
    A(f"s_add_u32 s{sXo}, s{sXo}, s{sM0X}")
    A(f"s_add_u32 s{sXo}, s{sXo}, {1536*256}")
    A(f"s_movk_i32 s{sM0d}, 16384")
    A(f"s_movk_i32 s{sXst}, 16384")
    A(f"s_mov_b32 s{sM0t}, 0x8000")
    A(f"s_mov_b32 s{sT1}, 0")
    A(f"s_waitcnt vmcnt(12)")
    A(f"{L}_chk:")
    A(f"v_cmp_ne_u32 vcc, 0x01010101, v{vTm}")
    A(f"v_cmp_eq_u32 s[6:7], 0, v{vTm+5}")
    A("s_nop 3")
    A(f"s_or_b64 s[6:7], s[6:7], vcc")
    A(f"s_cbranch_scc0 {L}_rdy ; pollbr")
    A(f"s_add_u32 s{sT1}, s{sT1}, 1")
    A(f"s_cmp_ge_u32 s{sT1}, 0x40000")
    A(f"s_cbranch_scc1 {L}_rdy")
    A("s_sleep 2")
    A(f"global_load_dword v{vTm}, v{vTm+2}, s[{pDbg}:{pDbg+1}] sc1")
    A(f"global_load_dwordx2 {vr(vTm+4,2)}, v{vTm+6}, s[{pDbg}:{pDbg+1}] offset:128 sc1")
    A("s_waitcnt vmcnt(0)")
    A(f"s_branch {L}_chk")
    A(f"{L}_rdy:")
    A(f"v_readfirstlane_b32 s{sNo}, v{vTm+4} ; tag")
    A(f"v_readfirstlane_b32 s{sNo+1}, v{vTm+5} ; tag")
    A(f"s_add_u32 s{pFl}, s{pWs}, {FL_OFF}")
    A(f"s_addc_u32 s{pFl+1}, s{pWs+1}, 0")
    A(f"s_lshl2_add_u32 s{sT0}, s{sRb}, s{sWave}")
    A(f"s_lshl_b32 s{sT0}, s{sT0}, 10")
    for rt in range(4):
        A(f"buffer_load_dwordx4 {vr(vSt+4*rt,4)}, v{vTm+3}, s[{sSt}:{sSt+3}], s{sT0} offen offset:{rt*256} sc1")
    A(f"s_branch {L}_evret")

def kv_addr(A, base_expr_sgpr):
    t0, t1, t2, t3 = vTm + 12, vTm + 13, vTm + 14, vTm + 15
    A(f"v_and_b32 v{t0}, 31, v{vLane}")
    A(f"v_lshrrev_b32 v{t1}, 5, v{vLane}")
    A(f"v_and_b32 v{t2}, 15, v{vLane}")
    A(f"v_xor_b32 v{t2}, v{t2}, v{t1}")
    A(f"s_lshl_b32 s{sT0}, s{sWave}, 2")
    A(f"v_xor_b32 v{t2}, s{sT0}, v{t2}")
    A(f"v_lshlrev_b32 v{t2}, 4, v{t2}")
    A(f"v_lshl_add_u32 v{t2}, v{t0}, 8, v{t2}")
    A(f"v_add_u32 v{vKr}, s{base_expr_sgpr}, v{t2}")
    for p in range(1, 8): A(f"v_xor_b32 v{vKr+p}, {32*p}, v{vKr}")
    A(f"v_bfe_u32 v{t0}, v{vLane}, 2, 2")
    A(f"v_lshl_add_u32 v{t2}, v{t1}, 2, v{t0}")
    A(f"v_lshlrev_b32 v{t2}, 8, v{t2}")
    A(f"v_lshl_add_u32 v{t2}, v{t0}, 6, v{t2}")
    A(f"v_bfe_u32 v{t3}, v{vLane}, 1, 1")
    A(f"v_lshl_add_u32 v{t2}, v{t3}, 5, v{t2}")
    A(f"v_bfe_u32 v{t3}, v{vLane}, 4, 1")
    A(f"v_lshl_add_u32 v{t2}, v{t3}, 4, v{t2}")
    A(f"v_and_b32 v{t3}, 1, v{vLane}")
    A(f"v_lshl_add_u32 v{t2}, v{t3}, 3, v{t2}")
    A(f"s_add_u32 s{sT0}, s{base_expr_sgpr}, 16384")
    A(f"v_add_u32 v{vVr}, s{sT0}, v{t2}")
    for dt in range(1, 4): A(f"v_xor_b32 v{vVr+dt}, {64*dt}, v{vVr}")

def kv_dma():
    it = [f"s_mov_b32 m0, s{sKVm}"]
    for j in range(4):
        it.append(f"buffer_load_dwordx4 v{vKd+j}, s[{sK}:{sK+3}], s{sKVo} offen offset:{j*1024} lds")
    it.append("s_add_u32 m0, m0, 16384")
    for j in range(4):
        it.append(f"buffer_load_dwordx4 v{vVd+j}, s[{sV}:{sV+3}], s{sKVo} offen offset:{j*1024} lds")
    return it

def kread(p, tile, buf):
    return f"ds_read_b128 {vr(vF+buf*4,4)}, v{vKr+p} offset:{tile*8192}"
def vread(ks, dt, tile, sec, buf):
    return f"ds_read_b64_tr_b16 {vr(vF+buf*4+2*sec,2)}, v{vVr+dt} offset:{(32*tile+16*ks+8*sec)*256}"

def sm_reg(buf, e):
    qt = (e >> 3) & 1; ks = e >> 4
    return vS + (buf * 2 + qt) * 16 + ks * 8 + (e & 7), qt, ks
def sm_exp(buf, e):
    r, _, _ = sm_reg(buf, e)
    if "noexp" in XP: return []
    if "movexp" in XP: return [f"v_mov_b32 v{r}, v{r}"]
    return [f"v_exp_f32 v{r}, v{r}"]
def sm_post(buf, e):
    r, qt, ks = sm_reg(buf, e)
    o = [f"v_add_f32 v{vL+qt}, v{vL+qt}, v{r}"]
    if "noadd" in XP: o = []
    if e & 1 and "nocvt" not in XP: o.append(f"v_cvt_pk_bf16_f32 v{vP+(qt*2+ks)*4+((e&7)>>1)}, v{r-1}, v{r}")
    return o

def attn_seg(A, lq, seg, extra, mfma=True, sm_lo=0, sm_hi=64, look=True):
    def rd(phi, part):
        s = (phi // 8) % 4; i = phi % 8; buf = phi % 4
        if s in (0, 2):
            return kread(i, 1 if s == 0 else 0, buf) if part == 0 else None
        return vread(i // 4, i % 4, 0 if s == 1 else 1, part, buf)
    for i in range(8):
        phi = seg * 8 + i
        if mfma and "nowait" not in XP: lq.wait(A, [("f", phi)])
        for qt in range(2):
            slot = seg * 16 + 2 * i + qt
            if mfma:
                if seg in (0, 2):
                    sb = 1 if seg == 0 else 0
                    d = vr(vS + (sb * 2 + qt) * 16, 16)
                    mf32(A, d, vr(vF + (phi % 4) * 4, 4), vr(vQ + (qt * 8 + i) * 4, 4), "0" if i == 0 else None)
                else:
                    ks, dt = i // 4, i % 4
                    mf32(A, ar(aO + (qt * 4 + dt) * 16, 16), vr(vF + (phi % 4) * 4, 4), vr(vP + (qt * 2 + ks) * 4, 4))
            for it in extra.get((slot, "pre"), []): A(it)
            nphi = (phi + 3) % 32
            nseg = nphi // 8
            if look is True or nseg in look:
                r = rd(nphi, qt)
                if r and "noread" not in XP: A(r); lq.issue(("f", nphi))
            for it in extra.get(slot, []):
                if it.startswith("v_"): continue
                if "lds" in it and A.lines[-1].split()[1].startswith("m0"): A("s_nop 0")
                A(it)
            for (buf, start) in ((1, 22), (0, 54)):
                e = (slot - start) % 64
                if e < 32 and (buf, "exp") in sm_ok(slot, sm_lo, sm_hi, buf, e):
                    for x in sm_exp(buf, e): A(x)
            for (buf, start) in ((1, 22), (0, 54)):
                e = (slot - start - 1) % 64
                if e < 32 and (buf, "exp") in sm_ok((slot - 1) % 64, sm_lo, sm_hi, buf, e):
                    for x in sm_post(buf, e): A(x)
            for it in extra.get(slot, []):
                if it.startswith("v_"): A(it)
def sm_ok(slot, lo, hi, buf, e):
    return {(buf, "exp")} if (lo <= slot < hi) else set()

def wp_src_voff(A, d):
    t = vTm
    A(f"v_lshrrev_b32 v{t+12}, 4, v{vLane}")
    A(f"v_lshlrev_b32 v{t+12}, 1, v{t+12}")
    A(f"v_and_b32 v{t+13}, 7, v{vLane}")
    A(f"v_xor_b32 v{t+12}, v{t+12}, v{t+13}")
    A(f"v_lshlrev_b32 v{t+12}, 4, v{t+12}")
    A(f"v_lshrrev_b32 v{t+13}, 3, v{vLane}")
    A(f"v_mul_u32_u24 v{t+13}, 1280, v{t+13}")
    A(f"v_add_u32 v{d}, v{t+12}, v{t+13}")
    for j in range(1, 8): A(f"v_add_u32 v{d+j}, {(j%4)*9216 + (j//4)*128}, v{d}")

def wp_addr(A, sh, note=""):
    t = vTm
    A(f"v_bfe_u32 v{t+14}, v{vLane}, 2, 2")
    A(f"v_bfe_u32 v{t+16}, v{vLane}, 4, 1")
    A(f"v_lshl_add_u32 v{t+14}, v{t+16}, 2, v{t+14}")
    A(f"v_lshrrev_b32 v{t+13}, 1, v{t+14}")
    A(f"v_lshlrev_b32 v{t+13}, 5, v{t+13}")
    A(f"v_lshl_add_u32 v{t+13}, v{t+14}, 7, v{t+13}")
    A(f"v_lshrrev_b32 v{t+15}, 5, v{vLane}")
    A(f"v_lshl_add_u32 v{t+13}, v{t+15}, 10, v{t+13}")
    A(f"v_and_b32 v{t+15}, 3, v{vLane}")
    A(f"v_lshl_add_u32 v{t+13}, v{t+15}, 3, v{t+13}")
    A(f"s_lshl_b32 s6, s{sWave}, {sh}")
    A(f"s_add_u32 s6, s6, {R3}")
    A(f"v_add_u32 v{t+4}, s6, v{t+13}{note}")
    for i4 in range(1, 4): A(f"v_xor_b32 v{t+4+i4}, {32*i4}, v{t+4}")
def wp_reads(A, stride):
    for su in range(2):
        for i4 in range(4):
            for sec in range(2):
                A(f"ds_read_b64_tr_b16 {ar(aWq+(su*4+i4)*4+2*sec,2)}, v{vTm+4+i4} offset:{su*stride+sec*2048}")
def wp_stores(A, so):
    for su in range(2):
        for i4 in range(4):
            A(f"buffer_store_dwordx4 {ar(aWq+(su*4+i4)*4,4)}, v{vL16}, s[{sWp}:{sWp+3}], s{so} offen offset:{i4*1024} sc1 ; @put H")
        if su == 0: A(f"s_add_u32 s{so}, s{so}, 4096")

def set_flag(A, phase, lab):
    A(f"s_cmp_lg_u32 s{sWave}, 0 ; @need H 0")
    A(f"s_cbranch_scc1 {lab}")
    A(f"s_add_u32 s6, s{sNo}, {phase}")
    A(f"v_mov_b32 v{vFv}, s6")
    A(f"v_mov_b32 v{vFv+1}, s{sNo+1}")
    A("s_mov_b64 exec, 1")
    A(f"global_store_dwordx2 v{vFo}, {vr(vFv,2)}, s[{pFl}:{pFl+1}] sc1")
    A("s_mov_b64 exec, -1")
def flag_load(A, dst, ad):
    A(f"global_load_dwordx2 {vr(dst,2)}, v{ad}, s[{pFl}:{pFl+1}] sc1")
def flag_wait(A, lab, phase, polls):
    A(f"s_add_u32 s{sT0}, s{sNo}, {phase}")
    A(f"s_mov_b32 s{sT1}, 0")
    A(f"{lab}c:")
    for n, (d, ad) in enumerate(polls):
        A(f"v_subrev_u32 v{d}, s{sT0}, v{d}")
        A(f"v_cmp_ne_u32 s[{sE0+2*n}:{sE0+2*n+1}], s{sNo+1}, v{d+1}")
    for n, (d, ad) in enumerate(polls):
        A(f"v_cmp_lt_u32 " + ("vcc" if n == 0 else "s[6:7]") + f", {3-phase}, v{d}")
    A("s_nop 3")
    A(f"s_or_b64 s[{sE0}:{sE0+1}], s[{sE0}:{sE0+1}], vcc")
    if len(polls) > 1:
        A(f"s_or_b64 s[6:7], s[6:7], s[{sE0+2}:{sE0+3}]")
        A(f"s_or_b64 s[{sE0}:{sE0+1}], s[{sE0}:{sE0+1}], s[6:7]")
    A(f"s_cbranch_scc0 {lab}r ; pollbr")
    A(f"s_add_u32 s{sT1}, s{sT1}, 1")
    A(f"s_cmp_ge_u32 s{sT1}, 0x40000")
    A(f"s_cbranch_scc1 {lab}r")
    for d, ad in polls: flag_load(A, d, ad)
    A("s_waitcnt vmcnt(0)")
    A(f"s_branch {lab}c")
    A(f"{lab}r:")

def q_setup():
    w = sWave
    return [
     f"s_mul_i32 s{qT0}, s{qP}, 14\ns_add_u32 s{qT0}, s{qT0}, 128\ns_lshl_b32 s{qT1}, s{qP}, 5",
     f"s_and_b32 s{sT2}, s{w}, 1\ns_lshl_b32 s6, s{sT2}, 11\ns_lshl_b32 s{qAo}, s{qT0}, 12",
     f"s_add_u32 s{qAo}, s{qAo}, s6\ns_lshl_b32 s{qAs}, s{qT1}, 12\ns_add_u32 s{qAs}, s{qAs}, s6",
     f"s_lshr_b32 s7, s{w}, 1\ns_lshl_b32 s6, s{qCb}, 1\ns_add_u32 s6, s6, s7",
     f"s_mul_i32 s6, s6, 5120\ns_add_u32 s{qWo}, s{qT0}, s{sT2}\ns_mul_i32 s{qWo}, s{qWo}, 40960",
     f"s_add_u32 s{qWo}, s{qWo}, s6\ns_add_u32 s{qWs}, s{qT1}, s{sT2}\ns_mul_i32 s{qWs}, s{qWs}, 40960",
     f"s_add_u32 s{qWs}, s{qWs}, s6\ns_add_u32 s{qT1}, s{qT1}, 32\ns_lshl_b32 s{qAe}, s{qT1}, 12",
     f"s_mul_i32 s{qWe}, s{qT1}, 40960\ns_mul_i32 s{qWm}, s{sT2}, 10240\ns_mul_i32 s6, s7, 5120",
     f"s_add_u32 s{qWm}, s{qWm}, s6\ns_lshl_b32 s6, s{qRb}, 1\ns_add_u32 s6, s6, s7",
     f"s_mul_i32 s6, s6, {A_BLK}\ns_add_u32 s{qA}, s{pWs}, s6\ns_addc_u32 s{qA+1}, s{pWs+1}, 0",
     f"s_and_b32 s{qA+1}, s{qA+1}, 0xffff\ns_mov_b32 s{qA+2}, {A_BLK}\ns_mov_b32 s{qA+3}, 0x20000",
     f"s_mov_b32 s{qW}, s{sWp}\ns_mov_b32 s{qW+1}, s{sWp+1}\ns_mov_b32 s{qW+2}, {W_SIZE}\ns_mov_b32 s{qW+3}, 0x20000",
     f"s_lshl2_add_u32 s6, s{qRb}, s{qP}\ns_lshl_b32 s6, s6, 1\ns_add_u32 s6, s6, s7\ns_mul_i32 s{qXo}, s6, 20480",
     f"s_lshl_b32 s6, s{qCb}, 1\ns_add_u32 s6, s6, s{sT2}\ns_mul_i32 s6, s6, 160\ns_add_u32 s{qXo}, s{qXo}, s6",
     f"s_xor_b32 s{qT0}, s{w}, s{qP}\ns_mul_i32 s{qT1}, s{w}, 6\ns_add_u32 s{qT1}, s{qT1}, s{qT0}\ns_sub_u32 s{qT1}, s{qT1}, 1",
     f"s_mul_i32 s{qT1}, s{qT1}, 10240\ns_cmp_eq_u32 s{qT0}, 0\ns_cselect_b32 s{qSo}, 0x100000, s{qT1}\ns_mov_b32 s{qNl}, 7",
    ]

def q_loads(slot):
    it = [f"s_add_u32 m0, s{qWm}, {slot*20480}"]
    for j in range(4):
        it.append(f"buffer_load_dwordx4 v{vL16}, s[{qW}:{qW+3}], s{qWo} offen offset:{j*1024} sc1 lds ; @put W2")
    it.append(f"s_add_u32 m0, s{qWm}, {slot*20480+4096}")
    it.append(f"buffer_load_dwordx4 v{vL16+1}, s[{qW}:{qW+3}], s{qWo} offen sc1 lds ; @put W2")
    for k in range(2):
        for rt in range(2):
            it.append(f"buffer_load_dwordx4 {ar(aA2+(slot*4+k*2+rt)*4,4)}, v{vL16+k}, s[{qA}:{qA+3}], s{qAo} offen offset:{rt*1024} sc1")
    it.append(f"s_add_u32 s{qWo}, s{qWo}, 81920\ns_add_u32 s{qAo}, s{qAo}, 8192")
    it.append(f"s_sub_u32 s{qNl}, s{qNl}, 1\ns_cmp_eq_u32 s{qNl}, 0\ns_cselect_b32 s{qWo}, s{qWs}, s{qWo}")
    it.append(f"s_cselect_b32 s{qAo}, s{qAs}, s{qAo}\ns_cselect_b32 s{qW+2}, s{qWe}, s{qW+2}\ns_cselect_b32 s{qA+2}, s{qAe}, s{qA+2}")
    return it

def gemm2(A, L, emit, stamp):
    ac, vT, vX, vZ = 64, 144, 168, 180
    srd(A, qX, pX, pX + 1, X_SIZE)
    srd(A, qO, pOut, pOut + 1, X_SIZE)
    A(f"v_and_b32 v{vT}, 15, v{vLane}")
    A(f"v_mul_u32_u24 v{vT}, 1280, v{vT}")
    A(f"v_lshrrev_b32 v{vT+1}, 4, v{vLane}")
    A(f"v_lshl_add_u32 v{vXo2}, v{vT+1}, 3, v{vT}")
    for i in range(4): A(f"v_mov_b32 v{vZ+i}, 0")
    for ct in range(5):
        A(f"buffer_load_dwordx2 {vr(vX+2*ct,2)}, v{vXo2}, s[{qX}:{qX+3}], s{qXo} offen offset:{ct*32}")
    def zero():
        for i in range(5): mf32(A, vr(ac + 16 * i, 16), vr(vZ, 4), vr(vZ, 4), "0")
    zero()
    A(f"v_mov_b32 v{vWr2}, v{vL16}")
    A(f"v_add_u32 v{vWr2+1}, 40960, v{vL16}")
    A(f"v_lshlrev_b32 v{vL8}, 3, v{vLane}")
    A(f"v_add_u32 v{vOwn}, {RING2}, v{vL16}")
    A(f"s_mov_b32 s{qN}, 0")
    A(f"s_mov_b32 s{qT0}, {hex((1<<3)|(1<<4)|(1<<7)|(1<<10)|(1<<22)|(1<<23))}")
    A(f"s_movk_i32 s{qT1}, {hex((1<<0)|(1<<1)|(1<<7)|(1<<8))}")
    def wread2(slot, f, buf):
        k, ct = f // 10, f % 10
        return f"ds_read_b128 {ar(aW2+buf*4,4)}, v{vWr2+slot//2} offset:{(slot%2)*20480+k*10240+ct*1024}"
    A(f"s_waitcnt vmcnt(39)")
    A("s_barrier ; @need W2 10")
    stamp(7)
    for f in range(3): A(wread2(0, f, f))
    lq = LQ()
    for f in range(3): lq.issue(f)
    A(".p2align 6")
    A(f"{L}q:")
    for slot in range(4):
        ns = (slot + 1) % 4
        slots = spread(q_loads((slot + 3) % 4), 16)
        for f in range(20):
            k, ct = f // 10, f % 10
            lq.wait(A, [f])
            for r in range(2):
                rt = r if f % 2 == 0 else 1 - r
                mf16(A, vr(ac + (rt * 10 + ct) * 4, 4), ar(aW2 + (f % 4) * 4, 4), ar(aA2 + (slot * 4 + k * 2 + rt) * 4, 4))
                if r == 0 and f + 3 < 20:
                    A(wread2(slot, f + 3, (f + 3) % 4)); lq.issue(f + 3)
                if f == 18:
                    A(wread2(ns, r, r)); lq.issue(r)
                if f == 19 and r == 0:
                    A(wread2(ns, 2, 2)); lq.issue(2)
                if r == 1 and f < 16: emit(slots[f])
                if r == 0 and f == 17 and slot != 2: A(f"s_bitcmp1_b32 s{qT1}, s{qN}")
            if f == 17:
                if slot != 2:
                    A("s_waitcnt vmcnt(30) lgkmcnt(0)")
                    A(f"s_cbranch_scc1 {L}qw{slot}")
                    A("s_waitcnt vmcnt(18)")
                    A(f"{L}qw{slot}:")
                else: A("s_waitcnt vmcnt(18) lgkmcnt(0)")
                lq.clear()
                A("s_barrier ; @need W2 10")
            if f == 19:
                A(f"s_add_u32 s{qN}, s{qN}, 1")
        if slot:
            A(f"s_bitcmp1_b32 s{qT0}, s{qN}")
            A(f"s_cbranch_scc1 {L}qe{slot}")
            A(f"{L}qr{slot}:")
    A(f"s_branch {L}q")
    def send(kind):
        A(f"s_add_u32 s{sT0}, s{qSo}, {kind*30720}")
        A(f"s_cmp_lg_u32 s{sWave}, s{qP}")
        A(f"s_cbranch_scc1 {L}no{kind}")
        A("s_nop 1")
        for i in range(20): A(f"ds_write_b128 v{vOwn}, {vr(ac+4*i,4)} offset:{kind*20480+i*1024}")
        A("s_waitcnt lgkmcnt(0)")
        A(f"{L}no{kind}:")
        for c in range(4):
            b = vT + (c % 2) * 12
            for i in range(10): A(f"v_cvt_pk_bf16_f32 v{b+i}, v{ac+c*20+2*i}, v{ac+c*20+2*i+1}")
            if kind == 0:
                for i in range(10): A(f"v_min_u32 v{b+i}, -2, v{b+i}")
            if c: A(f"s_add_u32 s{sT0}, s{sT0}, 2560")
            A(f"buffer_store_dwordx4 {vr(b,4)}, v{vL16}, s[{qI}:{qI+3}], s{sT0} offen sc1 ; @put H")
            A(f"buffer_store_dwordx4 {vr(b+4,4)}, v{vL16}, s[{qI}:{qI+3}], s{sT0} offen offset:1024 sc1 ; @put H")
            A(f"buffer_store_dwordx2 {vr(b+8,2)}, v{vL8}, s[{qI}:{qI+3}], s{sT0} offen offset:2048 sc1 ; @put H")
    A(f"{L}qe1:")
    A(f"s_cmp_eq_u32 s{qN}, 22")
    A(f"s_cbranch_scc1 {L}qe1b")
    set_flag(A, 3, f"{L}qr1")
    A(f"s_branch {L}qr1")
    A(f"{L}qe1b:")
    flag_load(A, vPb, vAp)
    A(f"s_branch {L}qr1")
    A(f"{L}qe3:")
    A("s_waitcnt vmcnt(9)")
    flag_wait(A, f"{L}w2", 2, [(vPa, vAo)])
    stamp(8)
    A(f"s_branch {L}qr3")
    A(f"{L}qe2:")
    A(f"s_cmp_eq_u32 s{qN}, 23")
    A(f"s_cbranch_scc1 {L}qx")
    A(f"s_cmp_eq_u32 s{qN}, 7")
    A(f"s_cbranch_scc1 {L}qe2b")
    set_flag(A, 2, f"{L}qe2a")
    A(f"{L}qe2a:")
    flag_load(A, vPa, vAo)
    A(f"s_branch {L}qr2")
    A(f"{L}qe2b:")
    stamp(9)
    send(1)
    zero()
    A("s_nop 7")
    A(f"s_branch {L}qr2")
    A(f"{L}qx:")
    stamp(10)
    A("s_waitcnt vmcnt(9)")
    flag_wait(A, f"{L}w3", 3, [(vPb, vAp)])
    send(0)
    S, U, IN, XR, E, T = 64, 84, 104, 184, 204, 224
    A(f"s_mul_i32 s{sT0}, s{sWave}, 5120")
    A(f"v_add_u32 v{vOwn}, s{sT0}, v{vOwn}")
    A(f"s_mul_i32 s{sT0}, s{qP}, 61440")
    A(f"s_mul_i32 s{sT1}, s{sWave}, 2560")
    A(f"s_add_u32 s{qIn}, s{sT0}, s{sT1}")
    for sl in range(1, 6): A(f"s_add_u32 s{qIn+sl}, s{qIn}, {sl*10240}")
    def inload(sl):
        b = IN + sl * 10
        A(f"buffer_load_dwordx4 {vr(b,4)}, v{vL16}, s[{qI}:{qI+3}], s{qIn+sl} offen sc1")
        A(f"buffer_load_dwordx4 {vr(b+4,4)}, v{vL16}, s[{qI}:{qI+3}], s{qIn+sl} offen offset:1024 sc1")
        A(f"buffer_load_dwordx2 {vr(b+8,2)}, v{vL8}, s[{qI}:{qI+3}], s{qIn+sl} offen offset:2048 sc1")
    for sl in (3, 4, 5, 0, 1, 2): inload(sl)
    A("s_barrier")
    for i in range(5): A(f"ds_read_b128 {vr(U+4*i,4)}, v{vOwn} offset:{20480+i*1024}")
    for i in range(5): A(f"ds_read_b128 {vr(S+4*i,4)}, v{vOwn} offset:{i*1024}")
    for i in range(10):
        A(f"v_lshlrev_b32 v{XR+2*i}, 16, v{vX+i}")
        A(f"v_and_b32 v{XR+2*i+1}, 0xffff0000, v{vX+i}")
    def addin(sl, dst):
        b = IN + sl * 10
        for i in range(10):
            A(f"v_lshlrev_b32 v{T+2*i}, 16, v{b+i}")
            A(f"v_and_b32 v{T+2*i+1}, 0xffff0000, v{b+i}")
        for i in range(10): A(f"v_pk_add_f32 {vr(dst+2*i,2)}, {vr(dst+2*i,2)}, {vr(T+2*i,2)}")
    A(f"s_mov_b32 s{sT0}, {hex(f2u(-LOG2E))}")
    A("s_waitcnt vmcnt(15) lgkmcnt(0)"); addin(3, U)
    stamp(11)
    A("s_waitcnt vmcnt(12)"); addin(4, U)
    A("s_waitcnt vmcnt(9)"); addin(5, U)
    for i in range(20): A(f"v_mul_f32 v{E+i}, s{sT0}, v{U+i}")
    for i in range(20): A(f"v_exp_f32 v{E+i}, v{E+i}")
    for i in range(20): A(f"v_add_f32 v{E+i}, 1.0, v{E+i}")
    for i in range(20): A(f"v_rcp_f32 v{E+i}, v{E+i}")
    A(f"s_mov_b32 s{sT1}, 0")
    for i in range(10): A(f"v_pk_mul_f32 {vr(U+2*i,2)}, {vr(U+2*i,2)}, {vr(E+2*i,2)}")
    A(f"{L}sc:")
    A("s_waitcnt vmcnt(0)")
    for i in range(3): A(f"v_max3_u32 v{T+i}, v{IN+10*i}, v{IN+10*i+1}, v{IN+10*i+2}")
    for j in range(3):
        for i in range(3): A(f"v_max3_u32 v{T+i}, v{T+i}, v{IN+10*i+3+2*j}, v{IN+10*i+4+2*j}")
    A(f"v_max3_u32 v{T+3}, v{IN+9}, v{IN+19}, v{IN+29}")
    A(f"v_max3_u32 v{T}, v{T}, v{T+1}, v{T+2}")
    A(f"v_max_u32 v{T}, v{T}, v{T+3}")
    A(f"v_cmp_eq_u32 vcc, -1, v{T}")
    A("s_nop 3")
    A(f"s_cbranch_vccz {L}sr ; pollbr")
    A(f"s_add_u32 s{sT1}, s{sT1}, 1")
    A(f"s_cmp_ge_u32 s{sT1}, 0x40000")
    A(f"s_cbranch_scc1 {L}sr")
    for sl in range(3): inload(sl)
    A(f"s_branch {L}sc")
    A(f"{L}sr:")
    stamp(12)
    for sl in range(3): addin(sl, S)
    for i in range(10): A(f"v_pk_fma_f32 {vr(XR+2*i,2)}, {vr(S+2*i,2)}, {vr(U+2*i,2)}, {vr(XR+2*i,2)}")
    for i in range(10): A(f"v_cvt_pk_bf16_f32 v{vX+i}, v{XR+2*i}, v{XR+2*i+1}")
    for ct in range(5):
        A(f"buffer_store_dwordx2 {vr(vX+2*ct,2)}, v{vXo2}, s[{qO}:{qO+3}], s{qXo} offen offset:{ct*32}")
    stamp(13)

def gen_p1(A, name, stamps=False, code_bytes=29696):
    head(A, name)
    L = "p1_"
    A("s_cmp_ge_u32 s2, 256")
    A(f"s_cbranch_scc1 {L}end")
    A("s_load_dwordx16 s[64:79], s[0:1], 0")
    A("s_load_dwordx8 s[80:87], s[0:1], 64")
    A(f"s_memrealtime s[{sNo}:{sNo+1}]")
    if stamps: A("s_memtime s[94:95]")
    def stamp(i):
        if not stamps: return
        A(f"s_memtime s[96:97]")
        A(f"s_memrealtime s[98:99]")
        A("s_waitcnt lgkmcnt(0)")
        A(f"v_mov_b32 v{vTm+18}, s96"); A(f"v_mov_b32 v{vTm+19}, s98")
        A(f"s_lshl_b32 s96, s2, 2"); A(f"s_add_u32 s96, s96, s{sWave}"); A("s_lshl_b32 s96, s96, 7")
        A(f"v_mov_b32 v{vZero}, s96")
        if i == 0: A(f"v_mov_b32 v{vTm+16}, s94")
        A(f"s_add_u32 s96, s{pWs}, 0x3100000"); A(f"s_addc_u32 s97, s{pWs+1}, 0")
        A(f"global_store_dwordx2 v{vZero}, {vr(vTm+18,2)}, s[96:97] offset:{i*8}")
        if i == 0: A(f"global_store_dword v{vZero}, v{vTm+16}, s[96:97] offset:120")
    t = vTm
    def emit(items):
        for it in items:
            if "lds" in it and A.lines[-1].split()[1].startswith("m0"): A("s_nop 0")
            A(it)
    A(f"v_and_b32 v{vLane}, 63, v0")
    A("v_lshrrev_b32 v0, 6, v0")
    A("s_and_b32 s6, s2, 7")
    A(f"v_readfirstlane_b32 s{sWave}, v0")
    A(f"s_lshr_b32 s{sT0}, s2, 3")
    A(f"s_lshr_b32 s{sRb}, s{sT0}, 2")
    A(f"s_and_b32 s{sT1}, s{sT0}, 3")
    A(f"s_lshl2_add_u32 s{sHead}, s6, s{sT1}")
    A(f"s_sub_u32 s{sT2}, s6, s{sRb}")
    A(f"s_add_u32 s{sT2}, s{sT2}, 3")
    A(f"s_and_b32 s{sT2}, s{sT2}, 7")
    A(f"s_mul_i32 s{sFb}, s6, 3")
    A(f"s_add_u32 s{sFb}, s{sFb}, s{sT1}")
    A(f"s_add_u32 s7, s{sT2}, 24")
    A(f"s_cmp_eq_u32 s{sT1}, 3")
    A(f"s_cselect_b32 s{sFb}, s7, s{sFb}")
    A(f"s_cmp_lt_u32 s{sFb}, 27")
    A(f"s_cselect_b32 s{sHasF}, 1, 0")
    A(f"s_sub_u32 s{sProd}, s{sFb}, 27")
    A(f"v_lshrrev_b32 v{t+7}, 3, v{vLane}")
    A(f"v_and_b32 v{t+6}, 7, v{vLane}")
    A(f"v_lshrrev_b32 v{t+12}, 4, v{vLane}")
    A(f"v_xor_b32 v{t+13}, v{t+6}, v{t+12}")
    A(f"v_lshlrev_b32 v{t+13}, 4, v{t+13}")
    A(f"s_movk_i32 s6, 1280")
    A(f"v_mad_u32_u24 v{vXd}, v{t+7}, s6, v{t+13}")
    A(f"v_xor_b32 v{t+13}, 64, v{vXd}")
    for j in range(1, 8):
        A(f"v_add_u32 v{vXd+j}, {j*10240-(j%4)*1024}, v{(t+13) if j&1 else vXd}")
    A(f"s_lshl2_add_u32 s6, s{sRb}, s{sWave}")
    A(f"s_mul_i32 s{sXo}, s6, {64*1280}")
    A(f"s_mul_i32 s{sKVo}, s6, {A_BLK}")
    A(f"s_lshl_b32 s{sM0X}, s{sWave}, 13")
    A(f"s_add_u32 s{sM0X}, s{sM0X}, {R1}")
    A(f"s_mov_b32 s{sTail}, 0")
    A(f"s_and_b32 s6, s{sWave}, 1")
    A(f"s_lshl_b32 s7, s6, 2")
    A(f"v_add_u32 v{t+13}, s7, v{t+12}")
    A(f"v_lshlrev_b32 v{t+13}, 1, v{t+13}")
    A(f"v_and_b32 v{t+14}, 15, v{vLane}")
    A(f"v_xor_b32 v{t+13}, v{t+13}, v{t+14}")
    A(f"v_lshlrev_b32 v{t+13}, 4, v{t+13}")
    A(f"s_lshl_b32 s7, s{sWave}, 3")
    A(f"v_add_u32 v{t+15}, s7, v{t+12}")
    A(f"v_lshl_add_u32 v{vWqd}, v{t+15}, 13, v{t+13}")
    A(f"v_add_u32 v{vWqd+1}, {4*8192-1024}, v{vWqd}")
    A(f"v_bfe_u32 v{t+13}, v{vLane}, 4, 1")
    A(f"s_lshl_b32 s6, s6, 1")
    A(f"v_add_u32 v{t+13}, s6, v{t+13}")
    A(f"v_lshlrev_b32 v{t+13}, 1, v{t+13}")
    A(f"v_xor_b32 v{t+13}, v{t+13}, v{t+6}")
    A(f"v_lshlrev_b32 v{t+13}, 4, v{t+13}")
    A(f"v_add_u32 v{t+15}, s7, v{t+7}")
    A(f"s_movk_i32 s6, 3456")
    A(f"v_mad_u32_u24 v{vW13d}, v{t+15}, s6, v{t+13}")
    A(f"s_lshl_b32 s{sWqo}, s{sHead}, 8")
    A(f"s_lshl_b32 s{sW13o}, s{sFb}, 7")
    A(f"s_mov_b32 s{sSlot}, 0")
    A("s_waitcnt lgkmcnt(0)")
    A(f"s_lshl_b32 s{sC0}, s{sWave}, 12")
    A(f"s_add_u32 s{sC0}, s{sC0}, {R3}")
    A(f"s_mov_b32 s{sM0W}, s{sC0}")
    srd(A, sX, pX, pX + 1, X_SIZE)
    srd(A, sWq, pWq, pWq + 1, 640 * 8192)
    for (d, p, sh) in ((sW1, pW1, 2048), (sW3, pW3, 3072)):
        A(f"s_sub_u32 s{d}, s{p}, {sh}")
        A(f"s_subb_u32 s{d+1}, s{p+1}, 0")
        A(f"s_and_b32 s{d+1}, s{d+1}, 0xffff")
        A(f"s_mul_i32 s{d+2}, s{sHasF}, {640*3456+sh}")
        A(f"s_mov_b32 s{d+3}, 0x20000")
    srd(A, sX2, pX, pX + 1, X_SIZE)
    A(f"s_movk_i32 s{sM0d}, 4096")
    A(f"s_movk_i32 s{sXst}, 128")
    A(f"s_mov_b32 s{sM0t}, 0x18000")
    RAW, UNP = 64, 96
    A(f"v_mov_b32 v{t+5}, 0")
    A(f"s_cmp_ge_u32 s{sProd}, 4")
    A(f"s_cbranch_scc1 {L}np1")
    A(f"v_lshrrev_b32 v{t+5}, 2, v{vLane}")
    A(f"v_and_b32 v{t+13}, 3, v{vLane}")
    A(f"v_lshlrev_b32 v{t+13}, 4, v{t+13}")
    A(f"s_movk_i32 s6, 1280")
    A(f"v_mad_u32_u24 v{t+13}, v{t+5}, s6, v{t+13}")
    A(f"s_lshl2_add_u32 s6, s{sRb}, s{sProd}")
    A(f"s_lshl2_add_u32 s6, s6, s{sWave}")
    A(f"s_lshl_b32 s7, s6, 8")
    A(f"v_lshl_add_u32 v{t+5}, v{t+5}, 4, s7")
    A(f"s_mul_i32 s6, s6, {16*1280}")
    for i in range(20):
        A(f"buffer_load_dwordx4 {vr(RAW+4*i,4)}, v{t+13}, s[{sX}:{sX+3}], s6 offen offset:{i*64}")
    A(f"{L}np1:")
    emit(dma_w(True)); emit(dma_x(0)); emit(dma_x(1))
    stamp(0)
    A("s_getpc_b64 s[6:7]")
    A(f"s_and_b32 s{sT0}, s{sT0}, 7")
    A(f"s_lshl2_add_u32 s{sT0}, s{sT0}, s{sWave}")
    A(f"s_lshl_b32 s{sT0}, s{sT0}, 10")
    A(f"s_min_u32 s{sT0}, s{sT0}, {code_bytes-1024}")
    A(f"v_lshl_add_u32 v{vTm+4}, v{vLane}, 4, s{sT0}")
    A(f"global_load_dwordx4 {vr(vTm+8,4)}, v{vTm+4}, s[6:7]")
    emit(dma_w(True)); emit(dma_x(0)); emit(dma_w(True))
    A(f"s_add_u32 s{sA}, s{pWs}, s{sKVo}")
    A(f"s_addc_u32 s{sA+1}, s{pWs+1}, 0")
    srd(A, sA, sA, sA + 1, A_BLK)
    A(f"s_add_u32 s{sWp}, s{pWs}, {W_OFF}")
    A(f"s_addc_u32 s{sWp+1}, s{pWs+1}, 0")
    srd(A, sWp, sWp, sWp + 1, W_SIZE)
    A(f"s_lshl2_add_u32 s{sT1}, s{sHead}, s{sWave}")
    A(f"s_mul_i32 s{sU}, s{sT1}, 10")
    A(f"s_lshl_b32 s{sT2}, s{sRb}, 1")
    A(f"s_add_u32 s{sU}, s{sU}, s{sT2}")
    A(f"s_mul_i32 s{sT1}, s{sT1}, 40960")
    A(f"s_lshl_b32 s{sT2}, s{sRb}, 8")
    A(f"s_add_u32 s{sPo}, s{sT1}, s{sT2}")
    srd(A, sSrc, pWo, pWo + 1, 4096 * 1280)
    A(f"s_cmp_lt_u32 s{sRb}, 5")
    A(f"s_cselect_b32 s{sSrc+2}, s{sSrc+2}, 0")
    A(f"s_cselect_b32 s{sU}, s{sU}, 2000")
    A(f"v_mov_b32 v{t+6}, 0")
    A(f"s_or_b32 s6, s2, s{sWave}")
    A(f"s_cbranch_scc1 {L}ntag")
    A(f"s_lshl_b64 s[6:7], s[{sNo}:{sNo+1}], 2")
    A(f"s_or_b32 s7, s7, 0x80000000")
    A(f"v_mov_b32 v{t+14}, s6")
    A(f"v_mov_b32 v{t+15}, s7")
    A("s_mov_b64 exec, 1")
    A(f"global_store_dwordx2 v{t+6}, {vr(t+14,2)}, s[{pDbg}:{pDbg+1}] offset:128 sc1")
    A("s_mov_b64 exec, -1")
    A(f"{L}ntag:")
    A(f"v_and_b32 v{t+14}, 15, v{vLane}")
    A(f"v_lshrrev_b32 v{t+13}, 1, v{t+14}")
    A(f"v_xor_b32 v{t+13}, v{t+13}, v{t+12}")
    A(f"v_lshlrev_b32 v{t+13}, 4, v{t+13}")
    A(f"v_lshl_add_u32 v{t+13}, v{t+14}, 7, v{t+13}")
    A(f"s_lshl_b32 s6, s{sWave}, 13")
    A(f"s_add_u32 s6, s6, {R1}")
    A(f"v_add_u32 v{vXr}, s6, v{t+13}")
    A(f"v_xor_b32 v{vXr+1}, 64, v{vXr}")
    A(f"v_lshlrev_b32 v{t+3}, 4, v{t+14}")
    A(f"v_bfe_u32 v{t+14}, v{vLane}, 2, 2")
    A(f"v_and_b32 v{t+15}, 3, v{vLane}")
    A(f"v_lshlrev_b32 v{t+15}, 3, v{t+15}")
    A(f"v_lshl_add_u32 v{t+15}, v{t+12}, 12, v{t+15}")
    A(f"v_add_u32 v{t+15}, {R3}, v{t+15}")
    A(f"v_bfe_u32 v{t+16}, v{vLane}, 4, 1")
    A(f"v_lshl_add_u32 v{t+13}, v{t+16}, 2, v{t+14}")
    A(f"s_lshl_b32 s6, s{sWave}, 1")
    A(f"v_xor_b32 v{t+13}, s6, v{t+13}")
    A(f"v_lshl_add_u32 v{t+13}, v{t+13}, 5, v{t+15}")
    A(f"v_lshl_add_u32 v{vWqr}, v{t+14}, 8, v{t+13}")
    for p in range(1, 8): A(f"v_xor_b32 v{vWqr+p}, {32*p}, v{vWqr}")
    A(f"v_lshrrev_b32 v{t+13}, 1, v{t+14}")
    A(f"v_lshl_add_u32 v{t+13}, v{t+16}, 1, v{t+13}")
    A(f"v_xor_b32 v{t+13}, s{sWave}, v{t+13}")
    A(f"v_lshl_add_u32 v{t+13}, v{t+13}, 5, v{t+15}")
    A(f"v_lshl_add_u32 v{vW13r}, v{t+14}, 7, v{t+13}")
    for p in range(1, 4): A(f"v_xor_b32 v{vW13r+p}, {32*p}, v{vW13r}")
    srd(A, sK, pK, pK + 1, 16777216)
    srd(A, sV, pV, pV + 1, 16777216)
    A(f"s_add_u32 s{sSt}, s{pWs}, {ST_OFF}")
    A(f"s_addc_u32 s{sSt+1}, s{pWs+1}, 0")
    srd(A, sSt, sSt, sSt + 1, 2048 * 16)
    A(f"s_lshl_b32 s6, s{sRb}, 2")
    A(f"v_mov_b32 v{t+2}, s6")
    A(f"s_movk_i32 s{sMask}, {EVMASK}")
    A(f"s_mov_b32 s{sD}, 0")
    A(f"s_cmp_ge_u32 s{sProd}, 4")
    A(f"s_cbranch_scc1 {L}np2")
    A("s_waitcnt vmcnt(25)")
    for i in range(79, -1, -1):
        A(f"v_and_b32 v{UNP+2*i+1}, 0xffff0000, v{RAW+i}")
        A(f"v_lshlrev_b32 v{UNP+2*i}, 16, v{RAW+i}")
    a = 64
    def red(first):
        for i in range(80):
            first(i)
        A(f"v_pk_add_f32 {vr(a,2)}, {vr(a,2)}, {vr(a+2,2)}")
        A(f"v_pk_add_f32 {vr(a+4,2)}, {vr(a+4,2)}, {vr(a+6,2)}")
        A(f"v_pk_add_f32 {vr(a,2)}, {vr(a,2)}, {vr(a+4,2)}")
        A(f"v_add_f32 v{a}, v{a}, v{a+1}")
        for qp in ("[1,0,3,2]", "[2,3,0,1]"):
            A("s_nop 1")
            A(f"v_add_f32_dpp v{a}, v{a}, v{a} quad_perm:{qp} row_mask:0xf bank_mask:0xf")
    def f1(i):
        d = vr(a + 2 * (i % 4), 2)
        if i < 4: A(f"v_pk_add_f32 {d}, {vr(UNP+2*i,2)}, {vr(UNP+2*i+8,2)}")
        elif i >= 8: A(f"v_pk_add_f32 {d}, {d}, {vr(UNP+2*i,2)}")
    red(f1)
    o = 72
    A(f"v_mul_f32 v{o}, {hex(f2u(-1.0/640))}, v{a}")
    for i in range(80): A(f"v_pk_add_f32 {vr(UNP+2*i,2)}, {vr(UNP+2*i,2)}, {vr(o,2)} op_sel_hi:[1,0]")
    def f2(i):
        d = vr(a + 2 * (i % 4), 2); x_ = vr(UNP + 2 * i, 2)
        if i < 4: A(f"v_pk_mul_f32 {d}, {x_}, {x_}")
        else: A(f"v_pk_fma_f32 {d}, {x_}, {x_}, {d}")
    red(f2)
    A(f"v_mov_b32 v{o+3}, {hex(f2u(1e-5))}")
    A(f"v_fmac_f32 v{o+3}, {hex(f2u(1.0/640))}, v{a}")
    A(f"v_mov_b32 v{o+2}, v{o+3}")
    A(f"v_rsq_f32 v{o+1}, v{o+3}")
    A("s_mov_b32 exec_lo, 0x11111111")
    A("s_mov_b32 exec_hi, 0x11111111")
    A(f"buffer_store_dwordx4 {vr(o,4)}, v{t+5}, s[{sSt}:{sSt+3}], 0 offen sc1 ; @put S")
    A("s_mov_b64 exec, -1")
    A("s_waitcnt vmcnt(0)")
    A(f"{L}np2:")
    for i in range(4): A(f"v_mov_b32 v{vSt+i}, 0")
    A(f"v_mov_b32 v{t+13}, 0x3f803f80")
    for i in range(4): A(f"v_accvgpr_write_b32 a{aOne+i}, v{t+13}")
    z = vr(vSt, 4)
    for i in range(8): mf32(A, vr(vAcc + 16 * i, 16), z, z, "0")
    for i in range(9): mf32(A, ar(16 * i, 16), z, z, "0")
    A(f"s_waitcnt vmcnt(12)")
    A("s_barrier")
    A(f"s_lshl2_add_u32 s6, s{sProd}, s{sWave}")
    A(f"s_and_b32 s6, s6, 0xfffffff3")
    A(f"s_cbranch_scc1 {L}np3")
    A(f"v_mov_b32 v{t+1}, 1")
    A(f"v_add_u32 v{t+7}, s{sProd}, v{t+2}")
    A(f"s_mov_b64 exec, 1")
    A(f"global_store_byte v{t+7}, v{t+1}, s[{pDbg}:{pDbg+1}] sc1")
    A(f"s_mov_b64 exec, -1")
    A(f"{L}np3:")
    stamp(1)
    for rt in range(4): A(xread(0, 0, rt))
    A(f"s_cmp_eq_u32 s{sHasF}, 0")
    fr = frag_list(True)
    for f in range(3):
        for sec in range(2): A(wread(fr[f], 0, sec, f))
    A("s_waitcnt lgkmcnt(6)")
    if FINE: A("s_mov_b32 s7, 0")
    A(f"s_cbranch_scc1 {L}gn")
    gemm_loop(A, True, L + "gf")
    A(f"s_branch {L}gdone")
    gemm_events(A, L + "gf")
    gemm_events(A, L + "gn")
    gemm_loop(A, False, L + "gn")
    A(f"{L}gdone:")
    if FINE:
        A(f"s_lshl_b32 s96, s2, 2"); A(f"s_add_u32 s96, s96, s{sWave}"); A("s_lshl_b32 s96, s96, 10")
        A(f"v_lshl_add_u32 v{vTm+12}, v{vLane}, 2, s96")
        A(f"s_add_u32 s100, s{pWs}, 0x3200000"); A(f"s_addc_u32 s101, s{pWs+1}, 0")
        A(f"global_store_dword v{vTm+12}, v{vFin}, s[100:101]")
        A(f"global_store_dword v{vTm+12}, v{vFin+1}, s[100:101] offset:256")
        A(f"global_store_dword v{vTm+12}, v{vFin-1}, s[100:101] offset:512")
    stamp(2)
    A(f"v_lshrrev_b32 v{t+12}, 4, v{vLane}")
    A(f"v_lshlrev_b32 v{t+12}, 4, v{t+12}")
    A(f"s_lshl_b32 s6, s{sWave}, 7")
    A(f"s_add_u32 s6, s6, {CS}")
    A(f"v_add_u32 v{t+8}, s6, v{t+12}")
    A(f"s_lshl_b32 s6, s{sWave}, 6")
    A(f"s_add_u32 s6, s6, {CS+512}")
    A(f"v_add_u32 v{t+9}, s6, v{t+12}")
    A("s_mov_b32 exec_lo, 0x00010001")
    A("s_mov_b32 exec_hi, 0x00010001")
    A(f"ds_write_b128 v{t+8}, {ar(aCs,4)}")
    A(f"ds_write_b128 v{t+8}, {ar(aCs+4,4)} offset:64")
    A(f"ds_write_b128 v{t+9}, {ar(aCs+8,4)}")
    A(f"ds_write_b128 v{t+9}, {ar(aCs+12,4)} offset:256")
    A("s_mov_b64 exec, -1")
    for j in range(8): A(f"v_mov_b32 v{vKd+j}, v{vXd+j}")
    A(f"s_mov_b32 s{sKVo}, s{sXo}")
    A(f"s_mov_b32 s{sKVm}, s{sM0X}")
    A(f"v_lshlrev_b32 v{t+10}, 4, v{vLane}")
    A(f"s_and_b32 s{qP}, s2, 3")
    A(f"s_lshr_b32 s{qCb}, s2, 6")
    A(f"s_bfe_u32 s{qRb}, s2, 0x30003")
    A(f"s_and_b32 s6, s2, 4")
    A(f"s_lshl_b32 s6, s6, 1")
    A(f"s_add_u32 s{qRb}, s{qRb}, s6")
    A(f"s_lshl2_add_u32 s{qG}, s{qRb}, s{qCb}")
    A(f"s_mul_i32 s6, s{qG}, {IB_G}")
    A(f"s_add_u32 s6, s6, {IB_OFF}")
    A(f"s_add_u32 s{qI}, s{pWs}, s6")
    A(f"s_addc_u32 s{qI+1}, s{pWs+1}, 0")
    srd(A, qI, qI, qI + 1, IB_G)
    A("s_waitcnt lgkmcnt(0)")
    A("s_barrier")
    kvadv = [f"s_add_u32 s{sKVo}, s{sKVo}, 16384\ns_add_u32 s{sKVm}, s{sKVm}, 32768"]
    def kvq(): return kv_dma() + kvadv
    csb = [vKr, vKr + 4, vVr + 0]
    lq = LQ()
    def csread_q(p):
        A(f"v_xor_b32 v{t+11}, {64*p}, v{t+8}")
        A(f"ds_read_b128 {vr(csb[p%3],4)}, v{t+11}"); lq.issue(("c", p))
    csread_q(0); csread_q(1)
    kq = spread([f"s_add_u32 m0, s{sKVm}, 16384"] + kv_dma()[6:] + kvadv, 24)
    for rt in range(4):
        q = vSt + 4 * rt
        A(f"v_mul_f32 v{q+3}, {hex(f2u(LOG2E/128**0.5))}, v{q+1}")
        A(f"v_mul_f32 v{q+1}, {hex(f2u(-LOG2E))}, v{q+1}")
    z = vr(vTm + 12, 4)
    for i in range(4): A(f"v_mov_b32 v{vTm+12+i}, 0")
    for p in range(8):
        if p + 2 < 8: csread_q(p + 2)
        lq.wait(A, [("c", p)])
        c = csb[p % 3]
        for rt in range(4):
            d = vAcc + (p * 4 + rt) * 4; q = vSt + 4 * rt
            for h in range(2):
                A(f"v_pk_fma_f32 {vr(d+2*h,2)}, {vr(c+2*h,2)}, {vr(q,2)}, {vr(d+2*h,2)} op_sel_hi:[1,0,1]")
        mf32(A, ar(aO + 16 * p, 16), z, z, "0")
        emit(kq[3*p])
        for rt in range(4):
            d = vAcc + (p * 4 + rt) * 4; q = vSt + 4 * rt
            for h in range(2):
                A(f"v_pk_mul_f32 {vr(d+2*h,2)}, {vr(d+2*h,2)}, {vr(q+2,2)} op_sel:[0,1]")
        emit(kq[3*p+1])
        for rt in range(4):
            d = vAcc + (p * 4 + rt) * 4
            f = vQ + ((rt // 2) * 8 + p) * 4 + (rt & 1) * 2
            for h in range(2): A(f"v_cvt_pk_bf16_f32 v{f+h}, v{d+2*h}, v{d+2*h+1}")
        emit(kq[3*p+2])
        if p > 0:
            for qt in range(2):
                f = vQ + (qt * 8 + p - 1) * 4
                for h in range(2): A(f"v_permlane16_swap_b32 v{f+h}, v{f+2+h}")
    A("s_nop 0")
    for qt in range(2):
        f = vQ + (qt * 8 + 7) * 4
        for h in range(2): A(f"v_permlane16_swap_b32 v{f+h}, v{f+2+h}")
    stamp(3)
    A(f"s_cmp_eq_u32 s{sHasF}, 0")
    A(f"s_cbranch_scc1 {L}noffn")
    T = vAcc; H = vAcc + 64; C = vAcc + 96
    for p in range(4):
        A(f"v_xor_b32 v{t+11}, {64*p}, v{t+9}")
        A(f"ds_read_b128 {vr(C+8*p,4)}, v{t+11}")
        A(f"ds_read_b128 {vr(C+8*p+4,4)}, v{t+11} offset:256")
    A(f"s_lshr_b32 s7, s{sWave}, 1")
    A(f"s_lshl_b32 s6, s{sFb}, 1")
    A(f"s_add_u32 s6, s6, 128")
    A(f"s_add_u32 s{sT0}, s6, s7")
    A(f"s_xor_b32 s7, s7, 1")
    A(f"s_add_u32 s{sT1}, s6, s7")
    A(f"s_lshl_b32 s{sT0}, s{sT0}, 12")
    A(f"s_lshl_b32 s{sT1}, s{sT1}, 12")
    A("s_waitcnt lgkmcnt(0)")
    kq = spread(kvq(), 11) + [[]] * 13
    for p in range(4):
        for r2 in range(2):
            g_ = 3 * (p * 2 + r2)
            G = [(2 * r2 + i, T + 12 * i + 24 * ((p * 2 + r2) & 1)) for i in range(2)]
            for rt, b in G:
                for i in range(4): A(f"v_accvgpr_read_b32 v{b+i}, a{aG+(p*4+rt)*4+i}")
                for i in range(4): A(f"v_accvgpr_read_b32 v{b+4+i}, a{aUp+(p*4+rt)*4+i}")
            emit(kq[g_])
            for rt, b in G:
                for h in range(4):
                    A(f"v_pk_fma_f32 {vr(b+2*h,2)}, {vr(C+8*p+2*h,2)}, {vr(vSt+4*rt,2)}, {vr(b+2*h,2)} op_sel_hi:[1,0,1]")
            for rt, b in G:
                for h in range(2): A(f"v_pk_mul_f32 {vr(b+8+2*h,2)}, {vr(b+2*h,2)}, {vr(vSt+4*rt,2)} op_sel:[0,1]")
            for rt, b in G:
                for i in range(4): A(f"v_exp_f32 v{b+8+i}, v{b+8+i}")
            emit(kq[g_+1])
            for rt, b in G:
                for h in range(2): A(f"v_pk_mul_f32 {vr(b+2*h,2)}, {vr(b+2*h,2)}, {vr(b+4+2*h,2)}")
            for rt, b in G:
                for h in range(2):
                    A(f"v_pk_fma_f32 {vr(b+8+2*h,2)}, {vr(b+8+2*h,2)}, {vr(vSt+4*rt+2,2)}, {vr(vSt+4*rt+2,2)} op_sel_hi:[1,0,0]")
            for rt, b in G:
                for i in range(4): A(f"v_rcp_f32 v{b+8+i}, v{b+8+i}")
            emit(kq[g_+2])
            for n, (rt, b) in enumerate(G):
                for h in range(2): A(f"v_pk_mul_f32 {vr(b+2*h,2)}, {vr(b+2*h,2)}, {vr(b+8+2*h,2)}")
            for rt, b in G:
                for h in range(2): A(f"v_cvt_pk_bf16_f32 v{H+(p//2)*16+rt*4+(p&1)*2+h}, v{b+2*h}, v{b+2*h+1}")
        if p & 1:
            pi = p // 2
            A(f"s_bitcmp1_b32 s{sWave}, 0")
            A(f"s_cbranch_scc0 {L}nsw{pi}")
            for rt in range(4):
                for h in range(2): A(f"v_swap_b32 v{H+pi*16+rt*4+h}, v{H+pi*16+rt*4+2+h}")
            A(f"{L}nsw{pi}:")
            for rt in range(4):
                A(f"buffer_store_dwordx4 {vr(H+pi*16+rt*4,4)}, v{t+10}, s[{sA}:{sA+3}], s{sT0+pi} offen offset:{rt*1024} sc1 ; @put H")
    A(f"s_branch {L}ffnd")
    A(f"{L}noffn:")
    emit(kvq())
    srd(A, qA, pW2, pW2 + 1, 1728 * 1280)
    wp_src_voff(A, vAcc)
    wp_addr(A, 13)
    A(f"s_mul_i32 s{sT2}, s{sRb}, 5")
    A(f"s_add_u32 s{sT2}, s{sT2}, s{sProd}")
    A(f"s_lshl2_add_u32 s{sT2}, s{sT2}, s{sWave}")
    A(f"{L}w2j:")
    A(f"s_mul_hi_u32 s{sT0}, s{sT2}, 0x33333334")
    A(f"s_mul_i32 s{sT1}, s{sT0}, 5")
    A(f"s_sub_u32 s{sT1}, s{sT2}, s{sT1}")
    A(f"s_mul_i32 s7, s{sT0}, 40960")
    A(f"s_lshl_b32 s6, s{sT1}, 8")
    A(f"s_add_u32 s{sT0}, s7, s6")
    A(f"s_lshl_b32 s6, s{sT1}, 13")
    A(f"s_add_u32 s7, s7, s6")
    A(f"s_add_u32 s{sT1}, s7, {128*40960}")
    A(f"s_lshl_b32 s6, s{sWave}, 13")
    for su in range(2):
        A(f"s_add_u32 m0, s6, {R3+su*4096}")
        A("s_nop 0")
        for j in range(4): A(f"buffer_load_dwordx4 v{vAcc+4*su+j}, s[{qA}:{qA+3}], s{sT0} offen offset:{j*1024} lds")
    A("s_waitcnt vmcnt(0)")
    wp_reads(A, 4096)
    A("s_waitcnt lgkmcnt(0)")
    wp_stores(A, sT1)
    A(f"s_add_u32 s{sT2}, s{sT2}, 160")
    A(f"s_cmp_lt_u32 s{sT2}, 270")
    A(f"s_cbranch_scc1 {L}w2j")
    A(f"{L}ffnd:")
    for i in range(4): A(f"v_mov_b32 v{vOnes+i}, -1")
    A(f"s_mul_i32 s6, s{qP}, 61440")
    A(f"s_mul_i32 s7, s{sWave}, 7680")
    A(f"s_add_u32 s{qNl}, s6, s7")
    A(f"v_add_u32 v{vL16+1}, 4096, v{vL16}")
    A(f"s_lshl_b32 s6, s{sRb}, 5")
    A(f"s_add_u32 s7, s6, s{sHead}")
    A(f"s_lshl_b32 s7, s7, 7")
    A(f"v_mov_b32 v{vFo}, s7")
    A(f"v_and_b32 v{vAp}, 3, v{vLane}")
    A(f"v_lshlrev_b32 v{vAp}, 2, v{vAp}")
    A(f"s_and_b32 s7, s{sHead}, 0x13")
    A(f"s_add_u32 s7, s7, s6")
    A(f"v_add_lshl_u32 v{vAp}, v{vAp}, s7, 7")
    A(f"s_lshr_b32 s7, s{qRb}, 1")
    A(f"s_lshl_b32 s6, s7, 5")
    A(f"v_add_lshl_u32 v{vAa}, v{vLane}, s6, 7")
    A(f"v_cmp_gt_u32 vcc, 32, v{vLane}")
    A(f"v_lshlrev_b32 v{vAb}, 2, v{vLane}")
    A(f"v_add_lshl_u32 v{vAb}, v{vAb}, 3, 7")
    A(f"v_cndmask_b32 v{vAa}, v{vAp}, v{vAa}, vcc")
    A(f"v_bfe_u32 v{vAo}, v{vLane}, 3, 1")
    A(f"v_add_u32 v{vAo}, s{qCb}, v{vAo}")
    A(f"v_cmp_gt_u32 vcc, 16, v{vLane}")
    A(f"v_mov_b32 v{vFv}, s7")
    A(f"s_lshl_b32 s6, s{qP}, 3")
    A(f"v_cndmask_b32 v{vAo}, v{vFv}, v{vAo}, vcc")
    A(f"v_and_b32 v{vFv}, 7, v{vLane}")
    A(f"v_add_u32 v{vFv}, s6, v{vFv}")
    A(f"v_lshl_add_u32 v{vAo}, v{vAo}, 5, v{vFv}")
    A(f"v_lshlrev_b32 v{vAo}, 7, v{vAo}")
    stamp(4)
    A(f"s_mov_b32 s{sT1}, {R0}")
    kv_addr(A, sT1)
    A(f"v_mov_b32 v{vL}, 0")
    A(f"v_mov_b32 v{vL+1}, 0")
    A(f"s_mov_b32 s{sT}, 0")
    A(f"s_mov_b32 s{sC0}, 32768")
    A(f"s_movk_i32 s{sTail}, 0xfc")
    A("s_waitcnt vmcnt(16)")
    A("s_barrier")
    lq = LQ()
    for p in range(3):
        A(kread(p, 0, p)); lq.issue(("f", 16 + p))
    attn_seg(A, lq, 2, {}, sm_lo=0, sm_hi=0, look=[2])
    for p in range(3):
        A(kread(p, 1, p)); lq.issue(("f", p))
    A("s_nop 7")
    for e in range(10):
        for x in sm_exp(0, e): A(x)
        if e:
            for x in sm_post(0, e - 1): A(x)
    assert XP or lq.q == [("f", 0), ("f", 1), ("f", 2)]
    dm = kv_dma()
    ex = {}
    for p in range(8):
        ex.setdefault(max(2 * (p - 3) + 1, 1) if p >= 3 else 2 * p, []).append(f"v_add_u32 v{vKr+p}, s{sDelta}, v{vKr+p}")
    for dt in range(4):
        ex.setdefault(2 * (28 + dt - 3) + 2, []).append(f"v_add_u32 v{vVr+dt}, s{sDelta}, v{vVr+dt}")
    ex[(26, "pre")] = ["s_waitcnt vmcnt(8)", "s_barrier"]
    for i, sl in enumerate([32, 33, 37, 41, 45, 47, 49, 53, 57, 61]): ex.setdefault(sl, []).append(dm[i])
    if "nodma" in XP:
        for k_ in list(ex):
            if not isinstance(k_, tuple): ex[k_] = [x for x in ex[k_] if "lds" not in x and "m0" not in x]
    if "nobar" in XP: ex[(26, "pre")] = []
    ex.setdefault(62, []).append(f"s_add_u32 s{sKVo}, s{sKVo}, 16384")
    ex.setdefault(20, []).append(f"s_add_u32 s{sT}, s{sT}, 1")
    A(".p2align 6")
    A(f"{L}at:")
    A(f"s_cmp_eq_u32 s{sT}, 4")
    A(f"s_cselect_b32 s{sDelta}, {hex((-131072) & 0xffffffff)}, s{sC0}")
    attn_seg(A, lq, 0, ex)
    attn_seg(A, lq, 1, ex)
    A(f"s_cmp_eq_u32 s{sT}, 8")
    A(f"s_cbranch_scc1 {L}attail")
    lq_exit = list(lq.q)
    attn_seg(A, lq, 2, ex)
    attn_seg(A, lq, 3, ex)
    A(f"s_add_u32 s{sKVm}, s{sKVm}, 32768")
    A(f"s_bitcmp1_b32 s{sTail}, s{sT}")
    A(f"s_cbranch_scc0 {L}at")
    A(f"s_cmp_eq_u32 s{sT}, 5")
    A(f"s_cbranch_scc1 {L}atp")
    A(f"s_cmp_eq_u32 s{sT}, 6")
    A(f"s_cbranch_scc1 {L}at6")
    A(f"s_cmp_eq_u32 s{sT}, 7")
    A(f"s_cbranch_scc1 {L}at7")
    A(f"s_cmp_eq_u32 s{sT}, 3")
    A(f"s_cbranch_scc1 {L}at3")
    A(f"s_cmp_eq_u32 s{sT}, 4")
    A(f"s_cbranch_scc1 {L}at4")
    A(f"s_sub_u32 s{sKVm}, s{sKVm}, 163840")
    set_flag(A, 1, f"{L}at")
    A(f"s_branch {L}at")
    for h_ in range(2):
        A(f"{L}at{3+h_}:")
        for j in range(4):
            if h_ == 1 and j == 3: A("s_mov_b32 exec_hi, 0")
            A(f"buffer_store_dwordx4 {vr(vOnes,4)}, v{vL16+h_}, s[{qI}:{qI+3}], s{qNl} offen offset:{j*1024} sc1 ; @put H")
        A("s_mov_b64 exec, -1")
        A(f"s_branch {L}at")
    A(f"{L}at7:")
    wp_addr(A, 12)
    A("s_waitcnt vmcnt(8)")
    wp_reads(A, 16384)
    A(f"s_lshl_b32 s6, s{sU}, 12")
    A("s_waitcnt lgkmcnt(0)")
    wp_stores(A, 6)
    A(f"s_branch {L}at")
    A(f"{L}at6:")
    A(f"s_mov_b32 s{sKVm}, {TAILBIT}")
    A(f"s_mov_b32 s{sK+2}, 0")
    A(f"s_mov_b32 s{sV+2}, 0")
    flag_load(A, vPa, vAa)
    flag_load(A, vPb, vAb)
    A(f"s_branch {L}at")
    A(f"{L}atp:")
    for i in range(4):
        A(f"s_mov_b32 s{sK+i}, s{sSrc+i}" if i < 3 else f"s_mov_b32 s{sK+3}, 0x20000")
        A(f"s_mov_b32 s{sV+i}, s{sSrc+i}" if i < 3 else f"s_mov_b32 s{sV+3}, 0x20000")
    A(f"s_mov_b32 s{sKVo}, s{sPo}")
    wp_src_voff(A, vKd)
    A(f"s_branch {L}at")
    assert XP or lq.q == [("f", 0), ("f", 1), ("f", 2)], lq.q
    A(f"{L}attail:")
    lq.q = lq_exit
    A("s_waitcnt lgkmcnt(0)"); lq.clear()
    attn_seg(A, lq, 2, {}, mfma=False, look=[3])
    attn_seg(A, lq, 3, {48 + i: [x] for i, x in enumerate(q_setup())}, sm_hi=54, look=[3])
    stamp(5)
    A(f"v_mov_b32 v{t}, v{vL}")
    A(f"v_mov_b32 v{t+1}, v{vL+1}")
    A(f"v_bfe_u32 v{t+2}, v{vLane}, 4, 1")
    A(f"v_lshrrev_b32 v{t+3}, 5, v{vLane}")
    A(f"v_permlane32_swap_b32 v{t}, v{vL}")
    A(f"v_permlane32_swap_b32 v{t+1}, v{vL+1}")
    A(f"v_lshlrev_b32 v{t+3}, 8, v{t+3}")
    A(f"v_add_f32 v{vL}, v{vL}, v{t}")
    A(f"v_add_f32 v{vL+1}, v{vL+1}, v{t+1}")
    A(f"v_lshl_add_u32 v{t+3}, v{t+2}, 10, v{t+3}")
    A(f"v_and_b32 v{t+2}, 15, v{vLane}")
    A(f"v_lshl_add_u32 v{vOo}, v{t+2}, 4, v{t+3}")
    A(f"v_mov_b32 v{t+8}, {hex(f2u(2.0**-40))}")
    A(f"v_mov_b32 v{t+9}, {hex(f2u(2.0**40))}")
    A(f"v_cmp_gt_f32 s[{sE0}:{sE0+1}], v{vL}, v{t+8}")
    A(f"v_cmp_lt_f32 s[{sE0+2}:{sE0+3}], v{vL}, v{t+9}")
    A(f"v_cmp_gt_f32 s[4:5], v{vL+1}, v{t+8}")
    A(f"v_cmp_lt_f32 s[6:7], v{vL+1}, v{t+9}")
    A(f"v_rcp_f32 v{t}, v{vL}")
    A(f"v_rcp_f32 v{t+1}, v{vL+1}")
    A("s_nop 1")
    A(f"s_and_b64 s[{sE0}:{sE0+1}], s[{sE0}:{sE0+1}], s[{sE0+2}:{sE0+3}]")
    A(f"s_and_b64 s[4:5], s[4:5], s[6:7]")
    A(f"s_and_b64 s[4:5], s[4:5], s[{sE0}:{sE0+1}]")
    A(f"s_cmp_eq_u64 s[4:5], exec")
    if not XP: A(f"s_cbranch_scc0 {L}slow ; slowbr")
    A(f"{L}oep:")
    A("s_barrier")
    flag_wait(A, f"{L}w1", 1, [(vPa, vAa), (vPb, vAb)])
    for s_ in range(3): emit(q_loads(s_))
    A(f"s_lshl_b32 s6, s{sHead}, 14")
    n = 0
    for dt in range(4):
        for qt in range(2):
            b = vS + (n % 4) * 16; pk = vP + (n % 4) * 8; n += 1
            for i in range(16): A(f"v_accvgpr_read_b32 v{b+i}, a{aO+(qt*4+dt)*16+i}")
            for i in range(8):
                A(f"v_pk_mul_f32 {vr(b+2*i,2)}, {vr(b+2*i,2)}, {vr(t,2)} " + ("op_sel_hi:[1,0]" if qt == 0 else "op_sel:[0,1]"))
            for i in range(8): A(f"v_cvt_pk_bf16_f32 v{pk+i}, v{b+2*i}, v{b+2*i+1}")
            for j in range(2):
                A(f"buffer_store_dwordx4 {vr(pk+4*j,4)}, v{vOo}, s[{sA}:{sA+3}], s6 offen offset:{qt*2048+j*512} sc1 ; @put H")
        if dt < 3: A("s_add_u32 s6, s6, 4096")
    stamp(6)
    gemm2(A, L, emit, stamp)
    A(f"{L}end:")
    A("s_endpgm")
    A(f"{L}slow:")
    A("s_waitcnt vmcnt(0) lgkmcnt(0)")
    srd(A, sK, pK, pK + 1, 16777216)
    srd(A, sV, pV, pV + 1, 16777216)
    kv_dma_voff(A, vKd, vVd)
    A(f"s_lshl_b32 s{sT1}, s{sWave}, 14")
    A(f"s_add_u32 s{sT1}, s{sT1}, {R0}")
    kv_addr(A, sT1)
    for dt in range(4): A(f"v_subrev_u32 v{vVr+dt}, 8192, v{vVr+dt}")
    vM = vTm + 6
    A(f"v_mov_b32 v{vM}, 0xff800000")
    A(f"v_mov_b32 v{vM+1}, 0xff800000")
    A(f"v_mov_b32 v{vL}, 0")
    A(f"v_mov_b32 v{vL+1}, 0")
    for i in range(4): A(f"v_mov_b32 v{vTm+12+i}, 0")
    A("s_nop 1")
    for i in range(8): mf32(A, ar(aO + 16 * i, 16), vr(vTm + 12, 4), vr(vTm + 12, 4), "0")
    A(f"s_mov_b32 s{sT}, 0")
    A(f"{L}sl:")
    A(f"s_and_b32 s{sT0}, s{sT}, 15")
    A(f"s_lshl_b32 s{sT0}, s{sT0}, 13")
    A(f"s_lshl_b32 s{sKVo}, s{sHead}, 19")
    A(f"s_add_u32 s{sKVo}, s{sKVo}, s{sT0}")
    A(f"s_add_u32 s{sKVo}, s{sKVo}, {1536*256}")
    for hf in range(2):
        A(f"s_add_u32 m0, s{sT1}, {hf*4096}")
        A("s_nop 0")
        for j in range(4): A(f"buffer_load_dwordx4 v{vKd+j}, s[{sK}:{sK+3}], s{sKVo} offen offset:{j*1024} lds")
        A(f"s_add_u32 m0, s{sT1}, {8192+hf*4096}")
        A("s_nop 0")
        for j in range(4): A(f"buffer_load_dwordx4 v{vVd}, s[{sV}:{sV+3}], s{sKVo} offen offset:{j*1024} lds")
        if hf == 0: A(f"s_add_u32 s{sKVo}, s{sKVo}, 4096")
    A("s_waitcnt vmcnt(0)")
    for p in range(8):
        A(kread(p, 0, p % 4))
        A("s_waitcnt lgkmcnt(0)")
        for qt in range(2): mf32(A, vr(vS + qt * 16, 16), vr(vF + (p % 4) * 4, 4), vr(vQ + (qt * 8 + p) * 4, 4), "0" if p == 0 else None)
    A("s_nop 11")
    A(f"s_cmp_ge_u32 s{sT}, 16")
    A(f"s_cbranch_scc1 {L}sl2")
    for qt in range(2):
        for i in range(8): A(f"v_max3_f32 v{vM+qt}, v{vS+qt*16+2*i}, v{vS+qt*16+2*i+1}, v{vM+qt}")
    A(f"s_cmp_lg_u32 s{sT}, 15")
    A(f"s_cbranch_scc1 {L}sl3")
    A(f"v_mov_b32 v{vM+2}, v{vM}")
    A(f"v_mov_b32 v{vM+3}, v{vM+1}")
    A("s_nop 1")
    A(f"v_permlane32_swap_b32 v{vM+2}, v{vM}")
    A(f"v_permlane32_swap_b32 v{vM+3}, v{vM+1}")
    A(f"v_max_f32 v{vM}, v{vM}, v{vM+2}")
    A(f"v_max_f32 v{vM+1}, v{vM+1}, v{vM+3}")
    A(f"s_branch {L}sl3")
    A(f"{L}sl2:")
    for e in range(32):
        r, qt, ks = sm_reg(0, e)
        A(f"v_sub_f32 v{r}, v{r}, v{vM+qt}")
        A(f"v_exp_f32 v{r}, v{r}")
        A("s_nop 0")
        for x in sm_post(0, e): A(x)
    for i in range(8):
        for sec in range(2): A(vread(i // 4, i % 4, 0, sec, i % 4))
        A("s_waitcnt lgkmcnt(0)")
        for qt in range(2): mf32(A, ar(aO + (qt * 4 + i % 4) * 16, 16), vr(vF + (i % 4) * 4, 4), vr(vP + (qt * 2 + i // 4) * 4, 4))
    A(f"{L}sl3:")
    A(f"s_add_u32 s{sT}, s{sT}, 1")
    A(f"s_cmp_lt_u32 s{sT}, 32")
    A(f"s_cbranch_scc1 {L}sl")
    A(f"v_mov_b32 v{t}, v{vL}")
    A(f"v_mov_b32 v{t+1}, v{vL+1}")
    A("s_nop 1")
    A(f"v_permlane32_swap_b32 v{t}, v{vL}")
    A(f"v_permlane32_swap_b32 v{t+1}, v{vL+1}")
    A(f"v_add_f32 v{vL}, v{vL}, v{t}")
    A(f"v_add_f32 v{vL+1}, v{vL+1}, v{t+1}")
    A(f"v_rcp_f32 v{t}, v{vL}")
    A(f"v_rcp_f32 v{t+1}, v{vL+1}")
    A("s_nop 7")
    A(f"s_branch {L}oep")
    kd(A, name, 512, 256)

def checks(A, entry):
    if XP: return
    nb = check_hazards(A.lines)
    tot = 0
    for wg in (0, 5, 31, 24, 28, 255):
        for w in (0, 1, 3):
            for slow in (0, 1):
                def hk(x, S):
                    if x.opn == "v_readfirstlane_b32" and "tag" not in x.text:
                        S[sWave] = w
                    if "slowbr" in x.text: return slow
                    if "pollbr" in x.text: return 1
                p, c = check_waits(A.lines, entry, {2: wg}, hk)
                tot += p
    print("hazards:", nb, "waits:", tot, c)

def build(fn, stamps=False):
    HDR = open("cdna_kernels/" + NAME + ".s.ref").read().split("; Override")[0]
    A = Asm()
    A(HDR)
    A(f"; @launch grid=(256,1,1) block=(256,1,1) lds={P1_LDS}")
    A('.amdgcn_target "amdgcn-amd-amdhsa--gfx950"')
    A(".text")
    gen_p1(A, NAME + "_kernel", stamps=stamps)
    checks(A, NAME + "_kernel")
    open(fn, "w").write(A.text())
if __name__ == "__main__":
    build("fu.s")
    build("fu_st.s", stamps=True)
```

```python
from asmlib import *
from common import *

P1_LDS = 163840
R0, R1, R2, R3, R4 = 0, 32768, 65536, 98304, 131072
CS = R3
TAILBIT = 0x30000
ROT = False
TLBW = True
FLAG = 'byte'
FINE = False
EVMASK = 0x180
vFin = 60
XP = set()

class LQ:
    def __init__(s): s.q = []
    def issue(s, tag): s.q.append(tag)
    def wait(s, A, tags):
        idx = max([i for i, t in enumerate(s.q) if t in tags], default=-1)
        if idx < 0: return
        n = len(s.q) - 1 - idx
        assert n <= 15
        A(f"s_waitcnt lgkmcnt({n})")
        s.q = s.q[idx + 1:]
    def clear(s): s.q = []

sX, sWq, sW1, sW3, sK, sV, sA, sWp, sSrc, sSt = 8, 12, 16, 20, 24, 28, 32, 36, 40, 44
sWave, sHead, sRb, sFb, sHasF = 48, 49, 50, 51, 52
sXo, sWqo, sW13o, sM0X, sM0W, sD, sTail, sSlot = 53, 54, 55, 56, 57, 58, 59, 60
sT0, sT1, sT2 = 61, 62, 63
pX, pK, pV, pWq, pWo, pBx, pW1, pW3, pW2, pOut, pDbg, pWs = range(64, 88, 2)
sKVo, sKVm, sDelta, sT, sU, sMask, sXb, sC0 = 88, 89, 90, 91, 92, 93, 94, 95
sX2, sM0d, sXst, sM0t, sProd, sPo = 76, 74, 75, 3, 4, 5
sE0 = 96
vLane = 1
vXd, vWqd, vW13d, vXr, vWqr, vW13r = 2, 10, 12, 13, 15, 23
vZero = 27
vSt = 28
vTm = 44
vQ = 64
vAcc = 128
aG, aUp, aCs, aXf, aWf, aOne, aWp = 0, 64, 128, 144, 176, 192, 196
vKr, vVr, vKd, vVd, vL, vOo = 2, 10, 14, 18, 22, 24
vS, vP, vF = 128, 192, 208
aO = 128
sNo = 100
pFl = 84
qA, qW, qX, qO, qI = 8, 12, 16, 20, 44
qP, qG, qAo, qWo, qWm, qN, qAs, qWs = 53, 54, 55, 56, 57, 58, 59, 60
qAe, qWe, qNl, qSo, qXo, qRb, qCb, qT0, qT1, qIn = 74, 75, 3, 93, 94, 76, 77, 78, 79, 24
vFo, vFv, vPa, vPb, vAa, vAb, vAo, vAp = 25, 28, 30, 32, 34, 35, 36, 37
vL16, vWr2, vXo2, vL8, vOwn = 54, 2, 4, 5, 6
aA2, aW2, aWq = 0, 64, 64
RING2 = 81920
vOnes = 40
vWpB, vWpA = 38, 39
sWpO, sSen = 5, 3


def mf16(A, d, a, b, c=None):
    A(f"v_mfma_f32_16x16x32_bf16 {d}, {a}, {b}, {d if c is None else c}")
def mf32(A, d, a, b, c=None):
    A(f"v_mfma_f32_32x32x16_bf16 {d}, {a}, {b}, {d if c is None else c}")

def spread(items, nslots):
    out = [[] for _ in range(nslots)]
    n = len(items)
    for i, it in enumerate(items):
        out[min(nslots - 1, (i * nslots) // n)].append(it)
    return out

def frag_list(ffn):
    fr = [("Q", p) for p in range(8)]
    if ffn:
        for p in range(4): fr += [("G", p), ("U", p)]
    return fr

def wread(fr, k, sec, buf):
    c, p = fr
    if c == "Q": ad, off = vWqr + p, sec * 1024
    else: ad, off = vW13r + p, (2048 if c == "G" else 3072) + sec * 512
    return f"ds_read_b64_tr_b16 {ar(aWf+buf*4+2*sec,2)}, v{ad} offset:{off + k*16384}"

def xread(s, st, rt):
    return f"ds_read_b128 {ar(aXf+st*16+rt*4,4)}, v{vXr+s} offset:{rt*2048}"

def dma_w(ffn, force=False):
    it = [f"s_max_u32 m0, s{sM0W}, s{sTail}",
          f"buffer_load_dwordx4 v{vWqd}, s[{sWq}:{sWq+3}], s{sWqo} offen lds ; @put W",
          f"buffer_load_dwordx4 v{vWqd+1}, s[{sWq}:{sWq+3}], s{sWqo} offen offset:1024 lds ; @put W"]
    if ffn or force:
        it += [f"buffer_load_dwordx4 v{vW13d}, s[{sW1}:{sW1+3}], s{sW13o} offen offset:2048 lds ; @put W",
               f"buffer_load_dwordx4 v{vW13d}, s[{sW3}:{sW3+3}], s{sW13o} offen offset:3072 lds ; @put W"]
    it += [f"s_add_u32 s{sWqo}, s{sWqo}, {32*8192}"]
    if ffn or force: it += [f"s_add_u32 s{sW13o}, s{sW13o}, {32*3456}"]
    it += [f"s_add_u32 s{sSlot}, s{sSlot}, 16384\ns_and_b32 s{sSlot}, s{sSlot}, 0xffff",
           f"s_add_u32 s{sM0W}, s{sSlot}, s{sC0}"]
    return it

def dma_x(half):
    if half == 0: it = [f"s_mov_b32 m0, s{sM0X}"]
    else: it = [f"s_add_u32 m0, s{sM0X}, s{sM0d}"]
    sd = sX if half == 0 else sX2
    for j in range(4):
        it.append(f"buffer_load_dwordx4 v{vXd+4*half+j}, s[{sd}:{sd+3}], s{sXo} offen offset:{j*1024} lds")
    if half: it += [f"s_add_u32 s{sXo}, s{sXo}, s{sXst}\ns_xor_b32 s{sM0X}, s{sM0X}, s{sM0t}"]
    return it

def fine(A):
    A("s_memtime s[98:99]"); A("s_waitcnt lgkmcnt(0)")
    A("s_mov_b32 m0, s7")
    A(f"v_writelane_b32 v{vFin}, s96, m0")
    A(f"v_writelane_b32 v{vFin+1}, s100, m0")
    A(f"v_writelane_b32 v{vFin-1}, s98, m0")
    A("s_add_u32 s7, s7, 1")

def gemm_loop(A, ffn, L):
    fr = frag_list(ffn); nf = len(fr)
    nw = 4 if ffn else 2
    ones = {("Q", 0): 0, ("Q", 1): 1, ("G", 0): 2, ("U", 0): 3}
    lq = LQ()
    for f in range(3):
        lq.issue(("w", f)); lq.issue(("w", f))
    A(".p2align 6")
    A(f"{L}:")
    for k in range(2):
        if k == 1:
            A(f"s_bitcmp1_b32 s{sMask}, s{sD}")
            A(f"s_cbranch_scc1 {L}_ev")
            A(f"{L}_evret:")
        if k == 0:
            items = [("x", rt) for rt in range(4)] + dma_x(1) + dma_w(ffn)
            slots = spread(items, 2 * (nf - 2))
            tog = {2: [f"v_xor_b32 v{vXr}, 0x18000, v{vXr}"]}
        else:
            items = dma_x(0) + dma_w(ffn) + [f"s_add_u32 s{sD}, s{sD}, 1"]
            slots = spread(items, 2 * (nf - 5))
            slots += [[f"s_cmp_eq_u32 s{sD}, 10\ns_cbranch_scc1 {L}_nw\ns_waitcnt vmcnt({2*nw+4})\n{L}_nw:"],
                      [("x", 0)], [("x", 1)], [("x", 2)], [("x", 3)], []]
            tog = {0: [f"v_xor_b32 v{vXr+1}, 0x18000, v{vXr+1}"]}
            for f, (c, p) in enumerate(fr):
                if c == "G": continue
                reg = vWqr + p if c == "Q" else vW13r + p
                tog.setdefault(max(f - 3, -1) + 1, []).append(f"v_xor_b32 v{reg}, 0x38000, v{reg}")
        for f in range(nf):
            c, p = fr[f]
            lq.wait(A, [("w", f)] + ([("x", k)] if f == 0 else []))
            buf = f % 4
            for rt in range(4):
                r_ = rt if f % 2 == 0 else 3 - rt
                if c == "Q": d = vr(vAcc + (p * 4 + r_) * 4, 4)
                else: d = ar((aG if c == "G" else aUp) + (p * 4 + r_) * 4, 4)
                mf16(A, d, ar(aWf + buf * 4, 4), ar(aXf + k * 16 + r_ * 4, 4))
                if f + 3 < nf and rt < 2:
                    A(wread(fr[f + 3], k, rt, (f + 3) % 4)); lq.issue(("w", f + 3))
                if f == nf - 2:
                    A(wread(fr[rt // 2], 1 - k, rt % 2, (rt // 2) % 4)); lq.issue(("w", rt // 2))
                if f == nf - 1 and rt < 2:
                    A(wread(fr[2], 1 - k, rt, 2)); lq.issue(("w", 2))
                if rt >= 2 and f < nf - 2:
                    for it in slots[2 * f + rt - 2]:
                        if isinstance(it, tuple):
                            A(xread(1 - k, 1 - k, it[1]) + (" ; @chkx" if k == 1 else "")); lq.issue(("x", 1 - k))
                        else:
                            if "lds" in it and A.lines[-1].split()[1].startswith("m0"): A("s_nop 0")
                            A(it)
                if rt == 3:
                    for t in tog.get(f, []): A(t)
            if fr[f] in ones:
                mf16(A, ar(aCs + ones[fr[f]] * 4, 4), ar(aWf + buf * 4, 4), ar(aOne, 4))
            if f == nf - 3:
                n = 2 * nw + 8
                if FINE:
                    A("s_memtime s[96:97]"); A("s_waitcnt lgkmcnt(0)")
                A(f"s_waitcnt vmcnt({n}) lgkmcnt(0)")
                lq.clear()
                if FINE:
                    A("s_memtime s[100:101]"); A("s_waitcnt lgkmcnt(0)")
                A(f"s_barrier")
                if FINE: fine(A)
    A(f"s_cmp_lt_u32 s{sD}, 10")
    A(f"s_cbranch_scc1 {L}")
    assert lq.q == [("w", 0), ("w", 0), ("w", 1), ("w", 1), ("w", 2), ("w", 2)], lq.q

def kv_dma_voff(A, kd_, vd_):
    t = vTm
    A(f"v_lshrrev_b32 v{t+12}, 4, v{vLane}")
    A(f"v_and_b32 v{t+14}, 15, v{vLane}")
    A(f"v_xor_b32 v{t+13}, v{t+14}, v{t+12}")
    A(f"v_lshlrev_b32 v{t+13}, 4, v{t+13}")
    A(f"v_lshl_add_u32 v{kd_}, v{t+12}, 8, v{t+13}")
    for j in range(1, 4): A(f"v_xor_b32 v{kd_+j}, {64*j}, v{kd_}")
    A(f"v_lshlrev_b32 v{t+13}, 2, v{t+12}")
    A(f"v_xor_b32 v{t+13}, v{t+13}, v{t+14}")
    A(f"v_lshlrev_b32 v{t+13}, 4, v{t+13}")
    A(f"v_lshl_add_u32 v{vd_}, v{t+12}, 8, v{t+13}")
    for j in range(1, 4): A(f"v_mov_b32 v{vd_+j}, v{vd_}")

def gemm_events(A, L):
    A(f"{L}_ev:")
    A(f"s_cmp_eq_u32 s{sD}, 8")
    A(f"s_cbranch_scc1 {L}_ev8")
    A(f"global_load_dword v{vTm}, v{vTm+2}, s[{pDbg}:{pDbg+1}] sc1")
    A(f"global_load_dwordx2 {vr(vTm+4,2)}, v{vTm+6}, s[{pDbg}:{pDbg+1}] offset:128 sc1")
    A(f"s_branch {L}_evret")
    A(f"{L}_ev8:")
    A(f"s_mov_b32 s{sTail}, {TAILBIT}")
    for d in (sWq, sW1, sW3): A(f"s_mov_b32 s{d+2}, 0")
    srd(A, sX, pK, pK + 1, 16777216)
    srd(A, sX2, pV, pV + 1, 16777216)
    kv_dma_voff(A, vXd, vXd + 4)
    A(f"s_lshl_b32 s{sM0X}, s{sWave}, 12")
    A(f"s_lshl_b32 s{sXo}, s{sHead}, 19")
    A(f"s_add_u32 s{sXo}, s{sXo}, s{sM0X}")
    A(f"s_add_u32 s{sXo}, s{sXo}, {1536*256}")
    A(f"s_movk_i32 s{sM0d}, 16384")
    A(f"s_movk_i32 s{sXst}, 16384")
    A(f"s_mov_b32 s{sM0t}, 0x8000")
    A(f"s_mov_b32 s{sT1}, 0")
    A(f"s_waitcnt vmcnt(12)")
    A(f"{L}_chk:")
    A(f"v_cmp_ne_u32 vcc, 0x01010101, v{vTm}")
    A(f"v_cmp_eq_u32 s[6:7], 0, v{vTm+5}")
    A("s_nop 3")
    A(f"s_or_b64 s[6:7], s[6:7], vcc")
    A(f"s_cbranch_scc0 {L}_rdy ; pollbr")
    A(f"s_add_u32 s{sT1}, s{sT1}, 1")
    A(f"s_cmp_ge_u32 s{sT1}, 0x40000")
    A(f"s_cbranch_scc1 {L}_rdy")
    A("s_sleep 2")
    A(f"global_load_dword v{vTm}, v{vTm+2}, s[{pDbg}:{pDbg+1}] sc1")
    A(f"global_load_dwordx2 {vr(vTm+4,2)}, v{vTm+6}, s[{pDbg}:{pDbg+1}] offset:128 sc1")
    A("s_waitcnt vmcnt(0)")
    A(f"s_branch {L}_chk")
    A(f"{L}_rdy:")
    A(f"v_readfirstlane_b32 s{sNo}, v{vTm+4} ; tag")
    A(f"v_readfirstlane_b32 s{sNo+1}, v{vTm+5} ; tag")
    A(f"s_add_u32 s{pFl}, s{pWs}, {FL_OFF}")
    A(f"s_addc_u32 s{pFl+1}, s{pWs+1}, 0")
    A(f"s_lshl2_add_u32 s{sT0}, s{sRb}, s{sWave}")
    A(f"s_lshl_b32 s{sT0}, s{sT0}, 10")
    for rt in range(4):
        A(f"buffer_load_dwordx4 {vr(vSt+4*rt,4)}, v{vTm+3}, s[{sSt}:{sSt+3}], s{sT0} offen offset:{rt*256} sc1")
    A(f"s_branch {L}_evret")

def kv_addr(A, base_expr_sgpr):
    t0, t1, t2, t3 = vTm + 12, vTm + 13, vTm + 14, vTm + 15
    A(f"v_and_b32 v{t0}, 31, v{vLane}")
    A(f"v_lshrrev_b32 v{t1}, 5, v{vLane}")
    A(f"v_and_b32 v{t2}, 15, v{vLane}")
    A(f"v_xor_b32 v{t2}, v{t2}, v{t1}")
    A(f"s_lshl_b32 s{sT0}, s{sWave}, 2")
    A(f"v_xor_b32 v{t2}, s{sT0}, v{t2}")
    A(f"v_lshlrev_b32 v{t2}, 4, v{t2}")
    A(f"v_lshl_add_u32 v{t2}, v{t0}, 8, v{t2}")
    A(f"v_add_u32 v{vKr}, s{base_expr_sgpr}, v{t2}")
    for p in range(1, 8): A(f"v_xor_b32 v{vKr+p}, {32*p}, v{vKr}")
    A(f"v_bfe_u32 v{t0}, v{vLane}, 2, 2")
    A(f"v_lshl_add_u32 v{t2}, v{t1}, 2, v{t0}")
    A(f"v_lshlrev_b32 v{t2}, 8, v{t2}")
    A(f"v_lshl_add_u32 v{t2}, v{t0}, 6, v{t2}")
    A(f"v_bfe_u32 v{t3}, v{vLane}, 1, 1")
    A(f"v_lshl_add_u32 v{t2}, v{t3}, 5, v{t2}")
    A(f"v_bfe_u32 v{t3}, v{vLane}, 4, 1")
    A(f"v_lshl_add_u32 v{t2}, v{t3}, 4, v{t2}")
    A(f"v_and_b32 v{t3}, 1, v{vLane}")
    A(f"v_lshl_add_u32 v{t2}, v{t3}, 3, v{t2}")
    A(f"s_add_u32 s{sT0}, s{base_expr_sgpr}, 16384")
    A(f"v_add_u32 v{vVr}, s{sT0}, v{t2}")
    for dt in range(1, 4): A(f"v_xor_b32 v{vVr+dt}, {64*dt}, v{vVr}")

def kv_dma():
    it = [f"s_mov_b32 m0, s{sKVm}"]
    for j in range(4):
        it.append(f"buffer_load_dwordx4 v{vKd+j}, s[{sK}:{sK+3}], s{sKVo} offen offset:{j*1024} lds")
    it.append("s_add_u32 m0, m0, 16384")
    for j in range(4):
        it.append(f"buffer_load_dwordx4 v{vVd+j}, s[{sV}:{sV+3}], s{sKVo} offen offset:{j*1024} lds")
    return it

def kread(p, tile, buf):
    return f"ds_read_b128 {vr(vF+buf*4,4)}, v{vKr+p} offset:{tile*8192}"
def vread(ks, dt, tile, sec, buf):
    return f"ds_read_b64_tr_b16 {vr(vF+buf*4+2*sec,2)}, v{vVr+dt} offset:{(32*tile+16*ks+8*sec)*256}"

def sm_reg(buf, e):
    qt = (e >> 3) & 1; ks = e >> 4
    return vS + (buf * 2 + qt) * 16 + ks * 8 + (e & 7), qt, ks
def sm_exp(buf, e):
    r, _, _ = sm_reg(buf, e)
    if "noexp" in XP: return []
    if "movexp" in XP: return [f"v_mov_b32 v{r}, v{r}"]
    return [f"v_exp_f32 v{r}, v{r}"]
def sm_post(buf, e):
    r, qt, ks = sm_reg(buf, e)
    o = [f"v_add_f32 v{vL+qt}, v{vL+qt}, v{r}"]
    if "noadd" in XP: o = []
    if e & 1 and "nocvt" not in XP: o.append(f"v_cvt_pk_bf16_f32 v{vP+(qt*2+ks)*4+((e&7)>>1)}, v{r-1}, v{r}")
    return o

def attn_seg(A, lq, seg, extra, mfma=True, sm_lo=0, sm_hi=64, look=True):
    def rd(phi, part):
        s = (phi // 8) % 4; i = phi % 8; buf = phi % 4
        if s in (0, 2):
            return kread(i, 1 if s == 0 else 0, buf) if part == 0 else None
        return vread(i // 4, i % 4, 0 if s == 1 else 1, part, buf)
    for i in range(8):
        phi = seg * 8 + i
        if mfma and "nowait" not in XP: lq.wait(A, [("f", phi)])
        for qt in range(2):
            slot = seg * 16 + 2 * i + qt
            if mfma:
                if seg in (0, 2):
                    sb = 1 if seg == 0 else 0
                    d = vr(vS + (sb * 2 + qt) * 16, 16)
                    mf32(A, d, vr(vF + (phi % 4) * 4, 4), vr(vQ + (qt * 8 + i) * 4, 4), "0" if i == 0 else None)
                else:
                    ks, dt = i // 4, i % 4
                    mf32(A, ar(aO + (qt * 4 + dt) * 16, 16), vr(vF + (phi % 4) * 4, 4), vr(vP + (qt * 2 + ks) * 4, 4))
            for it in extra.get((slot, "pre"), []): A(it)
            nphi = (phi + 3) % 32
            nseg = nphi // 8
            if look is True or nseg in look:
                r = rd(nphi, qt)
                if r and "noread" not in XP: A(r); lq.issue(("f", nphi))
            for it in extra.get((slot, "ds"), []):
                A(it); lq.issue(("side", 0))
            for it in extra.get(slot, []):
                if it.startswith("v_"): continue
                if "lds" in it and A.lines[-1].split()[1].startswith("m0"): A("s_nop 0")
                A(it)
            for (buf, start) in ((1, 22), (0, 54)):
                e = (slot - start) % 64
                if e < 32 and (buf, "exp") in sm_ok(slot, sm_lo, sm_hi, buf, e):
                    for x in sm_exp(buf, e): A(x)
            for (buf, start) in ((1, 22), (0, 54)):
                e = (slot - start - 1) % 64
                if e < 32 and (buf, "exp") in sm_ok((slot - 1) % 64, sm_lo, sm_hi, buf, e):
                    for x in sm_post(buf, e): A(x)
            for it in extra.get(slot, []):
                if it.startswith("v_"): A(it)
def sm_ok(slot, lo, hi, buf, e):
    return {(buf, "exp")} if (lo <= slot < hi) else set()

def wp_src_voff(A, d):
    t = vTm
    A(f"v_lshrrev_b32 v{t+12}, 4, v{vLane}")
    A(f"v_lshlrev_b32 v{t+12}, 1, v{t+12}")
    A(f"v_and_b32 v{t+13}, 7, v{vLane}")
    A(f"v_xor_b32 v{t+12}, v{t+12}, v{t+13}")
    A(f"v_lshlrev_b32 v{t+12}, 4, v{t+12}")
    A(f"v_lshrrev_b32 v{t+13}, 3, v{vLane}")
    A(f"v_mul_u32_u24 v{t+13}, 1280, v{t+13}")
    A(f"v_add_u32 v{d}, v{t+12}, v{t+13}")
    for j in range(1, 8): A(f"v_add_u32 v{d+j}, {(j%4)*9216 + (j//4)*128}, v{d}")

def wp_addr(A, sh, note="", reg=R3, n=4, dst=None):
    t = vTm
    A(f"v_bfe_u32 v{t+14}, v{vLane}, 2, 2")
    A(f"v_bfe_u32 v{t+16}, v{vLane}, 4, 1")
    A(f"v_lshl_add_u32 v{t+14}, v{t+16}, 2, v{t+14}")
    A(f"v_lshrrev_b32 v{t+13}, 1, v{t+14}")
    A(f"v_lshlrev_b32 v{t+13}, 5, v{t+13}")
    A(f"v_lshl_add_u32 v{t+13}, v{t+14}, 7, v{t+13}")
    A(f"v_lshrrev_b32 v{t+15}, 5, v{vLane}")
    A(f"v_lshl_add_u32 v{t+13}, v{t+15}, 10, v{t+13}")
    A(f"v_and_b32 v{t+15}, 3, v{vLane}")
    A(f"v_lshl_add_u32 v{t+13}, v{t+15}, 3, v{t+13}")
    A(f"s_lshl_b32 s6, s{sWave}, {sh}")
    A(f"s_add_u32 s6, s6, {reg}")
    A(f"v_add_u32 v{dst or t+4}, s6, v{t+13}{note}")
    for i4 in range(1, n): A(f"v_xor_b32 v{t+4+i4}, {32*i4}, v{t+4}")
def wp_reads(A, stride):
    for su in range(2):
        for i4 in range(4):
            for sec in range(2):
                A(f"ds_read_b64_tr_b16 {ar(aWq+(su*4+i4)*4+2*sec,2)}, v{vTm+4+i4} offset:{su*stride+sec*2048}")
def wp_stores(A, so):
    for su in range(2):
        for i4 in range(4):
            A(f"buffer_store_dwordx4 {ar(aWq+(su*4+i4)*4,4)}, v{vL16}, s[{sWp}:{sWp+3}], s{so} offen offset:{i4*1024} sc1")
        if su == 0: A(f"s_add_u32 s{so}, s{so}, 4096")

def set_flag(A, phase, lab, cls="H"):
    A(f"s_cmp_lg_u32 s{sWave}, 0")
    A(f"s_cbranch_scc1 {lab}")
    A(f"s_add_u32 s6, s{sNo}, {phase}")
    A(f"v_mov_b32 v{vFv}, s6")
    A(f"v_mov_b32 v{vFv+1}, s{sNo+1}")
    A("s_mov_b64 exec, 1")
    A(f"global_store_dwordx2 v{vFo}, {vr(vFv,2)}, s[{pFl}:{pFl+1}] sc1")
    A("s_mov_b64 exec, -1")
def flag_load(A, dst, ad):
    A(f"global_load_dwordx2 {vr(dst,2)}, v{ad}, s[{pFl}:{pFl+1}] sc1")
def flag_wait(A, lab, phase, polls):
    A(f"s_add_u32 s{sT0}, s{sNo}, {phase}")
    A(f"s_mov_b32 s{sT1}, 0")
    A(f"{lab}c:")
    for n, (d, ad) in enumerate(polls):
        A(f"v_subrev_u32 v{d}, s{sT0}, v{d}")
        A(f"v_cmp_ne_u32 s[{sE0+2*n}:{sE0+2*n+1}], s{sNo+1}, v{d+1}")
    for n, (d, ad) in enumerate(polls):
        A(f"v_cmp_lt_u32 " + ("vcc" if n == 0 else "s[6:7]") + f", {3-phase}, v{d}")
    A("s_nop 3")
    A(f"s_or_b64 s[{sE0}:{sE0+1}], s[{sE0}:{sE0+1}], vcc")
    if len(polls) > 1:
        A(f"s_or_b64 s[6:7], s[6:7], s[{sE0+2}:{sE0+3}]")
        A(f"s_or_b64 s[{sE0}:{sE0+1}], s[{sE0}:{sE0+1}], s[6:7]")
    A(f"s_cbranch_scc0 {lab}r ; pollbr")
    A(f"s_add_u32 s{sT1}, s{sT1}, 1")
    A(f"s_cmp_ge_u32 s{sT1}, 0x40000")
    A(f"s_cbranch_scc1 {lab}r")
    for d, ad in polls: flag_load(A, d, ad)
    A("s_waitcnt vmcnt(0)")
    A(f"s_branch {lab}c")
    A(f"{lab}r:")

def q_setup():
    w = sWave
    return [
     f"s_mul_i32 s{qT0}, s{qP}, 14\ns_add_u32 s{qT0}, s{qT0}, 128\ns_lshl_b32 s{qT1}, s{qP}, 5",
     f"s_and_b32 s{sT2}, s{w}, 1\ns_lshl_b32 s6, s{sT2}, 11\ns_lshl_b32 s{qAo}, s{qT0}, 12",
     f"s_add_u32 s{qAo}, s{qAo}, s6\ns_lshl_b32 s{qAs}, s{qT1}, 12\ns_add_u32 s{qAs}, s{qAs}, s6",
     f"s_lshr_b32 s7, s{w}, 1\ns_lshl_b32 s6, s{qCb}, 1\ns_add_u32 s6, s6, s7",
     f"s_mul_i32 s6, s6, 5120\ns_add_u32 s{qWo}, s{qT0}, s{sT2}\ns_mul_i32 s{qWo}, s{qWo}, 40960",
     f"s_add_u32 s{qWo}, s{qWo}, s6\ns_add_u32 s{qWs}, s{qT1}, s{sT2}\ns_mul_i32 s{qWs}, s{qWs}, 40960",
     f"s_add_u32 s{qWs}, s{qWs}, s6\ns_add_u32 s{qT1}, s{qT1}, 32\ns_lshl_b32 s{qAe}, s{qT1}, 12",
     f"s_mul_i32 s{qWe}, s{qT1}, 40960\ns_mul_i32 s{qWm}, s{sT2}, 10240\ns_mul_i32 s6, s7, 5120",
     f"s_add_u32 s{qWm}, s{qWm}, s6\ns_lshl_b32 s6, s{qRb}, 1\ns_add_u32 s6, s6, s7",
     f"s_mul_i32 s6, s6, {A_BLK}\ns_add_u32 s{qA}, s{pWs}, s6\ns_addc_u32 s{qA+1}, s{pWs+1}, 0",
     f"s_and_b32 s{qA+1}, s{qA+1}, 0xffff\ns_mov_b32 s{qA+2}, {A_BLK}\ns_mov_b32 s{qA+3}, 0x20000",
     f"s_mov_b32 s{qW}, s{sWp}\ns_mov_b32 s{qW+1}, s{sWp+1}\ns_mov_b32 s{qW+2}, {W_SIZE}\ns_mov_b32 s{qW+3}, 0x20000",
     f"s_lshl2_add_u32 s6, s{qRb}, s{qP}\ns_lshl_b32 s6, s6, 1\ns_add_u32 s6, s6, s7\ns_mul_i32 s{qXo}, s6, 20480",
     f"s_lshl_b32 s6, s{qCb}, 1\ns_add_u32 s6, s6, s{sT2}\ns_mul_i32 s6, s6, 160\ns_add_u32 s{qXo}, s{qXo}, s6",
     f"s_xor_b32 s{qT0}, s{w}, s{qP}\ns_mul_i32 s{qT1}, s{w}, 6\ns_add_u32 s{qT1}, s{qT1}, s{qT0}\ns_sub_u32 s{qT1}, s{qT1}, 1",
     f"s_mul_i32 s{qT1}, s{qT1}, 10240\ns_cmp_eq_u32 s{qT0}, 0\ns_cselect_b32 s{qSo}, 0x100000, s{qT1}\ns_mov_b32 s{qNl}, 7",
    ]

def q_loads(slot):
    it = [f"s_add_u32 m0, s{qWm}, {slot*20480}"]
    for j in range(4):
        it.append(f"buffer_load_dwordx4 v{vL16}, s[{qW}:{qW+3}], s{qWo} offen offset:{j*1024} sc1 lds ; @put W2")
    it.append(f"s_add_u32 m0, s{qWm}, {slot*20480+4096}")
    it.append(f"buffer_load_dwordx4 v{vL16+1}, s[{qW}:{qW+3}], s{qWo} offen sc1 lds ; @put W2")
    for k in range(2):
        for rt in range(2):
            it.append(f"buffer_load_dwordx4 {ar(aA2+(slot*4+k*2+rt)*4,4)}, v{vL16+k}, s[{qA}:{qA+3}], s{qAo} offen offset:{rt*1024} sc1")
    it.append(f"s_add_u32 s{qWo}, s{qWo}, 81920\ns_add_u32 s{qAo}, s{qAo}, 8192")
    it.append(f"s_sub_u32 s{qNl}, s{qNl}, 1\ns_cmp_eq_u32 s{qNl}, 0\ns_cselect_b32 s{qWo}, s{qWs}, s{qWo}")
    it.append(f"s_cselect_b32 s{qAo}, s{qAs}, s{qAo}\ns_cselect_b32 s{qW+2}, s{qWe}, s{qW+2}\ns_cselect_b32 s{qA+2}, s{qAe}, s{qA+2}")
    return it

def gemm2(A, L, emit, stamp):
    ac, vT, vX, vZ = 64, 144, 168, 180
    srd(A, qX, pX, pX + 1, X_SIZE)
    srd(A, qO, pOut, pOut + 1, X_SIZE)
    A(f"v_and_b32 v{vT}, 15, v{vLane}")
    A(f"v_mul_u32_u24 v{vT}, 1280, v{vT}")
    A(f"v_lshrrev_b32 v{vT+1}, 4, v{vLane}")
    A(f"v_lshl_add_u32 v{vXo2}, v{vT+1}, 3, v{vT}")
    for i in range(4): A(f"v_mov_b32 v{vZ+i}, 0")
    for ct in range(5):
        A(f"buffer_load_dwordx2 {vr(vX+2*ct,2)}, v{vXo2}, s[{qX}:{qX+3}], s{qXo} offen offset:{ct*32}")
    def zero():
        for i in range(5): mf32(A, vr(ac + 16 * i, 16), vr(vZ, 4), vr(vZ, 4), "0")
    zero()
    A(f"v_mov_b32 v{vWr2}, v{vL16}")
    A(f"v_add_u32 v{vWr2+1}, 40960, v{vL16}")
    A(f"v_lshlrev_b32 v{vL8}, 3, v{vLane}")
    A(f"v_add_u32 v{vOwn}, {RING2}, v{vL16}")
    A(f"s_mov_b32 s{qN}, 0")
    A(f"s_mov_b32 s{qT0}, {hex((1<<3)|(1<<4)|(1<<7)|(1<<10)|(1<<22)|(1<<23))}")
    A(f"s_movk_i32 s{qT1}, {hex((1<<7)|(1<<8))}")
    def wread2(slot, f, buf):
        k, ct = f // 10, f % 10
        return f"ds_read_b128 {ar(aW2+buf*4,4)}, v{vWr2+slot//2} offset:{(slot%2)*20480+k*10240+ct*1024}"
    A(f"s_waitcnt vmcnt(23)")
    A("s_barrier ; @need W2 10")
    set_flag(A, 2, f"{L}f2")
    A(f"{L}f2:")
    stamp(7)
    for f in range(3): A(wread2(0, f, f))
    lq = LQ()
    for f in range(3): lq.issue(f)
    A(".p2align 6")
    A(f"{L}q:")
    for slot in range(4):
        ns = (slot + 1) % 4
        slots = spread(q_loads((slot + 3) % 4), 16)
        for f in range(20):
            k, ct = f // 10, f % 10
            lq.wait(A, [f])
            for r in range(2):
                rt = r if f % 2 == 0 else 1 - r
                mf16(A, vr(ac + (rt * 10 + ct) * 4, 4), ar(aW2 + (f % 4) * 4, 4), ar(aA2 + (slot * 4 + k * 2 + rt) * 4, 4))
                if r == 0 and f + 3 < 20:
                    A(wread2(slot, f + 3, (f + 3) % 4)); lq.issue(f + 3)
                if f == 18:
                    A(wread2(ns, r, r)); lq.issue(r)
                if f == 19 and r == 0:
                    A(wread2(ns, 2, 2)); lq.issue(2)
                if r == 1 and f < 16: emit(slots[f])
                if r == 0 and f == 17 and slot != 2: A(f"s_bitcmp1_b32 s{qT1}, s{qN}")
            if f == 17:
                if slot != 2:
                    A("s_waitcnt vmcnt(30) lgkmcnt(0)")
                    A(f"s_cbranch_scc1 {L}qw{slot}")
                    A("s_waitcnt vmcnt(18)")
                    A(f"{L}qw{slot}:")
                else: A("s_waitcnt vmcnt(18) lgkmcnt(0)")
                lq.clear()
                A("s_barrier ; @need W2 10")
            if f == 19:
                A(f"s_add_u32 s{qN}, s{qN}, 1")
        if slot:
            A(f"s_bitcmp1_b32 s{qT0}, s{qN}")
            A(f"s_cbranch_scc1 {L}qe{slot}")
            A(f"{L}qr{slot}:")
    A(f"s_branch {L}q")
    def send(kind):
        A(f"s_add_u32 s{sT0}, s{qSo}, {kind*30720}")
        A(f"s_cmp_lg_u32 s{sWave}, s{qP}")
        A(f"s_cbranch_scc1 {L}no{kind}")
        A("s_nop 1")
        for i in range(20): A(f"ds_write_b128 v{vOwn}, {vr(ac+4*i,4)} offset:{kind*20480+i*1024}")
        A("s_waitcnt lgkmcnt(0)")
        A(f"{L}no{kind}:")
        for c in range(4):
            b = vT + (c % 2) * 12
            for i in range(10): A(f"v_cvt_pk_bf16_f32 v{b+i}, v{ac+c*20+2*i}, v{ac+c*20+2*i+1}")
            if kind == 0:
                for i in range(10): A(f"v_min_u32 v{b+i}, -2, v{b+i}")
            if c: A(f"s_add_u32 s{sT0}, s{sT0}, 2560")
            A(f"buffer_store_dwordx4 {vr(b,4)}, v{vL16}, s[{qI}:{qI+3}], s{sT0} offen sc1 ; @put H")
            A(f"buffer_store_dwordx4 {vr(b+4,4)}, v{vL16}, s[{qI}:{qI+3}], s{sT0} offen offset:1024 sc1 ; @put H")
            A(f"buffer_store_dwordx2 {vr(b+8,2)}, v{vL8}, s[{qI}:{qI+3}], s{sT0} offen offset:2048 sc1 ; @put H")
    A(f"{L}qe1:")
    A(f"s_cmp_eq_u32 s{qN}, 22")
    A(f"s_cbranch_scc1 {L}qe1b")
    set_flag(A, 3, f"{L}qr1")
    A(f"s_branch {L}qr1")
    A(f"{L}qe1b:")
    flag_load(A, vPb, vAp)
    A(f"s_branch {L}qr1")
    A(f"{L}qe3:")
    A("s_waitcnt vmcnt(9)")
    flag_wait(A, f"{L}w2", 2, [(vPa, vAo)])
    stamp(8)
    A(f"s_branch {L}qr3")
    A(f"{L}qe2:")
    A(f"s_cmp_eq_u32 s{qN}, 23")
    A(f"s_cbranch_scc1 {L}qx")
    A(f"s_cmp_eq_u32 s{qN}, 7")
    A(f"s_cbranch_scc1 {L}qe2b")
    flag_load(A, vPa, vAo)
    A(f"s_branch {L}qr2")
    A(f"{L}qe2b:")
    stamp(9)
    send(1)
    zero()
    A("s_nop 7")
    A(f"s_branch {L}qr2")
    A(f"{L}qx:")
    stamp(10)
    A("s_waitcnt vmcnt(9)")
    flag_wait(A, f"{L}w3", 3, [(vPb, vAp)])
    S, U, IN, XR, E, T = 64, 84, 104, 184, 204, 224
    INU = 8
    A(f"s_mul_i32 s{sT0}, s{qP}, 61440")
    A(f"s_mul_i32 s{sT1}, s{sWave}, 2560")
    A(f"s_add_u32 s{qIn}, s{sT0}, s{sT1}")
    for sl in range(1, 6): A(f"s_add_u32 s{qIn+sl}, s{qIn}, {sl*10240}")
    def inreg(sl): return IN + sl * 10 if sl < 3 else (8, 44, 244)[sl - 3]
    def inload(sl):
        b = inreg(sl)
        A(f"buffer_load_dwordx4 {vr(b,4)}, v{vL16}, s[{qI}:{qI+3}], s{qIn+sl} offen sc1")
        A(f"buffer_load_dwordx4 {vr(b+4,4)}, v{vL16}, s[{qI}:{qI+3}], s{qIn+sl} offen offset:1024 sc1")
        A(f"buffer_load_dwordx2 {vr(b+8,2)}, v{vL8}, s[{qI}:{qI+3}], s{qIn+sl} offen offset:2048 sc1")
    for sl in (3, 4, 5): inload(sl)
    send(0)
    A(f"s_mul_i32 s{sT0}, s{sWave}, 5120")
    A(f"v_add_u32 v{vOwn}, s{sT0}, v{vOwn}")
    for sl in (0, 1, 2): inload(sl)
    A("s_barrier")
    for i in range(5): A(f"ds_read_b128 {vr(U+4*i,4)}, v{vOwn} offset:{20480+i*1024}")
    for i in range(5): A(f"ds_read_b128 {vr(S+4*i,4)}, v{vOwn} offset:{i*1024}")
    for i in range(10):
        A(f"v_lshlrev_b32 v{XR+2*i}, 16, v{vX+i}")
        A(f"v_and_b32 v{XR+2*i+1}, 0xffff0000, v{vX+i}")
    def addin(sl, dst):
        b = inreg(sl)
        for i in range(10):
            A(f"v_lshlrev_b32 v{T+2*i}, 16, v{b+i}")
            A(f"v_and_b32 v{T+2*i+1}, 0xffff0000, v{b+i}")
        for i in range(10): A(f"v_pk_add_f32 {vr(dst+2*i,2)}, {vr(dst+2*i,2)}, {vr(T+2*i,2)}")
    A(f"s_mov_b32 s{sT0}, {hex(f2u(-LOG2E))}")
    A("s_waitcnt vmcnt(21) lgkmcnt(0)"); addin(3, U)
    stamp(11)
    addin(4, U); addin(5, U)
    for i in range(20): A(f"v_mul_f32 v{E+i}, s{sT0}, v{U+i}")
    for i in range(20): A(f"v_exp_f32 v{E+i}, v{E+i}")
    for i in range(20): A(f"v_add_f32 v{E+i}, 1.0, v{E+i}")
    for i in range(20): A(f"v_rcp_f32 v{E+i}, v{E+i}")
    A(f"s_mov_b32 s{sT1}, 0")
    for i in range(10): A(f"v_pk_mul_f32 {vr(U+2*i,2)}, {vr(U+2*i,2)}, {vr(E+2*i,2)}")
    A(f"{L}sc:")
    A("s_waitcnt vmcnt(0)")
    for i in range(3): A(f"v_max3_u32 v{T+i}, v{IN+10*i}, v{IN+10*i+1}, v{IN+10*i+2}")
    for j in range(3):
        for i in range(3): A(f"v_max3_u32 v{T+i}, v{T+i}, v{IN+10*i+3+2*j}, v{IN+10*i+4+2*j}")
    A(f"v_max3_u32 v{T+3}, v{IN+9}, v{IN+19}, v{IN+29}")
    A(f"v_max3_u32 v{T}, v{T}, v{T+1}, v{T+2}")
    A(f"v_max_u32 v{T}, v{T}, v{T+3}")
    A(f"v_cmp_eq_u32 vcc, -1, v{T}")
    A("s_nop 3")
    A(f"s_cbranch_vccz {L}sr ; pollbr")
    A(f"s_add_u32 s{sT1}, s{sT1}, 1")
    A(f"s_cmp_ge_u32 s{sT1}, 0x40000")
    A(f"s_cbranch_scc1 {L}sr")
    for sl in range(3): inload(sl)
    A(f"s_branch {L}sc")
    A(f"{L}sr:")
    stamp(12)
    for sl in range(3): addin(sl, S)
    for i in range(10): A(f"v_pk_fma_f32 {vr(XR+2*i,2)}, {vr(S+2*i,2)}, {vr(U+2*i,2)}, {vr(XR+2*i,2)}")
    for i in range(10): A(f"v_cvt_pk_bf16_f32 v{vX+i}, v{XR+2*i}, v{XR+2*i+1}")
    for ct in range(5):
        A(f"buffer_store_dwordx2 {vr(vX+2*ct,2)}, v{vXo2}, s[{qO}:{qO+3}], s{qXo} offen offset:{ct*32}")
    stamp(13)

def gen_p1(A, name, stamps=False, code_bytes=29696):
    head(A, name)
    L = "p1_"
    A("s_cmp_ge_u32 s2, 256")
    A(f"s_cbranch_scc1 {L}end")
    A("s_load_dwordx16 s[64:79], s[0:1], 0")
    A("s_load_dwordx8 s[80:87], s[0:1], 64")
    A(f"s_memrealtime s[{sNo}:{sNo+1}]")
    if stamps: A("s_memtime s[94:95]")
    def stamp(i):
        if not stamps: return
        A(f"s_memtime s[96:97]")
        A(f"s_memrealtime s[98:99]")
        A("s_waitcnt lgkmcnt(0)")
        A(f"v_mov_b32 v{vTm+18}, s96"); A(f"v_mov_b32 v{vTm+19}, s98")
        A(f"s_lshl_b32 s96, s2, 2"); A(f"s_add_u32 s96, s96, s{sWave}"); A("s_lshl_b32 s96, s96, 7")
        A(f"v_mov_b32 v{vZero}, s96")
        if i == 0: A(f"v_mov_b32 v{vTm+16}, s94")
        A(f"s_add_u32 s96, s{pWs}, 0x3100000"); A(f"s_addc_u32 s97, s{pWs+1}, 0")
        A(f"global_store_dwordx2 v{vZero}, {vr(vTm+18,2)}, s[96:97] offset:{i*8}")
        if i == 0: A(f"global_store_dword v{vZero}, v{vTm+16}, s[96:97] offset:120")
    t = vTm
    def emit(items):
        for it in items:
            if "lds" in it and A.lines[-1].split()[1].startswith("m0"): A("s_nop 0")
            A(it)
    A(f"v_and_b32 v{vLane}, 63, v0")
    A("v_lshrrev_b32 v0, 6, v0")
    A("s_and_b32 s6, s2, 7")
    A(f"v_readfirstlane_b32 s{sWave}, v0")
    A(f"s_lshr_b32 s{sT0}, s2, 3")
    A(f"s_lshr_b32 s{sRb}, s{sT0}, 2")
    A(f"s_and_b32 s{sT1}, s{sT0}, 3")
    A(f"s_lshl2_add_u32 s{sHead}, s6, s{sT1}")
    A(f"s_sub_u32 s{sT2}, s6, s{sRb}")
    A(f"s_add_u32 s{sT2}, s{sT2}, 3")
    A(f"s_and_b32 s{sT2}, s{sT2}, 7")
    A(f"s_mul_i32 s{sFb}, s6, 3")
    A(f"s_add_u32 s{sFb}, s{sFb}, s{sT1}")
    A(f"s_add_u32 s7, s{sT2}, 24")
    A(f"s_cmp_eq_u32 s{sT1}, 3")
    A(f"s_cselect_b32 s{sFb}, s7, s{sFb}")
    A(f"s_cmp_lt_u32 s{sFb}, 27")
    A(f"s_cselect_b32 s{sHasF}, 1, 0")
    A(f"s_sub_u32 s{sProd}, s{sFb}, 27")
    A(f"v_lshrrev_b32 v{t+7}, 3, v{vLane}")
    A(f"v_and_b32 v{t+6}, 7, v{vLane}")
    A(f"v_lshrrev_b32 v{t+12}, 4, v{vLane}")
    A(f"v_xor_b32 v{t+13}, v{t+6}, v{t+12}")
    A(f"v_lshlrev_b32 v{t+13}, 4, v{t+13}")
    A(f"s_movk_i32 s6, 1280")
    A(f"v_mad_u32_u24 v{vXd}, v{t+7}, s6, v{t+13}")
    A(f"v_xor_b32 v{t+13}, 64, v{vXd}")
    for j in range(1, 8):
        A(f"v_add_u32 v{vXd+j}, {j*10240-(j%4)*1024}, v{(t+13) if j&1 else vXd}")
    A(f"s_lshl2_add_u32 s6, s{sRb}, s{sWave}")
    A(f"s_mul_i32 s{sXo}, s6, {64*1280}")
    A(f"s_mul_i32 s{sKVo}, s6, {A_BLK}")
    A(f"s_lshl_b32 s{sM0X}, s{sWave}, 13")
    A(f"s_add_u32 s{sM0X}, s{sM0X}, {R1}")
    A(f"s_mov_b32 s{sTail}, 0")
    A(f"s_and_b32 s6, s{sWave}, 1")
    A(f"s_lshl_b32 s7, s6, 2")
    A(f"v_add_u32 v{t+13}, s7, v{t+12}")
    A(f"v_lshlrev_b32 v{t+13}, 1, v{t+13}")
    A(f"v_and_b32 v{t+14}, 15, v{vLane}")
    A(f"v_xor_b32 v{t+13}, v{t+13}, v{t+14}")
    A(f"v_lshlrev_b32 v{t+13}, 4, v{t+13}")
    A(f"s_lshl_b32 s7, s{sWave}, 3")
    A(f"v_add_u32 v{t+15}, s7, v{t+12}")
    A(f"v_lshl_add_u32 v{vWqd}, v{t+15}, 13, v{t+13}")
    A(f"v_add_u32 v{vWqd+1}, {4*8192-1024}, v{vWqd}")
    A(f"v_bfe_u32 v{t+13}, v{vLane}, 4, 1")
    A(f"s_lshl_b32 s6, s6, 1")
    A(f"v_add_u32 v{t+13}, s6, v{t+13}")
    A(f"v_lshlrev_b32 v{t+13}, 1, v{t+13}")
    A(f"v_xor_b32 v{t+13}, v{t+13}, v{t+6}")
    A(f"v_lshlrev_b32 v{t+13}, 4, v{t+13}")
    A(f"v_add_u32 v{t+15}, s7, v{t+7}")
    A(f"s_movk_i32 s6, 3456")
    A(f"v_mad_u32_u24 v{vW13d}, v{t+15}, s6, v{t+13}")
    A(f"s_lshl_b32 s{sWqo}, s{sHead}, 8")
    A(f"s_lshl_b32 s{sW13o}, s{sFb}, 7")
    A(f"s_mov_b32 s{sSlot}, 0")
    A("s_waitcnt lgkmcnt(0)")
    A(f"s_lshl_b32 s{sC0}, s{sWave}, 12")
    A(f"s_add_u32 s{sC0}, s{sC0}, {R3}")
    A(f"s_mov_b32 s{sM0W}, s{sC0}")
    srd(A, sX, pX, pX + 1, X_SIZE)
    srd(A, sWq, pWq, pWq + 1, 640 * 8192)
    for (d, p, sh) in ((sW1, pW1, 2048), (sW3, pW3, 3072)):
        A(f"s_sub_u32 s{d}, s{p}, {sh}")
        A(f"s_subb_u32 s{d+1}, s{p+1}, 0")
        A(f"s_and_b32 s{d+1}, s{d+1}, 0xffff")
        A(f"s_mul_i32 s{d+2}, s{sHasF}, {640*3456+sh}")
        A(f"s_mov_b32 s{d+3}, 0x20000")
    srd(A, sX2, pX, pX + 1, X_SIZE)
    A(f"s_movk_i32 s{sM0d}, 4096")
    A(f"s_movk_i32 s{sXst}, 128")
    A(f"s_mov_b32 s{sM0t}, 0x18000")
    RAW, UNP = 64, 96
    A(f"v_mov_b32 v{t+5}, 0")
    A(f"s_cmp_ge_u32 s{sProd}, 4")
    A(f"s_cbranch_scc1 {L}np1")
    A(f"v_lshrrev_b32 v{t+5}, 2, v{vLane}")
    A(f"v_and_b32 v{t+13}, 3, v{vLane}")
    A(f"v_lshlrev_b32 v{t+13}, 4, v{t+13}")
    A(f"s_movk_i32 s6, 1280")
    A(f"v_mad_u32_u24 v{t+13}, v{t+5}, s6, v{t+13}")
    A(f"s_lshl2_add_u32 s6, s{sRb}, s{sProd}")
    A(f"s_lshl2_add_u32 s6, s6, s{sWave}")
    A(f"s_lshl_b32 s7, s6, 8")
    A(f"v_lshl_add_u32 v{t+5}, v{t+5}, 4, s7")
    A(f"s_mul_i32 s6, s6, {16*1280}")
    for i in range(20):
        A(f"buffer_load_dwordx4 {vr(RAW+4*i,4)}, v{t+13}, s[{sX}:{sX+3}], s6 offen offset:{i*64}")
    A(f"{L}np1:")
    emit(dma_w(True)); emit(dma_x(0)); emit(dma_x(1))
    stamp(0)
    A("s_getpc_b64 s[6:7]")
    A(f"s_and_b32 s{sT0}, s{sT0}, 7")
    A(f"s_lshl2_add_u32 s{sT0}, s{sT0}, s{sWave}")
    A(f"s_lshl_b32 s{sT0}, s{sT0}, 10")
    A(f"s_min_u32 s{sT0}, s{sT0}, {code_bytes-1024}")
    A(f"v_lshl_add_u32 v{vTm+4}, v{vLane}, 4, s{sT0}")
    A(f"global_load_dwordx4 {vr(vTm+8,4)}, v{vTm+4}, s[6:7]")
    emit(dma_w(True)); emit(dma_x(0)); emit(dma_w(True))
    A(f"s_add_u32 s{sA}, s{pWs}, s{sKVo}")
    A(f"s_addc_u32 s{sA+1}, s{pWs+1}, 0")
    srd(A, sA, sA, sA + 1, A_BLK)
    A(f"s_add_u32 s{sWp}, s{pWs}, {W_OFF}")
    A(f"s_addc_u32 s{sWp+1}, s{pWs+1}, 0")
    srd(A, sWp, sWp, sWp + 1, W_SIZE)
    A(f"s_lshl2_add_u32 s{sT1}, s{sHead}, s{sWave}")
    A(f"s_mul_i32 s{sU}, s{sT1}, 10")
    A(f"s_lshl_b32 s{sT2}, s{sRb}, 1")
    A(f"s_add_u32 s{sU}, s{sU}, s{sT2}")
    A(f"s_mul_i32 s{sT1}, s{sT1}, 40960")
    A(f"s_lshl_b32 s{sT2}, s{sRb}, 8")
    A(f"s_add_u32 s{sPo}, s{sT1}, s{sT2}")
    srd(A, sSrc, pWo, pWo + 1, 4096 * 1280)
    A(f"s_cmp_lt_u32 s{sRb}, 5")
    A(f"s_cselect_b32 s{sSrc+2}, s{sSrc+2}, 0")
    A(f"s_cselect_b32 s{sU}, s{sU}, 2000")
    A(f"v_mov_b32 v{t+6}, 0")
    A(f"s_or_b32 s6, s2, s{sWave}")
    A(f"s_cbranch_scc1 {L}ntag")
    A(f"s_lshl_b64 s[6:7], s[{sNo}:{sNo+1}], 2")
    A(f"s_or_b32 s7, s7, 0x80000000")
    A(f"v_mov_b32 v{t+14}, s6")
    A(f"v_mov_b32 v{t+15}, s7")
    A("s_mov_b64 exec, 1")
    A(f"global_store_dwordx2 v{t+6}, {vr(t+14,2)}, s[{pDbg}:{pDbg+1}] offset:128 sc1")
    A("s_mov_b64 exec, -1")
    A(f"{L}ntag:")
    A(f"v_and_b32 v{t+14}, 15, v{vLane}")
    A(f"v_lshrrev_b32 v{t+13}, 1, v{t+14}")
    A(f"v_xor_b32 v{t+13}, v{t+13}, v{t+12}")
    A(f"v_lshlrev_b32 v{t+13}, 4, v{t+13}")
    A(f"v_lshl_add_u32 v{t+13}, v{t+14}, 7, v{t+13}")
    A(f"s_lshl_b32 s6, s{sWave}, 13")
    A(f"s_add_u32 s6, s6, {R1}")
    A(f"v_add_u32 v{vXr}, s6, v{t+13}")
    A(f"v_xor_b32 v{vXr+1}, 64, v{vXr}")
    A(f"v_lshlrev_b32 v{t+3}, 4, v{t+14}")
    A(f"v_bfe_u32 v{t+14}, v{vLane}, 2, 2")
    A(f"v_and_b32 v{t+15}, 3, v{vLane}")
    A(f"v_lshlrev_b32 v{t+15}, 3, v{t+15}")
    A(f"v_lshl_add_u32 v{t+15}, v{t+12}, 12, v{t+15}")
    A(f"v_add_u32 v{t+15}, {R3}, v{t+15}")
    A(f"v_bfe_u32 v{t+16}, v{vLane}, 4, 1")
    A(f"v_lshl_add_u32 v{t+13}, v{t+16}, 2, v{t+14}")
    A(f"s_lshl_b32 s6, s{sWave}, 1")
    A(f"v_xor_b32 v{t+13}, s6, v{t+13}")
    A(f"v_lshl_add_u32 v{t+13}, v{t+13}, 5, v{t+15}")
    A(f"v_lshl_add_u32 v{vWqr}, v{t+14}, 8, v{t+13}")
    for p in range(1, 8): A(f"v_xor_b32 v{vWqr+p}, {32*p}, v{vWqr}")
    A(f"v_lshrrev_b32 v{t+13}, 1, v{t+14}")
    A(f"v_lshl_add_u32 v{t+13}, v{t+16}, 1, v{t+13}")
    A(f"v_xor_b32 v{t+13}, s{sWave}, v{t+13}")
    A(f"v_lshl_add_u32 v{t+13}, v{t+13}, 5, v{t+15}")
    A(f"v_lshl_add_u32 v{vW13r}, v{t+14}, 7, v{t+13}")
    for p in range(1, 4): A(f"v_xor_b32 v{vW13r+p}, {32*p}, v{vW13r}")
    srd(A, sK, pK, pK + 1, 16777216)
    srd(A, sV, pV, pV + 1, 16777216)
    A(f"s_add_u32 s{sSt}, s{pWs}, {ST_OFF}")
    A(f"s_addc_u32 s{sSt+1}, s{pWs+1}, 0")
    srd(A, sSt, sSt, sSt + 1, 2048 * 16)
    A(f"s_lshl_b32 s6, s{sRb}, 2")
    A(f"v_mov_b32 v{t+2}, s6")
    A(f"s_movk_i32 s{sMask}, {EVMASK}")
    A(f"s_mov_b32 s{sD}, 0")
    A(f"s_cmp_ge_u32 s{sProd}, 4")
    A(f"s_cbranch_scc1 {L}np2")
    A("s_waitcnt vmcnt(25)")
    for i in range(79, -1, -1):
        A(f"v_and_b32 v{UNP+2*i+1}, 0xffff0000, v{RAW+i}")
        A(f"v_lshlrev_b32 v{UNP+2*i}, 16, v{RAW+i}")
    a = 64
    def red(first):
        for i in range(80):
            first(i)
        A(f"v_pk_add_f32 {vr(a,2)}, {vr(a,2)}, {vr(a+2,2)}")
        A(f"v_pk_add_f32 {vr(a+4,2)}, {vr(a+4,2)}, {vr(a+6,2)}")
        A(f"v_pk_add_f32 {vr(a,2)}, {vr(a,2)}, {vr(a+4,2)}")
        A(f"v_add_f32 v{a}, v{a}, v{a+1}")
        for qp in ("[1,0,3,2]", "[2,3,0,1]"):
            A("s_nop 1")
            A(f"v_add_f32_dpp v{a}, v{a}, v{a} quad_perm:{qp} row_mask:0xf bank_mask:0xf")
    def f1(i):
        d = vr(a + 2 * (i % 4), 2)
        if i < 4: A(f"v_pk_add_f32 {d}, {vr(UNP+2*i,2)}, {vr(UNP+2*i+8,2)}")
        elif i >= 8: A(f"v_pk_add_f32 {d}, {d}, {vr(UNP+2*i,2)}")
    red(f1)
    o = 72
    A(f"v_mul_f32 v{o}, {hex(f2u(-1.0/640))}, v{a}")
    for i in range(80): A(f"v_pk_add_f32 {vr(UNP+2*i,2)}, {vr(UNP+2*i,2)}, {vr(o,2)} op_sel_hi:[1,0]")
    def f2(i):
        d = vr(a + 2 * (i % 4), 2); x_ = vr(UNP + 2 * i, 2)
        if i < 4: A(f"v_pk_mul_f32 {d}, {x_}, {x_}")
        else: A(f"v_pk_fma_f32 {d}, {x_}, {x_}, {d}")
    red(f2)
    A(f"v_mov_b32 v{o+3}, {hex(f2u(1e-5))}")
    A(f"v_fmac_f32 v{o+3}, {hex(f2u(1.0/640))}, v{a}")
    A(f"v_mov_b32 v{o+2}, v{o+3}")
    A(f"v_rsq_f32 v{o+1}, v{o+3}")
    A("s_mov_b32 exec_lo, 0x11111111")
    A("s_mov_b32 exec_hi, 0x11111111")
    A(f"buffer_store_dwordx4 {vr(o,4)}, v{t+5}, s[{sSt}:{sSt+3}], 0 offen sc1 ; @put S")
    A("s_mov_b64 exec, -1")
    A("s_waitcnt vmcnt(0)")
    A(f"{L}np2:")
    for i in range(4): A(f"v_mov_b32 v{vSt+i}, 0")
    A(f"v_mov_b32 v{t+13}, 0x3f803f80")
    for i in range(4): A(f"v_accvgpr_write_b32 a{aOne+i}, v{t+13}")
    z = vr(vSt, 4)
    for i in range(8): mf32(A, vr(vAcc + 16 * i, 16), z, z, "0")
    for i in range(9): mf32(A, ar(16 * i, 16), z, z, "0")
    A(f"s_waitcnt vmcnt(12)")
    A("s_barrier")
    A(f"s_lshl2_add_u32 s6, s{sProd}, s{sWave}")
    A(f"s_and_b32 s6, s6, 0xfffffff3")
    A(f"s_cbranch_scc1 {L}np3")
    A(f"v_mov_b32 v{t+1}, 1")
    A(f"v_add_u32 v{t+7}, s{sProd}, v{t+2}")
    A(f"s_mov_b64 exec, 1")
    A(f"global_store_byte v{t+7}, v{t+1}, s[{pDbg}:{pDbg+1}] sc1")
    A(f"s_mov_b64 exec, -1")
    A(f"{L}np3:")
    stamp(1)
    for rt in range(4): A(xread(0, 0, rt))
    A(f"s_cmp_eq_u32 s{sHasF}, 0")
    fr = frag_list(True)
    for f in range(3):
        for sec in range(2): A(wread(fr[f], 0, sec, f))
    A("s_waitcnt lgkmcnt(6)")
    if FINE: A("s_mov_b32 s7, 0")
    A(f"s_cbranch_scc1 {L}gn")
    gemm_loop(A, True, L + "gf")
    A(f"s_branch {L}gdone")
    gemm_events(A, L + "gf")
    gemm_events(A, L + "gn")
    gemm_loop(A, False, L + "gn")
    A(f"{L}gdone:")
    if FINE:
        A(f"s_lshl_b32 s96, s2, 2"); A(f"s_add_u32 s96, s96, s{sWave}"); A("s_lshl_b32 s96, s96, 10")
        A(f"v_lshl_add_u32 v{vTm+12}, v{vLane}, 2, s96")
        A(f"s_add_u32 s100, s{pWs}, 0x3200000"); A(f"s_addc_u32 s101, s{pWs+1}, 0")
        A(f"global_store_dword v{vTm+12}, v{vFin}, s[100:101]")
        A(f"global_store_dword v{vTm+12}, v{vFin+1}, s[100:101] offset:256")
        A(f"global_store_dword v{vTm+12}, v{vFin-1}, s[100:101] offset:512")
    stamp(2)
    A(f"v_lshrrev_b32 v{t+12}, 4, v{vLane}")
    A(f"v_lshlrev_b32 v{t+12}, 4, v{t+12}")
    A(f"s_lshl_b32 s6, s{sWave}, 7")
    A(f"s_add_u32 s6, s6, {CS}")
    A(f"v_add_u32 v{t+8}, s6, v{t+12}")
    A(f"s_lshl_b32 s6, s{sWave}, 6")
    A(f"s_add_u32 s6, s6, {CS+512}")
    A(f"v_add_u32 v{t+9}, s6, v{t+12}")
    A("s_mov_b32 exec_lo, 0x00010001")
    A("s_mov_b32 exec_hi, 0x00010001")
    A(f"ds_write_b128 v{t+8}, {ar(aCs,4)}")
    A(f"ds_write_b128 v{t+8}, {ar(aCs+4,4)} offset:64")
    A(f"ds_write_b128 v{t+9}, {ar(aCs+8,4)}")
    A(f"ds_write_b128 v{t+9}, {ar(aCs+12,4)} offset:256")
    A("s_mov_b64 exec, -1")
    for j in range(8): A(f"v_mov_b32 v{vKd+j}, v{vXd+j}")
    A(f"s_mov_b32 s{sKVo}, s{sXo}")
    A(f"s_mov_b32 s{sKVm}, s{sM0X}")
    A(f"v_lshlrev_b32 v{t+10}, 4, v{vLane}")
    A(f"s_and_b32 s{qP}, s2, 3")
    A(f"s_lshr_b32 s{qCb}, s2, 6")
    A(f"s_bfe_u32 s{qRb}, s2, 0x30003")
    A(f"s_and_b32 s6, s2, 4")
    A(f"s_lshl_b32 s6, s6, 1")
    A(f"s_add_u32 s{qRb}, s{qRb}, s6")
    A(f"s_lshl2_add_u32 s{qG}, s{qRb}, s{qCb}")
    A(f"s_mul_i32 s6, s{qG}, {IB_G}")
    A(f"s_add_u32 s6, s6, {IB_OFF}")
    A(f"s_add_u32 s{qI}, s{pWs}, s6")
    A(f"s_addc_u32 s{qI+1}, s{pWs+1}, 0")
    srd(A, qI, qI, qI + 1, IB_G)
    vWs = t
    wp_src_voff(A, vWs)
    A("s_waitcnt lgkmcnt(0)")
    A("s_barrier")
    kvadv = [f"s_add_u32 s{sKVo}, s{sKVo}, 16384\ns_add_u32 s{sKVm}, s{sKVm}, 32768"]
    def kvq(): return kv_dma() + kvadv
    csb = [vKr, vKr + 4, vVr + 0]
    lq = LQ()
    def csread_q(p):
        A(f"v_xor_b32 v{t+11}, {64*p}, v{t+8}")
        A(f"ds_read_b128 {vr(csb[p%3],4)}, v{t+11}"); lq.issue(("c", p))
    csread_q(0); csread_q(1)
    wo_dma = []
    for su in range(2):
        wo_dma.append(f"s_lshl_b32 s6, s{sWave}, 13\ns_add_u32 m0, s6, {R4+su*4096}")
        wo_dma += [f"buffer_load_dwordx4 v{vWs+4*su+j}, s[{sSrc}:{sSrc+3}], s{sPo} offen offset:{j*1024} lds ; @put P" for j in range(4)]
    kq = spread([f"s_add_u32 m0, s{sKVm}, 16384"] + kv_dma()[6:] + kvadv + wo_dma, 24)
    for rt in range(4):
        q = vSt + 4 * rt
        A(f"v_mul_f32 v{q+3}, {hex(f2u(LOG2E/128**0.5))}, v{q+1}")
        A(f"v_mul_f32 v{q+1}, {hex(f2u(-LOG2E))}, v{q+1}")
    z = vr(vTm + 12, 4)
    for i in range(4): A(f"v_mov_b32 v{vTm+12+i}, 0")
    for p in range(8):
        if p + 2 < 8: csread_q(p + 2)
        lq.wait(A, [("c", p)])
        c = csb[p % 3]
        for rt in range(4):
            d = vAcc + (p * 4 + rt) * 4; q = vSt + 4 * rt
            for h in range(2):
                A(f"v_pk_fma_f32 {vr(d+2*h,2)}, {vr(c+2*h,2)}, {vr(q,2)}, {vr(d+2*h,2)} op_sel_hi:[1,0,1]")
        mf32(A, ar(aO + 16 * p, 16), z, z, "0")
        emit(kq[3*p])
        for rt in range(4):
            d = vAcc + (p * 4 + rt) * 4; q = vSt + 4 * rt
            for h in range(2):
                A(f"v_pk_mul_f32 {vr(d+2*h,2)}, {vr(d+2*h,2)}, {vr(q+2,2)} op_sel:[0,1]")
        emit(kq[3*p+1])
        for rt in range(4):
            d = vAcc + (p * 4 + rt) * 4
            f = vQ + ((rt // 2) * 8 + p) * 4 + (rt & 1) * 2
            for h in range(2): A(f"v_cvt_pk_bf16_f32 v{f+h}, v{d+2*h}, v{d+2*h+1}")
        emit(kq[3*p+2])
        if p > 0:
            for qt in range(2):
                f = vQ + (qt * 8 + p - 1) * 4
                for h in range(2): A(f"v_permlane16_swap_b32 v{f+h}, v{f+2+h}")
    A("s_nop 0")
    for qt in range(2):
        f = vQ + (qt * 8 + 7) * 4
        for h in range(2): A(f"v_permlane16_swap_b32 v{f+h}, v{f+2+h}")
    stamp(3)
    A(f"s_cmp_eq_u32 s{sHasF}, 0")
    A(f"s_cbranch_scc1 {L}noffn")
    def hst(pi, rt): return f"buffer_store_dwordx4 {vr(vAcc+80+pi*16+rt*4,4)}, v{t+10}, s[{sA}:{sA+3}], s{qT0+pi} offen offset:{rt*1024} sc1"
    T = vAcc; H = vAcc + 80; C = vAcc + 48
    for p in range(4):
        A(f"v_xor_b32 v{t+11}, {64*p}, v{t+9}")
        A(f"ds_read_b128 {vr(C+8*p,4)}, v{t+11}")
        A(f"ds_read_b128 {vr(C+8*p+4,4)}, v{t+11} offset:256")
    A(f"s_lshr_b32 s7, s{sWave}, 1")
    A(f"s_lshl_b32 s6, s{sFb}, 1")
    A(f"s_add_u32 s6, s6, 128")
    A(f"s_add_u32 s{sT0}, s6, s7")
    A(f"s_xor_b32 s7, s7, 1")
    A(f"s_add_u32 s{sT1}, s6, s7")
    A(f"s_lshl_b32 s{qT0}, s{sT0}, 12")
    A(f"s_lshl_b32 s{qT1}, s{sT1}, 12")
    A("s_waitcnt lgkmcnt(0)")
    kq = spread(kvq(), 11) + [[]] * 13
    for p in range(4):
        for r2 in range(2):
            g_ = 3 * (p * 2 + r2)
            G = [(2 * r2 + i, T + 12 * i + 24 * ((p * 2 + r2) & 1)) for i in range(2)]
            for rt, b in G:
                for i in range(4): A(f"v_accvgpr_read_b32 v{b+i}, a{aG+(p*4+rt)*4+i}")
                for i in range(4): A(f"v_accvgpr_read_b32 v{b+4+i}, a{aUp+(p*4+rt)*4+i}")
            emit(kq[g_])
            for rt, b in G:
                for h in range(4):
                    A(f"v_pk_fma_f32 {vr(b+2*h,2)}, {vr(C+8*p+2*h,2)}, {vr(vSt+4*rt,2)}, {vr(b+2*h,2)} op_sel_hi:[1,0,1]")
            for rt, b in G:
                for h in range(2): A(f"v_pk_mul_f32 {vr(b+8+2*h,2)}, {vr(b+2*h,2)}, {vr(vSt+4*rt,2)} op_sel:[0,1]")
            for rt, b in G:
                for i in range(4): A(f"v_exp_f32 v{b+8+i}, v{b+8+i}")
            emit(kq[g_+1])
            for rt, b in G:
                for h in range(2): A(f"v_pk_mul_f32 {vr(b+2*h,2)}, {vr(b+2*h,2)}, {vr(b+4+2*h,2)}")
            for rt, b in G:
                for h in range(2):
                    A(f"v_pk_fma_f32 {vr(b+8+2*h,2)}, {vr(b+8+2*h,2)}, {vr(vSt+4*rt+2,2)}, {vr(vSt+4*rt+2,2)} op_sel_hi:[1,0,0]")
            for rt, b in G:
                for i in range(4): A(f"v_rcp_f32 v{b+8+i}, v{b+8+i}")
            emit(kq[g_+2])
            if p >= 2: A(hst(0, (p - 2) * 2 + r2))
            for n, (rt, b) in enumerate(G):
                for h in range(2): A(f"v_pk_mul_f32 {vr(b+2*h,2)}, {vr(b+2*h,2)}, {vr(b+8+2*h,2)}")
            for rt, b in G:
                for h in range(2): A(f"v_cvt_pk_bf16_f32 v{H+(p//2)*16+rt*4+(p&1)*2+h}, v{b+2*h}, v{b+2*h+1}")
        if p & 1:
            pi = p // 2
            A(f"s_bitcmp1_b32 s{sWave}, 0")
            A(f"s_cbranch_scc0 {L}nsw{pi}")
            for rt in range(4):
                for h in range(2): A(f"v_swap_b32 v{H+pi*16+rt*4+h}, v{H+pi*16+rt*4+2+h}")
            A(f"{L}nsw{pi}:")
    A(f"s_branch {L}ffnd")
    A(f"{L}noffn:")
    emit(kvq())
    A(f"s_mov_b32 s{qT1}, 0x1000000")
    A("s_barrier")
    srd(A, qA, pW2, pW2 + 1, 1728 * 1280)
    wp_src_voff(A, vAcc)
    wp_addr(A, 13)
    A(f"s_mul_i32 s{sT2}, s{sRb}, 5")
    A(f"s_add_u32 s{sT2}, s{sT2}, s{sProd}")
    A(f"s_lshl2_add_u32 s{sT2}, s{sT2}, s{sWave}")
    A(f"{L}w2j:")
    A(f"s_mul_hi_u32 s{sT0}, s{sT2}, 0x33333334")
    A(f"s_mul_i32 s{sT1}, s{sT0}, 5")
    A(f"s_sub_u32 s{sT1}, s{sT2}, s{sT1}")
    A(f"s_mul_i32 s7, s{sT0}, 40960")
    A(f"s_lshl_b32 s6, s{sT1}, 8")
    A(f"s_add_u32 s{sT0}, s7, s6")
    A(f"s_lshl_b32 s6, s{sT1}, 13")
    A(f"s_add_u32 s7, s7, s6")
    A(f"s_add_u32 s{sT1}, s7, {128*40960}")
    A(f"s_lshl_b32 s6, s{sWave}, 13")
    for su in range(2):
        A(f"s_add_u32 m0, s6, {R3+su*4096}")
        A("s_nop 0")
        for j in range(4): A(f"buffer_load_dwordx4 v{vAcc+4*su+j}, s[{qA}:{qA+3}], s{sT0} offen offset:{j*1024} lds")
    A("s_waitcnt vmcnt(0)")
    wp_reads(A, 4096)
    A("s_waitcnt lgkmcnt(0)")
    wp_stores(A, sT1)
    A(f"s_add_u32 s{sT2}, s{sT2}, 160")
    A(f"s_cmp_lt_u32 s{sT2}, 270")
    A(f"s_cbranch_scc1 {L}w2j")
    A(f"{L}ffnd:")
    for i in range(4): A(f"v_mov_b32 v{vOnes+i}, -1")
    A(f"s_mul_i32 s6, s{qP}, 61440")
    A(f"s_mul_i32 s7, s{sWave}, 7680")
    A(f"s_min_u32 s7, s7, 22528")
    A(f"s_add_u32 s{sSen}, s6, s7")
    A(f"s_lshl_b32 s{sWpO}, s{sU}, 12")
    wp_addr(A, 13, reg=R4, n=1, dst=vWpB)
    A(f"v_add_u32 v{vL16+1}, 4096, v{vL16}")
    A(f"s_lshl_b32 s6, s{sRb}, 5")
    A(f"s_add_u32 s7, s6, s{sHead}")
    A(f"s_lshl_b32 s7, s7, 7")
    A(f"v_mov_b32 v{vFo}, s7")
    A(f"v_and_b32 v{vAp}, 3, v{vLane}")
    A(f"v_lshlrev_b32 v{vAp}, 2, v{vAp}")
    A(f"s_and_b32 s7, s{sHead}, 0x13")
    A(f"s_add_u32 s7, s7, s6")
    A(f"v_add_lshl_u32 v{vAp}, v{vAp}, s7, 7")
    A(f"s_lshr_b32 s7, s{qRb}, 1")
    A(f"s_lshl_b32 s6, s7, 5")
    A(f"v_add_lshl_u32 v{vAa}, v{vLane}, s6, 7")
    A(f"v_cmp_gt_u32 vcc, 32, v{vLane}")
    A(f"v_lshlrev_b32 v{vAb}, 2, v{vLane}")
    A(f"v_add_lshl_u32 v{vAb}, v{vAb}, 3, 7")
    A(f"v_cndmask_b32 v{vAa}, v{vAp}, v{vAa}, vcc")
    A(f"v_bfe_u32 v{vAo}, v{vLane}, 3, 1")
    A(f"v_add_u32 v{vAo}, s{qCb}, v{vAo}")
    A(f"v_cmp_gt_u32 vcc, 16, v{vLane}")
    A(f"v_mov_b32 v{vFv}, s7")
    A(f"s_lshl_b32 s6, s{qP}, 3")
    A(f"v_cndmask_b32 v{vAo}, v{vFv}, v{vAo}, vcc")
    A(f"v_and_b32 v{vFv}, 7, v{vLane}")
    A(f"v_add_u32 v{vFv}, s6, v{vFv}")
    A(f"v_lshl_add_u32 v{vAo}, v{vAo}, 5, v{vFv}")
    A(f"v_lshlrev_b32 v{vAo}, 7, v{vAo}")
    stamp(4)
    A(f"s_mov_b32 s{sT1}, {R0}")
    kv_addr(A, sT1)
    A(f"v_mov_b32 v{vL}, 0")
    A(f"v_mov_b32 v{vL+1}, 0")
    A(f"s_mov_b32 s{sT}, 0")
    A(f"s_mov_b32 s{sC0}, 32768")
    A(f"s_movk_i32 s{sTail}, 0x24")
    A(f"s_mov_b32 s{sD}, 0x1ffff")
    A("s_waitcnt vmcnt(12)")
    A("s_barrier")
    lq = LQ()
    for p in range(3):
        A(kread(p, 0, p)); lq.issue(("f", 16 + p))
    attn_seg(A, lq, 2, {33 + 4 * i: [hst(1, i)] for i in range(4)}, sm_lo=0, sm_hi=0, look=[2])
    for p in range(3):
        A(kread(p, 1, p)); lq.issue(("f", p))
    A("s_nop 7")
    for e in range(10):
        for x in sm_exp(0, e): A(x)
        if e:
            for x in sm_post(0, e - 1): A(x)
    assert XP or lq.q == [("f", 0), ("f", 1), ("f", 2)]
    dm = kv_dma()
    ex = {}
    for p in range(8):
        ex.setdefault(max(2 * (p - 3) + 1, 1) if p >= 3 else 2 * p, []).append(f"v_add_u32 v{vKr+p}, s{sDelta}, v{vKr+p}")
    for dt in range(4):
        ex.setdefault(2 * (28 + dt - 3) + 2, []).append(f"v_add_u32 v{vVr+dt}, s{sDelta}, v{vVr+dt}")
    ex[(26, "pre")] = ["s_waitcnt vmcnt(11)", "s_barrier"]
    if "fine2" in XP:
        ex[(26, "pre")] = ["s_memtime s[96:97]", "s_waitcnt lgkmcnt(0)", "s_waitcnt vmcnt(11)", "s_memtime s[98:99]", "s_waitcnt lgkmcnt(0)", "s_barrier",
                           "s_memtime s[6:7]", "s_waitcnt lgkmcnt(0)", f"s_mov_b32 m0, s{sT}", "v_writelane_b32 v224, s96, m0", "v_writelane_b32 v225, s98, m0", "v_writelane_b32 v226, s6, m0"]
    for i, sl in enumerate([32, 33, 37, 41, 45, 47, 49, 53, 57, 61]): ex.setdefault(sl, []).append(dm[i])
    if "nodma" in XP:
        for k_ in list(ex):
            if not isinstance(k_, tuple): ex[k_] = [x for x in ex[k_] if "lds" not in x and "m0" not in x]
    if "nobar" in XP: ex[(26, "pre")] = []
    ex.setdefault(62, []).append(f"s_add_u32 s{sKVo}, s{sKVo}, 16384")
    ex.setdefault(59, []).append(f"s_add_u32 s{sKVm}, s{sKVm}, 32768\ns_and_b32 s{sKVm}, s{sKVm}, s{sD}")
    ex.setdefault(1, []).append(f"s_and_b32 s6, s{sT}, 3\ns_lshl_b32 s6, s6, 5")
    ex.setdefault(3, []).append(f"s_and_b32 s7, s{sT}, 4\ns_lshl_b32 s7, s7, 10\ns_or_b32 s6, s6, s7")
    ex.setdefault(4, []).append(f"v_xor_b32 v{vWpA}, s6, v{vWpB}")
    ex[(7, "ds")] = [f"ds_read_b64_tr_b16 {ar(aWq,2)}, v{vWpA}"]
    ex[(9, "ds")] = [f"ds_read_b64_tr_b16 {ar(aWq+2,2)}, v{vWpA} offset:2048"]
    ex.setdefault(13, []).append(f"buffer_store_dwordx4 {vr(vOnes,4)}, v{vL16}, s[{qI}:{qI+3}], s{sSen} offen sc1 ; @put H")
    ex.setdefault(15, []).append(f"s_add_u32 s{sSen}, s{sSen}, 1024")
    ex.setdefault(29, []).append(f"buffer_store_dwordx4 {ar(aWq,4)}, v{vL16}, s[{sWp}:{sWp+3}], s{sWpO} offen sc1 ; @put H")
    ex.setdefault(31, []).append(f"s_add_u32 s{sWpO}, s{sWpO}, 1024")
    ex.setdefault(20, []).append(f"s_add_u32 s{sT}, s{sT}, 1")
    A(".p2align 6")
    A(f"{L}at:")
    A(f"s_cmp_eq_u32 s{sT}, 3")
    A(f"s_cselect_b32 s{sDelta}, {hex((-98304) & 0xffffffff)}, s{sC0}")
    attn_seg(A, lq, 0, ex)
    attn_seg(A, lq, 1, ex)
    A(f"s_cmp_eq_u32 s{sT}, 8")
    A(f"s_cbranch_scc1 {L}attail")
    lq_exit = list(lq.q)
    attn_seg(A, lq, 2, ex)
    attn_seg(A, lq, 3, ex)
    A(f"s_bitcmp1_b32 s{sTail}, s{sT}")
    A(f"s_cbranch_scc0 {L}at")
    A(f"s_cmp_eq_u32 s{sT}, 5")
    A(f"s_cbranch_scc1 {L}at5")
    set_flag(A, 1, f"{L}at", "HH")
    A(f"s_branch {L}at")
    A(f"{L}at5:")
    A(f"s_mov_b32 s{sKVm}, {TAILBIT}")
    A(f"s_mov_b32 s{sD}, {TAILBIT}")
    A(f"s_mov_b32 s{sK+2}, 0")
    A(f"s_mov_b32 s{sV+2}, 0")
    flag_load(A, vPa, vAa)
    flag_load(A, vPb, vAb)
    A(f"s_branch {L}at")
    assert XP or lq.q == [("f", 0), ("f", 1), ("f", 2)], lq.q
    A(f"{L}attail:")
    lq.q = lq_exit
    A("s_waitcnt lgkmcnt(0)"); lq.clear()
    attn_seg(A, lq, 2, {}, mfma=False, look=[3])
    attn_seg(A, lq, 3, {48 + i: [x] for i, x in enumerate(q_setup())}, sm_hi=54, look=[3])
    stamp(5)
    if "fine2" in XP:
        A(f"s_lshl_b32 s96, s2, 2"); A(f"s_add_u32 s96, s96, s{sWave}"); A("s_lshl_b32 s96, s96, 10")
        A(f"v_lshl_add_u32 v227, v{vLane}, 2, s96")
        A(f"s_add_u32 s96, s{pWs}, 0x3200000"); A(f"s_addc_u32 s97, s{pWs+1}, 0")
        for i in range(3): A(f"global_store_dword v227, v{224+i}, s[96:97] offset:{256*i}")
    A(f"v_mov_b32 v{t}, v{vL}")
    A(f"v_mov_b32 v{t+1}, v{vL+1}")
    A(f"v_bfe_u32 v{t+2}, v{vLane}, 4, 1")
    A(f"v_lshrrev_b32 v{t+3}, 5, v{vLane}")
    A(f"v_permlane32_swap_b32 v{t}, v{vL}")
    A(f"v_permlane32_swap_b32 v{t+1}, v{vL+1}")
    A(f"v_lshlrev_b32 v{t+3}, 8, v{t+3}")
    A(f"v_add_f32 v{vL}, v{vL}, v{t}")
    A(f"v_add_f32 v{vL+1}, v{vL+1}, v{t+1}")
    A(f"v_lshl_add_u32 v{t+3}, v{t+2}, 10, v{t+3}")
    A(f"v_and_b32 v{t+2}, 15, v{vLane}")
    A(f"v_lshl_add_u32 v{vOo}, v{t+2}, 4, v{t+3}")
    A(f"v_mov_b32 v{t+8}, {hex(f2u(2.0**-40))}")
    A(f"v_mov_b32 v{t+9}, {hex(f2u(2.0**40))}")
    A(f"v_cmp_gt_f32 s[{sE0}:{sE0+1}], v{vL}, v{t+8}")
    A(f"v_cmp_lt_f32 s[{sE0+2}:{sE0+3}], v{vL}, v{t+9}")
    A(f"v_cmp_gt_f32 s[4:5], v{vL+1}, v{t+8}")
    A(f"v_cmp_lt_f32 s[6:7], v{vL+1}, v{t+9}")
    A(f"v_rcp_f32 v{t}, v{vL}")
    A(f"v_rcp_f32 v{t+1}, v{vL+1}")
    A("s_nop 1")
    A(f"s_and_b64 s[{sE0}:{sE0+1}], s[{sE0}:{sE0+1}], s[{sE0+2}:{sE0+3}]")
    A(f"s_and_b64 s[4:5], s[4:5], s[6:7]")
    A(f"s_and_b64 s[4:5], s[4:5], s[{sE0}:{sE0+1}]")
    A(f"s_cmp_eq_u64 s[4:5], exec")
    if not XP: A(f"s_cbranch_scc0 {L}slow ; slowbr")
    A(f"{L}oep:")
    A(f"s_lshl_b32 s6, s{sHead}, 14")
    n = 0
    for dt in range(4):
        for qt in range(2):
            b = vS + (n % 4) * 16; pk = vP + (n % 4) * 8; n += 1
            for i in range(16): A(f"v_accvgpr_read_b32 v{b+i}, a{aO+(qt*4+dt)*16+i}")
            for i in range(8):
                A(f"v_pk_mul_f32 {vr(b+2*i,2)}, {vr(b+2*i,2)}, {vr(t,2)} " + ("op_sel_hi:[1,0]" if qt == 0 else "op_sel:[0,1]"))
            for i in range(8): A(f"v_cvt_pk_bf16_f32 v{pk+i}, v{b+2*i}, v{b+2*i+1}")
            for j in range(2):
                A(f"buffer_store_dwordx4 {vr(pk+4*j,4)}, v{vOo}, s[{sA}:{sA+3}], s6 offen offset:{qt*2048+j*512} sc1 ; @put H")
        if dt < 3: A("s_add_u32 s6, s6, 4096")
    stamp(6)
    A("s_barrier")
    flag_wait(A, f"{L}w1", 1, [(vPa, vAa), (vPb, vAb)])
    for s_ in range(3): emit(q_loads(s_))
    gemm2(A, L, emit, stamp)
    A(f"{L}end:")
    A("s_endpgm")
    A(f"{L}slow:")
    A("s_waitcnt vmcnt(0) lgkmcnt(0)")
    srd(A, sK, pK, pK + 1, 16777216)
    srd(A, sV, pV, pV + 1, 16777216)
    kv_dma_voff(A, vKd, vVd)
    A(f"s_lshl_b32 s{sT1}, s{sWave}, 14")
    A(f"s_add_u32 s{sT1}, s{sT1}, {R0}")
    kv_addr(A, sT1)
    for dt in range(4): A(f"v_subrev_u32 v{vVr+dt}, 8192, v{vVr+dt}")
    vM = vTm + 6
    A(f"v_mov_b32 v{vM}, 0xff800000")
    A(f"v_mov_b32 v{vM+1}, 0xff800000")
    A(f"v_mov_b32 v{vL}, 0")
    A(f"v_mov_b32 v{vL+1}, 0")
    for i in range(4): A(f"v_mov_b32 v{vTm+12+i}, 0")
    A("s_nop 1")
    for i in range(8): mf32(A, ar(aO + 16 * i, 16), vr(vTm + 12, 4), vr(vTm + 12, 4), "0")
    A(f"s_mov_b32 s{sT}, 0")
    A(f"{L}sl:")
    A(f"s_and_b32 s{sT0}, s{sT}, 15")
    A(f"s_lshl_b32 s{sT0}, s{sT0}, 13")
    A(f"s_lshl_b32 s{sKVo}, s{sHead}, 19")
    A(f"s_add_u32 s{sKVo}, s{sKVo}, s{sT0}")
    A(f"s_add_u32 s{sKVo}, s{sKVo}, {1536*256}")
    for hf in range(2):
        A(f"s_add_u32 m0, s{sT1}, {hf*4096}")
        A("s_nop 0")
        for j in range(4): A(f"buffer_load_dwordx4 v{vKd+j}, s[{sK}:{sK+3}], s{sKVo} offen offset:{j*1024} lds")
        A(f"s_add_u32 m0, s{sT1}, {8192+hf*4096}")
        A("s_nop 0")
        for j in range(4): A(f"buffer_load_dwordx4 v{vVd}, s[{sV}:{sV+3}], s{sKVo} offen offset:{j*1024} lds")
        if hf == 0: A(f"s_add_u32 s{sKVo}, s{sKVo}, 4096")
    A("s_waitcnt vmcnt(0)")
    for p in range(8):
        A(kread(p, 0, p % 4))
        A("s_waitcnt lgkmcnt(0)")
        for qt in range(2): mf32(A, vr(vS + qt * 16, 16), vr(vF + (p % 4) * 4, 4), vr(vQ + (qt * 8 + p) * 4, 4), "0" if p == 0 else None)
    A("s_nop 11")
    A(f"s_cmp_ge_u32 s{sT}, 16")
    A(f"s_cbranch_scc1 {L}sl2")
    for qt in range(2):
        for i in range(8): A(f"v_max3_f32 v{vM+qt}, v{vS+qt*16+2*i}, v{vS+qt*16+2*i+1}, v{vM+qt}")
    A(f"s_cmp_lg_u32 s{sT}, 15")
    A(f"s_cbranch_scc1 {L}sl3")
    A(f"v_mov_b32 v{vM+2}, v{vM}")
    A(f"v_mov_b32 v{vM+3}, v{vM+1}")
    A("s_nop 1")
    A(f"v_permlane32_swap_b32 v{vM+2}, v{vM}")
    A(f"v_permlane32_swap_b32 v{vM+3}, v{vM+1}")
    A(f"v_max_f32 v{vM}, v{vM}, v{vM+2}")
    A(f"v_max_f32 v{vM+1}, v{vM+1}, v{vM+3}")
    A(f"s_branch {L}sl3")
    A(f"{L}sl2:")
    for e in range(32):
        r, qt, ks = sm_reg(0, e)
        A(f"v_sub_f32 v{r}, v{r}, v{vM+qt}")
        A(f"v_exp_f32 v{r}, v{r}")
        A("s_nop 0")
        for x in sm_post(0, e): A(x)
    for i in range(8):
        for sec in range(2): A(vread(i // 4, i % 4, 0, sec, i % 4))
        A("s_waitcnt lgkmcnt(0)")
        for qt in range(2): mf32(A, ar(aO + (qt * 4 + i % 4) * 16, 16), vr(vF + (i % 4) * 4, 4), vr(vP + (qt * 2 + i // 4) * 4, 4))
    A(f"{L}sl3:")
    A(f"s_add_u32 s{sT}, s{sT}, 1")
    A(f"s_cmp_lt_u32 s{sT}, 32")
    A(f"s_cbranch_scc1 {L}sl")
    A(f"v_mov_b32 v{t}, v{vL}")
    A(f"v_mov_b32 v{t+1}, v{vL+1}")
    A("s_nop 1")
    A(f"v_permlane32_swap_b32 v{t}, v{vL}")
    A(f"v_permlane32_swap_b32 v{t+1}, v{vL+1}")
    A(f"v_add_f32 v{vL}, v{vL}, v{t}")
    A(f"v_add_f32 v{vL+1}, v{vL+1}, v{t+1}")
    A(f"v_rcp_f32 v{t}, v{vL}")
    A(f"v_rcp_f32 v{t+1}, v{vL+1}")
    A("s_nop 7")
    A(f"s_branch {L}oep")
    kd(A, name, 512, 256)

def checks(A, entry):
    if XP: return
    nb = check_hazards(A.lines)
    tot = 0
    for wg in (0, 5, 31, 24, 28, 255):
        for w in (0, 1, 3):
            for slow in (0, 1):
                def hk(x, S):
                    if x.opn == "v_readfirstlane_b32" and "tag" not in x.text:
                        S[sWave] = w
                    if "slowbr" in x.text: return slow
                    if "pollbr" in x.text: return 1
                p, c = check_waits(A.lines, entry, {2: wg}, hk)
                tot += p
    print("hazards:", nb, "waits:", tot, c)

def build(fn, stamps=False):
    HDR = open("cdna_kernels/" + NAME + ".s.ref").read().split("; Override")[0]
    A = Asm()
    A(HDR)
    A(f"; @launch grid=(256,1,1) block=(256,1,1) lds={P1_LDS}")
    A('.amdgcn_target "amdgcn-amd-amdhsa--gfx950"')
    A(".text")
    gen_p1(A, NAME + "_kernel", stamps=stamps)
    checks(A, NAME + "_kernel")
    if "hplain" in XP: A.lines = [l.replace(" sc1", "") if ("store" in l and f"s[{sA}:{sA+3}], s6 " not in l and f"s[{sA}:{sA+3}]" in l) else l for l in A.lines]
    if "oplain" in XP: A.lines = [l.replace(" sc1", "") if ("store" in l and f"s[{sA}:{sA+3}], s6 " in l) else l for l in A.lines]
    if "iplain" in XP: A.lines = [l.replace(" sc1", "") if ("store" in l and f"s[{qI}:{qI+3}], s{sT0}" in l) else l for l in A.lines]
    if "nt" in XP: A.lines = [l.replace(" sc1", " sc1 nt") if ("buffer_store" in l) else l for l in A.lines]
    if "sc01" in XP: A.lines = [l.replace(" sc1", " sc0 sc1") if ("buffer_store" in l) else l for l in A.lines]
    open(fn, "w").write(A.text())
if __name__ == "__main__":
    build("fu.s")
    build("fu_st.s", stamps=True)
```

```python
from asmlib import *
from common import *

P1_LDS = 163840
R0, R1, R2, R3, R4 = 0, 32768, 65536, 98304, 131072
CS = R3
TAILBIT = 0x30000
ROT = False
TLBW = True
FLAG = 'byte'
FINE = False
EVMASK = 0x180
vFin = 60
XP = set()

class LQ:
    def __init__(s): s.q = []
    def issue(s, tag): s.q.append(tag)
    def wait(s, A, tags):
        idx = max([i for i, t in enumerate(s.q) if t in tags], default=-1)
        if idx < 0: return
        n = len(s.q) - 1 - idx
        assert n <= 15
        A(f"s_waitcnt lgkmcnt({n})")
        s.q = s.q[idx + 1:]
    def clear(s): s.q = []

sX, sWq, sW1, sW3, sK, sV, sA, sWp, sSrc, sSt = 8, 12, 16, 20, 24, 28, 32, 36, 40, 44
sWave, sHead, sRb, sFb, sHasF = 48, 49, 50, 51, 52
sXo, sWqo, sW13o, sM0X, sM0W, sD, sTail, sSlot = 53, 54, 55, 56, 57, 58, 59, 60
sT0, sT1, sT2 = 61, 62, 63
pX, pK, pV, pWq, pWo, pBx, pW1, pW3, pW2, pOut, pDbg, pWs = range(64, 88, 2)
sKVo, sKVm, sDelta, sT, sU, sMask, sXb, sC0 = 88, 89, 90, 91, 92, 93, 94, 95
sX2, sM0d, sXst, sM0t, sProd, sPo = 76, 74, 75, 3, 4, 5
sE0 = 96
vLane = 1
vXd, vWqd, vW13d, vXr, vWqr, vW13r = 2, 10, 12, 13, 15, 23
vZero = 27
vSt = 28
vTm = 44
vQ = 64
vAcc = 128
aG, aUp, aCs, aXf, aWf, aOne, aWp = 0, 64, 128, 144, 176, 192, 196
vKr, vVr, vKd, vVd, vL, vOo = 2, 10, 14, 18, 22, 24
vS, vP, vF = 128, 192, 208
aO = 128
sNo = 100
pFl = 84
qA, qW, qX, qO, qI = 8, 12, 16, 20, 44
qP, qG, qAo, qWo, qWm, qN, qAs, qWs = 53, 54, 55, 56, 57, 58, 51, 60
qAe, qWe, qNl, qSo, qXo, qRb, qCb, qT0, qT1, qIn = 74, 75, 3, 93, 94, 76, 77, 78, 79, 24
vFo, vFv, vPa, vPb, vAa, vAb, vAo, vAp = 25, 28, 30, 32, 34, 35, 36, 37
vL16, vWr2, vXo2, vL8, vOwn = 54, 2, 4, 5, 6
aA2, aW2, aWq = 0, 64, 64
RING2 = 81920
TOUCH = 0
OPT = set()
vTch, sTch = 26, 92
vOnes = 40
vWpB, vWpA = 38, 39
sWpO, sSen = 5, 4


def mf16(A, d, a, b, c=None):
    A(f"v_mfma_f32_16x16x32_bf16 {d}, {a}, {b}, {d if c is None else c}")
def mf32(A, d, a, b, c=None):
    A(f"v_mfma_f32_32x32x16_bf16 {d}, {a}, {b}, {d if c is None else c}")

def spread(items, nslots):
    out = [[] for _ in range(nslots)]
    n = len(items)
    for i, it in enumerate(items):
        out[min(nslots - 1, (i * nslots) // n)].append(it)
    return out

def frag_list(ffn):
    fr = [("Q", p) for p in range(8)]
    if ffn:
        for p in range(4): fr += [("G", p), ("U", p)]
    return fr

def wread(fr, k, sec, buf):
    c, p = fr
    if c == "Q": ad, off = vWqr + p, sec * 1024
    else: ad, off = vW13r + p, (2048 if c == "G" else 3072) + sec * 512
    return f"ds_read_b64_tr_b16 {ar(aWf+buf*4+2*sec,2)}, v{ad} offset:{off + k*16384}"

def xread(s, st, rt):
    return f"ds_read_b128 {ar(aXf+st*16+rt*4,4)}, v{vXr+s} offset:{rt*2048}"

def dma_w(ffn, force=False):
    it = [f"s_max_u32 m0, s{sM0W}, s{sTail}",
          f"buffer_load_dwordx4 v{vWqd}, s[{sWq}:{sWq+3}], s{sWqo} offen lds ; @put W",
          f"buffer_load_dwordx4 v{vWqd+1}, s[{sWq}:{sWq+3}], s{sWqo} offen offset:1024 lds ; @put W"]
    if ffn or force:
        it += [f"buffer_load_dwordx4 v{vW13d}, s[{sW1}:{sW1+3}], s{sW13o} offen offset:2048 lds ; @put W",
               f"buffer_load_dwordx4 v{vW13d}, s[{sW3}:{sW3+3}], s{sW13o} offen offset:3072 lds ; @put W"]
    it += [f"s_add_u32 s{sWqo}, s{sWqo}, {32*8192}"]
    if ffn or force: it += [f"s_add_u32 s{sW13o}, s{sW13o}, {32*3456}"]
    it += [f"s_add_u32 s{sSlot}, s{sSlot}, 16384\ns_and_b32 s{sSlot}, s{sSlot}, 0xffff",
           f"s_add_u32 s{sM0W}, s{sSlot}, s{sC0}"]
    return it

def dma_x(half):
    if half == 0: it = [f"s_mov_b32 m0, s{sM0X}"]
    else: it = [f"s_add_u32 m0, s{sM0X}, s{sM0d}"]
    sd = sX if half == 0 else sX2
    for j in range(4):
        it.append(f"buffer_load_dwordx4 v{vXd+4*half+j}, s[{sd}:{sd+3}], s{sXo} offen offset:{j*1024} lds")
    if half: it += [f"s_add_u32 s{sXo}, s{sXo}, s{sXst}\ns_xor_b32 s{sM0X}, s{sM0X}, s{sM0t}"]
    return it

def fine(A):
    A("s_memtime s[98:99]"); A("s_waitcnt lgkmcnt(0)")
    A("s_mov_b32 m0, s7")
    A(f"v_writelane_b32 v{vFin}, s96, m0")
    A(f"v_writelane_b32 v{vFin+1}, s100, m0")
    A(f"v_writelane_b32 v{vFin-1}, s98, m0")
    A("s_add_u32 s7, s7, 1")

def gemm_loop(A, ffn, L):
    fr = frag_list(ffn); nf = len(fr)
    nw = 4 if ffn else 2
    ones = {("Q", 0): 0, ("Q", 1): 1, ("G", 0): 2, ("U", 0): 3}
    lq = LQ()
    for f in range(3):
        lq.issue(("w", f)); lq.issue(("w", f))
    A(".p2align 6")
    A(f"{L}:")
    for k in range(2):
        if k == 1:
            A(f"s_bitcmp1_b32 s{sMask}, s{sD}")
            A(f"s_cbranch_scc1 {L}_ev")
            A(f"{L}_evret:")
        if k == 0:
            items = [("x", rt) for rt in range(4)] + dma_x(1) + dma_w(ffn)
            slots = spread(items, 2 * (nf - 2))
            tog = {2: [f"v_xor_b32 v{vXr}, 0x18000, v{vXr}"]}
        else:
            items = dma_x(0) + dma_w(ffn) + [f"s_add_u32 s{sD}, s{sD}, 1"]
            slots = spread(items, 2 * (nf - 5))
            slots += [[f"s_cmp_eq_u32 s{sD}, 10\ns_cbranch_scc1 {L}_nw\ns_waitcnt vmcnt({2*nw+4})\n{L}_nw:"],
                      [("x", 0)], [("x", 1)], [("x", 2)], [("x", 3)], []]
            tog = {0: [f"v_xor_b32 v{vXr+1}, 0x18000, v{vXr+1}"]}
            for f, (c, p) in enumerate(fr):
                if c == "G": continue
                reg = vWqr + p if c == "Q" else vW13r + p
                tog.setdefault(max(f - 3, -1) + 1, []).append(f"v_xor_b32 v{reg}, 0x38000, v{reg}")
        for f in range(nf):
            c, p = fr[f]
            lq.wait(A, [("w", f)] + ([("x", k)] if f == 0 else []))
            buf = f % 4
            for rt in range(4):
                r_ = rt if f % 2 == 0 else 3 - rt
                if c == "Q": d = vr(vAcc + (p * 4 + r_) * 4, 4)
                else: d = ar((aG if c == "G" else aUp) + (p * 4 + r_) * 4, 4)
                mf16(A, d, ar(aWf + buf * 4, 4), ar(aXf + k * 16 + r_ * 4, 4))
                if f + 3 < nf and rt < 2:
                    A(wread(fr[f + 3], k, rt, (f + 3) % 4)); lq.issue(("w", f + 3))
                if f == nf - 2:
                    A(wread(fr[rt // 2], 1 - k, rt % 2, (rt // 2) % 4)); lq.issue(("w", rt // 2))
                if f == nf - 1 and rt < 2:
                    A(wread(fr[2], 1 - k, rt, 2)); lq.issue(("w", 2))
                if rt >= 2 and f < nf - 2:
                    for it in slots[2 * f + rt - 2]:
                        if isinstance(it, tuple):
                            A(xread(1 - k, 1 - k, it[1]) + (" ; @chkx" if k == 1 else "")); lq.issue(("x", 1 - k))
                        else:
                            if "lds" in it and A.lines[-1].split()[1].startswith("m0"): A("s_nop 0")
                            A(it)
                if rt == 3:
                    for t in tog.get(f, []): A(t)
            if fr[f] in ones:
                mf16(A, ar(aCs + ones[fr[f]] * 4, 4), ar(aWf + buf * 4, 4), ar(aOne, 4))
            if f == nf - 3:
                n = 2 * nw + 8
                if FINE:
                    A("s_memtime s[96:97]"); A("s_waitcnt lgkmcnt(0)")
                A(f"s_waitcnt vmcnt({n}) lgkmcnt(0)")
                lq.clear()
                if FINE:
                    A("s_memtime s[100:101]"); A("s_waitcnt lgkmcnt(0)")
                A(f"s_barrier")
                if FINE: fine(A)
    A(f"s_cmp_lt_u32 s{sD}, 10")
    A(f"s_cbranch_scc1 {L}")
    assert lq.q == [("w", 0), ("w", 0), ("w", 1), ("w", 1), ("w", 2), ("w", 2)], lq.q

def kv_dma_voff(A, kd_, vd_):
    t = vTm
    A(f"v_lshrrev_b32 v{t+12}, 4, v{vLane}")
    A(f"v_and_b32 v{t+14}, 15, v{vLane}")
    A(f"v_xor_b32 v{t+13}, v{t+14}, v{t+12}")
    A(f"v_lshlrev_b32 v{t+13}, 4, v{t+13}")
    A(f"v_lshl_add_u32 v{kd_}, v{t+12}, 8, v{t+13}")
    for j in range(1, 4): A(f"v_xor_b32 v{kd_+j}, {64*j}, v{kd_}")
    A(f"v_lshlrev_b32 v{t+13}, 2, v{t+12}")
    A(f"v_xor_b32 v{t+13}, v{t+13}, v{t+14}")
    A(f"v_lshlrev_b32 v{t+13}, 4, v{t+13}")
    A(f"v_lshl_add_u32 v{vd_}, v{t+12}, 8, v{t+13}")
    for j in range(1, 4): A(f"v_mov_b32 v{vd_+j}, v{vd_}")

def gemm_events(A, L):
    A(f"{L}_ev:")
    A(f"s_cmp_eq_u32 s{sD}, 8")
    A(f"s_cbranch_scc1 {L}_ev8")
    A(f"global_load_dword v{vTm}, v{vTm+2}, s[{pDbg}:{pDbg+1}] sc1")
    A(f"global_load_dwordx2 {vr(vTm+4,2)}, v{vTm+6}, s[{pDbg}:{pDbg+1}] offset:128 sc1")
    A(f"s_branch {L}_evret")
    A(f"{L}_ev8:")
    A(f"s_mov_b32 s{sTail}, {TAILBIT}")
    for d in (sWq, sW1, sW3): A(f"s_mov_b32 s{d+2}, 0")
    srd(A, sX, pK, pK + 1, 16777216)
    srd(A, sX2, pV, pV + 1, 16777216)
    kv_dma_voff(A, vXd, vXd + 4)
    A(f"s_lshl_b32 s{sM0X}, s{sWave}, 12")
    A(f"s_lshl_b32 s{sXo}, s{sHead}, 19")
    A(f"s_add_u32 s{sXo}, s{sXo}, s{sM0X}")
    A(f"s_add_u32 s{sXo}, s{sXo}, {1536*256}")
    A(f"s_movk_i32 s{sM0d}, 16384")
    A(f"s_movk_i32 s{sXst}, 16384")
    A(f"s_mov_b32 s{sM0t}, 0x8000")
    A(f"s_mov_b32 s{sT1}, 0")
    A(f"s_waitcnt vmcnt(12)")
    A(f"{L}_chk:")
    A(f"v_cmp_ne_u32 vcc, 0x01010101, v{vTm}")
    A(f"v_cmp_eq_u32 s[6:7], 0, v{vTm+5}")
    A("s_nop 3")
    A(f"s_or_b64 s[6:7], s[6:7], vcc")
    A(f"s_cbranch_scc0 {L}_rdy ; pollbr")
    A(f"s_add_u32 s{sT1}, s{sT1}, 1")
    A(f"s_cmp_ge_u32 s{sT1}, 0x40000")
    A(f"s_cbranch_scc1 {L}_rdy")
    A("s_sleep 2")
    A(f"global_load_dword v{vTm}, v{vTm+2}, s[{pDbg}:{pDbg+1}] sc1")
    A(f"global_load_dwordx2 {vr(vTm+4,2)}, v{vTm+6}, s[{pDbg}:{pDbg+1}] offset:128 sc1")
    A("s_waitcnt vmcnt(0)")
    A(f"s_branch {L}_chk")
    A(f"{L}_rdy:")
    A(f"v_readfirstlane_b32 s{sNo}, v{vTm+4} ; tag")
    A(f"v_readfirstlane_b32 s{sNo+1}, v{vTm+5} ; tag")
    A(f"s_add_u32 s{pFl}, s{pWs}, {FL_OFF}")
    A(f"s_addc_u32 s{pFl+1}, s{pWs+1}, 0")
    A(f"s_lshl2_add_u32 s{sT0}, s{sRb}, s{sWave}")
    A(f"s_lshl_b32 s{sT0}, s{sT0}, 10")
    for rt in range(4):
        A(f"buffer_load_dwordx4 {vr(vSt+4*rt,4)}, v{vTm+3}, s[{sSt}:{sSt+3}], s{sT0} offen offset:{rt*256} sc1")
    A(f"s_branch {L}_evret")

def kv_addr(A, base_expr_sgpr):
    t0, t1, t2, t3 = vTm + 12, vTm + 13, vTm + 14, vTm + 15
    A(f"v_and_b32 v{t0}, 31, v{vLane}")
    A(f"v_lshrrev_b32 v{t1}, 5, v{vLane}")
    A(f"v_and_b32 v{t2}, 15, v{vLane}")
    A(f"v_xor_b32 v{t2}, v{t2}, v{t1}")
    A(f"s_lshl_b32 s{sT0}, s{sWave}, 2")
    A(f"v_xor_b32 v{t2}, s{sT0}, v{t2}")
    A(f"v_lshlrev_b32 v{t2}, 4, v{t2}")
    A(f"v_lshl_add_u32 v{t2}, v{t0}, 8, v{t2}")
    A(f"v_add_u32 v{vKr}, s{base_expr_sgpr}, v{t2}")
    for p in range(1, 8): A(f"v_xor_b32 v{vKr+p}, {32*p}, v{vKr}")
    A(f"v_bfe_u32 v{t0}, v{vLane}, 2, 2")
    A(f"v_lshl_add_u32 v{t2}, v{t1}, 2, v{t0}")
    A(f"v_lshlrev_b32 v{t2}, 8, v{t2}")
    A(f"v_lshl_add_u32 v{t2}, v{t0}, 6, v{t2}")
    A(f"v_bfe_u32 v{t3}, v{vLane}, 1, 1")
    A(f"v_lshl_add_u32 v{t2}, v{t3}, 5, v{t2}")
    A(f"v_bfe_u32 v{t3}, v{vLane}, 4, 1")
    A(f"v_lshl_add_u32 v{t2}, v{t3}, 4, v{t2}")
    A(f"v_and_b32 v{t3}, 1, v{vLane}")
    A(f"v_lshl_add_u32 v{t2}, v{t3}, 3, v{t2}")
    A(f"s_add_u32 s{sT0}, s{base_expr_sgpr}, 16384")
    A(f"v_add_u32 v{vVr}, s{sT0}, v{t2}")
    for dt in range(1, 4): A(f"v_xor_b32 v{vVr+dt}, {64*dt}, v{vVr}")

def kv_dma():
    it = [f"s_mov_b32 m0, s{sKVm}"]
    for j in range(4):
        it.append(f"buffer_load_dwordx4 v{vKd+j}, s[{sK}:{sK+3}], s{sKVo} offen offset:{j*1024} lds")
    it.append("s_add_u32 m0, m0, 16384")
    for j in range(4):
        it.append(f"buffer_load_dwordx4 v{vVd+j}, s[{sV}:{sV+3}], s{sKVo} offen offset:{j*1024} lds")
    return it

def kread(p, tile, buf):
    return f"ds_read_b128 {vr(vF+buf*4,4)}, v{vKr+p} offset:{tile*8192}"
def vread(ks, dt, tile, sec, buf):
    return f"ds_read_b64_tr_b16 {vr(vF+buf*4+2*sec,2)}, v{vVr+dt} offset:{(32*tile+16*ks+8*sec)*256}"

def sm_reg(buf, e):
    qt = (e >> 3) & 1; ks = e >> 4
    return vS + (buf * 2 + qt) * 16 + ks * 8 + (e & 7), qt, ks
def sm_exp(buf, e):
    r, _, _ = sm_reg(buf, e)
    if "noexp" in XP: return []
    if "movexp" in XP: return [f"v_mov_b32 v{r}, v{r}"]
    return [f"v_exp_f32 v{r}, v{r}"]
def sm_post(buf, e):
    r, qt, ks = sm_reg(buf, e)
    o = [f"v_add_f32 v{vL+qt}, v{vL+qt}, v{r}"]
    if "noadd" in XP: o = []
    if e & 1 and "nocvt" not in XP: o.append(f"v_cvt_pk_bf16_f32 v{vP+(qt*2+ks)*4+((e&7)>>1)}, v{r-1}, v{r}")
    return o

def attn_seg(A, lq, seg, extra, mfma=True, sm_lo=0, sm_hi=64, look=True):
    def rd(phi, part):
        s = (phi // 8) % 4; i = phi % 8; buf = phi % 4
        if s in (0, 2):
            return kread(i, 1 if s == 0 else 0, buf) if part == 0 else None
        return vread(i // 4, i % 4, 0 if s == 1 else 1, part, buf)
    for i in range(8):
        phi = seg * 8 + i
        if mfma and "nowait" not in XP: lq.wait(A, [("f", phi)])
        for qt in range(2):
            slot = seg * 16 + 2 * i + qt
            if mfma:
                if seg in (0, 2):
                    sb = 1 if seg == 0 else 0
                    d = vr(vS + (sb * 2 + qt) * 16, 16)
                    mf32(A, d, vr(vF + (phi % 4) * 4, 4), vr(vQ + (qt * 8 + i) * 4, 4), "0" if i == 0 else None)
                else:
                    ks, dt = i // 4, i % 4
                    mf32(A, ar(aO + (qt * 4 + dt) * 16, 16), vr(vF + (phi % 4) * 4, 4), vr(vP + (qt * 2 + ks) * 4, 4))
            for it in extra.get((slot, "pre"), []): A(it)
            nphi = (phi + 3) % 32
            nseg = nphi // 8
            if look is True or nseg in look:
                r = rd(nphi, qt)
                if r and "noread" not in XP: A(r); lq.issue(("f", nphi))
            for it in extra.get((slot, "ds"), []):
                A(it); lq.issue(("side", 0))
            for it in extra.get(slot, []):
                if it.startswith("v_"): continue
                if "lds" in it and A.lines[-1].split()[1].startswith("m0"): A("s_nop 0")
                A(it)
            for (buf, start) in ((1, 22), (0, 54)):
                e = (slot - start) % 64
                if e < 32 and (buf, "exp") in sm_ok(slot, sm_lo, sm_hi, buf, e):
                    for x in sm_exp(buf, e): A(x)
            for (buf, start) in ((1, 22), (0, 54)):
                e = (slot - start - 1) % 64
                if e < 32 and (buf, "exp") in sm_ok((slot - 1) % 64, sm_lo, sm_hi, buf, e):
                    for x in sm_post(buf, e): A(x)
            for it in extra.get(slot, []):
                if it.startswith("v_"): A(it)
def sm_ok(slot, lo, hi, buf, e):
    return {(buf, "exp")} if (lo <= slot < hi) else set()

def wp_src_voff(A, d):
    t = vTm
    A(f"v_lshrrev_b32 v{t+12}, 4, v{vLane}")
    A(f"v_lshlrev_b32 v{t+12}, 1, v{t+12}")
    A(f"v_and_b32 v{t+13}, 7, v{vLane}")
    A(f"v_xor_b32 v{t+12}, v{t+12}, v{t+13}")
    A(f"v_lshlrev_b32 v{t+12}, 4, v{t+12}")
    A(f"v_lshrrev_b32 v{t+13}, 3, v{vLane}")
    A(f"v_mul_u32_u24 v{t+13}, 1280, v{t+13}")
    A(f"v_add_u32 v{d}, v{t+12}, v{t+13}")
    for j in range(1, 8): A(f"v_add_u32 v{d+j}, {(j%4)*9216 + (j//4)*128}, v{d}")

def wp_addr(A, sh, note="", reg=R3, n=4, dst=None):
    t = vTm
    A(f"v_bfe_u32 v{t+14}, v{vLane}, 2, 2")
    A(f"v_bfe_u32 v{t+16}, v{vLane}, 4, 1")
    A(f"v_lshl_add_u32 v{t+14}, v{t+16}, 2, v{t+14}")
    A(f"v_lshrrev_b32 v{t+13}, 1, v{t+14}")
    A(f"v_lshlrev_b32 v{t+13}, 5, v{t+13}")
    A(f"v_lshl_add_u32 v{t+13}, v{t+14}, 7, v{t+13}")
    A(f"v_lshrrev_b32 v{t+15}, 5, v{vLane}")
    A(f"v_lshl_add_u32 v{t+13}, v{t+15}, 10, v{t+13}")
    A(f"v_and_b32 v{t+15}, 3, v{vLane}")
    A(f"v_lshl_add_u32 v{t+13}, v{t+15}, 3, v{t+13}")
    A(f"s_lshl_b32 s6, s{sWave}, {sh}")
    A(f"s_add_u32 s6, s6, {reg}")
    A(f"v_add_u32 v{dst or t+4}, s6, v{t+13}{note}")
    for i4 in range(1, n): A(f"v_xor_b32 v{t+4+i4}, {32*i4}, v{t+4}")
def wp_reads(A, stride):
    for su in range(2):
        for i4 in range(4):
            for sec in range(2):
                A(f"ds_read_b64_tr_b16 {ar(aWq+(su*4+i4)*4+2*sec,2)}, v{vTm+4+i4} offset:{su*stride+sec*2048}")
def wp_stores(A, so):
    for su in range(2):
        for i4 in range(4):
            A(f"buffer_store_dwordx4 {ar(aWq+(su*4+i4)*4,4)}, v{vL16}, s[{sWp}:{sWp+3}], s{so} offen offset:{i4*1024} sc1")
        if su == 0: A(f"s_add_u32 s{so}, s{so}, 4096")

def set_flag(A, phase, lab, cls="H"):
    A(f"s_cmp_lg_u32 s{sWave}, 0")
    A(f"s_cbranch_scc1 {lab}")
    A(f"s_add_u32 s6, s{sNo}, {phase}")
    A(f"v_mov_b32 v{vFv}, s6")
    A(f"v_mov_b32 v{vFv+1}, s{sNo+1}")
    A("s_mov_b64 exec, 1")
    A(f"global_store_dwordx2 v{vFo}, {vr(vFv,2)}, s[{pFl}:{pFl+1}] sc1")
    A("s_mov_b64 exec, -1")
def flag_load(A, dst, ad):
    A(f"global_load_dwordx2 {vr(dst,2)}, v{ad}, s[{pFl}:{pFl+1}] sc1")
def flag_wait(A, lab, phase, polls):
    A(f"s_add_u32 s{sT0}, s{sNo}, {phase}")
    A(f"s_mov_b32 s{sT1}, 0")
    A(f"{lab}c:")
    for n, (d, ad) in enumerate(polls):
        A(f"v_subrev_u32 v{d}, s{sT0}, v{d}")
        A(f"v_cmp_ne_u32 s[{sE0+2*n}:{sE0+2*n+1}], s{sNo+1}, v{d+1}")
    for n, (d, ad) in enumerate(polls):
        A(f"v_cmp_lt_u32 " + ("vcc" if n == 0 else "s[6:7]") + f", {3-phase}, v{d}")
    A("s_nop 3")
    A(f"s_or_b64 s[{sE0}:{sE0+1}], s[{sE0}:{sE0+1}], vcc")
    if len(polls) > 1:
        A(f"s_or_b64 s[6:7], s[6:7], s[{sE0+2}:{sE0+3}]")
        A(f"s_or_b64 s[{sE0}:{sE0+1}], s[{sE0}:{sE0+1}], s[6:7]")
    A(f"s_cbranch_scc0 {lab}r ; pollbr")
    A(f"s_add_u32 s{sT1}, s{sT1}, 1")
    A(f"s_cmp_ge_u32 s{sT1}, 0x40000")
    A(f"s_cbranch_scc1 {lab}r")
    for d, ad in polls: flag_load(A, d, ad)
    A("s_waitcnt vmcnt(0)")
    A(f"s_branch {lab}c")
    A(f"{lab}r:")

def q_setup():
    w = sWave
    return [
     f"s_mul_i32 s{qT0}, s{qP}, 14\ns_add_u32 s{qT0}, s{qT0}, 128\ns_lshl_b32 s{qT1}, s{qP}, 5",
     f"s_and_b32 s{sT2}, s{w}, 1\ns_lshl_b32 s6, s{sT2}, 11\ns_lshl_b32 s{qAo}, s{qT0}, 12",
     f"s_add_u32 s{qAo}, s{qAo}, s6\ns_lshl_b32 s{qAs}, s{qT1}, 12\ns_add_u32 s{qAs}, s{qAs}, s6",
     f"s_lshr_b32 s7, s{w}, 1\ns_lshl_b32 s6, s{qCb}, 1\ns_add_u32 s6, s6, s7",
     f"s_mul_i32 s6, s6, 5120\ns_add_u32 s{qWo}, s{qT0}, s{sT2}\ns_mul_i32 s{qWo}, s{qWo}, 40960",
     f"s_add_u32 s{qWo}, s{qWo}, s6\ns_add_u32 s{qWs}, s{qT1}, s{sT2}\ns_mul_i32 s{qWs}, s{qWs}, 40960",
     f"s_add_u32 s{qWs}, s{qWs}, s6\ns_add_u32 s{qT1}, s{qT1}, 32\ns_lshl_b32 s{qAe}, s{qT1}, 12",
     f"s_mul_i32 s{qWe}, s{qT1}, 40960\ns_mul_i32 s{qWm}, s{sT2}, 10240\ns_mul_i32 s6, s7, 5120",
     f"s_add_u32 s{qWm}, s{qWm}, s6\ns_lshl_b32 s6, s{qRb}, 1\ns_add_u32 s6, s6, s7",
     f"s_mul_i32 s6, s6, {A_BLK}\ns_add_u32 s{qA}, s{pWs}, s6\ns_addc_u32 s{qA+1}, s{pWs+1}, 0",
     f"s_and_b32 s{qA+1}, s{qA+1}, 0xffff\ns_mov_b32 s{qA+2}, {A_BLK}\ns_mov_b32 s{qA+3}, 0x20000",
     f"s_mov_b32 s{qW}, s{sWp}\ns_mov_b32 s{qW+1}, s{sWp+1}\ns_mov_b32 s{qW+2}, {W_SIZE}\ns_mov_b32 s{qW+3}, 0x20000",
     f"s_lshl2_add_u32 s6, s{qRb}, s{qP}\ns_lshl_b32 s6, s6, 1\ns_add_u32 s6, s6, s7\ns_mul_i32 s{qXo}, s6, 20480",
     f"s_lshl_b32 s6, s{qCb}, 1\ns_add_u32 s6, s6, s{sT2}\ns_mul_i32 s6, s6, 160\ns_add_u32 s{qXo}, s{qXo}, s6",
     f"s_xor_b32 s{qT0}, s{w}, s{qP}\ns_mul_i32 s{qT1}, s{w}, 6\ns_add_u32 s{qT1}, s{qT1}, s{qT0}\ns_sub_u32 s{qT1}, s{qT1}, 1",
     f"s_mul_i32 s{qT1}, s{qT1}, 10240\ns_cmp_eq_u32 s{qT0}, 0\ns_cselect_b32 s{qSo}, 0x100000, s{qT1}\ns_mov_b32 s{qNl}, 7",
    ]

def q_loads(slot):
    it = [f"s_add_u32 m0, s{qWm}, {slot*20480}"]
    for j in range(4):
        it.append(f"buffer_load_dwordx4 v{vL16}, s[{qW}:{qW+3}], s{qWo} offen offset:{j*1024} sc1 lds ; @put W2")
    it.append(f"s_add_u32 m0, s{qWm}, {slot*20480+4096}")
    it.append(f"buffer_load_dwordx4 v{vL16+1}, s[{qW}:{qW+3}], s{qWo} offen sc1 lds ; @put W2")
    for k in range(2):
        for rt in range(2):
            it.append(f"buffer_load_dwordx4 {ar(aA2+(slot*4+k*2+rt)*4,4)}, v{vL16+k}, s[{qA}:{qA+3}], s{qAo} offen offset:{rt*1024} sc1")
    it.append(f"s_add_u32 s{qWo}, s{qWo}, 81920\ns_add_u32 s{qAo}, s{qAo}, 8192")
    it.append(f"s_sub_u32 s{qNl}, s{qNl}, 1\ns_cmp_eq_u32 s{qNl}, 0\ns_cselect_b32 s{qWo}, s{qWs}, s{qWo}")
    it.append(f"s_cselect_b32 s{qAo}, s{qAs}, s{qAo}\ns_cselect_b32 s{qW+2}, s{qWe}, s{qW+2}\ns_cselect_b32 s{qA+2}, s{qAe}, s{qA+2}")
    return it

def gemm2(A, L, emit, stamp):
    ac, vT, vX, vZ = 64, 144, 168, 180
    srd(A, qX, pX, pX + 1, X_SIZE)
    srd(A, qO, pOut, pOut + 1, X_SIZE)
    for i in range(4): A(f"v_mov_b32 v{vZ+i}, 0")
    A(f"v_and_b32 v{vT}, 15, v{vLane}")
    A(f"v_mul_u32_u24 v{vT}, 1280, v{vT}")
    A(f"v_lshrrev_b32 v{vT+1}, 4, v{vLane}")
    A(f"v_lshl_add_u32 v{vXo2}, v{vT+1}, 3, v{vT}")
    def zero():
        for i in range(5): mf32(A, vr(ac + 16 * i, 16), vr(vZ, 4), vr(vZ, 4), "0")
    zero()
    A(f"v_mov_b32 v{vWr2}, v{vL16}")
    A(f"v_add_u32 v{vWr2+1}, 40960, v{vL16}")
    A(f"v_lshlrev_b32 v{vL8}, 3, v{vLane}")
    A(f"v_add_u32 v{vOwn}, {RING2}, v{vL16}")
    A(f"s_mov_b32 s{qN}, 0")
    A(f"s_mov_b32 s{qT0}, {hex((1<<2)|(1<<3)|(1<<4)|(1<<7)|(1<<10)|(1<<22)|(1<<23))}")
    A(f"s_movk_i32 s{qT1}, {hex((1<<0)|(1<<7)|(1<<8))}")
    def wread2(slot, f, buf):
        k, ct = f // 10, f % 10
        return f"ds_read_b128 {ar(aW2+buf*4,4)}, v{vWr2+slot//2} offset:{(slot%2)*20480+k*10240+ct*1024}"
    A(f"s_waitcnt vmcnt({18+16})")
    A("s_barrier ; @need W2 10")
    stamp(7)
    for f in range(3): A(wread2(0, f, f))
    lq = LQ()
    for f in range(3): lq.issue(f)
    A(".p2align 6")
    A(f"{L}q:")
    for slot in range(4):
        ns = (slot + 1) % 4
        slots = spread(q_loads((slot + 3) % 4), 16)
        for f in range(20):
            k, ct = f // 10, f % 10
            lq.wait(A, [f])
            for r in range(2):
                rt = r if f % 2 == 0 else 1 - r
                mf16(A, vr(ac + (rt * 10 + ct) * 4, 4), ar(aW2 + (f % 4) * 4, 4), ar(aA2 + (slot * 4 + k * 2 + rt) * 4, 4))
                if r == 0 and f + 3 < 20:
                    A(wread2(slot, f + 3, (f + 3) % 4)); lq.issue(f + 3)
                if f == 18:
                    A(wread2(ns, r, r)); lq.issue(r)
                if f == 19 and r == 0:
                    A(wread2(ns, 2, 2)); lq.issue(2)
                if r == 1 and f < 16: emit(slots[f])
                if r == 0 and f == 17 and slot != 2: A(f"s_bitcmp1_b32 s{qT1}, s{qN}")
            if f == 17:
                if slot != 2:
                    A("s_waitcnt vmcnt(30) lgkmcnt(0)")
                    A(f"s_cbranch_scc1 {L}qw{slot}")
                    A("s_waitcnt vmcnt(18)")
                    A(f"{L}qw{slot}:")
                else: A("s_waitcnt vmcnt(18) lgkmcnt(0)")
                lq.clear()
                A("s_barrier ; @need W2 10")
            if f == 19:
                A(f"s_add_u32 s{qN}, s{qN}, 1")
        if slot:
            A(f"s_bitcmp1_b32 s{qT0}, s{qN}")
            A(f"s_cbranch_scc1 {L}qe{slot}")
            A(f"{L}qr{slot}:")
    A(f"s_branch {L}q")
    def send(kind):
        A(f"s_add_u32 s{sT0}, s{qSo}, {kind*30720}")
        A(f"s_cmp_lg_u32 s{sWave}, s{qP}")
        A(f"s_cbranch_scc1 {L}no{kind}")
        A("s_nop 1")
        for i in range(20): A(f"ds_write_b128 v{vOwn}, {vr(ac+4*i,4)} offset:{kind*20480+i*1024}")
        A("s_waitcnt lgkmcnt(0)")
        A(f"{L}no{kind}:")
        for c in range(4):
            b = vT + (c % 2) * 12
            for i in range(10): A(f"v_cvt_pk_bf16_f32 v{b+i}, v{ac+c*20+2*i}, v{ac+c*20+2*i+1}")
            if kind == 0:
                for i in range(10): A(f"v_min_u32 v{b+i}, -2, v{b+i}")
            if c: A(f"s_add_u32 s{sT0}, s{sT0}, 2560")
            A(f"buffer_store_dwordx4 {vr(b,4)}, v{vL16}, s[{qI}:{qI+3}], s{sT0} offen sc1 ; @put H")
            A(f"buffer_store_dwordx4 {vr(b+4,4)}, v{vL16}, s[{qI}:{qI+3}], s{sT0} offen offset:1024 sc1 ; @put H")
            A(f"buffer_store_dwordx2 {vr(b+8,2)}, v{vL8}, s[{qI}:{qI+3}], s{sT0} offen offset:2048 sc1 ; @put H")
    A(f"{L}qe1:")
    A(f"s_cmp_eq_u32 s{qN}, 22")
    A(f"s_cbranch_scc1 {L}qe1b")
    A(f"s_cmp_eq_u32 s{qN}, 2")
    A(f"s_cbranch_scc1 {L}qe1c")
    for ct in range(5):
        A(f"buffer_load_dwordx2 {vr(vX+2*ct,2)}, v{vXo2}, s[{qX}:{qX+3}], s{qXo} offen offset:{ct*32}")
    set_flag(A, 3, f"{L}qr1")
    A(f"s_branch {L}qr1")
    A(f"{L}qe1c:")
    set_flag(A, 2, f"{L}qr1")
    A(f"s_branch {L}qr1")
    A(f"{L}qe1b:")
    flag_load(A, vPb, vAp)
    A(f"s_branch {L}qr1")
    A(f"{L}qe3:")
    A("s_waitcnt vmcnt(9)")
    flag_wait(A, f"{L}w2", 2, [(vPa, vAo)])
    stamp(8)
    A(f"s_branch {L}qr3")
    A(f"{L}qe2:")
    A(f"s_cmp_eq_u32 s{qN}, 23")
    A(f"s_cbranch_scc1 {L}qx")
    A(f"s_cmp_eq_u32 s{qN}, 7")
    A(f"s_cbranch_scc1 {L}qe2b")
    flag_load(A, vPa, vAo)
    A(f"s_branch {L}qr2")
    A(f"{L}qe2b:")
    stamp(9)
    send(1)
    zero()
    A("s_nop 7")
    A(f"s_branch {L}qr2")
    A(f"{L}qx:")
    stamp(10)
    A("s_waitcnt vmcnt(9)")
    flag_wait(A, f"{L}w3", 3, [(vPb, vAp)])
    S, U, IN, XR, E, T = 64, 84, 104, 184, 204, 224
    INU = 8
    A(f"s_mul_i32 s{sT0}, s{qP}, 61440")
    A(f"s_mul_i32 s{sT1}, s{sWave}, 2560")
    A(f"s_add_u32 s{qIn}, s{sT0}, s{sT1}")
    for sl in range(1, 6): A(f"s_add_u32 s{qIn+sl}, s{qIn}, {sl*10240}")
    def inreg(sl): return IN + sl * 10 if sl < 3 else (8, 44, 244)[sl - 3]
    def inload(sl):
        b = inreg(sl)
        A(f"buffer_load_dwordx4 {vr(b,4)}, v{vL16}, s[{qI}:{qI+3}], s{qIn+sl} offen sc1")
        A(f"buffer_load_dwordx4 {vr(b+4,4)}, v{vL16}, s[{qI}:{qI+3}], s{qIn+sl} offen offset:1024 sc1")
        A(f"buffer_load_dwordx2 {vr(b+8,2)}, v{vL8}, s[{qI}:{qI+3}], s{qIn+sl} offen offset:2048 sc1")
    for sl in (3, 4, 5): inload(sl)
    send(0)
    A(f"s_mul_i32 s{sT0}, s{sWave}, 5120")
    A(f"v_add_u32 v{vOwn}, s{sT0}, v{vOwn}")
    A("s_barrier")
    for i in range(5): A(f"ds_read_b128 {vr(U+4*i,4)}, v{vOwn} offset:{20480+i*1024}")
    for i in range(5): A(f"ds_read_b128 {vr(S+4*i,4)}, v{vOwn} offset:{i*1024}")
    for i in range(10):
        A(f"v_lshlrev_b32 v{XR+2*i}, 16, v{vX+i}")
        A(f"v_and_b32 v{XR+2*i+1}, 0xffff0000, v{vX+i}")
    def addin(sl, dst):
        b = inreg(sl)
        for i in range(10):
            A(f"v_lshlrev_b32 v{T+2*i}, 16, v{b+i}")
            A(f"v_and_b32 v{T+2*i+1}, 0xffff0000, v{b+i}")
        for i in range(10): A(f"v_pk_add_f32 {vr(dst+2*i,2)}, {vr(dst+2*i,2)}, {vr(T+2*i,2)}")
    A(f"s_mov_b32 s{sT0}, {hex(f2u(-LOG2E))}")
    A("s_waitcnt vmcnt(12) lgkmcnt(0)"); addin(3, U)
    addin(4, U); addin(5, U)
    for i in range(20): A(f"v_mul_f32 v{E+i}, s{sT0}, v{U+i}")
    for i in range(20): A(f"v_exp_f32 v{E+i}, v{E+i}")
    for i in range(20): A(f"v_add_f32 v{E+i}, 1.0, v{E+i}")
    for i in range(20): A(f"v_rcp_f32 v{E+i}, v{E+i}")
    stamp(11)
    for sl in (0, 1, 2): inload(sl)
    A(f"s_mov_b32 s{sT1}, 0")
    for i in range(10): A(f"v_pk_mul_f32 {vr(U+2*i,2)}, {vr(U+2*i,2)}, {vr(E+2*i,2)}")
    A(f"{L}sc:")
    A("s_waitcnt vmcnt(0)")
    for i in range(3): A(f"v_max3_u32 v{T+i}, v{IN+10*i}, v{IN+10*i+1}, v{IN+10*i+2}")
    for j in range(3):
        for i in range(3): A(f"v_max3_u32 v{T+i}, v{T+i}, v{IN+10*i+3+2*j}, v{IN+10*i+4+2*j}")
    A(f"v_max3_u32 v{T+3}, v{IN+9}, v{IN+19}, v{IN+29}")
    A(f"v_max3_u32 v{T}, v{T}, v{T+1}, v{T+2}")
    A(f"v_max_u32 v{T}, v{T}, v{T+3}")
    A(f"v_cmp_eq_u32 vcc, -1, v{T}")
    A("s_nop 3")
    A(f"s_cbranch_vccz {L}sr ; pollbr")
    A(f"s_add_u32 s{sT1}, s{sT1}, 1")
    A(f"s_cmp_ge_u32 s{sT1}, 0x40000")
    A(f"s_cbranch_scc1 {L}sr")
    for sl in range(3): inload(sl)
    A(f"s_branch {L}sc")
    A(f"{L}sr:")
    stamp(12)
    for sl in range(3): addin(sl, S)
    for i in range(10): A(f"v_pk_fma_f32 {vr(XR+2*i,2)}, {vr(S+2*i,2)}, {vr(U+2*i,2)}, {vr(XR+2*i,2)}")
    for i in range(10): A(f"v_cvt_pk_bf16_f32 v{vX+i}, v{XR+2*i}, v{XR+2*i+1}")
    for ct in range(5):
        A(f"buffer_store_dwordx2 {vr(vX+2*ct,2)}, v{vXo2}, s[{qO}:{qO+3}], s{qXo} offen offset:{ct*32}" + (" sc1" if "outsc1" in OPT else ""))
    stamp(13)

def gen_p1(A, name, stamps=False, code_bytes=29696):
    head(A, name)
    L = "p1_"
    A("s_cmp_ge_u32 s2, 256")
    A(f"s_cbranch_scc1 {L}end")
    A("s_load_dwordx16 s[64:79], s[0:1], 0")
    A("s_load_dwordx8 s[80:87], s[0:1], 64")
    A(f"s_memrealtime s[{sNo}:{sNo+1}]")
    if stamps: A("s_memtime s[94:95]")
    def stamp(i):
        if not stamps: return
        A(f"s_memtime s[96:97]")
        A(f"s_memrealtime s[98:99]")
        A("s_waitcnt lgkmcnt(0)")
        A(f"v_mov_b32 v{vTm+18}, s96"); A(f"v_mov_b32 v{vTm+19}, s98")
        A(f"s_lshl_b32 s96, s2, 2"); A(f"s_add_u32 s96, s96, s{sWave}"); A("s_lshl_b32 s96, s96, 7")
        A(f"v_mov_b32 v{vZero}, s96")
        if i == 0: A(f"v_mov_b32 v{vTm+16}, s94")
        A(f"s_add_u32 s96, s{pWs}, 0x3100000"); A(f"s_addc_u32 s97, s{pWs+1}, 0")
        A(f"global_store_dwordx2 v{vZero}, {vr(vTm+18,2)}, s[96:97] offset:{i*8}")
        if i == 0: A(f"global_store_dword v{vZero}, v{vTm+16}, s[96:97] offset:120")
    t = vTm
    def emit(items):
        for it in items:
            if "lds" in it and A.lines[-1].split()[1].startswith("m0"): A("s_nop 0")
            A(it)
    A(f"v_and_b32 v{vLane}, 63, v0")
    A("v_lshrrev_b32 v0, 6, v0")
    A("s_and_b32 s6, s2, 7")
    A(f"v_readfirstlane_b32 s{sWave}, v0")
    A(f"s_lshr_b32 s{sT0}, s2, 3")
    A(f"s_lshr_b32 s{sRb}, s{sT0}, 2")
    A(f"s_and_b32 s{sT1}, s{sT0}, 3")
    A(f"s_lshl2_add_u32 s{sHead}, s6, s{sT1}")
    A(f"s_sub_u32 s{sT2}, s6, s{sRb}")
    A(f"s_add_u32 s{sT2}, s{sT2}, 3")
    A(f"s_and_b32 s{sT2}, s{sT2}, 7")
    A(f"s_mul_i32 s{sFb}, s6, 3")
    A(f"s_add_u32 s{sFb}, s{sFb}, s{sT1}")
    A(f"s_add_u32 s7, s{sT2}, 24")
    A(f"s_cmp_eq_u32 s{sT1}, 3")
    A(f"s_cselect_b32 s{sFb}, s7, s{sFb}")
    A(f"s_cmp_lt_u32 s{sFb}, 27")
    A(f"s_cselect_b32 s{sHasF}, 1, 0")
    A(f"s_sub_u32 s{sProd}, s{sFb}, 27")
    A(f"v_lshrrev_b32 v{t+7}, 3, v{vLane}")
    A(f"v_and_b32 v{t+6}, 7, v{vLane}")
    A(f"v_lshrrev_b32 v{t+12}, 4, v{vLane}")
    A(f"v_xor_b32 v{t+13}, v{t+6}, v{t+12}")
    A(f"v_lshlrev_b32 v{t+13}, 4, v{t+13}")
    A(f"s_movk_i32 s6, 1280")
    A(f"v_mad_u32_u24 v{vXd}, v{t+7}, s6, v{t+13}")
    A(f"v_xor_b32 v{t+13}, 64, v{vXd}")
    for j in range(1, 8):
        A(f"v_add_u32 v{vXd+j}, {j*10240-(j%4)*1024}, v{(t+13) if j&1 else vXd}")
    A(f"s_lshl2_add_u32 s6, s{sRb}, s{sWave}")
    A(f"s_mul_i32 s{sXo}, s6, {64*1280}")
    A(f"s_mul_i32 s{sKVo}, s6, {A_BLK}")
    A(f"s_lshl_b32 s{sM0X}, s{sWave}, 13")
    A(f"s_add_u32 s{sM0X}, s{sM0X}, {R1}")
    A(f"s_mov_b32 s{sTail}, 0")
    A(f"s_and_b32 s6, s{sWave}, 1")
    A(f"s_lshl_b32 s7, s6, 2")
    A(f"v_add_u32 v{t+13}, s7, v{t+12}")
    A(f"v_lshlrev_b32 v{t+13}, 1, v{t+13}")
    A(f"v_and_b32 v{t+14}, 15, v{vLane}")
    A(f"v_xor_b32 v{t+13}, v{t+13}, v{t+14}")
    A(f"v_lshlrev_b32 v{t+13}, 4, v{t+13}")
    A(f"s_lshl_b32 s7, s{sWave}, 3")
    A(f"v_add_u32 v{t+15}, s7, v{t+12}")
    A(f"v_lshl_add_u32 v{vWqd}, v{t+15}, 13, v{t+13}")
    A(f"v_add_u32 v{vWqd+1}, {4*8192-1024}, v{vWqd}")
    A(f"v_bfe_u32 v{t+13}, v{vLane}, 4, 1")
    A(f"s_lshl_b32 s6, s6, 1")
    A(f"v_add_u32 v{t+13}, s6, v{t+13}")
    A(f"v_lshlrev_b32 v{t+13}, 1, v{t+13}")
    A(f"v_xor_b32 v{t+13}, v{t+13}, v{t+6}")
    A(f"v_lshlrev_b32 v{t+13}, 4, v{t+13}")
    A(f"v_add_u32 v{t+15}, s7, v{t+7}")
    A(f"s_movk_i32 s6, 3456")
    A(f"v_mad_u32_u24 v{vW13d}, v{t+15}, s6, v{t+13}")
    A(f"s_lshl_b32 s{sWqo}, s{sHead}, 8")
    A(f"s_lshl_b32 s{sW13o}, s{sFb}, 7")
    A(f"s_mov_b32 s{sSlot}, 0")
    A("s_waitcnt lgkmcnt(0)")
    A(f"s_lshl_b32 s{sC0}, s{sWave}, 12")
    A(f"s_add_u32 s{sC0}, s{sC0}, {R3}")
    A(f"s_mov_b32 s{sM0W}, s{sC0}")
    srd(A, sX, pX, pX + 1, X_SIZE)
    srd(A, sWq, pWq, pWq + 1, 640 * 8192)
    for (d, p, sh) in ((sW1, pW1, 2048), (sW3, pW3, 3072)):
        A(f"s_sub_u32 s{d}, s{p}, {sh}")
        A(f"s_subb_u32 s{d+1}, s{p+1}, 0")
        A(f"s_and_b32 s{d+1}, s{d+1}, 0xffff")
        A(f"s_mul_i32 s{d+2}, s{sHasF}, {640*3456+sh}")
        A(f"s_mov_b32 s{d+3}, 0x20000")
    srd(A, sX2, pX, pX + 1, X_SIZE)
    A(f"s_movk_i32 s{sM0d}, 4096")
    A(f"s_movk_i32 s{sXst}, 128")
    A(f"s_mov_b32 s{sM0t}, 0x18000")
    RAW, UNP = 64, 96
    A(f"v_mov_b32 v{t+5}, 0")
    A(f"s_cmp_ge_u32 s{sProd}, 4")
    A(f"s_cbranch_scc1 {L}np1")
    A(f"v_lshrrev_b32 v{t+5}, 2, v{vLane}")
    A(f"v_and_b32 v{t+13}, 3, v{vLane}")
    A(f"v_lshlrev_b32 v{t+13}, 4, v{t+13}")
    A(f"s_movk_i32 s6, 1280")
    A(f"v_mad_u32_u24 v{t+13}, v{t+5}, s6, v{t+13}")
    A(f"s_lshl2_add_u32 s6, s{sRb}, s{sProd}")
    A(f"s_lshl2_add_u32 s6, s6, s{sWave}")
    A(f"s_lshl_b32 s7, s6, 8")
    A(f"v_lshl_add_u32 v{t+5}, v{t+5}, 4, s7")
    A(f"s_mul_i32 s6, s6, {16*1280}")
    for i in range(20):
        A(f"buffer_load_dwordx4 {vr(RAW+4*i,4)}, v{t+13}, s[{sX}:{sX+3}], s6 offen offset:{i*64}")
    A(f"{L}np1:")
    emit(dma_w(True)); emit(dma_x(0)); emit(dma_x(1))
    stamp(0)
    A("s_getpc_b64 s[6:7]")
    A(f"s_and_b32 s{sT0}, s{sT0}, 7")
    A(f"s_lshl2_add_u32 s{sT0}, s{sT0}, s{sWave}")
    A(f"s_lshl_b32 s{sT0}, s{sT0}, 10")
    A(f"s_min_u32 s{sT0}, s{sT0}, {code_bytes-1024}")
    A(f"v_lshl_add_u32 v{vTm+4}, v{vLane}, 4, s{sT0}")
    if "nocpf" not in OPT: A(f"global_load_dwordx4 {vr(vTm+8,4)}, v{vTm+4}, s[6:7]")
    else: A(f"global_load_dword v{vTm+8}, v{vLane}, s[0:1]")
    emit(dma_w(True)); emit(dma_x(0)); emit(dma_w(True))
    A(f"s_add_u32 s{sA}, s{pWs}, s{sKVo}")
    A(f"s_addc_u32 s{sA+1}, s{pWs+1}, 0")
    srd(A, sA, sA, sA + 1, A_BLK)
    A(f"s_add_u32 s{sWp}, s{pWs}, {W_OFF}")
    A(f"s_addc_u32 s{sWp+1}, s{pWs+1}, 0")
    srd(A, sWp, sWp, sWp + 1, W_SIZE)
    A(f"s_lshl2_add_u32 s{sT1}, s{sHead}, s{sWave}")
    A(f"s_mul_i32 s{sU}, s{sT1}, 10")
    A(f"s_lshl_b32 s{sT2}, s{sRb}, 1")
    A(f"s_add_u32 s{sU}, s{sU}, s{sT2}")
    A(f"s_mul_i32 s{sT1}, s{sT1}, 40960")
    A(f"s_lshl_b32 s{sT2}, s{sRb}, 8")
    A(f"s_add_u32 s{sPo}, s{sT1}, s{sT2}")
    srd(A, sSrc, pWo, pWo + 1, 4096 * 1280)
    A(f"s_cmp_lt_u32 s{sRb}, 5")
    A(f"s_cselect_b32 s{sSrc+2}, s{sSrc+2}, 0")
    A(f"s_cselect_b32 s{sU}, s{sU}, 2000")
    A(f"v_mov_b32 v{t+6}, 0")
    A(f"s_or_b32 s6, s2, s{sWave}")
    A(f"s_cbranch_scc1 {L}ntag")
    A(f"s_lshl_b64 s[6:7], s[{sNo}:{sNo+1}], 2")
    A(f"s_or_b32 s7, s7, 0x80000000")
    A(f"v_mov_b32 v{t+14}, s6")
    A(f"v_mov_b32 v{t+15}, s7")
    A("s_mov_b64 exec, 1")
    A(f"global_store_dwordx2 v{t+6}, {vr(t+14,2)}, s[{pDbg}:{pDbg+1}] offset:128 sc1")
    A("s_mov_b64 exec, -1")
    A(f"{L}ntag:")
    A(f"v_and_b32 v{t+14}, 15, v{vLane}")
    A(f"v_lshrrev_b32 v{t+13}, 1, v{t+14}")
    A(f"v_xor_b32 v{t+13}, v{t+13}, v{t+12}")
    A(f"v_lshlrev_b32 v{t+13}, 4, v{t+13}")
    A(f"v_lshl_add_u32 v{t+13}, v{t+14}, 7, v{t+13}")
    A(f"s_lshl_b32 s6, s{sWave}, 13")
    A(f"s_add_u32 s6, s6, {R1}")
    A(f"v_add_u32 v{vXr}, s6, v{t+13}")
    A(f"v_xor_b32 v{vXr+1}, 64, v{vXr}")
    A(f"v_lshlrev_b32 v{t+3}, 4, v{t+14}")
    A(f"v_bfe_u32 v{t+14}, v{vLane}, 2, 2")
    A(f"v_and_b32 v{t+15}, 3, v{vLane}")
    A(f"v_lshlrev_b32 v{t+15}, 3, v{t+15}")
    A(f"v_lshl_add_u32 v{t+15}, v{t+12}, 12, v{t+15}")
    A(f"v_add_u32 v{t+15}, {R3}, v{t+15}")
    A(f"v_bfe_u32 v{t+16}, v{vLane}, 4, 1")
    A(f"v_lshl_add_u32 v{t+13}, v{t+16}, 2, v{t+14}")
    A(f"s_lshl_b32 s6, s{sWave}, 1")
    A(f"v_xor_b32 v{t+13}, s6, v{t+13}")
    A(f"v_lshl_add_u32 v{t+13}, v{t+13}, 5, v{t+15}")
    A(f"v_lshl_add_u32 v{vWqr}, v{t+14}, 8, v{t+13}")
    for p in range(1, 8): A(f"v_xor_b32 v{vWqr+p}, {32*p}, v{vWqr}")
    A(f"v_lshrrev_b32 v{t+13}, 1, v{t+14}")
    A(f"v_lshl_add_u32 v{t+13}, v{t+16}, 1, v{t+13}")
    A(f"v_xor_b32 v{t+13}, s{sWave}, v{t+13}")
    A(f"v_lshl_add_u32 v{t+13}, v{t+13}, 5, v{t+15}")
    A(f"v_lshl_add_u32 v{vW13r}, v{t+14}, 7, v{t+13}")
    for p in range(1, 4): A(f"v_xor_b32 v{vW13r+p}, {32*p}, v{vW13r}")
    srd(A, sK, pK, pK + 1, 16777216)
    srd(A, sV, pV, pV + 1, 16777216)
    A(f"s_add_u32 s{sSt}, s{pWs}, {ST_OFF}")
    A(f"s_addc_u32 s{sSt+1}, s{pWs+1}, 0")
    srd(A, sSt, sSt, sSt + 1, 2048 * 16)
    A(f"s_lshl_b32 s6, s{sRb}, 2")
    A(f"v_mov_b32 v{t+2}, s6")
    A(f"s_movk_i32 s{sMask}, {EVMASK}")
    A(f"s_mov_b32 s{sD}, 0")
    A(f"s_cmp_ge_u32 s{sProd}, 4")
    A(f"s_cbranch_scc1 {L}np2")
    A("s_waitcnt vmcnt(25)")
    for i in range(79, -1, -1):
        A(f"v_and_b32 v{UNP+2*i+1}, 0xffff0000, v{RAW+i}")
        A(f"v_lshlrev_b32 v{UNP+2*i}, 16, v{RAW+i}")
    a = 64
    def red(first):
        for i in range(80):
            first(i)
        A(f"v_pk_add_f32 {vr(a,2)}, {vr(a,2)}, {vr(a+2,2)}")
        A(f"v_pk_add_f32 {vr(a+4,2)}, {vr(a+4,2)}, {vr(a+6,2)}")
        A(f"v_pk_add_f32 {vr(a,2)}, {vr(a,2)}, {vr(a+4,2)}")
        A(f"v_add_f32 v{a}, v{a}, v{a+1}")
        for qp in ("[1,0,3,2]", "[2,3,0,1]"):
            A("s_nop 1")
            A(f"v_add_f32_dpp v{a}, v{a}, v{a} quad_perm:{qp} row_mask:0xf bank_mask:0xf")
    def f1(i):
        d = vr(a + 2 * (i % 4), 2)
        if i < 4: A(f"v_pk_add_f32 {d}, {vr(UNP+2*i,2)}, {vr(UNP+2*i+8,2)}")
        elif i >= 8: A(f"v_pk_add_f32 {d}, {d}, {vr(UNP+2*i,2)}")
    red(f1)
    o = 72
    A(f"v_mul_f32 v{o}, {hex(f2u(-1.0/640))}, v{a}")
    for i in range(80): A(f"v_pk_add_f32 {vr(UNP+2*i,2)}, {vr(UNP+2*i,2)}, {vr(o,2)} op_sel_hi:[1,0]")
    def f2(i):
        d = vr(a + 2 * (i % 4), 2); x_ = vr(UNP + 2 * i, 2)
        if i < 4: A(f"v_pk_mul_f32 {d}, {x_}, {x_}")
        else: A(f"v_pk_fma_f32 {d}, {x_}, {x_}, {d}")
    red(f2)
    A(f"v_mov_b32 v{o+3}, {hex(f2u(1e-5))}")
    A(f"v_fmac_f32 v{o+3}, {hex(f2u(1.0/640))}, v{a}")
    A(f"v_mov_b32 v{o+2}, v{o+3}")
    A(f"v_rsq_f32 v{o+1}, v{o+3}")
    A("s_mov_b32 exec_lo, 0x11111111")
    A("s_mov_b32 exec_hi, 0x11111111")
    A(f"buffer_store_dwordx4 {vr(o,4)}, v{t+5}, s[{sSt}:{sSt+3}], 0 offen sc1 ; @put S")
    A("s_mov_b64 exec, -1")
    A("s_waitcnt vmcnt(0)")
    A(f"{L}np2:")
    if "dummy" in OPT:
        A(f"v_lshlrev_b32 v{t+13}, 4, v{vLane}")
        for i in range(16): A(f"buffer_load_dwordx4 {vr(64+4*i,4)}, v{t+13}, s[{sWq}:{sWq+3}], 0 offen offset:{(i%4)*1024}")
        for i in range(128): A(f"v_mov_b32 v{128+i}, 0")
        A("s_waitcnt vmcnt(0)")
        A("s_mov_b32 s6, 0")
        A(f"{L}dmy:")
        for i in range(64): mf16(A, vr(128 + 4 * (i % 32), 4), vr(64 + 4 * (i // 4 % 12), 4), vr(112 + 4 * (i % 4), 4))
        A("s_add_u32 s6, s6, 1")
        A("s_cmp_lt_u32 s6, 40")
        A(f"s_cbranch_scc1 {L}dmy")
        A("s_nop 7")
    if "idle" in OPT:
        A("s_mov_b32 s6, 0")
        A(f"{L}dmy:")
        for i in range(64): A("s_nop 15")
        A("s_add_u32 s6, s6, 1")
        A("s_cmp_lt_u32 s6, 40")
        A(f"s_cbranch_scc1 {L}dmy")
    for i in range(4): A(f"v_mov_b32 v{vSt+i}, 0")
    A(f"v_mov_b32 v{t+13}, 0x3f803f80")
    for i in range(4): A(f"v_accvgpr_write_b32 a{aOne+i}, v{t+13}")
    z = vr(vSt, 4)
    for i in range(8): mf32(A, vr(vAcc + 16 * i, 16), z, z, "0")
    for i in range(9): mf32(A, ar(16 * i, 16), z, z, "0")
    A(f"s_waitcnt vmcnt(12)")
    A("s_barrier")
    A(f"s_lshl2_add_u32 s6, s{sProd}, s{sWave}")
    A(f"s_and_b32 s6, s6, 0xfffffff3")
    A(f"s_cbranch_scc1 {L}np3")
    A(f"v_mov_b32 v{t+1}, 1")
    A(f"v_add_u32 v{t+7}, s{sProd}, v{t+2}")
    A(f"s_mov_b64 exec, 1")
    A(f"global_store_byte v{t+7}, v{t+1}, s[{pDbg}:{pDbg+1}] sc1")
    A(f"s_mov_b64 exec, -1")
    A(f"{L}np3:")
    stamp(1)
    for rt in range(4): A(xread(0, 0, rt))
    A(f"s_cmp_eq_u32 s{sHasF}, 0")
    fr = frag_list(True)
    for f in range(3):
        for sec in range(2): A(wread(fr[f], 0, sec, f))
    A("s_waitcnt lgkmcnt(6)")
    if FINE: A("s_mov_b32 s7, 0")
    A(f"s_cbranch_scc1 {L}gn")
    gemm_loop(A, True, L + "gf")
    A(f"s_branch {L}gdone")
    gemm_events(A, L + "gf")
    gemm_events(A, L + "gn")
    gemm_loop(A, False, L + "gn")
    A(f"{L}gdone:")
    if FINE:
        A(f"s_lshl_b32 s96, s2, 2"); A(f"s_add_u32 s96, s96, s{sWave}"); A("s_lshl_b32 s96, s96, 10")
        A(f"v_lshl_add_u32 v{vTm+12}, v{vLane}, 2, s96")
        A(f"s_add_u32 s100, s{pWs}, 0x3200000"); A(f"s_addc_u32 s101, s{pWs+1}, 0")
        A(f"global_store_dword v{vTm+12}, v{vFin}, s[100:101]")
        A(f"global_store_dword v{vTm+12}, v{vFin+1}, s[100:101] offset:256")
        A(f"global_store_dword v{vTm+12}, v{vFin-1}, s[100:101] offset:512")
    stamp(2)
    A(f"v_lshrrev_b32 v{t+12}, 4, v{vLane}")
    A(f"v_lshlrev_b32 v{t+12}, 4, v{t+12}")
    A(f"s_lshl_b32 s6, s{sWave}, 7")
    A(f"s_add_u32 s6, s6, {CS}")
    A(f"v_add_u32 v{t+8}, s6, v{t+12}")
    A(f"s_lshl_b32 s6, s{sWave}, 6")
    A(f"s_add_u32 s6, s6, {CS+512}")
    A(f"v_add_u32 v{t+9}, s6, v{t+12}")
    A("s_mov_b32 exec_lo, 0x00010001")
    A("s_mov_b32 exec_hi, 0x00010001")
    A(f"ds_write_b128 v{t+8}, {ar(aCs,4)}")
    A(f"ds_write_b128 v{t+8}, {ar(aCs+4,4)} offset:64")
    A(f"ds_write_b128 v{t+9}, {ar(aCs+8,4)}")
    A(f"ds_write_b128 v{t+9}, {ar(aCs+12,4)} offset:256")
    A("s_mov_b64 exec, -1")
    for j in range(8): A(f"v_mov_b32 v{vKd+j}, v{vXd+j}")
    A(f"s_mov_b32 s{sKVo}, s{sXo}")
    A(f"s_mov_b32 s{sKVm}, s{sM0X}")
    A(f"v_lshlrev_b32 v{t+10}, 4, v{vLane}")
    A(f"s_and_b32 s{qP}, s2, 3")
    A(f"s_lshr_b32 s{qCb}, s2, 6")
    A(f"s_bfe_u32 s{qRb}, s2, 0x30003")
    A(f"s_and_b32 s6, s2, 4")
    A(f"s_lshl_b32 s6, s6, 1")
    A(f"s_add_u32 s{qRb}, s{qRb}, s6")
    A(f"s_lshl2_add_u32 s{qG}, s{qRb}, s{qCb}")
    A(f"s_mul_i32 s6, s{qG}, {IB_G}")
    A(f"s_add_u32 s6, s6, {IB_OFF}")
    A(f"s_add_u32 s{qI}, s{pWs}, s6")
    A(f"s_addc_u32 s{qI+1}, s{pWs+1}, 0")
    srd(A, qI, qI, qI + 1, IB_G)
    vWs = t
    wp_src_voff(A, vWs)
    A("s_waitcnt lgkmcnt(0)")
    A("s_barrier")
    kvadv = [f"s_add_u32 s{sKVo}, s{sKVo}, 16384\ns_add_u32 s{sKVm}, s{sKVm}, 32768"]
    def kvq(): return kv_dma() + kvadv
    csb = [vKr, vKr + 4, vVr + 0]
    lq = LQ()
    def csread_q(p):
        A(f"v_xor_b32 v{t+11}, {64*p}, v{t+8}")
        A(f"ds_read_b128 {vr(csb[p%3],4)}, v{t+11}"); lq.issue(("c", p))
    csread_q(0); csread_q(1)
    wo_dma = []
    for su in range(2):
        wo_dma.append(f"s_lshl_b32 s6, s{sWave}, 13\ns_add_u32 m0, s6, {R4+su*4096}")
        wo_dma += [f"buffer_load_dwordx4 v{vWs+4*su+j}, s[{sSrc}:{sSrc+3}], s{sPo} offen offset:{j*1024} lds ; @put P" for j in range(4)]
    kq = spread([f"s_add_u32 m0, s{sKVm}, 16384"] + kv_dma()[6:] + kvadv + wo_dma, 24)
    for rt in range(4):
        q = vSt + 4 * rt
        A(f"v_mul_f32 v{q+3}, {hex(f2u(LOG2E/128**0.5))}, v{q+1}")
        A(f"v_mul_f32 v{q+1}, {hex(f2u(-LOG2E))}, v{q+1}")
    z = vr(vTm + 12, 4)
    for i in range(4): A(f"v_mov_b32 v{vTm+12+i}, 0")
    for p in range(8):
        if p + 2 < 8: csread_q(p + 2)
        lq.wait(A, [("c", p)])
        c = csb[p % 3]
        for rt in range(4):
            d = vAcc + (p * 4 + rt) * 4; q = vSt + 4 * rt
            for h in range(2):
                A(f"v_pk_fma_f32 {vr(d+2*h,2)}, {vr(c+2*h,2)}, {vr(q,2)}, {vr(d+2*h,2)} op_sel_hi:[1,0,1]")
        mf32(A, ar(aO + 16 * p, 16), z, z, "0")
        emit(kq[3*p])
        for rt in range(4):
            d = vAcc + (p * 4 + rt) * 4; q = vSt + 4 * rt
            for h in range(2):
                A(f"v_pk_mul_f32 {vr(d+2*h,2)}, {vr(d+2*h,2)}, {vr(q+2,2)} op_sel:[0,1]")
        emit(kq[3*p+1])
        for rt in range(4):
            d = vAcc + (p * 4 + rt) * 4
            f = vQ + ((rt // 2) * 8 + p) * 4 + (rt & 1) * 2
            for h in range(2): A(f"v_cvt_pk_bf16_f32 v{f+h}, v{d+2*h}, v{d+2*h+1}")
        emit(kq[3*p+2])
        if p > 0:
            for qt in range(2):
                f = vQ + (qt * 8 + p - 1) * 4
                for h in range(2): A(f"v_permlane16_swap_b32 v{f+h}, v{f+2+h}")
    A("s_nop 0")
    for qt in range(2):
        f = vQ + (qt * 8 + 7) * 4
        for h in range(2): A(f"v_permlane16_swap_b32 v{f+h}, v{f+2+h}")
    stamp(3)
    A(f"s_cmp_eq_u32 s{sHasF}, 0")
    A(f"s_cbranch_scc1 {L}noffn")
    def hst(pi, rt): return f"buffer_store_dwordx4 {vr(vAcc+80+pi*16+rt*4,4)}, v{t+10}, s[{sA}:{sA+3}], s{qT0+pi} offen offset:{rt*1024} sc1"
    T = vAcc; H = vAcc + 80; C = vAcc + 48
    for p in range(4):
        A(f"v_xor_b32 v{t+11}, {64*p}, v{t+9}")
        A(f"ds_read_b128 {vr(C+8*p,4)}, v{t+11}")
        A(f"ds_read_b128 {vr(C+8*p+4,4)}, v{t+11} offset:256")
    A(f"s_lshr_b32 s7, s{sWave}, 1")
    A(f"s_lshl_b32 s6, s{sFb}, 1")
    A(f"s_add_u32 s6, s6, 128")
    A(f"s_add_u32 s{sT0}, s6, s7")
    A(f"s_xor_b32 s7, s7, 1")
    A(f"s_add_u32 s{sT1}, s6, s7")
    A(f"s_lshl_b32 s{qT0}, s{sT0}, 12")
    A(f"s_lshl_b32 s{qT1}, s{sT1}, 12")
    A("s_waitcnt lgkmcnt(0)")
    kq = spread(kvq(), 11) + [[]] * 13
    for p in range(4):
        for r2 in range(2):
            g_ = 3 * (p * 2 + r2)
            G = [(2 * r2 + i, T + 12 * i + 24 * ((p * 2 + r2) & 1)) for i in range(2)]
            for rt, b in G:
                for i in range(4): A(f"v_accvgpr_read_b32 v{b+i}, a{aG+(p*4+rt)*4+i}")
                for i in range(4): A(f"v_accvgpr_read_b32 v{b+4+i}, a{aUp+(p*4+rt)*4+i}")
            emit(kq[g_])
            for rt, b in G:
                for h in range(4):
                    A(f"v_pk_fma_f32 {vr(b+2*h,2)}, {vr(C+8*p+2*h,2)}, {vr(vSt+4*rt,2)}, {vr(b+2*h,2)} op_sel_hi:[1,0,1]")
            for rt, b in G:
                for h in range(2): A(f"v_pk_mul_f32 {vr(b+8+2*h,2)}, {vr(b+2*h,2)}, {vr(vSt+4*rt,2)} op_sel:[0,1]")
            for rt, b in G:
                for i in range(4): A(f"v_exp_f32 v{b+8+i}, v{b+8+i}")
            emit(kq[g_+1])
            for rt, b in G:
                for h in range(2): A(f"v_pk_mul_f32 {vr(b+2*h,2)}, {vr(b+2*h,2)}, {vr(b+4+2*h,2)}")
            for rt, b in G:
                for h in range(2):
                    A(f"v_pk_fma_f32 {vr(b+8+2*h,2)}, {vr(b+8+2*h,2)}, {vr(vSt+4*rt+2,2)}, {vr(vSt+4*rt+2,2)} op_sel_hi:[1,0,0]")
            for rt, b in G:
                for i in range(4): A(f"v_rcp_f32 v{b+8+i}, v{b+8+i}")
            emit(kq[g_+2])
            if p >= 2: A(hst(0, (p - 2) * 2 + r2))
            for n, (rt, b) in enumerate(G):
                for h in range(2): A(f"v_pk_mul_f32 {vr(b+2*h,2)}, {vr(b+2*h,2)}, {vr(b+8+2*h,2)}")
            for rt, b in G:
                for h in range(2): A(f"v_cvt_pk_bf16_f32 v{H+(p//2)*16+rt*4+(p&1)*2+h}, v{b+2*h}, v{b+2*h+1}")
        if p & 1:
            pi = p // 2
            A(f"s_bitcmp1_b32 s{sWave}, 0")
            A(f"s_cbranch_scc0 {L}nsw{pi}")
            for rt in range(4):
                for h in range(2): A(f"v_swap_b32 v{H+pi*16+rt*4+h}, v{H+pi*16+rt*4+2+h}")
            A(f"{L}nsw{pi}:")
    A(f"s_branch {L}ffnd")
    A(f"{L}noffn:")
    emit(kvq())
    A(f"s_mov_b32 s{qT1}, 0x1000000")
    A("s_barrier")
    srd(A, qA, pW2, pW2 + 1, 1728 * 1280)
    wp_src_voff(A, vAcc)
    wp_addr(A, 13)
    A(f"s_mul_i32 s{sT2}, s{sRb}, 5")
    A(f"s_add_u32 s{sT2}, s{sT2}, s{sProd}")
    A(f"s_lshl2_add_u32 s{sT2}, s{sT2}, s{sWave}")
    A(f"{L}w2j:")
    A(f"s_mul_hi_u32 s{sT0}, s{sT2}, 0x33333334")
    A(f"s_mul_i32 s{sT1}, s{sT0}, 5")
    A(f"s_sub_u32 s{sT1}, s{sT2}, s{sT1}")
    A(f"s_mul_i32 s7, s{sT0}, 40960")
    A(f"s_lshl_b32 s6, s{sT1}, 8")
    A(f"s_add_u32 s{sT0}, s7, s6")
    A(f"s_lshl_b32 s6, s{sT1}, 13")
    A(f"s_add_u32 s7, s7, s6")
    A(f"s_add_u32 s{sT1}, s7, {128*40960}")
    A(f"s_lshl_b32 s6, s{sWave}, 13")
    for su in range(2):
        A(f"s_add_u32 m0, s6, {R3+su*4096}")
        A("s_nop 0")
        for j in range(4): A(f"buffer_load_dwordx4 v{vAcc+4*su+j}, s[{qA}:{qA+3}], s{sT0} offen offset:{j*1024} lds")
    A("s_waitcnt vmcnt(0)")
    wp_reads(A, 4096)
    A("s_waitcnt lgkmcnt(0)")
    wp_stores(A, sT1)
    A(f"s_add_u32 s{sT2}, s{sT2}, 160")
    A(f"s_cmp_lt_u32 s{sT2}, 270")
    A(f"s_cbranch_scc1 {L}w2j")
    A(f"{L}ffnd:")
    for i in range(4): A(f"v_mov_b32 v{vOnes+i}, -1")
    A(f"s_mul_i32 s6, s{qP}, 61440")
    A(f"s_mul_i32 s7, s{sWave}, 7680")
    A(f"s_min_u32 s7, s7, 22528")
    A(f"s_add_u32 s{sSen}, s6, s7")
    A(f"s_lshl_b32 s{sWpO}, s{sU}, 12")
    wp_addr(A, 13, reg=R4, n=1, dst=vWpB)
    A(f"s_lshl_b32 s{sTch}, s{sHead}, 14")
    A(f"v_and_b32 v{vTch}, 15, v{vLane}")
    A(f"v_lshlrev_b32 v{vTch}, 7, v{vTch}")
    A(f"v_add_u32 v{vL16+1}, 4096, v{vL16}")
    A(f"s_lshl_b32 s6, s{sRb}, 5")
    A(f"s_add_u32 s7, s6, s{sHead}")
    A(f"s_lshl_b32 s7, s7, 7")
    A(f"v_mov_b32 v{vFo}, s7")
    A(f"v_and_b32 v{vAp}, 3, v{vLane}")
    A(f"v_lshlrev_b32 v{vAp}, 2, v{vAp}")
    A(f"s_and_b32 s7, s{sHead}, 0x13")
    A(f"s_add_u32 s7, s7, s6")
    A(f"v_add_lshl_u32 v{vAp}, v{vAp}, s7, 7")
    A(f"s_lshr_b32 s7, s{qRb}, 1")
    A(f"s_lshl_b32 s6, s7, 5")
    A(f"s_lshl_b32 s{sT0}, s{sWave}, 3")
    A(f"s_add_u32 s6, s6, s{sT0}")
    A(f"v_add_lshl_u32 v{vAa}, v{vLane}, s6, 7")
    A(f"v_cmp_gt_u32 vcc, 8, v{vLane}")
    A(f"v_and_b32 v{vAb}, 15, v{vLane}")
    A(f"v_lshlrev_b32 v{vAb}, 2, v{vAb}")
    A(f"s_lshl_b32 s6, s{sWave}, 6")
    A(f"s_add_u32 s6, s6, 3")
    A(f"v_add_lshl_u32 v{vAb}, v{vAb}, s6, 7")
    A(f"v_cndmask_b32 v{vAa}, v{vAb}, v{vAa}, vcc")
    A(f"v_bfe_u32 v{vAo}, v{vLane}, 3, 1")
    A(f"v_add_u32 v{vAo}, s{qCb}, v{vAo}")
    A(f"v_cmp_gt_u32 vcc, 16, v{vLane}")
    A(f"v_mov_b32 v{vFv}, s7")
    A(f"s_lshl_b32 s6, s{qP}, 3")
    A(f"v_cndmask_b32 v{vAo}, v{vFv}, v{vAo}, vcc")
    A(f"v_and_b32 v{vFv}, 7, v{vLane}")
    A(f"v_add_u32 v{vFv}, s6, v{vFv}")
    A(f"v_lshl_add_u32 v{vAo}, v{vAo}, 5, v{vFv}")
    A(f"v_lshlrev_b32 v{vAo}, 7, v{vAo}")
    stamp(4)
    A(f"s_mov_b32 s{sT1}, {R0}")
    kv_addr(A, sT1)
    A(f"v_mov_b32 v{vL}, 0")
    A(f"v_mov_b32 v{vL+1}, 0")
    A(f"s_mov_b32 s{sT}, 0")
    A(f"s_mov_b32 s{sC0}, 32768")
    A(f"s_mov_b32 s{sDelta}, 32768")
    A(f"s_cmp_eq_u32 s{sWave}, 0")
    A(f"s_cselect_b32 s{sTail}, 1, 99")
    srd(A, qX, pFl, pFl + 1, 0x8000)
    A(f"s_add_u32 s6, s{sNo}, 1")
    A(f"v_mov_b32 v{vFv}, s6")
    A(f"v_mov_b32 v{vFv+1}, s{sNo+1}")
    A("s_waitcnt vmcnt(12)")
    A("s_barrier")
    lq = LQ()
    for p in range(3):
        A(kread(p, 0, p)); lq.issue(("f", 16 + p))
    attn_seg(A, lq, 2, {33 + 4 * i: [hst(1, i)] for i in range(4)}, sm_lo=0, sm_hi=0, look=[2])
    for p in range(3):
        A(kread(p, 1, p)); lq.issue(("f", p))
    A("s_nop 7")
    for e in range(10):
        for x in sm_exp(0, e): A(x)
        if e:
            for x in sm_post(0, e - 1): A(x)
    assert XP or lq.q == [("f", 0), ("f", 1), ("f", 2)]
    def base_ex(delta):
        ex = {}
        for p in range(8):
            ex.setdefault(max(2 * (p - 3) + 1, 1) if p >= 3 else 2 * p, []).append(f"v_add_u32 v{vKr+p}, {delta}, v{vKr+p}")
        for dt in range(4):
            ex.setdefault(2 * (28 + dt - 3) + 2, []).append(f"v_add_u32 v{vVr+dt}, {delta}, v{vVr+dt}")
        ex[(7, "ds")] = [f"ds_read_b64_tr_b16 {ar(aWq,2)}, v{vWpA}"]
        ex[(9, "ds")] = [f"ds_read_b64_tr_b16 {ar(aWq+2,2)}, v{vWpA} offset:2048"]
        ex.setdefault(13, []).append(f"buffer_store_dwordx4 {vr(vOnes,4)}, v{vL16}, s[{qI}:{qI+3}], s{sSen} offen sc1 ; @put H")
        ex.setdefault(15, []).append(f"s_add_u32 s{sSen}, s{sSen}, 1024")
        ex.setdefault(29, []).append(f"buffer_store_dwordx4 {ar(aWq,4)}, v{vL16}, s[{sWp}:{sWp+3}], s{sWpO} offen sc1 ; @put H")
        ex.setdefault(31, []).append(f"s_add_u32 s{sWpO}, s{sWpO}, 1024")
        return ex
    def put(ex, slots, items):
        for sl, its in zip(slots, spread(items, len(slots))): ex.setdefault(sl, []).extend(its)
    ex = base_ex(f"s{sDelta}")
    ex[(26, "pre")] = ["s_waitcnt vmcnt(12)", "s_barrier"]
    for sl, it in zip([32, 33, 37, 41, 45, 47, 49, 53, 57, 61], kv_dma()): ex.setdefault(sl, []).append(it)
    ex.setdefault(62, []).append(f"s_add_u32 s{sKVo}, s{sKVo}, 16384")
    ex.setdefault(59, []).append(f"s_add_u32 s{sKVm}, s{sKVm}, 32768\ns_and_b32 s{sKVm}, s{sKVm}, 0x1ffff")
    ex.setdefault(1, []).append(f"s_and_b32 s6, s{sT}, 3\ns_lshl_b32 s6, s6, 5")
    ex.setdefault(3, []).append(f"s_and_b32 s7, s{sT}, 4\ns_lshl_b32 s7, s7, 10\ns_or_b32 s6, s6, s7")
    ex.setdefault(4, []).append(f"v_xor_b32 v{vWpA}, s6, v{vWpB}")
    ex.setdefault(11, []).append(f"s_cmp_eq_u32 s{sT}, s{sTail}\ns_cselect_b32 s7, 0, 0x8000")
    ex.setdefault(35, []).append(f"buffer_store_dwordx2 {vr(vFv,2)}, v{vFo}, s[{qX}:{qX+3}], s7 offen sc1")
    ex.setdefault(20, []).append(f"s_add_u32 s{sT}, s{sT}, 1")
    ex.setdefault(63, []).append(f"s_cmp_eq_u32 s{sT}, 3\ns_cselect_b32 s{sDelta}, {hex((-98304) & 0xffffffff)}, s{sC0}\ns_cmp_lt_u32 s{sT}, 5")
    A(".p2align 6")
    A(f"{L}at:")
    for sg in range(4): attn_seg(A, lq, sg, ex)
    A(f"s_cbranch_scc1 {L}at")
    assert lq.q == [("f", 0), ("f", 1), ("f", 2)], lq.q
    odd = lambda a, b: [x for x in range(a, b) if x & 1]
    for t_ in (5, 6, 7):
        ex = base_ex("0x8000")
        ex.setdefault(4, []).append(f"v_xor_b32 v{vWpA}, {((t_&3)<<5)|((t_&4)<<10)}, v{vWpB}")
        if t_ == 5:
            ex[(26, "pre")] = ["s_waitcnt vmcnt(13)", "s_barrier"]
            put(ex, [1], [f"global_load_dwordx2 {vr(vPa,2)}, v{vAa}, s[{pFl}:{pFl+1}] sc1"])
            put(ex, odd(33, 64), q_setup())
        elif t_ == 6:
            B_ = Asm(); B_("s_waitcnt vmcnt(3)"); flag_wait(B_, f"{L}w1", 1, [(vPa, vAa)]); B_("s_barrier")
            ex[(26, "pre")] = B_.lines
            put(ex, odd(31, 64), q_loads(0) + q_loads(1)[:6])
        else:
            ex[(26, "pre")] = ["s_barrier"]
            put(ex, [1, 3, 5, 7, 9, 11, 15, 17, 19, 21, 23, 25, 27, 31], q_loads(1)[6:] + q_loads(2)[:7])
        attn_seg(A, lq, 0, ex)
        attn_seg(A, lq, 1, ex, look=(True if t_ < 7 else [1]))
        if t_ < 7:
            attn_seg(A, lq, 2, ex)
            attn_seg(A, lq, 3, ex)
    ex = {}
    put(ex, [33, 37, 41, 45, 49, 53, 57], q_loads(2)[7:])
    attn_seg(A, lq, 2, ex, mfma=False, look=[3])
    attn_seg(A, lq, 3, ex, sm_hi=54, look=[3])
    stamp(5)
    if "fine2" in XP:
        A(f"s_lshl_b32 s96, s2, 2"); A(f"s_add_u32 s96, s96, s{sWave}"); A("s_lshl_b32 s96, s96, 10")
        A(f"v_lshl_add_u32 v227, v{vLane}, 2, s96")
        A(f"s_add_u32 s96, s{pWs}, 0x3200000"); A(f"s_addc_u32 s97, s{pWs+1}, 0")
        for i in range(3): A(f"global_store_dword v227, v{224+i}, s[96:97] offset:{256*i}")
    A(f"v_mov_b32 v{t}, v{vL}")
    A(f"v_mov_b32 v{t+1}, v{vL+1}")
    A(f"v_bfe_u32 v{t+2}, v{vLane}, 4, 1")
    A(f"v_lshrrev_b32 v{t+3}, 5, v{vLane}")
    A(f"v_permlane32_swap_b32 v{t}, v{vL}")
    A(f"v_permlane32_swap_b32 v{t+1}, v{vL+1}")
    A(f"v_lshlrev_b32 v{t+3}, 8, v{t+3}")
    A(f"v_add_f32 v{vL}, v{vL}, v{t}")
    A(f"v_add_f32 v{vL+1}, v{vL+1}, v{t+1}")
    A(f"v_lshl_add_u32 v{t+3}, v{t+2}, 10, v{t+3}")
    A(f"v_and_b32 v{t+2}, 15, v{vLane}")
    A(f"v_lshl_add_u32 v{vOo}, v{t+2}, 4, v{t+3}")
    A(f"v_mov_b32 v{t+8}, {hex(f2u(2.0**-40))}")
    A(f"v_mov_b32 v{t+9}, {hex(f2u(2.0**40))}")
    A(f"v_cmp_gt_f32 s[{sE0}:{sE0+1}], v{vL}, v{t+8}")
    A(f"v_cmp_lt_f32 s[{sE0+2}:{sE0+3}], v{vL}, v{t+9}")
    A(f"v_cmp_gt_f32 s[4:5], v{vL+1}, v{t+8}")
    A(f"v_cmp_lt_f32 s[6:7], v{vL+1}, v{t+9}")
    A(f"v_rcp_f32 v{t}, v{vL}")
    A(f"v_rcp_f32 v{t+1}, v{vL+1}")
    A("s_nop 1")
    A(f"s_and_b64 s[{sE0}:{sE0+1}], s[{sE0}:{sE0+1}], s[{sE0+2}:{sE0+3}]")
    A(f"s_and_b64 s[4:5], s[4:5], s[6:7]")
    A(f"s_and_b64 s[4:5], s[4:5], s[{sE0}:{sE0+1}]")
    A(f"s_cmp_eq_u64 s[4:5], exec")
    if not XP: A(f"s_cbranch_scc0 {L}slow ; slowbr")
    A(f"{L}oep:")
    A(f"s_lshl_b32 s6, s{sHead}, 14")
    n = 0
    for dt in range(4):
        for qt in range(2):
            b = vS + (n % 4) * 16; pk = vP + (n % 4) * 8; n += 1
            for i in range(16): A(f"v_accvgpr_read_b32 v{b+i}, a{aO+(qt*4+dt)*16+i}")
            for i in range(8):
                A(f"v_pk_mul_f32 {vr(b+2*i,2)}, {vr(b+2*i,2)}, {vr(t,2)} " + ("op_sel_hi:[1,0]" if qt == 0 else "op_sel:[0,1]"))
            for i in range(8): A(f"v_cvt_pk_bf16_f32 v{pk+i}, v{b+2*i}, v{b+2*i+1}")
            for j in range(2):
                A(f"buffer_store_dwordx4 {vr(pk+4*j,4)}, v{vOo}, s[{sA}:{sA+3}], s6 offen offset:{qt*2048+j*512} sc1 ; @put H")
        if dt < 3: A("s_add_u32 s6, s6, 4096")
    stamp(6)
    gemm2(A, L, emit, stamp)
    A(f"{L}end:")
    A("s_endpgm")
    A(f"{L}slow:")
    A("s_waitcnt vmcnt(0) lgkmcnt(0)")
    srd(A, sK, pK, pK + 1, 16777216)
    srd(A, sV, pV, pV + 1, 16777216)
    kv_dma_voff(A, vKd, vVd)
    A(f"s_lshl_b32 s{sT1}, s{sWave}, 13")
    A(f"s_add_u32 s{sT1}, s{sT1}, {R2}")
    kv_addr(A, sT1)
    for dt in range(4): A(f"v_add_u32 v{vVr+dt}, {R4-R2-16384}, v{vVr+dt}")
    vM = vTm + 6
    A(f"v_mov_b32 v{vM}, 0xff800000")
    A(f"v_mov_b32 v{vM+1}, 0xff800000")
    A(f"v_mov_b32 v{vL}, 0")
    A(f"v_mov_b32 v{vL+1}, 0")
    for i in range(4): A(f"v_mov_b32 v{vTm+12+i}, 0")
    A("s_nop 1")
    for i in range(8): mf32(A, ar(aO + 16 * i, 16), vr(vTm + 12, 4), vr(vTm + 12, 4), "0")
    A(f"s_mov_b32 s{sT}, 0")
    A(f"{L}sl:")
    A(f"s_and_b32 s{sT0}, s{sT}, 15")
    A(f"s_lshl_b32 s{sT0}, s{sT0}, 13")
    A(f"s_lshl_b32 s{sKVo}, s{sHead}, 19")
    A(f"s_add_u32 s{sKVo}, s{sKVo}, s{sT0}")
    A(f"s_add_u32 s{sKVo}, s{sKVo}, {1536*256}")
    for hf in range(2):
        A(f"s_add_u32 m0, s{sT1}, {hf*4096}")
        A("s_nop 0")
        for j in range(4): A(f"buffer_load_dwordx4 v{vKd+j}, s[{sK}:{sK+3}], s{sKVo} offen offset:{j*1024} lds")
        A(f"s_add_u32 m0, s{sT1}, {R4-R2+hf*4096}")
        A("s_nop 0")
        for j in range(4): A(f"buffer_load_dwordx4 v{vVd}, s[{sV}:{sV+3}], s{sKVo} offen offset:{j*1024} lds")
        if hf == 0: A(f"s_add_u32 s{sKVo}, s{sKVo}, 4096")
    A("s_waitcnt vmcnt(0)")
    for p in range(8):
        A(kread(p, 0, p % 4))
        A("s_waitcnt lgkmcnt(0)")
        for qt in range(2): mf32(A, vr(vS + qt * 16, 16), vr(vF + (p % 4) * 4, 4), vr(vQ + (qt * 8 + p) * 4, 4), "0" if p == 0 else None)
    A("s_nop 11")
    A(f"s_cmp_ge_u32 s{sT}, 16")
    A(f"s_cbranch_scc1 {L}sl2")
    for qt in range(2):
        for i in range(8): A(f"v_max3_f32 v{vM+qt}, v{vS+qt*16+2*i}, v{vS+qt*16+2*i+1}, v{vM+qt}")
    A(f"s_cmp_lg_u32 s{sT}, 15")
    A(f"s_cbranch_scc1 {L}sl3")
    A(f"v_mov_b32 v{vM+2}, v{vM}")
    A(f"v_mov_b32 v{vM+3}, v{vM+1}")
    A("s_nop 1")
    A(f"v_permlane32_swap_b32 v{vM+2}, v{vM}")
    A(f"v_permlane32_swap_b32 v{vM+3}, v{vM+1}")
    A(f"v_max_f32 v{vM}, v{vM}, v{vM+2}")
    A(f"v_max_f32 v{vM+1}, v{vM+1}, v{vM+3}")
    A(f"s_branch {L}sl3")
    A(f"{L}sl2:")
    for e in range(32):
        r, qt, ks = sm_reg(0, e)
        A(f"v_sub_f32 v{r}, v{r}, v{vM+qt}")
        A(f"v_exp_f32 v{r}, v{r}")
        A("s_nop 0")
        for x in sm_post(0, e): A(x)
    for i in range(8):
        for sec in range(2): A(vread(i // 4, i % 4, 0, sec, i % 4))
        A("s_waitcnt lgkmcnt(0)")
        for qt in range(2): mf32(A, ar(aO + (qt * 4 + i % 4) * 16, 16), vr(vF + (i % 4) * 4, 4), vr(vP + (qt * 2 + i // 4) * 4, 4))
    A(f"{L}sl3:")
    A(f"s_add_u32 s{sT}, s{sT}, 1")
    A(f"s_cmp_lt_u32 s{sT}, 32")
    A(f"s_cbranch_scc1 {L}sl")
    A(f"v_mov_b32 v{t}, v{vL}")
    A(f"v_mov_b32 v{t+1}, v{vL+1}")
    A("s_nop 1")
    A(f"v_permlane32_swap_b32 v{t}, v{vL}")
    A(f"v_permlane32_swap_b32 v{t+1}, v{vL+1}")
    A(f"v_add_f32 v{vL}, v{vL}, v{t}")
    A(f"v_add_f32 v{vL+1}, v{vL+1}, v{t+1}")
    A(f"v_rcp_f32 v{t}, v{vL}")
    A(f"v_rcp_f32 v{t+1}, v{vL+1}")
    A("s_nop 7")
    A(f"s_branch {L}oep")
    kd(A, name, 512, 256)

def checks(A, entry):
    if XP: return
    nb = check_hazards(A.lines)
    tot = 0
    for wg in (0, 5, 31, 24, 28, 255):
        for w in (0, 1, 3):
            for slow in (0, 1):
                def hk(x, S):
                    if x.opn == "v_readfirstlane_b32" and "tag" not in x.text:
                        S[sWave] = w
                    if "slowbr" in x.text: return slow
                    if "pollbr" in x.text: return 1
                p, c = check_waits(A.lines, entry, {2: wg}, hk)
                tot += p
    print("hazards:", nb, "waits:", tot, c)

def build(fn, stamps=False):
    HDR = open("cdna_kernels/" + NAME + ".s.ref").read().split("; Override")[0]
    A = Asm()
    A(HDR)
    A(f"; @launch grid=(256,1,1) block=(256,1,1) lds={P1_LDS}")
    A('.amdgcn_target "amdgcn-amd-amdhsa--gfx950"')
    A(".text")
    gen_p1(A, NAME + "_kernel", stamps=stamps)
    checks(A, NAME + "_kernel")
    if "hplain" in XP: A.lines = [l.replace(" sc1", "") if ("store" in l and f"s[{sA}:{sA+3}], s6 " not in l and f"s[{sA}:{sA+3}]" in l) else l for l in A.lines]
    if "oplain" in XP: A.lines = [l.replace(" sc1", "") if ("store" in l and f"s[{sA}:{sA+3}], s6 " in l) else l for l in A.lines]
    if "iplain" in XP: A.lines = [l.replace(" sc1", "") if ("store" in l and f"s[{qI}:{qI+3}], s{sT0}" in l) else l for l in A.lines]
    if "nt" in XP: A.lines = [l.replace(" sc1", " sc1 nt") if ("buffer_store" in l) else l for l in A.lines]
    if "sc01" in XP: A.lines = [l.replace(" sc1", " sc0 sc1") if ("buffer_store" in l) else l for l in A.lines]
    open(fn, "w").write(A.text())
if __name__ == "__main__":
    build("fu.s")
    build("fu_st.s", stamps=True)
```

```python
from asmlib import *
from common import *

P1_LDS = 163840
R0, R1, R2, R3, R4 = 0, 32768, 65536, 98304, 131072
CS = R3
TAILBIT = 0x30000
ROT = False
TLBW = True
FLAG = 'byte'
FINE = False
EVMASK = 0x180
vFin = 60
XP = set()

class LQ:
    def __init__(s): s.q = []
    def issue(s, tag): s.q.append(tag)
    def wait(s, A, tags):
        idx = max([i for i, t in enumerate(s.q) if t in tags], default=-1)
        if idx < 0: return
        n = len(s.q) - 1 - idx
        assert n <= 15
        A(f"s_waitcnt lgkmcnt({n})")
        s.q = s.q[idx + 1:]
    def clear(s): s.q = []

sX, sWq, sW1, sW3, sK, sV, sA, sWp, sSrc, sSt = 8, 12, 16, 20, 24, 28, 32, 36, 40, 44
sWave, sHead, sRb, sFb, sHasF = 48, 49, 50, 51, 52
sXo, sWqo, sW13o, sM0X, sM0W, sD, sTail, sSlot = 53, 54, 55, 56, 57, 58, 59, 60
sT0, sT1, sT2 = 61, 62, 63
pX, pK, pV, pWq, pWo, pBx, pW1, pW3, pW2, pOut, pDbg, pWs = range(64, 88, 2)
sKVo, sKVm, sDelta, sT, sU, sMask, sXb, sC0 = 88, 89, 90, 91, 92, 93, 94, 95
sX2, sM0d, sXst, sM0t, sProd, sPo = 76, 74, 75, 3, 4, 5
sE0 = 96
vLane = 1
vXd, vWqd, vW13d, vXr, vWqr, vW13r = 2, 10, 12, 13, 15, 23
vZero = 27
vSt = 28
vTm = 44
vQ = 64
vAcc = 128
aG, aUp, aCs, aXf, aWf, aOne, aWp = 0, 64, 128, 144, 176, 192, 196
vKr, vVr, vKd, vVd, vL, vOo = 2, 10, 14, 18, 22, 24
vS, vP, vF = 128, 192, 208
aO = 128
sNo = 100
pFl = 84
qA, qW, qX, qO, qI = 8, 12, 16, 20, 44
qP, qG, qAo, qWo, qWm, qN, qAs, qWs = 53, 54, 55, 56, 57, 58, 51, 60
qAe, qWe, qNl, qSo, qXo, qRb, qCb, qT0, qT1, qIn = 74, 75, 3, 93, 94, 76, 77, 78, 79, 24
vFo, vFv, vPa, vPb, vAa, vAb, vAo, vAp = 25, 28, 30, 32, 34, 35, 36, 37
vL16, vWr2, vXo2, vL8, vOwn = 54, 2, 4, 5, 6
aA2, aW2, aWq = 0, 64, 64
RING2 = 81920
TOUCH = 0
OPT = set()
vTch, sTch = 26, 92
vOnes = 40
vWpB, vWpA = 38, 39
sWpO, sSen = 5, 4


def mf16(A, d, a, b, c=None):
    A(f"v_mfma_f32_16x16x32_bf16 {d}, {a}, {b}, {d if c is None else c}")
def mf32(A, d, a, b, c=None):
    A(f"v_mfma_f32_32x32x16_bf16 {d}, {a}, {b}, {d if c is None else c}")

def spread(items, nslots):
    out = [[] for _ in range(nslots)]
    n = len(items)
    for i, it in enumerate(items):
        out[min(nslots - 1, (i * nslots) // n)].append(it)
    return out

def frag_list(ffn):
    fr = [("Q", p) for p in range(8)]
    if ffn:
        for p in range(4): fr += [("G", p), ("U", p)]
    return fr

def wread(fr, k, sec, buf):
    c, p = fr
    if c == "Q": ad, off = vWqr + p, sec * 1024
    else: ad, off = vW13r + p, (2048 if c == "G" else 3072) + sec * 512
    return f"ds_read_b64_tr_b16 {ar(aWf+buf*4+2*sec,2)}, v{ad} offset:{off + k*16384}"

def xread(s, st, rt):
    return f"ds_read_b128 {ar(aXf+st*16+rt*4,4)}, v{vXr+s} offset:{rt*2048}"

def dma_w(ffn, force=False):
    it = [f"s_max_u32 m0, s{sM0W}, s{sTail}",
          f"buffer_load_dwordx4 v{vWqd}, s[{sWq}:{sWq+3}], s{sWqo} offen lds ; @put W",
          f"buffer_load_dwordx4 v{vWqd+1}, s[{sWq}:{sWq+3}], s{sWqo} offen offset:1024 lds ; @put W"]
    if ffn or force:
        it += [f"buffer_load_dwordx4 v{vW13d}, s[{sW1}:{sW1+3}], s{sW13o} offen offset:2048 lds ; @put W",
               f"buffer_load_dwordx4 v{vW13d}, s[{sW3}:{sW3+3}], s{sW13o} offen offset:3072 lds ; @put W"]
    it += [f"s_add_u32 s{sWqo}, s{sWqo}, {32*8192}"]
    if ffn or force: it += [f"s_add_u32 s{sW13o}, s{sW13o}, {32*3456}"]
    it += [f"s_add_u32 s{sSlot}, s{sSlot}, 16384\ns_and_b32 s{sSlot}, s{sSlot}, 0xffff",
           f"s_add_u32 s{sM0W}, s{sSlot}, s{sC0}"]
    return it

def dma_x(half):
    if half == 0: it = [f"s_mov_b32 m0, s{sM0X}"]
    else: it = [f"s_add_u32 m0, s{sM0X}, s{sM0d}"]
    sd = sX if half == 0 else sX2
    for j in range(4):
        it.append(f"buffer_load_dwordx4 v{vXd+4*half+j}, s[{sd}:{sd+3}], s{sXo} offen offset:{j*1024} lds")
    if half: it += [f"s_add_u32 s{sXo}, s{sXo}, s{sXst}\ns_xor_b32 s{sM0X}, s{sM0X}, s{sM0t}"]
    return it

def fine(A):
    A("s_memtime s[98:99]"); A("s_waitcnt lgkmcnt(0)")
    A("s_mov_b32 m0, s7")
    A(f"v_writelane_b32 v{vFin}, s96, m0")
    A(f"v_writelane_b32 v{vFin+1}, s100, m0")
    A(f"v_writelane_b32 v{vFin-1}, s98, m0")
    A("s_add_u32 s7, s7, 1")

def gemm_loop(A, ffn, L):
    fr = frag_list(ffn); nf = len(fr)
    nw = 4 if ffn else 2
    ones = {("Q", 0): 0, ("Q", 1): 1, ("G", 0): 2, ("U", 0): 3}
    lq = LQ()
    for f in range(3):
        lq.issue(("w", f)); lq.issue(("w", f))
    A(".p2align 6")
    A(f"{L}:")
    for k in range(2):
        if k == 1:
            A(f"s_bitcmp1_b32 s{sMask}, s{sD}")
            A(f"s_cbranch_scc1 {L}_ev")
            A(f"{L}_evret:")
        if k == 0:
            items = [("x", rt) for rt in range(4)] + dma_x(1) + dma_w(ffn)
            slots = spread(items, 2 * (nf - 2))
            tog = {2: [f"v_xor_b32 v{vXr}, 0x18000, v{vXr}"]}
        else:
            items = dma_x(0) + dma_w(ffn) + [f"s_add_u32 s{sD}, s{sD}, 1"]
            slots = spread(items, 2 * (nf - 5))
            slots += [[f"s_cmp_eq_u32 s{sD}, 10\ns_cbranch_scc1 {L}_nw\ns_waitcnt vmcnt({2*nw+4})\n{L}_nw:"],
                      [("x", 0)], [("x", 1)], [("x", 2)], [("x", 3)], []]
            tog = {0: [f"v_xor_b32 v{vXr+1}, 0x18000, v{vXr+1}"]}
            for f, (c, p) in enumerate(fr):
                if c == "G": continue
                reg = vWqr + p if c == "Q" else vW13r + p
                tog.setdefault(max(f - 3, -1) + 1, []).append(f"v_xor_b32 v{reg}, 0x38000, v{reg}")
        for f in range(nf):
            c, p = fr[f]
            lq.wait(A, [("w", f)] + ([("x", k)] if f == 0 else []))
            buf = f % 4
            for rt in range(4):
                r_ = rt if f % 2 == 0 else 3 - rt
                if c == "Q": d = vr(vAcc + (p * 4 + r_) * 4, 4)
                else: d = ar((aG if c == "G" else aUp) + (p * 4 + r_) * 4, 4)
                mf16(A, d, ar(aWf + buf * 4, 4), ar(aXf + k * 16 + r_ * 4, 4))
                if f + 3 < nf and rt < 2:
                    A(wread(fr[f + 3], k, rt, (f + 3) % 4)); lq.issue(("w", f + 3))
                if f == nf - 2:
                    A(wread(fr[rt // 2], 1 - k, rt % 2, (rt // 2) % 4)); lq.issue(("w", rt // 2))
                if f == nf - 1 and rt < 2:
                    A(wread(fr[2], 1 - k, rt, 2)); lq.issue(("w", 2))
                if rt >= 2 and f < nf - 2:
                    for it in slots[2 * f + rt - 2]:
                        if isinstance(it, tuple):
                            A(xread(1 - k, 1 - k, it[1]) + (" ; @chkx" if k == 1 else "")); lq.issue(("x", 1 - k))
                        else:
                            if "lds" in it and A.lines[-1].split()[1].startswith("m0"): A("s_nop 0")
                            A(it)
                if rt == 3:
                    for t in tog.get(f, []): A(t)
            if fr[f] in ones:
                mf16(A, ar(aCs + ones[fr[f]] * 4, 4), ar(aWf + buf * 4, 4), ar(aOne, 4))
            if f == nf - 3:
                n = 2 * nw + 8
                if FINE:
                    A("s_memtime s[96:97]"); A("s_waitcnt lgkmcnt(0)")
                A(f"s_waitcnt vmcnt({n}) lgkmcnt(0)")
                lq.clear()
                if FINE:
                    A("s_memtime s[100:101]"); A("s_waitcnt lgkmcnt(0)")
                A(f"s_barrier")
                if FINE: fine(A)
    A(f"s_cmp_lt_u32 s{sD}, 10")
    A(f"s_cbranch_scc1 {L}")
    assert lq.q == [("w", 0), ("w", 0), ("w", 1), ("w", 1), ("w", 2), ("w", 2)], lq.q

def kv_dma_voff(A, kd_, vd_):
    t = vTm
    A(f"v_lshrrev_b32 v{t+12}, 4, v{vLane}")
    A(f"v_and_b32 v{t+14}, 15, v{vLane}")
    A(f"v_xor_b32 v{t+13}, v{t+14}, v{t+12}")
    A(f"v_lshlrev_b32 v{t+13}, 4, v{t+13}")
    A(f"v_lshl_add_u32 v{kd_}, v{t+12}, 8, v{t+13}")
    for j in range(1, 4): A(f"v_xor_b32 v{kd_+j}, {64*j}, v{kd_}")
    A(f"v_lshlrev_b32 v{t+13}, 2, v{t+12}")
    A(f"v_xor_b32 v{t+13}, v{t+13}, v{t+14}")
    A(f"v_lshlrev_b32 v{t+13}, 4, v{t+13}")
    A(f"v_lshl_add_u32 v{vd_}, v{t+12}, 8, v{t+13}")
    for j in range(1, 4): A(f"v_mov_b32 v{vd_+j}, v{vd_}")

def gemm_events(A, L):
    A(f"{L}_ev:")
    A(f"s_cmp_eq_u32 s{sD}, 8")
    A(f"s_cbranch_scc1 {L}_ev8")
    A(f"global_load_dword v{vTm}, v{vTm+2}, s[{pDbg}:{pDbg+1}] sc1")
    A(f"global_load_dwordx2 {vr(vTm+4,2)}, v{vTm+6}, s[{pDbg}:{pDbg+1}] offset:128 sc1")
    A(f"s_branch {L}_evret")
    A(f"{L}_ev8:")
    A(f"s_mov_b32 s{sTail}, {TAILBIT}")
    for d in (sWq, sW1, sW3): A(f"s_mov_b32 s{d+2}, 0")
    srd(A, sX, pK, pK + 1, 16777216)
    srd(A, sX2, pV, pV + 1, 16777216)
    kv_dma_voff(A, vXd, vXd + 4)
    A(f"s_lshl_b32 s{sM0X}, s{sWave}, 12")
    A(f"s_lshl_b32 s{sXo}, s{sHead}, 19")
    A(f"s_add_u32 s{sXo}, s{sXo}, s{sM0X}")
    A(f"s_add_u32 s{sXo}, s{sXo}, {1536*256}")
    A(f"s_movk_i32 s{sM0d}, 16384")
    A(f"s_movk_i32 s{sXst}, 16384")
    A(f"s_mov_b32 s{sM0t}, 0x8000")
    A(f"s_mov_b32 s{sT1}, 0")
    A(f"s_waitcnt vmcnt(12)")
    A(f"{L}_chk:")
    A(f"v_cmp_ne_u32 vcc, 0x01010101, v{vTm}")
    A(f"v_cmp_eq_u32 s[6:7], 0, v{vTm+5}")
    A("s_nop 3")
    A(f"s_or_b64 s[6:7], s[6:7], vcc")
    A(f"s_cbranch_scc0 {L}_rdy ; pollbr")
    A(f"s_add_u32 s{sT1}, s{sT1}, 1")
    A(f"s_cmp_ge_u32 s{sT1}, 0x40000")
    A(f"s_cbranch_scc1 {L}_rdy")
    A("s_sleep 2")
    A(f"global_load_dword v{vTm}, v{vTm+2}, s[{pDbg}:{pDbg+1}] sc1")
    A(f"global_load_dwordx2 {vr(vTm+4,2)}, v{vTm+6}, s[{pDbg}:{pDbg+1}] offset:128 sc1")
    A("s_waitcnt vmcnt(0)")
    A(f"s_branch {L}_chk")
    A(f"{L}_rdy:")
    A(f"v_readfirstlane_b32 s{sNo}, v{vTm+4} ; tag")
    A(f"v_readfirstlane_b32 s{sNo+1}, v{vTm+5} ; tag")
    A(f"s_add_u32 s{pFl}, s{pWs}, {FL_OFF}")
    A(f"s_addc_u32 s{pFl+1}, s{pWs+1}, 0")
    A(f"s_lshl2_add_u32 s{sT0}, s{sRb}, s{sWave}")
    A(f"s_lshl_b32 s{sT0}, s{sT0}, 10")
    for rt in range(4):
        A(f"buffer_load_dwordx4 {vr(vSt+4*rt,4)}, v{vTm+3}, s[{sSt}:{sSt+3}], s{sT0} offen offset:{rt*256} sc1")
    A(f"s_branch {L}_evret")

def kv_addr(A, base_expr_sgpr):
    t0, t1, t2, t3 = vTm + 12, vTm + 13, vTm + 14, vTm + 15
    A(f"v_and_b32 v{t0}, 31, v{vLane}")
    A(f"v_lshrrev_b32 v{t1}, 5, v{vLane}")
    A(f"v_and_b32 v{t2}, 15, v{vLane}")
    A(f"v_xor_b32 v{t2}, v{t2}, v{t1}")
    A(f"s_lshl_b32 s{sT0}, s{sWave}, 2")
    A(f"v_xor_b32 v{t2}, s{sT0}, v{t2}")
    A(f"v_lshlrev_b32 v{t2}, 4, v{t2}")
    A(f"v_lshl_add_u32 v{t2}, v{t0}, 8, v{t2}")
    A(f"v_add_u32 v{vKr}, s{base_expr_sgpr}, v{t2}")
    for p in range(1, 8): A(f"v_xor_b32 v{vKr+p}, {32*p}, v{vKr}")
    A(f"v_bfe_u32 v{t0}, v{vLane}, 2, 2")
    A(f"v_lshl_add_u32 v{t2}, v{t1}, 2, v{t0}")
    A(f"v_lshlrev_b32 v{t2}, 8, v{t2}")
    A(f"v_lshl_add_u32 v{t2}, v{t0}, 6, v{t2}")
    A(f"v_bfe_u32 v{t3}, v{vLane}, 1, 1")
    A(f"v_lshl_add_u32 v{t2}, v{t3}, 5, v{t2}")
    A(f"v_bfe_u32 v{t3}, v{vLane}, 4, 1")
    A(f"v_lshl_add_u32 v{t2}, v{t3}, 4, v{t2}")
    A(f"v_and_b32 v{t3}, 1, v{vLane}")
    A(f"v_lshl_add_u32 v{t2}, v{t3}, 3, v{t2}")
    A(f"s_add_u32 s{sT0}, s{base_expr_sgpr}, 16384")
    A(f"v_add_u32 v{vVr}, s{sT0}, v{t2}")
    for dt in range(1, 4): A(f"v_xor_b32 v{vVr+dt}, {64*dt}, v{vVr}")

def kv_dma():
    it = [f"s_mov_b32 m0, s{sKVm}"]
    for j in range(4):
        it.append(f"buffer_load_dwordx4 v{vKd+j}, s[{sK}:{sK+3}], s{sKVo} offen offset:{j*1024} lds")
    it.append("s_add_u32 m0, m0, 16384")
    for j in range(4):
        it.append(f"buffer_load_dwordx4 v{vVd+j}, s[{sV}:{sV+3}], s{sKVo} offen offset:{j*1024} lds")
    return it

def kread(p, tile, buf):
    return f"ds_read_b128 {vr(vF+buf*4,4)}, v{vKr+p} offset:{tile*8192}"
def vread(ks, dt, tile, sec, buf):
    return f"ds_read_b64_tr_b16 {vr(vF+buf*4+2*sec,2)}, v{vVr+dt} offset:{(32*tile+16*ks+8*sec)*256}"

def sm_reg(buf, e):
    qt = (e >> 3) & 1; ks = e >> 4
    return vS + (buf * 2 + qt) * 16 + ks * 8 + (e & 7), qt, ks
def sm_exp(buf, e):
    r, _, _ = sm_reg(buf, e)
    if "noexp" in XP: return []
    if "movexp" in XP: return [f"v_mov_b32 v{r}, v{r}"]
    return [f"v_exp_f32 v{r}, v{r}"]
def sm_post(buf, e):
    r, qt, ks = sm_reg(buf, e)
    o = [f"v_add_f32 v{vL+qt}, v{vL+qt}, v{r}"]
    if "noadd" in XP: o = []
    if e & 1 and "nocvt" not in XP: o.append(f"v_cvt_pk_bf16_f32 v{vP+(qt*2+ks)*4+((e&7)>>1)}, v{r-1}, v{r}")
    return o

def attn_seg(A, lq, seg, extra, mfma=True, sm_lo=0, sm_hi=64, look=True):
    def rd(phi, part):
        s = (phi // 8) % 4; i = phi % 8; buf = phi % 4
        if s in (0, 2):
            return kread(i, 1 if s == 0 else 0, buf) if part == 0 else None
        return vread(i // 4, i % 4, 0 if s == 1 else 1, part, buf)
    for i in range(8):
        phi = seg * 8 + i
        if mfma and "nowait" not in XP: lq.wait(A, [("f", phi)])
        for qt in range(2):
            slot = seg * 16 + 2 * i + qt
            if mfma:
                if seg in (0, 2):
                    sb = 1 if seg == 0 else 0
                    d = vr(vS + (sb * 2 + qt) * 16, 16)
                    mf32(A, d, vr(vF + (phi % 4) * 4, 4), vr(vQ + (qt * 8 + i) * 4, 4), "0" if i == 0 else None)
                else:
                    ks, dt = i // 4, i % 4
                    mf32(A, ar(aO + (qt * 4 + dt) * 16, 16), vr(vF + (phi % 4) * 4, 4), vr(vP + (qt * 2 + ks) * 4, 4))
            for it in extra.get((slot, "pre"), []): A(it)
            nphi = (phi + 3) % 32
            nseg = nphi // 8
            if look is True or nseg in look:
                r = rd(nphi, qt)
                if r and "noread" not in XP: A(r); lq.issue(("f", nphi))
            for it in extra.get((slot, "ds"), []):
                A(it); lq.issue(("side", 0))
            for it in extra.get(slot, []):
                if it.startswith("v_"): continue
                if "lds" in it and A.lines[-1].split()[1].startswith("m0"): A("s_nop 0")
                A(it)
            for (buf, start) in ((1, 22), (0, 54)):
                e = (slot - start) % 64
                if e < 32 and (buf, "exp") in sm_ok(slot, sm_lo, sm_hi, buf, e):
                    for x in sm_exp(buf, e): A(x)
            for (buf, start) in ((1, 22), (0, 54)):
                e = (slot - start - 1) % 64
                if e < 32 and (buf, "exp") in sm_ok((slot - 1) % 64, sm_lo, sm_hi, buf, e):
                    for x in sm_post(buf, e): A(x)
            for it in extra.get(slot, []):
                if it.startswith("v_"): A(it)
def sm_ok(slot, lo, hi, buf, e):
    return {(buf, "exp")} if (lo <= slot < hi) else set()

def wp_src_voff(A, d):
    t = vTm
    A(f"v_lshrrev_b32 v{t+12}, 4, v{vLane}")
    A(f"v_lshlrev_b32 v{t+12}, 1, v{t+12}")
    A(f"v_and_b32 v{t+13}, 7, v{vLane}")
    A(f"v_xor_b32 v{t+12}, v{t+12}, v{t+13}")
    A(f"v_lshlrev_b32 v{t+12}, 4, v{t+12}")
    A(f"v_lshrrev_b32 v{t+13}, 3, v{vLane}")
    A(f"v_mul_u32_u24 v{t+13}, 1280, v{t+13}")
    A(f"v_add_u32 v{d}, v{t+12}, v{t+13}")
    for j in range(1, 8): A(f"v_add_u32 v{d+j}, {(j%4)*9216 + (j//4)*128}, v{d}")

def wp_addr(A, sh, note="", reg=R3, n=4, dst=None):
    t = vTm
    A(f"v_bfe_u32 v{t+14}, v{vLane}, 2, 2")
    A(f"v_bfe_u32 v{t+16}, v{vLane}, 4, 1")
    A(f"v_lshl_add_u32 v{t+14}, v{t+16}, 2, v{t+14}")
    A(f"v_lshrrev_b32 v{t+13}, 1, v{t+14}")
    A(f"v_lshlrev_b32 v{t+13}, 5, v{t+13}")
    A(f"v_lshl_add_u32 v{t+13}, v{t+14}, 7, v{t+13}")
    A(f"v_lshrrev_b32 v{t+15}, 5, v{vLane}")
    A(f"v_lshl_add_u32 v{t+13}, v{t+15}, 10, v{t+13}")
    A(f"v_and_b32 v{t+15}, 3, v{vLane}")
    A(f"v_lshl_add_u32 v{t+13}, v{t+15}, 3, v{t+13}")
    A(f"s_lshl_b32 s6, s{sWave}, {sh}")
    A(f"s_add_u32 s6, s6, {reg}")
    A(f"v_add_u32 v{dst or t+4}, s6, v{t+13}{note}")
    for i4 in range(1, n): A(f"v_xor_b32 v{t+4+i4}, {32*i4}, v{t+4}")
def wp_reads(A, stride):
    for su in range(2):
        for i4 in range(4):
            for sec in range(2):
                A(f"ds_read_b64_tr_b16 {ar(aWq+(su*4+i4)*4+2*sec,2)}, v{vTm+4+i4} offset:{su*stride+sec*2048}")
def wp_stores(A, so):
    for su in range(2):
        for i4 in range(4):
            A(f"buffer_store_dwordx4 {ar(aWq+(su*4+i4)*4,4)}, v{vL16}, s[{sWp}:{sWp+3}], s{so} offen offset:{i4*1024} sc1")
        if su == 0: A(f"s_add_u32 s{so}, s{so}, 4096")

def set_flag(A, phase, lab, cls="H"):
    A(f"s_cmp_lg_u32 s{sWave}, 0")
    A(f"s_cbranch_scc1 {lab}")
    A(f"s_add_u32 s6, s{sNo}, {phase}")
    A(f"v_mov_b32 v{vFv}, s6")
    A(f"v_mov_b32 v{vFv+1}, s{sNo+1}")
    A("s_mov_b64 exec, 1")
    A(f"global_store_dwordx2 v{vFo}, {vr(vFv,2)}, s[{pFl}:{pFl+1}] sc1")
    A("s_mov_b64 exec, -1")
def flag_load(A, dst, ad):
    A(f"global_load_dwordx2 {vr(dst,2)}, v{ad}, s[{pFl}:{pFl+1}] sc1")
def flag_wait(A, lab, phase, polls):
    A(f"s_add_u32 s{sT0}, s{sNo}, {phase}")
    A(f"s_mov_b32 s{sT1}, 0")
    A(f"{lab}c:")
    for n, (d, ad) in enumerate(polls):
        A(f"v_subrev_u32 v{d}, s{sT0}, v{d}")
        A(f"v_cmp_ne_u32 s[{sE0+2*n}:{sE0+2*n+1}], s{sNo+1}, v{d+1}")
    for n, (d, ad) in enumerate(polls):
        A(f"v_cmp_lt_u32 " + ("vcc" if n == 0 else "s[6:7]") + f", {3-phase}, v{d}")
    A("s_nop 3")
    A(f"s_or_b64 s[{sE0}:{sE0+1}], s[{sE0}:{sE0+1}], vcc")
    if len(polls) > 1:
        A(f"s_or_b64 s[6:7], s[6:7], s[{sE0+2}:{sE0+3}]")
        A(f"s_or_b64 s[{sE0}:{sE0+1}], s[{sE0}:{sE0+1}], s[6:7]")
    A(f"s_cbranch_scc0 {lab}r ; pollbr")
    A(f"s_add_u32 s{sT1}, s{sT1}, 1")
    A(f"s_cmp_ge_u32 s{sT1}, 0x40000")
    A(f"s_cbranch_scc1 {lab}r")
    for d, ad in polls: flag_load(A, d, ad)
    A("s_waitcnt vmcnt(0)")
    A(f"s_branch {lab}c")
    A(f"{lab}r:")

def q_setup():
    w = sWave
    return [
     f"s_lshl_b32 s6, s{qP}, 3\ns_lshr_b32 s{qT0}, {hex(0x402b1600)}, s6\ns_and_b32 s{qT0}, s{qT0}, 0xff",
     f"s_lshr_b32 s{qT1}, {hex(0x5b402b16)}, s6\ns_and_b32 s{qT1}, s{qT1}, 0xff\ns_sub_u32 s{qNl}, s{qT1}, s{qT0}",
     f"s_and_b32 s{sT2}, s{w}, 1\ns_lshl_b32 s6, s{sT2}, 11\ns_lshl_b32 s{qAs}, s{qT0}, 13",
     f"s_add_u32 s{qAs}, s{qAs}, s6\ns_lshr_b32 s7, s{w}, 1\ns_lshl_b32 s6, s{qCb}, 1",
     f"s_add_u32 s6, s6, s7\ns_mul_i32 s6, s6, 5120\ns_mul_i32 s{qWs}, s{qT0}, 81920",
     f"s_add_u32 s{qWs}, s{qWs}, s6\ns_mul_i32 s6, s{sT2}, 40960\ns_add_u32 s{qWs}, s{qWs}, s6",
     f"s_lshl_b32 s{qAe}, s{qT1}, 13\ns_mul_i32 s{qWe}, s{qT1}, 81920\ns_mov_b32 s{qAo}, s{qAs}",
     f"s_mov_b32 s{qWo}, s{qWs}\ns_mul_i32 s{qWm}, s{sT2}, 10240\ns_mul_i32 s6, s7, 5120",
     f"s_add_u32 s{qWm}, s{qWm}, s6\ns_lshl_b32 s6, s{qRb}, 1\ns_add_u32 s6, s6, s7",
     f"s_mul_i32 s6, s6, {A_BLK}\ns_add_u32 s{qA}, s{pWs}, s6\ns_addc_u32 s{qA+1}, s{pWs+1}, 0",
     f"s_and_b32 s{qA+1}, s{qA+1}, 0xffff\ns_cmp_eq_u32 s{qP}, 3\ns_cselect_b32 s{qA+2}, s{qAe}, 0\ns_cselect_b32 s{qW+2}, s{qWe}, 0\ns_mov_b32 s{qA+3}, 0x20000",
     f"s_mov_b32 s{qW}, s{sWp}\ns_mov_b32 s{qW+1}, s{sWp+1}\ns_mov_b32 s{qW+3}, 0x20000",
     f"s_lshl2_add_u32 s6, s{qRb}, s{qP}\ns_lshl_b32 s6, s6, 1\ns_add_u32 s6, s6, s7\ns_mul_i32 s{qXo}, s6, 20480",
     f"s_lshl_b32 s6, s{qCb}, 1\ns_add_u32 s6, s6, s{sT2}\ns_mul_i32 s6, s6, 160\ns_add_u32 s{qXo}, s{qXo}, s6",
     f"s_xor_b32 s{qT0}, s{w}, s{qP}\ns_mul_i32 s{qT1}, s{w}, 3\ns_add_u32 s{qT1}, s{qT1}, s{qT0}\ns_sub_u32 s{qT1}, s{qT1}, 1",
     f"s_mul_i32 s{qT1}, s{qT1}, 10240\ns_cmp_eq_u32 s{qT0}, 0\ns_cselect_b32 s{qSo}, 0x100000, s{qT1}",
    ]

def q_loads(slot):
    it = [f"s_add_u32 m0, s{qWm}, {slot*20480}"]
    for j in range(4):
        it.append(f"buffer_load_dwordx4 v{vL16}, s[{qW}:{qW+3}], s{qWo} offen offset:{j*1024} sc1 lds ; @put W2")
    it.append(f"s_add_u32 m0, s{qWm}, {slot*20480+4096}")
    it.append(f"buffer_load_dwordx4 v{vL16+1}, s[{qW}:{qW+3}], s{qWo} offen sc1 lds ; @put W2")
    for k in range(2):
        for rt in range(2):
            it.append(f"buffer_load_dwordx4 {ar(aA2+(slot*4+k*2+rt)*4,4)}, v{vL16+k}, s[{qA}:{qA+3}], s{qAo} offen offset:{rt*1024} sc1")
    it.append(f"s_add_u32 s{qWo}, s{qWo}, 81920\ns_add_u32 s{qAo}, s{qAo}, 8192")
    return it

def gemm2(A, L, emit, stamp):
    ac, vT, vX, vZ = 64, 144, 168, 180
    srd(A, qX, pX, pX + 1, X_SIZE)
    srd(A, qO, pOut, pOut + 1, X_SIZE)
    for i in range(4): A(f"v_mov_b32 v{vZ+i}, 0")
    A(f"v_and_b32 v{vT}, 15, v{vLane}")
    A(f"v_mul_u32_u24 v{vT}, 1280, v{vT}")
    A(f"v_lshrrev_b32 v{vT+1}, 4, v{vLane}")
    A(f"v_lshl_add_u32 v{vXo2}, v{vT+1}, 3, v{vT}")
    def zero():
        for i in range(5): mf32(A, vr(ac + 16 * i, 16), vr(vZ, 4), vr(vZ, 4), "0")
    zero()
    A(f"v_mov_b32 v{vWr2}, v{vL16}")
    A(f"v_add_u32 v{vWr2+1}, 40960, v{vL16}")
    A(f"v_lshlrev_b32 v{vL8}, 3, v{vLane}")
    A(f"v_add_u32 v{vOwn}, {RING2}, v{vL16}")
    A(f"s_mov_b32 s{qN}, 0")
    def xload():
        for ct in range(5):
            A(f"buffer_load_dwordx2 {vr(vX+2*ct,2)}, v{vXo2}, s[{qX}:{qX+3}], s{qXo} offen offset:{ct*32}")
    A(f"s_cmp_eq_u32 s{qP}, 3")
    A(f"s_cselect_b32 s{qT0}, 2, 99")
    A(f"s_cselect_b32 s{qT1}, 0, 99")
    A(f"s_cbranch_scc1 {L}qh")
    A("s_waitcnt vmcnt(0)")
    A("s_barrier")
    set_flag(A, 2, f"{L}f2")
    A(f"{L}f2:")
    flag_load(A, vPa, vAo)
    A(f"s_mov_b32 s{qA+2}, s{qAe}")
    A(f"s_mov_b32 s{qW+2}, s{qWe}")
    A(f"s_mov_b32 s{qAo}, s{qAs}")
    A(f"s_mov_b32 s{qWo}, s{qWs}")
    A("s_waitcnt vmcnt(0)")
    flag_wait(A, f"{L}w2", 2, [(vPa, vAo)])
    stamp(8)
    for s_ in range(3): emit(q_loads(s_))
    xload()
    A("s_waitcnt vmcnt(23)")
    A(f"s_branch {L}qs")
    A(f"{L}qh:")
    stamp(8)
    xload()
    A("s_waitcnt vmcnt(39)")
    A(f"{L}qs:")
    def wread2(slot, f, buf):
        k, ct = f // 10, f % 10
        return f"ds_read_b128 {ar(aW2+buf*4,4)}, v{vWr2+slot//2} offset:{(slot%2)*20480+k*10240+ct*1024}"
    A("s_barrier ; @need W2 10")
    stamp(9)
    for f in range(3): A(wread2(0, f, f))
    lq = LQ()
    for f in range(3): lq.issue(f)
    A(".p2align 6")
    A(f"{L}q:")
    for slot in range(4):
        ns = (slot + 1) % 4
        slots = spread(q_loads((slot + 3) % 4), 16)
        for f in range(20):
            k, ct = f // 10, f % 10
            lq.wait(A, [f])
            for r in range(2):
                rt = r if f % 2 == 0 else 1 - r
                mf16(A, vr(ac + (rt * 10 + ct) * 4, 4), ar(aW2 + (f % 4) * 4, 4), ar(aA2 + (slot * 4 + k * 2 + rt) * 4, 4))
                if r == 0 and f + 3 < 20:
                    A(wread2(slot, f + 3, (f + 3) % 4)); lq.issue(f + 3)
                if f == 18:
                    A(wread2(ns, r, r)); lq.issue(r)
                if f == 19 and r == 0:
                    A(wread2(ns, 2, 2)); lq.issue(2)
                if r == 1 and f < 16: emit(slots[f])
                if r == 0 and f == 17 and slot == 0: A(f"s_cmp_eq_u32 s{qT1}, s{qN}")
            if f == 17:
                if slot == 0:
                    A("s_waitcnt vmcnt(30) lgkmcnt(0)")
                    A(f"s_cbranch_scc1 {L}qw{slot}")
                    A("s_waitcnt vmcnt(18)")
                    A(f"{L}qw{slot}:")
                else: A("s_waitcnt vmcnt(18) lgkmcnt(0)")
                lq.clear()
                A("s_barrier ; @need W2 10")
            if f == 19:
                A(f"s_add_u32 s{qN}, s{qN}, 1")
        if slot == 1:
            A(f"s_cmp_eq_u32 s{qT0}, s{qN}")
            A(f"s_cbranch_scc1 {L}qe1")
            A(f"{L}qr1:")
        if slot < 3:
            A(f"s_cmp_eq_u32 s{qNl}, s{qN}")
            A(f"s_cbranch_scc1 {L}qx")
    A(f"s_branch {L}q")
    A(f"{L}qe1:")
    set_flag(A, 2, f"{L}qr1")
    A(f"s_branch {L}qr1")
    A(f"{L}qx:")
    stamp(10)
    A(f"s_cmp_lg_u32 s{qP}, 3")
    A(f"s_cbranch_scc1 {L}qy")
    flag_load(A, vPb, vAp)
    A("s_waitcnt vmcnt(0)")
    flag_wait(A, f"{L}w3", 2, [(vPb, vAp)])
    A(f"{L}qy:")
    A(f"s_mov_b32 s{sT0}, s{qSo}")
    A(f"s_cmp_lg_u32 s{sWave}, s{qP}")
    A(f"s_cbranch_scc1 {L}no0")
    A("s_nop 1")
    for i in range(20): A(f"ds_write_b128 v{vOwn}, {vr(ac+4*i,4)} offset:{i*1024}")
    A("s_waitcnt lgkmcnt(0)")
    A(f"s_branch {L}no1")
    A(f"{L}no0:")
    for c in range(4):
        b = vT + (c % 2) * 12
        for i in range(10): A(f"v_cvt_pk_bf16_f32 v{b+i}, v{ac+c*20+2*i}, v{ac+c*20+2*i+1}")
        for i in range(10): A(f"v_min_u32 v{b+i}, -2, v{b+i}")
        if c: A(f"s_add_u32 s{sT0}, s{sT0}, 2560")
        A(f"buffer_store_dwordx4 {vr(b,4)}, v{vL16}, s[{qI}:{qI+3}], s{sT0} offen sc1")
        A(f"buffer_store_dwordx4 {vr(b+4,4)}, v{vL16}, s[{qI}:{qI+3}], s{sT0} offen offset:1024 sc1")
        A(f"buffer_store_dwordx2 {vr(b+8,2)}, v{vL8}, s[{qI}:{qI+3}], s{sT0} offen offset:2048 sc1")
    A(f"{L}no1:")
    S, U, IN, XR, E, T = 64, 84, 104, 184, 204, 224
    A(f"s_mul_i32 s{sT0}, s{sWave}, 5120")
    A(f"v_add_u32 v{vOwn}, s{sT0}, v{vOwn}")
    A(f"s_mul_i32 s{sT0}, s{qP}, 30720")
    A(f"s_mul_i32 s{sT1}, s{sWave}, 2560")
    A(f"s_add_u32 s{sT0}, s{sT0}, s{sT1}")
    A(f"s_lshl_b32 s6, s{qP}, 3")
    A(f"s_lshr_b32 s6, {hex(0x24094218 >> 0 if False else (0x24 | 0x18 << 8 | 0x09 << 16 | 0x24 << 24))}, s6")
    for i in range(3):
        A(f"s_bfe_u32 s7, s6, {hex(0x20000 | 2*i)}")
        A(f"s_mul_i32 s7, s7, 10240")
        A(f"s_add_u32 s{qIn+i}, s{sT0}, s7")
    def inload(sl):
        b = IN + sl * 10
        A(f"buffer_load_dwordx4 {vr(b,4)}, v{vL16}, s[{qI}:{qI+3}], s{qIn+sl} offen sc1")
        A(f"buffer_load_dwordx4 {vr(b+4,4)}, v{vL16}, s[{qI}:{qI+3}], s{qIn+sl} offen offset:1024 sc1")
        A(f"buffer_load_dwordx2 {vr(b+8,2)}, v{vL8}, s[{qI}:{qI+3}], s{qIn+sl} offen offset:2048 sc1")
    A("s_barrier")
    stamp(11)
    for sl in range(3): inload(sl)
    for i in range(5): A(f"ds_read_b128 {vr(S+4*i,4)}, v{vOwn} offset:{i*1024}")
    for i in range(10):
        A(f"v_lshlrev_b32 v{XR+2*i}, 16, v{vX+i}")
        A(f"v_and_b32 v{XR+2*i+1}, 0xffff0000, v{vX+i}")
    def unpack(sl, dst):
        for i in range(10):
            A(f"v_lshlrev_b32 v{dst+2*i}, 16, v{IN+sl*10+i}")
            A(f"v_and_b32 v{dst+2*i+1}, 0xffff0000, v{IN+sl*10+i}")
    def addin(sl, dst):
        unpack(sl, T)
        for i in range(10): A(f"v_pk_add_f32 {vr(dst+2*i,2)}, {vr(dst+2*i,2)}, {vr(T+2*i,2)}")
    A(f"s_mov_b32 s{sT1}, 0")
    A(f"{L}sc:")
    A("s_waitcnt vmcnt(0)")
    for i in range(3): A(f"v_max3_u32 v{T+i}, v{IN+10*i}, v{IN+10*i+1}, v{IN+10*i+2}")
    for j in range(3):
        for i in range(3): A(f"v_max3_u32 v{T+i}, v{T+i}, v{IN+10*i+3+2*j}, v{IN+10*i+4+2*j}")
    A(f"v_max3_u32 v{T+3}, v{IN+9}, v{IN+19}, v{IN+29}")
    A(f"v_max3_u32 v{T}, v{T}, v{T+1}, v{T+2}")
    A(f"v_max_u32 v{T}, v{T}, v{T+3}")
    A(f"v_cmp_eq_u32 vcc, -1, v{T}")
    A("s_nop 3")
    A(f"s_cbranch_vccz {L}sr ; pollbr")
    A(f"s_add_u32 s{sT1}, s{sT1}, 1")
    A(f"s_cmp_ge_u32 s{sT1}, 0x40000")
    A(f"s_cbranch_scc1 {L}sr")
    for sl in range(3): inload(sl)
    A(f"s_branch {L}sc")
    A(f"{L}sr:")
    stamp(12)
    unpack(2, U)
    A(f"s_mov_b32 s{sT0}, {hex(f2u(-LOG2E))}")
    A(f"s_cmp_lg_u32 s{qP}, 3")
    A("s_waitcnt lgkmcnt(0)")
    A(f"s_cbranch_scc1 {L}ns")
    for i in range(20): A(f"v_swap_b32 v{S+i}, v{U+i}")
    A(f"{L}ns:")
    for i in range(20): A(f"v_mul_f32 v{E+i}, s{sT0}, v{U+i}")
    for i in range(20): A(f"v_exp_f32 v{E+i}, v{E+i}")
    addin(0, S)
    for i in range(20): A(f"v_add_f32 v{E+i}, 1.0, v{E+i}")
    for i in range(20): A(f"v_rcp_f32 v{E+i}, v{E+i}")
    addin(1, S)
    for i in range(10): A(f"v_pk_mul_f32 {vr(U+2*i,2)}, {vr(U+2*i,2)}, {vr(E+2*i,2)}")
    for i in range(10): A(f"v_pk_fma_f32 {vr(XR+2*i,2)}, {vr(S+2*i,2)}, {vr(U+2*i,2)}, {vr(XR+2*i,2)}")
    for i in range(10): A(f"v_cvt_pk_bf16_f32 v{vX+i}, v{XR+2*i}, v{XR+2*i+1}")
    for ct in range(5):
        A(f"buffer_store_dwordx2 {vr(vX+2*ct,2)}, v{vXo2}, s[{qO}:{qO+3}], s{qXo} offen offset:{ct*32}" + (" sc1" if "outsc1" in OPT else ""))
    stamp(13)

def gen_p1(A, name, stamps=False, code_bytes=29696):
    head(A, name)
    L = "p1_"
    A("s_cmp_ge_u32 s2, 256")
    A(f"s_cbranch_scc1 {L}end")
    A("s_load_dwordx16 s[64:79], s[0:1], 0")
    A("s_load_dwordx8 s[80:87], s[0:1], 64")
    A(f"s_memrealtime s[{sNo}:{sNo+1}]")
    if stamps: A("s_memtime s[94:95]")
    def stamp(i):
        if not stamps: return
        A(f"s_memtime s[96:97]")
        A(f"s_memrealtime s[98:99]")
        A("s_waitcnt lgkmcnt(0)")
        A(f"v_mov_b32 v{vTm+18}, s96"); A(f"v_mov_b32 v{vTm+19}, s98")
        A(f"s_lshl_b32 s96, s2, 2"); A(f"s_add_u32 s96, s96, s{sWave}"); A("s_lshl_b32 s96, s96, 7")
        A(f"v_mov_b32 v{vZero}, s96")
        if i == 0: A(f"v_mov_b32 v{vTm+16}, s94")
        A(f"s_add_u32 s96, s{pWs}, 0x3100000"); A(f"s_addc_u32 s97, s{pWs+1}, 0")
        A(f"global_store_dwordx2 v{vZero}, {vr(vTm+18,2)}, s[96:97] offset:{i*8}")
        if i == 0: A(f"global_store_dword v{vZero}, v{vTm+16}, s[96:97] offset:120")
    t = vTm
    def emit(items):
        for it in items:
            if "lds" in it and A.lines[-1].split()[1].startswith("m0"): A("s_nop 0")
            A(it)
    A(f"v_and_b32 v{vLane}, 63, v0")
    A("v_lshrrev_b32 v0, 6, v0")
    A("s_and_b32 s6, s2, 7")
    A(f"v_readfirstlane_b32 s{sWave}, v0")
    A(f"s_lshr_b32 s{sT0}, s2, 3")
    A(f"s_lshr_b32 s{sRb}, s{sT0}, 2")
    A(f"s_and_b32 s{sT1}, s{sT0}, 3")
    A(f"s_lshl2_add_u32 s{sHead}, s6, s{sT1}")
    A(f"s_sub_u32 s{sT2}, s6, s{sRb}")
    A(f"s_add_u32 s{sT2}, s{sT2}, 3")
    A(f"s_and_b32 s{sT2}, s{sT2}, 7")
    A(f"s_mul_i32 s{sFb}, s6, 3")
    A(f"s_add_u32 s{sFb}, s{sFb}, s{sT1}")
    A(f"s_add_u32 s7, s{sT2}, 24")
    A(f"s_cmp_eq_u32 s{sT1}, 3")
    A(f"s_cselect_b32 s{sFb}, s7, s{sFb}")
    A(f"s_cmp_lt_u32 s{sFb}, 27")
    A(f"s_cselect_b32 s{sHasF}, 1, 0")
    A(f"s_sub_u32 s{sProd}, s{sFb}, 27")
    A(f"v_lshrrev_b32 v{t+7}, 3, v{vLane}")
    A(f"v_and_b32 v{t+6}, 7, v{vLane}")
    A(f"v_lshrrev_b32 v{t+12}, 4, v{vLane}")
    A(f"v_xor_b32 v{t+13}, v{t+6}, v{t+12}")
    A(f"v_lshlrev_b32 v{t+13}, 4, v{t+13}")
    A(f"s_movk_i32 s6, 1280")
    A(f"v_mad_u32_u24 v{vXd}, v{t+7}, s6, v{t+13}")
    A(f"v_xor_b32 v{t+13}, 64, v{vXd}")
    for j in range(1, 8):
        A(f"v_add_u32 v{vXd+j}, {j*10240-(j%4)*1024}, v{(t+13) if j&1 else vXd}")
    A(f"s_lshl2_add_u32 s6, s{sRb}, s{sWave}")
    A(f"s_mul_i32 s{sXo}, s6, {64*1280}")
    A(f"s_mul_i32 s{sKVo}, s6, {A_BLK}")
    A(f"s_lshl_b32 s{sM0X}, s{sWave}, 13")
    A(f"s_add_u32 s{sM0X}, s{sM0X}, {R1}")
    A(f"s_mov_b32 s{sTail}, 0")
    A(f"s_and_b32 s6, s{sWave}, 1")
    A(f"s_lshl_b32 s7, s6, 2")
    A(f"v_add_u32 v{t+13}, s7, v{t+12}")
    A(f"v_lshlrev_b32 v{t+13}, 1, v{t+13}")
    A(f"v_and_b32 v{t+14}, 15, v{vLane}")
    A(f"v_xor_b32 v{t+13}, v{t+13}, v{t+14}")
    A(f"v_lshlrev_b32 v{t+13}, 4, v{t+13}")
    A(f"s_lshl_b32 s7, s{sWave}, 3")
    A(f"v_add_u32 v{t+15}, s7, v{t+12}")
    A(f"v_lshl_add_u32 v{vWqd}, v{t+15}, 13, v{t+13}")
    A(f"v_add_u32 v{vWqd+1}, {4*8192-1024}, v{vWqd}")
    A(f"v_bfe_u32 v{t+13}, v{vLane}, 4, 1")
    A(f"s_lshl_b32 s6, s6, 1")
    A(f"v_add_u32 v{t+13}, s6, v{t+13}")
    A(f"v_lshlrev_b32 v{t+13}, 1, v{t+13}")
    A(f"v_xor_b32 v{t+13}, v{t+13}, v{t+6}")
    A(f"v_lshlrev_b32 v{t+13}, 4, v{t+13}")
    A(f"v_add_u32 v{t+15}, s7, v{t+7}")
    A(f"s_movk_i32 s6, 3456")
    A(f"v_mad_u32_u24 v{vW13d}, v{t+15}, s6, v{t+13}")
    A(f"s_lshl_b32 s{sWqo}, s{sHead}, 8")
    A(f"s_lshl_b32 s{sW13o}, s{sFb}, 7")
    A(f"s_mov_b32 s{sSlot}, 0")
    A("s_waitcnt lgkmcnt(0)")
    A(f"s_lshl_b32 s{sC0}, s{sWave}, 12")
    A(f"s_add_u32 s{sC0}, s{sC0}, {R3}")
    A(f"s_mov_b32 s{sM0W}, s{sC0}")
    srd(A, sX, pX, pX + 1, X_SIZE)
    srd(A, sWq, pWq, pWq + 1, 640 * 8192)
    for (d, p, sh) in ((sW1, pW1, 2048), (sW3, pW3, 3072)):
        A(f"s_sub_u32 s{d}, s{p}, {sh}")
        A(f"s_subb_u32 s{d+1}, s{p+1}, 0")
        A(f"s_and_b32 s{d+1}, s{d+1}, 0xffff")
        A(f"s_mul_i32 s{d+2}, s{sHasF}, {640*3456+sh}")
        A(f"s_mov_b32 s{d+3}, 0x20000")
    srd(A, sX2, pX, pX + 1, X_SIZE)
    A(f"s_movk_i32 s{sM0d}, 4096")
    A(f"s_movk_i32 s{sXst}, 128")
    A(f"s_mov_b32 s{sM0t}, 0x18000")
    RAW, UNP = 64, 96
    A(f"v_mov_b32 v{t+5}, 0")
    A(f"s_cmp_ge_u32 s{sProd}, 4")
    A(f"s_cbranch_scc1 {L}np1")
    A(f"v_lshrrev_b32 v{t+5}, 2, v{vLane}")
    A(f"v_and_b32 v{t+13}, 3, v{vLane}")
    A(f"v_lshlrev_b32 v{t+13}, 4, v{t+13}")
    A(f"s_movk_i32 s6, 1280")
    A(f"v_mad_u32_u24 v{t+13}, v{t+5}, s6, v{t+13}")
    A(f"s_lshl2_add_u32 s6, s{sRb}, s{sProd}")
    A(f"s_lshl2_add_u32 s6, s6, s{sWave}")
    A(f"s_lshl_b32 s7, s6, 8")
    A(f"v_lshl_add_u32 v{t+5}, v{t+5}, 4, s7")
    A(f"s_mul_i32 s6, s6, {16*1280}")
    for i in range(20):
        A(f"buffer_load_dwordx4 {vr(RAW+4*i,4)}, v{t+13}, s[{sX}:{sX+3}], s6 offen offset:{i*64}")
    A(f"{L}np1:")
    emit(dma_w(True)); emit(dma_x(0)); emit(dma_x(1))
    stamp(0)
    A("s_getpc_b64 s[6:7]")
    A(f"s_and_b32 s{sT0}, s{sT0}, 7")
    A(f"s_lshl2_add_u32 s{sT0}, s{sT0}, s{sWave}")
    A(f"s_lshl_b32 s{sT0}, s{sT0}, 10")
    A(f"s_min_u32 s{sT0}, s{sT0}, {code_bytes-1024}")
    A(f"v_lshl_add_u32 v{vTm+4}, v{vLane}, 4, s{sT0}")
    if "nocpf" not in OPT: A(f"global_load_dwordx4 {vr(vTm+8,4)}, v{vTm+4}, s[6:7]")
    else: A(f"global_load_dword v{vTm+8}, v{vLane}, s[0:1]")
    emit(dma_w(True)); emit(dma_x(0)); emit(dma_w(True))
    A(f"s_add_u32 s{sA}, s{pWs}, s{sKVo}")
    A(f"s_addc_u32 s{sA+1}, s{pWs+1}, 0")
    srd(A, sA, sA, sA + 1, A_BLK)
    A(f"s_add_u32 s{sWp}, s{pWs}, {W_OFF}")
    A(f"s_addc_u32 s{sWp+1}, s{pWs+1}, 0")
    srd(A, sWp, sWp, sWp + 1, W_SIZE)
    A(f"s_lshl2_add_u32 s{sT1}, s{sHead}, s{sWave}")
    A(f"s_mul_i32 s{sU}, s{sT1}, 10")
    A(f"s_lshl_b32 s{sT2}, s{sRb}, 1")
    A(f"s_add_u32 s{sU}, s{sU}, s{sT2}")
    A(f"s_mul_i32 s{sT1}, s{sT1}, 40960")
    A(f"s_lshl_b32 s{sT2}, s{sRb}, 8")
    A(f"s_add_u32 s{sPo}, s{sT1}, s{sT2}")
    srd(A, sSrc, pWo, pWo + 1, 4096 * 1280)
    A(f"s_cmp_lt_u32 s{sRb}, 5")
    A(f"s_cselect_b32 s{sSrc+2}, s{sSrc+2}, 0")
    A(f"s_cselect_b32 s{sU}, s{sU}, 2000")
    A(f"v_mov_b32 v{t+6}, 0")
    A(f"s_or_b32 s6, s2, s{sWave}")
    A(f"s_cbranch_scc1 {L}ntag")
    A(f"s_lshl_b64 s[6:7], s[{sNo}:{sNo+1}], 2")
    A(f"s_or_b32 s7, s7, 0x80000000")
    A(f"v_mov_b32 v{t+14}, s6")
    A(f"v_mov_b32 v{t+15}, s7")
    A("s_mov_b64 exec, 1")
    A(f"global_store_dwordx2 v{t+6}, {vr(t+14,2)}, s[{pDbg}:{pDbg+1}] offset:128 sc1")
    A("s_mov_b64 exec, -1")
    A(f"{L}ntag:")
    A(f"v_and_b32 v{t+14}, 15, v{vLane}")
    A(f"v_lshrrev_b32 v{t+13}, 1, v{t+14}")
    A(f"v_xor_b32 v{t+13}, v{t+13}, v{t+12}")
    A(f"v_lshlrev_b32 v{t+13}, 4, v{t+13}")
    A(f"v_lshl_add_u32 v{t+13}, v{t+14}, 7, v{t+13}")
    A(f"s_lshl_b32 s6, s{sWave}, 13")
    A(f"s_add_u32 s6, s6, {R1}")
    A(f"v_add_u32 v{vXr}, s6, v{t+13}")
    A(f"v_xor_b32 v{vXr+1}, 64, v{vXr}")
    A(f"v_lshlrev_b32 v{t+3}, 4, v{t+14}")
    A(f"v_bfe_u32 v{t+14}, v{vLane}, 2, 2")
    A(f"v_and_b32 v{t+15}, 3, v{vLane}")
    A(f"v_lshlrev_b32 v{t+15}, 3, v{t+15}")
    A(f"v_lshl_add_u32 v{t+15}, v{t+12}, 12, v{t+15}")
    A(f"v_add_u32 v{t+15}, {R3}, v{t+15}")
    A(f"v_bfe_u32 v{t+16}, v{vLane}, 4, 1")
    A(f"v_lshl_add_u32 v{t+13}, v{t+16}, 2, v{t+14}")
    A(f"s_lshl_b32 s6, s{sWave}, 1")
    A(f"v_xor_b32 v{t+13}, s6, v{t+13}")
    A(f"v_lshl_add_u32 v{t+13}, v{t+13}, 5, v{t+15}")
    A(f"v_lshl_add_u32 v{vWqr}, v{t+14}, 8, v{t+13}")
    for p in range(1, 8): A(f"v_xor_b32 v{vWqr+p}, {32*p}, v{vWqr}")
    A(f"v_lshrrev_b32 v{t+13}, 1, v{t+14}")
    A(f"v_lshl_add_u32 v{t+13}, v{t+16}, 1, v{t+13}")
    A(f"v_xor_b32 v{t+13}, s{sWave}, v{t+13}")
    A(f"v_lshl_add_u32 v{t+13}, v{t+13}, 5, v{t+15}")
    A(f"v_lshl_add_u32 v{vW13r}, v{t+14}, 7, v{t+13}")
    for p in range(1, 4): A(f"v_xor_b32 v{vW13r+p}, {32*p}, v{vW13r}")
    srd(A, sK, pK, pK + 1, 16777216)
    srd(A, sV, pV, pV + 1, 16777216)
    A(f"s_add_u32 s{sSt}, s{pWs}, {ST_OFF}")
    A(f"s_addc_u32 s{sSt+1}, s{pWs+1}, 0")
    srd(A, sSt, sSt, sSt + 1, 2048 * 16)
    A(f"s_lshl_b32 s6, s{sRb}, 2")
    A(f"v_mov_b32 v{t+2}, s6")
    A(f"s_movk_i32 s{sMask}, {EVMASK}")
    A(f"s_mov_b32 s{sD}, 0")
    A(f"s_cmp_ge_u32 s{sProd}, 4")
    A(f"s_cbranch_scc1 {L}np2")
    A("s_waitcnt vmcnt(25)")
    for i in range(79, -1, -1):
        A(f"v_and_b32 v{UNP+2*i+1}, 0xffff0000, v{RAW+i}")
        A(f"v_lshlrev_b32 v{UNP+2*i}, 16, v{RAW+i}")
    a = 64
    def red(first):
        for i in range(80):
            first(i)
        A(f"v_pk_add_f32 {vr(a,2)}, {vr(a,2)}, {vr(a+2,2)}")
        A(f"v_pk_add_f32 {vr(a+4,2)}, {vr(a+4,2)}, {vr(a+6,2)}")
        A(f"v_pk_add_f32 {vr(a,2)}, {vr(a,2)}, {vr(a+4,2)}")
        A(f"v_add_f32 v{a}, v{a}, v{a+1}")
        for qp in ("[1,0,3,2]", "[2,3,0,1]"):
            A("s_nop 1")
            A(f"v_add_f32_dpp v{a}, v{a}, v{a} quad_perm:{qp} row_mask:0xf bank_mask:0xf")
    def f1(i):
        d = vr(a + 2 * (i % 4), 2)
        if i < 4: A(f"v_pk_add_f32 {d}, {vr(UNP+2*i,2)}, {vr(UNP+2*i+8,2)}")
        elif i >= 8: A(f"v_pk_add_f32 {d}, {d}, {vr(UNP+2*i,2)}")
    red(f1)
    o = 72
    A(f"v_mul_f32 v{o}, {hex(f2u(-1.0/640))}, v{a}")
    for i in range(80): A(f"v_pk_add_f32 {vr(UNP+2*i,2)}, {vr(UNP+2*i,2)}, {vr(o,2)} op_sel_hi:[1,0]")
    def f2(i):
        d = vr(a + 2 * (i % 4), 2); x_ = vr(UNP + 2 * i, 2)
        if i < 4: A(f"v_pk_mul_f32 {d}, {x_}, {x_}")
        else: A(f"v_pk_fma_f32 {d}, {x_}, {x_}, {d}")
    red(f2)
    A(f"v_mov_b32 v{o+3}, {hex(f2u(1e-5))}")
    A(f"v_fmac_f32 v{o+3}, {hex(f2u(1.0/640))}, v{a}")
    A(f"v_mov_b32 v{o+2}, v{o+3}")
    A(f"v_rsq_f32 v{o+1}, v{o+3}")
    A("s_mov_b32 exec_lo, 0x11111111")
    A("s_mov_b32 exec_hi, 0x11111111")
    A(f"buffer_store_dwordx4 {vr(o,4)}, v{t+5}, s[{sSt}:{sSt+3}], 0 offen sc1 ; @put S")
    A("s_mov_b64 exec, -1")
    A("s_waitcnt vmcnt(0)")
    A(f"{L}np2:")
    if "dummy" in OPT:
        A(f"v_lshlrev_b32 v{t+13}, 4, v{vLane}")
        for i in range(16): A(f"buffer_load_dwordx4 {vr(64+4*i,4)}, v{t+13}, s[{sWq}:{sWq+3}], 0 offen offset:{(i%4)*1024}")
        for i in range(128): A(f"v_mov_b32 v{128+i}, 0")
        A("s_waitcnt vmcnt(0)")
        A("s_mov_b32 s6, 0")
        A(f"{L}dmy:")
        for i in range(64): mf16(A, vr(128 + 4 * (i % 32), 4), vr(64 + 4 * (i // 4 % 12), 4), vr(112 + 4 * (i % 4), 4))
        A("s_add_u32 s6, s6, 1")
        A("s_cmp_lt_u32 s6, 40")
        A(f"s_cbranch_scc1 {L}dmy")
        A("s_nop 7")
    if "idle" in OPT:
        A("s_mov_b32 s6, 0")
        A(f"{L}dmy:")
        for i in range(64): A("s_nop 15")
        A("s_add_u32 s6, s6, 1")
        A("s_cmp_lt_u32 s6, 40")
        A(f"s_cbranch_scc1 {L}dmy")
    for i in range(4): A(f"v_mov_b32 v{vSt+i}, 0")
    A(f"v_mov_b32 v{t+13}, 0x3f803f80")
    for i in range(4): A(f"v_accvgpr_write_b32 a{aOne+i}, v{t+13}")
    z = vr(vSt, 4)
    for i in range(8): mf32(A, vr(vAcc + 16 * i, 16), z, z, "0")
    for i in range(9): mf32(A, ar(16 * i, 16), z, z, "0")
    A(f"s_waitcnt vmcnt(12)")
    A("s_barrier")
    A(f"s_lshl2_add_u32 s6, s{sProd}, s{sWave}")
    A(f"s_and_b32 s6, s6, 0xfffffff3")
    A(f"s_cbranch_scc1 {L}np3")
    A(f"v_mov_b32 v{t+1}, 1")
    A(f"v_add_u32 v{t+7}, s{sProd}, v{t+2}")
    A(f"s_mov_b64 exec, 1")
    A(f"global_store_byte v{t+7}, v{t+1}, s[{pDbg}:{pDbg+1}] sc1")
    A(f"s_mov_b64 exec, -1")
    A(f"{L}np3:")
    stamp(1)
    for rt in range(4): A(xread(0, 0, rt))
    A(f"s_cmp_eq_u32 s{sHasF}, 0")
    fr = frag_list(True)
    for f in range(3):
        for sec in range(2): A(wread(fr[f], 0, sec, f))
    A("s_waitcnt lgkmcnt(6)")
    if FINE: A("s_mov_b32 s7, 0")
    A(f"s_cbranch_scc1 {L}gn")
    gemm_loop(A, True, L + "gf")
    A(f"s_branch {L}gdone")
    gemm_events(A, L + "gf")
    gemm_events(A, L + "gn")
    gemm_loop(A, False, L + "gn")
    A(f"{L}gdone:")
    if FINE:
        A(f"s_lshl_b32 s96, s2, 2"); A(f"s_add_u32 s96, s96, s{sWave}"); A("s_lshl_b32 s96, s96, 10")
        A(f"v_lshl_add_u32 v{vTm+12}, v{vLane}, 2, s96")
        A(f"s_add_u32 s100, s{pWs}, 0x3200000"); A(f"s_addc_u32 s101, s{pWs+1}, 0")
        A(f"global_store_dword v{vTm+12}, v{vFin}, s[100:101]")
        A(f"global_store_dword v{vTm+12}, v{vFin+1}, s[100:101] offset:256")
        A(f"global_store_dword v{vTm+12}, v{vFin-1}, s[100:101] offset:512")
    stamp(2)
    A(f"v_lshrrev_b32 v{t+12}, 4, v{vLane}")
    A(f"v_lshlrev_b32 v{t+12}, 4, v{t+12}")
    A(f"s_lshl_b32 s6, s{sWave}, 7")
    A(f"s_add_u32 s6, s6, {CS}")
    A(f"v_add_u32 v{t+8}, s6, v{t+12}")
    A(f"s_lshl_b32 s6, s{sWave}, 6")
    A(f"s_add_u32 s6, s6, {CS+512}")
    A(f"v_add_u32 v{t+9}, s6, v{t+12}")
    A("s_mov_b32 exec_lo, 0x00010001")
    A("s_mov_b32 exec_hi, 0x00010001")
    A(f"ds_write_b128 v{t+8}, {ar(aCs,4)}")
    A(f"ds_write_b128 v{t+8}, {ar(aCs+4,4)} offset:64")
    A(f"ds_write_b128 v{t+9}, {ar(aCs+8,4)}")
    A(f"ds_write_b128 v{t+9}, {ar(aCs+12,4)} offset:256")
    A("s_mov_b64 exec, -1")
    for j in range(8): A(f"v_mov_b32 v{vKd+j}, v{vXd+j}")
    A(f"s_mov_b32 s{sKVo}, s{sXo}")
    A(f"s_mov_b32 s{sKVm}, s{sM0X}")
    A(f"v_lshlrev_b32 v{t+10}, 4, v{vLane}")
    A(f"s_and_b32 s{qP}, s2, 3")
    A(f"s_lshr_b32 s{qCb}, s2, 6")
    A(f"s_bfe_u32 s{qRb}, s2, 0x30003")
    A(f"s_and_b32 s6, s2, 4")
    A(f"s_lshl_b32 s6, s6, 1")
    A(f"s_add_u32 s{qRb}, s{qRb}, s6")
    A(f"s_lshl2_add_u32 s{qG}, s{qRb}, s{qCb}")
    A(f"s_mul_i32 s6, s{qG}, {IB_G}")
    A(f"s_add_u32 s6, s6, {IB_OFF}")
    A(f"s_add_u32 s{qI}, s{pWs}, s6")
    A(f"s_addc_u32 s{qI+1}, s{pWs+1}, 0")
    srd(A, qI, qI, qI + 1, IB_G)
    vWs = t
    wp_src_voff(A, vWs)
    A("s_waitcnt lgkmcnt(0)")
    A("s_barrier")
    kvadv = [f"s_add_u32 s{sKVo}, s{sKVo}, 16384\ns_add_u32 s{sKVm}, s{sKVm}, 32768"]
    def kvq(): return kv_dma() + kvadv
    csb = [vKr, vKr + 4, vVr + 0]
    lq = LQ()
    def csread_q(p):
        A(f"v_xor_b32 v{t+11}, {64*p}, v{t+8}")
        A(f"ds_read_b128 {vr(csb[p%3],4)}, v{t+11}"); lq.issue(("c", p))
    csread_q(0); csread_q(1)
    wo_dma = []
    for su in range(2):
        wo_dma.append(f"s_lshl_b32 s6, s{sWave}, 13\ns_add_u32 m0, s6, {R4+su*4096}")
        wo_dma += [f"buffer_load_dwordx4 v{vWs+4*su+j}, s[{sSrc}:{sSrc+3}], s{sPo} offen offset:{j*1024} lds ; @put P" for j in range(4)]
    kq = spread([f"s_add_u32 m0, s{sKVm}, 16384"] + kv_dma()[6:] + kvadv + wo_dma, 24)
    for rt in range(4):
        q = vSt + 4 * rt
        A(f"v_mul_f32 v{q+3}, {hex(f2u(LOG2E/128**0.5))}, v{q+1}")
        A(f"v_mul_f32 v{q+1}, {hex(f2u(-LOG2E))}, v{q+1}")
    z = vr(vTm + 12, 4)
    for i in range(4): A(f"v_mov_b32 v{vTm+12+i}, 0")
    for p in range(8):
        if p + 2 < 8: csread_q(p + 2)
        lq.wait(A, [("c", p)])
        c = csb[p % 3]
        for rt in range(4):
            d = vAcc + (p * 4 + rt) * 4; q = vSt + 4 * rt
            for h in range(2):
                A(f"v_pk_fma_f32 {vr(d+2*h,2)}, {vr(c+2*h,2)}, {vr(q,2)}, {vr(d+2*h,2)} op_sel_hi:[1,0,1]")
        mf32(A, ar(aO + 16 * p, 16), z, z, "0")
        emit(kq[3*p])
        for rt in range(4):
            d = vAcc + (p * 4 + rt) * 4; q = vSt + 4 * rt
            for h in range(2):
                A(f"v_pk_mul_f32 {vr(d+2*h,2)}, {vr(d+2*h,2)}, {vr(q+2,2)} op_sel:[0,1]")
        emit(kq[3*p+1])
        for rt in range(4):
            d = vAcc + (p * 4 + rt) * 4
            f = vQ + ((rt // 2) * 8 + p) * 4 + (rt & 1) * 2
            for h in range(2): A(f"v_cvt_pk_bf16_f32 v{f+h}, v{d+2*h}, v{d+2*h+1}")
        emit(kq[3*p+2])
        if p > 0:
            for qt in range(2):
                f = vQ + (qt * 8 + p - 1) * 4
                for h in range(2): A(f"v_permlane16_swap_b32 v{f+h}, v{f+2+h}")
    A("s_nop 0")
    for qt in range(2):
        f = vQ + (qt * 8 + 7) * 4
        for h in range(2): A(f"v_permlane16_swap_b32 v{f+h}, v{f+2+h}")
    stamp(3)
    A(f"s_cmp_eq_u32 s{sHasF}, 0")
    A(f"s_cbranch_scc1 {L}noffn")
    def hst(pi, rt): return f"buffer_store_dwordx4 {vr(vAcc+80+pi*16+rt*4,4)}, v{t+10}, s[{sA}:{sA+3}], s{qT0+pi} offen offset:{rt*1024} sc1"
    T = vAcc; H = vAcc + 80; C = vAcc + 48
    for p in range(4):
        A(f"v_xor_b32 v{t+11}, {64*p}, v{t+9}")
        A(f"ds_read_b128 {vr(C+8*p,4)}, v{t+11}")
        A(f"ds_read_b128 {vr(C+8*p+4,4)}, v{t+11} offset:256")
    A(f"s_lshr_b32 s7, s{sWave}, 1")
    A(f"s_lshl_b32 s6, s{sFb}, 1")
    A(f"s_add_u32 s6, s6, 128")
    A(f"s_add_u32 s{sT0}, s6, s7")
    A(f"s_xor_b32 s7, s7, 1")
    A(f"s_add_u32 s{sT1}, s6, s7")
    A(f"s_lshl_b32 s{qT0}, s{sT0}, 12")
    A(f"s_lshl_b32 s{qT1}, s{sT1}, 12")
    A("s_waitcnt lgkmcnt(0)")
    kq = spread(kvq(), 11) + [[]] * 13
    for p in range(4):
        for r2 in range(2):
            g_ = 3 * (p * 2 + r2)
            G = [(2 * r2 + i, T + 12 * i + 24 * ((p * 2 + r2) & 1)) for i in range(2)]
            for rt, b in G:
                for i in range(4): A(f"v_accvgpr_read_b32 v{b+i}, a{aG+(p*4+rt)*4+i}")
                for i in range(4): A(f"v_accvgpr_read_b32 v{b+4+i}, a{aUp+(p*4+rt)*4+i}")
            emit(kq[g_])
            for rt, b in G:
                for h in range(4):
                    A(f"v_pk_fma_f32 {vr(b+2*h,2)}, {vr(C+8*p+2*h,2)}, {vr(vSt+4*rt,2)}, {vr(b+2*h,2)} op_sel_hi:[1,0,1]")
            for rt, b in G:
                for h in range(2): A(f"v_pk_mul_f32 {vr(b+8+2*h,2)}, {vr(b+2*h,2)}, {vr(vSt+4*rt,2)} op_sel:[0,1]")
            for rt, b in G:
                for i in range(4): A(f"v_exp_f32 v{b+8+i}, v{b+8+i}")
            emit(kq[g_+1])
            for rt, b in G:
                for h in range(2): A(f"v_pk_mul_f32 {vr(b+2*h,2)}, {vr(b+2*h,2)}, {vr(b+4+2*h,2)}")
            for rt, b in G:
                for h in range(2):
                    A(f"v_pk_fma_f32 {vr(b+8+2*h,2)}, {vr(b+8+2*h,2)}, {vr(vSt+4*rt+2,2)}, {vr(vSt+4*rt+2,2)} op_sel_hi:[1,0,0]")
            for rt, b in G:
                for i in range(4): A(f"v_rcp_f32 v{b+8+i}, v{b+8+i}")
            emit(kq[g_+2])
            if p >= 2: A(hst(0, (p - 2) * 2 + r2))
            for n, (rt, b) in enumerate(G):
                for h in range(2): A(f"v_pk_mul_f32 {vr(b+2*h,2)}, {vr(b+2*h,2)}, {vr(b+8+2*h,2)}")
            for rt, b in G:
                for h in range(2): A(f"v_cvt_pk_bf16_f32 v{H+(p//2)*16+rt*4+(p&1)*2+h}, v{b+2*h}, v{b+2*h+1}")
        if p & 1:
            pi = p // 2
            A(f"s_bitcmp1_b32 s{sWave}, 0")
            A(f"s_cbranch_scc0 {L}nsw{pi}")
            for rt in range(4):
                for h in range(2): A(f"v_swap_b32 v{H+pi*16+rt*4+h}, v{H+pi*16+rt*4+2+h}")
            A(f"{L}nsw{pi}:")
    A(f"s_branch {L}ffnd")
    A(f"{L}noffn:")
    emit(kvq())
    A(f"s_mov_b32 s{qT1}, 0x1000000")
    A("s_barrier")
    srd(A, qA, pW2, pW2 + 1, 1728 * 1280)
    wp_src_voff(A, vAcc)
    wp_addr(A, 13)
    A(f"s_mul_i32 s{sT2}, s{sRb}, 5")
    A(f"s_add_u32 s{sT2}, s{sT2}, s{sProd}")
    A(f"s_lshl2_add_u32 s{sT2}, s{sT2}, s{sWave}")
    A(f"{L}w2j:")
    A(f"s_mul_hi_u32 s{sT0}, s{sT2}, 0x33333334")
    A(f"s_mul_i32 s{sT1}, s{sT0}, 5")
    A(f"s_sub_u32 s{sT1}, s{sT2}, s{sT1}")
    A(f"s_mul_i32 s7, s{sT0}, 40960")
    A(f"s_lshl_b32 s6, s{sT1}, 8")
    A(f"s_add_u32 s{sT0}, s7, s6")
    A(f"s_lshl_b32 s6, s{sT1}, 13")
    A(f"s_add_u32 s7, s7, s6")
    A(f"s_add_u32 s{sT1}, s7, {128*40960}")
    A(f"s_lshl_b32 s6, s{sWave}, 13")
    for su in range(2):
        A(f"s_add_u32 m0, s6, {R3+su*4096}")
        A("s_nop 0")
        for j in range(4): A(f"buffer_load_dwordx4 v{vAcc+4*su+j}, s[{qA}:{qA+3}], s{sT0} offen offset:{j*1024} lds")
    A("s_waitcnt vmcnt(0)")
    wp_reads(A, 4096)
    A("s_waitcnt lgkmcnt(0)")
    wp_stores(A, sT1)
    A(f"s_add_u32 s{sT2}, s{sT2}, 160")
    A(f"s_cmp_lt_u32 s{sT2}, 270")
    A(f"s_cbranch_scc1 {L}w2j")
    A(f"{L}ffnd:")
    for i in range(4): A(f"v_mov_b32 v{vOnes+i}, -1")
    A(f"s_mul_i32 s6, s{qP}, 30720")
    A(f"s_mul_i32 s7, s{sWave}, 7680")
    A(f"s_min_u32 s7, s7, 22528")
    A(f"s_add_u32 s{sSen}, s6, s7")
    A(f"s_lshl_b32 s{sWpO}, s{sU}, 12")
    wp_addr(A, 13, reg=R4, n=1, dst=vWpB)
    A(f"s_lshl_b32 s{sTch}, s{sHead}, 14")
    A(f"v_and_b32 v{vTch}, 15, v{vLane}")
    A(f"v_lshlrev_b32 v{vTch}, 7, v{vTch}")
    A(f"v_add_u32 v{vL16+1}, 4096, v{vL16}")
    A(f"s_lshl_b32 s6, s{sRb}, 5")
    A(f"s_add_u32 s7, s6, s{sHead}")
    A(f"s_lshl_b32 s7, s7, 7")
    A(f"v_mov_b32 v{vFo}, s7")
    A(f"v_and_b32 v{vAp}, 3, v{vLane}")
    A(f"v_lshlrev_b32 v{vAp}, 2, v{vAp}")
    A(f"s_and_b32 s7, s{sHead}, 0x13")
    A(f"s_add_u32 s7, s7, s6")
    A(f"v_add_lshl_u32 v{vAp}, v{vAp}, s7, 7")
    A(f"s_lshr_b32 s7, s{qRb}, 1")
    A(f"s_lshl_b32 s6, s7, 5")
    A(f"s_lshl_b32 s{sT0}, s{sWave}, 3")
    A(f"s_add_u32 s6, s6, s{sT0}")
    A(f"v_add_lshl_u32 v{vAa}, v{vLane}, s6, 7")
    A(f"v_cmp_gt_u32 vcc, 8, v{vLane}")
    A(f"v_and_b32 v{vAb}, 15, v{vLane}")
    A(f"v_lshlrev_b32 v{vAb}, 2, v{vAb}")
    A(f"s_lshl_b32 s6, s{sWave}, 6")
    A(f"s_add_u32 s6, s6, 3")
    A(f"v_add_lshl_u32 v{vAb}, v{vAb}, s6, 7")
    A(f"v_cndmask_b32 v{vAa}, v{vAb}, v{vAa}, vcc")
    A(f"v_bfe_u32 v{vAo}, v{vLane}, 4, 1")
    A(f"v_add_u32 v{vAo}, s{qCb}, v{vAo}")
    A(f"v_cmp_gt_u32 vcc, 32, v{vLane}")
    A(f"v_mov_b32 v{vFv}, s7")
    A(f"s_mul_i32 s6, s{qP}, 21")
    A(f"s_add_u32 s6, s6, 1")
    A(f"v_cndmask_b32 v{vAo}, v{vFv}, v{vAo}, vcc")
    A(f"s_lshr_b32 s6, s6, 1")
    A(f"v_and_b32 v{vFv}, 15, v{vLane}")
    A(f"v_min_u32 v{vFv}, 10, v{vFv}")
    A(f"v_add_u32 v{vFv}, s6, v{vFv}")
    A(f"v_cmp_gt_u32 vcc, 48, v{vLane}")
    A(f"v_lshl_add_u32 v{vAo}, v{vAo}, 5, v{vFv}")
    A(f"v_lshlrev_b32 v{vAo}, 7, v{vAo}")
    A(f"v_cndmask_b32 v{vAo}, v{vAp}, v{vAo}, vcc")
    stamp(4)
    A(f"s_mov_b32 s{sT1}, {R0}")
    kv_addr(A, sT1)
    A(f"v_mov_b32 v{vL}, 0")
    A(f"v_mov_b32 v{vL+1}, 0")
    A(f"s_mov_b32 s{sT}, 0")
    A(f"s_mov_b32 s{sC0}, 32768")
    A(f"s_mov_b32 s{sDelta}, 32768")
    A(f"s_cmp_eq_u32 s{sWave}, 0")
    A(f"s_cselect_b32 s{sTail}, 1, 99")
    srd(A, qX, pFl, pFl + 1, 0x8000)
    A(f"s_add_u32 s6, s{sNo}, 1")
    A(f"v_mov_b32 v{vFv}, s6")
    A(f"v_mov_b32 v{vFv+1}, s{sNo+1}")
    A("s_waitcnt vmcnt(12)")
    A("s_barrier")
    lq = LQ()
    for p in range(3):
        A(kread(p, 0, p)); lq.issue(("f", 16 + p))
    attn_seg(A, lq, 2, {33 + 4 * i: [hst(1, i)] for i in range(4)}, sm_lo=0, sm_hi=0, look=[2])
    for p in range(3):
        A(kread(p, 1, p)); lq.issue(("f", p))
    A("s_nop 7")
    for e in range(10):
        for x in sm_exp(0, e): A(x)
        if e:
            for x in sm_post(0, e - 1): A(x)
    assert XP or lq.q == [("f", 0), ("f", 1), ("f", 2)]
    def base_ex(delta):
        ex = {}
        for p in range(8):
            ex.setdefault(max(2 * (p - 3) + 1, 1) if p >= 3 else 2 * p, []).append(f"v_add_u32 v{vKr+p}, {delta}, v{vKr+p}")
        for dt in range(4):
            ex.setdefault(2 * (28 + dt - 3) + 2, []).append(f"v_add_u32 v{vVr+dt}, {delta}, v{vVr+dt}")
        ex[(7, "ds")] = [f"ds_read_b64_tr_b16 {ar(aWq,2)}, v{vWpA}"]
        ex[(9, "ds")] = [f"ds_read_b64_tr_b16 {ar(aWq+2,2)}, v{vWpA} offset:2048"]
        ex.setdefault(13, []).append(f"buffer_store_dwordx4 {vr(vOnes,4)}, v{vL16}, s[{qI}:{qI+3}], s{sSen} offen sc1 ; @put H")
        ex.setdefault(15, []).append(f"s_add_u32 s{sSen}, s{sSen}, 1024")
        ex.setdefault(29, []).append(f"buffer_store_dwordx4 {ar(aWq,4)}, v{vL16}, s[{sWp}:{sWp+3}], s{sWpO} offen sc1 ; @put H")
        ex.setdefault(31, []).append(f"s_add_u32 s{sWpO}, s{sWpO}, 1024")
        return ex
    def put(ex, slots, items):
        for sl, its in zip(slots, spread(items, len(slots))): ex.setdefault(sl, []).extend(its)
    ex = base_ex(f"s{sDelta}")
    ex[(26, "pre")] = ["s_waitcnt vmcnt(12)", "s_barrier"]
    for sl, it in zip([32, 33, 37, 41, 45, 47, 49, 53, 57, 61], kv_dma()): ex.setdefault(sl, []).append(it)
    ex.setdefault(62, []).append(f"s_add_u32 s{sKVo}, s{sKVo}, 16384")
    ex.setdefault(59, []).append(f"s_add_u32 s{sKVm}, s{sKVm}, 32768\ns_and_b32 s{sKVm}, s{sKVm}, 0x1ffff")
    ex.setdefault(1, []).append(f"s_and_b32 s6, s{sT}, 3\ns_lshl_b32 s6, s6, 5")
    ex.setdefault(3, []).append(f"s_and_b32 s7, s{sT}, 4\ns_lshl_b32 s7, s7, 10\ns_or_b32 s6, s6, s7")
    ex.setdefault(4, []).append(f"v_xor_b32 v{vWpA}, s6, v{vWpB}")
    ex.setdefault(11, []).append(f"s_cmp_eq_u32 s{sT}, s{sTail}\ns_cselect_b32 s7, 0, 0x8000")
    ex.setdefault(35, []).append(f"buffer_store_dwordx2 {vr(vFv,2)}, v{vFo}, s[{qX}:{qX+3}], s7 offen sc1")
    ex.setdefault(20, []).append(f"s_add_u32 s{sT}, s{sT}, 1")
    ex.setdefault(63, []).append(f"s_cmp_eq_u32 s{sT}, 3\ns_cselect_b32 s{sDelta}, {hex((-98304) & 0xffffffff)}, s{sC0}\ns_cmp_lt_u32 s{sT}, 5")
    A(".p2align 6")
    A(f"{L}at:")
    for sg in range(4): attn_seg(A, lq, sg, ex)
    A(f"s_cbranch_scc1 {L}at")
    assert lq.q == [("f", 0), ("f", 1), ("f", 2)], lq.q
    odd = lambda a, b: [x for x in range(a, b) if x & 1]
    for t_ in (5, 6, 7):
        ex = base_ex("0x8000")
        ex.setdefault(4, []).append(f"v_xor_b32 v{vWpA}, {((t_&3)<<5)|((t_&4)<<10)}, v{vWpB}")
        if t_ == 5:
            ex[(26, "pre")] = ["s_waitcnt vmcnt(13)", "s_barrier"]
            put(ex, [1], [f"global_load_dwordx2 {vr(vPa,2)}, v{vAa}, s[{pFl}:{pFl+1}] sc1"])
            put(ex, odd(33, 64), q_setup())
        elif t_ == 6:
            B_ = Asm(); B_("s_waitcnt vmcnt(3)"); flag_wait(B_, f"{L}w1", 1, [(vPa, vAa)]); B_("s_barrier")
            ex[(26, "pre")] = B_.lines
            put(ex, odd(31, 64), q_loads(0) + q_loads(1)[:6])
        else:
            ex[(26, "pre")] = ["s_barrier"]
            put(ex, [1, 3, 5, 7, 9, 11, 15, 17, 19, 21, 23, 25, 27, 31], q_loads(1)[6:] + q_loads(2)[:7])
        attn_seg(A, lq, 0, ex)
        attn_seg(A, lq, 1, ex, look=(True if t_ < 7 else [1]))
        if t_ < 7:
            attn_seg(A, lq, 2, ex)
            attn_seg(A, lq, 3, ex)
    ex = {}
    put(ex, [33, 37, 41, 45, 49, 53, 57], q_loads(2)[7:])
    attn_seg(A, lq, 2, ex, mfma=False, look=[3])
    attn_seg(A, lq, 3, ex, sm_hi=54, look=[3])
    stamp(5)
    if "fine2" in XP:
        A(f"s_lshl_b32 s96, s2, 2"); A(f"s_add_u32 s96, s96, s{sWave}"); A("s_lshl_b32 s96, s96, 10")
        A(f"v_lshl_add_u32 v227, v{vLane}, 2, s96")
        A(f"s_add_u32 s96, s{pWs}, 0x3200000"); A(f"s_addc_u32 s97, s{pWs+1}, 0")
        for i in range(3): A(f"global_store_dword v227, v{224+i}, s[96:97] offset:{256*i}")
    A(f"v_mov_b32 v{t}, v{vL}")
    A(f"v_mov_b32 v{t+1}, v{vL+1}")
    A(f"v_bfe_u32 v{t+2}, v{vLane}, 4, 1")
    A(f"v_lshrrev_b32 v{t+3}, 5, v{vLane}")
    A(f"v_permlane32_swap_b32 v{t}, v{vL}")
    A(f"v_permlane32_swap_b32 v{t+1}, v{vL+1}")
    A(f"v_lshlrev_b32 v{t+3}, 8, v{t+3}")
    A(f"v_add_f32 v{vL}, v{vL}, v{t}")
    A(f"v_add_f32 v{vL+1}, v{vL+1}, v{t+1}")
    A(f"v_lshl_add_u32 v{t+3}, v{t+2}, 10, v{t+3}")
    A(f"v_and_b32 v{t+2}, 15, v{vLane}")
    A(f"v_lshl_add_u32 v{vOo}, v{t+2}, 4, v{t+3}")
    A(f"v_mov_b32 v{t+8}, {hex(f2u(2.0**-40))}")
    A(f"v_mov_b32 v{t+9}, {hex(f2u(2.0**40))}")
    A(f"v_cmp_gt_f32 s[{sE0}:{sE0+1}], v{vL}, v{t+8}")
    A(f"v_cmp_lt_f32 s[{sE0+2}:{sE0+3}], v{vL}, v{t+9}")
    A(f"v_cmp_gt_f32 s[4:5], v{vL+1}, v{t+8}")
    A(f"v_cmp_lt_f32 s[6:7], v{vL+1}, v{t+9}")
    A(f"v_rcp_f32 v{t}, v{vL}")
    A(f"v_rcp_f32 v{t+1}, v{vL+1}")
    A("s_nop 1")
    A(f"s_and_b64 s[{sE0}:{sE0+1}], s[{sE0}:{sE0+1}], s[{sE0+2}:{sE0+3}]")
    A(f"s_and_b64 s[4:5], s[4:5], s[6:7]")
    A(f"s_and_b64 s[4:5], s[4:5], s[{sE0}:{sE0+1}]")
    A(f"s_cmp_eq_u64 s[4:5], exec")
    if not XP: A(f"s_cbranch_scc0 {L}slow ; slowbr")
    A(f"{L}oep:")
    A(f"s_lshl_b32 s6, s{sHead}, 14")
    n = 0
    for dt in range(4):
        for qt in range(2):
            b = vS + (n % 4) * 16; pk = vP + (n % 4) * 8; n += 1
            for i in range(16): A(f"v_accvgpr_read_b32 v{b+i}, a{aO+(qt*4+dt)*16+i}")
            for i in range(8):
                A(f"v_pk_mul_f32 {vr(b+2*i,2)}, {vr(b+2*i,2)}, {vr(t,2)} " + ("op_sel_hi:[1,0]" if qt == 0 else "op_sel:[0,1]"))
            for i in range(8): A(f"v_cvt_pk_bf16_f32 v{pk+i}, v{b+2*i}, v{b+2*i+1}")
            for j in range(2):
                A(f"buffer_store_dwordx4 {vr(pk+4*j,4)}, v{vOo}, s[{sA}:{sA+3}], s6 offen offset:{qt*2048+j*512} sc1 ; @put H")
        if dt < 3: A("s_add_u32 s6, s6, 4096")
    stamp(6); stamp(7)
    gemm2(A, L, emit, stamp)
    A(f"{L}end:")
    A("s_endpgm")
    A(f"{L}slow:")
    A("s_waitcnt vmcnt(0) lgkmcnt(0)")
    srd(A, sK, pK, pK + 1, 16777216)
    srd(A, sV, pV, pV + 1, 16777216)
    kv_dma_voff(A, vKd, vVd)
    A(f"s_lshl_b32 s{sT1}, s{sWave}, 13")
    A(f"s_add_u32 s{sT1}, s{sT1}, {R2}")
    kv_addr(A, sT1)
    for dt in range(4): A(f"v_add_u32 v{vVr+dt}, {R4-R2-16384}, v{vVr+dt}")
    vM = vTm + 6
    A(f"v_mov_b32 v{vM}, 0xff800000")
    A(f"v_mov_b32 v{vM+1}, 0xff800000")
    A(f"v_mov_b32 v{vL}, 0")
    A(f"v_mov_b32 v{vL+1}, 0")
    for i in range(4): A(f"v_mov_b32 v{vTm+12+i}, 0")
    A("s_nop 1")
    for i in range(8): mf32(A, ar(aO + 16 * i, 16), vr(vTm + 12, 4), vr(vTm + 12, 4), "0")
    A(f"s_mov_b32 s{sT}, 0")
    A(f"{L}sl:")
    A(f"s_and_b32 s{sT0}, s{sT}, 15")
    A(f"s_lshl_b32 s{sT0}, s{sT0}, 13")
    A(f"s_lshl_b32 s{sKVo}, s{sHead}, 19")
    A(f"s_add_u32 s{sKVo}, s{sKVo}, s{sT0}")
    A(f"s_add_u32 s{sKVo}, s{sKVo}, {1536*256}")
    for hf in range(2):
        A(f"s_add_u32 m0, s{sT1}, {hf*4096}")
        A("s_nop 0")
        for j in range(4): A(f"buffer_load_dwordx4 v{vKd+j}, s[{sK}:{sK+3}], s{sKVo} offen offset:{j*1024} lds")
        A(f"s_add_u32 m0, s{sT1}, {R4-R2+hf*4096}")
        A("s_nop 0")
        for j in range(4): A(f"buffer_load_dwordx4 v{vVd}, s[{sV}:{sV+3}], s{sKVo} offen offset:{j*1024} lds")
        if hf == 0: A(f"s_add_u32 s{sKVo}, s{sKVo}, 4096")
    A("s_waitcnt vmcnt(0)")
    for p in range(8):
        A(kread(p, 0, p % 4))
        A("s_waitcnt lgkmcnt(0)")
        for qt in range(2): mf32(A, vr(vS + qt * 16, 16), vr(vF + (p % 4) * 4, 4), vr(vQ + (qt * 8 + p) * 4, 4), "0" if p == 0 else None)
    A("s_nop 11")
    A(f"s_cmp_ge_u32 s{sT}, 16")
    A(f"s_cbranch_scc1 {L}sl2")
    for qt in range(2):
        for i in range(8): A(f"v_max3_f32 v{vM+qt}, v{vS+qt*16+2*i}, v{vS+qt*16+2*i+1}, v{vM+qt}")
    A(f"s_cmp_lg_u32 s{sT}, 15")
    A(f"s_cbranch_scc1 {L}sl3")
    A(f"v_mov_b32 v{vM+2}, v{vM}")
    A(f"v_mov_b32 v{vM+3}, v{vM+1}")
    A("s_nop 1")
    A(f"v_permlane32_swap_b32 v{vM+2}, v{vM}")
    A(f"v_permlane32_swap_b32 v{vM+3}, v{vM+1}")
    A(f"v_max_f32 v{vM}, v{vM}, v{vM+2}")
    A(f"v_max_f32 v{vM+1}, v{vM+1}, v{vM+3}")
    A(f"s_branch {L}sl3")
    A(f"{L}sl2:")
    for e in range(32):
        r, qt, ks = sm_reg(0, e)
        A(f"v_sub_f32 v{r}, v{r}, v{vM+qt}")
        A(f"v_exp_f32 v{r}, v{r}")
        A("s_nop 0")
        for x in sm_post(0, e): A(x)
    for i in range(8):
        for sec in range(2): A(vread(i // 4, i % 4, 0, sec, i % 4))
        A("s_waitcnt lgkmcnt(0)")
        for qt in range(2): mf32(A, ar(aO + (qt * 4 + i % 4) * 16, 16), vr(vF + (i % 4) * 4, 4), vr(vP + (qt * 2 + i // 4) * 4, 4))
    A(f"{L}sl3:")
    A(f"s_add_u32 s{sT}, s{sT}, 1")
    A(f"s_cmp_lt_u32 s{sT}, 32")
    A(f"s_cbranch_scc1 {L}sl")
    A(f"v_mov_b32 v{t}, v{vL}")
    A(f"v_mov_b32 v{t+1}, v{vL+1}")
    A("s_nop 1")
    A(f"v_permlane32_swap_b32 v{t}, v{vL}")
    A(f"v_permlane32_swap_b32 v{t+1}, v{vL+1}")
    A(f"v_add_f32 v{vL}, v{vL}, v{t}")
    A(f"v_add_f32 v{vL+1}, v{vL+1}, v{t+1}")
    A(f"v_rcp_f32 v{t}, v{vL}")
    A(f"v_rcp_f32 v{t+1}, v{vL+1}")
    A("s_nop 7")
    A(f"s_branch {L}oep")
    kd(A, name, 512, 256)

def checks(A, entry):
    if XP: return
    nb = check_hazards(A.lines)
    tot = 0
    for wg in (0, 5, 6, 31, 24, 28, 255):
        for w in (0, 1, 3):
            for slow in (0, 1):
                def hk(x, S):
                    if x.opn == "v_readfirstlane_b32" and "tag" not in x.text:
                        S[sWave] = w
                    if "slowbr" in x.text: return slow
                    if "pollbr" in x.text: return 1
                p, c = check_waits(A.lines, entry, {2: wg}, hk)
                tot += p
    print("hazards:", nb, "waits:", tot, c)

def build(fn, stamps=False):
    HDR = open("cdna_kernels/" + NAME + ".s.ref").read().split("; Override")[0]
    A = Asm()
    A(HDR)
    A(f"; @launch grid=(256,1,1) block=(256,1,1) lds={P1_LDS}")
    A('.amdgcn_target "amdgcn-amd-amdhsa--gfx950"')
    A(".text")
    gen_p1(A, NAME + "_kernel", stamps=stamps)
    checks(A, NAME + "_kernel")
    if "hplain" in XP: A.lines = [l.replace(" sc1", "") if ("store" in l and f"s[{sA}:{sA+3}], s6 " not in l and f"s[{sA}:{sA+3}]" in l) else l for l in A.lines]
    if "oplain" in XP: A.lines = [l.replace(" sc1", "") if ("store" in l and f"s[{sA}:{sA+3}], s6 " in l) else l for l in A.lines]
    if "iplain" in XP: A.lines = [l.replace(" sc1", "") if ("store" in l and f"s[{qI}:{qI+3}], s{sT0}" in l) else l for l in A.lines]
    if "nt" in XP: A.lines = [l.replace(" sc1", " sc1 nt") if ("buffer_store" in l) else l for l in A.lines]
    if "sc01" in XP: A.lines = [l.replace(" sc1", " sc0 sc1") if ("buffer_store" in l) else l for l in A.lines]
    open(fn, "w").write(A.text())
if __name__ == "__main__":
    build("fu.s")
    build("fu_st.s", stamps=True)
```

```python
from asmlib import *
from common import *

P1_LDS = 163840
R0, R1, R2, R3, R4 = 0, 32768, 65536, 98304, 131072
CS = R3
TAILBIT = 0x30000
ROT = False
TLBW = True
FLAG = 'byte'
FINE = False
EVMASK = 0x180
vFin = 60
XP = set()

class LQ:
    def __init__(s): s.q = []
    def issue(s, tag): s.q.append(tag)
    def wait(s, A, tags):
        idx = max([i for i, t in enumerate(s.q) if t in tags], default=-1)
        if idx < 0: return
        n = len(s.q) - 1 - idx
        assert n <= 15
        A(f"s_waitcnt lgkmcnt({n})")
        s.q = s.q[idx + 1:]
    def clear(s): s.q = []

sX, sWq, sW1, sW3, sK, sV, sA, sWp, sSrc, sSt = 8, 12, 16, 20, 24, 28, 32, 36, 40, 44
sWave, sHead, sRb, sFb, sHasF = 48, 49, 50, 51, 52
sXo, sWqo, sW13o, sM0X, sM0W, sD, sTail, sSlot = 53, 54, 55, 56, 57, 58, 59, 60
sT0, sT1, sT2 = 61, 62, 63
pX, pK, pV, pWq, pWo, pBx, pW1, pW3, pW2, pOut, pDbg, pWs = range(64, 88, 2)
sKVo, sKVm, sDelta, sT, sU, sMask, sXb, sC0 = 88, 89, 90, 91, 92, 93, 94, 95
sX2, sM0d, sXst, sM0t, sProd, sPo = 76, 74, 75, 3, 4, 5
sE0 = 96
vLane = 1
vXd, vWqd, vW13d, vXr, vWqr, vW13r = 2, 10, 12, 13, 15, 23
vZero = 27
vSt = 28
vTm = 44
vQ = 64
vAcc = 128
aG, aUp, aCs, aXf, aWf, aOne, aWp = 0, 64, 128, 144, 176, 192, 196
vKr, vVr, vKd, vVd, vL, vOo = 2, 10, 14, 18, 22, 24
vS, vP, vF = 128, 192, 208
aO = 128
sNo = 100
pFl = 84
qA, qW, qX, qO, qI = 8, 12, 16, 20, 44
qP, qG, qAo, qWo, qWm, qN, qAs, qWs = 53, 54, 55, 56, 57, 58, 51, 60
qAe, qWe, qNl, qSo, qXo, qRb, qCb, qT0, qT1, qIn = 74, 75, 3, 93, 94, 76, 77, 78, 79, 24
vFo, vFv, vPa, vPb, vAa, vAb, vAo, vAp = 25, 28, 30, 32, 34, 35, 36, 37
vL16, vWr2, vXo2, vL8, vOwn = 54, 2, 4, 5, 6
aA2, aW2, aWq = 0, 64, 64
RING2 = 81920
TOUCH = 0
KV2LATE = True
OPT = set()
vTch, sTch = 26, 92
vOnes = 40
vWpB, vWpA = 38, 39
sWpO, sSen = 5, 4


def mf16(A, d, a, b, c=None):
    A(f"v_mfma_f32_16x16x32_bf16 {d}, {a}, {b}, {d if c is None else c}")
def mf32(A, d, a, b, c=None):
    A(f"v_mfma_f32_32x32x16_bf16 {d}, {a}, {b}, {d if c is None else c}")

def spread(items, nslots):
    out = [[] for _ in range(nslots)]
    n = len(items)
    for i, it in enumerate(items):
        out[min(nslots - 1, (i * nslots) // n)].append(it)
    return out

def frag_list(ffn):
    fr = [("Q", p) for p in range(8)]
    if ffn:
        for p in range(4): fr += [("G", p), ("U", p)]
    return fr

def wread(fr, k, sec, buf):
    c, p = fr
    if c == "Q": ad, off = vWqr + p, sec * 1024
    else: ad, off = vW13r + p, (2048 if c == "G" else 3072) + sec * 512
    return f"ds_read_b64_tr_b16 {ar(aWf+buf*4+2*sec,2)}, v{ad} offset:{off + k*16384}"

def xread(s, st, rt):
    return f"ds_read_b128 {ar(aXf+st*16+rt*4,4)}, v{vXr+s} offset:{rt*2048}"

def dma_w(ffn, force=False):
    it = [f"s_max_u32 m0, s{sM0W}, s{sTail}",
          f"buffer_load_dwordx4 v{vWqd}, s[{sWq}:{sWq+3}], s{sWqo} offen lds ; @put W",
          f"buffer_load_dwordx4 v{vWqd+1}, s[{sWq}:{sWq+3}], s{sWqo} offen offset:1024 lds ; @put W"]
    if ffn or force:
        it += [f"buffer_load_dwordx4 v{vW13d}, s[{sW1}:{sW1+3}], s{sW13o} offen offset:2048 lds ; @put W",
               f"buffer_load_dwordx4 v{vW13d}, s[{sW3}:{sW3+3}], s{sW13o} offen offset:3072 lds ; @put W"]
    it += [f"s_add_u32 s{sWqo}, s{sWqo}, {32*8192}"]
    if ffn or force: it += [f"s_add_u32 s{sW13o}, s{sW13o}, {32*3456}"]
    it += [f"s_add_u32 s{sSlot}, s{sSlot}, 16384\ns_and_b32 s{sSlot}, s{sSlot}, 0xffff",
           f"s_add_u32 s{sM0W}, s{sSlot}, s{sC0}"]
    return it

def dma_x(half):
    if half == 0: it = [f"s_mov_b32 m0, s{sM0X}"]
    else: it = [f"s_add_u32 m0, s{sM0X}, s{sM0d}"]
    sd = sX if half == 0 else sX2
    for j in range(4):
        it.append(f"buffer_load_dwordx4 v{vXd+4*half+j}, s[{sd}:{sd+3}], s{sXo} offen offset:{j*1024} lds")
    if half: it += [f"s_add_u32 s{sXo}, s{sXo}, s{sXst}\ns_xor_b32 s{sM0X}, s{sM0X}, s{sM0t}"]
    return it

def fine(A):
    A("s_memtime s[98:99]"); A("s_waitcnt lgkmcnt(0)")
    A("s_mov_b32 m0, s7")
    A(f"v_writelane_b32 v{vFin}, s96, m0")
    A(f"v_writelane_b32 v{vFin+1}, s100, m0")
    A(f"v_writelane_b32 v{vFin-1}, s98, m0")
    A("s_add_u32 s7, s7, 1")

def gemm_loop(A, ffn, L):
    fr = frag_list(ffn); nf = len(fr)
    nw = 4 if ffn else 2
    ones = {("Q", 0): 0, ("Q", 1): 1, ("G", 0): 2, ("U", 0): 3}
    lq = LQ()
    for f in range(3):
        lq.issue(("w", f)); lq.issue(("w", f))
    A(".p2align 6")
    A(f"{L}:")
    for k in range(2):
        if k == 1:
            A(f"s_bitcmp1_b32 s{sMask}, s{sD}")
            A(f"s_cbranch_scc1 {L}_ev")
            A(f"{L}_evret:")
        if k == 0:
            items = [("x", rt) for rt in range(4)] + dma_x(1) + dma_w(ffn)
            slots = spread(items, 2 * (nf - 2))
            tog = {2: [f"v_xor_b32 v{vXr}, 0x18000, v{vXr}"]}
        else:
            items = dma_x(0) + dma_w(ffn) + [f"s_add_u32 s{sD}, s{sD}, 1"]
            slots = spread(items, 2 * (nf - 5))
            slots += [[f"s_cmp_eq_u32 s{sD}, 10\ns_cbranch_scc1 {L}_nw\ns_waitcnt vmcnt({2*nw+4})\n{L}_nw:"],
                      [("x", 0)], [("x", 1)], [("x", 2)], [("x", 3)], []]
            tog = {0: [f"v_xor_b32 v{vXr+1}, 0x18000, v{vXr+1}"]}
            for f, (c, p) in enumerate(fr):
                if c == "G": continue
                reg = vWqr + p if c == "Q" else vW13r + p
                tog.setdefault(max(f - 3, -1) + 1, []).append(f"v_xor_b32 v{reg}, 0x38000, v{reg}")
        for f in range(nf):
            c, p = fr[f]
            lq.wait(A, [("w", f)] + ([("x", k)] if f == 0 else []))
            buf = f % 4
            for rt in range(4):
                r_ = rt if f % 2 == 0 else 3 - rt
                if c == "Q": d = vr(vAcc + (p * 4 + r_) * 4, 4)
                else: d = ar((aG if c == "G" else aUp) + (p * 4 + r_) * 4, 4)
                mf16(A, d, ar(aWf + buf * 4, 4), ar(aXf + k * 16 + r_ * 4, 4))
                if f + 3 < nf and rt < 2:
                    A(wread(fr[f + 3], k, rt, (f + 3) % 4)); lq.issue(("w", f + 3))
                if f == nf - 2:
                    A(wread(fr[rt // 2], 1 - k, rt % 2, (rt // 2) % 4)); lq.issue(("w", rt // 2))
                if f == nf - 1 and rt < 2:
                    A(wread(fr[2], 1 - k, rt, 2)); lq.issue(("w", 2))
                if rt >= 2 and f < nf - 2:
                    for it in slots[2 * f + rt - 2]:
                        if isinstance(it, tuple):
                            A(xread(1 - k, 1 - k, it[1]) + (" ; @chkx" if k == 1 else "")); lq.issue(("x", 1 - k))
                        else:
                            if "lds" in it and A.lines[-1].split()[1].startswith("m0"): A("s_nop 0")
                            A(it)
                if rt == 3:
                    for t in tog.get(f, []): A(t)
            if fr[f] in ones:
                mf16(A, ar(aCs + ones[fr[f]] * 4, 4), ar(aWf + buf * 4, 4), ar(aOne, 4))
            if f == nf - 3:
                n = 2 * nw + 8
                if FINE:
                    A("s_memtime s[96:97]"); A("s_waitcnt lgkmcnt(0)")
                A(f"s_waitcnt vmcnt({n}) lgkmcnt(0)")
                lq.clear()
                if FINE:
                    A("s_memtime s[100:101]"); A("s_waitcnt lgkmcnt(0)")
                A(f"s_barrier")
                if FINE: fine(A)
    A(f"s_cmp_lt_u32 s{sD}, 10")
    A(f"s_cbranch_scc1 {L}")
    assert lq.q == [("w", 0), ("w", 0), ("w", 1), ("w", 1), ("w", 2), ("w", 2)], lq.q

def kv_dma_voff(A, kd_, vd_, nv=4):
    t = vTm
    A(f"v_lshrrev_b32 v{t+12}, 4, v{vLane}")
    A(f"v_and_b32 v{t+14}, 15, v{vLane}")
    A(f"v_xor_b32 v{t+13}, v{t+14}, v{t+12}")
    A(f"v_lshlrev_b32 v{t+13}, 4, v{t+13}")
    A(f"v_lshl_add_u32 v{kd_}, v{t+12}, 8, v{t+13}")
    for j in range(1, 4): A(f"v_xor_b32 v{kd_+j}, {64*j}, v{kd_}")
    A(f"v_lshlrev_b32 v{t+13}, 2, v{t+12}")
    A(f"v_xor_b32 v{t+13}, v{t+13}, v{t+14}")
    A(f"v_lshlrev_b32 v{t+13}, 4, v{t+13}")
    A(f"v_lshl_add_u32 v{vd_}, v{t+12}, 8, v{t+13}")
    for j in range(1, nv): A(f"v_mov_b32 v{vd_+j}, v{vd_}")

def gemm_events(A, L):
    A(f"{L}_ev:")
    A(f"s_cmp_eq_u32 s{sD}, 8")
    A(f"s_cbranch_scc1 {L}_ev8")
    A(f"global_load_dword v{vTm}, v{vTm+2}, s[{pDbg}:{pDbg+1}] sc1")
    A(f"global_load_dwordx2 {vr(vTm+4,2)}, v{vTm+6}, s[{pDbg}:{pDbg+1}] offset:128 sc1")
    A(f"s_branch {L}_evret")
    A(f"{L}_ev8:")
    A(f"s_mov_b32 s{sTail}, {TAILBIT}")
    for d in (sWq, sW1, sW3): A(f"s_mov_b32 s{d+2}, 0")
    for d, s_ in ((sX, sK), (sX2, sV)):
        A(f"s_mov_b64 s[{d}:{d+1}], s[{s_}:{s_+1}]")
        A(f"s_mov_b64 s[{d+2}:{d+3}], s[{s_+2}:{s_+3}]")
    for j in range(8): A(f"v_mov_b32 v{vXd+j}, v{vQ+min(j,4)}")
    A(f"s_lshl_b32 s{sM0X}, s{sWave}, 12")
    A(f"s_mov_b32 s{sXo}, s{sKVo}")
    A(f"s_movk_i32 s{sM0d}, 16384")
    A(f"s_movk_i32 s{sXst}, 16384")
    A(f"s_mov_b32 s{sM0t}, 0x8000")
    A(f"s_mov_b32 s{sT1}, 0")
    A(f"s_waitcnt vmcnt(12)")
    A(f"{L}_chk:")
    A(f"v_cmp_ne_u32 vcc, 0x01010101, v{vTm}")
    A(f"v_cmp_eq_u32 s[6:7], 0, v{vTm+5}")
    A("s_nop 3")
    A(f"s_or_b64 s[6:7], s[6:7], vcc")
    A(f"s_cbranch_scc0 {L}_rdy ; pollbr")
    A(f"s_add_u32 s{sT1}, s{sT1}, 1")
    A(f"s_cmp_ge_u32 s{sT1}, 0x40000")
    A(f"s_cbranch_scc1 {L}_rdy")
    A("s_sleep 2")
    A(f"global_load_dword v{vTm}, v{vTm+2}, s[{pDbg}:{pDbg+1}] sc1")
    A(f"global_load_dwordx2 {vr(vTm+4,2)}, v{vTm+6}, s[{pDbg}:{pDbg+1}] offset:128 sc1")
    A("s_waitcnt vmcnt(0)")
    A(f"s_branch {L}_chk")
    A(f"{L}_rdy:")
    A(f"v_readfirstlane_b32 s{sNo}, v{vTm+4} ; tag")
    A(f"v_readfirstlane_b32 s{sNo+1}, v{vTm+5} ; tag")
    A(f"s_add_u32 s{pFl}, s{pWs}, {FL_OFF}")
    A(f"s_addc_u32 s{pFl+1}, s{pWs+1}, 0")
    A(f"s_lshl2_add_u32 s{sT0}, s{sRb}, s{sWave}")
    A(f"s_lshl_b32 s{sT0}, s{sT0}, 10")
    for rt in range(4):
        A(f"buffer_load_dwordx4 {vr(vSt+4*rt,4)}, v{vTm+3}, s[{sSt}:{sSt+3}], s{sT0} offen offset:{rt*256} sc1")
    A(f"s_branch {L}_evret")

def kv_addr(A, base_expr_sgpr):
    t0, t1, t2, t3 = vTm + 12, vTm + 13, vTm + 14, vTm + 15
    A(f"v_and_b32 v{t0}, 31, v{vLane}")
    A(f"v_lshrrev_b32 v{t1}, 5, v{vLane}")
    A(f"v_and_b32 v{t2}, 15, v{vLane}")
    A(f"v_xor_b32 v{t2}, v{t2}, v{t1}")
    A(f"s_lshl_b32 s{sT0}, s{sWave}, 2")
    A(f"v_xor_b32 v{t2}, s{sT0}, v{t2}")
    A(f"v_lshlrev_b32 v{t2}, 4, v{t2}")
    A(f"v_lshl_add_u32 v{t2}, v{t0}, 8, v{t2}")
    A(f"v_add_u32 v{vKr}, s{base_expr_sgpr}, v{t2}")
    for p in range(1, 8): A(f"v_xor_b32 v{vKr+p}, {32*p}, v{vKr}")
    A(f"v_bfe_u32 v{t0}, v{vLane}, 2, 2")
    A(f"v_lshl_add_u32 v{t2}, v{t1}, 2, v{t0}")
    A(f"v_lshlrev_b32 v{t2}, 8, v{t2}")
    A(f"v_lshl_add_u32 v{t2}, v{t0}, 6, v{t2}")
    A(f"v_bfe_u32 v{t3}, v{vLane}, 1, 1")
    A(f"v_lshl_add_u32 v{t2}, v{t3}, 5, v{t2}")
    A(f"v_bfe_u32 v{t3}, v{vLane}, 4, 1")
    A(f"v_lshl_add_u32 v{t2}, v{t3}, 4, v{t2}")
    A(f"v_and_b32 v{t3}, 1, v{vLane}")
    A(f"v_lshl_add_u32 v{t2}, v{t3}, 3, v{t2}")
    A(f"s_add_u32 s{sT0}, s{base_expr_sgpr}, 16384")
    A(f"v_add_u32 v{vVr}, s{sT0}, v{t2}")
    for dt in range(1, 4): A(f"v_xor_b32 v{vVr+dt}, {64*dt}, v{vVr}")

def kv_dma():
    it = [f"s_mov_b32 m0, s{sKVm}"]
    for j in range(4):
        it.append(f"buffer_load_dwordx4 v{vKd+j}, s[{sK}:{sK+3}], s{sKVo} offen offset:{j*1024} lds")
    it.append("s_add_u32 m0, m0, 16384")
    for j in range(4):
        it.append(f"buffer_load_dwordx4 v{vVd+j}, s[{sV}:{sV+3}], s{sKVo} offen offset:{j*1024} lds")
    return it

def kread(p, tile, buf):
    return f"ds_read_b128 {vr(vF+buf*4,4)}, v{vKr+p} offset:{tile*8192}"
def vread(ks, dt, tile, sec, buf):
    return f"ds_read_b64_tr_b16 {vr(vF+buf*4+2*sec,2)}, v{vVr+dt} offset:{(32*tile+16*ks+8*sec)*256}"

def sm_reg(buf, e):
    qt = (e >> 3) & 1; ks = e >> 4
    return vS + (buf * 2 + qt) * 16 + ks * 8 + (e & 7), qt, ks
def sm_exp(buf, e):
    r, _, _ = sm_reg(buf, e)
    if "noexp" in XP: return []
    if "movexp" in XP: return [f"v_mov_b32 v{r}, v{r}"]
    return [f"v_exp_f32 v{r}, v{r}"]
def sm_post(buf, e):
    r, qt, ks = sm_reg(buf, e)
    o = [f"v_add_f32 v{vL+qt}, v{vL+qt}, v{r}"]
    if "noadd" in XP: o = []
    if e & 1 and "nocvt" not in XP: o.append(f"v_cvt_pk_bf16_f32 v{vP+(qt*2+ks)*4+((e&7)>>1)}, v{r-1}, v{r}")
    return o

def attn_seg(A, lq, seg, extra, mfma=True, sm_lo=0, sm_hi=64, look=True):
    def rd(phi, part):
        s = (phi // 8) % 4; i = phi % 8; buf = phi % 4
        if s in (0, 2):
            return kread(i, 1 if s == 0 else 0, buf) if part == 0 else None
        return vread(i // 4, i % 4, 0 if s == 1 else 1, part, buf)
    for i in range(8):
        phi = seg * 8 + i
        if mfma and "nowait" not in XP: lq.wait(A, [("f", phi)])
        for qt in range(2):
            slot = seg * 16 + 2 * i + qt
            if mfma:
                if seg in (0, 2):
                    sb = 1 if seg == 0 else 0
                    d = vr(vS + (sb * 2 + qt) * 16, 16)
                    mf32(A, d, vr(vF + (phi % 4) * 4, 4), vr(vQ + (qt * 8 + i) * 4, 4), "0" if i == 0 else None)
                else:
                    ks, dt = i // 4, i % 4
                    mf32(A, ar(aO + (qt * 4 + dt) * 16, 16), vr(vF + (phi % 4) * 4, 4), vr(vP + (qt * 2 + ks) * 4, 4))
            for it in extra.get((slot, "pre"), []): A(it)
            nphi = (phi + 3) % 32
            nseg = nphi // 8
            if look is True or nseg in look:
                r = rd(nphi, qt)
                if r and "noread" not in XP: A(r); lq.issue(("f", nphi))
            for it in extra.get((slot, "ds"), []):
                A(it); lq.issue(("side", 0))
            for it in extra.get(slot, []):
                if it.startswith("v_"): continue
                if "lds" in it and A.lines[-1].split()[1].startswith("m0"): A("s_nop 0")
                A(it)
            for (buf, start) in ((1, 22), (0, 54)):
                e = (slot - start) % 64
                if e < 32 and (buf, "exp") in sm_ok(slot, sm_lo, sm_hi, buf, e):
                    for x in sm_exp(buf, e): A(x)
            for (buf, start) in ((1, 22), (0, 54)):
                e = (slot - start - 1) % 64
                if e < 32 and (buf, "exp") in sm_ok((slot - 1) % 64, sm_lo, sm_hi, buf, e):
                    for x in sm_post(buf, e): A(x)
            for it in extra.get(slot, []):
                if it.startswith("v_"): A(it)
            for it in extra.get((slot, "post"), []): A(it)
def sm_ok(slot, lo, hi, buf, e):
    return {(buf, "exp")} if (lo <= slot < hi) else set()

def wp_src_voff(A, d):
    t = vTm
    A(f"v_lshrrev_b32 v{t+12}, 4, v{vLane}")
    A(f"v_lshlrev_b32 v{t+12}, 1, v{t+12}")
    A(f"v_and_b32 v{t+13}, 7, v{vLane}")
    A(f"v_xor_b32 v{t+12}, v{t+12}, v{t+13}")
    A(f"v_lshlrev_b32 v{t+12}, 4, v{t+12}")
    A(f"v_lshrrev_b32 v{t+13}, 3, v{vLane}")
    A(f"v_mul_u32_u24 v{t+13}, 1280, v{t+13}")
    A(f"v_add_u32 v{d}, v{t+12}, v{t+13}")
    for j in range(1, 8): A(f"v_add_u32 v{d+j}, {(j%4)*9216 + (j//4)*128}, v{d}")

def wp_addr(A, sh, note="", reg=R3, n=4, dst=None):
    t = vTm
    A(f"v_bfe_u32 v{t+14}, v{vLane}, 2, 2")
    A(f"v_bfe_u32 v{t+16}, v{vLane}, 4, 1")
    A(f"v_lshl_add_u32 v{t+14}, v{t+16}, 2, v{t+14}")
    A(f"v_lshrrev_b32 v{t+13}, 1, v{t+14}")
    A(f"v_lshlrev_b32 v{t+13}, 5, v{t+13}")
    A(f"v_lshl_add_u32 v{t+13}, v{t+14}, 7, v{t+13}")
    A(f"v_lshrrev_b32 v{t+15}, 5, v{vLane}")
    A(f"v_lshl_add_u32 v{t+13}, v{t+15}, 10, v{t+13}")
    A(f"v_and_b32 v{t+15}, 3, v{vLane}")
    A(f"v_lshl_add_u32 v{t+13}, v{t+15}, 3, v{t+13}")
    A(f"s_lshl_b32 s6, s{sWave}, {sh}")
    A(f"s_add_u32 s6, s6, {reg}")
    A(f"v_add_u32 v{dst or t+4}, s6, v{t+13}{note}")
    for i4 in range(1, n): A(f"v_xor_b32 v{t+4+i4}, {32*i4}, v{t+4}")
def wp_reads(A, stride):
    for su in range(2):
        for i4 in range(4):
            for sec in range(2):
                A(f"ds_read_b64_tr_b16 {ar(aWq+(su*4+i4)*4+2*sec,2)}, v{vTm+4+i4} offset:{su*stride+sec*2048}")
def wp_stores(A, so):
    for su in range(2):
        for i4 in range(4):
            A(f"buffer_store_dwordx4 {ar(aWq+(su*4+i4)*4,4)}, v{vL16}, s[{sWp}:{sWp+3}], s{so} offen offset:{i4*1024} sc1")
        if su == 0: A(f"s_add_u32 s{so}, s{so}, 4096")

def set_flag(A, phase, lab, cls="H"):
    A(f"s_cmp_lg_u32 s{sWave}, 0")
    A(f"s_cbranch_scc1 {lab}")
    A(f"s_add_u32 s6, s{sNo}, {phase}")
    A(f"v_mov_b32 v{vFv}, s6")
    A(f"v_mov_b32 v{vFv+1}, s{sNo+1}")
    A("s_mov_b64 exec, 1")
    A(f"global_store_dwordx2 v{vFo}, {vr(vFv,2)}, s[{pFl}:{pFl+1}] sc1")
    A("s_mov_b64 exec, -1")
def flag_load(A, dst, ad):
    A(f"global_load_dwordx2 {vr(dst,2)}, v{ad}, s[{pFl}:{pFl+1}] sc1")
def flag_wait(A, lab, phase, polls):
    A(f"s_add_u32 s{sT0}, s{sNo}, {phase}")
    A(f"s_mov_b32 s{sT1}, 0")
    A(f"{lab}c:")
    for n, (d, ad) in enumerate(polls):
        A(f"v_subrev_u32 v{d}, s{sT0}, v{d}")
        A(f"v_cmp_ne_u32 s[{sE0+2*n}:{sE0+2*n+1}], s{sNo+1}, v{d+1}")
    for n, (d, ad) in enumerate(polls):
        A(f"v_cmp_lt_u32 " + ("vcc" if n == 0 else "s[6:7]") + f", {3-phase}, v{d}")
    A("s_nop 3")
    A(f"s_or_b64 s[{sE0}:{sE0+1}], s[{sE0}:{sE0+1}], vcc")
    if len(polls) > 1:
        A(f"s_or_b64 s[6:7], s[6:7], s[{sE0+2}:{sE0+3}]")
        A(f"s_or_b64 s[{sE0}:{sE0+1}], s[{sE0}:{sE0+1}], s[6:7]")
    A(f"s_cbranch_scc0 {lab}r ; pollbr")
    A(f"s_add_u32 s{sT1}, s{sT1}, 1")
    A(f"s_cmp_ge_u32 s{sT1}, 0x40000")
    A(f"s_cbranch_scc1 {lab}r")
    for d, ad in polls: flag_load(A, d, ad)
    A("s_waitcnt vmcnt(0)")
    A(f"s_branch {lab}c")
    A(f"{lab}r:")

def q_setup():
    w = sWave
    return [
     f"s_lshl_b32 s6, s{qP}, 3\ns_lshr_b32 s{qT0}, {hex(0x402b1600)}, s6\ns_and_b32 s{qT0}, s{qT0}, 0xff",
     f"s_lshr_b32 s{qT1}, {hex(0x5b402b16)}, s6\ns_and_b32 s{qT1}, s{qT1}, 0xff\ns_sub_u32 s{qNl}, s{qT1}, s{qT0}",
     f"s_and_b32 s{sT2}, s{w}, 1\ns_lshl_b32 s6, s{sT2}, 11\ns_lshl_b32 s{qAs}, s{qT0}, 13",
     f"s_add_u32 s{qAs}, s{qAs}, s6\ns_lshr_b32 s7, s{w}, 1\ns_lshl_b32 s6, s{qCb}, 1",
     f"s_add_u32 s6, s6, s7\ns_mul_i32 s6, s6, 5120\ns_mul_i32 s{qWs}, s{qT0}, 81920",
     f"s_add_u32 s{qWs}, s{qWs}, s6\ns_mul_i32 s6, s{sT2}, 40960\ns_add_u32 s{qWs}, s{qWs}, s6",
     f"s_lshl_b32 s{qAe}, s{qT1}, 13\ns_mul_i32 s{qWe}, s{qT1}, 81920\ns_mov_b32 s{qAo}, s{qAs}",
     f"s_mov_b32 s{qWo}, s{qWs}\ns_mul_i32 s{qWm}, s{sT2}, 10240\ns_mul_i32 s6, s7, 5120",
     f"s_add_u32 s{qWm}, s{qWm}, s6\ns_lshl_b32 s6, s{qRb}, 1\ns_add_u32 s6, s6, s7",
     f"s_mul_i32 s6, s6, {A_BLK}\ns_add_u32 s{qA}, s{pWs}, s6\ns_addc_u32 s{qA+1}, s{pWs+1}, 0",
     f"s_and_b32 s{qA+1}, s{qA+1}, 0xffff\ns_cmp_eq_u32 s{qP}, 3\ns_cselect_b32 s{qA+2}, s{qAe}, 0\ns_cselect_b32 s{qW+2}, s{qWe}, 0\ns_mov_b32 s{qA+3}, 0x20000",
     f"s_mov_b32 s{qW}, s{sWp}\ns_mov_b32 s{qW+1}, s{sWp+1}\ns_mov_b32 s{qW+3}, 0x20000",
     f"s_lshl2_add_u32 s6, s{qRb}, s{qP}\ns_lshl_b32 s6, s6, 1\ns_add_u32 s6, s6, s7\ns_mul_i32 s{qXo}, s6, 20480",
     f"s_lshl_b32 s6, s{qCb}, 1\ns_add_u32 s6, s6, s{sT2}\ns_mul_i32 s6, s6, 160\ns_add_u32 s{qXo}, s{qXo}, s6",
     f"s_xor_b32 s{qT0}, s{w}, s{qP}\ns_mul_i32 s{qT1}, s{w}, 3\ns_add_u32 s{qT1}, s{qT1}, s{qT0}\ns_sub_u32 s{qT1}, s{qT1}, 1",
     f"s_mul_i32 s{qT1}, s{qT1}, 10240\ns_cmp_eq_u32 s{qT0}, 0\ns_cselect_b32 s{qSo}, 0x100000, s{qT1}",
    ]

def q_loads(slot):
    it = [f"s_add_u32 m0, s{qWm}, {slot*20480}"]
    for j in range(4):
        it.append(f"buffer_load_dwordx4 v{vL16}, s[{qW}:{qW+3}], s{qWo} offen offset:{j*1024} sc1 lds ; @put W2")
    it.append(f"s_add_u32 m0, s{qWm}, {slot*20480+4096}")
    it.append(f"buffer_load_dwordx4 v{vL16+1}, s[{qW}:{qW+3}], s{qWo} offen sc1 lds ; @put W2")
    for k in range(2):
        for rt in range(2):
            it.append(f"buffer_load_dwordx4 {ar(aA2+(slot*4+k*2+rt)*4,4)}, v{vL16+k}, s[{qA}:{qA+3}], s{qAo} offen offset:{rt*1024} sc1")
    it.append(f"s_add_u32 s{qWo}, s{qWo}, 81920\ns_add_u32 s{qAo}, s{qAo}, 8192")
    return it

def gemm2(A, L, emit, stamp):
    ac, vT, vX, vZ = 64, 144, 168, 180
    srd(A, qX, pX, pX + 1, X_SIZE)
    srd(A, qO, pOut, pOut + 1, X_SIZE)
    for i in range(4): A(f"v_mov_b32 v{vZ+i}, 0")
    A(f"v_and_b32 v{vT}, 15, v{vLane}")
    A(f"v_mul_u32_u24 v{vT}, 1280, v{vT}")
    A(f"v_lshrrev_b32 v{vT+1}, 4, v{vLane}")
    A(f"v_lshl_add_u32 v{vXo2}, v{vT+1}, 3, v{vT}")
    def zero():
        for i in range(5): mf32(A, vr(ac + 16 * i, 16), vr(vZ, 4), vr(vZ, 4), "0")
    zero()
    A(f"v_mov_b32 v{vWr2}, v{vL16}")
    A(f"v_add_u32 v{vWr2+1}, 40960, v{vL16}")
    A(f"v_lshlrev_b32 v{vL8}, 3, v{vLane}")
    A(f"v_add_u32 v{vOwn}, {RING2}, v{vL16}")
    A(f"s_mov_b32 s{qN}, 0")
    def xload():
        for ct in range(5):
            A(f"buffer_load_dwordx2 {vr(vX+2*ct,2)}, v{vXo2}, s[{qX}:{qX+3}], s{qXo} offen offset:{ct*32}")
    A(f"s_cmp_eq_u32 s{qP}, 3")
    A(f"s_cselect_b32 s{qT0}, 2, 99")
    A(f"s_cselect_b32 s{qT1}, 0, 99")
    A(f"s_cbranch_scc1 {L}qh")
    A("s_waitcnt vmcnt(0)")
    A("s_barrier")
    set_flag(A, 2, f"{L}f2")
    A(f"{L}f2:")
    flag_load(A, vPa, vAo)
    A(f"s_mov_b32 s{qA+2}, s{qAe}")
    A(f"s_mov_b32 s{qW+2}, s{qWe}")
    A(f"s_mov_b32 s{qAo}, s{qAs}")
    A(f"s_mov_b32 s{qWo}, s{qWs}")
    A("s_waitcnt vmcnt(0)")
    flag_wait(A, f"{L}w2", 2, [(vPa, vAo)])
    stamp(8)
    for s_ in range(3): emit(q_loads(s_))
    xload()
    A("s_waitcnt vmcnt(23)")
    A(f"s_branch {L}qs")
    A(f"{L}qh:")
    stamp(8)
    xload()
    A("s_waitcnt vmcnt(39)")
    A(f"{L}qs:")
    def wread2(slot, f, buf):
        k, ct = f // 10, f % 10
        return f"ds_read_b128 {ar(aW2+buf*4,4)}, v{vWr2+slot//2} offset:{(slot%2)*20480+k*10240+ct*1024}"
    A("s_barrier ; @need W2 10")
    stamp(9)
    for f in range(3): A(wread2(0, f, f))
    lq = LQ()
    for f in range(3): lq.issue(f)
    if "q_oob" in XP:
        A(f"s_mov_b32 s{qA+2}, 0"); A(f"s_mov_b32 s{qW+2}, 0")
    A(".p2align 6")
    A(f"{L}q:")
    for slot in range(4):
        ns = (slot + 1) % 4
        slots = spread(q_loads((slot + 3) % 4), 16)
        if "q_noload" in XP: slots = [[] for _ in range(16)]
        if "q_noA" in XP: slots = [[x for x in sl if "a[" not in x] for sl in slots]
        if "q_noW" in XP: slots = [[x for x in sl if "lds" not in x] for sl in slots]
        for f in range(20):
            k, ct = f // 10, f % 10
            lq.wait(A, [f])
            for r in range(2):
                rt = r if f % 2 == 0 else 1 - r
                mf16(A, vr(ac + (rt * 10 + ct) * 4, 4), ar(aW2 + (f % 4) * 4, 4), ar(aA2 + (slot * 4 + k * 2 + rt) * 4, 4))
                if r == 0 and f + 3 < 20:
                    A(wread2(slot, f + 3, (f + 3) % 4)); lq.issue(f + 3)
                if f == 18:
                    A(wread2(ns, r, r)); lq.issue(r)
                if f == 19 and r == 0:
                    A(wread2(ns, 2, 2)); lq.issue(2)
                if r == 1 and f < 16: emit(slots[f])
                if r == 0 and f == 17 and slot == 0: A(f"s_cmp_eq_u32 s{qT1}, s{qN}")
            if f == 17:
                if slot == 0:
                    A("s_waitcnt vmcnt(30) lgkmcnt(0)")
                    A(f"s_cbranch_scc1 {L}qw{slot}")
                    A("s_waitcnt vmcnt(18)")
                    A(f"{L}qw{slot}:")
                else: A("s_waitcnt vmcnt(18) lgkmcnt(0)")
                lq.clear()
                if "q_nobar" not in XP: A("s_barrier ; @need W2 10")
            if f == 19:
                A(f"s_add_u32 s{qN}, s{qN}, 1")
        if slot == 1:
            A(f"s_cmp_eq_u32 s{qT0}, s{qN}")
            A(f"s_cbranch_scc1 {L}qe1")
            A(f"{L}qr1:")
        if slot < 3:
            A(f"s_cmp_eq_u32 s{qNl}, s{qN}")
            A(f"s_cbranch_scc1 {L}qx")
    A(f"s_branch {L}q")
    A(f"{L}qe1:")
    set_flag(A, 2, f"{L}qr1")
    A(f"s_branch {L}qr1")
    A(f"{L}qx:")
    stamp(10)
    A(f"s_cmp_lg_u32 s{qP}, 3")
    A(f"s_cbranch_scc1 {L}qy")
    flag_load(A, vPb, vAp)
    A("s_waitcnt vmcnt(0)")
    flag_wait(A, f"{L}w3", 2, [(vPb, vAp)])
    A(f"{L}qy:")
    A(f"s_mov_b32 s{sT0}, s{qSo}")
    A(f"s_cmp_lg_u32 s{sWave}, s{qP}")
    A(f"s_cbranch_scc1 {L}no0")
    A("s_nop 1")
    for i in range(20): A(f"ds_write_b128 v{vOwn}, {vr(ac+4*i,4)} offset:{i*1024}")
    A("s_waitcnt lgkmcnt(0)")
    A(f"s_branch {L}no1")
    A(f"{L}no0:")
    for c in range(4):
        b = vT + (c % 2) * 12
        for i in range(10): A(f"v_cvt_pk_bf16_f32 v{b+i}, v{ac+c*20+2*i}, v{ac+c*20+2*i+1}")
        for i in range(10): A(f"v_min_u32 v{b+i}, -2, v{b+i}")
        if c: A(f"s_add_u32 s{sT0}, s{sT0}, 2560")
        A(f"buffer_store_dwordx4 {vr(b,4)}, v{vL16}, s[{qI}:{qI+3}], s{sT0} offen sc1")
        A(f"buffer_store_dwordx4 {vr(b+4,4)}, v{vL16}, s[{qI}:{qI+3}], s{sT0} offen offset:1024 sc1")
        A(f"buffer_store_dwordx2 {vr(b+8,2)}, v{vL8}, s[{qI}:{qI+3}], s{sT0} offen offset:2048 sc1")
    A(f"{L}no1:")
    S, U, IN, XR, E, T = 64, 84, 104, 184, 204, 224
    A(f"s_mul_i32 s{sT0}, s{sWave}, 5120")
    A(f"v_add_u32 v{vOwn}, s{sT0}, v{vOwn}")
    A(f"s_mul_i32 s{sT0}, s{qP}, 30720")
    A(f"s_mul_i32 s{sT1}, s{sWave}, 2560")
    A(f"s_add_u32 s{sT0}, s{sT0}, s{sT1}")
    A(f"s_lshl_b32 s6, s{qP}, 3")
    A(f"s_lshr_b32 s6, {hex(0x24094218 >> 0 if False else (0x24 | 0x18 << 8 | 0x09 << 16 | 0x24 << 24))}, s6")
    for i in range(3):
        A(f"s_bfe_u32 s7, s6, {hex(0x20000 | 2*i)}")
        A(f"s_mul_i32 s7, s7, 10240")
        A(f"s_add_u32 s{qIn+i}, s{sT0}, s7")
    def inload(sl):
        b = IN + sl * 10
        A(f"buffer_load_dwordx4 {vr(b,4)}, v{vL16}, s[{qI}:{qI+3}], s{qIn+sl} offen sc1")
        A(f"buffer_load_dwordx4 {vr(b+4,4)}, v{vL16}, s[{qI}:{qI+3}], s{qIn+sl} offen offset:1024 sc1")
        A(f"buffer_load_dwordx2 {vr(b+8,2)}, v{vL8}, s[{qI}:{qI+3}], s{qIn+sl} offen offset:2048 sc1")
    A("s_barrier")
    stamp(11)
    for sl in range(3): inload(sl)
    for i in range(5): A(f"ds_read_b128 {vr(S+4*i,4)}, v{vOwn} offset:{i*1024}")
    for i in range(10):
        A(f"v_lshlrev_b32 v{XR+2*i}, 16, v{vX+i}")
        A(f"v_and_b32 v{XR+2*i+1}, 0xffff0000, v{vX+i}")
    def unpack(sl, dst):
        for i in range(10):
            A(f"v_lshlrev_b32 v{dst+2*i}, 16, v{IN+sl*10+i}")
            A(f"v_and_b32 v{dst+2*i+1}, 0xffff0000, v{IN+sl*10+i}")
    def addin(sl, dst):
        unpack(sl, T)
        for i in range(10): A(f"v_pk_add_f32 {vr(dst+2*i,2)}, {vr(dst+2*i,2)}, {vr(T+2*i,2)}")
    A(f"s_mov_b32 s{sT1}, 0")
    A(f"{L}sc:")
    A("s_waitcnt vmcnt(0)")
    for i in range(3): A(f"v_max3_u32 v{T+i}, v{IN+10*i}, v{IN+10*i+1}, v{IN+10*i+2}")
    for j in range(3):
        for i in range(3): A(f"v_max3_u32 v{T+i}, v{T+i}, v{IN+10*i+3+2*j}, v{IN+10*i+4+2*j}")
    A(f"v_max3_u32 v{T+3}, v{IN+9}, v{IN+19}, v{IN+29}")
    A(f"v_max3_u32 v{T}, v{T}, v{T+1}, v{T+2}")
    A(f"v_max_u32 v{T}, v{T}, v{T+3}")
    A(f"v_cmp_eq_u32 vcc, -1, v{T}")
    A("s_nop 3")
    A(f"s_cbranch_vccz {L}sr ; pollbr")
    A(f"s_add_u32 s{sT1}, s{sT1}, 1")
    A(f"s_cmp_ge_u32 s{sT1}, 0x40000")
    A(f"s_cbranch_scc1 {L}sr")
    for sl in range(3): inload(sl)
    A(f"s_branch {L}sc")
    A(f"{L}sr:")
    stamp(12)
    unpack(2, U)
    A(f"s_mov_b32 s{sT0}, {hex(f2u(-LOG2E))}")
    A(f"s_cmp_lg_u32 s{qP}, 3")
    A("s_waitcnt lgkmcnt(0)")
    A(f"s_cbranch_scc1 {L}ns")
    for i in range(20): A(f"v_swap_b32 v{S+i}, v{U+i}")
    A(f"{L}ns:")
    for i in range(20): A(f"v_mul_f32 v{E+i}, s{sT0}, v{U+i}")
    for i in range(20): A(f"v_exp_f32 v{E+i}, v{E+i}")
    addin(0, S)
    for i in range(20): A(f"v_add_f32 v{E+i}, 1.0, v{E+i}")
    for i in range(20): A(f"v_rcp_f32 v{E+i}, v{E+i}")
    addin(1, S)
    for i in range(10): A(f"v_pk_mul_f32 {vr(U+2*i,2)}, {vr(U+2*i,2)}, {vr(E+2*i,2)}")
    for i in range(10): A(f"v_pk_fma_f32 {vr(XR+2*i,2)}, {vr(S+2*i,2)}, {vr(U+2*i,2)}, {vr(XR+2*i,2)}")
    for i in range(10): A(f"v_cvt_pk_bf16_f32 v{vX+i}, v{XR+2*i}, v{XR+2*i+1}")
    for ct in range(5):
        A(f"buffer_store_dwordx2 {vr(vX+2*ct,2)}, v{vXo2}, s[{qO}:{qO+3}], s{qXo} offen offset:{ct*32}" + (" sc1" if "outsc1" in OPT else ""))
    stamp(13)

def gen_p1(A, name, stamps=False, code_bytes=29696):
    head(A, name)
    L = "p1_"
    A("s_cmp_ge_u32 s2, 256")
    A(f"s_cbranch_scc1 {L}end")
    A("s_load_dwordx16 s[64:79], s[0:1], 0")
    A("s_load_dwordx8 s[80:87], s[0:1], 64")
    A(f"s_memrealtime s[{sNo}:{sNo+1}]")
    if stamps: A("s_memtime s[94:95]")
    def stamp(i):
        if not stamps: return
        A(f"s_memtime s[96:97]")
        A(f"s_memrealtime s[98:99]")
        A("s_waitcnt lgkmcnt(0)")
        A(f"v_mov_b32 v{vTm+18}, s96"); A(f"v_mov_b32 v{vTm+19}, s98")
        A(f"s_lshl_b32 s96, s2, 2"); A(f"s_add_u32 s96, s96, s{sWave}"); A("s_lshl_b32 s96, s96, 7")
        A(f"v_mov_b32 v{vZero}, s96")
        if i == 0: A(f"v_mov_b32 v{vTm+16}, s94")
        A(f"s_add_u32 s96, s{pWs}, 0x3100000"); A(f"s_addc_u32 s97, s{pWs+1}, 0")
        A(f"global_store_dwordx2 v{vZero}, {vr(vTm+18,2)}, s[96:97] offset:{i*8}")
        if i == 0: A(f"global_store_dword v{vZero}, v{vTm+16}, s[96:97] offset:120")
    t = vTm
    def emit(items):
        for it in items:
            if "lds" in it and A.lines[-1].split()[1].startswith("m0"): A("s_nop 0")
            A(it)
    A(f"v_and_b32 v{vLane}, 63, v0")
    A("v_lshrrev_b32 v0, 6, v0")
    A("s_and_b32 s6, s2, 7")
    A(f"v_readfirstlane_b32 s{sWave}, v0")
    A(f"s_lshr_b32 s{sT0}, s2, 3")
    A(f"s_lshr_b32 s{sRb}, s{sT0}, 2")
    A(f"s_and_b32 s{sT1}, s{sT0}, 3")
    A(f"s_lshl2_add_u32 s{sHead}, s6, s{sT1}")
    A(f"s_sub_u32 s{sT2}, s6, s{sRb}")
    A(f"s_add_u32 s{sT2}, s{sT2}, 3")
    A(f"s_and_b32 s{sT2}, s{sT2}, 7")
    A(f"s_mul_i32 s{sFb}, s6, 3")
    A(f"s_add_u32 s{sFb}, s{sFb}, s{sT1}")
    A(f"s_add_u32 s7, s{sT2}, 24")
    A(f"s_cmp_eq_u32 s{sT1}, 3")
    A(f"s_cselect_b32 s{sFb}, s7, s{sFb}")
    A(f"s_cmp_lt_u32 s{sFb}, 27")
    A(f"s_cselect_b32 s{sHasF}, 1, 0")
    A(f"s_sub_u32 s{sProd}, s{sFb}, 27")
    A(f"v_lshrrev_b32 v{t+7}, 3, v{vLane}")
    A(f"v_and_b32 v{t+6}, 7, v{vLane}")
    A(f"v_lshrrev_b32 v{t+12}, 4, v{vLane}")
    A(f"v_xor_b32 v{t+13}, v{t+6}, v{t+12}")
    A(f"v_lshlrev_b32 v{t+13}, 4, v{t+13}")
    A(f"s_movk_i32 s6, 1280")
    A(f"v_mad_u32_u24 v{vXd}, v{t+7}, s6, v{t+13}")
    A(f"v_xor_b32 v{t+13}, 64, v{vXd}")
    for j in range(1, 8):
        A(f"v_add_u32 v{vXd+j}, {j*10240-(j%4)*1024}, v{(t+13) if j&1 else vXd}")
    A(f"s_lshl2_add_u32 s6, s{sRb}, s{sWave}")
    A(f"s_mul_i32 s{sXo}, s6, {64*1280}")
    A(f"s_mul_i32 s{sKVo}, s6, {A_BLK}")
    A(f"s_lshl_b32 s{sM0X}, s{sWave}, 13")
    A(f"s_add_u32 s{sM0X}, s{sM0X}, {R1}")
    A(f"s_mov_b32 s{sTail}, 0")
    A(f"s_and_b32 s6, s{sWave}, 1")
    A(f"s_lshl_b32 s7, s6, 2")
    A(f"v_add_u32 v{t+13}, s7, v{t+12}")
    A(f"v_lshlrev_b32 v{t+13}, 1, v{t+13}")
    A(f"v_and_b32 v{t+14}, 15, v{vLane}")
    A(f"v_xor_b32 v{t+13}, v{t+13}, v{t+14}")
    A(f"v_lshlrev_b32 v{t+13}, 4, v{t+13}")
    A(f"s_lshl_b32 s7, s{sWave}, 3")
    A(f"v_add_u32 v{t+15}, s7, v{t+12}")
    A(f"v_lshl_add_u32 v{vWqd}, v{t+15}, 13, v{t+13}")
    A(f"v_add_u32 v{vWqd+1}, {4*8192-1024}, v{vWqd}")
    A(f"v_bfe_u32 v{t+13}, v{vLane}, 4, 1")
    A(f"s_lshl_b32 s6, s6, 1")
    A(f"v_add_u32 v{t+13}, s6, v{t+13}")
    A(f"v_lshlrev_b32 v{t+13}, 1, v{t+13}")
    A(f"v_xor_b32 v{t+13}, v{t+13}, v{t+6}")
    A(f"v_lshlrev_b32 v{t+13}, 4, v{t+13}")
    A(f"v_add_u32 v{t+15}, s7, v{t+7}")
    A(f"s_movk_i32 s6, 3456")
    A(f"v_mad_u32_u24 v{vW13d}, v{t+15}, s6, v{t+13}")
    A(f"s_lshl_b32 s{sWqo}, s{sHead}, 8")
    A(f"s_lshl_b32 s{sW13o}, s{sFb}, 7")
    A(f"s_mov_b32 s{sSlot}, 0")
    A("s_waitcnt lgkmcnt(0)")
    A(f"s_lshl_b32 s{sC0}, s{sWave}, 12")
    A(f"s_add_u32 s{sC0}, s{sC0}, {R3}")
    A(f"s_mov_b32 s{sM0W}, s{sC0}")
    srd(A, sX, pX, pX + 1, X_SIZE)
    srd(A, sWq, pWq, pWq + 1, 640 * 8192)
    for (d, p, sh) in ((sW1, pW1, 2048), (sW3, pW3, 3072)):
        A(f"s_sub_u32 s{d}, s{p}, {sh}")
        A(f"s_subb_u32 s{d+1}, s{p+1}, 0")
        A(f"s_and_b32 s{d+1}, s{d+1}, 0xffff")
        A(f"s_mul_i32 s{d+2}, s{sHasF}, {640*3456+sh}")
        A(f"s_mov_b32 s{d+3}, 0x20000")
    srd(A, sX2, pX, pX + 1, X_SIZE)
    A(f"s_movk_i32 s{sM0d}, 4096")
    A(f"s_movk_i32 s{sXst}, 128")
    A(f"s_mov_b32 s{sM0t}, 0x18000")
    RAW, UNP = 64, 96
    A(f"v_mov_b32 v{t+5}, 0")
    A(f"s_cmp_ge_u32 s{sProd}, 4")
    A(f"s_cbranch_scc1 {L}np1")
    A(f"v_lshrrev_b32 v{t+5}, 2, v{vLane}")
    A(f"v_and_b32 v{t+13}, 3, v{vLane}")
    A(f"v_lshlrev_b32 v{t+13}, 4, v{t+13}")
    A(f"s_movk_i32 s6, 1280")
    A(f"v_mad_u32_u24 v{t+13}, v{t+5}, s6, v{t+13}")
    A(f"s_lshl2_add_u32 s6, s{sRb}, s{sProd}")
    A(f"s_lshl2_add_u32 s6, s6, s{sWave}")
    A(f"s_lshl_b32 s7, s6, 8")
    A(f"v_lshl_add_u32 v{t+5}, v{t+5}, 4, s7")
    A(f"s_mul_i32 s6, s6, {16*1280}")
    for i in range(20):
        A(f"buffer_load_dwordx4 {vr(RAW+4*i,4)}, v{t+13}, s[{sX}:{sX+3}], s6 offen offset:{i*64}")
    A(f"{L}np1:")
    emit(dma_w(True)); emit(dma_x(0)); emit(dma_x(1))
    stamp(0)
    A("s_getpc_b64 s[6:7]")
    A(f"s_and_b32 s{sT0}, s{sT0}, 7")
    A(f"s_lshl2_add_u32 s{sT0}, s{sT0}, s{sWave}")
    A(f"s_lshl_b32 s{sT0}, s{sT0}, 10")
    A(f"s_min_u32 s{sT0}, s{sT0}, {code_bytes-1024}")
    A(f"v_lshl_add_u32 v{vTm+4}, v{vLane}, 4, s{sT0}")
    if "nocpf" not in OPT: A(f"global_load_dwordx4 {vr(vTm+8,4)}, v{vTm+4}, s[6:7]")
    else: A(f"global_load_dword v{vTm+8}, v{vLane}, s[0:1]")
    emit(dma_w(True)); emit(dma_x(0)); emit(dma_w(True))
    A(f"s_add_u32 s{sA}, s{pWs}, s{sKVo}")
    A(f"s_addc_u32 s{sA+1}, s{pWs+1}, 0")
    srd(A, sA, sA, sA + 1, A_BLK)
    A(f"s_add_u32 s{sWp}, s{pWs}, {W_OFF}")
    A(f"s_addc_u32 s{sWp+1}, s{pWs+1}, 0")
    srd(A, sWp, sWp, sWp + 1, W_SIZE)
    A(f"s_lshl2_add_u32 s{sT1}, s{sHead}, s{sWave}")
    A(f"s_mul_i32 s{sU}, s{sT1}, 10")
    A(f"s_lshl_b32 s{sT2}, s{sRb}, 1")
    A(f"s_add_u32 s{sU}, s{sU}, s{sT2}")
    A(f"s_mul_i32 s{sT1}, s{sT1}, 40960")
    A(f"s_lshl_b32 s{sT2}, s{sRb}, 8")
    A(f"s_add_u32 s{sPo}, s{sT1}, s{sT2}")
    srd(A, sSrc, pWo, pWo + 1, 4096 * 1280)
    A(f"s_cmp_lt_u32 s{sRb}, 5")
    A(f"s_cselect_b32 s{sSrc+2}, s{sSrc+2}, 0")
    A(f"s_cselect_b32 s{sU}, s{sU}, 2000")
    A(f"v_mov_b32 v{t+6}, 0")
    A(f"s_or_b32 s6, s2, s{sWave}")
    A(f"s_cbranch_scc1 {L}ntag")
    A(f"s_lshl_b64 s[6:7], s[{sNo}:{sNo+1}], 2")
    A(f"s_or_b32 s7, s7, 0x80000000")
    A(f"v_mov_b32 v{t+14}, s6")
    A(f"v_mov_b32 v{t+15}, s7")
    A("s_mov_b64 exec, 1")
    A(f"global_store_dwordx2 v{t+6}, {vr(t+14,2)}, s[{pDbg}:{pDbg+1}] offset:128 sc1")
    A("s_mov_b64 exec, -1")
    A(f"{L}ntag:")
    A(f"v_and_b32 v{t+14}, 15, v{vLane}")
    A(f"v_lshrrev_b32 v{t+13}, 1, v{t+14}")
    A(f"v_xor_b32 v{t+13}, v{t+13}, v{t+12}")
    A(f"v_lshlrev_b32 v{t+13}, 4, v{t+13}")
    A(f"v_lshl_add_u32 v{t+13}, v{t+14}, 7, v{t+13}")
    A(f"s_lshl_b32 s6, s{sWave}, 13")
    A(f"s_add_u32 s6, s6, {R1}")
    A(f"v_add_u32 v{vXr}, s6, v{t+13}")
    A(f"v_xor_b32 v{vXr+1}, 64, v{vXr}")
    A(f"v_lshlrev_b32 v{t+3}, 4, v{t+14}")
    A(f"v_bfe_u32 v{t+14}, v{vLane}, 2, 2")
    A(f"v_and_b32 v{t+15}, 3, v{vLane}")
    A(f"v_lshlrev_b32 v{t+15}, 3, v{t+15}")
    A(f"v_lshl_add_u32 v{t+15}, v{t+12}, 12, v{t+15}")
    A(f"v_add_u32 v{t+15}, {R3}, v{t+15}")
    A(f"v_bfe_u32 v{t+16}, v{vLane}, 4, 1")
    A(f"v_lshl_add_u32 v{t+13}, v{t+16}, 2, v{t+14}")
    A(f"s_lshl_b32 s6, s{sWave}, 1")
    A(f"v_xor_b32 v{t+13}, s6, v{t+13}")
    A(f"v_lshl_add_u32 v{t+13}, v{t+13}, 5, v{t+15}")
    A(f"v_lshl_add_u32 v{vWqr}, v{t+14}, 8, v{t+13}")
    for p in range(1, 8): A(f"v_xor_b32 v{vWqr+p}, {32*p}, v{vWqr}")
    A(f"v_lshrrev_b32 v{t+13}, 1, v{t+14}")
    A(f"v_lshl_add_u32 v{t+13}, v{t+16}, 1, v{t+13}")
    A(f"v_xor_b32 v{t+13}, s{sWave}, v{t+13}")
    A(f"v_lshl_add_u32 v{t+13}, v{t+13}, 5, v{t+15}")
    A(f"v_lshl_add_u32 v{vW13r}, v{t+14}, 7, v{t+13}")
    for p in range(1, 4): A(f"v_xor_b32 v{vW13r+p}, {32*p}, v{vW13r}")
    srd(A, sK, pK, pK + 1, 16777216)
    srd(A, sV, pV, pV + 1, 16777216)
    A(f"s_add_u32 s{sSt}, s{pWs}, {ST_OFF}")
    A(f"s_addc_u32 s{sSt+1}, s{pWs+1}, 0")
    srd(A, sSt, sSt, sSt + 1, 2048 * 16)
    A(f"s_lshl_b32 s6, s{sRb}, 2")
    A(f"v_mov_b32 v{t+2}, s6")
    A(f"s_movk_i32 s{sMask}, {EVMASK}")
    A(f"s_mov_b32 s{sD}, 0")
    A(f"s_cmp_ge_u32 s{sProd}, 4")
    A(f"s_cbranch_scc1 {L}np2")
    A("s_waitcnt vmcnt(25)")
    for i in range(79, -1, -1):
        A(f"v_and_b32 v{UNP+2*i+1}, 0xffff0000, v{RAW+i}")
        A(f"v_lshlrev_b32 v{UNP+2*i}, 16, v{RAW+i}")
    a = 64
    def red(first):
        for i in range(80):
            first(i)
        A(f"v_pk_add_f32 {vr(a,2)}, {vr(a,2)}, {vr(a+2,2)}")
        A(f"v_pk_add_f32 {vr(a+4,2)}, {vr(a+4,2)}, {vr(a+6,2)}")
        A(f"v_pk_add_f32 {vr(a,2)}, {vr(a,2)}, {vr(a+4,2)}")
        A(f"v_add_f32 v{a}, v{a}, v{a+1}")
        for qp in ("[1,0,3,2]", "[2,3,0,1]"):
            A("s_nop 1")
            A(f"v_add_f32_dpp v{a}, v{a}, v{a} quad_perm:{qp} row_mask:0xf bank_mask:0xf")
    def f1(i):
        d = vr(a + 2 * (i % 4), 2)
        if i < 4: A(f"v_pk_add_f32 {d}, {vr(UNP+2*i,2)}, {vr(UNP+2*i+8,2)}")
        elif i >= 8: A(f"v_pk_add_f32 {d}, {d}, {vr(UNP+2*i,2)}")
    red(f1)
    o = 72
    A(f"v_mul_f32 v{o}, {hex(f2u(-1.0/640))}, v{a}")
    for i in range(80): A(f"v_pk_add_f32 {vr(UNP+2*i,2)}, {vr(UNP+2*i,2)}, {vr(o,2)} op_sel_hi:[1,0]")
    def f2(i):
        d = vr(a + 2 * (i % 4), 2); x_ = vr(UNP + 2 * i, 2)
        if i < 4: A(f"v_pk_mul_f32 {d}, {x_}, {x_}")
        else: A(f"v_pk_fma_f32 {d}, {x_}, {x_}, {d}")
    red(f2)
    A(f"v_mov_b32 v{o+3}, {hex(f2u(1e-5))}")
    A(f"v_fmac_f32 v{o+3}, {hex(f2u(1.0/640))}, v{a}")
    A(f"v_mov_b32 v{o+2}, v{o+3}")
    A(f"v_rsq_f32 v{o+1}, v{o+3}")
    A("s_mov_b32 exec_lo, 0x11111111")
    A("s_mov_b32 exec_hi, 0x11111111")
    A(f"buffer_store_dwordx4 {vr(o,4)}, v{t+5}, s[{sSt}:{sSt+3}], 0 offen sc1 ; @put S")
    A("s_mov_b64 exec, -1")
    A("s_waitcnt vmcnt(0)")
    A(f"{L}np2:")
    if "dummy" in OPT:
        A(f"v_lshlrev_b32 v{t+13}, 4, v{vLane}")
        for i in range(16): A(f"buffer_load_dwordx4 {vr(64+4*i,4)}, v{t+13}, s[{sWq}:{sWq+3}], 0 offen offset:{(i%4)*1024}")
        for i in range(128): A(f"v_mov_b32 v{128+i}, 0")
        A("s_waitcnt vmcnt(0)")
        A("s_mov_b32 s6, 0")
        A(f"{L}dmy:")
        for i in range(64): mf16(A, vr(128 + 4 * (i % 32), 4), vr(64 + 4 * (i // 4 % 12), 4), vr(112 + 4 * (i % 4), 4))
        A("s_add_u32 s6, s6, 1")
        A("s_cmp_lt_u32 s6, 40")
        A(f"s_cbranch_scc1 {L}dmy")
        A("s_nop 7")
    if "idle" in OPT:
        A("s_mov_b32 s6, 0")
        A(f"{L}dmy:")
        for i in range(64): A("s_nop 15")
        A("s_add_u32 s6, s6, 1")
        A("s_cmp_lt_u32 s6, 40")
        A(f"s_cbranch_scc1 {L}dmy")
    kv_dma_voff(A, vQ, vQ + 4, 1)
    A(f"s_lshl_b32 s6, s{sWave}, 12")
    A(f"s_lshl_b32 s{sKVo}, s{sHead}, 19")
    A(f"s_add_u32 s{sKVo}, s{sKVo}, s6")
    A(f"s_add_u32 s{sKVo}, s{sKVo}, {1536*256}")
    for i in range(4): A(f"v_mov_b32 v{vSt+i}, 0")
    A(f"v_mov_b32 v{t+13}, 0x3f803f80")
    for i in range(4): A(f"v_accvgpr_write_b32 a{aOne+i}, v{t+13}")
    z = vr(vSt, 4)
    for i in range(8): mf32(A, vr(vAcc + 16 * i, 16), z, z, "0")
    for i in range(9): mf32(A, ar(16 * i, 16), z, z, "0")
    A(f"s_waitcnt vmcnt(12)")
    A("s_barrier")
    A(f"s_lshl2_add_u32 s6, s{sProd}, s{sWave}")
    A(f"s_and_b32 s6, s6, 0xfffffff3")
    A(f"s_cbranch_scc1 {L}np3")
    A(f"v_mov_b32 v{t+1}, 1")
    A(f"v_add_u32 v{t+7}, s{sProd}, v{t+2}")
    A(f"s_mov_b64 exec, 1")
    A(f"global_store_byte v{t+7}, v{t+1}, s[{pDbg}:{pDbg+1}] sc1")
    A(f"s_mov_b64 exec, -1")
    A(f"{L}np3:")
    stamp(1)
    for rt in range(4): A(xread(0, 0, rt))
    A(f"s_cmp_eq_u32 s{sHasF}, 0")
    fr = frag_list(True)
    for f in range(3):
        for sec in range(2): A(wread(fr[f], 0, sec, f))
    A("s_waitcnt lgkmcnt(6)")
    if FINE: A("s_mov_b32 s7, 0")
    A(f"s_cbranch_scc1 {L}gn")
    gemm_loop(A, True, L + "gf")
    A(f"s_branch {L}gdone")
    gemm_events(A, L + "gf")
    gemm_events(A, L + "gn")
    gemm_loop(A, False, L + "gn")
    A(f"{L}gdone:")
    if FINE:
        A(f"s_lshl_b32 s96, s2, 2"); A(f"s_add_u32 s96, s96, s{sWave}"); A("s_lshl_b32 s96, s96, 10")
        A(f"v_lshl_add_u32 v{vTm+12}, v{vLane}, 2, s96")
        A(f"s_add_u32 s100, s{pWs}, 0x3200000"); A(f"s_addc_u32 s101, s{pWs+1}, 0")
        A(f"global_store_dword v{vTm+12}, v{vFin}, s[100:101]")
        A(f"global_store_dword v{vTm+12}, v{vFin+1}, s[100:101] offset:256")
        A(f"global_store_dword v{vTm+12}, v{vFin-1}, s[100:101] offset:512")
    stamp(2)
    A(f"v_lshrrev_b32 v{t+12}, 4, v{vLane}")
    A(f"v_lshlrev_b32 v{t+12}, 4, v{t+12}")
    A(f"s_lshl_b32 s6, s{sWave}, 7")
    A(f"s_add_u32 s6, s6, {CS}")
    A(f"v_add_u32 v{t+8}, s6, v{t+12}")
    A(f"s_lshl_b32 s6, s{sWave}, 6")
    A(f"s_add_u32 s6, s6, {CS+512}")
    A(f"v_add_u32 v{t+9}, s6, v{t+12}")
    A("s_mov_b32 exec_lo, 0x00010001")
    A("s_mov_b32 exec_hi, 0x00010001")
    A(f"ds_write_b128 v{t+8}, {ar(aCs,4)}")
    A(f"ds_write_b128 v{t+8}, {ar(aCs+4,4)} offset:64")
    A(f"ds_write_b128 v{t+9}, {ar(aCs+8,4)}")
    A(f"ds_write_b128 v{t+9}, {ar(aCs+12,4)} offset:256")
    A("s_mov_b64 exec, -1")
    for j in range(8): A(f"v_mov_b32 v{vKd+j}, v{vXd+j}")
    A(f"s_mov_b32 s{sKVo}, s{sXo}")
    A(f"s_mov_b32 s{sKVm}, s{sM0X}")
    A(f"v_lshlrev_b32 v{t+10}, 4, v{vLane}")
    A(f"s_and_b32 s{qP}, s2, 3")
    A(f"s_lshr_b32 s{qCb}, s2, 6")
    A(f"s_bfe_u32 s{qRb}, s2, 0x30003")
    A(f"s_and_b32 s6, s2, 4")
    A(f"s_lshl_b32 s6, s6, 1")
    A(f"s_add_u32 s{qRb}, s{qRb}, s6")
    A(f"s_lshl2_add_u32 s{qG}, s{qRb}, s{qCb}")
    A(f"s_mul_i32 s6, s{qG}, {IB_G}")
    A(f"s_add_u32 s6, s6, {IB_OFF}")
    A(f"s_add_u32 s{qI}, s{pWs}, s6")
    A(f"s_addc_u32 s{qI+1}, s{pWs+1}, 0")
    srd(A, qI, qI, qI + 1, IB_G)
    vWs = t
    wp_src_voff(A, vWs)
    A("s_waitcnt lgkmcnt(0)")
    A("s_barrier")
    kvadv = [f"s_add_u32 s{sKVo}, s{sKVo}, 16384\ns_add_u32 s{sKVm}, s{sKVm}, 32768"]
    def kvq(): return kv_dma() + kvadv
    csb = [vKr, vKr + 4, vVr + 0]
    lq = LQ()
    def csread_q(p):
        A(f"v_xor_b32 v{t+11}, {64*p}, v{t+8}")
        A(f"ds_read_b128 {vr(csb[p%3],4)}, v{t+11}"); lq.issue(("c", p))
    csread_q(0); csread_q(1)
    wo_dma = []
    for su in range(2):
        wo_dma.append(f"s_lshl_b32 s6, s{sWave}, 13\ns_add_u32 m0, s6, {R4+su*4096}")
        wo_dma += [f"buffer_load_dwordx4 v{vWs+4*su+j}, s[{sSrc}:{sSrc+3}], s{sPo} offen offset:{j*1024} lds ; @put P" for j in range(4)]
    kq = spread([f"s_add_u32 m0, s{sKVm}, 16384"] + kv_dma()[6:] + kvadv + wo_dma, 24)
    for rt in range(4):
        q = vSt + 4 * rt
        A(f"v_mul_f32 v{q+3}, {hex(f2u(LOG2E/128**0.5))}, v{q+1}")
        A(f"v_mul_f32 v{q+1}, {hex(f2u(-LOG2E))}, v{q+1}")
    z = vr(vTm + 12, 4)
    for i in range(4): A(f"v_mov_b32 v{vTm+12+i}, 0")
    for p in range(8):
        if p + 2 < 8: csread_q(p + 2)
        lq.wait(A, [("c", p)])
        c = csb[p % 3]
        for rt in range(4):
            d = vAcc + (p * 4 + rt) * 4; q = vSt + 4 * rt
            for h in range(2):
                A(f"v_pk_fma_f32 {vr(d+2*h,2)}, {vr(c+2*h,2)}, {vr(q,2)}, {vr(d+2*h,2)} op_sel_hi:[1,0,1]")
        mf32(A, ar(aO + 16 * p, 16), z, z, "0")
        emit(kq[3*p])
        for rt in range(4):
            d = vAcc + (p * 4 + rt) * 4; q = vSt + 4 * rt
            for h in range(2):
                A(f"v_pk_mul_f32 {vr(d+2*h,2)}, {vr(d+2*h,2)}, {vr(q+2,2)} op_sel:[0,1]")
        emit(kq[3*p+1])
        for rt in range(4):
            d = vAcc + (p * 4 + rt) * 4
            f = vQ + ((rt // 2) * 8 + p) * 4 + (rt & 1) * 2
            for h in range(2): A(f"v_cvt_pk_bf16_f32 v{f+h}, v{d+2*h}, v{d+2*h+1}")
        emit(kq[3*p+2])
        if p > 0:
            for qt in range(2):
                f = vQ + (qt * 8 + p - 1) * 4
                for h in range(2): A(f"v_permlane16_swap_b32 v{f+h}, v{f+2+h}")
    A("s_nop 0")
    for qt in range(2):
        f = vQ + (qt * 8 + 7) * 4
        for h in range(2): A(f"v_permlane16_swap_b32 v{f+h}, v{f+2+h}")
    stamp(3)
    A(f"s_cmp_eq_u32 s{sHasF}, 0")
    A(f"s_cbranch_scc1 {L}noffn")
    def hst(pi, rt): return f"buffer_store_dwordx4 {vr(vAcc+80+pi*16+rt*4,4)}, v{t+10}, s[{sA}:{sA+3}], s{qT0+pi} offen offset:{rt*1024} sc1"
    T = vAcc; H = vAcc + 80; C = vAcc + 48
    for p in range(4):
        A(f"v_xor_b32 v{t+11}, {64*p}, v{t+9}")
        A(f"ds_read_b128 {vr(C+8*p,4)}, v{t+11}")
        A(f"ds_read_b128 {vr(C+8*p+4,4)}, v{t+11} offset:256")
    A(f"s_lshr_b32 s7, s{sWave}, 1")
    A(f"s_lshl_b32 s6, s{sFb}, 1")
    A(f"s_add_u32 s6, s6, 128")
    A(f"s_add_u32 s{sT0}, s6, s7")
    A(f"s_xor_b32 s7, s7, 1")
    A(f"s_add_u32 s{sT1}, s6, s7")
    A(f"s_lshl_b32 s{qT0}, s{sT0}, 12")
    A(f"s_lshl_b32 s{qT1}, s{sT1}, 12")
    A("s_waitcnt lgkmcnt(0)")
    kq = [[]] * 24 if KV2LATE else spread(kvq(), 11) + [[]] * 13
    for p in range(4):
        for r2 in range(2):
            g_ = 3 * (p * 2 + r2)
            G = [(2 * r2 + i, T + 12 * i + 24 * ((p * 2 + r2) & 1)) for i in range(2)]
            for rt, b in G:
                for i in range(4): A(f"v_accvgpr_read_b32 v{b+i}, a{aG+(p*4+rt)*4+i}")
                for i in range(4): A(f"v_accvgpr_read_b32 v{b+4+i}, a{aUp+(p*4+rt)*4+i}")
            emit(kq[g_])
            for rt, b in G:
                for h in range(4):
                    A(f"v_pk_fma_f32 {vr(b+2*h,2)}, {vr(C+8*p+2*h,2)}, {vr(vSt+4*rt,2)}, {vr(b+2*h,2)} op_sel_hi:[1,0,1]")
            for rt, b in G:
                for h in range(2): A(f"v_pk_mul_f32 {vr(b+8+2*h,2)}, {vr(b+2*h,2)}, {vr(vSt+4*rt,2)} op_sel:[0,1]")
            for rt, b in G:
                for i in range(4): A(f"v_exp_f32 v{b+8+i}, v{b+8+i}")
            emit(kq[g_+1])
            for rt, b in G:
                for h in range(2): A(f"v_pk_mul_f32 {vr(b+2*h,2)}, {vr(b+2*h,2)}, {vr(b+4+2*h,2)}")
            for rt, b in G:
                for h in range(2):
                    A(f"v_pk_fma_f32 {vr(b+8+2*h,2)}, {vr(b+8+2*h,2)}, {vr(vSt+4*rt+2,2)}, {vr(vSt+4*rt+2,2)} op_sel_hi:[1,0,0]")
            for rt, b in G:
                for i in range(4): A(f"v_rcp_f32 v{b+8+i}, v{b+8+i}")
            emit(kq[g_+2])
            if p >= 2: A(hst(0, (p - 2) * 2 + r2))
            for n, (rt, b) in enumerate(G):
                for h in range(2): A(f"v_pk_mul_f32 {vr(b+2*h,2)}, {vr(b+2*h,2)}, {vr(b+8+2*h,2)}")
            for rt, b in G:
                for h in range(2): A(f"v_cvt_pk_bf16_f32 v{H+(p//2)*16+rt*4+(p&1)*2+h}, v{b+2*h}, v{b+2*h+1}")
        if p & 1:
            pi = p // 2
            A(f"s_bitcmp1_b32 s{sWave}, 0")
            A(f"s_cbranch_scc0 {L}nsw{pi}")
            for rt in range(4):
                for h in range(2): A(f"v_swap_b32 v{H+pi*16+rt*4+h}, v{H+pi*16+rt*4+2+h}")
            A(f"{L}nsw{pi}:")
    A(f"s_branch {L}ffnd")
    A(f"{L}noffn:")
    if not KV2LATE: emit(kvq())
    A(f"s_mov_b32 s{qT1}, 0x1000000")
    A("s_barrier")
    srd(A, qA, pW2, pW2 + 1, 1728 * 1280)
    wp_src_voff(A, vAcc)
    wp_addr(A, 13)
    A(f"s_mul_i32 s{sT2}, s{sRb}, 5")
    A(f"s_add_u32 s{sT2}, s{sT2}, s{sProd}")
    A(f"s_lshl2_add_u32 s{sT2}, s{sT2}, s{sWave}")
    A(f"{L}w2j:")
    A(f"s_mul_hi_u32 s{sT0}, s{sT2}, 0x33333334")
    A(f"s_mul_i32 s{sT1}, s{sT0}, 5")
    A(f"s_sub_u32 s{sT1}, s{sT2}, s{sT1}")
    A(f"s_mul_i32 s7, s{sT0}, 40960")
    A(f"s_lshl_b32 s6, s{sT1}, 8")
    A(f"s_add_u32 s{sT0}, s7, s6")
    A(f"s_lshl_b32 s6, s{sT1}, 13")
    A(f"s_add_u32 s7, s7, s6")
    A(f"s_add_u32 s{sT1}, s7, {128*40960}")
    A(f"s_lshl_b32 s6, s{sWave}, 13")
    for su in range(2):
        A(f"s_add_u32 m0, s6, {R3+su*4096}")
        A("s_nop 0")
        for j in range(4): A(f"buffer_load_dwordx4 v{vAcc+4*su+j}, s[{qA}:{qA+3}], s{sT0} offen offset:{j*1024} lds")
    A("s_waitcnt vmcnt(0)")
    wp_reads(A, 4096)
    A("s_waitcnt lgkmcnt(0)")
    wp_stores(A, sT1)
    A(f"s_add_u32 s{sT2}, s{sT2}, 160")
    A(f"s_cmp_lt_u32 s{sT2}, 270")
    A(f"s_cbranch_scc1 {L}w2j")
    A(f"{L}ffnd:")
    for i in range(4): A(f"v_mov_b32 v{vOnes+i}, -1")
    A(f"s_mul_i32 s6, s{qP}, 30720")
    A(f"s_mul_i32 s7, s{sWave}, 7680")
    A(f"s_min_u32 s7, s7, 22528")
    A(f"s_add_u32 s{sSen}, s6, s7")
    A(f"s_lshl_b32 s{sWpO}, s{sU}, 12")
    wp_addr(A, 13, reg=R4, n=1, dst=vWpB)
    A(f"s_lshl_b32 s{sTch}, s{sHead}, 14")
    A(f"v_and_b32 v{vTch}, 15, v{vLane}")
    A(f"v_lshlrev_b32 v{vTch}, 7, v{vTch}")
    A(f"v_add_u32 v{vL16+1}, 4096, v{vL16}")
    A(f"s_lshl_b32 s6, s{sRb}, 5")
    A(f"s_add_u32 s7, s6, s{sHead}")
    A(f"s_lshl_b32 s7, s7, 7")
    A(f"v_mov_b32 v{vFo}, s7")
    stamp(4)
    A(f"s_mov_b32 s{sT1}, {R0}")
    kv_addr(A, sT1)
    A(f"v_mov_b32 v{vL}, 0")
    A(f"v_mov_b32 v{vL+1}, 0")
    A(f"s_mov_b32 s{sT}, 0")
    A(f"s_mov_b32 s{sC0}, 32768")
    A(f"s_mov_b32 s{sDelta}, 32768")
    A(f"s_cmp_eq_u32 s{sWave}, 0")
    A(f"s_cselect_b32 s{sTail}, 1, 99")
    srd(A, qX, pFl, pFl + 1, 0x8000)
    A(f"s_add_u32 s6, s{sNo}, 1")
    A(f"v_mov_b32 v{vFv}, s6")
    A(f"v_mov_b32 v{vFv+1}, s{sNo+1}")
    A(f"s_waitcnt vmcnt({4 if KV2LATE else 12})")
    A("s_barrier")
    lq = LQ()
    for p in range(3):
        A(kread(p, 0, p)); lq.issue(("f", 16 + p))
    ex0 = {33 + 4 * i: [hst(1, i)] for i in range(4)}
    if KV2LATE:
        ex0 = {32 + i: x for i, x in enumerate(spread([hst(1, i) for i in range(4)] + kvq(), 16))}
    attn_seg(A, lq, 2, ex0, sm_lo=0, sm_hi=0, look=[2])
    for p in range(3):
        A(kread(p, 1, p)); lq.issue(("f", p))
    A("s_nop 7")
    for e in range(10):
        for x in sm_exp(0, e): A(x)
        if e:
            for x in sm_post(0, e - 1): A(x)
    assert XP or lq.q == [("f", 0), ("f", 1), ("f", 2)]
    def base_ex(delta):
        ex = {}
        for p in range(8):
            ex.setdefault(max(2 * (p - 3) + 1, 1) if p >= 3 else 2 * p, []).append(f"v_add_u32 v{vKr+p}, {delta}, v{vKr+p}")
        for dt in range(4):
            ex.setdefault(2 * (28 + dt - 3) + 2, []).append(f"v_add_u32 v{vVr+dt}, {delta}, v{vVr+dt}")
        ex[(7, "ds")] = [f"ds_read_b64_tr_b16 {ar(aWq,2)}, v{vWpA}"]
        ex[(9, "ds")] = [f"ds_read_b64_tr_b16 {ar(aWq+2,2)}, v{vWpA} offset:2048"]
        ex.setdefault(13, []).append(f"buffer_store_dwordx4 {vr(vOnes,4)}, v{vL16}, s[{qI}:{qI+3}], s{sSen} offen sc1 ; @put H")
        ex.setdefault(15, []).append(f"s_add_u32 s{sSen}, s{sSen}, 1024")
        ex.setdefault(29, []).append(f"buffer_store_dwordx4 {ar(aWq,4)}, v{vL16}, s[{sWp}:{sWp+3}], s{sWpO} offen sc1 ; @put H")
        ex.setdefault(31, []).append(f"s_add_u32 s{sWpO}, s{sWpO}, 1024")
        return ex
    def put(ex, slots, items):
        for sl, its in zip(slots, spread(items, len(slots))): ex.setdefault(sl, []).extend(its)
    ex = base_ex(f"s{sDelta}")
    ex[(26, "pre")] = ["s_waitcnt vmcnt(12)", "s_barrier"]
    for sl, it in zip([32, 33, 37, 41, 45, 47, 49, 53, 57, 61], kv_dma()): ex.setdefault(sl, []).append(it)
    ex.setdefault(62, []).append(f"s_add_u32 s{sKVo}, s{sKVo}, 16384")
    ex.setdefault(59, []).append(f"s_add_u32 s{sKVm}, s{sKVm}, 32768\ns_and_b32 s{sKVm}, s{sKVm}, 0x1ffff")
    ex.setdefault(1, []).append(f"s_and_b32 s6, s{sT}, 3\ns_lshl_b32 s6, s6, 5")
    ex.setdefault(3, []).append(f"s_and_b32 s7, s{sT}, 4\ns_lshl_b32 s7, s7, 10\ns_or_b32 s6, s6, s7")
    ex.setdefault(4, []).append(f"v_xor_b32 v{vWpA}, s6, v{vWpB}")
    ex.setdefault(11, []).append(f"s_cmp_eq_u32 s{sT}, s{sTail}\ns_cselect_b32 s7, 0, 0x8000")
    ex.setdefault(35, []).append(f"buffer_store_dwordx2 {vr(vFv,2)}, v{vFo}, s[{qX}:{qX+3}], s7 offen sc1")
    ex.setdefault(20, []).append(f"s_add_u32 s{sT}, s{sT}, 1")
    ex.setdefault(63, []).append(f"s_cmp_eq_u32 s{sT}, 3\ns_cselect_b32 s{sDelta}, {hex((-98304) & 0xffffffff)}, s{sC0}\ns_cmp_lt_u32 s{sT}, 5")
    A(".p2align 6")
    A(f"{L}at:")
    for sg in range(4): attn_seg(A, lq, sg, ex)
    A(f"s_cbranch_scc1 {L}at")
    assert lq.q == [("f", 0), ("f", 1), ("f", 2)], lq.q
    PA = Asm()
    PA(f"s_lshl_b32 s6, s{sRb}, 5")
    PA(f"v_and_b32 v{vAp}, 3, v{vLane}")
    PA(f"v_lshlrev_b32 v{vAp}, 2, v{vAp}")
    PA(f"s_and_b32 s7, s{sHead}, 0x13")
    PA(f"s_add_u32 s7, s7, s6")
    PA(f"v_add_lshl_u32 v{vAp}, v{vAp}, s7, 7")
    PA(f"s_lshr_b32 s7, s{qRb}, 1")
    PA(f"s_lshl_b32 s6, s7, 5")
    PA(f"s_lshl_b32 s{sT0}, s{sWave}, 3")
    PA(f"s_add_u32 s6, s6, s{sT0}")
    PA(f"v_add_lshl_u32 v{vAa}, v{vLane}, s6, 7")
    PA(f"v_cmp_gt_u32 vcc, 8, v{vLane}")
    PA(f"v_and_b32 v{vAb}, 15, v{vLane}")
    PA(f"v_lshlrev_b32 v{vAb}, 2, v{vAb}")
    PA(f"s_lshl_b32 s6, s{sWave}, 6")
    PA(f"s_add_u32 s6, s6, 3")
    PA(f"v_add_lshl_u32 v{vAb}, v{vAb}, s6, 7")
    PA(f"v_cndmask_b32 v{vAa}, v{vAb}, v{vAa}, vcc")
    PA(f"v_bfe_u32 v{vAo}, v{vLane}, 4, 1")
    PA(f"v_add_u32 v{vAo}, s{qCb}, v{vAo}")
    PA(f"v_cmp_gt_u32 vcc, 32, v{vLane}")
    PA(f"v_mov_b32 v{vPb}, s7")
    PA(f"s_mul_i32 s6, s{qP}, 21")
    PA(f"s_add_u32 s6, s6, 1")
    PA(f"v_cndmask_b32 v{vAo}, v{vPb}, v{vAo}, vcc")
    PA(f"s_lshr_b32 s6, s6, 1")
    PA(f"v_and_b32 v{vPb}, 15, v{vLane}")
    PA(f"v_min_u32 v{vPb}, 10, v{vPb}")
    PA(f"v_add_u32 v{vPb}, s6, v{vPb}")
    PA(f"v_cmp_gt_u32 vcc, 48, v{vLane}")
    PA(f"v_lshl_add_u32 v{vAo}, v{vAo}, 5, v{vPb}")
    PA(f"v_lshlrev_b32 v{vAo}, 7, v{vAo}")
    PA(f"v_cndmask_b32 v{vAo}, v{vAp}, v{vAo}, vcc")
    odd = lambda a, b: [x for x in range(a, b) if x & 1]
    for t_ in (5, 6, 7):
        ex = base_ex("0x8000")
        ex.setdefault(4, []).append(f"v_xor_b32 v{vWpA}, {((t_&3)<<5)|((t_&4)<<10)}, v{vWpB}")
        if t_ == 5:
            ex[(26, "pre")] = ["s_waitcnt vmcnt(12)", "s_barrier"]
            for sl, its in zip(range(5, 40), spread(PA.lines, 35)): ex.setdefault((sl, "post"), []).extend(its)
            put(ex, [41], [f"global_load_dwordx2 {vr(vPa,2)}, v{vAa}, s[{pFl}:{pFl+1}] sc1"])
            put(ex, list(range(42, 64)), q_setup())
        elif t_ == 6:
            B_ = Asm(); B_("s_waitcnt vmcnt(1)"); flag_wait(B_, f"{L}w1", 1, [(vPa, vAa)]); B_("s_barrier")
            ex[(26, "pre")] = B_.lines
            put(ex, odd(31, 64), q_loads(0) + q_loads(1)[:6])
        else:
            ex[(26, "pre")] = ["s_barrier"]
            put(ex, [1, 3, 5, 7, 9, 11, 15, 17, 19, 21, 23, 25, 27, 31], q_loads(1)[6:] + q_loads(2)[:7])
        attn_seg(A, lq, 0, ex)
        attn_seg(A, lq, 1, ex, look=(True if t_ < 7 else [1]))
        if t_ < 7:
            attn_seg(A, lq, 2, ex)
            attn_seg(A, lq, 3, ex)
    ex = {}
    put(ex, [33, 37, 41, 45, 49, 53, 57], q_loads(2)[7:])
    attn_seg(A, lq, 2, ex, mfma=False, look=[3])
    attn_seg(A, lq, 3, ex, sm_hi=54, look=[3])
    stamp(5)
    if "fine2" in XP:
        A(f"s_lshl_b32 s96, s2, 2"); A(f"s_add_u32 s96, s96, s{sWave}"); A("s_lshl_b32 s96, s96, 10")
        A(f"v_lshl_add_u32 v227, v{vLane}, 2, s96")
        A(f"s_add_u32 s96, s{pWs}, 0x3200000"); A(f"s_addc_u32 s97, s{pWs+1}, 0")
        for i in range(3): A(f"global_store_dword v227, v{224+i}, s[96:97] offset:{256*i}")
    A(f"v_mov_b32 v{t}, v{vL}")
    A(f"v_mov_b32 v{t+1}, v{vL+1}")
    A(f"v_bfe_u32 v{t+2}, v{vLane}, 4, 1")
    A(f"v_lshrrev_b32 v{t+3}, 5, v{vLane}")
    A(f"v_permlane32_swap_b32 v{t}, v{vL}")
    A(f"v_permlane32_swap_b32 v{t+1}, v{vL+1}")
    A(f"v_lshlrev_b32 v{t+3}, 8, v{t+3}")
    A(f"v_add_f32 v{vL}, v{vL}, v{t}")
    A(f"v_add_f32 v{vL+1}, v{vL+1}, v{t+1}")
    A(f"v_lshl_add_u32 v{t+3}, v{t+2}, 10, v{t+3}")
    A(f"v_and_b32 v{t+2}, 15, v{vLane}")
    A(f"v_lshl_add_u32 v{vOo}, v{t+2}, 4, v{t+3}")
    A(f"v_mov_b32 v{t+8}, {hex(f2u(2.0**-40))}")
    A(f"v_mov_b32 v{t+9}, {hex(f2u(2.0**40))}")
    A(f"v_cmp_gt_f32 s[{sE0}:{sE0+1}], v{vL}, v{t+8}")
    A(f"v_cmp_lt_f32 s[{sE0+2}:{sE0+3}], v{vL}, v{t+9}")
    A(f"v_cmp_gt_f32 s[4:5], v{vL+1}, v{t+8}")
    A(f"v_cmp_lt_f32 s[6:7], v{vL+1}, v{t+9}")
    A(f"v_rcp_f32 v{t}, v{vL}")
    A(f"v_rcp_f32 v{t+1}, v{vL+1}")
    A("s_nop 1")
    A(f"s_and_b64 s[{sE0}:{sE0+1}], s[{sE0}:{sE0+1}], s[{sE0+2}:{sE0+3}]")
    A(f"s_and_b64 s[4:5], s[4:5], s[6:7]")
    A(f"s_and_b64 s[4:5], s[4:5], s[{sE0}:{sE0+1}]")
    A(f"s_cmp_eq_u64 s[4:5], exec")
    if not XP: A(f"s_cbranch_scc0 {L}slow ; slowbr")
    A(f"{L}oep:")
    A(f"s_lshl_b32 s6, s{sHead}, 14")
    n = 0
    for dt in range(4):
        for qt in range(2):
            b = vS + (n % 4) * 16; pk = vP + (n % 4) * 8; n += 1
            for i in range(16): A(f"v_accvgpr_read_b32 v{b+i}, a{aO+(qt*4+dt)*16+i}")
            for i in range(8):
                A(f"v_pk_mul_f32 {vr(b+2*i,2)}, {vr(b+2*i,2)}, {vr(t,2)} " + ("op_sel_hi:[1,0]" if qt == 0 else "op_sel:[0,1]"))
            for i in range(8): A(f"v_cvt_pk_bf16_f32 v{pk+i}, v{b+2*i}, v{b+2*i+1}")
            for j in range(2):
                A(f"buffer_store_dwordx4 {vr(pk+4*j,4)}, v{vOo}, s[{sA}:{sA+3}], s6 offen offset:{qt*2048+j*512} sc1 ; @put H")
        if dt < 3: A("s_add_u32 s6, s6, 4096")
    stamp(6); stamp(7)
    gemm2(A, L, emit, stamp)
    A(f"{L}end:")
    A("s_endpgm")
    A(f"{L}slow:")
    A("s_waitcnt vmcnt(0) lgkmcnt(0)")
    srd(A, sK, pK, pK + 1, 16777216)
    srd(A, sV, pV, pV + 1, 16777216)
    kv_dma_voff(A, vKd, vVd)
    A(f"s_lshl_b32 s{sT1}, s{sWave}, 13")
    A(f"s_add_u32 s{sT1}, s{sT1}, {R2}")
    kv_addr(A, sT1)
    for dt in range(4): A(f"v_add_u32 v{vVr+dt}, {R4-R2-16384}, v{vVr+dt}")
    vM = vTm + 6
    A(f"v_mov_b32 v{vM}, 0xff800000")
    A(f"v_mov_b32 v{vM+1}, 0xff800000")
    A(f"v_mov_b32 v{vL}, 0")
    A(f"v_mov_b32 v{vL+1}, 0")
    for i in range(4): A(f"v_mov_b32 v{vTm+12+i}, 0")
    A("s_nop 1")
    for i in range(8): mf32(A, ar(aO + 16 * i, 16), vr(vTm + 12, 4), vr(vTm + 12, 4), "0")
    A(f"s_mov_b32 s{sT}, 0")
    A(f"{L}sl:")
    A(f"s_and_b32 s{sT0}, s{sT}, 15")
    A(f"s_lshl_b32 s{sT0}, s{sT0}, 13")
    A(f"s_lshl_b32 s{sKVo}, s{sHead}, 19")
    A(f"s_add_u32 s{sKVo}, s{sKVo}, s{sT0}")
    A(f"s_add_u32 s{sKVo}, s{sKVo}, {1536*256}")
    for hf in range(2):
        A(f"s_add_u32 m0, s{sT1}, {hf*4096}")
        A("s_nop 0")
        for j in range(4): A(f"buffer_load_dwordx4 v{vKd+j}, s[{sK}:{sK+3}], s{sKVo} offen offset:{j*1024} lds")
        A(f"s_add_u32 m0, s{sT1}, {R4-R2+hf*4096}")
        A("s_nop 0")
        for j in range(4): A(f"buffer_load_dwordx4 v{vVd}, s[{sV}:{sV+3}], s{sKVo} offen offset:{j*1024} lds")
        if hf == 0: A(f"s_add_u32 s{sKVo}, s{sKVo}, 4096")
    A("s_waitcnt vmcnt(0)")
    for p in range(8):
        A(kread(p, 0, p % 4))
        A("s_waitcnt lgkmcnt(0)")
        for qt in range(2): mf32(A, vr(vS + qt * 16, 16), vr(vF + (p % 4) * 4, 4), vr(vQ + (qt * 8 + p) * 4, 4), "0" if p == 0 else None)
    A("s_nop 11")
    A(f"s_cmp_ge_u32 s{sT}, 16")
    A(f"s_cbranch_scc1 {L}sl2")
    for qt in range(2):
        for i in range(8): A(f"v_max3_f32 v{vM+qt}, v{vS+qt*16+2*i}, v{vS+qt*16+2*i+1}, v{vM+qt}")
    A(f"s_cmp_lg_u32 s{sT}, 15")
    A(f"s_cbranch_scc1 {L}sl3")
    A(f"v_mov_b32 v{vM+2}, v{vM}")
    A(f"v_mov_b32 v{vM+3}, v{vM+1}")
    A("s_nop 1")
    A(f"v_permlane32_swap_b32 v{vM+2}, v{vM}")
    A(f"v_permlane32_swap_b32 v{vM+3}, v{vM+1}")
    A(f"v_max_f32 v{vM}, v{vM}, v{vM+2}")
    A(f"v_max_f32 v{vM+1}, v{vM+1}, v{vM+3}")
    A(f"s_branch {L}sl3")
    A(f"{L}sl2:")
    for e in range(32):
        r, qt, ks = sm_reg(0, e)
        A(f"v_sub_f32 v{r}, v{r}, v{vM+qt}")
        A(f"v_exp_f32 v{r}, v{r}")
        A("s_nop 0")
        for x in sm_post(0, e): A(x)
    for i in range(8):
        for sec in range(2): A(vread(i // 4, i % 4, 0, sec, i % 4))
        A("s_waitcnt lgkmcnt(0)")
        for qt in range(2): mf32(A, ar(aO + (qt * 4 + i % 4) * 16, 16), vr(vF + (i % 4) * 4, 4), vr(vP + (qt * 2 + i // 4) * 4, 4))
    A(f"{L}sl3:")
    A(f"s_add_u32 s{sT}, s{sT}, 1")
    A(f"s_cmp_lt_u32 s{sT}, 32")
    A(f"s_cbranch_scc1 {L}sl")
    A(f"v_mov_b32 v{t}, v{vL}")
    A(f"v_mov_b32 v{t+1}, v{vL+1}")
    A("s_nop 1")
    A(f"v_permlane32_swap_b32 v{t}, v{vL}")
    A(f"v_permlane32_swap_b32 v{t+1}, v{vL+1}")
    A(f"v_add_f32 v{vL}, v{vL}, v{t}")
    A(f"v_add_f32 v{vL+1}, v{vL+1}, v{t+1}")
    A(f"v_rcp_f32 v{t}, v{vL}")
    A(f"v_rcp_f32 v{t+1}, v{vL+1}")
    A("s_nop 7")
    A(f"s_branch {L}oep")
    kd(A, name, 512, 256)

def checks(A, entry):
    if XP: return
    nb = check_hazards(A.lines)
    tot = 0
    for wg in (0, 5, 6, 31, 24, 28, 255):
        for w in (0, 1, 3):
            for slow in (0, 1):
                def hk(x, S):
                    if x.opn == "v_readfirstlane_b32" and "tag" not in x.text:
                        S[sWave] = w
                    if "slowbr" in x.text: return slow
                    if "pollbr" in x.text: return 1
                p, c = check_waits(A.lines, entry, {2: wg}, hk)
                tot += p
    print("hazards:", nb, "waits:", tot, c)

def build(fn, stamps=False):
    HDR = open("cdna_kernels/" + NAME + ".s.ref").read().split("; Override")[0]
    A = Asm()
    A(HDR)
    A(f"; @launch grid=(256,1,1) block=(256,1,1) lds={P1_LDS}")
    A('.amdgcn_target "amdgcn-amd-amdhsa--gfx950"')
    A(".text")
    gen_p1(A, NAME + "_kernel", stamps=stamps)
    checks(A, NAME + "_kernel")
    if "hplain" in XP: A.lines = [l.replace(" sc1", "") if ("store" in l and f"s[{sA}:{sA+3}], s6 " not in l and f"s[{sA}:{sA+3}]" in l) else l for l in A.lines]
    if "oplain" in XP: A.lines = [l.replace(" sc1", "") if ("store" in l and f"s[{sA}:{sA+3}], s6 " in l) else l for l in A.lines]
    if "iplain" in XP: A.lines = [l.replace(" sc1", "") if ("store" in l and f"s[{qI}:{qI+3}], s{sT0}" in l) else l for l in A.lines]
    if "nt" in XP: A.lines = [l.replace(" sc1", " sc1 nt") if ("buffer_store" in l) else l for l in A.lines]
    if "sc01" in XP: A.lines = [l.replace(" sc1", " sc0 sc1") if ("buffer_store" in l) else l for l in A.lines]
    open(fn, "w").write(A.text())
if __name__ == "__main__":
    build("fu.s")
    build("fu_st.s", stamps=True)
```

```python
from asmlib import *
from common import *

P1_LDS = 163840
R0, R1, R2, R3, R4 = 0, 32768, 65536, 98304, 131072
CS = R3
TAILBIT = 0x30000
ROT = False
TLBW = True
FLAG = 'byte'
FINE = False
EVMASK = 0x180
vFin = 60
XP = set()

class LQ:
    def __init__(s): s.q = []
    def issue(s, tag): s.q.append(tag)
    def wait(s, A, tags):
        idx = max([i for i, t in enumerate(s.q) if t in tags], default=-1)
        if idx < 0: return
        n = len(s.q) - 1 - idx
        assert n <= 15
        A(f"s_waitcnt lgkmcnt({n})")
        s.q = s.q[idx + 1:]
    def clear(s): s.q = []

sX, sWq, sW1, sW3, sK, sV, sA, sWp, sSrc, sSt = 8, 12, 16, 20, 24, 28, 32, 36, 40, 44
sWave, sHead, sRb, sFb, sHasF = 48, 49, 50, 51, 52
sXo, sWqo, sW13o, sM0X, sM0W, sD, sTail, sSlot = 53, 54, 55, 56, 57, 58, 59, 60
sT0, sT1, sT2 = 61, 62, 63
pX, pK, pV, pWq, pWo, pBx, pW1, pW3, pW2, pOut, pDbg, pWs = range(64, 88, 2)
sKVo, sKVm, sDelta, sT, sU, sMask, sXb, sC0 = 88, 89, 90, 91, 92, 93, 94, 95
sX2, sM0d, sXst, sM0t, sProd, sPo = 76, 74, 75, 3, 4, 5
sE0 = 96
vLane = 1
vXd, vWqd, vW13d, vXr, vWqr, vW13r = 2, 10, 12, 13, 15, 23
vZero = 27
vSt = 28
vTm = 44
vQ = 64
vAcc = 128
aG, aUp, aCs, aXf, aWf, aOne, aWp = 0, 64, 128, 144, 176, 192, 196
vKr, vVr, vKd, vVd, vL, vOo = 2, 10, 14, 18, 22, 24
vS, vP, vF = 128, 192, 208
aO = 128
sNo = 100
pFl = 84
qA, qW, qX, qO, qI = 8, 12, 16, 20, 44
qP, qG, qAo, qWo, qWm, qN, qAs, qWs = 53, 54, 55, 56, 57, 58, 51, 60
qAe, qWe, qNl, qSo, qXo, qRb, qCb, qT0, qT1, qIn = 74, 75, 3, 93, 94, 76, 77, 78, 79, 24
vFo, vFv, vPa, vPb, vAa, vAb, vAo, vAp = 25, 28, 30, 32, 34, 35, 36, 37
vL16, vWr2, vXo2, vL8, vOwn = 54, 2, 4, 5, 6
aA2, aW2, aWq = 0, 64, 64
RING2 = 81920
TOUCH = 0
SPL = (1, 1)
OPT = set()
vTch, sTch = 26, 92
vOnes = 40
vWpB, vWpA = 38, 39
sWpO, sSen = 5, 4


def mf16(A, d, a, b, c=None):
    A(f"v_mfma_f32_16x16x32_bf16 {d}, {a}, {b}, {d if c is None else c}")
def mf32(A, d, a, b, c=None):
    A(f"v_mfma_f32_32x32x16_bf16 {d}, {a}, {b}, {d if c is None else c}")

def spread(items, nslots):
    out = [[] for _ in range(nslots)]
    n = len(items)
    for i, it in enumerate(items):
        out[min(nslots - 1, (i * nslots) // n)].append(it)
    return out

def frag_list(ffn):
    fr = [("Q", p) for p in range(8)]
    if ffn:
        for p in range(4): fr += [("G", p), ("U", p)]
    return fr

def wread(fr, k, sec, buf):
    c, p = fr
    if c == "Q": ad, off = vWqr + p, sec * 1024
    else: ad, off = vW13r + p, (2048 if c == "G" else 3072) + sec * 512
    return f"ds_read_b64_tr_b16 {ar(aWf+buf*4+2*sec,2)}, v{ad} offset:{off + k*16384}"

def xread(s, st, rt):
    return f"ds_read_b128 {ar(aXf+st*16+rt*4,4)}, v{vXr+s} offset:{rt*2048}"

def dma_w(ffn, force=False):
    it = [f"s_max_u32 m0, s{sM0W}, s{sTail}",
          f"buffer_load_dwordx4 v{vWqd}, s[{sWq}:{sWq+3}], s{sWqo} offen lds ; @put W",
          f"buffer_load_dwordx4 v{vWqd+1}, s[{sWq}:{sWq+3}], s{sWqo} offen offset:1024 lds ; @put W"]
    if ffn or force:
        it += [f"buffer_load_dwordx4 v{vW13d}, s[{sW1}:{sW1+3}], s{sW13o} offen offset:2048 lds ; @put W",
               f"buffer_load_dwordx4 v{vW13d}, s[{sW3}:{sW3+3}], s{sW13o} offen offset:3072 lds ; @put W"]
    it += [f"s_add_u32 s{sWqo}, s{sWqo}, {32*8192}"]
    if ffn or force: it += [f"s_add_u32 s{sW13o}, s{sW13o}, {32*3456}"]
    it += [f"s_add_u32 s{sSlot}, s{sSlot}, 16384\ns_and_b32 s{sSlot}, s{sSlot}, 0xffff",
           f"s_add_u32 s{sM0W}, s{sSlot}, s{sC0}"]
    return it

def dma_x(half):
    if half == 0: it = [f"s_mov_b32 m0, s{sM0X}"]
    else: it = [f"s_add_u32 m0, s{sM0X}, s{sM0d}"]
    sd = sX if half == 0 else sX2
    for j in range(4):
        it.append(f"buffer_load_dwordx4 v{vXd+4*half+j}, s[{sd}:{sd+3}], s{sXo} offen offset:{j*1024} lds")
    if half: it += [f"s_add_u32 s{sXo}, s{sXo}, s{sXst}\ns_xor_b32 s{sM0X}, s{sM0X}, s{sM0t}"]
    return it

def fine(A):
    A("s_memtime s[98:99]"); A("s_waitcnt lgkmcnt(0)")
    A("s_mov_b32 m0, s7")
    A(f"v_writelane_b32 v{vFin}, s96, m0")
    A(f"v_writelane_b32 v{vFin+1}, s100, m0")
    A(f"v_writelane_b32 v{vFin-1}, s98, m0")
    A("s_add_u32 s7, s7, 1")

def gemm_loop(A, ffn, L):
    fr = frag_list(ffn); nf = len(fr)
    nw = 4 if ffn else 2
    ones = {("Q", 0): 0, ("Q", 1): 1, ("G", 0): 2, ("U", 0): 3}
    lq = LQ()
    for f in range(3):
        lq.issue(("w", f)); lq.issue(("w", f))
    A(".p2align 6")
    A(f"{L}:")
    for k in range(2):
        if k == 1:
            A(f"s_bitcmp1_b32 s{sMask}, s{sD}")
            A(f"s_cbranch_scc1 {L}_ev")
            A(f"{L}_evret:")
        if k == 0:
            items = [("x", rt) for rt in range(4)] + dma_x(1) + dma_w(ffn)
            slots = spread(items, 2 * (nf - 2))
            tog = {2: [f"v_xor_b32 v{vXr}, 0x18000, v{vXr}"]}
        else:
            items = dma_x(0) + dma_w(ffn) + [f"s_add_u32 s{sD}, s{sD}, 1"]
            slots = spread(items, 2 * (nf - 5))
            slots += [[f"s_cmp_eq_u32 s{sD}, 10\ns_cbranch_scc1 {L}_nw\ns_waitcnt vmcnt({2*nw+4})\n{L}_nw:"],
                      [("x", 0)], [("x", 1)], [("x", 2)], [("x", 3)], []]
            tog = {0: [f"v_xor_b32 v{vXr+1}, 0x18000, v{vXr+1}"]}
            for f, (c, p) in enumerate(fr):
                if c == "G": continue
                reg = vWqr + p if c == "Q" else vW13r + p
                tog.setdefault(max(f - 3, -1) + 1, []).append(f"v_xor_b32 v{reg}, 0x38000, v{reg}")
        for f in range(nf):
            c, p = fr[f]
            lq.wait(A, [("w", f)] + ([("x", k)] if f == 0 else []))
            buf = f % 4
            for rt in range(4):
                r_ = rt if f % 2 == 0 else 3 - rt
                if c == "Q": d = vr(vAcc + (p * 4 + r_) * 4, 4)
                else: d = ar((aG if c == "G" else aUp) + (p * 4 + r_) * 4, 4)
                mf16(A, d, ar(aWf + buf * 4, 4), ar(aXf + k * 16 + r_ * 4, 4))
                if f + 3 < nf and rt < 2:
                    A(wread(fr[f + 3], k, rt, (f + 3) % 4)); lq.issue(("w", f + 3))
                if f == nf - 2:
                    A(wread(fr[rt // 2], 1 - k, rt % 2, (rt // 2) % 4)); lq.issue(("w", rt // 2))
                if f == nf - 1 and rt < 2:
                    A(wread(fr[2], 1 - k, rt, 2)); lq.issue(("w", 2))
                if rt >= 2 and f < nf - 2:
                    for it in slots[2 * f + rt - 2]:
                        if isinstance(it, tuple):
                            A(xread(1 - k, 1 - k, it[1]) + (" ; @chkx" if k == 1 else "")); lq.issue(("x", 1 - k))
                        else:
                            if "lds" in it and A.lines[-1].split()[1].startswith("m0"): A("s_nop 0")
                            A(it)
                if rt == 3:
                    for t in tog.get(f, []): A(t)
            if fr[f] in ones:
                mf16(A, ar(aCs + ones[fr[f]] * 4, 4), ar(aWf + buf * 4, 4), ar(aOne, 4))
            if f == nf - 3:
                n = 2 * nw + 8
                if FINE:
                    A("s_memtime s[96:97]"); A("s_waitcnt lgkmcnt(0)")
                A(f"s_waitcnt vmcnt({n}) lgkmcnt(0)")
                lq.clear()
                if FINE:
                    A("s_memtime s[100:101]"); A("s_waitcnt lgkmcnt(0)")
                A(f"s_barrier")
                if FINE: fine(A)
    A(f"s_cmp_lt_u32 s{sD}, 10")
    A(f"s_cbranch_scc1 {L}")
    assert lq.q == [("w", 0), ("w", 0), ("w", 1), ("w", 1), ("w", 2), ("w", 2)], lq.q

def kv_dma_voff(A, kd_, vd_, nv=4):
    t = vTm
    A(f"v_lshrrev_b32 v{t+12}, 4, v{vLane}")
    A(f"v_and_b32 v{t+14}, 15, v{vLane}")
    A(f"v_xor_b32 v{t+13}, v{t+14}, v{t+12}")
    A(f"v_lshlrev_b32 v{t+13}, 4, v{t+13}")
    A(f"v_lshl_add_u32 v{kd_}, v{t+12}, 8, v{t+13}")
    for j in range(1, 4): A(f"v_xor_b32 v{kd_+j}, {64*j}, v{kd_}")
    A(f"v_lshlrev_b32 v{t+13}, 2, v{t+12}")
    A(f"v_xor_b32 v{t+13}, v{t+13}, v{t+14}")
    A(f"v_lshlrev_b32 v{t+13}, 4, v{t+13}")
    A(f"v_lshl_add_u32 v{vd_}, v{t+12}, 8, v{t+13}")
    for j in range(1, nv): A(f"v_mov_b32 v{vd_+j}, v{vd_}")

def gemm_events(A, L):
    A(f"{L}_ev:")
    A(f"s_cmp_eq_u32 s{sD}, 8")
    A(f"s_cbranch_scc1 {L}_ev8")
    A(f"global_load_dword v{vTm}, v{vTm+2}, s[{pDbg}:{pDbg+1}] sc1")
    A(f"global_load_dwordx2 {vr(vTm+4,2)}, v{vTm+6}, s[{pDbg}:{pDbg+1}] offset:128 sc1")
    A(f"s_branch {L}_evret")
    A(f"{L}_ev8:")
    A(f"s_mov_b32 s{sTail}, {TAILBIT}")
    for d in (sWq, sW1, sW3): A(f"s_mov_b32 s{d+2}, 0")
    for d, s_ in ((sX, sK), (sX2, sV)):
        A(f"s_mov_b64 s[{d}:{d+1}], s[{s_}:{s_+1}]")
        A(f"s_mov_b64 s[{d+2}:{d+3}], s[{s_+2}:{s_+3}]")
    for j in range(8): A(f"v_mov_b32 v{vXd+j}, v{vQ+min(j,4)}")
    A(f"s_lshl_b32 s{sM0X}, s{sWave}, 12")
    A(f"s_mov_b32 s{sXo}, s{sKVo}")
    A(f"s_movk_i32 s{sM0d}, 16384")
    A(f"s_movk_i32 s{sXst}, 16384")
    A(f"s_mov_b32 s{sM0t}, 0x8000")
    A(f"s_mov_b32 s{sT1}, 0")
    A(f"s_waitcnt vmcnt(12)")
    A(f"{L}_chk:")
    A(f"v_cmp_ne_u32 vcc, 0x01010101, v{vTm}")
    A(f"v_cmp_eq_u32 s[6:7], 0, v{vTm+5}")
    A("s_nop 3")
    A(f"s_or_b64 s[6:7], s[6:7], vcc")
    A(f"s_cbranch_scc0 {L}_rdy ; pollbr")
    A(f"s_add_u32 s{sT1}, s{sT1}, 1")
    A(f"s_cmp_ge_u32 s{sT1}, 0x40000")
    A(f"s_cbranch_scc1 {L}_rdy")
    A("s_sleep 2")
    A(f"global_load_dword v{vTm}, v{vTm+2}, s[{pDbg}:{pDbg+1}] sc1")
    A(f"global_load_dwordx2 {vr(vTm+4,2)}, v{vTm+6}, s[{pDbg}:{pDbg+1}] offset:128 sc1")
    A("s_waitcnt vmcnt(0)")
    A(f"s_branch {L}_chk")
    A(f"{L}_rdy:")
    A(f"v_readfirstlane_b32 s{sNo}, v{vTm+4} ; tag")
    A(f"v_readfirstlane_b32 s{sNo+1}, v{vTm+5} ; tag")
    A(f"s_add_u32 s{pFl}, s{pWs}, {FL_OFF}")
    A(f"s_addc_u32 s{pFl+1}, s{pWs+1}, 0")
    A(f"s_lshl2_add_u32 s{sT0}, s{sRb}, s{sWave}")
    A(f"s_lshl_b32 s{sT0}, s{sT0}, 10")
    for rt in range(4):
        A(f"buffer_load_dwordx4 {vr(vSt+4*rt,4)}, v{vTm+3}, s[{sSt}:{sSt+3}], s{sT0} offen offset:{rt*256} sc1")
    A(f"s_branch {L}_evret")

def kv_addr(A, base_expr_sgpr):
    t0, t1, t2, t3 = vTm + 12, vTm + 13, vTm + 14, vTm + 15
    A(f"v_and_b32 v{t0}, 31, v{vLane}")
    A(f"v_lshrrev_b32 v{t1}, 5, v{vLane}")
    A(f"v_and_b32 v{t2}, 15, v{vLane}")
    A(f"v_xor_b32 v{t2}, v{t2}, v{t1}")
    A(f"s_lshl_b32 s{sT0}, s{sWave}, 2")
    A(f"v_xor_b32 v{t2}, s{sT0}, v{t2}")
    A(f"v_lshlrev_b32 v{t2}, 4, v{t2}")
    A(f"v_lshl_add_u32 v{t2}, v{t0}, 8, v{t2}")
    A(f"v_add_u32 v{vKr}, s{base_expr_sgpr}, v{t2}")
    for p in range(1, 8): A(f"v_xor_b32 v{vKr+p}, {32*p}, v{vKr}")
    A(f"v_bfe_u32 v{t0}, v{vLane}, 2, 2")
    A(f"v_lshl_add_u32 v{t2}, v{t1}, 2, v{t0}")
    A(f"v_lshlrev_b32 v{t2}, 8, v{t2}")
    A(f"v_lshl_add_u32 v{t2}, v{t0}, 6, v{t2}")
    A(f"v_bfe_u32 v{t3}, v{vLane}, 1, 1")
    A(f"v_lshl_add_u32 v{t2}, v{t3}, 5, v{t2}")
    A(f"v_bfe_u32 v{t3}, v{vLane}, 4, 1")
    A(f"v_lshl_add_u32 v{t2}, v{t3}, 4, v{t2}")
    A(f"v_and_b32 v{t3}, 1, v{vLane}")
    A(f"v_lshl_add_u32 v{t2}, v{t3}, 3, v{t2}")
    A(f"s_add_u32 s{sT0}, s{base_expr_sgpr}, 16384")
    A(f"v_add_u32 v{vVr}, s{sT0}, v{t2}")
    for dt in range(1, 4): A(f"v_xor_b32 v{vVr+dt}, {64*dt}, v{vVr}")

def kv_dma():
    it = [f"s_mov_b32 m0, s{sKVm}"]
    for j in range(4):
        it.append(f"buffer_load_dwordx4 v{vKd+j}, s[{sK}:{sK+3}], s{sKVo} offen offset:{j*1024} lds")
    it.append("s_add_u32 m0, m0, 16384")
    for j in range(4):
        it.append(f"buffer_load_dwordx4 v{vVd+j}, s[{sV}:{sV+3}], s{sKVo} offen offset:{j*1024} lds")
    return it

def kread(p, tile, buf):
    return f"ds_read_b128 {vr(vF+buf*4,4)}, v{vKr+p} offset:{tile*8192}"
def vread(ks, dt, tile, sec, buf):
    return f"ds_read_b64_tr_b16 {vr(vF+buf*4+2*sec,2)}, v{vVr+dt} offset:{(32*tile+16*ks+8*sec)*256}"

def sm_reg(buf, e):
    qt = (e >> 3) & 1; ks = e >> 4
    return vS + (buf * 2 + qt) * 16 + ks * 8 + (e & 7), qt, ks
def sm_exp(buf, e):
    r, _, _ = sm_reg(buf, e)
    if "noexp" in XP: return []
    if "movexp" in XP: return [f"v_mov_b32 v{r}, v{r}"]
    return [f"v_exp_f32 v{r}, v{r}"]
def sm_post(buf, e):
    r, qt, ks = sm_reg(buf, e)
    o = [f"v_add_f32 v{vL+qt}, v{vL+qt}, v{r}"]
    if "noadd" in XP: o = []
    if e & 1 and "nocvt" not in XP: o.append(f"v_cvt_pk_bf16_f32 v{vP+(qt*2+ks)*4+((e&7)>>1)}, v{r-1}, v{r}")
    return o

def attn_seg(A, lq, seg, extra, mfma=True, sm_lo=0, sm_hi=64, look=True):
    def rd(phi, part):
        s = (phi // 8) % 4; i = phi % 8; buf = phi % 4
        if s in (0, 2):
            return kread(i, 1 if s == 0 else 0, buf) if part == 0 else None
        return vread(i // 4, i % 4, 0 if s == 1 else 1, part, buf)
    for i in range(8):
        phi = seg * 8 + i
        if mfma and "nowait" not in XP: lq.wait(A, [("f", phi)])
        for qt in range(2):
            slot = seg * 16 + 2 * i + qt
            if mfma:
                if seg in (0, 2):
                    sb = 1 if seg == 0 else 0
                    d = vr(vS + (sb * 2 + qt) * 16, 16)
                    mf32(A, d, vr(vF + (phi % 4) * 4, 4), vr(vQ + (qt * 8 + i) * 4, 4), "0" if i == 0 else None)
                else:
                    ks, dt = i // 4, i % 4
                    mf32(A, ar(aO + (qt * 4 + dt) * 16, 16), vr(vF + (phi % 4) * 4, 4), vr(vP + (qt * 2 + ks) * 4, 4))
            for it in extra.get((slot, "pre"), []): A(it)
            nphi = (phi + 3) % 32
            nseg = nphi // 8
            if look is True or nseg in look:
                r = rd(nphi, qt)
                if r and "noread" not in XP: A(r); lq.issue(("f", nphi))
            for it in extra.get((slot, "ds"), []):
                A(it); lq.issue(("side", 0))
            for it in extra.get(slot, []):
                if it.startswith("v_"): continue
                if "lds" in it and A.lines[-1].split()[1].startswith("m0"): A("s_nop 0")
                A(it)
            for (buf, start) in ((1, 22), (0, 54)):
                e = (slot - start) % 64
                if e < 32 and (buf, "exp") in sm_ok(slot, sm_lo, sm_hi, buf, e):
                    for x in sm_exp(buf, e): A(x)
            for (buf, start) in ((1, 22), (0, 54)):
                e = (slot - start - 1) % 64
                if e < 32 and (buf, "exp") in sm_ok((slot - 1) % 64, sm_lo, sm_hi, buf, e):
                    for x in sm_post(buf, e): A(x)
            for it in extra.get(slot, []):
                if it.startswith("v_"): A(it)
            for it in extra.get((slot, "post"), []): A(it)
def sm_ok(slot, lo, hi, buf, e):
    return {(buf, "exp")} if (lo <= slot < hi) else set()

def wp_src_voff(A, d):
    t = vTm
    A(f"v_lshrrev_b32 v{t+12}, 4, v{vLane}")
    A(f"v_lshlrev_b32 v{t+12}, 1, v{t+12}")
    A(f"v_and_b32 v{t+13}, 7, v{vLane}")
    A(f"v_xor_b32 v{t+12}, v{t+12}, v{t+13}")
    A(f"v_lshlrev_b32 v{t+12}, 4, v{t+12}")
    A(f"v_lshrrev_b32 v{t+13}, 3, v{vLane}")
    A(f"v_mul_u32_u24 v{t+13}, 1280, v{t+13}")
    A(f"v_add_u32 v{d}, v{t+12}, v{t+13}")
    for j in range(1, 8): A(f"v_add_u32 v{d+j}, {(j%4)*9216 + (j//4)*128}, v{d}")

def wp_addr(A, sh, note="", reg=R3, n=4, dst=None):
    t = vTm
    A(f"v_bfe_u32 v{t+14}, v{vLane}, 2, 2")
    A(f"v_bfe_u32 v{t+16}, v{vLane}, 4, 1")
    A(f"v_lshl_add_u32 v{t+14}, v{t+16}, 2, v{t+14}")
    A(f"v_lshrrev_b32 v{t+13}, 1, v{t+14}")
    A(f"v_lshlrev_b32 v{t+13}, 5, v{t+13}")
    A(f"v_lshl_add_u32 v{t+13}, v{t+14}, 7, v{t+13}")
    A(f"v_lshrrev_b32 v{t+15}, 5, v{vLane}")
    A(f"v_lshl_add_u32 v{t+13}, v{t+15}, 10, v{t+13}")
    A(f"v_and_b32 v{t+15}, 3, v{vLane}")
    A(f"v_lshl_add_u32 v{t+13}, v{t+15}, 3, v{t+13}")
    A(f"s_lshl_b32 s6, s{sWave}, {sh}")
    A(f"s_add_u32 s6, s6, {reg}")
    A(f"v_add_u32 v{dst or t+4}, s6, v{t+13}{note}")
    for i4 in range(1, n): A(f"v_xor_b32 v{t+4+i4}, {32*i4}, v{t+4}")
def wp_reads(A, stride):
    for su in range(2):
        for i4 in range(4):
            for sec in range(2):
                A(f"ds_read_b64_tr_b16 {ar(aWq+(su*4+i4)*4+2*sec,2)}, v{vTm+4+i4} offset:{su*stride+sec*2048}")
def wp_stores(A, so):
    for su in range(2):
        for i4 in range(4):
            A(f"buffer_store_dwordx4 {ar(aWq+(su*4+i4)*4,4)}, v{vL16}, s[{sWp}:{sWp+3}], s{so} offen offset:{i4*1024} sc1")
        if su == 0: A(f"s_add_u32 s{so}, s{so}, 4096")

def set_flag(A, phase, lab, cls="H"):
    A(f"s_cmp_lg_u32 s{sWave}, 0")
    A(f"s_cbranch_scc1 {lab}")
    A(f"s_add_u32 s6, s{sNo}, {phase}")
    A(f"v_mov_b32 v{vFv}, s6")
    A(f"v_mov_b32 v{vFv+1}, s{sNo+1}")
    A("s_mov_b64 exec, 1")
    A(f"global_store_dwordx2 v{vFo}, {vr(vFv,2)}, s[{pFl}:{pFl+1}] sc1")
    A("s_mov_b64 exec, -1")
def flag_load(A, dst, ad):
    A(f"global_load_dwordx2 {vr(dst,2)}, v{ad}, s[{pFl}:{pFl+1}] sc1")
def flag_wait(A, lab, phase, polls):
    A(f"s_add_u32 s{sT0}, s{sNo}, {phase}")
    A(f"s_mov_b32 s{sT1}, 0")
    A(f"{lab}c:")
    for n, (d, ad) in enumerate(polls):
        A(f"v_subrev_u32 v{d}, s{sT0}, v{d}")
        A(f"v_cmp_ne_u32 s[{sE0+2*n}:{sE0+2*n+1}], s{sNo+1}, v{d+1}")
    for n, (d, ad) in enumerate(polls):
        A(f"v_cmp_lt_u32 " + ("vcc" if n == 0 else "s[6:7]") + f", {3-phase}, v{d}")
    A("s_nop 3")
    A(f"s_or_b64 s[{sE0}:{sE0+1}], s[{sE0}:{sE0+1}], vcc")
    if len(polls) > 1:
        A(f"s_or_b64 s[6:7], s[6:7], s[{sE0+2}:{sE0+3}]")
        A(f"s_or_b64 s[{sE0}:{sE0+1}], s[{sE0}:{sE0+1}], s[6:7]")
    A(f"s_cbranch_scc0 {lab}r ; pollbr")
    A(f"s_add_u32 s{sT1}, s{sT1}, 1")
    A(f"s_cmp_ge_u32 s{sT1}, 0x40000")
    A(f"s_cbranch_scc1 {lab}r")
    for d, ad in polls: flag_load(A, d, ad)
    A("s_waitcnt vmcnt(0)")
    A(f"s_branch {lab}c")
    A(f"{lab}r:")

def q_setup():
    w = sWave
    return [
     f"s_lshl_b32 s6, s{qP}, 3\ns_lshr_b32 s{qT0}, {hex(0x402b1600)}, s6\ns_and_b32 s{qT0}, s{qT0}, 0xff",
     f"s_lshr_b32 s{qT1}, {hex(0x5b402b16)}, s6\ns_and_b32 s{qT1}, s{qT1}, 0xff\ns_sub_u32 s{qNl}, s{qT1}, s{qT0}",
     f"s_and_b32 s{sT2}, s{w}, 1\ns_lshl_b32 s6, s{sT2}, 11\ns_lshl_b32 s{qAs}, s{qT0}, 13",
     f"s_add_u32 s{qAs}, s{qAs}, s6\ns_lshr_b32 s7, s{w}, 1\ns_lshl_b32 s6, s{qCb}, 1",
     f"s_add_u32 s6, s6, s7\ns_mul_i32 s6, s6, 5120\ns_mul_i32 s{qWs}, s{qT0}, 81920",
     f"s_add_u32 s{qWs}, s{qWs}, s6\ns_mul_i32 s6, s{sT2}, 40960\ns_add_u32 s{qWs}, s{qWs}, s6",
     f"s_lshl_b32 s{qAe}, s{qT1}, 13\ns_mul_i32 s{qWe}, s{qT1}, 81920\ns_mov_b32 s{qAo}, s{qAs}",
     f"s_mov_b32 s{qWo}, s{qWs}\ns_mul_i32 s{qWm}, s{sT2}, 10240\ns_mul_i32 s6, s7, 5120",
     f"s_add_u32 s{qWm}, s{qWm}, s6\ns_lshl_b32 s6, s{qRb}, 1\ns_add_u32 s6, s6, s7",
     f"s_mul_i32 s6, s6, {A_BLK}\ns_add_u32 s{qA}, s{pWs}, s6\ns_addc_u32 s{qA+1}, s{pWs+1}, 0",
     f"s_and_b32 s{qA+1}, s{qA+1}, 0xffff\ns_cmp_eq_u32 s{qP}, 3\ns_cselect_b32 s{qA+2}, s{qAe}, 0\ns_cselect_b32 s{qW+2}, s{qWe}, 0\ns_mov_b32 s{qA+3}, 0x20000",
     f"s_mov_b32 s{qW}, s{sWp}\ns_mov_b32 s{qW+1}, s{sWp+1}\ns_mov_b32 s{qW+3}, 0x20000",
     f"s_lshl2_add_u32 s6, s{qRb}, s{qP}\ns_lshl_b32 s6, s6, 1\ns_add_u32 s6, s6, s7\ns_mul_i32 s{qXo}, s6, 20480",
     f"s_lshl_b32 s6, s{qCb}, 1\ns_add_u32 s6, s6, s{sT2}\ns_mul_i32 s6, s6, 160\ns_add_u32 s{qXo}, s{qXo}, s6",
     f"s_xor_b32 s{qT0}, s{w}, s{qP}\ns_mul_i32 s{qT1}, s{w}, 3\ns_add_u32 s{qT1}, s{qT1}, s{qT0}\ns_sub_u32 s{qT1}, s{qT1}, 1",
     f"s_mul_i32 s{qT1}, s{qT1}, 10240\ns_cmp_eq_u32 s{qT0}, 0\ns_cselect_b32 s{qSo}, 0x100000, s{qT1}",
    ]

def q_loads(slot):
    it = [f"s_add_u32 m0, s{qWm}, {slot*20480}"]
    for j in range(4):
        it.append(f"buffer_load_dwordx4 v{vL16}, s[{qW}:{qW+3}], s{qWo} offen offset:{j*1024} sc1 lds ; @put W2")
    it.append(f"s_add_u32 m0, s{qWm}, {slot*20480+4096}")
    it.append(f"buffer_load_dwordx4 v{vL16+1}, s[{qW}:{qW+3}], s{qWo} offen sc1 lds ; @put W2")
    for k in range(2):
        for rt in range(2):
            it.append(f"buffer_load_dwordx4 {ar(aA2+(slot*4+k*2+rt)*4,4)}, v{vL16+k}, s[{qA}:{qA+3}], s{qAo} offen offset:{rt*1024} sc1")
    it.append(f"s_add_u32 s{qWo}, s{qWo}, 81920\ns_add_u32 s{qAo}, s{qAo}, 8192")
    return it

def gemm2(A, L, emit, stamp):
    ac, vT, vX, vZ = 64, 144, 168, 180
    srd(A, qX, pX, pX + 1, X_SIZE)
    srd(A, qO, pOut, pOut + 1, X_SIZE)
    for i in range(4): A(f"v_mov_b32 v{vZ+i}, 0")
    A(f"v_and_b32 v{vT}, 15, v{vLane}")
    A(f"v_mul_u32_u24 v{vT}, 1280, v{vT}")
    A(f"v_lshrrev_b32 v{vT+1}, 4, v{vLane}")
    A(f"v_lshl_add_u32 v{vXo2}, v{vT+1}, 3, v{vT}")
    def zero():
        for i in range(5): mf32(A, vr(ac + 16 * i, 16), vr(vZ, 4), vr(vZ, 4), "0")
    zero()
    A(f"v_mov_b32 v{vWr2}, v{vL16}")
    A(f"v_add_u32 v{vWr2+1}, 40960, v{vL16}")
    A(f"v_lshlrev_b32 v{vL8}, 3, v{vLane}")
    A(f"v_add_u32 v{vOwn}, {RING2}, v{vL16}")
    A(f"s_mov_b32 s{qN}, 0")
    def xload():
        for ct in range(5):
            A(f"buffer_load_dwordx2 {vr(vX+2*ct,2)}, v{vXo2}, s[{qX}:{qX+3}], s{qXo} offen offset:{ct*32}")
    A(f"s_cmp_eq_u32 s{qP}, 3")
    A(f"s_cselect_b32 s{qT0}, 2, 99")
    A(f"s_cselect_b32 s{qT1}, 0, 99")
    A(f"s_cbranch_scc1 {L}qh")
    A("s_waitcnt vmcnt(0)")
    A("s_barrier")
    set_flag(A, 2, f"{L}f2")
    A(f"{L}f2:")
    flag_load(A, vPa, vAo)
    A(f"s_mov_b32 s{qA+2}, s{qAe}")
    A(f"s_mov_b32 s{qW+2}, s{qWe}")
    A(f"s_mov_b32 s{qAo}, s{qAs}")
    A(f"s_mov_b32 s{qWo}, s{qWs}")
    A("s_waitcnt vmcnt(0)")
    flag_wait(A, f"{L}w2", 2, [(vPa, vAo)])
    stamp(8)
    for s_ in range(3): emit(q_loads(s_))
    xload()
    A("s_waitcnt vmcnt(23)")
    A(f"s_branch {L}qs")
    A(f"{L}qh:")
    stamp(8)
    xload()
    A("s_waitcnt vmcnt(39)")
    A(f"{L}qs:")
    def wread2(slot, f, buf):
        k, ct = f // 10, f % 10
        return f"ds_read_b128 {ar(aW2+buf*4,4)}, v{vWr2+slot//2} offset:{(slot%2)*20480+k*10240+ct*1024}"
    A("s_barrier ; @need W2 10")
    stamp(9)
    for f in range(3): A(wread2(0, f, f))
    lq = LQ()
    for f in range(3): lq.issue(f)
    if "q_oob" in XP:
        A(f"s_mov_b32 s{qA+2}, 0"); A(f"s_mov_b32 s{qW+2}, 0")
    A(".p2align 6")
    A(f"{L}q:")
    for slot in range(4):
        ns = (slot + 1) % 4
        slots = spread(q_loads((slot + 3) % 4), 16)
        if "q_noload" in XP: slots = [[] for _ in range(16)]
        if "q_noA" in XP: slots = [[x for x in sl if "a[" not in x] for sl in slots]
        if "q_noW" in XP: slots = [[x for x in sl if "lds" not in x] for sl in slots]
        for f in range(20):
            k, ct = f // 10, f % 10
            lq.wait(A, [f])
            for r in range(2):
                rt = r if f % 2 == 0 else 1 - r
                mf16(A, vr(ac + (rt * 10 + ct) * 4, 4), ar(aW2 + (f % 4) * 4, 4), ar(aA2 + (slot * 4 + k * 2 + rt) * 4, 4))
                if r == 0 and f + 3 < 20:
                    A(wread2(slot, f + 3, (f + 3) % 4)); lq.issue(f + 3)
                if f == 18:
                    A(wread2(ns, r, r)); lq.issue(r)
                if f == 19 and r == 0:
                    A(wread2(ns, 2, 2)); lq.issue(2)
                if r == 1 and f < 16: emit(slots[f])
                if r == 0 and f == 17 and slot == 0: A(f"s_cmp_eq_u32 s{qT1}, s{qN}")
            if f == 17:
                if slot == 0:
                    A("s_waitcnt vmcnt(30) lgkmcnt(0)")
                    A(f"s_cbranch_scc1 {L}qw{slot}")
                    A("s_waitcnt vmcnt(18)")
                    A(f"{L}qw{slot}:")
                else: A("s_waitcnt vmcnt(18) lgkmcnt(0)")
                lq.clear()
                if "q_nobar" not in XP: A("s_barrier ; @need W2 10")
            if f == 19:
                A(f"s_add_u32 s{qN}, s{qN}, 1")
        if slot == 1:
            A(f"s_cmp_eq_u32 s{qT0}, s{qN}")
            A(f"s_cbranch_scc1 {L}qe1")
            A(f"{L}qr1:")
        if slot < 3:
            A(f"s_cmp_eq_u32 s{qNl}, s{qN}")
            A(f"s_cbranch_scc1 {L}qx")
    A(f"s_branch {L}q")
    A(f"{L}qe1:")
    set_flag(A, 2, f"{L}qr1")
    A(f"s_branch {L}qr1")
    A(f"{L}qx:")
    stamp(10)
    A(f"s_cmp_lg_u32 s{qP}, 3")
    A(f"s_cbranch_scc1 {L}qy")
    flag_load(A, vPb, vAp)
    A("s_waitcnt vmcnt(0)")
    flag_wait(A, f"{L}w3", 2, [(vPb, vAp)])
    A(f"{L}qy:")
    A(f"s_mov_b32 s{sT0}, s{qSo}")
    A(f"s_cmp_lg_u32 s{sWave}, s{qP}")
    A(f"s_cbranch_scc1 {L}no0")
    A("s_nop 1")
    for i in range(20): A(f"ds_write_b128 v{vOwn}, {vr(ac+4*i,4)} offset:{i*1024}")
    A("s_waitcnt lgkmcnt(0)")
    A(f"s_branch {L}no1")
    A(f"{L}no0:")
    for c in range(4):
        b = vT + (c % 2) * 12
        for i in range(10): A(f"v_cvt_pk_bf16_f32 v{b+i}, v{ac+c*20+2*i}, v{ac+c*20+2*i+1}")
        for i in range(10): A(f"v_min_u32 v{b+i}, -2, v{b+i}")
        if c: A(f"s_add_u32 s{sT0}, s{sT0}, 2560")
        A(f"buffer_store_dwordx4 {vr(b,4)}, v{vL16}, s[{qI}:{qI+3}], s{sT0} offen sc1")
        A(f"buffer_store_dwordx4 {vr(b+4,4)}, v{vL16}, s[{qI}:{qI+3}], s{sT0} offen offset:1024 sc1")
        A(f"buffer_store_dwordx2 {vr(b+8,2)}, v{vL8}, s[{qI}:{qI+3}], s{sT0} offen offset:2048 sc1")
    A(f"{L}no1:")
    S, U, IN, XR, E, T = 64, 84, 104, 184, 204, 224
    A(f"s_mul_i32 s{sT0}, s{sWave}, 5120")
    A(f"v_add_u32 v{vOwn}, s{sT0}, v{vOwn}")
    A(f"s_mul_i32 s{sT0}, s{qP}, 30720")
    A(f"s_mul_i32 s{sT1}, s{sWave}, 2560")
    A(f"s_add_u32 s{sT0}, s{sT0}, s{sT1}")
    A(f"s_lshl_b32 s6, s{qP}, 3")
    A(f"s_lshr_b32 s6, {hex(0x24094218 >> 0 if False else (0x24 | 0x18 << 8 | 0x09 << 16 | 0x24 << 24))}, s6")
    for i in range(3):
        A(f"s_bfe_u32 s7, s6, {hex(0x20000 | 2*i)}")
        A(f"s_mul_i32 s7, s7, 10240")
        A(f"s_add_u32 s{qIn+i}, s{sT0}, s7")
    def inload(sl):
        b = IN + sl * 10
        A(f"buffer_load_dwordx4 {vr(b,4)}, v{vL16}, s[{qI}:{qI+3}], s{qIn+sl} offen sc1")
        A(f"buffer_load_dwordx4 {vr(b+4,4)}, v{vL16}, s[{qI}:{qI+3}], s{qIn+sl} offen offset:1024 sc1")
        A(f"buffer_load_dwordx2 {vr(b+8,2)}, v{vL8}, s[{qI}:{qI+3}], s{qIn+sl} offen offset:2048 sc1")
    A("s_barrier")
    stamp(11)
    for sl in range(3): inload(sl)
    for i in range(5): A(f"ds_read_b128 {vr(S+4*i,4)}, v{vOwn} offset:{i*1024}")
    for i in range(10):
        A(f"v_lshlrev_b32 v{XR+2*i}, 16, v{vX+i}")
        A(f"v_and_b32 v{XR+2*i+1}, 0xffff0000, v{vX+i}")
    def unpack(sl, dst):
        for i in range(10):
            A(f"v_lshlrev_b32 v{dst+2*i}, 16, v{IN+sl*10+i}")
            A(f"v_and_b32 v{dst+2*i+1}, 0xffff0000, v{IN+sl*10+i}")
    def addin(sl, dst):
        unpack(sl, T)
        for i in range(10): A(f"v_pk_add_f32 {vr(dst+2*i,2)}, {vr(dst+2*i,2)}, {vr(T+2*i,2)}")
    A(f"s_mov_b32 s{sT1}, 0")
    A(f"{L}sc:")
    A("s_waitcnt vmcnt(0)")
    for i in range(3): A(f"v_max3_u32 v{T+i}, v{IN+10*i}, v{IN+10*i+1}, v{IN+10*i+2}")
    for j in range(3):
        for i in range(3): A(f"v_max3_u32 v{T+i}, v{T+i}, v{IN+10*i+3+2*j}, v{IN+10*i+4+2*j}")
    A(f"v_max3_u32 v{T+3}, v{IN+9}, v{IN+19}, v{IN+29}")
    A(f"v_max3_u32 v{T}, v{T}, v{T+1}, v{T+2}")
    A(f"v_max_u32 v{T}, v{T}, v{T+3}")
    A(f"v_cmp_eq_u32 vcc, -1, v{T}")
    A("s_nop 3")
    A(f"s_cbranch_vccz {L}sr ; pollbr")
    A(f"s_add_u32 s{sT1}, s{sT1}, 1")
    A(f"s_cmp_ge_u32 s{sT1}, 0x40000")
    A(f"s_cbranch_scc1 {L}sr")
    for sl in range(3): inload(sl)
    A(f"s_branch {L}sc")
    A(f"{L}sr:")
    stamp(12)
    unpack(2, U)
    A(f"s_mov_b32 s{sT0}, {hex(f2u(-LOG2E))}")
    A(f"s_cmp_lg_u32 s{qP}, 3")
    A("s_waitcnt lgkmcnt(0)")
    A(f"s_cbranch_scc1 {L}ns")
    for i in range(20): A(f"v_swap_b32 v{S+i}, v{U+i}")
    A(f"{L}ns:")
    for i in range(20): A(f"v_mul_f32 v{E+i}, s{sT0}, v{U+i}")
    for i in range(20): A(f"v_exp_f32 v{E+i}, v{E+i}")
    addin(0, S)
    for i in range(20): A(f"v_add_f32 v{E+i}, 1.0, v{E+i}")
    for i in range(20): A(f"v_rcp_f32 v{E+i}, v{E+i}")
    addin(1, S)
    for i in range(10): A(f"v_pk_mul_f32 {vr(U+2*i,2)}, {vr(U+2*i,2)}, {vr(E+2*i,2)}")
    for i in range(10): A(f"v_pk_fma_f32 {vr(XR+2*i,2)}, {vr(S+2*i,2)}, {vr(U+2*i,2)}, {vr(XR+2*i,2)}")
    for i in range(10): A(f"v_cvt_pk_bf16_f32 v{vX+i}, v{XR+2*i}, v{XR+2*i+1}")
    for ct in range(5):
        A(f"buffer_store_dwordx2 {vr(vX+2*ct,2)}, v{vXo2}, s[{qO}:{qO+3}], s{qXo} offen offset:{ct*32}" + (" sc1" if "outsc1" in OPT else ""))
    stamp(13)

def gen_p1(A, name, stamps=False, code_bytes=29696):
    head(A, name)
    L = "p1_"
    A("s_cmp_ge_u32 s2, 256")
    A(f"s_cbranch_scc1 {L}end")
    A("s_load_dwordx16 s[64:79], s[0:1], 0")
    A("s_load_dwordx8 s[80:87], s[0:1], 64")
    A(f"s_memrealtime s[{sNo}:{sNo+1}]")
    if stamps: A("s_memtime s[94:95]")
    def stamp(i):
        if not stamps: return
        A(f"s_memtime s[96:97]")
        A(f"s_memrealtime s[98:99]")
        A("s_waitcnt lgkmcnt(0)")
        A(f"v_mov_b32 v{vTm+18}, s96"); A(f"v_mov_b32 v{vTm+19}, s98")
        A(f"s_lshl_b32 s96, s2, 2"); A(f"s_add_u32 s96, s96, s{sWave}"); A("s_lshl_b32 s96, s96, 7")
        A(f"v_mov_b32 v{vZero}, s96")
        if i == 0: A(f"v_mov_b32 v{vTm+16}, s94")
        A(f"s_add_u32 s96, s{pWs}, 0x3100000"); A(f"s_addc_u32 s97, s{pWs+1}, 0")
        A(f"global_store_dwordx2 v{vZero}, {vr(vTm+18,2)}, s[96:97] offset:{i*8}")
        if i == 0: A(f"global_store_dword v{vZero}, v{vTm+16}, s[96:97] offset:120")
    t = vTm
    def emit(items):
        for it in items:
            if "lds" in it and A.lines[-1].split()[1].startswith("m0"): A("s_nop 0")
            A(it)
    A(f"v_and_b32 v{vLane}, 63, v0")
    A("v_lshrrev_b32 v0, 6, v0")
    A("s_and_b32 s6, s2, 7")
    A(f"v_readfirstlane_b32 s{sWave}, v0")
    A(f"s_lshr_b32 s{sT0}, s2, 3")
    A(f"s_lshr_b32 s{sRb}, s{sT0}, 2")
    A(f"s_and_b32 s{sT1}, s{sT0}, 3")
    A(f"s_lshl2_add_u32 s{sHead}, s6, s{sT1}")
    A(f"s_sub_u32 s{sT2}, s6, s{sRb}")
    A(f"s_add_u32 s{sT2}, s{sT2}, 3")
    A(f"s_and_b32 s{sT2}, s{sT2}, 7")
    A(f"s_mul_i32 s{sFb}, s6, 3")
    A(f"s_add_u32 s{sFb}, s{sFb}, s{sT1}")
    A(f"s_add_u32 s7, s{sT2}, 24")
    A(f"s_cmp_eq_u32 s{sT1}, 3")
    A(f"s_cselect_b32 s{sFb}, s7, s{sFb}")
    A(f"s_cmp_lt_u32 s{sFb}, 27")
    A(f"s_cselect_b32 s{sHasF}, 1, 0")
    A(f"s_sub_u32 s{sProd}, s{sFb}, 27")
    A(f"v_lshrrev_b32 v{t+7}, 3, v{vLane}")
    A(f"v_and_b32 v{t+6}, 7, v{vLane}")
    A(f"v_lshrrev_b32 v{t+12}, 4, v{vLane}")
    A(f"v_xor_b32 v{t+13}, v{t+6}, v{t+12}")
    A(f"v_lshlrev_b32 v{t+13}, 4, v{t+13}")
    A(f"s_movk_i32 s6, 1280")
    A(f"v_mad_u32_u24 v{vXd}, v{t+7}, s6, v{t+13}")
    A(f"v_xor_b32 v{t+13}, 64, v{vXd}")
    for j in range(1, 8):
        A(f"v_add_u32 v{vXd+j}, {j*10240-(j%4)*1024}, v{(t+13) if j&1 else vXd}")
    A(f"s_lshl2_add_u32 s6, s{sRb}, s{sWave}")
    A(f"s_mul_i32 s{sXo}, s6, {64*1280}")
    A(f"s_mul_i32 s{sKVo}, s6, {A_BLK}")
    A(f"s_lshl_b32 s{sM0X}, s{sWave}, 13")
    A(f"s_add_u32 s{sM0X}, s{sM0X}, {R1}")
    A(f"s_mov_b32 s{sTail}, 0")
    A(f"s_and_b32 s6, s{sWave}, 1")
    A(f"s_lshl_b32 s7, s6, 2")
    A(f"v_add_u32 v{t+13}, s7, v{t+12}")
    A(f"v_lshlrev_b32 v{t+13}, 1, v{t+13}")
    A(f"v_and_b32 v{t+14}, 15, v{vLane}")
    A(f"v_xor_b32 v{t+13}, v{t+13}, v{t+14}")
    A(f"v_lshlrev_b32 v{t+13}, 4, v{t+13}")
    A(f"s_lshl_b32 s7, s{sWave}, 3")
    A(f"v_add_u32 v{t+15}, s7, v{t+12}")
    A(f"v_lshl_add_u32 v{vWqd}, v{t+15}, 13, v{t+13}")
    A(f"v_add_u32 v{vWqd+1}, {4*8192-1024}, v{vWqd}")
    A(f"v_bfe_u32 v{t+13}, v{vLane}, 4, 1")
    A(f"s_lshl_b32 s6, s6, 1")
    A(f"v_add_u32 v{t+13}, s6, v{t+13}")
    A(f"v_lshlrev_b32 v{t+13}, 1, v{t+13}")
    A(f"v_xor_b32 v{t+13}, v{t+13}, v{t+6}")
    A(f"v_lshlrev_b32 v{t+13}, 4, v{t+13}")
    A(f"v_add_u32 v{t+15}, s7, v{t+7}")
    A(f"s_movk_i32 s6, 3456")
    A(f"v_mad_u32_u24 v{vW13d}, v{t+15}, s6, v{t+13}")
    A(f"s_lshl_b32 s{sWqo}, s{sHead}, 8")
    A(f"s_lshl_b32 s{sW13o}, s{sFb}, 7")
    A(f"s_mov_b32 s{sSlot}, 0")
    A("s_waitcnt lgkmcnt(0)")
    A(f"s_lshl_b32 s{sC0}, s{sWave}, 12")
    A(f"s_add_u32 s{sC0}, s{sC0}, {R3}")
    A(f"s_mov_b32 s{sM0W}, s{sC0}")
    srd(A, sX, pX, pX + 1, X_SIZE)
    srd(A, sWq, pWq, pWq + 1, 640 * 8192)
    for (d, p, sh) in ((sW1, pW1, 2048), (sW3, pW3, 3072)):
        A(f"s_sub_u32 s{d}, s{p}, {sh}")
        A(f"s_subb_u32 s{d+1}, s{p+1}, 0")
        A(f"s_and_b32 s{d+1}, s{d+1}, 0xffff")
        A(f"s_mul_i32 s{d+2}, s{sHasF}, {640*3456+sh}")
        A(f"s_mov_b32 s{d+3}, 0x20000")
    srd(A, sX2, pX, pX + 1, X_SIZE)
    A(f"s_movk_i32 s{sM0d}, 4096")
    A(f"s_movk_i32 s{sXst}, 128")
    A(f"s_mov_b32 s{sM0t}, 0x18000")
    RAW, UNP = 64, 96
    A(f"v_mov_b32 v{t+5}, 0")
    A(f"s_cmp_ge_u32 s{sProd}, 4")
    A(f"s_cbranch_scc1 {L}np1")
    A(f"v_lshrrev_b32 v{t+5}, 2, v{vLane}")
    A(f"v_and_b32 v{t+13}, 3, v{vLane}")
    A(f"v_lshlrev_b32 v{t+13}, 4, v{t+13}")
    A(f"s_movk_i32 s6, 1280")
    A(f"v_mad_u32_u24 v{t+13}, v{t+5}, s6, v{t+13}")
    A(f"s_lshl2_add_u32 s6, s{sRb}, s{sProd}")
    A(f"s_lshl2_add_u32 s6, s6, s{sWave}")
    A(f"s_lshl_b32 s7, s6, 8")
    A(f"v_lshl_add_u32 v{t+5}, v{t+5}, 4, s7")
    A(f"s_mul_i32 s6, s6, {16*1280}")
    for i in range(20):
        A(f"buffer_load_dwordx4 {vr(RAW+4*i,4)}, v{t+13}, s[{sX}:{sX+3}], s6 offen offset:{i*64}")
    A(f"{L}np1:")
    emit(dma_w(True)); emit(dma_x(0)); emit(dma_x(1))
    stamp(0)
    A("s_getpc_b64 s[6:7]")
    A(f"s_and_b32 s{sT0}, s{sT0}, 7")
    A(f"s_lshl2_add_u32 s{sT0}, s{sT0}, s{sWave}")
    A(f"s_lshl_b32 s{sT0}, s{sT0}, 10")
    A(f"s_min_u32 s{sT0}, s{sT0}, {code_bytes-1024}")
    A(f"v_lshl_add_u32 v{vTm+4}, v{vLane}, 4, s{sT0}")
    if "nocpf" not in OPT: A(f"global_load_dwordx4 {vr(vTm+8,4)}, v{vTm+4}, s[6:7]")
    else: A(f"global_load_dword v{vTm+8}, v{vLane}, s[0:1]")
    emit(dma_w(True)); emit(dma_x(0)); emit(dma_w(True))
    A(f"s_add_u32 s{sA}, s{pWs}, s{sKVo}")
    A(f"s_addc_u32 s{sA+1}, s{pWs+1}, 0")
    srd(A, sA, sA, sA + 1, A_BLK)
    A(f"s_add_u32 s{sWp}, s{pWs}, {W_OFF}")
    A(f"s_addc_u32 s{sWp+1}, s{pWs+1}, 0")
    srd(A, sWp, sWp, sWp + 1, W_SIZE)
    A(f"s_lshl2_add_u32 s{sT1}, s{sHead}, s{sWave}")
    A(f"s_mul_i32 s{sU}, s{sT1}, 10")
    A(f"s_lshl_b32 s{sT2}, s{sRb}, 1")
    A(f"s_add_u32 s{sU}, s{sU}, s{sT2}")
    A(f"s_mul_i32 s{sT1}, s{sT1}, 40960")
    A(f"s_lshl_b32 s{sT2}, s{sRb}, 8")
    A(f"s_add_u32 s{sPo}, s{sT1}, s{sT2}")
    srd(A, sSrc, pWo, pWo + 1, 4096 * 1280)
    A(f"s_cmp_lt_u32 s{sRb}, 5")
    A(f"s_cselect_b32 s{sSrc+2}, s{sSrc+2}, 0")
    A(f"s_cselect_b32 s{sU}, s{sU}, 2000")
    A(f"v_mov_b32 v{t+6}, 0")
    A(f"s_or_b32 s6, s2, s{sWave}")
    A(f"s_cbranch_scc1 {L}ntag")
    A(f"s_lshl_b64 s[6:7], s[{sNo}:{sNo+1}], 2")
    A(f"s_or_b32 s7, s7, 0x80000000")
    A(f"v_mov_b32 v{t+14}, s6")
    A(f"v_mov_b32 v{t+15}, s7")
    A("s_mov_b64 exec, 1")
    A(f"global_store_dwordx2 v{t+6}, {vr(t+14,2)}, s[{pDbg}:{pDbg+1}] offset:128 sc1")
    A("s_mov_b64 exec, -1")
    A(f"{L}ntag:")
    A(f"v_and_b32 v{t+14}, 15, v{vLane}")
    A(f"v_lshrrev_b32 v{t+13}, 1, v{t+14}")
    A(f"v_xor_b32 v{t+13}, v{t+13}, v{t+12}")
    A(f"v_lshlrev_b32 v{t+13}, 4, v{t+13}")
    A(f"v_lshl_add_u32 v{t+13}, v{t+14}, 7, v{t+13}")
    A(f"s_lshl_b32 s6, s{sWave}, 13")
    A(f"s_add_u32 s6, s6, {R1}")
    A(f"v_add_u32 v{vXr}, s6, v{t+13}")
    A(f"v_xor_b32 v{vXr+1}, 64, v{vXr}")
    A(f"v_lshlrev_b32 v{t+3}, 4, v{t+14}")
    A(f"v_bfe_u32 v{t+14}, v{vLane}, 2, 2")
    A(f"v_and_b32 v{t+15}, 3, v{vLane}")
    A(f"v_lshlrev_b32 v{t+15}, 3, v{t+15}")
    A(f"v_lshl_add_u32 v{t+15}, v{t+12}, 12, v{t+15}")
    A(f"v_add_u32 v{t+15}, {R3}, v{t+15}")
    A(f"v_bfe_u32 v{t+16}, v{vLane}, 4, 1")
    A(f"v_lshl_add_u32 v{t+13}, v{t+16}, 2, v{t+14}")
    A(f"s_lshl_b32 s6, s{sWave}, 1")
    A(f"v_xor_b32 v{t+13}, s6, v{t+13}")
    A(f"v_lshl_add_u32 v{t+13}, v{t+13}, 5, v{t+15}")
    A(f"v_lshl_add_u32 v{vWqr}, v{t+14}, 8, v{t+13}")
    for p in range(1, 8): A(f"v_xor_b32 v{vWqr+p}, {32*p}, v{vWqr}")
    A(f"v_lshrrev_b32 v{t+13}, 1, v{t+14}")
    A(f"v_lshl_add_u32 v{t+13}, v{t+16}, 1, v{t+13}")
    A(f"v_xor_b32 v{t+13}, s{sWave}, v{t+13}")
    A(f"v_lshl_add_u32 v{t+13}, v{t+13}, 5, v{t+15}")
    A(f"v_lshl_add_u32 v{vW13r}, v{t+14}, 7, v{t+13}")
    for p in range(1, 4): A(f"v_xor_b32 v{vW13r+p}, {32*p}, v{vW13r}")
    srd(A, sK, pK, pK + 1, 16777216)
    srd(A, sV, pV, pV + 1, 16777216)
    A(f"s_add_u32 s{sSt}, s{pWs}, {ST_OFF}")
    A(f"s_addc_u32 s{sSt+1}, s{pWs+1}, 0")
    srd(A, sSt, sSt, sSt + 1, 2048 * 16)
    A(f"s_lshl_b32 s6, s{sRb}, 2")
    A(f"v_mov_b32 v{t+2}, s6")
    A(f"s_movk_i32 s{sMask}, {EVMASK}")
    A(f"s_mov_b32 s{sD}, 0")
    A(f"s_cmp_ge_u32 s{sProd}, 4")
    A(f"s_cbranch_scc1 {L}np2")
    A("s_waitcnt vmcnt(25)")
    for i in range(79, -1, -1):
        A(f"v_and_b32 v{UNP+2*i+1}, 0xffff0000, v{RAW+i}")
        A(f"v_lshlrev_b32 v{UNP+2*i}, 16, v{RAW+i}")
    a = 64
    def red(first):
        for i in range(80):
            first(i)
        A(f"v_pk_add_f32 {vr(a,2)}, {vr(a,2)}, {vr(a+2,2)}")
        A(f"v_pk_add_f32 {vr(a+4,2)}, {vr(a+4,2)}, {vr(a+6,2)}")
        A(f"v_pk_add_f32 {vr(a,2)}, {vr(a,2)}, {vr(a+4,2)}")
        A(f"v_add_f32 v{a}, v{a}, v{a+1}")
        for qp in ("[1,0,3,2]", "[2,3,0,1]"):
            A("s_nop 1")
            A(f"v_add_f32_dpp v{a}, v{a}, v{a} quad_perm:{qp} row_mask:0xf bank_mask:0xf")
    def f1(i):
        d = vr(a + 2 * (i % 4), 2)
        if i < 4: A(f"v_pk_add_f32 {d}, {vr(UNP+2*i,2)}, {vr(UNP+2*i+8,2)}")
        elif i >= 8: A(f"v_pk_add_f32 {d}, {d}, {vr(UNP+2*i,2)}")
    red(f1)
    o = 72
    A(f"v_mul_f32 v{o}, {hex(f2u(-1.0/640))}, v{a}")
    for i in range(80): A(f"v_pk_add_f32 {vr(UNP+2*i,2)}, {vr(UNP+2*i,2)}, {vr(o,2)} op_sel_hi:[1,0]")
    def f2(i):
        d = vr(a + 2 * (i % 4), 2); x_ = vr(UNP + 2 * i, 2)
        if i < 4: A(f"v_pk_mul_f32 {d}, {x_}, {x_}")
        else: A(f"v_pk_fma_f32 {d}, {x_}, {x_}, {d}")
    red(f2)
    A(f"v_mov_b32 v{o+3}, {hex(f2u(1e-5))}")
    A(f"v_fmac_f32 v{o+3}, {hex(f2u(1.0/640))}, v{a}")
    A(f"v_mov_b32 v{o+2}, v{o+3}")
    A(f"v_rsq_f32 v{o+1}, v{o+3}")
    A("s_mov_b32 exec_lo, 0x11111111")
    A("s_mov_b32 exec_hi, 0x11111111")
    A(f"buffer_store_dwordx4 {vr(o,4)}, v{t+5}, s[{sSt}:{sSt+3}], 0 offen sc1 ; @put S")
    A("s_mov_b64 exec, -1")
    A("s_waitcnt vmcnt(0)")
    A(f"{L}np2:")
    if "dummy" in OPT:
        A(f"v_lshlrev_b32 v{t+13}, 4, v{vLane}")
        for i in range(16): A(f"buffer_load_dwordx4 {vr(64+4*i,4)}, v{t+13}, s[{sWq}:{sWq+3}], 0 offen offset:{(i%4)*1024}")
        for i in range(128): A(f"v_mov_b32 v{128+i}, 0")
        A("s_waitcnt vmcnt(0)")
        A("s_mov_b32 s6, 0")
        A(f"{L}dmy:")
        for i in range(64): mf16(A, vr(128 + 4 * (i % 32), 4), vr(64 + 4 * (i // 4 % 12), 4), vr(112 + 4 * (i % 4), 4))
        A("s_add_u32 s6, s6, 1")
        A("s_cmp_lt_u32 s6, 40")
        A(f"s_cbranch_scc1 {L}dmy")
        A("s_nop 7")
    if "idle" in OPT:
        A("s_mov_b32 s6, 0")
        A(f"{L}dmy:")
        for i in range(64): A("s_nop 15")
        A("s_add_u32 s6, s6, 1")
        A("s_cmp_lt_u32 s6, 40")
        A(f"s_cbranch_scc1 {L}dmy")
    kv_dma_voff(A, vQ, vQ + 4, 1)
    A(f"s_lshl_b32 s6, s{sWave}, 12")
    A(f"s_lshl_b32 s{sKVo}, s{sHead}, 19")
    A(f"s_add_u32 s{sKVo}, s{sKVo}, s6")
    A(f"s_add_u32 s{sKVo}, s{sKVo}, {1536*256}")
    for i in range(4): A(f"v_mov_b32 v{vSt+i}, 0")
    A(f"v_mov_b32 v{t+13}, 0x3f803f80")
    for i in range(4): A(f"v_accvgpr_write_b32 a{aOne+i}, v{t+13}")
    z = vr(vSt, 4)
    for i in range(8): mf32(A, vr(vAcc + 16 * i, 16), z, z, "0")
    for i in range(9): mf32(A, ar(16 * i, 16), z, z, "0")
    A(f"s_waitcnt vmcnt(12)")
    A("s_barrier")
    A(f"s_lshl2_add_u32 s6, s{sProd}, s{sWave}")
    A(f"s_and_b32 s6, s6, 0xfffffff3")
    A(f"s_cbranch_scc1 {L}np3")
    A(f"v_mov_b32 v{t+1}, 1")
    A(f"v_add_u32 v{t+7}, s{sProd}, v{t+2}")
    A(f"s_mov_b64 exec, 1")
    A(f"global_store_byte v{t+7}, v{t+1}, s[{pDbg}:{pDbg+1}] sc1")
    A(f"s_mov_b64 exec, -1")
    A(f"{L}np3:")
    stamp(1)
    for rt in range(4): A(xread(0, 0, rt))
    A(f"s_cmp_eq_u32 s{sHasF}, 0")
    fr = frag_list(True)
    for f in range(3):
        for sec in range(2): A(wread(fr[f], 0, sec, f))
    A("s_waitcnt lgkmcnt(6)")
    if FINE: A("s_mov_b32 s7, 0")
    A(f"s_cbranch_scc1 {L}gn")
    gemm_loop(A, True, L + "gf")
    A(f"s_branch {L}gdone")
    gemm_events(A, L + "gf")
    gemm_events(A, L + "gn")
    gemm_loop(A, False, L + "gn")
    A(f"{L}gdone:")
    if FINE:
        A(f"s_lshl_b32 s96, s2, 2"); A(f"s_add_u32 s96, s96, s{sWave}"); A("s_lshl_b32 s96, s96, 10")
        A(f"v_lshl_add_u32 v{vTm+12}, v{vLane}, 2, s96")
        A(f"s_add_u32 s100, s{pWs}, 0x3200000"); A(f"s_addc_u32 s101, s{pWs+1}, 0")
        A(f"global_store_dword v{vTm+12}, v{vFin}, s[100:101]")
        A(f"global_store_dword v{vTm+12}, v{vFin+1}, s[100:101] offset:256")
        A(f"global_store_dword v{vTm+12}, v{vFin-1}, s[100:101] offset:512")
    stamp(2)
    A(f"v_lshrrev_b32 v{t+12}, 4, v{vLane}")
    A(f"v_lshlrev_b32 v{t+12}, 4, v{t+12}")
    A(f"s_lshl_b32 s6, s{sWave}, 7")
    A(f"s_add_u32 s6, s6, {CS}")
    A(f"v_add_u32 v{t+8}, s6, v{t+12}")
    A(f"s_lshl_b32 s6, s{sWave}, 6")
    A(f"s_add_u32 s6, s6, {CS+512}")
    A(f"v_add_u32 v{t+9}, s6, v{t+12}")
    A("s_mov_b32 exec_lo, 0x00010001")
    A("s_mov_b32 exec_hi, 0x00010001")
    A(f"ds_write_b128 v{t+8}, {ar(aCs,4)}")
    A(f"ds_write_b128 v{t+8}, {ar(aCs+4,4)} offset:64")
    A(f"ds_write_b128 v{t+9}, {ar(aCs+8,4)}")
    A(f"ds_write_b128 v{t+9}, {ar(aCs+12,4)} offset:256")
    A("s_mov_b64 exec, -1")
    for j in range(8): A(f"v_mov_b32 v{vKd+j}, v{vXd+j}")
    A(f"s_mov_b32 s{sKVo}, s{sXo}")
    A(f"s_mov_b32 s{sKVm}, s{sM0X}")
    A(f"v_lshlrev_b32 v{t+10}, 4, v{vLane}")
    A(f"s_and_b32 s{qP}, s2, 3")
    A(f"s_lshr_b32 s{qCb}, s2, 6")
    A(f"s_bfe_u32 s{qRb}, s2, 0x30003")
    A(f"s_and_b32 s6, s2, 4")
    A(f"s_lshl_b32 s6, s6, 1")
    A(f"s_add_u32 s{qRb}, s{qRb}, s6")
    A(f"s_lshl2_add_u32 s{qG}, s{qRb}, s{qCb}")
    A(f"s_mul_i32 s6, s{qG}, {IB_G}")
    A(f"s_add_u32 s6, s6, {IB_OFF}")
    A(f"s_add_u32 s{qI}, s{pWs}, s6")
    A(f"s_addc_u32 s{qI+1}, s{pWs+1}, 0")
    srd(A, qI, qI, qI + 1, IB_G)
    vWs = t
    wp_src_voff(A, vWs)
    A("s_waitcnt lgkmcnt(0)")
    A("s_barrier")
    kvadv = [f"s_add_u32 s{sKVo}, s{sKVo}, 16384\ns_add_u32 s{sKVm}, s{sKVm}, 32768"]
    def kvq(): return kv_dma() + kvadv
    csb = [vKr, vKr + 4, vVr + 0]
    lq = LQ()
    def csread_q(p):
        A(f"v_xor_b32 v{t+11}, {64*p}, v{t+8}")
        A(f"ds_read_b128 {vr(csb[p%3],4)}, v{t+11}"); lq.issue(("c", p))
    csread_q(0); csread_q(1)
    wo_dma = []
    for su in range(2):
        wo_dma.append(f"s_lshl_b32 s6, s{sWave}, 13\ns_add_u32 m0, s6, {R4+su*4096}")
        wo_dma += [f"buffer_load_dwordx4 v{vWs+4*su+j}, s[{sSrc}:{sSrc+3}], s{sPo} offen offset:{j*1024} lds ; @put P" for j in range(4)]
    kq = spread([f"s_add_u32 m0, s{sKVm}, 16384"] + kv_dma()[6:] + kvadv + wo_dma[:5 * SPL[0]], 24)
    for rt in range(4):
        q = vSt + 4 * rt
        A(f"v_mul_f32 v{q+3}, {hex(f2u(LOG2E/128**0.5))}, v{q+1}")
        A(f"v_mul_f32 v{q+1}, {hex(f2u(-LOG2E))}, v{q+1}")
    z = vr(vTm + 12, 4)
    for i in range(4): A(f"v_mov_b32 v{vTm+12+i}, 0")
    for p in range(8):
        if p + 2 < 8: csread_q(p + 2)
        lq.wait(A, [("c", p)])
        c = csb[p % 3]
        for rt in range(4):
            d = vAcc + (p * 4 + rt) * 4; q = vSt + 4 * rt
            for h in range(2):
                A(f"v_pk_fma_f32 {vr(d+2*h,2)}, {vr(c+2*h,2)}, {vr(q,2)}, {vr(d+2*h,2)} op_sel_hi:[1,0,1]")
        mf32(A, ar(aO + 16 * p, 16), z, z, "0")
        emit(kq[3*p])
        for rt in range(4):
            d = vAcc + (p * 4 + rt) * 4; q = vSt + 4 * rt
            for h in range(2):
                A(f"v_pk_mul_f32 {vr(d+2*h,2)}, {vr(d+2*h,2)}, {vr(q+2,2)} op_sel:[0,1]")
        emit(kq[3*p+1])
        for rt in range(4):
            d = vAcc + (p * 4 + rt) * 4
            f = vQ + ((rt // 2) * 8 + p) * 4 + (rt & 1) * 2
            for h in range(2): A(f"v_cvt_pk_bf16_f32 v{f+h}, v{d+2*h}, v{d+2*h+1}")
        emit(kq[3*p+2])
        if p > 0:
            for qt in range(2):
                f = vQ + (qt * 8 + p - 1) * 4
                for h in range(2): A(f"v_permlane16_swap_b32 v{f+h}, v{f+2+h}")
    A("s_nop 0")
    for qt in range(2):
        f = vQ + (qt * 8 + 7) * 4
        for h in range(2): A(f"v_permlane16_swap_b32 v{f+h}, v{f+2+h}")
    stamp(3)
    A(f"s_cmp_eq_u32 s{sHasF}, 0")
    A(f"s_cbranch_scc1 {L}noffn")
    def hst(pi, rt): return f"buffer_store_dwordx4 {vr(vAcc+80+pi*16+rt*4,4)}, v{t+10}, s[{sA}:{sA+3}], s{qT0+pi} offen offset:{rt*1024} sc1"
    T = vAcc; H = vAcc + 80; C = vAcc + 48
    for p in range(4):
        A(f"v_xor_b32 v{t+11}, {64*p}, v{t+9}")
        A(f"ds_read_b128 {vr(C+8*p,4)}, v{t+11}")
        A(f"ds_read_b128 {vr(C+8*p+4,4)}, v{t+11} offset:256")
    A(f"s_lshr_b32 s7, s{sWave}, 1")
    A(f"s_lshl_b32 s6, s{sFb}, 1")
    A(f"s_add_u32 s6, s6, 128")
    A(f"s_add_u32 s{sT0}, s6, s7")
    A(f"s_xor_b32 s7, s7, 1")
    A(f"s_add_u32 s{sT1}, s6, s7")
    A(f"s_lshl_b32 s{qT0}, s{sT0}, 12")
    A(f"s_lshl_b32 s{qT1}, s{sT1}, 12")
    A("s_waitcnt lgkmcnt(0)")
    ffq = wo_dma[5 * SPL[0]:] + kv_dma()[:5 * SPL[1]]
    kq = spread(ffq, 24) if ffq else [[]] * 24
    for p in range(4):
        for r2 in range(2):
            g_ = 3 * (p * 2 + r2)
            G = [(2 * r2 + i, T + 12 * i + 24 * ((p * 2 + r2) & 1)) for i in range(2)]
            for rt, b in G:
                for i in range(4): A(f"v_accvgpr_read_b32 v{b+i}, a{aG+(p*4+rt)*4+i}")
                for i in range(4): A(f"v_accvgpr_read_b32 v{b+4+i}, a{aUp+(p*4+rt)*4+i}")
            emit(kq[g_])
            for rt, b in G:
                for h in range(4):
                    A(f"v_pk_fma_f32 {vr(b+2*h,2)}, {vr(C+8*p+2*h,2)}, {vr(vSt+4*rt,2)}, {vr(b+2*h,2)} op_sel_hi:[1,0,1]")
            for rt, b in G:
                for h in range(2): A(f"v_pk_mul_f32 {vr(b+8+2*h,2)}, {vr(b+2*h,2)}, {vr(vSt+4*rt,2)} op_sel:[0,1]")
            for rt, b in G:
                for i in range(4): A(f"v_exp_f32 v{b+8+i}, v{b+8+i}")
            emit(kq[g_+1])
            for rt, b in G:
                for h in range(2): A(f"v_pk_mul_f32 {vr(b+2*h,2)}, {vr(b+2*h,2)}, {vr(b+4+2*h,2)}")
            for rt, b in G:
                for h in range(2):
                    A(f"v_pk_fma_f32 {vr(b+8+2*h,2)}, {vr(b+8+2*h,2)}, {vr(vSt+4*rt+2,2)}, {vr(vSt+4*rt+2,2)} op_sel_hi:[1,0,0]")
            for rt, b in G:
                for i in range(4): A(f"v_rcp_f32 v{b+8+i}, v{b+8+i}")
            emit(kq[g_+2])
            if p >= 2: A(hst(0, (p - 2) * 2 + r2))
            for n, (rt, b) in enumerate(G):
                for h in range(2): A(f"v_pk_mul_f32 {vr(b+2*h,2)}, {vr(b+2*h,2)}, {vr(b+8+2*h,2)}")
            for rt, b in G:
                for h in range(2): A(f"v_cvt_pk_bf16_f32 v{H+(p//2)*16+rt*4+(p&1)*2+h}, v{b+2*h}, v{b+2*h+1}")
        if p & 1:
            pi = p // 2
            A(f"s_bitcmp1_b32 s{sWave}, 0")
            A(f"s_cbranch_scc0 {L}nsw{pi}")
            for rt in range(4):
                for h in range(2): A(f"v_swap_b32 v{H+pi*16+rt*4+h}, v{H+pi*16+rt*4+2+h}")
            A(f"{L}nsw{pi}:")
    A(f"s_branch {L}ffnd")
    A(f"{L}noffn:")
    emit(ffq)
    A(f"s_mov_b32 s{qT1}, 0x1000000")
    A("s_barrier")
    srd(A, qA, pW2, pW2 + 1, 1728 * 1280)
    wp_src_voff(A, vAcc)
    wp_addr(A, 13)
    A(f"s_mul_i32 s{sT2}, s{sRb}, 5")
    A(f"s_add_u32 s{sT2}, s{sT2}, s{sProd}")
    A(f"s_lshl2_add_u32 s{sT2}, s{sT2}, s{sWave}")
    A(f"{L}w2j:")
    A(f"s_mul_hi_u32 s{sT0}, s{sT2}, 0x33333334")
    A(f"s_mul_i32 s{sT1}, s{sT0}, 5")
    A(f"s_sub_u32 s{sT1}, s{sT2}, s{sT1}")
    A(f"s_mul_i32 s7, s{sT0}, 40960")
    A(f"s_lshl_b32 s6, s{sT1}, 8")
    A(f"s_add_u32 s{sT0}, s7, s6")
    A(f"s_lshl_b32 s6, s{sT1}, 13")
    A(f"s_add_u32 s7, s7, s6")
    A(f"s_add_u32 s{sT1}, s7, {128*40960}")
    A(f"s_lshl_b32 s6, s{sWave}, 13")
    for su in range(2):
        A(f"s_add_u32 m0, s6, {R3+su*4096}")
        A("s_nop 0")
        for j in range(4): A(f"buffer_load_dwordx4 v{vAcc+4*su+j}, s[{qA}:{qA+3}], s{sT0} offen offset:{j*1024} lds")
    A("s_waitcnt vmcnt(0)")
    wp_reads(A, 4096)
    A("s_waitcnt lgkmcnt(0)")
    wp_stores(A, sT1)
    A(f"s_add_u32 s{sT2}, s{sT2}, 160")
    A(f"s_cmp_lt_u32 s{sT2}, 270")
    A(f"s_cbranch_scc1 {L}w2j")
    A(f"{L}ffnd:")
    for i in range(4): A(f"v_mov_b32 v{vOnes+i}, -1")
    A(f"s_mul_i32 s6, s{qP}, 30720")
    A(f"s_mul_i32 s7, s{sWave}, 7680")
    A(f"s_min_u32 s7, s7, 22528")
    A(f"s_add_u32 s{sSen}, s6, s7")
    A(f"s_lshl_b32 s{sWpO}, s{sU}, 12")
    wp_addr(A, 13, reg=R4, n=1, dst=vWpB)
    A(f"s_lshl_b32 s{sTch}, s{sHead}, 14")
    A(f"v_and_b32 v{vTch}, 15, v{vLane}")
    A(f"v_lshlrev_b32 v{vTch}, 7, v{vTch}")
    A(f"v_add_u32 v{vL16+1}, 4096, v{vL16}")
    A(f"s_lshl_b32 s6, s{sRb}, 5")
    A(f"s_add_u32 s7, s6, s{sHead}")
    A(f"s_lshl_b32 s7, s7, 7")
    A(f"v_mov_b32 v{vFo}, s7")
    stamp(4)
    A(f"s_mov_b32 s{sT1}, {R0}")
    kv_addr(A, sT1)
    A(f"v_mov_b32 v{vL}, 0")
    A(f"v_mov_b32 v{vL+1}, 0")
    A(f"s_mov_b32 s{sT}, 0")
    A(f"s_mov_b32 s{sC0}, 32768")
    A(f"s_mov_b32 s{sDelta}, 32768")
    A(f"s_cmp_eq_u32 s{sWave}, 0")
    A(f"s_cselect_b32 s{sTail}, 1, 99")
    srd(A, qX, pFl, pFl + 1, 0x8000)
    A(f"s_add_u32 s6, s{sNo}, 1")
    A(f"v_mov_b32 v{vFv}, s6")
    A(f"v_mov_b32 v{vFv+1}, s{sNo+1}")
    A(f"s_waitcnt vmcnt({4 * SPL[1]})")
    A("s_barrier")
    lq = LQ()
    for p in range(3):
        A(kread(p, 0, p)); lq.issue(("f", 16 + p))
    ex0 = {33 + 4 * i: [hst(1, i)] for i in range(4)}
    rest = kvq() if SPL[1] == 0 else [f"s_add_u32 m0, s{sKVm}, 16384"] + kvq()[6:]
    ex0 = {32 + i: x for i, x in enumerate(spread([hst(1, i) for i in range(4)] + rest, 16))}
    attn_seg(A, lq, 2, ex0, sm_lo=0, sm_hi=0, look=[2])
    for p in range(3):
        A(kread(p, 1, p)); lq.issue(("f", p))
    A("s_nop 7")
    for e in range(10):
        for x in sm_exp(0, e): A(x)
        if e:
            for x in sm_post(0, e - 1): A(x)
    assert XP or lq.q == [("f", 0), ("f", 1), ("f", 2)]
    def base_ex(delta):
        ex = {}
        for p in range(8):
            ex.setdefault(max(2 * (p - 3) + 1, 1) if p >= 3 else 2 * p, []).append(f"v_add_u32 v{vKr+p}, {delta}, v{vKr+p}")
        for dt in range(4):
            ex.setdefault(2 * (28 + dt - 3) + 2, []).append(f"v_add_u32 v{vVr+dt}, {delta}, v{vVr+dt}")
        ex[(7, "ds")] = [f"ds_read_b64_tr_b16 {ar(aWq,2)}, v{vWpA}"]
        ex[(9, "ds")] = [f"ds_read_b64_tr_b16 {ar(aWq+2,2)}, v{vWpA} offset:2048"]
        ex.setdefault(13, []).append(f"buffer_store_dwordx4 {vr(vOnes,4)}, v{vL16}, s[{qI}:{qI+3}], s{sSen} offen sc1 ; @put H")
        ex.setdefault(15, []).append(f"s_add_u32 s{sSen}, s{sSen}, 1024")
        ex.setdefault(29, []).append(f"buffer_store_dwordx4 {ar(aWq,4)}, v{vL16}, s[{sWp}:{sWp+3}], s{sWpO} offen sc1 ; @put H")
        ex.setdefault(31, []).append(f"s_add_u32 s{sWpO}, s{sWpO}, 1024")
        return ex
    def put(ex, slots, items):
        for sl, its in zip(slots, spread(items, len(slots))): ex.setdefault(sl, []).extend(its)
    ex = base_ex(f"s{sDelta}")
    ex[(26, "pre")] = ["s_waitcnt vmcnt(12)", "s_barrier"]
    for sl, it in zip([32, 33, 37, 41, 45, 47, 49, 53, 57, 61], kv_dma()): ex.setdefault(sl, []).append(it)
    ex.setdefault(62, []).append(f"s_add_u32 s{sKVo}, s{sKVo}, 16384")
    ex.setdefault(59, []).append(f"s_add_u32 s{sKVm}, s{sKVm}, 32768\ns_and_b32 s{sKVm}, s{sKVm}, 0x1ffff")
    ex.setdefault(1, []).append(f"s_and_b32 s6, s{sT}, 3\ns_lshl_b32 s6, s6, 5")
    ex.setdefault(3, []).append(f"s_and_b32 s7, s{sT}, 4\ns_lshl_b32 s7, s7, 10\ns_or_b32 s6, s6, s7")
    ex.setdefault(4, []).append(f"v_xor_b32 v{vWpA}, s6, v{vWpB}")
    ex.setdefault(11, []).append(f"s_cmp_eq_u32 s{sT}, s{sTail}\ns_cselect_b32 s7, 0, 0x8000")
    ex.setdefault(35, []).append(f"buffer_store_dwordx2 {vr(vFv,2)}, v{vFo}, s[{qX}:{qX+3}], s7 offen sc1")
    ex.setdefault(20, []).append(f"s_add_u32 s{sT}, s{sT}, 1")
    ex.setdefault(63, []).append(f"s_cmp_eq_u32 s{sT}, 3\ns_cselect_b32 s{sDelta}, {hex((-98304) & 0xffffffff)}, s{sC0}\ns_cmp_lt_u32 s{sT}, 5")
    A(".p2align 6")
    A(f"{L}at:")
    for sg in range(4): attn_seg(A, lq, sg, ex)
    A(f"s_cbranch_scc1 {L}at")
    assert lq.q == [("f", 0), ("f", 1), ("f", 2)], lq.q
    PA = Asm()
    PA(f"s_lshl_b32 s6, s{sRb}, 5")
    PA(f"v_and_b32 v{vAp}, 3, v{vLane}")
    PA(f"v_lshlrev_b32 v{vAp}, 2, v{vAp}")
    PA(f"s_and_b32 s7, s{sHead}, 0x13")
    PA(f"s_add_u32 s7, s7, s6")
    PA(f"v_add_lshl_u32 v{vAp}, v{vAp}, s7, 7")
    PA(f"s_lshr_b32 s7, s{qRb}, 1")
    PA(f"s_lshl_b32 s6, s7, 5")
    PA(f"s_lshl_b32 s{sT0}, s{sWave}, 3")
    PA(f"s_add_u32 s6, s6, s{sT0}")
    PA(f"v_add_lshl_u32 v{vAa}, v{vLane}, s6, 7")
    PA(f"v_cmp_gt_u32 vcc, 8, v{vLane}")
    PA(f"v_and_b32 v{vAb}, 15, v{vLane}")
    PA(f"v_lshlrev_b32 v{vAb}, 2, v{vAb}")
    PA(f"s_lshl_b32 s6, s{sWave}, 6")
    PA(f"s_add_u32 s6, s6, 3")
    PA(f"v_add_lshl_u32 v{vAb}, v{vAb}, s6, 7")
    PA(f"v_cndmask_b32 v{vAa}, v{vAb}, v{vAa}, vcc")
    PA(f"v_bfe_u32 v{vAo}, v{vLane}, 4, 1")
    PA(f"v_add_u32 v{vAo}, s{qCb}, v{vAo}")
    PA(f"v_cmp_gt_u32 vcc, 32, v{vLane}")
    PA(f"v_mov_b32 v{vPb}, s7")
    PA(f"s_mul_i32 s6, s{qP}, 21")
    PA(f"s_add_u32 s6, s6, 1")
    PA(f"v_cndmask_b32 v{vAo}, v{vPb}, v{vAo}, vcc")
    PA(f"s_lshr_b32 s6, s6, 1")
    PA(f"v_and_b32 v{vPb}, 15, v{vLane}")
    PA(f"v_min_u32 v{vPb}, 10, v{vPb}")
    PA(f"v_add_u32 v{vPb}, s6, v{vPb}")
    PA(f"v_cmp_gt_u32 vcc, 48, v{vLane}")
    PA(f"v_lshl_add_u32 v{vAo}, v{vAo}, 5, v{vPb}")
    PA(f"v_lshlrev_b32 v{vAo}, 7, v{vAo}")
    PA(f"v_cndmask_b32 v{vAo}, v{vAp}, v{vAo}, vcc")
    odd = lambda a, b: [x for x in range(a, b) if x & 1]
    for t_ in (5, 6, 7):
        ex = base_ex("0x8000")
        ex.setdefault(4, []).append(f"v_xor_b32 v{vWpA}, {((t_&3)<<5)|((t_&4)<<10)}, v{vWpB}")
        if t_ == 5:
            ex[(26, "pre")] = ["s_waitcnt vmcnt(12)", "s_barrier"]
            for sl, its in zip(range(5, 40), spread(PA.lines, 35)): ex.setdefault((sl, "post"), []).extend(its)
            put(ex, [41], [f"global_load_dwordx2 {vr(vPa,2)}, v{vAa}, s[{pFl}:{pFl+1}] sc1"])
            put(ex, list(range(42, 64)), q_setup())
        elif t_ == 6:
            B_ = Asm(); B_("s_waitcnt vmcnt(1)"); flag_wait(B_, f"{L}w1", 1, [(vPa, vAa)]); B_("s_barrier")
            ex[(26, "pre")] = B_.lines
            put(ex, odd(31, 64), q_loads(0) + q_loads(1)[:6])
        else:
            ex[(26, "pre")] = ["s_barrier"]
            put(ex, [1, 3, 5, 7, 9, 11, 15, 17, 19, 21, 23, 25, 27, 31], q_loads(1)[6:] + q_loads(2)[:7])
        attn_seg(A, lq, 0, ex)
        attn_seg(A, lq, 1, ex, look=(True if t_ < 7 else [1]))
        if t_ < 7:
            attn_seg(A, lq, 2, ex)
            attn_seg(A, lq, 3, ex)
    ex = {}
    put(ex, [33, 37, 41, 45, 49, 53, 57], q_loads(2)[7:])
    attn_seg(A, lq, 2, ex, mfma=False, look=[3])
    attn_seg(A, lq, 3, ex, sm_hi=54, look=[3])
    stamp(5)
    if "fine2" in XP:
        A(f"s_lshl_b32 s96, s2, 2"); A(f"s_add_u32 s96, s96, s{sWave}"); A("s_lshl_b32 s96, s96, 10")
        A(f"v_lshl_add_u32 v227, v{vLane}, 2, s96")
        A(f"s_add_u32 s96, s{pWs}, 0x3200000"); A(f"s_addc_u32 s97, s{pWs+1}, 0")
        for i in range(3): A(f"global_store_dword v227, v{224+i}, s[96:97] offset:{256*i}")
    A(f"v_mov_b32 v{t}, v{vL}")
    A(f"v_mov_b32 v{t+1}, v{vL+1}")
    A(f"v_bfe_u32 v{t+2}, v{vLane}, 4, 1")
    A(f"v_lshrrev_b32 v{t+3}, 5, v{vLane}")
    A(f"v_permlane32_swap_b32 v{t}, v{vL}")
    A(f"v_permlane32_swap_b32 v{t+1}, v{vL+1}")
    A(f"v_lshlrev_b32 v{t+3}, 8, v{t+3}")
    A(f"v_add_f32 v{vL}, v{vL}, v{t}")
    A(f"v_add_f32 v{vL+1}, v{vL+1}, v{t+1}")
    A(f"v_lshl_add_u32 v{t+3}, v{t+2}, 10, v{t+3}")
    A(f"v_and_b32 v{t+2}, 15, v{vLane}")
    A(f"v_lshl_add_u32 v{vOo}, v{t+2}, 4, v{t+3}")
    A(f"v_mov_b32 v{t+8}, {hex(f2u(2.0**-40))}")
    A(f"v_mov_b32 v{t+9}, {hex(f2u(2.0**40))}")
    A(f"v_cmp_gt_f32 s[{sE0}:{sE0+1}], v{vL}, v{t+8}")
    A(f"v_cmp_lt_f32 s[{sE0+2}:{sE0+3}], v{vL}, v{t+9}")
    A(f"v_cmp_gt_f32 s[4:5], v{vL+1}, v{t+8}")
    A(f"v_cmp_lt_f32 s[6:7], v{vL+1}, v{t+9}")
    A(f"v_rcp_f32 v{t}, v{vL}")
    A(f"v_rcp_f32 v{t+1}, v{vL+1}")
    A("s_nop 1")
    A(f"s_and_b64 s[{sE0}:{sE0+1}], s[{sE0}:{sE0+1}], s[{sE0+2}:{sE0+3}]")
    A(f"s_and_b64 s[4:5], s[4:5], s[6:7]")
    A(f"s_and_b64 s[4:5], s[4:5], s[{sE0}:{sE0+1}]")
    A(f"s_cmp_eq_u64 s[4:5], exec")
    if not XP: A(f"s_cbranch_scc0 {L}slow ; slowbr")
    A(f"{L}oep:")
    A(f"s_lshl_b32 s6, s{sHead}, 14")
    n = 0
    for dt in range(4):
        for qt in range(2):
            b = vS + (n % 4) * 16; pk = vP + (n % 4) * 8; n += 1
            for i in range(16): A(f"v_accvgpr_read_b32 v{b+i}, a{aO+(qt*4+dt)*16+i}")
            for i in range(8):
                A(f"v_pk_mul_f32 {vr(b+2*i,2)}, {vr(b+2*i,2)}, {vr(t,2)} " + ("op_sel_hi:[1,0]" if qt == 0 else "op_sel:[0,1]"))
            for i in range(8): A(f"v_cvt_pk_bf16_f32 v{pk+i}, v{b+2*i}, v{b+2*i+1}")
            for j in range(2):
                A(f"buffer_store_dwordx4 {vr(pk+4*j,4)}, v{vOo}, s[{sA}:{sA+3}], s6 offen offset:{qt*2048+j*512} sc1 ; @put H")
        if dt < 3: A("s_add_u32 s6, s6, 4096")
    stamp(6); stamp(7)
    gemm2(A, L, emit, stamp)
    A(f"{L}end:")
    A("s_endpgm")
    A(f"{L}slow:")
    A("s_waitcnt vmcnt(0) lgkmcnt(0)")
    srd(A, sK, pK, pK + 1, 16777216)
    srd(A, sV, pV, pV + 1, 16777216)
    kv_dma_voff(A, vKd, vVd)
    A(f"s_lshl_b32 s{sT1}, s{sWave}, 13")
    A(f"s_add_u32 s{sT1}, s{sT1}, {R2}")
    kv_addr(A, sT1)
    for dt in range(4): A(f"v_add_u32 v{vVr+dt}, {R4-R2-16384}, v{vVr+dt}")
    vM = vTm + 6
    A(f"v_mov_b32 v{vM}, 0xff800000")
    A(f"v_mov_b32 v{vM+1}, 0xff800000")
    A(f"v_mov_b32 v{vL}, 0")
    A(f"v_mov_b32 v{vL+1}, 0")
    for i in range(4): A(f"v_mov_b32 v{vTm+12+i}, 0")
    A("s_nop 1")
    for i in range(8): mf32(A, ar(aO + 16 * i, 16), vr(vTm + 12, 4), vr(vTm + 12, 4), "0")
    A(f"s_mov_b32 s{sT}, 0")
    A(f"{L}sl:")
    A(f"s_and_b32 s{sT0}, s{sT}, 15")
    A(f"s_lshl_b32 s{sT0}, s{sT0}, 13")
    A(f"s_lshl_b32 s{sKVo}, s{sHead}, 19")
    A(f"s_add_u32 s{sKVo}, s{sKVo}, s{sT0}")
    A(f"s_add_u32 s{sKVo}, s{sKVo}, {1536*256}")
    for hf in range(2):
        A(f"s_add_u32 m0, s{sT1}, {hf*4096}")
        A("s_nop 0")
        for j in range(4): A(f"buffer_load_dwordx4 v{vKd+j}, s[{sK}:{sK+3}], s{sKVo} offen offset:{j*1024} lds")
        A(f"s_add_u32 m0, s{sT1}, {R4-R2+hf*4096}")
        A("s_nop 0")
        for j in range(4): A(f"buffer_load_dwordx4 v{vVd}, s[{sV}:{sV+3}], s{sKVo} offen offset:{j*1024} lds")
        if hf == 0: A(f"s_add_u32 s{sKVo}, s{sKVo}, 4096")
    A("s_waitcnt vmcnt(0)")
    for p in range(8):
        A(kread(p, 0, p % 4))
        A("s_waitcnt lgkmcnt(0)")
        for qt in range(2): mf32(A, vr(vS + qt * 16, 16), vr(vF + (p % 4) * 4, 4), vr(vQ + (qt * 8 + p) * 4, 4), "0" if p == 0 else None)
    A("s_nop 11")
    A(f"s_cmp_ge_u32 s{sT}, 16")
    A(f"s_cbranch_scc1 {L}sl2")
    for qt in range(2):
        for i in range(8): A(f"v_max3_f32 v{vM+qt}, v{vS+qt*16+2*i}, v{vS+qt*16+2*i+1}, v{vM+qt}")
    A(f"s_cmp_lg_u32 s{sT}, 15")
    A(f"s_cbranch_scc1 {L}sl3")
    A(f"v_mov_b32 v{vM+2}, v{vM}")
    A(f"v_mov_b32 v{vM+3}, v{vM+1}")
    A("s_nop 1")
    A(f"v_permlane32_swap_b32 v{vM+2}, v{vM}")
    A(f"v_permlane32_swap_b32 v{vM+3}, v{vM+1}")
    A(f"v_max_f32 v{vM}, v{vM}, v{vM+2}")
    A(f"v_max_f32 v{vM+1}, v{vM+1}, v{vM+3}")
    A(f"s_branch {L}sl3")
    A(f"{L}sl2:")
    for e in range(32):
        r, qt, ks = sm_reg(0, e)
        A(f"v_sub_f32 v{r}, v{r}, v{vM+qt}")
        A(f"v_exp_f32 v{r}, v{r}")
        A("s_nop 0")
        for x in sm_post(0, e): A(x)
    for i in range(8):
        for sec in range(2): A(vread(i // 4, i % 4, 0, sec, i % 4))
        A("s_waitcnt lgkmcnt(0)")
        for qt in range(2): mf32(A, ar(aO + (qt * 4 + i % 4) * 16, 16), vr(vF + (i % 4) * 4, 4), vr(vP + (qt * 2 + i // 4) * 4, 4))
    A(f"{L}sl3:")
    A(f"s_add_u32 s{sT}, s{sT}, 1")
    A(f"s_cmp_lt_u32 s{sT}, 32")
    A(f"s_cbranch_scc1 {L}sl")
    A(f"v_mov_b32 v{t}, v{vL}")
    A(f"v_mov_b32 v{t+1}, v{vL+1}")
    A("s_nop 1")
    A(f"v_permlane32_swap_b32 v{t}, v{vL}")
    A(f"v_permlane32_swap_b32 v{t+1}, v{vL+1}")
    A(f"v_add_f32 v{vL}, v{vL}, v{t}")
    A(f"v_add_f32 v{vL+1}, v{vL+1}, v{t+1}")
    A(f"v_rcp_f32 v{t}, v{vL}")
    A(f"v_rcp_f32 v{t+1}, v{vL+1}")
    A("s_nop 7")
    A(f"s_branch {L}oep")
    kd(A, name, 512, 256)

def checks(A, entry):
    if XP: return
    nb = check_hazards(A.lines)
    tot = 0
    for wg in (0, 5, 6, 31, 24, 28, 255):
        for w in (0, 1, 3):
            for slow in (0, 1):
                def hk(x, S):
                    if x.opn == "v_readfirstlane_b32" and "tag" not in x.text:
                        S[sWave] = w
                    if "slowbr" in x.text: return slow
                    if "pollbr" in x.text: return 1
                p, c = check_waits(A.lines, entry, {2: wg}, hk)
                tot += p
    print("hazards:", nb, "waits:", tot, c)

def build(fn, stamps=False):
    HDR = open("cdna_kernels/" + NAME + ".s.ref").read().split("; Override")[0]
    A = Asm()
    A(HDR)
    A(f"; @launch grid=(256,1,1) block=(256,1,1) lds={P1_LDS}")
    A('.amdgcn_target "amdgcn-amd-amdhsa--gfx950"')
    A(".text")
    gen_p1(A, NAME + "_kernel", stamps=stamps)
    checks(A, NAME + "_kernel")
    if "hplain" in XP: A.lines = [l.replace(" sc1", "") if ("store" in l and f"s[{sA}:{sA+3}], s6 " not in l and f"s[{sA}:{sA+3}]" in l) else l for l in A.lines]
    if "oplain" in XP: A.lines = [l.replace(" sc1", "") if ("store" in l and f"s[{sA}:{sA+3}], s6 " in l) else l for l in A.lines]
    if "iplain" in XP: A.lines = [l.replace(" sc1", "") if ("store" in l and f"s[{qI}:{qI+3}], s{sT0}" in l) else l for l in A.lines]
    if "nt" in XP: A.lines = [l.replace(" sc1", " sc1 nt") if ("buffer_store" in l) else l for l in A.lines]
    if "sc01" in XP: A.lines = [l.replace(" sc1", " sc0 sc1") if ("buffer_store" in l) else l for l in A.lines]
    open(fn, "w").write(A.text())
if __name__ == "__main__":
    build("fu.s")
    build("fu_st.s", stamps=True)
```

```python
from asmlib import *
from common import *

P1_LDS = 163840
R0, R1, R2, R3, R4 = 0, 32768, 65536, 98304, 131072
CS = R3
TAILBIT = 0x30000
ROT = False
TLBW = True
FLAG = 'byte'
FINE = False
EVMASK = 0x180
vFin = 60
XP = set()

class LQ:
    def __init__(s): s.q = []
    def issue(s, tag): s.q.append(tag)
    def wait(s, A, tags):
        idx = max([i for i, t in enumerate(s.q) if t in tags], default=-1)
        if idx < 0: return
        n = len(s.q) - 1 - idx
        assert n <= 15
        A(f"s_waitcnt lgkmcnt({n})")
        s.q = s.q[idx + 1:]
    def clear(s): s.q = []

sX, sWq, sW1, sW3, sK, sV, sA, sWp, sSrc, sSt = 8, 12, 16, 20, 24, 28, 32, 36, 40, 44
sWave, sHead, sRb, sFb, sHasF = 48, 49, 50, 51, 52
sXo, sWqo, sW13o, sM0X, sM0W, sD, sTail, sSlot = 53, 54, 55, 56, 57, 58, 59, 60
sT0, sT1, sT2 = 61, 62, 63
pX, pK, pV, pWq, pWo, pBx, pW1, pW3, pW2, pOut, pDbg, pWs = range(64, 88, 2)
sKVo, sKVm, sDelta, sT, sU, sMask, sXb, sC0 = 88, 89, 90, 91, 92, 93, 94, 95
sX2, sM0d, sXst, sM0t, sProd, sPo = 76, 74, 75, 3, 4, 5
sE0 = 96
vLane = 1
vXd, vWqd, vW13d, vXr, vWqr, vW13r = 2, 10, 12, 13, 15, 23
vZero = 27
vSt = 28
vTm = 44
vQ = 64
vAcc = 128
aG, aUp, aCs, aXf, aWf, aOne, aWp = 0, 64, 128, 144, 176, 192, 196
vKr, vVr, vKd, vVd, vL, vOo = 2, 10, 14, 18, 22, 24
vS, vP, vF = 128, 192, 208
aO = 128
sNo = 100
pFl = 84
qA, qW, qX, qO, qI = 8, 12, 16, 20, 44
qP, qG, qAo, qWo, qWm, qN, qAs, qWs = 53, 54, 55, 56, 57, 58, 51, 60
qAe, qWe, qNl, qSo, qXo, qRb, qCb, qT0, qT1, qIn = 74, 75, 3, 93, 94, 76, 77, 78, 79, 24
vFo, vFv, vPa, vPb, vAa, vAb, vAo, vAp = 25, 28, 30, 32, 34, 35, 36, 37
vL16, vWr2, vXo2, vL8, vOwn = 54, 2, 4, 5, 6
aA2, aW2, aWq = 0, 64, 64
RING2 = 81920
TOUCH = 0
SPL = (1, 1)
OPT = set()
vTch, sTch = 26, 92
vOnes = 40
vWpB, vWpA = 38, 39
sWpO, sSen = 5, 4


def mf16(A, d, a, b, c=None):
    A(f"v_mfma_f32_16x16x32_bf16 {d}, {a}, {b}, {d if c is None else c}")
def mf32(A, d, a, b, c=None):
    A(f"v_mfma_f32_32x32x16_bf16 {d}, {a}, {b}, {d if c is None else c}")

def spread(items, nslots):
    out = [[] for _ in range(nslots)]
    n = len(items)
    for i, it in enumerate(items):
        out[min(nslots - 1, (i * nslots) // n)].append(it)
    return out

def frag_list(ffn):
    fr = [("Q", p) for p in range(8)]
    if ffn:
        for p in range(4): fr += [("G", p), ("U", p)]
    return fr

def wread(fr, k, sec, buf):
    c, p = fr
    if c == "Q": ad, off = vWqr + p, sec * 1024
    else: ad, off = vW13r + p, (2048 if c == "G" else 3072) + sec * 512
    return f"ds_read_b64_tr_b16 {ar(aWf+buf*4+2*sec,2)}, v{ad} offset:{off + k*16384}"

def xread(s, st, rt):
    return f"ds_read_b128 {ar(aXf+st*16+rt*4,4)}, v{vXr+s} offset:{rt*2048}"

def dma_w(ffn, force=False):
    it = [f"s_max_u32 m0, s{sM0W}, s{sTail}",
          f"buffer_load_dwordx4 v{vWqd}, s[{sWq}:{sWq+3}], s{sWqo} offen lds ; @put W",
          f"buffer_load_dwordx4 v{vWqd+1}, s[{sWq}:{sWq+3}], s{sWqo} offen offset:1024 lds ; @put W"]
    if ffn or force:
        it += [f"buffer_load_dwordx4 v{vW13d}, s[{sW1}:{sW1+3}], s{sW13o} offen offset:2048 lds ; @put W",
               f"buffer_load_dwordx4 v{vW13d}, s[{sW3}:{sW3+3}], s{sW13o} offen offset:3072 lds ; @put W"]
    it += [f"s_add_u32 s{sWqo}, s{sWqo}, {32*8192}"]
    if ffn or force: it += [f"s_add_u32 s{sW13o}, s{sW13o}, {32*3456}"]
    it += [f"s_add_u32 s{sSlot}, s{sSlot}, 16384\ns_and_b32 s{sSlot}, s{sSlot}, 0xffff",
           f"s_add_u32 s{sM0W}, s{sSlot}, s{sC0}"]
    return it

def dma_x(half):
    if half == 0: it = [f"s_mov_b32 m0, s{sM0X}"]
    else: it = [f"s_add_u32 m0, s{sM0X}, s{sM0d}"]
    sd = sX if half == 0 else sX2
    for j in range(4):
        it.append(f"buffer_load_dwordx4 v{vXd+4*half+j}, s[{sd}:{sd+3}], s{sXo} offen offset:{j*1024} lds")
    if half: it += [f"s_add_u32 s{sXo}, s{sXo}, s{sXst}\ns_xor_b32 s{sM0X}, s{sM0X}, s{sM0t}"]
    return it

def fine(A):
    A("s_memtime s[98:99]"); A("s_waitcnt lgkmcnt(0)")
    A("s_mov_b32 m0, s7")
    A(f"v_writelane_b32 v{vFin}, s96, m0")
    A(f"v_writelane_b32 v{vFin+1}, s100, m0")
    A(f"v_writelane_b32 v{vFin-1}, s98, m0")
    A("s_add_u32 s7, s7, 1")

def gemm_loop(A, ffn, L):
    fr = frag_list(ffn); nf = len(fr)
    nw = 4 if ffn else 2
    ones = {("Q", 0): 0, ("Q", 1): 1, ("G", 0): 2, ("U", 0): 3}
    lq = LQ()
    for f in range(3):
        lq.issue(("w", f)); lq.issue(("w", f))
    A(".p2align 6")
    A(f"{L}:")
    for k in range(2):
        if k == 1:
            A(f"s_bitcmp1_b32 s{sMask}, s{sD}")
            A(f"s_cbranch_scc1 {L}_ev")
            A(f"{L}_evret:")
        if k == 0:
            items = [("x", rt) for rt in range(4)] + dma_x(1) + dma_w(ffn)
            slots = spread(items, 2 * (nf - 2))
            tog = {2: [f"v_xor_b32 v{vXr}, 0x18000, v{vXr}"]}
        else:
            items = dma_x(0) + dma_w(ffn) + [f"s_add_u32 s{sD}, s{sD}, 1"]
            slots = spread(items, 2 * (nf - 5))
            slots += [[f"s_cmp_eq_u32 s{sD}, 10\ns_cbranch_scc1 {L}_nw\ns_waitcnt vmcnt({2*nw+4})\n{L}_nw:"],
                      [("x", 0)], [("x", 1)], [("x", 2)], [("x", 3)], []]
            tog = {0: [f"v_xor_b32 v{vXr+1}, 0x18000, v{vXr+1}"]}
            for f, (c, p) in enumerate(fr):
                if c == "G": continue
                reg = vWqr + p if c == "Q" else vW13r + p
                tog.setdefault(max(f - 3, -1) + 1, []).append(f"v_xor_b32 v{reg}, 0x38000, v{reg}")
        for f in range(nf):
            c, p = fr[f]
            lq.wait(A, [("w", f)] + ([("x", k)] if f == 0 else []))
            buf = f % 4
            for rt in range(4):
                r_ = rt if f % 2 == 0 else 3 - rt
                if c == "Q": d = vr(vAcc + (p * 4 + r_) * 4, 4)
                else: d = ar((aG if c == "G" else aUp) + (p * 4 + r_) * 4, 4)
                mf16(A, d, ar(aWf + buf * 4, 4), ar(aXf + k * 16 + r_ * 4, 4))
                if f + 3 < nf and rt < 2:
                    A(wread(fr[f + 3], k, rt, (f + 3) % 4)); lq.issue(("w", f + 3))
                if f == nf - 2:
                    A(wread(fr[rt // 2], 1 - k, rt % 2, (rt // 2) % 4)); lq.issue(("w", rt // 2))
                if f == nf - 1 and rt < 2:
                    A(wread(fr[2], 1 - k, rt, 2)); lq.issue(("w", 2))
                if rt >= 2 and f < nf - 2:
                    for it in slots[2 * f + rt - 2]:
                        if isinstance(it, tuple):
                            A(xread(1 - k, 1 - k, it[1]) + (" ; @chkx" if k == 1 else "")); lq.issue(("x", 1 - k))
                        else:
                            if "lds" in it and A.lines[-1].split()[1].startswith("m0"): A("s_nop 0")
                            A(it)
                if rt == 3:
                    for t in tog.get(f, []): A(t)
            if fr[f] in ones:
                mf16(A, ar(aCs + ones[fr[f]] * 4, 4), ar(aWf + buf * 4, 4), ar(aOne, 4))
            if f == nf - 3:
                n = 2 * nw + 8
                if FINE:
                    A("s_memtime s[96:97]"); A("s_waitcnt lgkmcnt(0)")
                A(f"s_waitcnt vmcnt({n}) lgkmcnt(0)")
                lq.clear()
                if FINE:
                    A("s_memtime s[100:101]"); A("s_waitcnt lgkmcnt(0)")
                A(f"s_barrier")
                if FINE: fine(A)
    A(f"s_cmp_lt_u32 s{sD}, 10")
    A(f"s_cbranch_scc1 {L}")
    assert lq.q == [("w", 0), ("w", 0), ("w", 1), ("w", 1), ("w", 2), ("w", 2)], lq.q

def kv_dma_voff(A, kd_, vd_, nv=4):
    t = vTm
    A(f"v_lshrrev_b32 v{t+12}, 4, v{vLane}")
    A(f"v_and_b32 v{t+14}, 15, v{vLane}")
    A(f"v_xor_b32 v{t+13}, v{t+14}, v{t+12}")
    A(f"v_lshlrev_b32 v{t+13}, 4, v{t+13}")
    A(f"v_lshl_add_u32 v{kd_}, v{t+12}, 8, v{t+13}")
    for j in range(1, 4): A(f"v_xor_b32 v{kd_+j}, {64*j}, v{kd_}")
    A(f"v_lshlrev_b32 v{t+13}, 2, v{t+12}")
    A(f"v_xor_b32 v{t+13}, v{t+13}, v{t+14}")
    A(f"v_lshlrev_b32 v{t+13}, 4, v{t+13}")
    A(f"v_lshl_add_u32 v{vd_}, v{t+12}, 8, v{t+13}")
    for j in range(1, nv): A(f"v_mov_b32 v{vd_+j}, v{vd_}")

def gemm_events(A, L):
    A(f"{L}_ev:")
    A(f"s_cmp_eq_u32 s{sD}, 8")
    A(f"s_cbranch_scc1 {L}_ev8")
    A(f"global_load_dword v{vTm}, v{vTm+2}, s[{pDbg}:{pDbg+1}] sc1")
    A(f"global_load_dwordx2 {vr(vTm+4,2)}, v{vTm+6}, s[{pDbg}:{pDbg+1}] offset:128 sc1")
    A(f"s_branch {L}_evret")
    A(f"{L}_ev8:")
    A(f"s_mov_b32 s{sTail}, {TAILBIT}")
    for d in (sWq, sW1, sW3): A(f"s_mov_b32 s{d+2}, 0")
    for d, s_ in ((sX, sK), (sX2, sV)):
        A(f"s_mov_b64 s[{d}:{d+1}], s[{s_}:{s_+1}]")
        A(f"s_mov_b64 s[{d+2}:{d+3}], s[{s_+2}:{s_+3}]")
    for j in range(8): A(f"v_mov_b32 v{vXd+j}, v{vQ+min(j,4)}")
    A(f"s_lshl_b32 s{sM0X}, s{sWave}, 12")
    A(f"s_mov_b32 s{sXo}, s{sKVo}")
    A(f"s_movk_i32 s{sM0d}, 16384")
    A(f"s_movk_i32 s{sXst}, 16384")
    A(f"s_mov_b32 s{sM0t}, 0x8000")
    A(f"s_mov_b32 s{sT1}, 0")
    A(f"s_waitcnt vmcnt(12)")
    A(f"{L}_chk:")
    A(f"v_cmp_ne_u32 vcc, 0x01010101, v{vTm}")
    A(f"v_cmp_eq_u32 s[6:7], 0, v{vTm+5}")
    A("s_nop 3")
    A(f"s_or_b64 s[6:7], s[6:7], vcc")
    A(f"s_cbranch_scc0 {L}_rdy ; pollbr")
    A(f"s_add_u32 s{sT1}, s{sT1}, 1")
    A(f"s_cmp_ge_u32 s{sT1}, 0x40000")
    A(f"s_cbranch_scc1 {L}_rdy")
    A("s_sleep 2")
    A(f"global_load_dword v{vTm}, v{vTm+2}, s[{pDbg}:{pDbg+1}] sc1")
    A(f"global_load_dwordx2 {vr(vTm+4,2)}, v{vTm+6}, s[{pDbg}:{pDbg+1}] offset:128 sc1")
    A("s_waitcnt vmcnt(0)")
    A(f"s_branch {L}_chk")
    A(f"{L}_rdy:")
    A(f"v_readfirstlane_b32 s{sNo}, v{vTm+4} ; tag")
    A(f"v_readfirstlane_b32 s{sNo+1}, v{vTm+5} ; tag")
    A(f"s_add_u32 s{pFl}, s{pWs}, {FL_OFF}")
    A(f"s_addc_u32 s{pFl+1}, s{pWs+1}, 0")
    A(f"s_lshl2_add_u32 s{sT0}, s{sRb}, s{sWave}")
    A(f"s_lshl_b32 s{sT0}, s{sT0}, 10")
    for rt in range(4):
        A(f"buffer_load_dwordx4 {vr(vSt+4*rt,4)}, v{vTm+3}, s[{sSt}:{sSt+3}], s{sT0} offen offset:{rt*256} sc1")
    A(f"s_branch {L}_evret")

def kv_addr(A, base_expr_sgpr):
    t0, t1, t2, t3 = vTm + 12, vTm + 13, vTm + 14, vTm + 15
    A(f"v_and_b32 v{t0}, 31, v{vLane}")
    A(f"v_lshrrev_b32 v{t1}, 5, v{vLane}")
    A(f"v_and_b32 v{t2}, 15, v{vLane}")
    A(f"v_xor_b32 v{t2}, v{t2}, v{t1}")
    A(f"s_lshl_b32 s{sT0}, s{sWave}, 2")
    A(f"v_xor_b32 v{t2}, s{sT0}, v{t2}")
    A(f"v_lshlrev_b32 v{t2}, 4, v{t2}")
    A(f"v_lshl_add_u32 v{t2}, v{t0}, 8, v{t2}")
    A(f"v_add_u32 v{vKr}, s{base_expr_sgpr}, v{t2}")
    for p in range(1, 8): A(f"v_xor_b32 v{vKr+p}, {32*p}, v{vKr}")
    A(f"v_bfe_u32 v{t0}, v{vLane}, 2, 2")
    A(f"v_lshl_add_u32 v{t2}, v{t1}, 2, v{t0}")
    A(f"v_lshlrev_b32 v{t2}, 8, v{t2}")
    A(f"v_lshl_add_u32 v{t2}, v{t0}, 6, v{t2}")
    A(f"v_bfe_u32 v{t3}, v{vLane}, 1, 1")
    A(f"v_lshl_add_u32 v{t2}, v{t3}, 5, v{t2}")
    A(f"v_bfe_u32 v{t3}, v{vLane}, 4, 1")
    A(f"v_lshl_add_u32 v{t2}, v{t3}, 4, v{t2}")
    A(f"v_and_b32 v{t3}, 1, v{vLane}")
    A(f"v_lshl_add_u32 v{t2}, v{t3}, 3, v{t2}")
    A(f"s_add_u32 s{sT0}, s{base_expr_sgpr}, 16384")
    A(f"v_add_u32 v{vVr}, s{sT0}, v{t2}")
    for dt in range(1, 4): A(f"v_xor_b32 v{vVr+dt}, {64*dt}, v{vVr}")

def kv_dma():
    it = [f"s_mov_b32 m0, s{sKVm}"]
    for j in range(4):
        it.append(f"buffer_load_dwordx4 v{vKd+j}, s[{sK}:{sK+3}], s{sKVo} offen offset:{j*1024} lds")
    it.append("s_add_u32 m0, m0, 16384")
    for j in range(4):
        it.append(f"buffer_load_dwordx4 v{vVd+j}, s[{sV}:{sV+3}], s{sKVo} offen offset:{j*1024} lds")
    return it

def kread(p, tile, buf):
    return f"ds_read_b128 {vr(vF+buf*4,4)}, v{vKr+p} offset:{tile*8192}"
def vread(ks, dt, tile, sec, buf):
    return f"ds_read_b64_tr_b16 {vr(vF+buf*4+2*sec,2)}, v{vVr+dt} offset:{(32*tile+16*ks+8*sec)*256}"

def sm_reg(buf, e):
    qt = (e >> 3) & 1; ks = e >> 4
    return vS + (buf * 2 + qt) * 16 + ks * 8 + (e & 7), qt, ks
def sm_exp(buf, e):
    r, _, _ = sm_reg(buf, e)
    if "noexp" in XP: return []
    if "movexp" in XP: return [f"v_mov_b32 v{r}, v{r}"]
    return [f"v_exp_f32 v{r}, v{r}"]
def sm_post(buf, e):
    r, qt, ks = sm_reg(buf, e)
    o = [f"v_add_f32 v{vL+qt}, v{vL+qt}, v{r}"]
    if "noadd" in XP: o = []
    if e & 1 and "nocvt" not in XP: o.append(f"v_cvt_pk_bf16_f32 v{vP+(qt*2+ks)*4+((e&7)>>1)}, v{r-1}, v{r}")
    return o

def attn_seg(A, lq, seg, extra, mfma=True, sm_lo=0, sm_hi=64, look=True):
    def rd(phi, part):
        s = (phi // 8) % 4; i = phi % 8; buf = phi % 4
        if s in (0, 2):
            return kread(i, 1 if s == 0 else 0, buf) if part == 0 else None
        return vread(i // 4, i % 4, 0 if s == 1 else 1, part, buf)
    for i in range(8):
        phi = seg * 8 + i
        if mfma and "nowait" not in XP: lq.wait(A, [("f", phi)])
        for qt in range(2):
            slot = seg * 16 + 2 * i + qt
            if mfma:
                if seg in (0, 2):
                    sb = 1 if seg == 0 else 0
                    d = vr(vS + (sb * 2 + qt) * 16, 16)
                    mf32(A, d, vr(vF + (phi % 4) * 4, 4), vr(vQ + (qt * 8 + i) * 4, 4), "0" if i == 0 else None)
                else:
                    ks, dt = i // 4, i % 4
                    mf32(A, ar(aO + (qt * 4 + dt) * 16, 16), vr(vF + (phi % 4) * 4, 4), vr(vP + (qt * 2 + ks) * 4, 4))
            for it in extra.get((slot, "pre"), []): A(it)
            nphi = (phi + 3) % 32
            nseg = nphi // 8
            if look is True or nseg in look:
                r = rd(nphi, qt)
                if r and "noread" not in XP: A(r); lq.issue(("f", nphi))
            for it in extra.get((slot, "ds"), []):
                A(it); lq.issue(("side", 0))
            for it in extra.get(slot, []):
                if it.startswith("v_"): continue
                if "lds" in it and A.lines[-1].split()[1].startswith("m0"): A("s_nop 0")
                A(it)
            for (buf, start) in ((1, 22), (0, 54)):
                e = (slot - start) % 64
                if e < 32 and (buf, "exp") in sm_ok(slot, sm_lo, sm_hi, buf, e):
                    for x in sm_exp(buf, e): A(x)
            for (buf, start) in ((1, 22), (0, 54)):
                e = (slot - start - 1) % 64
                if e < 32 and (buf, "exp") in sm_ok((slot - 1) % 64, sm_lo, sm_hi, buf, e):
                    for x in sm_post(buf, e): A(x)
            for it in extra.get(slot, []):
                if it.startswith("v_"): A(it)
            for it in extra.get((slot, "post"), []): A(it)
def sm_ok(slot, lo, hi, buf, e):
    return {(buf, "exp")} if (lo <= slot < hi) else set()

def wp_src_voff(A, d):
    t = vTm
    A(f"v_lshrrev_b32 v{t+12}, 4, v{vLane}")
    A(f"v_lshlrev_b32 v{t+12}, 1, v{t+12}")
    A(f"v_and_b32 v{t+13}, 7, v{vLane}")
    A(f"v_xor_b32 v{t+12}, v{t+12}, v{t+13}")
    A(f"v_lshlrev_b32 v{t+12}, 4, v{t+12}")
    A(f"v_lshrrev_b32 v{t+13}, 3, v{vLane}")
    A(f"v_mul_u32_u24 v{t+13}, 1280, v{t+13}")
    A(f"v_add_u32 v{d}, v{t+12}, v{t+13}")
    for j in range(1, 8): A(f"v_add_u32 v{d+j}, {(j%4)*9216 + (j//4)*128}, v{d}")

def wp_addr(A, sh, note="", reg=R3, n=4, dst=None):
    t = vTm
    A(f"v_bfe_u32 v{t+14}, v{vLane}, 2, 2")
    A(f"v_bfe_u32 v{t+16}, v{vLane}, 4, 1")
    A(f"v_lshl_add_u32 v{t+14}, v{t+16}, 2, v{t+14}")
    A(f"v_lshrrev_b32 v{t+13}, 1, v{t+14}")
    A(f"v_lshlrev_b32 v{t+13}, 5, v{t+13}")
    A(f"v_lshl_add_u32 v{t+13}, v{t+14}, 7, v{t+13}")
    A(f"v_lshrrev_b32 v{t+15}, 5, v{vLane}")
    A(f"v_lshl_add_u32 v{t+13}, v{t+15}, 10, v{t+13}")
    A(f"v_and_b32 v{t+15}, 3, v{vLane}")
    A(f"v_lshl_add_u32 v{t+13}, v{t+15}, 3, v{t+13}")
    A(f"s_lshl_b32 s6, s{sWave}, {sh}")
    A(f"s_add_u32 s6, s6, {reg}")
    A(f"v_add_u32 v{dst or t+4}, s6, v{t+13}{note}")
    for i4 in range(1, n): A(f"v_xor_b32 v{t+4+i4}, {32*i4}, v{t+4}")
def wp_reads(A, stride):
    for su in range(2):
        for i4 in range(4):
            for sec in range(2):
                A(f"ds_read_b64_tr_b16 {ar(aWq+(su*4+i4)*4+2*sec,2)}, v{vTm+4+i4} offset:{su*stride+sec*2048}")
def wp_stores(A, so):
    for su in range(2):
        for i4 in range(4):
            A(f"buffer_store_dwordx4 {ar(aWq+(su*4+i4)*4,4)}, v{vL16}, s[{sWp}:{sWp+3}], s{so} offen offset:{i4*1024} sc1")
        if su == 0: A(f"s_add_u32 s{so}, s{so}, 4096")

def set_flag(A, phase, lab, cls="H"):
    A(f"s_cmp_lg_u32 s{sWave}, 0")
    A(f"s_cbranch_scc1 {lab}")
    A(f"s_add_u32 s6, s{sNo}, {phase}")
    A(f"v_mov_b32 v{vFv}, s6")
    A(f"v_mov_b32 v{vFv+1}, s{sNo+1}")
    A("s_mov_b64 exec, 1")
    A(f"global_store_dwordx2 v{vFo}, {vr(vFv,2)}, s[{pFl}:{pFl+1}] sc1")
    A("s_mov_b64 exec, -1")
def flag_load(A, dst, ad):
    A(f"global_load_dwordx2 {vr(dst,2)}, v{ad}, s[{pFl}:{pFl+1}] sc1")
def flag_wait(A, lab, phase, polls):
    A(f"s_add_u32 s{sT0}, s{sNo}, {phase}")
    A(f"s_mov_b32 s{sT1}, 0")
    A(f"{lab}c:")
    for n, (d, ad) in enumerate(polls):
        A(f"v_subrev_u32 v{d}, s{sT0}, v{d}")
        A(f"v_cmp_ne_u32 s[{sE0+2*n}:{sE0+2*n+1}], s{sNo+1}, v{d+1}")
    for n, (d, ad) in enumerate(polls):
        A(f"v_cmp_lt_u32 " + ("vcc" if n == 0 else "s[6:7]") + f", {3-phase}, v{d}")
    A("s_nop 3")
    A(f"s_or_b64 s[{sE0}:{sE0+1}], s[{sE0}:{sE0+1}], vcc")
    if len(polls) > 1:
        A(f"s_or_b64 s[6:7], s[6:7], s[{sE0+2}:{sE0+3}]")
        A(f"s_or_b64 s[{sE0}:{sE0+1}], s[{sE0}:{sE0+1}], s[6:7]")
    A(f"s_cbranch_scc0 {lab}r ; pollbr")
    A(f"s_add_u32 s{sT1}, s{sT1}, 1")
    A(f"s_cmp_ge_u32 s{sT1}, 0x40000")
    A(f"s_cbranch_scc1 {lab}r")
    for d, ad in polls: flag_load(A, d, ad)
    A("s_waitcnt vmcnt(0)")
    A(f"s_branch {lab}c")
    A(f"{lab}r:")

def q_setup():
    w = sWave
    return [
     f"s_lshl_b32 s6, s{qP}, 3\ns_lshr_b32 s{qT0}, {hex(0x402b1600)}, s6\ns_and_b32 s{qT0}, s{qT0}, 0xff",
     f"s_lshr_b32 s{qT1}, {hex(0x5b402b16)}, s6\ns_and_b32 s{qT1}, s{qT1}, 0xff\ns_sub_u32 s{qNl}, s{qT1}, s{qT0}",
     f"s_and_b32 s{sT2}, s{w}, 1\ns_lshl_b32 s6, s{sT2}, 11\ns_lshl_b32 s{qAs}, s{qT0}, 13",
     f"s_add_u32 s{qAs}, s{qAs}, s6\ns_lshr_b32 s7, s{w}, 1\ns_lshl_b32 s6, s{qCb}, 1",
     f"s_add_u32 s6, s6, s7\ns_mul_i32 s6, s6, 5120\ns_mul_i32 s{qWs}, s{qT0}, 81920",
     f"s_add_u32 s{qWs}, s{qWs}, s6\ns_mul_i32 s6, s{sT2}, 40960\ns_add_u32 s{qWs}, s{qWs}, s6",
     f"s_lshl_b32 s{qAe}, s{qT1}, 13\ns_mul_i32 s{qWe}, s{qT1}, 81920\ns_mov_b32 s{qAo}, s{qAs}",
     f"s_mov_b32 s{qWo}, s{qWs}\ns_mul_i32 s{qWm}, s{sT2}, 10240\ns_mul_i32 s6, s7, 5120",
     f"s_add_u32 s{qWm}, s{qWm}, s6\ns_lshl_b32 s6, s{qRb}, 1\ns_add_u32 s6, s6, s7",
     f"s_mul_i32 s6, s6, {A_BLK}\ns_add_u32 s{qA}, s{pWs}, s6\ns_addc_u32 s{qA+1}, s{pWs+1}, 0",
     f"s_and_b32 s{qA+1}, s{qA+1}, 0xffff\ns_cmp_eq_u32 s{qP}, 3\ns_cselect_b32 s{qA+2}, s{qAe}, 0\ns_cselect_b32 s{qW+2}, s{qWe}, 0\ns_mov_b32 s{qA+3}, 0x20000",
     f"s_mov_b32 s{qW}, s{sWp}\ns_mov_b32 s{qW+1}, s{sWp+1}\ns_mov_b32 s{qW+3}, 0x20000",
     f"s_lshl2_add_u32 s6, s{qRb}, s{qP}\ns_lshl_b32 s6, s6, 1\ns_add_u32 s6, s6, s7\ns_mul_i32 s{qXo}, s6, 20480",
     f"s_lshl_b32 s6, s{qCb}, 1\ns_add_u32 s6, s6, s{sT2}\ns_mul_i32 s6, s6, 160\ns_add_u32 s{qXo}, s{qXo}, s6",
     f"s_xor_b32 s{qT0}, s{w}, s{qP}\ns_mul_i32 s{qT1}, s{w}, 3\ns_add_u32 s{qT1}, s{qT1}, s{qT0}\ns_sub_u32 s{qT1}, s{qT1}, 1",
     f"s_mul_i32 s{qT1}, s{qT1}, 10240\ns_cmp_eq_u32 s{qT0}, 0\ns_cselect_b32 s{qSo}, 0x100000, s{qT1}",
    ]

def q_loads(slot):
    it = [f"s_add_u32 m0, s{qWm}, {slot*20480}"]
    for j in range(4):
        it.append(f"buffer_load_dwordx4 v{vL16}, s[{qW}:{qW+3}], s{qWo} offen offset:{j*1024} sc1 lds ; @put W2")
    it.append(f"s_add_u32 m0, s{qWm}, {slot*20480+4096}")
    it.append(f"buffer_load_dwordx4 v{vL16+1}, s[{qW}:{qW+3}], s{qWo} offen sc1 lds ; @put W2")
    for k in range(2):
        for rt in range(2):
            it.append(f"buffer_load_dwordx4 {ar(aA2+(slot*4+k*2+rt)*4,4)}, v{vL16+k}, s[{qA}:{qA+3}], s{qAo} offen offset:{rt*1024} sc1")
    it.append(f"s_add_u32 s{qWo}, s{qWo}, 81920\ns_add_u32 s{qAo}, s{qAo}, 8192")
    return it

def gemm2(A, L, emit, stamp):
    ac, vT, vX, vZ = 64, 144, 168, 180
    srd(A, qX, pX, pX + 1, X_SIZE)
    srd(A, qO, pOut, pOut + 1, X_SIZE)
    for i in range(4): A(f"v_mov_b32 v{vZ+i}, 0")
    A(f"v_and_b32 v{vT}, 15, v{vLane}")
    A(f"v_mul_u32_u24 v{vT}, 1280, v{vT}")
    A(f"v_lshrrev_b32 v{vT+1}, 4, v{vLane}")
    A(f"v_lshl_add_u32 v{vXo2}, v{vT+1}, 3, v{vT}")
    def zero():
        for i in range(5): mf32(A, vr(ac + 16 * i, 16), vr(vZ, 4), vr(vZ, 4), "0")
    zero()
    A(f"v_mov_b32 v{vWr2}, v{vL16}")
    A(f"v_add_u32 v{vWr2+1}, 40960, v{vL16}")
    A(f"v_lshlrev_b32 v{vL8}, 3, v{vLane}")
    A(f"v_add_u32 v{vOwn}, {RING2}, v{vL16}")
    A(f"s_mov_b32 s{qN}, 0")
    def xload():
        for ct in range(5):
            A(f"buffer_load_dwordx2 {vr(vX+2*ct,2)}, v{vXo2}, s[{qX}:{qX+3}], s{qXo} offen offset:{ct*32}")
    A(f"s_cmp_eq_u32 s{qP}, 3")
    A(f"s_cselect_b32 s{qT0}, 2, 99")
    A(f"s_cselect_b32 s{qT1}, 0, 99")
    A(f"s_cbranch_scc1 {L}qh")
    A("s_waitcnt vmcnt(0)")
    A("s_barrier")
    set_flag(A, 2, f"{L}f2")
    A(f"{L}f2:")
    flag_load(A, vPa, vAo)
    A(f"s_mov_b32 s{qA+2}, s{qAe}")
    A(f"s_mov_b32 s{qW+2}, s{qWe}")
    A(f"s_mov_b32 s{qAo}, s{qAs}")
    A(f"s_mov_b32 s{qWo}, s{qWs}")
    A("s_waitcnt vmcnt(0)")
    flag_wait(A, f"{L}w2", 2, [(vPa, vAo)])
    stamp(8)
    for s_ in range(3): emit(q_loads(s_))
    xload()
    A("s_waitcnt vmcnt(23)")
    A(f"s_branch {L}qs")
    A(f"{L}qh:")
    stamp(8)
    xload()
    A("s_waitcnt vmcnt(39)")
    A(f"{L}qs:")
    def wread2(slot, f, buf):
        k, ct = f // 10, f % 10
        return f"ds_read_b128 {ar(aW2+buf*4,4)}, v{vWr2+slot//2} offset:{(slot%2)*20480+k*10240+ct*1024}"
    A("s_barrier ; @need W2 10")
    stamp(9)
    for f in range(3): A(wread2(0, f, f))
    lq = LQ()
    for f in range(3): lq.issue(f)
    if "q_oob" in XP:
        A(f"s_mov_b32 s{qA+2}, 0"); A(f"s_mov_b32 s{qW+2}, 0")
    A(".p2align 6")
    A(f"{L}q:")
    for slot in range(4):
        ns = (slot + 1) % 4
        slots = spread(q_loads((slot + 3) % 4), 16)
        if "q_noload" in XP: slots = [[] for _ in range(16)]
        if "q_noA" in XP: slots = [[x for x in sl if "a[" not in x] for sl in slots]
        if "q_noW" in XP: slots = [[x for x in sl if "lds" not in x] for sl in slots]
        for f in range(20):
            k, ct = f // 10, f % 10
            lq.wait(A, [f])
            for r in range(2):
                rt = r if f % 2 == 0 else 1 - r
                mf16(A, vr(ac + (rt * 10 + ct) * 4, 4), ar(aW2 + (f % 4) * 4, 4), ar(aA2 + (slot * 4 + k * 2 + rt) * 4, 4))
                if r == 0 and f + 3 < 20:
                    A(wread2(slot, f + 3, (f + 3) % 4)); lq.issue(f + 3)
                if f == 18:
                    A(wread2(ns, r, r)); lq.issue(r)
                if f == 19 and r == 0:
                    A(wread2(ns, 2, 2)); lq.issue(2)
                if r == 1 and f < 16: emit(slots[f])
                if r == 0 and f == 17 and slot == 0: A(f"s_cmp_eq_u32 s{qT1}, s{qN}")
            if f == 17:
                if slot == 0:
                    A("s_waitcnt vmcnt(30) lgkmcnt(0)")
                    A(f"s_cbranch_scc1 {L}qw{slot}")
                    A("s_waitcnt vmcnt(18)")
                    A(f"{L}qw{slot}:")
                else: A("s_waitcnt vmcnt(18) lgkmcnt(0)")
                lq.clear()
                if "q_nobar" not in XP: A("s_barrier ; @need W2 10")
            if f == 19:
                A(f"s_add_u32 s{qN}, s{qN}, 1")
        if slot == 1:
            A(f"s_cmp_eq_u32 s{qT0}, s{qN}")
            A(f"s_cbranch_scc1 {L}qe1")
            A(f"{L}qr1:")
        if slot < 3:
            A(f"s_cmp_eq_u32 s{qNl}, s{qN}")
            A(f"s_cbranch_scc1 {L}qx")
    A(f"s_branch {L}q")
    A(f"{L}qe1:")
    set_flag(A, 2, f"{L}qr1")
    A(f"s_branch {L}qr1")
    A(f"{L}qx:")
    stamp(10)
    A(f"s_cmp_lg_u32 s{qP}, 3")
    A(f"s_cbranch_scc1 {L}qy")
    flag_load(A, vPb, vAp)
    A("s_waitcnt vmcnt(0)")
    flag_wait(A, f"{L}w3", 2, [(vPb, vAp)])
    A(f"{L}qy:")
    A(f"s_mov_b32 s{sT0}, s{qSo}")
    A(f"s_cmp_lg_u32 s{sWave}, s{qP}")
    A(f"s_cbranch_scc1 {L}no0")
    A("s_nop 1")
    for i in range(20): A(f"ds_write_b128 v{vOwn}, {vr(ac+4*i,4)} offset:{i*1024}")
    A("s_waitcnt lgkmcnt(0)")
    A(f"s_branch {L}no1")
    A(f"{L}no0:")
    for c in range(4):
        b = vT + (c % 2) * 12
        for i in range(10): A(f"v_cvt_pk_bf16_f32 v{b+i}, v{ac+c*20+2*i}, v{ac+c*20+2*i+1}")
        for i in range(10): A(f"v_min_u32 v{b+i}, -2, v{b+i}")
        if c: A(f"s_add_u32 s{sT0}, s{sT0}, 2560")
        A(f"buffer_store_dwordx4 {vr(b,4)}, v{vL16}, s[{qI}:{qI+3}], s{sT0} offen sc1")
        A(f"buffer_store_dwordx4 {vr(b+4,4)}, v{vL16}, s[{qI}:{qI+3}], s{sT0} offen offset:1024 sc1")
        A(f"buffer_store_dwordx2 {vr(b+8,2)}, v{vL8}, s[{qI}:{qI+3}], s{sT0} offen offset:2048 sc1")
    A(f"{L}no1:")
    S, U, IN, XR, E, T = 64, 84, 104, 184, 204, 224
    A(f"s_mul_i32 s{sT0}, s{sWave}, 5120")
    A(f"v_add_u32 v{vOwn}, s{sT0}, v{vOwn}")
    A(f"s_mul_i32 s{sT0}, s{qP}, 30720")
    A(f"s_mul_i32 s{sT1}, s{sWave}, 2560")
    A(f"s_add_u32 s{sT0}, s{sT0}, s{sT1}")
    A(f"s_lshl_b32 s6, s{qP}, 3")
    A(f"s_lshr_b32 s6, {hex(0x24094218 >> 0 if False else (0x24 | 0x18 << 8 | 0x09 << 16 | 0x24 << 24))}, s6")
    for i in range(3):
        A(f"s_bfe_u32 s7, s6, {hex(0x20000 | 2*i)}")
        A(f"s_mul_i32 s7, s7, 10240")
        A(f"s_add_u32 s{qIn+i}, s{sT0}, s7")
    def inload(sl):
        b = IN + sl * 10
        A(f"buffer_load_dwordx4 {vr(b,4)}, v{vL16}, s[{qI}:{qI+3}], s{qIn+sl} offen sc1")
        A(f"buffer_load_dwordx4 {vr(b+4,4)}, v{vL16}, s[{qI}:{qI+3}], s{qIn+sl} offen offset:1024 sc1")
        A(f"buffer_load_dwordx2 {vr(b+8,2)}, v{vL8}, s[{qI}:{qI+3}], s{qIn+sl} offen offset:2048 sc1")
    A("s_barrier")
    stamp(11)
    for sl in range(3): inload(sl)
    for i in range(5): A(f"ds_read_b128 {vr(S+4*i,4)}, v{vOwn} offset:{i*1024}")
    for i in range(10):
        A(f"v_lshlrev_b32 v{XR+2*i}, 16, v{vX+i}")
        A(f"v_and_b32 v{XR+2*i+1}, 0xffff0000, v{vX+i}")
    def unpack(sl, dst):
        for i in range(10):
            A(f"v_lshlrev_b32 v{dst+2*i}, 16, v{IN+sl*10+i}")
            A(f"v_and_b32 v{dst+2*i+1}, 0xffff0000, v{IN+sl*10+i}")
    def addin(sl, dst):
        unpack(sl, T)
        for i in range(10): A(f"v_pk_add_f32 {vr(dst+2*i,2)}, {vr(dst+2*i,2)}, {vr(T+2*i,2)}")
    A(f"s_mov_b32 s{sT1}, 0")
    A(f"{L}sc:")
    A("s_waitcnt vmcnt(0)")
    for i in range(3): A(f"v_max3_u32 v{T+i}, v{IN+10*i}, v{IN+10*i+1}, v{IN+10*i+2}")
    for j in range(3):
        for i in range(3): A(f"v_max3_u32 v{T+i}, v{T+i}, v{IN+10*i+3+2*j}, v{IN+10*i+4+2*j}")
    A(f"v_max3_u32 v{T+3}, v{IN+9}, v{IN+19}, v{IN+29}")
    A(f"v_max3_u32 v{T}, v{T}, v{T+1}, v{T+2}")
    A(f"v_max_u32 v{T}, v{T}, v{T+3}")
    A(f"v_cmp_eq_u32 vcc, -1, v{T}")
    A("s_nop 3")
    A(f"s_cbranch_vccz {L}sr ; pollbr")
    A(f"s_add_u32 s{sT1}, s{sT1}, 1")
    A(f"s_cmp_ge_u32 s{sT1}, 0x40000")
    A(f"s_cbranch_scc1 {L}sr")
    for sl in range(3): inload(sl)
    A(f"s_branch {L}sc")
    A(f"{L}sr:")
    stamp(12)
    unpack(2, U)
    A(f"s_mov_b32 s{sT0}, {hex(f2u(-LOG2E))}")
    A(f"s_cmp_lg_u32 s{qP}, 3")
    A("s_waitcnt lgkmcnt(0)")
    A(f"s_cbranch_scc1 {L}ns")
    for i in range(20): A(f"v_swap_b32 v{S+i}, v{U+i}")
    A(f"{L}ns:")
    for i in range(20): A(f"v_mul_f32 v{E+i}, s{sT0}, v{U+i}")
    for i in range(20): A(f"v_exp_f32 v{E+i}, v{E+i}")
    addin(0, S)
    for i in range(20): A(f"v_add_f32 v{E+i}, 1.0, v{E+i}")
    for i in range(20): A(f"v_rcp_f32 v{E+i}, v{E+i}")
    addin(1, S)
    for i in range(10): A(f"v_pk_mul_f32 {vr(U+2*i,2)}, {vr(U+2*i,2)}, {vr(E+2*i,2)}")
    for i in range(10): A(f"v_pk_fma_f32 {vr(XR+2*i,2)}, {vr(S+2*i,2)}, {vr(U+2*i,2)}, {vr(XR+2*i,2)}")
    for i in range(10): A(f"v_cvt_pk_bf16_f32 v{vX+i}, v{XR+2*i}, v{XR+2*i+1}")
    for ct in range(5):
        A(f"buffer_store_dwordx2 {vr(vX+2*ct,2)}, v{vXo2}, s[{qO}:{qO+3}], s{qXo} offen offset:{ct*32}" + (" sc1" if "outsc1" in OPT else ""))
    stamp(13)

def gen_p1(A, name, stamps=False, code_bytes=32768):
    head(A, name)
    L = "p1_"
    A("s_cmp_ge_u32 s2, 256")
    A(f"s_cbranch_scc1 {L}end")
    A("s_load_dwordx16 s[64:79], s[0:1], 0")
    A("s_load_dwordx8 s[80:87], s[0:1], 64")
    A(f"s_memrealtime s[{sNo}:{sNo+1}]")
    if stamps: A("s_memtime s[94:95]")
    def stamp(i, att=False):
        if not stamps: return
        if "attst" in OPT:
            if i >= 5 and not att: return
        elif att: return
        A(f"s_memtime s[96:97]")
        A(f"s_memrealtime s[98:99]")
        A("s_waitcnt lgkmcnt(0)")
        A(f"v_mov_b32 v{vTm+18}, s96"); A(f"v_mov_b32 v{vTm+19}, s98")
        A(f"s_lshl_b32 s96, s2, 2"); A(f"s_add_u32 s96, s96, s{sWave}"); A("s_lshl_b32 s96, s96, 7")
        A(f"v_mov_b32 v{vZero}, s96")
        if i == 0: A(f"v_mov_b32 v{vTm+16}, s94")
        A(f"s_add_u32 s96, s{pWs}, 0x3100000"); A(f"s_addc_u32 s97, s{pWs+1}, 0")
        A(f"global_store_dwordx2 v{vZero}, {vr(vTm+18,2)}, s[96:97] offset:{i*8}")
        if i == 0: A(f"global_store_dword v{vZero}, v{vTm+16}, s[96:97] offset:120")
    t = vTm
    def emit(items):
        for it in items:
            if "lds" in it and A.lines[-1].split()[1].startswith("m0"): A("s_nop 0")
            A(it)
    A(f"v_and_b32 v{vLane}, 63, v0")
    A("v_lshrrev_b32 v0, 6, v0")
    A("s_and_b32 s6, s2, 7")
    A(f"v_readfirstlane_b32 s{sWave}, v0")
    A(f"s_lshr_b32 s{sT0}, s2, 3")
    A(f"s_lshr_b32 s{sRb}, s{sT0}, 2")
    A(f"s_and_b32 s{sT1}, s{sT0}, 3")
    A(f"s_lshl2_add_u32 s{sHead}, s6, s{sT1}")
    A(f"s_sub_u32 s{sT2}, s6, s{sRb}")
    A(f"s_add_u32 s{sT2}, s{sT2}, 3")
    A(f"s_and_b32 s{sT2}, s{sT2}, 7")
    A(f"s_mul_i32 s{sFb}, s6, 3")
    A(f"s_add_u32 s{sFb}, s{sFb}, s{sT1}")
    A(f"s_add_u32 s7, s{sT2}, 24")
    A(f"s_cmp_eq_u32 s{sT1}, 3")
    A(f"s_cselect_b32 s{sFb}, s7, s{sFb}")
    A(f"s_cmp_lt_u32 s{sFb}, 27")
    A(f"s_cselect_b32 s{sHasF}, 1, 0")
    A(f"s_sub_u32 s{sProd}, s{sFb}, 27")
    A(f"v_lshrrev_b32 v{t+7}, 3, v{vLane}")
    A(f"v_and_b32 v{t+6}, 7, v{vLane}")
    A(f"v_lshrrev_b32 v{t+12}, 4, v{vLane}")
    A(f"v_xor_b32 v{t+13}, v{t+6}, v{t+12}")
    A(f"v_lshlrev_b32 v{t+13}, 4, v{t+13}")
    A(f"s_movk_i32 s6, 1280")
    A(f"v_mad_u32_u24 v{vXd}, v{t+7}, s6, v{t+13}")
    A(f"v_xor_b32 v{t+13}, 64, v{vXd}")
    for j in range(1, 8):
        A(f"v_add_u32 v{vXd+j}, {j*10240-(j%4)*1024}, v{(t+13) if j&1 else vXd}")
    A(f"s_lshl2_add_u32 s6, s{sRb}, s{sWave}")
    A(f"s_mul_i32 s{sXo}, s6, {64*1280}")
    A(f"s_mul_i32 s{sKVo}, s6, {A_BLK}")
    A(f"s_lshl_b32 s{sM0X}, s{sWave}, 13")
    A(f"s_add_u32 s{sM0X}, s{sM0X}, {R1}")
    A(f"s_mov_b32 s{sTail}, 0")
    A(f"s_and_b32 s6, s{sWave}, 1")
    A(f"s_lshl_b32 s7, s6, 2")
    A(f"v_add_u32 v{t+13}, s7, v{t+12}")
    A(f"v_lshlrev_b32 v{t+13}, 1, v{t+13}")
    A(f"v_and_b32 v{t+14}, 15, v{vLane}")
    A(f"v_xor_b32 v{t+13}, v{t+13}, v{t+14}")
    A(f"v_lshlrev_b32 v{t+13}, 4, v{t+13}")
    A(f"s_lshl_b32 s7, s{sWave}, 3")
    A(f"v_add_u32 v{t+15}, s7, v{t+12}")
    A(f"v_lshl_add_u32 v{vWqd}, v{t+15}, 13, v{t+13}")
    A(f"v_add_u32 v{vWqd+1}, {4*8192-1024}, v{vWqd}")
    A(f"v_bfe_u32 v{t+13}, v{vLane}, 4, 1")
    A(f"s_lshl_b32 s6, s6, 1")
    A(f"v_add_u32 v{t+13}, s6, v{t+13}")
    A(f"v_lshlrev_b32 v{t+13}, 1, v{t+13}")
    A(f"v_xor_b32 v{t+13}, v{t+13}, v{t+6}")
    A(f"v_lshlrev_b32 v{t+13}, 4, v{t+13}")
    A(f"v_add_u32 v{t+15}, s7, v{t+7}")
    A(f"s_movk_i32 s6, 3456")
    A(f"v_mad_u32_u24 v{vW13d}, v{t+15}, s6, v{t+13}")
    A(f"s_lshl_b32 s{sWqo}, s{sHead}, 8")
    A(f"s_lshl_b32 s{sW13o}, s{sFb}, 7")
    A(f"s_mov_b32 s{sSlot}, 0")
    A("s_waitcnt lgkmcnt(0)")
    A(f"s_lshl_b32 s{sC0}, s{sWave}, 12")
    A(f"s_add_u32 s{sC0}, s{sC0}, {R3}")
    A(f"s_mov_b32 s{sM0W}, s{sC0}")
    srd(A, sX, pX, pX + 1, X_SIZE)
    srd(A, sWq, pWq, pWq + 1, 640 * 8192)
    for (d, p, sh) in ((sW1, pW1, 2048), (sW3, pW3, 3072)):
        A(f"s_sub_u32 s{d}, s{p}, {sh}")
        A(f"s_subb_u32 s{d+1}, s{p+1}, 0")
        A(f"s_and_b32 s{d+1}, s{d+1}, 0xffff")
        A(f"s_mul_i32 s{d+2}, s{sHasF}, {640*3456+sh}")
        A(f"s_mov_b32 s{d+3}, 0x20000")
    srd(A, sX2, pX, pX + 1, X_SIZE)
    A(f"s_movk_i32 s{sM0d}, 4096")
    A(f"s_movk_i32 s{sXst}, 128")
    A(f"s_mov_b32 s{sM0t}, 0x18000")
    RAW, UNP = 64, 96
    A(f"v_mov_b32 v{t+5}, 0")
    A(f"s_cmp_ge_u32 s{sProd}, 4")
    A(f"s_cbranch_scc1 {L}np1")
    A(f"v_lshrrev_b32 v{t+5}, 2, v{vLane}")
    A(f"v_and_b32 v{t+13}, 3, v{vLane}")
    A(f"v_lshlrev_b32 v{t+13}, 4, v{t+13}")
    A(f"s_movk_i32 s6, 1280")
    A(f"v_mad_u32_u24 v{t+13}, v{t+5}, s6, v{t+13}")
    A(f"s_lshl2_add_u32 s6, s{sRb}, s{sProd}")
    A(f"s_lshl2_add_u32 s6, s6, s{sWave}")
    A(f"s_lshl_b32 s7, s6, 8")
    A(f"v_lshl_add_u32 v{t+5}, v{t+5}, 4, s7")
    A(f"s_mul_i32 s6, s6, {16*1280}")
    for i in range(20):
        A(f"buffer_load_dwordx4 {vr(RAW+4*i,4)}, v{t+13}, s[{sX}:{sX+3}], s6 offen offset:{i*64}")
    A(f"{L}np1:")
    emit(dma_w(True)); emit(dma_x(0)); emit(dma_x(1))
    stamp(0)
    A("s_getpc_b64 s[6:7]")
    A(f"s_and_b32 s{sT0}, s{sT0}, 7")
    A(f"s_lshl2_add_u32 s{sT0}, s{sT0}, s{sWave}")
    A(f"s_lshl_b32 s{sT0}, s{sT0}, 10")
    A(f"s_min_u32 s{sT0}, s{sT0}, {code_bytes-1024}")
    A(f"v_lshl_add_u32 v{vTm+4}, v{vLane}, 4, s{sT0}")
    if "nocpf" not in OPT: A(f"global_load_dwordx4 {vr(vTm+8,4)}, v{vTm+4}, s[6:7]")
    else: A(f"global_load_dword v{vTm+8}, v{vLane}, s[0:1]")
    emit(dma_w(True)); emit(dma_x(0)); emit(dma_w(True))
    A(f"s_add_u32 s{sA}, s{pWs}, s{sKVo}")
    A(f"s_addc_u32 s{sA+1}, s{pWs+1}, 0")
    srd(A, sA, sA, sA + 1, A_BLK)
    A(f"s_add_u32 s{sWp}, s{pWs}, {W_OFF}")
    A(f"s_addc_u32 s{sWp+1}, s{pWs+1}, 0")
    srd(A, sWp, sWp, sWp + 1, W_SIZE)
    A(f"s_lshl2_add_u32 s{sT1}, s{sHead}, s{sWave}")
    A(f"s_mul_i32 s{sU}, s{sT1}, 10")
    A(f"s_lshl_b32 s{sT2}, s{sRb}, 1")
    A(f"s_add_u32 s{sU}, s{sU}, s{sT2}")
    A(f"s_mul_i32 s{sT1}, s{sT1}, 40960")
    A(f"s_lshl_b32 s{sT2}, s{sRb}, 8")
    A(f"s_add_u32 s{sPo}, s{sT1}, s{sT2}")
    srd(A, sSrc, pWo, pWo + 1, 4096 * 1280)
    A(f"s_cmp_lt_u32 s{sRb}, 5")
    A(f"s_cselect_b32 s{sSrc+2}, s{sSrc+2}, 0")
    A(f"s_cselect_b32 s{sU}, s{sU}, 2000")
    A(f"v_mov_b32 v{t+6}, 0")
    A(f"s_or_b32 s6, s2, s{sWave}")
    A(f"s_cbranch_scc1 {L}ntag")
    A(f"s_lshl_b64 s[6:7], s[{sNo}:{sNo+1}], 2")
    A(f"s_or_b32 s7, s7, 0x80000000")
    A(f"v_mov_b32 v{t+14}, s6")
    A(f"v_mov_b32 v{t+15}, s7")
    A("s_mov_b64 exec, 1")
    A(f"global_store_dwordx2 v{t+6}, {vr(t+14,2)}, s[{pDbg}:{pDbg+1}] offset:128 sc1")
    A("s_mov_b64 exec, -1")
    A(f"{L}ntag:")
    A(f"v_and_b32 v{t+14}, 15, v{vLane}")
    A(f"v_lshrrev_b32 v{t+13}, 1, v{t+14}")
    A(f"v_xor_b32 v{t+13}, v{t+13}, v{t+12}")
    A(f"v_lshlrev_b32 v{t+13}, 4, v{t+13}")
    A(f"v_lshl_add_u32 v{t+13}, v{t+14}, 7, v{t+13}")
    A(f"s_lshl_b32 s6, s{sWave}, 13")
    A(f"s_add_u32 s6, s6, {R1}")
    A(f"v_add_u32 v{vXr}, s6, v{t+13}")
    A(f"v_xor_b32 v{vXr+1}, 64, v{vXr}")
    A(f"v_lshlrev_b32 v{t+3}, 4, v{t+14}")
    A(f"v_bfe_u32 v{t+14}, v{vLane}, 2, 2")
    A(f"v_and_b32 v{t+15}, 3, v{vLane}")
    A(f"v_lshlrev_b32 v{t+15}, 3, v{t+15}")
    A(f"v_lshl_add_u32 v{t+15}, v{t+12}, 12, v{t+15}")
    A(f"v_add_u32 v{t+15}, {R3}, v{t+15}")
    A(f"v_bfe_u32 v{t+16}, v{vLane}, 4, 1")
    A(f"v_lshl_add_u32 v{t+13}, v{t+16}, 2, v{t+14}")
    A(f"s_lshl_b32 s6, s{sWave}, 1")
    A(f"v_xor_b32 v{t+13}, s6, v{t+13}")
    A(f"v_lshl_add_u32 v{t+13}, v{t+13}, 5, v{t+15}")
    A(f"v_lshl_add_u32 v{vWqr}, v{t+14}, 8, v{t+13}")
    for p in range(1, 8): A(f"v_xor_b32 v{vWqr+p}, {32*p}, v{vWqr}")
    A(f"v_lshrrev_b32 v{t+13}, 1, v{t+14}")
    A(f"v_lshl_add_u32 v{t+13}, v{t+16}, 1, v{t+13}")
    A(f"v_xor_b32 v{t+13}, s{sWave}, v{t+13}")
    A(f"v_lshl_add_u32 v{t+13}, v{t+13}, 5, v{t+15}")
    A(f"v_lshl_add_u32 v{vW13r}, v{t+14}, 7, v{t+13}")
    for p in range(1, 4): A(f"v_xor_b32 v{vW13r+p}, {32*p}, v{vW13r}")
    srd(A, sK, pK, pK + 1, 16777216)
    srd(A, sV, pV, pV + 1, 16777216)
    A(f"s_add_u32 s{sSt}, s{pWs}, {ST_OFF}")
    A(f"s_addc_u32 s{sSt+1}, s{pWs+1}, 0")
    srd(A, sSt, sSt, sSt + 1, 2048 * 16)
    A(f"s_lshl_b32 s6, s{sRb}, 2")
    A(f"v_mov_b32 v{t+2}, s6")
    A(f"s_movk_i32 s{sMask}, {EVMASK}")
    A(f"s_mov_b32 s{sD}, 0")
    A(f"s_cmp_ge_u32 s{sProd}, 4")
    A(f"s_cbranch_scc1 {L}np2")
    A("s_waitcnt vmcnt(25)")
    for i in range(79, -1, -1):
        A(f"v_and_b32 v{UNP+2*i+1}, 0xffff0000, v{RAW+i}")
        A(f"v_lshlrev_b32 v{UNP+2*i}, 16, v{RAW+i}")
    a = 64
    def red(first):
        for i in range(80):
            first(i)
        A(f"v_pk_add_f32 {vr(a,2)}, {vr(a,2)}, {vr(a+2,2)}")
        A(f"v_pk_add_f32 {vr(a+4,2)}, {vr(a+4,2)}, {vr(a+6,2)}")
        A(f"v_pk_add_f32 {vr(a,2)}, {vr(a,2)}, {vr(a+4,2)}")
        A(f"v_add_f32 v{a}, v{a}, v{a+1}")
        for qp in ("[1,0,3,2]", "[2,3,0,1]"):
            A("s_nop 1")
            A(f"v_add_f32_dpp v{a}, v{a}, v{a} quad_perm:{qp} row_mask:0xf bank_mask:0xf")
    def f1(i):
        d = vr(a + 2 * (i % 4), 2)
        if i < 4: A(f"v_pk_add_f32 {d}, {vr(UNP+2*i,2)}, {vr(UNP+2*i+8,2)}")
        elif i >= 8: A(f"v_pk_add_f32 {d}, {d}, {vr(UNP+2*i,2)}")
    red(f1)
    o = 72
    A(f"v_mul_f32 v{o}, {hex(f2u(-1.0/640))}, v{a}")
    for i in range(80): A(f"v_pk_add_f32 {vr(UNP+2*i,2)}, {vr(UNP+2*i,2)}, {vr(o,2)} op_sel_hi:[1,0]")
    def f2(i):
        d = vr(a + 2 * (i % 4), 2); x_ = vr(UNP + 2 * i, 2)
        if i < 4: A(f"v_pk_mul_f32 {d}, {x_}, {x_}")
        else: A(f"v_pk_fma_f32 {d}, {x_}, {x_}, {d}")
    red(f2)
    A(f"v_mov_b32 v{o+3}, {hex(f2u(1e-5))}")
    A(f"v_fmac_f32 v{o+3}, {hex(f2u(1.0/640))}, v{a}")
    A(f"v_mov_b32 v{o+2}, v{o+3}")
    A(f"v_rsq_f32 v{o+1}, v{o+3}")
    A("s_mov_b32 exec_lo, 0x11111111")
    A("s_mov_b32 exec_hi, 0x11111111")
    A(f"buffer_store_dwordx4 {vr(o,4)}, v{t+5}, s[{sSt}:{sSt+3}], 0 offen sc1 ; @put S")
    A("s_mov_b64 exec, -1")
    A("s_waitcnt vmcnt(0)")
    A(f"{L}np2:")
    if "dummy" in OPT:
        A(f"v_lshlrev_b32 v{t+13}, 4, v{vLane}")
        for i in range(16): A(f"buffer_load_dwordx4 {vr(64+4*i,4)}, v{t+13}, s[{sWq}:{sWq+3}], 0 offen offset:{(i%4)*1024}")
        for i in range(128): A(f"v_mov_b32 v{128+i}, 0")
        A("s_waitcnt vmcnt(0)")
        A("s_mov_b32 s6, 0")
        A(f"{L}dmy:")
        for i in range(64): mf16(A, vr(128 + 4 * (i % 32), 4), vr(64 + 4 * (i // 4 % 12), 4), vr(112 + 4 * (i % 4), 4))
        A("s_add_u32 s6, s6, 1")
        A("s_cmp_lt_u32 s6, 40")
        A(f"s_cbranch_scc1 {L}dmy")
        A("s_nop 7")
    if "idle" in OPT:
        A("s_mov_b32 s6, 0")
        A(f"{L}dmy:")
        for i in range(64): A("s_nop 15")
        A("s_add_u32 s6, s6, 1")
        A("s_cmp_lt_u32 s6, 40")
        A(f"s_cbranch_scc1 {L}dmy")
    kv_dma_voff(A, vQ, vQ + 4, 1)
    A(f"s_lshl_b32 s6, s{sWave}, 12")
    A(f"s_lshl_b32 s{sKVo}, s{sHead}, 19")
    A(f"s_add_u32 s{sKVo}, s{sKVo}, s6")
    A(f"s_add_u32 s{sKVo}, s{sKVo}, {1536*256}")
    if "tlbw" in OPT:
        A("s_mov_b64 exec, 1")
        A(f"buffer_load_dword v0, v{t+6}, s[{sK}:{sK+3}], s{sKVo} offen")
        A(f"buffer_load_dword v0, v{t+6}, s[{sV}:{sV+3}], s{sKVo} offen")
        A(f"buffer_load_dword v0, v{t+6}, s[{sSrc}:{sSrc+3}], s{sPo} offen")
        A("s_mov_b64 exec, -1")
    for i in range(4): A(f"v_mov_b32 v{vSt+i}, 0")
    A(f"v_mov_b32 v{t+13}, 0x3f803f80")
    for i in range(4): A(f"v_accvgpr_write_b32 a{aOne+i}, v{t+13}")
    z = vr(vSt, 4)
    for i in range(8): mf32(A, vr(vAcc + 16 * i, 16), z, z, "0")
    for i in range(9): mf32(A, ar(16 * i, 16), z, z, "0")
    A(f"s_waitcnt vmcnt({15 if 'tlbw' in OPT else 12})")
    A("s_barrier")
    A(f"s_lshl2_add_u32 s6, s{sProd}, s{sWave}")
    A(f"s_and_b32 s6, s6, 0xfffffff3")
    A(f"s_cbranch_scc1 {L}np3")
    A(f"v_mov_b32 v{t+1}, 1")
    A(f"v_add_u32 v{t+7}, s{sProd}, v{t+2}")
    A(f"s_mov_b64 exec, 1")
    A(f"global_store_byte v{t+7}, v{t+1}, s[{pDbg}:{pDbg+1}] sc1")
    A(f"s_mov_b64 exec, -1")
    A(f"{L}np3:")
    stamp(1)
    for rt in range(4): A(xread(0, 0, rt))
    A(f"s_cmp_eq_u32 s{sHasF}, 0")
    fr = frag_list(True)
    for f in range(3):
        for sec in range(2): A(wread(fr[f], 0, sec, f))
    A("s_waitcnt lgkmcnt(6)")
    if FINE: A("s_mov_b32 s7, 0")
    A(f"s_cbranch_scc1 {L}gn")
    gemm_loop(A, True, L + "gf")
    A(f"s_branch {L}gdone")
    gemm_events(A, L + "gf")
    gemm_events(A, L + "gn")
    gemm_loop(A, False, L + "gn")
    A(f"{L}gdone:")
    if FINE:
        A(f"s_lshl_b32 s96, s2, 2"); A(f"s_add_u32 s96, s96, s{sWave}"); A("s_lshl_b32 s96, s96, 10")
        A(f"v_lshl_add_u32 v{vTm+12}, v{vLane}, 2, s96")
        A(f"s_add_u32 s100, s{pWs}, 0x3200000"); A(f"s_addc_u32 s101, s{pWs+1}, 0")
        A(f"global_store_dword v{vTm+12}, v{vFin}, s[100:101]")
        A(f"global_store_dword v{vTm+12}, v{vFin+1}, s[100:101] offset:256")
        A(f"global_store_dword v{vTm+12}, v{vFin-1}, s[100:101] offset:512")
    stamp(2)
    A(f"v_lshrrev_b32 v{t+12}, 4, v{vLane}")
    A(f"v_lshlrev_b32 v{t+12}, 4, v{t+12}")
    A(f"s_lshl_b32 s6, s{sWave}, 7")
    A(f"s_add_u32 s6, s6, {CS}")
    A(f"v_add_u32 v{t+8}, s6, v{t+12}")
    A(f"s_lshl_b32 s6, s{sWave}, 6")
    A(f"s_add_u32 s6, s6, {CS+512}")
    A(f"v_add_u32 v{t+9}, s6, v{t+12}")
    A("s_mov_b32 exec_lo, 0x00010001")
    A("s_mov_b32 exec_hi, 0x00010001")
    A(f"ds_write_b128 v{t+8}, {ar(aCs,4)}")
    A(f"ds_write_b128 v{t+8}, {ar(aCs+4,4)} offset:64")
    A(f"ds_write_b128 v{t+9}, {ar(aCs+8,4)}")
    A(f"ds_write_b128 v{t+9}, {ar(aCs+12,4)} offset:256")
    A("s_mov_b64 exec, -1")
    for j in range(8): A(f"v_mov_b32 v{vKd+j}, v{vXd+j}")
    A(f"s_mov_b32 s{sKVo}, s{sXo}")
    A(f"s_mov_b32 s{sKVm}, s{sM0X}")
    A(f"v_lshlrev_b32 v{t+10}, 4, v{vLane}")
    A(f"s_and_b32 s{qP}, s2, 3")
    A(f"s_lshr_b32 s{qCb}, s2, 6")
    A(f"s_bfe_u32 s{qRb}, s2, 0x30003")
    A(f"s_and_b32 s6, s2, 4")
    A(f"s_lshl_b32 s6, s6, 1")
    A(f"s_add_u32 s{qRb}, s{qRb}, s6")
    A(f"s_lshl2_add_u32 s{qG}, s{qRb}, s{qCb}")
    A(f"s_mul_i32 s6, s{qG}, {IB_G}")
    A(f"s_add_u32 s6, s6, {IB_OFF}")
    A(f"s_add_u32 s{qI}, s{pWs}, s6")
    A(f"s_addc_u32 s{qI+1}, s{pWs+1}, 0")
    srd(A, qI, qI, qI + 1, IB_G)
    vWs = t
    wp_src_voff(A, vWs)
    A("s_waitcnt lgkmcnt(0)")
    A("s_barrier")
    kvadv = [f"s_add_u32 s{sKVo}, s{sKVo}, 16384\ns_add_u32 s{sKVm}, s{sKVm}, 32768"]
    def kvq(): return kv_dma() + kvadv
    csb = [vKr, vKr + 4, vVr + 0]
    lq = LQ()
    def csread_q(p):
        A(f"v_xor_b32 v{t+11}, {64*p}, v{t+8}")
        A(f"ds_read_b128 {vr(csb[p%3],4)}, v{t+11}"); lq.issue(("c", p))
    csread_q(0); csread_q(1)
    wo_dma = []
    for su in range(2):
        wo_dma.append(f"s_lshl_b32 s6, s{sWave}, 13\ns_add_u32 m0, s6, {R4+su*4096}")
        if "nowosrc" not in OPT: wo_dma += [f"buffer_load_dwordx4 v{vWs+4*su+j}, s[{sSrc}:{sSrc+3}], s{sPo} offen offset:{j*1024} lds ; @put P" for j in range(4)]
    kq = spread([f"s_add_u32 m0, s{sKVm}, 16384"] + kv_dma()[6:] + kvadv + wo_dma[:5 * SPL[0]], 24)
    for rt in range(4):
        q = vSt + 4 * rt
        A(f"v_mul_f32 v{q+3}, {hex(f2u(LOG2E/128**0.5))}, v{q+1}")
        A(f"v_mul_f32 v{q+1}, {hex(f2u(-LOG2E))}, v{q+1}")
    z = vr(vTm + 12, 4)
    for i in range(4): A(f"v_mov_b32 v{vTm+12+i}, 0")
    for p in range(8):
        if p + 2 < 8: csread_q(p + 2)
        lq.wait(A, [("c", p)])
        c = csb[p % 3]
        for rt in range(4):
            d = vAcc + (p * 4 + rt) * 4; q = vSt + 4 * rt
            for h in range(2):
                A(f"v_pk_fma_f32 {vr(d+2*h,2)}, {vr(c+2*h,2)}, {vr(q,2)}, {vr(d+2*h,2)} op_sel_hi:[1,0,1]")
        mf32(A, ar(aO + 16 * p, 16), z, z, "0")
        emit(kq[3*p])
        for rt in range(4):
            d = vAcc + (p * 4 + rt) * 4; q = vSt + 4 * rt
            for h in range(2):
                A(f"v_pk_mul_f32 {vr(d+2*h,2)}, {vr(d+2*h,2)}, {vr(q+2,2)} op_sel:[0,1]")
        emit(kq[3*p+1])
        for rt in range(4):
            d = vAcc + (p * 4 + rt) * 4
            f = vQ + ((rt // 2) * 8 + p) * 4 + (rt & 1) * 2
            for h in range(2): A(f"v_cvt_pk_bf16_f32 v{f+h}, v{d+2*h}, v{d+2*h+1}")
        emit(kq[3*p+2])
        if p > 0:
            for qt in range(2):
                f = vQ + (qt * 8 + p - 1) * 4
                for h in range(2): A(f"v_permlane16_swap_b32 v{f+h}, v{f+2+h}")
    A("s_nop 0")
    for qt in range(2):
        f = vQ + (qt * 8 + 7) * 4
        for h in range(2): A(f"v_permlane16_swap_b32 v{f+h}, v{f+2+h}")
    stamp(3)
    A(f"s_cmp_eq_u32 s{sHasF}, 0")
    A(f"s_cbranch_scc1 {L}noffn")
    def hst(pi, rt): return f"buffer_store_dwordx4 {vr(vAcc+96+pi*16+rt*4,4)}, v{t+10}, s[{sA}:{sA+3}], s{qT0+pi} offen offset:{rt*1024} sc1"
    T = vAcc; H = vAcc + 96; C = vAcc + 48
    for p in range(4):
        A(f"v_xor_b32 v{t+11}, {64*p}, v{t+9}")
        A(f"ds_read_b128 {vr(C+8*p,4)}, v{t+11}")
        A(f"ds_read_b128 {vr(C+8*p+4,4)}, v{t+11} offset:256")
    A(f"s_lshr_b32 s7, s{sWave}, 1")
    A(f"s_lshl_b32 s6, s{sFb}, 1")
    A(f"s_add_u32 s6, s6, 128")
    A(f"s_add_u32 s{sT0}, s6, s7")
    A(f"s_xor_b32 s7, s7, 1")
    A(f"s_add_u32 s{sT1}, s6, s7")
    A(f"s_lshl_b32 s{qT0}, s{sT0}, 12")
    A(f"s_lshl_b32 s{qT1}, s{sT1}, 12")
    A("s_waitcnt lgkmcnt(0)")
    ffq = wo_dma[5 * SPL[0]:] + kv_dma()[:5 * SPL[1]]
    kq = spread(ffq, 24) if ffq else [[]] * 24
    for p in range(4):
        for r2 in range(2):
            g_ = 3 * (p * 2 + r2)
            G = [(2 * r2 + i, T + 12 * i + 24 * ((p * 2 + r2) & 1)) for i in range(2)]
            for rt, b in G:
                for i in range(4): A(f"v_accvgpr_read_b32 v{b+i}, a{aG+(p*4+rt)*4+i}")
                for i in range(4): A(f"v_accvgpr_read_b32 v{b+4+i}, a{aUp+(p*4+rt)*4+i}")
            emit(kq[g_])
            for rt, b in G:
                for h in range(4):
                    A(f"v_pk_fma_f32 {vr(b+2*h,2)}, {vr(C+8*p+2*h,2)}, {vr(vSt+4*rt,2)}, {vr(b+2*h,2)} op_sel_hi:[1,0,1]")
            for rt, b in G:
                for h in range(2): A(f"v_pk_mul_f32 {vr(b+8+2*h,2)}, {vr(b+2*h,2)}, {vr(vSt+4*rt,2)} op_sel:[0,1]")
            for rt, b in G:
                for i in range(4): A(f"v_exp_f32 v{b+8+i}, v{b+8+i}")
            emit(kq[g_+1])
            for rt, b in G:
                for h in range(2): A(f"v_pk_mul_f32 {vr(b+2*h,2)}, {vr(b+2*h,2)}, {vr(b+4+2*h,2)}")
            for rt, b in G:
                for h in range(2):
                    A(f"v_pk_fma_f32 {vr(b+8+2*h,2)}, {vr(b+8+2*h,2)}, {vr(vSt+4*rt+2,2)}, {vr(vSt+4*rt+2,2)} op_sel_hi:[1,0,0]")
            for rt, b in G:
                for i in range(4): A(f"v_rcp_f32 v{b+8+i}, v{b+8+i}")
            emit(kq[g_+2])
            for n, (rt, b) in enumerate(G):
                for h in range(2): A(f"v_pk_mul_f32 {vr(b+2*h,2)}, {vr(b+2*h,2)}, {vr(b+8+2*h,2)}")
            for rt, b in G:
                for h in range(2): A(f"v_cvt_pk_bf16_f32 v{H+(p//2)*16+rt*4+(p&1)*2+h}, v{b+2*h}, v{b+2*h+1}")
        if p & 1:
            pi = p // 2
            A(f"s_bitcmp1_b32 s{sWave}, 0")
            A(f"s_cbranch_scc0 {L}nsw{pi}")
            for rt in range(4):
                for h in range(2): A(f"v_swap_b32 v{H+pi*16+rt*4+h}, v{H+pi*16+rt*4+2+h}")
            A(f"{L}nsw{pi}:")
    A(f"s_branch {L}ffnd")
    A(f"{L}noffn:")
    emit(ffq)
    A(f"s_mov_b32 s{qT0}, 0x1000000")
    A(f"s_mov_b32 s{qT1}, 0x1000000")
    A("s_barrier")
    srd(A, qA, pW2, pW2 + 1, 1728 * 1280)
    wp_src_voff(A, vAcc)
    wp_addr(A, 13)
    A(f"s_mul_i32 s{sT2}, s{sRb}, 5")
    A(f"s_add_u32 s{sT2}, s{sT2}, s{sProd}")
    A(f"s_lshl2_add_u32 s{sT2}, s{sT2}, s{sWave}")
    A(f"{L}w2j:")
    A(f"s_mul_hi_u32 s{sT0}, s{sT2}, 0x33333334")
    A(f"s_mul_i32 s{sT1}, s{sT0}, 5")
    A(f"s_sub_u32 s{sT1}, s{sT2}, s{sT1}")
    A(f"s_mul_i32 s7, s{sT0}, 40960")
    A(f"s_lshl_b32 s6, s{sT1}, 8")
    A(f"s_add_u32 s{sT0}, s7, s6")
    A(f"s_lshl_b32 s6, s{sT1}, 13")
    A(f"s_add_u32 s7, s7, s6")
    A(f"s_add_u32 s{sT1}, s7, {128*40960}")
    A(f"s_lshl_b32 s6, s{sWave}, 13")
    for su in range(2):
        A(f"s_add_u32 m0, s6, {R3+su*4096}")
        A("s_nop 0")
        for j in range(4): A(f"buffer_load_dwordx4 v{vAcc+4*su+j}, s[{qA}:{qA+3}], s{sT0} offen offset:{j*1024} lds")
    A("s_waitcnt vmcnt(0)")
    wp_reads(A, 4096)
    A("s_waitcnt lgkmcnt(0)")
    wp_stores(A, sT1)
    A(f"s_add_u32 s{sT2}, s{sT2}, 160")
    A(f"s_cmp_lt_u32 s{sT2}, 270")
    A(f"s_cbranch_scc1 {L}w2j")
    A(f"{L}ffnd:")
    for i in range(4): A(f"v_mov_b32 v{vOnes+i}, -1")
    A(f"s_mul_i32 s6, s{qP}, 30720")
    A(f"s_mul_i32 s7, s{sWave}, 7680")
    A(f"s_min_u32 s7, s7, 22528")
    A(f"s_add_u32 s{sSen}, s6, s7")
    A(f"s_lshl_b32 s{sWpO}, s{sU}, 12")
    wp_addr(A, 13, reg=R4, n=1, dst=vWpB)
    A(f"s_lshl_b32 s{sTch}, s{sHead}, 14")
    A(f"v_and_b32 v{vTch}, 15, v{vLane}")
    A(f"v_lshlrev_b32 v{vTch}, 7, v{vTch}")
    A(f"v_add_u32 v{vL16+1}, 4096, v{vL16}")
    A(f"s_lshl_b32 s6, s{sRb}, 5")
    A(f"s_add_u32 s7, s6, s{sHead}")
    A(f"s_lshl_b32 s7, s7, 7")
    A(f"v_mov_b32 v{vFo}, s7")
    stamp(4)
    A(f"s_mov_b32 s{sT1}, {R0}")
    kv_addr(A, sT1)
    A(f"v_mov_b32 v{vL}, 0")
    A(f"v_mov_b32 v{vL+1}, 0")
    A(f"s_cmp_eq_u32 s{sWave}, 0")
    A(f"s_cselect_b32 s{sTail}, 0, 0x8000")
    srd(A, qX, pFl, pFl + 1, 0x8000)
    A(f"s_add_u32 s6, s{sNo}, 1")
    A(f"v_mov_b32 v{vFv}, s6")
    A(f"v_mov_b32 v{vFv+1}, s{sNo+1}")
    A(f"s_waitcnt vmcnt(20)")
    A("s_barrier")
    stamp(5, True)
    lq = LQ()
    for p in range(3):
        A(kread(p, 0, p)); lq.issue(("f", 16 + p))
    ex0 = {33 + 4 * i: [hst(1, i)] for i in range(4)}
    rest = kvq() if SPL[1] == 0 else [f"s_add_u32 m0, s{sKVm}, 16384"] + kvq()[6:]
    ex0 = {32 + i: x for i, x in enumerate(spread(rest, 16))}
    attn_seg(A, lq, 2, ex0, sm_lo=0, sm_hi=0, look=[2])
    for p in range(3):
        A(kread(p, 1, p)); lq.issue(("f", p))
    A("s_nop 7")
    for e in range(10):
        for x in sm_exp(0, e): A(x)
        if e:
            for x in sm_post(0, e - 1): A(x)
    assert XP or lq.q == [("f", 0), ("f", 1), ("f", 2)]
    def put(ex, slots, items):
        for sl, its in zip(slots, spread(items, len(slots))): ex.setdefault(sl, []).extend(its)
    PA = Asm()
    PA(f"s_lshl_b32 s6, s{sRb}, 5")
    PA(f"v_and_b32 v{vAp}, 3, v{vLane}")
    PA(f"v_lshlrev_b32 v{vAp}, 2, v{vAp}")
    PA(f"s_and_b32 s7, s{sHead}, 0x13")
    PA(f"s_add_u32 s7, s7, s6")
    PA(f"v_add_lshl_u32 v{vAp}, v{vAp}, s7, 7")
    PA(f"s_lshr_b32 s7, s{qRb}, 1")
    PA(f"s_lshl_b32 s6, s7, 5")
    PA(f"s_lshl_b32 s{sT0}, s{sWave}, 3")
    PA(f"s_add_u32 s6, s6, s{sT0}")
    PA(f"v_add_lshl_u32 v{vAa}, v{vLane}, s6, 7")
    PA(f"v_cmp_gt_u32 vcc, 8, v{vLane}")
    PA(f"v_and_b32 v{vAb}, 15, v{vLane}")
    PA(f"v_lshlrev_b32 v{vAb}, 2, v{vAb}")
    PA(f"s_lshl_b32 s6, s{sWave}, 6")
    PA(f"s_add_u32 s6, s6, 3")
    PA(f"v_add_lshl_u32 v{vAb}, v{vAb}, s6, 7")
    PA(f"v_cndmask_b32 v{vAa}, v{vAb}, v{vAa}, vcc")
    PA(f"v_bfe_u32 v{vAo}, v{vLane}, 4, 1")
    PA(f"v_add_u32 v{vAo}, s{qCb}, v{vAo}")
    PA(f"v_cmp_gt_u32 vcc, 32, v{vLane}")
    PA(f"v_mov_b32 v{vPb}, s7")
    PA(f"s_mul_i32 s6, s{qP}, 21")
    PA(f"s_add_u32 s6, s6, 1")
    PA(f"v_cndmask_b32 v{vAo}, v{vPb}, v{vAo}, vcc")
    PA(f"s_lshr_b32 s6, s6, 1")
    PA(f"v_and_b32 v{vPb}, 15, v{vLane}")
    PA(f"v_min_u32 v{vPb}, 10, v{vPb}")
    PA(f"v_add_u32 v{vPb}, s6, v{vPb}")
    PA(f"v_cmp_gt_u32 vcc, 48, v{vLane}")
    PA(f"v_lshl_add_u32 v{vAo}, v{vAo}, 5, v{vPb}")
    PA(f"v_lshlrev_b32 v{vAo}, 7, v{vAo}")
    PA(f"v_cndmask_b32 v{vAo}, v{vAp}, v{vAo}, vcc")
    odd = lambda a, b: [x for x in range(a, b) if x & 1]
    def wo_job(ex, f, s0, s1):
        r = aWq + 4 * (f & 1)
        ex.setdefault(s0 - 2, []).append(f"v_xor_b32 v{vWpA}, {((f&3)<<5)|((f&4)<<10)}, v{vWpB}")
        ex[(s0, "ds")] = [f"ds_read_b64_tr_b16 {ar(r,2)}, v{vWpA} ; @need P 0"]
        ex[(s0 + 2, "ds")] = [f"ds_read_b64_tr_b16 {ar(r+2,2)}, v{vWpA} offset:2048"]
        ex.setdefault(s1, []).append(f"buffer_store_dwordx4 {ar(r,4)}, v{vL16+f//4}, s[{sWp}:{sWp+3}], s{sWpO} offen offset:{(f&3)*1024} sc1 ; @put H")
    def mark(f): return f"buffer_store_dwordx4 {vr(vOnes,4)}, v{vL16+f//4}, s[{qI}:{qI+3}], s{sSen} offen offset:{(f&3)*1024} sc1 ; @put H"
    stamp(6, True)
    BW = {0: 12, 1: 16, 2: 13, 3: 12, 4: 14, 5: 13}
    for t_ in range(8):
        ex = {}
        delta = hex((-98304) & 0xffffffff) if t_ == 3 else "0x8000"
        if t_ < 7:
            for p in range(8):
                ex.setdefault(max(2 * (p - 3) + 1, 1) if p >= 3 else 2 * p, []).append(f"v_add_u32 v{vKr+p}, {delta}, v{vKr+p}")
            for dt in range(4):
                ex.setdefault(2 * (28 + dt - 3) + 2, []).append(f"v_add_u32 v{vVr+dt}, {delta}, v{vVr+dt}")
        if t_ < 5:
            for sl, it in zip([32, 33, 37, 41, 45, 47, 49, 53, 57, 61], kv_dma()): ex.setdefault(sl, []).append(it)
            ex.setdefault(62, []).append(f"s_add_u32 s{sKVo}, s{sKVo}, 16384")
            ex.setdefault(59, []).append(f"s_add_u32 s{sKVm}, s{sKVm}, {hex((-98304) & 0xffffffff) if t_ == 0 else 32768}")
        if t_ < 6: ex[(26, "pre")] = [f"s_waitcnt vmcnt({BW[t_]})", "s_barrier ; @need KV 8 @need Xa 0" + (" @need HH 0" if t_ == 3 else "")]
        if t_ < 2: put(ex, [3, 9, 15, 23], [hst(t_, i) for i in range(4)])
        if t_ in (2, 3, 4):
            wo_job(ex, 2 * t_ - 4, 5, 17); wo_job(ex, 2 * t_ - 3, 11, 29)
        if t_ == 3: put(ex, [35], [f"buffer_store_dwordx2 {vr(vFv,2)}, v{vFo}, s[{qX}:{qX+3}], s{sTail} offen sc1"])
        if t_ in (3, 4): put(ex, [21], [mark(t_ - 3)])
        if t_ == 4:
            for sl, its in zip(list(range(14, 25)) + list(range(27, 52)), spread(PA.lines, 36)): ex.setdefault((sl, "post"), []).extend(its)
        if t_ == 5:
            wo_job(ex, 6, 5, 17); wo_job(ex, 7, 11, 29)
            put(ex, [21, 33, 39, 45], [mark(i) for i in range(2, 6)])
            put(ex, [51], [f"global_load_dwordx2 {vr(vPa,2)}, v{vAa}, s[{pFl}:{pFl+1}] sc1"])
            put(ex, [x for x in range(30, 64) if x not in (33, 39, 45, 51)], q_setup())
        elif t_ == 6:
            put(ex, [5, 13], [mark(6), mark(7)])
            B_ = Asm(); B_("s_waitcnt vmcnt(2)"); B_(f"s_cmp_lg_u32 s{qP}, 3"); B_(f"s_cbranch_scc1 {L}w1r")
            flag_wait(B_, f"{L}w1", 1, [(vPa, vAa)]); B_("s_barrier")
            ex[(26, "pre")] = B_.lines
            put(ex, odd(31, 64), q_loads(0) + q_loads(1)[:6])
        elif t_ == 7:
            ex[(26, "pre")] = ["s_barrier"]
            put(ex, [1, 3, 5, 7, 9, 11, 15, 17, 19, 21, 23, 25, 27, 31], q_loads(1)[6:] + q_loads(2)[:7])
        if t_ >= 5: stamp(t_ + 2, True)
        attn_seg(A, lq, 0, ex)
        attn_seg(A, lq, 1, ex, look=(True if t_ < 7 else [1]))
        if t_ < 7:
            attn_seg(A, lq, 2, ex)
            attn_seg(A, lq, 3, ex)
    stamp(10, True)
    ex = {}
    put(ex, [33, 37, 41, 45, 49, 53, 57], q_loads(2)[7:])
    attn_seg(A, lq, 2, ex, mfma=False, look=[3])
    attn_seg(A, lq, 3, ex, sm_hi=54, look=[3])
    stamp(5)
    for i_ in (11, 12, 13): stamp(i_, True)
    if "fine2" in XP:
        A(f"s_lshl_b32 s96, s2, 2"); A(f"s_add_u32 s96, s96, s{sWave}"); A("s_lshl_b32 s96, s96, 10")
        A(f"v_lshl_add_u32 v227, v{vLane}, 2, s96")
        A(f"s_add_u32 s96, s{pWs}, 0x3200000"); A(f"s_addc_u32 s97, s{pWs+1}, 0")
        for i in range(3): A(f"global_store_dword v227, v{224+i}, s[96:97] offset:{256*i}")
    A(f"v_mov_b32 v{t}, v{vL}")
    A(f"v_mov_b32 v{t+1}, v{vL+1}")
    A(f"v_bfe_u32 v{t+2}, v{vLane}, 4, 1")
    A(f"v_lshrrev_b32 v{t+3}, 5, v{vLane}")
    A(f"v_permlane32_swap_b32 v{t}, v{vL}")
    A(f"v_permlane32_swap_b32 v{t+1}, v{vL+1}")
    A(f"v_lshlrev_b32 v{t+3}, 8, v{t+3}")
    A(f"v_add_f32 v{vL}, v{vL}, v{t}")
    A(f"v_add_f32 v{vL+1}, v{vL+1}, v{t+1}")
    A(f"v_lshl_add_u32 v{t+3}, v{t+2}, 10, v{t+3}")
    A(f"v_and_b32 v{t+2}, 15, v{vLane}")
    A(f"v_lshl_add_u32 v{vOo}, v{t+2}, 4, v{t+3}")
    A(f"v_mov_b32 v{t+8}, {hex(f2u(2.0**-40))}")
    A(f"v_mov_b32 v{t+9}, {hex(f2u(2.0**40))}")
    A(f"v_cmp_gt_f32 s[{sE0}:{sE0+1}], v{vL}, v{t+8}")
    A(f"v_cmp_lt_f32 s[{sE0+2}:{sE0+3}], v{vL}, v{t+9}")
    A(f"v_cmp_gt_f32 s[4:5], v{vL+1}, v{t+8}")
    A(f"v_cmp_lt_f32 s[6:7], v{vL+1}, v{t+9}")
    A(f"v_rcp_f32 v{t}, v{vL}")
    A(f"v_rcp_f32 v{t+1}, v{vL+1}")
    A("s_nop 1")
    A(f"s_and_b64 s[{sE0}:{sE0+1}], s[{sE0}:{sE0+1}], s[{sE0+2}:{sE0+3}]")
    A(f"s_and_b64 s[4:5], s[4:5], s[6:7]")
    A(f"s_and_b64 s[4:5], s[4:5], s[{sE0}:{sE0+1}]")
    A(f"s_cmp_eq_u64 s[4:5], exec")
    if not XP: A(f"s_cbranch_scc0 {L}slow ; slowbr")
    A(f"{L}oep:")
    A(f"s_lshl_b32 s6, s{sHead}, 14")
    n = 0
    for dt in range(4):
        for qt in range(2):
            b = vS + (n % 4) * 16; pk = vP + (n % 4) * 8; n += 1
            for i in range(16): A(f"v_accvgpr_read_b32 v{b+i}, a{aO+(qt*4+dt)*16+i}")
            for i in range(8):
                A(f"v_pk_mul_f32 {vr(b+2*i,2)}, {vr(b+2*i,2)}, {vr(t,2)} " + ("op_sel_hi:[1,0]" if qt == 0 else "op_sel:[0,1]"))
            for i in range(8): A(f"v_cvt_pk_bf16_f32 v{pk+i}, v{b+2*i}, v{b+2*i+1}")
            for j in range(2):
                A(f"buffer_store_dwordx4 {vr(pk+4*j,4)}, v{vOo}, s[{sA}:{sA+3}], s6 offen offset:{qt*2048+j*512} sc1 ; @put H")
        if dt < 3: A("s_add_u32 s6, s6, 4096")
    stamp(6); stamp(7)
    gemm2(A, L, emit, stamp)
    A(f"{L}end:")
    A("s_endpgm")
    A(f"{L}slow:")
    A("s_waitcnt vmcnt(0) lgkmcnt(0)")
    srd(A, sK, pK, pK + 1, 16777216)
    srd(A, sV, pV, pV + 1, 16777216)
    kv_dma_voff(A, vKd, vVd)
    A(f"s_lshl_b32 s{sT1}, s{sWave}, 13")
    A(f"s_add_u32 s{sT1}, s{sT1}, {R2}")
    kv_addr(A, sT1)
    for dt in range(4): A(f"v_add_u32 v{vVr+dt}, {R4-R2-16384}, v{vVr+dt}")
    vM = vTm + 6
    A(f"v_mov_b32 v{vM}, 0xff800000")
    A(f"v_mov_b32 v{vM+1}, 0xff800000")
    A(f"v_mov_b32 v{vL}, 0")
    A(f"v_mov_b32 v{vL+1}, 0")
    for i in range(4): A(f"v_mov_b32 v{vTm+12+i}, 0")
    A("s_nop 1")
    for i in range(8): mf32(A, ar(aO + 16 * i, 16), vr(vTm + 12, 4), vr(vTm + 12, 4), "0")
    A(f"s_mov_b32 s{sT}, 0")
    A(f"{L}sl:")
    A(f"s_and_b32 s{sT0}, s{sT}, 15")
    A(f"s_lshl_b32 s{sT0}, s{sT0}, 13")
    A(f"s_lshl_b32 s{sKVo}, s{sHead}, 19")
    A(f"s_add_u32 s{sKVo}, s{sKVo}, s{sT0}")
    A(f"s_add_u32 s{sKVo}, s{sKVo}, {1536*256}")
    for hf in range(2):
        A(f"s_add_u32 m0, s{sT1}, {hf*4096}")
        A("s_nop 0")
        for j in range(4): A(f"buffer_load_dwordx4 v{vKd+j}, s[{sK}:{sK+3}], s{sKVo} offen offset:{j*1024} lds")
        A(f"s_add_u32 m0, s{sT1}, {R4-R2+hf*4096}")
        A("s_nop 0")
        for j in range(4): A(f"buffer_load_dwordx4 v{vVd}, s[{sV}:{sV+3}], s{sKVo} offen offset:{j*1024} lds")
        if hf == 0: A(f"s_add_u32 s{sKVo}, s{sKVo}, 4096")
    A("s_waitcnt vmcnt(0)")
    for p in range(8):
        A(kread(p, 0, p % 4))
        A("s_waitcnt lgkmcnt(0)")
        for qt in range(2): mf32(A, vr(vS + qt * 16, 16), vr(vF + (p % 4) * 4, 4), vr(vQ + (qt * 8 + p) * 4, 4), "0" if p == 0 else None)
    A("s_nop 11")
    A(f"s_cmp_ge_u32 s{sT}, 16")
    A(f"s_cbranch_scc1 {L}sl2")
    for qt in range(2):
        for i in range(8): A(f"v_max3_f32 v{vM+qt}, v{vS+qt*16+2*i}, v{vS+qt*16+2*i+1}, v{vM+qt}")
    A(f"s_cmp_lg_u32 s{sT}, 15")
    A(f"s_cbranch_scc1 {L}sl3")
    A(f"v_mov_b32 v{vM+2}, v{vM}")
    A(f"v_mov_b32 v{vM+3}, v{vM+1}")
    A("s_nop 1")
    A(f"v_permlane32_swap_b32 v{vM+2}, v{vM}")
    A(f"v_permlane32_swap_b32 v{vM+3}, v{vM+1}")
    A(f"v_max_f32 v{vM}, v{vM}, v{vM+2}")
    A(f"v_max_f32 v{vM+1}, v{vM+1}, v{vM+3}")
    A(f"s_branch {L}sl3")
    A(f"{L}sl2:")
    for e in range(32):
        r, qt, ks = sm_reg(0, e)
        A(f"v_sub_f32 v{r}, v{r}, v{vM+qt}")
        A(f"v_exp_f32 v{r}, v{r}")
        A("s_nop 0")
        for x in sm_post(0, e): A(x)
    for i in range(8):
        for sec in range(2): A(vread(i // 4, i % 4, 0, sec, i % 4))
        A("s_waitcnt lgkmcnt(0)")
        for qt in range(2): mf32(A, ar(aO + (qt * 4 + i % 4) * 16, 16), vr(vF + (i % 4) * 4, 4), vr(vP + (qt * 2 + i // 4) * 4, 4))
    A(f"{L}sl3:")
    A(f"s_add_u32 s{sT}, s{sT}, 1")
    A(f"s_cmp_lt_u32 s{sT}, 32")
    A(f"s_cbranch_scc1 {L}sl")
    A(f"v_mov_b32 v{t}, v{vL}")
    A(f"v_mov_b32 v{t+1}, v{vL+1}")
    A("s_nop 1")
    A(f"v_permlane32_swap_b32 v{t}, v{vL}")
    A(f"v_permlane32_swap_b32 v{t+1}, v{vL+1}")
    A(f"v_add_f32 v{vL}, v{vL}, v{t}")
    A(f"v_add_f32 v{vL+1}, v{vL+1}, v{t+1}")
    A(f"v_rcp_f32 v{t}, v{vL}")
    A(f"v_rcp_f32 v{t+1}, v{vL+1}")
    A("s_nop 7")
    A(f"s_branch {L}oep")
    kd(A, name, 512, 256)

def checks(A, entry):
    if XP: return
    nb = check_hazards(A.lines)
    tot = 0
    for wg in (0, 5, 6, 31, 24, 28, 255):
        for w in (0, 1, 3):
            for slow in (0, 1):
                def hk(x, S):
                    if x.opn == "v_readfirstlane_b32" and "tag" not in x.text:
                        S[sWave] = w
                    if "slowbr" in x.text: return slow
                    if "pollbr" in x.text: return 1
                p, c = check_waits(A.lines, entry, {2: wg}, hk)
                tot += p
    print("hazards:", nb, "waits:", tot, c)

def build(fn, stamps=False):
    HDR = open("cdna_kernels/" + NAME + ".s.ref").read().split("; Override")[0]
    A = Asm()
    A(HDR)
    A(f"; @launch grid=(256,1,1) block=(256,1,1) lds={P1_LDS}")
    A('.amdgcn_target "amdgcn-amd-amdhsa--gfx950"')
    A(".text")
    gen_p1(A, NAME + "_kernel", stamps=stamps)
    checks(A, NAME + "_kernel")
    if "hplain" in XP: A.lines = [l.replace(" sc1", "") if ("store" in l and f"s[{sA}:{sA+3}], s6 " not in l and f"s[{sA}:{sA+3}]" in l) else l for l in A.lines]
    if "oplain" in XP: A.lines = [l.replace(" sc1", "") if ("store" in l and f"s[{sA}:{sA+3}], s6 " in l) else l for l in A.lines]
    if "iplain" in XP: A.lines = [l.replace(" sc1", "") if ("store" in l and f"s[{qI}:{qI+3}], s{sT0}" in l) else l for l in A.lines]
    if "nt" in XP: A.lines = [l.replace(" sc1", " sc1 nt") if ("buffer_store" in l) else l for l in A.lines]
    if "sc01" in XP: A.lines = [l.replace(" sc1", " sc0 sc1") if ("buffer_store" in l) else l for l in A.lines]
    open(fn, "w").write(A.text())
if __name__ == "__main__":
    build("fu.s")
    build("fu_st.s", stamps=True)
```

```python
from asmlib import *
from common import *

P1_LDS = 163840
R0, R1, R2, R3, R4 = 0, 32768, 65536, 98304, 131072
CS = R3
TAILBIT = 0x30000
ROT = False
TLBW = True
FLAG = 'byte'
FINE = False
EVMASK = 0x180
vFin = 60
XP = set()

class LQ:
    def __init__(s): s.q = []
    def issue(s, tag): s.q.append(tag)
    def wait(s, A, tags):
        idx = max([i for i, t in enumerate(s.q) if t in tags], default=-1)
        if idx < 0: return
        n = len(s.q) - 1 - idx
        assert n <= 15
        A(f"s_waitcnt lgkmcnt({n})")
        s.q = s.q[idx + 1:]
    def clear(s): s.q = []

sX, sWq, sW1, sW3, sK, sV, sA, sWp, sSrc, sSt = 8, 12, 16, 20, 24, 28, 32, 36, 40, 44
sWave, sHead, sRb, sFb, sHasF = 48, 49, 50, 51, 52
sXo, sWqo, sW13o, sM0X, sM0W, sD, sTail, sSlot = 53, 54, 55, 56, 57, 58, 59, 60
sT0, sT1, sT2 = 61, 62, 63
pX, pK, pV, pWq, pWo, pBx, pW1, pW3, pW2, pOut, pDbg, pWs = range(64, 88, 2)
sKVo, sKVm, sDelta, sT, sU, sMask, sXb, sC0 = 88, 89, 90, 91, 92, 93, 94, 95
sX2, sM0d, sXst, sM0t, sProd, sPo = 76, 74, 75, 3, 4, 5
sE0 = 96
vLane = 1
vXd, vWqd, vW13d, vXr, vWqr, vW13r = 2, 10, 12, 13, 15, 23
vZero = 27
vSt = 28
vTm = 44
vQ = 64
vAcc = 128
aG, aUp, aCs, aXf, aWf, aOne, aWp = 0, 64, 128, 144, 176, 192, 196
vKr, vVr, vKd, vVd, vL, vOo = 2, 10, 14, 18, 22, 24
vS, vP, vF = 128, 192, 208
aO = 128
sNo = 100
pFl = 84
qA, qW, qX, qO, qI = 8, 12, 16, 20, 44
qP, qG, qAo, qWo, qWm, qN, qAs, qWs = 53, 54, 55, 56, 57, 58, 51, 60
qAe, qWe, qNl, qSo, qXo, qRb, qCb, qT0, qT1, qIn = 74, 75, 3, 93, 94, 76, 77, 78, 79, 24
vFo, vFv, vPa, vPb, vAa, vAb, vAo, vAp = 25, 28, 30, 32, 34, 35, 36, 37
vL16, vWr2, vXo2, vL8, vOwn = 54, 2, 4, 5, 6
aA2, aW2, aWq = 0, 64, 64
RING2 = 81920
TOUCH = 0
SPL = (1, 1)
OPT = set()
vTch, sTch = 26, 92
vOnes = 40
vWpB, vWpA = 38, 39
sWpO, sSen = 5, 4


def mf16(A, d, a, b, c=None):
    A(f"v_mfma_f32_16x16x32_bf16 {d}, {a}, {b}, {d if c is None else c}")
def mf32(A, d, a, b, c=None):
    A(f"v_mfma_f32_32x32x16_bf16 {d}, {a}, {b}, {d if c is None else c}")

def spread(items, nslots):
    out = [[] for _ in range(nslots)]
    n = len(items)
    for i, it in enumerate(items):
        out[min(nslots - 1, (i * nslots) // n)].append(it)
    return out

def frag_list(ffn):
    fr = [("Q", p) for p in range(8)]
    if ffn:
        for p in range(4): fr += [("G", p), ("U", p)]
    return fr

def wread(fr, k, sec, buf):
    c, p = fr
    if c == "Q": ad, off = vWqr + p, sec * 1024
    else: ad, off = vW13r + p, (2048 if c == "G" else 3072) + sec * 512
    return f"ds_read_b64_tr_b16 {ar(aWf+buf*4+2*sec,2)}, v{ad} offset:{off + k*16384}"

def xread(s, st, rt):
    return f"ds_read_b128 {ar(aXf+st*16+rt*4,4)}, v{vXr+s} offset:{rt*2048}"

def dma_w(ffn, force=False):
    it = [f"s_max_u32 m0, s{sM0W}, s{sTail}",
          f"buffer_load_dwordx4 v{vWqd}, s[{sWq}:{sWq+3}], s{sWqo} offen lds ; @put W",
          f"buffer_load_dwordx4 v{vWqd+1}, s[{sWq}:{sWq+3}], s{sWqo} offen offset:1024 lds ; @put W"]
    if ffn or force:
        it += [f"buffer_load_dwordx4 v{vW13d}, s[{sW1}:{sW1+3}], s{sW13o} offen offset:2048 lds ; @put W",
               f"buffer_load_dwordx4 v{vW13d}, s[{sW3}:{sW3+3}], s{sW13o} offen offset:3072 lds ; @put W"]
    it += [f"s_add_u32 s{sWqo}, s{sWqo}, {32*8192}"]
    if ffn or force: it += [f"s_add_u32 s{sW13o}, s{sW13o}, {32*3456}"]
    it += [f"s_add_u32 s{sSlot}, s{sSlot}, 16384\ns_and_b32 s{sSlot}, s{sSlot}, 0xffff",
           f"s_add_u32 s{sM0W}, s{sSlot}, s{sC0}"]
    return it

def dma_x(half):
    if half == 0: it = [f"s_mov_b32 m0, s{sM0X}"]
    else: it = [f"s_add_u32 m0, s{sM0X}, s{sM0d}"]
    sd = sX if half == 0 else sX2
    for j in range(4):
        it.append(f"buffer_load_dwordx4 v{vXd+4*half+j}, s[{sd}:{sd+3}], s{sXo} offen offset:{j*1024} lds")
    if half: it += [f"s_add_u32 s{sXo}, s{sXo}, s{sXst}\ns_xor_b32 s{sM0X}, s{sM0X}, s{sM0t}"]
    return it

def fine(A):
    A("s_memtime s[98:99]"); A("s_waitcnt lgkmcnt(0)")
    A("s_mov_b32 m0, s7")
    A(f"v_writelane_b32 v{vFin}, s96, m0")
    A(f"v_writelane_b32 v{vFin+1}, s100, m0")
    A(f"v_writelane_b32 v{vFin-1}, s98, m0")
    A("s_add_u32 s7, s7, 1")

def gemm_loop(A, ffn, L):
    fr = frag_list(ffn); nf = len(fr)
    nw = 4 if ffn else 2
    ones = {("Q", 0): 0, ("Q", 1): 1, ("G", 0): 2, ("U", 0): 3}
    lq = LQ()
    for f in range(3):
        lq.issue(("w", f)); lq.issue(("w", f))
    A(".p2align 6")
    A(f"{L}:")
    for k in range(2):
        if k == 1:
            A(f"s_bitcmp1_b32 s{sMask}, s{sD}")
            A(f"s_cbranch_scc1 {L}_ev")
            A(f"{L}_evret:")
        if k == 0:
            items = [("x", rt) for rt in range(4)] + dma_x(1) + dma_w(ffn)
            slots = spread(items, 2 * (nf - 2))
            tog = {2: [f"v_xor_b32 v{vXr}, 0x18000, v{vXr}"]}
        else:
            items = dma_x(0) + dma_w(ffn) + [f"s_add_u32 s{sD}, s{sD}, 1"]
            slots = spread(items, 2 * (nf - 5))
            slots += [[f"s_cmp_eq_u32 s{sD}, 10\ns_cbranch_scc1 {L}_nw\ns_waitcnt vmcnt({2*nw+4})\n{L}_nw:"],
                      [("x", 0)], [("x", 1)], [("x", 2)], [("x", 3)], []]
            tog = {0: [f"v_xor_b32 v{vXr+1}, 0x18000, v{vXr+1}"]}
            for f, (c, p) in enumerate(fr):
                if c == "G": continue
                reg = vWqr + p if c == "Q" else vW13r + p
                tog.setdefault(max(f - 3, -1) + 1, []).append(f"v_xor_b32 v{reg}, 0x38000, v{reg}")
        for f in range(nf):
            c, p = fr[f]
            lq.wait(A, [("w", f)] + ([("x", k)] if f == 0 else []))
            buf = f % 4
            for rt in range(4):
                r_ = rt if f % 2 == 0 else 3 - rt
                if c == "Q": d = vr(vAcc + (p * 4 + r_) * 4, 4)
                else: d = ar((aG if c == "G" else aUp) + (p * 4 + r_) * 4, 4)
                mf16(A, d, ar(aWf + buf * 4, 4), ar(aXf + k * 16 + r_ * 4, 4))
                if f + 3 < nf and rt < 2:
                    A(wread(fr[f + 3], k, rt, (f + 3) % 4)); lq.issue(("w", f + 3))
                if f == nf - 2:
                    A(wread(fr[rt // 2], 1 - k, rt % 2, (rt // 2) % 4)); lq.issue(("w", rt // 2))
                if f == nf - 1 and rt < 2:
                    A(wread(fr[2], 1 - k, rt, 2)); lq.issue(("w", 2))
                if rt >= 2 and f < nf - 2:
                    for it in slots[2 * f + rt - 2]:
                        if isinstance(it, tuple):
                            A(xread(1 - k, 1 - k, it[1]) + (" ; @chkx" if k == 1 else "")); lq.issue(("x", 1 - k))
                        else:
                            if "lds" in it and " m0," in A.lines[-1]: A("s_nop 0")
                            A(it)
                if rt == 3:
                    for t in tog.get(f, []): A(t)
            if fr[f] in ones:
                mf16(A, ar(aCs + ones[fr[f]] * 4, 4), ar(aWf + buf * 4, 4), ar(aOne, 4))
            if f == nf - 3:
                n = 2 * nw + 8
                if FINE:
                    A("s_memtime s[96:97]"); A("s_waitcnt lgkmcnt(0)")
                A(f"s_waitcnt vmcnt({n}) lgkmcnt(0)")
                lq.clear()
                if FINE:
                    A("s_memtime s[100:101]"); A("s_waitcnt lgkmcnt(0)")
                A(f"s_barrier")
                if FINE: fine(A)
    A(f"s_cmp_lt_u32 s{sD}, 10")
    A(f"s_cbranch_scc1 {L}")
    assert lq.q == [("w", 0), ("w", 0), ("w", 1), ("w", 1), ("w", 2), ("w", 2)], lq.q

def kv_dma_voff(A, kd_, vd_, nv=4):
    t = vTm
    A(f"v_lshrrev_b32 v{t+12}, 4, v{vLane}")
    A(f"v_and_b32 v{t+14}, 15, v{vLane}")
    A(f"v_xor_b32 v{t+13}, v{t+14}, v{t+12}")
    A(f"v_lshlrev_b32 v{t+13}, 4, v{t+13}")
    A(f"v_lshl_add_u32 v{kd_}, v{t+12}, 8, v{t+13}")
    for j in range(1, 4): A(f"v_xor_b32 v{kd_+j}, {64*j}, v{kd_}")
    A(f"v_lshlrev_b32 v{t+13}, 2, v{t+12}")
    A(f"v_xor_b32 v{t+13}, v{t+13}, v{t+14}")
    A(f"v_lshlrev_b32 v{t+13}, 4, v{t+13}")
    A(f"v_lshl_add_u32 v{vd_}, v{t+12}, 8, v{t+13}")
    for j in range(1, nv): A(f"v_mov_b32 v{vd_+j}, v{vd_}")

def gemm_events(A, L):
    A(f"{L}_ev:")
    A(f"s_cmp_eq_u32 s{sD}, 8")
    A(f"s_cbranch_scc1 {L}_ev8")
    A(f"global_load_dword v{vTm}, v{vTm+2}, s[{pDbg}:{pDbg+1}] sc1")
    A(f"global_load_dwordx2 {vr(vTm+4,2)}, v{vTm+6}, s[{pDbg}:{pDbg+1}] offset:128 sc1")
    A(f"s_branch {L}_evret")
    A(f"{L}_ev8:")
    A(f"s_mov_b32 s{sTail}, {TAILBIT}")
    for d in (sWq, sW1, sW3): A(f"s_mov_b32 s{d+2}, 0")
    for d, s_ in ((sX, sK), (sX2, sV)):
        A(f"s_mov_b64 s[{d}:{d+1}], s[{s_}:{s_+1}]")
        A(f"s_mov_b64 s[{d+2}:{d+3}], s[{s_+2}:{s_+3}]")
    for j in range(8): A(f"v_mov_b32 v{vXd+j}, v{vQ+min(j,4)}")
    A(f"s_lshl_b32 s{sM0X}, s{sWave}, 12")
    A(f"s_mov_b32 s{sXo}, s{sKVo}")
    A(f"s_movk_i32 s{sM0d}, 16384")
    A(f"s_movk_i32 s{sXst}, 16384")
    A(f"s_mov_b32 s{sM0t}, 0x8000")
    A(f"s_mov_b32 s{sT1}, 0")
    A(f"s_waitcnt vmcnt(12)")
    A(f"{L}_chk:")
    A(f"v_cmp_ne_u32 vcc, 0x01010101, v{vTm}")
    A(f"v_cmp_eq_u32 s[6:7], 0, v{vTm+5}")
    A("s_nop 3")
    A(f"s_or_b64 s[6:7], s[6:7], vcc")
    A(f"s_cbranch_scc0 {L}_rdy ; pollbr")
    A(f"s_add_u32 s{sT1}, s{sT1}, 1")
    A(f"s_cmp_ge_u32 s{sT1}, 0x40000")
    A(f"s_cbranch_scc1 {L}_rdy")
    A("s_sleep 2")
    A(f"global_load_dword v{vTm}, v{vTm+2}, s[{pDbg}:{pDbg+1}] sc1")
    A(f"global_load_dwordx2 {vr(vTm+4,2)}, v{vTm+6}, s[{pDbg}:{pDbg+1}] offset:128 sc1")
    A("s_waitcnt vmcnt(0)")
    A(f"s_branch {L}_chk")
    A(f"{L}_rdy:")
    A(f"v_readfirstlane_b32 s{sNo}, v{vTm+4} ; tag")
    A(f"v_readfirstlane_b32 s{sNo+1}, v{vTm+5} ; tag")
    A(f"s_add_u32 s{pFl}, s{pWs}, {FL_OFF}")
    A(f"s_addc_u32 s{pFl+1}, s{pWs+1}, 0")
    A(f"s_lshl2_add_u32 s{sT0}, s{sRb}, s{sWave}")
    A(f"s_lshl_b32 s{sT0}, s{sT0}, 10")
    for rt in range(4):
        A(f"buffer_load_dwordx4 {vr(vSt+4*rt,4)}, v{vTm+3}, s[{sSt}:{sSt+3}], s{sT0} offen offset:{rt*256} sc1")
    A(f"s_branch {L}_evret")

def kv_addr(A, base_expr_sgpr):
    t0, t1, t2, t3 = vTm + 12, vTm + 13, vTm + 14, vTm + 15
    A(f"v_and_b32 v{t0}, 31, v{vLane}")
    A(f"v_lshrrev_b32 v{t1}, 5, v{vLane}")
    A(f"v_and_b32 v{t2}, 15, v{vLane}")
    A(f"v_xor_b32 v{t2}, v{t2}, v{t1}")
    A(f"s_lshl_b32 s{sT0}, s{sWave}, 2")
    A(f"v_xor_b32 v{t2}, s{sT0}, v{t2}")
    A(f"v_lshlrev_b32 v{t2}, 4, v{t2}")
    A(f"v_lshl_add_u32 v{t2}, v{t0}, 8, v{t2}")
    A(f"v_add_u32 v{vKr}, s{base_expr_sgpr}, v{t2}")
    for p in range(1, 8): A(f"v_xor_b32 v{vKr+p}, {32*p}, v{vKr}")
    A(f"v_bfe_u32 v{t0}, v{vLane}, 2, 2")
    A(f"v_lshl_add_u32 v{t2}, v{t1}, 2, v{t0}")
    A(f"v_lshlrev_b32 v{t2}, 8, v{t2}")
    A(f"v_lshl_add_u32 v{t2}, v{t0}, 6, v{t2}")
    A(f"v_bfe_u32 v{t3}, v{vLane}, 1, 1")
    A(f"v_lshl_add_u32 v{t2}, v{t3}, 5, v{t2}")
    A(f"v_bfe_u32 v{t3}, v{vLane}, 4, 1")
    A(f"v_lshl_add_u32 v{t2}, v{t3}, 4, v{t2}")
    A(f"v_and_b32 v{t3}, 1, v{vLane}")
    A(f"v_lshl_add_u32 v{t2}, v{t3}, 3, v{t2}")
    A(f"s_add_u32 s{sT0}, s{base_expr_sgpr}, 16384")
    A(f"v_add_u32 v{vVr}, s{sT0}, v{t2}")
    for dt in range(1, 4): A(f"v_xor_b32 v{vVr+dt}, {64*dt}, v{vVr}")

def kv_dma():
    it = [f"s_mov_b32 m0, s{sKVm}"]
    for j in range(4):
        it.append(f"buffer_load_dwordx4 v{vKd+j}, s[{sK}:{sK+3}], s{sKVo} offen offset:{j*1024} lds")
    it.append("s_add_u32 m0, m0, 16384")
    for j in range(4):
        it.append(f"buffer_load_dwordx4 v{vVd+j}, s[{sV}:{sV+3}], s{sKVo} offen offset:{j*1024} lds")
    return it

def kread(p, tile, buf):
    return f"ds_read_b128 {vr(vF+buf*4,4)}, v{vKr+p} offset:{tile*8192}"
def vread(ks, dt, tile, sec, buf):
    return f"ds_read_b64_tr_b16 {vr(vF+buf*4+2*sec,2)}, v{vVr+dt} offset:{(32*tile+16*ks+8*sec)*256}"

def sm_reg(buf, e):
    qt = (e >> 3) & 1; ks = e >> 4
    return vS + (buf * 2 + qt) * 16 + ks * 8 + (e & 7), qt, ks
def sm_exp(buf, e):
    r, _, _ = sm_reg(buf, e)
    if "noexp" in XP: return []
    if "movexp" in XP: return [f"v_mov_b32 v{r}, v{r}"]
    return [f"v_exp_f32 v{r}, v{r}"]
def sm_post(buf, e):
    r, qt, ks = sm_reg(buf, e)
    o = [f"v_add_f32 v{vL+qt}, v{vL+qt}, v{r}"]
    if "noadd" in XP: o = []
    if e & 1 and "nocvt" not in XP: o.append(f"v_cvt_pk_bf16_f32 v{vP+(qt*2+ks)*4+((e&7)>>1)}, v{r-1}, v{r}")
    return o

def attn_seg(A, lq, seg, extra, mfma=True, sm_lo=0, sm_hi=64, look=True):
    def rd(phi, part):
        s = (phi // 8) % 4; i = phi % 8; buf = phi % 4
        if s in (0, 2):
            return kread(i, 1 if s == 0 else 0, buf) if part == 0 else None
        return vread(i // 4, i % 4, 0 if s == 1 else 1, part, buf)
    for i in range(8):
        phi = seg * 8 + i
        if mfma and "nowait" not in XP: lq.wait(A, [("f", phi)])
        for qt in range(2):
            slot = seg * 16 + 2 * i + qt
            if mfma:
                if seg in (0, 2):
                    sb = 1 if seg == 0 else 0
                    d = vr(vS + (sb * 2 + qt) * 16, 16)
                    mf32(A, d, vr(vF + (phi % 4) * 4, 4), vr(vQ + (qt * 8 + i) * 4, 4), "0" if i == 0 else None)
                else:
                    ks, dt = i // 4, i % 4
                    mf32(A, ar(aO + (qt * 4 + dt) * 16, 16), vr(vF + (phi % 4) * 4, 4), vr(vP + (qt * 2 + ks) * 4, 4))
            for it in extra.get((slot, "pre"), []): A(it)
            nphi = (phi + 3) % 32
            nseg = nphi // 8
            if look is True or nseg in look:
                r = rd(nphi, qt)
                if r and "noread" not in XP: A(r); lq.issue(("f", nphi))
            for it in extra.get((slot, "ds"), []):
                A(it); lq.issue(("side", 0))
            for it in extra.get(slot, []):
                if it.startswith("v_"): continue
                if "lds" in it and " m0," in A.lines[-1]: A("s_nop 0")
                A(it)
            for (buf, start) in ((1, 22), (0, 54)):
                e = (slot - start) % 64
                if e < 32 and (buf, "exp") in sm_ok(slot, sm_lo, sm_hi, buf, e):
                    for x in sm_exp(buf, e): A(x)
            for (buf, start) in ((1, 22), (0, 54)):
                e = (slot - start - 1) % 64
                if e < 32 and (buf, "exp") in sm_ok((slot - 1) % 64, sm_lo, sm_hi, buf, e):
                    for x in sm_post(buf, e): A(x)
            for it in extra.get(slot, []):
                if it.startswith("v_"): A(it)
            for it in extra.get((slot, "post"), []): A(it)
def sm_ok(slot, lo, hi, buf, e):
    return {(buf, "exp")} if (lo <= slot < hi) else set()

def wp_src_voff(A, d):
    t = vTm
    A(f"v_lshrrev_b32 v{t+12}, 4, v{vLane}")
    A(f"v_lshlrev_b32 v{t+12}, 1, v{t+12}")
    A(f"v_and_b32 v{t+13}, 7, v{vLane}")
    A(f"v_xor_b32 v{t+12}, v{t+12}, v{t+13}")
    A(f"v_lshlrev_b32 v{t+12}, 4, v{t+12}")
    A(f"v_lshrrev_b32 v{t+13}, 3, v{vLane}")
    A(f"v_mul_u32_u24 v{t+13}, 1280, v{t+13}")
    A(f"v_add_u32 v{d}, v{t+12}, v{t+13}")
    for j in range(1, 8): A(f"v_add_u32 v{d+j}, {(j%4)*9216 + (j//4)*128}, v{d}")

def wp_addr(A, sh, note="", reg=R3, n=4, dst=None):
    t = vTm
    A(f"v_bfe_u32 v{t+14}, v{vLane}, 2, 2")
    A(f"v_bfe_u32 v{t+16}, v{vLane}, 4, 1")
    A(f"v_lshl_add_u32 v{t+14}, v{t+16}, 2, v{t+14}")
    A(f"v_lshrrev_b32 v{t+13}, 1, v{t+14}")
    A(f"v_lshlrev_b32 v{t+13}, 5, v{t+13}")
    A(f"v_lshl_add_u32 v{t+13}, v{t+14}, 7, v{t+13}")
    A(f"v_lshrrev_b32 v{t+15}, 5, v{vLane}")
    A(f"v_lshl_add_u32 v{t+13}, v{t+15}, 10, v{t+13}")
    A(f"v_and_b32 v{t+15}, 3, v{vLane}")
    A(f"v_lshl_add_u32 v{t+13}, v{t+15}, 3, v{t+13}")
    A(f"s_lshl_b32 s6, s{sWave}, {sh}")
    A(f"s_add_u32 s6, s6, {reg}")
    A(f"v_add_u32 v{dst or t+4}, s6, v{t+13}{note}")
    for i4 in range(1, n): A(f"v_xor_b32 v{t+4+i4}, {32*i4}, v{t+4}")
def wp_reads(A, stride):
    for su in range(2):
        for i4 in range(4):
            for sec in range(2):
                A(f"ds_read_b64_tr_b16 {ar(aWq+(su*4+i4)*4+2*sec,2)}, v{vTm+4+i4} offset:{su*stride+sec*2048}")
def wp_stores(A, so):
    for su in range(2):
        for i4 in range(4):
            A(f"buffer_store_dwordx4 {ar(aWq+(su*4+i4)*4,4)}, v{vL16}, s[{sWp}:{sWp+3}], s{so} offen offset:{i4*1024} sc1")
        if su == 0: A(f"s_add_u32 s{so}, s{so}, 4096")

def set_flag(A, phase, lab, cls="H"):
    A(f"s_cmp_lg_u32 s{sWave}, 0")
    A(f"s_cbranch_scc1 {lab}")
    A(f"s_add_u32 s6, s{sNo}, {phase}")
    A(f"v_mov_b32 v{vFv}, s6")
    A(f"v_mov_b32 v{vFv+1}, s{sNo+1}")
    A("s_mov_b64 exec, 1")
    A(f"global_store_dwordx2 v{vFo}, {vr(vFv,2)}, s[{pFl}:{pFl+1}] sc1")
    A("s_mov_b64 exec, -1")
def flag_load(A, dst, ad):
    A(f"global_load_dwordx2 {vr(dst,2)}, v{ad}, s[{pFl}:{pFl+1}] sc1")
def flag_wait(A, lab, phase, polls):
    A(f"s_add_u32 s{sT0}, s{sNo}, {phase}")
    A(f"s_mov_b32 s{sT1}, 0")
    A(f"{lab}c:")
    for n, (d, ad) in enumerate(polls):
        A(f"v_subrev_u32 v{d}, s{sT0}, v{d}")
        A(f"v_cmp_ne_u32 s[{sE0+2*n}:{sE0+2*n+1}], s{sNo+1}, v{d+1}")
    for n, (d, ad) in enumerate(polls):
        A(f"v_cmp_lt_u32 " + ("vcc" if n == 0 else "s[6:7]") + f", {3-phase}, v{d}")
    A("s_nop 3")
    A(f"s_or_b64 s[{sE0}:{sE0+1}], s[{sE0}:{sE0+1}], vcc")
    if len(polls) > 1:
        A(f"s_or_b64 s[6:7], s[6:7], s[{sE0+2}:{sE0+3}]")
        A(f"s_or_b64 s[{sE0}:{sE0+1}], s[{sE0}:{sE0+1}], s[6:7]")
    A(f"s_cbranch_scc0 {lab}r ; pollbr")
    A(f"s_add_u32 s{sT1}, s{sT1}, 1")
    A(f"s_cmp_ge_u32 s{sT1}, 0x40000")
    A(f"s_cbranch_scc1 {lab}r")
    for d, ad in polls: flag_load(A, d, ad)
    A("s_waitcnt vmcnt(0)")
    A(f"s_branch {lab}c")
    A(f"{lab}r:")

def q_setup():
    w = sWave
    return [
     f"s_lshl_b32 s6, s{qP}, 3\ns_lshr_b32 s{qT0}, {hex(0x402b1600)}, s6\ns_and_b32 s{qT0}, s{qT0}, 0xff",
     f"s_lshr_b32 s{qT1}, {hex(0x5b402b16)}, s6\ns_and_b32 s{qT1}, s{qT1}, 0xff\ns_sub_u32 s{qNl}, s{qT1}, s{qT0}",
     f"s_and_b32 s{sT2}, s{w}, 1\ns_lshl_b32 s6, s{sT2}, 11\ns_lshl_b32 s{qAs}, s{qT0}, 13",
     f"s_add_u32 s{qAs}, s{qAs}, s6\ns_lshr_b32 s7, s{w}, 1\ns_lshl_b32 s6, s{qCb}, 1",
     f"s_add_u32 s6, s6, s7\ns_mul_i32 s6, s6, 5120\ns_mul_i32 s{qWs}, s{qT0}, 81920",
     f"s_add_u32 s{qWs}, s{qWs}, s6\ns_mul_i32 s6, s{sT2}, 40960\ns_add_u32 s{qWs}, s{qWs}, s6",
     f"s_lshl_b32 s{qAe}, s{qT1}, 13\ns_mul_i32 s{qWe}, s{qT1}, 81920\ns_mov_b32 s{qAo}, s{qAs}",
     f"s_mov_b32 s{qWo}, s{qWs}\ns_mul_i32 s{qWm}, s{sT2}, 10240\ns_mul_i32 s6, s7, 5120",
     f"s_add_u32 s{qWm}, s{qWm}, s6\ns_lshl_b32 s6, s{qRb}, 1\ns_add_u32 s6, s6, s7",
     f"s_mul_i32 s6, s6, {A_BLK}\ns_add_u32 s{qA}, s{pWs}, s6\ns_addc_u32 s{qA+1}, s{pWs+1}, 0",
     f"s_and_b32 s{qA+1}, s{qA+1}, 0xffff\ns_cmp_eq_u32 s{qP}, 3\ns_cselect_b32 s{qA+2}, s{qAe}, 0\ns_cselect_b32 s{qW+2}, s{qWe}, 0\ns_mov_b32 s{qA+3}, 0x20000",
     f"s_mov_b32 s{qW}, s{sWp}\ns_mov_b32 s{qW+1}, s{sWp+1}\ns_mov_b32 s{qW+3}, 0x20000",
     f"s_lshl2_add_u32 s6, s{qRb}, s{qP}\ns_lshl_b32 s6, s6, 1\ns_add_u32 s6, s6, s7\ns_mul_i32 s{qXo}, s6, 20480",
     f"s_lshl_b32 s6, s{qCb}, 1\ns_add_u32 s6, s6, s{sT2}\ns_mul_i32 s6, s6, 160\ns_add_u32 s{qXo}, s{qXo}, s6",
     f"s_xor_b32 s{qT0}, s{w}, s{qP}\ns_mul_i32 s{qT1}, s{w}, 3\ns_add_u32 s{qT1}, s{qT1}, s{qT0}\ns_sub_u32 s{qT1}, s{qT1}, 1",
     f"s_mul_i32 s{qT1}, s{qT1}, 10240\ns_cmp_eq_u32 s{qT0}, 0\ns_cselect_b32 s{qSo}, 0x100000, s{qT1}",
    ]

def q_loads(slot):
    it = [f"s_add_u32 m0, s{qWm}, {slot*20480}"]
    for j in range(4):
        it.append(f"buffer_load_dwordx4 v{vL16}, s[{qW}:{qW+3}], s{qWo} offen offset:{j*1024} sc1 lds ; @put W2")
    it.append(f"s_add_u32 m0, s{qWm}, {slot*20480+4096}")
    it.append(f"buffer_load_dwordx4 v{vL16+1}, s[{qW}:{qW+3}], s{qWo} offen sc1 lds ; @put W2")
    for k in range(2):
        for rt in range(2):
            it.append(f"buffer_load_dwordx4 {ar(aA2+(slot*4+k*2+rt)*4,4)}, v{vL16+k}, s[{qA}:{qA+3}], s{qAo} offen offset:{rt*1024} sc1")
    it.append(f"s_add_u32 s{qWo}, s{qWo}, 81920\ns_add_u32 s{qAo}, s{qAo}, 8192")
    return it

def gemm2(A, L, emit, stamp):
    ac, vT, vX, vZ = 64, 144, 168, 180
    srd(A, qX, pX, pX + 1, X_SIZE)
    srd(A, qO, pOut, pOut + 1, X_SIZE)
    for i in range(4): A(f"v_mov_b32 v{vZ+i}, 0")
    A(f"v_and_b32 v{vT}, 15, v{vLane}")
    A(f"v_mul_u32_u24 v{vT}, 1280, v{vT}")
    A(f"v_lshrrev_b32 v{vT+1}, 4, v{vLane}")
    A(f"v_lshl_add_u32 v{vXo2}, v{vT+1}, 3, v{vT}")
    def zero():
        for i in range(5): mf32(A, vr(ac + 16 * i, 16), vr(vZ, 4), vr(vZ, 4), "0")
    zero()
    A(f"v_mov_b32 v{vWr2}, v{vL16}")
    A(f"v_add_u32 v{vWr2+1}, 40960, v{vL16}")
    A(f"v_lshlrev_b32 v{vL8}, 3, v{vLane}")
    A(f"v_add_u32 v{vOwn}, {RING2}, v{vL16}")
    A(f"s_mov_b32 s{qN}, 0")
    def xload():
        for ct in range(5):
            A(f"buffer_load_dwordx2 {vr(vX+2*ct,2)}, v{vXo2}, s[{qX}:{qX+3}], s{qXo} offen offset:{ct*32}")
    A(f"s_cmp_eq_u32 s{qP}, 3")
    A(f"s_cselect_b32 s{qT0}, 2, 99")
    A(f"s_cselect_b32 s{qT1}, 0, 99")
    A(f"s_cbranch_scc1 {L}qh")
    A("s_waitcnt vmcnt(0)")
    A("s_barrier")
    set_flag(A, 2, f"{L}f2")
    A(f"{L}f2:")
    flag_load(A, vPa, vAo)
    A(f"s_mov_b32 s{qA+2}, s{qAe}")
    A(f"s_mov_b32 s{qW+2}, s{qWe}")
    A(f"s_mov_b32 s{qAo}, s{qAs}")
    A(f"s_mov_b32 s{qWo}, s{qWs}")
    A("s_waitcnt vmcnt(0)")
    flag_wait(A, f"{L}w2", 2, [(vPa, vAo)])
    stamp(8)
    for s_ in range(3): emit(q_loads(s_))
    xload()
    A("s_waitcnt vmcnt(23)")
    A(f"s_branch {L}qs")
    A(f"{L}qh:")
    stamp(8)
    xload()
    A("s_waitcnt vmcnt(39)")
    A(f"{L}qs:")
    def wread2(slot, f, buf):
        k, ct = f // 10, f % 10
        return f"ds_read_b128 {ar(aW2+buf*4,4)}, v{vWr2+slot//2} offset:{(slot%2)*20480+k*10240+ct*1024}"
    A("s_barrier ; @need W2 10")
    stamp(9)
    for f in range(3): A(wread2(0, f, f))
    lq = LQ()
    for f in range(3): lq.issue(f)
    if "q_oob" in XP:
        A(f"s_mov_b32 s{qA+2}, 0"); A(f"s_mov_b32 s{qW+2}, 0")
    A(".p2align 6")
    A(f"{L}q:")
    for slot in range(4):
        ns = (slot + 1) % 4
        slots = spread(q_loads((slot + 3) % 4), 16)
        if "q_noload" in XP: slots = [[] for _ in range(16)]
        if "q_noA" in XP: slots = [[x for x in sl if "a[" not in x] for sl in slots]
        if "q_noW" in XP: slots = [[x for x in sl if "lds" not in x] for sl in slots]
        for f in range(20):
            k, ct = f // 10, f % 10
            lq.wait(A, [f])
            for r in range(2):
                rt = r if f % 2 == 0 else 1 - r
                mf16(A, vr(ac + (rt * 10 + ct) * 4, 4), ar(aW2 + (f % 4) * 4, 4), ar(aA2 + (slot * 4 + k * 2 + rt) * 4, 4))
                if r == 0 and f + 3 < 20:
                    A(wread2(slot, f + 3, (f + 3) % 4)); lq.issue(f + 3)
                if f == 18:
                    A(wread2(ns, r, r)); lq.issue(r)
                if f == 19 and r == 0:
                    A(wread2(ns, 2, 2)); lq.issue(2)
                if r == 1 and f < 16: emit(slots[f])
                if r == 0 and f == 17 and slot == 0: A(f"s_cmp_eq_u32 s{qT1}, s{qN}")
            if f == 17:
                if slot == 0:
                    A("s_waitcnt vmcnt(30) lgkmcnt(0)")
                    A(f"s_cbranch_scc1 {L}qw{slot}")
                    A("s_waitcnt vmcnt(18)")
                    A(f"{L}qw{slot}:")
                else: A("s_waitcnt vmcnt(18) lgkmcnt(0)")
                lq.clear()
                if "q_nobar" not in XP: A("s_barrier ; @need W2 10")
            if f == 19:
                A(f"s_add_u32 s{qN}, s{qN}, 1")
        if slot == 1:
            A(f"s_cmp_eq_u32 s{qT0}, s{qN}")
            A(f"s_cbranch_scc1 {L}qe1")
            A(f"{L}qr1:")
        if slot < 3:
            A(f"s_cmp_eq_u32 s{qNl}, s{qN}")
            A(f"s_cbranch_scc1 {L}qx")
    A(f"s_branch {L}q")
    A(f"{L}qe1:")
    set_flag(A, 2, f"{L}qr1")
    A(f"s_branch {L}qr1")
    A(f"{L}qx:")
    stamp(10)
    A(f"s_cmp_lg_u32 s{qP}, 3")
    A(f"s_cbranch_scc1 {L}qy")
    flag_load(A, vPb, vAp)
    A("s_waitcnt vmcnt(0)")
    flag_wait(A, f"{L}w3", 2, [(vPb, vAp)])
    A(f"{L}qy:")
    A(f"s_mov_b32 s{sT0}, s{qSo}")
    A(f"s_cmp_lg_u32 s{sWave}, s{qP}")
    A(f"s_cbranch_scc1 {L}no0")
    A("s_nop 1")
    for i in range(20): A(f"ds_write_b128 v{vOwn}, {vr(ac+4*i,4)} offset:{i*1024}")
    A("s_waitcnt lgkmcnt(0)")
    A(f"s_branch {L}no1")
    A(f"{L}no0:")
    for c in range(4):
        b = vT + (c % 2) * 12
        for i in range(10): A(f"v_cvt_pk_bf16_f32 v{b+i}, v{ac+c*20+2*i}, v{ac+c*20+2*i+1}")
        for i in range(10): A(f"v_min_u32 v{b+i}, -2, v{b+i}")
        if c: A(f"s_add_u32 s{sT0}, s{sT0}, 2560")
        A(f"buffer_store_dwordx4 {vr(b,4)}, v{vL16}, s[{qI}:{qI+3}], s{sT0} offen sc1")
        A(f"buffer_store_dwordx4 {vr(b+4,4)}, v{vL16}, s[{qI}:{qI+3}], s{sT0} offen offset:1024 sc1")
        A(f"buffer_store_dwordx2 {vr(b+8,2)}, v{vL8}, s[{qI}:{qI+3}], s{sT0} offen offset:2048 sc1")
    A(f"{L}no1:")
    S, U, IN, XR, E, T = 64, 84, 104, 184, 204, 224
    A(f"s_mul_i32 s{sT0}, s{sWave}, 5120")
    A(f"v_add_u32 v{vOwn}, s{sT0}, v{vOwn}")
    A(f"s_mul_i32 s{sT0}, s{qP}, 30720")
    A(f"s_mul_i32 s{sT1}, s{sWave}, 2560")
    A(f"s_add_u32 s{sT0}, s{sT0}, s{sT1}")
    A(f"s_lshl_b32 s6, s{qP}, 3")
    A(f"s_lshr_b32 s6, {hex(0x24094218 >> 0 if False else (0x24 | 0x18 << 8 | 0x09 << 16 | 0x24 << 24))}, s6")
    for i in range(3):
        A(f"s_bfe_u32 s7, s6, {hex(0x20000 | 2*i)}")
        A(f"s_mul_i32 s7, s7, 10240")
        A(f"s_add_u32 s{qIn+i}, s{sT0}, s7")
    def inload(sl):
        b = IN + sl * 10
        A(f"buffer_load_dwordx4 {vr(b,4)}, v{vL16}, s[{qI}:{qI+3}], s{qIn+sl} offen sc1")
        A(f"buffer_load_dwordx4 {vr(b+4,4)}, v{vL16}, s[{qI}:{qI+3}], s{qIn+sl} offen offset:1024 sc1")
        A(f"buffer_load_dwordx2 {vr(b+8,2)}, v{vL8}, s[{qI}:{qI+3}], s{qIn+sl} offen offset:2048 sc1")
    A("s_barrier")
    stamp(11)
    for sl in range(3): inload(sl)
    for i in range(5): A(f"ds_read_b128 {vr(S+4*i,4)}, v{vOwn} offset:{i*1024}")
    for i in range(10):
        A(f"v_lshlrev_b32 v{XR+2*i}, 16, v{vX+i}")
        A(f"v_and_b32 v{XR+2*i+1}, 0xffff0000, v{vX+i}")
    def unpack(sl, dst):
        for i in range(10):
            A(f"v_lshlrev_b32 v{dst+2*i}, 16, v{IN+sl*10+i}")
            A(f"v_and_b32 v{dst+2*i+1}, 0xffff0000, v{IN+sl*10+i}")
    def addin(sl, dst):
        unpack(sl, T)
        for i in range(10): A(f"v_pk_add_f32 {vr(dst+2*i,2)}, {vr(dst+2*i,2)}, {vr(T+2*i,2)}")
    A(f"s_mov_b32 s{sT1}, 0")
    A(f"{L}sc:")
    A("s_waitcnt vmcnt(0)")
    for i in range(3): A(f"v_max3_u32 v{T+i}, v{IN+10*i}, v{IN+10*i+1}, v{IN+10*i+2}")
    for j in range(3):
        for i in range(3): A(f"v_max3_u32 v{T+i}, v{T+i}, v{IN+10*i+3+2*j}, v{IN+10*i+4+2*j}")
    A(f"v_max3_u32 v{T+3}, v{IN+9}, v{IN+19}, v{IN+29}")
    A(f"v_max3_u32 v{T}, v{T}, v{T+1}, v{T+2}")
    A(f"v_max_u32 v{T}, v{T}, v{T+3}")
    A(f"v_cmp_eq_u32 vcc, -1, v{T}")
    A("s_nop 3")
    A(f"s_cbranch_vccz {L}sr ; pollbr")
    A(f"s_add_u32 s{sT1}, s{sT1}, 1")
    A(f"s_cmp_ge_u32 s{sT1}, 0x40000")
    A(f"s_cbranch_scc1 {L}sr")
    for sl in range(3): inload(sl)
    A(f"s_branch {L}sc")
    A(f"{L}sr:")
    stamp(12)
    unpack(2, U)
    A(f"s_mov_b32 s{sT0}, {hex(f2u(-LOG2E))}")
    A(f"s_cmp_lg_u32 s{qP}, 3")
    A("s_waitcnt lgkmcnt(0)")
    A(f"s_cbranch_scc1 {L}ns")
    for i in range(20): A(f"v_swap_b32 v{S+i}, v{U+i}")
    A(f"{L}ns:")
    for i in range(20): A(f"v_mul_f32 v{E+i}, s{sT0}, v{U+i}")
    for i in range(20): A(f"v_exp_f32 v{E+i}, v{E+i}")
    addin(0, S)
    for i in range(20): A(f"v_add_f32 v{E+i}, 1.0, v{E+i}")
    for i in range(20): A(f"v_rcp_f32 v{E+i}, v{E+i}")
    addin(1, S)
    for i in range(10): A(f"v_pk_mul_f32 {vr(U+2*i,2)}, {vr(U+2*i,2)}, {vr(E+2*i,2)}")
    for i in range(10): A(f"v_pk_fma_f32 {vr(XR+2*i,2)}, {vr(S+2*i,2)}, {vr(U+2*i,2)}, {vr(XR+2*i,2)}")
    for i in range(10): A(f"v_cvt_pk_bf16_f32 v{vX+i}, v{XR+2*i}, v{XR+2*i+1}")
    for ct in range(5):
        A(f"buffer_store_dwordx2 {vr(vX+2*ct,2)}, v{vXo2}, s[{qO}:{qO+3}], s{qXo} offen offset:{ct*32}" + (" sc1" if "outsc1" in OPT else ""))
    stamp(13)

def gen_p1(A, name, stamps=False, code_bytes=32768):
    head(A, name)
    L = "p1_"
    A("s_cmp_ge_u32 s2, 256")
    A(f"s_cbranch_scc1 {L}end")
    A("s_load_dwordx16 s[64:79], s[0:1], 0")
    A("s_load_dwordx8 s[80:87], s[0:1], 64")
    A(f"s_memrealtime s[{sNo}:{sNo+1}]")
    if stamps: A("s_memtime s[94:95]")
    def stamp(i, att=False):
        if not stamps: return
        if "attst" in OPT:
            if i >= 5 and not att: return
        elif att: return
        A(f"s_memtime s[96:97]")
        A(f"s_memrealtime s[98:99]")
        A("s_waitcnt lgkmcnt(0)")
        A(f"v_mov_b32 v{vTm+18}, s96"); A(f"v_mov_b32 v{vTm+19}, s98")
        A(f"s_lshl_b32 s96, s2, 2"); A(f"s_add_u32 s96, s96, s{sWave}"); A("s_lshl_b32 s96, s96, 7")
        A(f"v_mov_b32 v{vZero}, s96")
        if i == 0: A(f"v_mov_b32 v{vTm+16}, s94")
        A(f"s_add_u32 s96, s{pWs}, 0x3100000"); A(f"s_addc_u32 s97, s{pWs+1}, 0")
        A(f"global_store_dwordx2 v{vZero}, {vr(vTm+18,2)}, s[96:97] offset:{i*8}")
        if i == 0: A(f"global_store_dword v{vZero}, v{vTm+16}, s[96:97] offset:120")
    t = vTm
    def emit(items):
        for it in items:
            if "lds" in it and " m0," in A.lines[-1]: A("s_nop 0")
            A(it)
    A(f"v_and_b32 v{vLane}, 63, v0")
    A("v_lshrrev_b32 v0, 6, v0")
    A("s_and_b32 s6, s2, 7")
    A(f"v_readfirstlane_b32 s{sWave}, v0")
    A(f"s_lshr_b32 s{sT0}, s2, 3")
    A(f"s_lshr_b32 s{sRb}, s{sT0}, 2")
    A(f"s_and_b32 s{sT1}, s{sT0}, 3")
    A(f"s_lshl2_add_u32 s{sHead}, s6, s{sT1}")
    A(f"s_sub_u32 s{sT2}, s6, s{sRb}")
    A(f"s_add_u32 s{sT2}, s{sT2}, 3")
    A(f"s_and_b32 s{sT2}, s{sT2}, 7")
    A(f"s_mul_i32 s{sFb}, s6, 3")
    A(f"s_add_u32 s{sFb}, s{sFb}, s{sT1}")
    A(f"s_add_u32 s7, s{sT2}, 24")
    A(f"s_cmp_eq_u32 s{sT1}, 3")
    A(f"s_cselect_b32 s{sFb}, s7, s{sFb}")
    A(f"s_cmp_lt_u32 s{sFb}, 27")
    A(f"s_cselect_b32 s{sHasF}, 1, 0")
    A(f"s_sub_u32 s{sProd}, s{sFb}, 27")
    A(f"v_lshrrev_b32 v{t+7}, 3, v{vLane}")
    A(f"v_and_b32 v{t+6}, 7, v{vLane}")
    A(f"v_lshrrev_b32 v{t+12}, 4, v{vLane}")
    A(f"v_xor_b32 v{t+13}, v{t+6}, v{t+12}")
    A(f"v_lshlrev_b32 v{t+13}, 4, v{t+13}")
    A(f"s_movk_i32 s6, 1280")
    A(f"v_mad_u32_u24 v{vXd}, v{t+7}, s6, v{t+13}")
    A(f"v_xor_b32 v{t+13}, 64, v{vXd}")
    for j in range(1, 8):
        A(f"v_add_u32 v{vXd+j}, {j*10240-(j%4)*1024}, v{(t+13) if j&1 else vXd}")
    A(f"s_lshl2_add_u32 s6, s{sRb}, s{sWave}")
    A(f"s_mul_i32 s{sXo}, s6, {64*1280}")
    A(f"s_mul_i32 s{sKVo}, s6, {A_BLK}")
    A(f"s_lshl_b32 s{sM0X}, s{sWave}, 13")
    A(f"s_add_u32 s{sM0X}, s{sM0X}, {R1}")
    A(f"s_mov_b32 s{sTail}, 0")
    A(f"s_and_b32 s6, s{sWave}, 1")
    A(f"s_lshl_b32 s7, s6, 2")
    A(f"v_add_u32 v{t+13}, s7, v{t+12}")
    A(f"v_lshlrev_b32 v{t+13}, 1, v{t+13}")
    A(f"v_and_b32 v{t+14}, 15, v{vLane}")
    A(f"v_xor_b32 v{t+13}, v{t+13}, v{t+14}")
    A(f"v_lshlrev_b32 v{t+13}, 4, v{t+13}")
    A(f"s_lshl_b32 s7, s{sWave}, 3")
    A(f"v_add_u32 v{t+15}, s7, v{t+12}")
    A(f"v_lshl_add_u32 v{vWqd}, v{t+15}, 13, v{t+13}")
    A(f"v_add_u32 v{vWqd+1}, {4*8192-1024}, v{vWqd}")
    A(f"v_bfe_u32 v{t+13}, v{vLane}, 4, 1")
    A(f"s_lshl_b32 s6, s6, 1")
    A(f"v_add_u32 v{t+13}, s6, v{t+13}")
    A(f"v_lshlrev_b32 v{t+13}, 1, v{t+13}")
    A(f"v_xor_b32 v{t+13}, v{t+13}, v{t+6}")
    A(f"v_lshlrev_b32 v{t+13}, 4, v{t+13}")
    A(f"v_add_u32 v{t+15}, s7, v{t+7}")
    A(f"s_movk_i32 s6, 3456")
    A(f"v_mad_u32_u24 v{vW13d}, v{t+15}, s6, v{t+13}")
    A(f"s_lshl_b32 s{sWqo}, s{sHead}, 8")
    A(f"s_lshl_b32 s{sW13o}, s{sFb}, 7")
    A(f"s_mov_b32 s{sSlot}, 0")
    A("s_waitcnt lgkmcnt(0)")
    A(f"s_lshl_b32 s{sC0}, s{sWave}, 12")
    A(f"s_add_u32 s{sC0}, s{sC0}, {R3}")
    A(f"s_mov_b32 s{sM0W}, s{sC0}")
    srd(A, sX, pX, pX + 1, X_SIZE)
    srd(A, sWq, pWq, pWq + 1, 640 * 8192)
    for (d, p, sh) in ((sW1, pW1, 2048), (sW3, pW3, 3072)):
        A(f"s_sub_u32 s{d}, s{p}, {sh}")
        A(f"s_subb_u32 s{d+1}, s{p+1}, 0")
        A(f"s_and_b32 s{d+1}, s{d+1}, 0xffff")
        A(f"s_mul_i32 s{d+2}, s{sHasF}, {640*3456+sh}")
        A(f"s_mov_b32 s{d+3}, 0x20000")
    srd(A, sX2, pX, pX + 1, X_SIZE)
    A(f"s_movk_i32 s{sM0d}, 4096")
    A(f"s_movk_i32 s{sXst}, 128")
    A(f"s_mov_b32 s{sM0t}, 0x18000")
    RAW, UNP = 64, 96
    A(f"v_mov_b32 v{t+5}, 0")
    A(f"s_cmp_ge_u32 s{sProd}, 4")
    A(f"s_cbranch_scc1 {L}np1")
    A(f"v_lshrrev_b32 v{t+5}, 2, v{vLane}")
    A(f"v_and_b32 v{t+13}, 3, v{vLane}")
    A(f"v_lshlrev_b32 v{t+13}, 4, v{t+13}")
    A(f"s_movk_i32 s6, 1280")
    A(f"v_mad_u32_u24 v{t+13}, v{t+5}, s6, v{t+13}")
    A(f"s_lshl2_add_u32 s6, s{sRb}, s{sProd}")
    A(f"s_lshl2_add_u32 s6, s6, s{sWave}")
    A(f"s_lshl_b32 s7, s6, 8")
    A(f"v_lshl_add_u32 v{t+5}, v{t+5}, 4, s7")
    A(f"s_mul_i32 s6, s6, {16*1280}")
    for i in range(20):
        A(f"buffer_load_dwordx4 {vr(RAW+4*i,4)}, v{t+13}, s[{sX}:{sX+3}], s6 offen offset:{i*64}")
    A(f"{L}np1:")
    emit(dma_w(True)); emit(dma_x(0)); emit(dma_x(1))
    stamp(0)
    A("s_getpc_b64 s[6:7]")
    A(f"s_and_b32 s{sT0}, s{sT0}, 7")
    A(f"s_lshl2_add_u32 s{sT0}, s{sT0}, s{sWave}")
    A(f"s_lshl_b32 s{sT0}, s{sT0}, 10")
    A(f"s_min_u32 s{sT0}, s{sT0}, {code_bytes-1024}")
    A(f"v_lshl_add_u32 v{vTm+4}, v{vLane}, 4, s{sT0}")
    if "nocpf" not in OPT: A(f"global_load_dwordx4 {vr(vTm+8,4)}, v{vTm+4}, s[6:7]")
    else: A(f"global_load_dword v{vTm+8}, v{vLane}, s[0:1]")
    emit(dma_w(True)); emit(dma_x(0)); emit(dma_w(True))
    A(f"s_add_u32 s{sA}, s{pWs}, s{sKVo}")
    A(f"s_addc_u32 s{sA+1}, s{pWs+1}, 0")
    srd(A, sA, sA, sA + 1, A_BLK)
    A(f"s_add_u32 s{sWp}, s{pWs}, {W_OFF}")
    A(f"s_addc_u32 s{sWp+1}, s{pWs+1}, 0")
    srd(A, sWp, sWp, sWp + 1, W_SIZE)
    A(f"s_lshl2_add_u32 s{sT1}, s{sHead}, s{sWave}")
    A(f"s_mul_i32 s{sU}, s{sT1}, 10")
    A(f"s_lshl_b32 s{sT2}, s{sRb}, 1")
    A(f"s_add_u32 s{sU}, s{sU}, s{sT2}")
    A(f"s_mul_i32 s{sT1}, s{sT1}, 40960")
    A(f"s_lshl_b32 s{sT2}, s{sRb}, 8")
    A(f"s_add_u32 s{sPo}, s{sT1}, s{sT2}")
    srd(A, sSrc, pWo, pWo + 1, 4096 * 1280)
    A(f"s_cmp_lt_u32 s{sRb}, 5")
    A(f"s_cselect_b32 s{sSrc+2}, s{sSrc+2}, 0")
    A(f"s_cselect_b32 s{sU}, s{sU}, 2000")
    A(f"v_mov_b32 v{t+6}, 0")
    A(f"s_or_b32 s6, s2, s{sWave}")
    A(f"s_cbranch_scc1 {L}ntag")
    A(f"s_lshl_b64 s[6:7], s[{sNo}:{sNo+1}], 2")
    A(f"s_or_b32 s7, s7, 0x80000000")
    A(f"v_mov_b32 v{t+14}, s6")
    A(f"v_mov_b32 v{t+15}, s7")
    A("s_mov_b64 exec, 1")
    A(f"global_store_dwordx2 v{t+6}, {vr(t+14,2)}, s[{pDbg}:{pDbg+1}] offset:128 sc1")
    A("s_mov_b64 exec, -1")
    A(f"{L}ntag:")
    A(f"v_and_b32 v{t+14}, 15, v{vLane}")
    A(f"v_lshrrev_b32 v{t+13}, 1, v{t+14}")
    A(f"v_xor_b32 v{t+13}, v{t+13}, v{t+12}")
    A(f"v_lshlrev_b32 v{t+13}, 4, v{t+13}")
    A(f"v_lshl_add_u32 v{t+13}, v{t+14}, 7, v{t+13}")
    A(f"s_lshl_b32 s6, s{sWave}, 13")
    A(f"s_add_u32 s6, s6, {R1}")
    A(f"v_add_u32 v{vXr}, s6, v{t+13}")
    A(f"v_xor_b32 v{vXr+1}, 64, v{vXr}")
    A(f"v_lshlrev_b32 v{t+3}, 4, v{t+14}")
    A(f"v_bfe_u32 v{t+14}, v{vLane}, 2, 2")
    A(f"v_and_b32 v{t+15}, 3, v{vLane}")
    A(f"v_lshlrev_b32 v{t+15}, 3, v{t+15}")
    A(f"v_lshl_add_u32 v{t+15}, v{t+12}, 12, v{t+15}")
    A(f"v_add_u32 v{t+15}, {R3}, v{t+15}")
    A(f"v_bfe_u32 v{t+16}, v{vLane}, 4, 1")
    A(f"v_lshl_add_u32 v{t+13}, v{t+16}, 2, v{t+14}")
    A(f"s_lshl_b32 s6, s{sWave}, 1")
    A(f"v_xor_b32 v{t+13}, s6, v{t+13}")
    A(f"v_lshl_add_u32 v{t+13}, v{t+13}, 5, v{t+15}")
    A(f"v_lshl_add_u32 v{vWqr}, v{t+14}, 8, v{t+13}")
    for p in range(1, 8): A(f"v_xor_b32 v{vWqr+p}, {32*p}, v{vWqr}")
    A(f"v_lshrrev_b32 v{t+13}, 1, v{t+14}")
    A(f"v_lshl_add_u32 v{t+13}, v{t+16}, 1, v{t+13}")
    A(f"v_xor_b32 v{t+13}, s{sWave}, v{t+13}")
    A(f"v_lshl_add_u32 v{t+13}, v{t+13}, 5, v{t+15}")
    A(f"v_lshl_add_u32 v{vW13r}, v{t+14}, 7, v{t+13}")
    for p in range(1, 4): A(f"v_xor_b32 v{vW13r+p}, {32*p}, v{vW13r}")
    srd(A, sK, pK, pK + 1, 16777216)
    srd(A, sV, pV, pV + 1, 16777216)
    A(f"s_add_u32 s{sSt}, s{pWs}, {ST_OFF}")
    A(f"s_addc_u32 s{sSt+1}, s{pWs+1}, 0")
    srd(A, sSt, sSt, sSt + 1, 2048 * 16)
    A(f"s_lshl_b32 s6, s{sRb}, 2")
    A(f"v_mov_b32 v{t+2}, s6")
    A(f"s_movk_i32 s{sMask}, {EVMASK}")
    A(f"s_mov_b32 s{sD}, 0")
    A(f"s_cmp_ge_u32 s{sProd}, 4")
    A(f"s_cbranch_scc1 {L}np2")
    A("s_waitcnt vmcnt(25)")
    for i in range(79, -1, -1):
        A(f"v_and_b32 v{UNP+2*i+1}, 0xffff0000, v{RAW+i}")
        A(f"v_lshlrev_b32 v{UNP+2*i}, 16, v{RAW+i}")
    a = 64
    def red(first):
        for i in range(80):
            first(i)
        A(f"v_pk_add_f32 {vr(a,2)}, {vr(a,2)}, {vr(a+2,2)}")
        A(f"v_pk_add_f32 {vr(a+4,2)}, {vr(a+4,2)}, {vr(a+6,2)}")
        A(f"v_pk_add_f32 {vr(a,2)}, {vr(a,2)}, {vr(a+4,2)}")
        A(f"v_add_f32 v{a}, v{a}, v{a+1}")
        for qp in ("[1,0,3,2]", "[2,3,0,1]"):
            A("s_nop 1")
            A(f"v_add_f32_dpp v{a}, v{a}, v{a} quad_perm:{qp} row_mask:0xf bank_mask:0xf")
    def f1(i):
        d = vr(a + 2 * (i % 4), 2)
        if i < 4: A(f"v_pk_add_f32 {d}, {vr(UNP+2*i,2)}, {vr(UNP+2*i+8,2)}")
        elif i >= 8: A(f"v_pk_add_f32 {d}, {d}, {vr(UNP+2*i,2)}")
    red(f1)
    o = 72
    A(f"v_mul_f32 v{o}, {hex(f2u(-1.0/640))}, v{a}")
    for i in range(80): A(f"v_pk_add_f32 {vr(UNP+2*i,2)}, {vr(UNP+2*i,2)}, {vr(o,2)} op_sel_hi:[1,0]")
    def f2(i):
        d = vr(a + 2 * (i % 4), 2); x_ = vr(UNP + 2 * i, 2)
        if i < 4: A(f"v_pk_mul_f32 {d}, {x_}, {x_}")
        else: A(f"v_pk_fma_f32 {d}, {x_}, {x_}, {d}")
    red(f2)
    A(f"v_mov_b32 v{o+3}, {hex(f2u(1e-5))}")
    A(f"v_fmac_f32 v{o+3}, {hex(f2u(1.0/640))}, v{a}")
    A(f"v_mov_b32 v{o+2}, v{o+3}")
    A(f"v_rsq_f32 v{o+1}, v{o+3}")
    A("s_mov_b32 exec_lo, 0x11111111")
    A("s_mov_b32 exec_hi, 0x11111111")
    A(f"buffer_store_dwordx4 {vr(o,4)}, v{t+5}, s[{sSt}:{sSt+3}], 0 offen sc1 ; @put S")
    A("s_mov_b64 exec, -1")
    A("s_waitcnt vmcnt(0)")
    A(f"{L}np2:")
    if "dummy" in OPT:
        A(f"v_lshlrev_b32 v{t+13}, 4, v{vLane}")
        for i in range(16): A(f"buffer_load_dwordx4 {vr(64+4*i,4)}, v{t+13}, s[{sWq}:{sWq+3}], 0 offen offset:{(i%4)*1024}")
        for i in range(128): A(f"v_mov_b32 v{128+i}, 0")
        A("s_waitcnt vmcnt(0)")
        A("s_mov_b32 s6, 0")
        A(f"{L}dmy:")
        for i in range(64): mf16(A, vr(128 + 4 * (i % 32), 4), vr(64 + 4 * (i // 4 % 12), 4), vr(112 + 4 * (i % 4), 4))
        A("s_add_u32 s6, s6, 1")
        A("s_cmp_lt_u32 s6, 40")
        A(f"s_cbranch_scc1 {L}dmy")
        A("s_nop 7")
    if "idle" in OPT:
        A("s_mov_b32 s6, 0")
        A(f"{L}dmy:")
        for i in range(64): A("s_nop 15")
        A("s_add_u32 s6, s6, 1")
        A("s_cmp_lt_u32 s6, 40")
        A(f"s_cbranch_scc1 {L}dmy")
    kv_dma_voff(A, vQ, vQ + 4, 1)
    A(f"s_lshl_b32 s6, s{sWave}, 12")
    A(f"s_lshl_b32 s{sKVo}, s{sHead}, 19")
    A(f"s_add_u32 s{sKVo}, s{sKVo}, s6")
    A(f"s_add_u32 s{sKVo}, s{sKVo}, {1536*256}")
    if "tlbw" in OPT:
        A("s_mov_b64 exec, 1")
        A(f"buffer_load_dword v0, v{t+6}, s[{sK}:{sK+3}], s{sKVo} offen")
        A(f"buffer_load_dword v0, v{t+6}, s[{sV}:{sV+3}], s{sKVo} offen")
        A(f"buffer_load_dword v0, v{t+6}, s[{sSrc}:{sSrc+3}], s{sPo} offen")
        A("s_mov_b64 exec, -1")
    if "tlbs" in OPT:
        A(f"s_lshl_b32 s6, s{sHead}, 14")
        A(f"s_lshl_b32 s7, s{sFb}, 13")
        A(f"s_add_u32 s7, s7, {128*4096}")
        A("s_mov_b64 exec, 1")
        A(f"buffer_store_dword v{t+6}, v{t+6}, s[{sA}:{sA+3}], s6 offen sc1")
        A(f"buffer_store_dword v{t+6}, v{t+6}, s[{sA}:{sA+3}], s7 offen sc1")
        A("s_mov_b64 exec, -1")
    for i in range(4): A(f"v_mov_b32 v{vSt+i}, 0")
    A(f"v_mov_b32 v{t+13}, 0x3f803f80")
    for i in range(4): A(f"v_accvgpr_write_b32 a{aOne+i}, v{t+13}")
    z = vr(vSt, 4)
    for i in range(8): mf32(A, vr(vAcc + 16 * i, 16), z, z, "0")
    for i in range(9): mf32(A, ar(16 * i, 16), z, z, "0")
    A(f"s_waitcnt vmcnt({15 if 'tlbw' in OPT else 14 if 'tlbs' in OPT else 12})")
    A("s_barrier")
    A(f"s_lshl2_add_u32 s6, s{sProd}, s{sWave}")
    A(f"s_and_b32 s6, s6, 0xfffffff3")
    A(f"s_cbranch_scc1 {L}np3")
    A(f"v_mov_b32 v{t+1}, 1")
    A(f"v_add_u32 v{t+7}, s{sProd}, v{t+2}")
    A(f"s_mov_b64 exec, 1")
    A(f"global_store_byte v{t+7}, v{t+1}, s[{pDbg}:{pDbg+1}] sc1")
    A(f"s_mov_b64 exec, -1")
    A(f"{L}np3:")
    stamp(1)
    for rt in range(4): A(xread(0, 0, rt))
    A(f"s_cmp_eq_u32 s{sHasF}, 0")
    fr = frag_list(True)
    for f in range(3):
        for sec in range(2): A(wread(fr[f], 0, sec, f))
    A("s_waitcnt lgkmcnt(6)")
    if FINE: A("s_mov_b32 s7, 0")
    A(f"s_cbranch_scc1 {L}gn")
    gemm_loop(A, True, L + "gf")
    A(f"s_branch {L}gdone")
    gemm_events(A, L + "gf")
    gemm_events(A, L + "gn")
    gemm_loop(A, False, L + "gn")
    A(f"{L}gdone:")
    if FINE:
        A(f"s_lshl_b32 s96, s2, 2"); A(f"s_add_u32 s96, s96, s{sWave}"); A("s_lshl_b32 s96, s96, 10")
        A(f"v_lshl_add_u32 v{vTm+12}, v{vLane}, 2, s96")
        A(f"s_add_u32 s100, s{pWs}, 0x3200000"); A(f"s_addc_u32 s101, s{pWs+1}, 0")
        A(f"global_store_dword v{vTm+12}, v{vFin}, s[100:101]")
        A(f"global_store_dword v{vTm+12}, v{vFin+1}, s[100:101] offset:256")
        A(f"global_store_dword v{vTm+12}, v{vFin-1}, s[100:101] offset:512")
    stamp(2)
    A(f"v_lshrrev_b32 v{t+12}, 4, v{vLane}")
    A(f"v_lshlrev_b32 v{t+12}, 4, v{t+12}")
    A(f"s_lshl_b32 s6, s{sWave}, 7")
    A(f"s_add_u32 s6, s6, {CS}")
    A(f"v_add_u32 v{t+8}, s6, v{t+12}")
    A(f"s_lshl_b32 s6, s{sWave}, 6")
    A(f"s_add_u32 s6, s6, {CS+512}")
    A(f"v_add_u32 v{t+9}, s6, v{t+12}")
    A("s_mov_b32 exec_lo, 0x00010001")
    A("s_mov_b32 exec_hi, 0x00010001")
    A(f"ds_write_b128 v{t+8}, {ar(aCs,4)}")
    A(f"ds_write_b128 v{t+8}, {ar(aCs+4,4)} offset:64")
    A(f"ds_write_b128 v{t+9}, {ar(aCs+8,4)}")
    A(f"ds_write_b128 v{t+9}, {ar(aCs+12,4)} offset:256")
    A("s_mov_b64 exec, -1")
    for j in range(8): A(f"v_mov_b32 v{vKd+j}, v{vXd+j}")
    A(f"s_mov_b32 s{sKVo}, s{sXo}")
    A(f"s_mov_b32 s{sKVm}, s{sM0X}")
    A(f"v_lshlrev_b32 v{t+10}, 4, v{vLane}")
    A(f"s_and_b32 s{qP}, s2, 3")
    A(f"s_lshr_b32 s{qCb}, s2, 6")
    A(f"s_bfe_u32 s{qRb}, s2, 0x30003")
    A(f"s_and_b32 s6, s2, 4")
    A(f"s_lshl_b32 s6, s6, 1")
    A(f"s_add_u32 s{qRb}, s{qRb}, s6")
    A(f"s_lshl2_add_u32 s{qG}, s{qRb}, s{qCb}")
    A(f"s_mul_i32 s6, s{qG}, {IB_G}")
    A(f"s_add_u32 s6, s6, {IB_OFF}")
    A(f"s_add_u32 s{qI}, s{pWs}, s6")
    A(f"s_addc_u32 s{qI+1}, s{pWs+1}, 0")
    srd(A, qI, qI, qI + 1, IB_G)
    vWs = t
    wp_src_voff(A, vWs)
    A("s_waitcnt lgkmcnt(0)")
    A("s_barrier")
    kvadv = [f"s_add_u32 s{sKVo}, s{sKVo}, 16384\ns_add_u32 s{sKVm}, s{sKVm}, 32768"]
    def kvq(): return kv_dma() + kvadv
    csb = [vKr, vKr + 4, vVr + 0]
    lq = LQ()
    def csread_q(p):
        A(f"v_xor_b32 v{t+11}, {64*p}, v{t+8}")
        A(f"ds_read_b128 {vr(csb[p%3],4)}, v{t+11}"); lq.issue(("c", p))
    csread_q(0); csread_q(1)
    wo_dma = []
    for su in range(2):
        wo_dma.append(f"s_lshl_b32 s6, s{sWave}, 13\ns_add_u32 m0, s6, {R4+su*4096}")
        if "nowosrc" not in OPT: wo_dma += [f"buffer_load_dwordx4 v{vWs+4*su+j}, s[{sSrc}:{sSrc+3}], s{sPo} offen offset:{j*1024} lds ; @put P" for j in range(4)]
    kq = spread([f"s_add_u32 m0, s{sKVm}, 16384"] + kv_dma()[6:] + kvadv + wo_dma[:5 * SPL[0]], 24)
    for rt in range(4):
        q = vSt + 4 * rt
        A(f"v_mul_f32 v{q+3}, {hex(f2u(LOG2E/128**0.5))}, v{q+1}")
        A(f"v_mul_f32 v{q+1}, {hex(f2u(-LOG2E))}, v{q+1}")
    z = vr(vTm + 12, 4)
    for i in range(4): A(f"v_mov_b32 v{vTm+12+i}, 0")
    for p in range(8):
        if p + 2 < 8: csread_q(p + 2)
        lq.wait(A, [("c", p)])
        c = csb[p % 3]
        for rt in range(4):
            d = vAcc + (p * 4 + rt) * 4; q = vSt + 4 * rt
            for h in range(2):
                A(f"v_pk_fma_f32 {vr(d+2*h,2)}, {vr(c+2*h,2)}, {vr(q,2)}, {vr(d+2*h,2)} op_sel_hi:[1,0,1]")
        mf32(A, ar(aO + 16 * p, 16), z, z, "0")
        emit(kq[3*p])
        for rt in range(4):
            d = vAcc + (p * 4 + rt) * 4; q = vSt + 4 * rt
            for h in range(2):
                A(f"v_pk_mul_f32 {vr(d+2*h,2)}, {vr(d+2*h,2)}, {vr(q+2,2)} op_sel:[0,1]")
        emit(kq[3*p+1])
        for rt in range(4):
            d = vAcc + (p * 4 + rt) * 4
            f = vQ + ((rt // 2) * 8 + p) * 4 + (rt & 1) * 2
            for h in range(2): A(f"v_cvt_pk_bf16_f32 v{f+h}, v{d+2*h}, v{d+2*h+1}")
        emit(kq[3*p+2])
        if p > 0:
            for qt in range(2):
                f = vQ + (qt * 8 + p - 1) * 4
                for h in range(2): A(f"v_permlane16_swap_b32 v{f+h}, v{f+2+h}")
    A("s_nop 0")
    for qt in range(2):
        f = vQ + (qt * 8 + 7) * 4
        for h in range(2): A(f"v_permlane16_swap_b32 v{f+h}, v{f+2+h}")
    stamp(3)
    A(f"s_cmp_eq_u32 s{sHasF}, 0")
    A(f"s_cbranch_scc1 {L}noffn")
    def hst(pi, rt): return f"buffer_store_dwordx4 {vr(vAcc+96+pi*16+rt*4,4)}, v{t+10}, s[{sA}:{sA+3}], s{qT0+pi} offen offset:{rt*1024}" + ("" if "wbl2" in OPT else " sc1") + " ; @put H @put HH"
    T = vAcc; H = vAcc + 96; C = vAcc + 48
    for p in range(4):
        A(f"v_xor_b32 v{t+11}, {64*p}, v{t+9}")
        A(f"ds_read_b128 {vr(C+8*p,4)}, v{t+11}")
        A(f"ds_read_b128 {vr(C+8*p+4,4)}, v{t+11} offset:256")
    A(f"s_lshr_b32 s7, s{sWave}, 1")
    A(f"s_lshl_b32 s6, s{sFb}, 1")
    A(f"s_add_u32 s6, s6, 128")
    A(f"s_add_u32 s{sT0}, s6, s7")
    A(f"s_xor_b32 s7, s7, 1")
    A(f"s_add_u32 s{sT1}, s6, s7")
    A(f"s_lshl_b32 s{qT0}, s{sT0}, 12")
    A(f"s_lshl_b32 s{qT1}, s{sT1}, 12")
    A("s_waitcnt lgkmcnt(0)")
    ffq = wo_dma[5 * SPL[0]:] + kv_dma()[:5 * SPL[1]]
    kq = spread(ffq, 24) if ffq else [[]] * 24
    for p in range(4):
        for r2 in range(2):
            g_ = 3 * (p * 2 + r2)
            G = [(2 * r2 + i, T + 12 * i + 24 * ((p * 2 + r2) & 1)) for i in range(2)]
            for rt, b in G:
                for i in range(4): A(f"v_accvgpr_read_b32 v{b+i}, a{aG+(p*4+rt)*4+i}")
                for i in range(4): A(f"v_accvgpr_read_b32 v{b+4+i}, a{aUp+(p*4+rt)*4+i}")
            emit(kq[g_])
            for rt, b in G:
                for h in range(4):
                    A(f"v_pk_fma_f32 {vr(b+2*h,2)}, {vr(C+8*p+2*h,2)}, {vr(vSt+4*rt,2)}, {vr(b+2*h,2)} op_sel_hi:[1,0,1]")
            for rt, b in G:
                for h in range(2): A(f"v_pk_mul_f32 {vr(b+8+2*h,2)}, {vr(b+2*h,2)}, {vr(vSt+4*rt,2)} op_sel:[0,1]")
            for rt, b in G:
                for i in range(4): A(f"v_exp_f32 v{b+8+i}, v{b+8+i}")
            emit(kq[g_+1])
            for rt, b in G:
                for h in range(2): A(f"v_pk_mul_f32 {vr(b+2*h,2)}, {vr(b+2*h,2)}, {vr(b+4+2*h,2)}")
            for rt, b in G:
                for h in range(2):
                    A(f"v_pk_fma_f32 {vr(b+8+2*h,2)}, {vr(b+8+2*h,2)}, {vr(vSt+4*rt+2,2)}, {vr(vSt+4*rt+2,2)} op_sel_hi:[1,0,0]")
            for rt, b in G:
                for i in range(4): A(f"v_rcp_f32 v{b+8+i}, v{b+8+i}")
            emit(kq[g_+2])
            for n, (rt, b) in enumerate(G):
                for h in range(2): A(f"v_pk_mul_f32 {vr(b+2*h,2)}, {vr(b+2*h,2)}, {vr(b+8+2*h,2)}")
            for rt, b in G:
                for h in range(2): A(f"v_cvt_pk_bf16_f32 v{H+(p//2)*16+rt*4+(p&1)*2+h}, v{b+2*h}, v{b+2*h+1}")
        if p & 1:
            pi = p // 2
            A(f"s_bitcmp1_b32 s{sWave}, 0")
            A(f"s_cbranch_scc0 {L}nsw{pi}")
            for rt in range(4):
                for h in range(2): A(f"v_swap_b32 v{H+pi*16+rt*4+h}, v{H+pi*16+rt*4+2+h}")
            A(f"{L}nsw{pi}:")
    A(f"s_branch {L}ffnd")
    A(f"{L}noffn:")
    emit(ffq)
    A(f"s_mov_b32 s{qT0}, 0x1000000")
    A(f"s_mov_b32 s{qT1}, 0x1000000")
    A("s_barrier")
    srd(A, qA, pW2, pW2 + 1, 1728 * 1280)
    wp_src_voff(A, vAcc)
    wp_addr(A, 13)
    A(f"s_mul_i32 s{sT2}, s{sRb}, 5")
    A(f"s_add_u32 s{sT2}, s{sT2}, s{sProd}")
    A(f"s_lshl2_add_u32 s{sT2}, s{sT2}, s{sWave}")
    A(f"{L}w2j:")
    A(f"s_mul_hi_u32 s{sT0}, s{sT2}, 0x33333334")
    A(f"s_mul_i32 s{sT1}, s{sT0}, 5")
    A(f"s_sub_u32 s{sT1}, s{sT2}, s{sT1}")
    A(f"s_mul_i32 s7, s{sT0}, 40960")
    A(f"s_lshl_b32 s6, s{sT1}, 8")
    A(f"s_add_u32 s{sT0}, s7, s6")
    A(f"s_lshl_b32 s6, s{sT1}, 13")
    A(f"s_add_u32 s7, s7, s6")
    A(f"s_add_u32 s{sT1}, s7, {128*40960}")
    A(f"s_lshl_b32 s6, s{sWave}, 13")
    for su in range(2):
        A(f"s_add_u32 m0, s6, {R3+su*4096}")
        A("s_nop 0")
        for j in range(4): A(f"buffer_load_dwordx4 v{vAcc+4*su+j}, s[{qA}:{qA+3}], s{sT0} offen offset:{j*1024} lds")
    A("s_waitcnt vmcnt(0)")
    wp_reads(A, 4096)
    A("s_waitcnt lgkmcnt(0)")
    wp_stores(A, sT1)
    A(f"s_add_u32 s{sT2}, s{sT2}, 160")
    A(f"s_cmp_lt_u32 s{sT2}, 270")
    A(f"s_cbranch_scc1 {L}w2j")
    A(f"{L}ffnd:")
    for i in range(4): A(f"v_mov_b32 v{vOnes+i}, -1")
    A(f"s_mul_i32 s6, s{qP}, 30720")
    A(f"s_mul_i32 s7, s{sWave}, 7680")
    A(f"s_min_u32 s7, s7, 22528")
    A(f"s_add_u32 s{sSen}, s6, s7")
    A(f"s_lshl_b32 s{sWpO}, s{sU}, 12")
    wp_addr(A, 13, reg=R4, n=1, dst=vWpB)
    A(f"s_lshl_b32 s{sTch}, s{sHead}, 14")
    A(f"v_and_b32 v{vTch}, 15, v{vLane}")
    A(f"v_lshlrev_b32 v{vTch}, 7, v{vTch}")
    A(f"v_add_u32 v{vL16+1}, 4096, v{vL16}")
    A(f"s_lshl_b32 s6, s{sRb}, 5")
    A(f"s_add_u32 s7, s6, s{sHead}")
    A(f"s_lshl_b32 s7, s7, 7")
    A(f"v_mov_b32 v{vFo}, s7")
    stamp(4)
    A(f"s_mov_b32 s{sT1}, {R0}")
    kv_addr(A, sT1)
    A(f"v_mov_b32 v{vL}, 0")
    A(f"v_mov_b32 v{vL+1}, 0")
    A(f"s_cmp_eq_u32 s{sWave}, 0")
    A(f"s_cselect_b32 s{sTail}, 0, 0x8000")
    srd(A, qX, pFl, pFl + 1, 0x8000)
    A(f"s_add_u32 s6, s{sNo}, 1")
    A(f"v_mov_b32 v{vFv}, s6")
    A(f"v_mov_b32 v{vFv+1}, s{sNo+1}")
    A(f"s_waitcnt vmcnt(20)")
    A("s_barrier")
    stamp(5, True)
    lq = LQ()
    for p in range(3):
        A(kread(p, 0, p)); lq.issue(("f", 16 + p))
    ex0 = {33 + 4 * i: [hst(1, i)] for i in range(4)}
    rest = kvq() if SPL[1] == 0 else [f"s_add_u32 m0, s{sKVm}, 16384"] + kvq()[6:]
    ex0 = {32 + i: x for i, x in enumerate(spread(rest, 16))}
    attn_seg(A, lq, 2, ex0, sm_lo=0, sm_hi=0, look=[2])
    for p in range(3):
        A(kread(p, 1, p)); lq.issue(("f", p))
    A("s_nop 7")
    for e in range(10):
        for x in sm_exp(0, e): A(x)
        if e:
            for x in sm_post(0, e - 1): A(x)
    assert XP or lq.q == [("f", 0), ("f", 1), ("f", 2)]
    def put(ex, slots, items):
        for sl, its in zip(slots, spread(items, len(slots))): ex.setdefault(sl, []).extend(its)
    PA = Asm()
    PA(f"s_lshl_b32 s6, s{sRb}, 5")
    PA(f"v_and_b32 v{vAp}, 3, v{vLane}")
    PA(f"v_lshlrev_b32 v{vAp}, 2, v{vAp}")
    PA(f"s_and_b32 s7, s{sHead}, 0x13")
    PA(f"s_add_u32 s7, s7, s6")
    PA(f"v_add_lshl_u32 v{vAp}, v{vAp}, s7, 7")
    PA(f"s_lshr_b32 s7, s{qRb}, 1")
    PA(f"s_lshl_b32 s6, s7, 5")
    PA(f"s_lshl_b32 s{sT0}, s{sWave}, 3")
    PA(f"s_add_u32 s6, s6, s{sT0}")
    PA(f"v_add_lshl_u32 v{vAa}, v{vLane}, s6, 7")
    PA(f"v_cmp_gt_u32 vcc, 8, v{vLane}")
    PA(f"v_and_b32 v{vAb}, 15, v{vLane}")
    PA(f"v_lshlrev_b32 v{vAb}, 2, v{vAb}")
    PA(f"s_lshl_b32 s6, s{sWave}, 6")
    PA(f"s_add_u32 s6, s6, 3")
    PA(f"v_add_lshl_u32 v{vAb}, v{vAb}, s6, 7")
    PA(f"v_cndmask_b32 v{vAa}, v{vAb}, v{vAa}, vcc")
    PA(f"v_bfe_u32 v{vAo}, v{vLane}, 4, 1")
    PA(f"v_add_u32 v{vAo}, s{qCb}, v{vAo}")
    PA(f"v_cmp_gt_u32 vcc, 32, v{vLane}")
    PA(f"v_mov_b32 v{vPb}, s7")
    PA(f"s_mul_i32 s6, s{qP}, 21")
    PA(f"s_add_u32 s6, s6, 1")
    PA(f"v_cndmask_b32 v{vAo}, v{vPb}, v{vAo}, vcc")
    PA(f"s_lshr_b32 s6, s6, 1")
    PA(f"v_and_b32 v{vPb}, 15, v{vLane}")
    PA(f"v_min_u32 v{vPb}, 10, v{vPb}")
    PA(f"v_add_u32 v{vPb}, s6, v{vPb}")
    PA(f"v_cmp_gt_u32 vcc, 48, v{vLane}")
    PA(f"v_lshl_add_u32 v{vAo}, v{vAo}, 5, v{vPb}")
    PA(f"v_lshlrev_b32 v{vAo}, 7, v{vAo}")
    PA(f"v_cndmask_b32 v{vAo}, v{vAp}, v{vAo}, vcc")
    odd = lambda a, b: [x for x in range(a, b) if x & 1]
    def wo_job(ex, f, s0, s1):
        r = aWq + 4 * (f % 3)
        ex.setdefault(s0 - 1, []).append(f"v_xor_b32 v{vWpA}, {((f&3)<<5)|((f&4)<<10)}, v{vWpB}")
        ex[(s0, "ds")] = [f"ds_read_b64_tr_b16 {ar(r,2)}, v{vWpA} ; @need P 0"]
        ex[(s0 + 2, "ds")] = [f"ds_read_b64_tr_b16 {ar(r+2,2)}, v{vWpA} offset:2048"]
        if "nowo" not in XP: ex.setdefault(s1, []).append(f"buffer_store_dwordx4 {ar(r,4)}, v{vL16+f//4}, s[{sWp}:{sWp+3}], s{sWpO} offen offset:{(f&3)*1024} sc1 ; @put H")
    def mark(f): return "s_nop 0" if "nosent" in XP else f"buffer_store_dwordx4 {vr(vOnes,4)}, v{vL16+f//4}, s[{qI}:{qI+3}], s{sSen} offen offset:{(f&3)*1024} sc1 ; @put H"
    stamp(6, True)
    BW = {0: 10, 1: 13, 2: 13, 3: 13, 4: 13, 5: 13}
    bg = [("h", i) for i in range(8)] + [("w", i) for i in range(8)] + [("m", i) for i in range(8)]
    BG = [bg[0:3], bg[3:6], bg[6:9], bg[9:12], bg[12:15], bg[15:19], bg[19:22], bg[22:24]]
    for t_ in range(8):
        ex = {}
        delta = hex((-98304) & 0xffffffff) if t_ == 3 else "0x8000"
        if t_ < 7:
            for p in range(8):
                ex.setdefault(max(2 * (p - 3) + 1, 1) if p >= 3 else 2 * p, []).append(f"v_add_u32 v{vKr+p}, {delta}, v{vKr+p}")
            for dt in range(4):
                ex.setdefault(2 * (28 + dt - 3) + 2, []).append(f"v_add_u32 v{vVr+dt}, {delta}, v{vVr+dt}")
        if t_ < 5:
            for sl, it in zip([32, 33, 37, 41, 45, 47, 49, 53, 57, 61], kv_dma()): ex.setdefault(sl, []).append(it)
            ex.setdefault(62, []).append(f"s_add_u32 s{sKVo}, s{sKVo}, 16384")
            ex.setdefault(59, []).append(f"s_add_u32 s{sKVm}, s{sKVm}, {hex((-98304) & 0xffffffff) if t_ == 0 else 32768}")
        if t_ < 6: ex[(26, "pre")] = [f"s_waitcnt vmcnt({BW[t_]})", "s_barrier ; @need KV 8 @need Xa 0" + (" @need HH 0" if t_ == 4 else "")]
        for j, (kind, f) in enumerate(BG[t_]):
            sl = (3, 19, 51, 39)[j]
            if kind == "h": put(ex, [sl], [hst(f // 4, f % 4)])
            elif kind == "m": put(ex, [sl], [mark(f)])
            else: wo_job(ex, f, (1, 7, 35)[j], (13, 21, 51)[j])
        if t_ == 4:
            put(ex, [39], [f"buffer_store_dwordx2 {vr(vFv,2)}, v{vFo}, s[{qX}:{qX+3}], s{sTail} offen sc1"])
        if t_ == 5:
            for sl, its in zip([x for x in range(10, 47) if x != 26], spread(PA.lines, 36)): ex.setdefault((sl, "post"), []).extend(its)
            put(ex, [x for x in range(47, 64) if x != 51], q_setup())
        elif t_ == 6:
            put(ex, [1], [f"global_load_dwordx2 {vr(vPa,2)}, v{vAa}, s[{pFl}:{pFl+1}] sc1"])
            B_ = Asm(); B_("s_waitcnt vmcnt(2)"); B_(f"s_cmp_lg_u32 s{qP}, 3"); B_(f"s_cbranch_scc1 {L}w1r")
            flag_wait(B_, f"{L}w1", 1, [(vPa, vAa)]); B_("s_barrier")
            ex[(26, "pre")] = B_.lines
            put(ex, [x for x in odd(31, 64) if x != 51], q_loads(0) + q_loads(1)[:6])
        elif t_ == 7:
            ex[(26, "pre")] = ["s_barrier"]
            put(ex, [1, 5, 7, 9, 11, 13, 15, 17, 21, 23, 25, 27, 29, 31], q_loads(1)[6:] + q_loads(2)[:7])
        if t_ >= 1: stamp(t_ + 6, True)
        attn_seg(A, lq, 0, ex)
        attn_seg(A, lq, 1, ex, look=(True if t_ < 7 else [1]))
        if t_ < 7:
            attn_seg(A, lq, 2, ex)
            attn_seg(A, lq, 3, ex)
    ex = {}
    put(ex, [33, 37, 41, 45, 49, 53, 57], q_loads(2)[7:])
    attn_seg(A, lq, 2, ex, mfma=False, look=[3])
    attn_seg(A, lq, 3, ex, sm_hi=54, look=[3])
    stamp(5)
    if "fine2" in XP:
        A(f"s_lshl_b32 s96, s2, 2"); A(f"s_add_u32 s96, s96, s{sWave}"); A("s_lshl_b32 s96, s96, 10")
        A(f"v_lshl_add_u32 v227, v{vLane}, 2, s96")
        A(f"s_add_u32 s96, s{pWs}, 0x3200000"); A(f"s_addc_u32 s97, s{pWs+1}, 0")
        for i in range(3): A(f"global_store_dword v227, v{224+i}, s[96:97] offset:{256*i}")
    A(f"v_mov_b32 v{t}, v{vL}")
    A(f"v_mov_b32 v{t+1}, v{vL+1}")
    A(f"v_bfe_u32 v{t+2}, v{vLane}, 4, 1")
    A(f"v_lshrrev_b32 v{t+3}, 5, v{vLane}")
    A(f"v_permlane32_swap_b32 v{t}, v{vL}")
    A(f"v_permlane32_swap_b32 v{t+1}, v{vL+1}")
    A(f"v_lshlrev_b32 v{t+3}, 8, v{t+3}")
    A(f"v_add_f32 v{vL}, v{vL}, v{t}")
    A(f"v_add_f32 v{vL+1}, v{vL+1}, v{t+1}")
    A(f"v_lshl_add_u32 v{t+3}, v{t+2}, 10, v{t+3}")
    A(f"v_and_b32 v{t+2}, 15, v{vLane}")
    A(f"v_lshl_add_u32 v{vOo}, v{t+2}, 4, v{t+3}")
    A(f"v_mov_b32 v{t+8}, {hex(f2u(2.0**-40))}")
    A(f"v_mov_b32 v{t+9}, {hex(f2u(2.0**40))}")
    A(f"v_cmp_gt_f32 s[{sE0}:{sE0+1}], v{vL}, v{t+8}")
    A(f"v_cmp_lt_f32 s[{sE0+2}:{sE0+3}], v{vL}, v{t+9}")
    A(f"v_cmp_gt_f32 s[4:5], v{vL+1}, v{t+8}")
    A(f"v_cmp_lt_f32 s[6:7], v{vL+1}, v{t+9}")
    A(f"v_rcp_f32 v{t}, v{vL}")
    A(f"v_rcp_f32 v{t+1}, v{vL+1}")
    A("s_nop 1")
    A(f"s_and_b64 s[{sE0}:{sE0+1}], s[{sE0}:{sE0+1}], s[{sE0+2}:{sE0+3}]")
    A(f"s_and_b64 s[4:5], s[4:5], s[6:7]")
    A(f"s_and_b64 s[4:5], s[4:5], s[{sE0}:{sE0+1}]")
    A(f"s_cmp_eq_u64 s[4:5], exec")
    if not XP: A(f"s_cbranch_scc0 {L}slow ; slowbr")
    A(f"{L}oep:")
    A(f"s_lshl_b32 s6, s{sHead}, 14")
    n = 0
    for dt in range(4):
        for qt in range(2):
            b = vS + (n % 4) * 16; pk = vP + (n % 4) * 8; n += 1
            for i in range(16): A(f"v_accvgpr_read_b32 v{b+i}, a{aO+(qt*4+dt)*16+i}")
            for i in range(8):
                A(f"v_pk_mul_f32 {vr(b+2*i,2)}, {vr(b+2*i,2)}, {vr(t,2)} " + ("op_sel_hi:[1,0]" if qt == 0 else "op_sel:[0,1]"))
            for i in range(8): A(f"v_cvt_pk_bf16_f32 v{pk+i}, v{b+2*i}, v{b+2*i+1}")
            for j in range(2):
                A(f"buffer_store_dwordx4 {vr(pk+4*j,4)}, v{vOo}, s[{sA}:{sA+3}], s6 offen offset:{qt*2048+j*512} sc1 ; @put H")
        if dt < 3: A("s_add_u32 s6, s6, 4096")
    stamp(6); stamp(7)
    gemm2(A, L, emit, stamp)
    A(f"{L}end:")
    A("s_endpgm")
    A(f"{L}slow:")
    A("s_waitcnt vmcnt(0) lgkmcnt(0)")
    srd(A, sK, pK, pK + 1, 16777216)
    srd(A, sV, pV, pV + 1, 16777216)
    kv_dma_voff(A, vKd, vVd)
    A(f"s_lshl_b32 s{sT1}, s{sWave}, 13")
    A(f"s_add_u32 s{sT1}, s{sT1}, {R2}")
    kv_addr(A, sT1)
    for dt in range(4): A(f"v_add_u32 v{vVr+dt}, {R4-R2-16384}, v{vVr+dt}")
    vM = vTm + 6
    A(f"v_mov_b32 v{vM}, 0xff800000")
    A(f"v_mov_b32 v{vM+1}, 0xff800000")
    A(f"v_mov_b32 v{vL}, 0")
    A(f"v_mov_b32 v{vL+1}, 0")
    for i in range(4): A(f"v_mov_b32 v{vTm+12+i}, 0")
    A("s_nop 1")
    for i in range(8): mf32(A, ar(aO + 16 * i, 16), vr(vTm + 12, 4), vr(vTm + 12, 4), "0")
    A(f"s_mov_b32 s{sT}, 0")
    A(f"{L}sl:")
    A(f"s_and_b32 s{sT0}, s{sT}, 15")
    A(f"s_lshl_b32 s{sT0}, s{sT0}, 13")
    A(f"s_lshl_b32 s{sKVo}, s{sHead}, 19")
    A(f"s_add_u32 s{sKVo}, s{sKVo}, s{sT0}")
    A(f"s_add_u32 s{sKVo}, s{sKVo}, {1536*256}")
    for hf in range(2):
        A(f"s_add_u32 m0, s{sT1}, {hf*4096}")
        A("s_nop 0")
        for j in range(4): A(f"buffer_load_dwordx4 v{vKd+j}, s[{sK}:{sK+3}], s{sKVo} offen offset:{j*1024} lds")
        A(f"s_add_u32 m0, s{sT1}, {R4-R2+hf*4096}")
        A("s_nop 0")
        for j in range(4): A(f"buffer_load_dwordx4 v{vVd}, s[{sV}:{sV+3}], s{sKVo} offen offset:{j*1024} lds")
        if hf == 0: A(f"s_add_u32 s{sKVo}, s{sKVo}, 4096")
    A("s_waitcnt vmcnt(0)")
    for p in range(8):
        A(kread(p, 0, p % 4))
        A("s_waitcnt lgkmcnt(0)")
        for qt in range(2): mf32(A, vr(vS + qt * 16, 16), vr(vF + (p % 4) * 4, 4), vr(vQ + (qt * 8 + p) * 4, 4), "0" if p == 0 else None)
    A("s_nop 11")
    A(f"s_cmp_ge_u32 s{sT}, 16")
    A(f"s_cbranch_scc1 {L}sl2")
    for qt in range(2):
        for i in range(8): A(f"v_max3_f32 v{vM+qt}, v{vS+qt*16+2*i}, v{vS+qt*16+2*i+1}, v{vM+qt}")
    A(f"s_cmp_lg_u32 s{sT}, 15")
    A(f"s_cbranch_scc1 {L}sl3")
    A(f"v_mov_b32 v{vM+2}, v{vM}")
    A(f"v_mov_b32 v{vM+3}, v{vM+1}")
    A("s_nop 1")
    A(f"v_permlane32_swap_b32 v{vM+2}, v{vM}")
    A(f"v_permlane32_swap_b32 v{vM+3}, v{vM+1}")
    A(f"v_max_f32 v{vM}, v{vM}, v{vM+2}")
    A(f"v_max_f32 v{vM+1}, v{vM+1}, v{vM+3}")
    A(f"s_branch {L}sl3")
    A(f"{L}sl2:")
    for e in range(32):
        r, qt, ks = sm_reg(0, e)
        A(f"v_sub_f32 v{r}, v{r}, v{vM+qt}")
        A(f"v_exp_f32 v{r}, v{r}")
        A("s_nop 0")
        for x in sm_post(0, e): A(x)
    for i in range(8):
        for sec in range(2): A(vread(i // 4, i % 4, 0, sec, i % 4))
        A("s_waitcnt lgkmcnt(0)")
        for qt in range(2): mf32(A, ar(aO + (qt * 4 + i % 4) * 16, 16), vr(vF + (i % 4) * 4, 4), vr(vP + (qt * 2 + i // 4) * 4, 4))
    A(f"{L}sl3:")
    A(f"s_add_u32 s{sT}, s{sT}, 1")
    A(f"s_cmp_lt_u32 s{sT}, 32")
    A(f"s_cbranch_scc1 {L}sl")
    A(f"v_mov_b32 v{t}, v{vL}")
    A(f"v_mov_b32 v{t+1}, v{vL+1}")
    A("s_nop 1")
    A(f"v_permlane32_swap_b32 v{t}, v{vL}")
    A(f"v_permlane32_swap_b32 v{t+1}, v{vL+1}")
    A(f"v_add_f32 v{vL}, v{vL}, v{t}")
    A(f"v_add_f32 v{vL+1}, v{vL+1}, v{t+1}")
    A(f"v_rcp_f32 v{t}, v{vL}")
    A(f"v_rcp_f32 v{t+1}, v{vL+1}")
    A("s_nop 7")
    A(f"s_branch {L}oep")
    kd(A, name, 512, 256)

def checks(A, entry):
    if XP: return
    nb = check_hazards(A.lines)
    tot = 0
    for wg in (0, 5, 6, 31, 24, 28, 255):
        for w in (0, 1, 3):
            for slow in (0, 1):
                def hk(x, S):
                    if x.opn == "v_readfirstlane_b32" and "tag" not in x.text:
                        S[sWave] = w
                    if "slowbr" in x.text: return slow
                    if "pollbr" in x.text: return 1
                p, c = check_waits(A.lines, entry, {2: wg}, hk)
                tot += p
    print("hazards:", nb, "waits:", tot, c)

def build(fn, stamps=False):
    HDR = open("cdna_kernels/" + NAME + ".s.ref").read().split("; Override")[0]
    A = Asm()
    A(HDR)
    A(f"; @launch grid=(256,1,1) block=(256,1,1) lds={P1_LDS}")
    A('.amdgcn_target "amdgcn-amd-amdhsa--gfx950"')
    A(".text")
    gen_p1(A, NAME + "_kernel", stamps=stamps)
    checks(A, NAME + "_kernel")
    if "hplain" in XP: A.lines = [l.replace(" sc1", "") if ("store" in l and f"s[{sA}:{sA+3}], s6 " not in l and f"s[{sA}:{sA+3}]" in l) else l for l in A.lines]
    if "oplain" in XP: A.lines = [l.replace(" sc1", "") if ("store" in l and f"s[{sA}:{sA+3}], s6 " in l) else l for l in A.lines]
    if "iplain" in XP: A.lines = [l.replace(" sc1", "") if ("store" in l and f"s[{qI}:{qI+3}], s{sT0}" in l) else l for l in A.lines]
    if "nt" in XP: A.lines = [l.replace(" sc1", " sc1 nt") if ("buffer_store" in l) else l for l in A.lines]
    if "sc01" in XP: A.lines = [l.replace(" sc1", " sc0 sc1") if ("buffer_store" in l) else l for l in A.lines]
    open(fn, "w").write(A.text())
if __name__ == "__main__":
    build("fu.s")
    build("fu_st.s", stamps=True)
```

```python
from asmlib import *
from common import *

P1_LDS = 163840
R0, R1, R2, R3, R4 = 0, 32768, 65536, 98304, 131072
CS = R3
TAILBIT = 0x30000
ROT = False
TLBW = True
FLAG = 'byte'
FINE = False
EVMASK = 0x180
vFin = 60
XP = set()

class LQ:
    def __init__(s): s.q = []
    def issue(s, tag): s.q.append(tag)
    def wait(s, A, tags):
        idx = max([i for i, t in enumerate(s.q) if t in tags], default=-1)
        if idx < 0: return
        n = len(s.q) - 1 - idx
        assert n <= 15
        A(f"s_waitcnt lgkmcnt({n})")
        s.q = s.q[idx + 1:]
    def clear(s): s.q = []

sX, sWq, sW1, sW3, sK, sV, sA, sWp, sSrc, sSt = 8, 12, 16, 20, 24, 28, 32, 36, 40, 44
sWave, sHead, sRb, sFb, sHasF = 48, 49, 50, 51, 52
sXo, sWqo, sW13o, sM0X, sM0W, sD, sTail, sSlot = 53, 54, 55, 56, 57, 58, 59, 60
sT0, sT1, sT2 = 61, 62, 63
pX, pK, pV, pWq, pWo, pBx, pW1, pW3, pW2, pOut, pDbg, pWs = range(64, 88, 2)
sKVo, sKVm, sDelta, sT, sU, sMask, sXb, sC0 = 88, 89, 90, 91, 92, 93, 94, 95
sX2, sM0d, sXst, sM0t, sProd, sPo = 76, 74, 75, 3, 4, 5
sE0 = 96
vLane = 1
vXd, vWqd, vW13d, vXr, vWqr, vW13r = 2, 10, 12, 13, 15, 23
vZero = 27
vSt = 28
vTm = 44
vQ = 64
vAcc = 128
aG, aUp, aCs, aXf, aWf, aOne, aWp = 0, 64, 128, 144, 176, 192, 196
vKr, vVr, vKd, vVd, vL, vOo = 2, 10, 14, 18, 22, 24
vS, vP, vF = 128, 192, 208
aO = 128
sNo = 100
pFl = 84
qA, qW, qX, qO, qI = 8, 12, 16, 20, 44
qP, qG, qAo, qWo, qWm, qN, qAs, qWs = 53, 54, 55, 56, 57, 58, 51, 60
qAe, qWe, qNl, qSo, qXo, qRb, qCb, qT0, qT1, qIn = 74, 75, 3, 93, 94, 76, 77, 78, 79, 24
vFo, vFv, vPa, vPb, vAa, vAb, vAo, vAp = 25, 28, 30, 32, 34, 35, 36, 37
vL16, vWr2, vXo2, vL8, vOwn = 54, 2, 4, 5, 6
aA2, aW2, aWq = 0, 64, 64
RING2 = 81920
TOUCH = 0
COOPX = 1
SPL = (1, 1)
OPT = set()
vTch, sTch = 26, 92
vOnes = 40
vWpB, vWpA = 38, 39
sWpO, sSen = 5, 4


def mf16(A, d, a, b, c=None):
    A(f"v_mfma_f32_16x16x32_bf16 {d}, {a}, {b}, {d if c is None else c}")
def mf32(A, d, a, b, c=None):
    A(f"v_mfma_f32_32x32x16_bf16 {d}, {a}, {b}, {d if c is None else c}")

def spread(items, nslots):
    out = [[] for _ in range(nslots)]
    n = len(items)
    for i, it in enumerate(items):
        out[min(nslots - 1, (i * nslots) // n)].append(it)
    return out

def frag_list(ffn):
    fr = [("Q", p) for p in range(8)]
    if ffn:
        for p in range(4): fr += [("G", p), ("U", p)]
    return fr

def wread(fr, k, sec, buf):
    c, p = fr
    if c == "Q": ad, off = vWqr + p, sec * 1024
    else: ad, off = vW13r + p, (2048 if c == "G" else 3072) + sec * 512
    return f"ds_read_b64_tr_b16 {ar(aWf+buf*4+2*sec,2)}, v{ad} offset:{off + k*16384}"

def xread(s, st, rt):
    return f"ds_read_b128 {ar(aXf+st*16+rt*4,4)}, v{vXr+s} offset:{rt*2048}"

def dma_w(ffn, force=False):
    it = [f"s_max_u32 m0, s{sM0W}, s{sTail}",
          f"buffer_load_dwordx4 v{vWqd}, s[{sWq}:{sWq+3}], s{sWqo} offen lds ; @put W",
          f"buffer_load_dwordx4 v{vWqd+1}, s[{sWq}:{sWq+3}], s{sWqo} offen offset:1024 lds ; @put W"]
    if ffn or force:
        it += [f"buffer_load_dwordx4 v{vW13d}, s[{sW1}:{sW1+3}], s{sW13o} offen offset:2048 lds ; @put W",
               f"buffer_load_dwordx4 v{vW13d}, s[{sW3}:{sW3+3}], s{sW13o} offen offset:3072 lds ; @put W"]
    it += [f"s_add_u32 s{sWqo}, s{sWqo}, {32*8192}"]
    if ffn or force: it += [f"s_add_u32 s{sW13o}, s{sW13o}, {32*3456}"]
    it += [f"s_add_u32 s{sSlot}, s{sSlot}, 16384\ns_and_b32 s{sSlot}, s{sSlot}, 0xffff",
           f"s_add_u32 s{sM0W}, s{sSlot}, s{sC0}"]
    return it

def dma_x(half):
    if half == 0: it = [f"s_mov_b32 m0, s{sM0X}"]
    else: it = [f"s_add_u32 m0, s{sM0X}, s{sM0d}"]
    sd = sX if half == 0 else sX2
    for j in range(4):
        it.append(f"buffer_load_dwordx4 v{vXd+4*half+j}, s[{sd}:{sd+3}], s{sXo} offen offset:{j*1024} lds")
    if half: it += [f"s_add_u32 s{sXo}, s{sXo}, s{sXst}\ns_xor_b32 s{sM0X}, s{sM0X}, s{sM0t}"]
    return it

def fine(A):
    A("s_memtime s[98:99]"); A("s_waitcnt lgkmcnt(0)")
    A("s_mov_b32 m0, s7")
    A(f"v_writelane_b32 v{vFin}, s96, m0")
    A(f"v_writelane_b32 v{vFin+1}, s100, m0")
    A(f"v_writelane_b32 v{vFin-1}, s98, m0")
    A("s_add_u32 s7, s7, 1")

def gemm_loop(A, ffn, L):
    fr = frag_list(ffn); nf = len(fr)
    nw = 4 if ffn else 2
    ones = {("Q", 0): 0, ("Q", 1): 1, ("G", 0): 2, ("U", 0): 3}
    lq = LQ()
    for f in range(3):
        lq.issue(("w", f)); lq.issue(("w", f))
    A(".p2align 6")
    A(f"{L}:")
    for k in range(2):
        if k == 1:
            A(f"s_bitcmp1_b32 s{sMask}, s{sD}")
            A(f"s_cbranch_scc1 {L}_ev")
            A(f"{L}_evret:")
        if k == 0:
            items = [("x", rt) for rt in range(4)] + dma_x(1) + dma_w(ffn)
            slots = spread(items, 2 * (nf - 2))
            tog = {2: [f"v_xor_b32 v{vXr}, 0x18000, v{vXr}"]}
        else:
            items = dma_x(0) + dma_w(ffn) + [f"s_add_u32 s{sD}, s{sD}, 1"]
            slots = spread(items, 2 * (nf - 5))
            slots += [[f"s_cmp_eq_u32 s{sD}, 10\ns_cbranch_scc1 {L}_nw\ns_waitcnt vmcnt({2*nw+4})\n{L}_nw:"],
                      [("x", 0)], [("x", 1)], [("x", 2)], [("x", 3)], []]
            tog = {0: [f"v_xor_b32 v{vXr+1}, 0x18000, v{vXr+1}"]}
            for f, (c, p) in enumerate(fr):
                if c == "G": continue
                reg = vWqr + p if c == "Q" else vW13r + p
                tog.setdefault(max(f - 3, -1) + 1, []).append(f"v_xor_b32 v{reg}, 0x38000, v{reg}")
        sal = {}
        if ffn and "gsched" not in OPT:
            xs, ws_ = dma_x(1 - k), dma_w(True)
            mem = xs[1:5] + ws_[1:5]
            slots = [[] for _ in range(2 * (nf - 2))]
            if k == 0:
                for i, it in enumerate([("x", 0), ("x", 1)] + mem[:4] + [("x", 2), ("x", 3)] + mem[4:]): slots[2 * i] = [it]
                sal = {1: [xs[0]], 6: [xs[5]], 7: [ws_[0]], 12: ws_[5:7], 13: ws_[7:]}
            else:
                for i, it in enumerate(mem + [("x", rt) for rt in range(4)]): slots[2 * i] = [it]
                slots[2 * 7 + 1] = [f"s_cbranch_scc1 {L}_nw\ns_waitcnt vmcnt({2*nw+4})\n{L}_nw:"]
                sal = {0: [xs[0]], 4: [ws_[0]], 7: [f"s_cmp_eq_u32 s{sD}, 9"], 8: ws_[5:7], 9: ws_[7:8], 10: ws_[8:], 11: [f"s_add_u32 s{sD}, s{sD}, 1"]}
                tg = lambda r, m: [f"v_xor_b32 v{r}, {m}, v{r}"]
                tog = {i: tg(vWqr + i, "0x38000") for i in range(7)}
                tog.update({8: tg(vWqr + 7, "0x38000"), 9: tg(vW13r, "0x38000"), 10: tg(vW13r + 1, "0x38000"), 11: tg(vW13r + 2, "0x38000"),
                            12: tg(vW13r + 3, "0x38000"), 14: tg(vXr + 1, "0x18000")})
        for f in range(nf):
            c, p = fr[f]
            lq.wait(A, [("w", f)] + ([("x", k)] if f == 0 else []))
            buf = f % 4
            for rt in range(4):
                r_ = rt if f % 2 == 0 else 3 - rt
                if c == "Q": d = vr(vAcc + (p * 4 + r_) * 4, 4)
                else: d = ar((aG if c == "G" else aUp) + (p * 4 + r_) * 4, 4)
                mf16(A, d, ar(aWf + buf * 4, 4), ar(aXf + k * 16 + r_ * 4, 4))
                if f + 3 < nf and rt < 2:
                    A(wread(fr[f + 3], k, rt, (f + 3) % 4)); lq.issue(("w", f + 3))
                if f == nf - 2:
                    A(wread(fr[rt // 2], 1 - k, rt % 2, (rt // 2) % 4)); lq.issue(("w", rt // 2))
                if f == nf - 1 and rt < 2:
                    A(wread(fr[2], 1 - k, rt, 2)); lq.issue(("w", 2))
                if rt == 1:
                    for it in sal.get(f, []): A(it)
                if rt >= 2 and f < nf - 2:
                    for it in slots[2 * f + rt - 2]:
                        if isinstance(it, tuple):
                            A(xread(1 - k, 1 - k, it[1]) + (" ; @chkx" if k == 1 else "")); lq.issue(("x", 1 - k))
                        else:
                            if "lds" in it and " m0," in A.lines[-1]: A("s_nop 0")
                            A(it)
                if rt == 3:
                    for t in tog.get(f, []): A(t)
            if fr[f] in ones:
                mf16(A, ar(aCs + ones[fr[f]] * 4, 4), ar(aWf + buf * 4, 4), ar(aOne, 4))
            if f == nf - 3:
                n = 2 * nw + 8
                if FINE:
                    A("s_memtime s[96:97]"); A("s_waitcnt lgkmcnt(0)")
                A(f"s_waitcnt vmcnt({n}) lgkmcnt(0)")
                lq.clear()
                if FINE:
                    A("s_memtime s[100:101]"); A("s_waitcnt lgkmcnt(0)")
                A(f"s_barrier")
                if FINE: fine(A)
    A(f"s_cmp_lt_u32 s{sD}, 10")
    A(f"s_cbranch_scc1 {L}")
    assert lq.q == [("w", 0), ("w", 0), ("w", 1), ("w", 1), ("w", 2), ("w", 2)], lq.q

def kv_dma_voff(A, kd_, vd_, nv=4):
    t = vTm
    A(f"v_lshrrev_b32 v{t+12}, 4, v{vLane}")
    A(f"v_and_b32 v{t+14}, 15, v{vLane}")
    A(f"v_xor_b32 v{t+13}, v{t+14}, v{t+12}")
    A(f"v_lshlrev_b32 v{t+13}, 4, v{t+13}")
    A(f"v_lshl_add_u32 v{kd_}, v{t+12}, 8, v{t+13}")
    for j in range(1, 4): A(f"v_xor_b32 v{kd_+j}, {64*j}, v{kd_}")
    A(f"v_lshlrev_b32 v{t+13}, 2, v{t+12}")
    A(f"v_xor_b32 v{t+13}, v{t+13}, v{t+14}")
    A(f"v_lshlrev_b32 v{t+13}, 4, v{t+13}")
    A(f"v_lshl_add_u32 v{vd_}, v{t+12}, 8, v{t+13}")
    for j in range(1, nv): A(f"v_mov_b32 v{vd_+j}, v{vd_}")

def gemm_events(A, L):
    A(f"{L}_ev:")
    A(f"s_cmp_eq_u32 s{sD}, 8")
    A(f"s_cbranch_scc1 {L}_ev8")
    A(f"global_load_dword v{vTm}, v{vTm+2}, s[{pDbg}:{pDbg+1}] sc1")
    A(f"global_load_dwordx2 {vr(vTm+4,2)}, v{vTm+6}, s[{pDbg}:{pDbg+1}] offset:128 sc1")
    A(f"s_branch {L}_evret")
    A(f"{L}_ev8:")
    A(f"s_mov_b32 s{sTail}, {TAILBIT}")
    for d in (sWq, sW1, sW3): A(f"s_mov_b32 s{d+2}, 0")
    for d, s_ in ((sX, sK), (sX2, sV)):
        A(f"s_mov_b64 s[{d}:{d+1}], s[{s_}:{s_+1}]")
        A(f"s_mov_b64 s[{d+2}:{d+3}], s[{s_+2}:{s_+3}]")
    for j in range(8): A(f"v_mov_b32 v{vXd+j}, v{vQ+min(j,4)}")
    A(f"s_lshl_b32 s{sM0X}, s{sWave}, 12")
    A(f"s_mov_b32 s{sXo}, s{sKVo}")
    A(f"s_movk_i32 s{sM0d}, 16384")
    A(f"s_movk_i32 s{sXst}, 16384")
    A(f"s_mov_b32 s{sM0t}, 0x8000")
    A(f"s_mov_b32 s{sT1}, 0")
    A(f"s_waitcnt vmcnt(12)")
    A(f"{L}_chk:")
    A(f"v_cmp_ne_u32 vcc, 0x01010101, v{vTm}")
    A(f"v_cmp_eq_u32 s[6:7], 0, v{vTm+5}")
    A("s_nop 3")
    A(f"s_or_b64 s[6:7], s[6:7], vcc")
    A(f"s_cbranch_scc0 {L}_rdy ; pollbr")
    A(f"s_add_u32 s{sT1}, s{sT1}, 1")
    A(f"s_cmp_ge_u32 s{sT1}, 0x40000")
    A(f"s_cbranch_scc1 {L}_rdy")
    A("s_sleep 2")
    A(f"global_load_dword v{vTm}, v{vTm+2}, s[{pDbg}:{pDbg+1}] sc1")
    A(f"global_load_dwordx2 {vr(vTm+4,2)}, v{vTm+6}, s[{pDbg}:{pDbg+1}] offset:128 sc1")
    A("s_waitcnt vmcnt(0)")
    A(f"s_branch {L}_chk")
    A(f"{L}_rdy:")
    A(f"v_readfirstlane_b32 s{sNo}, v{vTm+4} ; tag")
    A(f"v_readfirstlane_b32 s{sNo+1}, v{vTm+5} ; tag")
    A(f"s_add_u32 s{pFl}, s{pWs}, {FL_OFF}")
    A(f"s_addc_u32 s{pFl+1}, s{pWs+1}, 0")
    A(f"s_lshl2_add_u32 s{sT0}, s{sRb}, s{sWave}")
    A(f"s_lshl_b32 s{sT0}, s{sT0}, 10")
    for rt in range(4):
        A(f"buffer_load_dwordx4 {vr(vSt+4*rt,4)}, v{vTm+3}, s[{sSt}:{sSt+3}], s{sT0} offen offset:{rt*256} sc1")
    A(f"s_branch {L}_evret")

def kv_addr(A, base_expr_sgpr):
    t0, t1, t2, t3 = vTm + 12, vTm + 13, vTm + 14, vTm + 15
    A(f"v_and_b32 v{t0}, 31, v{vLane}")
    A(f"v_lshrrev_b32 v{t1}, 5, v{vLane}")
    A(f"v_and_b32 v{t2}, 15, v{vLane}")
    A(f"v_xor_b32 v{t2}, v{t2}, v{t1}")
    A(f"s_lshl_b32 s{sT0}, s{sWave}, 2")
    A(f"v_xor_b32 v{t2}, s{sT0}, v{t2}")
    A(f"v_lshlrev_b32 v{t2}, 4, v{t2}")
    A(f"v_lshl_add_u32 v{t2}, v{t0}, 8, v{t2}")
    A(f"v_add_u32 v{vKr}, s{base_expr_sgpr}, v{t2}")
    for p in range(1, 8): A(f"v_xor_b32 v{vKr+p}, {32*p}, v{vKr}")
    A(f"v_bfe_u32 v{t0}, v{vLane}, 2, 2")
    A(f"v_lshl_add_u32 v{t2}, v{t1}, 2, v{t0}")
    A(f"v_lshlrev_b32 v{t2}, 8, v{t2}")
    A(f"v_lshl_add_u32 v{t2}, v{t0}, 6, v{t2}")
    A(f"v_bfe_u32 v{t3}, v{vLane}, 1, 1")
    A(f"v_lshl_add_u32 v{t2}, v{t3}, 5, v{t2}")
    A(f"v_bfe_u32 v{t3}, v{vLane}, 4, 1")
    A(f"v_lshl_add_u32 v{t2}, v{t3}, 4, v{t2}")
    A(f"v_and_b32 v{t3}, 1, v{vLane}")
    A(f"v_lshl_add_u32 v{t2}, v{t3}, 3, v{t2}")
    A(f"s_add_u32 s{sT0}, s{base_expr_sgpr}, 16384")
    A(f"v_add_u32 v{vVr}, s{sT0}, v{t2}")
    for dt in range(1, 4): A(f"v_xor_b32 v{vVr+dt}, {64*dt}, v{vVr}")

def kv_dma():
    it = [f"s_mov_b32 m0, s{sKVm}"]
    for j in range(4):
        it.append(f"buffer_load_dwordx4 v{vKd+j}, s[{sK}:{sK+3}], s{sKVo} offen offset:{j*1024} lds")
    it.append("s_add_u32 m0, m0, 16384")
    for j in range(4):
        it.append(f"buffer_load_dwordx4 v{vVd+j}, s[{sV}:{sV+3}], s{sKVo} offen offset:{j*1024} lds")
    return it

def kread(p, tile, buf):
    return f"ds_read_b128 {vr(vF+buf*4,4)}, v{vKr+p} offset:{tile*8192}"
def vread(ks, dt, tile, sec, buf):
    return f"ds_read_b64_tr_b16 {vr(vF+buf*4+2*sec,2)}, v{vVr+dt} offset:{(32*tile+16*ks+8*sec)*256}"

def sm_reg(buf, e):
    qt = (e >> 3) & 1; ks = e >> 4
    return vS + (buf * 2 + qt) * 16 + ks * 8 + (e & 7), qt, ks
def sm_exp(buf, e):
    r, _, _ = sm_reg(buf, e)
    if "noexp" in XP: return []
    if "movexp" in XP: return [f"v_mov_b32 v{r}, v{r}"]
    return [f"v_exp_f32 v{r}, v{r}"]
def sm_post(buf, e):
    r, qt, ks = sm_reg(buf, e)
    o = [f"v_add_f32 v{vL+qt}, v{vL+qt}, v{r}"]
    if "noadd" in XP: o = []
    if e & 1 and "nocvt" not in XP: o.append(f"v_cvt_pk_bf16_f32 v{vP+(qt*2+ks)*4+((e&7)>>1)}, v{r-1}, v{r}")
    return o

def attn_seg(A, lq, seg, extra, mfma=True, sm_lo=0, sm_hi=64, look=True):
    def rd(phi, part):
        s = (phi // 8) % 4; i = phi % 8; buf = phi % 4
        if s in (0, 2):
            return kread(i, 1 if s == 0 else 0, buf) if part == 0 else None
        return vread(i // 4, i % 4, 0 if s == 1 else 1, part, buf)
    for i in range(8):
        phi = seg * 8 + i
        if mfma and "nowait" not in XP: lq.wait(A, [("f", phi)])
        for qt in range(2):
            slot = seg * 16 + 2 * i + qt
            if mfma:
                if seg in (0, 2):
                    sb = 1 if seg == 0 else 0
                    d = vr(vS + (sb * 2 + qt) * 16, 16)
                    mf32(A, d, vr(vF + (phi % 4) * 4, 4), vr(vQ + (qt * 8 + i) * 4, 4), "0" if i == 0 else None)
                else:
                    ks, dt = i // 4, i % 4
                    mf32(A, ar(aO + (qt * 4 + dt) * 16, 16), vr(vF + (phi % 4) * 4, 4), vr(vP + (qt * 2 + ks) * 4, 4))
            for it in extra.get((slot, "pre"), []): A(it)
            nphi = (phi + 3) % 32
            nseg = nphi // 8
            if look is True or nseg in look:
                r = rd(nphi, qt)
                if r and "noread" not in XP: A(r); lq.issue(("f", nphi))
            for it in extra.get((slot, "ds"), []):
                A(it); lq.issue(("side", 0))
            for it in extra.get(slot, []):
                if it.startswith("v_"): continue
                if "lds" in it and " m0," in A.lines[-1]: A("s_nop 0")
                A(it)
            for (buf, start) in ((1, 22), (0, 54)):
                e = (slot - start) % 64
                if e < 32 and (buf, "exp") in sm_ok(slot, sm_lo, sm_hi, buf, e):
                    for x in sm_exp(buf, e): A(x)
            for (buf, start) in ((1, 22), (0, 54)):
                e = (slot - start - 1) % 64
                if e < 32 and (buf, "exp") in sm_ok((slot - 1) % 64, sm_lo, sm_hi, buf, e):
                    for x in sm_post(buf, e): A(x)
            for it in extra.get(slot, []):
                if it.startswith("v_"): A(it)
            for it in extra.get((slot, "post"), []): A(it)
def sm_ok(slot, lo, hi, buf, e):
    return {(buf, "exp")} if (lo <= slot < hi) else set()

def wp_src_voff(A, d):
    t = vTm
    A(f"v_lshrrev_b32 v{t+12}, 4, v{vLane}")
    A(f"v_lshlrev_b32 v{t+12}, 1, v{t+12}")
    A(f"v_and_b32 v{t+13}, 7, v{vLane}")
    A(f"v_xor_b32 v{t+12}, v{t+12}, v{t+13}")
    A(f"v_lshlrev_b32 v{t+12}, 4, v{t+12}")
    A(f"v_lshrrev_b32 v{t+13}, 3, v{vLane}")
    A(f"v_mul_u32_u24 v{t+13}, 1280, v{t+13}")
    A(f"v_add_u32 v{d}, v{t+12}, v{t+13}")
    for j in range(1, 8): A(f"v_add_u32 v{d+j}, {(j%4)*9216 + (j//4)*128}, v{d}")

def wp_addr(A, sh, note="", reg=R3, n=4, dst=None):
    t = vTm
    A(f"v_bfe_u32 v{t+14}, v{vLane}, 2, 2")
    A(f"v_bfe_u32 v{t+16}, v{vLane}, 4, 1")
    A(f"v_lshl_add_u32 v{t+14}, v{t+16}, 2, v{t+14}")
    A(f"v_lshrrev_b32 v{t+13}, 1, v{t+14}")
    A(f"v_lshlrev_b32 v{t+13}, 5, v{t+13}")
    A(f"v_lshl_add_u32 v{t+13}, v{t+14}, 7, v{t+13}")
    A(f"v_lshrrev_b32 v{t+15}, 5, v{vLane}")
    A(f"v_lshl_add_u32 v{t+13}, v{t+15}, 10, v{t+13}")
    A(f"v_and_b32 v{t+15}, 3, v{vLane}")
    A(f"v_lshl_add_u32 v{t+13}, v{t+15}, 3, v{t+13}")
    A(f"s_lshl_b32 s6, s{sWave}, {sh}")
    A(f"s_add_u32 s6, s6, {reg}")
    A(f"v_add_u32 v{dst or t+4}, s6, v{t+13}{note}")
    for i4 in range(1, n): A(f"v_xor_b32 v{t+4+i4}, {32*i4}, v{t+4}")
def wp_reads(A, stride):
    for su in range(2):
        for i4 in range(4):
            for sec in range(2):
                A(f"ds_read_b64_tr_b16 {ar(aWq+(su*4+i4)*4+2*sec,2)}, v{vTm+4+i4} offset:{su*stride+sec*2048}")
def wp_stores(A, so):
    for su in range(2):
        for i4 in range(4):
            A(f"buffer_store_dwordx4 {ar(aWq+(su*4+i4)*4,4)}, v{vL16}, s[{sWp}:{sWp+3}], s{so} offen offset:{i4*1024} sc1")
        if su == 0: A(f"s_add_u32 s{so}, s{so}, 4096")

def set_flag(A, phase, lab, cls="H"):
    A(f"s_cmp_lg_u32 s{sWave}, 0")
    A(f"s_cbranch_scc1 {lab}")
    A(f"s_add_u32 s6, s{sNo}, {phase}")
    A(f"v_mov_b32 v{vFv}, s6")
    A(f"v_mov_b32 v{vFv+1}, s{sNo+1}")
    A("s_mov_b64 exec, 1")
    A(f"global_store_dwordx2 v{vFo}, {vr(vFv,2)}, s[{pFl}:{pFl+1}] sc1")
    A("s_mov_b64 exec, -1")
def flag_load(A, dst, ad):
    A(f"global_load_dwordx2 {vr(dst,2)}, v{ad}, s[{pFl}:{pFl+1}] sc1")
def flag_wait(A, lab, phase, polls):
    A(f"s_add_u32 s{sT0}, s{sNo}, {phase}")
    A(f"s_mov_b32 s{sT1}, 0")
    A(f"{lab}c:")
    for n, (d, ad) in enumerate(polls):
        A(f"v_subrev_u32 v{d}, s{sT0}, v{d}")
        A(f"v_cmp_ne_u32 s[{sE0+2*n}:{sE0+2*n+1}], s{sNo+1}, v{d+1}")
    for n, (d, ad) in enumerate(polls):
        A(f"v_cmp_lt_u32 " + ("vcc" if n == 0 else "s[6:7]") + f", {3-phase}, v{d}")
    A("s_nop 3")
    A(f"s_or_b64 s[{sE0}:{sE0+1}], s[{sE0}:{sE0+1}], vcc")
    if len(polls) > 1:
        A(f"s_or_b64 s[6:7], s[6:7], s[{sE0+2}:{sE0+3}]")
        A(f"s_or_b64 s[{sE0}:{sE0+1}], s[{sE0}:{sE0+1}], s[6:7]")
    A(f"s_cbranch_scc0 {lab}r ; pollbr")
    A(f"s_add_u32 s{sT1}, s{sT1}, 1")
    A(f"s_cmp_ge_u32 s{sT1}, 0x40000")
    A(f"s_cbranch_scc1 {lab}r")
    for d, ad in polls: flag_load(A, d, ad)
    A("s_waitcnt vmcnt(0)")
    A(f"s_branch {lab}c")
    A(f"{lab}r:")

def q_setup():
    w = sWave
    return [
     f"s_lshl_b32 s6, s{qP}, 3\ns_lshr_b32 s{qT0}, {hex(0x402b1600)}, s6\ns_and_b32 s{qT0}, s{qT0}, 0xff",
     f"s_lshr_b32 s{qT1}, {hex(0x5b402b16)}, s6\ns_and_b32 s{qT1}, s{qT1}, 0xff",
     f"s_and_b32 s{sT2}, s{w}, 1\ns_lshl_b32 s6, s{sT2}, 11\ns_lshl_b32 s{qAs}, s{qT0}, 13",
     f"s_add_u32 s{qAs}, s{qAs}, s6\ns_lshr_b32 s7, s{w}, 1\ns_lshl_b32 s6, s{qCb}, 1",
     f"s_add_u32 s6, s6, s7\ns_mul_i32 s6, s6, 5120\ns_mul_i32 s{qWs}, s{qT0}, 81920",
     f"s_add_u32 s{qWs}, s{qWs}, s6\ns_mul_i32 s6, s{sT2}, 40960\ns_add_u32 s{qWs}, s{qWs}, s6",
     f"s_lshl_b32 s{qAe}, s{qT1}, 13\ns_mul_i32 s{qWe}, s{qT1}, 81920\ns_mov_b32 s{qAo}, s{qAs}",
     f"s_mov_b32 s{qWo}, s{qWs}\ns_mul_i32 s{qWm}, s{sT2}, 10240\ns_mul_i32 s6, s7, 5120",
     f"s_add_u32 s{qWm}, s{qWm}, s6\ns_lshl_b32 s6, s{qRb}, 1\ns_add_u32 s6, s6, s7",
     f"s_mul_i32 s6, s6, {A_BLK}\ns_add_u32 s{qA}, s{pWs}, s6\ns_addc_u32 s{qA+1}, s{pWs+1}, 0",
     f"s_and_b32 s{qA+1}, s{qA+1}, 0xffff\ns_cmp_eq_u32 s{qP}, 3\ns_cselect_b32 s{qA+2}, s{qAe}, 0\ns_cselect_b32 s{qW+2}, s{qWe}, 0\ns_mov_b32 s{qA+3}, 0x20000",
     f"s_mov_b32 s{qW}, s{sWp}\ns_mov_b32 s{qW+1}, s{sWp+1}\ns_mov_b32 s{qW+3}, 0x20000",
     f"s_lshl2_add_u32 s6, s{qRb}, s{qP}\ns_lshl_b32 s6, s6, 1\ns_add_u32 s6, s6, s7\ns_mul_i32 s{qXo}, s6, 20480",
     f"s_lshl_b32 s6, s{qCb}, 1\ns_add_u32 s6, s6, s{sT2}\ns_mul_i32 s6, s6, 160\ns_add_u32 s{qXo}, s{qXo}, s6",
     f"s_xor_b32 s{qT0}, s{w}, s{qP}\ns_mul_i32 s{qT1}, s{w}, 3\ns_add_u32 s{qT1}, s{qT1}, s{qT0}\ns_sub_u32 s{qT1}, s{qT1}, 1",
     f"s_mul_i32 s{qT1}, s{qT1}, 10240\ns_cmp_eq_u32 s{qT0}, 0\ns_cselect_b32 s{qSo}, 0x100000, s{qT1}",
    ]

def q_loads(slot):
    it = [f"s_add_u32 m0, s{qWm}, {slot*20480}"]
    for j in range(4):
        it.append(f"buffer_load_dwordx4 v{vL16}, s[{qW}:{qW+3}], s{qWo} offen offset:{j*1024} sc1 lds ; @put W2")
    it.append(f"s_add_u32 m0, s{qWm}, {slot*20480+4096}")
    it.append(f"buffer_load_dwordx4 v{vL16+1}, s[{qW}:{qW+3}], s{qWo} offen sc1 lds ; @put W2")
    for k in range(2):
        for rt in range(2):
            it.append(f"buffer_load_dwordx4 {ar(aA2+(slot*4+k*2+rt)*4,4)}, v{vL16+k}, s[{qA}:{qA+3}], s{qAo} offen offset:{rt*1024} sc1")
    it.append(f"s_add_u32 s{qWo}, s{qWo}, 81920\ns_add_u32 s{qAo}, s{qAo}, 8192")
    return it

def gemm2(A, L, emit, stamp):
    ac, vT, vX, vZ = 64, 144, 168, 180
    srd(A, qX, pX, pX + 1, X_SIZE)
    srd(A, qO, pOut, pOut + 1, X_SIZE)
    for i in range(4): A(f"v_mov_b32 v{vZ+i}, 0")
    A(f"v_and_b32 v{vT}, 15, v{vLane}")
    A(f"v_mul_u32_u24 v{vT}, 1280, v{vT}")
    A(f"v_lshrrev_b32 v{vT+1}, 4, v{vLane}")
    A(f"v_lshl_add_u32 v{vXo2}, v{vT+1}, 3, v{vT}")
    def zero():
        for i in range(5): mf32(A, vr(ac + 16 * i, 16), vr(vZ, 4), vr(vZ, 4), "0")
    zero()
    A(f"v_mov_b32 v{vWr2}, v{vL16}")
    A(f"v_add_u32 v{vWr2+1}, 40960, v{vL16}")
    A(f"v_lshlrev_b32 v{vL8}, 3, v{vLane}")
    A(f"v_add_u32 v{vOwn}, {RING2}, v{vL16}")
    A(f"s_mov_b32 s{qN}, 0")
    def wread2(slot, f, buf):
        k, ct = f // 10, f % 10
        return f"ds_read_b128 {ar(aW2+buf*4,4)}, v{vWr2+slot//2} offset:{(slot%2)*20480+k*10240+ct*1024}"
    def xload():
        for ct in range(5):
            A(f"buffer_load_dwordx2 {vr(vX+2*ct,2)}, v{vXo2}, s[{qX}:{qX+3}], s{qXo} offen offset:{ct*32}")
    A(f"s_cmp_eq_u32 s{qP}, 3")
    A(f"s_cselect_b32 s{qT0}, {hex((1<<2)|(1<<22))}, 0")
    A(f"s_cselect_b32 s{qNl}, 26, 21")
    A(f"s_cselect_b32 s{qT1}, 0, 99")
    A(f"s_cbranch_scc1 {L}qh")
    flag_load(A, vPa, vAo)
    A("s_waitcnt vmcnt(0)")
    A("s_barrier")
    set_flag(A, 3, f"{L}f2")
    A(f"{L}f2:")
    A(f"s_mov_b32 s{qA+2}, s{qAe}")
    A(f"s_mov_b32 s{qW+2}, s{qWe}")
    A(f"s_mov_b32 s{qAo}, s{qAs}")
    A(f"s_mov_b32 s{qWo}, s{qWs}")
    flag_wait(A, f"{L}w2", 2, [(vPa, vAo)])
    flag_load(A, vPb, vAb)
    A(f"s_cmp_lg_u32 s{qP}, 0")
    A(f"s_cbranch_scc1 {L}qb")
    for s0 in (1, 2):
        if s0 == 2:
            A(f"{L}qb:")
            A(f"s_mov_b32 s{qNl}, 20")
        for s_ in range(s0, s0 + 3):
            emit(q_loads(s_ % 4)[:7])
            A(f"s_add_u32 s{qWo}, s{qWo}, 81920")
        xload()
        A("s_waitcnt vmcnt(20)")
        flag_wait(A, f"{L}w4{s0}", 3, [(vPb, vAb)])
        stamp(8)
        for s_ in range(s0, s0 + 3):
            emit(q_loads(s_ % 4)[7:11])
            A(f"s_add_u32 s{qAo}, s{qAo}, 8192")
        A("s_waitcnt vmcnt(4)")
        A("s_barrier ; @need W2 0")
        stamp(9)
        for f in range(3): A(wread2(s0, f, f))
        A(f"s_branch {L}q{s0}")
    A(f"{L}qh:")
    stamp(8)
    xload()
    A("s_waitcnt vmcnt(39)")
    A("s_barrier ; @need W2 10")
    stamp(9)
    for f in range(3): A(wread2(0, f, f))
    lq = LQ()
    for f in range(3): lq.issue(f)
    if "q_oob" in XP:
        A(f"s_mov_b32 s{qA+2}, 0"); A(f"s_mov_b32 s{qW+2}, 0")
    A(".p2align 6")
    A(f"{L}q:")
    for slot in range(4):
        ns = (slot + 1) % 4
        if slot in (1, 2): A(f"{L}q{slot}:")
        slots = spread(q_loads((slot + 3) % 4), 16)
        if "q_noload" in XP: slots = [[] for _ in range(16)]
        if "q_noA" in XP: slots = [[x for x in sl if "a[" not in x] for sl in slots]
        if "q_noW" in XP: slots = [[x for x in sl if "lds" not in x] for sl in slots]
        for f in range(20):
            k, ct = f // 10, f % 10
            lq.wait(A, [f])
            for r in range(2):
                rt = r if f % 2 == 0 else 1 - r
                mf16(A, vr(ac + (rt * 10 + ct) * 4, 4), ar(aW2 + (f % 4) * 4, 4), ar(aA2 + (slot * 4 + k * 2 + rt) * 4, 4))
                if r == 0 and f + 3 < 20:
                    A(wread2(slot, f + 3, (f + 3) % 4)); lq.issue(f + 3)
                if f == 18:
                    A(wread2(ns, r, r)); lq.issue(r)
                if f == 19 and r == 0:
                    A(wread2(ns, 2, 2)); lq.issue(2)
                if r == 1 and f < 16: emit(slots[f])
                if r == 0 and f == 17 and slot == 0: A(f"s_cmp_eq_u32 s{qT1}, s{qN}")
            if f == 17:
                if slot == 0:
                    A("s_waitcnt vmcnt(30) lgkmcnt(0)")
                    A(f"s_cbranch_scc1 {L}qw{slot}")
                    A("s_waitcnt vmcnt(18)")
                    A(f"{L}qw{slot}:")
                else: A("s_waitcnt vmcnt(18) lgkmcnt(0)")
                lq.clear()
                if "q_nobar" not in XP: A("s_barrier ; @need W2 10")
            if f == 19:
                A(f"s_add_u32 s{qN}, s{qN}, 1")
        if slot == 1:
            A(f"s_bitcmp1_b32 s{qT0}, s{qN}")
            A(f"s_cbranch_scc1 {L}qe1")
            A(f"{L}qr1:")
            A(f"s_cmp_eq_u32 s{qNl}, s{qN}")
            A(f"s_cbranch_scc1 {L}qx")
    A(f"s_branch {L}q")
    A(f"{L}qe1:")
    A(f"s_cmp_eq_u32 s{qN}, 22")
    A(f"s_cbranch_scc1 {L}qe2")
    set_flag(A, 3, f"{L}qr1")
    A(f"s_branch {L}qr1")
    A(f"{L}qe2:")
    flag_load(A, vPb, vAp)
    A(f"s_branch {L}qr1")
    A(f"{L}qx:")
    A(f"s_cmp_lg_u32 s{qP}, 3")
    A(f"s_cbranch_scc1 {L}qy")
    flag_wait(A, f"{L}w3", 3, [(vPb, vAp)])
    A(f"{L}qy:")
    def send(c, so):
        b = vT + (c // 2) * 12
        it = [f"v_cvt_pk_bf16_f32 v{b+i}, v{ac+c*20+2*i}, v{ac+c*20+2*i+1}" for i in range(10)]
        it += [f"v_min_u32 v{b+i}, -2, v{b+i}" for i in range(10)]
        return it + [f"buffer_store_dwordx4 {vr(b,4)}, v{vL16}, s[{qI}:{qI+3}], s{so} offen sc1",
                     f"buffer_store_dwordx4 {vr(b+4,4)}, v{vL16}, s[{qI}:{qI+3}], s{so} offen offset:1024 sc1",
                     f"buffer_store_dwordx2 {vr(b+8,2)}, v{vL8}, s[{qI}:{qI+3}], s{so} offen offset:2048 sc1"]
    order_ = [k * 10 + h * 5 + i for h in range(2) for k in range(2) for i in range(5)]
    fill = spread(send(0, qSo) + send(2, sT0), 17)
    for n, f in enumerate(order_):
        k, ct = f // 10, f % 10
        lq.wait(A, [n])
        for r in range(2):
            rt = r if n % 2 == 0 else 1 - r
            mf16(A, vr(ac + (rt * 10 + ct) * 4, 4), ar(aW2 + (n % 4) * 4, 4), ar(aA2 + (2 * 4 + k * 2 + rt) * 4, 4))
            if r == 0 and n + 3 < 20:
                A(wread2(2, order_[n + 3], (n + 3) % 4)); lq.issue(n + 3)
            if n == 0 and r == 1: A(f"s_add_u32 s{sT0}, s{qSo}, 5120\ns_add_u32 s{sT1}, s{qSo}, 2560\ns_add_u32 s{sT2}, s{qSo}, 7680")
            g_ = 2 * n + r - 23
            if g_ >= 0:
                its = fill[g_]
                for it in its: A(it)
    stamp(10)
    A("s_nop 1")
    for it in send(1, sT1) + send(3, sT2): A(it)
    A(f"s_cmp_lg_u32 s{sWave}, s{qP}")
    A(f"s_cbranch_scc1 {L}no1")
    for i in range(20): A(f"ds_write_b128 v{vOwn}, {vr(ac+4*i,4)} offset:{i*1024}")
    A("s_waitcnt lgkmcnt(0)")
    A(f"{L}no1:")
    S, U, IN, XR, E, T = 64, 84, 104, 184, 204, 224
    A(f"s_mul_i32 s{sT0}, s{sWave}, 5120")
    A(f"v_add_u32 v{vOwn}, s{sT0}, v{vOwn}")
    A(f"s_mul_i32 s{sT0}, s{qP}, 30720")
    A(f"s_mul_i32 s{sT1}, s{sWave}, 2560")
    A(f"s_add_u32 s{sT0}, s{sT0}, s{sT1}")
    A(f"s_lshl_b32 s6, s{qP}, 3")
    A(f"s_lshr_b32 s6, {hex(0x24094218 >> 0 if False else (0x24 | 0x18 << 8 | 0x09 << 16 | 0x24 << 24))}, s6")
    for i in range(3):
        A(f"s_bfe_u32 s7, s6, {hex(0x20000 | 2*i)}")
        A(f"s_mul_i32 s7, s7, 10240")
        A(f"s_add_u32 s{qIn+i}, s{sT0}, s7")
    def inload(sl):
        b = IN + sl * 10
        A(f"buffer_load_dwordx4 {vr(b,4)}, v{vL16}, s[{qI}:{qI+3}], s{qIn+sl} offen sc1")
        A(f"buffer_load_dwordx4 {vr(b+4,4)}, v{vL16}, s[{qI}:{qI+3}], s{qIn+sl} offen offset:1024 sc1")
        A(f"buffer_load_dwordx2 {vr(b+8,2)}, v{vL8}, s[{qI}:{qI+3}], s{qIn+sl} offen offset:2048 sc1")
    A("s_barrier")
    stamp(11)
    for sl in range(3): inload(sl)
    for i in range(5): A(f"ds_read_b128 {vr(S+4*i,4)}, v{vOwn} offset:{i*1024}")
    for i in range(10):
        A(f"v_lshlrev_b32 v{XR+2*i}, 16, v{vX+i}")
        A(f"v_and_b32 v{XR+2*i+1}, 0xffff0000, v{vX+i}")
    def unpack(sl, dst):
        for i in range(10):
            A(f"v_lshlrev_b32 v{dst+2*i}, 16, v{IN+sl*10+i}")
            A(f"v_and_b32 v{dst+2*i+1}, 0xffff0000, v{IN+sl*10+i}")
    def addin(sl, dst):
        unpack(sl, T)
        for i in range(10): A(f"v_pk_add_f32 {vr(dst+2*i,2)}, {vr(dst+2*i,2)}, {vr(T+2*i,2)}")
    A(f"s_mov_b32 s{sT1}, 0")
    A(f"{L}sc:")
    A("s_waitcnt vmcnt(0)")
    for i in range(3): A(f"v_max3_u32 v{T+i}, v{IN+10*i}, v{IN+10*i+1}, v{IN+10*i+2}")
    for j in range(3):
        for i in range(3): A(f"v_max3_u32 v{T+i}, v{T+i}, v{IN+10*i+3+2*j}, v{IN+10*i+4+2*j}")
    A(f"v_max3_u32 v{T+3}, v{IN+9}, v{IN+19}, v{IN+29}")
    A(f"v_max3_u32 v{T}, v{T}, v{T+1}, v{T+2}")
    A(f"v_max_u32 v{T}, v{T}, v{T+3}")
    A(f"v_cmp_eq_u32 vcc, -1, v{T}")
    A("s_nop 3")
    A(f"s_cbranch_vccz {L}sr ; pollbr")
    A(f"s_add_u32 s{sT1}, s{sT1}, 1")
    A(f"s_cmp_ge_u32 s{sT1}, 0x40000")
    A(f"s_cbranch_scc1 {L}sr")
    for sl in range(3): inload(sl)
    A(f"s_branch {L}sc")
    A(f"{L}sr:")
    stamp(12)
    unpack(2, U)
    A(f"s_mov_b32 s{sT0}, {hex(f2u(-LOG2E))}")
    A(f"s_cmp_lg_u32 s{qP}, 3")
    A("s_waitcnt lgkmcnt(0)")
    A(f"s_cbranch_scc1 {L}ns")
    for i in range(20): A(f"v_swap_b32 v{S+i}, v{U+i}")
    A(f"{L}ns:")
    for i in range(20): A(f"v_mul_f32 v{E+i}, s{sT0}, v{U+i}")
    for i in range(20): A(f"v_exp_f32 v{E+i}, v{E+i}")
    addin(0, S)
    for i in range(20): A(f"v_add_f32 v{E+i}, 1.0, v{E+i}")
    for i in range(20): A(f"v_rcp_f32 v{E+i}, v{E+i}")
    addin(1, S)
    for i in range(10): A(f"v_pk_mul_f32 {vr(U+2*i,2)}, {vr(U+2*i,2)}, {vr(E+2*i,2)}")
    for i in range(10): A(f"v_pk_fma_f32 {vr(XR+2*i,2)}, {vr(S+2*i,2)}, {vr(U+2*i,2)}, {vr(XR+2*i,2)}")
    for i in range(10): A(f"v_cvt_pk_bf16_f32 v{vX+i}, v{XR+2*i}, v{XR+2*i+1}")
    for ct in range(5):
        A(f"buffer_store_dwordx2 {vr(vX+2*ct,2)}, v{vXo2}, s[{qO}:{qO+3}], s{qXo} offen offset:{ct*32}" + (" sc1" if "outsc1" in OPT else ""))
    stamp(13)

def gen_p1(A, name, stamps=False, code_bytes=32768, pf_rounds=2):
    head(A, name)
    L = "p1_"
    A("s_cmp_ge_u32 s2, 256")
    A(f"s_cbranch_scc1 {L}end")
    A("s_load_dwordx16 s[64:79], s[0:1], 0")
    A("s_load_dwordx8 s[80:87], s[0:1], 64")
    A(f"s_memrealtime s[{sNo}:{sNo+1}]")
    if stamps: A("s_memtime s[94:95]")
    def stamp(i, att=False):
        if not stamps: return
        if "attst" in OPT:
            if i >= 5 and not att: return
        elif att: return
        A(f"s_memtime s[96:97]")
        A(f"s_memrealtime s[98:99]")
        A("s_waitcnt lgkmcnt(0)")
        A(f"v_mov_b32 v{vTm+18}, s96"); A(f"v_mov_b32 v{vTm+19}, s98")
        A(f"s_lshl_b32 s96, s2, 2"); A(f"s_add_u32 s96, s96, s{sWave}"); A("s_lshl_b32 s96, s96, 7")
        A(f"v_mov_b32 v{vZero}, s96")
        if i == 0: A(f"v_mov_b32 v{vTm+16}, s94")
        A(f"s_add_u32 s96, s{pWs}, 0x3100000"); A(f"s_addc_u32 s97, s{pWs+1}, 0")
        A(f"global_store_dwordx2 v{vZero}, {vr(vTm+18,2)}, s[96:97] offset:{i*8}")
        if i == 0: A(f"global_store_dword v{vZero}, v{vTm+16}, s[96:97] offset:120")
    t = vTm
    COLD = []
    def cold(mark, lab, back):
        blk = A.lines[mark:]; del A.lines[mark:]
        COLD.extend([f"{lab}:"] + blk + ([f"s_branch {back}"] if back else []))
    def emit(items):
        for it in items:
            if "lds" in it and " m0," in A.lines[-1]: A("s_nop 0")
            A(it)
    A(f"v_and_b32 v{vLane}, 63, v0")
    A("v_lshrrev_b32 v0, 6, v0")
    A("s_and_b32 s6, s2, 7")
    A(f"v_readfirstlane_b32 s{sWave}, v0")
    A(f"s_lshr_b32 s{sT0}, s2, 3")
    A(f"s_lshr_b32 s{sRb}, s{sT0}, 2")
    A(f"s_and_b32 s{sT1}, s{sT0}, 3")
    A(f"s_lshl2_add_u32 s{sHead}, s6, s{sT1}")
    A(f"s_sub_u32 s{sT2}, s6, s{sRb}")
    A(f"s_add_u32 s{sT2}, s{sT2}, 3")
    A(f"s_and_b32 s{sT2}, s{sT2}, 7")
    A(f"s_mul_i32 s{sFb}, s6, 3")
    A(f"s_add_u32 s{sFb}, s{sFb}, s{sT1}")
    A(f"s_add_u32 s7, s{sT2}, 24")
    A(f"s_cmp_eq_u32 s{sT1}, 3")
    A(f"s_cselect_b32 s{sFb}, s7, s{sFb}")
    A(f"s_cmp_lt_u32 s{sFb}, 27")
    A(f"s_cselect_b32 s{sHasF}, 1, 0")
    A(f"s_sub_u32 s{sProd}, s{sFb}, 27")
    A(f"v_lshrrev_b32 v{t+7}, 3, v{vLane}")
    A(f"v_and_b32 v{t+6}, 7, v{vLane}")
    A(f"v_lshrrev_b32 v{t+12}, 4, v{vLane}")
    A(f"v_xor_b32 v{t+13}, v{t+6}, v{t+12}")
    A(f"v_lshlrev_b32 v{t+13}, 4, v{t+13}")
    A(f"s_movk_i32 s6, 1280")
    A(f"v_mad_u32_u24 v{vXd}, v{t+7}, s6, v{t+13}")
    A(f"v_xor_b32 v{t+13}, 64, v{vXd}")
    for j in range(1, 8):
        A(f"v_add_u32 v{vXd+j}, {j*10240-(j%4)*1024}, v{(t+13) if j&1 else vXd}")
    A(f"s_lshl2_add_u32 s6, s{sRb}, s{sWave}")
    A(f"s_mul_i32 s{sXo}, s6, {64*1280}")
    A(f"s_mul_i32 s{sKVo}, s6, {A_BLK}")
    A(f"s_lshl_b32 s{sM0X}, s{sWave}, 13")
    A(f"s_add_u32 s{sM0X}, s{sM0X}, {R1}")
    A(f"s_mov_b32 s{sTail}, 0")
    A(f"s_and_b32 s6, s{sWave}, 1")
    A(f"s_lshl_b32 s7, s6, 2")
    A(f"v_add_u32 v{t+13}, s7, v{t+12}")
    A(f"v_lshlrev_b32 v{t+13}, 1, v{t+13}")
    A(f"v_and_b32 v{t+14}, 15, v{vLane}")
    A(f"v_xor_b32 v{t+13}, v{t+13}, v{t+14}")
    A(f"v_lshlrev_b32 v{t+13}, 4, v{t+13}")
    A(f"s_lshl_b32 s7, s{sWave}, 3")
    A(f"v_add_u32 v{t+15}, s7, v{t+12}")
    A(f"v_lshl_add_u32 v{vWqd}, v{t+15}, 13, v{t+13}")
    A(f"v_add_u32 v{vWqd+1}, {4*8192-1024}, v{vWqd}")
    A(f"v_bfe_u32 v{t+13}, v{vLane}, 4, 1")
    A(f"s_lshl_b32 s6, s6, 1")
    A(f"v_add_u32 v{t+13}, s6, v{t+13}")
    A(f"v_lshlrev_b32 v{t+13}, 1, v{t+13}")
    A(f"v_xor_b32 v{t+13}, v{t+13}, v{t+6}")
    A(f"v_lshlrev_b32 v{t+13}, 4, v{t+13}")
    A(f"v_add_u32 v{t+15}, s7, v{t+7}")
    A(f"s_movk_i32 s6, 3456")
    A(f"v_mad_u32_u24 v{vW13d}, v{t+15}, s6, v{t+13}")
    A(f"s_lshl_b32 s{sWqo}, s{sHead}, 8")
    A(f"s_lshl_b32 s{sW13o}, s{sFb}, 7")
    A(f"s_mov_b32 s{sSlot}, 0")
    A(f"s_lshl_b32 s{sM0W}, s{sWave}, 12")
    A(f"s_add_u32 s{sM0W}, s{sM0W}, {R3}")
    for d, sz in ((sX, X_SIZE), (sWq, 640 * 8192)):
        A(f"s_mov_b32 s{d+2}, {sz}")
        A(f"s_mov_b32 s{d+3}, 0x20000")
    for (d, p, sh) in ((sW1, pW1, 2048), (sW3, pW3, 3072)):
        A(f"s_mul_i32 s{d+2}, s{sHasF}, {640*3456+sh}")
        A(f"s_mov_b32 s{d+3}, 0x20000")
    A("s_waitcnt lgkmcnt(0)")
    A(f"s_mov_b32 s{sC0}, s{sM0W}")
    for d, p in ((sX, pX), (sWq, pWq)):
        A(f"s_mov_b32 s{d}, s{p}")
        A(f"s_and_b32 s{d+1}, s{p+1}, 0xffff")
    for (d, p, sh) in ((sW1, pW1, 2048), (sW3, pW3, 3072)):
        A(f"s_sub_u32 s{d}, s{p}, {sh}")
        A(f"s_subb_u32 s{d+1}, s{p+1}, 0")
        A(f"s_and_b32 s{d+1}, s{d+1}, 0xffff")
    A(f"s_mov_b64 s[{sX2}:{sX2+1}], s[{sX}:{sX+1}]")
    A(f"s_mov_b64 s[{sX2+2}:{sX2+3}], s[{sX+2}:{sX+3}]")
    A(f"s_movk_i32 s{sM0d}, 4096")
    A(f"s_movk_i32 s{sXst}, 128")
    A(f"s_mov_b32 s{sM0t}, 0x18000")
    RAW, UNP = 64, 96
    A(f"v_mov_b32 v{t+5}, 0")
    A(f"s_cmp_ge_u32 s{sProd}, 4")
    A(f"s_cbranch_scc0 {L}c1")
    mk_ = len(A.lines)
    A(f"v_lshrrev_b32 v{t+5}, 2, v{vLane}")
    A(f"v_and_b32 v{t+13}, 3, v{vLane}")
    A(f"v_lshlrev_b32 v{t+13}, 4, v{t+13}")
    A(f"s_movk_i32 s6, 1280")
    A(f"v_mad_u32_u24 v{t+13}, v{t+5}, s6, v{t+13}")
    A(f"s_lshl2_add_u32 s6, s{sRb}, s{sProd}")
    A(f"s_lshl2_add_u32 s6, s6, s{sWave}")
    A(f"s_lshl_b32 s7, s6, 8")
    A(f"v_lshl_add_u32 v{t+5}, v{t+5}, 4, s7")
    A(f"s_mul_i32 s6, s6, {16*1280}")
    for i in range(20):
        A(f"buffer_load_dwordx4 {vr(RAW+4*i,4)}, v{t+13}, s[{sX}:{sX+3}], s6 offen offset:{i*64}")
    cold(mk_, f"{L}c1", f"{L}np1")
    A(f"{L}np1:")
    if "coop" in OPT:
        A(f"s_and_b32 s6, s{sHead}, 3")
        A(f"s_lshl2_add_u32 s6, s{sRb}, s6")
        A(f"s_lshl2_add_u32 s6, s6, s{sWave}")
        A(f"s_mul_i32 s6, s6, {16*1280}")
        A(f"v_and_b32 v{t+13}, 15, v{vLane}")
        A(f"v_mul_u32_u24 v{t+13}, 1280, v{t+13}")
        A(f"v_bfe_u32 v{t+14}, v{vLane}, 4, {COOPX}")
        A(f"v_lshl_add_u32 v{t+13}, v{t+14}, 7, v{t+13}")
        A(f"buffer_load_dword v0, v{t+13}, s[{sX}:{sX+3}], s6 offen")
        A(f"s_lshl2_add_u32 s7, s{sRb}, s{sWave}")
        A(f"v_and_b32 v{t+14}, 3, v{vLane}")
        A(f"v_lshl_add_u32 v{t+14}, v{t+14}, 5, s7")
        A(f"v_bfe_u32 v{t+15}, v{vLane}, 2, 1")
        A(f"v_lshlrev_b32 v{t+15}, 7, v{t+15}")
        A(f"v_lshl_add_u32 v{t+15}, v{t+14}, 13, v{t+15}")
        A(f"v_mul_u32_u24 v{t+14}, 3456, v{t+14}")
        A(f"buffer_load_dword v0, v{t+15}, s[{sWq}:{sWq+3}], s{sWqo} offen")
        A(f"buffer_load_dword v0, v{t+14}, s[{sW1}:{sW1+3}], s{sW13o} offen offset:2048")
        A(f"buffer_load_dword v0, v{t+14}, s[{sW3}:{sW3+3}], s{sW13o} offen offset:3072")
    emit(dma_w(True)); emit(dma_x(0)); emit(dma_x(1))
    stamp(0)
    A("s_getpc_b64 s[6:7]")
    A(f"{L}pc:")
    A(f"s_and_b32 s{sT0}, s{sT0}, 7")
    A(f"s_lshl2_add_u32 s{sT0}, s{sT0}, s{sWave}")
    A(f"s_lshl_b32 s{sT0}, s{sT0}, 10")
    A(f"v_lshl_add_u32 v{vTm+4}, v{vLane}, 4, s{sT0}")
    if "nocpf" not in OPT: A(f"global_load_dwordx4 {vr(vTm+8,4)}, v{vTm+4}, s[6:7]")
    else: A(f"global_load_dword v{vTm+8}, v{vLane}, s[0:1]")
    if "nocpf" not in OPT:
        A(f"s_add_u32 s{sT0}, s{sT0}, 32768")
        A(f"s_min_u32 s{sT0}, s{sT0}, {L}last-{L}pc-1024")
        A(f"v_lshl_add_u32 v{vTm+4}, v{vLane}, 4, s{sT0}")
        A(f"global_load_dwordx4 {vr(vTm+8,4)}, v{vTm+4}, s[6:7]")
    emit(dma_w(True)); emit(dma_x(0)); emit(dma_w(True))
    A(f"s_add_u32 s{sA}, s{pWs}, s{sKVo}")
    A(f"s_addc_u32 s{sA+1}, s{pWs+1}, 0")
    srd(A, sA, sA, sA + 1, A_BLK)
    A(f"s_add_u32 s{sWp}, s{pWs}, {W_OFF}")
    A(f"s_addc_u32 s{sWp+1}, s{pWs+1}, 0")
    srd(A, sWp, sWp, sWp + 1, W_SIZE)
    A(f"s_lshl2_add_u32 s{sT1}, s{sHead}, s{sWave}")
    A(f"s_mul_i32 s{sU}, s{sT1}, 10")
    A(f"s_lshl_b32 s{sT2}, s{sRb}, 1")
    A(f"s_add_u32 s{sU}, s{sU}, s{sT2}")
    A(f"s_mul_i32 s{sT1}, s{sT1}, 40960")
    A(f"s_lshl_b32 s{sT2}, s{sRb}, 8")
    A(f"s_add_u32 s{sPo}, s{sT1}, s{sT2}")
    srd(A, sSrc, pWo, pWo + 1, 4096 * 1280)
    A(f"s_cmp_lt_u32 s{sRb}, 5")
    A(f"s_cselect_b32 s{sSrc+2}, s{sSrc+2}, 0")
    A(f"s_cselect_b32 s{sU}, s{sU}, 2000")
    A(f"v_mov_b32 v{t+6}, 0")
    A(f"s_or_b32 s6, s2, s{sWave}")
    A(f"s_cbranch_scc1 {L}ntag")
    A(f"s_lshl_b64 s[6:7], s[{sNo}:{sNo+1}], 2")
    A(f"s_or_b32 s7, s7, 0x80000000")
    A(f"v_mov_b32 v{t+14}, s6")
    A(f"v_mov_b32 v{t+15}, s7")
    A("s_mov_b64 exec, 1")
    A(f"global_store_dwordx2 v{t+6}, {vr(t+14,2)}, s[{pDbg}:{pDbg+1}] offset:128 sc1")
    A("s_mov_b64 exec, -1")
    A(f"{L}ntag:")
    A(f"v_and_b32 v{t+14}, 15, v{vLane}")
    A(f"v_lshrrev_b32 v{t+13}, 1, v{t+14}")
    A(f"v_xor_b32 v{t+13}, v{t+13}, v{t+12}")
    A(f"v_lshlrev_b32 v{t+13}, 4, v{t+13}")
    A(f"v_lshl_add_u32 v{t+13}, v{t+14}, 7, v{t+13}")
    A(f"s_lshl_b32 s6, s{sWave}, 13")
    A(f"s_add_u32 s6, s6, {R1}")
    A(f"v_add_u32 v{vXr}, s6, v{t+13}")
    A(f"v_xor_b32 v{vXr+1}, 64, v{vXr}")
    A(f"v_lshlrev_b32 v{t+3}, 4, v{t+14}")
    A(f"v_bfe_u32 v{t+14}, v{vLane}, 2, 2")
    A(f"v_and_b32 v{t+15}, 3, v{vLane}")
    A(f"v_lshlrev_b32 v{t+15}, 3, v{t+15}")
    A(f"v_lshl_add_u32 v{t+15}, v{t+12}, 12, v{t+15}")
    A(f"v_add_u32 v{t+15}, {R3}, v{t+15}")
    A(f"v_bfe_u32 v{t+16}, v{vLane}, 4, 1")
    A(f"v_lshl_add_u32 v{t+13}, v{t+16}, 2, v{t+14}")
    A(f"s_lshl_b32 s6, s{sWave}, 1")
    A(f"v_xor_b32 v{t+13}, s6, v{t+13}")
    A(f"v_lshl_add_u32 v{t+13}, v{t+13}, 5, v{t+15}")
    A(f"v_lshl_add_u32 v{vWqr}, v{t+14}, 8, v{t+13}")
    for p in range(1, 8): A(f"v_xor_b32 v{vWqr+p}, {32*p}, v{vWqr}")
    A(f"v_lshrrev_b32 v{t+13}, 1, v{t+14}")
    A(f"v_lshl_add_u32 v{t+13}, v{t+16}, 1, v{t+13}")
    A(f"v_xor_b32 v{t+13}, s{sWave}, v{t+13}")
    A(f"v_lshl_add_u32 v{t+13}, v{t+13}, 5, v{t+15}")
    A(f"v_lshl_add_u32 v{vW13r}, v{t+14}, 7, v{t+13}")
    for p in range(1, 4): A(f"v_xor_b32 v{vW13r+p}, {32*p}, v{vW13r}")
    srd(A, sK, pK, pK + 1, 16777216)
    srd(A, sV, pV, pV + 1, 16777216)
    A(f"s_add_u32 s{sSt}, s{pWs}, {ST_OFF}")
    A(f"s_addc_u32 s{sSt+1}, s{pWs+1}, 0")
    srd(A, sSt, sSt, sSt + 1, 2048 * 16)
    A(f"s_lshl_b32 s6, s{sRb}, 2")
    A(f"v_mov_b32 v{t+2}, s6")
    A(f"s_movk_i32 s{sMask}, {EVMASK}")
    A(f"s_mov_b32 s{sD}, 0")
    A(f"s_cmp_ge_u32 s{sProd}, 4")
    A(f"s_cbranch_scc0 {L}c2")
    mk_ = len(A.lines)
    A("s_waitcnt vmcnt(25)")
    for i in range(79, -1, -1):
        A(f"v_and_b32 v{UNP+2*i+1}, 0xffff0000, v{RAW+i}")
        A(f"v_lshlrev_b32 v{UNP+2*i}, 16, v{RAW+i}")
    a = 64
    def red(first):
        for i in range(80):
            first(i)
        A(f"v_pk_add_f32 {vr(a,2)}, {vr(a,2)}, {vr(a+2,2)}")
        A(f"v_pk_add_f32 {vr(a+4,2)}, {vr(a+4,2)}, {vr(a+6,2)}")
        A(f"v_pk_add_f32 {vr(a,2)}, {vr(a,2)}, {vr(a+4,2)}")
        A(f"v_add_f32 v{a}, v{a}, v{a+1}")
        for qp in ("[1,0,3,2]", "[2,3,0,1]"):
            A("s_nop 1")
            A(f"v_add_f32_dpp v{a}, v{a}, v{a} quad_perm:{qp} row_mask:0xf bank_mask:0xf")
    def f1(i):
        d = vr(a + 2 * (i % 4), 2)
        if i < 4: A(f"v_pk_add_f32 {d}, {vr(UNP+2*i,2)}, {vr(UNP+2*i+8,2)}")
        elif i >= 8: A(f"v_pk_add_f32 {d}, {d}, {vr(UNP+2*i,2)}")
    red(f1)
    o = 72
    A(f"v_mul_f32 v{o}, {hex(f2u(-1.0/640))}, v{a}")
    for i in range(80): A(f"v_pk_add_f32 {vr(UNP+2*i,2)}, {vr(UNP+2*i,2)}, {vr(o,2)} op_sel_hi:[1,0]")
    def f2(i):
        d = vr(a + 2 * (i % 4), 2); x_ = vr(UNP + 2 * i, 2)
        if i < 4: A(f"v_pk_mul_f32 {d}, {x_}, {x_}")
        else: A(f"v_pk_fma_f32 {d}, {x_}, {x_}, {d}")
    red(f2)
    A(f"v_mov_b32 v{o+3}, {hex(f2u(1e-5))}")
    A(f"v_fmac_f32 v{o+3}, {hex(f2u(1.0/640))}, v{a}")
    A(f"v_mov_b32 v{o+2}, v{o+3}")
    A(f"v_rsq_f32 v{o+1}, v{o+3}")
    A("s_mov_b32 exec_lo, 0x11111111")
    A("s_mov_b32 exec_hi, 0x11111111")
    A(f"buffer_store_dwordx4 {vr(o,4)}, v{t+5}, s[{sSt}:{sSt+3}], 0 offen sc1 ; @put S")
    A("s_mov_b64 exec, -1")
    A("s_waitcnt vmcnt(0)")
    cold(mk_, f"{L}c2", f"{L}np2")
    A(f"{L}np2:")
    if "dummy" in OPT:
        A(f"v_lshlrev_b32 v{t+13}, 4, v{vLane}")
        for i in range(16): A(f"buffer_load_dwordx4 {vr(64+4*i,4)}, v{t+13}, s[{sWq}:{sWq+3}], 0 offen offset:{(i%4)*1024}")
        for i in range(128): A(f"v_mov_b32 v{128+i}, 0")
        A("s_waitcnt vmcnt(0)")
        A("s_mov_b32 s6, 0")
        A(f"{L}dmy:")
        for i in range(64): mf16(A, vr(128 + 4 * (i % 32), 4), vr(64 + 4 * (i // 4 % 12), 4), vr(112 + 4 * (i % 4), 4))
        A("s_add_u32 s6, s6, 1")
        A("s_cmp_lt_u32 s6, 40")
        A(f"s_cbranch_scc1 {L}dmy")
        A("s_nop 7")
    if "idle" in OPT:
        A("s_mov_b32 s6, 0")
        A(f"{L}dmy:")
        for i in range(64): A("s_nop 15")
        A("s_add_u32 s6, s6, 1")
        A("s_cmp_lt_u32 s6, 40")
        A(f"s_cbranch_scc1 {L}dmy")
    kv_dma_voff(A, vQ, vQ + 4, 1)
    A(f"s_lshl_b32 s6, s{sWave}, 12")
    A(f"s_lshl_b32 s{sKVo}, s{sHead}, 19")
    A(f"s_add_u32 s{sKVo}, s{sKVo}, s6")
    A(f"s_add_u32 s{sKVo}, s{sKVo}, {1536*256}")
    if "tlbw" in OPT:
        A("s_mov_b64 exec, 1")
        A(f"buffer_load_dword v0, v{t+6}, s[{sK}:{sK+3}], s{sKVo} offen")
        A(f"buffer_load_dword v0, v{t+6}, s[{sV}:{sV+3}], s{sKVo} offen")
        A(f"buffer_load_dword v0, v{t+6}, s[{sSrc}:{sSrc+3}], s{sPo} offen")
        A("s_mov_b64 exec, -1")
    if "tlbs" in OPT:
        A(f"s_lshl_b32 s6, s{sHead}, 14")
        A(f"s_lshl_b32 s7, s{sFb}, 13")
        A(f"s_add_u32 s7, s7, {128*4096}")
        A("s_mov_b64 exec, 1")
        A(f"buffer_store_dword v{t+6}, v{t+6}, s[{sA}:{sA+3}], s6 offen sc1")
        A(f"buffer_store_dword v{t+6}, v{t+6}, s[{sA}:{sA+3}], s7 offen sc1")
        A("s_mov_b64 exec, -1")
    for i in range(4): A(f"v_mov_b32 v{vSt+i}, 0")
    A(f"v_mov_b32 v{t+13}, 0x3f803f80")
    for i in range(4): A(f"v_accvgpr_write_b32 a{aOne+i}, v{t+13}")
    z = vr(vSt, 4)
    for i in range(8): mf32(A, vr(vAcc + 16 * i, 16), z, z, "0")
    for i in range(9): mf32(A, ar(16 * i, 16), z, z, "0")
    A(f"s_waitcnt vmcnt({15 if 'tlbw' in OPT else 14 if 'tlbs' in OPT else 12})")
    A("s_barrier")
    A(f"s_lshl2_add_u32 s6, s{sProd}, s{sWave}")
    A(f"s_and_b32 s6, s6, 0xfffffff3")
    A(f"s_cbranch_scc1 {L}np3")
    A(f"v_mov_b32 v{t+1}, 1")
    A(f"v_add_u32 v{t+7}, s{sProd}, v{t+2}")
    A(f"s_mov_b64 exec, 1")
    A(f"global_store_byte v{t+7}, v{t+1}, s[{pDbg}:{pDbg+1}] sc1")
    A(f"s_mov_b64 exec, -1")
    A(f"{L}np3:")
    stamp(1)
    for rt in range(4): A(xread(0, 0, rt))
    A(f"s_cmp_eq_u32 s{sHasF}, 0")
    fr = frag_list(True)
    for f in range(3):
        for sec in range(2): A(wread(fr[f], 0, sec, f))
    A("s_waitcnt lgkmcnt(6)")
    if FINE: A("s_mov_b32 s7, 0")
    A(f"s_cbranch_scc1 {L}gn")
    gemm_loop(A, True, L + "gf")
    mk_ = len(A.lines)
    gemm_events(A, L + "gf")
    gemm_events(A, L + "gn")
    gemm_loop(A, False, L + "gn")
    cold(mk_, f"{L}c3", f"{L}gdone")
    A(f"{L}gdone:")
    if FINE:
        A(f"s_lshl_b32 s96, s2, 2"); A(f"s_add_u32 s96, s96, s{sWave}"); A("s_lshl_b32 s96, s96, 10")
        A(f"v_lshl_add_u32 v{vTm+12}, v{vLane}, 2, s96")
        A(f"s_add_u32 s100, s{pWs}, 0x3200000"); A(f"s_addc_u32 s101, s{pWs+1}, 0")
        A(f"global_store_dword v{vTm+12}, v{vFin}, s[100:101]")
        A(f"global_store_dword v{vTm+12}, v{vFin+1}, s[100:101] offset:256")
        A(f"global_store_dword v{vTm+12}, v{vFin-1}, s[100:101] offset:512")
    stamp(2)
    A(f"v_lshrrev_b32 v{t+12}, 4, v{vLane}")
    A(f"v_lshlrev_b32 v{t+12}, 4, v{t+12}")
    A(f"s_lshl_b32 s6, s{sWave}, 7")
    A(f"s_add_u32 s6, s6, {CS}")
    A(f"v_add_u32 v{t+8}, s6, v{t+12}")
    A(f"s_lshl_b32 s6, s{sWave}, 6")
    A(f"s_add_u32 s6, s6, {CS+512}")
    A(f"v_add_u32 v{t+9}, s6, v{t+12}")
    A("s_mov_b32 exec_lo, 0x00010001")
    A("s_mov_b32 exec_hi, 0x00010001")
    A(f"ds_write_b128 v{t+8}, {ar(aCs,4)}")
    A(f"ds_write_b128 v{t+8}, {ar(aCs+4,4)} offset:64")
    A(f"ds_write_b128 v{t+9}, {ar(aCs+8,4)}")
    A(f"ds_write_b128 v{t+9}, {ar(aCs+12,4)} offset:256")
    A("s_mov_b64 exec, -1")
    for j in range(8): A(f"v_mov_b32 v{vKd+j}, v{vXd+j}")
    A(f"s_mov_b32 s{sKVo}, s{sXo}")
    A(f"s_mov_b32 s{sKVm}, s{sM0X}")
    A(f"v_lshlrev_b32 v{t+10}, 4, v{vLane}")
    A(f"s_and_b32 s{qP}, s2, 3")
    A(f"s_lshr_b32 s{qCb}, s2, 6")
    A(f"s_bfe_u32 s{qRb}, s2, 0x30003")
    A(f"s_and_b32 s6, s2, 4")
    A(f"s_lshl_b32 s6, s6, 1")
    A(f"s_add_u32 s{qRb}, s{qRb}, s6")
    A(f"s_lshl2_add_u32 s{qG}, s{qRb}, s{qCb}")
    A(f"s_mul_i32 s6, s{qG}, {IB_G}")
    A(f"s_add_u32 s6, s6, {IB_OFF}")
    A(f"s_add_u32 s{qI}, s{pWs}, s6")
    A(f"s_addc_u32 s{qI+1}, s{pWs+1}, 0")
    srd(A, qI, qI, qI + 1, IB_G)
    vWs = t
    wp_src_voff(A, vWs)
    A("s_waitcnt lgkmcnt(0)")
    A("s_barrier")
    kvadv = [f"s_add_u32 s{sKVo}, s{sKVo}, 16384\ns_add_u32 s{sKVm}, s{sKVm}, 32768"]
    def kvq(): return kv_dma() + kvadv
    csb = [vKr, vKr + 4, vVr + 0]
    lq = LQ()
    def csread_q(p):
        A(f"v_xor_b32 v{t+11}, {64*p}, v{t+8}")
        A(f"ds_read_b128 {vr(csb[p%3],4)}, v{t+11}"); lq.issue(("c", p))
    csread_q(0); csread_q(1)
    wo_dma = []
    for su in range(2):
        wo_dma.append(f"s_lshl_b32 s6, s{sWave}, 13\ns_add_u32 m0, s6, {R4+su*4096}")
        if "nowosrc" not in OPT: wo_dma += [f"buffer_load_dwordx4 v{vWs+4*su+j}, s[{sSrc}:{sSrc+3}], s{sPo} offen offset:{j*1024} lds ; @put P" for j in range(4)]
    kq = spread([f"s_add_u32 m0, s{sKVm}, 16384"] + kv_dma()[6:] + kvadv + wo_dma[:5 * SPL[0]], 24)
    for rt in range(4):
        q = vSt + 4 * rt
        A(f"v_mul_f32 v{q+3}, {hex(f2u(LOG2E/128**0.5))}, v{q+1}")
        A(f"v_mul_f32 v{q+1}, {hex(f2u(-LOG2E))}, v{q+1}")
    z = vr(vTm + 12, 4)
    for i in range(4): A(f"v_mov_b32 v{vTm+12+i}, 0")
    for p in range(8):
        if p + 2 < 8: csread_q(p + 2)
        lq.wait(A, [("c", p)])
        c = csb[p % 3]
        for rt in range(4):
            d = vAcc + (p * 4 + rt) * 4; q = vSt + 4 * rt
            for h in range(2):
                A(f"v_pk_fma_f32 {vr(d+2*h,2)}, {vr(c+2*h,2)}, {vr(q,2)}, {vr(d+2*h,2)} op_sel_hi:[1,0,1]")
        mf32(A, ar(aO + 16 * p, 16), z, z, "0")
        emit(kq[3*p])
        for rt in range(4):
            d = vAcc + (p * 4 + rt) * 4; q = vSt + 4 * rt
            for h in range(2):
                A(f"v_pk_mul_f32 {vr(d+2*h,2)}, {vr(d+2*h,2)}, {vr(q+2,2)} op_sel:[0,1]")
        emit(kq[3*p+1])
        for rt in range(4):
            d = vAcc + (p * 4 + rt) * 4
            f = vQ + ((rt // 2) * 8 + p) * 4 + (rt & 1) * 2
            for h in range(2): A(f"v_cvt_pk_bf16_f32 v{f+h}, v{d+2*h}, v{d+2*h+1}")
        emit(kq[3*p+2])
        if p > 0:
            for qt in range(2):
                f = vQ + (qt * 8 + p - 1) * 4
                for h in range(2): A(f"v_permlane16_swap_b32 v{f+h}, v{f+2+h}")
    A("s_nop 0")
    for qt in range(2):
        f = vQ + (qt * 8 + 7) * 4
        for h in range(2): A(f"v_permlane16_swap_b32 v{f+h}, v{f+2+h}")
    stamp(3)
    A(f"s_cmp_eq_u32 s{sHasF}, 0")
    A(f"s_cbranch_scc1 {L}noffn")
    def hst(pi, rt): return f"buffer_store_dwordx4 {vr(vAcc+96+pi*16+rt*4,4)}, v{t+10}, s[{sA}:{sA+3}], s{qT0+pi} offen offset:{rt*1024}" + ("" if "wbl2" in OPT else " sc1") + " ; @put H @put HH"
    T = vAcc; H = vAcc + 96; C = vAcc + 48
    for p in range(4):
        A(f"v_xor_b32 v{t+11}, {64*p}, v{t+9}")
        A(f"ds_read_b128 {vr(C+8*p,4)}, v{t+11}")
        A(f"ds_read_b128 {vr(C+8*p+4,4)}, v{t+11} offset:256")
    A(f"s_lshr_b32 s7, s{sWave}, 1")
    A(f"s_lshl_b32 s6, s{sFb}, 1")
    A(f"s_add_u32 s6, s6, 128")
    A(f"s_add_u32 s{sT0}, s6, s7")
    A(f"s_xor_b32 s7, s7, 1")
    A(f"s_add_u32 s{sT1}, s6, s7")
    A(f"s_lshl_b32 s{qT0}, s{sT0}, 12")
    A(f"s_lshl_b32 s{qT1}, s{sT1}, 12")
    A("s_waitcnt lgkmcnt(0)")
    ffq = wo_dma[5 * SPL[0]:] + kv_dma()[:5 * SPL[1]]
    kq = spread(ffq, 24) if ffq else [[]] * 24
    for p in range(4):
        for r2 in range(2):
            g_ = 3 * (p * 2 + r2)
            G = [(2 * r2 + i, T + 12 * i + 24 * ((p * 2 + r2) & 1)) for i in range(2)]
            for rt, b in G:
                for i in range(4): A(f"v_accvgpr_read_b32 v{b+i}, a{aG+(p*4+rt)*4+i}")
                for i in range(4): A(f"v_accvgpr_read_b32 v{b+4+i}, a{aUp+(p*4+rt)*4+i}")
            emit(kq[g_])
            for rt, b in G:
                for h in range(4):
                    A(f"v_pk_fma_f32 {vr(b+2*h,2)}, {vr(C+8*p+2*h,2)}, {vr(vSt+4*rt,2)}, {vr(b+2*h,2)} op_sel_hi:[1,0,1]")
            for rt, b in G:
                for h in range(2): A(f"v_pk_mul_f32 {vr(b+8+2*h,2)}, {vr(b+2*h,2)}, {vr(vSt+4*rt,2)} op_sel:[0,1]")
            for rt, b in G:
                for i in range(4): A(f"v_exp_f32 v{b+8+i}, v{b+8+i}")
            emit(kq[g_+1])
            for rt, b in G:
                for h in range(2): A(f"v_pk_mul_f32 {vr(b+2*h,2)}, {vr(b+2*h,2)}, {vr(b+4+2*h,2)}")
            for rt, b in G:
                for h in range(2):
                    A(f"v_pk_fma_f32 {vr(b+8+2*h,2)}, {vr(b+8+2*h,2)}, {vr(vSt+4*rt+2,2)}, {vr(vSt+4*rt+2,2)} op_sel_hi:[1,0,0]")
            for rt, b in G:
                for i in range(4): A(f"v_rcp_f32 v{b+8+i}, v{b+8+i}")
            emit(kq[g_+2])
            for n, (rt, b) in enumerate(G):
                for h in range(2): A(f"v_pk_mul_f32 {vr(b+2*h,2)}, {vr(b+2*h,2)}, {vr(b+8+2*h,2)}")
            for rt, b in G:
                for h in range(2): A(f"v_cvt_pk_bf16_f32 v{H+(p//2)*16+rt*4+(p&1)*2+h}, v{b+2*h}, v{b+2*h+1}")
        if p & 1:
            pi = p // 2
            A(f"s_bitcmp1_b32 s{sWave}, 0")
            A(f"s_cbranch_scc0 {L}nsw{pi}")
            for rt in range(4):
                for h in range(2): A(f"v_swap_b32 v{H+pi*16+rt*4+h}, v{H+pi*16+rt*4+2+h}")
            A(f"{L}nsw{pi}:")
    mk_ = len(A.lines)
    emit(ffq)
    A(f"s_mov_b32 s{qT0}, 0x1000000")
    A(f"s_mov_b32 s{qT1}, 0x1000000")
    A("s_barrier")
    srd(A, qA, pW2, pW2 + 1, 1728 * 1280)
    wp_src_voff(A, vAcc)
    wp_addr(A, 13)
    A(f"s_mul_i32 s{sT2}, s{sRb}, 5")
    A(f"s_add_u32 s{sT2}, s{sT2}, s{sProd}")
    A(f"s_lshl2_add_u32 s{sT2}, s{sT2}, s{sWave}")
    A(f"{L}w2j:")
    A(f"s_mul_hi_u32 s{sT0}, s{sT2}, 0x33333334")
    A(f"s_mul_i32 s{sT1}, s{sT0}, 5")
    A(f"s_sub_u32 s{sT1}, s{sT2}, s{sT1}")
    A(f"s_mul_i32 s7, s{sT0}, 40960")
    A(f"s_lshl_b32 s6, s{sT1}, 8")
    A(f"s_add_u32 s{sT0}, s7, s6")
    A(f"s_lshl_b32 s6, s{sT1}, 13")
    A(f"s_add_u32 s7, s7, s6")
    A(f"s_add_u32 s{sT1}, s7, {128*40960}")
    A(f"s_lshl_b32 s6, s{sWave}, 13")
    for su in range(2):
        A(f"s_add_u32 m0, s6, {R3+su*4096}")
        A("s_nop 0")
        for j in range(4): A(f"buffer_load_dwordx4 v{vAcc+4*su+j}, s[{qA}:{qA+3}], s{sT0} offen offset:{j*1024} lds")
    A("s_waitcnt vmcnt(0)")
    wp_reads(A, 4096)
    A("s_waitcnt lgkmcnt(0)")
    wp_stores(A, sT1)
    A(f"s_add_u32 s{sT2}, s{sT2}, 160")
    A(f"s_cmp_lt_u32 s{sT2}, 270")
    A(f"s_cbranch_scc1 {L}w2j")
    cold(mk_, f"{L}noffn", f"{L}ffnd")
    A(f"{L}ffnd:")
    for i in range(4): A(f"v_mov_b32 v{vOnes+i}, -1")
    A(f"s_mul_i32 s6, s{qP}, 30720")
    A(f"s_mul_i32 s7, s{sWave}, 7680")
    A(f"s_min_u32 s7, s7, 22528")
    A(f"s_add_u32 s{sSen}, s6, s7")
    A(f"s_lshl_b32 s{sWpO}, s{sU}, 12")
    wp_addr(A, 13, reg=R4, n=1, dst=vWpB)
    A(f"s_lshl_b32 s{sTch}, s{sHead}, 14")
    A(f"v_and_b32 v{vTch}, 15, v{vLane}")
    A(f"v_lshlrev_b32 v{vTch}, 7, v{vTch}")
    A(f"v_add_u32 v{vL16+1}, 4096, v{vL16}")
    A(f"s_lshl_b32 s6, s{sRb}, 5")
    A(f"s_add_u32 s7, s6, s{sHead}")
    A(f"s_lshl_b32 s7, s7, 7")
    A(f"v_mov_b32 v{vFo}, s7")
    stamp(4)
    A(f"s_mov_b32 s{sT1}, {R0}")
    kv_addr(A, sT1)
    A(f"v_mov_b32 v{vL}, 0")
    A(f"v_mov_b32 v{vL+1}, 0")
    A(f"s_cmp_eq_u32 s{sWave}, 0")
    A(f"s_cselect_b32 s{sTail}, 0, 0x8000")
    srd(A, qX, pFl, pFl + 1, 0x8000)
    A(f"s_add_u32 s6, s{sNo}, 1")
    A(f"v_mov_b32 v{vFv}, s6")
    A(f"v_mov_b32 v{vFv+1}, s{sNo+1}")
    A(f"s_waitcnt vmcnt(20)")
    A("s_barrier")
    stamp(5, True)
    lq = LQ()
    for p in range(3):
        A(kread(p, 0, p)); lq.issue(("f", 16 + p))
    ex0 = {33 + 4 * i: [hst(1, i)] for i in range(4)}
    rest = kvq() if SPL[1] == 0 else [f"s_add_u32 m0, s{sKVm}, 16384"] + kvq()[6:]
    ex0 = {32 + i: x for i, x in enumerate(spread(rest, 16))}
    attn_seg(A, lq, 2, ex0, sm_lo=0, sm_hi=0, look=[2])
    for p in range(3):
        A(kread(p, 1, p)); lq.issue(("f", p))
    A("s_nop 7")
    for e in range(10):
        for x in sm_exp(0, e): A(x)
        if e:
            for x in sm_post(0, e - 1): A(x)
    assert XP or lq.q == [("f", 0), ("f", 1), ("f", 2)]
    def put(ex, slots, items):
        for sl, its in zip(slots, spread(items, len(slots))): ex.setdefault(sl, []).extend(its)
    PA = Asm()
    PA(f"s_lshl_b32 s6, s{sRb}, 5")
    PA(f"v_and_b32 v{vAp}, 3, v{vLane}")
    PA(f"v_lshlrev_b32 v{vAp}, 2, v{vAp}")
    PA(f"s_and_b32 s7, s{sHead}, 0x13")
    PA(f"s_add_u32 s7, s7, s6")
    PA(f"v_add_lshl_u32 v{vAp}, v{vAp}, s7, 7")
    PA(f"s_lshr_b32 s7, s{qRb}, 1")
    PA(f"s_lshl_b32 s6, s7, 5")
    PA(f"s_lshl_b32 s{sT0}, s{sWave}, 3")
    PA(f"s_add_u32 s6, s6, s{sT0}")
    PA(f"v_add_lshl_u32 v{vAa}, v{vLane}, s6, 7")
    PA(f"v_cmp_gt_u32 vcc, 8, v{vLane}")
    PA(f"v_and_b32 v{vAb}, 15, v{vLane}")
    PA(f"v_lshlrev_b32 v{vAb}, 2, v{vAb}")
    PA(f"s_lshl_b32 s6, s{sWave}, 6")
    PA(f"s_add_u32 s6, s6, 3")
    PA(f"v_add_lshl_u32 v{vAb}, v{vAb}, s6, 7")
    PA(f"v_cndmask_b32 v{vAa}, v{vAb}, v{vAa}, vcc")
    PA(f"v_bfe_u32 v{vAo}, v{vLane}, 4, 1")
    PA(f"v_add_u32 v{vAo}, s{qCb}, v{vAo}")
    PA(f"s_mul_i32 s6, s{qP}, 21")
    PA(f"s_add_u32 s6, s6, 1")
    PA(f"s_lshr_b32 s6, s6, 1")
    PA(f"v_and_b32 v{vPb}, 15, v{vLane}")
    PA(f"v_min_u32 v{vPb}, 10, v{vPb}")
    PA(f"v_add_u32 v{vPb}, s6, v{vPb}")
    PA(f"v_cmp_gt_u32 vcc, 16, v{vLane}")
    PA(f"s_lshl_b32 s7, s7, 5")
    PA(f"v_lshl_add_u32 v{vAo}, v{vAo}, 5, v{vPb}")
    PA(f"v_lshlrev_b32 v{vAo}, 7, v{vAo}")
    PA(f"v_add_lshl_u32 v{vAb}, v{vPb}, s7, 7")
    PA(f"v_cndmask_b32 v{vAb}, v{vAp}, v{vAb}, vcc")
    odd = lambda a, b: [x for x in range(a, b) if x & 1]
    def wo_job(ex, f, s0, s1):
        r = aWq + 4 * (f % 3)
        ex.setdefault(s0 - 1, []).append(f"v_xor_b32 v{vWpA}, {((f&3)<<5)|((f&4)<<10)}, v{vWpB}")
        ex[(s0, "ds")] = [f"ds_read_b64_tr_b16 {ar(r,2)}, v{vWpA} ; @need P 0"]
        ex[(s0 + 2, "ds")] = [f"ds_read_b64_tr_b16 {ar(r+2,2)}, v{vWpA} offset:2048"]
        if "nowo" not in XP: ex.setdefault(s1, []).append(f"buffer_store_dwordx4 {ar(r,4)}, v{vL16+f//4}, s[{sWp}:{sWp+3}], s{sWpO} offen offset:{(f&3)*1024} sc1")
    def mark(f): return "s_nop 0" if "nosent" in XP else f"buffer_store_dwordx4 {vr(vOnes,4)}, v{vL16+f//4}, s[{qI}:{qI+3}], s{sSen} offen offset:{(f&3)*1024} sc1 ; @put H"
    stamp(6, True)
    BW = {0: 10, 1: 13, 2: 13, 3: 13, 4: 13, 5: 13}
    bg = [("h", i) for i in range(8)] + [("w", i) for i in range(8)] + [("m", i) for i in range(8)]
    BG = [bg[0:3], bg[3:6], bg[6:9], bg[9:12], bg[12:15], bg[15:19], bg[19:22], bg[22:24]]
    for t_ in range(8):
        ex = {}
        delta = hex((-98304) & 0xffffffff) if t_ == 3 else "0x8000"
        if t_ < 7:
            for p in range(8):
                ex.setdefault(max(2 * (p - 3) + 1, 1) if p >= 3 else 2 * p, []).append(f"v_add_u32 v{vKr+p}, {delta}, v{vKr+p}")
            for dt in range(4):
                ex.setdefault(2 * (28 + dt - 3) + 2, []).append(f"v_add_u32 v{vVr+dt}, {delta}, v{vVr+dt}")
        if t_ < 5:
            for sl, it in zip([32, 33, 37, 41, 45, 47, 49, 53, 57, 61], kv_dma()): ex.setdefault(sl, []).append(it)
            ex.setdefault(62, []).append(f"s_add_u32 s{sKVo}, s{sKVo}, 16384")
            ex.setdefault(59, []).append(f"s_add_u32 s{sKVm}, s{sKVm}, {hex((-98304) & 0xffffffff) if t_ == 0 else 32768}")
        if t_ < 6: ex[(26, "pre")] = [f"s_waitcnt vmcnt({BW[t_]})", "s_barrier ; @need KV 8 @need Xa 0" + (" @need HH 0" if t_ == 4 else "")]
        for j, (kind, f) in enumerate(BG[t_]):
            sl = (3, 19, 51, 39)[j]
            if kind == "h": put(ex, [sl], [hst(f // 4, f % 4)])
            elif kind == "m": put(ex, [sl], [mark(f)])
            else: wo_job(ex, f, (1, 7, 35)[j], (13, 21, 51)[j])
        if t_ == 4:
            put(ex, [39], [f"buffer_store_dwordx2 {vr(vFv,2)}, v{vFo}, s[{qX}:{qX+3}], s{sTail} offen sc1"])
        if t_ == 5:
            for sl, its in zip([x for x in range(10, 47) if x != 26], spread(PA.lines, 36)): ex.setdefault((sl, "post"), []).extend(its)
            put(ex, [x for x in range(47, 64) if x != 51], q_setup())
        elif t_ == 6:
            put(ex, [1], [f"global_load_dwordx2 {vr(vPa,2)}, v{vAa}, s[{pFl}:{pFl+1}] sc1"])
            B_ = Asm(); B_("s_waitcnt vmcnt(2)"); B_(f"s_cmp_lg_u32 s{qP}, 3"); B_(f"s_cbranch_scc1 {L}w1r")
            flag_wait(B_, f"{L}w1", 1, [(vPa, vAa)]); B_("s_barrier")
            ex[(26, "pre")] = B_.lines
            put(ex, [x for x in odd(31, 64) if x != 51], q_loads(0) + q_loads(1)[:6])
        elif t_ == 7:
            ex[(26, "pre")] = ["s_waitcnt vmcnt(30)", "s_barrier"]
            ex.setdefault(24, []).append(f"v_add_u32 v{vFv}, 1, v{vFv}")
            put(ex, [28], [f"buffer_store_dwordx2 {vr(vFv,2)}, v{vFo}, s[{qX}:{qX+3}], s{sTail} offen sc1"])
            put(ex, [1, 5, 7, 9, 11, 13, 15, 17, 21, 23, 25, 27, 29, 31], q_loads(1)[6:] + q_loads(2)[:7])
        if t_ >= 1: stamp(t_ + 6, True)
        attn_seg(A, lq, 0, ex)
        attn_seg(A, lq, 1, ex, look=(True if t_ < 7 else [1]))
        if t_ < 7:
            attn_seg(A, lq, 2, ex)
            attn_seg(A, lq, 3, ex)
    ex = {}
    put(ex, [33, 37, 41, 45, 49, 53, 57], q_loads(2)[7:])
    attn_seg(A, lq, 2, ex, mfma=False, look=[3])
    attn_seg(A, lq, 3, ex, sm_hi=54, look=[3])
    stamp(5)
    if "fine2" in XP:
        A(f"s_lshl_b32 s96, s2, 2"); A(f"s_add_u32 s96, s96, s{sWave}"); A("s_lshl_b32 s96, s96, 10")
        A(f"v_lshl_add_u32 v227, v{vLane}, 2, s96")
        A(f"s_add_u32 s96, s{pWs}, 0x3200000"); A(f"s_addc_u32 s97, s{pWs+1}, 0")
        for i in range(3): A(f"global_store_dword v227, v{224+i}, s[96:97] offset:{256*i}")
    A(f"v_mov_b32 v{t}, v{vL}")
    A(f"v_mov_b32 v{t+1}, v{vL+1}")
    A(f"v_bfe_u32 v{t+2}, v{vLane}, 4, 1")
    A(f"v_lshrrev_b32 v{t+3}, 5, v{vLane}")
    A(f"v_permlane32_swap_b32 v{t}, v{vL}")
    A(f"v_permlane32_swap_b32 v{t+1}, v{vL+1}")
    A(f"v_lshlrev_b32 v{t+3}, 8, v{t+3}")
    A(f"v_add_f32 v{vL}, v{vL}, v{t}")
    A(f"v_add_f32 v{vL+1}, v{vL+1}, v{t+1}")
    A(f"v_lshl_add_u32 v{t+3}, v{t+2}, 10, v{t+3}")
    A(f"v_and_b32 v{t+2}, 15, v{vLane}")
    A(f"v_lshl_add_u32 v{vOo}, v{t+2}, 4, v{t+3}")
    A(f"v_mov_b32 v{t+8}, {hex(f2u(2.0**-40))}")
    A(f"v_mov_b32 v{t+9}, {hex(f2u(2.0**40))}")
    A(f"v_cmp_gt_f32 s[{sE0}:{sE0+1}], v{vL}, v{t+8}")
    A(f"v_cmp_lt_f32 s[{sE0+2}:{sE0+3}], v{vL}, v{t+9}")
    A(f"v_cmp_gt_f32 s[4:5], v{vL+1}, v{t+8}")
    A(f"v_cmp_lt_f32 s[6:7], v{vL+1}, v{t+9}")
    A(f"v_rcp_f32 v{t}, v{vL}")
    A(f"v_rcp_f32 v{t+1}, v{vL+1}")
    A("s_nop 1")
    A(f"s_and_b64 s[{sE0}:{sE0+1}], s[{sE0}:{sE0+1}], s[{sE0+2}:{sE0+3}]")
    A(f"s_and_b64 s[4:5], s[4:5], s[6:7]")
    A(f"s_and_b64 s[4:5], s[4:5], s[{sE0}:{sE0+1}]")
    A(f"s_cmp_eq_u64 s[4:5], exec")
    if not XP: A(f"s_cbranch_scc0 {L}slow ; slowbr")
    A(f"{L}oep:")
    A(f"s_lshl_b32 s6, s{sHead}, 14")
    n = 0
    for dt in range(4):
        for qt in range(2):
            b = vS + (n % 4) * 16; pk = vP + (n % 4) * 8; n += 1
            for i in range(16): A(f"v_accvgpr_read_b32 v{b+i}, a{aO+(qt*4+dt)*16+i}")
            for i in range(8):
                A(f"v_pk_mul_f32 {vr(b+2*i,2)}, {vr(b+2*i,2)}, {vr(t,2)} " + ("op_sel_hi:[1,0]" if qt == 0 else "op_sel:[0,1]"))
            for i in range(8): A(f"v_cvt_pk_bf16_f32 v{pk+i}, v{b+2*i}, v{b+2*i+1}")
            for j in range(2):
                A(f"buffer_store_dwordx4 {vr(pk+4*j,4)}, v{vOo}, s[{sA}:{sA+3}], s6 offen offset:{qt*2048+j*512} sc1 ; @put H")
        if dt < 3: A("s_add_u32 s6, s6, 4096")
    stamp(6); stamp(7)
    gemm2(A, L, emit, stamp)
    A(f"{L}end:")
    A("s_endpgm")
    A.lines += COLD
    A(f"{L}slow:")
    A("s_waitcnt vmcnt(0) lgkmcnt(0)")
    srd(A, sK, pK, pK + 1, 16777216)
    srd(A, sV, pV, pV + 1, 16777216)
    kv_dma_voff(A, vKd, vVd)
    A(f"s_lshl_b32 s{sT1}, s{sWave}, 13")
    A(f"s_add_u32 s{sT1}, s{sT1}, {R2}")
    kv_addr(A, sT1)
    for dt in range(4): A(f"v_add_u32 v{vVr+dt}, {R4-R2-16384}, v{vVr+dt}")
    vM = vTm + 6
    A(f"v_mov_b32 v{vM}, 0xff800000")
    A(f"v_mov_b32 v{vM+1}, 0xff800000")
    A(f"v_mov_b32 v{vL}, 0")
    A(f"v_mov_b32 v{vL+1}, 0")
    for i in range(4): A(f"v_mov_b32 v{vTm+12+i}, 0")
    A("s_nop 1")
    for i in range(8): mf32(A, ar(aO + 16 * i, 16), vr(vTm + 12, 4), vr(vTm + 12, 4), "0")
    A(f"s_mov_b32 s{sT}, 0")
    A(f"{L}sl:")
    A(f"s_and_b32 s{sT0}, s{sT}, 15")
    A(f"s_lshl_b32 s{sT0}, s{sT0}, 13")
    A(f"s_lshl_b32 s{sKVo}, s{sHead}, 19")
    A(f"s_add_u32 s{sKVo}, s{sKVo}, s{sT0}")
    A(f"s_add_u32 s{sKVo}, s{sKVo}, {1536*256}")
    for hf in range(2):
        A(f"s_add_u32 m0, s{sT1}, {hf*4096}")
        A("s_nop 0")
        for j in range(4): A(f"buffer_load_dwordx4 v{vKd+j}, s[{sK}:{sK+3}], s{sKVo} offen offset:{j*1024} lds")
        A(f"s_add_u32 m0, s{sT1}, {R4-R2+hf*4096}")
        A("s_nop 0")
        for j in range(4): A(f"buffer_load_dwordx4 v{vVd}, s[{sV}:{sV+3}], s{sKVo} offen offset:{j*1024} lds")
        if hf == 0: A(f"s_add_u32 s{sKVo}, s{sKVo}, 4096")
    A("s_waitcnt vmcnt(0)")
    for p in range(8):
        A(kread(p, 0, p % 4))
        A("s_waitcnt lgkmcnt(0)")
        for qt in range(2): mf32(A, vr(vS + qt * 16, 16), vr(vF + (p % 4) * 4, 4), vr(vQ + (qt * 8 + p) * 4, 4), "0" if p == 0 else None)
    A("s_nop 11")
    A(f"s_cmp_ge_u32 s{sT}, 16")
    A(f"s_cbranch_scc1 {L}sl2")
    for qt in range(2):
        for i in range(8): A(f"v_max3_f32 v{vM+qt}, v{vS+qt*16+2*i}, v{vS+qt*16+2*i+1}, v{vM+qt}")
    A(f"s_cmp_lg_u32 s{sT}, 15")
    A(f"s_cbranch_scc1 {L}sl3")
    A(f"v_mov_b32 v{vM+2}, v{vM}")
    A(f"v_mov_b32 v{vM+3}, v{vM+1}")
    A("s_nop 1")
    A(f"v_permlane32_swap_b32 v{vM+2}, v{vM}")
    A(f"v_permlane32_swap_b32 v{vM+3}, v{vM+1}")
    A(f"v_max_f32 v{vM}, v{vM}, v{vM+2}")
    A(f"v_max_f32 v{vM+1}, v{vM+1}, v{vM+3}")
    A(f"s_branch {L}sl3")
    A(f"{L}sl2:")
    for e in range(32):
        r, qt, ks = sm_reg(0, e)
        A(f"v_sub_f32 v{r}, v{r}, v{vM+qt}")
        A(f"v_exp_f32 v{r}, v{r}")
        A("s_nop 0")
        for x in sm_post(0, e): A(x)
    for i in range(8):
        for sec in range(2): A(vread(i // 4, i % 4, 0, sec, i % 4))
        A("s_waitcnt lgkmcnt(0)")
        for qt in range(2): mf32(A, ar(aO + (qt * 4 + i % 4) * 16, 16), vr(vF + (i % 4) * 4, 4), vr(vP + (qt * 2 + i // 4) * 4, 4))
    A(f"{L}sl3:")
    A(f"s_add_u32 s{sT}, s{sT}, 1")
    A(f"s_cmp_lt_u32 s{sT}, 32")
    A(f"s_cbranch_scc1 {L}sl")
    A(f"v_mov_b32 v{t}, v{vL}")
    A(f"v_mov_b32 v{t+1}, v{vL+1}")
    A("s_nop 1")
    A(f"v_permlane32_swap_b32 v{t}, v{vL}")
    A(f"v_permlane32_swap_b32 v{t+1}, v{vL+1}")
    A(f"v_add_f32 v{vL}, v{vL}, v{t}")
    A(f"v_add_f32 v{vL+1}, v{vL+1}, v{t+1}")
    A(f"v_rcp_f32 v{t}, v{vL}")
    A(f"v_rcp_f32 v{t+1}, v{vL+1}")
    A("s_nop 7")
    A(f"s_branch {L}oep")
    A(f"{L}last:")
    kd(A, name, 512, 256)

def checks(A, entry):
    if XP: return
    nb = check_hazards(A.lines)
    tot = 0
    for wg in (0, 5, 6, 31, 24, 28, 255):
        for w in (0, 1, 3):
            for slow in (0, 1):
                def hk(x, S):
                    if x.opn == "v_readfirstlane_b32" and "tag" not in x.text:
                        S[sWave] = w
                    if "slowbr" in x.text: return slow
                    if "pollbr" in x.text: return 1
                p, c = check_waits(A.lines, entry, {2: wg}, hk)
                tot += p
    print("hazards:", nb, "waits:", tot, c)

def build(fn, stamps=False):
    HDR = open("cdna_kernels/" + NAME + ".s.ref").read().split("; Override")[0]
    A = Asm()
    A(HDR)
    A(f"; @launch grid=(256,1,1) block=(256,1,1) lds={P1_LDS}")
    A('.amdgcn_target "amdgcn-amd-amdhsa--gfx950"')
    A(".text")
    gen_p1(A, NAME + "_kernel", stamps=stamps)
    checks(A, NAME + "_kernel")
    if "ub" in XP:
        A.lines = [l.replace("0x402b1600", "0x422c1600").replace("0x5b402b16", "0x5b422c16") for l in A.lines]
        out = []
        pend = 0
        for i, l in enumerate(A.lines):
            if l == f"s_cmp_eq_u32 s{qP}, 3": l = "s_cmp_eq_u32 0, 0"
            out.append(l)
        A.lines = out
    if any(x.startswith("g_") for x in XP):
        i0 = A.lines.index("p1_gf:"); i1 = A.lines.index("p1_gdone:")
        body = A.lines[i0:i1]
        if "g_nodma" in XP: body = [l for l in body if " lds" not in l]
        if "g_nobar" in XP: body = [l for l in body if not l.startswith("s_barrier")]
        if "g_nowait" in XP: body = [l for l in body if not l.startswith("s_waitcnt lgkmcnt")]
        if "g_noread" in XP: body = [l for l in body if not l.startswith("ds_read")]
        if "g_nop" in XP: body = [("s_nop 0" if " lds" in l else l) for l in body]
        A.lines[i0:i1] = body
    if "hplain" in XP: A.lines = [l.replace(" sc1", "") if ("store" in l and f"s[{sA}:{sA+3}], s6 " not in l and f"s[{sA}:{sA+3}]" in l) else l for l in A.lines]
    if "oplain" in XP: A.lines = [l.replace(" sc1", "") if ("store" in l and f"s[{sA}:{sA+3}], s6 " in l) else l for l in A.lines]
    if "iplain" in XP: A.lines = [l.replace(" sc1", "") if ("store" in l and f"s[{qI}:{qI+3}], s{sT0}" in l) else l for l in A.lines]
    if "nt" in XP: A.lines = [l.replace(" sc1", " sc1 nt") if ("buffer_store" in l) else l for l in A.lines]
    if "sc01" in XP: A.lines = [l.replace(" sc1", " sc0 sc1") if ("buffer_store" in l) else l for l in A.lines]
    open(fn, "w").write(A.text())
if __name__ == "__main__":
    build("fu.s")
    build("fu_st.s", stamps=True)
```

```python
from asmlib import *
from common import *

P1_LDS = 163840
R0, R1, R2, R3, R4 = 0, 32768, 65536, 98304, 131072
CS = R3
TAILBIT = 0x30000
ROT = False
TLBW = True
FLAG = 'byte'
FINE = False
EVMASK = 0x180
vFin = 60
XP = set()

class LQ:
    def __init__(s): s.q = []
    def issue(s, tag): s.q.append(tag)
    def wait(s, A, tags):
        idx = max([i for i, t in enumerate(s.q) if t in tags], default=-1)
        if idx < 0: return
        n = len(s.q) - 1 - idx
        assert n <= 15
        A(f"s_waitcnt lgkmcnt({n})")
        s.q = s.q[idx + 1:]
    def clear(s): s.q = []

sX, sWq, sW1, sW3, sK, sV, sA, sWp, sSrc, sSt = 8, 12, 16, 20, 24, 28, 32, 36, 40, 44
sWave, sHead, sRb, sFb, sHasF = 48, 49, 50, 51, 52
sXo, sWqo, sW13o, sM0X, sM0W, sD, sTail, sSlot = 53, 54, 55, 56, 57, 58, 59, 60
sT0, sT1, sT2 = 61, 62, 63
pX, pK, pV, pWq, pWo, pBx, pW1, pW3, pW2, pOut, pDbg, pWs = range(64, 88, 2)
sKVo, sKVm, sDelta, sT, sU, sMask, sXb, sC0 = 88, 89, 90, 91, 92, 93, 94, 95
sX2, sM0d, sXst, sM0t, sProd, sPo = 76, 74, 75, 3, 4, 5
sE0 = 96
vLane = 1
vXd, vWqd, vW13d, vXr, vWqr, vW13r = 2, 10, 12, 13, 15, 23
vZero = 27
vSt = 28
vTm = 44
vQ = 64
vAcc = 128
aG, aUp, aCs, aXf, aWf, aOne, aWp = 0, 64, 128, 144, 176, 192, 196
vKr, vVr, vKd, vVd, vL, vOo = 14, 10, 2, 6, 22, 24
vWs, vKb, vVb = 56, 57, 58
vS, vP, vF = 128, 192, 208
aO = 128
sNo = 100
pFl = 84
qA, qW, qX, qO, qI = 8, 12, 16, 20, 44
qP, qG, qAo, qWo, qWm, qN, qAs, qWs = 53, 54, 55, 56, 57, 58, 51, 60
qAe, qWe, qNl, qSo, qXo, qRb, qCb, qT0, qT1, qIn = 74, 75, 3, 93, 94, 76, 77, 78, 79, 24
vFo, vFv, vPa, vPb, vAa, vAb, vAo, vAp = 25, 28, 30, 32, 34, 35, 36, 37
vL16, vWr2, vXo2, vL8, vOwn = 54, 2, 4, 5, 6
aA2, aW2, aWq = 0, 64, 64
RING2 = 81920
TOUCH = 0
COOPX = 1
SPL = (1, 1)
OPT = set()
vTch, sTch = 26, 92
vOnes = 40
vWpB, vWpA = 59, 39
sWpO, sSen = 5, 4


def mf16(A, d, a, b, c=None):
    A(f"v_mfma_f32_16x16x32_bf16 {d}, {a}, {b}, {d if c is None else c}")
def mf32(A, d, a, b, c=None):
    A(f"v_mfma_f32_32x32x16_bf16 {d}, {a}, {b}, {d if c is None else c}")

def spread(items, nslots):
    out = [[] for _ in range(nslots)]
    n = len(items)
    for i, it in enumerate(items):
        out[min(nslots - 1, (i * nslots) // n)].append(it)
    return out

def frag_list(ffn):
    fr = [("Q", p) for p in range(8)]
    if ffn:
        for p in range(4): fr += [("G", p), ("U", p)]
    return fr

def wread(fr, k, sec, buf):
    c, p = fr
    if c == "Q": ad, off = vWqr + p, sec * 1024
    else: ad, off = vW13r + p, (2048 if c == "G" else 3072) + sec * 512
    return f"ds_read_b64_tr_b16 {ar(aWf+buf*4+2*sec,2)}, v{ad} offset:{off + k*16384}"

def xread(s, st, rt):
    return f"ds_read_b128 {ar(aXf+st*16+rt*4,4)}, v{vXr+s} offset:{rt*2048}"

def dma_w(ffn, force=False):
    it = [f"s_max_u32 m0, s{sM0W}, s{sTail}",
          f"buffer_load_dwordx4 v{vWqd}, s[{sWq}:{sWq+3}], s{sWqo} offen lds ; @put W",
          f"buffer_load_dwordx4 v{vWqd+1}, s[{sWq}:{sWq+3}], s{sWqo} offen offset:1024 lds ; @put W"]
    if ffn or force:
        it += [f"buffer_load_dwordx4 v{vW13d}, s[{sW1}:{sW1+3}], s{sW13o} offen offset:2048 lds ; @put W",
               f"buffer_load_dwordx4 v{vW13d}, s[{sW3}:{sW3+3}], s{sW13o} offen offset:3072 lds ; @put W"]
    it += [f"s_add_u32 s{sWqo}, s{sWqo}, {32*8192}"]
    if ffn or force: it += [f"s_add_u32 s{sW13o}, s{sW13o}, {32*3456}"]
    it += [f"s_add_u32 s{sSlot}, s{sSlot}, 16384\ns_and_b32 s{sSlot}, s{sSlot}, 0xffff",
           f"s_add_u32 s{sM0W}, s{sSlot}, s{sC0}"]
    return it

def dma_x(half):
    if half == 0: it = [f"s_mov_b32 m0, s{sM0X}"]
    else: it = [f"s_add_u32 m0, s{sM0X}, s{sM0d}"]
    sd = sX if half == 0 else sX2
    for j in range(4):
        it.append(f"buffer_load_dwordx4 v{vXd+4*half+j}, s[{sd}:{sd+3}], s{sXo} offen offset:{j*1024} lds")
    if half: it += [f"s_add_u32 s{sXo}, s{sXo}, s{sXst}\ns_xor_b32 s{sM0X}, s{sM0X}, s{sM0t}"]
    return it

def fine(A):
    A("s_memtime s[98:99]"); A("s_waitcnt lgkmcnt(0)")
    A("s_mov_b32 m0, s7")
    A(f"v_writelane_b32 v{vFin}, s96, m0")
    A(f"v_writelane_b32 v{vFin+1}, s100, m0")
    A(f"v_writelane_b32 v{vFin-1}, s98, m0")
    A("s_add_u32 s7, s7, 1")

def gemm_loop(A, ffn, L):
    fr = frag_list(ffn); nf = len(fr)
    nw = 4 if ffn else 2
    ones = {("Q", 0): 0, ("Q", 1): 1, ("G", 0): 2, ("U", 0): 3}
    lq = LQ()
    for f in range(3):
        lq.issue(("w", f)); lq.issue(("w", f))
    A(".p2align 6")
    A(f"{L}:")
    for k in range(2):
        if k == 1:
            A(f"s_bitcmp1_b32 s{sMask}, s{sD}")
            A(f"s_cbranch_scc1 {L}_ev")
            A(f"{L}_evret:")
        if k == 0:
            items = [("x", rt) for rt in range(4)] + dma_x(1) + dma_w(ffn)
            slots = spread(items, 2 * (nf - 2))
            tog = {2: [f"v_xor_b32 v{vXr}, 0x18000, v{vXr}"]}
        else:
            items = dma_x(0) + dma_w(ffn) + [f"s_add_u32 s{sD}, s{sD}, 1"]
            slots = spread(items, 2 * (nf - 5))
            slots += [[f"s_cmp_eq_u32 s{sD}, 10\ns_cbranch_scc1 {L}_nw\ns_waitcnt vmcnt({2*nw+4})\n{L}_nw:"],
                      [("x", 0)], [("x", 1)], [("x", 2)], [("x", 3)], []]
            tog = {0: [f"v_xor_b32 v{vXr+1}, 0x18000, v{vXr+1}"]}
            for f, (c, p) in enumerate(fr):
                if c == "G": continue
                reg = vWqr + p if c == "Q" else vW13r + p
                tog.setdefault(max(f - 3, -1) + 1, []).append(f"v_xor_b32 v{reg}, 0x38000, v{reg}")
        sal = {}
        if ffn and "gsched" not in OPT:
            xs, ws_ = dma_x(1 - k), dma_w(True)
            mem = xs[1:5] + ws_[1:5]
            slots = [[] for _ in range(2 * (nf - 2))]
            if k == 0:
                for i, it in enumerate([("x", 0), ("x", 1)] + mem[:4] + [("x", 2), ("x", 3)] + mem[4:]): slots[2 * i] = [it]
                sal = {1: [xs[0]], 6: [xs[5]], 7: [ws_[0]], 12: ws_[5:7], 13: ws_[7:]}
            else:
                for i, it in enumerate(mem + [("x", rt) for rt in range(4)]): slots[2 * i] = [it]
                slots[2 * 7 + 1] = [f"s_cbranch_scc1 {L}_nw\ns_waitcnt vmcnt({2*nw+4})\n{L}_nw:"]
                sal = {0: [xs[0]], 4: [ws_[0]], 7: [f"s_cmp_eq_u32 s{sD}, 9"], 8: ws_[5:7], 9: ws_[7:8], 10: ws_[8:], 11: [f"s_add_u32 s{sD}, s{sD}, 1"]}
                tg = lambda r, m: [f"v_xor_b32 v{r}, {m}, v{r}"]
                tog = {i: tg(vWqr + i, "0x38000") for i in range(7)}
                tog.update({8: tg(vWqr + 7, "0x38000"), 9: tg(vW13r, "0x38000"), 10: tg(vW13r + 1, "0x38000"), 11: tg(vW13r + 2, "0x38000"),
                            12: tg(vW13r + 3, "0x38000"), 14: tg(vXr + 1, "0x18000")})
        for f in range(nf):
            c, p = fr[f]
            lq.wait(A, [("w", f)] + ([("x", k)] if f == 0 else []))
            buf = f % 4
            for rt in range(4):
                r_ = rt if f % 2 == 0 else 3 - rt
                if c == "Q": d = vr(vAcc + (p * 4 + r_) * 4, 4)
                else: d = ar((aG if c == "G" else aUp) + (p * 4 + r_) * 4, 4)
                mf16(A, d, ar(aWf + buf * 4, 4), ar(aXf + k * 16 + r_ * 4, 4))
                if f + 3 < nf and rt < 2:
                    A(wread(fr[f + 3], k, rt, (f + 3) % 4)); lq.issue(("w", f + 3))
                if f == nf - 2:
                    A(wread(fr[rt // 2], 1 - k, rt % 2, (rt // 2) % 4)); lq.issue(("w", rt // 2))
                if f == nf - 1 and rt < 2:
                    A(wread(fr[2], 1 - k, rt, 2)); lq.issue(("w", 2))
                if rt == 1:
                    for it in sal.get(f, []): A(it)
                if rt >= 2 and f < nf - 2:
                    for it in slots[2 * f + rt - 2]:
                        if isinstance(it, tuple):
                            A(xread(1 - k, 1 - k, it[1]) + (" ; @chkx" if k == 1 else "")); lq.issue(("x", 1 - k))
                        else:
                            if "lds" in it and " m0," in A.lines[-1]: A("s_nop 0")
                            A(it)
                if rt == 3:
                    for t in tog.get(f, []): A(t)
            if fr[f] in ones:
                mf16(A, ar(aCs + ones[fr[f]] * 4, 4), ar(aWf + buf * 4, 4), ar(aOne, 4))
            if f == nf - 3:
                n = 2 * nw + 8
                if FINE:
                    A("s_memtime s[96:97]"); A("s_waitcnt lgkmcnt(0)")
                A(f"s_waitcnt vmcnt({n}) lgkmcnt(0)")
                lq.clear()
                if FINE:
                    A("s_memtime s[100:101]"); A("s_waitcnt lgkmcnt(0)")
                A(f"s_barrier")
                if FINE: fine(A)
    A(f"s_cmp_lt_u32 s{sD}, 10")
    A(f"s_cbranch_scc1 {L}")
    assert lq.q == [("w", 0), ("w", 0), ("w", 1), ("w", 1), ("w", 2), ("w", 2)], lq.q

def kv_dma_voff(A, kd_, vd_, nv=4):
    t = vTm
    A(f"v_lshrrev_b32 v{t+12}, 4, v{vLane}")
    A(f"v_and_b32 v{t+14}, 15, v{vLane}")
    A(f"v_xor_b32 v{t+13}, v{t+14}, v{t+12}")
    A(f"v_lshlrev_b32 v{t+13}, 4, v{t+13}")
    A(f"v_lshl_add_u32 v{kd_}, v{t+12}, 8, v{t+13}")
    for j in range(1, 4): A(f"v_xor_b32 v{kd_+j}, {64*j}, v{kd_}")
    A(f"v_lshlrev_b32 v{t+13}, 2, v{t+12}")
    A(f"v_xor_b32 v{t+13}, v{t+13}, v{t+14}")
    A(f"v_lshlrev_b32 v{t+13}, 4, v{t+13}")
    A(f"v_lshl_add_u32 v{vd_}, v{t+12}, 8, v{t+13}")
    for j in range(1, nv): A(f"v_mov_b32 v{vd_+j}, v{vd_}")

def gemm_events(A, L):
    A(f"{L}_ev:")
    A(f"s_cmp_eq_u32 s{sD}, 8")
    A(f"s_cbranch_scc1 {L}_ev8")
    A(f"global_load_dword v{vTm}, v{vTm+2}, s[{pDbg}:{pDbg+1}] sc1")
    A(f"global_load_dwordx2 {vr(vTm+4,2)}, v{vTm+6}, s[{pDbg}:{pDbg+1}] offset:128 sc1")
    A(f"s_branch {L}_evret")
    A(f"{L}_ev8:")
    A(f"s_mov_b32 s{sTail}, {TAILBIT}")
    for d in (sWq, sW1, sW3): A(f"s_mov_b32 s{d+2}, 0")
    for d, s_ in ((sX, sK), (sX2, sV)):
        A(f"s_mov_b64 s[{d}:{d+1}], s[{s_}:{s_+1}]")
        A(f"s_mov_b64 s[{d+2}:{d+3}], s[{s_+2}:{s_+3}]")
    for j in range(8): A(f"v_mov_b32 v{vXd+j}, v{vQ+min(j,4)}")
    A(f"s_lshl_b32 s{sM0X}, s{sWave}, 12")
    A(f"s_mov_b32 s{sXo}, s{sKVo}")
    A(f"s_movk_i32 s{sM0d}, 16384")
    A(f"s_movk_i32 s{sXst}, 16384")
    A(f"s_mov_b32 s{sM0t}, 0x8000")
    A(f"s_mov_b32 s{sT1}, 0")
    A(f"s_waitcnt vmcnt(12)")
    A(f"{L}_chk:")
    A(f"v_cmp_ne_u32 vcc, 0x01010101, v{vTm}")
    A(f"v_cmp_eq_u32 s[6:7], 0, v{vTm+5}")
    A("s_nop 3")
    A(f"s_or_b64 s[6:7], s[6:7], vcc")
    A(f"s_cbranch_scc0 {L}_rdy ; pollbr")
    A(f"s_add_u32 s{sT1}, s{sT1}, 1")
    A(f"s_cmp_ge_u32 s{sT1}, 0x40000")
    A(f"s_cbranch_scc1 {L}_rdy")
    A("s_sleep 2")
    A(f"global_load_dword v{vTm}, v{vTm+2}, s[{pDbg}:{pDbg+1}] sc1")
    A(f"global_load_dwordx2 {vr(vTm+4,2)}, v{vTm+6}, s[{pDbg}:{pDbg+1}] offset:128 sc1")
    A("s_waitcnt vmcnt(0)")
    A(f"s_branch {L}_chk")
    A(f"{L}_rdy:")
    A(f"v_readfirstlane_b32 s{sNo}, v{vTm+4} ; tag")
    A(f"v_readfirstlane_b32 s{sNo+1}, v{vTm+5} ; tag")
    A(f"s_add_u32 s{pFl}, s{pWs}, {FL_OFF}")
    A(f"s_addc_u32 s{pFl+1}, s{pWs+1}, 0")
    A(f"s_lshl2_add_u32 s{sT0}, s{sRb}, s{sWave}")
    A(f"s_lshl_b32 s{sT0}, s{sT0}, 10")
    for rt in range(4):
        A(f"buffer_load_dwordx4 {vr(vSt+4*rt,4)}, v{vTm+3}, s[{sSt}:{sSt+3}], s{sT0} offen offset:{rt*256} sc1")
    A(f"s_branch {L}_evret")

def kv_addr(A, base_expr_sgpr, only=None):
    vKr, vVr = only or (globals()["vKr"], globals()["vVr"])
    t0, t1, t2, t3 = vTm + 12, vTm + 13, vTm + 14, vTm + 15
    A(f"v_and_b32 v{t0}, 31, v{vLane}")
    A(f"v_lshrrev_b32 v{t1}, 5, v{vLane}")
    A(f"v_and_b32 v{t2}, 15, v{vLane}")
    A(f"v_xor_b32 v{t2}, v{t2}, v{t1}")
    A(f"s_lshl_b32 s{sT0}, s{sWave}, 2")
    A(f"v_xor_b32 v{t2}, s{sT0}, v{t2}")
    A(f"v_lshlrev_b32 v{t2}, 4, v{t2}")
    A(f"v_lshl_add_u32 v{t2}, v{t0}, 8, v{t2}")
    A(f"v_add_u32 v{vKr}, s{base_expr_sgpr}, v{t2}")
    for p in range(1, 1 if only else 8): A(f"v_xor_b32 v{vKr+p}, {32*p}, v{vKr}")
    A(f"v_bfe_u32 v{t0}, v{vLane}, 2, 2")
    A(f"v_lshl_add_u32 v{t2}, v{t1}, 2, v{t0}")
    A(f"v_lshlrev_b32 v{t2}, 8, v{t2}")
    A(f"v_lshl_add_u32 v{t2}, v{t0}, 6, v{t2}")
    A(f"v_bfe_u32 v{t3}, v{vLane}, 1, 1")
    A(f"v_lshl_add_u32 v{t2}, v{t3}, 5, v{t2}")
    A(f"v_bfe_u32 v{t3}, v{vLane}, 4, 1")
    A(f"v_lshl_add_u32 v{t2}, v{t3}, 4, v{t2}")
    A(f"v_and_b32 v{t3}, 1, v{vLane}")
    A(f"v_lshl_add_u32 v{t2}, v{t3}, 3, v{t2}")
    A(f"s_add_u32 s{sT0}, s{base_expr_sgpr}, 16384")
    A(f"v_add_u32 v{vVr}, s{sT0}, v{t2}")
    for dt in range(1, 1 if only else 4): A(f"v_xor_b32 v{vVr+dt}, {64*dt}, v{vVr}")

def kv_dma():
    it = [f"s_mov_b32 m0, s{sKVm}"]
    for j in range(4):
        it.append(f"buffer_load_dwordx4 v{vKd+j}, s[{sK}:{sK+3}], s{sKVo} offen offset:{j*1024} lds")
    it.append("s_add_u32 m0, m0, 16384")
    for j in range(4):
        it.append(f"buffer_load_dwordx4 v{vVd}, s[{sV}:{sV+3}], s{sKVo} offen offset:{j*1024} lds")
    return it

def kread(p, tile, buf):
    return f"ds_read_b128 {vr(vF+buf*4,4)}, v{vKr+p} offset:{tile*8192}"
def vread(ks, dt, tile, sec, buf):
    return f"ds_read_b64_tr_b16 {vr(vF+buf*4+2*sec,2)}, v{vVr+dt} offset:{(32*tile+16*ks+8*sec)*256}"

def sm_reg(buf, e):
    qt = (e >> 3) & 1; ks = e >> 4
    return vS + (buf * 2 + qt) * 16 + ks * 8 + (e & 7), qt, ks
def sm_exp(buf, e):
    r, _, _ = sm_reg(buf, e)
    if "noexp" in XP: return []
    if "movexp" in XP: return [f"v_mov_b32 v{r}, v{r}"]
    return [f"v_exp_f32 v{r}, v{r}"]
def sm_post(buf, e):
    r, qt, ks = sm_reg(buf, e)
    o = [f"v_add_f32 v{vL+qt}, v{vL+qt}, v{r}"]
    if "noadd" in XP: o = []
    if e & 1 and "nocvt" not in XP: o.append(f"v_cvt_pk_bf16_f32 v{vP+(qt*2+ks)*4+((e&7)>>1)}, v{r-1}, v{r}")
    return o

def attn_seg(A, lq, seg, extra, mfma=True, sm_lo=0, sm_hi=64, look=True):
    def rd(phi, part):
        s = (phi // 8) % 4; i = phi % 8; buf = phi % 4
        if s in (0, 2):
            return kread(i, 1 if s == 0 else 0, buf) if part == 0 else None
        return vread(i // 4, i % 4, 0 if s == 1 else 1, part, buf)
    for i in range(8):
        phi = seg * 8 + i
        if mfma and "nowait" not in XP: lq.wait(A, [("f", phi)])
        for qt in range(2):
            slot = seg * 16 + 2 * i + qt
            if mfma:
                if seg in (0, 2):
                    sb = 1 if seg == 0 else 0
                    d = vr(vS + (sb * 2 + qt) * 16, 16)
                    mf32(A, d, vr(vF + (phi % 4) * 4, 4), vr(vQ + (qt * 8 + i) * 4, 4), "0" if i == 0 else None)
                else:
                    ks, dt = i // 4, i % 4
                    mf32(A, ar(aO + (qt * 4 + dt) * 16, 16), vr(vF + (phi % 4) * 4, 4), vr(vP + (qt * 2 + ks) * 4, 4))
            for it in extra.get((slot, "pre"), []): A(it)
            nphi = (phi + 3) % 32
            nseg = nphi // 8
            if look is True or nseg in look:
                r = rd(nphi, qt)
                if r and "noread" not in XP: A(r); lq.issue(("f", nphi))
            for it in extra.get((slot, "ds"), []):
                A(it); lq.issue(("side", 0))
            for it in extra.get(slot, []):
                if it.startswith("v_"): continue
                if "lds" in it and " m0," in A.lines[-1]: A("s_nop 0")
                A(it)
            for (buf, start) in ((1, 22), (0, 54)):
                e = (slot - start) % 64
                if e < 32 and (buf, "exp") in sm_ok(slot, sm_lo, sm_hi, buf, e):
                    for x in sm_exp(buf, e): A(x)
            for (buf, start) in ((1, 22), (0, 54)):
                e = (slot - start - 1) % 64
                if e < 32 and (buf, "exp") in sm_ok((slot - 1) % 64, sm_lo, sm_hi, buf, e):
                    for x in sm_post(buf, e): A(x)
            for it in extra.get(slot, []):
                if it.startswith("v_"): A(it)
            for it in extra.get((slot, "post"), []): A(it)
def sm_ok(slot, lo, hi, buf, e):
    return {(buf, "exp")} if (lo <= slot < hi) else set()

def wp_src_voff(A, d, n=8):
    t = vTm
    A(f"v_lshrrev_b32 v{t+12}, 4, v{vLane}")
    A(f"v_lshlrev_b32 v{t+12}, 1, v{t+12}")
    A(f"v_and_b32 v{t+13}, 7, v{vLane}")
    A(f"v_xor_b32 v{t+12}, v{t+12}, v{t+13}")
    A(f"v_lshlrev_b32 v{t+12}, 4, v{t+12}")
    A(f"v_lshrrev_b32 v{t+13}, 3, v{vLane}")
    A(f"v_mul_u32_u24 v{t+13}, 1280, v{t+13}")
    A(f"v_add_u32 v{d}, v{t+12}, v{t+13}")
    for j in range(1, n): A(f"v_add_u32 v{d+j}, {(j%4)*9216 + (j//4)*128}, v{d}")

def wp_addr(A, sh, note="", reg=R3, n=4, dst=None):
    t = vTm
    A(f"v_bfe_u32 v{t+14}, v{vLane}, 2, 2")
    A(f"v_bfe_u32 v{t+16}, v{vLane}, 4, 1")
    A(f"v_lshl_add_u32 v{t+14}, v{t+16}, 2, v{t+14}")
    A(f"v_lshrrev_b32 v{t+13}, 1, v{t+14}")
    A(f"v_lshlrev_b32 v{t+13}, 5, v{t+13}")
    A(f"v_lshl_add_u32 v{t+13}, v{t+14}, 7, v{t+13}")
    A(f"v_lshrrev_b32 v{t+15}, 5, v{vLane}")
    A(f"v_lshl_add_u32 v{t+13}, v{t+15}, 10, v{t+13}")
    A(f"v_and_b32 v{t+15}, 3, v{vLane}")
    A(f"v_lshl_add_u32 v{t+13}, v{t+15}, 3, v{t+13}")
    A(f"s_lshl_b32 s6, s{sWave}, {sh}")
    A(f"s_add_u32 s6, s6, {reg}")
    A(f"v_add_u32 v{dst or t+4}, s6, v{t+13}{note}")
    for i4 in range(1, n): A(f"v_xor_b32 v{t+4+i4}, {32*i4}, v{t+4}")
def wp_reads(A, stride):
    for su in range(2):
        for i4 in range(4):
            for sec in range(2):
                A(f"ds_read_b64_tr_b16 {ar(aWq+(su*4+i4)*4+2*sec,2)}, v{vTm+4+i4} offset:{su*stride+sec*2048}")
def wp_stores(A, so):
    for su in range(2):
        for i4 in range(4):
            A(f"buffer_store_dwordx4 {ar(aWq+(su*4+i4)*4,4)}, v{vL16}, s[{sWp}:{sWp+3}], s{so} offen offset:{i4*1024} sc1")
        if su == 0: A(f"s_add_u32 s{so}, s{so}, 4096")

def set_flag(A, phase, lab, cls="H"):
    A(f"s_cmp_lg_u32 s{sWave}, 0")
    A(f"s_cbranch_scc1 {lab}")
    A(f"s_add_u32 s6, s{sNo}, {phase}")
    A(f"v_mov_b32 v{vFv}, s6")
    A(f"v_mov_b32 v{vFv+1}, s{sNo+1}")
    A("s_mov_b64 exec, 1")
    A(f"global_store_dwordx2 v{vFo}, {vr(vFv,2)}, s[{pFl}:{pFl+1}] sc1")
    A("s_mov_b64 exec, -1")
def flag_load(A, dst, ad):
    A(f"global_load_dwordx2 {vr(dst,2)}, v{ad}, s[{pFl}:{pFl+1}] sc1")
def flag_wait(A, lab, phase, polls):
    A(f"s_add_u32 s{sT0}, s{sNo}, {phase}")
    A(f"s_mov_b32 s{sT1}, 0")
    A(f"{lab}c:")
    for n, (d, ad) in enumerate(polls):
        A(f"v_subrev_u32 v{d}, s{sT0}, v{d}")
        A(f"v_cmp_ne_u32 s[{sE0+2*n}:{sE0+2*n+1}], s{sNo+1}, v{d+1}")
    for n, (d, ad) in enumerate(polls):
        A(f"v_cmp_lt_u32 " + ("vcc" if n == 0 else "s[6:7]") + f", {3-phase}, v{d}")
    A("s_nop 3")
    A(f"s_or_b64 s[{sE0}:{sE0+1}], s[{sE0}:{sE0+1}], vcc")
    if len(polls) > 1:
        A(f"s_or_b64 s[6:7], s[6:7], s[{sE0+2}:{sE0+3}]")
        A(f"s_or_b64 s[{sE0}:{sE0+1}], s[{sE0}:{sE0+1}], s[6:7]")
    A(f"s_cbranch_scc0 {lab}r ; pollbr")
    A(f"s_add_u32 s{sT1}, s{sT1}, 1")
    A(f"s_cmp_ge_u32 s{sT1}, 0x40000")
    A(f"s_cbranch_scc1 {lab}r")
    for d, ad in polls: flag_load(A, d, ad)
    A("s_waitcnt vmcnt(0)")
    A(f"s_branch {lab}c")
    A(f"{lab}r:")

def q_setup():
    w = sWave
    return [
     f"s_lshl_b32 s6, s{qP}, 3\ns_lshr_b32 s{qT0}, {hex(0x402b1600)}, s6\ns_and_b32 s{qT0}, s{qT0}, 0xff",
     f"s_lshr_b32 s{qT1}, {hex(0x5b402b16)}, s6\ns_and_b32 s{qT1}, s{qT1}, 0xff",
     f"s_and_b32 s{sT2}, s{w}, 1\ns_lshl_b32 s6, s{sT2}, 11\ns_lshl_b32 s{qAs}, s{qT0}, 13",
     f"s_add_u32 s{qAs}, s{qAs}, s6\ns_lshr_b32 s7, s{w}, 1\ns_lshl_b32 s6, s{qCb}, 1",
     f"s_add_u32 s6, s6, s7\ns_mul_i32 s6, s6, 5120\ns_mul_i32 s{qWs}, s{qT0}, 81920",
     f"s_add_u32 s{qWs}, s{qWs}, s6\ns_mul_i32 s6, s{sT2}, 40960\ns_add_u32 s{qWs}, s{qWs}, s6",
     f"s_lshl_b32 s{qAe}, s{qT1}, 13\ns_mul_i32 s{qWe}, s{qT1}, 81920\ns_mov_b32 s{qAo}, s{qAs}",
     f"s_mov_b32 s{qWo}, s{qWs}\ns_mul_i32 s{qWm}, s{sT2}, 10240\ns_mul_i32 s6, s7, 5120",
     f"s_add_u32 s{qWm}, s{qWm}, s6\ns_lshl_b32 s6, s{qRb}, 1\ns_add_u32 s6, s6, s7",
     f"s_mul_i32 s6, s6, {A_BLK}\ns_add_u32 s{qA}, s{pWs}, s6\ns_addc_u32 s{qA+1}, s{pWs+1}, 0",
     f"s_and_b32 s{qA+1}, s{qA+1}, 0xffff\ns_cmp_eq_u32 s{qP}, 3\ns_cselect_b32 s{qA+2}, s{qAe}, 0\ns_cselect_b32 s{qW+2}, s{qWe}, 0\ns_mov_b32 s{qA+3}, 0x20000",
     f"s_mov_b32 s{qW}, s{sWp}\ns_mov_b32 s{qW+1}, s{sWp+1}\ns_mov_b32 s{qW+3}, 0x20000",
     f"s_lshl2_add_u32 s6, s{qRb}, s{qP}\ns_lshl_b32 s6, s6, 1\ns_add_u32 s6, s6, s7\ns_mul_i32 s{qXo}, s6, 20480",
     f"s_lshl_b32 s6, s{qCb}, 1\ns_add_u32 s6, s6, s{sT2}\ns_mul_i32 s6, s6, 160\ns_add_u32 s{qXo}, s{qXo}, s6",
     f"s_xor_b32 s{qT0}, s{w}, s{qP}\ns_mul_i32 s{qT1}, s{w}, 3\ns_add_u32 s{qT1}, s{qT1}, s{qT0}\ns_sub_u32 s{qT1}, s{qT1}, 1",
     f"s_mul_i32 s{qT1}, s{qT1}, 10240\ns_cmp_eq_u32 s{qT0}, 0\ns_cselect_b32 s{qSo}, 0x100000, s{qT1}",
    ]

def q_loads(slot):
    it = [f"s_add_u32 m0, s{qWm}, {slot*20480}"]
    for j in range(4):
        it.append(f"buffer_load_dwordx4 v{vL16}, s[{qW}:{qW+3}], s{qWo} offen offset:{j*1024} sc1 lds ; @put W2")
    it.append(f"s_add_u32 m0, s{qWm}, {slot*20480+4096}")
    it.append(f"buffer_load_dwordx4 v{vL16+1}, s[{qW}:{qW+3}], s{qWo} offen sc1 lds ; @put W2")
    for k in range(2):
        for rt in range(2):
            it.append(f"buffer_load_dwordx4 {ar(aA2+(slot*4+k*2+rt)*4,4)}, v{vL16+k}, s[{qA}:{qA+3}], s{qAo} offen offset:{rt*1024} sc1")
    it.append(f"s_add_u32 s{qWo}, s{qWo}, 81920\ns_add_u32 s{qAo}, s{qAo}, 8192")
    return it

def gemm2(A, L, emit, stamp):
    ac, vT, vX, vZ = 64, 144, 168, 180
    srd(A, qX, pX, pX + 1, X_SIZE)
    srd(A, qO, pOut, pOut + 1, X_SIZE)
    for i in range(4): A(f"v_mov_b32 v{vZ+i}, 0")
    A(f"v_and_b32 v{vT}, 15, v{vLane}")
    A(f"v_mul_u32_u24 v{vT}, 1280, v{vT}")
    A(f"v_lshrrev_b32 v{vT+1}, 4, v{vLane}")
    A(f"v_lshl_add_u32 v{vXo2}, v{vT+1}, 3, v{vT}")
    def zero():
        for i in range(5): mf32(A, vr(ac + 16 * i, 16), vr(vZ, 4), vr(vZ, 4), "0")
    zero()
    A(f"v_mov_b32 v{vWr2}, v{vL16}")
    A(f"v_add_u32 v{vWr2+1}, 40960, v{vL16}")
    A(f"v_lshlrev_b32 v{vL8}, 3, v{vLane}")
    A(f"v_add_u32 v{vOwn}, {RING2}, v{vL16}")
    A(f"s_mov_b32 s{qN}, 0")
    def wread2(slot, f, buf):
        k, ct = f // 10, f % 10
        return f"ds_read_b128 {ar(aW2+buf*4,4)}, v{vWr2+slot//2} offset:{(slot%2)*20480+k*10240+ct*1024}"
    def xload():
        for ct in range(5):
            A(f"buffer_load_dwordx2 {vr(vX+2*ct,2)}, v{vXo2}, s[{qX}:{qX+3}], s{qXo} offen offset:{ct*32}")
    A(f"s_cmp_eq_u32 s{qP}, 3")
    A(f"s_cselect_b32 s{qT0}, {hex((1<<2)|(1<<22))}, 0")
    A(f"s_cselect_b32 s{qNl}, 26, 21")
    A(f"s_cselect_b32 s{qT1}, 0, 99")
    A(f"s_cbranch_scc1 {L}qh")
    flag_load(A, vPa, vAo)
    A("s_waitcnt vmcnt(0)")
    A("s_barrier")
    set_flag(A, 3, f"{L}f2")
    A(f"{L}f2:")
    A(f"s_mov_b32 s{qA+2}, s{qAe}")
    A(f"s_mov_b32 s{qW+2}, s{qWe}")
    A(f"s_mov_b32 s{qAo}, s{qAs}")
    A(f"s_mov_b32 s{qWo}, s{qWs}")
    flag_wait(A, f"{L}w2", 2, [(vPa, vAo)])
    flag_load(A, vPb, vAb)
    A(f"s_cmp_lg_u32 s{qP}, 0")
    A(f"s_cbranch_scc1 {L}qb")
    for s0 in (1, 2):
        if s0 == 2:
            A(f"{L}qb:")
            A(f"s_mov_b32 s{qNl}, 20")
        for s_ in range(s0, s0 + 3):
            emit(q_loads(s_ % 4)[:7])
            A(f"s_add_u32 s{qWo}, s{qWo}, 81920")
        xload()
        A("s_waitcnt vmcnt(20)")
        flag_wait(A, f"{L}w4{s0}", 3, [(vPb, vAb)])
        stamp(8)
        for s_ in range(s0, s0 + 3):
            emit(q_loads(s_ % 4)[7:11])
            A(f"s_add_u32 s{qAo}, s{qAo}, 8192")
        A("s_waitcnt vmcnt(4)")
        A("s_barrier ; @need W2 0")
        stamp(9)
        for f in range(3): A(wread2(s0, f, f))
        A(f"s_branch {L}q{s0}")
    A(f"{L}qh:")
    stamp(8)
    xload()
    A("s_waitcnt vmcnt(39)")
    A("s_barrier ; @need W2 10")
    stamp(9)
    for f in range(3): A(wread2(0, f, f))
    lq = LQ()
    for f in range(3): lq.issue(f)
    if "q_oob" in XP:
        A(f"s_mov_b32 s{qA+2}, 0"); A(f"s_mov_b32 s{qW+2}, 0")
    A(".p2align 6")
    A(f"{L}q:")
    for slot in range(4):
        ns = (slot + 1) % 4
        if slot in (1, 2): A(f"{L}q{slot}:")
        slots = spread(q_loads((slot + 3) % 4), 16)
        if "q_noload" in XP: slots = [[] for _ in range(16)]
        if "q_noA" in XP: slots = [[x for x in sl if "a[" not in x] for sl in slots]
        if "q_noW" in XP: slots = [[x for x in sl if "lds" not in x] for sl in slots]
        for f in range(20):
            k, ct = f // 10, f % 10
            lq.wait(A, [f])
            for r in range(2):
                rt = r if f % 2 == 0 else 1 - r
                mf16(A, vr(ac + (rt * 10 + ct) * 4, 4), ar(aW2 + (f % 4) * 4, 4), ar(aA2 + (slot * 4 + k * 2 + rt) * 4, 4))
                if r == 0 and f + 3 < 20:
                    A(wread2(slot, f + 3, (f + 3) % 4)); lq.issue(f + 3)
                if f == 18:
                    A(wread2(ns, r, r)); lq.issue(r)
                if f == 19 and r == 0:
                    A(wread2(ns, 2, 2)); lq.issue(2)
                if r == 1 and f < 16: emit(slots[f])
                if r == 0 and f == 17 and slot == 0: A(f"s_cmp_eq_u32 s{qT1}, s{qN}")
            if f == 17:
                if slot == 0:
                    A("s_waitcnt vmcnt(30) lgkmcnt(0)")
                    A(f"s_cbranch_scc1 {L}qw{slot}")
                    A("s_waitcnt vmcnt(18)")
                    A(f"{L}qw{slot}:")
                else: A("s_waitcnt vmcnt(18) lgkmcnt(0)")
                lq.clear()
                if "q_nobar" not in XP: A("s_barrier ; @need W2 10")
            if f == 19:
                A(f"s_add_u32 s{qN}, s{qN}, 1")
        if slot == 1:
            A(f"s_bitcmp1_b32 s{qT0}, s{qN}")
            A(f"s_cbranch_scc1 {L}qe1")
            A(f"{L}qr1:")
            A(f"s_cmp_eq_u32 s{qNl}, s{qN}")
            A(f"s_cbranch_scc1 {L}qx")
    A(f"s_branch {L}q")
    A(f"{L}qe1:")
    A(f"s_cmp_eq_u32 s{qN}, 22")
    A(f"s_cbranch_scc1 {L}qe2")
    set_flag(A, 3, f"{L}qr1")
    A(f"s_branch {L}qr1")
    A(f"{L}qe2:")
    flag_load(A, vPb, vAp)
    A(f"s_branch {L}qr1")
    A(f"{L}qx:")
    A(f"s_cmp_lg_u32 s{qP}, 3")
    A(f"s_cbranch_scc1 {L}qy")
    flag_wait(A, f"{L}w3", 3, [(vPb, vAp)])
    A(f"{L}qy:")
    def send(c, so):
        b = vT + (c // 2) * 12
        it = [f"v_cvt_pk_bf16_f32 v{b+i}, v{ac+c*20+2*i}, v{ac+c*20+2*i+1}" for i in range(10)]
        it += [f"v_min_u32 v{b+i}, -2, v{b+i}" for i in range(10)]
        return it + [f"buffer_store_dwordx4 {vr(b,4)}, v{vL16}, s[{qI}:{qI+3}], s{so} offen sc1",
                     f"buffer_store_dwordx4 {vr(b+4,4)}, v{vL16}, s[{qI}:{qI+3}], s{so} offen offset:1024 sc1",
                     f"buffer_store_dwordx2 {vr(b+8,2)}, v{vL8}, s[{qI}:{qI+3}], s{so} offen offset:2048 sc1"]
    order_ = [k * 10 + h * 5 + i for h in range(2) for k in range(2) for i in range(5)]
    fill = spread(send(0, qSo) + send(2, sT0), 17)
    for n, f in enumerate(order_):
        k, ct = f // 10, f % 10
        lq.wait(A, [n])
        for r in range(2):
            rt = r if n % 2 == 0 else 1 - r
            mf16(A, vr(ac + (rt * 10 + ct) * 4, 4), ar(aW2 + (n % 4) * 4, 4), ar(aA2 + (2 * 4 + k * 2 + rt) * 4, 4))
            if r == 0 and n + 3 < 20:
                A(wread2(2, order_[n + 3], (n + 3) % 4)); lq.issue(n + 3)
            if n == 0 and r == 1: A(f"s_add_u32 s{sT0}, s{qSo}, 5120\ns_add_u32 s{sT1}, s{qSo}, 2560\ns_add_u32 s{sT2}, s{qSo}, 7680")
            g_ = 2 * n + r - 23
            if g_ >= 0:
                its = fill[g_]
                for it in its: A(it)
    stamp(10)
    A("s_nop 1")
    for it in send(1, sT1) + send(3, sT2): A(it)
    A(f"s_cmp_lg_u32 s{sWave}, s{qP}")
    A(f"s_cbranch_scc1 {L}no1")
    for i in range(20): A(f"ds_write_b128 v{vOwn}, {vr(ac+4*i,4)} offset:{i*1024}")
    A("s_waitcnt lgkmcnt(0)")
    A(f"{L}no1:")
    S, U, IN, XR, E, T = 64, 84, 104, 184, 204, 224
    A(f"s_mul_i32 s{sT0}, s{sWave}, 5120")
    A(f"v_add_u32 v{vOwn}, s{sT0}, v{vOwn}")
    A(f"s_mul_i32 s{sT0}, s{qP}, 30720")
    A(f"s_mul_i32 s{sT1}, s{sWave}, 2560")
    A(f"s_add_u32 s{sT0}, s{sT0}, s{sT1}")
    A(f"s_lshl_b32 s6, s{qP}, 3")
    A(f"s_lshr_b32 s6, {hex(0x24094218 >> 0 if False else (0x24 | 0x18 << 8 | 0x09 << 16 | 0x24 << 24))}, s6")
    for i in range(3):
        A(f"s_bfe_u32 s7, s6, {hex(0x20000 | 2*i)}")
        A(f"s_mul_i32 s7, s7, 10240")
        A(f"s_add_u32 s{qIn+i}, s{sT0}, s7")
    def inload(sl):
        b = IN + sl * 10
        A(f"buffer_load_dwordx4 {vr(b,4)}, v{vL16}, s[{qI}:{qI+3}], s{qIn+sl} offen sc1")
        A(f"buffer_load_dwordx4 {vr(b+4,4)}, v{vL16}, s[{qI}:{qI+3}], s{qIn+sl} offen offset:1024 sc1")
        A(f"buffer_load_dwordx2 {vr(b+8,2)}, v{vL8}, s[{qI}:{qI+3}], s{qIn+sl} offen offset:2048 sc1")
    A("s_barrier")
    stamp(11)
    for sl in range(3): inload(sl)
    for i in range(5): A(f"ds_read_b128 {vr(S+4*i,4)}, v{vOwn} offset:{i*1024}")
    for i in range(10):
        A(f"v_lshlrev_b32 v{XR+2*i}, 16, v{vX+i}")
        A(f"v_and_b32 v{XR+2*i+1}, 0xffff0000, v{vX+i}")
    def unpack(sl, dst):
        for i in range(10):
            A(f"v_lshlrev_b32 v{dst+2*i}, 16, v{IN+sl*10+i}")
            A(f"v_and_b32 v{dst+2*i+1}, 0xffff0000, v{IN+sl*10+i}")
    def addin(sl, dst):
        unpack(sl, T)
        for i in range(10): A(f"v_pk_add_f32 {vr(dst+2*i,2)}, {vr(dst+2*i,2)}, {vr(T+2*i,2)}")
    A(f"s_mov_b32 s{sT1}, 0")
    A(f"{L}sc:")
    A("s_waitcnt vmcnt(0)")
    for i in range(3): A(f"v_max3_u32 v{T+i}, v{IN+10*i}, v{IN+10*i+1}, v{IN+10*i+2}")
    for j in range(3):
        for i in range(3): A(f"v_max3_u32 v{T+i}, v{T+i}, v{IN+10*i+3+2*j}, v{IN+10*i+4+2*j}")
    A(f"v_max3_u32 v{T+3}, v{IN+9}, v{IN+19}, v{IN+29}")
    A(f"v_max3_u32 v{T}, v{T}, v{T+1}, v{T+2}")
    A(f"v_max_u32 v{T}, v{T}, v{T+3}")
    A(f"v_cmp_eq_u32 vcc, -1, v{T}")
    A("s_nop 3")
    A(f"s_cbranch_vccz {L}sr ; pollbr")
    A(f"s_add_u32 s{sT1}, s{sT1}, 1")
    A(f"s_cmp_ge_u32 s{sT1}, 0x40000")
    A(f"s_cbranch_scc1 {L}sr")
    for sl in range(3): inload(sl)
    A(f"s_branch {L}sc")
    A(f"{L}sr:")
    stamp(12)
    unpack(2, U)
    A(f"s_mov_b32 s{sT0}, {hex(f2u(-LOG2E))}")
    A(f"s_cmp_lg_u32 s{qP}, 3")
    A("s_waitcnt lgkmcnt(0)")
    A(f"s_cbranch_scc1 {L}ns")
    for i in range(20): A(f"v_swap_b32 v{S+i}, v{U+i}")
    A(f"{L}ns:")
    for i in range(20): A(f"v_mul_f32 v{E+i}, s{sT0}, v{U+i}")
    for i in range(20): A(f"v_exp_f32 v{E+i}, v{E+i}")
    addin(0, S)
    for i in range(20): A(f"v_add_f32 v{E+i}, 1.0, v{E+i}")
    for i in range(20): A(f"v_rcp_f32 v{E+i}, v{E+i}")
    addin(1, S)
    for i in range(10): A(f"v_pk_mul_f32 {vr(U+2*i,2)}, {vr(U+2*i,2)}, {vr(E+2*i,2)}")
    for i in range(10): A(f"v_pk_fma_f32 {vr(XR+2*i,2)}, {vr(S+2*i,2)}, {vr(U+2*i,2)}, {vr(XR+2*i,2)}")
    for i in range(10): A(f"v_cvt_pk_bf16_f32 v{vX+i}, v{XR+2*i}, v{XR+2*i+1}")
    for ct in range(5):
        A(f"buffer_store_dwordx2 {vr(vX+2*ct,2)}, v{vXo2}, s[{qO}:{qO+3}], s{qXo} offen offset:{ct*32}" + (" sc1" if "outsc1" in OPT else ""))
    stamp(13)

def gen_p1(A, name, stamps=False, code_bytes=32768, pf_rounds=2):
    head(A, name)
    L = "p1_"
    A("s_cmp_ge_u32 s2, 256")
    A(f"s_cbranch_scc1 {L}end")
    A("s_load_dwordx16 s[64:79], s[0:1], 0")
    A("s_load_dwordx8 s[80:87], s[0:1], 64")
    A(f"s_memrealtime s[{sNo}:{sNo+1}]")
    if stamps: A("s_memtime s[94:95]")
    def stamp(i, att=False):
        if not stamps: return
        if "attst" in OPT:
            if i >= 5 and not att: return
        elif att: return
        A(f"s_memtime s[96:97]")
        A(f"s_memrealtime s[98:99]")
        A("s_waitcnt lgkmcnt(0)")
        A(f"v_mov_b32 v{vTm+18}, s96"); A(f"v_mov_b32 v{vTm+19}, s98")
        A(f"s_lshl_b32 s96, s2, 2"); A(f"s_add_u32 s96, s96, s{sWave}"); A("s_lshl_b32 s96, s96, 7")
        A(f"v_mov_b32 v{vZero}, s96")
        if i == 0: A(f"v_mov_b32 v{vTm+16}, s94")
        A(f"s_add_u32 s96, s{pWs}, 0x3100000"); A(f"s_addc_u32 s97, s{pWs+1}, 0")
        A(f"global_store_dwordx2 v{vZero}, {vr(vTm+18,2)}, s[96:97] offset:{i*8}")
        if i == 0: A(f"global_store_dword v{vZero}, v{vTm+16}, s[96:97] offset:120")
    t = vTm
    COLD = []
    def cold(mark, lab, back):
        blk = A.lines[mark:]; del A.lines[mark:]
        COLD.extend([f"{lab}:"] + blk + ([f"s_branch {back}"] if back else []))
    def emit(items):
        for it in items:
            if "lds" in it and " m0," in A.lines[-1]: A("s_nop 0")
            A(it)
    A(f"v_and_b32 v{vLane}, 63, v0")
    A("v_lshrrev_b32 v0, 6, v0")
    A("s_and_b32 s6, s2, 7")
    A(f"v_readfirstlane_b32 s{sWave}, v0")
    A(f"s_lshr_b32 s{sT0}, s2, 3")
    A(f"s_lshr_b32 s{sRb}, s{sT0}, 2")
    A(f"s_and_b32 s{sT1}, s{sT0}, 3")
    if True:
        A("s_getpc_b64 s[4:5]")
        A(f"{L}pc:")
        A(f"s_lshl2_add_u32 s7, s{sT0}, s{sWave}")
        A(f"s_mul_i32 s7, s7, ({L}last-{L}pc)/1024")
        A("s_lshr_b32 s7, s7, 7")
        A("s_lshl_b32 s7, s7, 10")
        A(f"v_lshl_add_u32 v{vTm+4}, v{vLane}, 4, s7")
        A(f"global_load_dwordx4 {ar(240,4)}, v{vTm+4}, s[4:5]")
    A(f"s_lshl2_add_u32 s{sHead}, s6, s{sT1}")
    A(f"s_sub_u32 s{sT2}, s6, s{sRb}")
    A(f"s_add_u32 s{sT2}, s{sT2}, 3")
    A(f"s_and_b32 s{sT2}, s{sT2}, 7")
    A(f"s_mul_i32 s{sFb}, s6, 3")
    A(f"s_add_u32 s{sFb}, s{sFb}, s{sT1}")
    A(f"s_add_u32 s7, s{sT2}, 24")
    A(f"s_cmp_eq_u32 s{sT1}, 3")
    A(f"s_cselect_b32 s{sFb}, s7, s{sFb}")
    A(f"s_cmp_lt_u32 s{sFb}, 27")
    A(f"s_cselect_b32 s{sHasF}, 1, 0")
    A(f"s_sub_u32 s{sProd}, s{sFb}, 27")
    A(f"v_lshrrev_b32 v{t+7}, 3, v{vLane}")
    A(f"v_and_b32 v{t+6}, 7, v{vLane}")
    A(f"v_lshrrev_b32 v{t+12}, 4, v{vLane}")
    A(f"v_xor_b32 v{t+13}, v{t+6}, v{t+12}")
    A(f"v_lshlrev_b32 v{t+13}, 4, v{t+13}")
    A(f"s_movk_i32 s6, 1280")
    A(f"v_mad_u32_u24 v{vXd}, v{t+7}, s6, v{t+13}")
    A(f"v_xor_b32 v{t+13}, 64, v{vXd}")
    for j in range(1, 8):
        A(f"v_add_u32 v{vXd+j}, {j*10240-(j%4)*1024}, v{(t+13) if j&1 else vXd}")
    A(f"s_lshl2_add_u32 s6, s{sRb}, s{sWave}")
    A(f"s_mul_i32 s{sXo}, s6, {64*1280}")
    A(f"s_mul_i32 s{sKVo}, s6, {A_BLK}")
    A(f"s_lshl_b32 s{sM0X}, s{sWave}, 13")
    A(f"s_add_u32 s{sM0X}, s{sM0X}, {R1}")
    A(f"s_mov_b32 s{sTail}, 0")
    A(f"s_and_b32 s6, s{sWave}, 1")
    A(f"s_lshl_b32 s7, s6, 2")
    A(f"v_add_u32 v{t+13}, s7, v{t+12}")
    A(f"v_lshlrev_b32 v{t+13}, 1, v{t+13}")
    A(f"v_and_b32 v{t+14}, 15, v{vLane}")
    A(f"v_xor_b32 v{t+13}, v{t+13}, v{t+14}")
    A(f"v_lshlrev_b32 v{t+13}, 4, v{t+13}")
    A(f"s_lshl_b32 s7, s{sWave}, 3")
    A(f"v_add_u32 v{t+15}, s7, v{t+12}")
    A(f"v_lshl_add_u32 v{vWqd}, v{t+15}, 13, v{t+13}")
    A(f"v_add_u32 v{vWqd+1}, {4*8192-1024}, v{vWqd}")
    A(f"v_bfe_u32 v{t+13}, v{vLane}, 4, 1")
    A(f"s_lshl_b32 s6, s6, 1")
    A(f"v_add_u32 v{t+13}, s6, v{t+13}")
    A(f"v_lshlrev_b32 v{t+13}, 1, v{t+13}")
    A(f"v_xor_b32 v{t+13}, v{t+13}, v{t+6}")
    A(f"v_lshlrev_b32 v{t+13}, 4, v{t+13}")
    A(f"v_add_u32 v{t+15}, s7, v{t+7}")
    A(f"s_movk_i32 s6, 3456")
    A(f"v_mad_u32_u24 v{vW13d}, v{t+15}, s6, v{t+13}")
    A(f"s_lshl_b32 s{sWqo}, s{sHead}, 8")
    A(f"s_lshl_b32 s{sW13o}, s{sFb}, 7")
    A(f"s_mov_b32 s{sSlot}, 0")
    A(f"s_lshl_b32 s{sM0W}, s{sWave}, 12")
    A(f"s_add_u32 s{sM0W}, s{sM0W}, {R3}")
    for d, sz in ((sX, X_SIZE), (sWq, 640 * 8192)):
        A(f"s_mov_b32 s{d+2}, {sz}")
        A(f"s_mov_b32 s{d+3}, 0x20000")
    for (d, p, sh) in ((sW1, pW1, 2048), (sW3, pW3, 3072)):
        A(f"s_mul_i32 s{d+2}, s{sHasF}, {640*3456+sh}")
        A(f"s_mov_b32 s{d+3}, 0x20000")
    A("s_waitcnt lgkmcnt(0)")
    A(f"s_mov_b32 s{sC0}, s{sM0W}")
    for d, p in ((sX, pX), (sWq, pWq)):
        A(f"s_mov_b32 s{d}, s{p}")
        A(f"s_and_b32 s{d+1}, s{p+1}, 0xffff")
    for (d, p, sh) in ((sW1, pW1, 2048), (sW3, pW3, 3072)):
        A(f"s_sub_u32 s{d}, s{p}, {sh}")
        A(f"s_subb_u32 s{d+1}, s{p+1}, 0")
        A(f"s_and_b32 s{d+1}, s{d+1}, 0xffff")
    A(f"s_mov_b64 s[{sX2}:{sX2+1}], s[{sX}:{sX+1}]")
    A(f"s_mov_b64 s[{sX2+2}:{sX2+3}], s[{sX+2}:{sX+3}]")
    A(f"s_movk_i32 s{sM0d}, 4096")
    A(f"s_movk_i32 s{sXst}, 128")
    A(f"s_mov_b32 s{sM0t}, 0x18000")
    RAW, UNP = 64, 96
    A(f"v_mov_b32 v{t+5}, 0")
    A(f"s_cmp_ge_u32 s{sProd}, 4")
    A(f"s_cbranch_scc0 {L}c1")
    mk_ = len(A.lines)
    A(f"v_lshrrev_b32 v{t+5}, 2, v{vLane}")
    A(f"v_and_b32 v{t+13}, 3, v{vLane}")
    A(f"v_lshlrev_b32 v{t+13}, 4, v{t+13}")
    A(f"s_movk_i32 s6, 1280")
    A(f"v_mad_u32_u24 v{t+13}, v{t+5}, s6, v{t+13}")
    A(f"s_lshl2_add_u32 s6, s{sRb}, s{sProd}")
    A(f"s_lshl2_add_u32 s6, s6, s{sWave}")
    A(f"s_lshl_b32 s7, s6, 8")
    A(f"v_lshl_add_u32 v{t+5}, v{t+5}, 4, s7")
    A(f"s_mul_i32 s6, s6, {16*1280}")
    for i in range(20):
        A(f"buffer_load_dwordx4 {vr(RAW+4*i,4)}, v{t+13}, s[{sX}:{sX+3}], s6 offen offset:{i*64}")
    cold(mk_, f"{L}c1", f"{L}np1")
    A(f"{L}np1:")
    if "coop" in OPT:
        A(f"s_and_b32 s6, s{sHead}, 3")
        A(f"s_lshl2_add_u32 s6, s{sRb}, s6")
        A(f"s_lshl2_add_u32 s6, s6, s{sWave}")
        A(f"s_mul_i32 s6, s6, {16*1280}")
        A(f"v_and_b32 v{t+13}, 15, v{vLane}")
        A(f"v_mul_u32_u24 v{t+13}, 1280, v{t+13}")
        A(f"v_bfe_u32 v{t+14}, v{vLane}, 4, {COOPX}")
        A(f"v_lshl_add_u32 v{t+13}, v{t+14}, 7, v{t+13}")
        A(f"buffer_load_dword v0, v{t+13}, s[{sX}:{sX+3}], s6 offen")
        A(f"s_lshl2_add_u32 s7, s{sRb}, s{sWave}")
        A(f"v_and_b32 v{t+14}, 3, v{vLane}")
        A(f"v_lshl_add_u32 v{t+14}, v{t+14}, 5, s7")
        A(f"v_bfe_u32 v{t+15}, v{vLane}, 2, 1")
        A(f"v_lshlrev_b32 v{t+15}, 7, v{t+15}")
        A(f"v_lshl_add_u32 v{t+15}, v{t+14}, 13, v{t+15}")
        A(f"v_mul_u32_u24 v{t+14}, 3456, v{t+14}")
        A(f"buffer_load_dword v0, v{t+15}, s[{sWq}:{sWq+3}], s{sWqo} offen")
        A(f"buffer_load_dword v0, v{t+14}, s[{sW1}:{sW1+3}], s{sW13o} offen offset:2048")
        A(f"buffer_load_dword v0, v{t+14}, s[{sW3}:{sW3+3}], s{sW13o} offen offset:3072")
    emit(dma_w(True)); emit(dma_x(0))
    stamp(0)
    A(f"s_add_u32 s{sA}, s{pWs}, s{sKVo}")
    A(f"s_addc_u32 s{sA+1}, s{pWs+1}, 0")
    srd(A, sA, sA, sA + 1, A_BLK)
    A(f"s_add_u32 s{sWp}, s{pWs}, {W_OFF}")
    A(f"s_addc_u32 s{sWp+1}, s{pWs+1}, 0")
    srd(A, sWp, sWp, sWp + 1, W_SIZE)
    A(f"s_lshl2_add_u32 s{sT1}, s{sHead}, s{sWave}")
    A(f"s_mul_i32 s{sU}, s{sT1}, 10")
    A(f"s_lshl_b32 s{sT2}, s{sRb}, 1")
    A(f"s_add_u32 s{sU}, s{sU}, s{sT2}")
    A(f"s_mul_i32 s{sT1}, s{sT1}, 40960")
    A(f"s_lshl_b32 s{sT2}, s{sRb}, 8")
    A(f"s_add_u32 s{sPo}, s{sT1}, s{sT2}")
    srd(A, sSrc, pWo, pWo + 1, 4096 * 1280)
    A(f"s_cmp_lt_u32 s{sRb}, 5")
    A(f"s_cselect_b32 s{sSrc+2}, s{sSrc+2}, 0")
    A(f"s_cselect_b32 s{sU}, s{sU}, 2000")
    A(f"v_mov_b32 v{t+6}, 0")
    A(f"s_or_b32 s6, s2, s{sWave}")
    A(f"s_cbranch_scc1 {L}ntag")
    A(f"s_lshl_b64 s[6:7], s[{sNo}:{sNo+1}], 2")
    A(f"s_or_b32 s7, s7, 0x80000000")
    A(f"v_mov_b32 v{t+14}, s6")
    A(f"v_mov_b32 v{t+15}, s7")
    A("s_mov_b64 exec, 1")
    A(f"global_store_dwordx2 v{t+6}, {vr(t+14,2)}, s[{pDbg}:{pDbg+1}] offset:128 sc1")
    A("s_mov_b64 exec, -1")
    A(f"{L}ntag:")
    A(f"v_and_b32 v{t+14}, 15, v{vLane}")
    A(f"v_lshrrev_b32 v{t+13}, 1, v{t+14}")
    A(f"v_xor_b32 v{t+13}, v{t+13}, v{t+12}")
    A(f"v_lshlrev_b32 v{t+13}, 4, v{t+13}")
    A(f"v_lshl_add_u32 v{t+13}, v{t+14}, 7, v{t+13}")
    A(f"s_lshl_b32 s6, s{sWave}, 13")
    A(f"s_add_u32 s6, s6, {R1}")
    A(f"v_add_u32 v{vXr}, s6, v{t+13}")
    A(f"v_xor_b32 v{vXr+1}, 64, v{vXr}")
    A(f"v_lshlrev_b32 v{t+3}, 4, v{t+14}")
    A(f"v_bfe_u32 v{t+14}, v{vLane}, 2, 2")
    A(f"v_and_b32 v{t+15}, 3, v{vLane}")
    A(f"v_lshlrev_b32 v{t+15}, 3, v{t+15}")
    A(f"v_lshl_add_u32 v{t+15}, v{t+12}, 12, v{t+15}")
    A(f"v_add_u32 v{t+15}, {R3}, v{t+15}")
    A(f"v_bfe_u32 v{t+16}, v{vLane}, 4, 1")
    A(f"v_lshl_add_u32 v{t+13}, v{t+16}, 2, v{t+14}")
    A(f"s_lshl_b32 s6, s{sWave}, 1")
    A(f"v_xor_b32 v{t+13}, s6, v{t+13}")
    A(f"v_lshl_add_u32 v{t+13}, v{t+13}, 5, v{t+15}")
    A(f"v_lshl_add_u32 v{vWqr}, v{t+14}, 8, v{t+13}")
    for p in range(1, 8): A(f"v_xor_b32 v{vWqr+p}, {32*p}, v{vWqr}")
    A(f"v_lshrrev_b32 v{t+13}, 1, v{t+14}")
    A(f"v_lshl_add_u32 v{t+13}, v{t+16}, 1, v{t+13}")
    A(f"v_xor_b32 v{t+13}, s{sWave}, v{t+13}")
    A(f"v_lshl_add_u32 v{t+13}, v{t+13}, 5, v{t+15}")
    A(f"v_lshl_add_u32 v{vW13r}, v{t+14}, 7, v{t+13}")
    for p in range(1, 4): A(f"v_xor_b32 v{vW13r+p}, {32*p}, v{vW13r}")
    srd(A, sK, pK, pK + 1, 16777216)
    srd(A, sV, pV, pV + 1, 16777216)
    A(f"s_add_u32 s{sSt}, s{pWs}, {ST_OFF}")
    A(f"s_addc_u32 s{sSt+1}, s{pWs+1}, 0")
    srd(A, sSt, sSt, sSt + 1, 2048 * 16)
    A(f"s_lshl_b32 s6, s{sRb}, 2")
    A(f"v_mov_b32 v{t+2}, s6")
    A(f"s_movk_i32 s{sMask}, {EVMASK}")
    A(f"s_mov_b32 s{sD}, 0")
    A(f"s_cmp_ge_u32 s{sProd}, 4")
    A(f"s_cbranch_scc0 {L}c2")
    mk_ = len(A.lines)
    A("s_waitcnt vmcnt(8)")
    for i in range(79, -1, -1):
        A(f"v_and_b32 v{UNP+2*i+1}, 0xffff0000, v{RAW+i}")
        A(f"v_lshlrev_b32 v{UNP+2*i}, 16, v{RAW+i}")
    a = 64
    def red(first):
        for i in range(80):
            first(i)
        A(f"v_pk_add_f32 {vr(a,2)}, {vr(a,2)}, {vr(a+2,2)}")
        A(f"v_pk_add_f32 {vr(a+4,2)}, {vr(a+4,2)}, {vr(a+6,2)}")
        A(f"v_pk_add_f32 {vr(a,2)}, {vr(a,2)}, {vr(a+4,2)}")
        A(f"v_add_f32 v{a}, v{a}, v{a+1}")
        for qp in ("[1,0,3,2]", "[2,3,0,1]"):
            A("s_nop 1")
            A(f"v_add_f32_dpp v{a}, v{a}, v{a} quad_perm:{qp} row_mask:0xf bank_mask:0xf")
    def f1(i):
        d = vr(a + 2 * (i % 4), 2)
        if i < 4: A(f"v_pk_add_f32 {d}, {vr(UNP+2*i,2)}, {vr(UNP+2*i+8,2)}")
        elif i >= 8: A(f"v_pk_add_f32 {d}, {d}, {vr(UNP+2*i,2)}")
    red(f1)
    o = 72
    A(f"v_mul_f32 v{o}, {hex(f2u(-1.0/640))}, v{a}")
    for i in range(80): A(f"v_pk_add_f32 {vr(UNP+2*i,2)}, {vr(UNP+2*i,2)}, {vr(o,2)} op_sel_hi:[1,0]")
    def f2(i):
        d = vr(a + 2 * (i % 4), 2); x_ = vr(UNP + 2 * i, 2)
        if i < 4: A(f"v_pk_mul_f32 {d}, {x_}, {x_}")
        else: A(f"v_pk_fma_f32 {d}, {x_}, {x_}, {d}")
    red(f2)
    A(f"v_mov_b32 v{o+3}, {hex(f2u(1e-5))}")
    A(f"v_fmac_f32 v{o+3}, {hex(f2u(1.0/640))}, v{a}")
    A(f"v_mov_b32 v{o+2}, v{o+3}")
    A(f"v_rsq_f32 v{o+1}, v{o+3}")
    A("s_mov_b32 exec_lo, 0x11111111")
    A("s_mov_b32 exec_hi, 0x11111111")
    A(f"buffer_store_dwordx4 {vr(o,4)}, v{t+5}, s[{sSt}:{sSt+3}], 0 offen sc1 ; @put S")
    A("s_mov_b64 exec, -1")
    A("s_waitcnt vmcnt(0)")
    cold(mk_, f"{L}c2", f"{L}np2")
    A(f"{L}np2:")
    if "dummy" in OPT:
        A(f"v_lshlrev_b32 v{t+13}, 4, v{vLane}")
        for i in range(16): A(f"buffer_load_dwordx4 {vr(64+4*i,4)}, v{t+13}, s[{sWq}:{sWq+3}], 0 offen offset:{(i%4)*1024}")
        for i in range(128): A(f"v_mov_b32 v{128+i}, 0")
        A("s_waitcnt vmcnt(0)")
        A("s_mov_b32 s6, 0")
        A(f"{L}dmy:")
        for i in range(64): mf16(A, vr(128 + 4 * (i % 32), 4), vr(64 + 4 * (i // 4 % 12), 4), vr(112 + 4 * (i % 4), 4))
        A("s_add_u32 s6, s6, 1")
        A("s_cmp_lt_u32 s6, 40")
        A(f"s_cbranch_scc1 {L}dmy")
        A("s_nop 7")
    if "idle" in OPT:
        A("s_mov_b32 s6, 0")
        A(f"{L}dmy:")
        for i in range(64): A("s_nop 15")
        A("s_add_u32 s6, s6, 1")
        A("s_cmp_lt_u32 s6, 40")
        A(f"s_cbranch_scc1 {L}dmy")
    kv_dma_voff(A, vQ, vQ + 4, 1)
    A(f"s_mov_b32 s{sT1}, {R0}")
    kv_addr(A, sT1, only=(vQ + 5, vQ + 6))
    wp_addr(A, 13, reg=R4, n=1, dst=vQ + 7)
    wp_src_voff(A, vQ + 8, 1)
    A(f"v_mov_b32 v{vKb}, v{vQ+5}")
    A(f"v_mov_b32 v{vVb}, v{vQ+6}")
    A(f"v_mov_b32 v{vWpB}, v{vQ+7}")
    A(f"v_mov_b32 v{vWs}, v{vQ+8}")
    A(f"v_lshrrev_b32 v{t+7}, 4, v{vLane}")
    A(f"v_lshlrev_b32 v{t+7}, 4, v{t+7}")
    A(f"s_lshl_b32 s6, s{sWave}, 7")
    A(f"s_add_u32 s6, s6, {CS}")
    A(f"v_add_u32 v{t+8}, s6, v{t+7}")
    A(f"s_lshl_b32 s6, s{sWave}, 6")
    A(f"s_add_u32 s6, s6, {CS+512}")
    A(f"v_add_u32 v{t+9}, s6, v{t+7}")
    A(f"v_lshlrev_b32 v{t+10}, 4, v{vLane}")
    A(f"s_lshl_b32 s6, s{sWave}, 12")
    A(f"s_lshl_b32 s{sKVo}, s{sHead}, 19")
    A(f"s_add_u32 s{sKVo}, s{sKVo}, s6")
    A(f"s_add_u32 s{sKVo}, s{sKVo}, {1536*256}")
    if "tlbw" in OPT:
        A("s_mov_b64 exec, 1")
        A(f"buffer_load_dword v0, v{t+6}, s[{sK}:{sK+3}], s{sKVo} offen")
        A(f"buffer_load_dword v0, v{t+6}, s[{sV}:{sV+3}], s{sKVo} offen")
        A(f"buffer_load_dword v0, v{t+6}, s[{sSrc}:{sSrc+3}], s{sPo} offen")
        A("s_mov_b64 exec, -1")
    if "tlbs" in OPT:
        A(f"s_lshl_b32 s6, s{sHead}, 14")
        A(f"s_lshl_b32 s7, s{sFb}, 13")
        A(f"s_add_u32 s7, s7, {128*4096}")
        A("s_mov_b64 exec, 1")
        A(f"buffer_store_dword v{t+6}, v{t+6}, s[{sA}:{sA+3}], s6 offen sc1")
        A(f"buffer_store_dword v{t+6}, v{t+6}, s[{sA}:{sA+3}], s7 offen sc1")
        A("s_mov_b64 exec, -1")
    for i in range(4): A(f"v_mov_b32 v{vSt+i}, 0")
    A(f"v_mov_b32 v{t+1}, 0x3f803f80")
    for i in range(4): A(f"v_accvgpr_write_b32 a{aOne+i}, v{t+1}")
    z = vr(vSt, 4)
    for i in range(8): mf32(A, vr(vAcc + 16 * i, 16), z, z, "0")
    for i in range(9): mf32(A, ar(16 * i, 16), z, z, "0")
    emit(dma_x(1)); emit(dma_w(True)); emit(dma_x(0)); emit(dma_w(True))
    A(f"s_waitcnt vmcnt({15 if 'tlbw' in OPT else 14 if 'tlbs' in OPT else 12})")
    A("s_barrier")
    A(f"s_lshl2_add_u32 s6, s{sProd}, s{sWave}")
    A(f"s_and_b32 s6, s6, 0xfffffff3")
    A(f"s_cbranch_scc1 {L}np3")
    A(f"v_mov_b32 v{t+1}, 1")
    A(f"v_add_u32 v{t+7}, s{sProd}, v{t+2}")
    A(f"s_mov_b64 exec, 1")
    A(f"global_store_byte v{t+7}, v{t+1}, s[{pDbg}:{pDbg+1}] sc1")
    A(f"s_mov_b64 exec, -1")
    A(f"{L}np3:")
    stamp(1)
    for rt in range(4): A(xread(0, 0, rt))
    A(f"s_cmp_eq_u32 s{sHasF}, 0")
    fr = frag_list(True)
    for f in range(3):
        for sec in range(2): A(wread(fr[f], 0, sec, f))
    A("s_waitcnt lgkmcnt(6)")
    if FINE: A("s_mov_b32 s7, 0")
    A(f"s_cbranch_scc1 {L}gn")
    gemm_loop(A, True, L + "gf")
    mk_ = len(A.lines)
    gemm_events(A, L + "gf")
    gemm_events(A, L + "gn")
    gemm_loop(A, False, L + "gn")
    cold(mk_, f"{L}c3", f"{L}gdone")
    A(f"{L}gdone:")
    if FINE:
        A(f"s_lshl_b32 s96, s2, 2"); A(f"s_add_u32 s96, s96, s{sWave}"); A("s_lshl_b32 s96, s96, 10")
        A(f"v_lshl_add_u32 v{vTm+12}, v{vLane}, 2, s96")
        A(f"s_add_u32 s100, s{pWs}, 0x3200000"); A(f"s_addc_u32 s101, s{pWs+1}, 0")
        A(f"global_store_dword v{vTm+12}, v{vFin}, s[100:101]")
        A(f"global_store_dword v{vTm+12}, v{vFin+1}, s[100:101] offset:256")
        A(f"global_store_dword v{vTm+12}, v{vFin-1}, s[100:101] offset:512")
    stamp(2)
    A("s_mov_b32 exec_lo, 0x00010001")
    A("s_mov_b32 exec_hi, 0x00010001")
    A(f"ds_write_b128 v{t+8}, {ar(aCs,4)}")
    A(f"ds_write_b128 v{t+8}, {ar(aCs+4,4)} offset:64")
    A(f"ds_write_b128 v{t+9}, {ar(aCs+8,4)}")
    A(f"ds_write_b128 v{t+9}, {ar(aCs+12,4)} offset:256")
    A("s_mov_b64 exec, -1")
    A(f"s_mov_b32 s{sKVo}, s{sXo}")
    A(f"s_mov_b32 s{sKVm}, s{sM0X}")
    A(f"s_and_b32 s{qP}, s2, 3")
    for rt in range(4):
        q = vSt + 4 * rt
        A(f"v_mul_f32 v{q+3}, {hex(f2u(LOG2E/128**0.5))}, v{q+1}")
        A(f"v_mul_f32 v{q+1}, {hex(f2u(-LOG2E))}, v{q+1}")
    z = vr(vTm + 4, 4)
    for i in range(4): A(f"v_mov_b32 v{vTm+4+i}, 0")
    A("s_waitcnt lgkmcnt(0)")
    A("s_barrier")
    class Grp(list):
        def __call__(self, x): self.append(x)
    IDS = Grp()
    IDS(f"s_lshr_b32 s{qCb}, s2, 6")
    IDS(f"s_bfe_u32 s{qRb}, s2, 0x30003")
    IDS(f"s_and_b32 s6, s2, 4\ns_lshl_b32 s6, s6, 1")
    IDS(f"s_add_u32 s{qRb}, s{qRb}, s6")
    IDS(f"s_lshl2_add_u32 s{qG}, s{qRb}, s{qCb}")
    IDS(f"s_mul_i32 s6, s{qG}, {IB_G}")
    IDS(f"s_add_u32 s6, s6, {IB_OFF}")
    IDS(f"s_add_u32 s{qI}, s{pWs}, s6\ns_addc_u32 s{qI+1}, s{pWs+1}, 0")
    srd(IDS, qI, qI, qI + 1, IB_G)
    kvadv = [f"s_add_u32 s{sKVo}, s{sKVo}, 16384\ns_add_u32 s{sKVm}, s{sKVm}, 32768"]
    def kvq(): return kv_dma() + kvadv
    csb = [14, 18, 22]
    lq = LQ()
    def csread_q(p):
        A(f"v_xor_b32 v{t+11}, {64*p}, v{t+8}")
        A(f"ds_read_b128 {vr(csb[p%3],4)}, v{t+11}"); lq.issue(("c", p))
    csread_q(0); csread_q(1)
    wo_dma = []
    for su in range(2):
        wo_dma.append(f"s_lshl_b32 s6, s{sWave}, 13\ns_add_u32 m0, s6, {R4+su*4096}")
        wo_dma += [f"buffer_load_dwordx4 v{vWs}, s[{sSrc}:{sSrc+3}], s{sPo} offen offset:{j*1024} lds ; @put P\n" +
                   (f"s_add_u32 s{sPo}, s{sPo}, 9216" if j < 3 else f"s_sub_u32 s{sPo}, s{sPo}, {3*9216-128}") for j in range(4)]
    kq = spread([f"s_add_u32 m0, s{sKVm}, 16384"] + kv_dma()[6:] + kvadv + wo_dma[:5 * SPL[0]], 24)
    for p in range(8):
        if p + 2 < 8: csread_q(p + 2)
        lq.wait(A, [("c", p)])
        c = csb[p % 3]
        for rt in range(4):
            d = vAcc + (p * 4 + rt) * 4; q = vSt + 4 * rt
            for h in range(2):
                A(f"v_pk_fma_f32 {vr(d+2*h,2)}, {vr(c+2*h,2)}, {vr(q,2)}, {vr(d+2*h,2)} op_sel_hi:[1,0,1]")
        mf32(A, ar(aO + 16 * p, 16), z, z, "0")
        emit(kq[3*p])
        for rt in range(4):
            d = vAcc + (p * 4 + rt) * 4; q = vSt + 4 * rt
            for h in range(2):
                A(f"v_pk_mul_f32 {vr(d+2*h,2)}, {vr(d+2*h,2)}, {vr(q+2,2)} op_sel:[0,1]")
        emit(kq[3*p+1])
        for rt in range(4):
            d = vAcc + (p * 4 + rt) * 4
            f = vQ + ((rt // 2) * 8 + p) * 4 + (rt & 1) * 2
            for h in range(2): A(f"v_cvt_pk_bf16_f32 v{f+h}, v{d+2*h}, v{d+2*h+1}")
        emit(kq[3*p+2])
        if p > 0:
            for qt in range(2):
                f = vQ + (qt * 8 + p - 1) * 4
                for h in range(2): A(f"v_permlane16_swap_b32 v{f+h}, v{f+2+h}")
    A("s_nop 0")
    for qt in range(2):
        f = vQ + (qt * 8 + 7) * 4
        for h in range(2): A(f"v_permlane16_swap_b32 v{f+h}, v{f+2+h}")
    stamp(3)
    A(f"s_cmp_eq_u32 s{sHasF}, 0")
    A(f"s_cbranch_scc1 {L}noffn")
    def hst(pi, rt): return f"buffer_store_dwordx4 {vr(vAcc+96+pi*16+rt*4,4)}, v{t+10}, s[{sA}:{sA+3}], s{qT0+pi} offen offset:{rt*1024}" + ("" if "wbl2" in OPT else " sc1") + " ; @put H @put HH"
    T = vAcc; H = vAcc + 96; C = vAcc + 48
    for p in range(4):
        A(f"v_xor_b32 v{t+11}, {64*p}, v{t+9}")
        A(f"ds_read_b128 {vr(C+8*p,4)}, v{t+11}")
        A(f"ds_read_b128 {vr(C+8*p+4,4)}, v{t+11} offset:256")
    A(f"s_lshr_b32 s7, s{sWave}, 1")
    A(f"s_lshl_b32 s6, s{sFb}, 1")
    A(f"s_add_u32 s6, s6, 128")
    A(f"s_add_u32 s{sT0}, s6, s7")
    A(f"s_xor_b32 s7, s7, 1")
    A(f"s_add_u32 s{sT1}, s6, s7")
    A(f"s_lshl_b32 s{qT0}, s{sT0}, 12")
    A(f"s_lshl_b32 s{qT1}, s{sT1}, 12")
    A("s_waitcnt lgkmcnt(0)")
    ffq = wo_dma[5 * SPL[0]:] + kv_dma()[:5 * SPL[1]]
    kq = spread(ffq, 24) if ffq else [[]] * 24
    for p in range(4):
        for r2 in range(2):
            g_ = 3 * (p * 2 + r2)
            G = [(2 * r2 + i, T + 12 * i + 24 * ((p * 2 + r2) & 1)) for i in range(2)]
            for rt, b in G:
                for i in range(4): A(f"v_accvgpr_read_b32 v{b+i}, a{aG+(p*4+rt)*4+i}")
                for i in range(4): A(f"v_accvgpr_read_b32 v{b+4+i}, a{aUp+(p*4+rt)*4+i}")
            emit(kq[g_])
            for rt, b in G:
                for h in range(4):
                    A(f"v_pk_fma_f32 {vr(b+2*h,2)}, {vr(C+8*p+2*h,2)}, {vr(vSt+4*rt,2)}, {vr(b+2*h,2)} op_sel_hi:[1,0,1]")
            for rt, b in G:
                for h in range(2): A(f"v_pk_mul_f32 {vr(b+8+2*h,2)}, {vr(b+2*h,2)}, {vr(vSt+4*rt,2)} op_sel:[0,1]")
            for rt, b in G:
                for i in range(4): A(f"v_exp_f32 v{b+8+i}, v{b+8+i}")
            emit(kq[g_+1])
            for rt, b in G:
                for h in range(2): A(f"v_pk_mul_f32 {vr(b+2*h,2)}, {vr(b+2*h,2)}, {vr(b+4+2*h,2)}")
            for rt, b in G:
                for h in range(2):
                    A(f"v_pk_fma_f32 {vr(b+8+2*h,2)}, {vr(b+8+2*h,2)}, {vr(vSt+4*rt+2,2)}, {vr(vSt+4*rt+2,2)} op_sel_hi:[1,0,0]")
            for rt, b in G:
                for i in range(4): A(f"v_rcp_f32 v{b+8+i}, v{b+8+i}")
            emit(kq[g_+2])
            for n, (rt, b) in enumerate(G):
                for h in range(2): A(f"v_pk_mul_f32 {vr(b+2*h,2)}, {vr(b+2*h,2)}, {vr(b+8+2*h,2)}")
            for rt, b in G:
                for h in range(2): A(f"v_cvt_pk_bf16_f32 v{H+(p//2)*16+rt*4+(p&1)*2+h}, v{b+2*h}, v{b+2*h+1}")
        if p & 1:
            pi = p // 2
            A(f"s_bitcmp1_b32 s{sWave}, 0")
            A(f"s_cbranch_scc0 {L}nsw{pi}")
            for rt in range(4):
                for h in range(2): A(f"v_swap_b32 v{H+pi*16+rt*4+h}, v{H+pi*16+rt*4+2+h}")
            A(f"{L}nsw{pi}:")
    mk_ = len(A.lines)
    emit(ffq)
    A(f"s_mov_b32 s{qT0}, 0x1000000")
    A(f"s_mov_b32 s{qT1}, 0x1000000")
    A("s_barrier")
    srd(A, qA, pW2, pW2 + 1, 1728 * 1280)
    A(f"v_mov_b32 v{vAcc+8}, v{vKb}")
    A(f"v_mov_b32 v{vAcc+9}, v{vVb}")
    A(f"v_mov_b32 v{vAcc+10}, v{vWpB}")
    wp_src_voff(A, vAcc)
    wp_addr(A, 13)
    A(f"v_mov_b32 v{vKb}, v{vAcc+8}")
    A(f"v_mov_b32 v{vVb}, v{vAcc+9}")
    A(f"v_mov_b32 v{vWpB}, v{vAcc+10}")
    A(f"s_mul_i32 s{sT2}, s{sRb}, 5")
    A(f"s_add_u32 s{sT2}, s{sT2}, s{sProd}")
    A(f"s_lshl2_add_u32 s{sT2}, s{sT2}, s{sWave}")
    A(f"{L}w2j:")
    A(f"s_mul_hi_u32 s{sT0}, s{sT2}, 0x33333334")
    A(f"s_mul_i32 s{sT1}, s{sT0}, 5")
    A(f"s_sub_u32 s{sT1}, s{sT2}, s{sT1}")
    A(f"s_mul_i32 s7, s{sT0}, 40960")
    A(f"s_lshl_b32 s6, s{sT1}, 8")
    A(f"s_add_u32 s{sT0}, s7, s6")
    A(f"s_lshl_b32 s6, s{sT1}, 13")
    A(f"s_add_u32 s7, s7, s6")
    A(f"s_add_u32 s{sT1}, s7, {128*40960}")
    A(f"s_lshl_b32 s6, s{sWave}, 13")
    for su in range(2):
        A(f"s_add_u32 m0, s6, {R3+su*4096}")
        A("s_nop 0")
        for j in range(4): A(f"buffer_load_dwordx4 v{vAcc+4*su+j}, s[{qA}:{qA+3}], s{sT0} offen offset:{j*1024} lds")
    A("s_waitcnt vmcnt(0)")
    wp_reads(A, 4096)
    A("s_waitcnt lgkmcnt(0)")
    wp_stores(A, sT1)
    A(f"s_add_u32 s{sT2}, s{sT2}, 160")
    A(f"s_cmp_lt_u32 s{sT2}, 270")
    A(f"s_cbranch_scc1 {L}w2j")
    cold(mk_, f"{L}noffn", f"{L}ffnd")
    A(f"{L}ffnd:")
    for i in range(4): IDS(f"v_mov_b32 v{vOnes+i}, -1")
    IDS(f"s_mul_i32 s6, s{qP}, 30720\ns_mul_i32 s7, s{sWave}, 7680")
    IDS(f"s_min_u32 s7, s7, 22528\ns_add_u32 s{sSen}, s6, s7")
    IDS(f"s_lshl_b32 s{sWpO}, s{sU}, 12")
    IDS(f"v_add_u32 v{vL16+1}, 4096, v{vL16}")
    IDS(f"s_lshl_b32 s6, s{sRb}, 5\ns_add_u32 s7, s6, s{sHead}\ns_lshl_b32 s7, s7, 7")
    IDS(f"v_mov_b32 v{vFo}, s7")
    IDS(f"s_cmp_eq_u32 s{sWave}, 0\ns_cselect_b32 s{sTail}, 0, 0x8000")
    srd(IDS, qX, pFl, pFl + 1, 0x8000)
    IDS(f"s_add_u32 s6, s{sNo}, 1")
    IDS(f"v_mov_b32 v{vFv}, s6")
    IDS(f"v_mov_b32 v{vFv+1}, s{sNo+1}")
    stamp(4)
    for p in range(8): A(f"v_xor_b32 v{vKr+p}, {32*p}, v{vKb}")
    for dt in range(4): A(f"v_xor_b32 v{vVr+dt}, {64*dt}, v{vVb}")
    A(f"v_mov_b32 v{vL}, 0")
    A(f"v_mov_b32 v{vL+1}, 0")
    A(f"s_waitcnt vmcnt(20)")
    A("s_barrier")
    stamp(5, True)
    lq = LQ()
    for p in range(3):
        A(kread(p, 0, p)); lq.issue(("f", 16 + p))
    ex0 = {33 + 4 * i: [hst(1, i)] for i in range(4)}
    rest = kvq() if SPL[1] == 0 else [f"s_add_u32 m0, s{sKVm}, 16384"] + kvq()[6:]
    ex0 = {32 + i: x for i, x in enumerate(spread(rest, 16))}
    attn_seg(A, lq, 2, ex0, sm_lo=0, sm_hi=0, look=[2])
    for p in range(3):
        A(kread(p, 1, p)); lq.issue(("f", p))
    A("s_nop 7")
    for e in range(10):
        for x in sm_exp(0, e): A(x)
        if e:
            for x in sm_post(0, e - 1): A(x)
    assert XP or lq.q == [("f", 0), ("f", 1), ("f", 2)]
    def put(ex, slots, items):
        for sl, its in zip(slots, spread(items, len(slots))): ex.setdefault(sl, []).extend(its)
    PA = Asm()
    PA(f"s_lshl_b32 s6, s{sRb}, 5")
    PA(f"v_and_b32 v{vAp}, 3, v{vLane}")
    PA(f"v_lshlrev_b32 v{vAp}, 2, v{vAp}")
    PA(f"s_and_b32 s7, s{sHead}, 0x13")
    PA(f"s_add_u32 s7, s7, s6")
    PA(f"v_add_lshl_u32 v{vAp}, v{vAp}, s7, 7")
    PA(f"s_lshr_b32 s7, s{qRb}, 1")
    PA(f"s_lshl_b32 s6, s7, 5")
    PA(f"s_lshl_b32 s{sT0}, s{sWave}, 3")
    PA(f"s_add_u32 s6, s6, s{sT0}")
    PA(f"v_add_lshl_u32 v{vAa}, v{vLane}, s6, 7")
    PA(f"v_cmp_gt_u32 vcc, 8, v{vLane}")
    PA(f"v_and_b32 v{vAb}, 15, v{vLane}")
    PA(f"v_lshlrev_b32 v{vAb}, 2, v{vAb}")
    PA(f"s_lshl_b32 s6, s{sWave}, 6")
    PA(f"s_add_u32 s6, s6, 3")
    PA(f"v_add_lshl_u32 v{vAb}, v{vAb}, s6, 7")
    PA(f"v_cndmask_b32 v{vAa}, v{vAb}, v{vAa}, vcc")
    PA(f"v_bfe_u32 v{vAo}, v{vLane}, 4, 1")
    PA(f"v_add_u32 v{vAo}, s{qCb}, v{vAo}")
    PA(f"s_mul_i32 s6, s{qP}, 21")
    PA(f"s_add_u32 s6, s6, 1")
    PA(f"s_lshr_b32 s6, s6, 1")
    PA(f"v_and_b32 v{vPb}, 15, v{vLane}")
    PA(f"v_min_u32 v{vPb}, 10, v{vPb}")
    PA(f"v_add_u32 v{vPb}, s6, v{vPb}")
    PA(f"v_cmp_gt_u32 vcc, 16, v{vLane}")
    PA(f"s_lshl_b32 s7, s7, 5")
    PA(f"v_lshl_add_u32 v{vAo}, v{vAo}, 5, v{vPb}")
    PA(f"v_lshlrev_b32 v{vAo}, 7, v{vAo}")
    PA(f"v_add_lshl_u32 v{vAb}, v{vPb}, s7, 7")
    PA(f"v_cndmask_b32 v{vAb}, v{vAp}, v{vAb}, vcc")
    odd = lambda a, b: [x for x in range(a, b) if x & 1]
    def wo_job(ex, f, s0, s1):
        r = aWq + 4 * (f % 3)
        ex.setdefault(s0 - 1, []).append(f"v_xor_b32 v{vWpA}, {((f&3)<<5)|((f&4)<<10)}, v{vWpB}")
        ex[(s0, "ds")] = [f"ds_read_b64_tr_b16 {ar(r,2)}, v{vWpA} ; @need P 0"]
        ex[(s0 + 2, "ds")] = [f"ds_read_b64_tr_b16 {ar(r+2,2)}, v{vWpA} offset:2048"]
        if "nowo" not in XP: ex.setdefault(s1, []).append(f"buffer_store_dwordx4 {ar(r,4)}, v{vL16+f//4}, s[{sWp}:{sWp+3}], s{sWpO} offen offset:{(f&3)*1024} sc1")
    def mark(f): return "s_nop 0" if "nosent" in XP else f"buffer_store_dwordx4 {vr(vOnes,4)}, v{vL16+f//4}, s[{qI}:{qI+3}], s{sSen} offen offset:{(f&3)*1024} sc1 ; @put H"
    stamp(6, True)
    BW = {0: 10, 1: 13, 2: 13, 3: 13, 4: 13, 5: 13}
    bg = [("h", i) for i in range(8)] + [("w", i) for i in range(8)] + [("m", i) for i in range(8)]
    BG = [bg[0:3], bg[3:6], bg[6:9], bg[9:12], bg[12:15], bg[15:19], bg[19:22], bg[22:24]]
    for t_ in range(8):
        ex = {}
        delta = hex((-98304) & 0xffffffff) if t_ == 3 else "0x8000"
        if t_ < 7:
            for p in range(8):
                ex.setdefault(max(2 * (p - 3) + 1, 1) if p >= 3 else 2 * p, []).append(f"v_add_u32 v{vKr+p}, {delta}, v{vKr+p}")
            for dt in range(4):
                ex.setdefault(2 * (28 + dt - 3) + 2, []).append(f"v_add_u32 v{vVr+dt}, {delta}, v{vVr+dt}")
        if t_ < 5:
            for sl, it in zip([32, 33, 37, 41, 45, 47, 49, 53, 57, 61], kv_dma()): ex.setdefault(sl, []).append(it)
            ex.setdefault(62, []).append(f"s_add_u32 s{sKVo}, s{sKVo}, 16384")
            ex.setdefault(59, []).append(f"s_add_u32 s{sKVm}, s{sKVm}, {hex((-98304) & 0xffffffff) if t_ == 0 else 32768}")
        if t_ < 6: ex[(26, "pre")] = [f"s_waitcnt vmcnt({BW[t_]})", "s_barrier ; @need KV 8 @need Xa 0" + (" @need HH 0" if t_ == 4 else "")]
        for j, (kind, f) in enumerate(BG[t_]):
            sl = (3, 19, 51, 39)[j]
            if kind == "h": put(ex, [sl], [hst(f // 4, f % 4)])
            elif kind == "m": put(ex, [sl], [mark(f)])
            else: wo_job(ex, f, (1, 7, 35)[j], (13, 21, 51)[j])
        if t_ == 0:
            for sl, its in zip([x for x in range(11, 52) if x not in (26, 32, 47)], spread(IDS, 38)): ex.setdefault((sl, "post"), []).extend(its)
        if t_ == 4:
            put(ex, [39], [f"buffer_store_dwordx2 {vr(vFv,2)}, v{vFo}, s[{qX}:{qX+3}], s{sTail} offen sc1"])
        if t_ == 5:
            for sl, its in zip([x for x in range(10, 47) if x != 26], spread(PA.lines, 36)): ex.setdefault((sl, "post"), []).extend(its)
            put(ex, [x for x in range(47, 64) if x != 51], q_setup())
        elif t_ == 6:
            put(ex, [1], [f"global_load_dwordx2 {vr(vPa,2)}, v{vAa}, s[{pFl}:{pFl+1}] sc1"])
            B_ = Asm(); B_("s_waitcnt vmcnt(2)"); B_(f"s_cmp_lg_u32 s{qP}, 3"); B_(f"s_cbranch_scc1 {L}w1r")
            flag_wait(B_, f"{L}w1", 1, [(vPa, vAa)]); B_("s_barrier")
            ex[(26, "pre")] = B_.lines
            put(ex, [x for x in odd(31, 64) if x != 51], q_loads(0) + q_loads(1)[:6])
        elif t_ == 7:
            ex[(26, "pre")] = ["s_waitcnt vmcnt(30)", "s_barrier"]
            ex.setdefault(24, []).append(f"v_add_u32 v{vFv}, 1, v{vFv}")
            put(ex, [28], [f"buffer_store_dwordx2 {vr(vFv,2)}, v{vFo}, s[{qX}:{qX+3}], s{sTail} offen sc1"])
            put(ex, [1, 5, 7, 9, 11, 13, 15, 17, 21, 23, 25, 27, 29, 31], q_loads(1)[6:] + q_loads(2)[:7])
        if t_ >= 1: stamp(t_ + 6, True)
        attn_seg(A, lq, 0, ex)
        attn_seg(A, lq, 1, ex, look=(True if t_ < 7 else [1]))
        if t_ < 7:
            attn_seg(A, lq, 2, ex)
            attn_seg(A, lq, 3, ex)
    ex = {}
    put(ex, [33, 37, 41, 45, 49, 53, 57], q_loads(2)[7:])
    attn_seg(A, lq, 2, ex, mfma=False, look=[3])
    attn_seg(A, lq, 3, ex, sm_hi=54, look=[3])
    stamp(5)
    if "fine2" in XP:
        A(f"s_lshl_b32 s96, s2, 2"); A(f"s_add_u32 s96, s96, s{sWave}"); A("s_lshl_b32 s96, s96, 10")
        A(f"v_lshl_add_u32 v227, v{vLane}, 2, s96")
        A(f"s_add_u32 s96, s{pWs}, 0x3200000"); A(f"s_addc_u32 s97, s{pWs+1}, 0")
        for i in range(3): A(f"global_store_dword v227, v{224+i}, s[96:97] offset:{256*i}")
    A(f"v_mov_b32 v{t}, v{vL}")
    A(f"v_mov_b32 v{t+1}, v{vL+1}")
    A(f"v_bfe_u32 v{t+2}, v{vLane}, 4, 1")
    A(f"v_lshrrev_b32 v{t+3}, 5, v{vLane}")
    A(f"v_permlane32_swap_b32 v{t}, v{vL}")
    A(f"v_permlane32_swap_b32 v{t+1}, v{vL+1}")
    A(f"v_lshlrev_b32 v{t+3}, 8, v{t+3}")
    A(f"v_add_f32 v{vL}, v{vL}, v{t}")
    A(f"v_add_f32 v{vL+1}, v{vL+1}, v{t+1}")
    A(f"v_lshl_add_u32 v{t+3}, v{t+2}, 10, v{t+3}")
    A(f"v_and_b32 v{t+2}, 15, v{vLane}")
    A(f"v_lshl_add_u32 v{vOo}, v{t+2}, 4, v{t+3}")
    A(f"v_mov_b32 v{t+8}, {hex(f2u(2.0**-40))}")
    A(f"v_mov_b32 v{t+9}, {hex(f2u(2.0**40))}")
    A(f"v_cmp_gt_f32 s[{sE0}:{sE0+1}], v{vL}, v{t+8}")
    A(f"v_cmp_lt_f32 s[{sE0+2}:{sE0+3}], v{vL}, v{t+9}")
    A(f"v_cmp_gt_f32 s[4:5], v{vL+1}, v{t+8}")
    A(f"v_cmp_lt_f32 s[6:7], v{vL+1}, v{t+9}")
    A(f"v_rcp_f32 v{t}, v{vL}")
    A(f"v_rcp_f32 v{t+1}, v{vL+1}")
    A("s_nop 1")
    A(f"s_and_b64 s[{sE0}:{sE0+1}], s[{sE0}:{sE0+1}], s[{sE0+2}:{sE0+3}]")
    A(f"s_and_b64 s[4:5], s[4:5], s[6:7]")
    A(f"s_and_b64 s[4:5], s[4:5], s[{sE0}:{sE0+1}]")
    A(f"s_cmp_eq_u64 s[4:5], exec")
    if not XP: A(f"s_cbranch_scc0 {L}slow ; slowbr")
    A(f"{L}oep:")
    A(f"s_lshl_b32 s6, s{sHead}, 14")
    n = 0
    for dt in range(4):
        for qt in range(2):
            b = vS + (n % 4) * 16; pk = vP + (n % 4) * 8; n += 1
            for i in range(16): A(f"v_accvgpr_read_b32 v{b+i}, a{aO+(qt*4+dt)*16+i}")
            for i in range(8):
                A(f"v_pk_mul_f32 {vr(b+2*i,2)}, {vr(b+2*i,2)}, {vr(t,2)} " + ("op_sel_hi:[1,0]" if qt == 0 else "op_sel:[0,1]"))
            for i in range(8): A(f"v_cvt_pk_bf16_f32 v{pk+i}, v{b+2*i}, v{b+2*i+1}")
            for j in range(2):
                A(f"buffer_store_dwordx4 {vr(pk+4*j,4)}, v{vOo}, s[{sA}:{sA+3}], s6 offen offset:{qt*2048+j*512} sc1 ; @put H")
        if dt < 3: A("s_add_u32 s6, s6, 4096")
    stamp(6); stamp(7)
    gemm2(A, L, emit, stamp)
    A(f"{L}end:")
    A("s_endpgm")
    A.lines += COLD
    A(f"{L}slow:")
    A("s_waitcnt vmcnt(0) lgkmcnt(0)")
    srd(A, sK, pK, pK + 1, 16777216)
    srd(A, sV, pV, pV + 1, 16777216)
    kv_dma_voff(A, vKd, vVd, 1)
    A(f"s_lshl_b32 s{sT1}, s{sWave}, 13")
    A(f"s_add_u32 s{sT1}, s{sT1}, {R2}")
    kv_addr(A, sT1)
    for dt in range(4): A(f"v_add_u32 v{vVr+dt}, {R4-R2-16384}, v{vVr+dt}")
    vM = vTm + 6
    A(f"v_mov_b32 v{vM}, 0xff800000")
    A(f"v_mov_b32 v{vM+1}, 0xff800000")
    A(f"v_mov_b32 v{vL}, 0")
    A(f"v_mov_b32 v{vL+1}, 0")
    for i in range(4): A(f"v_mov_b32 v{vTm+12+i}, 0")
    A("s_nop 1")
    for i in range(8): mf32(A, ar(aO + 16 * i, 16), vr(vTm + 12, 4), vr(vTm + 12, 4), "0")
    A(f"s_mov_b32 s{sT}, 0")
    A(f"{L}sl:")
    A(f"s_and_b32 s{sT0}, s{sT}, 15")
    A(f"s_lshl_b32 s{sT0}, s{sT0}, 13")
    A(f"s_lshl_b32 s{sKVo}, s{sHead}, 19")
    A(f"s_add_u32 s{sKVo}, s{sKVo}, s{sT0}")
    A(f"s_add_u32 s{sKVo}, s{sKVo}, {1536*256}")
    for hf in range(2):
        A(f"s_add_u32 m0, s{sT1}, {hf*4096}")
        A("s_nop 0")
        for j in range(4): A(f"buffer_load_dwordx4 v{vKd+j}, s[{sK}:{sK+3}], s{sKVo} offen offset:{j*1024} lds")
        A(f"s_add_u32 m0, s{sT1}, {R4-R2+hf*4096}")
        A("s_nop 0")
        for j in range(4): A(f"buffer_load_dwordx4 v{vVd}, s[{sV}:{sV+3}], s{sKVo} offen offset:{j*1024} lds")
        if hf == 0: A(f"s_add_u32 s{sKVo}, s{sKVo}, 4096")
    A("s_waitcnt vmcnt(0)")
    for p in range(8):
        A(kread(p, 0, p % 4))
        A("s_waitcnt lgkmcnt(0)")
        for qt in range(2): mf32(A, vr(vS + qt * 16, 16), vr(vF + (p % 4) * 4, 4), vr(vQ + (qt * 8 + p) * 4, 4), "0" if p == 0 else None)
    A("s_nop 11")
    A(f"s_cmp_ge_u32 s{sT}, 16")
    A(f"s_cbranch_scc1 {L}sl2")
    for qt in range(2):
        for i in range(8): A(f"v_max3_f32 v{vM+qt}, v{vS+qt*16+2*i}, v{vS+qt*16+2*i+1}, v{vM+qt}")
    A(f"s_cmp_lg_u32 s{sT}, 15")
    A(f"s_cbranch_scc1 {L}sl3")
    A(f"v_mov_b32 v{vM+2}, v{vM}")
    A(f"v_mov_b32 v{vM+3}, v{vM+1}")
    A("s_nop 1")
    A(f"v_permlane32_swap_b32 v{vM+2}, v{vM}")
    A(f"v_permlane32_swap_b32 v{vM+3}, v{vM+1}")
    A(f"v_max_f32 v{vM}, v{vM}, v{vM+2}")
    A(f"v_max_f32 v{vM+1}, v{vM+1}, v{vM+3}")
    A(f"s_branch {L}sl3")
    A(f"{L}sl2:")
    for e in range(32):
        r, qt, ks = sm_reg(0, e)
        A(f"v_sub_f32 v{r}, v{r}, v{vM+qt}")
        A(f"v_exp_f32 v{r}, v{r}")
        A("s_nop 0")
        for x in sm_post(0, e): A(x)
    for i in range(8):
        for sec in range(2): A(vread(i // 4, i % 4, 0, sec, i % 4))
        A("s_waitcnt lgkmcnt(0)")
        for qt in range(2): mf32(A, ar(aO + (qt * 4 + i % 4) * 16, 16), vr(vF + (i % 4) * 4, 4), vr(vP + (qt * 2 + i // 4) * 4, 4))
    A(f"{L}sl3:")
    A(f"s_add_u32 s{sT}, s{sT}, 1")
    A(f"s_cmp_lt_u32 s{sT}, 32")
    A(f"s_cbranch_scc1 {L}sl")
    A(f"v_mov_b32 v{t}, v{vL}")
    A(f"v_mov_b32 v{t+1}, v{vL+1}")
    A("s_nop 1")
    A(f"v_permlane32_swap_b32 v{t}, v{vL}")
    A(f"v_permlane32_swap_b32 v{t+1}, v{vL+1}")
    A(f"v_add_f32 v{vL}, v{vL}, v{t}")
    A(f"v_add_f32 v{vL+1}, v{vL+1}, v{t+1}")
    A(f"v_rcp_f32 v{t}, v{vL}")
    A(f"v_rcp_f32 v{t+1}, v{vL+1}")
    A("s_nop 7")
    A(f"s_branch {L}oep")
    A(f"{L}last:")
    kd(A, name, 512, 256)

def checks(A, entry):
    if XP: return
    nb = check_hazards(A.lines)
    tot = 0
    for wg in (0, 5, 6, 31, 24, 28, 255):
        for w in (0, 1, 3):
            for slow in (0, 1):
                def hk(x, S):
                    if x.opn == "v_readfirstlane_b32" and "tag" not in x.text:
                        S[sWave] = w
                    if "slowbr" in x.text: return slow
                    if "pollbr" in x.text: return 1
                p, c = check_waits(A.lines, entry, {2: wg}, hk)
                tot += p
    print("hazards:", nb, "waits:", tot, c)

def build(fn, stamps=False):
    HDR = open("cdna_kernels/" + NAME + ".s.ref").read().split("; Override")[0]
    A = Asm()
    A(HDR)
    A(f"; @launch grid=(256,1,1) block=(256,1,1) lds={P1_LDS}")
    A('.amdgcn_target "amdgcn-amd-amdhsa--gfx950"')
    A(".text")
    gen_p1(A, NAME + "_kernel", stamps=stamps)
    checks(A, NAME + "_kernel")
    if "ub" in XP:
        A.lines = [l.replace("0x402b1600", "0x422c1600").replace("0x5b402b16", "0x5b422c16") for l in A.lines]
        out = []
        pend = 0
        for i, l in enumerate(A.lines):
            if l == f"s_cmp_eq_u32 s{qP}, 3": l = "s_cmp_eq_u32 0, 0"
            out.append(l)
        A.lines = out
    if any(x.startswith("g_") for x in XP):
        i0 = A.lines.index("p1_gf:"); i1 = A.lines.index("p1_gdone:")
        body = A.lines[i0:i1]
        if "g_nodma" in XP: body = [l for l in body if " lds" not in l]
        if "g_nobar" in XP: body = [l for l in body if not l.startswith("s_barrier")]
        if "g_nowait" in XP: body = [l for l in body if not l.startswith("s_waitcnt lgkmcnt")]
        if "g_noread" in XP: body = [l for l in body if not l.startswith("ds_read")]
        if "g_nop" in XP: body = [("s_nop 0" if " lds" in l else l) for l in body]
        A.lines[i0:i1] = body
    if "hplain" in XP: A.lines = [l.replace(" sc1", "") if ("store" in l and f"s[{sA}:{sA+3}], s6 " not in l and f"s[{sA}:{sA+3}]" in l) else l for l in A.lines]
    if "oplain" in XP: A.lines = [l.replace(" sc1", "") if ("store" in l and f"s[{sA}:{sA+3}], s6 " in l) else l for l in A.lines]
    if "iplain" in XP: A.lines = [l.replace(" sc1", "") if ("store" in l and f"s[{qI}:{qI+3}], s{sT0}" in l) else l for l in A.lines]
    if "nt" in XP: A.lines = [l.replace(" sc1", " sc1 nt") if ("buffer_store" in l) else l for l in A.lines]
    if "sc01" in XP: A.lines = [l.replace(" sc1", " sc0 sc1") if ("buffer_store" in l) else l for l in A.lines]
    open(fn, "w").write(A.text())
if __name__ == "__main__":
    build("fu.s")
    build("fu_st.s", stamps=True)
```

```python
from asmlib import *
from common import *

P1_LDS = 163840
R0, R1, R2, R3, R4 = 0, 32768, 65536, 98304, 131072
CS = R3
TAILBIT = 0x30000
ROT = False
TLBW = True
FLAG = 'byte'
FINE = False
EVMASK = 0x180
vFin = 60
XP = set()

class LQ:
    def __init__(s): s.q = []
    def issue(s, tag): s.q.append(tag)
    def wait(s, A, tags):
        idx = max([i for i, t in enumerate(s.q) if t in tags], default=-1)
        if idx < 0: return
        n = len(s.q) - 1 - idx
        assert n <= 15
        A(f"s_waitcnt lgkmcnt({n})")
        s.q = s.q[idx + 1:]
    def clear(s): s.q = []

sX, sWq, sW1, sW3, sK, sV, sA, sWp, sSrc, sSt = 8, 12, 16, 20, 24, 28, 32, 36, 40, 44
sWave, sHead, sRb, sFb, sHasF = 48, 49, 50, 51, 52
sXo, sWqo, sW13o, sM0X, sM0W, sD, sTail, sSlot = 53, 54, 55, 56, 57, 58, 59, 60
sT0, sT1, sT2 = 61, 62, 63
pX, pK, pV, pWq, pWo, pBx, pW1, pW3, pW2, pOut, pDbg, pWs = range(64, 88, 2)
sKVo, sKVm, sDelta, sT, sU, sMask, sXb, sC0 = 88, 89, 90, 91, 92, 93, 94, 95
sX2, sM0d, sXst, sM0t, sProd, sPo = 76, 74, 75, 3, 4, 5
sE0 = 96
vLane = 1
vXd, vWqd, vW13d, vXr, vWqr, vW13r = 2, 10, 12, 13, 15, 23
vZero = 27
vSt = 28
vTm = 44
vQ = 64
vAcc = 128
aG, aUp, aCs, aXf, aWf, aOne, aWp = 0, 64, 128, 144, 176, 192, 196
vKr, vVr, vKd, vVd, vL, vOo = 2, 10, 14, 18, 22, 24
vS, vP, vF = 128, 192, 208
aO = 128
sNo = 100
pFl = 84
qA, qW, qX, qO, qI = 8, 12, 16, 20, 44
qP, qG, qAo, qWo, qWm, qN, qAs, qWs = 53, 54, 55, 56, 57, 58, 51, 60
qAe, qWe, qNl, qSo, qXo, qRb, qCb, qT0, qT1, qIn = 74, 75, 3, 93, 94, 76, 77, 78, 79, 24
vFo, vFv, vPa, vPb, vAa, vAb, vAo, vAp = 25, 28, 30, 32, 34, 35, 36, 37
vL16, vWr2, vXo2, vL8, vOwn = 54, 2, 4, 5, 6
aA2, aW2, aWq = 0, 64, 64
RING2 = 81920
TOUCH = 0
SPL = (1, 1)
OPT = set()
vTch, sTch = 26, 92
vOnes = 40
vWpB, vWpA = 38, 39
sWpO, sSen = 5, 4


def mf16(A, d, a, b, c=None):
    A(f"v_mfma_f32_16x16x32_bf16 {d}, {a}, {b}, {d if c is None else c}")
def mf32(A, d, a, b, c=None):
    A(f"v_mfma_f32_32x32x16_bf16 {d}, {a}, {b}, {d if c is None else c}")

def spread(items, nslots):
    out = [[] for _ in range(nslots)]
    n = len(items)
    for i, it in enumerate(items):
        out[min(nslots - 1, (i * nslots) // n)].append(it)
    return out

def frag_list(ffn):
    fr = [("Q", p) for p in range(8)]
    if ffn:
        for p in range(4): fr += [("G", p), ("U", p)]
    return fr

def wread(fr, k, sec, buf):
    c, p = fr
    if c == "Q": ad, off = vWqr + p, sec * 1024
    else: ad, off = vW13r + p, (2048 if c == "G" else 3072) + sec * 512
    return f"ds_read_b64_tr_b16 {ar(aWf+buf*4+2*sec,2)}, v{ad} offset:{off + k*16384}"

def xread(s, st, rt):
    return f"ds_read_b128 {ar(aXf+st*16+rt*4,4)}, v{vXr+s} offset:{rt*2048}"

def dma_w(ffn, force=False):
    it = [f"s_max_u32 m0, s{sM0W}, s{sTail}",
          f"buffer_load_dwordx4 v{vWqd}, s[{sWq}:{sWq+3}], s{sWqo} offen lds ; @put W",
          f"buffer_load_dwordx4 v{vWqd+1}, s[{sWq}:{sWq+3}], s{sWqo} offen offset:1024 lds ; @put W"]
    if ffn or force:
        it += [f"buffer_load_dwordx4 v{vW13d}, s[{sW1}:{sW1+3}], s{sW13o} offen offset:2048 lds ; @put W",
               f"buffer_load_dwordx4 v{vW13d}, s[{sW3}:{sW3+3}], s{sW13o} offen offset:3072 lds ; @put W"]
    it += [f"s_add_u32 s{sWqo}, s{sWqo}, {32*8192}"]
    if ffn or force: it += [f"s_add_u32 s{sW13o}, s{sW13o}, {32*3456}"]
    it += [f"s_add_u32 s{sSlot}, s{sSlot}, 16384\ns_and_b32 s{sSlot}, s{sSlot}, 0xffff",
           f"s_add_u32 s{sM0W}, s{sSlot}, s{sC0}"]
    return it

def dma_x(half):
    if half == 0: it = [f"s_mov_b32 m0, s{sM0X}"]
    else: it = [f"s_add_u32 m0, s{sM0X}, s{sM0d}"]
    sd = sX if half == 0 else sX2
    for j in range(4):
        it.append(f"buffer_load_dwordx4 v{vXd+4*half+j}, s[{sd}:{sd+3}], s{sXo} offen offset:{j*1024} lds")
    if half: it += [f"s_add_u32 s{sXo}, s{sXo}, s{sXst}\ns_xor_b32 s{sM0X}, s{sM0X}, s{sM0t}"]
    return it

def fine(A):
    A("s_memtime s[98:99]"); A("s_waitcnt lgkmcnt(0)")
    A("s_mov_b32 m0, s7")
    A(f"v_writelane_b32 v{vFin}, s96, m0")
    A(f"v_writelane_b32 v{vFin+1}, s100, m0")
    A(f"v_writelane_b32 v{vFin-1}, s98, m0")
    A("s_add_u32 s7, s7, 1")

def gemm_loop(A, ffn, L):
    fr = frag_list(ffn); nf = len(fr)
    nw = 4 if ffn else 2
    ones = {("Q", 0): 0, ("Q", 1): 1, ("G", 0): 2, ("U", 0): 3}
    lq = LQ()
    for f in range(3):
        lq.issue(("w", f)); lq.issue(("w", f))
    A(".p2align 6")
    A(f"{L}:")
    for k in range(2):
        if k == 1:
            A(f"s_bitcmp1_b32 s{sMask}, s{sD}")
            A(f"s_cbranch_scc1 {L}_ev")
            A(f"{L}_evret:")
        if k == 0:
            items = [("x", rt) for rt in range(4)] + dma_x(1) + dma_w(ffn)
            slots = spread(items, 2 * (nf - 2))
            tog = {2: [f"v_xor_b32 v{vXr}, 0x18000, v{vXr}"]}
        else:
            items = dma_x(0) + dma_w(ffn) + [f"s_add_u32 s{sD}, s{sD}, 1"]
            slots = spread(items, 2 * (nf - 5))
            slots += [[f"s_cmp_eq_u32 s{sD}, 10\ns_cbranch_scc1 {L}_nw\ns_waitcnt vmcnt({2*nw+4})\n{L}_nw:"],
                      [("x", 0)], [("x", 1)], [("x", 2)], [("x", 3)], []]
            tog = {0: [f"v_xor_b32 v{vXr+1}, 0x18000, v{vXr+1}"]}
            for f, (c, p) in enumerate(fr):
                if c == "G": continue
                reg = vWqr + p if c == "Q" else vW13r + p
                tog.setdefault(max(f - 3, -1) + 1, []).append(f"v_xor_b32 v{reg}, 0x38000, v{reg}")
        for f in range(nf):
            c, p = fr[f]
            lq.wait(A, [("w", f)] + ([("x", k)] if f == 0 else []))
            buf = f % 4
            for rt in range(4):
                r_ = rt if f % 2 == 0 else 3 - rt
                if c == "Q": d = vr(vAcc + (p * 4 + r_) * 4, 4)
                else: d = ar((aG if c == "G" else aUp) + (p * 4 + r_) * 4, 4)
                mf16(A, d, ar(aWf + buf * 4, 4), ar(aXf + k * 16 + r_ * 4, 4))
                if f + 3 < nf and rt < 2:
                    A(wread(fr[f + 3], k, rt, (f + 3) % 4)); lq.issue(("w", f + 3))
                if f == nf - 2:
                    A(wread(fr[rt // 2], 1 - k, rt % 2, (rt // 2) % 4)); lq.issue(("w", rt // 2))
                if f == nf - 1 and rt < 2:
                    A(wread(fr[2], 1 - k, rt, 2)); lq.issue(("w", 2))
                if rt >= 2 and f < nf - 2:
                    for it in slots[2 * f + rt - 2]:
                        if isinstance(it, tuple):
                            A(xread(1 - k, 1 - k, it[1]) + (" ; @chkx" if k == 1 else "")); lq.issue(("x", 1 - k))
                        else:
                            if "lds" in it and " m0," in A.lines[-1]: A("s_nop 0")
                            A(it)
                if rt == 3:
                    for t in tog.get(f, []): A(t)
            if fr[f] in ones:
                mf16(A, ar(aCs + ones[fr[f]] * 4, 4), ar(aWf + buf * 4, 4), ar(aOne, 4))
            if f == nf - 3:
                n = 2 * nw + 8
                if FINE:
                    A("s_memtime s[96:97]"); A("s_waitcnt lgkmcnt(0)")
                A(f"s_waitcnt vmcnt({n}) lgkmcnt(0)")
                lq.clear()
                if FINE:
                    A("s_memtime s[100:101]"); A("s_waitcnt lgkmcnt(0)")
                A(f"s_barrier")
                if FINE: fine(A)
    A(f"s_cmp_lt_u32 s{sD}, 10")
    A(f"s_cbranch_scc1 {L}")
    assert lq.q == [("w", 0), ("w", 0), ("w", 1), ("w", 1), ("w", 2), ("w", 2)], lq.q

def kv_dma_voff(A, kd_, vd_, nv=4):
    t = vTm
    A(f"v_lshrrev_b32 v{t+12}, 4, v{vLane}")
    A(f"v_and_b32 v{t+14}, 15, v{vLane}")
    A(f"v_xor_b32 v{t+13}, v{t+14}, v{t+12}")
    A(f"v_lshlrev_b32 v{t+13}, 4, v{t+13}")
    A(f"v_lshl_add_u32 v{kd_}, v{t+12}, 8, v{t+13}")
    for j in range(1, 4): A(f"v_xor_b32 v{kd_+j}, {64*j}, v{kd_}")
    A(f"v_lshlrev_b32 v{t+13}, 2, v{t+12}")
    A(f"v_xor_b32 v{t+13}, v{t+13}, v{t+14}")
    A(f"v_lshlrev_b32 v{t+13}, 4, v{t+13}")
    A(f"v_lshl_add_u32 v{vd_}, v{t+12}, 8, v{t+13}")
    for j in range(1, nv): A(f"v_mov_b32 v{vd_+j}, v{vd_}")

def gemm_events(A, L):
    A(f"{L}_ev:")
    A(f"s_cmp_eq_u32 s{sD}, 8")
    A(f"s_cbranch_scc1 {L}_ev8")
    A(f"global_load_dword v{vTm}, v{vTm+2}, s[{pDbg}:{pDbg+1}] sc1")
    A(f"global_load_dwordx2 {vr(vTm+4,2)}, v{vTm+6}, s[{pDbg}:{pDbg+1}] offset:128 sc1")
    A(f"s_branch {L}_evret")
    A(f"{L}_ev8:")
    A(f"s_mov_b32 s{sTail}, {TAILBIT}")
    for d in (sWq, sW1, sW3): A(f"s_mov_b32 s{d+2}, 0")
    for d, s_ in ((sX, sK), (sX2, sV)):
        A(f"s_mov_b64 s[{d}:{d+1}], s[{s_}:{s_+1}]")
        A(f"s_mov_b64 s[{d+2}:{d+3}], s[{s_+2}:{s_+3}]")
    for j in range(8): A(f"v_mov_b32 v{vXd+j}, v{vQ+min(j,4)}")
    A(f"s_lshl_b32 s{sM0X}, s{sWave}, 12")
    A(f"s_mov_b32 s{sXo}, s{sKVo}")
    A(f"s_movk_i32 s{sM0d}, 16384")
    A(f"s_movk_i32 s{sXst}, 16384")
    A(f"s_mov_b32 s{sM0t}, 0x8000")
    A(f"s_mov_b32 s{sT1}, 0")
    A(f"s_waitcnt vmcnt(12)")
    A(f"{L}_chk:")
    A(f"v_cmp_ne_u32 vcc, 0x01010101, v{vTm}")
    A(f"v_cmp_eq_u32 s[6:7], 0, v{vTm+5}")
    A("s_nop 3")
    A(f"s_or_b64 s[6:7], s[6:7], vcc")
    A(f"s_cbranch_scc0 {L}_rdy ; pollbr")
    A(f"s_add_u32 s{sT1}, s{sT1}, 1")
    A(f"s_cmp_ge_u32 s{sT1}, 0x40000")
    A(f"s_cbranch_scc1 {L}_rdy")
    A("s_sleep 2")
    A(f"global_load_dword v{vTm}, v{vTm+2}, s[{pDbg}:{pDbg+1}] sc1")
    A(f"global_load_dwordx2 {vr(vTm+4,2)}, v{vTm+6}, s[{pDbg}:{pDbg+1}] offset:128 sc1")
    A("s_waitcnt vmcnt(0)")
    A(f"s_branch {L}_chk")
    A(f"{L}_rdy:")
    A(f"v_readfirstlane_b32 s{sNo}, v{vTm+4} ; tag")
    A(f"v_readfirstlane_b32 s{sNo+1}, v{vTm+5} ; tag")
    A(f"s_add_u32 s{pFl}, s{pWs}, {FL_OFF}")
    A(f"s_addc_u32 s{pFl+1}, s{pWs+1}, 0")
    A(f"s_lshl2_add_u32 s{sT0}, s{sRb}, s{sWave}")
    A(f"s_lshl_b32 s{sT0}, s{sT0}, 10")
    for rt in range(4):
        A(f"buffer_load_dwordx4 {vr(vSt+4*rt,4)}, v{vTm+3}, s[{sSt}:{sSt+3}], s{sT0} offen offset:{rt*256} sc1")
    A(f"s_branch {L}_evret")

def kv_addr(A, base_expr_sgpr):
    t0, t1, t2, t3 = vTm + 12, vTm + 13, vTm + 14, vTm + 15
    A(f"v_and_b32 v{t0}, 31, v{vLane}")
    A(f"v_lshrrev_b32 v{t1}, 5, v{vLane}")
    A(f"v_and_b32 v{t2}, 15, v{vLane}")
    A(f"v_xor_b32 v{t2}, v{t2}, v{t1}")
    A(f"s_lshl_b32 s{sT0}, s{sWave}, 2")
    A(f"v_xor_b32 v{t2}, s{sT0}, v{t2}")
    A(f"v_lshlrev_b32 v{t2}, 4, v{t2}")
    A(f"v_lshl_add_u32 v{t2}, v{t0}, 8, v{t2}")
    A(f"v_add_u32 v{vKr}, s{base_expr_sgpr}, v{t2}")
    for p in range(1, 8): A(f"v_xor_b32 v{vKr+p}, {32*p}, v{vKr}")
    A(f"v_bfe_u32 v{t0}, v{vLane}, 2, 2")
    A(f"v_lshl_add_u32 v{t2}, v{t1}, 2, v{t0}")
    A(f"v_lshlrev_b32 v{t2}, 8, v{t2}")
    A(f"v_lshl_add_u32 v{t2}, v{t0}, 6, v{t2}")
    A(f"v_bfe_u32 v{t3}, v{vLane}, 1, 1")
    A(f"v_lshl_add_u32 v{t2}, v{t3}, 5, v{t2}")
    A(f"v_bfe_u32 v{t3}, v{vLane}, 4, 1")
    A(f"v_lshl_add_u32 v{t2}, v{t3}, 4, v{t2}")
    A(f"v_and_b32 v{t3}, 1, v{vLane}")
    A(f"v_lshl_add_u32 v{t2}, v{t3}, 3, v{t2}")
    A(f"s_add_u32 s{sT0}, s{base_expr_sgpr}, 16384")
    A(f"v_add_u32 v{vVr}, s{sT0}, v{t2}")
    for dt in range(1, 4): A(f"v_xor_b32 v{vVr+dt}, {64*dt}, v{vVr}")

def kv_dma():
    it = [f"s_mov_b32 m0, s{sKVm}"]
    for j in range(4):
        it.append(f"buffer_load_dwordx4 v{vKd+j}, s[{sK}:{sK+3}], s{sKVo} offen offset:{j*1024} lds")
    it.append("s_add_u32 m0, m0, 16384")
    for j in range(4):
        it.append(f"buffer_load_dwordx4 v{vVd+j}, s[{sV}:{sV+3}], s{sKVo} offen offset:{j*1024} lds")
    return it

def kread(p, tile, buf):
    return f"ds_read_b128 {vr(vF+buf*4,4)}, v{vKr+p} offset:{tile*8192}"
def vread(ks, dt, tile, sec, buf):
    return f"ds_read_b64_tr_b16 {vr(vF+buf*4+2*sec,2)}, v{vVr+dt} offset:{(32*tile+16*ks+8*sec)*256}"

def sm_reg(buf, e):
    qt = (e >> 3) & 1; ks = e >> 4
    return vS + (buf * 2 + qt) * 16 + ks * 8 + (e & 7), qt, ks
def sm_exp(buf, e):
    r, _, _ = sm_reg(buf, e)
    if "noexp" in XP: return []
    if "movexp" in XP: return [f"v_mov_b32 v{r}, v{r}"]
    return [f"v_exp_f32 v{r}, v{r}"]
def sm_post(buf, e):
    r, qt, ks = sm_reg(buf, e)
    o = [f"v_add_f32 v{vL+qt}, v{vL+qt}, v{r}"]
    if "noadd" in XP: o = []
    if e & 1 and "nocvt" not in XP: o.append(f"v_cvt_pk_bf16_f32 v{vP+(qt*2+ks)*4+((e&7)>>1)}, v{r-1}, v{r}")
    return o

def attn_seg(A, lq, seg, extra, mfma=True, sm_lo=0, sm_hi=64, look=True):
    def rd(phi, part):
        s = (phi // 8) % 4; i = phi % 8; buf = phi % 4
        if s in (0, 2):
            return kread(i, 1 if s == 0 else 0, buf) if part == 0 else None
        return vread(i // 4, i % 4, 0 if s == 1 else 1, part, buf)
    for i in range(8):
        phi = seg * 8 + i
        if mfma and "nowait" not in XP: lq.wait(A, [("f", phi)])
        for qt in range(2):
            slot = seg * 16 + 2 * i + qt
            if mfma:
                if seg in (0, 2):
                    sb = 1 if seg == 0 else 0
                    d = vr(vS + (sb * 2 + qt) * 16, 16)
                    mf32(A, d, vr(vF + (phi % 4) * 4, 4), vr(vQ + (qt * 8 + i) * 4, 4), "0" if i == 0 else None)
                else:
                    ks, dt = i // 4, i % 4
                    mf32(A, ar(aO + (qt * 4 + dt) * 16, 16), vr(vF + (phi % 4) * 4, 4), vr(vP + (qt * 2 + ks) * 4, 4))
            for it in extra.get((slot, "pre"), []): A(it)
            nphi = (phi + 3) % 32
            nseg = nphi // 8
            if look is True or nseg in look:
                r = rd(nphi, qt)
                if r and "noread" not in XP: A(r); lq.issue(("f", nphi))
            for it in extra.get((slot, "ds"), []):
                A(it); lq.issue(("side", 0))
            for it in extra.get(slot, []):
                if it.startswith("v_"): continue
                if "lds" in it and " m0," in A.lines[-1]: A("s_nop 0")
                A(it)
            for (buf, start) in ((1, 22), (0, 54)):
                e = (slot - start) % 64
                if e < 32 and (buf, "exp") in sm_ok(slot, sm_lo, sm_hi, buf, e):
                    for x in sm_exp(buf, e): A(x)
            for (buf, start) in ((1, 22), (0, 54)):
                e = (slot - start - 1) % 64
                if e < 32 and (buf, "exp") in sm_ok((slot - 1) % 64, sm_lo, sm_hi, buf, e):
                    for x in sm_post(buf, e): A(x)
            for it in extra.get(slot, []):
                if it.startswith("v_"): A(it)
            for it in extra.get((slot, "post"), []): A(it)
def sm_ok(slot, lo, hi, buf, e):
    return {(buf, "exp")} if (lo <= slot < hi) else set()

def wp_src_voff(A, d):
    t = vTm
    A(f"v_lshrrev_b32 v{t+12}, 4, v{vLane}")
    A(f"v_lshlrev_b32 v{t+12}, 1, v{t+12}")
    A(f"v_and_b32 v{t+13}, 7, v{vLane}")
    A(f"v_xor_b32 v{t+12}, v{t+12}, v{t+13}")
    A(f"v_lshlrev_b32 v{t+12}, 4, v{t+12}")
    A(f"v_lshrrev_b32 v{t+13}, 3, v{vLane}")
    A(f"v_mul_u32_u24 v{t+13}, 1280, v{t+13}")
    A(f"v_add_u32 v{d}, v{t+12}, v{t+13}")
    for j in range(1, 8): A(f"v_add_u32 v{d+j}, {(j%4)*9216 + (j//4)*128}, v{d}")

def wp_addr(A, sh, note="", reg=R3, n=4, dst=None):
    t = vTm
    A(f"v_bfe_u32 v{t+14}, v{vLane}, 2, 2")
    A(f"v_bfe_u32 v{t+16}, v{vLane}, 4, 1")
    A(f"v_lshl_add_u32 v{t+14}, v{t+16}, 2, v{t+14}")
    A(f"v_lshrrev_b32 v{t+13}, 1, v{t+14}")
    A(f"v_lshlrev_b32 v{t+13}, 5, v{t+13}")
    A(f"v_lshl_add_u32 v{t+13}, v{t+14}, 7, v{t+13}")
    A(f"v_lshrrev_b32 v{t+15}, 5, v{vLane}")
    A(f"v_lshl_add_u32 v{t+13}, v{t+15}, 10, v{t+13}")
    A(f"v_and_b32 v{t+15}, 3, v{vLane}")
    A(f"v_lshl_add_u32 v{t+13}, v{t+15}, 3, v{t+13}")
    A(f"s_lshl_b32 s6, s{sWave}, {sh}")
    A(f"s_add_u32 s6, s6, {reg}")
    A(f"v_add_u32 v{dst or t+4}, s6, v{t+13}{note}")
    for i4 in range(1, n): A(f"v_xor_b32 v{t+4+i4}, {32*i4}, v{t+4}")
def wp_reads(A, stride):
    for su in range(2):
        for i4 in range(4):
            for sec in range(2):
                A(f"ds_read_b64_tr_b16 {ar(aWq+(su*4+i4)*4+2*sec,2)}, v{vTm+4+i4} offset:{su*stride+sec*2048}")
def wp_stores(A, so):
    for su in range(2):
        for i4 in range(4):
            A(f"buffer_store_dwordx4 {ar(aWq+(su*4+i4)*4,4)}, v{vL16}, s[{sWp}:{sWp+3}], s{so} offen offset:{i4*1024} sc1")
        if su == 0: A(f"s_add_u32 s{so}, s{so}, 4096")

def set_flag(A, phase, lab, cls="H"):
    A(f"s_cmp_lg_u32 s{sWave}, 0")
    A(f"s_cbranch_scc1 {lab}")
    A(f"s_add_u32 s6, s{sNo}, {phase}")
    A(f"v_mov_b32 v{vFv}, s6")
    A(f"v_mov_b32 v{vFv+1}, s{sNo+1}")
    A("s_mov_b64 exec, 1")
    A(f"global_store_dwordx2 v{vFo}, {vr(vFv,2)}, s[{pFl}:{pFl+1}] sc1")
    A("s_mov_b64 exec, -1")
def flag_load(A, dst, ad):
    A(f"global_load_dwordx2 {vr(dst,2)}, v{ad}, s[{pFl}:{pFl+1}] sc1")
def flag_wait(A, lab, phase, polls):
    A(f"s_add_u32 s{sT0}, s{sNo}, {phase}")
    A(f"s_mov_b32 s{sT1}, 0")
    A(f"{lab}c:")
    for n, (d, ad) in enumerate(polls):
        A(f"v_subrev_u32 v{d}, s{sT0}, v{d}")
        A(f"v_cmp_ne_u32 s[{sE0+2*n}:{sE0+2*n+1}], s{sNo+1}, v{d+1}")
    for n, (d, ad) in enumerate(polls):
        A(f"v_cmp_lt_u32 " + ("vcc" if n == 0 else "s[6:7]") + f", {3-phase}, v{d}")
    A("s_nop 3")
    A(f"s_or_b64 s[{sE0}:{sE0+1}], s[{sE0}:{sE0+1}], vcc")
    if len(polls) > 1:
        A(f"s_or_b64 s[6:7], s[6:7], s[{sE0+2}:{sE0+3}]")
        A(f"s_or_b64 s[{sE0}:{sE0+1}], s[{sE0}:{sE0+1}], s[6:7]")
    A(f"s_cbranch_scc0 {lab}r ; pollbr")
    A(f"s_add_u32 s{sT1}, s{sT1}, 1")
    A(f"s_cmp_ge_u32 s{sT1}, 0x40000")
    A(f"s_cbranch_scc1 {lab}r")
    for d, ad in polls: flag_load(A, d, ad)
    A("s_waitcnt vmcnt(0)")
    A(f"s_branch {lab}c")
    A(f"{lab}r:")

def q_setup():
    w = sWave
    return [
     f"s_lshl_b32 s6, s{qP}, 3\ns_lshr_b32 s{qT0}, {hex(0x402b1600)}, s6\ns_and_b32 s{qT0}, s{qT0}, 0xff",
     f"s_lshr_b32 s{qT1}, {hex(0x5b402b16)}, s6\ns_and_b32 s{qT1}, s{qT1}, 0xff\ns_sub_u32 s{qNl}, s{qT1}, s{qT0}",
     f"s_and_b32 s{sT2}, s{w}, 1\ns_lshl_b32 s6, s{sT2}, 11\ns_lshl_b32 s{qAs}, s{qT0}, 13",
     f"s_add_u32 s{qAs}, s{qAs}, s6\ns_lshr_b32 s7, s{w}, 1\ns_lshl_b32 s6, s{qCb}, 1",
     f"s_add_u32 s6, s6, s7\ns_mul_i32 s6, s6, 5120\ns_mul_i32 s{qWs}, s{qT0}, 81920",
     f"s_add_u32 s{qWs}, s{qWs}, s6\ns_mul_i32 s6, s{sT2}, 40960\ns_add_u32 s{qWs}, s{qWs}, s6",
     f"s_lshl_b32 s{qAe}, s{qT1}, 13\ns_mul_i32 s{qWe}, s{qT1}, 81920\ns_mov_b32 s{qAo}, s{qAs}",
     f"s_mov_b32 s{qWo}, s{qWs}\ns_mul_i32 s{qWm}, s{sT2}, 10240\ns_mul_i32 s6, s7, 5120",
     f"s_add_u32 s{qWm}, s{qWm}, s6\ns_lshl_b32 s6, s{qRb}, 1\ns_add_u32 s6, s6, s7",
     f"s_mul_i32 s6, s6, {A_BLK}\ns_add_u32 s{qA}, s{pWs}, s6\ns_addc_u32 s{qA+1}, s{pWs+1}, 0",
     f"s_and_b32 s{qA+1}, s{qA+1}, 0xffff\ns_cmp_eq_u32 s{qP}, 3\ns_cselect_b32 s{qA+2}, s{qAe}, 0\ns_cselect_b32 s{qW+2}, s{qWe}, 0\ns_mov_b32 s{qA+3}, 0x20000",
     f"s_mov_b32 s{qW}, s{sWp}\ns_mov_b32 s{qW+1}, s{sWp+1}\ns_mov_b32 s{qW+3}, 0x20000",
     f"s_lshl2_add_u32 s6, s{qRb}, s{qP}\ns_lshl_b32 s6, s6, 1\ns_add_u32 s6, s6, s7\ns_mul_i32 s{qXo}, s6, 20480",
     f"s_lshl_b32 s6, s{qCb}, 1\ns_add_u32 s6, s6, s{sT2}\ns_mul_i32 s6, s6, 160\ns_add_u32 s{qXo}, s{qXo}, s6",
     f"s_xor_b32 s{qT0}, s{w}, s{qP}\ns_mul_i32 s{qT1}, s{w}, 3\ns_add_u32 s{qT1}, s{qT1}, s{qT0}\ns_sub_u32 s{qT1}, s{qT1}, 1",
     f"s_mul_i32 s{qT1}, s{qT1}, 10240\ns_cmp_eq_u32 s{qT0}, 0\ns_cselect_b32 s{qSo}, 0x100000, s{qT1}",
    ]

def q_loads(slot):
    it = [f"s_add_u32 m0, s{qWm}, {slot*20480}"]
    for j in range(4):
        it.append(f"buffer_load_dwordx4 v{vL16}, s[{qW}:{qW+3}], s{qWo} offen offset:{j*1024} sc1 lds ; @put W2")
    it.append(f"s_add_u32 m0, s{qWm}, {slot*20480+4096}")
    it.append(f"buffer_load_dwordx4 v{vL16+1}, s[{qW}:{qW+3}], s{qWo} offen sc1 lds ; @put W2")
    for k in range(2):
        for rt in range(2):
            it.append(f"buffer_load_dwordx4 {ar(aA2+(slot*4+k*2+rt)*4,4)}, v{vL16+k}, s[{qA}:{qA+3}], s{qAo} offen offset:{rt*1024} sc1")
    it.append(f"s_add_u32 s{qWo}, s{qWo}, 81920\ns_add_u32 s{qAo}, s{qAo}, 8192")
    return it

def gemm2(A, L, emit, stamp):
    ac, vT, vX, vZ = 64, 144, 168, 180
    srd(A, qX, pX, pX + 1, X_SIZE)
    srd(A, qO, pOut, pOut + 1, X_SIZE)
    for i in range(4): A(f"v_mov_b32 v{vZ+i}, 0")
    A(f"v_and_b32 v{vT}, 15, v{vLane}")
    A(f"v_mul_u32_u24 v{vT}, 1280, v{vT}")
    A(f"v_lshrrev_b32 v{vT+1}, 4, v{vLane}")
    A(f"v_lshl_add_u32 v{vXo2}, v{vT+1}, 3, v{vT}")
    def zero():
        for i in range(5): mf32(A, vr(ac + 16 * i, 16), vr(vZ, 4), vr(vZ, 4), "0")
    zero()
    A(f"v_mov_b32 v{vWr2}, v{vL16}")
    A(f"v_add_u32 v{vWr2+1}, 40960, v{vL16}")
    A(f"v_lshlrev_b32 v{vL8}, 3, v{vLane}")
    A(f"v_add_u32 v{vOwn}, {RING2}, v{vL16}")
    A(f"s_mov_b32 s{qN}, 0")
    def xload():
        for ct in range(5):
            A(f"buffer_load_dwordx2 {vr(vX+2*ct,2)}, v{vXo2}, s[{qX}:{qX+3}], s{qXo} offen offset:{ct*32}")
    A(f"s_cmp_eq_u32 s{qP}, 3")
    A(f"s_cselect_b32 s{qT0}, 2, 99")
    A(f"s_cselect_b32 s{qT1}, 0, 99")
    A(f"s_cbranch_scc1 {L}qh")
    A("s_waitcnt vmcnt(0)")
    A("s_barrier")
    set_flag(A, 2, f"{L}f2")
    A(f"{L}f2:")
    flag_load(A, vPa, vAo)
    A(f"s_mov_b32 s{qA+2}, s{qAe}")
    A(f"s_mov_b32 s{qW+2}, s{qWe}")
    A(f"s_mov_b32 s{qAo}, s{qAs}")
    A(f"s_mov_b32 s{qWo}, s{qWs}")
    A("s_waitcnt vmcnt(0)")
    flag_wait(A, f"{L}w2", 2, [(vPa, vAo)])
    stamp(8)
    for s_ in range(3): emit(q_loads(s_))
    xload()
    A("s_waitcnt vmcnt(23)")
    A(f"s_branch {L}qs")
    A(f"{L}qh:")
    stamp(8)
    xload()
    A("s_waitcnt vmcnt(39)")
    A(f"{L}qs:")
    def wread2(slot, f, buf):
        k, ct = f // 10, f % 10
        return f"ds_read_b128 {ar(aW2+buf*4,4)}, v{vWr2+slot//2} offset:{(slot%2)*20480+k*10240+ct*1024}"
    A("s_barrier ; @need W2 10")
    stamp(9)
    for f in range(3): A(wread2(0, f, f))
    lq = LQ()
    for f in range(3): lq.issue(f)
    if "q_oob" in XP:
        A(f"s_mov_b32 s{qA+2}, 0"); A(f"s_mov_b32 s{qW+2}, 0")
    A(".p2align 6")
    A(f"{L}q:")
    for slot in range(4):
        ns = (slot + 1) % 4
        slots = spread(q_loads((slot + 3) % 4), 16)
        if "q_noload" in XP: slots = [[] for _ in range(16)]
        if "q_noA" in XP: slots = [[x for x in sl if "a[" not in x] for sl in slots]
        if "q_noW" in XP: slots = [[x for x in sl if "lds" not in x] for sl in slots]
        for f in range(20):
            k, ct = f // 10, f % 10
            lq.wait(A, [f])
            for r in range(2):
                rt = r if f % 2 == 0 else 1 - r
                mf16(A, vr(ac + (rt * 10 + ct) * 4, 4), ar(aW2 + (f % 4) * 4, 4), ar(aA2 + (slot * 4 + k * 2 + rt) * 4, 4))
                if r == 0 and f + 3 < 20:
                    A(wread2(slot, f + 3, (f + 3) % 4)); lq.issue(f + 3)
                if f == 18:
                    A(wread2(ns, r, r)); lq.issue(r)
                if f == 19 and r == 0:
                    A(wread2(ns, 2, 2)); lq.issue(2)
                if r == 1 and f < 16: emit(slots[f])
                if r == 0 and f == 17 and slot == 0: A(f"s_cmp_eq_u32 s{qT1}, s{qN}")
            if f == 17:
                if slot == 0:
                    A("s_waitcnt vmcnt(30) lgkmcnt(0)")
                    A(f"s_cbranch_scc1 {L}qw{slot}")
                    A("s_waitcnt vmcnt(18)")
                    A(f"{L}qw{slot}:")
                else: A("s_waitcnt vmcnt(18) lgkmcnt(0)")
                lq.clear()
                if "q_nobar" not in XP: A("s_barrier ; @need W2 10")
            if f == 19:
                A(f"s_add_u32 s{qN}, s{qN}, 1")
        if slot == 1:
            A(f"s_cmp_eq_u32 s{qT0}, s{qN}")
            A(f"s_cbranch_scc1 {L}qe1")
            A(f"{L}qr1:")
        if slot < 3:
            A(f"s_cmp_eq_u32 s{qNl}, s{qN}")
            A(f"s_cbranch_scc1 {L}qx")
    A(f"s_branch {L}q")
    A(f"{L}qe1:")
    set_flag(A, 2, f"{L}qr1")
    A(f"s_branch {L}qr1")
    A(f"{L}qx:")
    stamp(10)
    A(f"s_cmp_lg_u32 s{qP}, 3")
    A(f"s_cbranch_scc1 {L}qy")
    flag_load(A, vPb, vAp)
    A("s_waitcnt vmcnt(0)")
    flag_wait(A, f"{L}w3", 2, [(vPb, vAp)])
    A(f"{L}qy:")
    A(f"s_mov_b32 s{sT0}, s{qSo}")
    A(f"s_cmp_lg_u32 s{sWave}, s{qP}")
    A(f"s_cbranch_scc1 {L}no0")
    A("s_nop 1")
    for i in range(20): A(f"ds_write_b128 v{vOwn}, {vr(ac+4*i,4)} offset:{i*1024}")
    A("s_waitcnt lgkmcnt(0)")
    A(f"s_branch {L}no1")
    A(f"{L}no0:")
    for c in range(4):
        b = vT + (c % 2) * 12
        for i in range(10): A(f"v_cvt_pk_bf16_f32 v{b+i}, v{ac+c*20+2*i}, v{ac+c*20+2*i+1}")
        for i in range(10): A(f"v_min_u32 v{b+i}, -2, v{b+i}")
        if c: A(f"s_add_u32 s{sT0}, s{sT0}, 2560")
        A(f"buffer_store_dwordx4 {vr(b,4)}, v{vL16}, s[{qI}:{qI+3}], s{sT0} offen sc1")
        A(f"buffer_store_dwordx4 {vr(b+4,4)}, v{vL16}, s[{qI}:{qI+3}], s{sT0} offen offset:1024 sc1")
        A(f"buffer_store_dwordx2 {vr(b+8,2)}, v{vL8}, s[{qI}:{qI+3}], s{sT0} offen offset:2048 sc1")
    A(f"{L}no1:")
    S, U, IN, XR, E, T = 64, 84, 104, 184, 204, 224
    A(f"s_mul_i32 s{sT0}, s{sWave}, 5120")
    A(f"v_add_u32 v{vOwn}, s{sT0}, v{vOwn}")
    A(f"s_mul_i32 s{sT0}, s{qP}, 30720")
    A(f"s_mul_i32 s{sT1}, s{sWave}, 2560")
    A(f"s_add_u32 s{sT0}, s{sT0}, s{sT1}")
    A(f"s_lshl_b32 s6, s{qP}, 3")
    A(f"s_lshr_b32 s6, {hex(0x24094218 >> 0 if False else (0x24 | 0x18 << 8 | 0x09 << 16 | 0x24 << 24))}, s6")
    for i in range(3):
        A(f"s_bfe_u32 s7, s6, {hex(0x20000 | 2*i)}")
        A(f"s_mul_i32 s7, s7, 10240")
        A(f"s_add_u32 s{qIn+i}, s{sT0}, s7")
    def inload(sl):
        b = IN + sl * 10
        A(f"buffer_load_dwordx4 {vr(b,4)}, v{vL16}, s[{qI}:{qI+3}], s{qIn+sl} offen sc1")
        A(f"buffer_load_dwordx4 {vr(b+4,4)}, v{vL16}, s[{qI}:{qI+3}], s{qIn+sl} offen offset:1024 sc1")
        A(f"buffer_load_dwordx2 {vr(b+8,2)}, v{vL8}, s[{qI}:{qI+3}], s{qIn+sl} offen offset:2048 sc1")
    A("s_barrier")
    stamp(11)
    for sl in range(3): inload(sl)
    for i in range(5): A(f"ds_read_b128 {vr(S+4*i,4)}, v{vOwn} offset:{i*1024}")
    for i in range(10):
        A(f"v_lshlrev_b32 v{XR+2*i}, 16, v{vX+i}")
        A(f"v_and_b32 v{XR+2*i+1}, 0xffff0000, v{vX+i}")
    def unpack(sl, dst):
        for i in range(10):
            A(f"v_lshlrev_b32 v{dst+2*i}, 16, v{IN+sl*10+i}")
            A(f"v_and_b32 v{dst+2*i+1}, 0xffff0000, v{IN+sl*10+i}")
    def addin(sl, dst):
        unpack(sl, T)
        for i in range(10): A(f"v_pk_add_f32 {vr(dst+2*i,2)}, {vr(dst+2*i,2)}, {vr(T+2*i,2)}")
    A(f"s_mov_b32 s{sT1}, 0")
    A(f"{L}sc:")
    A("s_waitcnt vmcnt(0)")
    for i in range(3): A(f"v_max3_u32 v{T+i}, v{IN+10*i}, v{IN+10*i+1}, v{IN+10*i+2}")
    for j in range(3):
        for i in range(3): A(f"v_max3_u32 v{T+i}, v{T+i}, v{IN+10*i+3+2*j}, v{IN+10*i+4+2*j}")
    A(f"v_max3_u32 v{T+3}, v{IN+9}, v{IN+19}, v{IN+29}")
    A(f"v_max3_u32 v{T}, v{T}, v{T+1}, v{T+2}")
    A(f"v_max_u32 v{T}, v{T}, v{T+3}")
    A(f"v_cmp_eq_u32 vcc, -1, v{T}")
    A("s_nop 3")
    A(f"s_cbranch_vccz {L}sr ; pollbr")
    A(f"s_add_u32 s{sT1}, s{sT1}, 1")
    A(f"s_cmp_ge_u32 s{sT1}, 0x40000")
    A(f"s_cbranch_scc1 {L}sr")
    for sl in range(3): inload(sl)
    A(f"s_branch {L}sc")
    A(f"{L}sr:")
    stamp(12)
    unpack(2, U)
    A(f"s_mov_b32 s{sT0}, {hex(f2u(-LOG2E))}")
    A(f"s_cmp_lg_u32 s{qP}, 3")
    A("s_waitcnt lgkmcnt(0)")
    A(f"s_cbranch_scc1 {L}ns")
    for i in range(20): A(f"v_swap_b32 v{S+i}, v{U+i}")
    A(f"{L}ns:")
    for i in range(20): A(f"v_mul_f32 v{E+i}, s{sT0}, v{U+i}")
    for i in range(20): A(f"v_exp_f32 v{E+i}, v{E+i}")
    addin(0, S)
    for i in range(20): A(f"v_add_f32 v{E+i}, 1.0, v{E+i}")
    for i in range(20): A(f"v_rcp_f32 v{E+i}, v{E+i}")
    addin(1, S)
    for i in range(10): A(f"v_pk_mul_f32 {vr(U+2*i,2)}, {vr(U+2*i,2)}, {vr(E+2*i,2)}")
    for i in range(10): A(f"v_pk_fma_f32 {vr(XR+2*i,2)}, {vr(S+2*i,2)}, {vr(U+2*i,2)}, {vr(XR+2*i,2)}")
    for i in range(10): A(f"v_cvt_pk_bf16_f32 v{vX+i}, v{XR+2*i}, v{XR+2*i+1}")
    for ct in range(5):
        A(f"buffer_store_dwordx2 {vr(vX+2*ct,2)}, v{vXo2}, s[{qO}:{qO+3}], s{qXo} offen offset:{ct*32}" + (" sc1" if "outsc1" in OPT else ""))
    stamp(13)

def gen_p1(A, name, stamps=False, code_bytes=32768):
    head(A, name)
    L = "p1_"
    A("s_cmp_ge_u32 s2, 256")
    A(f"s_cbranch_scc1 {L}end")
    A("s_load_dwordx16 s[64:79], s[0:1], 0")
    A("s_load_dwordx8 s[80:87], s[0:1], 64")
    A(f"s_memrealtime s[{sNo}:{sNo+1}]")
    if stamps: A("s_memtime s[94:95]")
    def stamp(i, att=False):
        if not stamps: return
        if "attst" in OPT:
            if i >= 5 and not att: return
        elif att: return
        A(f"s_memtime s[96:97]")
        A(f"s_memrealtime s[98:99]")
        A("s_waitcnt lgkmcnt(0)")
        A(f"v_mov_b32 v{vTm+18}, s96"); A(f"v_mov_b32 v{vTm+19}, s98")
        A(f"s_lshl_b32 s96, s2, 2"); A(f"s_add_u32 s96, s96, s{sWave}"); A("s_lshl_b32 s96, s96, 7")
        A(f"v_mov_b32 v{vZero}, s96")
        if i == 0: A(f"v_mov_b32 v{vTm+16}, s94")
        A(f"s_add_u32 s96, s{pWs}, 0x3100000"); A(f"s_addc_u32 s97, s{pWs+1}, 0")
        A(f"global_store_dwordx2 v{vZero}, {vr(vTm+18,2)}, s[96:97] offset:{i*8}")
        if i == 0: A(f"global_store_dword v{vZero}, v{vTm+16}, s[96:97] offset:120")
    t = vTm
    def emit(items):
        for it in items:
            if "lds" in it and " m0," in A.lines[-1]: A("s_nop 0")
            A(it)
    A(f"v_and_b32 v{vLane}, 63, v0")
    A("v_lshrrev_b32 v0, 6, v0")
    A("s_and_b32 s6, s2, 7")
    A(f"v_readfirstlane_b32 s{sWave}, v0")
    A(f"s_lshr_b32 s{sT0}, s2, 3")
    A(f"s_lshr_b32 s{sRb}, s{sT0}, 2")
    A(f"s_and_b32 s{sT1}, s{sT0}, 3")
    A(f"s_lshl2_add_u32 s{sHead}, s6, s{sT1}")
    A(f"s_sub_u32 s{sT2}, s6, s{sRb}")
    A(f"s_add_u32 s{sT2}, s{sT2}, 3")
    A(f"s_and_b32 s{sT2}, s{sT2}, 7")
    A(f"s_mul_i32 s{sFb}, s6, 3")
    A(f"s_add_u32 s{sFb}, s{sFb}, s{sT1}")
    A(f"s_add_u32 s7, s{sT2}, 24")
    A(f"s_cmp_eq_u32 s{sT1}, 3")
    A(f"s_cselect_b32 s{sFb}, s7, s{sFb}")
    A(f"s_cmp_lt_u32 s{sFb}, 27")
    A(f"s_cselect_b32 s{sHasF}, 1, 0")
    A(f"s_sub_u32 s{sProd}, s{sFb}, 27")
    A(f"v_lshrrev_b32 v{t+7}, 3, v{vLane}")
    A(f"v_and_b32 v{t+6}, 7, v{vLane}")
    A(f"v_lshrrev_b32 v{t+12}, 4, v{vLane}")
    A(f"v_xor_b32 v{t+13}, v{t+6}, v{t+12}")
    A(f"v_lshlrev_b32 v{t+13}, 4, v{t+13}")
    A(f"s_movk_i32 s6, 1280")
    A(f"v_mad_u32_u24 v{vXd}, v{t+7}, s6, v{t+13}")
    A(f"v_xor_b32 v{t+13}, 64, v{vXd}")
    for j in range(1, 8):
        A(f"v_add_u32 v{vXd+j}, {j*10240-(j%4)*1024}, v{(t+13) if j&1 else vXd}")
    A(f"s_lshl2_add_u32 s6, s{sRb}, s{sWave}")
    A(f"s_mul_i32 s{sXo}, s6, {64*1280}")
    A(f"s_mul_i32 s{sKVo}, s6, {A_BLK}")
    A(f"s_lshl_b32 s{sM0X}, s{sWave}, 13")
    A(f"s_add_u32 s{sM0X}, s{sM0X}, {R1}")
    A(f"s_mov_b32 s{sTail}, 0")
    A(f"s_and_b32 s6, s{sWave}, 1")
    A(f"s_lshl_b32 s7, s6, 2")
    A(f"v_add_u32 v{t+13}, s7, v{t+12}")
    A(f"v_lshlrev_b32 v{t+13}, 1, v{t+13}")
    A(f"v_and_b32 v{t+14}, 15, v{vLane}")
    A(f"v_xor_b32 v{t+13}, v{t+13}, v{t+14}")
    A(f"v_lshlrev_b32 v{t+13}, 4, v{t+13}")
    A(f"s_lshl_b32 s7, s{sWave}, 3")
    A(f"v_add_u32 v{t+15}, s7, v{t+12}")
    A(f"v_lshl_add_u32 v{vWqd}, v{t+15}, 13, v{t+13}")
    A(f"v_add_u32 v{vWqd+1}, {4*8192-1024}, v{vWqd}")
    A(f"v_bfe_u32 v{t+13}, v{vLane}, 4, 1")
    A(f"s_lshl_b32 s6, s6, 1")
    A(f"v_add_u32 v{t+13}, s6, v{t+13}")
    A(f"v_lshlrev_b32 v{t+13}, 1, v{t+13}")
    A(f"v_xor_b32 v{t+13}, v{t+13}, v{t+6}")
    A(f"v_lshlrev_b32 v{t+13}, 4, v{t+13}")
    A(f"v_add_u32 v{t+15}, s7, v{t+7}")
    A(f"s_movk_i32 s6, 3456")
    A(f"v_mad_u32_u24 v{vW13d}, v{t+15}, s6, v{t+13}")
    A(f"s_lshl_b32 s{sWqo}, s{sHead}, 8")
    A(f"s_lshl_b32 s{sW13o}, s{sFb}, 7")
    A(f"s_mov_b32 s{sSlot}, 0")
    A("s_waitcnt lgkmcnt(0)")
    A(f"s_lshl_b32 s{sC0}, s{sWave}, 12")
    A(f"s_add_u32 s{sC0}, s{sC0}, {R3}")
    A(f"s_mov_b32 s{sM0W}, s{sC0}")
    srd(A, sX, pX, pX + 1, X_SIZE)
    srd(A, sWq, pWq, pWq + 1, 640 * 8192)
    for (d, p, sh) in ((sW1, pW1, 2048), (sW3, pW3, 3072)):
        A(f"s_sub_u32 s{d}, s{p}, {sh}")
        A(f"s_subb_u32 s{d+1}, s{p+1}, 0")
        A(f"s_and_b32 s{d+1}, s{d+1}, 0xffff")
        A(f"s_mul_i32 s{d+2}, s{sHasF}, {640*3456+sh}")
        A(f"s_mov_b32 s{d+3}, 0x20000")
    srd(A, sX2, pX, pX + 1, X_SIZE)
    A(f"s_movk_i32 s{sM0d}, 4096")
    A(f"s_movk_i32 s{sXst}, 128")
    A(f"s_mov_b32 s{sM0t}, 0x18000")
    RAW, UNP = 64, 96
    A(f"v_mov_b32 v{t+5}, 0")
    A(f"s_cmp_ge_u32 s{sProd}, 4")
    A(f"s_cbranch_scc1 {L}np1")
    A(f"v_lshrrev_b32 v{t+5}, 2, v{vLane}")
    A(f"v_and_b32 v{t+13}, 3, v{vLane}")
    A(f"v_lshlrev_b32 v{t+13}, 4, v{t+13}")
    A(f"s_movk_i32 s6, 1280")
    A(f"v_mad_u32_u24 v{t+13}, v{t+5}, s6, v{t+13}")
    A(f"s_lshl2_add_u32 s6, s{sRb}, s{sProd}")
    A(f"s_lshl2_add_u32 s6, s6, s{sWave}")
    A(f"s_lshl_b32 s7, s6, 8")
    A(f"v_lshl_add_u32 v{t+5}, v{t+5}, 4, s7")
    A(f"s_mul_i32 s6, s6, {16*1280}")
    for i in range(20):
        A(f"buffer_load_dwordx4 {vr(RAW+4*i,4)}, v{t+13}, s[{sX}:{sX+3}], s6 offen offset:{i*64}")
    A(f"{L}np1:")
    emit(dma_w(True)); emit(dma_x(0)); emit(dma_x(1))
    stamp(0)
    A("s_getpc_b64 s[6:7]")
    A(f"s_and_b32 s{sT0}, s{sT0}, 7")
    A(f"s_lshl2_add_u32 s{sT0}, s{sT0}, s{sWave}")
    A(f"s_lshl_b32 s{sT0}, s{sT0}, 10")
    A(f"s_min_u32 s{sT0}, s{sT0}, {code_bytes-1024}")
    A(f"v_lshl_add_u32 v{vTm+4}, v{vLane}, 4, s{sT0}")
    if "nocpf" not in OPT: A(f"global_load_dwordx4 {vr(vTm+8,4)}, v{vTm+4}, s[6:7]")
    else: A(f"global_load_dword v{vTm+8}, v{vLane}, s[0:1]")
    emit(dma_w(True)); emit(dma_x(0)); emit(dma_w(True))
    A(f"s_add_u32 s{sA}, s{pWs}, s{sKVo}")
    A(f"s_addc_u32 s{sA+1}, s{pWs+1}, 0")
    srd(A, sA, sA, sA + 1, A_BLK)
    A(f"s_add_u32 s{sWp}, s{pWs}, {W_OFF}")
    A(f"s_addc_u32 s{sWp+1}, s{pWs+1}, 0")
    srd(A, sWp, sWp, sWp + 1, W_SIZE)
    A(f"s_lshl2_add_u32 s{sT1}, s{sHead}, s{sWave}")
    A(f"s_mul_i32 s{sU}, s{sT1}, 10")
    A(f"s_lshl_b32 s{sT2}, s{sRb}, 1")
    A(f"s_add_u32 s{sU}, s{sU}, s{sT2}")
    A(f"s_mul_i32 s{sT1}, s{sT1}, 40960")
    A(f"s_lshl_b32 s{sT2}, s{sRb}, 8")
    A(f"s_add_u32 s{sPo}, s{sT1}, s{sT2}")
    srd(A, sSrc, pWo, pWo + 1, 4096 * 1280)
    A(f"s_cmp_lt_u32 s{sRb}, 5")
    A(f"s_cselect_b32 s{sSrc+2}, s{sSrc+2}, 0")
    A(f"s_cselect_b32 s{sU}, s{sU}, 2000")
    A(f"v_mov_b32 v{t+6}, 0")
    A(f"s_or_b32 s6, s2, s{sWave}")
    A(f"s_cbranch_scc1 {L}ntag")
    A(f"s_lshl_b64 s[6:7], s[{sNo}:{sNo+1}], 2")
    A(f"s_or_b32 s7, s7, 0x80000000")
    A(f"v_mov_b32 v{t+14}, s6")
    A(f"v_mov_b32 v{t+15}, s7")
    A("s_mov_b64 exec, 1")
    A(f"global_store_dwordx2 v{t+6}, {vr(t+14,2)}, s[{pDbg}:{pDbg+1}] offset:128 sc1")
    A("s_mov_b64 exec, -1")
    A(f"{L}ntag:")
    A(f"v_and_b32 v{t+14}, 15, v{vLane}")
    A(f"v_lshrrev_b32 v{t+13}, 1, v{t+14}")
    A(f"v_xor_b32 v{t+13}, v{t+13}, v{t+12}")
    A(f"v_lshlrev_b32 v{t+13}, 4, v{t+13}")
    A(f"v_lshl_add_u32 v{t+13}, v{t+14}, 7, v{t+13}")
    A(f"s_lshl_b32 s6, s{sWave}, 13")
    A(f"s_add_u32 s6, s6, {R1}")
    A(f"v_add_u32 v{vXr}, s6, v{t+13}")
    A(f"v_xor_b32 v{vXr+1}, 64, v{vXr}")
    A(f"v_lshlrev_b32 v{t+3}, 4, v{t+14}")
    A(f"v_bfe_u32 v{t+14}, v{vLane}, 2, 2")
    A(f"v_and_b32 v{t+15}, 3, v{vLane}")
    A(f"v_lshlrev_b32 v{t+15}, 3, v{t+15}")
    A(f"v_lshl_add_u32 v{t+15}, v{t+12}, 12, v{t+15}")
    A(f"v_add_u32 v{t+15}, {R3}, v{t+15}")
    A(f"v_bfe_u32 v{t+16}, v{vLane}, 4, 1")
    A(f"v_lshl_add_u32 v{t+13}, v{t+16}, 2, v{t+14}")
    A(f"s_lshl_b32 s6, s{sWave}, 1")
    A(f"v_xor_b32 v{t+13}, s6, v{t+13}")
    A(f"v_lshl_add_u32 v{t+13}, v{t+13}, 5, v{t+15}")
    A(f"v_lshl_add_u32 v{vWqr}, v{t+14}, 8, v{t+13}")
    for p in range(1, 8): A(f"v_xor_b32 v{vWqr+p}, {32*p}, v{vWqr}")
    A(f"v_lshrrev_b32 v{t+13}, 1, v{t+14}")
    A(f"v_lshl_add_u32 v{t+13}, v{t+16}, 1, v{t+13}")
    A(f"v_xor_b32 v{t+13}, s{sWave}, v{t+13}")
    A(f"v_lshl_add_u32 v{t+13}, v{t+13}, 5, v{t+15}")
    A(f"v_lshl_add_u32 v{vW13r}, v{t+14}, 7, v{t+13}")
    for p in range(1, 4): A(f"v_xor_b32 v{vW13r+p}, {32*p}, v{vW13r}")
    srd(A, sK, pK, pK + 1, 16777216)
    srd(A, sV, pV, pV + 1, 16777216)
    A(f"s_add_u32 s{sSt}, s{pWs}, {ST_OFF}")
    A(f"s_addc_u32 s{sSt+1}, s{pWs+1}, 0")
    srd(A, sSt, sSt, sSt + 1, 2048 * 16)
    A(f"s_lshl_b32 s6, s{sRb}, 2")
    A(f"v_mov_b32 v{t+2}, s6")
    A(f"s_movk_i32 s{sMask}, {EVMASK}")
    A(f"s_mov_b32 s{sD}, 0")
    A(f"s_cmp_ge_u32 s{sProd}, 4")
    A(f"s_cbranch_scc1 {L}np2")
    A("s_waitcnt vmcnt(25)")
    for i in range(79, -1, -1):
        A(f"v_and_b32 v{UNP+2*i+1}, 0xffff0000, v{RAW+i}")
        A(f"v_lshlrev_b32 v{UNP+2*i}, 16, v{RAW+i}")
    a = 64
    def red(first):
        for i in range(80):
            first(i)
        A(f"v_pk_add_f32 {vr(a,2)}, {vr(a,2)}, {vr(a+2,2)}")
        A(f"v_pk_add_f32 {vr(a+4,2)}, {vr(a+4,2)}, {vr(a+6,2)}")
        A(f"v_pk_add_f32 {vr(a,2)}, {vr(a,2)}, {vr(a+4,2)}")
        A(f"v_add_f32 v{a}, v{a}, v{a+1}")
        for qp in ("[1,0,3,2]", "[2,3,0,1]"):
            A("s_nop 1")
            A(f"v_add_f32_dpp v{a}, v{a}, v{a} quad_perm:{qp} row_mask:0xf bank_mask:0xf")
    def f1(i):
        d = vr(a + 2 * (i % 4), 2)
        if i < 4: A(f"v_pk_add_f32 {d}, {vr(UNP+2*i,2)}, {vr(UNP+2*i+8,2)}")
        elif i >= 8: A(f"v_pk_add_f32 {d}, {d}, {vr(UNP+2*i,2)}")
    red(f1)
    o = 72
    A(f"v_mul_f32 v{o}, {hex(f2u(-1.0/640))}, v{a}")
    for i in range(80): A(f"v_pk_add_f32 {vr(UNP+2*i,2)}, {vr(UNP+2*i,2)}, {vr(o,2)} op_sel_hi:[1,0]")
    def f2(i):
        d = vr(a + 2 * (i % 4), 2); x_ = vr(UNP + 2 * i, 2)
        if i < 4: A(f"v_pk_mul_f32 {d}, {x_}, {x_}")
        else: A(f"v_pk_fma_f32 {d}, {x_}, {x_}, {d}")
    red(f2)
    A(f"v_mov_b32 v{o+3}, {hex(f2u(1e-5))}")
    A(f"v_fmac_f32 v{o+3}, {hex(f2u(1.0/640))}, v{a}")
    A(f"v_mov_b32 v{o+2}, v{o+3}")
    A(f"v_rsq_f32 v{o+1}, v{o+3}")
    A("s_mov_b32 exec_lo, 0x11111111")
    A("s_mov_b32 exec_hi, 0x11111111")
    A(f"buffer_store_dwordx4 {vr(o,4)}, v{t+5}, s[{sSt}:{sSt+3}], 0 offen sc1 ; @put S")
    A("s_mov_b64 exec, -1")
    A("s_waitcnt vmcnt(0)")
    A(f"{L}np2:")
    if "dummy" in OPT:
        A(f"v_lshlrev_b32 v{t+13}, 4, v{vLane}")
        for i in range(16): A(f"buffer_load_dwordx4 {vr(64+4*i,4)}, v{t+13}, s[{sWq}:{sWq+3}], 0 offen offset:{(i%4)*1024}")
        for i in range(128): A(f"v_mov_b32 v{128+i}, 0")
        A("s_waitcnt vmcnt(0)")
        A("s_mov_b32 s6, 0")
        A(f"{L}dmy:")
        for i in range(64): mf16(A, vr(128 + 4 * (i % 32), 4), vr(64 + 4 * (i // 4 % 12), 4), vr(112 + 4 * (i % 4), 4))
        A("s_add_u32 s6, s6, 1")
        A("s_cmp_lt_u32 s6, 40")
        A(f"s_cbranch_scc1 {L}dmy")
        A("s_nop 7")
    if "idle" in OPT:
        A("s_mov_b32 s6, 0")
        A(f"{L}dmy:")
        for i in range(64): A("s_nop 15")
        A("s_add_u32 s6, s6, 1")
        A("s_cmp_lt_u32 s6, 40")
        A(f"s_cbranch_scc1 {L}dmy")
    kv_dma_voff(A, vQ, vQ + 4, 1)
    A(f"s_lshl_b32 s6, s{sWave}, 12")
    A(f"s_lshl_b32 s{sKVo}, s{sHead}, 19")
    A(f"s_add_u32 s{sKVo}, s{sKVo}, s6")
    A(f"s_add_u32 s{sKVo}, s{sKVo}, {1536*256}")
    if "tlbw" in OPT:
        A("s_mov_b64 exec, 1")
        A(f"buffer_load_dword v0, v{t+6}, s[{sK}:{sK+3}], s{sKVo} offen")
        A(f"buffer_load_dword v0, v{t+6}, s[{sV}:{sV+3}], s{sKVo} offen")
        A(f"buffer_load_dword v0, v{t+6}, s[{sSrc}:{sSrc+3}], s{sPo} offen")
        A("s_mov_b64 exec, -1")
    for i in range(4): A(f"v_mov_b32 v{vSt+i}, 0")
    A(f"v_mov_b32 v{t+13}, 0x3f803f80")
    for i in range(4): A(f"v_accvgpr_write_b32 a{aOne+i}, v{t+13}")
    z = vr(vSt, 4)
    for i in range(8): mf32(A, vr(vAcc + 16 * i, 16), z, z, "0")
    for i in range(9): mf32(A, ar(16 * i, 16), z, z, "0")
    A(f"s_waitcnt vmcnt({15 if 'tlbw' in OPT else 12})")
    A("s_barrier")
    A(f"s_lshl2_add_u32 s6, s{sProd}, s{sWave}")
    A(f"s_and_b32 s6, s6, 0xfffffff3")
    A(f"s_cbranch_scc1 {L}np3")
    A(f"v_mov_b32 v{t+1}, 1")
    A(f"v_add_u32 v{t+7}, s{sProd}, v{t+2}")
    A(f"s_mov_b64 exec, 1")
    A(f"global_store_byte v{t+7}, v{t+1}, s[{pDbg}:{pDbg+1}] sc1")
    A(f"s_mov_b64 exec, -1")
    A(f"{L}np3:")
    stamp(1)
    for rt in range(4): A(xread(0, 0, rt))
    A(f"s_cmp_eq_u32 s{sHasF}, 0")
    fr = frag_list(True)
    for f in range(3):
        for sec in range(2): A(wread(fr[f], 0, sec, f))
    A("s_waitcnt lgkmcnt(6)")
    if FINE: A("s_mov_b32 s7, 0")
    A(f"s_cbranch_scc1 {L}gn")
    gemm_loop(A, True, L + "gf")
    A(f"s_branch {L}gdone")
    gemm_events(A, L + "gf")
    gemm_events(A, L + "gn")
    gemm_loop(A, False, L + "gn")
    A(f"{L}gdone:")
    if FINE:
        A(f"s_lshl_b32 s96, s2, 2"); A(f"s_add_u32 s96, s96, s{sWave}"); A("s_lshl_b32 s96, s96, 10")
        A(f"v_lshl_add_u32 v{vTm+12}, v{vLane}, 2, s96")
        A(f"s_add_u32 s100, s{pWs}, 0x3200000"); A(f"s_addc_u32 s101, s{pWs+1}, 0")
        A(f"global_store_dword v{vTm+12}, v{vFin}, s[100:101]")
        A(f"global_store_dword v{vTm+12}, v{vFin+1}, s[100:101] offset:256")
        A(f"global_store_dword v{vTm+12}, v{vFin-1}, s[100:101] offset:512")
    stamp(2)
    A(f"v_lshrrev_b32 v{t+12}, 4, v{vLane}")
    A(f"v_lshlrev_b32 v{t+12}, 4, v{t+12}")
    A(f"s_lshl_b32 s6, s{sWave}, 7")
    A(f"s_add_u32 s6, s6, {CS}")
    A(f"v_add_u32 v{t+8}, s6, v{t+12}")
    A(f"s_lshl_b32 s6, s{sWave}, 6")
    A(f"s_add_u32 s6, s6, {CS+512}")
    A(f"v_add_u32 v{t+9}, s6, v{t+12}")
    A("s_mov_b32 exec_lo, 0x00010001")
    A("s_mov_b32 exec_hi, 0x00010001")
    A(f"ds_write_b128 v{t+8}, {ar(aCs,4)}")
    A(f"ds_write_b128 v{t+8}, {ar(aCs+4,4)} offset:64")
    A(f"ds_write_b128 v{t+9}, {ar(aCs+8,4)}")
    A(f"ds_write_b128 v{t+9}, {ar(aCs+12,4)} offset:256")
    A("s_mov_b64 exec, -1")
    for j in range(8): A(f"v_mov_b32 v{vKd+j}, v{vXd+j}")
    A(f"s_mov_b32 s{sKVo}, s{sXo}")
    A(f"s_mov_b32 s{sKVm}, s{sM0X}")
    A(f"v_lshlrev_b32 v{t+10}, 4, v{vLane}")
    A(f"s_and_b32 s{qP}, s2, 3")
    A(f"s_lshr_b32 s{qCb}, s2, 6")
    A(f"s_bfe_u32 s{qRb}, s2, 0x30003")
    A(f"s_and_b32 s6, s2, 4")
    A(f"s_lshl_b32 s6, s6, 1")
    A(f"s_add_u32 s{qRb}, s{qRb}, s6")
    A(f"s_lshl2_add_u32 s{qG}, s{qRb}, s{qCb}")
    A(f"s_mul_i32 s6, s{qG}, {IB_G}")
    A(f"s_add_u32 s6, s6, {IB_OFF}")
    A(f"s_add_u32 s{qI}, s{pWs}, s6")
    A(f"s_addc_u32 s{qI+1}, s{pWs+1}, 0")
    srd(A, qI, qI, qI + 1, IB_G)
    vWs = t
    wp_src_voff(A, vWs)
    A("s_waitcnt lgkmcnt(0)")
    A("s_barrier")
    kvadv = [f"s_add_u32 s{sKVo}, s{sKVo}, 16384\ns_add_u32 s{sKVm}, s{sKVm}, 32768"]
    def kvq(): return kv_dma() + kvadv
    csb = [vKr, vKr + 4, vVr + 0]
    lq = LQ()
    def csread_q(p):
        A(f"v_xor_b32 v{t+11}, {64*p}, v{t+8}")
        A(f"ds_read_b128 {vr(csb[p%3],4)}, v{t+11}"); lq.issue(("c", p))
    csread_q(0); csread_q(1)
    wo_dma = []
    for su in range(2):
        wo_dma.append(f"s_lshl_b32 s6, s{sWave}, 13\ns_add_u32 m0, s6, {R4+su*4096}")
        if "nowosrc" not in OPT: wo_dma += [f"buffer_load_dwordx4 v{vWs+4*su+j}, s[{sSrc}:{sSrc+3}], s{sPo} offen offset:{j*1024} lds ; @put P" for j in range(4)]
    kq = spread([f"s_add_u32 m0, s{sKVm}, 16384"] + kv_dma()[6:] + kvadv + wo_dma[:5 * SPL[0]], 24)
    for rt in range(4):
        q = vSt + 4 * rt
        A(f"v_mul_f32 v{q+3}, {hex(f2u(LOG2E/128**0.5))}, v{q+1}")
        A(f"v_mul_f32 v{q+1}, {hex(f2u(-LOG2E))}, v{q+1}")
    z = vr(vTm + 12, 4)
    for i in range(4): A(f"v_mov_b32 v{vTm+12+i}, 0")
    for p in range(8):
        if p + 2 < 8: csread_q(p + 2)
        lq.wait(A, [("c", p)])
        c = csb[p % 3]
        for rt in range(4):
            d = vAcc + (p * 4 + rt) * 4; q = vSt + 4 * rt
            for h in range(2):
                A(f"v_pk_fma_f32 {vr(d+2*h,2)}, {vr(c+2*h,2)}, {vr(q,2)}, {vr(d+2*h,2)} op_sel_hi:[1,0,1]")
        mf32(A, ar(aO + 16 * p, 16), z, z, "0")
        emit(kq[3*p])
        for rt in range(4):
            d = vAcc + (p * 4 + rt) * 4; q = vSt + 4 * rt
            for h in range(2):
                A(f"v_pk_mul_f32 {vr(d+2*h,2)}, {vr(d+2*h,2)}, {vr(q+2,2)} op_sel:[0,1]")
        emit(kq[3*p+1])
        for rt in range(4):
            d = vAcc + (p * 4 + rt) * 4
            f = vQ + ((rt // 2) * 8 + p) * 4 + (rt & 1) * 2
            for h in range(2): A(f"v_cvt_pk_bf16_f32 v{f+h}, v{d+2*h}, v{d+2*h+1}")
        emit(kq[3*p+2])
        if p > 0:
            for qt in range(2):
                f = vQ + (qt * 8 + p - 1) * 4
                for h in range(2): A(f"v_permlane16_swap_b32 v{f+h}, v{f+2+h}")
    A("s_nop 0")
    for qt in range(2):
        f = vQ + (qt * 8 + 7) * 4
        for h in range(2): A(f"v_permlane16_swap_b32 v{f+h}, v{f+2+h}")
    stamp(3)
    A(f"s_cmp_eq_u32 s{sHasF}, 0")
    A(f"s_cbranch_scc1 {L}noffn")
    def hst(pi, rt): return f"buffer_store_dwordx4 {vr(vAcc+96+pi*16+rt*4,4)}, v{t+10}, s[{sA}:{sA+3}], s{qT0+pi} offen offset:{rt*1024}" + ("" if "wbl2" in OPT else " sc1") + " ; @put H @put HH"
    T = vAcc; H = vAcc + 96; C = vAcc + 48
    for p in range(4):
        A(f"v_xor_b32 v{t+11}, {64*p}, v{t+9}")
        A(f"ds_read_b128 {vr(C+8*p,4)}, v{t+11}")
        A(f"ds_read_b128 {vr(C+8*p+4,4)}, v{t+11} offset:256")
    A(f"s_lshr_b32 s7, s{sWave}, 1")
    A(f"s_lshl_b32 s6, s{sFb}, 1")
    A(f"s_add_u32 s6, s6, 128")
    A(f"s_add_u32 s{sT0}, s6, s7")
    A(f"s_xor_b32 s7, s7, 1")
    A(f"s_add_u32 s{sT1}, s6, s7")
    A(f"s_lshl_b32 s{qT0}, s{sT0}, 12")
    A(f"s_lshl_b32 s{qT1}, s{sT1}, 12")
    A("s_waitcnt lgkmcnt(0)")
    ffq = wo_dma[5 * SPL[0]:] + kv_dma()[:5 * SPL[1]]
    kq = spread(ffq, 24) if ffq else [[]] * 24
    for p in range(4):
        for r2 in range(2):
            g_ = 3 * (p * 2 + r2)
            G = [(2 * r2 + i, T + 12 * i + 24 * ((p * 2 + r2) & 1)) for i in range(2)]
            for rt, b in G:
                for i in range(4): A(f"v_accvgpr_read_b32 v{b+i}, a{aG+(p*4+rt)*4+i}")
                for i in range(4): A(f"v_accvgpr_read_b32 v{b+4+i}, a{aUp+(p*4+rt)*4+i}")
            emit(kq[g_])
            for rt, b in G:
                for h in range(4):
                    A(f"v_pk_fma_f32 {vr(b+2*h,2)}, {vr(C+8*p+2*h,2)}, {vr(vSt+4*rt,2)}, {vr(b+2*h,2)} op_sel_hi:[1,0,1]")
            for rt, b in G:
                for h in range(2): A(f"v_pk_mul_f32 {vr(b+8+2*h,2)}, {vr(b+2*h,2)}, {vr(vSt+4*rt,2)} op_sel:[0,1]")
            for rt, b in G:
                for i in range(4): A(f"v_exp_f32 v{b+8+i}, v{b+8+i}")
            emit(kq[g_+1])
            for rt, b in G:
                for h in range(2): A(f"v_pk_mul_f32 {vr(b+2*h,2)}, {vr(b+2*h,2)}, {vr(b+4+2*h,2)}")
            for rt, b in G:
                for h in range(2):
                    A(f"v_pk_fma_f32 {vr(b+8+2*h,2)}, {vr(b+8+2*h,2)}, {vr(vSt+4*rt+2,2)}, {vr(vSt+4*rt+2,2)} op_sel_hi:[1,0,0]")
            for rt, b in G:
                for i in range(4): A(f"v_rcp_f32 v{b+8+i}, v{b+8+i}")
            emit(kq[g_+2])
            for n, (rt, b) in enumerate(G):
                for h in range(2): A(f"v_pk_mul_f32 {vr(b+2*h,2)}, {vr(b+2*h,2)}, {vr(b+8+2*h,2)}")
            for rt, b in G:
                for h in range(2): A(f"v_cvt_pk_bf16_f32 v{H+(p//2)*16+rt*4+(p&1)*2+h}, v{b+2*h}, v{b+2*h+1}")
        if p & 1:
            pi = p // 2
            A(f"s_bitcmp1_b32 s{sWave}, 0")
            A(f"s_cbranch_scc0 {L}nsw{pi}")
            for rt in range(4):
                for h in range(2): A(f"v_swap_b32 v{H+pi*16+rt*4+h}, v{H+pi*16+rt*4+2+h}")
            A(f"{L}nsw{pi}:")
    A(f"s_branch {L}ffnd")
    A(f"{L}noffn:")
    emit(ffq)
    A(f"s_mov_b32 s{qT0}, 0x1000000")
    A(f"s_mov_b32 s{qT1}, 0x1000000")
    A("s_barrier")
    srd(A, qA, pW2, pW2 + 1, 1728 * 1280)
    wp_src_voff(A, vAcc)
    wp_addr(A, 13)
    A(f"s_mul_i32 s{sT2}, s{sRb}, 5")
    A(f"s_add_u32 s{sT2}, s{sT2}, s{sProd}")
    A(f"s_lshl2_add_u32 s{sT2}, s{sT2}, s{sWave}")
    A(f"{L}w2j:")
    A(f"s_mul_hi_u32 s{sT0}, s{sT2}, 0x33333334")
    A(f"s_mul_i32 s{sT1}, s{sT0}, 5")
    A(f"s_sub_u32 s{sT1}, s{sT2}, s{sT1}")
    A(f"s_mul_i32 s7, s{sT0}, 40960")
    A(f"s_lshl_b32 s6, s{sT1}, 8")
    A(f"s_add_u32 s{sT0}, s7, s6")
    A(f"s_lshl_b32 s6, s{sT1}, 13")
    A(f"s_add_u32 s7, s7, s6")
    A(f"s_add_u32 s{sT1}, s7, {128*40960}")
    A(f"s_lshl_b32 s6, s{sWave}, 13")
    for su in range(2):
        A(f"s_add_u32 m0, s6, {R3+su*4096}")
        A("s_nop 0")
        for j in range(4): A(f"buffer_load_dwordx4 v{vAcc+4*su+j}, s[{qA}:{qA+3}], s{sT0} offen offset:{j*1024} lds")
    A("s_waitcnt vmcnt(0)")
    wp_reads(A, 4096)
    A("s_waitcnt lgkmcnt(0)")
    wp_stores(A, sT1)
    A(f"s_add_u32 s{sT2}, s{sT2}, 160")
    A(f"s_cmp_lt_u32 s{sT2}, 270")
    A(f"s_cbranch_scc1 {L}w2j")
    A(f"{L}ffnd:")
    for i in range(4): A(f"v_mov_b32 v{vOnes+i}, -1")
    A(f"s_mul_i32 s6, s{qP}, 30720")
    A(f"s_mul_i32 s7, s{sWave}, 7680")
    A(f"s_min_u32 s7, s7, 22528")
    A(f"s_add_u32 s{sSen}, s6, s7")
    A(f"s_lshl_b32 s{sWpO}, s{sU}, 12")
    wp_addr(A, 13, reg=R4, n=1, dst=vWpB)
    A(f"s_lshl_b32 s{sTch}, s{sHead}, 14")
    A(f"v_and_b32 v{vTch}, 15, v{vLane}")
    A(f"v_lshlrev_b32 v{vTch}, 7, v{vTch}")
    A(f"v_add_u32 v{vL16+1}, 4096, v{vL16}")
    A(f"s_lshl_b32 s6, s{sRb}, 5")
    A(f"s_add_u32 s7, s6, s{sHead}")
    A(f"s_lshl_b32 s7, s7, 7")
    A(f"v_mov_b32 v{vFo}, s7")
    stamp(4)
    A(f"s_mov_b32 s{sT1}, {R0}")
    kv_addr(A, sT1)
    A(f"v_mov_b32 v{vL}, 0")
    A(f"v_mov_b32 v{vL+1}, 0")
    A(f"s_cmp_eq_u32 s{sWave}, 0")
    A(f"s_cselect_b32 s{sTail}, 0, 0x8000")
    srd(A, qX, pFl, pFl + 1, 0x8000)
    A(f"s_add_u32 s6, s{sNo}, 1")
    A(f"v_mov_b32 v{vFv}, s6")
    A(f"v_mov_b32 v{vFv+1}, s{sNo+1}")
    A(f"s_waitcnt vmcnt(20)")
    A("s_barrier")
    stamp(5, True)
    lq = LQ()
    for p in range(3):
        A(kread(p, 0, p)); lq.issue(("f", 16 + p))
    ex0 = {33 + 4 * i: [hst(1, i)] for i in range(4)}
    rest = kvq() if SPL[1] == 0 else [f"s_add_u32 m0, s{sKVm}, 16384"] + kvq()[6:]
    ex0 = {32 + i: x for i, x in enumerate(spread(rest, 16))}
    attn_seg(A, lq, 2, ex0, sm_lo=0, sm_hi=0, look=[2])
    for p in range(3):
        A(kread(p, 1, p)); lq.issue(("f", p))
    A("s_nop 7")
    for e in range(10):
        for x in sm_exp(0, e): A(x)
        if e:
            for x in sm_post(0, e - 1): A(x)
    assert XP or lq.q == [("f", 0), ("f", 1), ("f", 2)]
    def put(ex, slots, items):
        for sl, its in zip(slots, spread(items, len(slots))): ex.setdefault(sl, []).extend(its)
    PA = Asm()
    PA(f"s_lshl_b32 s6, s{sRb}, 5")
    PA(f"v_and_b32 v{vAp}, 3, v{vLane}")
    PA(f"v_lshlrev_b32 v{vAp}, 2, v{vAp}")
    PA(f"s_and_b32 s7, s{sHead}, 0x13")
    PA(f"s_add_u32 s7, s7, s6")
    PA(f"v_add_lshl_u32 v{vAp}, v{vAp}, s7, 7")
    PA(f"s_lshr_b32 s7, s{qRb}, 1")
    PA(f"s_lshl_b32 s6, s7, 5")
    PA(f"s_lshl_b32 s{sT0}, s{sWave}, 3")
    PA(f"s_add_u32 s6, s6, s{sT0}")
    PA(f"v_add_lshl_u32 v{vAa}, v{vLane}, s6, 7")
    PA(f"v_cmp_gt_u32 vcc, 8, v{vLane}")
    PA(f"v_and_b32 v{vAb}, 15, v{vLane}")
    PA(f"v_lshlrev_b32 v{vAb}, 2, v{vAb}")
    PA(f"s_lshl_b32 s6, s{sWave}, 6")
    PA(f"s_add_u32 s6, s6, 3")
    PA(f"v_add_lshl_u32 v{vAb}, v{vAb}, s6, 7")
    PA(f"v_cndmask_b32 v{vAa}, v{vAb}, v{vAa}, vcc")
    PA(f"v_bfe_u32 v{vAo}, v{vLane}, 4, 1")
    PA(f"v_add_u32 v{vAo}, s{qCb}, v{vAo}")
    PA(f"v_cmp_gt_u32 vcc, 32, v{vLane}")
    PA(f"v_mov_b32 v{vPb}, s7")
    PA(f"s_mul_i32 s6, s{qP}, 21")
    PA(f"s_add_u32 s6, s6, 1")
    PA(f"v_cndmask_b32 v{vAo}, v{vPb}, v{vAo}, vcc")
    PA(f"s_lshr_b32 s6, s6, 1")
    PA(f"v_and_b32 v{vPb}, 15, v{vLane}")
    PA(f"v_min_u32 v{vPb}, 10, v{vPb}")
    PA(f"v_add_u32 v{vPb}, s6, v{vPb}")
    PA(f"v_cmp_gt_u32 vcc, 48, v{vLane}")
    PA(f"v_lshl_add_u32 v{vAo}, v{vAo}, 5, v{vPb}")
    PA(f"v_lshlrev_b32 v{vAo}, 7, v{vAo}")
    PA(f"v_cndmask_b32 v{vAo}, v{vAp}, v{vAo}, vcc")
    odd = lambda a, b: [x for x in range(a, b) if x & 1]
    def wo_job(ex, f, s0, s1):
        r = aWq + 4 * (f & 1)
        ex.setdefault(s0 - 2, []).append(f"v_xor_b32 v{vWpA}, {((f&3)<<5)|((f&4)<<10)}, v{vWpB}")
        ex[(s0, "ds")] = [f"ds_read_b64_tr_b16 {ar(r,2)}, v{vWpA} ; @need P 0"]
        ex[(s0 + 2, "ds")] = [f"ds_read_b64_tr_b16 {ar(r+2,2)}, v{vWpA} offset:2048"]
        ex.setdefault(s1, []).append(f"buffer_store_dwordx4 {ar(r,4)}, v{vL16+f//4}, s[{sWp}:{sWp+3}], s{sWpO} offen offset:{(f&3)*1024} sc1 ; @put H")
    def mark(f): return f"buffer_store_dwordx4 {vr(vOnes,4)}, v{vL16+f//4}, s[{qI}:{qI+3}], s{sSen} offen offset:{(f&3)*1024} sc1 ; @put H"
    stamp(6, True)
    BW = {0: 12, 1: 16, 2: 13, 3: 12, 4: 14, 5: 13}
    if "wbl2" in OPT: BW.update({0: 16, 1: 8, 2: 9})
    for t_ in range(8):
        ex = {}
        delta = hex((-98304) & 0xffffffff) if t_ == 3 else "0x8000"
        if t_ < 7:
            for p in range(8):
                ex.setdefault(max(2 * (p - 3) + 1, 1) if p >= 3 else 2 * p, []).append(f"v_add_u32 v{vKr+p}, {delta}, v{vKr+p}")
            for dt in range(4):
                ex.setdefault(2 * (28 + dt - 3) + 2, []).append(f"v_add_u32 v{vVr+dt}, {delta}, v{vVr+dt}")
        if t_ < 5:
            for sl, it in zip([32, 33, 37, 41, 45, 47, 49, 53, 57, 61], kv_dma()): ex.setdefault(sl, []).append(it)
            ex.setdefault(62, []).append(f"s_add_u32 s{sKVo}, s{sKVo}, 16384")
            ex.setdefault(59, []).append(f"s_add_u32 s{sKVm}, s{sKVm}, {hex((-98304) & 0xffffffff) if t_ == 0 else 32768}")
        if t_ < 6: ex[(26, "pre")] = [f"s_waitcnt vmcnt({BW[t_]})", "s_barrier ; @need KV 8 @need Xa 0" + (" @need HH 0 @need WB 0" if t_ == 3 else "")]
        if "wbl2" in OPT:
            if t_ == 0: put(ex, [1, 3, 5, 7, 9, 11, 13, 15], [hst(i // 4, i % 4) for i in range(8)])
            if t_ == 1: put(ex, [31], [f"s_cmp_lg_u32 s{sWave}, 0\ns_cbranch_scc1 {L}nwb\nbuffer_wbl2 sc1\n{L}nwb:"])
        elif t_ < 2: put(ex, [3, 9, 15, 23], [hst(t_, i) for i in range(4)])
        if t_ in (2, 3, 4):
            wo_job(ex, 2 * t_ - 4, 5, 17); wo_job(ex, 2 * t_ - 3, 11, 29)
        if t_ == 3: put(ex, [35], [f"buffer_store_dwordx2 {vr(vFv,2)}, v{vFo}, s[{qX}:{qX+3}], s{sTail} offen sc1"])
        if t_ in (3, 4): put(ex, [21], [mark(t_ - 3)])
        if t_ == 4:
            for sl, its in zip(list(range(14, 25)) + list(range(27, 52)), spread(PA.lines, 36)): ex.setdefault((sl, "post"), []).extend(its)
        if t_ == 5:
            wo_job(ex, 6, 5, 17); wo_job(ex, 7, 11, 29)
            put(ex, [21, 33, 39, 45], [mark(i) for i in range(2, 6)])
            put(ex, [51], [f"global_load_dwordx2 {vr(vPa,2)}, v{vAa}, s[{pFl}:{pFl+1}] sc1"])
            put(ex, [x for x in range(30, 64) if x not in (33, 39, 45, 51)], q_setup())
        elif t_ == 6:
            put(ex, [5, 13], [mark(6), mark(7)])
            B_ = Asm(); B_("s_waitcnt vmcnt(2)"); B_(f"s_cmp_lg_u32 s{qP}, 3"); B_(f"s_cbranch_scc1 {L}w1r")
            flag_wait(B_, f"{L}w1", 1, [(vPa, vAa)]); B_("s_barrier")
            ex[(26, "pre")] = B_.lines
            put(ex, odd(31, 64), q_loads(0) + q_loads(1)[:6])
        elif t_ == 7:
            ex[(26, "pre")] = ["s_barrier"]
            put(ex, [1, 3, 5, 7, 9, 11, 15, 17, 19, 21, 23, 25, 27, 31], q_loads(1)[6:] + q_loads(2)[:7])
        if t_ >= 5: stamp(t_ + 2, True)
        attn_seg(A, lq, 0, ex)
        attn_seg(A, lq, 1, ex, look=(True if t_ < 7 else [1]))
        if t_ < 7:
            attn_seg(A, lq, 2, ex)
            attn_seg(A, lq, 3, ex)
    stamp(10, True)
    ex = {}
    put(ex, [33, 37, 41, 45, 49, 53, 57], q_loads(2)[7:])
    attn_seg(A, lq, 2, ex, mfma=False, look=[3])
    attn_seg(A, lq, 3, ex, sm_hi=54, look=[3])
    stamp(5)
    for i_ in (11, 12, 13): stamp(i_, True)
    if "fine2" in XP:
        A(f"s_lshl_b32 s96, s2, 2"); A(f"s_add_u32 s96, s96, s{sWave}"); A("s_lshl_b32 s96, s96, 10")
        A(f"v_lshl_add_u32 v227, v{vLane}, 2, s96")
        A(f"s_add_u32 s96, s{pWs}, 0x3200000"); A(f"s_addc_u32 s97, s{pWs+1}, 0")
        for i in range(3): A(f"global_store_dword v227, v{224+i}, s[96:97] offset:{256*i}")
    A(f"v_mov_b32 v{t}, v{vL}")
    A(f"v_mov_b32 v{t+1}, v{vL+1}")
    A(f"v_bfe_u32 v{t+2}, v{vLane}, 4, 1")
    A(f"v_lshrrev_b32 v{t+3}, 5, v{vLane}")
    A(f"v_permlane32_swap_b32 v{t}, v{vL}")
    A(f"v_permlane32_swap_b32 v{t+1}, v{vL+1}")
    A(f"v_lshlrev_b32 v{t+3}, 8, v{t+3}")
    A(f"v_add_f32 v{vL}, v{vL}, v{t}")
    A(f"v_add_f32 v{vL+1}, v{vL+1}, v{t+1}")
    A(f"v_lshl_add_u32 v{t+3}, v{t+2}, 10, v{t+3}")
    A(f"v_and_b32 v{t+2}, 15, v{vLane}")
    A(f"v_lshl_add_u32 v{vOo}, v{t+2}, 4, v{t+3}")
    A(f"v_mov_b32 v{t+8}, {hex(f2u(2.0**-40))}")
    A(f"v_mov_b32 v{t+9}, {hex(f2u(2.0**40))}")
    A(f"v_cmp_gt_f32 s[{sE0}:{sE0+1}], v{vL}, v{t+8}")
    A(f"v_cmp_lt_f32 s[{sE0+2}:{sE0+3}], v{vL}, v{t+9}")
    A(f"v_cmp_gt_f32 s[4:5], v{vL+1}, v{t+8}")
    A(f"v_cmp_lt_f32 s[6:7], v{vL+1}, v{t+9}")
    A(f"v_rcp_f32 v{t}, v{vL}")
    A(f"v_rcp_f32 v{t+1}, v{vL+1}")
    A("s_nop 1")
    A(f"s_and_b64 s[{sE0}:{sE0+1}], s[{sE0}:{sE0+1}], s[{sE0+2}:{sE0+3}]")
    A(f"s_and_b64 s[4:5], s[4:5], s[6:7]")
    A(f"s_and_b64 s[4:5], s[4:5], s[{sE0}:{sE0+1}]")
    A(f"s_cmp_eq_u64 s[4:5], exec")
    if not XP: A(f"s_cbranch_scc0 {L}slow ; slowbr")
    A(f"{L}oep:")
    A(f"s_lshl_b32 s6, s{sHead}, 14")
    n = 0
    for dt in range(4):
        for qt in range(2):
            b = vS + (n % 4) * 16; pk = vP + (n % 4) * 8; n += 1
            for i in range(16): A(f"v_accvgpr_read_b32 v{b+i}, a{aO+(qt*4+dt)*16+i}")
            for i in range(8):
                A(f"v_pk_mul_f32 {vr(b+2*i,2)}, {vr(b+2*i,2)}, {vr(t,2)} " + ("op_sel_hi:[1,0]" if qt == 0 else "op_sel:[0,1]"))
            for i in range(8): A(f"v_cvt_pk_bf16_f32 v{pk+i}, v{b+2*i}, v{b+2*i+1}")
            for j in range(2):
                A(f"buffer_store_dwordx4 {vr(pk+4*j,4)}, v{vOo}, s[{sA}:{sA+3}], s6 offen offset:{qt*2048+j*512} sc1 ; @put H")
        if dt < 3: A("s_add_u32 s6, s6, 4096")
    stamp(6); stamp(7)
    gemm2(A, L, emit, stamp)
    A(f"{L}end:")
    A("s_endpgm")
    A(f"{L}slow:")
    A("s_waitcnt vmcnt(0) lgkmcnt(0)")
    srd(A, sK, pK, pK + 1, 16777216)
    srd(A, sV, pV, pV + 1, 16777216)
    kv_dma_voff(A, vKd, vVd)
    A(f"s_lshl_b32 s{sT1}, s{sWave}, 13")
    A(f"s_add_u32 s{sT1}, s{sT1}, {R2}")
    kv_addr(A, sT1)
    for dt in range(4): A(f"v_add_u32 v{vVr+dt}, {R4-R2-16384}, v{vVr+dt}")
    vM = vTm + 6
    A(f"v_mov_b32 v{vM}, 0xff800000")
    A(f"v_mov_b32 v{vM+1}, 0xff800000")
    A(f"v_mov_b32 v{vL}, 0")
    A(f"v_mov_b32 v{vL+1}, 0")
    for i in range(4): A(f"v_mov_b32 v{vTm+12+i}, 0")
    A("s_nop 1")
    for i in range(8): mf32(A, ar(aO + 16 * i, 16), vr(vTm + 12, 4), vr(vTm + 12, 4), "0")
    A(f"s_mov_b32 s{sT}, 0")
    A(f"{L}sl:")
    A(f"s_and_b32 s{sT0}, s{sT}, 15")
    A(f"s_lshl_b32 s{sT0}, s{sT0}, 13")
    A(f"s_lshl_b32 s{sKVo}, s{sHead}, 19")
    A(f"s_add_u32 s{sKVo}, s{sKVo}, s{sT0}")
    A(f"s_add_u32 s{sKVo}, s{sKVo}, {1536*256}")
    for hf in range(2):
        A(f"s_add_u32 m0, s{sT1}, {hf*4096}")
        A("s_nop 0")
        for j in range(4): A(f"buffer_load_dwordx4 v{vKd+j}, s[{sK}:{sK+3}], s{sKVo} offen offset:{j*1024} lds")
        A(f"s_add_u32 m0, s{sT1}, {R4-R2+hf*4096}")
        A("s_nop 0")
        for j in range(4): A(f"buffer_load_dwordx4 v{vVd}, s[{sV}:{sV+3}], s{sKVo} offen offset:{j*1024} lds")
        if hf == 0: A(f"s_add_u32 s{sKVo}, s{sKVo}, 4096")
    A("s_waitcnt vmcnt(0)")
    for p in range(8):
        A(kread(p, 0, p % 4))
        A("s_waitcnt lgkmcnt(0)")
        for qt in range(2): mf32(A, vr(vS + qt * 16, 16), vr(vF + (p % 4) * 4, 4), vr(vQ + (qt * 8 + p) * 4, 4), "0" if p == 0 else None)
    A("s_nop 11")
    A(f"s_cmp_ge_u32 s{sT}, 16")
    A(f"s_cbranch_scc1 {L}sl2")
    for qt in range(2):
        for i in range(8): A(f"v_max3_f32 v{vM+qt}, v{vS+qt*16+2*i}, v{vS+qt*16+2*i+1}, v{vM+qt}")
    A(f"s_cmp_lg_u32 s{sT}, 15")
    A(f"s_cbranch_scc1 {L}sl3")
    A(f"v_mov_b32 v{vM+2}, v{vM}")
    A(f"v_mov_b32 v{vM+3}, v{vM+1}")
    A("s_nop 1")
    A(f"v_permlane32_swap_b32 v{vM+2}, v{vM}")
    A(f"v_permlane32_swap_b32 v{vM+3}, v{vM+1}")
    A(f"v_max_f32 v{vM}, v{vM}, v{vM+2}")
    A(f"v_max_f32 v{vM+1}, v{vM+1}, v{vM+3}")
    A(f"s_branch {L}sl3")
    A(f"{L}sl2:")
    for e in range(32):
        r, qt, ks = sm_reg(0, e)
        A(f"v_sub_f32 v{r}, v{r}, v{vM+qt}")
        A(f"v_exp_f32 v{r}, v{r}")
        A("s_nop 0")
        for x in sm_post(0, e): A(x)
    for i in range(8):
        for sec in range(2): A(vread(i // 4, i % 4, 0, sec, i % 4))
        A("s_waitcnt lgkmcnt(0)")
        for qt in range(2): mf32(A, ar(aO + (qt * 4 + i % 4) * 16, 16), vr(vF + (i % 4) * 4, 4), vr(vP + (qt * 2 + i // 4) * 4, 4))
    A(f"{L}sl3:")
    A(f"s_add_u32 s{sT}, s{sT}, 1")
    A(f"s_cmp_lt_u32 s{sT}, 32")
    A(f"s_cbranch_scc1 {L}sl")
    A(f"v_mov_b32 v{t}, v{vL}")
    A(f"v_mov_b32 v{t+1}, v{vL+1}")
    A("s_nop 1")
    A(f"v_permlane32_swap_b32 v{t}, v{vL}")
    A(f"v_permlane32_swap_b32 v{t+1}, v{vL+1}")
    A(f"v_add_f32 v{vL}, v{vL}, v{t}")
    A(f"v_add_f32 v{vL+1}, v{vL+1}, v{t+1}")
    A(f"v_rcp_f32 v{t}, v{vL}")
    A(f"v_rcp_f32 v{t+1}, v{vL+1}")
    A("s_nop 7")
    A(f"s_branch {L}oep")
    kd(A, name, 512, 256)

def checks(A, entry):
    if XP: return
    nb = check_hazards(A.lines)
    tot = 0
    for wg in (0, 5, 6, 31, 24, 28, 255):
        for w in (0, 1, 3):
            for slow in (0, 1):
                def hk(x, S):
                    if x.opn == "v_readfirstlane_b32" and "tag" not in x.text:
                        S[sWave] = w
                    if "slowbr" in x.text: return slow
                    if "pollbr" in x.text: return 1
                p, c = check_waits(A.lines, entry, {2: wg}, hk)
                tot += p
    print("hazards:", nb, "waits:", tot, c)

def build(fn, stamps=False):
    HDR = open("cdna_kernels/" + NAME + ".s.ref").read().split("; Override")[0]
    A = Asm()
    A(HDR)
    A(f"; @launch grid=(256,1,1) block=(256,1,1) lds={P1_LDS}")
    A('.amdgcn_target "amdgcn-amd-amdhsa--gfx950"')
    A(".text")
    gen_p1(A, NAME + "_kernel", stamps=stamps)
    checks(A, NAME + "_kernel")
    if "hplain" in XP: A.lines = [l.replace(" sc1", "") if ("store" in l and f"s[{sA}:{sA+3}], s6 " not in l and f"s[{sA}:{sA+3}]" in l) else l for l in A.lines]
    if "oplain" in XP: A.lines = [l.replace(" sc1", "") if ("store" in l and f"s[{sA}:{sA+3}], s6 " in l) else l for l in A.lines]
    if "iplain" in XP: A.lines = [l.replace(" sc1", "") if ("store" in l and f"s[{qI}:{qI+3}], s{sT0}" in l) else l for l in A.lines]
    if "nt" in XP: A.lines = [l.replace(" sc1", " sc1 nt") if ("buffer_store" in l) else l for l in A.lines]
    if "sc01" in XP: A.lines = [l.replace(" sc1", " sc0 sc1") if ("buffer_store" in l) else l for l in A.lines]
    open(fn, "w").write(A.text())
if __name__ == "__main__":
    build("fu.s")
    build("fu_st.s", stamps=True)
```

```python
import sys; sys.path.insert(0,'gen')
import fused
fused.OPT = {"attst", "wbl2"}
fused.build(f"fu_st_a.s", stamps=True)
fused.OPT = {"wbl2"}
fused.build(f"fu_st_b.s", stamps=True)
fused.build(f"fu_a.s")
```

```python
from asmlib import *
from common import *

P1_LDS = 163840
R0, R1, R2, R3, R4 = 0, 32768, 65536, 98304, 131072
CS = R3
TAILBIT = 0x30000
ROT = False
TLBW = True
FLAG = 'byte'
FINE = False
EVMASK = 0x180
vFin = 60
XP = set()

class LQ:
    def __init__(s): s.q = []
    def issue(s, tag): s.q.append(tag)
    def wait(s, A, tags):
        idx = max([i for i, t in enumerate(s.q) if t in tags], default=-1)
        if idx < 0: return
        n = len(s.q) - 1 - idx
        assert n <= 15
        A(f"s_waitcnt lgkmcnt({n})")
        s.q = s.q[idx + 1:]
    def clear(s): s.q = []

sX, sWq, sW1, sW3, sK, sV, sA, sWp, sSrc, sSt = 8, 12, 16, 20, 24, 28, 32, 36, 40, 44
sWave, sHead, sRb, sFb, sHasF = 48, 49, 50, 51, 52
sXo, sWqo, sW13o, sM0X, sM0W, sD, sTail, sSlot = 53, 54, 55, 56, 57, 58, 59, 60
sT0, sT1, sT2 = 61, 62, 63
pX, pK, pV, pWq, pWo, pBx, pW1, pW3, pW2, pOut, pDbg, pWs = range(64, 88, 2)
sKVo, sKVm, sDelta, sT, sU, sMask, sXb, sC0 = 88, 89, 90, 91, 92, 93, 94, 95
sX2, sM0d, sXst, sM0t, sProd, sPo = 76, 74, 75, 3, 4, 5
sE0 = 96
vLane = 1
vXd, vWqd, vW13d, vXr, vWqr, vW13r = 2, 10, 12, 13, 15, 23
vZero = 27
vSt = 28
vTm = 44
vQ = 64
vAcc = 128
aG, aUp, aCs, aXf, aWf, aOne, aWp = 0, 64, 128, 144, 176, 192, 196
vKr, vVr, vKd, vVd, vL, vOo = 14, 10, 2, 6, 22, 24
vWs, vKb, vVb = 56, 57, 58
vS, vP, vF = 128, 192, 208
aO = 128
sNo = 100
pFl = 84
qA, qW, qX, qO, qI = 8, 12, 16, 20, 44
qP, qG, qAo, qWo, qWm, qN, qAs, qWs = 53, 54, 55, 56, 57, 58, 51, 60
qAe, qWe, qNl, qSo, qXo, qRb, qCb, qT0, qT1, qIn = 74, 75, 3, 93, 94, 76, 77, 78, 79, 24
vFo, vFv, vPa, vPb, vAa, vAb, vAo, vAp = 25, 28, 30, 32, 34, 35, 36, 37
vL16, vWr2, vXo2, vL8, vOwn = 54, 2, 4, 5, 6
aA2, aW2, aWq = 0, 64, 64
RING2 = 81920
TOUCH = 0
PMAP = 0x2013
SLP = (0, 0, 0)
COOPX = 1
SPL = (1, 1)
OPT = set()
vTch, sTch = 26, 92
vOnes = 40
vWpB, vWpA = 59, 39
sWpO, sSen = 5, 4


def mf16(A, d, a, b, c=None):
    A(f"v_mfma_f32_16x16x32_bf16 {d}, {a}, {b}, {d if c is None else c}")
def mf32(A, d, a, b, c=None):
    A(f"v_mfma_f32_32x32x16_bf16 {d}, {a}, {b}, {d if c is None else c}")

def spread(items, nslots):
    out = [[] for _ in range(nslots)]
    n = len(items)
    for i, it in enumerate(items):
        out[min(nslots - 1, (i * nslots) // n)].append(it)
    return out

def frag_list(ffn):
    fr = [("Q", p) for p in range(8)]
    if ffn:
        for p in range(4): fr += [("G", p), ("U", p)]
    return fr

def wread(fr, k, sec, buf):
    c, p = fr
    if c == "Q": ad, off = vWqr + p, sec * 1024
    else: ad, off = vW13r + p, (2048 if c == "G" else 3072) + sec * 512
    return f"ds_read_b64_tr_b16 {ar(aWf+buf*4+2*sec,2)}, v{ad} offset:{off + k*16384}"

def xread(s, st, rt):
    return f"ds_read_b128 {ar(aXf+st*16+rt*4,4)}, v{vXr+s} offset:{rt*2048}"

def dma_w(ffn, force=False):
    it = [f"s_max_u32 m0, s{sM0W}, s{sTail}",
          f"buffer_load_dwordx4 v{vWqd}, s[{sWq}:{sWq+3}], s{sWqo} offen lds ; @put W",
          f"buffer_load_dwordx4 v{vWqd+1}, s[{sWq}:{sWq+3}], s{sWqo} offen offset:1024 lds ; @put W"]
    if ffn or force:
        it += [f"buffer_load_dwordx4 v{vW13d}, s[{sW1}:{sW1+3}], s{sW13o} offen offset:2048 lds ; @put W",
               f"buffer_load_dwordx4 v{vW13d}, s[{sW3}:{sW3+3}], s{sW13o} offen offset:3072 lds ; @put W"]
    it += [f"s_add_u32 s{sWqo}, s{sWqo}, {32*8192}"]
    if ffn or force: it += [f"s_add_u32 s{sW13o}, s{sW13o}, {32*3456}"]
    it += [f"s_add_u32 s{sSlot}, s{sSlot}, 16384\ns_and_b32 s{sSlot}, s{sSlot}, 0xffff",
           f"s_add_u32 s{sM0W}, s{sSlot}, s{sC0}"]
    return it

def dma_x(half):
    if half == 0: it = [f"s_mov_b32 m0, s{sM0X}"]
    else: it = [f"s_add_u32 m0, s{sM0X}, s{sM0d}"]
    sd = sX if half == 0 else sX2
    for j in range(4):
        it.append(f"buffer_load_dwordx4 v{vXd+4*half+j}, s[{sd}:{sd+3}], s{sXo} offen offset:{j*1024} lds")
    if half: it += [f"s_add_u32 s{sXo}, s{sXo}, s{sXst}\ns_xor_b32 s{sM0X}, s{sM0X}, s{sM0t}"]
    return it

def fine(A):
    A("s_memtime s[98:99]"); A("s_waitcnt lgkmcnt(0)")
    A("s_mov_b32 m0, s7")
    A(f"v_writelane_b32 v{vFin}, s96, m0")
    A(f"v_writelane_b32 v{vFin+1}, s100, m0")
    A(f"v_writelane_b32 v{vFin-1}, s98, m0")
    A("s_add_u32 s7, s7, 1")

def kstep(A, lq, ffn, k, slots, sal, tog, bar, last=None):
    fr = frag_list(ffn); nf = len(fr)
    ones = {("Q", 0): 0, ("Q", 1): 1, ("G", 0): 2, ("U", 0): 3}
    for f in range(nf):
        c, p = fr[f]
        lq.wait(A, [("w", f)] + ([("x", k)] if f == 0 else []))
        buf = f % 4
        for rt in range(4):
            r_ = rt if f % 2 == 0 else 3 - rt
            if c == "Q": d = vr(vAcc + (p * 4 + r_) * 4, 4)
            else: d = ar((aG if c == "G" else aUp) + (p * 4 + r_) * 4, 4)
            mf16(A, d, ar(aWf + buf * 4, 4), ar(aXf + k * 16 + r_ * 4, 4))
            if f + 3 < nf and rt < 2:
                A(wread(fr[f + 3], k, rt, (f + 3) % 4)); lq.issue(("w", f + 3))
            if last is not None and f >= nf - 2:
                for it in last[4 * (f - nf + 2) + rt]: A(it)
            elif f == nf - 2:
                A(wread(fr[rt // 2], 1 - k, rt % 2, (rt // 2) % 4)); lq.issue(("w", rt // 2))
            elif f == nf - 1 and rt < 2:
                A(wread(fr[2], 1 - k, rt, 2)); lq.issue(("w", 2))
            if rt == 1:
                for it in sal.get(f, []): A(it)
            if rt >= 2 and f < nf - 2:
                for it in slots[2 * f + rt - 2]:
                    if isinstance(it, tuple):
                        A(xread(1 - k, 1 - k, it[1])); lq.issue(("x", 1 - k))
                    else:
                        if "lds" in it and " m0," in A.lines[-1]: A("s_nop 0")
                        A(it)
                        if it.startswith("ds_"): lq.issue(("o", 0))
            if rt == 3:
                for t in tog.get(f, []): A(t)
        if fr[f] in ones:
            mf16(A, ar(aCs + ones[fr[f]] * 4, 4), ar(aWf + buf * 4, 4), ar(aOne, 4))
        if f == nf - 3:
            A(f"s_waitcnt vmcnt({bar[0]}) lgkmcnt(0)")
            lq.clear()
            A(f"s_barrier ; {bar[1]}")

def poll_check(A, L):
    A(f"s_mov_b32 s{sT1}, 0")
    A(f"{L}_chk:")
    A(f"v_cmp_ne_u32 vcc, 0x01010101, v{vTm}")
    A(f"v_cmp_eq_u32 s[6:7], 0, v{vTm+5}")
    A("s_nop 3")
    A(f"s_or_b64 s[6:7], s[6:7], vcc")
    A(f"s_cbranch_scc0 {L}_rdy ; pollbr")
    A(f"s_add_u32 s{sT1}, s{sT1}, 1")
    A(f"s_cmp_ge_u32 s{sT1}, 0x40000")
    A(f"s_cbranch_scc1 {L}_rdy")
    for it in poll_loads(): A(it)
    A("s_waitcnt vmcnt(0)")
    A(f"s_branch {L}_chk")
    A(f"{L}_rdy:")
def poll_loads():
    return [f"global_load_dword v{vTm}, v{vTm+2}, s[{pDbg}:{pDbg+1}] sc1",
            f"global_load_dwordx2 {vr(vTm+4,2)}, v{vTm+6}, s[{pDbg}:{pDbg+1}] offset:128 sc1"]
def stats_scale():
    o = []
    for rt in range(4):
        q = vSt + 4 * rt
        o += [f"v_mul_f32 v{q+3}, {hex(f2u(LOG2E/128**0.5))}, v{q+1}", f"v_mul_f32 v{q+1}, {hex(f2u(-LOG2E))}, v{q+1}"]
    return o + [f"v_mov_b32 v{vTm+4+i}, 0" for i in range(4)]
CSB = [14, 18, 22]
def cs_writes():
    t = vTm
    return [f"ds_write_b128 v{t+8}, {ar(aCs,4)}", f"ds_write_b128 v{t+8}, {ar(aCs+4,4)} offset:64",
            f"ds_write_b128 v{t+9}, {ar(aCs+8,4)}", f"ds_write_b128 v{t+9}, {ar(aCs+12,4)} offset:256"]

def gemm_loop(A, ffn, L):
    fr = frag_list(ffn); nf = len(fr)
    nw = 4 if ffn else 2
    lq = LQ()
    for f in range(3):
        lq.issue(("w", f)); lq.issue(("w", f))
    tg = lambda r, m: [f"v_xor_b32 v{r}, {m}, v{r}"]
    bar = (2 * nw + 8, f"@need W {2*nw}")
    A(".p2align 6")
    A(f"{L}:")
    if not ffn:
        items = [("x", rt) for rt in range(4)] + dma_x(1) + dma_w(ffn)
        kstep(A, lq, ffn, 0, spread(items, 2 * (nf - 2)), {}, {2: tg(vXr, "0x18000")}, bar)
        A(f"s_bitcmp1_b32 s{sMask}, s{sD}")
        A(f"s_cbranch_scc1 {L}_ev")
        A(f"{L}_evret:")
        slots = spread(dma_x(0) + dma_w(ffn) + [f"s_add_u32 s{sD}, s{sD}, 1"], 2 * (nf - 5))
        slots += [[f"s_cmp_eq_u32 s{sD}, 10\ns_cbranch_scc1 {L}_nw\ns_waitcnt vmcnt({2*nw+4})\n{L}_nw:"],
                  [("x", 0)], [("x", 1)], [("x", 2)], [("x", 3)], []]
        tog = {0: tg(vXr + 1, "0x18000")}
        for f, (c, p) in enumerate(fr): tog.setdefault(max(f - 3, -1) + 1, []).extend(tg(vWqr + p, "0x38000"))
        kstep(A, lq, ffn, 1, slots, {}, tog, bar)
        A(f"s_cmp_lt_u32 s{sD}, 10")
        A(f"s_cbranch_scc1 {L}")
        return
    def one(items):
        sl = [[] for _ in range(2 * (nf - 2))]
        for i, it in enumerate(items): sl[2 * i] = [it] if it else []
        return sl
    X = [("x", rt) for rt in range(4)]
    tog0 = {2: tg(vXr, "0x18000")}
    tog1 = {i: tg(vWqr + i, "0x38000") for i in range(7)}
    tog1.update({8: tg(vWqr + 7, "0x38000"), 9: tg(vW13r, "0x38000"), 10: tg(vW13r + 1, "0x38000"), 11: tg(vW13r + 2, "0x38000"),
                 12: tg(vW13r + 3, "0x38000"), 14: tg(vXr + 1, "0x18000")})
    xs, ws_ = dma_x(1), dma_w(True)
    kstep(A, lq, True, 0, one(X[:2] + xs[1:5] + X[2:] + ws_[1:5]),
          {1: [xs[0]], 6: [xs[5]], 7: [ws_[0]], 12: ws_[5:7], 13: ws_[7:], 15: [f"s_cmp_eq_u32 s{sD}, 8"]}, tog0, bar)
    A(f"s_cbranch_scc1 {L}_end")
    q_mid = list(lq.q)
    xs = dma_x(0)
    sl = one(xs[1:5] + ws_[1:5] + X)
    sl[2 * 7 + 1] = [f"s_waitcnt vmcnt({2*nw+4})"]
    kstep(A, lq, True, 1, sl, {0: [xs[0]], 4: [ws_[0]], 8: ws_[5:7], 9: ws_[7:8], 10: ws_[8:], 11: [f"s_add_u32 s{sD}, s{sD}, 1"]}, tog1, bar)
    A(f"s_branch {L}")
    A(f"{L}_end:")
    lq.q = q_mid
    kv = kv_dma()
    sl = one(poll_loads() + [None, None] + kv[1:5] + X)
    sl[2 * 7 + 1] = ["s_waitcnt vmcnt(10)"]
    for j in range(5): sl[2 * j + 1] = []
    tA = {f: list(v) for f, v in tog1.items()}
    mv = {f: [f"v_mov_b32 v{vKd+f}, v{vQ+f}"] for f in range(5)}
    kstep(A, lq, True, 1, sl, {**mv, 3: mv[3] + [f"s_lshl_b32 s{sKVm}, s{sWave}, 12", kv[0]]}, tA, (14, "@need W 4"))
    B_ = Asm(); B_("s_waitcnt vmcnt(4)"); poll_check(B_, L)
    st = [f"buffer_load_dwordx4 {vr(vSt+4*rt,4)}, v{vTm+3}, s[{sSt}:{sSt+3}], s{sT0} offen offset:{rt*256} sc1" for rt in range(4)]
    sl = one(X[:2] + st + X[2:] + kv[6:10])
    sl[1] = ["\n".join(B_.lines)]
    kstep(A, lq, True, 0, sl, {0: [f"s_lshl2_add_u32 s{sT0}, s{sRb}, s{sWave}\ns_lshl_b32 s{sT0}, s{sT0}, 10"], 7: [kv[5]],
                               2: [f"v_readfirstlane_b32 s{sNo}, v{vTm+4} ; tag"], 3: [f"v_readfirstlane_b32 s{sNo+1}, v{vTm+5} ; tag"],
                               4: [f"s_add_u32 s{pFl}, s{pWs}, {FL_OFF}\ns_addc_u32 s{pFl+1}, s{pWs+1}, 0"],
                               12: [f"s_add_u32 s{sKVo}, s{sKVo}, 16384\ns_add_u32 s{sKVm}, s{sKVm}, 32768"]}, {}, (14, "@need W 0"))
    cw = cs_writes()
    sl = one([None] + kv[1:3] + cw[:2] + kv[3:5] + [None] * 3 + [None] + cw[2:])
    ss = stats_scale()
    t = vTm
    last = [[f"ds_read_b128 {vr(CSB[0],4)}, v{t+8}", f"v_xor_b32 v{t+11}, 64, v{t+8}"], ss[0:2], [f"ds_read_b128 {vr(CSB[1],4)}, v{t+11}", ss[2]],
            ss[3:5], ss[5:7], ss[7:9], ss[9:11], ss[11:12] + [f"s_and_b32 s{qP}, s2, 3"]]
    kstep(A, lq, True, 1, sl, {0: [kv[0]]}, {}, (8, "@need KV 8"), last=last)

def kv_dma_voff(A, kd_, vd_, nv=4):
    t = vTm
    A(f"v_lshrrev_b32 v{t+12}, 4, v{vLane}")
    A(f"v_and_b32 v{t+14}, 15, v{vLane}")
    A(f"v_xor_b32 v{t+13}, v{t+14}, v{t+12}")
    A(f"v_lshlrev_b32 v{t+13}, 4, v{t+13}")
    A(f"v_lshl_add_u32 v{kd_}, v{t+12}, 8, v{t+13}")
    for j in range(1, 4): A(f"v_xor_b32 v{kd_+j}, {64*j}, v{kd_}")
    A(f"v_lshlrev_b32 v{t+13}, 2, v{t+12}")
    A(f"v_xor_b32 v{t+13}, v{t+13}, v{t+14}")
    A(f"v_lshlrev_b32 v{t+13}, 4, v{t+13}")
    A(f"v_lshl_add_u32 v{vd_}, v{t+12}, 8, v{t+13}")
    for j in range(1, nv): A(f"v_mov_b32 v{vd_+j}, v{vd_}")

def gemm_events(A, L):
    A(f"{L}_ev:")
    A(f"s_cmp_eq_u32 s{sD}, 8")
    A(f"s_cbranch_scc1 {L}_ev8")
    for it in poll_loads(): A(it)
    A(f"s_branch {L}_evret")
    A(f"{L}_ev8:")
    A(f"s_mov_b32 s{sTail}, {TAILBIT}")
    for d in (sWq, sW1, sW3): A(f"s_mov_b32 s{d+2}, 0")
    for d, s_ in ((sX, sK), (sX2, sV)):
        A(f"s_mov_b64 s[{d}:{d+1}], s[{s_}:{s_+1}]")
        A(f"s_mov_b64 s[{d+2}:{d+3}], s[{s_+2}:{s_+3}]")
    for j in range(8): A(f"v_mov_b32 v{vXd+j}, v{vQ+min(j,4)}")
    A(f"s_lshl_b32 s{sM0X}, s{sWave}, 12")
    A(f"s_mov_b32 s{sXo}, s{sKVo}")
    A(f"s_movk_i32 s{sM0d}, 16384")
    A(f"s_movk_i32 s{sXst}, 16384")
    A(f"s_mov_b32 s{sM0t}, 0x8000")
    A(f"s_waitcnt vmcnt(12)")
    poll_check(A, L)
    A(f"v_readfirstlane_b32 s{sNo}, v{vTm+4} ; tag")
    A(f"v_readfirstlane_b32 s{sNo+1}, v{vTm+5} ; tag")
    A(f"s_add_u32 s{pFl}, s{pWs}, {FL_OFF}")
    A(f"s_addc_u32 s{pFl+1}, s{pWs+1}, 0")
    A(f"s_lshl2_add_u32 s{sT0}, s{sRb}, s{sWave}")
    A(f"s_lshl_b32 s{sT0}, s{sT0}, 10")
    for rt in range(4):
        A(f"buffer_load_dwordx4 {vr(vSt+4*rt,4)}, v{vTm+3}, s[{sSt}:{sSt+3}], s{sT0} offen offset:{rt*256} sc1")
    A(f"s_branch {L}_evret")

def kv_addr(A, base_expr_sgpr, only=None):
    vKr, vVr = only or (globals()["vKr"], globals()["vVr"])
    t0, t1, t2, t3 = vTm + 12, vTm + 13, vTm + 14, vTm + 15
    A(f"v_and_b32 v{t0}, 31, v{vLane}")
    A(f"v_lshrrev_b32 v{t1}, 5, v{vLane}")
    A(f"v_and_b32 v{t2}, 15, v{vLane}")
    A(f"v_xor_b32 v{t2}, v{t2}, v{t1}")
    A(f"s_lshl_b32 s{sT0}, s{sWave}, 2")
    A(f"v_xor_b32 v{t2}, s{sT0}, v{t2}")
    A(f"v_lshlrev_b32 v{t2}, 4, v{t2}")
    A(f"v_lshl_add_u32 v{t2}, v{t0}, 8, v{t2}")
    A(f"v_add_u32 v{vKr}, s{base_expr_sgpr}, v{t2}")
    for p in range(1, 1 if only else 8): A(f"v_xor_b32 v{vKr+p}, {32*p}, v{vKr}")
    A(f"v_bfe_u32 v{t0}, v{vLane}, 2, 2")
    A(f"v_lshl_add_u32 v{t2}, v{t1}, 2, v{t0}")
    A(f"v_lshlrev_b32 v{t2}, 8, v{t2}")
    A(f"v_lshl_add_u32 v{t2}, v{t0}, 6, v{t2}")
    A(f"v_bfe_u32 v{t3}, v{vLane}, 1, 1")
    A(f"v_lshl_add_u32 v{t2}, v{t3}, 5, v{t2}")
    A(f"v_bfe_u32 v{t3}, v{vLane}, 4, 1")
    A(f"v_lshl_add_u32 v{t2}, v{t3}, 4, v{t2}")
    A(f"v_and_b32 v{t3}, 1, v{vLane}")
    A(f"v_lshl_add_u32 v{t2}, v{t3}, 3, v{t2}")
    A(f"s_add_u32 s{sT0}, s{base_expr_sgpr}, 16384")
    A(f"v_add_u32 v{vVr}, s{sT0}, v{t2}")
    for dt in range(1, 1 if only else 4): A(f"v_xor_b32 v{vVr+dt}, {64*dt}, v{vVr}")

def kv_dma():
    it = [f"s_mov_b32 m0, s{sKVm}"]
    for j in range(4):
        it.append(f"buffer_load_dwordx4 v{vKd+j}, s[{sK}:{sK+3}], s{sKVo} offen offset:{j*1024} lds")
    it.append("s_add_u32 m0, m0, 16384")
    for j in range(4):
        it.append(f"buffer_load_dwordx4 v{vVd}, s[{sV}:{sV+3}], s{sKVo} offen offset:{j*1024} lds")
    return it

def kread(p, tile, buf):
    return f"ds_read_b128 {vr(vF+buf*4,4)}, v{vKr+p} offset:{tile*8192}"
def vread(ks, dt, tile, sec, buf):
    return f"ds_read_b64_tr_b16 {vr(vF+buf*4+2*sec,2)}, v{vVr+dt} offset:{(32*tile+16*ks+8*sec)*256}"

def sm_reg(buf, e):
    qt = (e >> 3) & 1; ks = e >> 4
    return vS + (buf * 2 + qt) * 16 + ks * 8 + (e & 7), qt, ks
def sm_exp(buf, e):
    r, _, _ = sm_reg(buf, e)
    if "noexp" in XP: return []
    if "movexp" in XP: return [f"v_mov_b32 v{r}, v{r}"]
    return [f"v_exp_f32 v{r}, v{r}"]
def sm_post(buf, e):
    r, qt, ks = sm_reg(buf, e)
    o = [f"v_add_f32 v{vL+qt}, v{vL+qt}, v{r}"]
    if "noadd" in XP: o = []
    if e & 1 and "nocvt" not in XP: o.append(f"v_cvt_pk_bf16_f32 v{vP+(qt*2+ks)*4+((e&7)>>1)}, v{r-1}, v{r}")
    return o

def attn_seg(A, lq, seg, extra, mfma=True, sm_lo=0, sm_hi=64, look=True):
    def rd(phi, part):
        s = (phi // 8) % 4; i = phi % 8; buf = phi % 4
        if s in (0, 2):
            return kread(i, 1 if s == 0 else 0, buf) if part == 0 else None
        return vread(i // 4, i % 4, 0 if s == 1 else 1, part, buf)
    for i in range(8):
        phi = seg * 8 + i
        if mfma and "nowait" not in XP: lq.wait(A, [("f", phi)])
        for qt in range(2):
            slot = seg * 16 + 2 * i + qt
            if mfma:
                if seg in (0, 2):
                    sb = 1 if seg == 0 else 0
                    d = vr(vS + (sb * 2 + qt) * 16, 16)
                    mf32(A, d, vr(vF + (phi % 4) * 4, 4), vr(vQ + (qt * 8 + i) * 4, 4), "0" if i == 0 else None)
                else:
                    ks, dt = i // 4, i % 4
                    mf32(A, ar(aO + (qt * 4 + dt) * 16, 16), vr(vF + (phi % 4) * 4, 4), vr(vP + (qt * 2 + ks) * 4, 4))
            for it in extra.get((slot, "pre"), []): A(it)
            nphi = (phi + 3) % 32
            nseg = nphi // 8
            if look is True or nseg in look:
                r = rd(nphi, qt)
                if r and "noread" not in XP: A(r); lq.issue(("f", nphi))
            for it in extra.get((slot, "ds"), []):
                A(it); lq.issue(("side", 0))
            for it in extra.get(slot, []):
                if it.startswith("v_"): continue
                if "lds" in it and " m0," in A.lines[-1]: A("s_nop 0")
                A(it)
            for (buf, start) in ((1, 22), (0, 54)):
                e = (slot - start) % 64
                if e < 32 and (buf, "exp") in sm_ok(slot, sm_lo, sm_hi, buf, e):
                    for x in sm_exp(buf, e): A(x)
            for (buf, start) in ((1, 22), (0, 54)):
                e = (slot - start - 1) % 64
                if e < 32 and (buf, "exp") in sm_ok((slot - 1) % 64, sm_lo, sm_hi, buf, e):
                    for x in sm_post(buf, e): A(x)
            for it in extra.get(slot, []):
                if it.startswith("v_"): A(it)
            for it in extra.get((slot, "post"), []): A(it)
def sm_ok(slot, lo, hi, buf, e):
    return {(buf, "exp")} if (lo <= slot < hi) else set()

def wp_src_voff(A, d, n=8):
    t = vTm
    A(f"v_lshrrev_b32 v{t+12}, 4, v{vLane}")
    A(f"v_lshlrev_b32 v{t+12}, 1, v{t+12}")
    A(f"v_and_b32 v{t+13}, 7, v{vLane}")
    A(f"v_xor_b32 v{t+12}, v{t+12}, v{t+13}")
    A(f"v_lshlrev_b32 v{t+12}, 4, v{t+12}")
    A(f"v_lshrrev_b32 v{t+13}, 3, v{vLane}")
    A(f"v_mul_u32_u24 v{t+13}, 1280, v{t+13}")
    A(f"v_add_u32 v{d}, v{t+12}, v{t+13}")
    for j in range(1, n): A(f"v_add_u32 v{d+j}, {(j%4)*9216 + (j//4)*128}, v{d}")

def wp_addr(A, sh, note="", reg=R3, n=4, dst=None):
    t = vTm
    A(f"v_bfe_u32 v{t+14}, v{vLane}, 2, 2")
    A(f"v_bfe_u32 v{t+16}, v{vLane}, 4, 1")
    A(f"v_lshl_add_u32 v{t+14}, v{t+16}, 2, v{t+14}")
    A(f"v_lshrrev_b32 v{t+13}, 1, v{t+14}")
    A(f"v_lshlrev_b32 v{t+13}, 5, v{t+13}")
    A(f"v_lshl_add_u32 v{t+13}, v{t+14}, 7, v{t+13}")
    A(f"v_lshrrev_b32 v{t+15}, 5, v{vLane}")
    A(f"v_lshl_add_u32 v{t+13}, v{t+15}, 10, v{t+13}")
    A(f"v_and_b32 v{t+15}, 3, v{vLane}")
    A(f"v_lshl_add_u32 v{t+13}, v{t+15}, 3, v{t+13}")
    A(f"s_lshl_b32 s6, s{sWave}, {sh}")
    A(f"s_add_u32 s6, s6, {reg}")
    A(f"v_add_u32 v{dst or t+4}, s6, v{t+13}{note}")
    for i4 in range(1, n): A(f"v_xor_b32 v{t+4+i4}, {32*i4}, v{t+4}")
def wp_reads(A, stride):
    for su in range(2):
        for i4 in range(4):
            for sec in range(2):
                A(f"ds_read_b64_tr_b16 {ar(aWq+(su*4+i4)*4+2*sec,2)}, v{vTm+4+i4} offset:{su*stride+sec*2048}")
def wp_stores(A, so):
    for su in range(2):
        for i4 in range(4):
            A(f"buffer_store_dwordx4 {ar(aWq+(su*4+i4)*4,4)}, v{vL16}, s[{sWp}:{sWp+3}], s{so} offen offset:{i4*1024} sc1")
        if su == 0: A(f"s_add_u32 s{so}, s{so}, 4096")

def set_flag(A, phase, lab, cls="H"):
    A(f"s_cmp_lg_u32 s{sWave}, 0")
    A(f"s_cbranch_scc1 {lab}")
    A(f"s_add_u32 s6, s{sNo}, {phase}")
    A(f"v_mov_b32 v{vFv}, s6")
    A(f"v_mov_b32 v{vFv+1}, s{sNo+1}")
    A("s_mov_b64 exec, 1")
    A(f"global_store_dwordx2 v{vFo}, {vr(vFv,2)}, s[{pFl}:{pFl+1}] sc1")
    A("s_mov_b64 exec, -1")
def flag_load(A, dst, ad):
    A(f"global_load_dwordx2 {vr(dst,2)}, v{ad}, s[{pFl}:{pFl+1}] sc1")
def flag_wait(A, lab, phase, polls):
    A(f"s_add_u32 s{sT0}, s{sNo}, {phase}")
    A(f"s_mov_b32 s{sT1}, 0")
    A(f"{lab}c:")
    for n, (d, ad) in enumerate(polls):
        A(f"v_subrev_u32 v{d}, s{sT0}, v{d}")
        A(f"v_cmp_ne_u32 s[{sE0+2*n}:{sE0+2*n+1}], s{sNo+1}, v{d+1}")
    for n, (d, ad) in enumerate(polls):
        A(f"v_cmp_lt_u32 " + ("vcc" if n == 0 else "s[6:7]") + f", {3-phase}, v{d}")
    A("s_nop 3")
    A(f"s_or_b64 s[{sE0}:{sE0+1}], s[{sE0}:{sE0+1}], vcc")
    if len(polls) > 1:
        A(f"s_or_b64 s[6:7], s[6:7], s[{sE0+2}:{sE0+3}]")
        A(f"s_or_b64 s[{sE0}:{sE0+1}], s[{sE0}:{sE0+1}], s[6:7]")
    A(f"s_cbranch_scc0 {lab}r ; pollbr")
    A(f"s_add_u32 s{sT1}, s{sT1}, 1")
    A(f"s_cmp_ge_u32 s{sT1}, 0x40000")
    A(f"s_cbranch_scc1 {lab}r")
    if SLP[0]: A(f"s_sleep {SLP[0]}")
    for d, ad in polls: flag_load(A, d, ad)
    A("s_waitcnt vmcnt(0)")
    A(f"s_branch {lab}c")
    A(f"{lab}r:")

def q_setup():
    w = sWave
    return [
     f"s_lshl_b32 s6, s{qP}, 3\ns_lshr_b32 s{qT0}, {hex(0x402b1600)}, s6\ns_and_b32 s{qT0}, s{qT0}, 0xff",
     f"s_lshr_b32 s{qT1}, {hex(0x5b402b16)}, s6\ns_and_b32 s{qT1}, s{qT1}, 0xff",
     f"s_and_b32 s{sT2}, s{w}, 1\ns_lshl_b32 s6, s{sT2}, 11\ns_lshl_b32 s{qAs}, s{qT0}, 13",
     f"s_add_u32 s{qAs}, s{qAs}, s6\ns_lshr_b32 s7, s{w}, 1\ns_lshl_b32 s6, s{qCb}, 1",
     f"s_add_u32 s6, s6, s7\ns_mul_i32 s6, s6, 5120\ns_mul_i32 s{qWs}, s{qT0}, 81920",
     f"s_add_u32 s{qWs}, s{qWs}, s6\ns_mul_i32 s6, s{sT2}, 40960\ns_add_u32 s{qWs}, s{qWs}, s6",
     f"s_lshl_b32 s{qAe}, s{qT1}, 13\ns_mul_i32 s{qWe}, s{qT1}, 81920\ns_mov_b32 s{qAo}, s{qAs}",
     f"s_mov_b32 s{qWo}, s{qWs}\ns_mul_i32 s{qWm}, s{sT2}, 10240\ns_mul_i32 s6, s7, 5120",
     f"s_add_u32 s{qWm}, s{qWm}, s6\ns_lshl_b32 s6, s{qRb}, 1\ns_add_u32 s6, s6, s7",
     f"s_mul_i32 s6, s6, {A_BLK}\ns_add_u32 s{qA}, s{pWs}, s6\ns_addc_u32 s{qA+1}, s{pWs+1}, 0",
     f"s_and_b32 s{qA+1}, s{qA+1}, 0xffff\ns_cmp_eq_u32 s{qP}, 3\ns_cselect_b32 s{qA+2}, s{qAe}, 0\ns_cselect_b32 s{qW+2}, s{qWe}, 0\ns_mov_b32 s{qA+3}, 0x20000",
     f"s_mov_b32 s{qW}, s{sWp}\ns_mov_b32 s{qW+1}, s{sWp+1}\ns_mov_b32 s{qW+3}, 0x20000",
     f"s_lshl2_add_u32 s6, s{qRb}, s{qP}\ns_lshl_b32 s6, s6, 1\ns_add_u32 s6, s6, s7\ns_mul_i32 s{qXo}, s6, 20480",
     f"s_lshl_b32 s6, s{qCb}, 1\ns_add_u32 s6, s6, s{sT2}\ns_mul_i32 s6, s6, 160\ns_add_u32 s{qXo}, s{qXo}, s6",
     f"s_xor_b32 s{qT0}, s{w}, s{qP}\ns_mul_i32 s{qT1}, s{w}, 3\ns_add_u32 s{qT1}, s{qT1}, s{qT0}\ns_sub_u32 s{qT1}, s{qT1}, 1",
     f"s_mul_i32 s{qT1}, s{qT1}, 10240\ns_cmp_eq_u32 s{qT0}, 0\ns_cselect_b32 s{qSo}, 0x100000, s{qT1}",
    ]

def q_loads(slot):
    it = [f"s_add_u32 m0, s{qWm}, {slot*20480}"]
    for j in range(4):
        it.append(f"buffer_load_dwordx4 v{vL16}, s[{qW}:{qW+3}], s{qWo} offen offset:{j*1024} sc1 lds ; @put W2")
    it.append(f"s_add_u32 m0, s{qWm}, {slot*20480+4096}")
    it.append(f"buffer_load_dwordx4 v{vL16+1}, s[{qW}:{qW+3}], s{qWo} offen sc1 lds ; @put W2")
    for k in range(2):
        for rt in range(2):
            it.append(f"buffer_load_dwordx4 {ar(aA2+(slot*4+k*2+rt)*4,4)}, v{vL16+k}, s[{qA}:{qA+3}], s{qAo} offen offset:{rt*1024} sc1")
    it.append(f"s_add_u32 s{qWo}, s{qWo}, 81920\ns_add_u32 s{qAo}, s{qAo}, 8192")
    return it

def gemm2(A, L, emit, stamp):
    ac, vT, vX, vZ = 64, 144, 168, 180
    srd(A, qX, pX, pX + 1, X_SIZE)
    srd(A, qO, pOut, pOut + 1, X_SIZE)
    for i in range(4): A(f"v_mov_b32 v{vZ+i}, 0")
    A(f"v_and_b32 v{vT}, 15, v{vLane}")
    A(f"v_mul_u32_u24 v{vT}, 1280, v{vT}")
    A(f"v_lshrrev_b32 v{vT+1}, 4, v{vLane}")
    A(f"v_lshl_add_u32 v{vXo2}, v{vT+1}, 3, v{vT}")
    def zero():
        for i in range(5): mf32(A, vr(ac + 16 * i, 16), vr(vZ, 4), vr(vZ, 4), "0")
    zero()
    A(f"v_mov_b32 v{vWr2}, v{vL16}")
    A(f"v_add_u32 v{vWr2+1}, 40960, v{vL16}")
    A(f"v_lshlrev_b32 v{vL8}, 3, v{vLane}")
    A(f"v_add_u32 v{vOwn}, {RING2}, v{vL16}")
    A(f"s_mov_b32 s{qN}, 0")
    def wread2(slot, f, buf):
        k, ct = f // 10, f % 10
        return f"ds_read_b128 {ar(aW2+buf*4,4)}, v{vWr2+slot//2} offset:{(slot%2)*20480+k*10240+ct*1024}"
    def xload():
        for ct in range(5):
            A(f"buffer_load_dwordx2 {vr(vX+2*ct,2)}, v{vXo2}, s[{qX}:{qX+3}], s{qXo} offen offset:{ct*32}")
    A(f"s_cmp_eq_u32 s{qP}, 3")
    A(f"s_cselect_b32 s{qT0}, {hex((1<<2)|(1<<22))}, 0")
    A(f"s_cselect_b32 s{qNl}, 26, 21")
    A(f"s_cselect_b32 s{qT1}, 0, 99")
    A(f"s_cbranch_scc1 {L}qh")
    flag_load(A, vPa, vAo)
    A("s_waitcnt vmcnt(0)")
    A("s_barrier")
    set_flag(A, 3, f"{L}f2")
    A(f"{L}f2:")
    A(f"s_mov_b32 s{qA+2}, s{qAe}")
    A(f"s_mov_b32 s{qW+2}, s{qWe}")
    A(f"s_mov_b32 s{qAo}, s{qAs}")
    A(f"s_mov_b32 s{qWo}, s{qWs}")
    flag_wait(A, f"{L}w2", 2, [(vPa, vAo)])
    flag_load(A, vPb, vAb)
    A(f"s_cmp_lg_u32 s{qP}, 0")
    A(f"s_cbranch_scc1 {L}qb")
    for s0 in (1, 2):
        if s0 == 2:
            A(f"{L}qb:")
            A(f"s_mov_b32 s{qNl}, 20")
        for s_ in range(s0, s0 + 3):
            emit(q_loads(s_ % 4)[:7])
            A(f"s_add_u32 s{qWo}, s{qWo}, 81920")
        xload()
        A("s_waitcnt vmcnt(20)")
        if True:
            A(f"s_cmp_lg_u32 s{sWave}, 0")
            A(f"s_cbranch_scc1 {L}w4{s0}r")
        flag_wait(A, f"{L}w4{s0}", 3, [(vPb, vAb)])
        if True: A("s_barrier")
        stamp(8)
        for s_ in range(s0, s0 + 3):
            emit(q_loads(s_ % 4)[7:11])
            A(f"s_add_u32 s{qAo}, s{qAo}, 8192")
        A("s_waitcnt vmcnt(4)")
        A("s_barrier ; @need W2 0")
        stamp(9)
        for f in range(3): A(wread2(s0, f, f))
        A(f"s_branch {L}q{s0}")
    A(f"{L}qh:")
    stamp(8)
    xload()
    A("s_waitcnt vmcnt(39)")
    A("s_barrier ; @need W2 10")
    stamp(9)
    for f in range(3): A(wread2(0, f, f))
    lq = LQ()
    for f in range(3): lq.issue(f)
    if "q_oob" in XP:
        A(f"s_mov_b32 s{qA+2}, 0"); A(f"s_mov_b32 s{qW+2}, 0")
    A(".p2align 6")
    A(f"{L}q:")
    for slot in range(4):
        ns = (slot + 1) % 4
        if slot in (1, 2): A(f"{L}q{slot}:")
        slots = spread(q_loads((slot + 3) % 4), 16)
        if "q_noload" in XP: slots = [[] for _ in range(16)]
        if "q_noA" in XP: slots = [[x for x in sl if "a[" not in x] for sl in slots]
        if "q_noW" in XP: slots = [[x for x in sl if "lds" not in x] for sl in slots]
        for f in range(20):
            k, ct = f // 10, f % 10
            lq.wait(A, [f])
            for r in range(2):
                rt = r if f % 2 == 0 else 1 - r
                mf16(A, vr(ac + (rt * 10 + ct) * 4, 4), ar(aW2 + (f % 4) * 4, 4), ar(aA2 + (slot * 4 + k * 2 + rt) * 4, 4))
                if r == 0 and f + 3 < 20:
                    A(wread2(slot, f + 3, (f + 3) % 4)); lq.issue(f + 3)
                if f == 18:
                    A(wread2(ns, r, r)); lq.issue(r)
                if f == 19 and r == 0:
                    A(wread2(ns, 2, 2)); lq.issue(2)
                if r == 1 and f < 16: emit(slots[f])
                if r == 0 and f == 17 and slot == 0: A(f"s_cmp_eq_u32 s{qT1}, s{qN}")
            if f == 17:
                if slot == 0:
                    A("s_waitcnt vmcnt(30) lgkmcnt(0)")
                    A(f"s_cbranch_scc1 {L}qw{slot}")
                    A("s_waitcnt vmcnt(18)")
                    A(f"{L}qw{slot}:")
                else: A("s_waitcnt vmcnt(18) lgkmcnt(0)")
                lq.clear()
                if "q_nobar" not in XP: A("s_barrier ; @need W2 10")
            if f == 19:
                A(f"s_add_u32 s{qN}, s{qN}, 1")
        if slot == 1:
            A(f"s_bitcmp1_b32 s{qT0}, s{qN}")
            A(f"s_cbranch_scc1 {L}qe1")
            A(f"{L}qr1:")
            A(f"s_cmp_eq_u32 s{qNl}, s{qN}")
            A(f"s_cbranch_scc1 {L}qx")
    A(f"s_branch {L}q")
    A(f"{L}qe1:")
    A(f"s_cmp_eq_u32 s{qN}, 22")
    A(f"s_cbranch_scc1 {L}qe2")
    set_flag(A, 3, f"{L}qr1")
    A(f"s_branch {L}qr1")
    A(f"{L}qe2:")
    flag_load(A, vPb, vAp)
    A(f"s_branch {L}qr1")
    A(f"{L}qx:")
    A(f"s_cmp_lg_u32 s{qP}, 3")
    A(f"s_cbranch_scc1 {L}qy")
    flag_wait(A, f"{L}w3", 3, [(vPb, vAp)])
    A(f"{L}qy:")
    def send(c, so):
        b = vT + (c // 2) * 12
        it = [f"v_cvt_pk_bf16_f32 v{b+i}, v{ac+c*20+2*i}, v{ac+c*20+2*i+1}" for i in range(10)]
        it += [f"v_min_u32 v{b+i}, -2, v{b+i}" for i in range(10)]
        return it + [f"buffer_store_dwordx4 {vr(b,4)}, v{vL16}, s[{qI}:{qI+3}], s{so} offen sc1",
                     f"buffer_store_dwordx4 {vr(b+4,4)}, v{vL16}, s[{qI}:{qI+3}], s{so} offen offset:1024 sc1",
                     f"buffer_store_dwordx2 {vr(b+8,2)}, v{vL8}, s[{qI}:{qI+3}], s{so} offen offset:2048 sc1"]
    order_ = [k * 10 + h * 5 + i for h in range(2) for k in range(2) for i in range(5)]
    fill = spread(send(0, qSo) + send(2, sT0), 17)
    for n, f in enumerate(order_):
        k, ct = f // 10, f % 10
        lq.wait(A, [n])
        for r in range(2):
            rt = r if n % 2 == 0 else 1 - r
            mf16(A, vr(ac + (rt * 10 + ct) * 4, 4), ar(aW2 + (n % 4) * 4, 4), ar(aA2 + (2 * 4 + k * 2 + rt) * 4, 4))
            if r == 0 and n + 3 < 20:
                A(wread2(2, order_[n + 3], (n + 3) % 4)); lq.issue(n + 3)
            if n == 0 and r == 1: A(f"s_add_u32 s{sT0}, s{qSo}, 5120\ns_add_u32 s{sT1}, s{qSo}, 2560\ns_add_u32 s{sT2}, s{qSo}, 7680")
            g_ = 2 * n + r - 23
            if g_ >= 0:
                its = fill[g_]
                for it in its: A(it)
    stamp(10)
    A("s_nop 1")
    for it in send(1, sT1) + send(3, sT2): A(it)
    A(f"s_cmp_lg_u32 s{sWave}, s{qP}")
    A(f"s_cbranch_scc1 {L}no1")
    for i in range(20): A(f"ds_write_b128 v{vOwn}, {vr(ac+4*i,4)} offset:{i*1024}")
    A("s_waitcnt lgkmcnt(0)")
    A(f"{L}no1:")
    S, U, IN, XR, E, T = 64, 84, 104, 184, 204, 224
    A(f"s_mul_i32 s{sT0}, s{sWave}, 5120")
    A(f"v_add_u32 v{vOwn}, s{sT0}, v{vOwn}")
    A(f"s_mul_i32 s{sT0}, s{qP}, 30720")
    A(f"s_mul_i32 s{sT1}, s{sWave}, 2560")
    A(f"s_add_u32 s{sT0}, s{sT0}, s{sT1}")
    A(f"s_lshl_b32 s6, s{qP}, 3")
    A(f"s_lshr_b32 s6, {hex(0x24094218 >> 0 if False else (0x24 | 0x18 << 8 | 0x09 << 16 | 0x24 << 24))}, s6")
    for i in range(3):
        A(f"s_bfe_u32 s7, s6, {hex(0x20000 | 2*i)}")
        A(f"s_mul_i32 s7, s7, 10240")
        A(f"s_add_u32 s{qIn+i}, s{sT0}, s7")
    def inload(sl):
        b = IN + sl * 10
        A(f"buffer_load_dwordx4 {vr(b,4)}, v{vL16}, s[{qI}:{qI+3}], s{qIn+sl} offen sc1")
        A(f"buffer_load_dwordx4 {vr(b+4,4)}, v{vL16}, s[{qI}:{qI+3}], s{qIn+sl} offen offset:1024 sc1")
        A(f"buffer_load_dwordx2 {vr(b+8,2)}, v{vL8}, s[{qI}:{qI+3}], s{qIn+sl} offen offset:2048 sc1")
    A("s_barrier")
    stamp(11)
    if SLP[2] == 1: A("s_waitcnt vmcnt(0)")
    if SLP[2] > 1: A(f"s_sleep {SLP[2]}")
    for sl in range(3): inload(sl)
    for i in range(5): A(f"ds_read_b128 {vr(S+4*i,4)}, v{vOwn} offset:{i*1024}")
    for i in range(10):
        A(f"v_lshlrev_b32 v{XR+2*i}, 16, v{vX+i}")
        A(f"v_and_b32 v{XR+2*i+1}, 0xffff0000, v{vX+i}")
    def unpack(sl, dst):
        for i in range(10):
            A(f"v_lshlrev_b32 v{dst+2*i}, 16, v{IN+sl*10+i}")
            A(f"v_and_b32 v{dst+2*i+1}, 0xffff0000, v{IN+sl*10+i}")
    def addin(sl, dst):
        unpack(sl, T)
        for i in range(10): A(f"v_pk_add_f32 {vr(dst+2*i,2)}, {vr(dst+2*i,2)}, {vr(T+2*i,2)}")
    A(f"s_mov_b32 s{sT1}, 0")
    A(f"{L}sc:")
    A("s_waitcnt vmcnt(0)")
    for i in range(3): A(f"v_max3_u32 v{T+i}, v{IN+10*i}, v{IN+10*i+1}, v{IN+10*i+2}")
    for j in range(3):
        for i in range(3): A(f"v_max3_u32 v{T+i}, v{T+i}, v{IN+10*i+3+2*j}, v{IN+10*i+4+2*j}")
    A(f"v_max3_u32 v{T+3}, v{IN+9}, v{IN+19}, v{IN+29}")
    A(f"v_max3_u32 v{T}, v{T}, v{T+1}, v{T+2}")
    A(f"v_max_u32 v{T}, v{T}, v{T+3}")
    A(f"v_cmp_eq_u32 vcc, -1, v{T}")
    A("s_nop 3")
    A(f"s_cbranch_vccz {L}sr ; pollbr")
    A(f"s_add_u32 s{sT1}, s{sT1}, 1")
    A(f"s_cmp_ge_u32 s{sT1}, 0x40000")
    A(f"s_cbranch_scc1 {L}sr")
    if SLP[1]: A(f"s_sleep {SLP[1]}")
    for sl in range(3): inload(sl)
    A(f"s_branch {L}sc")
    A(f"{L}sr:")
    stamp(12)
    unpack(2, U)
    A(f"s_mov_b32 s{sT0}, {hex(f2u(-LOG2E))}")
    A(f"s_cmp_lg_u32 s{qP}, 3")
    A("s_waitcnt lgkmcnt(0)")
    A(f"s_cbranch_scc1 {L}ns")
    for i in range(20): A(f"v_swap_b32 v{S+i}, v{U+i}")
    A(f"{L}ns:")
    for i in range(20): A(f"v_mul_f32 v{E+i}, s{sT0}, v{U+i}")
    for i in range(20): A(f"v_exp_f32 v{E+i}, v{E+i}")
    addin(0, S)
    for i in range(20): A(f"v_add_f32 v{E+i}, 1.0, v{E+i}")
    for i in range(20): A(f"v_rcp_f32 v{E+i}, v{E+i}")
    addin(1, S)
    for i in range(10): A(f"v_pk_mul_f32 {vr(U+2*i,2)}, {vr(U+2*i,2)}, {vr(E+2*i,2)}")
    for i in range(10): A(f"v_pk_fma_f32 {vr(XR+2*i,2)}, {vr(S+2*i,2)}, {vr(U+2*i,2)}, {vr(XR+2*i,2)}")
    for i in range(10): A(f"v_cvt_pk_bf16_f32 v{vX+i}, v{XR+2*i}, v{XR+2*i+1}")
    for ct in range(5):
        A(f"buffer_store_dwordx2 {vr(vX+2*ct,2)}, v{vXo2}, s[{qO}:{qO+3}], s{qXo} offen offset:{ct*32}" + (" sc1" if "outsc1" in OPT else ""))
    stamp(13)

def gen_p1(A, name, stamps=False, code_bytes=32768, pf_rounds=2):
    head(A, name)
    L = "p1_"
    A("s_cmp_ge_u32 s2, 256")
    A(f"s_cbranch_scc1 {L}end")
    A("s_load_dwordx16 s[64:79], s[0:1], 0")
    A("s_load_dwordx8 s[80:87], s[0:1], 64")
    A(f"s_memrealtime s[{sNo}:{sNo+1}]")
    if stamps: A("s_memtime s[94:95]")
    def stamp(i, att=False):
        if not stamps: return
        if "attst" in OPT:
            if i >= 5 and not att: return
        elif att: return
        A(f"s_memtime s[96:97]")
        A(f"s_memrealtime s[98:99]")
        A("s_waitcnt lgkmcnt(0)")
        A(f"v_mov_b32 v{vTm+18}, s96"); A(f"v_mov_b32 v{vTm+19}, s98")
        A(f"s_lshl_b32 s96, s2, 2"); A(f"s_add_u32 s96, s96, s{sWave}"); A("s_lshl_b32 s96, s96, 7")
        A(f"v_mov_b32 v{vZero}, s96")
        if i == 0: A(f"v_mov_b32 v{vTm+16}, s94")
        A(f"s_add_u32 s96, s{pWs}, 0x3100000"); A(f"s_addc_u32 s97, s{pWs+1}, 0")
        A(f"global_store_dwordx2 v{vZero}, {vr(vTm+18,2)}, s[96:97] offset:{i*8}")
        if i == 0: A(f"global_store_dword v{vZero}, v{vTm+16}, s[96:97] offset:120")
    t = vTm
    COLD = []
    def cold(mark, lab, back):
        blk = A.lines[mark:]; del A.lines[mark:]
        COLD.extend([f"{lab}:"] + blk + ([f"s_branch {back}"] if back else []))
    def emit(items):
        for it in items:
            if "lds" in it and " m0," in A.lines[-1]: A("s_nop 0")
            A(it)
    A(f"v_and_b32 v{vLane}, 63, v0")
    A("v_lshrrev_b32 v0, 6, v0")
    A("s_and_b32 s6, s2, 7")
    A(f"v_readfirstlane_b32 s{sWave}, v0")
    A(f"s_lshr_b32 s{sT0}, s2, 3")
    A(f"s_lshr_b32 s{sRb}, s{sT0}, 2")
    A(f"s_and_b32 s{sT1}, s{sT0}, 3")
    if True:
        A("s_getpc_b64 s[4:5]")
        A(f"{L}pc:")
        A(f"s_lshl2_add_u32 s7, s{sT0}, s{sWave}")
        A(f"s_mul_i32 s7, s7, ({L}last-{L}pc)/1024")
        A("s_lshr_b32 s7, s7, 7")
        A("s_lshl_b32 s7, s7, 10")
        A(f"v_lshl_add_u32 v{vTm+4}, v{vLane}, 4, s7")
        A(f"global_load_dwordx4 {ar(240,4)}, v{vTm+4}, s[4:5]")
    A(f"s_lshl2_add_u32 s{sHead}, s6, s{sT1}")
    A(f"s_sub_u32 s{sT2}, s6, s{sRb}")
    A(f"s_add_u32 s{sT2}, s{sT2}, 3")
    A(f"s_and_b32 s{sT2}, s{sT2}, 7")
    A(f"s_mul_i32 s{sFb}, s6, 3")
    A(f"s_add_u32 s{sFb}, s{sFb}, s{sT1}")
    A(f"s_add_u32 s7, s{sT2}, 24")
    A(f"s_cmp_eq_u32 s{sT1}, 3")
    A(f"s_cselect_b32 s{sFb}, s7, s{sFb}")
    A(f"s_cmp_lt_u32 s{sFb}, 27")
    A(f"s_cselect_b32 s{sHasF}, 1, 0")
    A(f"s_sub_u32 s{sProd}, s{sFb}, 27")
    A(f"v_lshrrev_b32 v{t+7}, 3, v{vLane}")
    A(f"v_and_b32 v{t+6}, 7, v{vLane}")
    A(f"v_lshrrev_b32 v{t+12}, 4, v{vLane}")
    A(f"v_xor_b32 v{t+13}, v{t+6}, v{t+12}")
    A(f"v_lshlrev_b32 v{t+13}, 4, v{t+13}")
    A(f"s_movk_i32 s6, 1280")
    A(f"v_mad_u32_u24 v{vXd}, v{t+7}, s6, v{t+13}")
    A(f"v_xor_b32 v{t+13}, 64, v{vXd}")
    for j in range(1, 8):
        A(f"v_add_u32 v{vXd+j}, {j*10240-(j%4)*1024}, v{(t+13) if j&1 else vXd}")
    A(f"s_lshl2_add_u32 s6, s{sRb}, s{sWave}")
    A(f"s_mul_i32 s{sXo}, s6, {64*1280}")
    A(f"s_mul_i32 s{sKVo}, s6, {A_BLK}")
    A(f"s_lshl_b32 s{sM0X}, s{sWave}, 13")
    A(f"s_add_u32 s{sM0X}, s{sM0X}, {R1}")
    A(f"s_mov_b32 s{sTail}, 0")
    A(f"s_and_b32 s6, s{sWave}, 1")
    A(f"s_lshl_b32 s7, s6, 2")
    A(f"v_add_u32 v{t+13}, s7, v{t+12}")
    A(f"v_lshlrev_b32 v{t+13}, 1, v{t+13}")
    A(f"v_and_b32 v{t+14}, 15, v{vLane}")
    A(f"v_xor_b32 v{t+13}, v{t+13}, v{t+14}")
    A(f"v_lshlrev_b32 v{t+13}, 4, v{t+13}")
    A(f"s_lshl_b32 s7, s{sWave}, 3")
    A(f"v_add_u32 v{t+15}, s7, v{t+12}")
    A(f"v_lshl_add_u32 v{vWqd}, v{t+15}, 13, v{t+13}")
    A(f"v_add_u32 v{vWqd+1}, {4*8192-1024}, v{vWqd}")
    A(f"v_bfe_u32 v{t+13}, v{vLane}, 4, 1")
    A(f"s_lshl_b32 s6, s6, 1")
    A(f"v_add_u32 v{t+13}, s6, v{t+13}")
    A(f"v_lshlrev_b32 v{t+13}, 1, v{t+13}")
    A(f"v_xor_b32 v{t+13}, v{t+13}, v{t+6}")
    A(f"v_lshlrev_b32 v{t+13}, 4, v{t+13}")
    A(f"v_add_u32 v{t+15}, s7, v{t+7}")
    A(f"s_movk_i32 s6, 3456")
    A(f"v_mad_u32_u24 v{vW13d}, v{t+15}, s6, v{t+13}")
    A(f"s_lshl_b32 s{sWqo}, s{sHead}, 8")
    A(f"s_lshl_b32 s{sW13o}, s{sFb}, 7")
    A(f"s_mov_b32 s{sSlot}, 0")
    A(f"s_lshl_b32 s{sM0W}, s{sWave}, 12")
    A(f"s_add_u32 s{sM0W}, s{sM0W}, {R3}")
    for d, sz in ((sX, X_SIZE), (sWq, 640 * 8192)):
        A(f"s_mov_b32 s{d+2}, {sz}")
        A(f"s_mov_b32 s{d+3}, 0x20000")
    for (d, p, sh) in ((sW1, pW1, 2048), (sW3, pW3, 3072)):
        A(f"s_mul_i32 s{d+2}, s{sHasF}, {640*3456+sh}")
        A(f"s_mov_b32 s{d+3}, 0x20000")
    A("s_waitcnt lgkmcnt(0)")
    A(f"s_mov_b32 s{sC0}, s{sM0W}")
    for d, p in ((sX, pX), (sWq, pWq)):
        A(f"s_mov_b32 s{d}, s{p}")
        A(f"s_and_b32 s{d+1}, s{p+1}, 0xffff")
    for (d, p, sh) in ((sW1, pW1, 2048), (sW3, pW3, 3072)):
        A(f"s_sub_u32 s{d}, s{p}, {sh}")
        A(f"s_subb_u32 s{d+1}, s{p+1}, 0")
        A(f"s_and_b32 s{d+1}, s{d+1}, 0xffff")
    A(f"s_mov_b64 s[{sX2}:{sX2+1}], s[{sX}:{sX+1}]")
    A(f"s_mov_b64 s[{sX2+2}:{sX2+3}], s[{sX+2}:{sX+3}]")
    A(f"s_movk_i32 s{sM0d}, 4096")
    A(f"s_movk_i32 s{sXst}, 128")
    A(f"s_mov_b32 s{sM0t}, 0x18000")
    RAW, UNP = 64, 96
    A(f"v_mov_b32 v{t+5}, 0")
    A(f"s_cmp_ge_u32 s{sProd}, 4")
    A(f"s_cbranch_scc0 {L}c1")
    mk_ = len(A.lines)
    A(f"v_lshrrev_b32 v{t+5}, 2, v{vLane}")
    A(f"v_and_b32 v{t+13}, 3, v{vLane}")
    A(f"v_lshlrev_b32 v{t+13}, 4, v{t+13}")
    A(f"s_movk_i32 s6, 1280")
    A(f"v_mad_u32_u24 v{t+13}, v{t+5}, s6, v{t+13}")
    A(f"s_lshl2_add_u32 s6, s{sRb}, s{sProd}")
    A(f"s_lshl2_add_u32 s6, s6, s{sWave}")
    A(f"s_lshl_b32 s7, s6, 8")
    A(f"v_lshl_add_u32 v{t+5}, v{t+5}, 4, s7")
    A(f"s_mul_i32 s6, s6, {16*1280}")
    for i in range(20):
        A(f"buffer_load_dwordx4 {vr(RAW+4*i,4)}, v{t+13}, s[{sX}:{sX+3}], s6 offen offset:{i*64}")
    cold(mk_, f"{L}c1", f"{L}np1")
    A(f"{L}np1:")
    if "coop" in OPT:
        A(f"s_and_b32 s6, s{sHead}, 3")
        A(f"s_lshl2_add_u32 s6, s{sRb}, s6")
        A(f"s_lshl2_add_u32 s6, s6, s{sWave}")
        A(f"s_mul_i32 s6, s6, {16*1280}")
        A(f"v_and_b32 v{t+13}, 15, v{vLane}")
        A(f"v_mul_u32_u24 v{t+13}, 1280, v{t+13}")
        A(f"v_bfe_u32 v{t+14}, v{vLane}, 4, {COOPX}")
        A(f"v_lshl_add_u32 v{t+13}, v{t+14}, 7, v{t+13}")
        A(f"buffer_load_dword v0, v{t+13}, s[{sX}:{sX+3}], s6 offen")
        A(f"s_lshl2_add_u32 s7, s{sRb}, s{sWave}")
        A(f"v_and_b32 v{t+14}, 3, v{vLane}")
        A(f"v_lshl_add_u32 v{t+14}, v{t+14}, 5, s7")
        A(f"v_bfe_u32 v{t+15}, v{vLane}, 2, 1")
        A(f"v_lshlrev_b32 v{t+15}, 7, v{t+15}")
        A(f"v_lshl_add_u32 v{t+15}, v{t+14}, 13, v{t+15}")
        A(f"v_mul_u32_u24 v{t+14}, 3456, v{t+14}")
        A(f"buffer_load_dword v0, v{t+15}, s[{sWq}:{sWq+3}], s{sWqo} offen")
        A(f"buffer_load_dword v0, v{t+14}, s[{sW1}:{sW1+3}], s{sW13o} offen offset:2048")
        A(f"buffer_load_dword v0, v{t+14}, s[{sW3}:{sW3+3}], s{sW13o} offen offset:3072")
    emit(dma_w(True)); emit(dma_x(0))
    stamp(0)
    A(f"s_add_u32 s{sA}, s{pWs}, s{sKVo}")
    A(f"s_addc_u32 s{sA+1}, s{pWs+1}, 0")
    srd(A, sA, sA, sA + 1, A_BLK)
    A(f"s_add_u32 s{sWp}, s{pWs}, {W_OFF}")
    A(f"s_addc_u32 s{sWp+1}, s{pWs+1}, 0")
    srd(A, sWp, sWp, sWp + 1, W_SIZE)
    A(f"s_lshl2_add_u32 s{sT1}, s{sHead}, s{sWave}")
    A(f"s_mul_i32 s{sU}, s{sT1}, 10")
    A(f"s_lshl_b32 s{sT2}, s{sRb}, 1")
    A(f"s_add_u32 s{sU}, s{sU}, s{sT2}")
    A(f"s_mul_i32 s{sT1}, s{sT1}, 40960")
    A(f"s_lshl_b32 s{sT2}, s{sRb}, 8")
    A(f"s_add_u32 s{sPo}, s{sT1}, s{sT2}")
    srd(A, sSrc, pWo, pWo + 1, 4096 * 1280)
    A(f"s_cmp_lt_u32 s{sRb}, 5")
    A(f"s_cselect_b32 s{sSrc+2}, s{sSrc+2}, 0")
    A(f"s_cselect_b32 s{sU}, s{sU}, 2000")
    A(f"v_mov_b32 v{t+6}, 0")
    A(f"s_or_b32 s6, s2, s{sWave}")
    A(f"s_cbranch_scc1 {L}ntag")
    A(f"s_lshl_b64 s[6:7], s[{sNo}:{sNo+1}], 2")
    A(f"s_or_b32 s7, s7, 0x80000000")
    A(f"v_mov_b32 v{t+14}, s6")
    A(f"v_mov_b32 v{t+15}, s7")
    A("s_mov_b64 exec, 1")
    A(f"global_store_dwordx2 v{t+6}, {vr(t+14,2)}, s[{pDbg}:{pDbg+1}] offset:128 sc1")
    A("s_mov_b64 exec, -1")
    A(f"{L}ntag:")
    A(f"v_and_b32 v{t+14}, 15, v{vLane}")
    A(f"v_lshrrev_b32 v{t+13}, 1, v{t+14}")
    A(f"v_xor_b32 v{t+13}, v{t+13}, v{t+12}")
    A(f"v_lshlrev_b32 v{t+13}, 4, v{t+13}")
    A(f"v_lshl_add_u32 v{t+13}, v{t+14}, 7, v{t+13}")
    A(f"s_lshl_b32 s6, s{sWave}, 13")
    A(f"s_add_u32 s6, s6, {R1}")
    A(f"v_add_u32 v{vXr}, s6, v{t+13}")
    A(f"v_xor_b32 v{vXr+1}, 64, v{vXr}")
    A(f"v_lshlrev_b32 v{t+3}, 4, v{t+14}")
    A(f"v_bfe_u32 v{t+14}, v{vLane}, 2, 2")
    A(f"v_and_b32 v{t+15}, 3, v{vLane}")
    A(f"v_lshlrev_b32 v{t+15}, 3, v{t+15}")
    A(f"v_lshl_add_u32 v{t+15}, v{t+12}, 12, v{t+15}")
    A(f"v_add_u32 v{t+15}, {R3}, v{t+15}")
    A(f"v_bfe_u32 v{t+16}, v{vLane}, 4, 1")
    A(f"v_lshl_add_u32 v{t+13}, v{t+16}, 2, v{t+14}")
    A(f"s_lshl_b32 s6, s{sWave}, 1")
    A(f"v_xor_b32 v{t+13}, s6, v{t+13}")
    A(f"v_lshl_add_u32 v{t+13}, v{t+13}, 5, v{t+15}")
    A(f"v_lshl_add_u32 v{vWqr}, v{t+14}, 8, v{t+13}")
    for p in range(1, 8): A(f"v_xor_b32 v{vWqr+p}, {32*p}, v{vWqr}")
    A(f"v_lshrrev_b32 v{t+13}, 1, v{t+14}")
    A(f"v_lshl_add_u32 v{t+13}, v{t+16}, 1, v{t+13}")
    A(f"v_xor_b32 v{t+13}, s{sWave}, v{t+13}")
    A(f"v_lshl_add_u32 v{t+13}, v{t+13}, 5, v{t+15}")
    A(f"v_lshl_add_u32 v{vW13r}, v{t+14}, 7, v{t+13}")
    for p in range(1, 4): A(f"v_xor_b32 v{vW13r+p}, {32*p}, v{vW13r}")
    srd(A, sK, pK, pK + 1, 16777216)
    srd(A, sV, pV, pV + 1, 16777216)
    A(f"s_add_u32 s{sSt}, s{pWs}, {ST_OFF}")
    A(f"s_addc_u32 s{sSt+1}, s{pWs+1}, 0")
    srd(A, sSt, sSt, sSt + 1, 2048 * 16)
    A(f"s_lshl_b32 s6, s{sRb}, 2")
    A(f"v_mov_b32 v{t+2}, s6")
    A(f"s_movk_i32 s{sMask}, {EVMASK}")
    A(f"s_mov_b32 s{sD}, 0")
    A(f"s_cmp_ge_u32 s{sProd}, 4")
    A(f"s_cbranch_scc0 {L}c2")
    mk_ = len(A.lines)
    A("s_waitcnt vmcnt(8)")
    for i in range(79, -1, -1):
        A(f"v_and_b32 v{UNP+2*i+1}, 0xffff0000, v{RAW+i}")
        A(f"v_lshlrev_b32 v{UNP+2*i}, 16, v{RAW+i}")
    a = 64
    def red(first):
        for i in range(80):
            first(i)
        A(f"v_pk_add_f32 {vr(a,2)}, {vr(a,2)}, {vr(a+2,2)}")
        A(f"v_pk_add_f32 {vr(a+4,2)}, {vr(a+4,2)}, {vr(a+6,2)}")
        A(f"v_pk_add_f32 {vr(a,2)}, {vr(a,2)}, {vr(a+4,2)}")
        A(f"v_add_f32 v{a}, v{a}, v{a+1}")
        for qp in ("[1,0,3,2]", "[2,3,0,1]"):
            A("s_nop 1")
            A(f"v_add_f32_dpp v{a}, v{a}, v{a} quad_perm:{qp} row_mask:0xf bank_mask:0xf")
    def f1(i):
        d = vr(a + 2 * (i % 4), 2)
        if i < 4: A(f"v_pk_add_f32 {d}, {vr(UNP+2*i,2)}, {vr(UNP+2*i+8,2)}")
        elif i >= 8: A(f"v_pk_add_f32 {d}, {d}, {vr(UNP+2*i,2)}")
    red(f1)
    o = 72
    A(f"v_mul_f32 v{o}, {hex(f2u(-1.0/640))}, v{a}")
    for i in range(80): A(f"v_pk_add_f32 {vr(UNP+2*i,2)}, {vr(UNP+2*i,2)}, {vr(o,2)} op_sel_hi:[1,0]")
    def f2(i):
        d = vr(a + 2 * (i % 4), 2); x_ = vr(UNP + 2 * i, 2)
        if i < 4: A(f"v_pk_mul_f32 {d}, {x_}, {x_}")
        else: A(f"v_pk_fma_f32 {d}, {x_}, {x_}, {d}")
    red(f2)
    A(f"v_mov_b32 v{o+3}, {hex(f2u(1e-5))}")
    A(f"v_fmac_f32 v{o+3}, {hex(f2u(1.0/640))}, v{a}")
    A(f"v_mov_b32 v{o+2}, v{o+3}")
    A(f"v_rsq_f32 v{o+1}, v{o+3}")
    A("s_mov_b32 exec_lo, 0x11111111")
    A("s_mov_b32 exec_hi, 0x11111111")
    A(f"buffer_store_dwordx4 {vr(o,4)}, v{t+5}, s[{sSt}:{sSt+3}], 0 offen sc1 ; @put S")
    A("s_mov_b64 exec, -1")
    A("s_waitcnt vmcnt(0)")
    cold(mk_, f"{L}c2", f"{L}np2")
    A(f"{L}np2:")
    if "dummy" in OPT:
        A(f"v_lshlrev_b32 v{t+13}, 4, v{vLane}")
        for i in range(16): A(f"buffer_load_dwordx4 {vr(64+4*i,4)}, v{t+13}, s[{sWq}:{sWq+3}], 0 offen offset:{(i%4)*1024}")
        for i in range(128): A(f"v_mov_b32 v{128+i}, 0")
        A("s_waitcnt vmcnt(0)")
        A("s_mov_b32 s6, 0")
        A(f"{L}dmy:")
        for i in range(64): mf16(A, vr(128 + 4 * (i % 32), 4), vr(64 + 4 * (i // 4 % 12), 4), vr(112 + 4 * (i % 4), 4))
        A("s_add_u32 s6, s6, 1")
        A("s_cmp_lt_u32 s6, 40")
        A(f"s_cbranch_scc1 {L}dmy")
        A("s_nop 7")
    if "idle" in OPT:
        A("s_mov_b32 s6, 0")
        A(f"{L}dmy:")
        for i in range(64): A("s_nop 15")
        A("s_add_u32 s6, s6, 1")
        A("s_cmp_lt_u32 s6, 40")
        A(f"s_cbranch_scc1 {L}dmy")
    kv_dma_voff(A, vQ, vQ + 4, 1)
    A(f"s_mov_b32 s{sT1}, {R0}")
    kv_addr(A, sT1, only=(vQ + 5, vQ + 6))
    wp_addr(A, 13, reg=R4, n=1, dst=vQ + 7)
    wp_src_voff(A, vQ + 8, 1)
    A(f"v_mov_b32 v{vKb}, v{vQ+5}")
    A(f"v_mov_b32 v{vVb}, v{vQ+6}")
    A(f"v_mov_b32 v{vWpB}, v{vQ+7}")
    A(f"v_mov_b32 v{vWs}, v{vQ+8}")
    A(f"v_lshrrev_b32 v{t+7}, 4, v{vLane}")
    A(f"v_lshlrev_b32 v{t+7}, 4, v{t+7}")
    A(f"s_lshl_b32 s6, s{sWave}, 7")
    A(f"s_add_u32 s6, s6, {CS}")
    A(f"v_add_u32 v{t+8}, s6, v{t+7}")
    A(f"s_lshl_b32 s6, s{sWave}, 6")
    A(f"s_add_u32 s6, s6, {CS+512}")
    A(f"v_add_u32 v{t+9}, s6, v{t+7}")
    A(f"v_lshlrev_b32 v{t+10}, 4, v{vLane}")
    A(f"s_lshl_b32 s6, s{sWave}, 12")
    A(f"s_lshl_b32 s{sKVo}, s{sHead}, 19")
    A(f"s_add_u32 s{sKVo}, s{sKVo}, s6")
    A(f"s_add_u32 s{sKVo}, s{sKVo}, {1536*256}")
    if "tlbw" in OPT:
        A("s_mov_b64 exec, 1")
        A(f"buffer_load_dword v0, v{t+6}, s[{sK}:{sK+3}], s{sKVo} offen")
        A(f"buffer_load_dword v0, v{t+6}, s[{sV}:{sV+3}], s{sKVo} offen")
        A(f"buffer_load_dword v0, v{t+6}, s[{sSrc}:{sSrc+3}], s{sPo} offen")
        A("s_mov_b64 exec, -1")
    if "tlbs" in OPT:
        A(f"s_lshl_b32 s6, s{sHead}, 14")
        A(f"s_lshl_b32 s7, s{sFb}, 13")
        A(f"s_add_u32 s7, s7, {128*4096}")
        A("s_mov_b64 exec, 1")
        A(f"buffer_store_dword v{t+6}, v{t+6}, s[{sA}:{sA+3}], s6 offen sc1")
        A(f"buffer_store_dword v{t+6}, v{t+6}, s[{sA}:{sA+3}], s7 offen sc1")
        A("s_mov_b64 exec, -1")
    for i in range(4): A(f"v_mov_b32 v{vSt+i}, 0")
    A(f"v_mov_b32 v{t+1}, 0x3f803f80")
    for i in range(4): A(f"v_accvgpr_write_b32 a{aOne+i}, v{t+1}")
    z = vr(vSt, 4)
    for i in range(8): mf32(A, vr(vAcc + 16 * i, 16), z, z, "0")
    for i in range(9): mf32(A, ar(16 * i, 16), z, z, "0")
    emit(dma_x(1)); emit(dma_w(True)); emit(dma_x(0)); emit(dma_w(True))
    A(f"s_waitcnt vmcnt({15 if 'tlbw' in OPT else 14 if 'tlbs' in OPT else 12})")
    A("s_barrier")
    A(f"s_lshl2_add_u32 s6, s{sProd}, s{sWave}")
    A(f"s_and_b32 s6, s6, 0xfffffff3")
    A(f"s_cbranch_scc1 {L}np3")
    A(f"v_mov_b32 v{t+1}, 1")
    A(f"v_add_u32 v{t+7}, s{sProd}, v{t+2}")
    A(f"s_mov_b64 exec, 1")
    A(f"global_store_byte v{t+7}, v{t+1}, s[{pDbg}:{pDbg+1}] sc1")
    A(f"s_mov_b64 exec, -1")
    A(f"{L}np3:")
    stamp(1)
    for rt in range(4): A(xread(0, 0, rt))
    A(f"s_cmp_eq_u32 s{sHasF}, 0")
    fr = frag_list(True)
    for f in range(3):
        for sec in range(2): A(wread(fr[f], 0, sec, f))
    A("s_waitcnt lgkmcnt(6)")
    if FINE: A("s_mov_b32 s7, 0")
    A(f"s_cbranch_scc1 {L}gn")
    gemm_loop(A, True, L + "gf")
    mk_ = len(A.lines)
    gemm_events(A, L + "gn")
    gemm_loop(A, False, L + "gn")
    for it in cs_writes()[:2]: A(it)
    A(f"s_mov_b32 s{sKVo}, s{sXo}")
    A(f"s_mov_b32 s{sKVm}, s{sM0X}")
    A(f"s_and_b32 s{qP}, s2, 3")
    for it in stats_scale(): A(it)
    A("s_waitcnt lgkmcnt(0)")
    A("s_barrier")
    A(f"ds_read_b128 {vr(CSB[0],4)}, v{t+8}")
    A(f"v_xor_b32 v{t+11}, 64, v{t+8}")
    A(f"ds_read_b128 {vr(CSB[1],4)}, v{t+11}")
    cold(mk_, f"{L}c3", f"{L}gdone")
    A(f"{L}gdone:")
    stamp(2)
    z = vr(vTm + 4, 4)
    class Grp(list):
        def __call__(self, x): self.append(x)
    IDS = Grp()
    IDS(f"s_lshr_b32 s{qCb}, s2, 6")
    IDS(f"s_bfe_u32 s{qRb}, s2, 0x30003")
    IDS(f"s_and_b32 s6, s2, 4\ns_lshl_b32 s6, s6, 1")
    IDS(f"s_add_u32 s{qRb}, s{qRb}, s6")
    IDS(f"s_lshl2_add_u32 s{qG}, s{qRb}, s{qCb}")
    IDS(f"s_mul_i32 s6, s{qG}, {IB_G}")
    IDS(f"s_add_u32 s6, s6, {IB_OFF}")
    IDS(f"s_add_u32 s{qI}, s{pWs}, s6\ns_addc_u32 s{qI+1}, s{pWs+1}, 0")
    srd(IDS, qI, qI, qI + 1, IB_G)
    kvadv = [f"s_add_u32 s{sKVo}, s{sKVo}, 16384\ns_add_u32 s{sKVm}, s{sKVm}, 32768"]
    def kvq(): return kv_dma() + kvadv
    csb = [14, 18, 22]
    lq = LQ()
    def csread_q(p):
        A(f"v_xor_b32 v{t+11}, {64*p}, v{t+8}")
        A(f"ds_read_b128 {vr(csb[p%3],4)}, v{t+11}"); lq.issue(("c", p))
    lq.issue(("c", 0)); lq.issue(("c", 1))
    wo_dma = []
    for su in range(2):
        wo_dma.append(f"s_lshl_b32 s6, s{sWave}, 13\ns_add_u32 m0, s6, {R4+su*4096}")
        wo_dma += [f"buffer_load_dwordx4 v{vWs}, s[{sSrc}:{sSrc+3}], s{sPo} offen offset:{j*1024} lds ; @put P\n" +
                   (f"s_add_u32 s{sPo}, s{sPo}, 9216" if j < 3 else f"s_sub_u32 s{sPo}, s{sPo}, {3*9216-128}") for j in range(4)]
    kq = spread([f"s_add_u32 m0, s{sKVm}, 16384"] + kv_dma()[6:] + kvadv + wo_dma[:5 * SPL[0]], 24)
    for p in range(8):
        if p + 2 < 8: csread_q(p + 2)
        lq.wait(A, [("c", p)])
        c = csb[p % 3]
        for rt in range(4):
            d = vAcc + (p * 4 + rt) * 4; q = vSt + 4 * rt
            for h in range(2):
                A(f"v_pk_fma_f32 {vr(d+2*h,2)}, {vr(c+2*h,2)}, {vr(q,2)}, {vr(d+2*h,2)} op_sel_hi:[1,0,1]")
        emit(kq[3*p])
        for rt in range(4):
            d = vAcc + (p * 4 + rt) * 4; q = vSt + 4 * rt
            for h in range(2):
                A(f"v_pk_mul_f32 {vr(d+2*h,2)}, {vr(d+2*h,2)}, {vr(q+2,2)} op_sel:[0,1]")
        emit(kq[3*p+1])
        for rt in range(4):
            d = vAcc + (p * 4 + rt) * 4
            f = vQ + ((rt // 2) * 8 + p) * 4 + (rt & 1) * 2
            for h in range(2): A(f"v_cvt_pk_bf16_f32 v{f+h}, v{d+2*h}, v{d+2*h+1}")
        mf32(A, ar(aO + 16 * p, 16), z, z, "0")
        emit(kq[3*p+2])
        if p > 0:
            for qt in range(2):
                f = vQ + (qt * 8 + p - 1) * 4
                for h in range(2): A(f"v_permlane16_swap_b32 v{f+h}, v{f+2+h}")
    A("s_nop 0")
    for qt in range(2):
        f = vQ + (qt * 8 + 7) * 4
        for h in range(2): A(f"v_permlane16_swap_b32 v{f+h}, v{f+2+h}")
    stamp(3)
    for p in range(8): A(f"v_xor_b32 v{vKr+p}, {32*p}, v{vKb}")
    v2q = [f"s_add_u32 m0, s{sKVm}, 16384"] + kvq()[6:]
    A(f"s_cmp_eq_u32 s{sHasF}, 0")
    A(f"s_cbranch_scc1 {L}noffn")
    def hst(pi, rt): return f"buffer_store_dwordx4 {vr(vAcc+96+pi*16+rt*4,4)}, v{t+10}, s[{sA}:{sA+3}], s{qT0+pi} offen offset:{rt*1024}" + ("" if "wbl2" in OPT else " sc1") + " ; @put H @put HH"
    T = vAcc + 32; H = vAcc + 96; C = vAcc + 56
    def csf(p):
        A(f"v_xor_b32 v{t+11}, {64*p}, v{t+9}")
        A(f"ds_read_b128 {vr(C+8*(p%3),4)}, v{t+11}")
        A(f"ds_read_b128 {vr(C+8*(p%3)+4,4)}, v{t+11} offset:256")
    for p in range(3): csf(p)
    A(f"s_lshr_b32 s7, s{sWave}, 1")
    A(f"s_lshl_b32 s6, s{sFb}, 1")
    A(f"s_add_u32 s6, s6, 128")
    A(f"s_add_u32 s{sT0}, s6, s7")
    A(f"s_xor_b32 s7, s7, 1")
    A(f"s_add_u32 s{sT1}, s6, s7")
    A(f"s_lshl_b32 s{qT0}, s{sT0}, 12")
    A(f"s_lshl_b32 s{qT1}, s{sT1}, 12")
    A("s_waitcnt lgkmcnt(0)")
    ffq = wo_dma[5 * SPL[0]:] + kv_dma()[:5 * SPL[1]]
    kq = spread(ffq, 24) if ffq else [[]] * 24
    for p in range(4):
        for r2 in range(2):
            g_ = 3 * (p * 2 + r2)
            G = [(2 * r2 + i, T + 12 * i) for i in range(2)]
            if p == 1 and r2 == 0: csf(3)
            if p == 2 and r2 == 0:
                qk_at = len(A.lines)
                A("s_waitcnt lgkmcnt(0)")
            for rt, b in G:
                for i in range(4): A(f"v_accvgpr_read_b32 v{b+i}, a{aG+(p*4+rt)*4+i}")
                for i in range(4): A(f"v_accvgpr_read_b32 v{b+4+i}, a{aUp+(p*4+rt)*4+i}")
            emit(kq[g_])
            for rt, b in G:
                for h in range(4):
                    A(f"v_pk_fma_f32 {vr(b+2*h,2)}, {vr(C+8*(p%3)+2*h,2)}, {vr(vSt+4*rt,2)}, {vr(b+2*h,2)} op_sel_hi:[1,0,1]")
            for rt, b in G:
                for h in range(2): A(f"v_pk_mul_f32 {vr(b+8+2*h,2)}, {vr(b+2*h,2)}, {vr(vSt+4*rt,2)} op_sel:[0,1]")
            for rt, b in G:
                for i in range(4): A(f"v_exp_f32 v{b+8+i}, v{b+8+i}")
            emit(kq[g_+1])
            for rt, b in G:
                for h in range(2): A(f"v_pk_mul_f32 {vr(b+2*h,2)}, {vr(b+2*h,2)}, {vr(b+4+2*h,2)}")
            for rt, b in G:
                for h in range(2):
                    A(f"v_pk_fma_f32 {vr(b+8+2*h,2)}, {vr(b+8+2*h,2)}, {vr(vSt+4*rt+2,2)}, {vr(vSt+4*rt+2,2)} op_sel_hi:[1,0,0]")
            for rt, b in G:
                for i in range(4): A(f"v_rcp_f32 v{b+8+i}, v{b+8+i}")
            emit(kq[g_+2])
            for n, (rt, b) in enumerate(G):
                for h in range(2): A(f"v_pk_mul_f32 {vr(b+2*h,2)}, {vr(b+2*h,2)}, {vr(b+8+2*h,2)}")
            for rt, b in G:
                for h in range(2): A(f"v_cvt_pk_bf16_f32 v{H+(p//2)*16+rt*4+(p&1)*2+h}, v{b+2*h}, v{b+2*h+1}")
        if p & 1:
            pi = p // 2
            A(f"s_bitcmp1_b32 s{sWave}, 0")
            A(f"s_cbranch_scc0 {L}nsw{pi}")
            for rt in range(4):
                for h in range(2): A(f"v_swap_b32 v{H+pi*16+rt*4+h}, v{H+pi*16+rt*4+2+h}")
            A(f"{L}nsw{pi}:")
    B_ = Asm(); lq = LQ()
    for p in range(3):
        B_(kread(p, 0, p)); lq.issue(("f", 16 + p))
    attn_seg(B_, lq, 2, {}, sm_lo=0, sm_hi=0, look=[2])
    QK0 = list(B_.lines)
    grp = [QK0[:3]]; cur = []
    for l_ in QK0[3:]:
        if l_.startswith(("s_waitcnt", "v_mfma")) and any(x.startswith("v_mfma") for x in cur): grp.append(cur); cur = []
        cur.append(l_)
    grp.append(cur)
    half = A.lines[qk_at + 1:]; del A.lines[qk_at + 1:]
    stop = max(i for i, x in enumerate(half) if x.startswith("s_bitcmp1"))
    pos = {4 + (i * (stop - 24)) // len(grp): g for i, g in enumerate(grp)}
    pend = []
    for i, l_ in enumerate(half):
        if i in pos: pend = pend + pos[i]
        if pend and " lds" not in l_ and not l_.startswith("s_nop") and not any(x.startswith("v_pk_") for x in A.lines[-2:]):
            A.lines += pend; pend = []
        A.lines.append(l_)
    emit(v2q)
    mk_ = len(A.lines)
    emit(ffq)
    A(f"s_mov_b32 s{qT0}, 0x1000000")
    A(f"s_mov_b32 s{qT1}, 0x1000000")
    A("s_barrier")
    srd(A, qA, pW2, pW2 + 1, 1728 * 1280)
    A(f"v_mov_b32 v{vAcc+8}, v{vKb}")
    A(f"v_mov_b32 v{vAcc+9}, v{vVb}")
    A(f"v_mov_b32 v{vAcc+10}, v{vWpB}")
    wp_src_voff(A, vAcc)
    wp_addr(A, 13)
    A(f"v_mov_b32 v{vKb}, v{vAcc+8}")
    A(f"v_mov_b32 v{vVb}, v{vAcc+9}")
    A(f"v_mov_b32 v{vWpB}, v{vAcc+10}")
    A(f"s_mul_i32 s{sT2}, s{sRb}, 5")
    A(f"s_add_u32 s{sT2}, s{sT2}, s{sProd}")
    A(f"s_lshl2_add_u32 s{sT2}, s{sT2}, s{sWave}")
    A(f"{L}w2j:")
    A(f"s_mul_hi_u32 s{sT0}, s{sT2}, 0x33333334")
    A(f"s_mul_i32 s{sT1}, s{sT0}, 5")
    A(f"s_sub_u32 s{sT1}, s{sT2}, s{sT1}")
    A(f"s_mul_i32 s7, s{sT0}, 40960")
    A(f"s_lshl_b32 s6, s{sT1}, 8")
    A(f"s_add_u32 s{sT0}, s7, s6")
    A(f"s_lshl_b32 s6, s{sT1}, 13")
    A(f"s_add_u32 s7, s7, s6")
    A(f"s_add_u32 s{sT1}, s7, {128*40960}")
    A(f"s_lshl_b32 s6, s{sWave}, 13")
    for su in range(2):
        A(f"s_add_u32 m0, s6, {R3+su*4096}")
        A("s_nop 0")
        for j in range(4): A(f"buffer_load_dwordx4 v{vAcc+4*su+j}, s[{qA}:{qA+3}], s{sT0} offen offset:{j*1024} lds")
    A("s_waitcnt vmcnt(0)")
    wp_reads(A, 4096)
    A("s_waitcnt lgkmcnt(0)")
    wp_stores(A, sT1)
    A(f"s_add_u32 s{sT2}, s{sT2}, 160")
    A(f"s_cmp_lt_u32 s{sT2}, 270")
    A(f"s_cbranch_scc1 {L}w2j")
    A.lines += QK0
    emit(v2q)
    cold(mk_, f"{L}noffn", f"{L}ffnd")
    A(f"{L}ffnd:")
    for i in range(4): IDS(f"v_mov_b32 v{vOnes+i}, -1")
    IDS(f"s_mul_i32 s6, s{qP}, 30720\ns_mul_i32 s7, s{sWave}, 7680")
    IDS(f"s_min_u32 s7, s7, 22528\ns_add_u32 s{sSen}, s6, s7")
    IDS(f"s_lshl_b32 s{sWpO}, s{sU}, 12")
    IDS(f"v_add_u32 v{vL16+1}, 4096, v{vL16}")
    IDS(f"s_lshl_b32 s6, s{sRb}, 5\ns_add_u32 s7, s6, s{sHead}\ns_lshl_b32 s7, s7, 7")
    IDS(f"v_mov_b32 v{vFo}, s7")
    IDS(f"s_cmp_eq_u32 s{sWave}, 0\ns_cselect_b32 s{sTail}, 0, 0x8000")
    srd(IDS, qX, pFl, pFl + 1, 0x8000)
    IDS(f"s_add_u32 s6, s{sNo}, 1")
    IDS(f"v_mov_b32 v{vFv}, s6")
    IDS(f"v_mov_b32 v{vFv+1}, s{sNo+1}")
    stamp(4)
    for dt in range(4): A(f"v_xor_b32 v{vVr+dt}, {64*dt}, v{vVb}")
    A(f"v_mov_b32 v{vL}, 0")
    A(f"v_mov_b32 v{vL+1}, 0")
    A(f"s_waitcnt vmcnt(24)")
    A("s_barrier")
    stamp(5, True)
    lq = LQ()
    for p in range(3):
        A(kread(p, 1, p)); lq.issue(("f", p))
    for e in range(10):
        for x in sm_exp(0, e): A(x)
        if e:
            for x in sm_post(0, e - 1): A(x)
    assert XP or lq.q == [("f", 0), ("f", 1), ("f", 2)]
    def put(ex, slots, items):
        for sl, its in zip(slots, spread(items, len(slots))): ex.setdefault(sl, []).extend(its)
    PA = Asm()
    PA(f"s_lshl_b32 s6, s{sRb}, 5")
    PA(f"v_and_b32 v{vAp}, 3, v{vLane}")
    PA(f"v_lshlrev_b32 v{vAp}, 2, v{vAp}")
    PA(f"s_and_b32 s7, s{sHead}, 0x13")
    PA(f"s_add_u32 s7, s7, s6")
    PA(f"v_add_lshl_u32 v{vAp}, v{vAp}, s7, 7")
    PA(f"s_lshr_b32 s7, s{qRb}, 1")
    PA(f"s_lshl_b32 s6, s7, 5")
    PA(f"s_lshl_b32 s{sT0}, s{sWave}, 3")
    PA(f"s_add_u32 s6, s6, s{sT0}")
    PA(f"v_add_lshl_u32 v{vAa}, v{vLane}, s6, 7")
    PA(f"v_cmp_gt_u32 vcc, 8, v{vLane}")
    PA(f"v_and_b32 v{vAb}, 15, v{vLane}")
    PA(f"v_lshlrev_b32 v{vAb}, 2, v{vAb}")
    PA(f"s_lshl_b32 s6, s{sWave}, 6")
    PA(f"s_add_u32 s6, s6, 3")
    PA(f"v_add_lshl_u32 v{vAb}, v{vAb}, s6, 7")
    PA(f"v_cndmask_b32 v{vAa}, v{vAb}, v{vAa}, vcc")
    PA(f"v_bfe_u32 v{vAo}, v{vLane}, 4, 1")
    PA(f"v_add_u32 v{vAo}, s{qCb}, v{vAo}")
    PA(f"s_mul_i32 s6, s{qP}, 21")
    PA(f"s_add_u32 s6, s6, 1")
    PA(f"s_lshr_b32 s6, s6, 1")
    PA(f"v_and_b32 v{vPb}, 15, v{vLane}")
    PA(f"v_min_u32 v{vPb}, 10, v{vPb}")
    PA(f"v_add_u32 v{vPb}, s6, v{vPb}")
    PA(f"v_cmp_gt_u32 vcc, 16, v{vLane}")
    PA(f"s_lshl_b32 s7, s7, 5")
    PA(f"v_lshl_add_u32 v{vAo}, v{vAo}, 5, v{vPb}")
    PA(f"v_lshlrev_b32 v{vAo}, 7, v{vAo}")
    PA(f"v_add_lshl_u32 v{vAb}, v{vPb}, s7, 7")
    PA(f"v_cndmask_b32 v{vAb}, v{vAp}, v{vAb}, vcc")
    odd = lambda a, b: [x for x in range(a, b) if x & 1]
    def wo_job(ex, f, s0, s1):
        r = aWq + 4 * (f % 3)
        ex.setdefault(s0 - 1, []).append(f"v_xor_b32 v{vWpA}, {((f&3)<<5)|((f&4)<<10)}, v{vWpB}")
        ex[(s0, "ds")] = [f"ds_read_b64_tr_b16 {ar(r,2)}, v{vWpA} ; @need P 0"]
        ex[(s0 + 2, "ds")] = [f"ds_read_b64_tr_b16 {ar(r+2,2)}, v{vWpA} offset:2048"]
        if "nowo" not in XP: ex.setdefault(s1, []).append(f"buffer_store_dwordx4 {ar(r,4)}, v{vL16+f//4}, s[{sWp}:{sWp+3}], s{sWpO} offen offset:{(f&3)*1024} sc1")
    def mark(f): return "s_nop 0" if "nosent" in XP else f"buffer_store_dwordx4 {vr(vOnes,4)}, v{vL16+f//4}, s[{qI}:{qI+3}], s{sSen} offen offset:{(f&3)*1024} sc1 ; @put H"
    stamp(6, True)
    BW = {0: 10, 1: 13, 2: 13, 3: 13, 4: 13, 5: 13}
    bg = [("h", i) for i in range(8)] + [("w", i) for i in range(8)] + [("m", i) for i in range(8)]
    BG = [bg[0:3], bg[3:6], bg[6:9], bg[9:12], bg[12:15], bg[15:19], bg[19:22], bg[22:24]]
    for t_ in range(8):
        ex = {}
        delta = hex((-98304) & 0xffffffff) if t_ == 3 else "0x8000"
        if t_ < 7:
            for p in range(8):
                ex.setdefault(max(2 * (p - 3) + 1, 1) if p >= 3 else 2 * p, []).append(f"v_add_u32 v{vKr+p}, {delta}, v{vKr+p}")
            for dt in range(4):
                ex.setdefault(2 * (28 + dt - 3) + 2, []).append(f"v_add_u32 v{vVr+dt}, {delta}, v{vVr+dt}")
        if t_ < 5:
            for sl, it in zip([32, 33, 37, 41, 45, 47, 49, 53, 57, 61], kv_dma()): ex.setdefault(sl, []).append(it)
            ex.setdefault(62, []).append(f"s_add_u32 s{sKVo}, s{sKVo}, 16384")
            ex.setdefault(59, []).append(f"s_add_u32 s{sKVm}, s{sKVm}, {hex((-98304) & 0xffffffff) if t_ == 0 else 32768}")
        if t_ < 6: ex[(26, "pre")] = [f"s_waitcnt vmcnt({BW[t_]})", "s_barrier ; @need KV 8 @need Xa 0" + (" @need HH 0" if t_ == 4 else "")]
        for j, (kind, f) in enumerate(BG[t_]):
            sl = (3, 19, 51, 39)[j]
            if kind == "h": put(ex, [sl], [hst(f // 4, f % 4)])
            elif kind == "m": put(ex, [sl], [mark(f)])
            else: wo_job(ex, f, (1, 7, 35)[j], (13, 21, 51)[j])
        if t_ == 0:
            for sl, its in zip([x for x in range(11, 52) if x not in (26, 32, 47)], spread(IDS, 38)): ex.setdefault((sl, "post"), []).extend(its)
        if t_ == 4:
            put(ex, [39], [f"buffer_store_dwordx2 {vr(vFv,2)}, v{vFo}, s[{qX}:{qX+3}], s{sTail} offen sc1"])
        if t_ == 5:
            for sl, its in zip([x for x in range(10, 47) if x != 26], spread(PA.lines, 36)): ex.setdefault((sl, "post"), []).extend(its)
            put(ex, [x for x in range(47, 64) if x != 51], q_setup())
        elif t_ == 6:
            put(ex, [1], [f"global_load_dwordx2 {vr(vPa,2)}, v{vAa}, s[{pFl}:{pFl+1}] sc1"])
            B_ = Asm(); B_("s_waitcnt vmcnt(2)"); B_(f"s_cmp_lg_u32 s{qP}, 3"); B_(f"s_cbranch_scc1 {L}w1r")
            flag_wait(B_, f"{L}w1", 1, [(vPa, vAa)]); B_("s_barrier")
            ex[(26, "pre")] = B_.lines
            put(ex, [x for x in odd(31, 64) if x != 51], q_loads(0) + q_loads(1)[:6])
        elif t_ == 7:
            ex[(26, "pre")] = ["s_waitcnt vmcnt(30)", "s_barrier"]
            ex.setdefault(24, []).append(f"v_add_u32 v{vFv}, 1, v{vFv}")
            put(ex, [28], [f"buffer_store_dwordx2 {vr(vFv,2)}, v{vFo}, s[{qX}:{qX+3}], s{sTail} offen sc1"])
            put(ex, [1, 5, 7, 9, 11, 13, 15, 17, 21, 23, 25, 27, 29, 31], q_loads(1)[6:] + q_loads(2)[:7])
        if t_ >= 1: stamp(t_ + 6, True)
        attn_seg(A, lq, 0, ex)
        attn_seg(A, lq, 1, ex, look=(True if t_ < 7 else [1]))
        if t_ < 7:
            attn_seg(A, lq, 2, ex)
            attn_seg(A, lq, 3, ex)
    ex = {}
    put(ex, [33, 37, 41, 45, 49, 53, 57], q_loads(2)[7:])
    attn_seg(A, lq, 2, ex, mfma=False, look=[3])
    attn_seg(A, lq, 3, ex, sm_hi=54, look=[3])
    stamp(5)
    if "fine2" in XP:
        A(f"s_lshl_b32 s96, s2, 2"); A(f"s_add_u32 s96, s96, s{sWave}"); A("s_lshl_b32 s96, s96, 10")
        A(f"v_lshl_add_u32 v227, v{vLane}, 2, s96")
        A(f"s_add_u32 s96, s{pWs}, 0x3200000"); A(f"s_addc_u32 s97, s{pWs+1}, 0")
        for i in range(3): A(f"global_store_dword v227, v{224+i}, s[96:97] offset:{256*i}")
    A(f"v_mov_b32 v{t}, v{vL}")
    A(f"v_mov_b32 v{t+1}, v{vL+1}")
    A(f"v_bfe_u32 v{t+2}, v{vLane}, 4, 1")
    A(f"v_lshrrev_b32 v{t+3}, 5, v{vLane}")
    A(f"v_permlane32_swap_b32 v{t}, v{vL}")
    A(f"v_permlane32_swap_b32 v{t+1}, v{vL+1}")
    A(f"v_lshlrev_b32 v{t+3}, 8, v{t+3}")
    A(f"v_add_f32 v{vL}, v{vL}, v{t}")
    A(f"v_add_f32 v{vL+1}, v{vL+1}, v{t+1}")
    A(f"v_lshl_add_u32 v{t+3}, v{t+2}, 10, v{t+3}")
    A(f"v_and_b32 v{t+2}, 15, v{vLane}")
    A(f"v_lshl_add_u32 v{vOo}, v{t+2}, 4, v{t+3}")
    A(f"v_mov_b32 v{t+8}, {hex(f2u(2.0**-40))}")
    A(f"v_mov_b32 v{t+9}, {hex(f2u(2.0**40))}")
    A(f"v_cmp_gt_f32 s[{sE0}:{sE0+1}], v{vL}, v{t+8}")
    A(f"v_cmp_lt_f32 s[{sE0+2}:{sE0+3}], v{vL}, v{t+9}")
    A(f"v_cmp_gt_f32 s[4:5], v{vL+1}, v{t+8}")
    A(f"v_cmp_lt_f32 s[6:7], v{vL+1}, v{t+9}")
    A(f"v_rcp_f32 v{t}, v{vL}")
    A(f"v_rcp_f32 v{t+1}, v{vL+1}")
    A("s_nop 1")
    A(f"s_and_b64 s[{sE0}:{sE0+1}], s[{sE0}:{sE0+1}], s[{sE0+2}:{sE0+3}]")
    A(f"s_and_b64 s[4:5], s[4:5], s[6:7]")
    A(f"s_and_b64 s[4:5], s[4:5], s[{sE0}:{sE0+1}]")
    A(f"s_cmp_eq_u64 s[4:5], exec")
    if not XP: A(f"s_cbranch_scc0 {L}slow ; slowbr")
    A(f"{L}oep:")
    A(f"s_lshl_b32 s6, s{sHead}, 14")
    n = 0
    for dt in range(4):
        for qt in range(2):
            b = vS + (n % 4) * 16; pk = vP + (n % 4) * 8; n += 1
            for i in range(16): A(f"v_accvgpr_read_b32 v{b+i}, a{aO+(qt*4+dt)*16+i}")
            for i in range(8):
                A(f"v_pk_mul_f32 {vr(b+2*i,2)}, {vr(b+2*i,2)}, {vr(t,2)} " + ("op_sel_hi:[1,0]" if qt == 0 else "op_sel:[0,1]"))
            for i in range(8): A(f"v_cvt_pk_bf16_f32 v{pk+i}, v{b+2*i}, v{b+2*i+1}")
            for j in range(2):
                A(f"buffer_store_dwordx4 {vr(pk+4*j,4)}, v{vOo}, s[{sA}:{sA+3}], s6 offen offset:{qt*2048+j*512} sc1 ; @put H")
        if dt < 3: A("s_add_u32 s6, s6, 4096")
    stamp(6); stamp(7)
    gemm2(A, L, emit, stamp)
    A(f"{L}end:")
    A("s_endpgm")
    A.lines += COLD
    A(f"{L}slow:")
    A("s_waitcnt vmcnt(0) lgkmcnt(0)")
    srd(A, sK, pK, pK + 1, 16777216)
    srd(A, sV, pV, pV + 1, 16777216)
    kv_dma_voff(A, vKd, vVd, 1)
    A(f"s_lshl_b32 s{sT1}, s{sWave}, 13")
    A(f"s_add_u32 s{sT1}, s{sT1}, {R2}")
    kv_addr(A, sT1)
    for dt in range(4): A(f"v_add_u32 v{vVr+dt}, {R4-R2-16384}, v{vVr+dt}")
    vM = vTm + 6
    A(f"v_mov_b32 v{vM}, 0xff800000")
    A(f"v_mov_b32 v{vM+1}, 0xff800000")
    A(f"v_mov_b32 v{vL}, 0")
    A(f"v_mov_b32 v{vL+1}, 0")
    for i in range(4): A(f"v_mov_b32 v{vTm+12+i}, 0")
    A("s_nop 1")
    for i in range(8): mf32(A, ar(aO + 16 * i, 16), vr(vTm + 12, 4), vr(vTm + 12, 4), "0")
    A(f"s_mov_b32 s{sT}, 0")
    A(f"{L}sl:")
    A(f"s_and_b32 s{sT0}, s{sT}, 15")
    A(f"s_lshl_b32 s{sT0}, s{sT0}, 13")
    A(f"s_lshl_b32 s{sKVo}, s{sHead}, 19")
    A(f"s_add_u32 s{sKVo}, s{sKVo}, s{sT0}")
    A(f"s_add_u32 s{sKVo}, s{sKVo}, {1536*256}")
    for hf in range(2):
        A(f"s_add_u32 m0, s{sT1}, {hf*4096}")
        A("s_nop 0")
        for j in range(4): A(f"buffer_load_dwordx4 v{vKd+j}, s[{sK}:{sK+3}], s{sKVo} offen offset:{j*1024} lds")
        A(f"s_add_u32 m0, s{sT1}, {R4-R2+hf*4096}")
        A("s_nop 0")
        for j in range(4): A(f"buffer_load_dwordx4 v{vVd}, s[{sV}:{sV+3}], s{sKVo} offen offset:{j*1024} lds")
        if hf == 0: A(f"s_add_u32 s{sKVo}, s{sKVo}, 4096")
    A("s_waitcnt vmcnt(0)")
    for p in range(8):
        A(kread(p, 0, p % 4))
        A("s_waitcnt lgkmcnt(0)")
        for qt in range(2): mf32(A, vr(vS + qt * 16, 16), vr(vF + (p % 4) * 4, 4), vr(vQ + (qt * 8 + p) * 4, 4), "0" if p == 0 else None)
    A("s_nop 11")
    A(f"s_cmp_ge_u32 s{sT}, 16")
    A(f"s_cbranch_scc1 {L}sl2")
    for qt in range(2):
        for i in range(8): A(f"v_max3_f32 v{vM+qt}, v{vS+qt*16+2*i}, v{vS+qt*16+2*i+1}, v{vM+qt}")
    A(f"s_cmp_lg_u32 s{sT}, 15")
    A(f"s_cbranch_scc1 {L}sl3")
    A(f"v_mov_b32 v{vM+2}, v{vM}")
    A(f"v_mov_b32 v{vM+3}, v{vM+1}")
    A("s_nop 1")
    A(f"v_permlane32_swap_b32 v{vM+2}, v{vM}")
    A(f"v_permlane32_swap_b32 v{vM+3}, v{vM+1}")
    A(f"v_max_f32 v{vM}, v{vM}, v{vM+2}")
    A(f"v_max_f32 v{vM+1}, v{vM+1}, v{vM+3}")
    A(f"s_branch {L}sl3")
    A(f"{L}sl2:")
    for e in range(32):
        r, qt, ks = sm_reg(0, e)
        A(f"v_sub_f32 v{r}, v{r}, v{vM+qt}")
        A(f"v_exp_f32 v{r}, v{r}")
        A("s_nop 0")
        for x in sm_post(0, e): A(x)
    for i in range(8):
        for sec in range(2): A(vread(i // 4, i % 4, 0, sec, i % 4))
        A("s_waitcnt lgkmcnt(0)")
        for qt in range(2): mf32(A, ar(aO + (qt * 4 + i % 4) * 16, 16), vr(vF + (i % 4) * 4, 4), vr(vP + (qt * 2 + i // 4) * 4, 4))
    A(f"{L}sl3:")
    A(f"s_add_u32 s{sT}, s{sT}, 1")
    A(f"s_cmp_lt_u32 s{sT}, 32")
    A(f"s_cbranch_scc1 {L}sl")
    A(f"v_mov_b32 v{t}, v{vL}")
    A(f"v_mov_b32 v{t+1}, v{vL+1}")
    A("s_nop 1")
    A(f"v_permlane32_swap_b32 v{t}, v{vL}")
    A(f"v_permlane32_swap_b32 v{t+1}, v{vL+1}")
    A(f"v_add_f32 v{vL}, v{vL}, v{t}")
    A(f"v_add_f32 v{vL+1}, v{vL+1}, v{t+1}")
    A(f"v_rcp_f32 v{t}, v{vL}")
    A(f"v_rcp_f32 v{t+1}, v{vL+1}")
    A("s_nop 7")
    A(f"s_branch {L}oep")
    A(f"{L}last:")
    kd(A, name, 512, 256)

def checks(A, entry):
    if XP: return
    nb = check_hazards(A.lines)
    tot = 0
    for wg in (0, 5, 6, 31, 24, 28, 255):
        for w in (0, 1, 3):
            for slow in (0, 1):
                def hk(x, S):
                    if x.opn == "v_readfirstlane_b32" and "tag" not in x.text:
                        S[sWave] = w
                    if "slowbr" in x.text: return slow
                    if "pollbr" in x.text: return 1
                p, c = check_waits(A.lines, entry, {2: wg}, hk)
                tot += p
    print("hazards:", nb, "waits:", tot, c)

def build(fn, stamps=False):
    HDR = open("cdna_kernels/" + NAME + ".s.ref").read().split("; Override")[0]
    A = Asm()
    A(HDR)
    A(f"; @launch grid=(256,1,1) block=(256,1,1) lds={P1_LDS}")
    A('.amdgcn_target "amdgcn-amd-amdhsa--gfx950"')
    A(".text")
    gen_p1(A, NAME + "_kernel", stamps=stamps)
    checks(A, NAME + "_kernel")
    if "ub" in XP:
        A.lines = [l.replace("0x402b1600", "0x422c1600").replace("0x5b402b16", "0x5b422c16") for l in A.lines]
        out = []
        pend = 0
        for i, l in enumerate(A.lines):
            if l == f"s_cmp_eq_u32 s{qP}, 3": l = "s_cmp_eq_u32 0, 0"
            out.append(l)
        A.lines = out
    if any(x.startswith("g_") for x in XP):
        i0 = A.lines.index("p1_gf:"); i1 = A.lines.index("p1_gdone:")
        body = A.lines[i0:i1]
        if "g_nodma" in XP: body = [l for l in body if " lds" not in l]
        if "g_nobar" in XP: body = [l for l in body if not l.startswith("s_barrier")]
        if "g_nowait" in XP: body = [l for l in body if not l.startswith("s_waitcnt lgkmcnt")]
        if "g_noread" in XP: body = [l for l in body if not l.startswith("ds_read")]
        if "g_nop" in XP: body = [("s_nop 0" if " lds" in l else l) for l in body]
        A.lines[i0:i1] = body
    if "hplain" in XP: A.lines = [l.replace(" sc1", "") if ("store" in l and f"s[{sA}:{sA+3}], s6 " not in l and f"s[{sA}:{sA+3}]" in l) else l for l in A.lines]
    if "oplain" in XP: A.lines = [l.replace(" sc1", "") if ("store" in l and f"s[{sA}:{sA+3}], s6 " in l) else l for l in A.lines]
    if "iplain" in XP: A.lines = [l.replace(" sc1", "") if ("store" in l and f"s[{qI}:{qI+3}], s{sT0}" in l) else l for l in A.lines]
    if "nt" in XP: A.lines = [l.replace(" sc1", " sc1 nt") if ("buffer_store" in l) else l for l in A.lines]
    if "sc01" in XP: A.lines = [l.replace(" sc1", " sc0 sc1") if ("buffer_store" in l) else l for l in A.lines]
    open(fn, "w").write(A.text())
if __name__ == "__main__":
    build("fu.s")
    build("fu_st.s", stamps=True)
```

```python
from asmlib import *
from common import *

P1_LDS = 163840
R0, R1, R2, R3, R4 = 0, 32768, 65536, 98304, 131072
CS = R3
TAILBIT = 0x30000
ROT = False
TLBW = True
FLAG = 'byte'
FINE = False
EVMASK = 0x180
vFin = 60
XP = set()

class LQ:
    def __init__(s): s.q = []
    def issue(s, tag): s.q.append(tag)
    def wait(s, A, tags):
        idx = max([i for i, t in enumerate(s.q) if t in tags], default=-1)
        if idx < 0: return
        n = len(s.q) - 1 - idx
        assert n <= 15
        A(f"s_waitcnt lgkmcnt({n})")
        s.q = s.q[idx + 1:]
    def clear(s): s.q = []

sX, sWq, sW1, sW3, sK, sV, sA, sWp, sSrc, sSt = 8, 12, 16, 20, 24, 28, 32, 36, 40, 44
sWave, sHead, sRb, sFb, sHasF = 48, 49, 50, 51, 52
sXo, sWqo, sW13o, sM0X, sM0W, sD, sTail, sSlot = 53, 54, 55, 56, 57, 58, 59, 60
sT0, sT1, sT2 = 61, 62, 63
pX, pK, pV, pWq, pWo, pBx, pW1, pW3, pW2, pOut, pDbg, pWs = range(64, 88, 2)
sKVo, sKVm, sDelta, sT, sU, sMask, sXb, sC0 = 88, 89, 90, 91, 92, 93, 94, 95
sX2, sM0d, sXst, sM0t, sProd, sPo = 76, 74, 75, 3, 4, 5
sE0 = 96
vLane = 1
vXd, vWqd, vW13d, vXr, vWqr, vW13r = 2, 10, 12, 13, 15, 23
vZero = 27
vSt = 28
vTm = 44
vQ = 64
vAcc = 128
aG, aUp, aCs, aXf, aWf, aOne, aWp = 0, 64, 128, 144, 176, 192, 196
vKr, vVr, vKd, vVd, vL, vOo = 14, 10, 2, 6, 22, 24
vWs, vKb, vVb = 56, 57, 58
vS, vP, vF = 128, 192, 208
aO = 128
sNo = 100
pFl = 84
qA, qW, qX, qO, qI = 8, 12, 16, 20, 44
qP, qG, qAo, qWo, qWm, qN, qAs, qWs = 53, 54, 55, 56, 57, 58, 51, 60
qAe, qWe, qNl, qSo, qXo, qRb, qCb, qT0, qT1, qIn = 74, 75, 3, 93, 94, 76, 77, 78, 79, 24
vFo, vFv, vPa, vPb, vAa, vAb, vAo, vAp = 25, 28, 30, 32, 34, 35, 36, 37
vL16, vWr2, vXo2, vL8, vOwn = 54, 2, 4, 5, 6
aA2, aW2, aWq = 0, 64, 64
RING2 = 81920
TOUCH = 0
PMAP = 0x2013
SLP = (0, 0, 0)
COOPX = 1
SPL = (1, 1)
OPT = set()
vTch, sTch = 26, 92
vOnes = 40
vWpB, vWpA = 59, 39
sWpO, sSen = 5, 4


def mf16(A, d, a, b, c=None):
    A(f"v_mfma_f32_16x16x32_bf16 {d}, {a}, {b}, {d if c is None else c}")
def mf32(A, d, a, b, c=None):
    A(f"v_mfma_f32_32x32x16_bf16 {d}, {a}, {b}, {d if c is None else c}")

def spread(items, nslots):
    out = [[] for _ in range(nslots)]
    n = len(items)
    for i, it in enumerate(items):
        out[min(nslots - 1, (i * nslots) // n)].append(it)
    return out

def frag_list(ffn):
    fr = [("Q", p) for p in range(8)]
    if ffn:
        for p in range(4): fr += [("G", p), ("U", p)]
    return fr

def wread(fr, k, sec, buf):
    c, p = fr
    if c == "Q": ad, off = vWqr + p, sec * 1024
    else: ad, off = vW13r + p, (2048 if c == "G" else 3072) + sec * 512
    return f"ds_read_b64_tr_b16 {ar(aWf+buf*4+2*sec,2)}, v{ad} offset:{off + k*16384}"

def xread(s, st, rt):
    return f"ds_read_b128 {ar(aXf+st*16+rt*4,4)}, v{vXr+s} offset:{rt*2048}"

def dma_w(ffn, force=False):
    it = [f"s_max_u32 m0, s{sM0W}, s{sTail}",
          f"buffer_load_dwordx4 v{vWqd}, s[{sWq}:{sWq+3}], s{sWqo} offen lds ; @put W",
          f"buffer_load_dwordx4 v{vWqd+1}, s[{sWq}:{sWq+3}], s{sWqo} offen offset:1024 lds ; @put W"]
    if ffn or force:
        it += [f"buffer_load_dwordx4 v{vW13d}, s[{sW1}:{sW1+3}], s{sW13o} offen offset:2048 lds ; @put W",
               f"buffer_load_dwordx4 v{vW13d}, s[{sW3}:{sW3+3}], s{sW13o} offen offset:3072 lds ; @put W"]
    it += [f"s_add_u32 s{sWqo}, s{sWqo}, {32*8192}"]
    if ffn or force: it += [f"s_add_u32 s{sW13o}, s{sW13o}, {32*3456}"]
    it += [f"s_add_u32 s{sSlot}, s{sSlot}, 16384\ns_and_b32 s{sSlot}, s{sSlot}, 0xffff",
           f"s_add_u32 s{sM0W}, s{sSlot}, s{sC0}"]
    return it

def dma_x(half):
    if half == 0: it = [f"s_mov_b32 m0, s{sM0X}"]
    else: it = [f"s_add_u32 m0, s{sM0X}, s{sM0d}"]
    sd = sX if half == 0 else sX2
    for j in range(4):
        it.append(f"buffer_load_dwordx4 v{vXd+4*half+j}, s[{sd}:{sd+3}], s{sXo} offen offset:{j*1024} lds")
    if half: it += [f"s_add_u32 s{sXo}, s{sXo}, s{sXst}\ns_xor_b32 s{sM0X}, s{sM0X}, s{sM0t}"]
    return it

def fine(A):
    A("s_memtime s[98:99]"); A("s_waitcnt lgkmcnt(0)")
    A("s_mov_b32 m0, s7")
    A(f"v_writelane_b32 v{vFin}, s96, m0")
    A(f"v_writelane_b32 v{vFin+1}, s100, m0")
    A(f"v_writelane_b32 v{vFin-1}, s98, m0")
    A("s_add_u32 s7, s7, 1")

def kstep(A, lq, ffn, k, slots, sal, tog, bar, last=None):
    fr = frag_list(ffn); nf = len(fr)
    ones = {("Q", 0): 0, ("Q", 1): 1, ("G", 0): 2, ("U", 0): 3}
    for f in range(nf):
        c, p = fr[f]
        lq.wait(A, [("w", f)] + ([("x", k)] if f == 0 else []))
        buf = f % 4
        for rt in range(4):
            r_ = rt if f % 2 == 0 else 3 - rt
            if c == "Q": d = vr(vAcc + (p * 4 + r_) * 4, 4)
            else: d = ar((aG if c == "G" else aUp) + (p * 4 + r_) * 4, 4)
            mf16(A, d, ar(aWf + buf * 4, 4), ar(aXf + k * 16 + r_ * 4, 4))
            if f + 3 < nf and rt < 2:
                A(wread(fr[f + 3], k, rt, (f + 3) % 4)); lq.issue(("w", f + 3))
            if last is not None and f >= nf - 2:
                for it in last[4 * (f - nf + 2) + rt]: A(it)
            elif f == nf - 2:
                A(wread(fr[rt // 2], 1 - k, rt % 2, (rt // 2) % 4)); lq.issue(("w", rt // 2))
            elif f == nf - 1 and rt < 2:
                A(wread(fr[2], 1 - k, rt, 2)); lq.issue(("w", 2))
            if rt == 1:
                for it in sal.get(f, []): A(it)
            if rt >= 2 and f < nf - 2:
                for it in slots[2 * f + rt - 2]:
                    if isinstance(it, tuple):
                        A(xread(1 - k, 1 - k, it[1])); lq.issue(("x", 1 - k))
                    else:
                        if "lds" in it and " m0," in A.lines[-1]: A("s_nop 0")
                        A(it)
                        if it.startswith("ds_"): lq.issue(("o", 0))
            if rt == 3:
                for t in tog.get(f, []): A(t)
        if fr[f] in ones:
            mf16(A, ar(aCs + ones[fr[f]] * 4, 4), ar(aWf + buf * 4, 4), ar(aOne, 4))
        if f == nf - 3:
            A(f"s_waitcnt vmcnt({bar[0]}) lgkmcnt(0)")
            lq.clear()
            A(f"s_barrier ; {bar[1]}")

def poll_check(A, L):
    A(f"s_mov_b32 s{sT1}, 0")
    A(f"{L}_chk:")
    A(f"v_cmp_ne_u32 vcc, 0x01010101, v{vTm}")
    A(f"v_cmp_eq_u32 s[6:7], 0, v{vTm+5}")
    A("s_nop 3")
    A(f"s_or_b64 s[6:7], s[6:7], vcc")
    A(f"s_cbranch_scc0 {L}_rdy ; pollbr")
    A(f"s_add_u32 s{sT1}, s{sT1}, 1")
    A(f"s_cmp_ge_u32 s{sT1}, 0x40000")
    A(f"s_cbranch_scc1 {L}_rdy")
    for it in poll_loads(): A(it)
    A("s_waitcnt vmcnt(0)")
    A(f"s_branch {L}_chk")
    A(f"{L}_rdy:")
def poll_loads():
    return [f"global_load_dword v{vTm}, v{vTm+2}, s[{pDbg}:{pDbg+1}] sc1",
            f"global_load_dwordx2 {vr(vTm+4,2)}, v{vTm+6}, s[{pDbg}:{pDbg+1}] offset:128 sc1"]
def stats_scale():
    o = []
    for rt in range(4):
        q = vSt + 4 * rt
        o += [f"v_mul_f32 v{q+3}, {hex(f2u(LOG2E/128**0.5))}, v{q+1}", f"v_mul_f32 v{q+1}, {hex(f2u(-LOG2E))}, v{q+1}"]
    return o + [f"v_mov_b32 v{vTm+4+i}, 0" for i in range(4)]
CSB = [14, 18, 22]
def cs_writes():
    t = vTm
    return [f"ds_write_b128 v{t+8}, {ar(aCs,4)}", f"ds_write_b128 v{t+8}, {ar(aCs+4,4)} offset:64",
            f"ds_write_b128 v{t+9}, {ar(aCs+8,4)}", f"ds_write_b128 v{t+9}, {ar(aCs+12,4)} offset:256"]

def gemm_loop(A, ffn, L):
    fr = frag_list(ffn); nf = len(fr)
    nw = 4 if ffn else 2
    lq = LQ()
    for f in range(3):
        lq.issue(("w", f)); lq.issue(("w", f))
    tg = lambda r, m: [f"v_xor_b32 v{r}, {m}, v{r}"]
    bar = (2 * nw + 8, f"@need W {2*nw}")
    A(".p2align 6")
    A(f"{L}:")
    if not ffn:
        items = [("x", rt) for rt in range(4)] + dma_x(1) + dma_w(ffn)
        kstep(A, lq, ffn, 0, spread(items, 2 * (nf - 2)), {}, {2: tg(vXr, "0x18000")}, bar)
        A(f"s_bitcmp1_b32 s{sMask}, s{sD}")
        A(f"s_cbranch_scc1 {L}_ev")
        A(f"{L}_evret:")
        slots = spread(dma_x(0) + dma_w(ffn) + [f"s_add_u32 s{sD}, s{sD}, 1"], 2 * (nf - 5))
        slots += [[f"s_cmp_eq_u32 s{sD}, 10\ns_cbranch_scc1 {L}_nw\ns_waitcnt vmcnt({2*nw+4})\n{L}_nw:"],
                  [("x", 0)], [("x", 1)], [("x", 2)], [("x", 3)], []]
        tog = {0: tg(vXr + 1, "0x18000")}
        for f, (c, p) in enumerate(fr): tog.setdefault(max(f - 3, -1) + 1, []).extend(tg(vWqr + p, "0x38000"))
        kstep(A, lq, ffn, 1, slots, {}, tog, bar)
        A(f"s_cmp_lt_u32 s{sD}, 10")
        A(f"s_cbranch_scc1 {L}")
        return
    def one(items):
        sl = [[] for _ in range(2 * (nf - 2))]
        for i, it in enumerate(items): sl[2 * i] = [it] if it else []
        return sl
    X = [("x", rt) for rt in range(4)]
    tog0 = {2: tg(vXr, "0x18000")}
    tog1 = {i: tg(vWqr + i, "0x38000") for i in range(7)}
    tog1.update({8: tg(vWqr + 7, "0x38000"), 9: tg(vW13r, "0x38000"), 10: tg(vW13r + 1, "0x38000"), 11: tg(vW13r + 2, "0x38000"),
                 12: tg(vW13r + 3, "0x38000"), 14: tg(vXr + 1, "0x18000")})
    xs, ws_ = dma_x(1), dma_w(True)
    kstep(A, lq, True, 0, one(X[:2] + xs[1:5] + X[2:] + ws_[1:5]),
          {1: [xs[0]], 6: [xs[5]], 7: [ws_[0]], 12: ws_[5:7], 13: ws_[7:], 15: [f"s_cmp_eq_u32 s{sD}, 8"]}, tog0, bar)
    A(f"s_cbranch_scc1 {L}_end")
    q_mid = list(lq.q)
    xs = dma_x(0)
    sl = one(xs[1:5] + ws_[1:5] + X)
    sl[2 * 7 + 1] = [f"s_waitcnt vmcnt({2*nw+4})"]
    kstep(A, lq, True, 1, sl, {0: [xs[0]], 4: [ws_[0]], 8: ws_[5:7], 9: ws_[7:8], 10: ws_[8:], 11: [f"s_add_u32 s{sD}, s{sD}, 1"]}, tog1, bar)
    A(f"s_branch {L}")
    A(f"{L}_end:")
    lq.q = q_mid
    kv = kv_dma()
    sl = one(poll_loads() + [None, None] + kv[1:5] + X)
    sl[2 * 7 + 1] = ["s_waitcnt vmcnt(10)"]
    for j in range(5): sl[2 * j + 1] = []
    tA = {f: list(v) for f, v in tog1.items()}
    mv = {f: [f"v_mov_b32 v{vKd+f}, v{vQ+f}"] for f in range(5)}
    kstep(A, lq, True, 1, sl, {**mv, 3: mv[3] + [f"s_lshl_b32 s{sKVm}, s{sWave}, 12", kv[0]]}, tA, (14, "@need W 4"))
    B_ = Asm(); B_("s_waitcnt vmcnt(4)"); poll_check(B_, L)
    st = [f"buffer_load_dwordx4 {vr(vSt+4*rt,4)}, v{vTm+3}, s[{sSt}:{sSt+3}], s{sT0} offen offset:{rt*256} sc1" for rt in range(4)]
    sl = one(X[:2] + st + X[2:] + kv[6:10])
    sl[1] = ["\n".join(B_.lines)]
    kstep(A, lq, True, 0, sl, {0: [f"s_lshl2_add_u32 s{sT0}, s{sRb}, s{sWave}\ns_lshl_b32 s{sT0}, s{sT0}, 10"], 7: [kv[5]],
                               2: [f"v_readfirstlane_b32 s{sNo}, v{vTm+4} ; tag"], 3: [f"v_readfirstlane_b32 s{sNo+1}, v{vTm+5} ; tag"],
                               4: [f"s_add_u32 s{pFl}, s{pWs}, {FL_OFF}\ns_addc_u32 s{pFl+1}, s{pWs+1}, 0"],
                               12: [f"s_add_u32 s{sKVo}, s{sKVo}, 16384\ns_add_u32 s{sKVm}, s{sKVm}, 32768"]}, {}, (14, "@need W 0"))
    cw = cs_writes()
    sl = one([None] + kv[1:3] + cw[:2] + kv[3:5] + [None] * 3 + [None] + cw[2:])
    ss = stats_scale()
    t = vTm
    last = [[f"ds_read_b128 {vr(CSB[0],4)}, v{t+8}", f"v_xor_b32 v{t+11}, 64, v{t+8}"], ss[0:2], [f"ds_read_b128 {vr(CSB[1],4)}, v{t+11}", ss[2]],
            ss[3:5], ss[5:7], ss[7:9], ss[9:11], ss[11:12] + [f"s_and_b32 s{qP}, s2, 3"]]
    kstep(A, lq, True, 1, sl, {0: [kv[0]]}, {}, (8, "@need KV 8"), last=last)

def kv_dma_voff(A, kd_, vd_, nv=4):
    t = vTm
    A(f"v_lshrrev_b32 v{t+12}, 4, v{vLane}")
    A(f"v_and_b32 v{t+14}, 15, v{vLane}")
    A(f"v_xor_b32 v{t+13}, v{t+14}, v{t+12}")
    A(f"v_lshlrev_b32 v{t+13}, 4, v{t+13}")
    A(f"v_lshl_add_u32 v{kd_}, v{t+12}, 8, v{t+13}")
    for j in range(1, 4): A(f"v_xor_b32 v{kd_+j}, {64*j}, v{kd_}")
    A(f"v_lshlrev_b32 v{t+13}, 2, v{t+12}")
    A(f"v_xor_b32 v{t+13}, v{t+13}, v{t+14}")
    A(f"v_lshlrev_b32 v{t+13}, 4, v{t+13}")
    A(f"v_lshl_add_u32 v{vd_}, v{t+12}, 8, v{t+13}")
    for j in range(1, nv): A(f"v_mov_b32 v{vd_+j}, v{vd_}")

def gemm_events(A, L):
    A(f"{L}_ev:")
    A(f"s_cmp_eq_u32 s{sD}, 8")
    A(f"s_cbranch_scc1 {L}_ev8")
    for it in poll_loads(): A(it)
    A(f"s_branch {L}_evret")
    A(f"{L}_ev8:")
    A(f"s_mov_b32 s{sTail}, {TAILBIT}")
    for d in (sWq, sW1, sW3): A(f"s_mov_b32 s{d+2}, 0")
    for d, s_ in ((sX, sK), (sX2, sV)):
        A(f"s_mov_b64 s[{d}:{d+1}], s[{s_}:{s_+1}]")
        A(f"s_mov_b64 s[{d+2}:{d+3}], s[{s_+2}:{s_+3}]")
    for j in range(8): A(f"v_mov_b32 v{vXd+j}, v{vQ+min(j,4)}")
    A(f"s_lshl_b32 s{sM0X}, s{sWave}, 12")
    A(f"s_mov_b32 s{sXo}, s{sKVo}")
    A(f"s_movk_i32 s{sM0d}, 16384")
    A(f"s_movk_i32 s{sXst}, 16384")
    A(f"s_mov_b32 s{sM0t}, 0x8000")
    A(f"s_waitcnt vmcnt(12)")
    poll_check(A, L)
    A(f"v_readfirstlane_b32 s{sNo}, v{vTm+4} ; tag")
    A(f"v_readfirstlane_b32 s{sNo+1}, v{vTm+5} ; tag")
    A(f"s_add_u32 s{pFl}, s{pWs}, {FL_OFF}")
    A(f"s_addc_u32 s{pFl+1}, s{pWs+1}, 0")
    A(f"s_lshl2_add_u32 s{sT0}, s{sRb}, s{sWave}")
    A(f"s_lshl_b32 s{sT0}, s{sT0}, 10")
    for rt in range(4):
        A(f"buffer_load_dwordx4 {vr(vSt+4*rt,4)}, v{vTm+3}, s[{sSt}:{sSt+3}], s{sT0} offen offset:{rt*256} sc1")
    A(f"s_branch {L}_evret")

def kv_addr(A, base_expr_sgpr, only=None):
    vKr, vVr = only or (globals()["vKr"], globals()["vVr"])
    t0, t1, t2, t3 = vTm + 12, vTm + 13, vTm + 14, vTm + 15
    A(f"v_and_b32 v{t0}, 31, v{vLane}")
    A(f"v_lshrrev_b32 v{t1}, 5, v{vLane}")
    A(f"v_and_b32 v{t2}, 15, v{vLane}")
    A(f"v_xor_b32 v{t2}, v{t2}, v{t1}")
    A(f"s_lshl_b32 s{sT0}, s{sWave}, 2")
    A(f"v_xor_b32 v{t2}, s{sT0}, v{t2}")
    A(f"v_lshlrev_b32 v{t2}, 4, v{t2}")
    A(f"v_lshl_add_u32 v{t2}, v{t0}, 8, v{t2}")
    A(f"v_add_u32 v{vKr}, s{base_expr_sgpr}, v{t2}")
    for p in range(1, 1 if only else 8): A(f"v_xor_b32 v{vKr+p}, {32*p}, v{vKr}")
    A(f"v_bfe_u32 v{t0}, v{vLane}, 2, 2")
    A(f"v_lshl_add_u32 v{t2}, v{t1}, 2, v{t0}")
    A(f"v_lshlrev_b32 v{t2}, 8, v{t2}")
    A(f"v_lshl_add_u32 v{t2}, v{t0}, 6, v{t2}")
    A(f"v_bfe_u32 v{t3}, v{vLane}, 1, 1")
    A(f"v_lshl_add_u32 v{t2}, v{t3}, 5, v{t2}")
    A(f"v_bfe_u32 v{t3}, v{vLane}, 4, 1")
    A(f"v_lshl_add_u32 v{t2}, v{t3}, 4, v{t2}")
    A(f"v_and_b32 v{t3}, 1, v{vLane}")
    A(f"v_lshl_add_u32 v{t2}, v{t3}, 3, v{t2}")
    A(f"s_add_u32 s{sT0}, s{base_expr_sgpr}, 16384")
    A(f"v_add_u32 v{vVr}, s{sT0}, v{t2}")
    for dt in range(1, 1 if only else 4): A(f"v_xor_b32 v{vVr+dt}, {64*dt}, v{vVr}")

def kv_dma():
    it = [f"s_mov_b32 m0, s{sKVm}"]
    for j in range(4):
        it.append(f"buffer_load_dwordx4 v{vKd+j}, s[{sK}:{sK+3}], s{sKVo} offen offset:{j*1024} lds")
    it.append("s_add_u32 m0, m0, 16384")
    for j in range(4):
        it.append(f"buffer_load_dwordx4 v{vVd}, s[{sV}:{sV+3}], s{sKVo} offen offset:{j*1024} lds")
    return it

def kread(p, tile, buf):
    return f"ds_read_b128 {vr(vF+buf*4,4)}, v{vKr+p} offset:{tile*8192}"
def vread(ks, dt, tile, sec, buf):
    return f"ds_read_b64_tr_b16 {vr(vF+buf*4+2*sec,2)}, v{vVr+dt} offset:{(32*tile+16*ks+8*sec)*256}"

def sm_reg(buf, e):
    qt = (e >> 3) & 1; ks = e >> 4
    return vS + (buf * 2 + qt) * 16 + ks * 8 + (e & 7), qt, ks
def sm_exp(buf, e):
    r, _, _ = sm_reg(buf, e)
    if "noexp" in XP: return []
    if "movexp" in XP: return [f"v_mov_b32 v{r}, v{r}"]
    return [f"v_exp_f32 v{r}, v{r}"]
def sm_post(buf, e):
    r, qt, ks = sm_reg(buf, e)
    o = [f"v_add_f32 v{vL+qt}, v{vL+qt}, v{r}"]
    if "noadd" in XP: o = []
    if e & 1 and "nocvt" not in XP: o.append(f"v_cvt_pk_bf16_f32 v{vP+(qt*2+ks)*4+((e&7)>>1)}, v{r-1}, v{r}")
    return o

def attn_seg(A, lq, seg, extra, mfma=True, sm_lo=0, sm_hi=64, look=True):
    def rd(phi, part):
        s = (phi // 8) % 4; i = phi % 8; buf = phi % 4
        if s in (0, 2):
            return kread(i, 1 if s == 0 else 0, buf) if part == 0 else None
        return vread(i // 4, i % 4, 0 if s == 1 else 1, part, buf)
    for i in range(8):
        phi = seg * 8 + i
        if mfma and "nowait" not in XP: lq.wait(A, [("f", phi)])
        for qt in range(2):
            slot = seg * 16 + 2 * i + qt
            if mfma:
                if seg in (0, 2):
                    sb = 1 if seg == 0 else 0
                    d = vr(vS + (sb * 2 + qt) * 16, 16)
                    mf32(A, d, vr(vF + (phi % 4) * 4, 4), vr(vQ + (qt * 8 + i) * 4, 4), "0" if i == 0 else None)
                else:
                    ks, dt = i // 4, i % 4
                    mf32(A, ar(aO + (qt * 4 + dt) * 16, 16), vr(vF + (phi % 4) * 4, 4), vr(vP + (qt * 2 + ks) * 4, 4))
            for it in extra.get((slot, "pre"), []): A(it)
            nphi = (phi + 3) % 32
            nseg = nphi // 8
            if look is True or nseg in look:
                r = rd(nphi, qt)
                if r and "noread" not in XP: A(r); lq.issue(("f", nphi))
            for it in extra.get((slot, "ds"), []):
                A(it); lq.issue(("side", 0))
            for it in extra.get(slot, []):
                if it.startswith("v_"): continue
                if "lds" in it and " m0," in A.lines[-1]: A("s_nop 0")
                A(it)
            for (buf, start) in ((1, 22), (0, 54)):
                e = (slot - start) % 64
                if e < 32 and (buf, "exp") in sm_ok(slot, sm_lo, sm_hi, buf, e):
                    for x in sm_exp(buf, e): A(x)
            for (buf, start) in ((1, 22), (0, 54)):
                e = (slot - start - 1) % 64
                if e < 32 and (buf, "exp") in sm_ok((slot - 1) % 64, sm_lo, sm_hi, buf, e):
                    for x in sm_post(buf, e): A(x)
            for it in extra.get(slot, []):
                if it.startswith("v_"): A(it)
            for it in extra.get((slot, "post"), []): A(it)
def sm_ok(slot, lo, hi, buf, e):
    return {(buf, "exp")} if (lo <= slot < hi) else set()

def wp_src_voff(A, d, n=8):
    t = vTm
    A(f"v_lshrrev_b32 v{t+12}, 4, v{vLane}")
    A(f"v_lshlrev_b32 v{t+12}, 1, v{t+12}")
    A(f"v_and_b32 v{t+13}, 7, v{vLane}")
    A(f"v_xor_b32 v{t+12}, v{t+12}, v{t+13}")
    A(f"v_lshlrev_b32 v{t+12}, 4, v{t+12}")
    A(f"v_lshrrev_b32 v{t+13}, 3, v{vLane}")
    A(f"v_mul_u32_u24 v{t+13}, 1280, v{t+13}")
    A(f"v_add_u32 v{d}, v{t+12}, v{t+13}")
    for j in range(1, n): A(f"v_add_u32 v{d+j}, {(j%4)*9216 + (j//4)*128}, v{d}")

def wp_addr(A, sh, note="", reg=R3, n=4, dst=None):
    t = vTm
    A(f"v_bfe_u32 v{t+14}, v{vLane}, 2, 2")
    A(f"v_bfe_u32 v{t+16}, v{vLane}, 4, 1")
    A(f"v_lshl_add_u32 v{t+14}, v{t+16}, 2, v{t+14}")
    A(f"v_lshrrev_b32 v{t+13}, 1, v{t+14}")
    A(f"v_lshlrev_b32 v{t+13}, 5, v{t+13}")
    A(f"v_lshl_add_u32 v{t+13}, v{t+14}, 7, v{t+13}")
    A(f"v_lshrrev_b32 v{t+15}, 5, v{vLane}")
    A(f"v_lshl_add_u32 v{t+13}, v{t+15}, 10, v{t+13}")
    A(f"v_and_b32 v{t+15}, 3, v{vLane}")
    A(f"v_lshl_add_u32 v{t+13}, v{t+15}, 3, v{t+13}")
    A(f"s_lshl_b32 s6, s{sWave}, {sh}")
    A(f"s_add_u32 s6, s6, {reg}")
    A(f"v_add_u32 v{dst or t+4}, s6, v{t+13}{note}")
    for i4 in range(1, n): A(f"v_xor_b32 v{t+4+i4}, {32*i4}, v{t+4}")
def wp_reads(A, stride):
    for su in range(2):
        for i4 in range(4):
            for sec in range(2):
                A(f"ds_read_b64_tr_b16 {ar(aWq+(su*4+i4)*4+2*sec,2)}, v{vTm+4+i4} offset:{su*stride+sec*2048}")
def wp_stores(A, so):
    for su in range(2):
        for i4 in range(4):
            A(f"buffer_store_dwordx4 {ar(aWq+(su*4+i4)*4,4)}, v{vL16}, s[{sWp}:{sWp+3}], s{so} offen offset:{i4*1024} sc1")
        if su == 0: A(f"s_add_u32 s{so}, s{so}, 4096")

def set_flag(A, phase, lab, cls="H"):
    A(f"s_cmp_lg_u32 s{sWave}, 0")
    A(f"s_cbranch_scc1 {lab}")
    A(f"s_add_u32 s6, s{sNo}, {phase}")
    A(f"v_mov_b32 v{vFv}, s6")
    A(f"v_mov_b32 v{vFv+1}, s{sNo+1}")
    A("s_mov_b64 exec, 1")
    A(f"global_store_dwordx2 v{vFo}, {vr(vFv,2)}, s[{pFl}:{pFl+1}] sc1")
    A("s_mov_b64 exec, -1")
def flag_load(A, dst, ad):
    A(f"global_load_dwordx2 {vr(dst,2)}, v{ad}, s[{pFl}:{pFl+1}] sc1")
def flag_wait(A, lab, phase, polls):
    A(f"s_add_u32 s{sT0}, s{sNo}, {phase}")
    A(f"s_mov_b32 s{sT1}, 0")
    A(f"{lab}c:")
    for n, (d, ad) in enumerate(polls):
        A(f"v_subrev_u32 v{d}, s{sT0}, v{d}")
        A(f"v_cmp_ne_u32 s[{sE0+2*n}:{sE0+2*n+1}], s{sNo+1}, v{d+1}")
    for n, (d, ad) in enumerate(polls):
        A(f"v_cmp_lt_u32 " + ("vcc" if n == 0 else "s[6:7]") + f", {3-phase}, v{d}")
    A("s_nop 3")
    A(f"s_or_b64 s[{sE0}:{sE0+1}], s[{sE0}:{sE0+1}], vcc")
    if len(polls) > 1:
        A(f"s_or_b64 s[6:7], s[6:7], s[{sE0+2}:{sE0+3}]")
        A(f"s_or_b64 s[{sE0}:{sE0+1}], s[{sE0}:{sE0+1}], s[6:7]")
    A(f"s_cbranch_scc0 {lab}r ; pollbr")
    A(f"s_add_u32 s{sT1}, s{sT1}, 1")
    A(f"s_cmp_ge_u32 s{sT1}, 0x40000")
    A(f"s_cbranch_scc1 {lab}r")
    if SLP[0]: A(f"s_sleep {SLP[0]}")
    for d, ad in polls: flag_load(A, d, ad)
    A("s_waitcnt vmcnt(0)")
    A(f"s_branch {lab}c")
    A(f"{lab}r:")

def q_setup():
    w = sWave
    return [
     f"s_lshl_b32 s6, s{qP}, 3\ns_lshr_b32 s{qT0}, {hex(0x402b1600)}, s6\ns_and_b32 s{qT0}, s{qT0}, 0xff",
     f"s_lshr_b32 s{qT1}, {hex(0x5b402b16)}, s6\ns_and_b32 s{qT1}, s{qT1}, 0xff",
     f"s_and_b32 s{sT2}, s{w}, 1\ns_lshl_b32 s6, s{sT2}, 11\ns_lshl_b32 s{qAs}, s{qT0}, 13",
     f"s_add_u32 s{qAs}, s{qAs}, s6\ns_lshr_b32 s7, s{w}, 1\ns_lshl_b32 s6, s{qCb}, 1",
     f"s_add_u32 s6, s6, s7\ns_mul_i32 s6, s6, 5120\ns_mul_i32 s{qWs}, s{qT0}, 81920",
     f"s_add_u32 s{qWs}, s{qWs}, s6\ns_mul_i32 s6, s{sT2}, 40960\ns_add_u32 s{qWs}, s{qWs}, s6",
     f"s_lshl_b32 s{qAe}, s{qT1}, 13\ns_mul_i32 s{qWe}, s{qT1}, 81920\ns_mov_b32 s{qAo}, s{qAs}",
     f"s_mov_b32 s{qWo}, s{qWs}\ns_mul_i32 s{qWm}, s{sT2}, 10240\ns_mul_i32 s6, s7, 5120",
     f"s_add_u32 s{qWm}, s{qWm}, s6\ns_lshl_b32 s6, s{qRb}, 1\ns_add_u32 s6, s6, s7",
     f"s_mul_i32 s6, s6, {A_BLK}\ns_add_u32 s{qA}, s{pWs}, s6\ns_addc_u32 s{qA+1}, s{pWs+1}, 0",
     f"s_and_b32 s{qA+1}, s{qA+1}, 0xffff\ns_cmp_eq_u32 s{qP}, 3\ns_cselect_b32 s{qA+2}, s{qAe}, 0\ns_cselect_b32 s{qW+2}, s{qWe}, 0\ns_mov_b32 s{qA+3}, 0x20000",
     f"s_mov_b32 s{qW}, s{sWp}\ns_mov_b32 s{qW+1}, s{sWp+1}\ns_mov_b32 s{qW+3}, 0x20000",
     f"s_lshl2_add_u32 s6, s{qRb}, s{qP}\ns_lshl_b32 s6, s6, 1\ns_add_u32 s6, s6, s7\ns_mul_i32 s{qXo}, s6, 20480",
     f"s_lshl_b32 s6, s{qCb}, 1\ns_add_u32 s6, s6, s{sT2}\ns_mul_i32 s6, s6, 160\ns_add_u32 s{qXo}, s{qXo}, s6",
     f"s_xor_b32 s{qT0}, s{w}, s{qP}\ns_mul_i32 s{qT1}, s{w}, 3\ns_add_u32 s{qT1}, s{qT1}, s{qT0}\ns_sub_u32 s{qT1}, s{qT1}, 1",
     f"s_mul_i32 s{qT1}, s{qT1}, 10240\ns_cmp_eq_u32 s{qT0}, 0\ns_cselect_b32 s{qSo}, 0x100000, s{qT1}",
    ]

def q_loads(slot):
    it = [f"s_add_u32 m0, s{qWm}, {slot*20480}"]
    for j in range(4):
        it.append(f"buffer_load_dwordx4 v{vL16}, s[{qW}:{qW+3}], s{qWo} offen offset:{j*1024} sc1 lds ; @put W2")
    it.append(f"s_add_u32 m0, s{qWm}, {slot*20480+4096}")
    it.append(f"buffer_load_dwordx4 v{vL16+1}, s[{qW}:{qW+3}], s{qWo} offen sc1 lds ; @put W2")
    for k in range(2):
        for rt in range(2):
            it.append(f"buffer_load_dwordx4 {ar(aA2+(slot*4+k*2+rt)*4,4)}, v{vL16+k}, s[{qA}:{qA+3}], s{qAo} offen offset:{rt*1024} sc1")
    it.append(f"s_add_u32 s{qWo}, s{qWo}, 81920\ns_add_u32 s{qAo}, s{qAo}, 8192")
    return it

def gemm2(A, L, emit, stamp, cold):
    ac, vT, vX, vZ = 64, 144, 168, 180
    srd(A, qX, pX, pX + 1, X_SIZE)
    srd(A, qO, pOut, pOut + 1, X_SIZE)
    for i in range(4): A(f"v_mov_b32 v{vZ+i}, 0")
    A(f"v_and_b32 v{vT}, 15, v{vLane}")
    A(f"v_mul_u32_u24 v{vT}, 1280, v{vT}")
    A(f"v_lshrrev_b32 v{vT+1}, 4, v{vLane}")
    A(f"v_lshl_add_u32 v{vXo2}, v{vT+1}, 3, v{vT}")
    def zero():
        for i in range(5): mf32(A, vr(ac + 16 * i, 16), vr(vZ, 4), vr(vZ, 4), "0")
    zero()
    A(f"v_mov_b32 v{vWr2}, v{vL16}")
    A(f"v_add_u32 v{vWr2+1}, 40960, v{vL16}")
    A(f"v_lshlrev_b32 v{vL8}, 3, v{vLane}")
    A(f"v_add_u32 v{vOwn}, {RING2}, v{vL16}")
    A(f"s_mov_b32 s{qN}, 0")
    def wread2(slot, f, buf):
        k, ct = f // 10, f % 10
        return f"ds_read_b128 {ar(aW2+buf*4,4)}, v{vWr2+slot//2} offset:{(slot%2)*20480+k*10240+ct*1024}"
    def xload():
        for ct in range(5):
            A(f"buffer_load_dwordx2 {vr(vX+2*ct,2)}, v{vXo2}, s[{qX}:{qX+3}], s{qXo} offen offset:{ct*32}")
    A(f"s_cmp_eq_u32 s{qP}, 3")
    A(f"s_cselect_b32 s{qT0}, {hex((1<<2)|(1<<18))}, 0")
    A(f"s_cselect_b32 s{qNl}, 24, 19")
    A(f"s_cselect_b32 s{qT1}, 0, 99")
    A(f"s_cbranch_scc1 {L}qh")
    flag_load(A, vPa, vAo)
    A("s_waitcnt vmcnt(0)")
    A("s_barrier")
    set_flag(A, 3, f"{L}f2")
    A(f"{L}f2:")
    A(f"s_mov_b32 s{qA+2}, s{qAe}")
    A(f"s_mov_b32 s{qW+2}, s{qWe}")
    A(f"s_mov_b32 s{qAo}, s{qAs}")
    A(f"s_mov_b32 s{qWo}, s{qWs}")
    flag_wait(A, f"{L}w2", 2, [(vPa, vAo)])
    flag_load(A, vPb, vAb)
    A(f"s_cmp_lg_u32 s{qP}, 0")
    A(f"s_cbranch_scc1 {L}qb")
    for s0 in (1, 2):
        if s0 == 2:
            A(f"{L}qb:")
            A(f"s_mov_b32 s{qNl}, 18")
        for s_ in range(s0, s0 + 3):
            emit(q_loads(s_ % 4)[:7])
            A(f"s_add_u32 s{qWo}, s{qWo}, 81920")
        xload()
        A("s_waitcnt vmcnt(20)")
        if True:
            A(f"s_cmp_lg_u32 s{sWave}, 0")
            A(f"s_cbranch_scc1 {L}w4{s0}r")
        flag_wait(A, f"{L}w4{s0}", 3, [(vPb, vAb)])
        if True: A("s_barrier")
        stamp(8)
        for s_ in range(s0, s0 + 3):
            emit(q_loads(s_ % 4)[7:11])
            A(f"s_add_u32 s{qAo}, s{qAo}, 8192")
        A("s_waitcnt vmcnt(4)")
        A("s_barrier ; @need W2 0")
        stamp(9)
        for f in range(3): A(wread2(s0, f, f))
        A(f"s_branch {L}q{s0}")
    A(f"{L}qh:")
    stamp(8)
    xload()
    A("s_waitcnt vmcnt(39)")
    A("s_barrier ; @need W2 10")
    stamp(9)
    for f in range(3): A(wread2(0, f, f))
    lq = LQ()
    for f in range(3): lq.issue(f)
    if "q_oob" in XP:
        A(f"s_mov_b32 s{qA+2}, 0"); A(f"s_mov_b32 s{qW+2}, 0")
    A(".p2align 6")
    A(f"{L}q:")
    for slot in range(4):
        ns = (slot + 1) % 4
        if slot in (1, 2): A(f"{L}q{slot}:")
        slots = spread(q_loads((slot + 3) % 4), 16)
        if "q_noload" in XP: slots = [[] for _ in range(16)]
        if "q_noA" in XP: slots = [[x for x in sl if "a[" not in x] for sl in slots]
        if "q_noW" in XP: slots = [[x for x in sl if "lds" not in x] for sl in slots]
        for f in range(20):
            k, ct = f // 10, f % 10
            lq.wait(A, [f])
            for r in range(2):
                rt = r if f % 2 == 0 else 1 - r
                mf16(A, vr(ac + (rt * 10 + ct) * 4, 4), ar(aW2 + (f % 4) * 4, 4), ar(aA2 + (slot * 4 + k * 2 + rt) * 4, 4))
                if r == 0 and f + 3 < 20:
                    A(wread2(slot, f + 3, (f + 3) % 4)); lq.issue(f + 3)
                if f == 18:
                    A(wread2(ns, r, r)); lq.issue(r)
                if f == 19 and r == 0:
                    A(wread2(ns, 2, 2)); lq.issue(2)
                if r == 1 and f < 16: emit(slots[f])
                if r == 0 and f == 17 and slot == 0: A(f"s_cmp_eq_u32 s{qT1}, s{qN}")
            if f == 17:
                if slot == 0:
                    A("s_waitcnt vmcnt(30) lgkmcnt(0)")
                    A(f"s_cbranch_scc1 {L}qw{slot}")
                    A("s_waitcnt vmcnt(18)")
                    A(f"{L}qw{slot}:")
                else: A("s_waitcnt vmcnt(18) lgkmcnt(0)")
                lq.clear()
                if "q_nobar" not in XP: A("s_barrier ; @need W2 10")
            if f == 19:
                A(f"s_add_u32 s{qN}, s{qN}, 1")
        if slot == 1:
            A(f"s_bitcmp1_b32 s{qT0}, s{qN}")
            A(f"s_cbranch_scc1 {L}qe1")
            A(f"{L}qr1:")
    A(f"s_cmp_lg_u32 s{qNl}, s{qN}")
    A(f"s_cbranch_scc1 {L}q")
    mkq = len(A.lines)
    A(f"{L}qe1:")
    A(f"s_cmp_eq_u32 s{qN}, 18")
    A(f"s_cbranch_scc1 {L}qe2")
    set_flag(A, 3, f"{L}qr1")
    A(f"s_branch {L}qr1")
    A(f"{L}qe2:")
    flag_load(A, vPb, vAp)
    A(f"s_branch {L}qr1")
    cold(mkq, f"{L}c4", None)
    A(f"s_cmp_lg_u32 s{qP}, 3")
    A(f"s_cbranch_scc1 {L}qy")
    flag_wait(A, f"{L}w3", 3, [(vPb, vAp)])
    A(f"{L}qy:")
    def send(c, so):
        b = vT + (c // 2) * 12
        it = [f"v_cvt_pk_bf16_f32 v{b+i}, v{ac+c*20+2*i}, v{ac+c*20+2*i+1}" for i in range(10)]
        it += [f"v_min_u32 v{b+i}, -2, v{b+i}" for i in range(10)]
        return it + [f"buffer_store_dwordx4 {vr(b,4)}, v{vL16}, s[{qI}:{qI+3}], s{so} offen sc1",
                     f"buffer_store_dwordx4 {vr(b+4,4)}, v{vL16}, s[{qI}:{qI+3}], s{so} offen offset:1024 sc1",
                     f"buffer_store_dwordx2 {vr(b+8,2)}, v{vL8}, s[{qI}:{qI+3}], s{so} offen offset:2048 sc1"]
    order_ = [(sl, k * 10 + h * 5 + i) for h in range(2) for sl in range(3) for k in range(2) for i in range(5)]
    fill = spread(send(0, qSo) + send(2, sT0), 30)
    nq = len(order_)
    held = []
    for n, (sl, f) in enumerate(order_):
        k, ct = f // 10, f % 10
        lq.wait(A, [n])
        for r in range(2):
            rt = r if n % 2 == 0 else 1 - r
            mf16(A, vr(ac + (rt * 10 + ct) * 4, 4), ar(aW2 + (n % 4) * 4, 4), ar(aA2 + (sl * 4 + k * 2 + rt) * 4, 4))
            if n in (7, 17) and r == 0: held.append(n + 3)
            elif r == 0 and n + 3 < nq:
                if held:
                    m = held.pop(); A(wread2(*order_[m], m % 4)); lq.issue(m); held.append(-(n + 3))
                else:
                    A(wread2(*order_[n + 3], (n + 3) % 4)); lq.issue(n + 3)
            elif r == 1 and held and held[0] < 0:
                m = -held.pop(); A(wread2(*order_[m], m % 4)); lq.issue(m)
            if n == 0 and r == 1: A(f"s_add_u32 s{sT0}, s{qSo}, 5120\ns_add_u32 s{sT1}, s{qSo}, 2560\ns_add_u32 s{sT2}, s{qSo}, 7680")
            g_ = 2 * n + r - 63
            if 0 <= g_ < 30:
                for it in fill[g_]: A(it)
        if n in (7, 17):
            A(f"s_waitcnt vmcnt({9 if n == 7 else 0})")
            A(f"s_barrier")
    stamp(10)
    A("s_nop 1")
    for it in send(1, sT1) + send(3, sT2): A(it)
    A(f"s_cmp_lg_u32 s{sWave}, s{qP}")
    A(f"s_cbranch_scc1 {L}no1")
    for i in range(20): A(f"ds_write_b128 v{vOwn}, {vr(ac+4*i,4)} offset:{i*1024}")
    A("s_waitcnt lgkmcnt(0)")
    A(f"{L}no1:")
    S, U, IN, XR, E, T = 64, 84, 104, 184, 204, 224
    A(f"s_mul_i32 s{sT0}, s{sWave}, 5120")
    A(f"v_add_u32 v{vOwn}, s{sT0}, v{vOwn}")
    A(f"s_mul_i32 s{sT0}, s{qP}, 30720")
    A(f"s_mul_i32 s{sT1}, s{sWave}, 2560")
    A(f"s_add_u32 s{sT0}, s{sT0}, s{sT1}")
    A(f"s_lshl_b32 s6, s{qP}, 3")
    A(f"s_lshr_b32 s6, {hex(0x24094218 >> 0 if False else (0x24 | 0x18 << 8 | 0x09 << 16 | 0x24 << 24))}, s6")
    for i in range(3):
        A(f"s_bfe_u32 s7, s6, {hex(0x20000 | 2*i)}")
        A(f"s_mul_i32 s7, s7, 10240")
        A(f"s_add_u32 s{qIn+i}, s{sT0}, s7")
    def inload(sl):
        b = IN + sl * 10
        A(f"buffer_load_dwordx4 {vr(b,4)}, v{vL16}, s[{qI}:{qI+3}], s{qIn+sl} offen sc1")
        A(f"buffer_load_dwordx4 {vr(b+4,4)}, v{vL16}, s[{qI}:{qI+3}], s{qIn+sl} offen offset:1024 sc1")
        A(f"buffer_load_dwordx2 {vr(b+8,2)}, v{vL8}, s[{qI}:{qI+3}], s{qIn+sl} offen offset:2048 sc1")
    A("s_barrier")
    stamp(11)
    if SLP[2] == 1: A("s_waitcnt vmcnt(0)")
    if SLP[2] > 1: A(f"s_sleep {SLP[2]}")
    for sl in range(3): inload(sl)
    for i in range(5): A(f"ds_read_b128 {vr(S+4*i,4)}, v{vOwn} offset:{i*1024}")
    for i in range(10):
        A(f"v_lshlrev_b32 v{XR+2*i}, 16, v{vX+i}")
        A(f"v_and_b32 v{XR+2*i+1}, 0xffff0000, v{vX+i}")
    def unpack(sl, dst):
        for i in range(10):
            A(f"v_lshlrev_b32 v{dst+2*i}, 16, v{IN+sl*10+i}")
            A(f"v_and_b32 v{dst+2*i+1}, 0xffff0000, v{IN+sl*10+i}")
    def addin(sl, dst):
        unpack(sl, T)
        for i in range(10): A(f"v_pk_add_f32 {vr(dst+2*i,2)}, {vr(dst+2*i,2)}, {vr(T+2*i,2)}")
    A(f"s_mov_b32 s{sT1}, 0")
    A(f"{L}sc:")
    A("s_waitcnt vmcnt(0)")
    for i in range(3): A(f"v_max3_u32 v{T+i}, v{IN+10*i}, v{IN+10*i+1}, v{IN+10*i+2}")
    for j in range(3):
        for i in range(3): A(f"v_max3_u32 v{T+i}, v{T+i}, v{IN+10*i+3+2*j}, v{IN+10*i+4+2*j}")
    A(f"v_max3_u32 v{T+3}, v{IN+9}, v{IN+19}, v{IN+29}")
    A(f"v_max3_u32 v{T}, v{T}, v{T+1}, v{T+2}")
    A(f"v_max_u32 v{T}, v{T}, v{T+3}")
    A(f"v_cmp_eq_u32 vcc, -1, v{T}")
    A("s_nop 3")
    A(f"s_cbranch_vccz {L}sr ; pollbr")
    A(f"s_add_u32 s{sT1}, s{sT1}, 1")
    A(f"s_cmp_ge_u32 s{sT1}, 0x40000")
    A(f"s_cbranch_scc1 {L}sr")
    if SLP[1]: A(f"s_sleep {SLP[1]}")
    for sl in range(3): inload(sl)
    A(f"s_branch {L}sc")
    A(f"{L}sr:")
    stamp(12)
    unpack(2, U)
    A(f"s_mov_b32 s{sT0}, {hex(f2u(-LOG2E))}")
    A(f"s_cmp_lg_u32 s{qP}, 3")
    A("s_waitcnt lgkmcnt(0)")
    A(f"s_cbranch_scc1 {L}ns")
    for i in range(20): A(f"v_swap_b32 v{S+i}, v{U+i}")
    A(f"{L}ns:")
    for i in range(20): A(f"v_mul_f32 v{E+i}, s{sT0}, v{U+i}")
    for i in range(20): A(f"v_exp_f32 v{E+i}, v{E+i}")
    addin(0, S)
    for i in range(20): A(f"v_add_f32 v{E+i}, 1.0, v{E+i}")
    for i in range(20): A(f"v_rcp_f32 v{E+i}, v{E+i}")
    addin(1, S)
    for i in range(10): A(f"v_pk_mul_f32 {vr(U+2*i,2)}, {vr(U+2*i,2)}, {vr(E+2*i,2)}")
    for i in range(10): A(f"v_pk_fma_f32 {vr(XR+2*i,2)}, {vr(S+2*i,2)}, {vr(U+2*i,2)}, {vr(XR+2*i,2)}")
    for i in range(10): A(f"v_cvt_pk_bf16_f32 v{vX+i}, v{XR+2*i}, v{XR+2*i+1}")
    for ct in range(5):
        A(f"buffer_store_dwordx2 {vr(vX+2*ct,2)}, v{vXo2}, s[{qO}:{qO+3}], s{qXo} offen offset:{ct*32}" + (" sc1" if "outsc1" in OPT else ""))
    stamp(13)

def gen_p1(A, name, stamps=False, code_bytes=32768, pf_rounds=2):
    head(A, name)
    L = "p1_"
    A("s_cmp_ge_u32 s2, 256")
    A(f"s_cbranch_scc1 {L}end")
    A("s_load_dwordx16 s[64:79], s[0:1], 0")
    A("s_load_dwordx8 s[80:87], s[0:1], 64")
    A(f"s_memrealtime s[{sNo}:{sNo+1}]")
    if stamps: A("s_memtime s[94:95]")
    def stamp(i, att=False):
        if not stamps: return
        if "attst" in OPT:
            if i >= 5 and not att: return
        elif att: return
        A(f"s_memtime s[96:97]")
        A(f"s_memrealtime s[98:99]")
        A("s_waitcnt lgkmcnt(0)")
        A(f"v_mov_b32 v{vTm+18}, s96"); A(f"v_mov_b32 v{vTm+19}, s98")
        A(f"s_lshl_b32 s96, s2, 2"); A(f"s_add_u32 s96, s96, s{sWave}"); A("s_lshl_b32 s96, s96, 7")
        A(f"v_mov_b32 v{vZero}, s96")
        if i == 0: A(f"v_mov_b32 v{vTm+16}, s94")
        A(f"s_add_u32 s96, s{pWs}, 0x3100000"); A(f"s_addc_u32 s97, s{pWs+1}, 0")
        A(f"global_store_dwordx2 v{vZero}, {vr(vTm+18,2)}, s[96:97] offset:{i*8}")
        if i == 0: A(f"global_store_dword v{vZero}, v{vTm+16}, s[96:97] offset:120")
    t = vTm
    COLD = []
    def cold(mark, lab, back):
        blk = A.lines[mark:]; del A.lines[mark:]
        COLD.extend([f"{lab}:"] + blk + ([f"s_branch {back}"] if back else []))
    def emit(items):
        for it in items:
            if "lds" in it and " m0," in A.lines[-1]: A("s_nop 0")
            A(it)
    A(f"v_and_b32 v{vLane}, 63, v0")
    A("v_lshrrev_b32 v0, 6, v0")
    A("s_and_b32 s6, s2, 7")
    A(f"v_readfirstlane_b32 s{sWave}, v0")
    A(f"s_lshr_b32 s{sT0}, s2, 3")
    A(f"s_lshr_b32 s{sRb}, s{sT0}, 2")
    A(f"s_and_b32 s{sT1}, s{sT0}, 3")
    if True:
        A("s_getpc_b64 s[4:5]")
        A(f"{L}pc:")
        A(f"s_lshl2_add_u32 s7, s{sT0}, s{sWave}")
        A(f"s_mul_i32 s7, s7, ({L}last-{L}pc)/1024")
        A("s_lshr_b32 s7, s7, 7")
        A("s_lshl_b32 s7, s7, 10")
        A(f"v_lshl_add_u32 v{vTm+4}, v{vLane}, 4, s7")
        A(f"global_load_dwordx4 {ar(240,4)}, v{vTm+4}, s[4:5]")
    A(f"s_lshl2_add_u32 s{sHead}, s6, s{sT1}")
    A(f"s_sub_u32 s{sT2}, s6, s{sRb}")
    A(f"s_add_u32 s{sT2}, s{sT2}, 3")
    A(f"s_and_b32 s{sT2}, s{sT2}, 7")
    A(f"s_mul_i32 s{sFb}, s6, 3")
    A(f"s_add_u32 s{sFb}, s{sFb}, s{sT1}")
    A(f"s_add_u32 s7, s{sT2}, 24")
    A(f"s_cmp_eq_u32 s{sT1}, 3")
    A(f"s_cselect_b32 s{sFb}, s7, s{sFb}")
    A(f"s_cmp_lt_u32 s{sFb}, 27")
    A(f"s_cselect_b32 s{sHasF}, 1, 0")
    A(f"s_sub_u32 s{sProd}, s{sFb}, 27")
    A(f"v_lshrrev_b32 v{t+7}, 3, v{vLane}")
    A(f"v_and_b32 v{t+6}, 7, v{vLane}")
    A(f"v_lshrrev_b32 v{t+12}, 4, v{vLane}")
    A(f"v_xor_b32 v{t+13}, v{t+6}, v{t+12}")
    A(f"v_lshlrev_b32 v{t+13}, 4, v{t+13}")
    A(f"s_movk_i32 s6, 1280")
    A(f"v_mad_u32_u24 v{vXd}, v{t+7}, s6, v{t+13}")
    A(f"v_xor_b32 v{t+13}, 64, v{vXd}")
    for j in range(1, 8):
        A(f"v_add_u32 v{vXd+j}, {j*10240-(j%4)*1024}, v{(t+13) if j&1 else vXd}")
    A(f"s_lshl2_add_u32 s6, s{sRb}, s{sWave}")
    A(f"s_mul_i32 s{sXo}, s6, {64*1280}")
    A(f"s_mul_i32 s{sKVo}, s6, {A_BLK}")
    A(f"s_lshl_b32 s{sM0X}, s{sWave}, 13")
    A(f"s_add_u32 s{sM0X}, s{sM0X}, {R1}")
    A(f"s_mov_b32 s{sTail}, 0")
    A(f"s_and_b32 s6, s{sWave}, 1")
    A(f"s_lshl_b32 s7, s6, 2")
    A(f"v_add_u32 v{t+13}, s7, v{t+12}")
    A(f"v_lshlrev_b32 v{t+13}, 1, v{t+13}")
    A(f"v_and_b32 v{t+14}, 15, v{vLane}")
    A(f"v_xor_b32 v{t+13}, v{t+13}, v{t+14}")
    A(f"v_lshlrev_b32 v{t+13}, 4, v{t+13}")
    A(f"s_lshl_b32 s7, s{sWave}, 3")
    A(f"v_add_u32 v{t+15}, s7, v{t+12}")
    A(f"v_lshl_add_u32 v{vWqd}, v{t+15}, 13, v{t+13}")
    A(f"v_add_u32 v{vWqd+1}, {4*8192-1024}, v{vWqd}")
    A(f"v_bfe_u32 v{t+13}, v{vLane}, 4, 1")
    A(f"s_lshl_b32 s6, s6, 1")
    A(f"v_add_u32 v{t+13}, s6, v{t+13}")
    A(f"v_lshlrev_b32 v{t+13}, 1, v{t+13}")
    A(f"v_xor_b32 v{t+13}, v{t+13}, v{t+6}")
    A(f"v_lshlrev_b32 v{t+13}, 4, v{t+13}")
    A(f"v_add_u32 v{t+15}, s7, v{t+7}")
    A(f"s_movk_i32 s6, 3456")
    A(f"v_mad_u32_u24 v{vW13d}, v{t+15}, s6, v{t+13}")
    A(f"s_lshl_b32 s{sWqo}, s{sHead}, 8")
    A(f"s_lshl_b32 s{sW13o}, s{sFb}, 7")
    A(f"s_mov_b32 s{sSlot}, 0")
    A(f"s_lshl_b32 s{sM0W}, s{sWave}, 12")
    A(f"s_add_u32 s{sM0W}, s{sM0W}, {R3}")
    for d, sz in ((sX, X_SIZE), (sWq, 640 * 8192)):
        A(f"s_mov_b32 s{d+2}, {sz}")
        A(f"s_mov_b32 s{d+3}, 0x20000")
    for (d, p, sh) in ((sW1, pW1, 2048), (sW3, pW3, 3072)):
        A(f"s_mul_i32 s{d+2}, s{sHasF}, {640*3456+sh}")
        A(f"s_mov_b32 s{d+3}, 0x20000")
    A("s_waitcnt lgkmcnt(0)")
    A(f"s_mov_b32 s{sC0}, s{sM0W}")
    for d, p in ((sX, pX), (sWq, pWq)):
        A(f"s_mov_b32 s{d}, s{p}")
        A(f"s_and_b32 s{d+1}, s{p+1}, 0xffff")
    for (d, p, sh) in ((sW1, pW1, 2048), (sW3, pW3, 3072)):
        A(f"s_sub_u32 s{d}, s{p}, {sh}")
        A(f"s_subb_u32 s{d+1}, s{p+1}, 0")
        A(f"s_and_b32 s{d+1}, s{d+1}, 0xffff")
    A(f"s_mov_b64 s[{sX2}:{sX2+1}], s[{sX}:{sX+1}]")
    A(f"s_mov_b64 s[{sX2+2}:{sX2+3}], s[{sX+2}:{sX+3}]")
    A(f"s_movk_i32 s{sM0d}, 4096")
    A(f"s_movk_i32 s{sXst}, 128")
    A(f"s_mov_b32 s{sM0t}, 0x18000")
    RAW, UNP = 64, 96
    A(f"v_mov_b32 v{t+5}, 0")
    A(f"s_cmp_ge_u32 s{sProd}, 4")
    A(f"s_cbranch_scc0 {L}c1")
    mk_ = len(A.lines)
    A(f"v_lshrrev_b32 v{t+5}, 2, v{vLane}")
    A(f"v_and_b32 v{t+13}, 3, v{vLane}")
    A(f"v_lshlrev_b32 v{t+13}, 4, v{t+13}")
    A(f"s_movk_i32 s6, 1280")
    A(f"v_mad_u32_u24 v{t+13}, v{t+5}, s6, v{t+13}")
    A(f"s_lshl2_add_u32 s6, s{sRb}, s{sProd}")
    A(f"s_lshl2_add_u32 s6, s6, s{sWave}")
    A(f"s_lshl_b32 s7, s6, 8")
    A(f"v_lshl_add_u32 v{t+5}, v{t+5}, 4, s7")
    A(f"s_mul_i32 s6, s6, {16*1280}")
    for i in range(20):
        A(f"buffer_load_dwordx4 {vr(RAW+4*i,4)}, v{t+13}, s[{sX}:{sX+3}], s6 offen offset:{i*64}")
    cold(mk_, f"{L}c1", f"{L}np1")
    A(f"{L}np1:")
    if "coop" in OPT:
        A(f"s_and_b32 s6, s{sHead}, 3")
        A(f"s_lshl2_add_u32 s6, s{sRb}, s6")
        A(f"s_lshl2_add_u32 s6, s6, s{sWave}")
        A(f"s_mul_i32 s6, s6, {16*1280}")
        A(f"v_and_b32 v{t+13}, 15, v{vLane}")
        A(f"v_mul_u32_u24 v{t+13}, 1280, v{t+13}")
        A(f"v_bfe_u32 v{t+14}, v{vLane}, 4, {COOPX}")
        A(f"v_lshl_add_u32 v{t+13}, v{t+14}, 7, v{t+13}")
        A(f"buffer_load_dword v0, v{t+13}, s[{sX}:{sX+3}], s6 offen")
        A(f"s_lshl2_add_u32 s7, s{sRb}, s{sWave}")
        A(f"v_and_b32 v{t+14}, 3, v{vLane}")
        A(f"v_lshl_add_u32 v{t+14}, v{t+14}, 5, s7")
        A(f"v_bfe_u32 v{t+15}, v{vLane}, 2, 1")
        A(f"v_lshlrev_b32 v{t+15}, 7, v{t+15}")
        A(f"v_lshl_add_u32 v{t+15}, v{t+14}, 13, v{t+15}")
        A(f"v_mul_u32_u24 v{t+14}, 3456, v{t+14}")
        A(f"buffer_load_dword v0, v{t+15}, s[{sWq}:{sWq+3}], s{sWqo} offen")
        A(f"buffer_load_dword v0, v{t+14}, s[{sW1}:{sW1+3}], s{sW13o} offen offset:2048")
        A(f"buffer_load_dword v0, v{t+14}, s[{sW3}:{sW3+3}], s{sW13o} offen offset:3072")
    emit(dma_w(True)); emit(dma_x(0))
    stamp(0)
    A(f"s_add_u32 s{sA}, s{pWs}, s{sKVo}")
    A(f"s_addc_u32 s{sA+1}, s{pWs+1}, 0")
    srd(A, sA, sA, sA + 1, A_BLK)
    A(f"s_add_u32 s{sWp}, s{pWs}, {W_OFF}")
    A(f"s_addc_u32 s{sWp+1}, s{pWs+1}, 0")
    srd(A, sWp, sWp, sWp + 1, W_SIZE)
    A(f"s_lshl2_add_u32 s{sT1}, s{sHead}, s{sWave}")
    A(f"s_mul_i32 s{sU}, s{sT1}, 10")
    A(f"s_lshl_b32 s{sT2}, s{sRb}, 1")
    A(f"s_add_u32 s{sU}, s{sU}, s{sT2}")
    A(f"s_mul_i32 s{sT1}, s{sT1}, 40960")
    A(f"s_lshl_b32 s{sT2}, s{sRb}, 8")
    A(f"s_add_u32 s{sPo}, s{sT1}, s{sT2}")
    srd(A, sSrc, pWo, pWo + 1, 4096 * 1280)
    A(f"s_cmp_lt_u32 s{sRb}, 5")
    A(f"s_cselect_b32 s{sSrc+2}, s{sSrc+2}, 0")
    A(f"s_cselect_b32 s{sU}, s{sU}, 2000")
    A(f"v_mov_b32 v{t+6}, 0")
    A(f"s_or_b32 s6, s2, s{sWave}")
    A(f"s_cbranch_scc1 {L}ntag")
    A(f"s_lshl_b64 s[6:7], s[{sNo}:{sNo+1}], 2")
    A(f"s_or_b32 s7, s7, 0x80000000")
    A(f"v_mov_b32 v{t+14}, s6")
    A(f"v_mov_b32 v{t+15}, s7")
    A("s_mov_b64 exec, 1")
    A(f"global_store_dwordx2 v{t+6}, {vr(t+14,2)}, s[{pDbg}:{pDbg+1}] offset:128 sc1")
    A("s_mov_b64 exec, -1")
    A(f"{L}ntag:")
    A(f"v_and_b32 v{t+14}, 15, v{vLane}")
    A(f"v_lshrrev_b32 v{t+13}, 1, v{t+14}")
    A(f"v_xor_b32 v{t+13}, v{t+13}, v{t+12}")
    A(f"v_lshlrev_b32 v{t+13}, 4, v{t+13}")
    A(f"v_lshl_add_u32 v{t+13}, v{t+14}, 7, v{t+13}")
    A(f"s_lshl_b32 s6, s{sWave}, 13")
    A(f"s_add_u32 s6, s6, {R1}")
    A(f"v_add_u32 v{vXr}, s6, v{t+13}")
    A(f"v_xor_b32 v{vXr+1}, 64, v{vXr}")
    A(f"v_lshlrev_b32 v{t+3}, 4, v{t+14}")
    A(f"v_bfe_u32 v{t+14}, v{vLane}, 2, 2")
    A(f"v_and_b32 v{t+15}, 3, v{vLane}")
    A(f"v_lshlrev_b32 v{t+15}, 3, v{t+15}")
    A(f"v_lshl_add_u32 v{t+15}, v{t+12}, 12, v{t+15}")
    A(f"v_add_u32 v{t+15}, {R3}, v{t+15}")
    A(f"v_bfe_u32 v{t+16}, v{vLane}, 4, 1")
    A(f"v_lshl_add_u32 v{t+13}, v{t+16}, 2, v{t+14}")
    A(f"s_lshl_b32 s6, s{sWave}, 1")
    A(f"v_xor_b32 v{t+13}, s6, v{t+13}")
    A(f"v_lshl_add_u32 v{t+13}, v{t+13}, 5, v{t+15}")
    A(f"v_lshl_add_u32 v{vWqr}, v{t+14}, 8, v{t+13}")
    for p in range(1, 8): A(f"v_xor_b32 v{vWqr+p}, {32*p}, v{vWqr}")
    A(f"v_lshrrev_b32 v{t+13}, 1, v{t+14}")
    A(f"v_lshl_add_u32 v{t+13}, v{t+16}, 1, v{t+13}")
    A(f"v_xor_b32 v{t+13}, s{sWave}, v{t+13}")
    A(f"v_lshl_add_u32 v{t+13}, v{t+13}, 5, v{t+15}")
    A(f"v_lshl_add_u32 v{vW13r}, v{t+14}, 7, v{t+13}")
    for p in range(1, 4): A(f"v_xor_b32 v{vW13r+p}, {32*p}, v{vW13r}")
    srd(A, sK, pK, pK + 1, 16777216)
    srd(A, sV, pV, pV + 1, 16777216)
    A(f"s_add_u32 s{sSt}, s{pWs}, {ST_OFF}")
    A(f"s_addc_u32 s{sSt+1}, s{pWs+1}, 0")
    srd(A, sSt, sSt, sSt + 1, 2048 * 16)
    A(f"s_lshl_b32 s6, s{sRb}, 2")
    A(f"v_mov_b32 v{t+2}, s6")
    A(f"s_movk_i32 s{sMask}, {EVMASK}")
    A(f"s_mov_b32 s{sD}, 0")
    A(f"s_cmp_ge_u32 s{sProd}, 4")
    A(f"s_cbranch_scc0 {L}c2")
    mk_ = len(A.lines)
    A("s_waitcnt vmcnt(8)")
    for i in range(79, -1, -1):
        A(f"v_and_b32 v{UNP+2*i+1}, 0xffff0000, v{RAW+i}")
        A(f"v_lshlrev_b32 v{UNP+2*i}, 16, v{RAW+i}")
    a = 64
    def red(first):
        for i in range(80):
            first(i)
        A(f"v_pk_add_f32 {vr(a,2)}, {vr(a,2)}, {vr(a+2,2)}")
        A(f"v_pk_add_f32 {vr(a+4,2)}, {vr(a+4,2)}, {vr(a+6,2)}")
        A(f"v_pk_add_f32 {vr(a,2)}, {vr(a,2)}, {vr(a+4,2)}")
        A(f"v_add_f32 v{a}, v{a}, v{a+1}")
        for qp in ("[1,0,3,2]", "[2,3,0,1]"):
            A("s_nop 1")
            A(f"v_add_f32_dpp v{a}, v{a}, v{a} quad_perm:{qp} row_mask:0xf bank_mask:0xf")
    def f1(i):
        d = vr(a + 2 * (i % 4), 2)
        if i < 4: A(f"v_pk_add_f32 {d}, {vr(UNP+2*i,2)}, {vr(UNP+2*i+8,2)}")
        elif i >= 8: A(f"v_pk_add_f32 {d}, {d}, {vr(UNP+2*i,2)}")
    red(f1)
    o = 72
    A(f"v_mul_f32 v{o}, {hex(f2u(-1.0/640))}, v{a}")
    for i in range(80): A(f"v_pk_add_f32 {vr(UNP+2*i,2)}, {vr(UNP+2*i,2)}, {vr(o,2)} op_sel_hi:[1,0]")
    def f2(i):
        d = vr(a + 2 * (i % 4), 2); x_ = vr(UNP + 2 * i, 2)
        if i < 4: A(f"v_pk_mul_f32 {d}, {x_}, {x_}")
        else: A(f"v_pk_fma_f32 {d}, {x_}, {x_}, {d}")
    red(f2)
    A(f"v_mov_b32 v{o+3}, {hex(f2u(1e-5))}")
    A(f"v_fmac_f32 v{o+3}, {hex(f2u(1.0/640))}, v{a}")
    A(f"v_mov_b32 v{o+2}, v{o+3}")
    A(f"v_rsq_f32 v{o+1}, v{o+3}")
    A("s_mov_b32 exec_lo, 0x11111111")
    A("s_mov_b32 exec_hi, 0x11111111")
    A(f"buffer_store_dwordx4 {vr(o,4)}, v{t+5}, s[{sSt}:{sSt+3}], 0 offen sc1 ; @put S")
    A("s_mov_b64 exec, -1")
    A("s_waitcnt vmcnt(0)")
    cold(mk_, f"{L}c2", f"{L}np2")
    A(f"{L}np2:")
    if "dummy" in OPT:
        A(f"v_lshlrev_b32 v{t+13}, 4, v{vLane}")
        for i in range(16): A(f"buffer_load_dwordx4 {vr(64+4*i,4)}, v{t+13}, s[{sWq}:{sWq+3}], 0 offen offset:{(i%4)*1024}")
        for i in range(128): A(f"v_mov_b32 v{128+i}, 0")
        A("s_waitcnt vmcnt(0)")
        A("s_mov_b32 s6, 0")
        A(f"{L}dmy:")
        for i in range(64): mf16(A, vr(128 + 4 * (i % 32), 4), vr(64 + 4 * (i // 4 % 12), 4), vr(112 + 4 * (i % 4), 4))
        A("s_add_u32 s6, s6, 1")
        A("s_cmp_lt_u32 s6, 40")
        A(f"s_cbranch_scc1 {L}dmy")
        A("s_nop 7")
    if "idle" in OPT:
        A("s_mov_b32 s6, 0")
        A(f"{L}dmy:")
        for i in range(64): A("s_nop 15")
        A("s_add_u32 s6, s6, 1")
        A("s_cmp_lt_u32 s6, 40")
        A(f"s_cbranch_scc1 {L}dmy")
    kv_dma_voff(A, vQ, vQ + 4, 1)
    A(f"s_mov_b32 s{sT1}, {R0}")
    kv_addr(A, sT1, only=(vQ + 5, vQ + 6))
    wp_addr(A, 13, reg=R4, n=1, dst=vQ + 7)
    wp_src_voff(A, vQ + 8, 1)
    A(f"v_mov_b32 v{vKb}, v{vQ+5}")
    A(f"v_mov_b32 v{vVb}, v{vQ+6}")
    A(f"v_mov_b32 v{vWpB}, v{vQ+7}")
    A(f"v_mov_b32 v{vWs}, v{vQ+8}")
    A(f"v_lshrrev_b32 v{t+7}, 4, v{vLane}")
    A(f"v_lshlrev_b32 v{t+7}, 4, v{t+7}")
    A(f"s_lshl_b32 s6, s{sWave}, 7")
    A(f"s_add_u32 s6, s6, {CS}")
    A(f"v_add_u32 v{t+8}, s6, v{t+7}")
    A(f"s_lshl_b32 s6, s{sWave}, 6")
    A(f"s_add_u32 s6, s6, {CS+512}")
    A(f"v_add_u32 v{t+9}, s6, v{t+7}")
    A(f"v_lshlrev_b32 v{t+10}, 4, v{vLane}")
    A(f"s_lshl_b32 s6, s{sWave}, 12")
    A(f"s_lshl_b32 s{sKVo}, s{sHead}, 19")
    A(f"s_add_u32 s{sKVo}, s{sKVo}, s6")
    A(f"s_add_u32 s{sKVo}, s{sKVo}, {1536*256}")
    if "tlbw" in OPT:
        A("s_mov_b64 exec, 1")
        A(f"buffer_load_dword v0, v{t+6}, s[{sK}:{sK+3}], s{sKVo} offen")
        A(f"buffer_load_dword v0, v{t+6}, s[{sV}:{sV+3}], s{sKVo} offen")
        A(f"buffer_load_dword v0, v{t+6}, s[{sSrc}:{sSrc+3}], s{sPo} offen")
        A("s_mov_b64 exec, -1")
    if "tlbs" in OPT:
        A(f"s_lshl_b32 s6, s{sHead}, 14")
        A(f"s_lshl_b32 s7, s{sFb}, 13")
        A(f"s_add_u32 s7, s7, {128*4096}")
        A("s_mov_b64 exec, 1")
        A(f"buffer_store_dword v{t+6}, v{t+6}, s[{sA}:{sA+3}], s6 offen sc1")
        A(f"buffer_store_dword v{t+6}, v{t+6}, s[{sA}:{sA+3}], s7 offen sc1")
        A("s_mov_b64 exec, -1")
    for i in range(4): A(f"v_mov_b32 v{vSt+i}, 0")
    A(f"v_mov_b32 v{t+1}, 0x3f803f80")
    for i in range(4): A(f"v_accvgpr_write_b32 a{aOne+i}, v{t+1}")
    z = vr(vSt, 4)
    for i in range(8): mf32(A, vr(vAcc + 16 * i, 16), z, z, "0")
    for i in range(9): mf32(A, ar(16 * i, 16), z, z, "0")
    emit(dma_x(1)); emit(dma_w(True)); emit(dma_x(0)); emit(dma_w(True))
    A(f"s_waitcnt vmcnt({15 if 'tlbw' in OPT else 14 if 'tlbs' in OPT else 12})")
    A("s_barrier")
    A(f"s_lshl2_add_u32 s6, s{sProd}, s{sWave}")
    A(f"s_and_b32 s6, s6, 0xfffffff3")
    A(f"s_cbranch_scc1 {L}np3")
    A(f"v_mov_b32 v{t+1}, 1")
    A(f"v_add_u32 v{t+7}, s{sProd}, v{t+2}")
    A(f"s_mov_b64 exec, 1")
    A(f"global_store_byte v{t+7}, v{t+1}, s[{pDbg}:{pDbg+1}] sc1")
    A(f"s_mov_b64 exec, -1")
    A(f"{L}np3:")
    stamp(1)
    for rt in range(4): A(xread(0, 0, rt))
    A(f"s_cmp_eq_u32 s{sHasF}, 0")
    fr = frag_list(True)
    for f in range(3):
        for sec in range(2): A(wread(fr[f], 0, sec, f))
    A("s_waitcnt lgkmcnt(6)")
    if FINE: A("s_mov_b32 s7, 0")
    A(f"s_cbranch_scc1 {L}gn")
    gemm_loop(A, True, L + "gf")
    mk_ = len(A.lines)
    gemm_events(A, L + "gn")
    gemm_loop(A, False, L + "gn")
    for it in cs_writes()[:2]: A(it)
    A(f"s_mov_b32 s{sKVo}, s{sXo}")
    A(f"s_mov_b32 s{sKVm}, s{sM0X}")
    A(f"s_and_b32 s{qP}, s2, 3")
    for it in stats_scale(): A(it)
    A("s_waitcnt lgkmcnt(0)")
    A("s_barrier")
    A(f"ds_read_b128 {vr(CSB[0],4)}, v{t+8}")
    A(f"v_xor_b32 v{t+11}, 64, v{t+8}")
    A(f"ds_read_b128 {vr(CSB[1],4)}, v{t+11}")
    cold(mk_, f"{L}c3", f"{L}gdone")
    A(f"{L}gdone:")
    stamp(2)
    z = vr(vTm + 4, 4)
    class Grp(list):
        def __call__(self, x): self.append(x)
    IDS = Grp()
    IDS(f"s_lshr_b32 s{qCb}, s2, 6")
    IDS(f"s_bfe_u32 s{qRb}, s2, 0x30003")
    IDS(f"s_and_b32 s6, s2, 4\ns_lshl_b32 s6, s6, 1")
    IDS(f"s_add_u32 s{qRb}, s{qRb}, s6")
    IDS(f"s_lshl2_add_u32 s{qG}, s{qRb}, s{qCb}")
    IDS(f"s_mul_i32 s6, s{qG}, {IB_G}")
    IDS(f"s_add_u32 s6, s6, {IB_OFF}")
    IDS(f"s_add_u32 s{qI}, s{pWs}, s6\ns_addc_u32 s{qI+1}, s{pWs+1}, 0")
    srd(IDS, qI, qI, qI + 1, IB_G)
    kvadv = [f"s_add_u32 s{sKVo}, s{sKVo}, 16384\ns_add_u32 s{sKVm}, s{sKVm}, 32768"]
    def kvq(): return kv_dma() + kvadv
    csb = [14, 18, 22]
    lq = LQ()
    def csread_q(p):
        A(f"v_xor_b32 v{t+11}, {64*p}, v{t+8}")
        A(f"ds_read_b128 {vr(csb[p%3],4)}, v{t+11}"); lq.issue(("c", p))
    lq.issue(("c", 0)); lq.issue(("c", 1))
    wo_dma = []
    for su in range(2):
        wo_dma.append(f"s_lshl_b32 s6, s{sWave}, 13\ns_add_u32 m0, s6, {R4+su*4096}")
        wo_dma += [f"buffer_load_dwordx4 v{vWs}, s[{sSrc}:{sSrc+3}], s{sPo} offen offset:{j*1024} lds ; @put P\n" +
                   (f"s_add_u32 s{sPo}, s{sPo}, 9216" if j < 3 else f"s_sub_u32 s{sPo}, s{sPo}, {3*9216-128}") for j in range(4)]
    kq = spread([f"s_add_u32 m0, s{sKVm}, 16384"] + kv_dma()[6:] + kvadv + wo_dma[:5 * SPL[0]], 24)
    for p in range(8):
        if p + 2 < 8: csread_q(p + 2)
        lq.wait(A, [("c", p)])
        c = csb[p % 3]
        for rt in range(4):
            d = vAcc + (p * 4 + rt) * 4; q = vSt + 4 * rt
            for h in range(2):
                A(f"v_pk_fma_f32 {vr(d+2*h,2)}, {vr(c+2*h,2)}, {vr(q,2)}, {vr(d+2*h,2)} op_sel_hi:[1,0,1]")
        emit(kq[3*p])
        for rt in range(4):
            d = vAcc + (p * 4 + rt) * 4; q = vSt + 4 * rt
            for h in range(2):
                A(f"v_pk_mul_f32 {vr(d+2*h,2)}, {vr(d+2*h,2)}, {vr(q+2,2)} op_sel:[0,1]")
        emit(kq[3*p+1])
        for rt in range(4):
            d = vAcc + (p * 4 + rt) * 4
            f = vQ + ((rt // 2) * 8 + p) * 4 + (rt & 1) * 2
            for h in range(2): A(f"v_cvt_pk_bf16_f32 v{f+h}, v{d+2*h}, v{d+2*h+1}")
        mf32(A, ar(aO + 16 * p, 16), z, z, "0")
        emit(kq[3*p+2])
        if p > 0:
            for qt in range(2):
                f = vQ + (qt * 8 + p - 1) * 4
                for h in range(2): A(f"v_permlane16_swap_b32 v{f+h}, v{f+2+h}")
    A("s_nop 0")
    for qt in range(2):
        f = vQ + (qt * 8 + 7) * 4
        for h in range(2): A(f"v_permlane16_swap_b32 v{f+h}, v{f+2+h}")
    stamp(3)
    for p in range(8): A(f"v_xor_b32 v{vKr+p}, {32*p}, v{vKb}")
    v2q = [f"s_add_u32 m0, s{sKVm}, 16384"] + kvq()[6:]
    A(f"s_cmp_eq_u32 s{sHasF}, 0")
    A(f"s_cbranch_scc1 {L}noffn")
    def hst(pi, rt): return f"buffer_store_dwordx4 {vr(vAcc+96+pi*16+rt*4,4)}, v{t+10}, s[{sA}:{sA+3}], s{qT0+pi} offen offset:{rt*1024}" + ("" if "wbl2" in OPT else " sc1") + " ; @put H @put HH"
    T = vAcc + 32; H = vAcc + 96; C = vAcc + 56
    def csf(p):
        A(f"v_xor_b32 v{t+11}, {64*p}, v{t+9}")
        A(f"ds_read_b128 {vr(C+8*(p%3),4)}, v{t+11}")
        A(f"ds_read_b128 {vr(C+8*(p%3)+4,4)}, v{t+11} offset:256")
    for p in range(3): csf(p)
    A(f"s_lshr_b32 s7, s{sWave}, 1")
    A(f"s_lshl_b32 s6, s{sFb}, 1")
    A(f"s_add_u32 s6, s6, 128")
    A(f"s_add_u32 s{sT0}, s6, s7")
    A(f"s_xor_b32 s7, s7, 1")
    A(f"s_add_u32 s{sT1}, s6, s7")
    A(f"s_lshl_b32 s{qT0}, s{sT0}, 12")
    A(f"s_lshl_b32 s{qT1}, s{sT1}, 12")
    A("s_waitcnt lgkmcnt(0)")
    ffq = wo_dma[5 * SPL[0]:] + kv_dma()[:5 * SPL[1]]
    kq = spread(ffq, 24) if ffq else [[]] * 24
    for p in range(4):
        for r2 in range(2):
            g_ = 3 * (p * 2 + r2)
            G = [(2 * r2 + i, T + 12 * i) for i in range(2)]
            if p == 1 and r2 == 0: csf(3)
            if p == 2 and r2 == 0:
                qk_at = len(A.lines)
                A("s_waitcnt lgkmcnt(0)")
            for rt, b in G:
                for i in range(4): A(f"v_accvgpr_read_b32 v{b+i}, a{aG+(p*4+rt)*4+i}")
                for i in range(4): A(f"v_accvgpr_read_b32 v{b+4+i}, a{aUp+(p*4+rt)*4+i}")
            emit(kq[g_])
            for rt, b in G:
                for h in range(4):
                    A(f"v_pk_fma_f32 {vr(b+2*h,2)}, {vr(C+8*(p%3)+2*h,2)}, {vr(vSt+4*rt,2)}, {vr(b+2*h,2)} op_sel_hi:[1,0,1]")
            for rt, b in G:
                for h in range(2): A(f"v_pk_mul_f32 {vr(b+8+2*h,2)}, {vr(b+2*h,2)}, {vr(vSt+4*rt,2)} op_sel:[0,1]")
            for rt, b in G:
                for i in range(4): A(f"v_exp_f32 v{b+8+i}, v{b+8+i}")
            emit(kq[g_+1])
            for rt, b in G:
                for h in range(2): A(f"v_pk_mul_f32 {vr(b+2*h,2)}, {vr(b+2*h,2)}, {vr(b+4+2*h,2)}")
            for rt, b in G:
                for h in range(2):
                    A(f"v_pk_fma_f32 {vr(b+8+2*h,2)}, {vr(b+8+2*h,2)}, {vr(vSt+4*rt+2,2)}, {vr(vSt+4*rt+2,2)} op_sel_hi:[1,0,0]")
            for rt, b in G:
                for i in range(4): A(f"v_rcp_f32 v{b+8+i}, v{b+8+i}")
            emit(kq[g_+2])
            for n, (rt, b) in enumerate(G):
                for h in range(2): A(f"v_pk_mul_f32 {vr(b+2*h,2)}, {vr(b+2*h,2)}, {vr(b+8+2*h,2)}")
            for rt, b in G:
                for h in range(2): A(f"v_cvt_pk_bf16_f32 v{H+(p//2)*16+rt*4+(p&1)*2+h}, v{b+2*h}, v{b+2*h+1}")
        if p & 1:
            pi = p // 2
            A(f"s_bitcmp1_b32 s{sWave}, 0")
            A(f"s_cbranch_scc0 {L}nsw{pi}")
            for rt in range(4):
                for h in range(2): A(f"v_swap_b32 v{H+pi*16+rt*4+h}, v{H+pi*16+rt*4+2+h}")
            A(f"{L}nsw{pi}:")
    B_ = Asm(); lq = LQ()
    for p in range(3):
        B_(kread(p, 0, p)); lq.issue(("f", 16 + p))
    attn_seg(B_, lq, 2, {}, sm_lo=0, sm_hi=0, look=[2])
    QK0 = list(B_.lines)
    grp = [QK0[:3]]; cur = []
    for l_ in QK0[3:]:
        if l_.startswith(("s_waitcnt", "v_mfma")) and any(x.startswith("v_mfma") for x in cur): grp.append(cur); cur = []
        cur.append(l_)
    grp.append(cur)
    half = A.lines[qk_at + 1:]; del A.lines[qk_at + 1:]
    stop = max(i for i, x in enumerate(half) if x.startswith("s_bitcmp1"))
    pos = {4 + (i * (stop - 24)) // len(grp): g for i, g in enumerate(grp)}
    pend = []
    for i, l_ in enumerate(half):
        if i in pos: pend = pend + pos[i]
        if pend and " lds" not in l_ and not l_.startswith("s_nop") and not any(x.startswith("v_pk_") for x in A.lines[-2:]):
            A.lines += pend; pend = []
        A.lines.append(l_)
    emit(v2q)
    mk_ = len(A.lines)
    emit(ffq)
    A(f"s_mov_b32 s{qT0}, 0x1000000")
    A(f"s_mov_b32 s{qT1}, 0x1000000")
    A("s_barrier")
    srd(A, qA, pW2, pW2 + 1, 1728 * 1280)
    A(f"v_mov_b32 v{vAcc+8}, v{vKb}")
    A(f"v_mov_b32 v{vAcc+9}, v{vVb}")
    A(f"v_mov_b32 v{vAcc+10}, v{vWpB}")
    wp_src_voff(A, vAcc)
    wp_addr(A, 13)
    A(f"v_mov_b32 v{vKb}, v{vAcc+8}")
    A(f"v_mov_b32 v{vVb}, v{vAcc+9}")
    A(f"v_mov_b32 v{vWpB}, v{vAcc+10}")
    A(f"s_mul_i32 s{sT2}, s{sRb}, 5")
    A(f"s_add_u32 s{sT2}, s{sT2}, s{sProd}")
    A(f"s_lshl2_add_u32 s{sT2}, s{sT2}, s{sWave}")
    A(f"{L}w2j:")
    A(f"s_mul_hi_u32 s{sT0}, s{sT2}, 0x33333334")
    A(f"s_mul_i32 s{sT1}, s{sT0}, 5")
    A(f"s_sub_u32 s{sT1}, s{sT2}, s{sT1}")
    A(f"s_mul_i32 s7, s{sT0}, 40960")
    A(f"s_lshl_b32 s6, s{sT1}, 8")
    A(f"s_add_u32 s{sT0}, s7, s6")
    A(f"s_lshl_b32 s6, s{sT1}, 13")
    A(f"s_add_u32 s7, s7, s6")
    A(f"s_add_u32 s{sT1}, s7, {128*40960}")
    A(f"s_lshl_b32 s6, s{sWave}, 13")
    for su in range(2):
        A(f"s_add_u32 m0, s6, {R3+su*4096}")
        A("s_nop 0")
        for j in range(4): A(f"buffer_load_dwordx4 v{vAcc+4*su+j}, s[{qA}:{qA+3}], s{sT0} offen offset:{j*1024} lds")
    A("s_waitcnt vmcnt(0)")
    wp_reads(A, 4096)
    A("s_waitcnt lgkmcnt(0)")
    wp_stores(A, sT1)
    A(f"s_add_u32 s{sT2}, s{sT2}, 160")
    A(f"s_cmp_lt_u32 s{sT2}, 270")
    A(f"s_cbranch_scc1 {L}w2j")
    A.lines += QK0
    emit(v2q)
    cold(mk_, f"{L}noffn", f"{L}ffnd")
    A(f"{L}ffnd:")
    for i in range(4): IDS(f"v_mov_b32 v{vOnes+i}, -1")
    IDS(f"s_mul_i32 s6, s{qP}, 30720\ns_mul_i32 s7, s{sWave}, 7680")
    IDS(f"s_min_u32 s7, s7, 22528\ns_add_u32 s{sSen}, s6, s7")
    IDS(f"s_lshl_b32 s{sWpO}, s{sU}, 12")
    IDS(f"v_add_u32 v{vL16+1}, 4096, v{vL16}")
    IDS(f"s_lshl_b32 s6, s{sRb}, 5\ns_add_u32 s7, s6, s{sHead}\ns_lshl_b32 s7, s7, 7")
    IDS(f"v_mov_b32 v{vFo}, s7")
    IDS(f"s_cmp_eq_u32 s{sWave}, 0\ns_cselect_b32 s{sTail}, 0, 0x8000")
    srd(IDS, qX, pFl, pFl + 1, 0x8000)
    IDS(f"s_add_u32 s6, s{sNo}, 1")
    IDS(f"v_mov_b32 v{vFv}, s6")
    IDS(f"v_mov_b32 v{vFv+1}, s{sNo+1}")
    stamp(4)
    for dt in range(4): A(f"v_xor_b32 v{vVr+dt}, {64*dt}, v{vVb}")
    A(f"v_mov_b32 v{vL}, 0")
    A(f"v_mov_b32 v{vL+1}, 0")
    A(f"s_waitcnt vmcnt(24)")
    A("s_barrier")
    stamp(5, True)
    lq = LQ()
    for p in range(3):
        A(kread(p, 1, p)); lq.issue(("f", p))
    for e in range(10):
        for x in sm_exp(0, e): A(x)
        if e:
            for x in sm_post(0, e - 1): A(x)
    assert XP or lq.q == [("f", 0), ("f", 1), ("f", 2)]
    def put(ex, slots, items):
        for sl, its in zip(slots, spread(items, len(slots))): ex.setdefault(sl, []).extend(its)
    PA = Asm()
    PA(f"s_lshl_b32 s6, s{sRb}, 5")
    PA(f"v_and_b32 v{vAp}, 3, v{vLane}")
    PA(f"v_lshlrev_b32 v{vAp}, 2, v{vAp}")
    PA(f"s_and_b32 s7, s{sHead}, 0x13")
    PA(f"s_add_u32 s7, s7, s6")
    PA(f"v_add_lshl_u32 v{vAp}, v{vAp}, s7, 7")
    PA(f"s_lshr_b32 s7, s{qRb}, 1")
    PA(f"s_lshl_b32 s6, s7, 5")
    PA(f"s_lshl_b32 s{sT0}, s{sWave}, 3")
    PA(f"s_add_u32 s6, s6, s{sT0}")
    PA(f"v_add_lshl_u32 v{vAa}, v{vLane}, s6, 7")
    PA(f"v_cmp_gt_u32 vcc, 8, v{vLane}")
    PA(f"v_and_b32 v{vAb}, 15, v{vLane}")
    PA(f"v_lshlrev_b32 v{vAb}, 2, v{vAb}")
    PA(f"s_lshl_b32 s6, s{sWave}, 6")
    PA(f"s_add_u32 s6, s6, 3")
    PA(f"v_add_lshl_u32 v{vAb}, v{vAb}, s6, 7")
    PA(f"v_cndmask_b32 v{vAa}, v{vAb}, v{vAa}, vcc")
    PA(f"v_bfe_u32 v{vAo}, v{vLane}, 4, 1")
    PA(f"v_add_u32 v{vAo}, s{qCb}, v{vAo}")
    PA(f"s_mul_i32 s6, s{qP}, 21")
    PA(f"s_add_u32 s6, s6, 1")
    PA(f"s_lshr_b32 s6, s6, 1")
    PA(f"v_and_b32 v{vPb}, 15, v{vLane}")
    PA(f"v_min_u32 v{vPb}, 10, v{vPb}")
    PA(f"v_add_u32 v{vPb}, s6, v{vPb}")
    PA(f"v_cmp_gt_u32 vcc, 16, v{vLane}")
    PA(f"s_lshl_b32 s7, s7, 5")
    PA(f"v_lshl_add_u32 v{vAo}, v{vAo}, 5, v{vPb}")
    PA(f"v_lshlrev_b32 v{vAo}, 7, v{vAo}")
    PA(f"v_add_lshl_u32 v{vAb}, v{vPb}, s7, 7")
    PA(f"v_cndmask_b32 v{vAb}, v{vAp}, v{vAb}, vcc")
    odd = lambda a, b: [x for x in range(a, b) if x & 1]
    def wo_job(ex, f, s0, s1):
        r = aWq + 4 * (f % 3)
        ex.setdefault(s0 - 1, []).append(f"v_xor_b32 v{vWpA}, {((f&3)<<5)|((f&4)<<10)}, v{vWpB}")
        ex[(s0, "ds")] = [f"ds_read_b64_tr_b16 {ar(r,2)}, v{vWpA} ; @need P 0"]
        ex[(s0 + 2, "ds")] = [f"ds_read_b64_tr_b16 {ar(r+2,2)}, v{vWpA} offset:2048"]
        if "nowo" not in XP: ex.setdefault(s1, []).append(f"buffer_store_dwordx4 {ar(r,4)}, v{vL16+f//4}, s[{sWp}:{sWp+3}], s{sWpO} offen offset:{(f&3)*1024} sc1")
    def mark(f): return "s_nop 0" if "nosent" in XP else f"buffer_store_dwordx4 {vr(vOnes,4)}, v{vL16+f//4}, s[{qI}:{qI+3}], s{sSen} offen offset:{(f&3)*1024} sc1 ; @put H"
    stamp(6, True)
    BW = {0: 10, 1: 13, 2: 13, 3: 13, 4: 13, 5: 13}
    bg = [("h", i) for i in range(8)] + [("w", i) for i in range(8)] + [("m", i) for i in range(8)]
    BG = [bg[0:3], bg[3:6], bg[6:9], bg[9:12], bg[12:15], bg[15:19], bg[19:22], bg[22:24]]
    for t_ in range(8):
        ex = {}
        delta = hex((-98304) & 0xffffffff) if t_ == 3 else "0x8000"
        if t_ < 7:
            for p in range(8):
                ex.setdefault(max(2 * (p - 3) + 1, 1) if p >= 3 else 2 * p, []).append(f"v_add_u32 v{vKr+p}, {delta}, v{vKr+p}")
            for dt in range(4):
                ex.setdefault(2 * (28 + dt - 3) + 2, []).append(f"v_add_u32 v{vVr+dt}, {delta}, v{vVr+dt}")
        if t_ < 5:
            for sl, it in zip([32, 33, 37, 41, 45, 47, 49, 53, 57, 61], kv_dma()): ex.setdefault(sl, []).append(it)
            ex.setdefault(62, []).append(f"s_add_u32 s{sKVo}, s{sKVo}, 16384")
            ex.setdefault(59, []).append(f"s_add_u32 s{sKVm}, s{sKVm}, {hex((-98304) & 0xffffffff) if t_ == 0 else 32768}")
        if t_ < 6: ex[(26, "pre")] = [f"s_waitcnt vmcnt({BW[t_]})", "s_barrier ; @need KV 8 @need Xa 0" + (" @need HH 0" if t_ == 4 else "")]
        for j, (kind, f) in enumerate(BG[t_]):
            sl = (3, 19, 51, 39)[j]
            if kind == "h": put(ex, [sl], [hst(f // 4, f % 4)])
            elif kind == "m": put(ex, [sl], [mark(f)])
            else: wo_job(ex, f, (1, 7, 35)[j], (13, 21, 51)[j])
        if t_ == 0:
            for sl, its in zip([x for x in range(11, 52) if x not in (26, 32, 47)], spread(IDS, 38)): ex.setdefault((sl, "post"), []).extend(its)
        if t_ == 4:
            put(ex, [39], [f"buffer_store_dwordx2 {vr(vFv,2)}, v{vFo}, s[{qX}:{qX+3}], s{sTail} offen sc1"])
        if t_ == 5:
            for sl, its in zip([x for x in range(10, 47) if x != 26], spread(PA.lines, 36)): ex.setdefault((sl, "post"), []).extend(its)
            put(ex, [x for x in range(47, 64) if x != 51], q_setup())
        elif t_ == 6:
            put(ex, [1], [f"global_load_dwordx2 {vr(vPa,2)}, v{vAa}, s[{pFl}:{pFl+1}] sc1"])
            B_ = Asm(); B_("s_waitcnt vmcnt(2)"); B_(f"s_cmp_lg_u32 s{qP}, 3"); B_(f"s_cbranch_scc1 {L}w1r")
            flag_wait(B_, f"{L}w1", 1, [(vPa, vAa)]); B_("s_barrier")
            ex[(26, "pre")] = B_.lines
            put(ex, [x for x in odd(31, 64) if x != 51], q_loads(0) + q_loads(1)[:6])
        elif t_ == 7:
            ex[(26, "pre")] = ["s_waitcnt vmcnt(30)", "s_barrier"]
            ex.setdefault(24, []).append(f"v_add_u32 v{vFv}, 1, v{vFv}")
            put(ex, [28], [f"buffer_store_dwordx2 {vr(vFv,2)}, v{vFo}, s[{qX}:{qX+3}], s{sTail} offen sc1"])
            put(ex, [1, 5, 7, 9, 11, 13, 15, 17, 21, 23, 25, 27, 29, 31], q_loads(1)[6:] + q_loads(2)[:7])
        if t_ >= 1: stamp(t_ + 6, True)
        attn_seg(A, lq, 0, ex)
        attn_seg(A, lq, 1, ex, look=(True if t_ < 7 else [1]))
        if t_ < 7:
            attn_seg(A, lq, 2, ex)
            attn_seg(A, lq, 3, ex)
    ex = {}
    put(ex, [33, 37, 41, 45, 49, 53, 57], q_loads(2)[7:])
    attn_seg(A, lq, 2, ex, mfma=False, look=[3])
    attn_seg(A, lq, 3, ex, sm_hi=54, look=[3])
    stamp(5)
    if "fine2" in XP:
        A(f"s_lshl_b32 s96, s2, 2"); A(f"s_add_u32 s96, s96, s{sWave}"); A("s_lshl_b32 s96, s96, 10")
        A(f"v_lshl_add_u32 v227, v{vLane}, 2, s96")
        A(f"s_add_u32 s96, s{pWs}, 0x3200000"); A(f"s_addc_u32 s97, s{pWs+1}, 0")
        for i in range(3): A(f"global_store_dword v227, v{224+i}, s[96:97] offset:{256*i}")
    A(f"v_mov_b32 v{t}, v{vL}")
    A(f"v_mov_b32 v{t+1}, v{vL+1}")
    A(f"v_bfe_u32 v{t+2}, v{vLane}, 4, 1")
    A(f"v_lshrrev_b32 v{t+3}, 5, v{vLane}")
    A(f"v_permlane32_swap_b32 v{t}, v{vL}")
    A(f"v_permlane32_swap_b32 v{t+1}, v{vL+1}")
    A(f"v_lshlrev_b32 v{t+3}, 8, v{t+3}")
    A(f"v_add_f32 v{vL}, v{vL}, v{t}")
    A(f"v_add_f32 v{vL+1}, v{vL+1}, v{t+1}")
    A(f"v_lshl_add_u32 v{t+3}, v{t+2}, 10, v{t+3}")
    A(f"v_and_b32 v{t+2}, 15, v{vLane}")
    A(f"v_lshl_add_u32 v{vOo}, v{t+2}, 4, v{t+3}")
    A(f"v_mov_b32 v{t+8}, {hex(f2u(2.0**-40))}")
    A(f"v_mov_b32 v{t+9}, {hex(f2u(2.0**40))}")
    A(f"v_cmp_gt_f32 s[{sE0}:{sE0+1}], v{vL}, v{t+8}")
    A(f"v_cmp_lt_f32 s[{sE0+2}:{sE0+3}], v{vL}, v{t+9}")
    A(f"v_cmp_gt_f32 s[4:5], v{vL+1}, v{t+8}")
    A(f"v_cmp_lt_f32 s[6:7], v{vL+1}, v{t+9}")
    A(f"v_rcp_f32 v{t}, v{vL}")
    A(f"v_rcp_f32 v{t+1}, v{vL+1}")
    A("s_nop 1")
    A(f"s_and_b64 s[{sE0}:{sE0+1}], s[{sE0}:{sE0+1}], s[{sE0+2}:{sE0+3}]")
    A(f"s_and_b64 s[4:5], s[4:5], s[6:7]")
    A(f"s_and_b64 s[4:5], s[4:5], s[{sE0}:{sE0+1}]")
    A(f"s_cmp_eq_u64 s[4:5], exec")
    if not XP: A(f"s_cbranch_scc0 {L}slow ; slowbr")
    A(f"{L}oep:")
    A(f"s_lshl_b32 s6, s{sHead}, 14")
    n = 0
    for dt in range(4):
        for qt in range(2):
            b = vS + (n % 4) * 16; pk = vP + (n % 4) * 8; n += 1
            for i in range(16): A(f"v_accvgpr_read_b32 v{b+i}, a{aO+(qt*4+dt)*16+i}")
            for i in range(8):
                A(f"v_pk_mul_f32 {vr(b+2*i,2)}, {vr(b+2*i,2)}, {vr(t,2)} " + ("op_sel_hi:[1,0]" if qt == 0 else "op_sel:[0,1]"))
            for i in range(8): A(f"v_cvt_pk_bf16_f32 v{pk+i}, v{b+2*i}, v{b+2*i+1}")
            for j in range(2):
                A(f"buffer_store_dwordx4 {vr(pk+4*j,4)}, v{vOo}, s[{sA}:{sA+3}], s6 offen offset:{qt*2048+j*512} sc1 ; @put H")
        if dt < 3: A("s_add_u32 s6, s6, 4096")
    stamp(6); stamp(7)
    gemm2(A, L, emit, stamp, cold)
    A(f"{L}end:")
    A("s_endpgm")
    A.lines += COLD
    A(f"{L}slow:")
    A("s_waitcnt vmcnt(0) lgkmcnt(0)")
    srd(A, sK, pK, pK + 1, 16777216)
    srd(A, sV, pV, pV + 1, 16777216)
    kv_dma_voff(A, vKd, vVd, 1)
    A(f"s_lshl_b32 s{sT1}, s{sWave}, 13")
    A(f"s_add_u32 s{sT1}, s{sT1}, {R2}")
    kv_addr(A, sT1)
    for dt in range(4): A(f"v_add_u32 v{vVr+dt}, {R4-R2-16384}, v{vVr+dt}")
    vM = vTm + 6
    A(f"v_mov_b32 v{vM}, 0xff800000")
    A(f"v_mov_b32 v{vM+1}, 0xff800000")
    A(f"v_mov_b32 v{vL}, 0")
    A(f"v_mov_b32 v{vL+1}, 0")
    for i in range(4): A(f"v_mov_b32 v{vTm+12+i}, 0")
    A("s_nop 1")
    for i in range(8): mf32(A, ar(aO + 16 * i, 16), vr(vTm + 12, 4), vr(vTm + 12, 4), "0")
    A(f"s_mov_b32 s{sT}, 0")
    A(f"{L}sl:")
    A(f"s_and_b32 s{sT0}, s{sT}, 15")
    A(f"s_lshl_b32 s{sT0}, s{sT0}, 13")
    A(f"s_lshl_b32 s{sKVo}, s{sHead}, 19")
    A(f"s_add_u32 s{sKVo}, s{sKVo}, s{sT0}")
    A(f"s_add_u32 s{sKVo}, s{sKVo}, {1536*256}")
    for hf in range(2):
        A(f"s_add_u32 m0, s{sT1}, {hf*4096}")
        A("s_nop 0")
        for j in range(4): A(f"buffer_load_dwordx4 v{vKd+j}, s[{sK}:{sK+3}], s{sKVo} offen offset:{j*1024} lds")
        A(f"s_add_u32 m0, s{sT1}, {R4-R2+hf*4096}")
        A("s_nop 0")
        for j in range(4): A(f"buffer_load_dwordx4 v{vVd}, s[{sV}:{sV+3}], s{sKVo} offen offset:{j*1024} lds")
        if hf == 0: A(f"s_add_u32 s{sKVo}, s{sKVo}, 4096")
    A("s_waitcnt vmcnt(0)")
    for p in range(8):
        A(kread(p, 0, p % 4))
        A("s_waitcnt lgkmcnt(0)")
        for qt in range(2): mf32(A, vr(vS + qt * 16, 16), vr(vF + (p % 4) * 4, 4), vr(vQ + (qt * 8 + p) * 4, 4), "0" if p == 0 else None)
    A("s_nop 11")
    A(f"s_cmp_ge_u32 s{sT}, 16")
    A(f"s_cbranch_scc1 {L}sl2")
    for qt in range(2):
        for i in range(8): A(f"v_max3_f32 v{vM+qt}, v{vS+qt*16+2*i}, v{vS+qt*16+2*i+1}, v{vM+qt}")
    A(f"s_cmp_lg_u32 s{sT}, 15")
    A(f"s_cbranch_scc1 {L}sl3")
    A(f"v_mov_b32 v{vM+2}, v{vM}")
    A(f"v_mov_b32 v{vM+3}, v{vM+1}")
    A("s_nop 1")
    A(f"v_permlane32_swap_b32 v{vM+2}, v{vM}")
    A(f"v_permlane32_swap_b32 v{vM+3}, v{vM+1}")
    A(f"v_max_f32 v{vM}, v{vM}, v{vM+2}")
    A(f"v_max_f32 v{vM+1}, v{vM+1}, v{vM+3}")
    A(f"s_branch {L}sl3")
    A(f"{L}sl2:")
    for e in range(32):
        r, qt, ks = sm_reg(0, e)
        A(f"v_sub_f32 v{r}, v{r}, v{vM+qt}")
        A(f"v_exp_f32 v{r}, v{r}")
        A("s_nop 0")
        for x in sm_post(0, e): A(x)
    for i in range(8):
        for sec in range(2): A(vread(i // 4, i % 4, 0, sec, i % 4))
        A("s_waitcnt lgkmcnt(0)")
        for qt in range(2): mf32(A, ar(aO + (qt * 4 + i % 4) * 16, 16), vr(vF + (i % 4) * 4, 4), vr(vP + (qt * 2 + i // 4) * 4, 4))
    A(f"{L}sl3:")
    A(f"s_add_u32 s{sT}, s{sT}, 1")
    A(f"s_cmp_lt_u32 s{sT}, 32")
    A(f"s_cbranch_scc1 {L}sl")
    A(f"v_mov_b32 v{t}, v{vL}")
    A(f"v_mov_b32 v{t+1}, v{vL+1}")
    A("s_nop 1")
    A(f"v_permlane32_swap_b32 v{t}, v{vL}")
    A(f"v_permlane32_swap_b32 v{t+1}, v{vL+1}")
    A(f"v_add_f32 v{vL}, v{vL}, v{t}")
    A(f"v_add_f32 v{vL+1}, v{vL+1}, v{t+1}")
    A(f"v_rcp_f32 v{t}, v{vL}")
    A(f"v_rcp_f32 v{t+1}, v{vL+1}")
    A("s_nop 7")
    A(f"s_branch {L}oep")
    A(f"{L}last:")
    kd(A, name, 512, 256)

def checks(A, entry):
    if XP: return
    nb = check_hazards(A.lines)
    tot = 0
    for wg in (0, 5, 6, 31, 24, 28, 255):
        for w in (0, 1, 3):
            for slow in (0, 1):
                def hk(x, S):
                    if x.opn == "v_readfirstlane_b32" and "tag" not in x.text:
                        S[sWave] = w
                    if "slowbr" in x.text: return slow
                    if "pollbr" in x.text: return 1
                p, c = check_waits(A.lines, entry, {2: wg}, hk)
                tot += p
    print("hazards:", nb, "waits:", tot, c)

def build(fn, stamps=False):
    HDR = open("cdna_kernels/" + NAME + ".s.ref").read().split("; Override")[0]
    A = Asm()
    A(HDR)
    A(f"; @launch grid=(256,1,1) block=(256,1,1) lds={P1_LDS}")
    A('.amdgcn_target "amdgcn-amd-amdhsa--gfx950"')
    A(".text")
    gen_p1(A, NAME + "_kernel", stamps=stamps)
    checks(A, NAME + "_kernel")
    if "ub" in XP:
        A.lines = [l.replace("0x402b1600", "0x422c1600").replace("0x5b402b16", "0x5b422c16") for l in A.lines]
        out = []
        pend = 0
        for i, l in enumerate(A.lines):
            if l == f"s_cmp_eq_u32 s{qP}, 3": l = "s_cmp_eq_u32 0, 0"
            out.append(l)
        A.lines = out
    if any(x.startswith("g_") for x in XP):
        i0 = A.lines.index("p1_gf:"); i1 = A.lines.index("p1_gdone:")
        body = A.lines[i0:i1]
        if "g_nodma" in XP: body = [l for l in body if " lds" not in l]
        if "g_nobar" in XP: body = [l for l in body if not l.startswith("s_barrier")]
        if "g_nowait" in XP: body = [l for l in body if not l.startswith("s_waitcnt lgkmcnt")]
        if "g_noread" in XP: body = [l for l in body if not l.startswith("ds_read")]
        if "g_nop" in XP: body = [("s_nop 0" if " lds" in l else l) for l in body]
        A.lines[i0:i1] = body
    if "hplain" in XP: A.lines = [l.replace(" sc1", "") if ("store" in l and f"s[{sA}:{sA+3}], s6 " not in l and f"s[{sA}:{sA+3}]" in l) else l for l in A.lines]
    if "oplain" in XP: A.lines = [l.replace(" sc1", "") if ("store" in l and f"s[{sA}:{sA+3}], s6 " in l) else l for l in A.lines]
    if "iplain" in XP: A.lines = [l.replace(" sc1", "") if ("store" in l and f"s[{qI}:{qI+3}], s{sT0}" in l) else l for l in A.lines]
    if "nt" in XP: A.lines = [l.replace(" sc1", " sc1 nt") if ("buffer_store" in l) else l for l in A.lines]
    if "sc01" in XP: A.lines = [l.replace(" sc1", " sc0 sc1") if ("buffer_store" in l) else l for l in A.lines]
    open(fn, "w").write(A.text())
if __name__ == "__main__":
    build("fu.s")
    build("fu_st.s", stamps=True)
```

```python
import re

class Asm:
    def __init__(self):
        self.lines = []
    def __call__(self, s):
        for l in s.split("\n"):
            l = l.strip()
            if l:
                self.lines.append(l)
    def text(self):
        out = []
        for l in self.lines:
            if l.endswith(":") or l.startswith(".") or l.startswith(";"):
                out.append(l)
            else:
                out.append("    " + l)
        return "\n".join(out) + "\n"

def vr(base, n=1, k='v'):
    return f"{k}{base}" if n == 1 else f"{k}[{base}:{base+n-1}]"
def ar(base, n=1):
    return vr(base, n, 'a')
def sr(base, n=1):
    return vr(base, n, 's')

REG = re.compile(r"(?<![\w.])([vas])(?:(\d+)\b|\[(\d+):(\d+)\])")
def regs_of(op):
    out = set()
    for m in REG.finditer(op):
        k = m.group(1)
        if m.group(2) is not None:
            out.add((k, int(m.group(2))))
        else:
            for i in range(int(m.group(3)), int(m.group(4)) + 1):
                out.add((k, i))
    for nm in ("vcc", "exec", "m0"):
        if re.search(r"\b" + nm + r"(_lo|_hi)?\b", op):
            out.add((nm, 0))
    return out

TRANS = ("v_exp_f32", "v_log_f32", "v_rcp_f32", "v_rsq_f32", "v_sqrt_f32", "v_sin_f32", "v_cos_f32", "v_rcp_iflag_f32")

class Ins:
    def __init__(self, text, idx):
        self.text = text
        self.idx = idx
        t = text.split(";")[0].strip()
        parts = t.split(None, 1)
        self.op = parts[0]
        self.opn = re.sub(r"_(e32|e64|dpp|sdwa)$", "", self.op)
        rest = parts[1] if len(parts) > 1 else ""
        self.rest = rest
        ops = [o.strip() for o in rest.split(",")] if rest else []
        self.ops = ops
        op = self.opn
        self.kind = "other"
        self.w = set(); self.r = set()
        self.srcc = set(); self.srcab = set(); self.passes = 0
        self.storedata = set()
        R = [regs_of(o) for o in ops]
        allr = set().union(*R) if R else set()
        if op.startswith("v_mfma"):
            self.kind = "mfma"
            self.passes = 8 if "32x32x16" in op else (4 if "16x16x32" in op else (2 if "4x4x4" in op else None))
            assert self.passes, op
            self.w = R[0]; self.srcab = R[1] | R[2]; self.srcc = R[3]; self.r = self.srcab | self.srcc
        elif op.startswith("v_"):
            self.kind = "valu"
            self.trans = op in TRANS
            self.dpp = bool(re.search(r"row_|quad_perm|wave_|bank_mask", rest))
            if op.startswith("v_cmp"):
                self.w = R[0]; self.r = set().union(*R[1:])
                if op.startswith("v_cmpx"): self.w |= {("exec", 0)}
            elif op in ("v_permlane16_swap_b32", "v_permlane32_swap_b32", "v_swap_b32"):
                self.w = R[0] | R[1]; self.r = R[0] | R[1]
            elif op in ("v_add_co_u32", "v_sub_co_u32", "v_addc_co_u32"):
                self.w = R[0] | R[1]; self.r = set().union(*R[2:])
            elif op in ("v_fmac_f32", "v_dot2c_f32_bf16", "v_pk_fmac_f16"):
                self.w = R[0]; self.r = allr
            elif op == "v_nop":
                pass
            else:
                self.w = R[0]; self.r = set().union(*R[1:]) if len(R) > 1 else set()
                if self.dpp: self.r |= R[0]
                if op == "v_cndmask_b32" and len(ops) == 3: self.r |= {("vcc", 0)}
        elif op.startswith("ds_"):
            self.kind = "ds"
            if op.startswith("ds_read") or op.startswith("ds_bpermute") or op.startswith("ds_swizzle") or op.startswith("ds_permute"):
                self.w = R[0]; self.r = set().union(*R[1:])
            else:
                self.r = allr; self.storedata = set().union(*R[1:])
        elif op.startswith("buffer_") or op.startswith("global_"):
            self.kind = "vmem"
            lds = bool(re.search(r"\blds\b", rest)) or "_lds_" in op
            self.lds = lds
            if op in ("buffer_inv", "buffer_wbl2"):
                pass
            elif "load" in op and not lds:
                self.w = R[0]; self.r = set().union(*R[1:])
            elif "load" in op:
                self.r = allr | {("m0", 0)}
            elif "atomic" in op:
                ret = bool(re.search(r"\bsc0\b", rest))
                if op.startswith("buffer_"):
                    self.r = allr; self.storedata = R[0]
                    if ret: self.w = R[0]
                else:
                    if ret: self.w = R[0]; self.r = set().union(*R[1:])
                    else: self.r = allr
            else:
                self.r = allr
                self.storedata = R[0] if op.startswith("buffer_") else R[1]
                self.wide = "x4" in op or "x3" in op
        elif op.startswith("s_"):
            self.kind = "salu"
            if op in ("s_waitcnt", "s_barrier", "s_nop", "s_endpgm", "s_setprio", "s_sleep", "s_branch") or op.startswith("s_cbranch"):
                self.kind = "ctl"
                if op in ("s_cbranch_vccz", "s_cbranch_vccnz"): self.r = {("vcc", 0)}
                if op in ("s_cbranch_execz", "s_cbranch_execnz"): self.r = {("exec", 0)}
            elif op.startswith("s_load") or op.startswith("s_memtime") or op.startswith("s_memrealtime") or op.startswith("s_buffer_load"):
                self.kind = "smem"; self.w = R[0]; self.r = set().union(*R[1:]) if len(R) > 1 else set()
            elif op.startswith("s_cmp") or op.startswith("s_bitcmp"):
                self.r = allr
            elif op.endswith("saveexec_b64"):
                self.w = R[0] | {("exec", 0)}; self.r = R[1] | {("exec", 0)}
            elif op in ("s_setpc_b64",):
                self.r = allr
            else:
                self.w = R[0]; self.r = set().union(*R[1:]) if len(R) > 1 else set()
                if op in ("s_addk_i32", "s_mulk_i32", "s_bitset0_b32", "s_bitset1_b32"): self.r |= R[0]
        else:
            raise ValueError("unknown op " + text)
    def states(self):
        if self.op == "s_nop":
            return int(self.ops[0], 0) + 1
        return 1

def parse(lines):
    ins = []; labels = {}
    for l in lines:
        t = l.split(";")[0].strip()
        if not t: continue
        if t.endswith(":"):
            labels[t[:-1]] = len(ins); continue
        if t.startswith("."):
            continue
        ins.append(Ins(l, len(ins)))
    return ins, labels

def succs(ins, labels, i):
    x = ins[i]
    if x.op == "s_endpgm": return []
    if x.op == "s_branch": return [labels[x.ops[0]]]
    if x.op.startswith("s_cbranch"): return [i + 1, labels[x.ops[0]]]
    if x.op == "s_setpc_b64": return []
    return [i + 1] if i + 1 < len(ins) else []

def isv(s): return {r for r in s if r[0] in "va"}
def iss(s): return {r for r in s if r[0] == "s" or r[0] == "vcc"}

def need(p, c):
    n = 0
    if p.kind == "mfma":
        D = p.w
        tbl_v = {2: 5, 4: 8, 8: 12}[p.passes]
        if c.kind == "mfma":
            if c.srcab & D: n = max(n, tbl_v)
            if c.srcc & D:
                if c.srcc == D and c.passes == p.passes: n = max(n, 2 if p.passes == 2 else 0)
                else: n = max(n, {2: 4, 4: 6, 8: 10}[p.passes])
            elif c.w & D:
                n = max(n, tbl_v)
        elif c.kind in ("valu", "ds", "vmem"):
            if (c.r | c.w) & D: n = max(n, tbl_v)
        if c.kind == "valu" and (c.w & p.srcc): n = max(n, {2: 1, 4: 3, 8: 7}[p.passes])
    if p.kind == "valu":
        W = isv(p.w); S = iss(p.w)
        if c.kind == "mfma" and (c.r & W): n = max(n, 2)
        if c.kind == "mfma" and p.opn.startswith("v_pk_"): n = max(n, 2)
        if c.kind == "mfma" and ("exec", 0) in p.w: n = max(n, 4)
        if c.kind == "valu":
            if p.trans and not c.trans and (c.r & W): n = max(n, 1)
            if c.dpp and (c.r & W): n = max(n, 2)
            if c.opn.startswith("v_permlane") and (c.r & W): n = max(n, 2)
            if c.opn in ("v_readlane_b32", "v_readfirstlane_b32") and (c.r & W): n = max(n, 1)
            if c.r & S: n = max(n, 4 if c.opn in ("v_readlane_b32", "v_writelane_b32") else 2)
            if ("exec", 0) in p.w and (c.dpp): n = max(n, 5)
            if ("exec", 0) in p.w and (c.opn.startswith("v_permlane") or c.opn in ("v_readlane_b32", "v_readfirstlane_b32")): n = max(n, 4)
        if c.kind == "vmem" and (c.r & S): n = max(n, 5)
        if c.kind in ("salu", "ctl") and (c.r & (S | ({("exec",0)} & p.w))): n = max(n, 4)
    if p.kind == "salu":
        if ("m0", 0) in p.w and c.kind == "vmem" and getattr(c, "lds", False): n = max(n, 1)
    if p.kind == "vmem" and getattr(p, "wide", False) and p.storedata:
        if c.w & p.storedata: n = max(n, 2 if c.kind == "valu" else 1)
    return n

def check_hazards(lines, verbose=True):
    ins, labels = parse(lines)
    bad = []
    MAXD = 13
    for i, p in enumerate(ins):
        if p.kind not in ("mfma", "valu", "salu", "vmem"): continue
        stack = [(s, 0) for s in succs(ins, labels, i)]
        seen = {}
        while stack:
            j, d = stack.pop()
            if d >= MAXD or j >= len(ins): continue
            if seen.get(j, 99) <= d: continue
            seen[j] = d
            c = ins[j]
            n = need(p, c)
            if n > d:
                bad.append((i, j, n, d))
            for s in succs(ins, labels, j):
                stack.append((s, d + c.states()))
    for i, j, n, d in bad[:40]:
        print(f"HAZARD need {n} have {d}:\n   [{i}] {ins[i].text}\n   [{j}] {ins[j].text}")
    return len(bad)

M32 = 0xffffffff
_seen = set()
def print(*x, **k):
    import builtins
    m = ' '.join(map(str, x))
    if m not in _seen:
        _seen.add(m); builtins.print(m)

def check_waits(lines, entry, init_s, hooks=None, maxsteps=400000, trace=None):
    ins, labels = parse(lines)
    S = dict(init_s); scc = 0
    vm = []; lg = []
    pc = labels[entry]; steps = 0; probs = 0
    cnt = {}
    def val(o):
        o = o.strip()
        m = re.fullmatch(r"s(\d+)", o)
        if m: return S.get(int(m.group(1)))
        if o == "m0": return S.get("m0")
        try: return int(o, 0) & M32
        except ValueError: return None
    def setv(o, v):
        m = re.fullmatch(r"s(\d+)", o)
        if m: S[int(m.group(1))] = None if v is None else v & M32
        elif o == "m0": S["m0"] = None if v is None else v & M32
        else:
            for r in regs_of(o):
                if r[0] == "s": S[r[1]] = None
    while True:
        steps += 1
        if steps > maxsteps: print("check_waits: too many steps"); return probs + 1, cnt
        x = ins[pc]
        cnt[x.kind] = cnt.get(x.kind, 0) + 1
        touched = x.r | x.w
        for q, nm in ((vm, "vm"), (lg, "lgkm")):
            for (k, d) in q:
                if d & touched:
                    if not (x.kind == ins[k].kind and x.kind in ("ds", "vmem") and not (d & x.r)):
                        print(f"WAIT({nm}): [{pc}] {x.text}\n     touches pending [{k}] {ins[k].text}")
                        probs += 1
                        if probs > 20: return probs, cnt
        op = x.opn; nxt = pc + 1
        def needs():
            n_ = 0
            for cls, mm in re.findall(r"@need (\w+) (\d+)", x.text):
                pend = [k for (k, d) in vm if re.search(r"@put " + cls + r"\b", ins[k].text)]
                if len(pend) > int(mm):
                    print(f"NEED {cls}: {len(pend)} pending > {mm} at [{pc}] {x.text}")
                    n_ += 1
            return n_
        if op != "s_waitcnt": probs += needs()
        if x.kind == "vmem":
            vm.append((pc, set(x.w)))
            if len(vm) > 63: print(f"vmcnt overflow at [{pc}] {x.text}"); probs += 1
        elif x.kind == "ds": lg.append((pc, set(x.w)))
        elif x.kind == "smem":
            lg.append((pc, set(x.w)))
            for r in x.w:
                if r[0] == "s": S[r[1]] = None
            if hooks: hooks(x, S)
        elif op == "s_waitcnt":
            m = re.search(r"vmcnt\((\d+)\)", x.rest)
            if m:
                n = int(m.group(1)); vm = vm[len(vm) - n:] if n < len(vm) and n > 0 else ([] if n == 0 else vm)
            m = re.search(r"lgkmcnt\((\d+)\)", x.rest)
            if m:
                n = int(m.group(1))
                if n > 0 and any(ins[k].kind == "smem" for k, _ in lg):
                    print(f"counted lgkmcnt with smem outstanding at [{pc}]"); probs += 1
                lg = lg[len(lg) - n:] if n < len(lg) and n > 0 else ([] if n == 0 else lg)
            probs += needs()
        elif op == "s_endpgm": return probs, cnt
        elif op == "s_branch": nxt = labels[x.ops[0]]
        elif op in ("s_cbranch_scc0", "s_cbranch_scc1"):
            if scc is None:
                d = hooks(x, S) if hooks else None
                assert d is not None, "unknown scc at " + x.text
                if d: nxt = labels[x.ops[0]]
            elif scc == int(op[-1]): nxt = labels[x.ops[0]]
        elif op.startswith("s_cbranch"):
            d = hooks(x, S) if hooks else None
            assert d is not None, "unknown branch " + x.text
            if d: nxt = labels[x.ops[0]]
        elif x.kind == "salu":
            o = x.ops
            a = val(o[1]) if len(o) > 1 else None
            b = val(o[2]) if len(o) > 2 else None
            two = a is not None and b is not None
            if op in ("s_mov_b32", "s_movk_i32"): setv(o[0], a)
            elif op in ("s_add_u32", "s_add_i32"):
                setv(o[0], a + b if two else None); scc = (int(a + b > M32) if two else None)
            elif op in ("s_sub_u32", "s_sub_i32"):
                setv(o[0], a - b if two else None); scc = (int(a < b) if two else None)
            elif op == "s_mul_i32": setv(o[0], a * b if two else None)
            elif op == "s_mul_hi_u32": setv(o[0], (a * b) >> 32 if two else None)
            elif op in ("s_and_b32", "s_or_b32", "s_xor_b32", "s_lshl_b32", "s_lshr_b32"):
                f = {"s_and_b32": lambda: a & b, "s_or_b32": lambda: a | b, "s_xor_b32": lambda: a ^ b,
                     "s_lshl_b32": lambda: a << (b & 31), "s_lshr_b32": lambda: a >> (b & 31)}[op]
                v = f() & M32 if two else None
                setv(o[0], v); scc = None if v is None else int(v != 0)
            elif op in ("s_max_u32", "s_min_u32"):
                setv(o[0], (max(a, b) if op == "s_max_u32" else min(a, b)) if two else None); scc = None
            elif op == "s_ff1_i32_b32":
                setv(o[0], None if a is None else ((a & -a).bit_length() - 1))
            elif op == "s_bcnt1_i32_b32":
                v = None if a is None else bin(a).count("1"); setv(o[0], v); scc = None if v is None else int(v != 0)
            elif op in ("s_bitset0_b32", "s_bitset1_b32"):
                d0 = val(o[0])
                setv(o[0], None if (a is None or d0 is None) else (d0 & ~(1 << (a & 31)) if op == "s_bitset0_b32" else d0 | (1 << (a & 31))))
            elif op == "s_bfe_u32":
                v = (a >> (b & 31)) & ((1 << ((b >> 16) & 0x7f)) - 1) if two else None
                setv(o[0], v); scc = None if v is None else int(v != 0)
            elif op == "s_lshl2_add_u32":
                setv(o[0], (a << 2) + b if two else None); scc = None
            elif op == "s_cselect_b32":
                setv(o[0], None if scc is None else (a if scc else b))
            elif op.startswith("s_cmp"):
                a, b = val(o[0]), val(o[1])
                if a is None or b is None: scc = None
                else:
                    c = op.split("_")[2]
                    scc = int({"eq": a == b, "lg": a != b, "lt": a < b, "gt": a > b, "le": a <= b, "ge": a >= b}[c])
            elif op.startswith("s_bitcmp1"):
                a, b = val(o[0]), val(o[1]); scc = None if a is None else (a >> b) & 1
            else:
                setv(o[0], None); scc = None
        elif x.kind == "valu":
            for r in x.w:
                if r[0] == "s": S[r[1]] = None
            if hooks and any(r[0] == "s" for r in x.w): hooks(x, S)
        pc = nxt
```

```python
from asmlib import *
from common import *

P1_LDS = 163840
R0, R1, R2, R3, R4 = 0, 32768, 65536, 98304, 131072
CS = R3
TAILBIT = 0x30000
ROT = False
TLBW = True
FLAG = 'byte'
FINE = False
EVMASK = 0x180
vFin = 60
XP = set()

class LQ:
    def __init__(s): s.q = []
    def issue(s, tag): s.q.append(tag)
    def wait(s, A, tags):
        idx = max([i for i, t in enumerate(s.q) if t in tags], default=-1)
        if idx < 0: return
        n = len(s.q) - 1 - idx
        assert n <= 15
        A(f"s_waitcnt lgkmcnt({n})")
        s.q = s.q[idx + 1:]
    def clear(s): s.q = []

sX, sWq, sW1, sW3, sK, sV, sA, sWp, sSrc, sSt = 8, 12, 16, 20, 24, 28, 32, 36, 40, 44
sWave, sHead, sRb, sFb, sHasF = 48, 49, 50, 51, 52
sXo, sWqo, sW13o, sM0X, sM0W, sD, sTail, sSlot = 53, 54, 55, 56, 57, 58, 59, 60
sT0, sT1, sT2 = 61, 62, 63
pX, pK, pV, pWq, pWo, pBx, pW1, pW3, pW2, pOut, pDbg, pWs = range(64, 88, 2)
sKVo, sKVm, sDelta, sT, sU, sMask, sXb, sC0 = 88, 89, 90, 91, 92, 93, 94, 95
sX2, sM0d, sXst, sM0t, sProd, sPo = 76, 74, 75, 3, 4, 5
sE0 = 96
vLane = 1
vXd, vWqd, vW13d, vXr, vWqr, vW13r = 2, 10, 12, 13, 15, 23
vZero = 27
vSt = 28
vTm = 44
vQ = 64
vAcc = 128
aG, aUp, aCs, aXf, aWf, aOne, aWp = 0, 64, 128, 144, 176, 192, 196
vKr, vVr, vKd, vVd, vL, vOo = 14, 10, 2, 6, 22, 24
vWs, vKb, vVb = 56, 57, 58
vS, vP, vF = 128, 192, 208
aO = 128
sNo = 100
pFl = 84
qA, qW, qX, qO, qI = 8, 12, 16, 20, 44
qP, qG, qAo, qWo, qWm, qN, qAs, qWs = 53, 54, 55, 56, 57, 58, 51, 60
qAe, qWe, qNl, qSo, qXo, qRb, qCb, qT0, qT1, qIn = 74, 75, 3, 93, 94, 76, 77, 78, 79, 24
vFo, vFv, vPa, vPb, vAa, vAb, vAo, vAp = 25, 28, 30, 32, 34, 35, 36, 37
vL16, vWr2, vXo2, vL8, vOwn = 54, 2, 4, 5, 6
aA2, aW2, aWq = 0, 64, 64
RING2 = 81920
TOUCH = 0
PMAP = 0x3210
SLP = (0, 0, 0)
COOPX = 1
SPL = (1, 1)
OPT = set()
vTch, sTch = 26, 92
vOnes = 40
vWpB, vWpA = 59, 39
sWpO, sSen = 5, 4


def mf16(A, d, a, b, c=None):
    A(f"v_mfma_f32_16x16x32_bf16 {d}, {a}, {b}, {d if c is None else c}")
def mf32(A, d, a, b, c=None):
    A(f"v_mfma_f32_32x32x16_bf16 {d}, {a}, {b}, {d if c is None else c}")

def spread(items, nslots):
    out = [[] for _ in range(nslots)]
    n = len(items)
    for i, it in enumerate(items):
        out[min(nslots - 1, (i * nslots) // n)].append(it)
    return out

def frag_list(ffn):
    fr = [("Q", p) for p in range(8)]
    if ffn:
        for p in range(4): fr += [("G", p), ("U", p)]
    return fr

def wread(fr, k, sec, buf):
    c, p = fr
    if c == "Q": ad, off = vWqr + p, sec * 1024
    else: ad, off = vW13r + p, (2048 if c == "G" else 3072) + sec * 512
    return f"ds_read_b64_tr_b16 {ar(aWf+buf*4+2*sec,2)}, v{ad} offset:{off + k*16384}"

def xread(s, st, rt):
    return f"ds_read_b128 {ar(aXf+st*16+rt*4,4)}, v{vXr+s} offset:{rt*2048}"

def dma_w(ffn, force=False):
    it = [f"s_max_u32 m0, s{sM0W}, s{sTail}",
          f"buffer_load_dwordx4 v{vWqd}, s[{sWq}:{sWq+3}], s{sWqo} offen lds ; @put W",
          f"buffer_load_dwordx4 v{vWqd+1}, s[{sWq}:{sWq+3}], s{sWqo} offen offset:1024 lds ; @put W"]
    if ffn or force:
        it += [f"buffer_load_dwordx4 v{vW13d}, s[{sW1}:{sW1+3}], s{sW13o} offen offset:2048 lds ; @put W",
               f"buffer_load_dwordx4 v{vW13d}, s[{sW3}:{sW3+3}], s{sW13o} offen offset:3072 lds ; @put W"]
    it += [f"s_add_u32 s{sWqo}, s{sWqo}, {32*8192}"]
    if ffn or force: it += [f"s_add_u32 s{sW13o}, s{sW13o}, {32*3456}"]
    it += [f"s_add_u32 s{sSlot}, s{sSlot}, 16384\ns_and_b32 s{sSlot}, s{sSlot}, 0xffff",
           f"s_add_u32 s{sM0W}, s{sSlot}, s{sC0}"]
    return it

def dma_x(half):
    if half == 0: it = [f"s_mov_b32 m0, s{sM0X}"]
    else: it = [f"s_add_u32 m0, s{sM0X}, s{sM0d}"]
    sd = sX if half == 0 else sX2
    for j in range(4):
        it.append(f"buffer_load_dwordx4 v{vXd+4*half+j}, s[{sd}:{sd+3}], s{sXo} offen offset:{j*1024} lds")
    if half: it += [f"s_add_u32 s{sXo}, s{sXo}, s{sXst}\ns_xor_b32 s{sM0X}, s{sM0X}, s{sM0t}"]
    return it

def fine(A):
    A("s_memtime s[98:99]"); A("s_waitcnt lgkmcnt(0)")
    A("s_mov_b32 m0, s7")
    A(f"v_writelane_b32 v{vFin}, s96, m0")
    A(f"v_writelane_b32 v{vFin+1}, s100, m0")
    A(f"v_writelane_b32 v{vFin-1}, s98, m0")
    A("s_add_u32 s7, s7, 1")

def kstep(A, lq, ffn, k, slots, sal, tog, bar, last=None):
    fr = frag_list(ffn); nf = len(fr)
    ones = {("Q", 0): 0, ("Q", 1): 1, ("G", 0): 2, ("U", 0): 3}
    for f in range(nf):
        c, p = fr[f]
        lq.wait(A, [("w", f)] + ([("x", k)] if f == 0 else []))
        buf = f % 4
        for rt in range(4):
            r_ = rt if f % 2 == 0 else 3 - rt
            if c == "Q": d = vr(vAcc + (p * 4 + r_) * 4, 4)
            else: d = ar((aG if c == "G" else aUp) + (p * 4 + r_) * 4, 4)
            mf16(A, d, ar(aWf + buf * 4, 4), ar(aXf + k * 16 + r_ * 4, 4))
            if f + 3 < nf and rt < 2:
                A(wread(fr[f + 3], k, rt, (f + 3) % 4)); lq.issue(("w", f + 3))
            if last is not None and f >= nf - 2:
                for it in last[4 * (f - nf + 2) + rt]: A(it)
            elif f == nf - 2:
                A(wread(fr[rt // 2], 1 - k, rt % 2, (rt // 2) % 4)); lq.issue(("w", rt // 2))
            elif f == nf - 1 and rt < 2:
                A(wread(fr[2], 1 - k, rt, 2)); lq.issue(("w", 2))
            if rt == 1:
                for it in sal.get(f, []): A(it)
            if rt >= 2 and f < nf - 2:
                for it in slots[2 * f + rt - 2]:
                    if isinstance(it, tuple):
                        A(xread(1 - k, 1 - k, it[1])); lq.issue(("x", 1 - k))
                    else:
                        if "lds" in it and " m0," in A.lines[-1]: A("s_nop 0")
                        A(it)
                        if it.startswith("ds_"): lq.issue(("o", 0))
            if rt == 3:
                for t in tog.get(f, []): A(t)
        if fr[f] in ones:
            mf16(A, ar(aCs + ones[fr[f]] * 4, 4), ar(aWf + buf * 4, 4), ar(aOne, 4))
        if f == nf - 3:
            A(f"s_waitcnt vmcnt({bar[0]}) lgkmcnt(0)")
            lq.clear()
            A(f"s_barrier ; {bar[1]}")

def poll_check(A, L):
    A(f"s_mov_b32 s{sT1}, 0")
    A(f"{L}_chk:")
    A(f"v_cmp_ne_u32 vcc, 0x01010101, v{vTm}")
    A(f"v_cmp_eq_u32 s[6:7], 0, v{vTm+5}")
    A("s_nop 3")
    A(f"s_or_b64 s[6:7], s[6:7], vcc")
    A(f"s_cbranch_scc0 {L}_rdy ; pollbr")
    A(f"s_add_u32 s{sT1}, s{sT1}, 1")
    A(f"s_cmp_ge_u32 s{sT1}, 0x40000")
    A(f"s_cbranch_scc1 {L}_rdy")
    for it in poll_loads(): A(it)
    A("s_waitcnt vmcnt(0)")
    A(f"s_branch {L}_chk")
    A(f"{L}_rdy:")
def poll_loads():
    return [f"global_load_dword v{vTm}, v{vTm+2}, s[{pDbg}:{pDbg+1}] sc1",
            f"global_load_dwordx2 {vr(vTm+4,2)}, v{vTm+6}, s[{pDbg}:{pDbg+1}] offset:128 sc1"]
def stats_scale():
    o = []
    for rt in range(4):
        q = vSt + 4 * rt
        o += [f"v_mul_f32 v{q+3}, {hex(f2u(LOG2E/128**0.5))}, v{q+1}", f"v_mul_f32 v{q+1}, {hex(f2u(-LOG2E))}, v{q+1}"]
    return o + [f"v_mov_b32 v{vTm+4+i}, 0" for i in range(4)]
CSB = [14, 18, 22]
def qp_code():
    if PMAP == 0x3210: return f"s_and_b32 s{qP}, s2, 3"
    return f"s_and_b32 s6, s2, 3\ns_lshl_b32 s6, s6, 2\ns_lshr_b32 s6, {PMAP}, s6\ns_and_b32 s{qP}, s6, 3"
def cs_writes():
    t = vTm
    return [f"ds_write_b128 v{t+8}, {ar(aCs,4)}", f"ds_write_b128 v{t+8}, {ar(aCs+4,4)} offset:64",
            f"ds_write_b128 v{t+9}, {ar(aCs+8,4)}", f"ds_write_b128 v{t+9}, {ar(aCs+12,4)} offset:256"]

def gemm_loop(A, ffn, L):
    fr = frag_list(ffn); nf = len(fr)
    nw = 4 if ffn else 2
    lq = LQ()
    for f in range(3):
        lq.issue(("w", f)); lq.issue(("w", f))
    tg = lambda r, m: [f"v_xor_b32 v{r}, {m}, v{r}"]
    bar = (2 * nw + 8, f"@need W {2*nw}")
    A(".p2align 6")
    A(f"{L}:")
    if not ffn:
        items = [("x", rt) for rt in range(4)] + dma_x(1) + dma_w(ffn)
        kstep(A, lq, ffn, 0, spread(items, 2 * (nf - 2)), {}, {2: tg(vXr, "0x18000")}, bar)
        A(f"s_bitcmp1_b32 s{sMask}, s{sD}")
        A(f"s_cbranch_scc1 {L}_ev")
        A(f"{L}_evret:")
        slots = spread(dma_x(0) + dma_w(ffn) + [f"s_add_u32 s{sD}, s{sD}, 1"], 2 * (nf - 5))
        slots += [[f"s_cmp_eq_u32 s{sD}, 10\ns_cbranch_scc1 {L}_nw\ns_waitcnt vmcnt({2*nw+4})\n{L}_nw:"],
                  [("x", 0)], [("x", 1)], [("x", 2)], [("x", 3)], []]
        tog = {0: tg(vXr + 1, "0x18000")}
        for f, (c, p) in enumerate(fr): tog.setdefault(max(f - 3, -1) + 1, []).extend(tg(vWqr + p, "0x38000"))
        kstep(A, lq, ffn, 1, slots, {}, tog, bar)
        A(f"s_cmp_lt_u32 s{sD}, 10")
        A(f"s_cbranch_scc1 {L}")
        return
    def one(items):
        sl = [[] for _ in range(2 * (nf - 2))]
        for i, it in enumerate(items): sl[2 * i] = [it] if it else []
        return sl
    X = [("x", rt) for rt in range(4)]
    tog0 = {2: tg(vXr, "0x18000")}
    tog1 = {i: tg(vWqr + i, "0x38000") for i in range(7)}
    tog1.update({8: tg(vWqr + 7, "0x38000"), 9: tg(vW13r, "0x38000"), 10: tg(vW13r + 1, "0x38000"), 11: tg(vW13r + 2, "0x38000"),
                 12: tg(vW13r + 3, "0x38000"), 14: tg(vXr + 1, "0x18000")})
    xs, ws_ = dma_x(1), dma_w(True)
    kstep(A, lq, True, 0, one(X[:2] + xs[1:5] + X[2:] + ws_[1:5]),
          {1: [xs[0]], 6: [xs[5]], 7: [ws_[0]], 12: ws_[5:7], 13: ws_[7:], 15: [f"s_cmp_eq_u32 s{sD}, 8"]}, tog0, bar)
    A(f"s_cbranch_scc1 {L}_end")
    q_mid = list(lq.q)
    xs = dma_x(0)
    sl = one(xs[1:5] + ws_[1:5] + X)
    sl[2 * 7 + 1] = [f"s_waitcnt vmcnt({2*nw+4})"]
    kstep(A, lq, True, 1, sl, {0: [xs[0]], 4: [ws_[0]], 8: ws_[5:7], 9: ws_[7:8], 10: ws_[8:], 11: [f"s_add_u32 s{sD}, s{sD}, 1"]}, tog1, bar)
    A(f"s_branch {L}")
    A(f"{L}_end:")
    lq.q = q_mid
    kv = kv_dma()
    sl = one(poll_loads() + [None, None] + kv[1:5] + X)
    sl[2 * 7 + 1] = ["s_waitcnt vmcnt(10)"]
    for j in range(5): sl[2 * j + 1] = []
    tA = {f: list(v) for f, v in tog1.items()}
    mv = {f: [f"v_mov_b32 v{vKd+f}, v{vQ+f}"] for f in range(5)}
    kstep(A, lq, True, 1, sl, {**mv, 3: mv[3] + [f"s_lshl_b32 s{sKVm}, s{sWave}, 12", kv[0]]}, tA, (14, "@need W 4"))
    B_ = Asm(); B_("s_waitcnt vmcnt(4)"); poll_check(B_, L)
    st = [f"buffer_load_dwordx4 {vr(vSt+4*rt,4)}, v{vTm+3}, s[{sSt}:{sSt+3}], s{sT0} offen offset:{rt*256} sc1" for rt in range(4)]
    sl = one(X[:2] + st + X[2:] + kv[6:10])
    sl[1] = ["\n".join(B_.lines)]
    kstep(A, lq, True, 0, sl, {0: [f"s_lshl2_add_u32 s{sT0}, s{sRb}, s{sWave}\ns_lshl_b32 s{sT0}, s{sT0}, 10"], 7: [kv[5]],
                               2: [f"v_readfirstlane_b32 s{sNo}, v{vTm+4} ; tag"], 3: [f"v_readfirstlane_b32 s{sNo+1}, v{vTm+5} ; tag"],
                               4: [f"s_add_u32 s{pFl}, s{pWs}, {FL_OFF}\ns_addc_u32 s{pFl+1}, s{pWs+1}, 0"],
                               12: [f"s_add_u32 s{sKVo}, s{sKVo}, 16384\ns_add_u32 s{sKVm}, s{sKVm}, 32768"]}, {}, (14, "@need W 0"))
    cw = cs_writes()
    sl = one([None] + kv[1:3] + cw[:2] + kv[3:5] + [None] * 3 + [None] + cw[2:])
    ss = stats_scale()
    t = vTm
    last = [[f"ds_read_b128 {vr(CSB[0],4)}, v{t+8}", f"v_xor_b32 v{t+11}, 64, v{t+8}"], ss[0:2], [f"ds_read_b128 {vr(CSB[1],4)}, v{t+11}", ss[2]],
            ss[3:5], ss[5:7], ss[7:9], ss[9:11], ss[11:12] + [qp_code()]]
    kstep(A, lq, True, 1, sl, {0: [kv[0]]}, {}, (8, "@need KV 8"), last=last)

def kv_dma_voff(A, kd_, vd_, nv=4):
    t = vTm
    A(f"v_lshrrev_b32 v{t+12}, 4, v{vLane}")
    A(f"v_and_b32 v{t+14}, 15, v{vLane}")
    A(f"v_xor_b32 v{t+13}, v{t+14}, v{t+12}")
    A(f"v_lshlrev_b32 v{t+13}, 4, v{t+13}")
    A(f"v_lshl_add_u32 v{kd_}, v{t+12}, 8, v{t+13}")
    for j in range(1, 4): A(f"v_xor_b32 v{kd_+j}, {64*j}, v{kd_}")
    A(f"v_lshlrev_b32 v{t+13}, 2, v{t+12}")
    A(f"v_xor_b32 v{t+13}, v{t+13}, v{t+14}")
    A(f"v_lshlrev_b32 v{t+13}, 4, v{t+13}")
    A(f"v_lshl_add_u32 v{vd_}, v{t+12}, 8, v{t+13}")
    for j in range(1, nv): A(f"v_mov_b32 v{vd_+j}, v{vd_}")

def gemm_events(A, L):
    A(f"{L}_ev:")
    A(f"s_cmp_eq_u32 s{sD}, 8")
    A(f"s_cbranch_scc1 {L}_ev8")
    for it in poll_loads(): A(it)
    A(f"s_branch {L}_evret")
    A(f"{L}_ev8:")
    A(f"s_mov_b32 s{sTail}, {TAILBIT}")
    for d in (sWq, sW1, sW3): A(f"s_mov_b32 s{d+2}, 0")
    for d, s_ in ((sX, sK), (sX2, sV)):
        A(f"s_mov_b64 s[{d}:{d+1}], s[{s_}:{s_+1}]")
        A(f"s_mov_b64 s[{d+2}:{d+3}], s[{s_+2}:{s_+3}]")
    for j in range(8): A(f"v_mov_b32 v{vXd+j}, v{vQ+min(j,4)}")
    A(f"s_lshl_b32 s{sM0X}, s{sWave}, 12")
    A(f"s_mov_b32 s{sXo}, s{sKVo}")
    A(f"s_movk_i32 s{sM0d}, 16384")
    A(f"s_movk_i32 s{sXst}, 16384")
    A(f"s_mov_b32 s{sM0t}, 0x8000")
    A(f"s_waitcnt vmcnt(12)")
    poll_check(A, L)
    A(f"v_readfirstlane_b32 s{sNo}, v{vTm+4} ; tag")
    A(f"v_readfirstlane_b32 s{sNo+1}, v{vTm+5} ; tag")
    A(f"s_add_u32 s{pFl}, s{pWs}, {FL_OFF}")
    A(f"s_addc_u32 s{pFl+1}, s{pWs+1}, 0")
    A(f"s_lshl2_add_u32 s{sT0}, s{sRb}, s{sWave}")
    A(f"s_lshl_b32 s{sT0}, s{sT0}, 10")
    for rt in range(4):
        A(f"buffer_load_dwordx4 {vr(vSt+4*rt,4)}, v{vTm+3}, s[{sSt}:{sSt+3}], s{sT0} offen offset:{rt*256} sc1")
    A(f"s_branch {L}_evret")

def kv_addr(A, base_expr_sgpr, only=None):
    vKr, vVr = only or (globals()["vKr"], globals()["vVr"])
    t0, t1, t2, t3 = vTm + 12, vTm + 13, vTm + 14, vTm + 15
    A(f"v_and_b32 v{t0}, 31, v{vLane}")
    A(f"v_lshrrev_b32 v{t1}, 5, v{vLane}")
    A(f"v_and_b32 v{t2}, 15, v{vLane}")
    A(f"v_xor_b32 v{t2}, v{t2}, v{t1}")
    A(f"s_lshl_b32 s{sT0}, s{sWave}, 2")
    A(f"v_xor_b32 v{t2}, s{sT0}, v{t2}")
    A(f"v_lshlrev_b32 v{t2}, 4, v{t2}")
    A(f"v_lshl_add_u32 v{t2}, v{t0}, 8, v{t2}")
    A(f"v_add_u32 v{vKr}, s{base_expr_sgpr}, v{t2}")
    for p in range(1, 1 if only else 8): A(f"v_xor_b32 v{vKr+p}, {32*p}, v{vKr}")
    A(f"v_bfe_u32 v{t0}, v{vLane}, 2, 2")
    A(f"v_lshl_add_u32 v{t2}, v{t1}, 2, v{t0}")
    A(f"v_lshlrev_b32 v{t2}, 8, v{t2}")
    A(f"v_lshl_add_u32 v{t2}, v{t0}, 6, v{t2}")
    A(f"v_bfe_u32 v{t3}, v{vLane}, 1, 1")
    A(f"v_lshl_add_u32 v{t2}, v{t3}, 5, v{t2}")
    A(f"v_bfe_u32 v{t3}, v{vLane}, 4, 1")
    A(f"v_lshl_add_u32 v{t2}, v{t3}, 4, v{t2}")
    A(f"v_and_b32 v{t3}, 1, v{vLane}")
    A(f"v_lshl_add_u32 v{t2}, v{t3}, 3, v{t2}")
    A(f"s_add_u32 s{sT0}, s{base_expr_sgpr}, 16384")
    A(f"v_add_u32 v{vVr}, s{sT0}, v{t2}")
    for dt in range(1, 1 if only else 4): A(f"v_xor_b32 v{vVr+dt}, {64*dt}, v{vVr}")

def kv_dma():
    it = [f"s_mov_b32 m0, s{sKVm}"]
    for j in range(4):
        it.append(f"buffer_load_dwordx4 v{vKd+j}, s[{sK}:{sK+3}], s{sKVo} offen offset:{j*1024} lds")
    it.append("s_add_u32 m0, m0, 16384")
    for j in range(4):
        it.append(f"buffer_load_dwordx4 v{vVd}, s[{sV}:{sV+3}], s{sKVo} offen offset:{j*1024} lds")
    return it

def kread(p, tile, buf):
    return f"ds_read_b128 {vr(vF+buf*4,4)}, v{vKr+p} offset:{tile*8192}"
def vread(ks, dt, tile, sec, buf):
    return f"ds_read_b64_tr_b16 {vr(vF+buf*4+2*sec,2)}, v{vVr+dt} offset:{(32*tile+16*ks+8*sec)*256}"

def sm_reg(buf, e):
    qt = (e >> 3) & 1; ks = e >> 4
    return vS + (buf * 2 + qt) * 16 + ks * 8 + (e & 7), qt, ks
def sm_exp(buf, e):
    r, _, _ = sm_reg(buf, e)
    if "noexp" in XP: return []
    if "movexp" in XP: return [f"v_mov_b32 v{r}, v{r}"]
    return [f"v_exp_f32 v{r}, v{r}"]
def sm_post(buf, e):
    r, qt, ks = sm_reg(buf, e)
    o = [f"v_add_f32 v{vL+qt}, v{vL+qt}, v{r}"]
    if "noadd" in XP: o = []
    if e & 1 and "nocvt" not in XP: o.append(f"v_cvt_pk_bf16_f32 v{vP+(qt*2+ks)*4+((e&7)>>1)}, v{r-1}, v{r}")
    return o

def attn_seg(A, lq, seg, extra, mfma=True, sm_lo=0, sm_hi=64, look=True):
    def rd(phi, part):
        s = (phi // 8) % 4; i = phi % 8; buf = phi % 4
        if s in (0, 2):
            return kread(i, 1 if s == 0 else 0, buf) if part == 0 else None
        return vread(i // 4, i % 4, 0 if s == 1 else 1, part, buf)
    for i in range(8):
        phi = seg * 8 + i
        if mfma and "nowait" not in XP: lq.wait(A, [("f", phi)])
        for qt in range(2):
            slot = seg * 16 + 2 * i + qt
            if mfma:
                if seg in (0, 2):
                    sb = 1 if seg == 0 else 0
                    d = vr(vS + (sb * 2 + qt) * 16, 16)
                    mf32(A, d, vr(vF + (phi % 4) * 4, 4), vr(vQ + (qt * 8 + i) * 4, 4), "0" if i == 0 else None)
                else:
                    ks, dt = i // 4, i % 4
                    mf32(A, ar(aO + (qt * 4 + dt) * 16, 16), vr(vF + (phi % 4) * 4, 4), vr(vP + (qt * 2 + ks) * 4, 4))
            for it in extra.get((slot, "pre"), []): A(it)
            nphi = (phi + 3) % 32
            nseg = nphi // 8
            if look is True or nseg in look:
                r = rd(nphi, qt)
                if r and "noread" not in XP: A(r); lq.issue(("f", nphi))
            for it in extra.get((slot, "ds"), []):
                A(it); lq.issue(("side", 0))
            for it in extra.get(slot, []):
                if it.startswith("v_"): continue
                if "lds" in it and " m0," in A.lines[-1]: A("s_nop 0")
                A(it)
            for (buf, start) in ((1, 22), (0, 54)):
                e = (slot - start) % 64
                if e < 32 and (buf, "exp") in sm_ok(slot, sm_lo, sm_hi, buf, e):
                    for x in sm_exp(buf, e): A(x)
            for (buf, start) in ((1, 22), (0, 54)):
                e = (slot - start - 1) % 64
                if e < 32 and (buf, "exp") in sm_ok((slot - 1) % 64, sm_lo, sm_hi, buf, e):
                    for x in sm_post(buf, e): A(x)
            for it in extra.get(slot, []):
                if it.startswith("v_"): A(it)
            for it in extra.get((slot, "post"), []): A(it)
def sm_ok(slot, lo, hi, buf, e):
    return {(buf, "exp")} if (lo <= slot < hi) else set()

def wp_src_voff(A, d, n=8):
    t = vTm
    A(f"v_lshrrev_b32 v{t+12}, 4, v{vLane}")
    A(f"v_lshlrev_b32 v{t+12}, 1, v{t+12}")
    A(f"v_and_b32 v{t+13}, 7, v{vLane}")
    A(f"v_xor_b32 v{t+12}, v{t+12}, v{t+13}")
    A(f"v_lshlrev_b32 v{t+12}, 4, v{t+12}")
    A(f"v_lshrrev_b32 v{t+13}, 3, v{vLane}")
    A(f"v_mul_u32_u24 v{t+13}, 1280, v{t+13}")
    A(f"v_add_u32 v{d}, v{t+12}, v{t+13}")
    for j in range(1, n): A(f"v_add_u32 v{d+j}, {(j%4)*9216 + (j//4)*128}, v{d}")

def wp_addr(A, sh, note="", reg=R3, n=4, dst=None):
    t = vTm
    A(f"v_bfe_u32 v{t+14}, v{vLane}, 2, 2")
    A(f"v_bfe_u32 v{t+16}, v{vLane}, 4, 1")
    A(f"v_lshl_add_u32 v{t+14}, v{t+16}, 2, v{t+14}")
    A(f"v_lshrrev_b32 v{t+13}, 1, v{t+14}")
    A(f"v_lshlrev_b32 v{t+13}, 5, v{t+13}")
    A(f"v_lshl_add_u32 v{t+13}, v{t+14}, 7, v{t+13}")
    A(f"v_lshrrev_b32 v{t+15}, 5, v{vLane}")
    A(f"v_lshl_add_u32 v{t+13}, v{t+15}, 10, v{t+13}")
    A(f"v_and_b32 v{t+15}, 3, v{vLane}")
    A(f"v_lshl_add_u32 v{t+13}, v{t+15}, 3, v{t+13}")
    A(f"s_lshl_b32 s6, s{sWave}, {sh}")
    A(f"s_add_u32 s6, s6, {reg}")
    A(f"v_add_u32 v{dst or t+4}, s6, v{t+13}{note}")
    for i4 in range(1, n): A(f"v_xor_b32 v{t+4+i4}, {32*i4}, v{t+4}")
def wp_reads(A, stride):
    for su in range(2):
        for i4 in range(4):
            for sec in range(2):
                A(f"ds_read_b64_tr_b16 {ar(aWq+(su*4+i4)*4+2*sec,2)}, v{vTm+4+i4} offset:{su*stride+sec*2048}")
def wp_stores(A, so):
    for su in range(2):
        for i4 in range(4):
            A(f"buffer_store_dwordx4 {ar(aWq+(su*4+i4)*4,4)}, v{vL16}, s[{sWp}:{sWp+3}], s{so} offen offset:{i4*1024} sc1")
        if su == 0: A(f"s_add_u32 s{so}, s{so}, 4096")

def set_flag(A, phase, lab, cls="H"):
    A(f"s_cmp_lg_u32 s{sWave}, 0")
    A(f"s_cbranch_scc1 {lab}")
    A(f"s_add_u32 s6, s{sNo}, {phase}")
    A(f"v_mov_b32 v{vFv}, s6")
    A(f"v_mov_b32 v{vFv+1}, s{sNo+1}")
    A("s_mov_b64 exec, 1")
    A(f"global_store_dwordx2 v{vFo}, {vr(vFv,2)}, s[{pFl}:{pFl+1}] sc1")
    A("s_mov_b64 exec, -1")
def flag_load(A, dst, ad):
    A(f"global_load_dwordx2 {vr(dst,2)}, v{ad}, s[{pFl}:{pFl+1}] sc1")
def flag_wait(A, lab, phase, polls):
    A(f"s_add_u32 s{sT0}, s{sNo}, {phase}")
    A(f"s_mov_b32 s{sT1}, 0")
    A(f"{lab}c:")
    for n, (d, ad) in enumerate(polls):
        A(f"v_subrev_u32 v{d}, s{sT0}, v{d}")
        A(f"v_cmp_ne_u32 s[{sE0+2*n}:{sE0+2*n+1}], s{sNo+1}, v{d+1}")
    for n, (d, ad) in enumerate(polls):
        A(f"v_cmp_lt_u32 " + ("vcc" if n == 0 else "s[6:7]") + f", {3-phase}, v{d}")
    A("s_nop 3")
    A(f"s_or_b64 s[{sE0}:{sE0+1}], s[{sE0}:{sE0+1}], vcc")
    if len(polls) > 1:
        A(f"s_or_b64 s[6:7], s[6:7], s[{sE0+2}:{sE0+3}]")
        A(f"s_or_b64 s[{sE0}:{sE0+1}], s[{sE0}:{sE0+1}], s[6:7]")
    A(f"s_cbranch_scc0 {lab}r ; pollbr")
    A(f"s_add_u32 s{sT1}, s{sT1}, 1")
    A(f"s_cmp_ge_u32 s{sT1}, 0x40000")
    A(f"s_cbranch_scc1 {lab}r")
    if SLP[0]: A(f"s_sleep {SLP[0]}")
    for d, ad in polls: flag_load(A, d, ad)
    A("s_waitcnt vmcnt(0)")
    A(f"s_branch {lab}c")
    A(f"{lab}r:")

def q_setup():
    w = sWave
    return [
     f"s_lshl_b32 s6, s{qP}, 3\ns_lshr_b32 s{qT0}, {hex(0x402b1600)}, s6\ns_and_b32 s{qT0}, s{qT0}, 0xff",
     f"s_lshr_b32 s{qT1}, {hex(0x5b402b16)}, s6\ns_and_b32 s{qT1}, s{qT1}, 0xff",
     f"s_and_b32 s{sT2}, s{w}, 1\ns_lshl_b32 s6, s{sT2}, 11\ns_lshl_b32 s{qAs}, s{qT0}, 13",
     f"s_add_u32 s{qAs}, s{qAs}, s6\ns_lshr_b32 s7, s{w}, 1\ns_lshl_b32 s6, s{qCb}, 1",
     f"s_add_u32 s6, s6, s7\ns_mul_i32 s6, s6, 5120\ns_mul_i32 s{qWs}, s{qT0}, 81920",
     f"s_add_u32 s{qWs}, s{qWs}, s6\ns_mul_i32 s6, s{sT2}, 40960\ns_add_u32 s{qWs}, s{qWs}, s6",
     f"s_lshl_b32 s{qAe}, s{qT1}, 13\ns_mul_i32 s{qWe}, s{qT1}, 81920\ns_mov_b32 s{qAo}, s{qAs}",
     f"s_mov_b32 s{qWo}, s{qWs}\ns_mul_i32 s{qWm}, s{sT2}, 10240\ns_mul_i32 s6, s7, 5120",
     f"s_add_u32 s{qWm}, s{qWm}, s6\ns_lshl_b32 s6, s{qRb}, 1\ns_add_u32 s6, s6, s7",
     f"s_mul_i32 s6, s6, {A_BLK}\ns_add_u32 s{qA}, s{pWs}, s6\ns_addc_u32 s{qA+1}, s{pWs+1}, 0",
     f"s_and_b32 s{qA+1}, s{qA+1}, 0xffff\ns_cmp_eq_u32 s{qP}, 3\ns_cselect_b32 s{qA+2}, s{qAe}, 0\ns_cselect_b32 s{qW+2}, s{qWe}, 0\ns_mov_b32 s{qA+3}, 0x20000",
     f"s_mov_b32 s{qW}, s{sWp}\ns_mov_b32 s{qW+1}, s{sWp+1}\ns_mov_b32 s{qW+3}, 0x20000",
     f"s_lshl2_add_u32 s6, s{qRb}, s{qP}\ns_lshl_b32 s6, s6, 1\ns_add_u32 s6, s6, s7\ns_mul_i32 s{qXo}, s6, 20480",
     f"s_lshl_b32 s6, s{qCb}, 1\ns_add_u32 s6, s6, s{sT2}\ns_mul_i32 s6, s6, 160\ns_add_u32 s{qXo}, s{qXo}, s6",
     f"s_xor_b32 s{qT0}, s{w}, s{qP}\ns_mul_i32 s{qT1}, s{w}, 3\ns_add_u32 s{qT1}, s{qT1}, s{qT0}\ns_sub_u32 s{qT1}, s{qT1}, 1",
     f"s_mul_i32 s{qT1}, s{qT1}, 10240\ns_cmp_eq_u32 s{qT0}, 0\ns_cselect_b32 s{qSo}, 0x100000, s{qT1}",
    ]

def q_loads(slot):
    it = [f"s_add_u32 m0, s{qWm}, {slot*20480}"]
    for j in range(4):
        it.append(f"buffer_load_dwordx4 v{vL16}, s[{qW}:{qW+3}], s{qWo} offen offset:{j*1024} sc1 lds ; @put W2")
    it.append(f"s_add_u32 m0, s{qWm}, {slot*20480+4096}")
    it.append(f"buffer_load_dwordx4 v{vL16+1}, s[{qW}:{qW+3}], s{qWo} offen sc1 lds ; @put W2")
    for k in range(2):
        for rt in range(2):
            it.append(f"buffer_load_dwordx4 {ar(aA2+(slot*4+k*2+rt)*4,4)}, v{vL16+k}, s[{qA}:{qA+3}], s{qAo} offen offset:{rt*1024} sc1")
    it.append(f"s_add_u32 s{qWo}, s{qWo}, 81920\ns_add_u32 s{qAo}, s{qAo}, 8192")
    return it

def gemm2(A, L, emit, stamp, cold):
    ac, vT, vX, vZ = 64, 144, 168, 180
    srd(A, qX, pX, pX + 1, X_SIZE)
    srd(A, qO, pOut, pOut + 1, X_SIZE)
    for i in range(4): A(f"v_mov_b32 v{vZ+i}, 0")
    A(f"v_and_b32 v{vT}, 15, v{vLane}")
    A(f"v_mul_u32_u24 v{vT}, 1280, v{vT}")
    A(f"v_lshrrev_b32 v{vT+1}, 4, v{vLane}")
    A(f"v_lshl_add_u32 v{vXo2}, v{vT+1}, 3, v{vT}")
    def zero():
        for i in range(5): mf32(A, vr(ac + 16 * i, 16), vr(vZ, 4), vr(vZ, 4), "0")
    zero()
    A(f"v_mov_b32 v{vWr2}, v{vL16}")
    A(f"v_add_u32 v{vWr2+1}, 40960, v{vL16}")
    A(f"v_lshlrev_b32 v{vL8}, 3, v{vLane}")
    A(f"v_add_u32 v{vOwn}, {RING2}, v{vL16}")
    A(f"s_mov_b32 s{qN}, 0")
    def wread2(slot, f, buf):
        k, ct = f // 10, f % 10
        return f"ds_read_b128 {ar(aW2+buf*4,4)}, v{vWr2+slot//2} offset:{(slot%2)*20480+k*10240+ct*1024}"
    def xload():
        for ct in range(5):
            A(f"buffer_load_dwordx2 {vr(vX+2*ct,2)}, v{vXo2}, s[{qX}:{qX+3}], s{qXo} offen offset:{ct*32}")
    A(f"s_cmp_eq_u32 s{qP}, 3")
    A(f"s_cselect_b32 s{qT0}, 18, 99")
    A(f"s_cselect_b32 s{qNl}, 24, 19")
    A(f"s_cbranch_scc1 {L}qh")
    flag_load(A, vPa, vAo)
    A("s_waitcnt vmcnt(0)")
    A("s_barrier")
    set_flag(A, 3, f"{L}f2")
    A(f"{L}f2:")
    A(f"s_mov_b32 s{qA+2}, s{qAe}")
    A(f"s_mov_b32 s{qW+2}, s{qWe}")
    A(f"s_mov_b32 s{qAo}, s{qAs}")
    A(f"s_mov_b32 s{qWo}, s{qWs}")
    flag_wait(A, f"{L}w2", 2, [(vPa, vAo)])
    flag_load(A, vPb, vAb)
    A(f"s_cmp_lg_u32 s{qP}, 0")
    A(f"s_cbranch_scc1 {L}qb")
    for s0 in (1, 2):
        if s0 == 2:
            A(f"{L}qb:")
            A(f"s_mov_b32 s{qNl}, 18")
        for s_ in range(s0, s0 + 3):
            emit(q_loads(s_ % 4)[:7])
            A(f"s_add_u32 s{qWo}, s{qWo}, 81920")
        xload()
        A("s_waitcnt vmcnt(20)")
        if True:
            A(f"s_cmp_lg_u32 s{sWave}, 0")
            A(f"s_cbranch_scc1 {L}w4{s0}r")
        flag_wait(A, f"{L}w4{s0}", 3, [(vPb, vAb)])
        if True: A("s_barrier")
        stamp(8)
        for s_ in range(s0, s0 + 3):
            emit(q_loads(s_ % 4)[7:11])
            A(f"s_add_u32 s{qAo}, s{qAo}, 8192")
        A("s_waitcnt vmcnt(4)")
        A("s_barrier ; @need W2 0")
        stamp(9)
        for f in range(3): A(wread2(s0, f, f))
        A(f"s_branch {L}q{s0}")
    A(f"{L}qh:")
    stamp(8)
    xload()
    A(f"s_waitcnt vmcnt(5)")
    A("s_barrier ; @need W2 0")
    set_flag(A, 3, f"{L}f3")
    A(f"{L}f3:")
    stamp(9)
    for f in range(3): A(wread2(0, f, f))
    lq = LQ()
    for f in range(3): lq.issue(f)
    if "q_oob" in XP:
        A(f"s_mov_b32 s{qA+2}, 0"); A(f"s_mov_b32 s{qW+2}, 0")
    A(".p2align 6")
    A(f"{L}q:")
    for slot in range(4):
        ns = (slot + 1) % 4
        if slot in (1, 2): A(f"{L}q{slot}:")
        slots = spread(q_loads((slot + 3) % 4), 16)
        if "q_noload" in XP: slots = [[] for _ in range(16)]
        if "q_noA" in XP: slots = [[x for x in sl if "a[" not in x] for sl in slots]
        if "q_noW" in XP: slots = [[x for x in sl if "lds" not in x] for sl in slots]
        for f in range(20):
            k, ct = f // 10, f % 10
            lq.wait(A, [f])
            for r in range(2):
                rt = r if f % 2 == 0 else 1 - r
                mf16(A, vr(ac + (rt * 10 + ct) * 4, 4), ar(aW2 + (f % 4) * 4, 4), ar(aA2 + (slot * 4 + k * 2 + rt) * 4, 4))
                if r == 0 and f + 3 < 20:
                    A(wread2(slot, f + 3, (f + 3) % 4)); lq.issue(f + 3)
                if f == 18:
                    A(wread2(ns, r, r)); lq.issue(r)
                if f == 19 and r == 0:
                    A(wread2(ns, 2, 2)); lq.issue(2)
                if r == 1 and f < 16: emit(slots[f])
            if f == 17:
                A("s_waitcnt vmcnt(18) lgkmcnt(0)")
                lq.clear()
                if "q_nobar" not in XP: A("s_barrier ; @need W2 10")
            if f == 19:
                A(f"s_add_u32 s{qN}, s{qN}, 1")
        if slot == 1:
            A(f"s_cmp_eq_u32 s{qT0}, s{qN}")
            A(f"s_cbranch_scc1 {L}qe1")
            A(f"{L}qr1:")
    A(f"s_cmp_lg_u32 s{qNl}, s{qN}")
    A(f"s_cbranch_scc1 {L}q")
    mkq = len(A.lines)
    A(f"{L}qe1:")
    flag_load(A, vPb, vAp)
    A(f"s_branch {L}qr1")
    cold(mkq, f"{L}c4", None)
    A(f"s_cmp_lg_u32 s{qP}, 3")
    A(f"s_cbranch_scc1 {L}qy")
    flag_wait(A, f"{L}w3", 3, [(vPb, vAp)])
    A(f"{L}qy:")
    def send(c, so):
        b = vT + (c // 2) * 12
        it = [f"v_cvt_pk_bf16_f32 v{b+i}, v{ac+c*20+2*i}, v{ac+c*20+2*i+1}" for i in range(10)]
        it += [f"v_min_u32 v{b+i}, -2, v{b+i}" for i in range(10)]
        return it + [f"buffer_store_dwordx4 {vr(b,4)}, v{vL16}, s[{qI}:{qI+3}], s{so} offen sc1",
                     f"buffer_store_dwordx4 {vr(b+4,4)}, v{vL16}, s[{qI}:{qI+3}], s{so} offen offset:1024 sc1",
                     f"buffer_store_dwordx2 {vr(b+8,2)}, v{vL8}, s[{qI}:{qI+3}], s{so} offen offset:2048 sc1"]
    order_ = [(sl, k * 10 + h * 5 + i) for h in range(2) for sl in range(3) for k in range(2) for i in range(5)]
    fill = spread(send(0, qSo) + send(2, sT0), 30)
    nq = len(order_)
    held = []
    for n, (sl, f) in enumerate(order_):
        k, ct = f // 10, f % 10
        lq.wait(A, [n])
        for r in range(2):
            rt = r if n % 2 == 0 else 1 - r
            mf16(A, vr(ac + (rt * 10 + ct) * 4, 4), ar(aW2 + (n % 4) * 4, 4), ar(aA2 + (sl * 4 + k * 2 + rt) * 4, 4))
            if n in (7, 17) and r == 0: held.append(n + 3)
            elif r == 0 and n + 3 < nq:
                if held:
                    m = held.pop(); A(wread2(*order_[m], m % 4)); lq.issue(m); held.append(-(n + 3))
                else:
                    A(wread2(*order_[n + 3], (n + 3) % 4)); lq.issue(n + 3)
            elif r == 1 and held and held[0] < 0:
                m = -held.pop(); A(wread2(*order_[m], m % 4)); lq.issue(m)
            if n == 0 and r == 1: A(f"s_add_u32 s{sT0}, s{qSo}, 5120\ns_add_u32 s{sT1}, s{qSo}, 2560\ns_add_u32 s{sT2}, s{qSo}, 7680")
            g_ = 2 * n + r - 63
            if 0 <= g_ < 30:
                for it in fill[g_]: A(it)
        if n in (7, 17):
            A(f"s_waitcnt vmcnt({9 if n == 7 else 0})")
            A(f"s_barrier")
    stamp(10)
    A("s_nop 1")
    for it in send(1, sT1) + send(3, sT2): A(it)
    A(f"s_cmp_lg_u32 s{sWave}, s{qP}")
    A(f"s_cbranch_scc1 {L}no1")
    for i in range(20): A(f"ds_write_b128 v{vOwn}, {vr(ac+4*i,4)} offset:{i*1024}")
    A("s_waitcnt lgkmcnt(0)")
    A(f"{L}no1:")
    S, U, IN, XR, E, T = 64, 84, 104, 184, 204, 224
    A(f"s_mul_i32 s{sT0}, s{sWave}, 5120")
    A(f"v_add_u32 v{vOwn}, s{sT0}, v{vOwn}")
    A(f"s_mul_i32 s{sT0}, s{qP}, 30720")
    A(f"s_mul_i32 s{sT1}, s{sWave}, 2560")
    A(f"s_add_u32 s{sT0}, s{sT0}, s{sT1}")
    A(f"s_lshl_b32 s6, s{qP}, 3")
    A(f"s_lshr_b32 s6, {hex(0x24094218 >> 0 if False else (0x24 | 0x18 << 8 | 0x09 << 16 | 0x24 << 24))}, s6")
    for i in range(3):
        A(f"s_bfe_u32 s7, s6, {hex(0x20000 | 2*i)}")
        A(f"s_mul_i32 s7, s7, 10240")
        A(f"s_add_u32 s{qIn+i}, s{sT0}, s7")
    def inload(sl):
        b = IN + sl * 10
        A(f"buffer_load_dwordx4 {vr(b,4)}, v{vL16}, s[{qI}:{qI+3}], s{qIn+sl} offen sc1")
        A(f"buffer_load_dwordx4 {vr(b+4,4)}, v{vL16}, s[{qI}:{qI+3}], s{qIn+sl} offen offset:1024 sc1")
        A(f"buffer_load_dwordx2 {vr(b+8,2)}, v{vL8}, s[{qI}:{qI+3}], s{qIn+sl} offen offset:2048 sc1")
    A("s_barrier")
    stamp(11)
    if SLP[2] == 1: A("s_waitcnt vmcnt(0)")
    if SLP[2] > 1: A(f"s_sleep {SLP[2]}")
    for sl in range(3): inload(sl)
    for i in range(5): A(f"ds_read_b128 {vr(S+4*i,4)}, v{vOwn} offset:{i*1024}")
    for i in range(10):
        A(f"v_lshlrev_b32 v{XR+2*i}, 16, v{vX+i}")
        A(f"v_and_b32 v{XR+2*i+1}, 0xffff0000, v{vX+i}")
    def unpack(sl, dst):
        for i in range(10):
            A(f"v_lshlrev_b32 v{dst+2*i}, 16, v{IN+sl*10+i}")
            A(f"v_and_b32 v{dst+2*i+1}, 0xffff0000, v{IN+sl*10+i}")
    def addin(sl, dst):
        unpack(sl, T)
        for i in range(10): A(f"v_pk_add_f32 {vr(dst+2*i,2)}, {vr(dst+2*i,2)}, {vr(T+2*i,2)}")
    A(f"s_mov_b32 s{sT1}, 0")
    A(f"{L}sc:")
    A("s_waitcnt vmcnt(0)")
    for i in range(3): A(f"v_max3_u32 v{T+i}, v{IN+10*i}, v{IN+10*i+1}, v{IN+10*i+2}")
    for j in range(3):
        for i in range(3): A(f"v_max3_u32 v{T+i}, v{T+i}, v{IN+10*i+3+2*j}, v{IN+10*i+4+2*j}")
    A(f"v_max3_u32 v{T+3}, v{IN+9}, v{IN+19}, v{IN+29}")
    A(f"v_max3_u32 v{T}, v{T}, v{T+1}, v{T+2}")
    A(f"v_max_u32 v{T}, v{T}, v{T+3}")
    A(f"v_cmp_eq_u32 vcc, -1, v{T}")
    A("s_nop 3")
    A(f"s_cbranch_vccz {L}sr ; pollbr")
    A(f"s_add_u32 s{sT1}, s{sT1}, 1")
    A(f"s_cmp_ge_u32 s{sT1}, 0x40000")
    A(f"s_cbranch_scc1 {L}sr")
    if SLP[1]: A(f"s_sleep {SLP[1]}")
    for sl in range(3): inload(sl)
    A(f"s_branch {L}sc")
    A(f"{L}sr:")
    stamp(12)
    unpack(2, U)
    A(f"s_mov_b32 s{sT0}, {hex(f2u(-LOG2E))}")
    A(f"s_cmp_lg_u32 s{qP}, 3")
    A("s_waitcnt lgkmcnt(0)")
    A(f"s_cbranch_scc1 {L}ns")
    for i in range(20): A(f"v_swap_b32 v{S+i}, v{U+i}")
    A(f"{L}ns:")
    for i in range(20): A(f"v_mul_f32 v{E+i}, s{sT0}, v{U+i}")
    for i in range(20): A(f"v_exp_f32 v{E+i}, v{E+i}")
    addin(0, S)
    for i in range(20): A(f"v_add_f32 v{E+i}, 1.0, v{E+i}")
    for i in range(20): A(f"v_rcp_f32 v{E+i}, v{E+i}")
    addin(1, S)
    for i in range(10): A(f"v_pk_mul_f32 {vr(U+2*i,2)}, {vr(U+2*i,2)}, {vr(E+2*i,2)}")
    for i in range(10): A(f"v_pk_fma_f32 {vr(XR+2*i,2)}, {vr(S+2*i,2)}, {vr(U+2*i,2)}, {vr(XR+2*i,2)}")
    for i in range(10): A(f"v_cvt_pk_bf16_f32 v{vX+i}, v{XR+2*i}, v{XR+2*i+1}")
    for ct in range(5):
        A(f"buffer_store_dwordx2 {vr(vX+2*ct,2)}, v{vXo2}, s[{qO}:{qO+3}], s{qXo} offen offset:{ct*32}" + (" sc1" if "outsc1" in OPT else ""))
    stamp(13)

def gen_p1(A, name, stamps=False, code_bytes=32768, pf_rounds=2):
    head(A, name)
    L = "p1_"
    A("s_cmp_ge_u32 s2, 256")
    A(f"s_cbranch_scc1 {L}end")
    A("s_load_dwordx16 s[64:79], s[0:1], 0")
    A("s_load_dwordx8 s[80:87], s[0:1], 64")
    A(f"s_memrealtime s[{sNo}:{sNo+1}]")
    if stamps: A("s_memtime s[94:95]")
    def stamp(i, att=False):
        if not stamps: return
        if "attst" in OPT:
            if i >= 5 and not att: return
        elif att: return
        A(f"s_memtime s[96:97]")
        A(f"s_memrealtime s[98:99]")
        A("s_waitcnt lgkmcnt(0)")
        A(f"v_mov_b32 v{vTm+18}, s96"); A(f"v_mov_b32 v{vTm+19}, s98")
        A(f"s_lshl_b32 s96, s2, 2"); A(f"s_add_u32 s96, s96, s{sWave}"); A("s_lshl_b32 s96, s96, 7")
        A(f"v_mov_b32 v{vZero}, s96")
        if i == 0: A(f"v_mov_b32 v{vTm+16}, s94")
        A(f"s_add_u32 s96, s{pWs}, 0x3100000"); A(f"s_addc_u32 s97, s{pWs+1}, 0")
        A(f"global_store_dwordx2 v{vZero}, {vr(vTm+18,2)}, s[96:97] offset:{i*8}")
        if i == 0: A(f"global_store_dword v{vZero}, v{vTm+16}, s[96:97] offset:120")
    t = vTm
    COLD = []
    def cold(mark, lab, back):
        blk = A.lines[mark:]; del A.lines[mark:]
        COLD.extend([f"{lab}:"] + blk + ([f"s_branch {back}"] if back else []))
    def emit(items):
        for it in items:
            if "lds" in it and " m0," in A.lines[-1]: A("s_nop 0")
            A(it)
    A(f"v_and_b32 v{vLane}, 63, v0")
    A("v_lshrrev_b32 v0, 6, v0")
    A("s_and_b32 s6, s2, 7")
    A(f"v_readfirstlane_b32 s{sWave}, v0")
    A(f"s_lshr_b32 s{sT0}, s2, 3")
    A(f"s_lshr_b32 s{sRb}, s{sT0}, 2")
    A(f"s_and_b32 s{sT1}, s{sT0}, 3")
    if True:
        A("s_getpc_b64 s[4:5]")
        A(f"{L}pc:")
        A(f"s_lshl2_add_u32 s7, s{sT0}, s{sWave}")
        A(f"s_mul_i32 s7, s7, ({L}last-{L}pc)/1024")
        A("s_lshr_b32 s7, s7, 7")
        A("s_lshl_b32 s7, s7, 10")
        A(f"v_lshl_add_u32 v{vTm+4}, v{vLane}, 4, s7")
        A(f"global_load_dwordx4 {ar(240,4)}, v{vTm+4}, s[4:5]")
    A(f"s_lshl2_add_u32 s{sHead}, s6, s{sT1}")
    A(f"s_sub_u32 s{sT2}, s6, s{sRb}")
    A(f"s_add_u32 s{sT2}, s{sT2}, 3")
    A(f"s_and_b32 s{sT2}, s{sT2}, 7")
    A(f"s_mul_i32 s{sFb}, s6, 3")
    A(f"s_add_u32 s{sFb}, s{sFb}, s{sT1}")
    A(f"s_add_u32 s7, s{sT2}, 24")
    A(f"s_cmp_eq_u32 s{sT1}, 3")
    A(f"s_cselect_b32 s{sFb}, s7, s{sFb}")
    A(f"s_cmp_lt_u32 s{sFb}, 27")
    A(f"s_cselect_b32 s{sHasF}, 1, 0")
    A(f"s_sub_u32 s{sProd}, s{sFb}, 27")
    A(f"v_lshrrev_b32 v{t+7}, 3, v{vLane}")
    A(f"v_and_b32 v{t+6}, 7, v{vLane}")
    A(f"v_lshrrev_b32 v{t+12}, 4, v{vLane}")
    A(f"v_xor_b32 v{t+13}, v{t+6}, v{t+12}")
    A(f"v_lshlrev_b32 v{t+13}, 4, v{t+13}")
    A(f"s_movk_i32 s6, 1280")
    A(f"v_mad_u32_u24 v{vXd}, v{t+7}, s6, v{t+13}")
    A(f"v_xor_b32 v{t+13}, 64, v{vXd}")
    for j in range(1, 8):
        A(f"v_add_u32 v{vXd+j}, {j*10240-(j%4)*1024}, v{(t+13) if j&1 else vXd}")
    A(f"s_lshl2_add_u32 s6, s{sRb}, s{sWave}")
    A(f"s_mul_i32 s{sXo}, s6, {64*1280}")
    A(f"s_mul_i32 s{sKVo}, s6, {A_BLK}")
    A(f"s_lshl_b32 s{sM0X}, s{sWave}, 13")
    A(f"s_add_u32 s{sM0X}, s{sM0X}, {R1}")
    A(f"s_mov_b32 s{sTail}, 0")
    A(f"s_and_b32 s6, s{sWave}, 1")
    A(f"s_lshl_b32 s7, s6, 2")
    A(f"v_add_u32 v{t+13}, s7, v{t+12}")
    A(f"v_lshlrev_b32 v{t+13}, 1, v{t+13}")
    A(f"v_and_b32 v{t+14}, 15, v{vLane}")
    A(f"v_xor_b32 v{t+13}, v{t+13}, v{t+14}")
    A(f"v_lshlrev_b32 v{t+13}, 4, v{t+13}")
    A(f"s_lshl_b32 s7, s{sWave}, 3")
    A(f"v_add_u32 v{t+15}, s7, v{t+12}")
    A(f"v_lshl_add_u32 v{vWqd}, v{t+15}, 13, v{t+13}")
    A(f"v_add_u32 v{vWqd+1}, {4*8192-1024}, v{vWqd}")
    A(f"v_bfe_u32 v{t+13}, v{vLane}, 4, 1")
    A(f"s_lshl_b32 s6, s6, 1")
    A(f"v_add_u32 v{t+13}, s6, v{t+13}")
    A(f"v_lshlrev_b32 v{t+13}, 1, v{t+13}")
    A(f"v_xor_b32 v{t+13}, v{t+13}, v{t+6}")
    A(f"v_lshlrev_b32 v{t+13}, 4, v{t+13}")
    A(f"v_add_u32 v{t+15}, s7, v{t+7}")
    A(f"s_movk_i32 s6, 3456")
    A(f"v_mad_u32_u24 v{vW13d}, v{t+15}, s6, v{t+13}")
    A(f"s_lshl_b32 s{sWqo}, s{sHead}, 8")
    A(f"s_lshl_b32 s{sW13o}, s{sFb}, 7")
    A(f"s_mov_b32 s{sSlot}, 0")
    A(f"s_lshl_b32 s{sM0W}, s{sWave}, 12")
    A(f"s_add_u32 s{sM0W}, s{sM0W}, {R3}")
    for d, sz in ((sX, X_SIZE), (sWq, 640 * 8192)):
        A(f"s_mov_b32 s{d+2}, {sz}")
        A(f"s_mov_b32 s{d+3}, 0x20000")
    for (d, p, sh) in ((sW1, pW1, 2048), (sW3, pW3, 3072)):
        A(f"s_mul_i32 s{d+2}, s{sHasF}, {640*3456+sh}")
        A(f"s_mov_b32 s{d+3}, 0x20000")
    A("s_waitcnt lgkmcnt(0)")
    A(f"s_mov_b32 s{sC0}, s{sM0W}")
    for d, p in ((sX, pX), (sWq, pWq)):
        A(f"s_mov_b32 s{d}, s{p}")
        A(f"s_and_b32 s{d+1}, s{p+1}, 0xffff")
    for (d, p, sh) in ((sW1, pW1, 2048), (sW3, pW3, 3072)):
        A(f"s_sub_u32 s{d}, s{p}, {sh}")
        A(f"s_subb_u32 s{d+1}, s{p+1}, 0")
        A(f"s_and_b32 s{d+1}, s{d+1}, 0xffff")
    A(f"s_mov_b64 s[{sX2}:{sX2+1}], s[{sX}:{sX+1}]")
    A(f"s_mov_b64 s[{sX2+2}:{sX2+3}], s[{sX+2}:{sX+3}]")
    A(f"s_movk_i32 s{sM0d}, 4096")
    A(f"s_movk_i32 s{sXst}, 128")
    A(f"s_mov_b32 s{sM0t}, 0x18000")
    RAW, UNP = 64, 96
    A(f"v_mov_b32 v{t+5}, 0")
    A(f"s_cmp_ge_u32 s{sProd}, 4")
    A(f"s_cbranch_scc0 {L}c1")
    mk_ = len(A.lines)
    A(f"v_lshrrev_b32 v{t+5}, 2, v{vLane}")
    A(f"v_and_b32 v{t+13}, 3, v{vLane}")
    A(f"v_lshlrev_b32 v{t+13}, 4, v{t+13}")
    A(f"s_movk_i32 s6, 1280")
    A(f"v_mad_u32_u24 v{t+13}, v{t+5}, s6, v{t+13}")
    A(f"s_lshl2_add_u32 s6, s{sRb}, s{sProd}")
    A(f"s_lshl2_add_u32 s6, s6, s{sWave}")
    A(f"s_lshl_b32 s7, s6, 8")
    A(f"v_lshl_add_u32 v{t+5}, v{t+5}, 4, s7")
    A(f"s_mul_i32 s6, s6, {16*1280}")
    for i in range(20):
        A(f"buffer_load_dwordx4 {vr(RAW+4*i,4)}, v{t+13}, s[{sX}:{sX+3}], s6 offen offset:{i*64}")
    cold(mk_, f"{L}c1", f"{L}np1")
    A(f"{L}np1:")
    if "coop" in OPT:
        A(f"s_and_b32 s6, s{sHead}, 3")
        A(f"s_lshl2_add_u32 s6, s{sRb}, s6")
        A(f"s_lshl2_add_u32 s6, s6, s{sWave}")
        A(f"s_mul_i32 s6, s6, {16*1280}")
        A(f"v_and_b32 v{t+13}, 15, v{vLane}")
        A(f"v_mul_u32_u24 v{t+13}, 1280, v{t+13}")
        A(f"v_bfe_u32 v{t+14}, v{vLane}, 4, {COOPX}")
        A(f"v_lshl_add_u32 v{t+13}, v{t+14}, 7, v{t+13}")
        A(f"buffer_load_dword v0, v{t+13}, s[{sX}:{sX+3}], s6 offen")
        A(f"s_lshl2_add_u32 s7, s{sRb}, s{sWave}")
        A(f"v_and_b32 v{t+14}, 3, v{vLane}")
        A(f"v_lshl_add_u32 v{t+14}, v{t+14}, 5, s7")
        A(f"v_bfe_u32 v{t+15}, v{vLane}, 2, 1")
        A(f"v_lshlrev_b32 v{t+15}, 7, v{t+15}")
        A(f"v_lshl_add_u32 v{t+15}, v{t+14}, 13, v{t+15}")
        A(f"v_mul_u32_u24 v{t+14}, 3456, v{t+14}")
        A(f"buffer_load_dword v0, v{t+15}, s[{sWq}:{sWq+3}], s{sWqo} offen")
        A(f"buffer_load_dword v0, v{t+14}, s[{sW1}:{sW1+3}], s{sW13o} offen offset:2048")
        A(f"buffer_load_dword v0, v{t+14}, s[{sW3}:{sW3+3}], s{sW13o} offen offset:3072")
    emit(dma_w(True)); emit(dma_x(0))
    stamp(0)
    A(f"s_add_u32 s{sA}, s{pWs}, s{sKVo}")
    A(f"s_addc_u32 s{sA+1}, s{pWs+1}, 0")
    srd(A, sA, sA, sA + 1, A_BLK)
    A(f"s_add_u32 s{sWp}, s{pWs}, {W_OFF}")
    A(f"s_addc_u32 s{sWp+1}, s{pWs+1}, 0")
    srd(A, sWp, sWp, sWp + 1, W_SIZE)
    A(f"s_lshl2_add_u32 s{sT1}, s{sHead}, s{sWave}")
    A(f"s_mul_i32 s{sU}, s{sT1}, 10")
    A(f"s_lshl_b32 s{sT2}, s{sRb}, 1")
    A(f"s_add_u32 s{sU}, s{sU}, s{sT2}")
    A(f"s_mul_i32 s{sT1}, s{sT1}, 40960")
    A(f"s_lshl_b32 s{sT2}, s{sRb}, 8")
    A(f"s_add_u32 s{sPo}, s{sT1}, s{sT2}")
    srd(A, sSrc, pWo, pWo + 1, 4096 * 1280)
    A(f"s_cmp_lt_u32 s{sRb}, 5")
    A(f"s_cselect_b32 s{sSrc+2}, s{sSrc+2}, 0")
    A(f"s_cselect_b32 s{sU}, s{sU}, 2000")
    A(f"v_mov_b32 v{t+6}, 0")
    A(f"s_or_b32 s6, s2, s{sWave}")
    A(f"s_cbranch_scc1 {L}ntag")
    A(f"s_lshl_b64 s[6:7], s[{sNo}:{sNo+1}], 2")
    A(f"s_or_b32 s7, s7, 0x80000000")
    A(f"v_mov_b32 v{t+14}, s6")
    A(f"v_mov_b32 v{t+15}, s7")
    A("s_mov_b64 exec, 1")
    A(f"global_store_dwordx2 v{t+6}, {vr(t+14,2)}, s[{pDbg}:{pDbg+1}] offset:128 sc1")
    A("s_mov_b64 exec, -1")
    A(f"{L}ntag:")
    A(f"v_and_b32 v{t+14}, 15, v{vLane}")
    A(f"v_lshrrev_b32 v{t+13}, 1, v{t+14}")
    A(f"v_xor_b32 v{t+13}, v{t+13}, v{t+12}")
    A(f"v_lshlrev_b32 v{t+13}, 4, v{t+13}")
    A(f"v_lshl_add_u32 v{t+13}, v{t+14}, 7, v{t+13}")
    A(f"s_lshl_b32 s6, s{sWave}, 13")
    A(f"s_add_u32 s6, s6, {R1}")
    A(f"v_add_u32 v{vXr}, s6, v{t+13}")
    A(f"v_xor_b32 v{vXr+1}, 64, v{vXr}")
    A(f"v_lshlrev_b32 v{t+3}, 4, v{t+14}")
    A(f"v_bfe_u32 v{t+14}, v{vLane}, 2, 2")
    A(f"v_and_b32 v{t+15}, 3, v{vLane}")
    A(f"v_lshlrev_b32 v{t+15}, 3, v{t+15}")
    A(f"v_lshl_add_u32 v{t+15}, v{t+12}, 12, v{t+15}")
    A(f"v_add_u32 v{t+15}, {R3}, v{t+15}")
    A(f"v_bfe_u32 v{t+16}, v{vLane}, 4, 1")
    A(f"v_lshl_add_u32 v{t+13}, v{t+16}, 2, v{t+14}")
    A(f"s_lshl_b32 s6, s{sWave}, 1")
    A(f"v_xor_b32 v{t+13}, s6, v{t+13}")
    A(f"v_lshl_add_u32 v{t+13}, v{t+13}, 5, v{t+15}")
    A(f"v_lshl_add_u32 v{vWqr}, v{t+14}, 8, v{t+13}")
    for p in range(1, 8): A(f"v_xor_b32 v{vWqr+p}, {32*p}, v{vWqr}")
    A(f"v_lshrrev_b32 v{t+13}, 1, v{t+14}")
    A(f"v_lshl_add_u32 v{t+13}, v{t+16}, 1, v{t+13}")
    A(f"v_xor_b32 v{t+13}, s{sWave}, v{t+13}")
    A(f"v_lshl_add_u32 v{t+13}, v{t+13}, 5, v{t+15}")
    A(f"v_lshl_add_u32 v{vW13r}, v{t+14}, 7, v{t+13}")
    for p in range(1, 4): A(f"v_xor_b32 v{vW13r+p}, {32*p}, v{vW13r}")
    srd(A, sK, pK, pK + 1, 16777216)
    srd(A, sV, pV, pV + 1, 16777216)
    A(f"s_add_u32 s{sSt}, s{pWs}, {ST_OFF}")
    A(f"s_addc_u32 s{sSt+1}, s{pWs+1}, 0")
    srd(A, sSt, sSt, sSt + 1, 2048 * 16)
    A(f"s_lshl_b32 s6, s{sRb}, 2")
    A(f"v_mov_b32 v{t+2}, s6")
    A(f"s_movk_i32 s{sMask}, {EVMASK}")
    A(f"s_mov_b32 s{sD}, 0")
    A(f"s_cmp_ge_u32 s{sProd}, 4")
    A(f"s_cbranch_scc0 {L}c2")
    mk_ = len(A.lines)
    A("s_waitcnt vmcnt(8)")
    for i in range(79, -1, -1):
        A(f"v_and_b32 v{UNP+2*i+1}, 0xffff0000, v{RAW+i}")
        A(f"v_lshlrev_b32 v{UNP+2*i}, 16, v{RAW+i}")
    a = 64
    def red(first):
        for i in range(80):
            first(i)
        A(f"v_pk_add_f32 {vr(a,2)}, {vr(a,2)}, {vr(a+2,2)}")
        A(f"v_pk_add_f32 {vr(a+4,2)}, {vr(a+4,2)}, {vr(a+6,2)}")
        A(f"v_pk_add_f32 {vr(a,2)}, {vr(a,2)}, {vr(a+4,2)}")
        A(f"v_add_f32 v{a}, v{a}, v{a+1}")
        for qp in ("[1,0,3,2]", "[2,3,0,1]"):
            A("s_nop 1")
            A(f"v_add_f32_dpp v{a}, v{a}, v{a} quad_perm:{qp} row_mask:0xf bank_mask:0xf")
    def f1(i):
        d = vr(a + 2 * (i % 4), 2)
        if i < 4: A(f"v_pk_add_f32 {d}, {vr(UNP+2*i,2)}, {vr(UNP+2*i+8,2)}")
        elif i >= 8: A(f"v_pk_add_f32 {d}, {d}, {vr(UNP+2*i,2)}")
    red(f1)
    o = 72
    A(f"v_mul_f32 v{o}, {hex(f2u(-1.0/640))}, v{a}")
    for i in range(80): A(f"v_pk_add_f32 {vr(UNP+2*i,2)}, {vr(UNP+2*i,2)}, {vr(o,2)} op_sel_hi:[1,0]")
    def f2(i):
        d = vr(a + 2 * (i % 4), 2); x_ = vr(UNP + 2 * i, 2)
        if i < 4: A(f"v_pk_mul_f32 {d}, {x_}, {x_}")
        else: A(f"v_pk_fma_f32 {d}, {x_}, {x_}, {d}")
    red(f2)
    A(f"v_mov_b32 v{o+3}, {hex(f2u(1e-5))}")
    A(f"v_fmac_f32 v{o+3}, {hex(f2u(1.0/640))}, v{a}")
    A(f"v_mov_b32 v{o+2}, v{o+3}")
    A(f"v_rsq_f32 v{o+1}, v{o+3}")
    A("s_mov_b32 exec_lo, 0x11111111")
    A("s_mov_b32 exec_hi, 0x11111111")
    A(f"buffer_store_dwordx4 {vr(o,4)}, v{t+5}, s[{sSt}:{sSt+3}], 0 offen sc1 ; @put S")
    A("s_mov_b64 exec, -1")
    A("s_waitcnt vmcnt(0)")
    cold(mk_, f"{L}c2", f"{L}np2")
    A(f"{L}np2:")
    if "dummy" in OPT:
        A(f"v_lshlrev_b32 v{t+13}, 4, v{vLane}")
        for i in range(16): A(f"buffer_load_dwordx4 {vr(64+4*i,4)}, v{t+13}, s[{sWq}:{sWq+3}], 0 offen offset:{(i%4)*1024}")
        for i in range(128): A(f"v_mov_b32 v{128+i}, 0")
        A("s_waitcnt vmcnt(0)")
        A("s_mov_b32 s6, 0")
        A(f"{L}dmy:")
        for i in range(64): mf16(A, vr(128 + 4 * (i % 32), 4), vr(64 + 4 * (i // 4 % 12), 4), vr(112 + 4 * (i % 4), 4))
        A("s_add_u32 s6, s6, 1")
        A("s_cmp_lt_u32 s6, 40")
        A(f"s_cbranch_scc1 {L}dmy")
        A("s_nop 7")
    if "idle" in OPT:
        A("s_mov_b32 s6, 0")
        A(f"{L}dmy:")
        for i in range(64): A("s_nop 15")
        A("s_add_u32 s6, s6, 1")
        A("s_cmp_lt_u32 s6, 40")
        A(f"s_cbranch_scc1 {L}dmy")
    kv_dma_voff(A, vQ, vQ + 4, 1)
    A(f"s_mov_b32 s{sT1}, {R0}")
    kv_addr(A, sT1, only=(vQ + 5, vQ + 6))
    wp_addr(A, 13, reg=R4, n=1, dst=vQ + 7)
    wp_src_voff(A, vQ + 8, 1)
    A(f"v_mov_b32 v{vKb}, v{vQ+5}")
    A(f"v_mov_b32 v{vVb}, v{vQ+6}")
    A(f"v_mov_b32 v{vWpB}, v{vQ+7}")
    A(f"v_mov_b32 v{vWs}, v{vQ+8}")
    A(f"v_lshrrev_b32 v{t+7}, 4, v{vLane}")
    A(f"v_lshlrev_b32 v{t+7}, 4, v{t+7}")
    A(f"s_lshl_b32 s6, s{sWave}, 7")
    A(f"s_add_u32 s6, s6, {CS}")
    A(f"v_add_u32 v{t+8}, s6, v{t+7}")
    A(f"s_lshl_b32 s6, s{sWave}, 6")
    A(f"s_add_u32 s6, s6, {CS+512}")
    A(f"v_add_u32 v{t+9}, s6, v{t+7}")
    A(f"v_lshlrev_b32 v{t+10}, 4, v{vLane}")
    A(f"s_lshl_b32 s6, s{sWave}, 12")
    A(f"s_lshl_b32 s{sKVo}, s{sHead}, 19")
    A(f"s_add_u32 s{sKVo}, s{sKVo}, s6")
    A(f"s_add_u32 s{sKVo}, s{sKVo}, {1536*256}")
    if "tlbw" in OPT:
        A("s_mov_b64 exec, 1")
        A(f"buffer_load_dword v0, v{t+6}, s[{sK}:{sK+3}], s{sKVo} offen")
        A(f"buffer_load_dword v0, v{t+6}, s[{sV}:{sV+3}], s{sKVo} offen")
        A(f"buffer_load_dword v0, v{t+6}, s[{sSrc}:{sSrc+3}], s{sPo} offen")
        A("s_mov_b64 exec, -1")
    if "tlbs" in OPT:
        A(f"s_lshl_b32 s6, s{sHead}, 14")
        A(f"s_lshl_b32 s7, s{sFb}, 13")
        A(f"s_add_u32 s7, s7, {128*4096}")
        A("s_mov_b64 exec, 1")
        A(f"buffer_store_dword v{t+6}, v{t+6}, s[{sA}:{sA+3}], s6 offen sc1")
        A(f"buffer_store_dword v{t+6}, v{t+6}, s[{sA}:{sA+3}], s7 offen sc1")
        A("s_mov_b64 exec, -1")
    for i in range(4): A(f"v_mov_b32 v{vSt+i}, 0")
    A(f"v_mov_b32 v{t+1}, 0x3f803f80")
    for i in range(4): A(f"v_accvgpr_write_b32 a{aOne+i}, v{t+1}")
    z = vr(vSt, 4)
    for i in range(8): mf32(A, vr(vAcc + 16 * i, 16), z, z, "0")
    for i in range(9): mf32(A, ar(16 * i, 16), z, z, "0")
    emit(dma_x(1)); emit(dma_w(True)); emit(dma_x(0)); emit(dma_w(True))
    A(f"s_waitcnt vmcnt({15 if 'tlbw' in OPT else 14 if 'tlbs' in OPT else 12})")
    A("s_barrier")
    A(f"s_lshl2_add_u32 s6, s{sProd}, s{sWave}")
    A(f"s_and_b32 s6, s6, 0xfffffff3")
    A(f"s_cbranch_scc1 {L}np3")
    A(f"v_mov_b32 v{t+1}, 1")
    A(f"v_add_u32 v{t+7}, s{sProd}, v{t+2}")
    A(f"s_mov_b64 exec, 1")
    A(f"global_store_byte v{t+7}, v{t+1}, s[{pDbg}:{pDbg+1}] sc1")
    A(f"s_mov_b64 exec, -1")
    A(f"{L}np3:")
    stamp(1)
    for rt in range(4): A(xread(0, 0, rt))
    A(f"s_cmp_eq_u32 s{sHasF}, 0")
    fr = frag_list(True)
    for f in range(3):
        for sec in range(2): A(wread(fr[f], 0, sec, f))
    A("s_waitcnt lgkmcnt(6)")
    if FINE: A("s_mov_b32 s7, 0")
    A(f"s_cbranch_scc1 {L}gn")
    gemm_loop(A, True, L + "gf")
    mk_ = len(A.lines)
    gemm_events(A, L + "gn")
    gemm_loop(A, False, L + "gn")
    for it in cs_writes()[:2]: A(it)
    A(f"s_mov_b32 s{sKVo}, s{sXo}")
    A(f"s_mov_b32 s{sKVm}, s{sM0X}")
    A(qp_code())
    for it in stats_scale(): A(it)
    A("s_waitcnt lgkmcnt(0)")
    A("s_barrier")
    A(f"ds_read_b128 {vr(CSB[0],4)}, v{t+8}")
    A(f"v_xor_b32 v{t+11}, 64, v{t+8}")
    A(f"ds_read_b128 {vr(CSB[1],4)}, v{t+11}")
    cold(mk_, f"{L}c3", f"{L}gdone")
    A(f"{L}gdone:")
    stamp(2)
    z = vr(vTm + 4, 4)
    class Grp(list):
        def __call__(self, x): self.append(x)
    IDS = Grp()
    IDS(f"s_lshr_b32 s{qCb}, s2, 6")
    IDS(f"s_bfe_u32 s{qRb}, s2, 0x30003")
    IDS(f"s_and_b32 s6, s2, 4\ns_lshl_b32 s6, s6, 1")
    IDS(f"s_add_u32 s{qRb}, s{qRb}, s6")
    IDS(f"s_lshl2_add_u32 s{qG}, s{qRb}, s{qCb}")
    IDS(f"s_mul_i32 s6, s{qG}, {IB_G}")
    IDS(f"s_add_u32 s6, s6, {IB_OFF}")
    IDS(f"s_add_u32 s{qI}, s{pWs}, s6\ns_addc_u32 s{qI+1}, s{pWs+1}, 0")
    srd(IDS, qI, qI, qI + 1, IB_G)
    kvadv = [f"s_add_u32 s{sKVo}, s{sKVo}, 16384\ns_add_u32 s{sKVm}, s{sKVm}, 32768"]
    def kvq(): return kv_dma() + kvadv
    csb = [14, 18, 22]
    lq = LQ()
    def csread_q(p):
        A(f"v_xor_b32 v{t+11}, {64*p}, v{t+8}")
        A(f"ds_read_b128 {vr(csb[p%3],4)}, v{t+11}"); lq.issue(("c", p))
    lq.issue(("c", 0)); lq.issue(("c", 1))
    wo_dma = []
    for su in range(2):
        wo_dma.append(f"s_lshl_b32 s6, s{sWave}, 13\ns_add_u32 m0, s6, {R4+su*4096}")
        wo_dma += [f"buffer_load_dwordx4 v{vWs}, s[{sSrc}:{sSrc+3}], s{sPo} offen offset:{j*1024} lds ; @put P\n" +
                   (f"s_add_u32 s{sPo}, s{sPo}, 9216" if j < 3 else f"s_sub_u32 s{sPo}, s{sPo}, {3*9216-128}") for j in range(4)]
    kq = spread([f"s_add_u32 m0, s{sKVm}, 16384"] + kv_dma()[6:] + kvadv + wo_dma[:5 * SPL[0]], 24)
    for p in range(8):
        if p + 2 < 8: csread_q(p + 2)
        lq.wait(A, [("c", p)])
        c = csb[p % 3]
        for rt in range(4):
            d = vAcc + (p * 4 + rt) * 4; q = vSt + 4 * rt
            for h in range(2):
                A(f"v_pk_fma_f32 {vr(d+2*h,2)}, {vr(c+2*h,2)}, {vr(q,2)}, {vr(d+2*h,2)} op_sel_hi:[1,0,1]")
        emit(kq[3*p])
        for rt in range(4):
            d = vAcc + (p * 4 + rt) * 4; q = vSt + 4 * rt
            for h in range(2):
                A(f"v_pk_mul_f32 {vr(d+2*h,2)}, {vr(d+2*h,2)}, {vr(q+2,2)} op_sel:[0,1]")
        emit(kq[3*p+1])
        for rt in range(4):
            d = vAcc + (p * 4 + rt) * 4
            f = vQ + ((rt // 2) * 8 + p) * 4 + (rt & 1) * 2
            for h in range(2): A(f"v_cvt_pk_bf16_f32 v{f+h}, v{d+2*h}, v{d+2*h+1}")
        mf32(A, ar(aO + 16 * p, 16), z, z, "0")
        emit(kq[3*p+2])
        if p > 0:
            for qt in range(2):
                f = vQ + (qt * 8 + p - 1) * 4
                for h in range(2): A(f"v_permlane16_swap_b32 v{f+h}, v{f+2+h}")
    A("s_nop 0")
    for qt in range(2):
        f = vQ + (qt * 8 + 7) * 4
        for h in range(2): A(f"v_permlane16_swap_b32 v{f+h}, v{f+2+h}")
    stamp(3)
    for p in range(8): A(f"v_xor_b32 v{vKr+p}, {32*p}, v{vKb}")
    v2q = [f"s_add_u32 m0, s{sKVm}, 16384"] + kvq()[6:]
    A(f"s_cmp_eq_u32 s{sHasF}, 0")
    A(f"s_cbranch_scc1 {L}noffn")
    def hst(pi, rt): return f"buffer_store_dwordx4 {vr(vAcc+96+pi*16+rt*4,4)}, v{t+10}, s[{sA}:{sA+3}], s{qT0+pi} offen offset:{rt*1024}" + ("" if "wbl2" in OPT else " sc1") + " ; @put H @put HH"
    T = vAcc + 32; H = vAcc + 96; C = vAcc + 56
    def csf(p):
        A(f"v_xor_b32 v{t+11}, {64*p}, v{t+9}")
        A(f"ds_read_b128 {vr(C+8*(p%3),4)}, v{t+11}")
        A(f"ds_read_b128 {vr(C+8*(p%3)+4,4)}, v{t+11} offset:256")
    for p in range(3): csf(p)
    A(f"s_lshr_b32 s7, s{sWave}, 1")
    A(f"s_lshl_b32 s6, s{sFb}, 1")
    A(f"s_add_u32 s6, s6, 128")
    A(f"s_add_u32 s{sT0}, s6, s7")
    A(f"s_xor_b32 s7, s7, 1")
    A(f"s_add_u32 s{sT1}, s6, s7")
    A(f"s_lshl_b32 s{qT0}, s{sT0}, 12")
    A(f"s_lshl_b32 s{qT1}, s{sT1}, 12")
    A("s_waitcnt lgkmcnt(0)")
    ffq = wo_dma[5 * SPL[0]:] + kv_dma()[:5 * SPL[1]]
    kq = spread(ffq, 24) if ffq else [[]] * 24
    for p in range(4):
        for r2 in range(2):
            g_ = 3 * (p * 2 + r2)
            G = [(2 * r2 + i, T + 12 * i) for i in range(2)]
            if p == 1 and r2 == 0: csf(3)
            if p == 2 and r2 == 0:
                qk_at = len(A.lines)
                A("s_waitcnt lgkmcnt(0)")
            for rt, b in G:
                for i in range(4): A(f"v_accvgpr_read_b32 v{b+i}, a{aG+(p*4+rt)*4+i}")
                for i in range(4): A(f"v_accvgpr_read_b32 v{b+4+i}, a{aUp+(p*4+rt)*4+i}")
            emit(kq[g_])
            for rt, b in G:
                for h in range(4):
                    A(f"v_pk_fma_f32 {vr(b+2*h,2)}, {vr(C+8*(p%3)+2*h,2)}, {vr(vSt+4*rt,2)}, {vr(b+2*h,2)} op_sel_hi:[1,0,1]")
            for rt, b in G:
                for h in range(2): A(f"v_pk_mul_f32 {vr(b+8+2*h,2)}, {vr(b+2*h,2)}, {vr(vSt+4*rt,2)} op_sel:[0,1]")
            for rt, b in G:
                for i in range(4): A(f"v_exp_f32 v{b+8+i}, v{b+8+i}")
            emit(kq[g_+1])
            for rt, b in G:
                for h in range(2): A(f"v_pk_mul_f32 {vr(b+2*h,2)}, {vr(b+2*h,2)}, {vr(b+4+2*h,2)}")
            for rt, b in G:
                for h in range(2):
                    A(f"v_pk_fma_f32 {vr(b+8+2*h,2)}, {vr(b+8+2*h,2)}, {vr(vSt+4*rt+2,2)}, {vr(vSt+4*rt+2,2)} op_sel_hi:[1,0,0]")
            for rt, b in G:
                for i in range(4): A(f"v_rcp_f32 v{b+8+i}, v{b+8+i}")
            emit(kq[g_+2])
            for n, (rt, b) in enumerate(G):
                for h in range(2): A(f"v_pk_mul_f32 {vr(b+2*h,2)}, {vr(b+2*h,2)}, {vr(b+8+2*h,2)}")
            for rt, b in G:
                for h in range(2): A(f"v_cvt_pk_bf16_f32 v{H+(p//2)*16+rt*4+(p&1)*2+h}, v{b+2*h}, v{b+2*h+1}")
        if p & 1:
            pi = p // 2
            A(f"s_bitcmp1_b32 s{sWave}, 0")
            A(f"s_cbranch_scc0 {L}nsw{pi}")
            for rt in range(4):
                for h in range(2): A(f"v_swap_b32 v{H+pi*16+rt*4+h}, v{H+pi*16+rt*4+2+h}")
            A(f"{L}nsw{pi}:")
    B_ = Asm(); lq = LQ()
    for p in range(3):
        B_(kread(p, 0, p)); lq.issue(("f", 16 + p))
    attn_seg(B_, lq, 2, {}, sm_lo=0, sm_hi=0, look=[2])
    QK0 = list(B_.lines)
    grp = [QK0[:3]]; cur = []
    for l_ in QK0[3:]:
        if l_.startswith(("s_waitcnt", "v_mfma")) and any(x.startswith("v_mfma") for x in cur): grp.append(cur); cur = []
        cur.append(l_)
    grp.append(cur)
    half = A.lines[qk_at + 1:]; del A.lines[qk_at + 1:]
    stop = max(i for i, x in enumerate(half) if x.startswith("s_bitcmp1"))
    pos = {4 + (i * (stop - 24)) // len(grp): g for i, g in enumerate(grp)}
    pend = []
    for i, l_ in enumerate(half):
        if i in pos: pend = pend + pos[i]
        if pend and " lds" not in l_ and not l_.startswith("s_nop") and not any(x.startswith("v_pk_") for x in A.lines[-2:]):
            A.lines += pend; pend = []
        A.lines.append(l_)
    emit(v2q)
    mk_ = len(A.lines)
    emit(ffq)
    A(f"s_mov_b32 s{qT0}, 0x1000000")
    A(f"s_mov_b32 s{qT1}, 0x1000000")
    A("s_barrier")
    srd(A, qA, pW2, pW2 + 1, 1728 * 1280)
    A(f"v_mov_b32 v{vAcc+8}, v{vKb}")
    A(f"v_mov_b32 v{vAcc+9}, v{vVb}")
    A(f"v_mov_b32 v{vAcc+10}, v{vWpB}")
    wp_src_voff(A, vAcc)
    wp_addr(A, 13)
    A(f"v_mov_b32 v{vKb}, v{vAcc+8}")
    A(f"v_mov_b32 v{vVb}, v{vAcc+9}")
    A(f"v_mov_b32 v{vWpB}, v{vAcc+10}")
    A(f"s_mul_i32 s{sT2}, s{sRb}, 5")
    A(f"s_add_u32 s{sT2}, s{sT2}, s{sProd}")
    A(f"s_lshl2_add_u32 s{sT2}, s{sT2}, s{sWave}")
    A(f"{L}w2j:")
    A(f"s_mul_hi_u32 s{sT0}, s{sT2}, 0x33333334")
    A(f"s_mul_i32 s{sT1}, s{sT0}, 5")
    A(f"s_sub_u32 s{sT1}, s{sT2}, s{sT1}")
    A(f"s_mul_i32 s7, s{sT0}, 40960")
    A(f"s_lshl_b32 s6, s{sT1}, 8")
    A(f"s_add_u32 s{sT0}, s7, s6")
    A(f"s_lshl_b32 s6, s{sT1}, 13")
    A(f"s_add_u32 s7, s7, s6")
    A(f"s_add_u32 s{sT1}, s7, {128*40960}")
    A(f"s_lshl_b32 s6, s{sWave}, 13")
    for su in range(2):
        A(f"s_add_u32 m0, s6, {R3+su*4096}")
        A("s_nop 0")
        for j in range(4): A(f"buffer_load_dwordx4 v{vAcc+4*su+j}, s[{qA}:{qA+3}], s{sT0} offen offset:{j*1024} lds")
    A("s_waitcnt vmcnt(0)")
    wp_reads(A, 4096)
    A("s_waitcnt lgkmcnt(0)")
    wp_stores(A, sT1)
    A(f"s_add_u32 s{sT2}, s{sT2}, 160")
    A(f"s_cmp_lt_u32 s{sT2}, 270")
    A(f"s_cbranch_scc1 {L}w2j")
    A.lines += QK0
    emit(v2q)
    cold(mk_, f"{L}noffn", f"{L}ffnd")
    A(f"{L}ffnd:")
    for i in range(4): IDS(f"v_mov_b32 v{vOnes+i}, -1")
    IDS(f"s_mul_i32 s6, s{qP}, 30720\ns_mul_i32 s7, s{sWave}, 7680")
    IDS(f"s_min_u32 s7, s7, 22528\ns_add_u32 s{sSen}, s6, s7")
    IDS(f"s_lshl_b32 s{sWpO}, s{sU}, 12")
    IDS(f"v_add_u32 v{vL16+1}, 4096, v{vL16}")
    IDS(f"s_lshl_b32 s6, s{sRb}, 5\ns_add_u32 s7, s6, s{sHead}\ns_lshl_b32 s7, s7, 7")
    IDS(f"v_mov_b32 v{vFo}, s7")
    IDS(f"s_cmp_eq_u32 s{sWave}, 0\ns_cselect_b32 s{sTail}, 0, 0x8000")
    srd(IDS, qX, pFl, pFl + 1, 0x8000)
    IDS(f"s_add_u32 s6, s{sNo}, 1")
    IDS(f"v_mov_b32 v{vFv}, s6")
    IDS(f"v_mov_b32 v{vFv+1}, s{sNo+1}")
    stamp(4)
    for dt in range(4): A(f"v_xor_b32 v{vVr+dt}, {64*dt}, v{vVb}")
    A(f"v_mov_b32 v{vL}, 0")
    A(f"v_mov_b32 v{vL+1}, 0")
    A(f"s_waitcnt vmcnt(24)")
    A("s_barrier")
    stamp(5, True)
    lq = LQ()
    for p in range(3):
        A(kread(p, 1, p)); lq.issue(("f", p))
    for e in range(10):
        for x in sm_exp(0, e): A(x)
        if e:
            for x in sm_post(0, e - 1): A(x)
    assert XP or lq.q == [("f", 0), ("f", 1), ("f", 2)]
    def put(ex, slots, items):
        for sl, its in zip(slots, spread(items, len(slots))): ex.setdefault(sl, []).extend(its)
    PA = Asm()
    PA(f"s_lshl_b32 s6, s{sRb}, 5")
    PA(f"v_and_b32 v{vAp}, 3, v{vLane}")
    PA(f"v_lshlrev_b32 v{vAp}, 2, v{vAp}")
    PA(f"s_and_b32 s7, s{sHead}, 0x13")
    PA(f"s_add_u32 s7, s7, s6")
    PA(f"v_add_lshl_u32 v{vAp}, v{vAp}, s7, 7")
    PA(f"s_lshr_b32 s7, s{qRb}, 1")
    PA(f"s_lshl_b32 s6, s7, 5")
    PA(f"s_lshl_b32 s{sT0}, s{sWave}, 3")
    PA(f"s_add_u32 s6, s6, s{sT0}")
    PA(f"v_add_lshl_u32 v{vAa}, v{vLane}, s6, 7")
    PA(f"v_cmp_gt_u32 vcc, 8, v{vLane}")
    PA(f"v_and_b32 v{vAb}, 15, v{vLane}")
    PA(f"v_lshlrev_b32 v{vAb}, 2, v{vAb}")
    PA(f"s_lshl_b32 s6, s{sWave}, 6")
    PA(f"s_add_u32 s6, s6, 3")
    PA(f"v_add_lshl_u32 v{vAb}, v{vAb}, s6, 7")
    PA(f"v_cndmask_b32 v{vAa}, v{vAb}, v{vAa}, vcc")
    PA(f"v_bfe_u32 v{vAo}, v{vLane}, 4, 1")
    PA(f"v_add_u32 v{vAo}, s{qCb}, v{vAo}")
    PA(f"s_mul_i32 s6, s{qP}, 21")
    PA(f"s_add_u32 s6, s6, 1")
    PA(f"s_lshr_b32 s6, s6, 1")
    PA(f"v_and_b32 v{vPb}, 15, v{vLane}")
    PA(f"v_min_u32 v{vPb}, 10, v{vPb}")
    PA(f"v_add_u32 v{vPb}, s6, v{vPb}")
    PA(f"v_cmp_gt_u32 vcc, 16, v{vLane}")
    PA(f"s_lshl_b32 s7, s7, 5")
    PA(f"v_lshl_add_u32 v{vAo}, v{vAo}, 5, v{vPb}")
    PA(f"v_lshlrev_b32 v{vAo}, 7, v{vAo}")
    PA(f"v_add_lshl_u32 v{vAb}, v{vPb}, s7, 7")
    PA(f"v_cndmask_b32 v{vAb}, v{vAp}, v{vAb}, vcc")
    odd = lambda a, b: [x for x in range(a, b) if x & 1]
    def wo_job(ex, f, s0, s1):
        r = aWq + 4 * (f % 3)
        ex.setdefault(s0 - 1, []).append(f"v_xor_b32 v{vWpA}, {((f&3)<<5)|((f&4)<<10)}, v{vWpB}")
        ex[(s0, "ds")] = [f"ds_read_b64_tr_b16 {ar(r,2)}, v{vWpA} ; @need P 0"]
        ex[(s0 + 2, "ds")] = [f"ds_read_b64_tr_b16 {ar(r+2,2)}, v{vWpA} offset:2048"]
        if "nowo" not in XP: ex.setdefault(s1, []).append(f"buffer_store_dwordx4 {ar(r,4)}, v{vL16+f//4}, s[{sWp}:{sWp+3}], s{sWpO} offen offset:{(f&3)*1024} sc1")
    def mark(f): return "s_nop 0" if "nosent" in XP else f"buffer_store_dwordx4 {vr(vOnes,4)}, v{vL16+f//4}, s[{qI}:{qI+3}], s{sSen} offen offset:{(f&3)*1024} sc1 ; @put H"
    stamp(6, True)
    BW = {0: 10, 1: 13, 2: 13, 3: 13, 4: 13, 5: 13}
    bg = [("h", i) for i in range(8)] + [("w", i) for i in range(8)] + [("m", i) for i in range(8)]
    BG = [bg[0:3], bg[3:6], bg[6:9], bg[9:12], bg[12:15], bg[15:19], bg[19:22], bg[22:24]]
    if "bg2" in OPT: BG[5:] = [bg[15:22], bg[22:24], []]
    if "bg3" in OPT: BG[5:] = [bg[15:24], [], []]
    for t_ in range(8):
        ex = {}
        delta = hex((-98304) & 0xffffffff) if t_ == 3 else "0x8000"
        if t_ < 7:
            for p in range(8):
                ex.setdefault(max(2 * (p - 3) + 1, 1) if p >= 3 else 2 * p, []).append(f"v_add_u32 v{vKr+p}, {delta}, v{vKr+p}")
            for dt in range(4):
                ex.setdefault(2 * (28 + dt - 3) + 2, []).append(f"v_add_u32 v{vVr+dt}, {delta}, v{vVr+dt}")
        if t_ < 5:
            for sl, it in zip([32, 33, 37, 41, 45, 47, 49, 53, 57, 61], kv_dma()): ex.setdefault(sl, []).append(it)
            ex.setdefault(62, []).append(f"s_add_u32 s{sKVo}, s{sKVo}, 16384")
            ex.setdefault(59, []).append(f"s_add_u32 s{sKVm}, s{sKVm}, {hex((-98304) & 0xffffffff) if t_ == 0 else 32768}")
        if t_ < 6: ex[(26, "pre")] = [f"s_waitcnt vmcnt({BW[t_]})", "s_barrier ; @need KV 8 @need Xa 0" + (" @need HH 0" if t_ == 4 else "")]
        for j, (kind, f) in enumerate(BG[t_]):
            sl = (3, 19, 51, 39, 31, 45, 59, 35, 55)[j]
            if kind == "h": put(ex, [sl], [hst(f // 4, f % 4)])
            elif kind == "m": put(ex, [sl], [mark(f)])
            else: wo_job(ex, f, (1, 7, 35)[j], (13, 21, 51)[j])
        if t_ == 0:
            for sl, its in zip([x for x in range(11, 52) if x not in (26, 32, 47)], spread(IDS, 38)): ex.setdefault((sl, "post"), []).extend(its)
        if t_ == 4:
            put(ex, [39], [f"buffer_store_dwordx2 {vr(vFv,2)}, v{vFo}, s[{qX}:{qX+3}], s{sTail} offen sc1"])
        if t_ == 5:
            for sl, its in zip([x for x in range(10, 47) if x != 26], spread(PA.lines, 36)): ex.setdefault((sl, "post"), []).extend(its)
            put(ex, [x for x in range(47, 64) if x != 51], q_setup())
        elif t_ == 6:
            put(ex, [1], [f"global_load_dwordx2 {vr(vPa,2)}, v{vAa}, s[{pFl}:{pFl+1}] sc1"])
            B_ = Asm(); B_(f"s_waitcnt vmcnt({min(2, len(BG[6]))})"); B_(f"s_cmp_lg_u32 s{qP}, 3"); B_(f"s_cbranch_scc1 {L}w1r")
            flag_wait(B_, f"{L}w1", 1, [(vPa, vAa)]); B_("s_barrier")
            ex[(26, "pre")] = B_.lines
            put(ex, [x for x in odd(31, 64) if x != 51], q_loads(0) + q_loads(1)[:6])
        elif t_ == 7:
            ex[(26, "pre")] = ["s_waitcnt vmcnt(30)", "s_barrier"]
            ex.setdefault(24, []).append(f"v_add_u32 v{vFv}, 1, v{vFv}")
            put(ex, [28], [f"buffer_store_dwordx2 {vr(vFv,2)}, v{vFo}, s[{qX}:{qX+3}], s{sTail} offen sc1"])
            put(ex, [1, 5, 7, 9, 11, 13, 15, 17, 21, 23, 25, 27, 29, 31], q_loads(1)[6:] + q_loads(2)[:7])
        if t_ >= 1: stamp(t_ + 6, True)
        attn_seg(A, lq, 0, ex)
        attn_seg(A, lq, 1, ex, look=(True if t_ < 7 else [1]))
        if t_ < 7:
            attn_seg(A, lq, 2, ex)
            attn_seg(A, lq, 3, ex)
    ex = {}
    def vrd(f, sec):
        A(vread(f % 2, f // 2, 1, sec, f % 4)); lq.issue(("v", f))
    for f in range(3):
        vrd(f, 0); vrd(f, 1)
    ql = dict(zip((11, 14, 17, 20, 23), q_loads(2)[7:]))
    for e in range(10, 32):
        if e in ql: A(ql[e])
        for x in sm_exp(1, e) + sm_post(1, e - 1): A(x)
    A(f"v_bfe_u32 v{t+2}, v{vLane}, 4, 1")
    for x in sm_post(1, 31): A(x)
    def o_items(plain):
        it = []
        for n, (dt, qt) in enumerate((dt, qt) for dt in range(4) for qt in range(2)):
            b = vS + (n % 4) * 16; pk = 224 + (n % 4) * 8
            it += [f"v_accvgpr_read_b32 v{b+i}, a{aO+(qt*4+dt)*16+i}" for i in range(16)]
            if n < plain: it += [f"v_mul_f32 v{b+i}, v{t+qt}, v{b+i}" for i in range(16)]
            else: it += [f"v_pk_mul_f32 {vr(b+2*i,2)}, {vr(b+2*i,2)}, {vr(t,2)} " + ("op_sel_hi:[1,0]" if qt == 0 else "op_sel:[0,1]") for i in range(8)]
            it += [f"v_cvt_pk_bf16_f32 v{pk+i}, v{b+2*i}, v{b+2*i+1}" for i in range(8)]
            it += [f"buffer_store_dwordx4 {vr(pk+4*j,4)}, v{vOo}, s[{sA}:{sA+3}], s{sKVm} offen offset:{qt*2048+j*512} sc1 ; @put H" for j in range(2)]
            if qt and dt < 3: it.append(f"s_add_u32 s{sKVm}, s{sKVm}, 4096")
        return it
    chk = [[f"v_mov_b32 v{t}, v{vL}", f"v_mov_b32 v{t+1}, v{vL+1}", f"v_lshrrev_b32 v{t+3}, 5, v{vLane}", f"v_lshlrev_b32 v{t+3}, 8, v{t+3}"],
           [f"v_permlane32_swap_b32 v{t}, v{vL}", f"v_permlane32_swap_b32 v{t+1}, v{vL+1}", f"v_lshl_add_u32 v{t+3}, v{t+2}, 10, v{t+3}"],
           [f"v_add_f32 v{vL}, v{vL}, v{t}", f"v_add_f32 v{vL+1}, v{vL+1}, v{t+1}", f"v_mov_b32 v{t+8}, {hex(f2u(2.0**-40))}", f"v_mov_b32 v{t+9}, {hex(f2u(2.0**40))}"],
           [f"v_cmp_gt_f32 s[{sE0}:{sE0+1}], v{vL}, v{t+8}", f"v_cmp_lt_f32 s[{sE0+2}:{sE0+3}], v{vL}, v{t+9}", f"v_and_b32 v{t+2}, 15, v{vLane}"],
           [f"v_cmp_gt_f32 s[4:5], v{vL+1}, v{t+8}", f"v_cmp_lt_f32 s[6:7], v{vL+1}, v{t+9}", f"v_rcp_f32 v{t}, v{vL}", f"v_lshl_add_u32 v{vOo}, v{t+2}, 4, v{t+3}"],
           [f"v_rcp_f32 v{t+1}, v{vL+1}", f"s_lshl_b32 s{sKVm}, s{sHead}, 14", f"s_and_b64 s[{sE0}:{sE0+1}], s[{sE0}:{sE0+1}], s[{sE0+2}:{sE0+3}]",
            "s_and_b64 s[4:5], s[4:5], s[6:7]", f"s_and_b64 s[4:5], s[4:5], s[{sE0}:{sE0+1}]", "s_cmp_eq_u64 s[4:5], exec"] + ([] if XP else [f"s_cbranch_scc0 {L}slow ; slowbr"])]
    oi = o_items(2)
    for f in range(8):
        lq.wait(A, [("v", f)])
        for qt in range(2):
            g = 2 * f + qt
            mf32(A, ar(aO + (qt * 4 + f // 2) * 16, 16), vr(vF + (f % 4) * 4, 4), vr(vP + (qt * 2 + f % 2) * 4, 4))
            if f + 3 < 8: vrd(f + 3, qt)
            if g < 6:
                for x in chk[g]: A(x)
            elif g < 15:
                k_ = 4 if f + 3 < 8 else 5
                for x in oi[:k_]: A(x)
                oi = oi[k_:]
    stamp(5)
    for x in oi: A(x)
    mk_ = len(A.lines)
    A(f"s_lshl_b32 s{sKVm}, s{sHead}, 14")
    for x in o_items(0): A(x)
    cold(mk_, f"{L}oep", f"{L}oed")
    A(f"{L}oed:")
    stamp(6); stamp(7)
    gemm2(A, L, emit, stamp, cold)
    A(f"{L}end:")
    A("s_endpgm")
    A.lines += COLD
    A(f"{L}slow:")
    A("s_waitcnt vmcnt(0) lgkmcnt(0)")
    srd(A, sK, pK, pK + 1, 16777216)
    srd(A, sV, pV, pV + 1, 16777216)
    kv_dma_voff(A, vKd, vVd, 1)
    A(f"s_lshl_b32 s{sT1}, s{sWave}, 13")
    A(f"s_add_u32 s{sT1}, s{sT1}, {R2}")
    kv_addr(A, sT1)
    for dt in range(4): A(f"v_add_u32 v{vVr+dt}, {R4-R2-16384}, v{vVr+dt}")
    vM = vTm + 6
    A(f"v_mov_b32 v{vM}, 0xff800000")
    A(f"v_mov_b32 v{vM+1}, 0xff800000")
    A(f"v_mov_b32 v{vL}, 0")
    A(f"v_mov_b32 v{vL+1}, 0")
    for i in range(4): A(f"v_mov_b32 v{vTm+12+i}, 0")
    A("s_nop 1")
    for i in range(8): mf32(A, ar(aO + 16 * i, 16), vr(vTm + 12, 4), vr(vTm + 12, 4), "0")
    A(f"s_mov_b32 s{sT}, 0")
    A(f"{L}sl:")
    A(f"s_and_b32 s{sT0}, s{sT}, 15")
    A(f"s_lshl_b32 s{sT0}, s{sT0}, 13")
    A(f"s_lshl_b32 s{sKVo}, s{sHead}, 19")
    A(f"s_add_u32 s{sKVo}, s{sKVo}, s{sT0}")
    A(f"s_add_u32 s{sKVo}, s{sKVo}, {1536*256}")
    for hf in range(2):
        A(f"s_add_u32 m0, s{sT1}, {hf*4096}")
        A("s_nop 0")
        for j in range(4): A(f"buffer_load_dwordx4 v{vKd+j}, s[{sK}:{sK+3}], s{sKVo} offen offset:{j*1024} lds")
        A(f"s_add_u32 m0, s{sT1}, {R4-R2+hf*4096}")
        A("s_nop 0")
        for j in range(4): A(f"buffer_load_dwordx4 v{vVd}, s[{sV}:{sV+3}], s{sKVo} offen offset:{j*1024} lds")
        if hf == 0: A(f"s_add_u32 s{sKVo}, s{sKVo}, 4096")
    A("s_waitcnt vmcnt(0)")
    for p in range(8):
        A(kread(p, 0, p % 4))
        A("s_waitcnt lgkmcnt(0)")
        for qt in range(2): mf32(A, vr(vS + qt * 16, 16), vr(vF + (p % 4) * 4, 4), vr(vQ + (qt * 8 + p) * 4, 4), "0" if p == 0 else None)
    A("s_nop 11")
    A(f"s_cmp_ge_u32 s{sT}, 16")
    A(f"s_cbranch_scc1 {L}sl2")
    for qt in range(2):
        for i in range(8): A(f"v_max3_f32 v{vM+qt}, v{vS+qt*16+2*i}, v{vS+qt*16+2*i+1}, v{vM+qt}")
    A(f"s_cmp_lg_u32 s{sT}, 15")
    A(f"s_cbranch_scc1 {L}sl3")
    A(f"v_mov_b32 v{vM+2}, v{vM}")
    A(f"v_mov_b32 v{vM+3}, v{vM+1}")
    A("s_nop 1")
    A(f"v_permlane32_swap_b32 v{vM+2}, v{vM}")
    A(f"v_permlane32_swap_b32 v{vM+3}, v{vM+1}")
    A(f"v_max_f32 v{vM}, v{vM}, v{vM+2}")
    A(f"v_max_f32 v{vM+1}, v{vM+1}, v{vM+3}")
    A(f"s_branch {L}sl3")
    A(f"{L}sl2:")
    for e in range(32):
        r, qt, ks = sm_reg(0, e)
        A(f"v_sub_f32 v{r}, v{r}, v{vM+qt}")
        A(f"v_exp_f32 v{r}, v{r}")
        A("s_nop 0")
        for x in sm_post(0, e): A(x)
    for i in range(8):
        for sec in range(2): A(vread(i // 4, i % 4, 0, sec, i % 4))
        A("s_waitcnt lgkmcnt(0)")
        for qt in range(2): mf32(A, ar(aO + (qt * 4 + i % 4) * 16, 16), vr(vF + (i % 4) * 4, 4), vr(vP + (qt * 2 + i // 4) * 4, 4))
    A(f"{L}sl3:")
    A(f"s_add_u32 s{sT}, s{sT}, 1")
    A(f"s_cmp_lt_u32 s{sT}, 32")
    A(f"s_cbranch_scc1 {L}sl")
    A(f"v_mov_b32 v{t}, v{vL}")
    A(f"v_mov_b32 v{t+1}, v{vL+1}")
    A("s_nop 1")
    A(f"v_permlane32_swap_b32 v{t}, v{vL}")
    A(f"v_permlane32_swap_b32 v{t+1}, v{vL+1}")
    A(f"v_add_f32 v{vL}, v{vL}, v{t}")
    A(f"v_add_f32 v{vL+1}, v{vL+1}, v{t+1}")
    A(f"v_rcp_f32 v{t}, v{vL}")
    A(f"v_rcp_f32 v{t+1}, v{vL+1}")
    A("s_nop 7")
    A(f"s_branch {L}oep")
    A(f"{L}last:")
    kd(A, name, 512, 256)

def checks(A, entry):
    if XP: return
    nb = check_hazards(A.lines)
    tot = 0
    for wg in (0, 5, 6, 31, 24, 28, 255):
        for w in (0, 1, 3):
            for slow in (0, 1):
                def hk(x, S):
                    if x.opn == "v_readfirstlane_b32" and "tag" not in x.text:
                        S[sWave] = w
                    if "slowbr" in x.text: return slow
                    if "pollbr" in x.text: return 1
                p, c = check_waits(A.lines, entry, {2: wg}, hk)
                tot += p
    print("hazards:", nb, "waits:", tot, c)

def build(fn, stamps=False):
    HDR = open("cdna_kernels/" + NAME + ".s.ref").read().split("; Override")[0]
    A = Asm()
    A(HDR)
    A(f"; @launch grid=(256,1,1) block=(256,1,1) lds={P1_LDS}")
    A('.amdgcn_target "amdgcn-amd-amdhsa--gfx950"')
    A(".text")
    gen_p1(A, NAME + "_kernel", stamps=stamps)
    checks(A, NAME + "_kernel")
    if "ub" in XP:
        A.lines = [l.replace("0x402b1600", "0x422c1600").replace("0x5b402b16", "0x5b422c16") for l in A.lines]
        out = []
        pend = 0
        for i, l in enumerate(A.lines):
            if l == f"s_cmp_eq_u32 s{qP}, 3": l = "s_cmp_eq_u32 0, 0"
            out.append(l)
        A.lines = out
    if any(x.startswith("g_") for x in XP):
        i0 = A.lines.index("p1_gf:"); i1 = A.lines.index("p1_gdone:")
        body = A.lines[i0:i1]
        if "g_nodma" in XP: body = [l for l in body if " lds" not in l]
        if "g_nobar" in XP: body = [l for l in body if not l.startswith("s_barrier")]
        if "g_nowait" in XP: body = [l for l in body if not l.startswith("s_waitcnt lgkmcnt")]
        if "g_noread" in XP: body = [l for l in body if not l.startswith("ds_read")]
        if "g_nop" in XP: body = [("s_nop 0" if " lds" in l else l) for l in body]
        A.lines[i0:i1] = body
    if "hplain" in XP: A.lines = [l.replace(" sc1", "") if ("store" in l and f"s[{sA}:{sA+3}], s6 " not in l and f"s[{sA}:{sA+3}]" in l) else l for l in A.lines]
    if "oplain" in XP: A.lines = [l.replace(" sc1", "") if ("store" in l and f"s[{sA}:{sA+3}], s6 " in l) else l for l in A.lines]
    if "iplain" in XP: A.lines = [l.replace(" sc1", "") if ("store" in l and f"s[{qI}:{qI+3}], s{sT0}" in l) else l for l in A.lines]
    if "nt" in XP: A.lines = [l.replace(" sc1", " sc1 nt") if ("buffer_store" in l) else l for l in A.lines]
    if "sc01" in XP: A.lines = [l.replace(" sc1", " sc0 sc1") if ("buffer_store" in l) else l for l in A.lines]
    open(fn, "w").write(A.text())
if __name__ == "__main__":
    build("fu.s")
    build("fu_st.s", stamps=True)
```

```python
from asmlib import *
from common import *

P1_LDS = 163840
R0, R1, R2, R3, R4 = 0, 32768, 65536, 98304, 131072
CS = R3
TAILBIT = 0x30000
ROT = False
TLBW = True
FLAG = 'byte'
FINE = False
EVMASK = 0x180
vFin = 60
XP = set()

class LQ:
    def __init__(s): s.q = []
    def issue(s, tag): s.q.append(tag)
    def wait(s, A, tags):
        idx = max([i for i, t in enumerate(s.q) if t in tags], default=-1)
        if idx < 0: return
        n = len(s.q) - 1 - idx
        assert n <= 15
        A(f"s_waitcnt lgkmcnt({n})")
        s.q = s.q[idx + 1:]
    def clear(s): s.q = []

sX, sWq, sW1, sW3, sK, sV, sA, sWp, sSrc, sSt = 8, 12, 16, 20, 24, 28, 32, 36, 40, 44
sWave, sHead, sRb, sFb, sHasF = 48, 49, 50, 51, 52
sXo, sWqo, sW13o, sM0X, sM0W, sD, sTail, sSlot = 53, 54, 55, 56, 57, 58, 59, 60
sT0, sT1, sT2 = 61, 62, 63
pX, pK, pV, pWq, pWo, pBx, pW1, pW3, pW2, pOut, pDbg, pWs = range(64, 88, 2)
sKVo, sKVm, sDelta, sT, sU, sMask, sXb, sC0 = 88, 89, 90, 91, 92, 93, 94, 95
sX2, sM0d, sXst, sM0t, sProd, sPo = 76, 74, 75, 3, 4, 5
sE0 = 96
vLane = 1
vXd, vWqd, vW13d, vXr, vWqr, vW13r = 2, 10, 12, 13, 15, 23
vZero = 27
vSt = 28
vTm = 44
vQ = 64
vAcc = 128
aG, aUp, aCs, aXf, aWf, aOne, aWp = 0, 64, 128, 144, 176, 192, 196
vKr, vVr, vKd, vVd, vL, vOo = 14, 10, 2, 6, 22, 24
vWs, vKb, vVb = 56, 57, 58
vS, vP, vF = 128, 192, 208
aO = 128
sNo = 100
pFl = 84
qA, qW, qX, qO, qI = 8, 12, 16, 20, 44
qP, qG, qAo, qWo, qWm, qN, qAs, qWs = 53, 54, 55, 56, 57, 58, 51, 60
qAe, qWe, qNl, qSo, qXo, qRb, qCb, qT0, qT1, qIn = 74, 75, 3, 93, 94, 76, 77, 78, 79, 24
vFo, vFv, vPa, vPb, vAa, vAb, vAo, vAp = 25, 28, 30, 32, 34, 35, 36, 37
vL16, vWr2, vXo2, vL8, vOwn = 54, 2, 4, 5, 6
aA2, aW2, aWq = 0, 64, 64
RING2 = 81920
TOUCH = 0
PMAP = 0x3210
SLP = (0, 0, 0)
COOPX = 1
SPL = (1, 1)
OPT = set()
vTch, sTch = 26, 92
vOnes = 40
vWpB, vWpA = 59, 39
sWpO, sSen = 5, 4


def mf16(A, d, a, b, c=None):
    A(f"v_mfma_f32_16x16x32_bf16 {d}, {a}, {b}, {d if c is None else c}")
def mf32(A, d, a, b, c=None):
    A(f"v_mfma_f32_32x32x16_bf16 {d}, {a}, {b}, {d if c is None else c}")

def spread(items, nslots):
    out = [[] for _ in range(nslots)]
    n = len(items)
    for i, it in enumerate(items):
        out[min(nslots - 1, (i * nslots) // n)].append(it)
    return out

def frag_list(ffn):
    fr = [("Q", p) for p in range(8)]
    if ffn:
        for p in range(4): fr += [("G", p), ("U", p)]
    return fr

def wread(fr, k, sec, buf):
    c, p = fr
    if c == "Q": ad, off = vWqr + p, sec * 1024
    else: ad, off = vW13r + p, (2048 if c == "G" else 3072) + sec * 512
    return f"ds_read_b64_tr_b16 {ar(aWf+buf*4+2*sec,2)}, v{ad} offset:{off + k*16384}"

def xread(s, st, rt):
    return f"ds_read_b128 {ar(aXf+st*16+rt*4,4)}, v{vXr+s} offset:{rt*2048}"

def dma_w(ffn, force=False):
    it = [f"s_max_u32 m0, s{sM0W}, s{sTail}",
          f"buffer_load_dwordx4 v{vWqd}, s[{sWq}:{sWq+3}], s{sWqo} offen lds ; @put W",
          f"buffer_load_dwordx4 v{vWqd+1}, s[{sWq}:{sWq+3}], s{sWqo} offen offset:1024 lds ; @put W"]
    if ffn or force:
        it += [f"buffer_load_dwordx4 v{vW13d}, s[{sW1}:{sW1+3}], s{sW13o} offen offset:2048 lds ; @put W",
               f"buffer_load_dwordx4 v{vW13d}, s[{sW3}:{sW3+3}], s{sW13o} offen offset:3072 lds ; @put W"]
    it += [f"s_add_u32 s{sWqo}, s{sWqo}, {32*8192}"]
    if ffn or force: it += [f"s_add_u32 s{sW13o}, s{sW13o}, {32*3456}"]
    it += [f"s_add_u32 s{sSlot}, s{sSlot}, 16384\ns_and_b32 s{sSlot}, s{sSlot}, 0xffff",
           f"s_add_u32 s{sM0W}, s{sSlot}, s{sC0}"]
    return it

def dma_x(half):
    if half == 0: it = [f"s_mov_b32 m0, s{sM0X}"]
    else: it = [f"s_add_u32 m0, s{sM0X}, s{sM0d}"]
    sd = sX if half == 0 else sX2
    for j in range(4):
        it.append(f"buffer_load_dwordx4 v{vXd+4*half+j}, s[{sd}:{sd+3}], s{sXo} offen offset:{j*1024} lds")
    if half: it += [f"s_add_u32 s{sXo}, s{sXo}, s{sXst}\ns_xor_b32 s{sM0X}, s{sM0X}, s{sM0t}"]
    return it

def fine(A):
    A("s_memtime s[98:99]"); A("s_waitcnt lgkmcnt(0)")
    A("s_mov_b32 m0, s7")
    A(f"v_writelane_b32 v{vFin}, s96, m0")
    A(f"v_writelane_b32 v{vFin+1}, s100, m0")
    A(f"v_writelane_b32 v{vFin-1}, s98, m0")
    A("s_add_u32 s7, s7, 1")

def kstep(A, lq, ffn, k, slots, sal, tog, bar, last=None):
    fr = frag_list(ffn); nf = len(fr)
    ones = {("Q", 0): 0, ("Q", 1): 1, ("G", 0): 2, ("U", 0): 3}
    for f in range(nf):
        c, p = fr[f]
        lq.wait(A, [("w", f)] + ([("x", k)] if f == 0 else []))
        buf = f % 4
        for rt in range(4):
            r_ = rt if f % 2 == 0 else 3 - rt
            if c == "Q": d = vr(vAcc + (p * 4 + r_) * 4, 4)
            else: d = ar((aG if c == "G" else aUp) + (p * 4 + r_) * 4, 4)
            mf16(A, d, ar(aWf + buf * 4, 4), ar(aXf + k * 16 + r_ * 4, 4))
            if f + 3 < nf and rt < 2:
                A(wread(fr[f + 3], k, rt, (f + 3) % 4)); lq.issue(("w", f + 3))
            if last is not None and f >= nf - 2:
                for it in last[4 * (f - nf + 2) + rt]: A(it)
            elif f == nf - 2:
                A(wread(fr[rt // 2], 1 - k, rt % 2, (rt // 2) % 4)); lq.issue(("w", rt // 2))
            elif f == nf - 1 and rt < 2:
                A(wread(fr[2], 1 - k, rt, 2)); lq.issue(("w", 2))
            if rt == 1:
                for it in sal.get(f, []): A(it)
            if rt >= 2 and f < nf - 2:
                for it in slots[2 * f + rt - 2]:
                    if isinstance(it, tuple):
                        A(xread(1 - k, 1 - k, it[1])); lq.issue(("x", 1 - k))
                    else:
                        if "lds" in it and " m0," in A.lines[-1]: A("s_nop 0")
                        A(it)
                        if it.startswith("ds_"): lq.issue(("o", 0))
            if rt == 3:
                for t in tog.get(f, []): A(t)
        if fr[f] in ones:
            mf16(A, ar(aCs + ones[fr[f]] * 4, 4), ar(aWf + buf * 4, 4), ar(aOne, 4))
        if f == nf - 3:
            A(f"s_waitcnt vmcnt({bar[0]}) lgkmcnt(0)")
            lq.clear()
            A(f"s_barrier ; {bar[1]}")

def poll_check(A, L):
    A(f"s_mov_b32 s{sT1}, 0")
    A(f"{L}_chk:")
    A(f"v_cmp_ne_u32 vcc, 0x01010101, v{vTm}")
    A(f"v_cmp_eq_u32 s[6:7], 0, v{vTm+5}")
    A("s_nop 3")
    A(f"s_or_b64 s[6:7], s[6:7], vcc")
    A(f"s_cbranch_scc0 {L}_rdy ; pollbr")
    A(f"s_add_u32 s{sT1}, s{sT1}, 1")
    A(f"s_cmp_ge_u32 s{sT1}, 0x40000")
    A(f"s_cbranch_scc1 {L}_rdy")
    for it in poll_loads(): A(it)
    A("s_waitcnt vmcnt(0)")
    A(f"s_branch {L}_chk")
    A(f"{L}_rdy:")
def poll_loads():
    return [f"global_load_dword v{vTm}, v{vTm+2}, s[{pDbg}:{pDbg+1}] sc1",
            f"global_load_dwordx2 {vr(vTm+4,2)}, v{vTm+6}, s[{pDbg}:{pDbg+1}] offset:128 sc1"]
def stats_scale():
    o = []
    for rt in range(4):
        q = vSt + 4 * rt
        o += [f"v_mul_f32 v{q+3}, {hex(f2u(LOG2E/128**0.5))}, v{q+1}", f"v_mul_f32 v{q+1}, {hex(f2u(-LOG2E))}, v{q+1}"]
    return o + [f"v_mov_b32 v{vTm+4+i}, 0" for i in range(4)]
CSB = [14, 18, 22]
def qp_code():
    if PMAP == 0x3210: return f"s_and_b32 s{qP}, s2, 3"
    return f"s_and_b32 s6, s2, 3\ns_lshl_b32 s6, s6, 2\ns_lshr_b32 s6, {PMAP}, s6\ns_and_b32 s{qP}, s6, 3"
def cs_writes():
    t = vTm
    return [f"ds_write_b128 v{t+8}, {ar(aCs,4)}", f"ds_write_b128 v{t+8}, {ar(aCs+4,4)} offset:64",
            f"ds_write_b128 v{t+9}, {ar(aCs+8,4)}", f"ds_write_b128 v{t+9}, {ar(aCs+12,4)} offset:256"]

def gemm_loop(A, ffn, L):
    fr = frag_list(ffn); nf = len(fr)
    nw = 4 if ffn else 2
    lq = LQ()
    for f in range(3):
        lq.issue(("w", f)); lq.issue(("w", f))
    tg = lambda r, m: [f"v_xor_b32 v{r}, {m}, v{r}"]
    bar = (2 * nw + 8, f"@need W {2*nw}")
    A(".p2align 6")
    A(f"{L}:")
    if not ffn:
        items = [("x", rt) for rt in range(4)] + dma_x(1) + dma_w(ffn)
        kstep(A, lq, ffn, 0, spread(items, 2 * (nf - 2)), {}, {2: tg(vXr, "0x18000")}, bar)
        A(f"s_bitcmp1_b32 s{sMask}, s{sD}")
        A(f"s_cbranch_scc1 {L}_ev")
        A(f"{L}_evret:")
        slots = spread(dma_x(0) + dma_w(ffn) + [f"s_add_u32 s{sD}, s{sD}, 1"], 2 * (nf - 5))
        slots += [[f"s_cmp_eq_u32 s{sD}, 10\ns_cbranch_scc1 {L}_nw\ns_waitcnt vmcnt({2*nw+4})\n{L}_nw:"],
                  [("x", 0)], [("x", 1)], [("x", 2)], [("x", 3)], []]
        tog = {0: tg(vXr + 1, "0x18000")}
        for f, (c, p) in enumerate(fr): tog.setdefault(max(f - 3, -1) + 1, []).extend(tg(vWqr + p, "0x38000"))
        kstep(A, lq, ffn, 1, slots, {}, tog, bar)
        A(f"s_cmp_lt_u32 s{sD}, 10")
        A(f"s_cbranch_scc1 {L}")
        return
    def one(items):
        sl = [[] for _ in range(2 * (nf - 2))]
        for i, it in enumerate(items): sl[2 * i] = [it] if it else []
        return sl
    X = [("x", rt) for rt in range(4)]
    tog0 = {2: tg(vXr, "0x18000")}
    tog1 = {i: tg(vWqr + i, "0x38000") for i in range(7)}
    tog1.update({8: tg(vWqr + 7, "0x38000"), 9: tg(vW13r, "0x38000"), 10: tg(vW13r + 1, "0x38000"), 11: tg(vW13r + 2, "0x38000"),
                 12: tg(vW13r + 3, "0x38000"), 14: tg(vXr + 1, "0x18000")})
    xs, ws_ = dma_x(1), dma_w(True)
    kstep(A, lq, True, 0, one(X[:2] + xs[1:5] + X[2:] + ws_[1:5]),
          {1: [xs[0]], 6: [xs[5]], 7: [ws_[0]], 12: ws_[5:7], 13: ws_[7:], 15: [f"s_cmp_eq_u32 s{sD}, 8"]}, tog0, bar)
    A(f"s_cbranch_scc1 {L}_end")
    q_mid = list(lq.q)
    xs = dma_x(0)
    sl = one(xs[1:5] + ws_[1:5] + X)
    sl[2 * 7 + 1] = [f"s_waitcnt vmcnt({2*nw+4})"]
    kstep(A, lq, True, 1, sl, {0: [xs[0]], 4: [ws_[0]], 8: ws_[5:7], 9: ws_[7:8], 10: ws_[8:], 11: [f"s_add_u32 s{sD}, s{sD}, 1"]}, tog1, bar)
    A(f"s_branch {L}")
    A(f"{L}_end:")
    lq.q = q_mid
    kv = kv_dma()
    sl = one(poll_loads() + [None, None] + kv[1:5] + X)
    sl[2 * 7 + 1] = ["s_waitcnt vmcnt(10)"]
    for j in range(5): sl[2 * j + 1] = []
    tA = {f: list(v) for f, v in tog1.items()}
    mv = {f: [f"v_mov_b32 v{vKd+f}, v{vQ+f}"] for f in range(5)}
    kstep(A, lq, True, 1, sl, {**mv, 3: mv[3] + [f"s_lshl_b32 s{sKVm}, s{sWave}, 12", kv[0]]}, tA, (14, "@need W 4"))
    B_ = Asm(); B_("s_waitcnt vmcnt(4)"); poll_check(B_, L)
    st = [f"buffer_load_dwordx4 {vr(vSt+4*rt,4)}, v{vTm+3}, s[{sSt}:{sSt+3}], s{sT0} offen offset:{rt*256} sc1" for rt in range(4)]
    sl = one(X[:2] + st + X[2:] + kv[6:10])
    sl[1] = ["\n".join(B_.lines)]
    kstep(A, lq, True, 0, sl, {0: [f"s_lshl2_add_u32 s{sT0}, s{sRb}, s{sWave}\ns_lshl_b32 s{sT0}, s{sT0}, 10"], 7: [kv[5]],
                               2: [f"v_readfirstlane_b32 s{sNo}, v{vTm+4} ; tag"], 3: [f"v_readfirstlane_b32 s{sNo+1}, v{vTm+5} ; tag"],
                               4: [f"s_add_u32 s{pFl}, s{pWs}, {FL_OFF}\ns_addc_u32 s{pFl+1}, s{pWs+1}, 0"],
                               12: [f"s_add_u32 s{sKVo}, s{sKVo}, 16384\ns_add_u32 s{sKVm}, s{sKVm}, 32768"]}, {}, (14, "@need W 0"))
    cw = cs_writes()
    sl = one([None] + kv[1:3] + cw[:2] + kv[3:5] + [None] * 3 + [None] + cw[2:])
    ss = stats_scale()
    t = vTm
    last = [[f"ds_read_b128 {vr(CSB[0],4)}, v{t+8}", f"v_xor_b32 v{t+11}, 64, v{t+8}"], ss[0:2], [f"ds_read_b128 {vr(CSB[1],4)}, v{t+11}", ss[2]],
            ss[3:5], ss[5:7], ss[7:9], ss[9:11], ss[11:12] + [qp_code()]]
    kstep(A, lq, True, 1, sl, {0: [kv[0]]}, {}, (8, "@need KV 8"), last=last)

def kv_dma_voff(A, kd_, vd_, nv=4):
    t = vTm
    A(f"v_lshrrev_b32 v{t+12}, 4, v{vLane}")
    A(f"v_and_b32 v{t+14}, 15, v{vLane}")
    A(f"v_xor_b32 v{t+13}, v{t+14}, v{t+12}")
    A(f"v_lshlrev_b32 v{t+13}, 4, v{t+13}")
    A(f"v_lshl_add_u32 v{kd_}, v{t+12}, 8, v{t+13}")
    for j in range(1, 4): A(f"v_xor_b32 v{kd_+j}, {64*j}, v{kd_}")
    A(f"v_lshlrev_b32 v{t+13}, 2, v{t+12}")
    A(f"v_xor_b32 v{t+13}, v{t+13}, v{t+14}")
    A(f"v_lshlrev_b32 v{t+13}, 4, v{t+13}")
    A(f"v_lshl_add_u32 v{vd_}, v{t+12}, 8, v{t+13}")
    for j in range(1, nv): A(f"v_mov_b32 v{vd_+j}, v{vd_}")

def gemm_events(A, L):
    A(f"{L}_ev:")
    A(f"s_cmp_eq_u32 s{sD}, 8")
    A(f"s_cbranch_scc1 {L}_ev8")
    for it in poll_loads(): A(it)
    A(f"s_branch {L}_evret")
    A(f"{L}_ev8:")
    A(f"s_mov_b32 s{sTail}, {TAILBIT}")
    for d in (sWq, sW1, sW3): A(f"s_mov_b32 s{d+2}, 0")
    for d, s_ in ((sX, sK), (sX2, sV)):
        A(f"s_mov_b64 s[{d}:{d+1}], s[{s_}:{s_+1}]")
        A(f"s_mov_b64 s[{d+2}:{d+3}], s[{s_+2}:{s_+3}]")
    for j in range(8): A(f"v_mov_b32 v{vXd+j}, v{vQ+min(j,4)}")
    A(f"s_lshl_b32 s{sM0X}, s{sWave}, 12")
    A(f"s_mov_b32 s{sXo}, s{sKVo}")
    A(f"s_movk_i32 s{sM0d}, 16384")
    A(f"s_movk_i32 s{sXst}, 16384")
    A(f"s_mov_b32 s{sM0t}, 0x8000")
    A(f"s_waitcnt vmcnt(12)")
    poll_check(A, L)
    A(f"v_readfirstlane_b32 s{sNo}, v{vTm+4} ; tag")
    A(f"v_readfirstlane_b32 s{sNo+1}, v{vTm+5} ; tag")
    A(f"s_add_u32 s{pFl}, s{pWs}, {FL_OFF}")
    A(f"s_addc_u32 s{pFl+1}, s{pWs+1}, 0")
    A(f"s_lshl2_add_u32 s{sT0}, s{sRb}, s{sWave}")
    A(f"s_lshl_b32 s{sT0}, s{sT0}, 10")
    for rt in range(4):
        A(f"buffer_load_dwordx4 {vr(vSt+4*rt,4)}, v{vTm+3}, s[{sSt}:{sSt+3}], s{sT0} offen offset:{rt*256} sc1")
    A(f"s_branch {L}_evret")

def kv_addr(A, base_expr_sgpr, only=None):
    vKr, vVr = only or (globals()["vKr"], globals()["vVr"])
    t0, t1, t2, t3 = vTm + 12, vTm + 13, vTm + 14, vTm + 15
    A(f"v_and_b32 v{t0}, 31, v{vLane}")
    A(f"v_lshrrev_b32 v{t1}, 5, v{vLane}")
    A(f"v_and_b32 v{t2}, 15, v{vLane}")
    A(f"v_xor_b32 v{t2}, v{t2}, v{t1}")
    A(f"s_lshl_b32 s{sT0}, s{sWave}, 2")
    A(f"v_xor_b32 v{t2}, s{sT0}, v{t2}")
    A(f"v_lshlrev_b32 v{t2}, 4, v{t2}")
    A(f"v_lshl_add_u32 v{t2}, v{t0}, 8, v{t2}")
    A(f"v_add_u32 v{vKr}, s{base_expr_sgpr}, v{t2}")
    for p in range(1, 1 if only else 8): A(f"v_xor_b32 v{vKr+p}, {32*p}, v{vKr}")
    A(f"v_bfe_u32 v{t0}, v{vLane}, 2, 2")
    A(f"v_lshl_add_u32 v{t2}, v{t1}, 2, v{t0}")
    A(f"v_lshlrev_b32 v{t2}, 8, v{t2}")
    A(f"v_lshl_add_u32 v{t2}, v{t0}, 6, v{t2}")
    A(f"v_bfe_u32 v{t3}, v{vLane}, 1, 1")
    A(f"v_lshl_add_u32 v{t2}, v{t3}, 5, v{t2}")
    A(f"v_bfe_u32 v{t3}, v{vLane}, 4, 1")
    A(f"v_lshl_add_u32 v{t2}, v{t3}, 4, v{t2}")
    A(f"v_and_b32 v{t3}, 1, v{vLane}")
    A(f"v_lshl_add_u32 v{t2}, v{t3}, 3, v{t2}")
    A(f"s_add_u32 s{sT0}, s{base_expr_sgpr}, 16384")
    A(f"v_add_u32 v{vVr}, s{sT0}, v{t2}")
    for dt in range(1, 1 if only else 4): A(f"v_xor_b32 v{vVr+dt}, {64*dt}, v{vVr}")

def kv_dma():
    it = [f"s_mov_b32 m0, s{sKVm}"]
    for j in range(4):
        it.append(f"buffer_load_dwordx4 v{vKd+j}, s[{sK}:{sK+3}], s{sKVo} offen offset:{j*1024} lds")
    it.append("s_add_u32 m0, m0, 16384")
    for j in range(4):
        it.append(f"buffer_load_dwordx4 v{vVd}, s[{sV}:{sV+3}], s{sKVo} offen offset:{j*1024} lds")
    return it

def kread(p, tile, buf):
    return f"ds_read_b128 {vr(vF+buf*4,4)}, v{vKr+p} offset:{tile*8192}"
def vread(ks, dt, tile, sec, buf):
    return f"ds_read_b64_tr_b16 {vr(vF+buf*4+2*sec,2)}, v{vVr+dt} offset:{(32*tile+16*ks+8*sec)*256}"

def sm_reg(buf, e):
    qt = (e >> 3) & 1; ks = e >> 4
    return vS + (buf * 2 + qt) * 16 + ks * 8 + (e & 7), qt, ks
def sm_exp(buf, e):
    r, _, _ = sm_reg(buf, e)
    if "noexp" in XP: return []
    if "movexp" in XP: return [f"v_mov_b32 v{r}, v{r}"]
    return [f"v_exp_f32 v{r}, v{r}"]
def sm_post(buf, e):
    r, qt, ks = sm_reg(buf, e)
    o = [f"v_add_f32 v{vL+qt}, v{vL+qt}, v{r}"]
    if "noadd" in XP: o = []
    if e & 1 and "nocvt" not in XP: o.append(f"v_cvt_pk_bf16_f32 v{vP+(qt*2+ks)*4+((e&7)>>1)}, v{r-1}, v{r}")
    return o

def attn_seg(A, lq, seg, extra, mfma=True, sm_lo=0, sm_hi=64, look=True):
    def rd(phi, part):
        s = (phi // 8) % 4; i = phi % 8; buf = phi % 4
        if s in (0, 2):
            return kread(i, 1 if s == 0 else 0, buf) if part == 0 else None
        return vread(i // 4, i % 4, 0 if s == 1 else 1, part, buf)
    for i in range(8):
        phi = seg * 8 + i
        if mfma and "nowait" not in XP: lq.wait(A, [("f", phi)])
        for qt in range(2):
            slot = seg * 16 + 2 * i + qt
            if mfma:
                if seg in (0, 2):
                    sb = 1 if seg == 0 else 0
                    d = vr(vS + (sb * 2 + qt) * 16, 16)
                    mf32(A, d, vr(vF + (phi % 4) * 4, 4), vr(vQ + (qt * 8 + i) * 4, 4), "0" if i == 0 else None)
                else:
                    ks, dt = i // 4, i % 4
                    mf32(A, ar(aO + (qt * 4 + dt) * 16, 16), vr(vF + (phi % 4) * 4, 4), vr(vP + (qt * 2 + ks) * 4, 4))
            for it in extra.get((slot, "pre"), []): A(it)
            nphi = (phi + 3) % 32
            nseg = nphi // 8
            if look is True or nseg in look:
                r = rd(nphi, qt)
                if r and "noread" not in XP: A(r); lq.issue(("f", nphi))
            for it in extra.get((slot, "ds"), []):
                A(it); lq.issue(("side", 0))
            for it in extra.get(slot, []):
                if it.startswith("v_"): continue
                if "lds" in it and " m0," in A.lines[-1]: A("s_nop 0")
                A(it)
            for (buf, start) in ((1, 22), (0, 54)):
                e = (slot - start) % 64
                if e < 32 and (buf, "exp") in sm_ok(slot, sm_lo, sm_hi, buf, e):
                    for x in sm_exp(buf, e): A(x)
            for (buf, start) in ((1, 22), (0, 54)):
                e = (slot - start - 1) % 64
                if e < 32 and (buf, "exp") in sm_ok((slot - 1) % 64, sm_lo, sm_hi, buf, e):
                    for x in sm_post(buf, e): A(x)
            for it in extra.get(slot, []):
                if it.startswith("v_"): A(it)
            for it in extra.get((slot, "post"), []): A(it)
def sm_ok(slot, lo, hi, buf, e):
    return {(buf, "exp")} if (lo <= slot < hi) else set()

def wp_src_voff(A, d, n=8):
    t = vTm
    A(f"v_lshrrev_b32 v{t+12}, 4, v{vLane}")
    A(f"v_lshlrev_b32 v{t+12}, 1, v{t+12}")
    A(f"v_and_b32 v{t+13}, 7, v{vLane}")
    A(f"v_xor_b32 v{t+12}, v{t+12}, v{t+13}")
    A(f"v_lshlrev_b32 v{t+12}, 4, v{t+12}")
    A(f"v_lshrrev_b32 v{t+13}, 3, v{vLane}")
    A(f"v_mul_u32_u24 v{t+13}, 1280, v{t+13}")
    A(f"v_add_u32 v{d}, v{t+12}, v{t+13}")
    for j in range(1, n): A(f"v_add_u32 v{d+j}, {(j%4)*9216 + (j//4)*128}, v{d}")

def wp_addr(A, sh, note="", reg=R3, n=4, dst=None):
    t = vTm
    A(f"v_bfe_u32 v{t+14}, v{vLane}, 2, 2")
    A(f"v_bfe_u32 v{t+16}, v{vLane}, 4, 1")
    A(f"v_lshl_add_u32 v{t+14}, v{t+16}, 2, v{t+14}")
    A(f"v_lshrrev_b32 v{t+13}, 1, v{t+14}")
    A(f"v_lshlrev_b32 v{t+13}, 5, v{t+13}")
    A(f"v_lshl_add_u32 v{t+13}, v{t+14}, 7, v{t+13}")
    A(f"v_lshrrev_b32 v{t+15}, 5, v{vLane}")
    A(f"v_lshl_add_u32 v{t+13}, v{t+15}, 10, v{t+13}")
    A(f"v_and_b32 v{t+15}, 3, v{vLane}")
    A(f"v_lshl_add_u32 v{t+13}, v{t+15}, 3, v{t+13}")
    A(f"s_lshl_b32 s6, s{sWave}, {sh}")
    A(f"s_add_u32 s6, s6, {reg}")
    A(f"v_add_u32 v{dst or t+4}, s6, v{t+13}{note}")
    for i4 in range(1, n): A(f"v_xor_b32 v{t+4+i4}, {32*i4}, v{t+4}")
def wp_reads(A, stride):
    for su in range(2):
        for i4 in range(4):
            for sec in range(2):
                A(f"ds_read_b64_tr_b16 {ar(aWq+(su*4+i4)*4+2*sec,2)}, v{vTm+4+i4} offset:{su*stride+sec*2048}")
def wp_stores(A, so):
    for su in range(2):
        for i4 in range(4):
            A(f"buffer_store_dwordx4 {ar(aWq+(su*4+i4)*4,4)}, v{vL16}, s[{sWp}:{sWp+3}], s{so} offen offset:{i4*1024} sc1")
        if su == 0: A(f"s_add_u32 s{so}, s{so}, 4096")

def set_flag(A, phase, lab, cls="H"):
    A(f"s_cmp_lg_u32 s{sWave}, 0")
    A(f"s_cbranch_scc1 {lab}")
    A(f"s_add_u32 s6, s{sNo}, {phase}")
    A(f"v_mov_b32 v{vFv}, s6")
    A(f"v_mov_b32 v{vFv+1}, s{sNo+1}")
    A("s_mov_b64 exec, 1")
    A(f"global_store_dwordx2 v{vFo}, {vr(vFv,2)}, s[{pFl}:{pFl+1}] sc1")
    A("s_mov_b64 exec, -1")
def flag_load(A, dst, ad):
    A(f"global_load_dwordx2 {vr(dst,2)}, v{ad}, s[{pFl}:{pFl+1}] sc1")
def flag_wait(A, lab, phase, polls):
    A(f"s_add_u32 s{sT0}, s{sNo}, {phase}")
    A(f"s_mov_b32 s{sT1}, 0")
    A(f"{lab}c:")
    for n, (d, ad) in enumerate(polls):
        A(f"v_subrev_u32 v{d}, s{sT0}, v{d}")
        A(f"v_cmp_ne_u32 s[{sE0+2*n}:{sE0+2*n+1}], s{sNo+1}, v{d+1}")
    for n, (d, ad) in enumerate(polls):
        A(f"v_cmp_lt_u32 " + ("vcc" if n == 0 else "s[6:7]") + f", {3-phase}, v{d}")
    A("s_nop 3")
    A(f"s_or_b64 s[{sE0}:{sE0+1}], s[{sE0}:{sE0+1}], vcc")
    if len(polls) > 1:
        A(f"s_or_b64 s[6:7], s[6:7], s[{sE0+2}:{sE0+3}]")
        A(f"s_or_b64 s[{sE0}:{sE0+1}], s[{sE0}:{sE0+1}], s[6:7]")
    A(f"s_cbranch_scc0 {lab}r ; pollbr")
    A(f"s_add_u32 s{sT1}, s{sT1}, 1")
    A(f"s_cmp_ge_u32 s{sT1}, 0x40000")
    A(f"s_cbranch_scc1 {lab}r")
    if SLP[0]: A(f"s_sleep {SLP[0]}")
    for d, ad in polls: flag_load(A, d, ad)
    A("s_waitcnt vmcnt(0)")
    A(f"s_branch {lab}c")
    A(f"{lab}r:")

def q_setup():
    w = sWave
    return [
     f"s_lshl_b32 s6, s{qP}, 3\ns_lshr_b32 s{qT0}, {hex(0x402b1600)}, s6\ns_and_b32 s{qT0}, s{qT0}, 0xff",
     f"s_lshr_b32 s{qT1}, {hex(0x5b402b16)}, s6\ns_and_b32 s{qT1}, s{qT1}, 0xff",
     f"s_and_b32 s{sT2}, s{w}, 1\ns_lshl_b32 s6, s{sT2}, 11\ns_lshl_b32 s{qAs}, s{qT0}, 13",
     f"s_add_u32 s{qAs}, s{qAs}, s6\ns_lshr_b32 s7, s{w}, 1\ns_lshl_b32 s6, s{qCb}, 1",
     f"s_add_u32 s6, s6, s7\ns_mul_i32 s6, s6, 5120\ns_mul_i32 s{qWs}, s{qT0}, 81920",
     f"s_add_u32 s{qWs}, s{qWs}, s6\ns_mul_i32 s6, s{sT2}, 40960\ns_add_u32 s{qWs}, s{qWs}, s6",
     f"s_lshl_b32 s{qAe}, s{qT1}, 13\ns_mul_i32 s{qWe}, s{qT1}, 81920\ns_mov_b32 s{qAo}, s{qAs}",
     f"s_mov_b32 s{qWo}, s{qWs}\ns_mul_i32 s{qWm}, s{sT2}, 10240\ns_mul_i32 s6, s7, 5120",
     f"s_add_u32 s{qWm}, s{qWm}, s6\ns_lshl_b32 s6, s{qRb}, 1\ns_add_u32 s6, s6, s7",
     f"s_mul_i32 s6, s6, {A_BLK}\ns_add_u32 s{qA}, s{pWs}, s6\ns_addc_u32 s{qA+1}, s{pWs+1}, 0",
     f"s_and_b32 s{qA+1}, s{qA+1}, 0xffff\ns_cmp_eq_u32 s{qP}, 3\ns_cselect_b32 s{qA+2}, s{qAe}, 0\ns_cselect_b32 s{qW+2}, s{qWe}, 0\ns_mov_b32 s{qA+3}, 0x20000",
     f"s_mov_b32 s{qW}, s{sWp}\ns_mov_b32 s{qW+1}, s{sWp+1}\ns_mov_b32 s{qW+3}, 0x20000",
     f"s_lshl2_add_u32 s6, s{qRb}, s{qP}\ns_lshl_b32 s6, s6, 1\ns_add_u32 s6, s6, s7\ns_mul_i32 s{qXo}, s6, 20480",
     f"s_lshl_b32 s6, s{qCb}, 1\ns_add_u32 s6, s6, s{sT2}\ns_mul_i32 s6, s6, 160\ns_add_u32 s{qXo}, s{qXo}, s6",
     f"s_xor_b32 s{qT0}, s{w}, s{qP}\ns_mul_i32 s{qT1}, s{w}, 3\ns_add_u32 s{qT1}, s{qT1}, s{qT0}\ns_sub_u32 s{qT1}, s{qT1}, 1",
     f"s_mul_i32 s{qT1}, s{qT1}, 10240\ns_cmp_eq_u32 s{qT0}, 0\ns_cselect_b32 s{qSo}, 0x100000, s{qT1}",
    ]

def q_loads(slot):
    it = [f"s_add_u32 m0, s{qWm}, {slot*20480}"]
    for j in range(4):
        it.append(f"buffer_load_dwordx4 v{vL16}, s[{qW}:{qW+3}], s{qWo} offen offset:{j*1024} sc1 lds ; @put W2")
    it.append(f"s_add_u32 m0, s{qWm}, {slot*20480+4096}")
    it.append(f"buffer_load_dwordx4 v{vL16+1}, s[{qW}:{qW+3}], s{qWo} offen sc1 lds ; @put W2")
    for k in range(2):
        for rt in range(2):
            it.append(f"buffer_load_dwordx4 {ar(aA2+(slot*4+k*2+rt)*4,4)}, v{vL16+k}, s[{qA}:{qA+3}], s{qAo} offen offset:{rt*1024} sc1")
    it.append(f"s_add_u32 s{qWo}, s{qWo}, 81920\ns_add_u32 s{qAo}, s{qAo}, 8192")
    return it

def gemm2(A, L, emit, stamp, cold):
    ac, vT, vX, vZ = 64, 144, 168, 180
    srd(A, qX, pX, pX + 1, X_SIZE)
    srd(A, qO, pOut, pOut + 1, X_SIZE)
    for i in range(4): A(f"v_mov_b32 v{vZ+i}, 0")
    A(f"v_and_b32 v{vT}, 15, v{vLane}")
    A(f"v_mul_u32_u24 v{vT}, 1280, v{vT}")
    A(f"v_lshrrev_b32 v{vT+1}, 4, v{vLane}")
    A(f"v_lshl_add_u32 v{vXo2}, v{vT+1}, 3, v{vT}")
    def zero():
        for i in range(5): mf32(A, vr(ac + 16 * i, 16), vr(vZ, 4), vr(vZ, 4), "0")
    zero()
    A(f"v_mov_b32 v{vWr2}, v{vL16}")
    A(f"v_add_u32 v{vWr2+1}, 40960, v{vL16}")
    A(f"v_lshlrev_b32 v{vL8}, 3, v{vLane}")
    A(f"v_add_u32 v{vOwn}, {RING2}, v{vL16}")
    A(f"s_mov_b32 s{qN}, 0")
    def wread2(slot, f, buf):
        k, ct = f // 10, f % 10
        return f"ds_read_b128 {ar(aW2+buf*4,4)}, v{vWr2+slot//2} offset:{(slot%2)*20480+k*10240+ct*1024}"
    def xload():
        for ct in range(5):
            A(f"buffer_load_dwordx2 {vr(vX+2*ct,2)}, v{vXo2}, s[{qX}:{qX+3}], s{qXo} offen offset:{ct*32}")
    A(f"s_cmp_eq_u32 s{qP}, 3")
    A(f"s_cselect_b32 s{qT0}, 18, 99")
    A(f"s_cselect_b32 s{qNl}, 24, 19")
    A(f"s_cbranch_scc1 {L}qh")
    flag_load(A, vPa, vAo)
    A("s_waitcnt vmcnt(0)")
    A("s_barrier")
    set_flag(A, 3, f"{L}f2")
    A(f"{L}f2:")
    A(f"s_mov_b32 s{qA+2}, s{qAe}")
    A(f"s_mov_b32 s{qW+2}, s{qWe}")
    A(f"s_mov_b32 s{qAo}, s{qAs}")
    A(f"s_mov_b32 s{qWo}, s{qWs}")
    flag_wait(A, f"{L}w2", 2, [(vPa, vAo)])
    flag_load(A, vPb, vAb)
    A(f"s_cmp_lg_u32 s{qP}, 0")
    A(f"s_cbranch_scc1 {L}qb")
    for s0 in (1, 2):
        if s0 == 2:
            A(f"{L}qb:")
            A(f"s_mov_b32 s{qNl}, 18")
        for s_ in range(s0, s0 + 3):
            emit(q_loads(s_ % 4)[:7])
            A(f"s_add_u32 s{qWo}, s{qWo}, 81920")
        xload()
        A("s_waitcnt vmcnt(20)")
        if True:
            A(f"s_cmp_lg_u32 s{sWave}, 0")
            A(f"s_cbranch_scc1 {L}w4{s0}r")
        flag_wait(A, f"{L}w4{s0}", 3, [(vPb, vAb)])
        if True: A("s_barrier")
        stamp(8)
        for s_ in range(s0, s0 + 3):
            emit(q_loads(s_ % 4)[7:11])
            A(f"s_add_u32 s{qAo}, s{qAo}, 8192")
        A("s_waitcnt vmcnt(4)")
        A("s_barrier ; @need W2 0")
        stamp(9)
        for f in range(3): A(wread2(s0, f, f))
        A(f"s_branch {L}q{s0}")
    A(f"{L}qh:")
    stamp(8)
    xload()
    A(f"s_waitcnt vmcnt(5)")
    A("s_barrier ; @need W2 0")
    set_flag(A, 3, f"{L}f3")
    A(f"{L}f3:")
    stamp(9)
    for f in range(3): A(wread2(0, f, f))
    lq = LQ()
    for f in range(3): lq.issue(f)
    if "q_oob" in XP:
        A(f"s_mov_b32 s{qA+2}, 0"); A(f"s_mov_b32 s{qW+2}, 0")
    A(".p2align 6")
    A(f"{L}q:")
    for slot in range(4):
        ns = (slot + 1) % 4
        if slot in (1, 2): A(f"{L}q{slot}:")
        slots = spread(q_loads((slot + 3) % 4), 16)
        if "q_noload" in XP: slots = [[] for _ in range(16)]
        if "q_noA" in XP: slots = [[x for x in sl if "a[" not in x] for sl in slots]
        if "q_noW" in XP: slots = [[x for x in sl if "lds" not in x] for sl in slots]
        for f in range(20):
            k, ct = f // 10, f % 10
            lq.wait(A, [f])
            for r in range(2):
                rt = r if f % 2 == 0 else 1 - r
                mf16(A, vr(ac + (rt * 10 + ct) * 4, 4), ar(aW2 + (f % 4) * 4, 4), ar(aA2 + (slot * 4 + k * 2 + rt) * 4, 4))
                if r == 0 and f + 3 < 20:
                    A(wread2(slot, f + 3, (f + 3) % 4)); lq.issue(f + 3)
                if f == 18:
                    A(wread2(ns, r, r)); lq.issue(r)
                if f == 19 and r == 0:
                    A(wread2(ns, 2, 2)); lq.issue(2)
                if r == 1 and f < 16: emit(slots[f])
            if f == 17:
                A("s_waitcnt vmcnt(18) lgkmcnt(0)")
                lq.clear()
                if "q_nobar" not in XP: A("s_barrier ; @need W2 10")
            if f == 19:
                A(f"s_add_u32 s{qN}, s{qN}, 1")
        if slot == 1:
            A(f"s_cmp_eq_u32 s{qT0}, s{qN}")
            A(f"s_cbranch_scc1 {L}qe1")
            A(f"{L}qr1:")
    A(f"s_cmp_lg_u32 s{qNl}, s{qN}")
    A(f"s_cbranch_scc1 {L}q")
    mkq = len(A.lines)
    A(f"{L}qe1:")
    flag_load(A, vPb, vAp)
    A(f"s_branch {L}qr1")
    cold(mkq, f"{L}c4", None)
    A(f"s_cmp_lg_u32 s{qP}, 3")
    A(f"s_cbranch_scc1 {L}qy")
    flag_wait(A, f"{L}w3", 3, [(vPb, vAp)])
    A(f"{L}qy:")
    def send(c, so):
        b = vT + (c // 2) * 12
        it = [f"v_cvt_pk_bf16_f32 v{b+i}, v{ac+c*20+2*i}, v{ac+c*20+2*i+1}" for i in range(10)]
        it += [f"v_min_u32 v{b+i}, -2, v{b+i}" for i in range(10)]
        return it + [f"buffer_store_dwordx4 {vr(b,4)}, v{vL16}, s[{qI}:{qI+3}], s{so} offen sc1",
                     f"buffer_store_dwordx4 {vr(b+4,4)}, v{vL16}, s[{qI}:{qI+3}], s{so} offen offset:1024 sc1",
                     f"buffer_store_dwordx2 {vr(b+8,2)}, v{vL8}, s[{qI}:{qI+3}], s{so} offen offset:2048 sc1"]
    order_ = [(sl, k * 10 + h * 5 + i) for h in range(2) for sl in range(3) for k in range(2) for i in range(5)]
    fill = spread(send(0, qSo) + send(2, sT0), 30)
    nq = len(order_)
    held = []
    for n, (sl, f) in enumerate(order_):
        k, ct = f // 10, f % 10
        lq.wait(A, [n])
        for r in range(2):
            rt = r if n % 2 == 0 else 1 - r
            mf16(A, vr(ac + (rt * 10 + ct) * 4, 4), ar(aW2 + (n % 4) * 4, 4), ar(aA2 + (sl * 4 + k * 2 + rt) * 4, 4))
            if n in (7, 17) and r == 0: held.append(n + 3)
            elif r == 0 and n + 3 < nq:
                if held:
                    m = held.pop(); A(wread2(*order_[m], m % 4)); lq.issue(m); held.append(-(n + 3))
                else:
                    A(wread2(*order_[n + 3], (n + 3) % 4)); lq.issue(n + 3)
            elif r == 1 and held and held[0] < 0:
                m = -held.pop(); A(wread2(*order_[m], m % 4)); lq.issue(m)
            if n == 0 and r == 1: A(f"s_add_u32 s{sT0}, s{qSo}, 5120\ns_add_u32 s{sT1}, s{qSo}, 2560\ns_add_u32 s{sT2}, s{qSo}, 7680")
            g_ = 2 * n + r - 63
            if 0 <= g_ < 30:
                for it in fill[g_]: A(it)
        if n in (7, 17):
            A(f"s_waitcnt vmcnt({9 if n == 7 else 0})")
            A(f"s_barrier")
    stamp(10)
    A("s_nop 1")
    for it in send(1, sT1) + send(3, sT2): A(it)
    A(f"s_cmp_lg_u32 s{sWave}, s{qP}")
    A(f"s_cbranch_scc1 {L}no1")
    for i in range(20): A(f"ds_write_b128 v{vOwn}, {vr(ac+4*i,4)} offset:{i*1024}")
    A("s_waitcnt lgkmcnt(0)")
    A(f"{L}no1:")
    S, U, IN, XR, E, T = 64, 84, 104, 184, 204, 224
    A(f"s_mul_i32 s{sT0}, s{sWave}, 5120")
    A(f"v_add_u32 v{vOwn}, s{sT0}, v{vOwn}")
    A(f"s_mul_i32 s{sT0}, s{qP}, 30720")
    A(f"s_mul_i32 s{sT1}, s{sWave}, 2560")
    A(f"s_add_u32 s{sT0}, s{sT0}, s{sT1}")
    A(f"s_lshl_b32 s6, s{qP}, 3")
    A(f"s_lshr_b32 s6, {hex(0x24094218 >> 0 if False else (0x24 | 0x18 << 8 | 0x09 << 16 | 0x24 << 24))}, s6")
    for i in range(3):
        A(f"s_bfe_u32 s7, s6, {hex(0x20000 | 2*i)}")
        A(f"s_mul_i32 s7, s7, 10240")
        A(f"s_add_u32 s{qIn+i}, s{sT0}, s7")
    def inload(sl):
        b = IN + sl * 10
        A(f"buffer_load_dwordx4 {vr(b,4)}, v{vL16}, s[{qI}:{qI+3}], s{qIn+sl} offen sc1")
        A(f"buffer_load_dwordx4 {vr(b+4,4)}, v{vL16}, s[{qI}:{qI+3}], s{qIn+sl} offen offset:1024 sc1")
        A(f"buffer_load_dwordx2 {vr(b+8,2)}, v{vL8}, s[{qI}:{qI+3}], s{qIn+sl} offen offset:2048 sc1")
    A("s_barrier")
    stamp(11)
    if SLP[2] == 1: A("s_waitcnt vmcnt(0)")
    if SLP[2] > 1: A(f"s_sleep {SLP[2]}")
    for sl in range(3): inload(sl)
    for i in range(5): A(f"ds_read_b128 {vr(S+4*i,4)}, v{vOwn} offset:{i*1024}")
    for i in range(10):
        A(f"v_lshlrev_b32 v{XR+2*i}, 16, v{vX+i}")
        A(f"v_and_b32 v{XR+2*i+1}, 0xffff0000, v{vX+i}")
    def unpack(sl, dst):
        for i in range(10):
            A(f"v_lshlrev_b32 v{dst+2*i}, 16, v{IN+sl*10+i}")
            A(f"v_and_b32 v{dst+2*i+1}, 0xffff0000, v{IN+sl*10+i}")
    def addin(sl, dst):
        unpack(sl, T)
        for i in range(10): A(f"v_pk_add_f32 {vr(dst+2*i,2)}, {vr(dst+2*i,2)}, {vr(T+2*i,2)}")
    def gate(src):
        for i in range(20): A(f"v_mul_f32 v{E+i}, s{sT0}, v{src+i}")
        for i in range(20): A(f"v_exp_f32 v{E+i}, v{E+i}")
        for i in range(20): A(f"v_add_f32 v{E+i}, 1.0, v{E+i}")
        for i in range(20): A(f"v_rcp_f32 v{E+i}, v{E+i}")
        A("s_nop 0")
        for i in range(10): A(f"v_pk_mul_f32 {vr(U+2*i,2)}, {vr(src+2*i,2)}, {vr(E+2*i,2)}")
    A(f"s_mov_b32 s{sT0}, {hex(f2u(-LOG2E))}")
    A(f"s_mov_b32 s{sT1}, 0")
    A(f"s_mov_b32 s{sT2}, 7")
    A(f"s_cmp_lg_u32 s{qP}, 3")
    A("s_waitcnt lgkmcnt(0)")
    A(f"s_cbranch_scc1 {L}sc")
    gate(S)
    A(f"{L}sc:")
    A("s_waitcnt vmcnt(0)")
    for sl in (2, 0, 1):
        b = IN + 10 * sl
        A(f"s_bitcmp1_b32 s{sT2}, {sl}")
        A(f"s_cbranch_scc0 {L}sn{sl}")
        A(f"v_max3_u32 v154, v{b}, v{b+1}, v{b+2}")
        A(f"v_max3_u32 v155, v{b+3}, v{b+4}, v{b+5}")
        A(f"v_max3_u32 v154, v154, v{b+6}, v{b+7}")
        A(f"v_max3_u32 v155, v155, v{b+8}, v{b+9}")
        A(f"v_max_u32 v154, v154, v155")
        A(f"v_cmp_eq_u32 vcc, -1, v154")
        A(f"s_cmp_ge_u32 s{sT1}, 0x40000")
        A(f"s_cbranch_scc1 {L}sy{sl}")
        A("s_nop 1")
        A(f"s_cbranch_vccnz {L}sm{sl} ; missbr")
        A(f"{L}sy{sl}:")
        A(f"s_bitset0_b32 s{sT2}, {sl}")
        if sl == 2:
            A(f"s_cmp_eq_u32 s{qP}, 3")
            A(f"s_cbranch_scc1 {L}s3")
            unpack(2, U)
            gate(U)
            A(f"s_branch {L}sn{sl}")
            A(f"{L}s3:")
        unpack(sl, (134, 224, S)[sl])
        A(f"s_branch {L}sn{sl}")
        A(f"{L}sm{sl}:")
        inload(sl)
        A(f"{L}sn{sl}:")
    A(f"s_add_u32 s{sT1}, s{sT1}, 1")
    A(f"s_cmp_lg_u32 s{sT2}, 0")
    A(f"s_cbranch_scc1 {L}sc")
    stamp(12)
    for b in (134, 224):
        for i in range(10): A(f"v_pk_add_f32 {vr(S+2*i,2)}, {vr(S+2*i,2)}, {vr(b+2*i,2)}")
    for i in range(10): A(f"v_pk_fma_f32 {vr(XR+2*i,2)}, {vr(S+2*i,2)}, {vr(U+2*i,2)}, {vr(XR+2*i,2)}")
    for i in range(10): A(f"v_cvt_pk_bf16_f32 v{vX+i}, v{XR+2*i}, v{XR+2*i+1}")
    for ct in range(5):
        A(f"buffer_store_dwordx2 {vr(vX+2*ct,2)}, v{vXo2}, s[{qO}:{qO+3}], s{qXo} offen offset:{ct*32}" + (" sc1" if "outsc1" in OPT else ""))
    stamp(13)

def gen_p1(A, name, stamps=False, code_bytes=32768, pf_rounds=2):
    head(A, name)
    L = "p1_"
    A("s_cmp_ge_u32 s2, 256")
    A(f"s_cbranch_scc1 {L}end")
    A("s_load_dwordx16 s[64:79], s[0:1], 0")
    A("s_load_dwordx8 s[80:87], s[0:1], 64")
    A(f"s_memrealtime s[{sNo}:{sNo+1}]")
    if stamps: A("s_memtime s[94:95]")
    def stamp(i, att=False):
        if not stamps: return
        if "attst" in OPT:
            if i >= 5 and not att: return
        elif att: return
        A(f"s_memtime s[96:97]")
        A(f"s_memrealtime s[98:99]")
        A("s_waitcnt lgkmcnt(0)")
        A(f"v_mov_b32 v{vTm+18}, s96"); A(f"v_mov_b32 v{vTm+19}, s98")
        A(f"s_lshl_b32 s96, s2, 2"); A(f"s_add_u32 s96, s96, s{sWave}"); A("s_lshl_b32 s96, s96, 7")
        A(f"v_mov_b32 v{vZero}, s96")
        if i == 0: A(f"v_mov_b32 v{vTm+16}, s94")
        A(f"s_add_u32 s96, s{pWs}, 0x3100000"); A(f"s_addc_u32 s97, s{pWs+1}, 0")
        A(f"global_store_dwordx2 v{vZero}, {vr(vTm+18,2)}, s[96:97] offset:{i*8}")
        if i == 0: A(f"global_store_dword v{vZero}, v{vTm+16}, s[96:97] offset:120")
    t = vTm
    COLD = []
    def cold(mark, lab, back):
        blk = A.lines[mark:]; del A.lines[mark:]
        COLD.extend([f"{lab}:"] + blk + ([f"s_branch {back}"] if back else []))
    def emit(items):
        for it in items:
            if "lds" in it and " m0," in A.lines[-1]: A("s_nop 0")
            A(it)
    A(f"v_and_b32 v{vLane}, 63, v0")
    A("v_lshrrev_b32 v0, 6, v0")
    A("s_and_b32 s6, s2, 7")
    A(f"v_readfirstlane_b32 s{sWave}, v0")
    A(f"s_lshr_b32 s{sT0}, s2, 3")
    A(f"s_lshr_b32 s{sRb}, s{sT0}, 2")
    A(f"s_and_b32 s{sT1}, s{sT0}, 3")
    if True:
        A("s_getpc_b64 s[4:5]")
        A(f"{L}pc:")
        A(f"s_lshl2_add_u32 s7, s{sT0}, s{sWave}")
        A(f"s_mul_i32 s7, s7, ({L}last-{L}pc)/1024")
        A("s_lshr_b32 s7, s7, 7")
        A("s_lshl_b32 s7, s7, 10")
        A(f"v_lshl_add_u32 v{vTm+4}, v{vLane}, 4, s7")
        A(f"global_load_dwordx4 {ar(240,4)}, v{vTm+4}, s[4:5]")
    A(f"s_lshl2_add_u32 s{sHead}, s6, s{sT1}")
    A(f"s_sub_u32 s{sT2}, s6, s{sRb}")
    A(f"s_add_u32 s{sT2}, s{sT2}, 3")
    A(f"s_and_b32 s{sT2}, s{sT2}, 7")
    A(f"s_mul_i32 s{sFb}, s6, 3")
    A(f"s_add_u32 s{sFb}, s{sFb}, s{sT1}")
    A(f"s_add_u32 s7, s{sT2}, 24")
    A(f"s_cmp_eq_u32 s{sT1}, 3")
    A(f"s_cselect_b32 s{sFb}, s7, s{sFb}")
    A(f"s_cmp_lt_u32 s{sFb}, 27")
    A(f"s_cselect_b32 s{sHasF}, 1, 0")
    A(f"s_sub_u32 s{sProd}, s{sFb}, 27")
    A(f"v_lshrrev_b32 v{t+7}, 3, v{vLane}")
    A(f"v_and_b32 v{t+6}, 7, v{vLane}")
    A(f"v_lshrrev_b32 v{t+12}, 4, v{vLane}")
    A(f"v_xor_b32 v{t+13}, v{t+6}, v{t+12}")
    A(f"v_lshlrev_b32 v{t+13}, 4, v{t+13}")
    A(f"s_movk_i32 s6, 1280")
    A(f"v_mad_u32_u24 v{vXd}, v{t+7}, s6, v{t+13}")
    A(f"v_xor_b32 v{t+13}, 64, v{vXd}")
    for j in range(1, 8):
        A(f"v_add_u32 v{vXd+j}, {j*10240-(j%4)*1024}, v{(t+13) if j&1 else vXd}")
    A(f"s_lshl2_add_u32 s6, s{sRb}, s{sWave}")
    A(f"s_mul_i32 s{sXo}, s6, {64*1280}")
    A(f"s_mul_i32 s{sKVo}, s6, {A_BLK}")
    A(f"s_lshl_b32 s{sM0X}, s{sWave}, 13")
    A(f"s_add_u32 s{sM0X}, s{sM0X}, {R1}")
    A(f"s_mov_b32 s{sTail}, 0")
    A(f"s_and_b32 s6, s{sWave}, 1")
    A(f"s_lshl_b32 s7, s6, 2")
    A(f"v_add_u32 v{t+13}, s7, v{t+12}")
    A(f"v_lshlrev_b32 v{t+13}, 1, v{t+13}")
    A(f"v_and_b32 v{t+14}, 15, v{vLane}")
    A(f"v_xor_b32 v{t+13}, v{t+13}, v{t+14}")
    A(f"v_lshlrev_b32 v{t+13}, 4, v{t+13}")
    A(f"s_lshl_b32 s7, s{sWave}, 3")
    A(f"v_add_u32 v{t+15}, s7, v{t+12}")
    A(f"v_lshl_add_u32 v{vWqd}, v{t+15}, 13, v{t+13}")
    A(f"v_add_u32 v{vWqd+1}, {4*8192-1024}, v{vWqd}")
    A(f"v_bfe_u32 v{t+13}, v{vLane}, 4, 1")
    A(f"s_lshl_b32 s6, s6, 1")
    A(f"v_add_u32 v{t+13}, s6, v{t+13}")
    A(f"v_lshlrev_b32 v{t+13}, 1, v{t+13}")
    A(f"v_xor_b32 v{t+13}, v{t+13}, v{t+6}")
    A(f"v_lshlrev_b32 v{t+13}, 4, v{t+13}")
    A(f"v_add_u32 v{t+15}, s7, v{t+7}")
    A(f"s_movk_i32 s6, 3456")
    A(f"v_mad_u32_u24 v{vW13d}, v{t+15}, s6, v{t+13}")
    A(f"s_lshl_b32 s{sWqo}, s{sHead}, 8")
    A(f"s_lshl_b32 s{sW13o}, s{sFb}, 7")
    A(f"s_mov_b32 s{sSlot}, 0")
    A(f"s_lshl_b32 s{sM0W}, s{sWave}, 12")
    A(f"s_add_u32 s{sM0W}, s{sM0W}, {R3}")
    for d, sz in ((sX, X_SIZE), (sWq, 640 * 8192)):
        A(f"s_mov_b32 s{d+2}, {sz}")
        A(f"s_mov_b32 s{d+3}, 0x20000")
    for (d, p, sh) in ((sW1, pW1, 2048), (sW3, pW3, 3072)):
        A(f"s_mul_i32 s{d+2}, s{sHasF}, {640*3456+sh}")
        A(f"s_mov_b32 s{d+3}, 0x20000")
    A("s_waitcnt lgkmcnt(0)")
    A(f"s_mov_b32 s{sC0}, s{sM0W}")
    for d, p in ((sX, pX), (sWq, pWq)):
        A(f"s_mov_b32 s{d}, s{p}")
        A(f"s_and_b32 s{d+1}, s{p+1}, 0xffff")
    for (d, p, sh) in ((sW1, pW1, 2048), (sW3, pW3, 3072)):
        A(f"s_sub_u32 s{d}, s{p}, {sh}")
        A(f"s_subb_u32 s{d+1}, s{p+1}, 0")
        A(f"s_and_b32 s{d+1}, s{d+1}, 0xffff")
    A(f"s_mov_b64 s[{sX2}:{sX2+1}], s[{sX}:{sX+1}]")
    A(f"s_mov_b64 s[{sX2+2}:{sX2+3}], s[{sX+2}:{sX+3}]")
    A(f"s_movk_i32 s{sM0d}, 4096")
    A(f"s_movk_i32 s{sXst}, 128")
    A(f"s_mov_b32 s{sM0t}, 0x18000")
    RAW, UNP = 64, 96
    A(f"v_mov_b32 v{t+5}, 0")
    A(f"s_cmp_ge_u32 s{sProd}, 4")
    A(f"s_cbranch_scc0 {L}c1")
    mk_ = len(A.lines)
    A(f"v_lshrrev_b32 v{t+5}, 2, v{vLane}")
    A(f"v_and_b32 v{t+13}, 3, v{vLane}")
    A(f"v_lshlrev_b32 v{t+13}, 4, v{t+13}")
    A(f"s_movk_i32 s6, 1280")
    A(f"v_mad_u32_u24 v{t+13}, v{t+5}, s6, v{t+13}")
    A(f"s_lshl2_add_u32 s6, s{sRb}, s{sProd}")
    A(f"s_lshl2_add_u32 s6, s6, s{sWave}")
    A(f"s_lshl_b32 s7, s6, 8")
    A(f"v_lshl_add_u32 v{t+5}, v{t+5}, 4, s7")
    A(f"s_mul_i32 s6, s6, {16*1280}")
    for i in range(20):
        A(f"buffer_load_dwordx4 {vr(RAW+4*i,4)}, v{t+13}, s[{sX}:{sX+3}], s6 offen offset:{i*64}")
    cold(mk_, f"{L}c1", f"{L}np1")
    A(f"{L}np1:")
    if "coop" in OPT:
        A(f"s_and_b32 s6, s{sHead}, 3")
        A(f"s_lshl2_add_u32 s6, s{sRb}, s6")
        A(f"s_lshl2_add_u32 s6, s6, s{sWave}")
        A(f"s_mul_i32 s6, s6, {16*1280}")
        A(f"v_and_b32 v{t+13}, 15, v{vLane}")
        A(f"v_mul_u32_u24 v{t+13}, 1280, v{t+13}")
        A(f"v_bfe_u32 v{t+14}, v{vLane}, 4, {COOPX}")
        A(f"v_lshl_add_u32 v{t+13}, v{t+14}, 7, v{t+13}")
        A(f"buffer_load_dword v0, v{t+13}, s[{sX}:{sX+3}], s6 offen")
        A(f"s_lshl2_add_u32 s7, s{sRb}, s{sWave}")
        A(f"v_and_b32 v{t+14}, 3, v{vLane}")
        A(f"v_lshl_add_u32 v{t+14}, v{t+14}, 5, s7")
        A(f"v_bfe_u32 v{t+15}, v{vLane}, 2, 1")
        A(f"v_lshlrev_b32 v{t+15}, 7, v{t+15}")
        A(f"v_lshl_add_u32 v{t+15}, v{t+14}, 13, v{t+15}")
        A(f"v_mul_u32_u24 v{t+14}, 3456, v{t+14}")
        A(f"buffer_load_dword v0, v{t+15}, s[{sWq}:{sWq+3}], s{sWqo} offen")
        A(f"buffer_load_dword v0, v{t+14}, s[{sW1}:{sW1+3}], s{sW13o} offen offset:2048")
        A(f"buffer_load_dword v0, v{t+14}, s[{sW3}:{sW3+3}], s{sW13o} offen offset:3072")
    emit(dma_w(True)); emit(dma_x(0))
    stamp(0)
    A(f"s_add_u32 s{sA}, s{pWs}, s{sKVo}")
    A(f"s_addc_u32 s{sA+1}, s{pWs+1}, 0")
    srd(A, sA, sA, sA + 1, A_BLK)
    A(f"s_add_u32 s{sWp}, s{pWs}, {W_OFF}")
    A(f"s_addc_u32 s{sWp+1}, s{pWs+1}, 0")
    srd(A, sWp, sWp, sWp + 1, W_SIZE)
    A(f"s_lshl2_add_u32 s{sT1}, s{sHead}, s{sWave}")
    A(f"s_mul_i32 s{sU}, s{sT1}, 10")
    A(f"s_lshl_b32 s{sT2}, s{sRb}, 1")
    A(f"s_add_u32 s{sU}, s{sU}, s{sT2}")
    A(f"s_mul_i32 s{sT1}, s{sT1}, 40960")
    A(f"s_lshl_b32 s{sT2}, s{sRb}, 8")
    A(f"s_add_u32 s{sPo}, s{sT1}, s{sT2}")
    srd(A, sSrc, pWo, pWo + 1, 4096 * 1280)
    A(f"s_cmp_lt_u32 s{sRb}, 5")
    A(f"s_cselect_b32 s{sSrc+2}, s{sSrc+2}, 0")
    A(f"s_cselect_b32 s{sU}, s{sU}, 2000")
    A(f"v_mov_b32 v{t+6}, 0")
    A(f"s_or_b32 s6, s2, s{sWave}")
    A(f"s_cbranch_scc1 {L}ntag")
    A(f"s_lshl_b64 s[6:7], s[{sNo}:{sNo+1}], 2")
    A(f"s_or_b32 s7, s7, 0x80000000")
    A(f"v_mov_b32 v{t+14}, s6")
    A(f"v_mov_b32 v{t+15}, s7")
    A("s_mov_b64 exec, 1")
    A(f"global_store_dwordx2 v{t+6}, {vr(t+14,2)}, s[{pDbg}:{pDbg+1}] offset:128 sc1")
    A("s_mov_b64 exec, -1")
    A(f"{L}ntag:")
    A(f"v_and_b32 v{t+14}, 15, v{vLane}")
    A(f"v_lshrrev_b32 v{t+13}, 1, v{t+14}")
    A(f"v_xor_b32 v{t+13}, v{t+13}, v{t+12}")
    A(f"v_lshlrev_b32 v{t+13}, 4, v{t+13}")
    A(f"v_lshl_add_u32 v{t+13}, v{t+14}, 7, v{t+13}")
    A(f"s_lshl_b32 s6, s{sWave}, 13")
    A(f"s_add_u32 s6, s6, {R1}")
    A(f"v_add_u32 v{vXr}, s6, v{t+13}")
    A(f"v_xor_b32 v{vXr+1}, 64, v{vXr}")
    A(f"v_lshlrev_b32 v{t+3}, 4, v{t+14}")
    A(f"v_bfe_u32 v{t+14}, v{vLane}, 2, 2")
    A(f"v_and_b32 v{t+15}, 3, v{vLane}")
    A(f"v_lshlrev_b32 v{t+15}, 3, v{t+15}")
    A(f"v_lshl_add_u32 v{t+15}, v{t+12}, 12, v{t+15}")
    A(f"v_add_u32 v{t+15}, {R3}, v{t+15}")
    A(f"v_bfe_u32 v{t+16}, v{vLane}, 4, 1")
    A(f"v_lshl_add_u32 v{t+13}, v{t+16}, 2, v{t+14}")
    A(f"s_lshl_b32 s6, s{sWave}, 1")
    A(f"v_xor_b32 v{t+13}, s6, v{t+13}")
    A(f"v_lshl_add_u32 v{t+13}, v{t+13}, 5, v{t+15}")
    A(f"v_lshl_add_u32 v{vWqr}, v{t+14}, 8, v{t+13}")
    for p in range(1, 8): A(f"v_xor_b32 v{vWqr+p}, {32*p}, v{vWqr}")
    A(f"v_lshrrev_b32 v{t+13}, 1, v{t+14}")
    A(f"v_lshl_add_u32 v{t+13}, v{t+16}, 1, v{t+13}")
    A(f"v_xor_b32 v{t+13}, s{sWave}, v{t+13}")
    A(f"v_lshl_add_u32 v{t+13}, v{t+13}, 5, v{t+15}")
    A(f"v_lshl_add_u32 v{vW13r}, v{t+14}, 7, v{t+13}")
    for p in range(1, 4): A(f"v_xor_b32 v{vW13r+p}, {32*p}, v{vW13r}")
    srd(A, sK, pK, pK + 1, 16777216)
    srd(A, sV, pV, pV + 1, 16777216)
    A(f"s_add_u32 s{sSt}, s{pWs}, {ST_OFF}")
    A(f"s_addc_u32 s{sSt+1}, s{pWs+1}, 0")
    srd(A, sSt, sSt, sSt + 1, 2048 * 16)
    A(f"s_lshl_b32 s6, s{sRb}, 2")
    A(f"v_mov_b32 v{t+2}, s6")
    A(f"s_movk_i32 s{sMask}, {EVMASK}")
    A(f"s_mov_b32 s{sD}, 0")
    A(f"s_cmp_ge_u32 s{sProd}, 4")
    A(f"s_cbranch_scc0 {L}c2")
    mk_ = len(A.lines)
    A("s_waitcnt vmcnt(8)")
    for i in range(79, -1, -1):
        A(f"v_and_b32 v{UNP+2*i+1}, 0xffff0000, v{RAW+i}")
        A(f"v_lshlrev_b32 v{UNP+2*i}, 16, v{RAW+i}")
    a = 64
    def red(first):
        for i in range(80):
            first(i)
        A(f"v_pk_add_f32 {vr(a,2)}, {vr(a,2)}, {vr(a+2,2)}")
        A(f"v_pk_add_f32 {vr(a+4,2)}, {vr(a+4,2)}, {vr(a+6,2)}")
        A(f"v_pk_add_f32 {vr(a,2)}, {vr(a,2)}, {vr(a+4,2)}")
        A(f"v_add_f32 v{a}, v{a}, v{a+1}")
        for qp in ("[1,0,3,2]", "[2,3,0,1]"):
            A("s_nop 1")
            A(f"v_add_f32_dpp v{a}, v{a}, v{a} quad_perm:{qp} row_mask:0xf bank_mask:0xf")
    def f1(i):
        d = vr(a + 2 * (i % 4), 2)
        if i < 4: A(f"v_pk_add_f32 {d}, {vr(UNP+2*i,2)}, {vr(UNP+2*i+8,2)}")
        elif i >= 8: A(f"v_pk_add_f32 {d}, {d}, {vr(UNP+2*i,2)}")
    red(f1)
    o = 72
    A(f"v_mul_f32 v{o}, {hex(f2u(-1.0/640))}, v{a}")
    for i in range(80): A(f"v_pk_add_f32 {vr(UNP+2*i,2)}, {vr(UNP+2*i,2)}, {vr(o,2)} op_sel_hi:[1,0]")
    def f2(i):
        d = vr(a + 2 * (i % 4), 2); x_ = vr(UNP + 2 * i, 2)
        if i < 4: A(f"v_pk_mul_f32 {d}, {x_}, {x_}")
        else: A(f"v_pk_fma_f32 {d}, {x_}, {x_}, {d}")
    red(f2)
    A(f"v_mov_b32 v{o+3}, {hex(f2u(1e-5))}")
    A(f"v_fmac_f32 v{o+3}, {hex(f2u(1.0/640))}, v{a}")
    A(f"v_mov_b32 v{o+2}, v{o+3}")
    A(f"v_rsq_f32 v{o+1}, v{o+3}")
    A("s_mov_b32 exec_lo, 0x11111111")
    A("s_mov_b32 exec_hi, 0x11111111")
    A(f"buffer_store_dwordx4 {vr(o,4)}, v{t+5}, s[{sSt}:{sSt+3}], 0 offen sc1 ; @put S")
    A("s_mov_b64 exec, -1")
    A("s_waitcnt vmcnt(0)")
    cold(mk_, f"{L}c2", f"{L}np2")
    A(f"{L}np2:")
    if "dummy" in OPT:
        A(f"v_lshlrev_b32 v{t+13}, 4, v{vLane}")
        for i in range(16): A(f"buffer_load_dwordx4 {vr(64+4*i,4)}, v{t+13}, s[{sWq}:{sWq+3}], 0 offen offset:{(i%4)*1024}")
        for i in range(128): A(f"v_mov_b32 v{128+i}, 0")
        A("s_waitcnt vmcnt(0)")
        A("s_mov_b32 s6, 0")
        A(f"{L}dmy:")
        for i in range(64): mf16(A, vr(128 + 4 * (i % 32), 4), vr(64 + 4 * (i // 4 % 12), 4), vr(112 + 4 * (i % 4), 4))
        A("s_add_u32 s6, s6, 1")
        A("s_cmp_lt_u32 s6, 40")
        A(f"s_cbranch_scc1 {L}dmy")
        A("s_nop 7")
    if "idle" in OPT:
        A("s_mov_b32 s6, 0")
        A(f"{L}dmy:")
        for i in range(64): A("s_nop 15")
        A("s_add_u32 s6, s6, 1")
        A("s_cmp_lt_u32 s6, 40")
        A(f"s_cbranch_scc1 {L}dmy")
    kv_dma_voff(A, vQ, vQ + 4, 1)
    A(f"s_mov_b32 s{sT1}, {R0}")
    kv_addr(A, sT1, only=(vQ + 5, vQ + 6))
    wp_addr(A, 13, reg=R4, n=1, dst=vQ + 7)
    wp_src_voff(A, vQ + 8, 1)
    A(f"v_mov_b32 v{vKb}, v{vQ+5}")
    A(f"v_mov_b32 v{vVb}, v{vQ+6}")
    A(f"v_mov_b32 v{vWpB}, v{vQ+7}")
    A(f"v_mov_b32 v{vWs}, v{vQ+8}")
    A(f"v_lshrrev_b32 v{t+7}, 4, v{vLane}")
    A(f"v_lshlrev_b32 v{t+7}, 4, v{t+7}")
    A(f"s_lshl_b32 s6, s{sWave}, 7")
    A(f"s_add_u32 s6, s6, {CS}")
    A(f"v_add_u32 v{t+8}, s6, v{t+7}")
    A(f"s_lshl_b32 s6, s{sWave}, 6")
    A(f"s_add_u32 s6, s6, {CS+512}")
    A(f"v_add_u32 v{t+9}, s6, v{t+7}")
    A(f"v_lshlrev_b32 v{t+10}, 4, v{vLane}")
    A(f"s_lshl_b32 s6, s{sWave}, 12")
    A(f"s_lshl_b32 s{sKVo}, s{sHead}, 19")
    A(f"s_add_u32 s{sKVo}, s{sKVo}, s6")
    A(f"s_add_u32 s{sKVo}, s{sKVo}, {1536*256}")
    if "tlbw" in OPT:
        A("s_mov_b64 exec, 1")
        A(f"buffer_load_dword v0, v{t+6}, s[{sK}:{sK+3}], s{sKVo} offen")
        A(f"buffer_load_dword v0, v{t+6}, s[{sV}:{sV+3}], s{sKVo} offen")
        A(f"buffer_load_dword v0, v{t+6}, s[{sSrc}:{sSrc+3}], s{sPo} offen")
        A("s_mov_b64 exec, -1")
    if "tlbs" in OPT:
        A(f"s_lshl_b32 s6, s{sHead}, 14")
        A(f"s_lshl_b32 s7, s{sFb}, 13")
        A(f"s_add_u32 s7, s7, {128*4096}")
        A("s_mov_b64 exec, 1")
        A(f"buffer_store_dword v{t+6}, v{t+6}, s[{sA}:{sA+3}], s6 offen sc1")
        A(f"buffer_store_dword v{t+6}, v{t+6}, s[{sA}:{sA+3}], s7 offen sc1")
        A("s_mov_b64 exec, -1")
    for i in range(4): A(f"v_mov_b32 v{vSt+i}, 0")
    A(f"v_mov_b32 v{t+1}, 0x3f803f80")
    for i in range(4): A(f"v_accvgpr_write_b32 a{aOne+i}, v{t+1}")
    z = vr(vSt, 4)
    for i in range(8): mf32(A, vr(vAcc + 16 * i, 16), z, z, "0")
    for i in range(9): mf32(A, ar(16 * i, 16), z, z, "0")
    emit(dma_x(1)); emit(dma_w(True)); emit(dma_x(0)); emit(dma_w(True))
    A(f"s_waitcnt vmcnt({15 if 'tlbw' in OPT else 14 if 'tlbs' in OPT else 12})")
    A("s_barrier")
    A(f"s_lshl2_add_u32 s6, s{sProd}, s{sWave}")
    A(f"s_and_b32 s6, s6, 0xfffffff3")
    A(f"s_cbranch_scc1 {L}np3")
    A(f"v_mov_b32 v{t+1}, 1")
    A(f"v_add_u32 v{t+7}, s{sProd}, v{t+2}")
    A(f"s_mov_b64 exec, 1")
    A(f"global_store_byte v{t+7}, v{t+1}, s[{pDbg}:{pDbg+1}] sc1")
    A(f"s_mov_b64 exec, -1")
    A(f"{L}np3:")
    stamp(1)
    for rt in range(4): A(xread(0, 0, rt))
    A(f"s_cmp_eq_u32 s{sHasF}, 0")
    fr = frag_list(True)
    for f in range(3):
        for sec in range(2): A(wread(fr[f], 0, sec, f))
    A("s_waitcnt lgkmcnt(6)")
    if FINE: A("s_mov_b32 s7, 0")
    A(f"s_cbranch_scc1 {L}gn")
    gemm_loop(A, True, L + "gf")
    mk_ = len(A.lines)
    gemm_events(A, L + "gn")
    gemm_loop(A, False, L + "gn")
    for it in cs_writes()[:2]: A(it)
    A(f"s_mov_b32 s{sKVo}, s{sXo}")
    A(f"s_mov_b32 s{sKVm}, s{sM0X}")
    A(qp_code())
    for it in stats_scale(): A(it)
    A("s_waitcnt lgkmcnt(0)")
    A("s_barrier")
    A(f"ds_read_b128 {vr(CSB[0],4)}, v{t+8}")
    A(f"v_xor_b32 v{t+11}, 64, v{t+8}")
    A(f"ds_read_b128 {vr(CSB[1],4)}, v{t+11}")
    cold(mk_, f"{L}c3", f"{L}gdone")
    A(f"{L}gdone:")
    stamp(2)
    z = vr(vTm + 4, 4)
    class Grp(list):
        def __call__(self, x): self.append(x)
    IDS = Grp()
    IDS(f"s_lshr_b32 s{qCb}, s2, 6")
    IDS(f"s_bfe_u32 s{qRb}, s2, 0x30003")
    IDS(f"s_and_b32 s6, s2, 4\ns_lshl_b32 s6, s6, 1")
    IDS(f"s_add_u32 s{qRb}, s{qRb}, s6")
    IDS(f"s_lshl2_add_u32 s{qG}, s{qRb}, s{qCb}")
    IDS(f"s_mul_i32 s6, s{qG}, {IB_G}")
    IDS(f"s_add_u32 s6, s6, {IB_OFF}")
    IDS(f"s_add_u32 s{qI}, s{pWs}, s6\ns_addc_u32 s{qI+1}, s{pWs+1}, 0")
    srd(IDS, qI, qI, qI + 1, IB_G)
    kvadv = [f"s_add_u32 s{sKVo}, s{sKVo}, 16384\ns_add_u32 s{sKVm}, s{sKVm}, 32768"]
    def kvq(): return kv_dma() + kvadv
    csb = [14, 18, 22]
    lq = LQ()
    def csread_q(p):
        A(f"v_xor_b32 v{t+11}, {64*p}, v{t+8}")
        A(f"ds_read_b128 {vr(csb[p%3],4)}, v{t+11}"); lq.issue(("c", p))
    lq.issue(("c", 0)); lq.issue(("c", 1))
    wo_dma = []
    for su in range(2):
        wo_dma.append(f"s_lshl_b32 s6, s{sWave}, 13\ns_add_u32 m0, s6, {R4+su*4096}")
        wo_dma += [f"buffer_load_dwordx4 v{vWs}, s[{sSrc}:{sSrc+3}], s{sPo} offen offset:{j*1024} lds ; @put P\n" +
                   (f"s_add_u32 s{sPo}, s{sPo}, 9216" if j < 3 else f"s_sub_u32 s{sPo}, s{sPo}, {3*9216-128}") for j in range(4)]
    kq = spread([f"s_add_u32 m0, s{sKVm}, 16384"] + kv_dma()[6:] + kvadv + wo_dma[:5 * SPL[0]], 24)
    for p in range(8):
        if p + 2 < 8: csread_q(p + 2)
        lq.wait(A, [("c", p)])
        c = csb[p % 3]
        for rt in range(4):
            d = vAcc + (p * 4 + rt) * 4; q = vSt + 4 * rt
            for h in range(2):
                A(f"v_pk_fma_f32 {vr(d+2*h,2)}, {vr(c+2*h,2)}, {vr(q,2)}, {vr(d+2*h,2)} op_sel_hi:[1,0,1]")
        emit(kq[3*p])
        for rt in range(4):
            d = vAcc + (p * 4 + rt) * 4; q = vSt + 4 * rt
            for h in range(2):
                A(f"v_pk_mul_f32 {vr(d+2*h,2)}, {vr(d+2*h,2)}, {vr(q+2,2)} op_sel:[0,1]")
        emit(kq[3*p+1])
        for rt in range(4):
            d = vAcc + (p * 4 + rt) * 4
            f = vQ + ((rt // 2) * 8 + p) * 4 + (rt & 1) * 2
            for h in range(2): A(f"v_cvt_pk_bf16_f32 v{f+h}, v{d+2*h}, v{d+2*h+1}")
        mf32(A, ar(aO + 16 * p, 16), z, z, "0")
        emit(kq[3*p+2])
        if p > 0:
            for qt in range(2):
                f = vQ + (qt * 8 + p - 1) * 4
                for h in range(2): A(f"v_permlane16_swap_b32 v{f+h}, v{f+2+h}")
    A("s_nop 0")
    for qt in range(2):
        f = vQ + (qt * 8 + 7) * 4
        for h in range(2): A(f"v_permlane16_swap_b32 v{f+h}, v{f+2+h}")
    stamp(3)
    for p in range(8): A(f"v_xor_b32 v{vKr+p}, {32*p}, v{vKb}")
    v2q = [f"s_add_u32 m0, s{sKVm}, 16384"] + kvq()[6:]
    A(f"s_cmp_eq_u32 s{sHasF}, 0")
    A(f"s_cbranch_scc1 {L}noffn")
    def hst(pi, rt): return f"buffer_store_dwordx4 {vr(vAcc+96+pi*16+rt*4,4)}, v{t+10}, s[{sA}:{sA+3}], s{qT0+pi} offen offset:{rt*1024}" + ("" if "wbl2" in OPT else " sc1") + " ; @put H @put HH"
    T = vAcc + 32; H = vAcc + 96; C = vAcc + 56
    def csf(p):
        A(f"v_xor_b32 v{t+11}, {64*p}, v{t+9}")
        A(f"ds_read_b128 {vr(C+8*(p%3),4)}, v{t+11}")
        A(f"ds_read_b128 {vr(C+8*(p%3)+4,4)}, v{t+11} offset:256")
    for p in range(3): csf(p)
    A(f"s_lshr_b32 s7, s{sWave}, 1")
    A(f"s_lshl_b32 s6, s{sFb}, 1")
    A(f"s_add_u32 s6, s6, 128")
    A(f"s_add_u32 s{sT0}, s6, s7")
    A(f"s_xor_b32 s7, s7, 1")
    A(f"s_add_u32 s{sT1}, s6, s7")
    A(f"s_lshl_b32 s{qT0}, s{sT0}, 12")
    A(f"s_lshl_b32 s{qT1}, s{sT1}, 12")
    A("s_waitcnt lgkmcnt(0)")
    ffq = wo_dma[5 * SPL[0]:] + kv_dma()[:5 * SPL[1]]
    kq = spread(ffq, 24) if ffq else [[]] * 24
    for p in range(4):
        for r2 in range(2):
            g_ = 3 * (p * 2 + r2)
            G = [(2 * r2 + i, T + 12 * i) for i in range(2)]
            if p == 1 and r2 == 0: csf(3)
            if p == 2 and r2 == 0:
                qk_at = len(A.lines)
                A("s_waitcnt lgkmcnt(0)")
            for rt, b in G:
                for i in range(4): A(f"v_accvgpr_read_b32 v{b+i}, a{aG+(p*4+rt)*4+i}")
                for i in range(4): A(f"v_accvgpr_read_b32 v{b+4+i}, a{aUp+(p*4+rt)*4+i}")
            emit(kq[g_])
            for rt, b in G:
                for h in range(4):
                    A(f"v_pk_fma_f32 {vr(b+2*h,2)}, {vr(C+8*(p%3)+2*h,2)}, {vr(vSt+4*rt,2)}, {vr(b+2*h,2)} op_sel_hi:[1,0,1]")
            for rt, b in G:
                for h in range(2): A(f"v_pk_mul_f32 {vr(b+8+2*h,2)}, {vr(b+2*h,2)}, {vr(vSt+4*rt,2)} op_sel:[0,1]")
            for rt, b in G:
                for i in range(4): A(f"v_exp_f32 v{b+8+i}, v{b+8+i}")
            emit(kq[g_+1])
            for rt, b in G:
                for h in range(2): A(f"v_pk_mul_f32 {vr(b+2*h,2)}, {vr(b+2*h,2)}, {vr(b+4+2*h,2)}")
            for rt, b in G:
                for h in range(2):
                    A(f"v_pk_fma_f32 {vr(b+8+2*h,2)}, {vr(b+8+2*h,2)}, {vr(vSt+4*rt+2,2)}, {vr(vSt+4*rt+2,2)} op_sel_hi:[1,0,0]")
            for rt, b in G:
                for i in range(4): A(f"v_rcp_f32 v{b+8+i}, v{b+8+i}")
            emit(kq[g_+2])
            for n, (rt, b) in enumerate(G):
                for h in range(2): A(f"v_pk_mul_f32 {vr(b+2*h,2)}, {vr(b+2*h,2)}, {vr(b+8+2*h,2)}")
            for rt, b in G:
                for h in range(2): A(f"v_cvt_pk_bf16_f32 v{H+(p//2)*16+rt*4+(p&1)*2+h}, v{b+2*h}, v{b+2*h+1}")
        if p & 1:
            pi = p // 2
            A(f"s_bitcmp1_b32 s{sWave}, 0")
            A(f"s_cbranch_scc0 {L}nsw{pi}")
            for rt in range(4):
                for h in range(2): A(f"v_swap_b32 v{H+pi*16+rt*4+h}, v{H+pi*16+rt*4+2+h}")
            A(f"{L}nsw{pi}:")
    B_ = Asm(); lq = LQ()
    for p in range(3):
        B_(kread(p, 0, p)); lq.issue(("f", 16 + p))
    attn_seg(B_, lq, 2, {}, sm_lo=0, sm_hi=0, look=[2])
    QK0 = list(B_.lines)
    grp = [QK0[:3]]; cur = []
    for l_ in QK0[3:]:
        if l_.startswith(("s_waitcnt", "v_mfma")) and any(x.startswith("v_mfma") for x in cur): grp.append(cur); cur = []
        cur.append(l_)
    grp.append(cur)
    half = A.lines[qk_at + 1:]; del A.lines[qk_at + 1:]
    stop = max(i for i, x in enumerate(half) if x.startswith("s_bitcmp1"))
    pos = {4 + (i * (stop - 24)) // len(grp): g for i, g in enumerate(grp)}
    pend = []
    for i, l_ in enumerate(half):
        if i in pos: pend = pend + pos[i]
        if pend and " lds" not in l_ and not l_.startswith("s_nop") and not any(x.startswith("v_pk_") for x in A.lines[-2:]):
            A.lines += pend; pend = []
        A.lines.append(l_)
    emit(v2q)
    mk_ = len(A.lines)
    emit(ffq)
    A(f"s_mov_b32 s{qT0}, 0x1000000")
    A(f"s_mov_b32 s{qT1}, 0x1000000")
    A("s_barrier")
    srd(A, qA, pW2, pW2 + 1, 1728 * 1280)
    A(f"v_mov_b32 v{vAcc+8}, v{vKb}")
    A(f"v_mov_b32 v{vAcc+9}, v{vVb}")
    A(f"v_mov_b32 v{vAcc+10}, v{vWpB}")
    wp_src_voff(A, vAcc)
    wp_addr(A, 13)
    A(f"v_mov_b32 v{vKb}, v{vAcc+8}")
    A(f"v_mov_b32 v{vVb}, v{vAcc+9}")
    A(f"v_mov_b32 v{vWpB}, v{vAcc+10}")
    A(f"s_mul_i32 s{sT2}, s{sRb}, 5")
    A(f"s_add_u32 s{sT2}, s{sT2}, s{sProd}")
    A(f"s_lshl2_add_u32 s{sT2}, s{sT2}, s{sWave}")
    A(f"{L}w2j:")
    A(f"s_mul_hi_u32 s{sT0}, s{sT2}, 0x33333334")
    A(f"s_mul_i32 s{sT1}, s{sT0}, 5")
    A(f"s_sub_u32 s{sT1}, s{sT2}, s{sT1}")
    A(f"s_mul_i32 s7, s{sT0}, 40960")
    A(f"s_lshl_b32 s6, s{sT1}, 8")
    A(f"s_add_u32 s{sT0}, s7, s6")
    A(f"s_lshl_b32 s6, s{sT1}, 13")
    A(f"s_add_u32 s7, s7, s6")
    A(f"s_add_u32 s{sT1}, s7, {128*40960}")
    A(f"s_lshl_b32 s6, s{sWave}, 13")
    for su in range(2):
        A(f"s_add_u32 m0, s6, {R3+su*4096}")
        A("s_nop 0")
        for j in range(4): A(f"buffer_load_dwordx4 v{vAcc+4*su+j}, s[{qA}:{qA+3}], s{sT0} offen offset:{j*1024} lds")
    A("s_waitcnt vmcnt(0)")
    wp_reads(A, 4096)
    A("s_waitcnt lgkmcnt(0)")
    wp_stores(A, sT1)
    A(f"s_add_u32 s{sT2}, s{sT2}, 160")
    A(f"s_cmp_lt_u32 s{sT2}, 270")
    A(f"s_cbranch_scc1 {L}w2j")
    A.lines += QK0
    emit(v2q)
    cold(mk_, f"{L}noffn", f"{L}ffnd")
    A(f"{L}ffnd:")
    for i in range(4): IDS(f"v_mov_b32 v{vOnes+i}, -1")
    IDS(f"s_mul_i32 s6, s{qP}, 30720\ns_mul_i32 s7, s{sWave}, 7680")
    IDS(f"s_min_u32 s7, s7, 22528\ns_add_u32 s{sSen}, s6, s7")
    IDS(f"s_lshl_b32 s{sWpO}, s{sU}, 12")
    IDS(f"v_add_u32 v{vL16+1}, 4096, v{vL16}")
    IDS(f"s_lshl_b32 s6, s{sRb}, 5\ns_add_u32 s7, s6, s{sHead}\ns_lshl_b32 s7, s7, 7")
    IDS(f"v_mov_b32 v{vFo}, s7")
    IDS(f"s_cmp_eq_u32 s{sWave}, 0\ns_cselect_b32 s{sTail}, 0, 0x8000")
    srd(IDS, qX, pFl, pFl + 1, 0x8000)
    IDS(f"s_add_u32 s6, s{sNo}, 1")
    IDS(f"v_mov_b32 v{vFv}, s6")
    IDS(f"v_mov_b32 v{vFv+1}, s{sNo+1}")
    stamp(4)
    for dt in range(4): A(f"v_xor_b32 v{vVr+dt}, {64*dt}, v{vVb}")
    A(f"v_mov_b32 v{vL}, 0")
    A(f"v_mov_b32 v{vL+1}, 0")
    A(f"s_waitcnt vmcnt(24)")
    A("s_barrier")
    stamp(5, True)
    lq = LQ()
    for p in range(3):
        A(kread(p, 1, p)); lq.issue(("f", p))
    for e in range(10):
        for x in sm_exp(0, e): A(x)
        if e:
            for x in sm_post(0, e - 1): A(x)
    assert XP or lq.q == [("f", 0), ("f", 1), ("f", 2)]
    def put(ex, slots, items):
        for sl, its in zip(slots, spread(items, len(slots))): ex.setdefault(sl, []).extend(its)
    PA = Asm()
    PA(f"s_lshl_b32 s6, s{sRb}, 5")
    PA(f"v_and_b32 v{vAp}, 3, v{vLane}")
    PA(f"v_lshlrev_b32 v{vAp}, 2, v{vAp}")
    PA(f"s_and_b32 s7, s{sHead}, 0x13")
    PA(f"s_add_u32 s7, s7, s6")
    PA(f"v_add_lshl_u32 v{vAp}, v{vAp}, s7, 7")
    PA(f"s_lshr_b32 s7, s{qRb}, 1")
    PA(f"s_lshl_b32 s6, s7, 5")
    PA(f"s_lshl_b32 s{sT0}, s{sWave}, 3")
    PA(f"s_add_u32 s6, s6, s{sT0}")
    PA(f"v_add_lshl_u32 v{vAa}, v{vLane}, s6, 7")
    PA(f"v_cmp_gt_u32 vcc, 8, v{vLane}")
    PA(f"v_and_b32 v{vAb}, 15, v{vLane}")
    PA(f"v_lshlrev_b32 v{vAb}, 2, v{vAb}")
    PA(f"s_lshl_b32 s6, s{sWave}, 6")
    PA(f"s_add_u32 s6, s6, 3")
    PA(f"v_add_lshl_u32 v{vAb}, v{vAb}, s6, 7")
    PA(f"v_cndmask_b32 v{vAa}, v{vAb}, v{vAa}, vcc")
    PA(f"v_bfe_u32 v{vAo}, v{vLane}, 4, 1")
    PA(f"v_add_u32 v{vAo}, s{qCb}, v{vAo}")
    PA(f"s_mul_i32 s6, s{qP}, 21")
    PA(f"s_add_u32 s6, s6, 1")
    PA(f"s_lshr_b32 s6, s6, 1")
    PA(f"v_and_b32 v{vPb}, 15, v{vLane}")
    PA(f"v_min_u32 v{vPb}, 10, v{vPb}")
    PA(f"v_add_u32 v{vPb}, s6, v{vPb}")
    PA(f"v_cmp_gt_u32 vcc, 16, v{vLane}")
    PA(f"s_lshl_b32 s7, s7, 5")
    PA(f"v_lshl_add_u32 v{vAo}, v{vAo}, 5, v{vPb}")
    PA(f"v_lshlrev_b32 v{vAo}, 7, v{vAo}")
    PA(f"v_add_lshl_u32 v{vAb}, v{vPb}, s7, 7")
    PA(f"v_cndmask_b32 v{vAb}, v{vAp}, v{vAb}, vcc")
    odd = lambda a, b: [x for x in range(a, b) if x & 1]
    def wo_job(ex, f, s0, s1):
        r = aWq + 4 * (f % 3)
        ex.setdefault(s0 - 1, []).append(f"v_xor_b32 v{vWpA}, {((f&3)<<5)|((f&4)<<10)}, v{vWpB}")
        ex[(s0, "ds")] = [f"ds_read_b64_tr_b16 {ar(r,2)}, v{vWpA} ; @need P 0"]
        ex[(s0 + 2, "ds")] = [f"ds_read_b64_tr_b16 {ar(r+2,2)}, v{vWpA} offset:2048"]
        if "nowo" not in XP: ex.setdefault(s1, []).append(f"buffer_store_dwordx4 {ar(r,4)}, v{vL16+f//4}, s[{sWp}:{sWp+3}], s{sWpO} offen offset:{(f&3)*1024} sc1")
    def mark(f): return "s_nop 0" if "nosent" in XP else f"buffer_store_dwordx4 {vr(vOnes,4)}, v{vL16+f//4}, s[{qI}:{qI+3}], s{sSen} offen offset:{(f&3)*1024} sc1 ; @put H"
    stamp(6, True)
    BW = {0: 10, 1: 13, 2: 13, 3: 13, 4: 13, 5: 13}
    bg = [("h", i) for i in range(8)] + [("w", i) for i in range(8)] + [("m", i) for i in range(8)]
    BG = [bg[0:3], bg[3:6], bg[6:9], bg[9:12], bg[12:15], bg[15:19], bg[19:22], bg[22:24]]
    if "bg2" in OPT: BG[5:] = [bg[15:22], bg[22:24], []]
    if "bg3" in OPT: BG[5:] = [bg[15:24], [], []]
    for t_ in range(8):
        ex = {}
        delta = hex((-98304) & 0xffffffff) if t_ == 3 else "0x8000"
        if t_ < 7:
            for p in range(8):
                ex.setdefault(max(2 * (p - 3) + 1, 1) if p >= 3 else 2 * p, []).append(f"v_add_u32 v{vKr+p}, {delta}, v{vKr+p}")
            for dt in range(4):
                ex.setdefault(2 * (28 + dt - 3) + 2, []).append(f"v_add_u32 v{vVr+dt}, {delta}, v{vVr+dt}")
        if t_ < 5:
            for sl, it in zip([32, 33, 37, 41, 45, 47, 49, 53, 57, 61], kv_dma()): ex.setdefault(sl, []).append(it)
            ex.setdefault(62, []).append(f"s_add_u32 s{sKVo}, s{sKVo}, 16384")
            ex.setdefault(59, []).append(f"s_add_u32 s{sKVm}, s{sKVm}, {hex((-98304) & 0xffffffff) if t_ == 0 else 32768}")
        if t_ < 6: ex[(26, "pre")] = [f"s_waitcnt vmcnt({BW[t_]})", "s_barrier ; @need KV 8 @need Xa 0" + (" @need HH 0" if t_ == 4 else "")]
        for j, (kind, f) in enumerate(BG[t_]):
            sl = (3, 19, 51, 39, 31, 45, 59, 35, 55)[j]
            if kind == "h": put(ex, [sl], [hst(f // 4, f % 4)])
            elif kind == "m": put(ex, [sl], [mark(f)])
            else: wo_job(ex, f, (1, 7, 35)[j], (13, 21, 51)[j])
        if t_ == 0:
            for sl, its in zip([x for x in range(11, 52) if x not in (26, 32, 47)], spread(IDS, 38)): ex.setdefault((sl, "post"), []).extend(its)
        if t_ == 4:
            put(ex, [39], [f"buffer_store_dwordx2 {vr(vFv,2)}, v{vFo}, s[{qX}:{qX+3}], s{sTail} offen sc1"])
        if t_ == 5:
            for sl, its in zip([x for x in range(10, 47) if x != 26], spread(PA.lines, 36)): ex.setdefault((sl, "post"), []).extend(its)
            put(ex, [x for x in range(47, 64) if x != 51], q_setup())
        elif t_ == 6:
            put(ex, [1], [f"global_load_dwordx2 {vr(vPa,2)}, v{vAa}, s[{pFl}:{pFl+1}] sc1"])
            B_ = Asm(); B_(f"s_waitcnt vmcnt({min(2, len(BG[6]))})"); B_(f"s_cmp_lg_u32 s{qP}, 3"); B_(f"s_cbranch_scc1 {L}w1r")
            flag_wait(B_, f"{L}w1", 1, [(vPa, vAa)]); B_("s_barrier")
            ex[(26, "pre")] = B_.lines
            put(ex, [x for x in odd(31, 64) if x != 51], q_loads(0) + q_loads(1)[:6])
        elif t_ == 7:
            ex[(26, "pre")] = ["s_waitcnt vmcnt(30)", "s_barrier"]
            ex.setdefault(24, []).append(f"v_add_u32 v{vFv}, 1, v{vFv}")
            put(ex, [28], [f"buffer_store_dwordx2 {vr(vFv,2)}, v{vFo}, s[{qX}:{qX+3}], s{sTail} offen sc1"])
            put(ex, [1, 5, 7, 9, 11, 13, 15, 17, 21, 23, 25, 27, 29, 31], q_loads(1)[6:] + q_loads(2)[:7])
        if t_ >= 1: stamp(t_ + 6, True)
        attn_seg(A, lq, 0, ex)
        attn_seg(A, lq, 1, ex, look=(True if t_ < 7 else [1]))
        if t_ < 7:
            attn_seg(A, lq, 2, ex)
            attn_seg(A, lq, 3, ex)
    ex = {}
    def vrd(f, sec):
        A(vread(f % 2, f // 2, 1, sec, f % 4)); lq.issue(("v", f))
    for f in range(3):
        vrd(f, 0); vrd(f, 1)
    ql = dict(zip((11, 14, 17, 20, 23), q_loads(2)[7:]))
    for e in range(10, 32):
        if e in ql: A(ql[e])
        for x in sm_exp(1, e) + sm_post(1, e - 1): A(x)
    A(f"v_bfe_u32 v{t+2}, v{vLane}, 4, 1")
    for x in sm_post(1, 31): A(x)
    def o_items(plain):
        it = []
        for n, (dt, qt) in enumerate((dt, qt) for dt in range(4) for qt in range(2)):
            b = vS + (n % 4) * 16; pk = 224 + (n % 4) * 8
            it += [f"v_accvgpr_read_b32 v{b+i}, a{aO+(qt*4+dt)*16+i}" for i in range(16)]
            if n < plain: it += [f"v_mul_f32 v{b+i}, v{t+qt}, v{b+i}" for i in range(16)]
            else: it += [f"v_pk_mul_f32 {vr(b+2*i,2)}, {vr(b+2*i,2)}, {vr(t,2)} " + ("op_sel_hi:[1,0]" if qt == 0 else "op_sel:[0,1]") for i in range(8)]
            it += [f"v_cvt_pk_bf16_f32 v{pk+i}, v{b+2*i}, v{b+2*i+1}" for i in range(8)]
            it += [f"buffer_store_dwordx4 {vr(pk+4*j,4)}, v{vOo}, s[{sA}:{sA+3}], s{sKVm} offen offset:{qt*2048+j*512} sc1 ; @put H" for j in range(2)]
            if qt and dt < 3: it.append(f"s_add_u32 s{sKVm}, s{sKVm}, 4096")
        return it
    chk = [[f"v_mov_b32 v{t}, v{vL}", f"v_mov_b32 v{t+1}, v{vL+1}", f"v_lshrrev_b32 v{t+3}, 5, v{vLane}", f"v_lshlrev_b32 v{t+3}, 8, v{t+3}"],
           [f"v_permlane32_swap_b32 v{t}, v{vL}", f"v_permlane32_swap_b32 v{t+1}, v{vL+1}", f"v_lshl_add_u32 v{t+3}, v{t+2}, 10, v{t+3}"],
           [f"v_add_f32 v{vL}, v{vL}, v{t}", f"v_add_f32 v{vL+1}, v{vL+1}, v{t+1}", f"v_mov_b32 v{t+8}, {hex(f2u(2.0**-40))}", f"v_mov_b32 v{t+9}, {hex(f2u(2.0**40))}"],
           [f"v_cmp_gt_f32 s[{sE0}:{sE0+1}], v{vL}, v{t+8}", f"v_cmp_lt_f32 s[{sE0+2}:{sE0+3}], v{vL}, v{t+9}", f"v_and_b32 v{t+2}, 15, v{vLane}"],
           [f"v_cmp_gt_f32 s[4:5], v{vL+1}, v{t+8}", f"v_cmp_lt_f32 s[6:7], v{vL+1}, v{t+9}", f"v_rcp_f32 v{t}, v{vL}", f"v_lshl_add_u32 v{vOo}, v{t+2}, 4, v{t+3}"],
           [f"v_rcp_f32 v{t+1}, v{vL+1}", f"s_lshl_b32 s{sKVm}, s{sHead}, 14", f"s_and_b64 s[{sE0}:{sE0+1}], s[{sE0}:{sE0+1}], s[{sE0+2}:{sE0+3}]",
            "s_and_b64 s[4:5], s[4:5], s[6:7]", f"s_and_b64 s[4:5], s[4:5], s[{sE0}:{sE0+1}]", "s_cmp_eq_u64 s[4:5], exec"] + ([] if XP else [f"s_cbranch_scc0 {L}slow ; slowbr"])]
    oi = o_items(2)
    for f in range(8):
        lq.wait(A, [("v", f)])
        for qt in range(2):
            g = 2 * f + qt
            mf32(A, ar(aO + (qt * 4 + f // 2) * 16, 16), vr(vF + (f % 4) * 4, 4), vr(vP + (qt * 2 + f % 2) * 4, 4))
            if f + 3 < 8: vrd(f + 3, qt)
            if g < 6:
                for x in chk[g]: A(x)
            elif g < 15:
                k_ = 4 if f + 3 < 8 else 5
                for x in oi[:k_]: A(x)
                oi = oi[k_:]
    stamp(5)
    for x in oi: A(x)
    mk_ = len(A.lines)
    A(f"s_lshl_b32 s{sKVm}, s{sHead}, 14")
    for x in o_items(0): A(x)
    cold(mk_, f"{L}oep", f"{L}oed")
    A(f"{L}oed:")
    stamp(6); stamp(7)
    gemm2(A, L, emit, stamp, cold)
    A(f"{L}end:")
    A("s_endpgm")
    A.lines += COLD
    A(f"{L}slow:")
    A("s_waitcnt vmcnt(0) lgkmcnt(0)")
    srd(A, sK, pK, pK + 1, 16777216)
    srd(A, sV, pV, pV + 1, 16777216)
    kv_dma_voff(A, vKd, vVd, 1)
    A(f"s_lshl_b32 s{sT1}, s{sWave}, 13")
    A(f"s_add_u32 s{sT1}, s{sT1}, {R2}")
    kv_addr(A, sT1)
    for dt in range(4): A(f"v_add_u32 v{vVr+dt}, {R4-R2-16384}, v{vVr+dt}")
    vM = vTm + 6
    A(f"v_mov_b32 v{vM}, 0xff800000")
    A(f"v_mov_b32 v{vM+1}, 0xff800000")
    A(f"v_mov_b32 v{vL}, 0")
    A(f"v_mov_b32 v{vL+1}, 0")
    for i in range(4): A(f"v_mov_b32 v{vTm+12+i}, 0")
    A("s_nop 1")
    for i in range(8): mf32(A, ar(aO + 16 * i, 16), vr(vTm + 12, 4), vr(vTm + 12, 4), "0")
    A(f"s_mov_b32 s{sT}, 0")
    A(f"{L}sl:")
    A(f"s_and_b32 s{sT0}, s{sT}, 15")
    A(f"s_lshl_b32 s{sT0}, s{sT0}, 13")
    A(f"s_lshl_b32 s{sKVo}, s{sHead}, 19")
    A(f"s_add_u32 s{sKVo}, s{sKVo}, s{sT0}")
    A(f"s_add_u32 s{sKVo}, s{sKVo}, {1536*256}")
    for hf in range(2):
        A(f"s_add_u32 m0, s{sT1}, {hf*4096}")
        A("s_nop 0")
        for j in range(4): A(f"buffer_load_dwordx4 v{vKd+j}, s[{sK}:{sK+3}], s{sKVo} offen offset:{j*1024} lds")
        A(f"s_add_u32 m0, s{sT1}, {R4-R2+hf*4096}")
        A("s_nop 0")
        for j in range(4): A(f"buffer_load_dwordx4 v{vVd}, s[{sV}:{sV+3}], s{sKVo} offen offset:{j*1024} lds")
        if hf == 0: A(f"s_add_u32 s{sKVo}, s{sKVo}, 4096")
    A("s_waitcnt vmcnt(0)")
    for p in range(8):
        A(kread(p, 0, p % 4))
        A("s_waitcnt lgkmcnt(0)")
        for qt in range(2): mf32(A, vr(vS + qt * 16, 16), vr(vF + (p % 4) * 4, 4), vr(vQ + (qt * 8 + p) * 4, 4), "0" if p == 0 else None)
    A("s_nop 11")
    A(f"s_cmp_ge_u32 s{sT}, 16")
    A(f"s_cbranch_scc1 {L}sl2")
    for qt in range(2):
        for i in range(8): A(f"v_max3_f32 v{vM+qt}, v{vS+qt*16+2*i}, v{vS+qt*16+2*i+1}, v{vM+qt}")
    A(f"s_cmp_lg_u32 s{sT}, 15")
    A(f"s_cbranch_scc1 {L}sl3")
    A(f"v_mov_b32 v{vM+2}, v{vM}")
    A(f"v_mov_b32 v{vM+3}, v{vM+1}")
    A("s_nop 1")
    A(f"v_permlane32_swap_b32 v{vM+2}, v{vM}")
    A(f"v_permlane32_swap_b32 v{vM+3}, v{vM+1}")
    A(f"v_max_f32 v{vM}, v{vM}, v{vM+2}")
    A(f"v_max_f32 v{vM+1}, v{vM+1}, v{vM+3}")
    A(f"s_branch {L}sl3")
    A(f"{L}sl2:")
    for e in range(32):
        r, qt, ks = sm_reg(0, e)
        A(f"v_sub_f32 v{r}, v{r}, v{vM+qt}")
        A(f"v_exp_f32 v{r}, v{r}")
        A("s_nop 0")
        for x in sm_post(0, e): A(x)
    for i in range(8):
        for sec in range(2): A(vread(i // 4, i % 4, 0, sec, i % 4))
        A("s_waitcnt lgkmcnt(0)")
        for qt in range(2): mf32(A, ar(aO + (qt * 4 + i % 4) * 16, 16), vr(vF + (i % 4) * 4, 4), vr(vP + (qt * 2 + i // 4) * 4, 4))
    A(f"{L}sl3:")
    A(f"s_add_u32 s{sT}, s{sT}, 1")
    A(f"s_cmp_lt_u32 s{sT}, 32")
    A(f"s_cbranch_scc1 {L}sl")
    A(f"v_mov_b32 v{t}, v{vL}")
    A(f"v_mov_b32 v{t+1}, v{vL+1}")
    A("s_nop 1")
    A(f"v_permlane32_swap_b32 v{t}, v{vL}")
    A(f"v_permlane32_swap_b32 v{t+1}, v{vL+1}")
    A(f"v_add_f32 v{vL}, v{vL}, v{t}")
    A(f"v_add_f32 v{vL+1}, v{vL+1}, v{t+1}")
    A(f"v_rcp_f32 v{t}, v{vL}")
    A(f"v_rcp_f32 v{t+1}, v{vL+1}")
    A("s_nop 7")
    A(f"s_branch {L}oep")
    A(f"{L}last:")
    kd(A, name, 512, 256)

def checks(A, entry):
    if XP: return
    nb = check_hazards(A.lines)
    tot = 0
    for wg in (0, 5, 6, 31, 24, 28, 255):
        for w in (0, 1, 3):
            for slow in (0, 1):
                miss = iter([1, 0, 1, 1, 0] if slow else [])
                def hk(x, S):
                    if x.opn == "v_readfirstlane_b32" and "tag" not in x.text:
                        S[sWave] = w
                    if "slowbr" in x.text: return slow
                    if "pollbr" in x.text: return 1
                    if "missbr" in x.text: return next(miss, 0)
                p, c = check_waits(A.lines, entry, {2: wg}, hk)
                tot += p
    print("hazards:", nb, "waits:", tot, c)

def build(fn, stamps=False):
    HDR = open("cdna_kernels/" + NAME + ".s.ref").read().split("; Override")[0]
    A = Asm()
    A(HDR)
    A(f"; @launch grid=(256,1,1) block=(256,1,1) lds={P1_LDS}")
    A('.amdgcn_target "amdgcn-amd-amdhsa--gfx950"')
    A(".text")
    gen_p1(A, NAME + "_kernel", stamps=stamps)
    checks(A, NAME + "_kernel")
    if "ub" in XP:
        A.lines = [l.replace("0x402b1600", "0x422c1600").replace("0x5b402b16", "0x5b422c16") for l in A.lines]
        out = []
        pend = 0
        for i, l in enumerate(A.lines):
            if l == f"s_cmp_eq_u32 s{qP}, 3": l = "s_cmp_eq_u32 0, 0"
            out.append(l)
        A.lines = out
    if any(x.startswith("g_") for x in XP):
        i0 = A.lines.index("p1_gf:"); i1 = A.lines.index("p1_gdone:")
        body = A.lines[i0:i1]
        if "g_nodma" in XP: body = [l for l in body if " lds" not in l]
        if "g_nobar" in XP: body = [l for l in body if not l.startswith("s_barrier")]
        if "g_nowait" in XP: body = [l for l in body if not l.startswith("s_waitcnt lgkmcnt")]
        if "g_noread" in XP: body = [l for l in body if not l.startswith("ds_read")]
        if "g_nop" in XP: body = [("s_nop 0" if " lds" in l else l) for l in body]
        A.lines[i0:i1] = body
    if "hplain" in XP: A.lines = [l.replace(" sc1", "") if ("store" in l and f"s[{sA}:{sA+3}], s6 " not in l and f"s[{sA}:{sA+3}]" in l) else l for l in A.lines]
    if "oplain" in XP: A.lines = [l.replace(" sc1", "") if ("store" in l and f"s[{sA}:{sA+3}], s6 " in l) else l for l in A.lines]
    if "iplain" in XP: A.lines = [l.replace(" sc1", "") if ("store" in l and f"s[{qI}:{qI+3}], s{sT0}" in l) else l for l in A.lines]
    if "nt" in XP: A.lines = [l.replace(" sc1", " sc1 nt") if ("buffer_store" in l) else l for l in A.lines]
    if "sc01" in XP: A.lines = [l.replace(" sc1", " sc0 sc1") if ("buffer_store" in l) else l for l in A.lines]
    open(fn, "w").write(A.text())
if __name__ == "__main__":
    build("fu.s")
    build("fu_st.s", stamps=True)
```

```python
from asmlib import *
from common import *

P1_LDS = 163840
R0, R1, R2, R3, R4 = 0, 32768, 65536, 98304, 131072
CS = R3
TAILBIT = 0x30000
ROT = False
TLBW = True
FLAG = 'byte'
FINE = False
EVMASK = 0x180
vFin = 60
XP = set()

class LQ:
    def __init__(s): s.q = []
    def issue(s, tag): s.q.append(tag)
    def wait(s, A, tags):
        idx = max([i for i, t in enumerate(s.q) if t in tags], default=-1)
        if idx < 0: return
        n = len(s.q) - 1 - idx
        assert n <= 15
        A(f"s_waitcnt lgkmcnt({n})")
        s.q = s.q[idx + 1:]
    def clear(s): s.q = []

sX, sWq, sW1, sW3, sK, sV, sA, sWp, sSrc, sSt = 8, 12, 16, 20, 24, 28, 32, 36, 40, 44
sWave, sHead, sRb, sFb, sHasF = 48, 49, 50, 51, 52
sXo, sWqo, sW13o, sM0X, sM0W, sD, sTail, sSlot = 53, 54, 55, 56, 57, 58, 59, 60
sT0, sT1, sT2 = 61, 62, 63
pX, pK, pV, pWq, pWo, pBx, pW1, pW3, pW2, pOut, pDbg, pWs = range(64, 88, 2)
sKVo, sKVm, sDelta, sT, sU, sMask, sXb, sC0 = 88, 89, 90, 91, 92, 93, 94, 95
sX2, sM0d, sXst, sM0t, sProd, sPo = 76, 74, 75, 3, 4, 5
sE0 = 96
vLane = 1
vXd, vWqd, vW13d, vXr, vWqr, vW13r = 2, 10, 12, 13, 15, 23
vZero = 27
vSt = 28
vTm = 44
vQ = 64
vAcc = 128
aG, aUp, aCs, aXf, aWf, aOne, aWp = 0, 64, 128, 144, 176, 192, 196
vKr, vVr, vKd, vVd, vL, vOo = 14, 10, 2, 6, 22, 24
vWs, vKb, vVb = 56, 57, 58
vS, vP, vF = 128, 192, 208
aO = 128
sNo = 100
pFl = 84
qA, qW, qX, qO, qI = 8, 12, 16, 20, 44
qP, qG, qAo, qWo, qWm, qN, qAs, qWs = 53, 54, 55, 56, 57, 58, 51, 60
qAe, qWe, qNl, qSo, qXo, qRb, qCb, qT0, qT1, qIn = 74, 75, 3, 93, 94, 76, 77, 78, 79, 24
vFo, vFv, vPa, vPb, vAa, vAb, vAo, vAp = 25, 28, 30, 32, 34, 35, 36, 37
vL16, vWr2, vXo2, vL8, vOwn = 54, 2, 4, 5, 6
aA2, aW2, aWq = 0, 64, 64
RING2 = 81920
TOUCH = 0
PMAP = 0x3210
SLP = (0, 0, 0)
COOPX = 1
SPL = (1, 1)
OPT = set()
vTch, sTch = 26, 92
vOnes = 40
vWpB, vWpA = 59, 39
sWpO, sSen = 5, 4


def mf16(A, d, a, b, c=None):
    A(f"v_mfma_f32_16x16x32_bf16 {d}, {a}, {b}, {d if c is None else c}")
def mf32(A, d, a, b, c=None):
    A(f"v_mfma_f32_32x32x16_bf16 {d}, {a}, {b}, {d if c is None else c}")

def spread(items, nslots):
    out = [[] for _ in range(nslots)]
    n = len(items)
    for i, it in enumerate(items):
        out[min(nslots - 1, (i * nslots) // n)].append(it)
    return out

def frag_list(ffn):
    fr = [("Q", p) for p in range(8)]
    if ffn:
        for p in range(4): fr += [("G", p), ("U", p)]
    return fr

def wread(fr, k, sec, buf):
    c, p = fr
    if c == "Q": ad, off = vWqr + p, sec * 1024
    else: ad, off = vW13r + p, (2048 if c == "G" else 3072) + sec * 512
    return f"ds_read_b64_tr_b16 {ar(aWf+buf*4+2*sec,2)}, v{ad} offset:{off + k*16384}"

def xread(s, st, rt):
    return f"ds_read_b128 {ar(aXf+st*16+rt*4,4)}, v{vXr+s} offset:{rt*2048}"

def dma_w(ffn, force=False):
    it = [f"s_max_u32 m0, s{sM0W}, s{sTail}",
          f"buffer_load_dwordx4 v{vWqd}, s[{sWq}:{sWq+3}], s{sWqo} offen lds ; @put W",
          f"buffer_load_dwordx4 v{vWqd+1}, s[{sWq}:{sWq+3}], s{sWqo} offen offset:1024 lds ; @put W"]
    if ffn or force:
        it += [f"buffer_load_dwordx4 v{vW13d}, s[{sW1}:{sW1+3}], s{sW13o} offen offset:2048 lds ; @put W",
               f"buffer_load_dwordx4 v{vW13d}, s[{sW3}:{sW3+3}], s{sW13o} offen offset:3072 lds ; @put W"]
    it += [f"s_add_u32 s{sWqo}, s{sWqo}, {32*8192}"]
    if ffn or force: it += [f"s_add_u32 s{sW13o}, s{sW13o}, {32*3456}"]
    it += [f"s_add_u32 s{sSlot}, s{sSlot}, 16384\ns_and_b32 s{sSlot}, s{sSlot}, 0xffff",
           f"s_add_u32 s{sM0W}, s{sSlot}, s{sC0}"]
    return it

def dma_x(half):
    if half == 0: it = [f"s_mov_b32 m0, s{sM0X}"]
    else: it = [f"s_add_u32 m0, s{sM0X}, s{sM0d}"]
    sd = sX if half == 0 else sX2
    for j in range(4):
        it.append(f"buffer_load_dwordx4 v{vXd+4*half+j}, s[{sd}:{sd+3}], s{sXo} offen offset:{j*1024} lds")
    if half: it += [f"s_add_u32 s{sXo}, s{sXo}, s{sXst}\ns_xor_b32 s{sM0X}, s{sM0X}, s{sM0t}"]
    return it

def fine(A):
    A("s_memtime s[98:99]"); A("s_waitcnt lgkmcnt(0)")
    A("s_mov_b32 m0, s7")
    A(f"v_writelane_b32 v{vFin}, s96, m0")
    A(f"v_writelane_b32 v{vFin+1}, s100, m0")
    A(f"v_writelane_b32 v{vFin-1}, s98, m0")
    A("s_add_u32 s7, s7, 1")

def kstep(A, lq, ffn, k, slots, sal, tog, bar, last=None):
    fr = frag_list(ffn); nf = len(fr)
    ones = {("Q", 0): 0, ("Q", 1): 1, ("G", 0): 2, ("U", 0): 3}
    for f in range(nf):
        c, p = fr[f]
        lq.wait(A, [("w", f)] + ([("x", k)] if f == 0 else []))
        buf = f % 4
        for rt in range(4):
            r_ = rt if f % 2 == 0 else 3 - rt
            if c == "Q": d = vr(vAcc + (p * 4 + r_) * 4, 4)
            else: d = ar((aG if c == "G" else aUp) + (p * 4 + r_) * 4, 4)
            mf16(A, d, ar(aWf + buf * 4, 4), ar(aXf + k * 16 + r_ * 4, 4))
            if f + 3 < nf and rt < 2:
                A(wread(fr[f + 3], k, rt, (f + 3) % 4)); lq.issue(("w", f + 3))
            if last is not None and f >= nf - 2:
                for it in last[4 * (f - nf + 2) + rt]: A(it)
            elif f == nf - 2:
                A(wread(fr[rt // 2], 1 - k, rt % 2, (rt // 2) % 4)); lq.issue(("w", rt // 2))
            elif f == nf - 1 and rt < 2:
                A(wread(fr[2], 1 - k, rt, 2)); lq.issue(("w", 2))
            if rt == 1:
                for it in sal.get(f, []): A(it)
            if rt >= 2 and f < nf - 2:
                for it in slots[2 * f + rt - 2]:
                    if isinstance(it, tuple):
                        A(xread(1 - k, 1 - k, it[1])); lq.issue(("x", 1 - k))
                    else:
                        if "lds" in it and " m0," in A.lines[-1]: A("s_nop 0")
                        A(it)
                        if it.startswith("ds_"): lq.issue(("o", 0))
            if rt == 3:
                for t in tog.get(f, []): A(t)
        if fr[f] in ones:
            mf16(A, ar(aCs + ones[fr[f]] * 4, 4), ar(aWf + buf * 4, 4), ar(aOne, 4))
        if f == nf - 3:
            A(f"s_waitcnt vmcnt({bar[0]}) lgkmcnt(0)")
            lq.clear()
            A(f"s_barrier ; {bar[1]}")

def poll_check(A, L):
    A(f"s_mov_b32 s{sT1}, 0")
    A(f"{L}_chk:")
    A(f"v_cmp_ne_u32 vcc, 0x01010101, v{vTm}")
    A(f"v_cmp_eq_u32 s[6:7], 0, v{vTm+5}")
    A("s_nop 3")
    A(f"s_or_b64 s[6:7], s[6:7], vcc")
    A(f"s_cbranch_scc0 {L}_rdy ; pollbr")
    A(f"s_add_u32 s{sT1}, s{sT1}, 1")
    A(f"s_cmp_ge_u32 s{sT1}, 0x40000")
    A(f"s_cbranch_scc1 {L}_rdy")
    for it in poll_loads(): A(it)
    A("s_waitcnt vmcnt(0)")
    A(f"s_branch {L}_chk")
    A(f"{L}_rdy:")
def poll_loads():
    return [f"global_load_dword v{vTm}, v{vTm+2}, s[{pDbg}:{pDbg+1}] sc1",
            f"global_load_dwordx2 {vr(vTm+4,2)}, v{vTm+6}, s[{pDbg}:{pDbg+1}] offset:128 sc1"]
def stats_scale():
    o = []
    for rt in range(4):
        q = vSt + 4 * rt
        o += [f"v_mul_f32 v{q+3}, {hex(f2u(LOG2E/128**0.5))}, v{q+1}", f"v_mul_f32 v{q+1}, {hex(f2u(-LOG2E))}, v{q+1}"]
    return o + [f"v_mov_b32 v{vTm+4+i}, 0" for i in range(4)]
CSB = [14, 18, 22]
def qp_code():
    if PMAP == 0x3210: return f"s_and_b32 s{qP}, s2, 3"
    return f"s_and_b32 s6, s2, 3\ns_lshl_b32 s6, s6, 2\ns_lshr_b32 s6, {PMAP}, s6\ns_and_b32 s{qP}, s6, 3"
def cs_writes():
    t = vTm
    return [f"ds_write_b128 v{t+8}, {ar(aCs,4)}", f"ds_write_b128 v{t+8}, {ar(aCs+4,4)} offset:64",
            f"ds_write_b128 v{t+9}, {ar(aCs+8,4)}", f"ds_write_b128 v{t+9}, {ar(aCs+12,4)} offset:256"]

def gemm_loop(A, ffn, L):
    fr = frag_list(ffn); nf = len(fr)
    nw = 4 if ffn else 2
    lq = LQ()
    for f in range(3):
        lq.issue(("w", f)); lq.issue(("w", f))
    tg = lambda r, m: [f"v_xor_b32 v{r}, {m}, v{r}"]
    bar = (2 * nw + 8, f"@need W {2*nw}")
    A(".p2align 6")
    A(f"{L}:")
    if not ffn:
        items = [("x", rt) for rt in range(4)] + dma_x(1) + dma_w(ffn)
        kstep(A, lq, ffn, 0, spread(items, 2 * (nf - 2)), {}, {2: tg(vXr, "0x18000")}, bar)
        A(f"s_bitcmp1_b32 s{sMask}, s{sD}")
        A(f"s_cbranch_scc1 {L}_ev")
        A(f"{L}_evret:")
        slots = spread(dma_x(0) + dma_w(ffn) + [f"s_add_u32 s{sD}, s{sD}, 1"], 2 * (nf - 5))
        slots += [[f"s_cmp_eq_u32 s{sD}, 10\ns_cbranch_scc1 {L}_nw\ns_waitcnt vmcnt({2*nw+4})\n{L}_nw:"],
                  [("x", 0)], [("x", 1)], [("x", 2)], [("x", 3)], []]
        tog = {0: tg(vXr + 1, "0x18000")}
        for f, (c, p) in enumerate(fr): tog.setdefault(max(f - 3, -1) + 1, []).extend(tg(vWqr + p, "0x38000"))
        kstep(A, lq, ffn, 1, slots, {}, tog, bar)
        A(f"s_cmp_lt_u32 s{sD}, 10")
        A(f"s_cbranch_scc1 {L}")
        return
    def one(items):
        sl = [[] for _ in range(2 * (nf - 2))]
        for i, it in enumerate(items): sl[2 * i] = [it] if it else []
        return sl
    X = [("x", rt) for rt in range(4)]
    tog0 = {2: tg(vXr, "0x18000")}
    tog1 = {i: tg(vWqr + i, "0x38000") for i in range(7)}
    tog1.update({8: tg(vWqr + 7, "0x38000"), 9: tg(vW13r, "0x38000"), 10: tg(vW13r + 1, "0x38000"), 11: tg(vW13r + 2, "0x38000"),
                 12: tg(vW13r + 3, "0x38000"), 14: tg(vXr + 1, "0x18000")})
    xs, ws_ = dma_x(1), dma_w(True)
    kstep(A, lq, True, 0, one(X[:2] + xs[1:5] + X[2:] + ws_[1:5]),
          {1: [xs[0]], 6: [xs[5]], 7: [ws_[0]], 12: ws_[5:7], 13: ws_[7:], 15: [f"s_cmp_eq_u32 s{sD}, 8"]}, tog0, bar)
    A(f"s_cbranch_scc1 {L}_end")
    q_mid = list(lq.q)
    xs = dma_x(0)
    sl = one(xs[1:5] + ws_[1:5] + X)
    sl[2 * 7 + 1] = [f"s_waitcnt vmcnt({2*nw+4})"]
    kstep(A, lq, True, 1, sl, {0: [xs[0]], 4: [ws_[0]], 8: ws_[5:7], 9: ws_[7:8], 10: ws_[8:], 11: [f"s_add_u32 s{sD}, s{sD}, 1"]}, tog1, bar)
    A(f"s_branch {L}")
    A(f"{L}_end:")
    lq.q = q_mid
    kv = kv_dma()
    sl = one(poll_loads() + [None, None] + kv[1:5] + X)
    sl[2 * 7 + 1] = ["s_waitcnt vmcnt(10)"]
    for j in range(5): sl[2 * j + 1] = []
    tA = {f: list(v) for f, v in tog1.items()}
    mv = {f: [f"v_mov_b32 v{vKd+f}, v{vQ+f}"] for f in range(5)}
    kstep(A, lq, True, 1, sl, {**mv, 3: mv[3] + [f"s_lshl_b32 s{sKVm}, s{sWave}, 12", kv[0]]}, tA, (14, "@need W 4"))
    B_ = Asm(); B_("s_waitcnt vmcnt(4)"); poll_check(B_, L)
    st = [f"buffer_load_dwordx4 {vr(vSt+4*rt,4)}, v{vTm+3}, s[{sSt}:{sSt+3}], s{sT0} offen offset:{rt*256} sc1" for rt in range(4)]
    sl = one(X[:2] + st + X[2:] + kv[6:10])
    sl[1] = ["\n".join(B_.lines)]
    kstep(A, lq, True, 0, sl, {0: [f"s_lshl2_add_u32 s{sT0}, s{sRb}, s{sWave}\ns_lshl_b32 s{sT0}, s{sT0}, 10"], 7: [kv[5]],
                               2: [f"v_readfirstlane_b32 s{sNo}, v{vTm+4} ; tag"], 3: [f"v_readfirstlane_b32 s{sNo+1}, v{vTm+5} ; tag"],
                               4: [f"s_add_u32 s{pFl}, s{pWs}, {FL_OFF}\ns_addc_u32 s{pFl+1}, s{pWs+1}, 0"],
                               12: [f"s_add_u32 s{sKVo}, s{sKVo}, 16384\ns_add_u32 s{sKVm}, s{sKVm}, 32768"]}, {}, (14, "@need W 0"))
    cw = cs_writes()
    sl = one([None] + kv[1:3] + cw[:2] + kv[3:5] + [None] * 3 + [None] + cw[2:])
    ss = stats_scale()
    t = vTm
    last = [[f"ds_read_b128 {vr(CSB[0],4)}, v{t+8}", f"v_xor_b32 v{t+11}, 64, v{t+8}"], ss[0:2], [f"ds_read_b128 {vr(CSB[1],4)}, v{t+11}", ss[2]],
            ss[3:5], ss[5:7], ss[7:9], ss[9:11], ss[11:12] + [qp_code()]]
    kstep(A, lq, True, 1, sl, {0: [kv[0]]}, {}, (8, "@need KV 8"), last=last)

def kv_dma_voff(A, kd_, vd_, nv=4):
    t = vTm
    A(f"v_lshrrev_b32 v{t+12}, 4, v{vLane}")
    A(f"v_and_b32 v{t+14}, 15, v{vLane}")
    A(f"v_xor_b32 v{t+13}, v{t+14}, v{t+12}")
    A(f"v_lshlrev_b32 v{t+13}, 4, v{t+13}")
    A(f"v_lshl_add_u32 v{kd_}, v{t+12}, 8, v{t+13}")
    for j in range(1, 4): A(f"v_xor_b32 v{kd_+j}, {64*j}, v{kd_}")
    A(f"v_lshlrev_b32 v{t+13}, 2, v{t+12}")
    A(f"v_xor_b32 v{t+13}, v{t+13}, v{t+14}")
    A(f"v_lshlrev_b32 v{t+13}, 4, v{t+13}")
    A(f"v_lshl_add_u32 v{vd_}, v{t+12}, 8, v{t+13}")
    for j in range(1, nv): A(f"v_mov_b32 v{vd_+j}, v{vd_}")

def gemm_events(A, L):
    A(f"{L}_ev:")
    A(f"s_cmp_eq_u32 s{sD}, 8")
    A(f"s_cbranch_scc1 {L}_ev8")
    for it in poll_loads(): A(it)
    A(f"s_branch {L}_evret")
    A(f"{L}_ev8:")
    A(f"s_mov_b32 s{sTail}, {TAILBIT}")
    for d in (sWq, sW1, sW3): A(f"s_mov_b32 s{d+2}, 0")
    for d, s_ in ((sX, sK), (sX2, sV)):
        A(f"s_mov_b64 s[{d}:{d+1}], s[{s_}:{s_+1}]")
        A(f"s_mov_b64 s[{d+2}:{d+3}], s[{s_+2}:{s_+3}]")
    for j in range(8): A(f"v_mov_b32 v{vXd+j}, v{vQ+min(j,4)}")
    A(f"s_lshl_b32 s{sM0X}, s{sWave}, 12")
    A(f"s_mov_b32 s{sXo}, s{sKVo}")
    A(f"s_movk_i32 s{sM0d}, 16384")
    A(f"s_movk_i32 s{sXst}, 16384")
    A(f"s_mov_b32 s{sM0t}, 0x8000")
    A(f"s_waitcnt vmcnt(12)")
    poll_check(A, L)
    A(f"v_readfirstlane_b32 s{sNo}, v{vTm+4} ; tag")
    A(f"v_readfirstlane_b32 s{sNo+1}, v{vTm+5} ; tag")
    A(f"s_add_u32 s{pFl}, s{pWs}, {FL_OFF}")
    A(f"s_addc_u32 s{pFl+1}, s{pWs+1}, 0")
    A(f"s_lshl2_add_u32 s{sT0}, s{sRb}, s{sWave}")
    A(f"s_lshl_b32 s{sT0}, s{sT0}, 10")
    for rt in range(4):
        A(f"buffer_load_dwordx4 {vr(vSt+4*rt,4)}, v{vTm+3}, s[{sSt}:{sSt+3}], s{sT0} offen offset:{rt*256} sc1")
    A(f"s_branch {L}_evret")

def kv_addr(A, base_expr_sgpr, only=None):
    vKr, vVr = only or (globals()["vKr"], globals()["vVr"])
    t0, t1, t2, t3 = vTm + 12, vTm + 13, vTm + 14, vTm + 15
    A(f"v_and_b32 v{t0}, 31, v{vLane}")
    A(f"v_lshrrev_b32 v{t1}, 5, v{vLane}")
    A(f"v_and_b32 v{t2}, 15, v{vLane}")
    A(f"v_xor_b32 v{t2}, v{t2}, v{t1}")
    A(f"s_lshl_b32 s{sT0}, s{sWave}, 2")
    A(f"v_xor_b32 v{t2}, s{sT0}, v{t2}")
    A(f"v_lshlrev_b32 v{t2}, 4, v{t2}")
    A(f"v_lshl_add_u32 v{t2}, v{t0}, 8, v{t2}")
    A(f"v_add_u32 v{vKr}, s{base_expr_sgpr}, v{t2}")
    for p in range(1, 1 if only else 8): A(f"v_xor_b32 v{vKr+p}, {32*p}, v{vKr}")
    A(f"v_bfe_u32 v{t0}, v{vLane}, 2, 2")
    A(f"v_lshl_add_u32 v{t2}, v{t1}, 2, v{t0}")
    A(f"v_lshlrev_b32 v{t2}, 8, v{t2}")
    A(f"v_lshl_add_u32 v{t2}, v{t0}, 6, v{t2}")
    A(f"v_bfe_u32 v{t3}, v{vLane}, 1, 1")
    A(f"v_lshl_add_u32 v{t2}, v{t3}, 5, v{t2}")
    A(f"v_bfe_u32 v{t3}, v{vLane}, 4, 1")
    A(f"v_lshl_add_u32 v{t2}, v{t3}, 4, v{t2}")
    A(f"v_and_b32 v{t3}, 1, v{vLane}")
    A(f"v_lshl_add_u32 v{t2}, v{t3}, 3, v{t2}")
    A(f"s_add_u32 s{sT0}, s{base_expr_sgpr}, 16384")
    A(f"v_add_u32 v{vVr}, s{sT0}, v{t2}")
    for dt in range(1, 1 if only else 4): A(f"v_xor_b32 v{vVr+dt}, {64*dt}, v{vVr}")

def kv_dma():
    it = [f"s_mov_b32 m0, s{sKVm}"]
    for j in range(4):
        it.append(f"buffer_load_dwordx4 v{vKd+j}, s[{sK}:{sK+3}], s{sKVo} offen offset:{j*1024} lds")
    it.append("s_add_u32 m0, m0, 16384")
    for j in range(4):
        it.append(f"buffer_load_dwordx4 v{vVd}, s[{sV}:{sV+3}], s{sKVo} offen offset:{j*1024} lds")
    return it

def kread(p, tile, buf):
    return f"ds_read_b128 {vr(vF+buf*4,4)}, v{vKr+p} offset:{tile*8192}"
def vread(ks, dt, tile, sec, buf):
    return f"ds_read_b64_tr_b16 {vr(vF+buf*4+2*sec,2)}, v{vVr+dt} offset:{(32*tile+16*ks+8*sec)*256}"

def sm_reg(buf, e):
    qt = (e >> 3) & 1; ks = e >> 4
    return vS + (buf * 2 + qt) * 16 + ks * 8 + (e & 7), qt, ks
def sm_exp(buf, e):
    r, _, _ = sm_reg(buf, e)
    if "noexp" in XP: return []
    if "movexp" in XP: return [f"v_mov_b32 v{r}, v{r}"]
    return [f"v_exp_f32 v{r}, v{r}"]
def sm_post(buf, e):
    r, qt, ks = sm_reg(buf, e)
    o = [f"v_add_f32 v{vL+qt}, v{vL+qt}, v{r}"]
    if "noadd" in XP: o = []
    if e & 1 and "nocvt" not in XP: o.append(f"v_cvt_pk_bf16_f32 v{vP+(qt*2+ks)*4+((e&7)>>1)}, v{r-1}, v{r}")
    return o

def attn_seg(A, lq, seg, extra, mfma=True, sm_lo=0, sm_hi=64, look=True):
    def rd(phi, part):
        s = (phi // 8) % 4; i = phi % 8; buf = phi % 4
        if s in (0, 2):
            return kread(i, 1 if s == 0 else 0, buf) if part == 0 else None
        return vread(i // 4, i % 4, 0 if s == 1 else 1, part, buf)
    for i in range(8):
        phi = seg * 8 + i
        if mfma and "nowait" not in XP: lq.wait(A, [("f", phi)])
        for qt in range(2):
            slot = seg * 16 + 2 * i + qt
            if mfma:
                if seg in (0, 2):
                    sb = 1 if seg == 0 else 0
                    d = vr(vS + (sb * 2 + qt) * 16, 16)
                    mf32(A, d, vr(vF + (phi % 4) * 4, 4), vr(vQ + (qt * 8 + i) * 4, 4), "0" if i == 0 else None)
                else:
                    ks, dt = i // 4, i % 4
                    mf32(A, ar(aO + (qt * 4 + dt) * 16, 16), vr(vF + (phi % 4) * 4, 4), vr(vP + (qt * 2 + ks) * 4, 4))
            for it in extra.get((slot, "pre"), []): A(it)
            nphi = (phi + 3) % 32
            nseg = nphi // 8
            if look is True or nseg in look:
                r = rd(nphi, qt)
                if r and "noread" not in XP: A(r); lq.issue(("f", nphi))
            for it in extra.get((slot, "ds"), []):
                A(it); lq.issue(("side", 0))
            for it in extra.get(slot, []):
                if it.startswith("v_"): continue
                if "lds" in it and " m0," in A.lines[-1]: A("s_nop 0")
                A(it)
            for (buf, start) in ((1, 22), (0, 54)):
                e = (slot - start) % 64
                if e < 32 and (buf, "exp") in sm_ok(slot, sm_lo, sm_hi, buf, e):
                    for x in sm_exp(buf, e): A(x)
            for (buf, start) in ((1, 22), (0, 54)):
                e = (slot - start - 1) % 64
                if e < 32 and (buf, "exp") in sm_ok((slot - 1) % 64, sm_lo, sm_hi, buf, e):
                    for x in sm_post(buf, e): A(x)
            for it in extra.get(slot, []):
                if it.startswith("v_"): A(it)
            for it in extra.get((slot, "post"), []): A(it)
def sm_ok(slot, lo, hi, buf, e):
    return {(buf, "exp")} if (lo <= slot < hi) else set()

def wp_src_voff(A, d, n=8):
    t = vTm
    A(f"v_lshrrev_b32 v{t+12}, 4, v{vLane}")
    A(f"v_lshlrev_b32 v{t+12}, 1, v{t+12}")
    A(f"v_and_b32 v{t+13}, 7, v{vLane}")
    A(f"v_xor_b32 v{t+12}, v{t+12}, v{t+13}")
    A(f"v_lshlrev_b32 v{t+12}, 4, v{t+12}")
    A(f"v_lshrrev_b32 v{t+13}, 3, v{vLane}")
    A(f"v_mul_u32_u24 v{t+13}, 1280, v{t+13}")
    A(f"v_add_u32 v{d}, v{t+12}, v{t+13}")
    for j in range(1, n): A(f"v_add_u32 v{d+j}, {(j%4)*9216 + (j//4)*128}, v{d}")

def wp_addr(A, sh, note="", reg=R3, n=4, dst=None):
    t = vTm
    A(f"v_bfe_u32 v{t+14}, v{vLane}, 2, 2")
    A(f"v_bfe_u32 v{t+16}, v{vLane}, 4, 1")
    A(f"v_lshl_add_u32 v{t+14}, v{t+16}, 2, v{t+14}")
    A(f"v_lshrrev_b32 v{t+13}, 1, v{t+14}")
    A(f"v_lshlrev_b32 v{t+13}, 5, v{t+13}")
    A(f"v_lshl_add_u32 v{t+13}, v{t+14}, 7, v{t+13}")
    A(f"v_lshrrev_b32 v{t+15}, 5, v{vLane}")
    A(f"v_lshl_add_u32 v{t+13}, v{t+15}, 10, v{t+13}")
    A(f"v_and_b32 v{t+15}, 3, v{vLane}")
    A(f"v_lshl_add_u32 v{t+13}, v{t+15}, 3, v{t+13}")
    A(f"s_lshl_b32 s6, s{sWave}, {sh}")
    A(f"s_add_u32 s6, s6, {reg}")
    A(f"v_add_u32 v{dst or t+4}, s6, v{t+13}{note}")
    for i4 in range(1, n): A(f"v_xor_b32 v{t+4+i4}, {32*i4}, v{t+4}")
def wp_reads(A, stride):
    for su in range(2):
        for i4 in range(4):
            for sec in range(2):
                A(f"ds_read_b64_tr_b16 {ar(aWq+(su*4+i4)*4+2*sec,2)}, v{vTm+4+i4} offset:{su*stride+sec*2048}")
def wp_stores(A, so):
    for su in range(2):
        for i4 in range(4):
            A(f"buffer_store_dwordx4 {ar(aWq+(su*4+i4)*4,4)}, v{vL16}, s[{sWp}:{sWp+3}], s{so} offen offset:{i4*1024} sc1")
        if su == 0: A(f"s_add_u32 s{so}, s{so}, 4096")

def set_flag(A, phase, lab, cls="H"):
    A(f"s_cmp_lg_u32 s{sWave}, 0")
    A(f"s_cbranch_scc1 {lab}")
    A(f"s_add_u32 s6, s{sNo}, {phase}")
    A(f"v_mov_b32 v{vFv}, s6")
    A(f"v_mov_b32 v{vFv+1}, s{sNo+1}")
    A("s_mov_b64 exec, 1")
    A(f"global_store_dwordx2 v{vFo}, {vr(vFv,2)}, s[{pFl}:{pFl+1}] sc1")
    A("s_mov_b64 exec, -1")
def flag_load(A, dst, ad):
    A(f"global_load_dwordx2 {vr(dst,2)}, v{ad}, s[{pFl}:{pFl+1}] sc1")
def flag_wait(A, lab, phase, polls):
    A(f"s_add_u32 s{sT0}, s{sNo}, {phase}")
    A(f"s_mov_b32 s{sT1}, 0")
    A(f"{lab}c:")
    for n, (d, ad) in enumerate(polls):
        A(f"v_subrev_u32 v{d}, s{sT0}, v{d}")
        A(f"v_cmp_ne_u32 s[{sE0+2*n}:{sE0+2*n+1}], s{sNo+1}, v{d+1}")
    for n, (d, ad) in enumerate(polls):
        A(f"v_cmp_lt_u32 " + ("vcc" if n == 0 else "s[6:7]") + f", {3-phase}, v{d}")
    A("s_nop 3")
    A(f"s_or_b64 s[{sE0}:{sE0+1}], s[{sE0}:{sE0+1}], vcc")
    if len(polls) > 1:
        A(f"s_or_b64 s[6:7], s[6:7], s[{sE0+2}:{sE0+3}]")
        A(f"s_or_b64 s[{sE0}:{sE0+1}], s[{sE0}:{sE0+1}], s[6:7]")
    A(f"s_cbranch_scc0 {lab}r ; pollbr")
    A(f"s_add_u32 s{sT1}, s{sT1}, 1")
    A(f"s_cmp_ge_u32 s{sT1}, 0x40000")
    A(f"s_cbranch_scc1 {lab}r")
    if SLP[0]: A(f"s_sleep {SLP[0]}")
    for d, ad in polls: flag_load(A, d, ad)
    A("s_waitcnt vmcnt(0)")
    A(f"s_branch {lab}c")
    A(f"{lab}r:")

def q_setup():
    w = sWave
    return [
     f"s_lshl_b32 s6, s{qP}, 3\ns_lshr_b32 s{qT0}, {hex(0x402b1600)}, s6\ns_and_b32 s{qT0}, s{qT0}, 0xff",
     f"s_lshr_b32 s{qT1}, {hex(0x5b402b16)}, s6\ns_and_b32 s{qT1}, s{qT1}, 0xff",
     f"s_and_b32 s{sT2}, s{w}, 1\ns_lshl_b32 s6, s{sT2}, 11\ns_lshl_b32 s{qAs}, s{qT0}, 13",
     f"s_add_u32 s{qAs}, s{qAs}, s6\ns_lshr_b32 s7, s{w}, 1\ns_lshl_b32 s6, s{qCb}, 1",
     f"s_add_u32 s6, s6, s7\ns_mul_i32 s6, s6, 5120\ns_mul_i32 s{qWs}, s{qT0}, 81920",
     f"s_add_u32 s{qWs}, s{qWs}, s6\ns_mul_i32 s6, s{sT2}, 40960\ns_add_u32 s{qWs}, s{qWs}, s6",
     f"s_lshl_b32 s{qAe}, s{qT1}, 13\ns_mul_i32 s{qWe}, s{qT1}, 81920\ns_mov_b32 s{qAo}, s{qAs}",
     f"s_mov_b32 s{qWo}, s{qWs}\ns_mul_i32 s{qWm}, s{sT2}, 10240\ns_mul_i32 s6, s7, 5120",
     f"s_add_u32 s{qWm}, s{qWm}, s6\ns_lshl_b32 s6, s{qRb}, 1\ns_add_u32 s6, s6, s7",
     f"s_mul_i32 s6, s6, {A_BLK}\ns_add_u32 s{qA}, s{pWs}, s6\ns_addc_u32 s{qA+1}, s{pWs+1}, 0",
     f"s_and_b32 s{qA+1}, s{qA+1}, 0xffff\ns_cmp_eq_u32 s{qP}, 3\ns_cselect_b32 s{qA+2}, s{qAe}, 0\ns_cselect_b32 s{qW+2}, s{qWe}, 0\ns_mov_b32 s{qA+3}, 0x20000",
     f"s_mov_b32 s{qW}, s{sWp}\ns_mov_b32 s{qW+1}, s{sWp+1}\ns_mov_b32 s{qW+3}, 0x20000",
     f"s_lshl2_add_u32 s6, s{qRb}, s{qP}\ns_lshl_b32 s6, s6, 1\ns_add_u32 s6, s6, s7\ns_mul_i32 s{qXo}, s6, 20480",
     f"s_lshl_b32 s6, s{qCb}, 1\ns_add_u32 s6, s6, s{sT2}\ns_mul_i32 s6, s6, 160\ns_add_u32 s{qXo}, s{qXo}, s6",
     f"s_xor_b32 s{qT0}, s{w}, s{qP}\ns_mul_i32 s{qT1}, s{w}, 3\ns_add_u32 s{qT1}, s{qT1}, s{qT0}\ns_sub_u32 s{qT1}, s{qT1}, 1",
     f"s_mul_i32 s{qT1}, s{qT1}, 10240\ns_cmp_eq_u32 s{qT0}, 0\ns_cselect_b32 s{qSo}, 0x100000, s{qT1}",
    ]

def q_loads(slot):
    it = [f"s_add_u32 m0, s{qWm}, {slot*20480}"]
    for j in range(4):
        it.append(f"buffer_load_dwordx4 v{vL16}, s[{qW}:{qW+3}], s{qWo} offen offset:{j*1024} sc1 lds ; @put W2")
    it.append(f"s_add_u32 m0, s{qWm}, {slot*20480+4096}")
    it.append(f"buffer_load_dwordx4 v{vL16+1}, s[{qW}:{qW+3}], s{qWo} offen sc1 lds ; @put W2")
    for k in range(2):
        for rt in range(2):
            it.append(f"buffer_load_dwordx4 {ar(aA2+(slot*4+k*2+rt)*4,4)}, v{vL16+k}, s[{qA}:{qA+3}], s{qAo} offen offset:{rt*1024} sc1")
    it.append(f"s_add_u32 s{qWo}, s{qWo}, 81920\ns_add_u32 s{qAo}, s{qAo}, 8192")
    return it

def gemm2(A, L, emit, stamp, cold):
    ac, vT, vX, vZ = 64, 144, 168, 180
    srd(A, qX, pX, pX + 1, X_SIZE)
    srd(A, qO, pOut, pOut + 1, X_SIZE)
    for i in range(4): A(f"v_mov_b32 v{vZ+i}, 0")
    A(f"v_and_b32 v{vT}, 15, v{vLane}")
    A(f"v_mul_u32_u24 v{vT}, 1280, v{vT}")
    A(f"v_lshrrev_b32 v{vT+1}, 4, v{vLane}")
    A(f"v_lshl_add_u32 v{vXo2}, v{vT+1}, 3, v{vT}")
    def zero():
        for i in range(5): mf32(A, vr(ac + 16 * i, 16), vr(vZ, 4), vr(vZ, 4), "0")
    zero()
    A(f"v_mov_b32 v{vWr2}, v{vL16}")
    A(f"v_add_u32 v{vWr2+1}, 40960, v{vL16}")
    A(f"v_lshlrev_b32 v{vL8}, 3, v{vLane}")
    A(f"v_add_u32 v{vOwn}, {RING2}, v{vL16}")
    A(f"s_mov_b32 s{qN}, 0")
    def wread2(slot, f, buf):
        k, ct = f // 10, f % 10
        return f"ds_read_b128 {ar(aW2+buf*4,4)}, v{vWr2+slot//2} offset:{(slot%2)*20480+k*10240+ct*1024}"
    def xload():
        for ct in range(5):
            A(f"buffer_load_dwordx2 {vr(vX+2*ct,2)}, v{vXo2}, s[{qX}:{qX+3}], s{qXo} offen offset:{ct*32}")
    A(f"s_cmp_eq_u32 s{qP}, 3")
    A(f"s_cselect_b32 s{qT0}, 18, 99")
    A(f"s_cselect_b32 s{qNl}, 24, 19")
    A(f"s_cbranch_scc1 {L}qh")
    flag_load(A, vPa, vAo)
    A("s_waitcnt vmcnt(0)")
    A("s_barrier")
    set_flag(A, 3, f"{L}f2")
    A(f"{L}f2:")
    A(f"s_mov_b32 s{qA+2}, s{qAe}")
    A(f"s_mov_b32 s{qW+2}, s{qWe}")
    A(f"s_mov_b32 s{qAo}, s{qAs}")
    A(f"s_mov_b32 s{qWo}, s{qWs}")
    flag_wait(A, f"{L}w2", 2, [(vPa, vAo)])
    flag_load(A, vPb, vAb)
    A(f"s_cmp_lg_u32 s{qP}, 0")
    A(f"s_cbranch_scc1 {L}qb")
    for s0 in (1, 2):
        if s0 == 2:
            A(f"{L}qb:")
            A(f"s_mov_b32 s{qNl}, 18")
        for s_ in range(s0, s0 + 3):
            emit(q_loads(s_ % 4)[:7])
            A(f"s_add_u32 s{qWo}, s{qWo}, 81920")
        xload()
        A("s_waitcnt vmcnt(20)")
        if True:
            A(f"s_cmp_lg_u32 s{sWave}, 0")
            A(f"s_cbranch_scc1 {L}w4{s0}r")
        flag_wait(A, f"{L}w4{s0}", 3, [(vPb, vAb)])
        if True: A("s_barrier")
        stamp(8)
        for s_ in range(s0, s0 + 3):
            emit(q_loads(s_ % 4)[7:11])
            A(f"s_add_u32 s{qAo}, s{qAo}, 8192")
        A("s_waitcnt vmcnt(4)")
        A("s_barrier ; @need W2 0")
        stamp(9)
        for f in range(3): A(wread2(s0, f, f))
        A(f"s_branch {L}q{s0}")
    A(f"{L}qh:")
    stamp(8)
    xload()
    A(f"s_waitcnt vmcnt(5)")
    A("s_barrier ; @need W2 0")
    set_flag(A, 3, f"{L}f3")
    A(f"{L}f3:")
    stamp(9)
    for f in range(3): A(wread2(0, f, f))
    lq = LQ()
    for f in range(3): lq.issue(f)
    if "q_oob" in XP:
        A(f"s_mov_b32 s{qA+2}, 0"); A(f"s_mov_b32 s{qW+2}, 0")
    A(".p2align 6")
    A(f"{L}q:")
    for slot in range(4):
        ns = (slot + 1) % 4
        if slot in (1, 2): A(f"{L}q{slot}:")
        slots = spread(q_loads((slot + 3) % 4), 16)
        if "q_noload" in XP: slots = [[] for _ in range(16)]
        if "q_noA" in XP: slots = [[x for x in sl if "a[" not in x] for sl in slots]
        if "q_noW" in XP: slots = [[x for x in sl if "lds" not in x] for sl in slots]
        for f in range(20):
            k, ct = f // 10, f % 10
            lq.wait(A, [f])
            for r in range(2):
                rt = r if f % 2 == 0 else 1 - r
                mf16(A, vr(ac + (rt * 10 + ct) * 4, 4), ar(aW2 + (f % 4) * 4, 4), ar(aA2 + (slot * 4 + k * 2 + rt) * 4, 4))
                if r == 0 and f + 3 < 20:
                    A(wread2(slot, f + 3, (f + 3) % 4)); lq.issue(f + 3)
                if f == 18:
                    A(wread2(ns, r, r)); lq.issue(r)
                if f == 19 and r == 0:
                    A(wread2(ns, 2, 2)); lq.issue(2)
                if r == 1 and f < 16: emit(slots[f])
            if f == 17:
                A("s_waitcnt vmcnt(18) lgkmcnt(0)")
                lq.clear()
                if "q_nobar" not in XP: A("s_barrier ; @need W2 10")
            if f == 19:
                A(f"s_add_u32 s{qN}, s{qN}, 1")
        if slot == 1:
            A(f"s_cmp_eq_u32 s{qT0}, s{qN}")
            A(f"s_cbranch_scc1 {L}qe1")
            A(f"{L}qr1:")
    A(f"s_cmp_lg_u32 s{qNl}, s{qN}")
    A(f"s_cbranch_scc1 {L}q")
    mkq = len(A.lines)
    A(f"{L}qe1:")
    flag_load(A, vPb, vAp)
    A(f"s_branch {L}qr1")
    cold(mkq, f"{L}c4", None)
    A(f"s_cmp_lg_u32 s{qP}, 3")
    A(f"s_cbranch_scc1 {L}qy")
    flag_wait(A, f"{L}w3", 3, [(vPb, vAp)])
    A(f"{L}qy:")
    def send(c, so):
        b = vT + (c // 2) * 12
        it = [f"v_cvt_pk_bf16_f32 v{b+i}, v{ac+c*20+2*i}, v{ac+c*20+2*i+1}" for i in range(10)]
        it += [f"v_min_u32 v{b+i}, -2, v{b+i}" for i in range(10)]
        return it + [f"buffer_store_dwordx4 {vr(b,4)}, v{vL16}, s[{qI}:{qI+3}], s{so} offen sc1",
                     f"buffer_store_dwordx4 {vr(b+4,4)}, v{vL16}, s[{qI}:{qI+3}], s{so} offen offset:1024 sc1",
                     f"buffer_store_dwordx2 {vr(b+8,2)}, v{vL8}, s[{qI}:{qI+3}], s{so} offen offset:2048 sc1"]
    order_ = [(sl, k * 10 + h * 5 + i) for h in range(2) for sl in range(3) for k in range(2) for i in range(5)]
    fill = spread(send(0, qSo) + send(2, sT0), 30)
    nq = len(order_)
    held = []
    for n, (sl, f) in enumerate(order_):
        k, ct = f // 10, f % 10
        lq.wait(A, [n])
        for r in range(2):
            rt = r if n % 2 == 0 else 1 - r
            mf16(A, vr(ac + (rt * 10 + ct) * 4, 4), ar(aW2 + (n % 4) * 4, 4), ar(aA2 + (sl * 4 + k * 2 + rt) * 4, 4))
            if n in (7, 17) and r == 0: held.append(n + 3)
            elif r == 0 and n + 3 < nq:
                if held:
                    m = held.pop(); A(wread2(*order_[m], m % 4)); lq.issue(m); held.append(-(n + 3))
                else:
                    A(wread2(*order_[n + 3], (n + 3) % 4)); lq.issue(n + 3)
            elif r == 1 and held and held[0] < 0:
                m = -held.pop(); A(wread2(*order_[m], m % 4)); lq.issue(m)
            if n == 0 and r == 1: A(f"s_add_u32 s{sT0}, s{qSo}, 5120\ns_add_u32 s{sT1}, s{qSo}, 2560\ns_add_u32 s{sT2}, s{qSo}, 7680")
            g_ = 2 * n + r - 63
            if 0 <= g_ < 30:
                for it in fill[g_]: A(it)
        if n in (7, 17):
            A(f"s_waitcnt vmcnt({9 if n == 7 else 0})")
            A(f"s_barrier")
    stamp(10)
    A("s_nop 1")
    for it in send(1, sT1) + send(3, sT2): A(it)
    A(f"s_cmp_lg_u32 s{sWave}, s{qP}")
    A(f"s_cbranch_scc1 {L}no1")
    for i in range(20): A(f"ds_write_b128 v{vOwn}, {vr(ac+4*i,4)} offset:{i*1024}")
    A("s_waitcnt lgkmcnt(0)")
    A(f"{L}no1:")
    S, U, IN, XR, E, T = 64, 84, 104, 184, 204, 224
    A(f"s_mul_i32 s{sT0}, s{sWave}, 5120")
    A(f"v_add_u32 v{vOwn}, s{sT0}, v{vOwn}")
    A(f"s_mul_i32 s{sT0}, s{qP}, 30720")
    A(f"s_mul_i32 s{sT1}, s{sWave}, 2560")
    A(f"s_add_u32 s{sT0}, s{sT0}, s{sT1}")
    A(f"s_lshl_b32 s6, s{qP}, 3")
    A(f"s_lshr_b32 s6, {hex(0x24094218 >> 0 if False else (0x24 | 0x18 << 8 | 0x09 << 16 | 0x24 << 24))}, s6")
    for i in range(3):
        A(f"s_bfe_u32 s7, s6, {hex(0x20000 | 2*i)}")
        A(f"s_mul_i32 s7, s7, 10240")
        A(f"s_add_u32 s{qIn+i}, s{sT0}, s7")
    def inload(sl):
        b = IN + sl * 10
        A(f"buffer_load_dwordx4 {vr(b,4)}, v{vL16}, s[{qI}:{qI+3}], s{qIn+sl} offen sc1")
        A(f"buffer_load_dwordx4 {vr(b+4,4)}, v{vL16}, s[{qI}:{qI+3}], s{qIn+sl} offen offset:1024 sc1")
        A(f"buffer_load_dwordx2 {vr(b+8,2)}, v{vL8}, s[{qI}:{qI+3}], s{qIn+sl} offen offset:2048 sc1")
    A("s_barrier")
    stamp(11)
    if SLP[2] == 1: A("s_waitcnt vmcnt(0)")
    if SLP[2] > 1: A(f"s_sleep {SLP[2]}")
    for sl in range(3): inload(sl)
    for i in range(5): A(f"ds_read_b128 {vr(S+4*i,4)}, v{vOwn} offset:{i*1024}")
    for i in range(10):
        A(f"v_lshlrev_b32 v{XR+2*i}, 16, v{vX+i}")
        A(f"v_and_b32 v{XR+2*i+1}, 0xffff0000, v{vX+i}")
    def unpack(sl, dst):
        for i in range(10):
            A(f"v_lshlrev_b32 v{dst+2*i}, 16, v{IN+sl*10+i}")
            A(f"v_and_b32 v{dst+2*i+1}, 0xffff0000, v{IN+sl*10+i}")
    def addin(sl, dst):
        unpack(sl, T)
        for i in range(10): A(f"v_pk_add_f32 {vr(dst+2*i,2)}, {vr(dst+2*i,2)}, {vr(T+2*i,2)}")
    def gate(src):
        for i in range(20): A(f"v_mul_f32 v{E+i}, s{sT0}, v{src+i}")
        for i in range(20): A(f"v_exp_f32 v{E+i}, v{E+i}")
        for i in range(20): A(f"v_add_f32 v{E+i}, 1.0, v{E+i}")
        for i in range(20): A(f"v_rcp_f32 v{E+i}, v{E+i}")
        A("s_nop 0")
        for i in range(10): A(f"v_pk_mul_f32 {vr(U+2*i,2)}, {vr(src+2*i,2)}, {vr(E+2*i,2)}")
    A(f"s_mov_b32 s{sT0}, {hex(f2u(-LOG2E))}")
    A(f"s_mov_b32 s{sT1}, 0")
    A(f"s_mov_b32 s{sT2}, 7")
    A(f"s_cmp_lg_u32 s{qP}, 3")
    A("s_waitcnt lgkmcnt(0)")
    A(f"s_cbranch_scc1 {L}sc")
    gate(S)
    A(f"{L}sc:")
    A("s_waitcnt vmcnt(0)")
    for sl in (2, 0, 1):
        b = IN + 10 * sl
        A(f"s_bitcmp1_b32 s{sT2}, {sl}")
        A(f"s_cbranch_scc0 {L}sn{sl}")
        A(f"v_max3_u32 v154, v{b}, v{b+1}, v{b+2}")
        A(f"v_max3_u32 v155, v{b+3}, v{b+4}, v{b+5}")
        A(f"v_max3_u32 v154, v154, v{b+6}, v{b+7}")
        A(f"v_max3_u32 v155, v155, v{b+8}, v{b+9}")
        A(f"v_max_u32 v154, v154, v155")
        A(f"v_cmp_eq_u32 vcc, -1, v154")
        A(f"s_cmp_ge_u32 s{sT1}, 0x40000")
        A(f"s_cbranch_scc1 {L}sy{sl}")
        A("s_nop 1")
        A(f"s_cbranch_vccnz {L}sm{sl} ; missbr")
        A(f"{L}sy{sl}:")
        A(f"s_bitset0_b32 s{sT2}, {sl}")
        if sl == 2:
            A(f"s_cmp_eq_u32 s{qP}, 3")
            A(f"s_cbranch_scc1 {L}s3")
            unpack(2, U)
            gate(U)
            A(f"s_branch {L}sn{sl}")
            A(f"{L}s3:")
        unpack(sl, (134, 224, S)[sl])
        A(f"s_branch {L}sn{sl}")
        A(f"{L}sm{sl}:")
        inload(sl)
        A(f"{L}sn{sl}:")
    A(f"s_add_u32 s{sT1}, s{sT1}, 1")
    A(f"s_cmp_lg_u32 s{sT2}, 0")
    A(f"s_cbranch_scc1 {L}sc")
    stamp(12)
    for b in (134, 224):
        for i in range(10): A(f"v_pk_add_f32 {vr(S+2*i,2)}, {vr(S+2*i,2)}, {vr(b+2*i,2)}")
    for i in range(10): A(f"v_pk_fma_f32 {vr(XR+2*i,2)}, {vr(S+2*i,2)}, {vr(U+2*i,2)}, {vr(XR+2*i,2)}")
    for i in range(10): A(f"v_cvt_pk_bf16_f32 v{vX+i}, v{XR+2*i}, v{XR+2*i+1}")
    for ct in range(5):
        A(f"buffer_store_dwordx2 {vr(vX+2*ct,2)}, v{vXo2}, s[{qO}:{qO+3}], s{qXo} offen offset:{ct*32}" + (" sc1" if "outsc1" in OPT else ""))
    stamp(13)

def gen_p1(A, name, stamps=False, code_bytes=32768, pf_rounds=2):
    head(A, name)
    L = "p1_"
    A("s_cmp_ge_u32 s2, 256")
    A(f"s_cbranch_scc1 {L}end")
    A("s_load_dwordx16 s[64:79], s[0:1], 0")
    A("s_load_dwordx8 s[80:87], s[0:1], 64")
    A(f"s_memrealtime s[{sNo}:{sNo+1}]")
    if stamps: A("s_memtime s[94:95]")
    def stamp(i, att=False):
        if not stamps: return
        if "attst" in OPT:
            if i >= 5 and not att: return
        elif att: return
        A(f"s_memtime s[96:97]")
        A(f"s_memrealtime s[98:99]")
        A("s_waitcnt lgkmcnt(0)")
        A(f"v_mov_b32 v{vTm+18}, s96"); A(f"v_mov_b32 v{vTm+19}, s98")
        A(f"s_lshl_b32 s96, s2, 2"); A(f"s_add_u32 s96, s96, s{sWave}"); A("s_lshl_b32 s96, s96, 7")
        A(f"v_mov_b32 v{vZero}, s96")
        if i == 0: A(f"v_mov_b32 v{vTm+16}, s94")
        A(f"s_add_u32 s96, s{pWs}, 0x3100000"); A(f"s_addc_u32 s97, s{pWs+1}, 0")
        A(f"global_store_dwordx2 v{vZero}, {vr(vTm+18,2)}, s[96:97] offset:{i*8}")
        if i == 0: A(f"global_store_dword v{vZero}, v{vTm+16}, s[96:97] offset:120")
    t = vTm
    COLD = []
    def cold(mark, lab, back):
        blk = A.lines[mark:]; del A.lines[mark:]
        COLD.extend([f"{lab}:"] + blk + ([f"s_branch {back}"] if back else []))
    def emit(items):
        for it in items:
            if "lds" in it and " m0," in A.lines[-1]: A("s_nop 0")
            A(it)
    A(f"v_and_b32 v{vLane}, 63, v0")
    A("v_lshrrev_b32 v0, 6, v0")
    A("s_and_b32 s6, s2, 7")
    A(f"v_readfirstlane_b32 s{sWave}, v0")
    A(f"s_lshr_b32 s{sT0}, s2, 3")
    A(f"s_lshr_b32 s{sRb}, s{sT0}, 2")
    A(f"s_and_b32 s{sT1}, s{sT0}, 3")
    if True:
        A("s_getpc_b64 s[4:5]")
        A(f"{L}pc:")
        A(f"s_lshl2_add_u32 s7, s{sT0}, s{sWave}")
        A(f"s_mul_i32 s7, s7, ({L}last-{L}pc)/1024")
        A("s_lshr_b32 s7, s7, 7")
        A("s_lshl_b32 s7, s7, 10")
        A(f"v_lshl_add_u32 v{vTm+4}, v{vLane}, 4, s7")
        A(f"global_load_dwordx4 {ar(240,4)}, v{vTm+4}, s[4:5]")
    A(f"s_lshl2_add_u32 s{sHead}, s6, s{sT1}")
    A(f"s_sub_u32 s{sT2}, s6, s{sRb}")
    A(f"s_add_u32 s{sT2}, s{sT2}, 3")
    A(f"s_and_b32 s{sT2}, s{sT2}, 7")
    A(f"s_mul_i32 s{sFb}, s6, 3")
    A(f"s_add_u32 s{sFb}, s{sFb}, s{sT1}")
    A(f"s_add_u32 s7, s{sT2}, 24")
    A(f"s_cmp_eq_u32 s{sT1}, 3")
    A(f"s_cselect_b32 s{sFb}, s7, s{sFb}")
    A(f"s_cmp_lt_u32 s{sFb}, 27")
    A(f"s_cselect_b32 s{sHasF}, 1, 0")
    A(f"s_sub_u32 s{sProd}, s{sFb}, 27")
    A(f"v_lshrrev_b32 v{t+7}, 3, v{vLane}")
    A(f"v_and_b32 v{t+6}, 7, v{vLane}")
    A(f"v_lshrrev_b32 v{t+12}, 4, v{vLane}")
    A(f"v_xor_b32 v{t+13}, v{t+6}, v{t+12}")
    A(f"v_lshlrev_b32 v{t+13}, 4, v{t+13}")
    A(f"s_movk_i32 s6, 1280")
    A(f"v_mad_u32_u24 v{vXd}, v{t+7}, s6, v{t+13}")
    A(f"v_xor_b32 v{t+13}, 64, v{vXd}")
    for j in range(1, 8):
        A(f"v_add_u32 v{vXd+j}, {j*10240-(j%4)*1024}, v{(t+13) if j&1 else vXd}")
    A(f"s_lshl2_add_u32 s6, s{sRb}, s{sWave}")
    A(f"s_mul_i32 s{sXo}, s6, {64*1280}")
    A(f"s_mul_i32 s{sKVo}, s6, {A_BLK}")
    A(f"s_lshl_b32 s{sM0X}, s{sWave}, 13")
    A(f"s_add_u32 s{sM0X}, s{sM0X}, {R1}")
    A(f"s_mov_b32 s{sTail}, 0")
    A(f"s_and_b32 s6, s{sWave}, 1")
    A(f"s_lshl_b32 s7, s6, 2")
    A(f"v_add_u32 v{t+13}, s7, v{t+12}")
    A(f"v_lshlrev_b32 v{t+13}, 1, v{t+13}")
    A(f"v_and_b32 v{t+14}, 15, v{vLane}")
    A(f"v_xor_b32 v{t+13}, v{t+13}, v{t+14}")
    A(f"v_lshlrev_b32 v{t+13}, 4, v{t+13}")
    A(f"s_lshl_b32 s7, s{sWave}, 3")
    A(f"v_add_u32 v{t+15}, s7, v{t+12}")
    A(f"v_lshl_add_u32 v{vWqd}, v{t+15}, 13, v{t+13}")
    A(f"v_add_u32 v{vWqd+1}, {4*8192-1024}, v{vWqd}")
    A(f"v_bfe_u32 v{t+13}, v{vLane}, 4, 1")
    A(f"s_lshl_b32 s6, s6, 1")
    A(f"v_add_u32 v{t+13}, s6, v{t+13}")
    A(f"v_lshlrev_b32 v{t+13}, 1, v{t+13}")
    A(f"v_xor_b32 v{t+13}, v{t+13}, v{t+6}")
    A(f"v_lshlrev_b32 v{t+13}, 4, v{t+13}")
    A(f"v_add_u32 v{t+15}, s7, v{t+7}")
    A(f"s_movk_i32 s6, 3456")
    A(f"v_mad_u32_u24 v{vW13d}, v{t+15}, s6, v{t+13}")
    A(f"s_lshl_b32 s{sWqo}, s{sHead}, 8")
    A(f"s_lshl_b32 s{sW13o}, s{sFb}, 7")
    A(f"s_mov_b32 s{sSlot}, 0")
    A(f"s_lshl_b32 s{sM0W}, s{sWave}, 12")
    A(f"s_add_u32 s{sM0W}, s{sM0W}, {R3}")
    for d, sz in ((sX, X_SIZE), (sWq, 640 * 8192)):
        A(f"s_mov_b32 s{d+2}, {sz}")
        A(f"s_mov_b32 s{d+3}, 0x20000")
    for (d, p, sh) in ((sW1, pW1, 2048), (sW3, pW3, 3072)):
        A(f"s_mul_i32 s{d+2}, s{sHasF}, {640*3456+sh}")
        A(f"s_mov_b32 s{d+3}, 0x20000")
    A("s_waitcnt lgkmcnt(0)")
    A(f"s_mov_b32 s{sC0}, s{sM0W}")
    for d, p in ((sX, pX), (sWq, pWq)):
        A(f"s_mov_b32 s{d}, s{p}")
        A(f"s_and_b32 s{d+1}, s{p+1}, 0xffff")
    for (d, p, sh) in ((sW1, pW1, 2048), (sW3, pW3, 3072)):
        A(f"s_sub_u32 s{d}, s{p}, {sh}")
        A(f"s_subb_u32 s{d+1}, s{p+1}, 0")
        A(f"s_and_b32 s{d+1}, s{d+1}, 0xffff")
    A(f"s_mov_b64 s[{sX2}:{sX2+1}], s[{sX}:{sX+1}]")
    A(f"s_mov_b64 s[{sX2+2}:{sX2+3}], s[{sX+2}:{sX+3}]")
    A(f"s_movk_i32 s{sM0d}, 4096")
    A(f"s_movk_i32 s{sXst}, 128")
    A(f"s_mov_b32 s{sM0t}, 0x18000")
    RAW, UNP = 64, 96
    A(f"v_mov_b32 v{t+5}, 0")
    A(f"s_cmp_ge_u32 s{sProd}, 4")
    A(f"s_cbranch_scc0 {L}c1")
    mk_ = len(A.lines)
    A(f"v_lshrrev_b32 v{t+5}, 2, v{vLane}")
    A(f"v_and_b32 v{t+13}, 3, v{vLane}")
    A(f"v_lshlrev_b32 v{t+13}, 4, v{t+13}")
    A(f"s_movk_i32 s6, 1280")
    A(f"v_mad_u32_u24 v{t+13}, v{t+5}, s6, v{t+13}")
    A(f"s_lshl2_add_u32 s6, s{sRb}, s{sProd}")
    A(f"s_lshl2_add_u32 s6, s6, s{sWave}")
    A(f"s_lshl_b32 s7, s6, 8")
    A(f"v_lshl_add_u32 v{t+5}, v{t+5}, 4, s7")
    A(f"s_mul_i32 s6, s6, {16*1280}")
    for i in range(20):
        A(f"buffer_load_dwordx4 {vr(RAW+4*i,4)}, v{t+13}, s[{sX}:{sX+3}], s6 offen offset:{i*64}")
    cold(mk_, f"{L}c1", f"{L}np1")
    A(f"{L}np1:")
    if "coop" in OPT:
        A(f"s_and_b32 s6, s{sHead}, 3")
        A(f"s_lshl2_add_u32 s6, s{sRb}, s6")
        A(f"s_lshl2_add_u32 s6, s6, s{sWave}")
        A(f"s_mul_i32 s6, s6, {16*1280}")
        A(f"v_and_b32 v{t+13}, 15, v{vLane}")
        A(f"v_mul_u32_u24 v{t+13}, 1280, v{t+13}")
        A(f"v_bfe_u32 v{t+14}, v{vLane}, 4, {COOPX}")
        A(f"v_lshl_add_u32 v{t+13}, v{t+14}, 7, v{t+13}")
        A(f"buffer_load_dword v0, v{t+13}, s[{sX}:{sX+3}], s6 offen")
        A(f"s_lshl2_add_u32 s7, s{sRb}, s{sWave}")
        A(f"v_and_b32 v{t+14}, 3, v{vLane}")
        A(f"v_lshl_add_u32 v{t+14}, v{t+14}, 5, s7")
        A(f"v_bfe_u32 v{t+15}, v{vLane}, 2, 1")
        A(f"v_lshlrev_b32 v{t+15}, 7, v{t+15}")
        A(f"v_lshl_add_u32 v{t+15}, v{t+14}, 13, v{t+15}")
        A(f"v_mul_u32_u24 v{t+14}, 3456, v{t+14}")
        A(f"buffer_load_dword v0, v{t+15}, s[{sWq}:{sWq+3}], s{sWqo} offen")
        A(f"buffer_load_dword v0, v{t+14}, s[{sW1}:{sW1+3}], s{sW13o} offen offset:2048")
        A(f"buffer_load_dword v0, v{t+14}, s[{sW3}:{sW3+3}], s{sW13o} offen offset:3072")
    emit(dma_w(True)); emit(dma_x(0))
    stamp(0)
    A(f"s_add_u32 s{sA}, s{pWs}, s{sKVo}")
    A(f"s_addc_u32 s{sA+1}, s{pWs+1}, 0")
    srd(A, sA, sA, sA + 1, A_BLK)
    A(f"s_add_u32 s{sWp}, s{pWs}, {W_OFF}")
    A(f"s_addc_u32 s{sWp+1}, s{pWs+1}, 0")
    srd(A, sWp, sWp, sWp + 1, W_SIZE)
    A(f"s_lshl2_add_u32 s{sT1}, s{sHead}, s{sWave}")
    A(f"s_mul_i32 s{sU}, s{sT1}, 10")
    A(f"s_lshl_b32 s{sT2}, s{sRb}, 1")
    A(f"s_add_u32 s{sU}, s{sU}, s{sT2}")
    A(f"s_mul_i32 s{sT1}, s{sT1}, 40960")
    A(f"s_lshl_b32 s{sT2}, s{sRb}, 8")
    A(f"s_add_u32 s{sPo}, s{sT1}, s{sT2}")
    srd(A, sSrc, pWo, pWo + 1, 4096 * 1280)
    A(f"s_cmp_lt_u32 s{sRb}, 5")
    A(f"s_cselect_b32 s{sSrc+2}, s{sSrc+2}, 0")
    A(f"s_cselect_b32 s{sU}, s{sU}, 2000")
    A(f"v_mov_b32 v{t+6}, 0")
    A(f"s_or_b32 s6, s2, s{sWave}")
    A(f"s_cbranch_scc1 {L}ntag")
    A(f"s_lshl_b64 s[6:7], s[{sNo}:{sNo+1}], 2")
    A(f"s_or_b32 s7, s7, 0x80000000")
    A(f"v_mov_b32 v{t+14}, s6")
    A(f"v_mov_b32 v{t+15}, s7")
    A("s_mov_b64 exec, 1")
    A(f"global_store_dwordx2 v{t+6}, {vr(t+14,2)}, s[{pDbg}:{pDbg+1}] offset:128 sc1")
    A("s_mov_b64 exec, -1")
    A(f"{L}ntag:")
    A(f"v_and_b32 v{t+14}, 15, v{vLane}")
    A(f"v_lshrrev_b32 v{t+13}, 1, v{t+14}")
    A(f"v_xor_b32 v{t+13}, v{t+13}, v{t+12}")
    A(f"v_lshlrev_b32 v{t+13}, 4, v{t+13}")
    A(f"v_lshl_add_u32 v{t+13}, v{t+14}, 7, v{t+13}")
    A(f"s_lshl_b32 s6, s{sWave}, 13")
    A(f"s_add_u32 s6, s6, {R1}")
    A(f"v_add_u32 v{vXr}, s6, v{t+13}")
    A(f"v_xor_b32 v{vXr+1}, 64, v{vXr}")
    A(f"v_lshlrev_b32 v{t+3}, 4, v{t+14}")
    A(f"v_bfe_u32 v{t+14}, v{vLane}, 2, 2")
    A(f"v_and_b32 v{t+15}, 3, v{vLane}")
    A(f"v_lshlrev_b32 v{t+15}, 3, v{t+15}")
    A(f"v_lshl_add_u32 v{t+15}, v{t+12}, 12, v{t+15}")
    A(f"v_add_u32 v{t+15}, {R3}, v{t+15}")
    A(f"v_bfe_u32 v{t+16}, v{vLane}, 4, 1")
    A(f"v_lshl_add_u32 v{t+13}, v{t+16}, 2, v{t+14}")
    A(f"s_lshl_b32 s6, s{sWave}, 1")
    A(f"v_xor_b32 v{t+13}, s6, v{t+13}")
    A(f"v_lshl_add_u32 v{t+13}, v{t+13}, 5, v{t+15}")
    A(f"v_lshl_add_u32 v{vWqr}, v{t+14}, 8, v{t+13}")
    for p in range(1, 8): A(f"v_xor_b32 v{vWqr+p}, {32*p}, v{vWqr}")
    A(f"v_lshrrev_b32 v{t+13}, 1, v{t+14}")
    A(f"v_lshl_add_u32 v{t+13}, v{t+16}, 1, v{t+13}")
    A(f"v_xor_b32 v{t+13}, s{sWave}, v{t+13}")
    A(f"v_lshl_add_u32 v{t+13}, v{t+13}, 5, v{t+15}")
    A(f"v_lshl_add_u32 v{vW13r}, v{t+14}, 7, v{t+13}")
    for p in range(1, 4): A(f"v_xor_b32 v{vW13r+p}, {32*p}, v{vW13r}")
    srd(A, sK, pK, pK + 1, 16777216)
    srd(A, sV, pV, pV + 1, 16777216)
    A(f"s_add_u32 s{sSt}, s{pWs}, {ST_OFF}")
    A(f"s_addc_u32 s{sSt+1}, s{pWs+1}, 0")
    srd(A, sSt, sSt, sSt + 1, 2048 * 16)
    A(f"s_lshl_b32 s6, s{sRb}, 2")
    A(f"v_mov_b32 v{t+2}, s6")
    A(f"s_movk_i32 s{sMask}, {EVMASK}")
    A(f"s_mov_b32 s{sD}, 0")
    A(f"s_cmp_ge_u32 s{sProd}, 4")
    A(f"s_cbranch_scc0 {L}c2")
    mk_ = len(A.lines)
    A("s_waitcnt vmcnt(8)")
    for i in range(79, -1, -1):
        A(f"v_and_b32 v{UNP+2*i+1}, 0xffff0000, v{RAW+i}")
        A(f"v_lshlrev_b32 v{UNP+2*i}, 16, v{RAW+i}")
    a = 64
    def red(first):
        for i in range(80):
            first(i)
        A(f"v_pk_add_f32 {vr(a,2)}, {vr(a,2)}, {vr(a+2,2)}")
        A(f"v_pk_add_f32 {vr(a+4,2)}, {vr(a+4,2)}, {vr(a+6,2)}")
        A(f"v_pk_add_f32 {vr(a,2)}, {vr(a,2)}, {vr(a+4,2)}")
        A(f"v_add_f32 v{a}, v{a}, v{a+1}")
        for qp in ("[1,0,3,2]", "[2,3,0,1]"):
            A("s_nop 1")
            A(f"v_add_f32_dpp v{a}, v{a}, v{a} quad_perm:{qp} row_mask:0xf bank_mask:0xf")
    def f1(i):
        d = vr(a + 2 * (i % 4), 2)
        if i < 4: A(f"v_pk_add_f32 {d}, {vr(UNP+2*i,2)}, {vr(UNP+2*i+8,2)}")
        elif i >= 8: A(f"v_pk_add_f32 {d}, {d}, {vr(UNP+2*i,2)}")
    red(f1)
    o = 72
    A(f"v_mul_f32 v{o}, {hex(f2u(-1.0/640))}, v{a}")
    for i in range(80): A(f"v_pk_add_f32 {vr(UNP+2*i,2)}, {vr(UNP+2*i,2)}, {vr(o,2)} op_sel_hi:[1,0]")
    def f2(i):
        d = vr(a + 2 * (i % 4), 2); x_ = vr(UNP + 2 * i, 2)
        if i < 4: A(f"v_pk_mul_f32 {d}, {x_}, {x_}")
        else: A(f"v_pk_fma_f32 {d}, {x_}, {x_}, {d}")
    red(f2)
    A(f"v_mov_b32 v{o+3}, {hex(f2u(1e-5))}")
    A(f"v_fmac_f32 v{o+3}, {hex(f2u(1.0/640))}, v{a}")
    A(f"v_mov_b32 v{o+2}, v{o+3}")
    A(f"v_rsq_f32 v{o+1}, v{o+3}")
    A("s_mov_b32 exec_lo, 0x11111111")
    A("s_mov_b32 exec_hi, 0x11111111")
    A(f"buffer_store_dwordx4 {vr(o,4)}, v{t+5}, s[{sSt}:{sSt+3}], 0 offen sc1 ; @put S")
    A("s_mov_b64 exec, -1")
    A("s_waitcnt vmcnt(0)")
    cold(mk_, f"{L}c2", f"{L}np2")
    A(f"{L}np2:")
    if "dummy" in OPT:
        A(f"v_lshlrev_b32 v{t+13}, 4, v{vLane}")
        for i in range(16): A(f"buffer_load_dwordx4 {vr(64+4*i,4)}, v{t+13}, s[{sWq}:{sWq+3}], 0 offen offset:{(i%4)*1024}")
        for i in range(128): A(f"v_mov_b32 v{128+i}, 0")
        A("s_waitcnt vmcnt(0)")
        A("s_mov_b32 s6, 0")
        A(f"{L}dmy:")
        for i in range(64): mf16(A, vr(128 + 4 * (i % 32), 4), vr(64 + 4 * (i // 4 % 12), 4), vr(112 + 4 * (i % 4), 4))
        A("s_add_u32 s6, s6, 1")
        A("s_cmp_lt_u32 s6, 40")
        A(f"s_cbranch_scc1 {L}dmy")
        A("s_nop 7")
    if "idle" in OPT:
        A("s_mov_b32 s6, 0")
        A(f"{L}dmy:")
        for i in range(64): A("s_nop 15")
        A("s_add_u32 s6, s6, 1")
        A("s_cmp_lt_u32 s6, 40")
        A(f"s_cbranch_scc1 {L}dmy")
    kv_dma_voff(A, vQ, vQ + 4, 1)
    A(f"s_mov_b32 s{sT1}, {R0}")
    kv_addr(A, sT1, only=(vQ + 5, vQ + 6))
    wp_addr(A, 13, reg=R4, n=1, dst=vQ + 7)
    wp_src_voff(A, vQ + 8, 1)
    A(f"v_mov_b32 v{vKb}, v{vQ+5}")
    A(f"v_mov_b32 v{vVb}, v{vQ+6}")
    A(f"v_mov_b32 v{vWpB}, v{vQ+7}")
    A(f"v_mov_b32 v{vWs}, v{vQ+8}")
    A(f"v_lshrrev_b32 v{t+7}, 4, v{vLane}")
    A(f"v_lshlrev_b32 v{t+7}, 4, v{t+7}")
    A(f"s_lshl_b32 s6, s{sWave}, 7")
    A(f"s_add_u32 s6, s6, {CS}")
    A(f"v_add_u32 v{t+8}, s6, v{t+7}")
    A(f"s_lshl_b32 s6, s{sWave}, 6")
    A(f"s_add_u32 s6, s6, {CS+512}")
    A(f"v_add_u32 v{t+9}, s6, v{t+7}")
    A(f"v_lshlrev_b32 v{t+10}, 4, v{vLane}")
    A(f"s_lshl_b32 s6, s{sWave}, 12")
    A(f"s_lshl_b32 s{sKVo}, s{sHead}, 19")
    A(f"s_add_u32 s{sKVo}, s{sKVo}, s6")
    A(f"s_add_u32 s{sKVo}, s{sKVo}, {1536*256}")
    if "tlbw" in OPT:
        A("s_mov_b64 exec, 1")
        A(f"buffer_load_dword v0, v{t+6}, s[{sK}:{sK+3}], s{sKVo} offen")
        A(f"buffer_load_dword v0, v{t+6}, s[{sV}:{sV+3}], s{sKVo} offen")
        A(f"buffer_load_dword v0, v{t+6}, s[{sSrc}:{sSrc+3}], s{sPo} offen")
        A("s_mov_b64 exec, -1")
    if "tlbs" in OPT:
        A(f"s_lshl_b32 s6, s{sHead}, 14")
        A(f"s_lshl_b32 s7, s{sFb}, 13")
        A(f"s_add_u32 s7, s7, {128*4096}")
        A("s_mov_b64 exec, 1")
        A(f"buffer_store_dword v{t+6}, v{t+6}, s[{sA}:{sA+3}], s6 offen sc1")
        A(f"buffer_store_dword v{t+6}, v{t+6}, s[{sA}:{sA+3}], s7 offen sc1")
        A("s_mov_b64 exec, -1")
    for i in range(4): A(f"v_mov_b32 v{vSt+i}, 0")
    A(f"v_mov_b32 v{t+1}, 0x3f803f80")
    for i in range(4): A(f"v_accvgpr_write_b32 a{aOne+i}, v{t+1}")
    z = vr(vSt, 4)
    for i in range(8): mf32(A, vr(vAcc + 16 * i, 16), z, z, "0")
    for i in range(9): mf32(A, ar(16 * i, 16), z, z, "0")
    emit(dma_x(1)); emit(dma_w(True)); emit(dma_x(0)); emit(dma_w(True))
    A(f"s_waitcnt vmcnt({15 if 'tlbw' in OPT else 14 if 'tlbs' in OPT else 12})")
    A("s_barrier")
    A(f"s_lshl2_add_u32 s6, s{sProd}, s{sWave}")
    A(f"s_and_b32 s6, s6, 0xfffffff3")
    A(f"s_cbranch_scc1 {L}np3")
    A(f"v_mov_b32 v{t+1}, 1")
    A(f"v_add_u32 v{t+7}, s{sProd}, v{t+2}")
    A(f"s_mov_b64 exec, 1")
    A(f"global_store_byte v{t+7}, v{t+1}, s[{pDbg}:{pDbg+1}] sc1")
    A(f"s_mov_b64 exec, -1")
    A(f"{L}np3:")
    stamp(1)
    for rt in range(4): A(xread(0, 0, rt))
    A(f"s_cmp_eq_u32 s{sHasF}, 0")
    fr = frag_list(True)
    for f in range(3):
        for sec in range(2): A(wread(fr[f], 0, sec, f))
    A("s_waitcnt lgkmcnt(6)")
    if FINE: A("s_mov_b32 s7, 0")
    A(f"s_cbranch_scc1 {L}gn")
    gemm_loop(A, True, L + "gf")
    mk_ = len(A.lines)
    gemm_events(A, L + "gn")
    gemm_loop(A, False, L + "gn")
    for it in cs_writes()[:2]: A(it)
    A(f"s_mov_b32 s{sKVo}, s{sXo}")
    A(f"s_mov_b32 s{sKVm}, s{sM0X}")
    A(qp_code())
    for it in stats_scale(): A(it)
    A("s_waitcnt lgkmcnt(0)")
    A("s_barrier")
    A(f"ds_read_b128 {vr(CSB[0],4)}, v{t+8}")
    A(f"v_xor_b32 v{t+11}, 64, v{t+8}")
    A(f"ds_read_b128 {vr(CSB[1],4)}, v{t+11}")
    cold(mk_, f"{L}c3", f"{L}gdone")
    A(f"{L}gdone:")
    stamp(2)
    z = vr(vTm + 4, 4)
    class Grp(list):
        def __call__(self, x): self.append(x)
    IDS = Grp()
    IDS(f"s_lshr_b32 s{qCb}, s2, 6")
    IDS(f"s_bfe_u32 s{qRb}, s2, 0x30003")
    IDS(f"s_and_b32 s6, s2, 4\ns_lshl_b32 s6, s6, 1")
    IDS(f"s_add_u32 s{qRb}, s{qRb}, s6")
    IDS(f"s_lshl2_add_u32 s{qG}, s{qRb}, s{qCb}")
    IDS(f"s_mul_i32 s6, s{qG}, {IB_G}")
    IDS(f"s_add_u32 s6, s6, {IB_OFF}")
    IDS(f"s_add_u32 s{qI}, s{pWs}, s6\ns_addc_u32 s{qI+1}, s{pWs+1}, 0")
    srd(IDS, qI, qI, qI + 1, IB_G)
    kvadv = [f"s_add_u32 s{sKVo}, s{sKVo}, 16384\ns_add_u32 s{sKVm}, s{sKVm}, 32768"]
    def kvq(): return kv_dma() + kvadv
    csb = [14, 18, 22]
    lq = LQ()
    def csread_q(p):
        A(f"v_xor_b32 v{t+11}, {64*p}, v{t+8}")
        A(f"ds_read_b128 {vr(csb[p%3],4)}, v{t+11}"); lq.issue(("c", p))
    lq.issue(("c", 0)); lq.issue(("c", 1))
    wo_dma = []
    for su in range(2):
        wo_dma.append(f"s_lshl_b32 s6, s{sWave}, 13\ns_add_u32 m0, s6, {R4+su*4096}")
        wo_dma += [f"buffer_load_dwordx4 v{vWs}, s[{sSrc}:{sSrc+3}], s{sPo} offen offset:{j*1024} lds ; @put P\n" +
                   (f"s_add_u32 s{sPo}, s{sPo}, 9216" if j < 3 else f"s_sub_u32 s{sPo}, s{sPo}, {3*9216-128}") for j in range(4)]
    kq = spread([f"s_add_u32 m0, s{sKVm}, 16384"] + kv_dma()[6:] + kvadv + wo_dma[:5 * SPL[0]], 24)
    for p in range(8):
        if p + 2 < 8: csread_q(p + 2)
        lq.wait(A, [("c", p)])
        c = csb[p % 3]
        for rt in range(4):
            d = vAcc + (p * 4 + rt) * 4; q = vSt + 4 * rt
            for h in range(2):
                A(f"v_pk_fma_f32 {vr(d+2*h,2)}, {vr(c+2*h,2)}, {vr(q,2)}, {vr(d+2*h,2)} op_sel_hi:[1,0,1]")
        emit(kq[3*p])
        for rt in range(4):
            d = vAcc + (p * 4 + rt) * 4; q = vSt + 4 * rt
            for h in range(2):
                A(f"v_pk_mul_f32 {vr(d+2*h,2)}, {vr(d+2*h,2)}, {vr(q+2,2)} op_sel:[0,1]")
        emit(kq[3*p+1])
        for rt in range(4):
            d = vAcc + (p * 4 + rt) * 4
            f = vQ + ((rt // 2) * 8 + p) * 4 + (rt & 1) * 2
            for h in range(2): A(f"v_cvt_pk_bf16_f32 v{f+h}, v{d+2*h}, v{d+2*h+1}")
        mf32(A, ar(aO + 16 * p, 16), z, z, "0")
        emit(kq[3*p+2])
        if p > 0:
            for qt in range(2):
                f = vQ + (qt * 8 + p - 1) * 4
                for h in range(2): A(f"v_permlane16_swap_b32 v{f+h}, v{f+2+h}")
    A("s_nop 0")
    for qt in range(2):
        f = vQ + (qt * 8 + 7) * 4
        for h in range(2): A(f"v_permlane16_swap_b32 v{f+h}, v{f+2+h}")
    stamp(3)
    for p in range(8): A(f"v_xor_b32 v{vKr+p}, {32*p}, v{vKb}")
    v2q = [f"s_add_u32 m0, s{sKVm}, 16384"] + kvq()[6:]
    A(f"s_cmp_eq_u32 s{sHasF}, 0")
    A(f"s_cbranch_scc1 {L}noffn")
    def hst(pi, rt): return f"buffer_store_dwordx4 {vr(vAcc+96+pi*16+rt*4,4)}, v{t+10}, s[{sA}:{sA+3}], s{qT0+pi} offen offset:{rt*1024}" + ("" if "wbl2" in OPT else " sc1") + " ; @put H @put HH"
    T = vAcc + 32; H = vAcc + 96; C = vAcc + 56
    def csf(p):
        A(f"v_xor_b32 v{t+11}, {64*p}, v{t+9}")
        A(f"ds_read_b128 {vr(C+8*(p%3),4)}, v{t+11}")
        A(f"ds_read_b128 {vr(C+8*(p%3)+4,4)}, v{t+11} offset:256")
    for p in range(3): csf(p)
    A(f"s_lshr_b32 s7, s{sWave}, 1")
    A(f"s_lshl_b32 s6, s{sFb}, 1")
    A(f"s_add_u32 s6, s6, 128")
    A(f"s_add_u32 s{sT0}, s6, s7")
    A(f"s_xor_b32 s7, s7, 1")
    A(f"s_add_u32 s{sT1}, s6, s7")
    A(f"s_lshl_b32 s{qT0}, s{sT0}, 12")
    A(f"s_lshl_b32 s{qT1}, s{sT1}, 12")
    A("s_waitcnt lgkmcnt(0)")
    ffq = wo_dma[5 * SPL[0]:] + kv_dma()[:5 * SPL[1]]
    kq = spread(ffq, 24) if ffq else [[]] * 24
    for p in range(4):
        for r2 in range(2):
            g_ = 3 * (p * 2 + r2)
            G = [(2 * r2 + i, T + 12 * i) for i in range(2)]
            if p == 1 and r2 == 0: csf(3)
            if p == 2 and r2 == 0:
                qk_at = len(A.lines)
                A("s_waitcnt lgkmcnt(0)")
            for rt, b in G:
                for i in range(4): A(f"v_accvgpr_read_b32 v{b+i}, a{aG+(p*4+rt)*4+i}")
                for i in range(4): A(f"v_accvgpr_read_b32 v{b+4+i}, a{aUp+(p*4+rt)*4+i}")
            emit(kq[g_])
            for rt, b in G:
                for h in range(4):
                    A(f"v_pk_fma_f32 {vr(b+2*h,2)}, {vr(C+8*(p%3)+2*h,2)}, {vr(vSt+4*rt,2)}, {vr(b+2*h,2)} op_sel_hi:[1,0,1]")
            for rt, b in G:
                for h in range(2): A(f"v_pk_mul_f32 {vr(b+8+2*h,2)}, {vr(b+2*h,2)}, {vr(vSt+4*rt,2)} op_sel:[0,1]")
            for rt, b in G:
                for i in range(4): A(f"v_exp_f32 v{b+8+i}, v{b+8+i}")
            emit(kq[g_+1])
            for rt, b in G:
                for h in range(2): A(f"v_pk_mul_f32 {vr(b+2*h,2)}, {vr(b+2*h,2)}, {vr(b+4+2*h,2)}")
            for rt, b in G:
                for h in range(2):
                    A(f"v_pk_fma_f32 {vr(b+8+2*h,2)}, {vr(b+8+2*h,2)}, {vr(vSt+4*rt+2,2)}, {vr(vSt+4*rt+2,2)} op_sel_hi:[1,0,0]")
            for rt, b in G:
                for i in range(4): A(f"v_rcp_f32 v{b+8+i}, v{b+8+i}")
            emit(kq[g_+2])
            for n, (rt, b) in enumerate(G):
                for h in range(2): A(f"v_pk_mul_f32 {vr(b+2*h,2)}, {vr(b+2*h,2)}, {vr(b+8+2*h,2)}")
            for rt, b in G:
                for h in range(2): A(f"v_cvt_pk_bf16_f32 v{H+(p//2)*16+rt*4+(p&1)*2+h}, v{b+2*h}, v{b+2*h+1}")
        if p & 1:
            pi = p // 2
            A(f"s_bitcmp1_b32 s{sWave}, 0")
            A(f"s_cbranch_scc0 {L}nsw{pi}")
            for rt in range(4):
                for h in range(2): A(f"v_swap_b32 v{H+pi*16+rt*4+h}, v{H+pi*16+rt*4+2+h}")
            A(f"{L}nsw{pi}:")
    B_ = Asm(); lq = LQ()
    for p in range(3):
        B_(kread(p, 0, p)); lq.issue(("f", 16 + p))
    attn_seg(B_, lq, 2, {}, sm_lo=0, sm_hi=0, look=[2])
    QK0 = list(B_.lines)
    grp = [QK0[:3]]; cur = []
    for l_ in QK0[3:]:
        if l_.startswith(("s_waitcnt", "v_mfma")) and any(x.startswith("v_mfma") for x in cur): grp.append(cur); cur = []
        cur.append(l_)
    grp.append(cur)
    half = A.lines[qk_at + 1:]; del A.lines[qk_at + 1:]
    stop = max(i for i, x in enumerate(half) if x.startswith("s_bitcmp1"))
    pos = {4 + (i * (stop - 24)) // len(grp): g for i, g in enumerate(grp)}
    pend = []
    for i, l_ in enumerate(half):
        if i in pos: pend = pend + pos[i]
        if pend and " lds" not in l_ and not l_.startswith("s_nop") and not any(x.startswith("v_pk_") for x in A.lines[-2:]):
            A.lines += pend; pend = []
        A.lines.append(l_)
    emit(v2q)
    mk_ = len(A.lines)
    emit(ffq)
    A(f"s_mov_b32 s{qT0}, 0x1000000")
    A(f"s_mov_b32 s{qT1}, 0x1000000")
    A("s_barrier")
    srd(A, qA, pW2, pW2 + 1, 1728 * 1280)
    A(f"v_mov_b32 v{vAcc+8}, v{vKb}")
    A(f"v_mov_b32 v{vAcc+9}, v{vVb}")
    A(f"v_mov_b32 v{vAcc+10}, v{vWpB}")
    wp_src_voff(A, vAcc)
    wp_addr(A, 13)
    A(f"v_mov_b32 v{vKb}, v{vAcc+8}")
    A(f"v_mov_b32 v{vVb}, v{vAcc+9}")
    A(f"v_mov_b32 v{vWpB}, v{vAcc+10}")
    A(f"s_mul_i32 s{sT2}, s{sRb}, 5")
    A(f"s_add_u32 s{sT2}, s{sT2}, s{sProd}")
    A(f"s_lshl2_add_u32 s{sT2}, s{sT2}, s{sWave}")
    A(f"{L}w2j:")
    A(f"s_mul_hi_u32 s{sT0}, s{sT2}, 0x33333334")
    A(f"s_mul_i32 s{sT1}, s{sT0}, 5")
    A(f"s_sub_u32 s{sT1}, s{sT2}, s{sT1}")
    A(f"s_mul_i32 s7, s{sT0}, 40960")
    A(f"s_lshl_b32 s6, s{sT1}, 8")
    A(f"s_add_u32 s{sT0}, s7, s6")
    A(f"s_lshl_b32 s6, s{sT1}, 13")
    A(f"s_add_u32 s7, s7, s6")
    A(f"s_add_u32 s{sT1}, s7, {128*40960}")
    A(f"s_lshl_b32 s6, s{sWave}, 13")
    for su in range(2):
        A(f"s_add_u32 m0, s6, {R3+su*4096}")
        A("s_nop 0")
        for j in range(4): A(f"buffer_load_dwordx4 v{vAcc+4*su+j}, s[{qA}:{qA+3}], s{sT0} offen offset:{j*1024} lds")
    A("s_waitcnt vmcnt(0)")
    wp_reads(A, 4096)
    A("s_waitcnt lgkmcnt(0)")
    wp_stores(A, sT1)
    A(f"s_add_u32 s{sT2}, s{sT2}, 160")
    A(f"s_cmp_lt_u32 s{sT2}, 270")
    A(f"s_cbranch_scc1 {L}w2j")
    A.lines += QK0
    emit(v2q)
    cold(mk_, f"{L}noffn", f"{L}ffnd")
    A(f"{L}ffnd:")
    for i in range(4): IDS(f"v_mov_b32 v{vOnes+i}, -1")
    IDS(f"s_mul_i32 s6, s{qP}, 30720\ns_mul_i32 s7, s{sWave}, 7680")
    IDS(f"s_min_u32 s7, s7, 22528\ns_add_u32 s{sSen}, s6, s7")
    IDS(f"s_lshl_b32 s{sWpO}, s{sU}, 12")
    IDS(f"v_add_u32 v{vL16+1}, 4096, v{vL16}")
    IDS(f"s_lshl_b32 s6, s{sRb}, 5\ns_add_u32 s7, s6, s{sHead}\ns_lshl_b32 s7, s7, 7")
    IDS(f"v_mov_b32 v{vFo}, s7")
    IDS(f"s_cmp_eq_u32 s{sWave}, 0\ns_cselect_b32 s{sTail}, 0, 0x8000")
    srd(IDS, qX, pFl, pFl + 1, 0x8000)
    IDS(f"s_add_u32 s6, s{sNo}, 1")
    IDS(f"v_mov_b32 v{vFv}, s6")
    IDS(f"v_mov_b32 v{vFv+1}, s{sNo+1}")
    stamp(4)
    for dt in range(4): A(f"v_xor_b32 v{vVr+dt}, {64*dt}, v{vVb}")
    A(f"v_mov_b32 v{vL}, 0")
    A(f"v_mov_b32 v{vL+1}, 0")
    A(f"s_waitcnt vmcnt(24)")
    A("s_barrier")
    stamp(5, True)
    lq = LQ()
    for p in range(3):
        A(kread(p, 1, p)); lq.issue(("f", p))
    for e in range(10):
        for x in sm_exp(0, e): A(x)
        if e:
            for x in sm_post(0, e - 1): A(x)
    assert XP or lq.q == [("f", 0), ("f", 1), ("f", 2)]
    def put(ex, slots, items):
        for sl, its in zip(slots, spread(items, len(slots))): ex.setdefault(sl, []).extend(its)
    PA = Asm()
    PA(f"s_lshl_b32 s6, s{sRb}, 5")
    PA(f"v_and_b32 v{vAp}, 3, v{vLane}")
    PA(f"v_lshlrev_b32 v{vAp}, 2, v{vAp}")
    PA(f"s_and_b32 s7, s{sHead}, 0x13")
    PA(f"s_add_u32 s7, s7, s6")
    PA(f"v_add_lshl_u32 v{vAp}, v{vAp}, s7, 7")
    PA(f"s_lshr_b32 s7, s{qRb}, 1")
    PA(f"s_lshl_b32 s6, s7, 5")
    PA(f"s_lshl_b32 s{sT0}, s{sWave}, 3")
    PA(f"s_add_u32 s6, s6, s{sT0}")
    PA(f"v_add_lshl_u32 v{vAa}, v{vLane}, s6, 7")
    PA(f"v_cmp_gt_u32 vcc, 8, v{vLane}")
    PA(f"v_and_b32 v{vAb}, 15, v{vLane}")
    PA(f"v_lshlrev_b32 v{vAb}, 2, v{vAb}")
    PA(f"s_lshl_b32 s6, s{sWave}, 6")
    PA(f"s_add_u32 s6, s6, 3")
    PA(f"v_add_lshl_u32 v{vAb}, v{vAb}, s6, 7")
    PA(f"v_cndmask_b32 v{vAa}, v{vAb}, v{vAa}, vcc")
    PA(f"v_bfe_u32 v{vAo}, v{vLane}, 4, 1")
    PA(f"v_add_u32 v{vAo}, s{qCb}, v{vAo}")
    PA(f"s_mul_i32 s6, s{qP}, 21")
    PA(f"s_add_u32 s6, s6, 1")
    PA(f"s_lshr_b32 s6, s6, 1")
    PA(f"v_and_b32 v{vPb}, 15, v{vLane}")
    PA(f"v_min_u32 v{vPb}, 10, v{vPb}")
    PA(f"v_add_u32 v{vPb}, s6, v{vPb}")
    PA(f"v_cmp_gt_u32 vcc, 16, v{vLane}")
    PA(f"s_lshl_b32 s7, s7, 5")
    PA(f"v_lshl_add_u32 v{vAo}, v{vAo}, 5, v{vPb}")
    PA(f"v_lshlrev_b32 v{vAo}, 7, v{vAo}")
    PA(f"v_add_lshl_u32 v{vAb}, v{vPb}, s7, 7")
    PA(f"v_cndmask_b32 v{vAb}, v{vAp}, v{vAb}, vcc")
    odd = lambda a, b: [x for x in range(a, b) if x & 1]
    def wo_job(ex, f, s0, s1):
        r = aWq + 4 * (f % 3)
        ex.setdefault(s0 - 1, []).append(f"v_xor_b32 v{vWpA}, {((f&3)<<5)|((f&4)<<10)}, v{vWpB}")
        ex[(s0, "ds")] = [f"ds_read_b64_tr_b16 {ar(r,2)}, v{vWpA} ; @need P 0"]
        ex[(s0 + 2, "ds")] = [f"ds_read_b64_tr_b16 {ar(r+2,2)}, v{vWpA} offset:2048"]
        if "nowo" not in XP: ex.setdefault(s1, []).append(f"buffer_store_dwordx4 {ar(r,4)}, v{vL16+f//4}, s[{sWp}:{sWp+3}], s{sWpO} offen offset:{(f&3)*1024} sc1")
    def mark(f): return "s_nop 0" if "nosent" in XP else f"buffer_store_dwordx4 {vr(vOnes,4)}, v{vL16+f//4}, s[{qI}:{qI+3}], s{sSen} offen offset:{(f&3)*1024} sc1 ; @put H"
    stamp(6, True)
    BW = {0: 10, 1: 13, 2: 13, 3: 13, 4: 13, 5: 13}
    bg = [("h", i) for i in range(8)] + [("w", i) for i in range(8)] + [("m", i) for i in range(8)]
    BG = [bg[0:3], bg[3:6], bg[6:9], bg[9:12], bg[12:15], bg[15:19], bg[19:22], bg[22:24]]
    if "bg2" in OPT: BG[5:] = [bg[15:22], bg[22:24], []]
    if "bg3" in OPT: BG[5:] = [bg[15:24], [], []]
    for t_ in range(8):
        ex = {}
        delta = hex((-98304) & 0xffffffff) if t_ == 3 else "0x8000"
        if t_ < 7:
            for p in range(8):
                ex.setdefault(max(2 * (p - 3) + 1, 1) if p >= 3 else 2 * p, []).append(f"v_add_u32 v{vKr+p}, {delta}, v{vKr+p}")
            for dt in range(4):
                ex.setdefault(2 * (28 + dt - 3) + 2, []).append(f"v_add_u32 v{vVr+dt}, {delta}, v{vVr+dt}")
        if t_ < 5:
            for sl, it in zip([32, 33, 37, 41, 45, 47, 49, 53, 57, 61], kv_dma()): ex.setdefault(sl, []).append(it)
            ex.setdefault(62, []).append(f"s_add_u32 s{sKVo}, s{sKVo}, 16384")
            ex.setdefault(59, []).append(f"s_add_u32 s{sKVm}, s{sKVm}, {hex((-98304) & 0xffffffff) if t_ == 0 else 32768}")
        if t_ < 6: ex[(26, "pre")] = [f"s_waitcnt vmcnt({BW[t_]})", "s_barrier ; @need KV 8 @need Xa 0" + (" @need HH 0" if t_ == 4 else "")]
        for j, (kind, f) in enumerate(BG[t_]):
            sl = (3, 19, 51, 39, 31, 45, 59, 35, 55)[j]
            if kind == "h": put(ex, [sl], [hst(f // 4, f % 4)])
            elif kind == "m": put(ex, [sl], [mark(f)])
            else: wo_job(ex, f, (1, 7, 35)[j], (13, 21, 51)[j])
        if t_ == 0:
            for sl, its in zip([x for x in range(11, 52) if x not in (26, 32, 47)], spread(IDS, 38)): ex.setdefault((sl, "post"), []).extend(its)
        if t_ == 4:
            put(ex, [39], [f"buffer_store_dwordx2 {vr(vFv,2)}, v{vFo}, s[{qX}:{qX+3}], s{sTail} offen sc1"])
        if t_ == 5:
            for sl, its in zip([x for x in range(10, 47) if x != 26], spread(PA.lines, 36)): ex.setdefault((sl, "post"), []).extend(its)
            put(ex, [x for x in range(47, 64) if x != 51], q_setup())
        elif t_ == 6:
            put(ex, [1], [f"global_load_dwordx2 {vr(vPa,2)}, v{vAa}, s[{pFl}:{pFl+1}] sc1"])
            B_ = Asm(); B_(f"s_waitcnt vmcnt({min(2, len(BG[6]))})"); B_(f"s_cmp_lg_u32 s{qP}, 3"); B_(f"s_cbranch_scc1 {L}w1r")
            flag_wait(B_, f"{L}w1", 1, [(vPa, vAa)]); B_("s_barrier")
            ex[(26, "pre")] = B_.lines
            put(ex, [x for x in odd(31, 64) if x != 51], q_loads(0) + q_loads(1)[:6])
        elif t_ == 7:
            ex[(26, "pre")] = ["s_waitcnt vmcnt(30)", "s_barrier"]
            ex.setdefault(24, []).append(f"v_add_u32 v{vFv}, 1, v{vFv}")
            put(ex, [28], [f"buffer_store_dwordx2 {vr(vFv,2)}, v{vFo}, s[{qX}:{qX+3}], s{sTail} offen sc1"])
            put(ex, [1, 5, 7, 9, 11, 13, 15, 17, 21, 23, 25, 27, 29, 31], q_loads(1)[6:] + q_loads(2)[:7])
        if t_ >= 1: stamp(t_ + 6, True)
        attn_seg(A, lq, 0, ex)
        attn_seg(A, lq, 1, ex, look=(True if t_ < 7 else [1]))
        if t_ < 7:
            attn_seg(A, lq, 2, ex)
            attn_seg(A, lq, 3, ex)
    ex = {}
    def vrd(f, sec):
        A(vread(f % 2, f // 2, 1, sec, f % 4)); lq.issue(("v", f))
    for f in range(3):
        vrd(f, 0); vrd(f, 1)
    ql = dict(zip((11, 14, 17, 20, 23), q_loads(2)[7:]))
    for e in range(10, 32):
        if e in ql: A(ql[e])
        for x in sm_exp(1, e) + sm_post(1, e - 1): A(x)
    A(f"v_bfe_u32 v{t+2}, v{vLane}, 4, 1")
    for x in sm_post(1, 31): A(x)
    def o_items(plain):
        it = []
        for n, (dt, qt) in enumerate((dt, qt) for dt in range(4) for qt in range(2)):
            b = vS + (n % 4) * 16; pk = 224 + (n % 4) * 8
            it += [f"v_accvgpr_read_b32 v{b+i}, a{aO+(qt*4+dt)*16+i}" for i in range(16)]
            if n < plain: it += [f"v_mul_f32 v{b+i}, v{t+qt}, v{b+i}" for i in range(16)]
            else: it += [f"v_pk_mul_f32 {vr(b+2*i,2)}, {vr(b+2*i,2)}, {vr(t,2)} " + ("op_sel_hi:[1,0]" if qt == 0 else "op_sel:[0,1]") for i in range(8)]
            it += [f"v_cvt_pk_bf16_f32 v{pk+i}, v{b+2*i}, v{b+2*i+1}" for i in range(8)]
            it += [f"buffer_store_dwordx4 {vr(pk+4*j,4)}, v{vOo}, s[{sA}:{sA+3}], s{sKVm} offen offset:{qt*2048+j*512} sc1 ; @put H" for j in range(2)]
            if qt and dt < 3: it.append(f"s_add_u32 s{sKVm}, s{sKVm}, 4096")
        return it
    chk = [[f"v_mov_b32 v{t}, v{vL}", f"v_mov_b32 v{t+1}, v{vL+1}", f"v_lshrrev_b32 v{t+3}, 5, v{vLane}", f"v_lshlrev_b32 v{t+3}, 8, v{t+3}"],
           [f"v_permlane32_swap_b32 v{t}, v{vL}", f"v_permlane32_swap_b32 v{t+1}, v{vL+1}", f"v_lshl_add_u32 v{t+3}, v{t+2}, 10, v{t+3}"],
           [f"v_add_f32 v{vL}, v{vL}, v{t}", f"v_add_f32 v{vL+1}, v{vL+1}, v{t+1}", f"v_mov_b32 v{t+8}, {hex(f2u(2.0**-40))}", f"v_mov_b32 v{t+9}, {hex(f2u(2.0**40))}"],
           [f"v_cmp_gt_f32 s[{sE0}:{sE0+1}], v{vL}, v{t+8}", f"v_cmp_lt_f32 s[{sE0+2}:{sE0+3}], v{vL}, v{t+9}", f"v_and_b32 v{t+2}, 15, v{vLane}"],
           [f"v_cmp_gt_f32 s[4:5], v{vL+1}, v{t+8}", f"v_cmp_lt_f32 s[6:7], v{vL+1}, v{t+9}", f"v_rcp_f32 v{t}, v{vL}", f"v_lshl_add_u32 v{vOo}, v{t+2}, 4, v{t+3}"],
           [f"v_rcp_f32 v{t+1}, v{vL+1}", f"s_lshl_b32 s{sKVm}, s{sHead}, 14", f"s_and_b64 s[{sE0}:{sE0+1}], s[{sE0}:{sE0+1}], s[{sE0+2}:{sE0+3}]",
            "s_and_b64 s[4:5], s[4:5], s[6:7]", f"s_and_b64 s[4:5], s[4:5], s[{sE0}:{sE0+1}]", "s_cmp_eq_u64 s[4:5], exec"] + ([] if XP else [f"s_cbranch_scc0 {L}slow ; slowbr"])]
    oi = o_items(2)
    for f in range(8):
        lq.wait(A, [("v", f)])
        for qt in range(2):
            g = 2 * f + qt
            mf32(A, ar(aO + (qt * 4 + f // 2) * 16, 16), vr(vF + (f % 4) * 4, 4), vr(vP + (qt * 2 + f % 2) * 4, 4))
            if f + 3 < 8: vrd(f + 3, qt)
            if g < 6:
                for x in chk[g]: A(x)
            elif g < 15:
                k_ = 4 if f + 3 < 8 else 5
                for x in oi[:k_]: A(x)
                oi = oi[k_:]
    stamp(5)
    for x in oi: A(x)
    mk_ = len(A.lines)
    A(f"s_lshl_b32 s{sKVm}, s{sHead}, 14")
    for x in o_items(0): A(x)
    cold(mk_, f"{L}oep", f"{L}oed")
    A(f"{L}oed:")
    stamp(6); stamp(7)
    gemm2(A, L, emit, stamp, cold)
    A(f"{L}end:")
    A("s_endpgm")
    A.lines += COLD
    A(f"{L}slow:")
    A("s_waitcnt vmcnt(0) lgkmcnt(0)")
    srd(A, sK, pK, pK + 1, 16777216)
    srd(A, sV, pV, pV + 1, 16777216)
    kv_dma_voff(A, vKd, vVd, 1)
    A(f"s_lshl_b32 s{sT1}, s{sWave}, 13")
    A(f"s_add_u32 s{sT1}, s{sT1}, {R2}")
    kv_addr(A, sT1)
    for dt in range(4): A(f"v_add_u32 v{vVr+dt}, {R4-R2-16384}, v{vVr+dt}")
    vM = vTm + 6
    A(f"v_mov_b32 v{vM}, 0xff800000")
    A(f"v_mov_b32 v{vM+1}, 0xff800000")
    A(f"v_mov_b32 v{vL}, 0")
    A(f"v_mov_b32 v{vL+1}, 0")
    for i in range(4): A(f"v_mov_b32 v{vTm+12+i}, 0")
    A("s_nop 1")
    for i in range(8): mf32(A, ar(aO + 16 * i, 16), vr(vTm + 12, 4), vr(vTm + 12, 4), "0")
    A(f"s_mov_b32 s{sT}, 0")
    A(f"{L}sl:")
    A(f"s_and_b32 s{sT0}, s{sT}, 15")
    A(f"s_lshl_b32 s{sT0}, s{sT0}, 13")
    A(f"s_lshl_b32 s{sKVo}, s{sHead}, 19")
    A(f"s_add_u32 s{sKVo}, s{sKVo}, s{sT0}")
    A(f"s_add_u32 s{sKVo}, s{sKVo}, {1536*256}")
    for hf in range(2):
        A(f"s_add_u32 m0, s{sT1}, {hf*4096}")
        A("s_nop 0")
        for j in range(4): A(f"buffer_load_dwordx4 v{vKd+j}, s[{sK}:{sK+3}], s{sKVo} offen offset:{j*1024} lds")
        A(f"s_add_u32 m0, s{sT1}, {R4-R2+hf*4096}")
        A("s_nop 0")
        for j in range(4): A(f"buffer_load_dwordx4 v{vVd}, s[{sV}:{sV+3}], s{sKVo} offen offset:{j*1024} lds")
        if hf == 0: A(f"s_add_u32 s{sKVo}, s{sKVo}, 4096")
    A("s_waitcnt vmcnt(0)")
    for p in range(8):
        A(kread(p, 0, p % 4))
        A("s_waitcnt lgkmcnt(0)")
        for qt in range(2): mf32(A, vr(vS + qt * 16, 16), vr(vF + (p % 4) * 4, 4), vr(vQ + (qt * 8 + p) * 4, 4), "0" if p == 0 else None)
    A("s_nop 11")
    A(f"s_cmp_ge_u32 s{sT}, 16")
    A(f"s_cbranch_scc1 {L}sl2")
    for qt in range(2):
        for i in range(8): A(f"v_max3_f32 v{vM+qt}, v{vS+qt*16+2*i}, v{vS+qt*16+2*i+1}, v{vM+qt}")
    A(f"s_cmp_lg_u32 s{sT}, 15")
    A(f"s_cbranch_scc1 {L}sl3")
    A(f"v_mov_b32 v{vM+2}, v{vM}")
    A(f"v_mov_b32 v{vM+3}, v{vM+1}")
    A("s_nop 1")
    A(f"v_permlane32_swap_b32 v{vM+2}, v{vM}")
    A(f"v_permlane32_swap_b32 v{vM+3}, v{vM+1}")
    A(f"v_max_f32 v{vM}, v{vM}, v{vM+2}")
    A(f"v_max_f32 v{vM+1}, v{vM+1}, v{vM+3}")
    A(f"s_branch {L}sl3")
    A(f"{L}sl2:")
    for e in range(32):
        r, qt, ks = sm_reg(0, e)
        A(f"v_sub_f32 v{r}, v{r}, v{vM+qt}")
        A(f"v_exp_f32 v{r}, v{r}")
        A("s_nop 0")
        for x in sm_post(0, e): A(x)
    for i in range(8):
        for sec in range(2): A(vread(i // 4, i % 4, 0, sec, i % 4))
        A("s_waitcnt lgkmcnt(0)")
        for qt in range(2): mf32(A, ar(aO + (qt * 4 + i % 4) * 16, 16), vr(vF + (i % 4) * 4, 4), vr(vP + (qt * 2 + i // 4) * 4, 4))
    A(f"{L}sl3:")
    A(f"s_add_u32 s{sT}, s{sT}, 1")
    A(f"s_cmp_lt_u32 s{sT}, 32")
    A(f"s_cbranch_scc1 {L}sl")
    A(f"v_mov_b32 v{t}, v{vL}")
    A(f"v_mov_b32 v{t+1}, v{vL+1}")
    A("s_nop 1")
    A(f"v_permlane32_swap_b32 v{t}, v{vL}")
    A(f"v_permlane32_swap_b32 v{t+1}, v{vL+1}")
    A(f"v_add_f32 v{vL}, v{vL}, v{t}")
    A(f"v_add_f32 v{vL+1}, v{vL+1}, v{t+1}")
    A(f"v_rcp_f32 v{t}, v{vL}")
    A(f"v_rcp_f32 v{t+1}, v{vL+1}")
    A("s_nop 7")
    A(f"s_branch {L}oep")
    A(f"{L}last:")
    kd(A, name, 512, 256)

def checks(A, entry):
    if XP: return
    nb = check_hazards(A.lines)
    tot = 0
    for wg in (0, 5, 6, 31, 24, 28, 255):
        for w in (0, 1, 3):
            for slow in (0, 1):
                miss = iter([1, 0, 1, 1, 0] if slow else [])
                def hk(x, S):
                    if x.opn == "v_readfirstlane_b32" and "tag" not in x.text:
                        S[sWave] = w
                    if "slowbr" in x.text: return slow
                    if "pollbr" in x.text: return 1
                    if "missbr" in x.text: return next(miss, 0)
                p, c = check_waits(A.lines, entry, {2: wg}, hk)
                tot += p
    print("hazards:", nb, "waits:", tot, c)

DOC = """;
; One persistent launch, 256 workgroups x 4 waves (one workgroup per CU, 512 registers per lane, 160 KiB LDS).
;
;          h = silu(gate)*up goes to the workspace in MFMA fragment order.
; Phase 2  attention over the last 512 keys (32x32x16 MFMA, S^T = K Q^T, P^T feeds V^T P^T without shuffles), exp2 with the scale
;          folded into Q. Softmax guard: the fast pass uses the offset 0; every row sum is then checked against (2^-40, 2^40)
;          max pass, then exp(s - max) pass). Inside the range exp2 neither overflows nor loses the row, so both are the same softmax.
;          wo / w2 are re-laid into fragment order on the side.
; Hand-offs: write-through (sc1) stores, drained, workgroup barrier, then a flag line per workgroup holding {launch tag + phase};
;          the tag is a clock value published once per launch in d_debug, so words left in d_ws by other launches never match.
;          Inboxes are marked all-ones by their owner in this launch before a partner may write them. All hand-off loads are sc1.
;          Workgroup -> data mapping assumes id%8 shares an L2 for speed only. Every spin is bounded."""
def build(fn, stamps=False):
    HDR = open("cdna_kernels/" + NAME + ".s.ref").read().split("; Override")[0]
    A = Asm()
    A(HDR)
    A(f"; @launch grid=(256,1,1) block=(256,1,1) lds={P1_LDS}")
    A.lines += DOC.split("\n")
    A('.amdgcn_target "amdgcn-amd-amdhsa--gfx950"')
    A(".text")
    gen_p1(A, NAME + "_kernel", stamps=stamps)
    checks(A, NAME + "_kernel")
    if "ub" in XP:
        A.lines = [l.replace("0x402b1600", "0x422c1600").replace("0x5b402b16", "0x5b422c16") for l in A.lines]
        out = []
        pend = 0
        for i, l in enumerate(A.lines):
            if l == f"s_cmp_eq_u32 s{qP}, 3": l = "s_cmp_eq_u32 0, 0"
            out.append(l)
        A.lines = out
    if any(x.startswith("g_") for x in XP):
        i0 = A.lines.index("p1_gf:"); i1 = A.lines.index("p1_gdone:")
        body = A.lines[i0:i1]
        if "g_nodma" in XP: body = [l for l in body if " lds" not in l]
        if "g_nobar" in XP: body = [l for l in body if not l.startswith("s_barrier")]
        if "g_nowait" in XP: body = [l for l in body if not l.startswith("s_waitcnt lgkmcnt")]
        if "g_noread" in XP: body = [l for l in body if not l.startswith("ds_read")]
        if "g_nop" in XP: body = [("s_nop 0" if " lds" in l else l) for l in body]
        A.lines[i0:i1] = body
    if "hplain" in XP: A.lines = [l.replace(" sc1", "") if ("store" in l and f"s[{sA}:{sA+3}], s6 " not in l and f"s[{sA}:{sA+3}]" in l) else l for l in A.lines]
    if "oplain" in XP: A.lines = [l.replace(" sc1", "") if ("store" in l and f"s[{sA}:{sA+3}], s6 " in l) else l for l in A.lines]
    if "iplain" in XP: A.lines = [l.replace(" sc1", "") if ("store" in l and f"s[{qI}:{qI+3}], s{sT0}" in l) else l for l in A.lines]
    if "nt" in XP: A.lines = [l.replace(" sc1", " sc1 nt") if ("buffer_store" in l) else l for l in A.lines]
    if "sc01" in XP: A.lines = [l.replace(" sc1", " sc0 sc1") if ("buffer_store" in l) else l for l in A.lines]
    open(fn, "w").write(A.text())
if __name__ == "__main__":
    build("fu.s")
    build("fu_st.s", stamps=True)
```

```python
from asmlib import *
from common import *

P1_LDS = 163840
R0, R1, R2, R3, R4 = 0, 32768, 65536, 98304, 131072
CS = R3
TAILBIT = 0x30000
ROT = False
TLBW = True
FLAG = 'byte'
FINE = False
EVMASK = 0x180
vFin = 60
XP = set()

class LQ:
    def __init__(s): s.q = []
    def issue(s, tag): s.q.append(tag)
    def wait(s, A, tags):
        idx = max([i for i, t in enumerate(s.q) if t in tags], default=-1)
        if idx < 0: return
        n = len(s.q) - 1 - idx
        assert n <= 15
        A(f"s_waitcnt lgkmcnt({n})")
        s.q = s.q[idx + 1:]
    def clear(s): s.q = []

sX, sWq, sW1, sW3, sK, sV, sA, sWp, sSrc, sSt = 8, 12, 16, 20, 24, 28, 32, 36, 40, 44
sWave, sHead, sRb, sFb, sHasF = 48, 49, 50, 51, 52
sXo, sWqo, sW13o, sM0X, sM0W, sD, sTail, sSlot = 53, 54, 55, 56, 57, 58, 59, 60
sT0, sT1, sT2 = 61, 62, 63
pX, pK, pV, pWq, pWo, pBx, pW1, pW3, pW2, pOut, pDbg, pWs = range(64, 88, 2)
sKVo, sKVm, sDelta, sT, sU, sMask, sXb, sC0 = 88, 89, 90, 91, 92, 93, 94, 95
sX2, sM0d, sXst, sM0t, sProd, sPo = 76, 74, 75, 3, 4, 5
sE0 = 96
vLane = 1
vXd, vWqd, vW13d, vXr, vWqr, vW13r = 2, 10, 12, 13, 15, 23
vZero = 27
vSt = 28
vTm = 44
vQ = 64
vAcc = 128
aG, aUp, aCs, aXf, aWf, aOne, aWp = 0, 64, 128, 144, 176, 192, 196
vKr, vVr, vKd, vVd, vL, vOo = 14, 10, 2, 6, 22, 24
vWs, vKb, vVb = 56, 57, 58
vS, vP, vF = 128, 192, 208
aO = 128
sNo = 100
pFl = 84
qA, qW, qX, qO, qI = 8, 12, 16, 20, 44
qP, qG, qAo, qWo, qWm, qN, qAs, qWs = 53, 54, 55, 56, 57, 58, 51, 60
qAe, qWe, qNl, qSo, qXo, qRb, qCb, qT0, qT1, qIn = 74, 75, 3, 93, 94, 76, 77, 78, 79, 24
vFo, vFv, vPa, vPb, vAa, vAb, vAo, vAp = 25, 28, 30, 32, 34, 35, 36, 37
vL16, vWr2, vXo2, vL8, vOwn = 54, 2, 4, 5, 6
aA2, aW2, aWq = 0, 64, 64
RING2 = 81920
TOUCH = 0
PMAP = 0x3210
SLP = (0, 0, 0)
COOPX = 1
SPL = (1, 1)
OPT = set()
vTch, sTch = 26, 92
vOnes = 40
vWpB, vWpA = 59, 39
sWpO, sSen = 5, 4


def mf16(A, d, a, b, c=None):
    A(f"v_mfma_f32_16x16x32_bf16 {d}, {a}, {b}, {d if c is None else c}")
def mf32(A, d, a, b, c=None):
    A(f"v_mfma_f32_32x32x16_bf16 {d}, {a}, {b}, {d if c is None else c}")

def spread(items, nslots):
    out = [[] for _ in range(nslots)]
    n = len(items)
    for i, it in enumerate(items):
        out[min(nslots - 1, (i * nslots) // n)].append(it)
    return out

def frag_list(ffn):
    fr = [("Q", p) for p in range(8)]
    if ffn:
        for p in range(4): fr += [("G", p), ("U", p)]
    return fr

def wread(fr, k, sec, buf):
    c, p = fr
    if c == "Q": ad, off = vWqr + p, sec * 1024
    else: ad, off = vW13r + p, (2048 if c == "G" else 3072) + sec * 512
    return f"ds_read_b64_tr_b16 {ar(aWf+buf*4+2*sec,2)}, v{ad} offset:{off + k*16384}"

def xread(s, st, rt):
    return f"ds_read_b128 {ar(aXf+st*16+rt*4,4)}, v{vXr+s} offset:{rt*2048}"

def dma_w(ffn, force=False):
    it = [f"s_max_u32 m0, s{sM0W}, s{sTail}",
          f"buffer_load_dwordx4 v{vWqd}, s[{sWq}:{sWq+3}], s{sWqo} offen lds ; @put W",
          f"buffer_load_dwordx4 v{vWqd+1}, s[{sWq}:{sWq+3}], s{sWqo} offen offset:1024 lds ; @put W"]
    if ffn or force:
        it += [f"buffer_load_dwordx4 v{vW13d}, s[{sW1}:{sW1+3}], s{sW13o} offen offset:2048 lds ; @put W",
               f"buffer_load_dwordx4 v{vW13d}, s[{sW3}:{sW3+3}], s{sW13o} offen offset:3072 lds ; @put W"]
    it += [f"s_add_u32 s{sWqo}, s{sWqo}, {32*8192}"]
    if ffn or force: it += [f"s_add_u32 s{sW13o}, s{sW13o}, {32*3456}"]
    it += [f"s_add_u32 s{sSlot}, s{sSlot}, 16384\ns_and_b32 s{sSlot}, s{sSlot}, 0xffff",
           f"s_add_u32 s{sM0W}, s{sSlot}, s{sC0}"]
    return it

def dma_x(half):
    if half == 0: it = [f"s_mov_b32 m0, s{sM0X}"]
    else: it = [f"s_add_u32 m0, s{sM0X}, s{sM0d}"]
    sd = sX if half == 0 else sX2
    for j in range(4):
        it.append(f"buffer_load_dwordx4 v{vXd+4*half+j}, s[{sd}:{sd+3}], s{sXo} offen offset:{j*1024} lds")
    if half: it += [f"s_add_u32 s{sXo}, s{sXo}, s{sXst}\ns_xor_b32 s{sM0X}, s{sM0X}, s{sM0t}"]
    return it

def fine(A):
    A("s_memtime s[98:99]"); A("s_waitcnt lgkmcnt(0)")
    A("s_mov_b32 m0, s7")
    A(f"v_writelane_b32 v{vFin}, s96, m0")
    A(f"v_writelane_b32 v{vFin+1}, s100, m0")
    A(f"v_writelane_b32 v{vFin-1}, s98, m0")
    A("s_add_u32 s7, s7, 1")

def kstep(A, lq, ffn, k, slots, sal, tog, bar, last=None):
    fr = frag_list(ffn); nf = len(fr)
    ones = {("Q", 0): 0, ("Q", 1): 1, ("G", 0): 2, ("U", 0): 3}
    for f in range(nf):
        c, p = fr[f]
        lq.wait(A, [("w", f)] + ([("x", k)] if f == 0 else []))
        buf = f % 4
        for rt in range(4):
            r_ = rt if f % 2 == 0 else 3 - rt
            if c == "Q": d = vr(vAcc + (p * 4 + r_) * 4, 4)
            else: d = ar((aG if c == "G" else aUp) + (p * 4 + r_) * 4, 4)
            mf16(A, d, ar(aWf + buf * 4, 4), ar(aXf + k * 16 + r_ * 4, 4))
            if f + 3 < nf and rt < 2:
                A(wread(fr[f + 3], k, rt, (f + 3) % 4)); lq.issue(("w", f + 3))
            if last is not None and f >= nf - 2:
                for it in last[4 * (f - nf + 2) + rt]: A(it)
            elif f == nf - 2:
                A(wread(fr[rt // 2], 1 - k, rt % 2, (rt // 2) % 4)); lq.issue(("w", rt // 2))
            elif f == nf - 1 and rt < 2:
                A(wread(fr[2], 1 - k, rt, 2)); lq.issue(("w", 2))
            if rt == 1:
                for it in sal.get(f, []): A(it)
            if rt >= 2 and f < nf - 2:
                for it in slots[2 * f + rt - 2]:
                    if isinstance(it, tuple):
                        A(xread(1 - k, 1 - k, it[1])); lq.issue(("x", 1 - k))
                    else:
                        if "lds" in it and " m0," in A.lines[-1]: A("s_nop 0")
                        A(it)
                        if it.startswith("ds_"): lq.issue(("o", 0))
            if rt == 3:
                for t in tog.get(f, []): A(t)
        if fr[f] in ones:
            mf16(A, ar(aCs + ones[fr[f]] * 4, 4), ar(aWf + buf * 4, 4), ar(aOne, 4))
        if f == nf - 3:
            A(f"s_waitcnt vmcnt({bar[0]}) lgkmcnt(0)")
            lq.clear()
            A(f"s_barrier ; {bar[1]}")

def poll_check(A, L):
    A(f"s_mov_b32 s{sT1}, 0")
    A(f"{L}_chk:")
    A(f"v_cmp_ne_u32 vcc, 0x01010101, v{vTm}")
    A(f"v_cmp_eq_u32 s[6:7], 0, v{vTm+5}")
    A("s_nop 3")
    A(f"s_or_b64 s[6:7], s[6:7], vcc")
    A(f"s_cbranch_scc0 {L}_rdy ; pollbr")
    A(f"s_add_u32 s{sT1}, s{sT1}, 1")
    A(f"s_cmp_ge_u32 s{sT1}, 0x40000")
    A(f"s_cbranch_scc1 {L}_rdy")
    for it in poll_loads(): A(it)
    A("s_waitcnt vmcnt(0)")
    A(f"s_branch {L}_chk")
    A(f"{L}_rdy:")
def poll_loads():
    return [f"global_load_dword v{vTm}, v{vTm+2}, s[{pDbg}:{pDbg+1}] sc1",
            f"global_load_dwordx2 {vr(vTm+4,2)}, v{vTm+6}, s[{pDbg}:{pDbg+1}] offset:128 sc1"]
def stats_scale():
    o = []
    for rt in range(4):
        q = vSt + 4 * rt
        o += [f"v_mul_f32 v{q+3}, {hex(f2u(LOG2E/128**0.5))}, v{q+1}", f"v_mul_f32 v{q+1}, {hex(f2u(-LOG2E))}, v{q+1}"]
    return o + [f"v_mov_b32 v{vTm+4+i}, 0" for i in range(4)]
CSB = [14, 18, 22]
def qp_code():
    if PMAP == 0x3210: return f"s_and_b32 s{qP}, s2, 3"
    return f"s_and_b32 s6, s2, 3\ns_lshl_b32 s6, s6, 2\ns_lshr_b32 s6, {PMAP}, s6\ns_and_b32 s{qP}, s6, 3"
def cs_writes():
    t = vTm
    return [f"ds_write_b128 v{t+8}, {ar(aCs,4)}", f"ds_write_b128 v{t+8}, {ar(aCs+4,4)} offset:64",
            f"ds_write_b128 v{t+9}, {ar(aCs+8,4)}", f"ds_write_b128 v{t+9}, {ar(aCs+12,4)} offset:256"]

def gemm_loop(A, ffn, L):
    fr = frag_list(ffn); nf = len(fr)
    nw = 4 if ffn else 2
    lq = LQ()
    for f in range(3):
        lq.issue(("w", f)); lq.issue(("w", f))
    tg = lambda r, m: [f"v_xor_b32 v{r}, {m}, v{r}"]
    bar = (2 * nw + 8, f"@need W {2*nw}")
    A(".p2align 6")
    A(f"{L}:")
    if not ffn:
        items = [("x", rt) for rt in range(4)] + dma_x(1) + dma_w(ffn)
        kstep(A, lq, ffn, 0, spread(items, 2 * (nf - 2)), {}, {2: tg(vXr, "0x18000")}, bar)
        A(f"s_bitcmp1_b32 s{sMask}, s{sD}")
        A(f"s_cbranch_scc1 {L}_ev")
        A(f"{L}_evret:")
        slots = spread(dma_x(0) + dma_w(ffn) + [f"s_add_u32 s{sD}, s{sD}, 1"], 2 * (nf - 5))
        slots += [[f"s_cmp_eq_u32 s{sD}, 10\ns_cbranch_scc1 {L}_nw\ns_waitcnt vmcnt({2*nw+4})\n{L}_nw:"],
                  [("x", 0)], [("x", 1)], [("x", 2)], [("x", 3)], []]
        tog = {0: tg(vXr + 1, "0x18000")}
        for f, (c, p) in enumerate(fr): tog.setdefault(max(f - 3, -1) + 1, []).extend(tg(vWqr + p, "0x38000"))
        kstep(A, lq, ffn, 1, slots, {}, tog, bar)
        A(f"s_cmp_lt_u32 s{sD}, 10")
        A(f"s_cbranch_scc1 {L}")
        return
    def one(items):
        sl = [[] for _ in range(2 * (nf - 2))]
        for i, it in enumerate(items): sl[2 * i] = [it] if it else []
        return sl
    X = [("x", rt) for rt in range(4)]
    tog0 = {2: tg(vXr, "0x18000")}
    tog1 = {i: tg(vWqr + i, "0x38000") for i in range(7)}
    tog1.update({8: tg(vWqr + 7, "0x38000"), 9: tg(vW13r, "0x38000"), 10: tg(vW13r + 1, "0x38000"), 11: tg(vW13r + 2, "0x38000"),
                 12: tg(vW13r + 3, "0x38000"), 14: tg(vXr + 1, "0x18000")})
    xs, ws_ = dma_x(1), dma_w(True)
    kstep(A, lq, True, 0, one(X[:2] + xs[1:5] + X[2:] + ws_[1:5]),
          {1: [xs[0]], 6: [xs[5]], 7: [ws_[0]], 12: ws_[5:7], 13: ws_[7:], 15: [f"s_cmp_eq_u32 s{sD}, 8"]}, tog0, bar)
    A(f"s_cbranch_scc1 {L}_end")
    q_mid = list(lq.q)
    xs = dma_x(0)
    sl = one(xs[1:5] + ws_[1:5] + X)
    sl[2 * 7 + 1] = [f"s_waitcnt vmcnt({2*nw+4})"]
    kstep(A, lq, True, 1, sl, {0: [xs[0]], 4: [ws_[0]], 8: ws_[5:7], 9: ws_[7:8], 10: ws_[8:], 11: [f"s_add_u32 s{sD}, s{sD}, 1"]}, tog1, bar)
    A(f"s_branch {L}")
    A(f"{L}_end:")
    lq.q = q_mid
    kv = kv_dma()
    sl = one(poll_loads() + [None, None] + kv[1:5] + X)
    sl[2 * 7 + 1] = ["s_waitcnt vmcnt(10)"]
    for j in range(5): sl[2 * j + 1] = []
    tA = {f: list(v) for f, v in tog1.items()}
    mv = {f: [f"v_mov_b32 v{vKd+f}, v{vQ+f}"] for f in range(5)}
    kstep(A, lq, True, 1, sl, {**mv, 3: mv[3] + [f"s_lshl_b32 s{sKVm}, s{sWave}, 12", kv[0]]}, tA, (14, "@need W 4"))
    B_ = Asm(); B_("s_waitcnt vmcnt(4)"); poll_check(B_, L)
    st = [f"buffer_load_dwordx4 {vr(vSt+4*rt,4)}, v{vTm+3}, s[{sSt}:{sSt+3}], s{sT0} offen offset:{rt*256} sc1" for rt in range(4)]
    sl = one(X[:2] + st + X[2:] + kv[6:10])
    sl[1] = ["\n".join(B_.lines)]
    kstep(A, lq, True, 0, sl, {0: [f"s_lshl2_add_u32 s{sT0}, s{sRb}, s{sWave}\ns_lshl_b32 s{sT0}, s{sT0}, 10"], 7: [kv[5]],
                               2: [f"v_readfirstlane_b32 s{sNo}, v{vTm+4} ; tag"], 3: [f"v_readfirstlane_b32 s{sNo+1}, v{vTm+5} ; tag"],
                               4: [f"s_add_u32 s{pFl}, s{pWs}, {FL_OFF}\ns_addc_u32 s{pFl+1}, s{pWs+1}, 0"],
                               12: [f"s_add_u32 s{sKVo}, s{sKVo}, 16384\ns_add_u32 s{sKVm}, s{sKVm}, 32768"]}, {}, (14, "@need W 0"))
    cw = cs_writes()
    sl = one([None] + kv[1:3] + cw[:2] + kv[3:5] + [None] * 3 + [None] + cw[2:])
    ss = stats_scale()
    t = vTm
    last = [[f"ds_read_b128 {vr(CSB[0],4)}, v{t+8}", f"v_xor_b32 v{t+11}, 64, v{t+8}"], ss[0:2], [f"ds_read_b128 {vr(CSB[1],4)}, v{t+11}", ss[2]],
            ss[3:5], ss[5:7], ss[7:9], ss[9:11], ss[11:12] + [qp_code()]]
    kstep(A, lq, True, 1, sl, {0: [kv[0]]}, {}, (8, "@need KV 8"), last=last)

def kv_dma_voff(A, kd_, vd_, nv=4):
    t = vTm
    A(f"v_lshrrev_b32 v{t+12}, 4, v{vLane}")
    A(f"v_and_b32 v{t+14}, 15, v{vLane}")
    A(f"v_xor_b32 v{t+13}, v{t+14}, v{t+12}")
    A(f"v_lshlrev_b32 v{t+13}, 4, v{t+13}")
    A(f"v_lshl_add_u32 v{kd_}, v{t+12}, 8, v{t+13}")
    for j in range(1, 4): A(f"v_xor_b32 v{kd_+j}, {64*j}, v{kd_}")
    A(f"v_lshlrev_b32 v{t+13}, 2, v{t+12}")
    A(f"v_xor_b32 v{t+13}, v{t+13}, v{t+14}")
    A(f"v_lshlrev_b32 v{t+13}, 4, v{t+13}")
    A(f"v_lshl_add_u32 v{vd_}, v{t+12}, 8, v{t+13}")
    for j in range(1, nv): A(f"v_mov_b32 v{vd_+j}, v{vd_}")

def gemm_events(A, L):
    A(f"{L}_ev:")
    A(f"s_cmp_eq_u32 s{sD}, 8")
    A(f"s_cbranch_scc1 {L}_ev8")
    for it in poll_loads(): A(it)
    A(f"s_branch {L}_evret")
    A(f"{L}_ev8:")
    A(f"s_mov_b32 s{sTail}, {TAILBIT}")
    for d in (sWq, sW1, sW3): A(f"s_mov_b32 s{d+2}, 0")
    for d, s_ in ((sX, sK), (sX2, sV)):
        A(f"s_mov_b64 s[{d}:{d+1}], s[{s_}:{s_+1}]")
        A(f"s_mov_b64 s[{d+2}:{d+3}], s[{s_+2}:{s_+3}]")
    for j in range(8): A(f"v_mov_b32 v{vXd+j}, v{vQ+min(j,4)}")
    A(f"s_lshl_b32 s{sM0X}, s{sWave}, 12")
    A(f"s_mov_b32 s{sXo}, s{sKVo}")
    A(f"s_movk_i32 s{sM0d}, 16384")
    A(f"s_movk_i32 s{sXst}, 16384")
    A(f"s_mov_b32 s{sM0t}, 0x8000")
    A(f"s_waitcnt vmcnt(12)")
    poll_check(A, L)
    A(f"v_readfirstlane_b32 s{sNo}, v{vTm+4} ; tag")
    A(f"v_readfirstlane_b32 s{sNo+1}, v{vTm+5} ; tag")
    A(f"s_add_u32 s{pFl}, s{pWs}, {FL_OFF}")
    A(f"s_addc_u32 s{pFl+1}, s{pWs+1}, 0")
    A(f"s_lshl2_add_u32 s{sT0}, s{sRb}, s{sWave}")
    A(f"s_lshl_b32 s{sT0}, s{sT0}, 10")
    for rt in range(4):
        A(f"buffer_load_dwordx4 {vr(vSt+4*rt,4)}, v{vTm+3}, s[{sSt}:{sSt+3}], s{sT0} offen offset:{rt*256} sc1")
    A(f"s_branch {L}_evret")

def kv_addr(A, base_expr_sgpr, only=None):
    vKr, vVr = only or (globals()["vKr"], globals()["vVr"])
    t0, t1, t2, t3 = vTm + 12, vTm + 13, vTm + 14, vTm + 15
    A(f"v_and_b32 v{t0}, 31, v{vLane}")
    A(f"v_lshrrev_b32 v{t1}, 5, v{vLane}")
    A(f"v_and_b32 v{t2}, 15, v{vLane}")
    A(f"v_xor_b32 v{t2}, v{t2}, v{t1}")
    A(f"s_lshl_b32 s{sT0}, s{sWave}, 2")
    A(f"v_xor_b32 v{t2}, s{sT0}, v{t2}")
    A(f"v_lshlrev_b32 v{t2}, 4, v{t2}")
    A(f"v_lshl_add_u32 v{t2}, v{t0}, 8, v{t2}")
    A(f"v_add_u32 v{vKr}, s{base_expr_sgpr}, v{t2}")
    for p in range(1, 1 if only else 8): A(f"v_xor_b32 v{vKr+p}, {32*p}, v{vKr}")
    A(f"v_bfe_u32 v{t0}, v{vLane}, 2, 2")
    A(f"v_lshl_add_u32 v{t2}, v{t1}, 2, v{t0}")
    A(f"v_lshlrev_b32 v{t2}, 8, v{t2}")
    A(f"v_lshl_add_u32 v{t2}, v{t0}, 6, v{t2}")
    A(f"v_bfe_u32 v{t3}, v{vLane}, 1, 1")
    A(f"v_lshl_add_u32 v{t2}, v{t3}, 5, v{t2}")
    A(f"v_bfe_u32 v{t3}, v{vLane}, 4, 1")
    A(f"v_lshl_add_u32 v{t2}, v{t3}, 4, v{t2}")
    A(f"v_and_b32 v{t3}, 1, v{vLane}")
    A(f"v_lshl_add_u32 v{t2}, v{t3}, 3, v{t2}")
    A(f"s_add_u32 s{sT0}, s{base_expr_sgpr}, 16384")
    A(f"v_add_u32 v{vVr}, s{sT0}, v{t2}")
    for dt in range(1, 1 if only else 4): A(f"v_xor_b32 v{vVr+dt}, {64*dt}, v{vVr}")

def kv_dma():
    it = [f"s_mov_b32 m0, s{sKVm}"]
    for j in range(4):
        it.append(f"buffer_load_dwordx4 v{vKd+j}, s[{sK}:{sK+3}], s{sKVo} offen offset:{j*1024} lds")
    it.append("s_add_u32 m0, m0, 16384")
    for j in range(4):
        it.append(f"buffer_load_dwordx4 v{vVd}, s[{sV}:{sV+3}], s{sKVo} offen offset:{j*1024} lds")
    return it

def kread(p, tile, buf):
    return f"ds_read_b128 {vr(vF+buf*4,4)}, v{vKr+p} offset:{tile*8192}"
def vread(ks, dt, tile, sec, buf):
    return f"ds_read_b64_tr_b16 {vr(vF+buf*4+2*sec,2)}, v{vVr+dt} offset:{(32*tile+16*ks+8*sec)*256}"

def sm_reg(buf, e):
    qt = (e >> 3) & 1; ks = e >> 4
    return vS + (buf * 2 + qt) * 16 + ks * 8 + (e & 7), qt, ks
def sm_exp(buf, e):
    r, _, _ = sm_reg(buf, e)
    if "noexp" in XP: return []
    if "movexp" in XP: return [f"v_mov_b32 v{r}, v{r}"]
    return [f"v_exp_f32 v{r}, v{r}"]
def sm_post(buf, e):
    r, qt, ks = sm_reg(buf, e)
    o = [f"v_add_f32 v{vL+qt}, v{vL+qt}, v{r}"]
    if "noadd" in XP: o = []
    if e & 1 and "nocvt" not in XP: o.append(f"v_cvt_pk_bf16_f32 v{vP+(qt*2+ks)*4+((e&7)>>1)}, v{r-1}, v{r}")
    return o

def attn_seg(A, lq, seg, extra, mfma=True, sm_lo=0, sm_hi=64, look=True):
    def rd(phi, part):
        s = (phi // 8) % 4; i = phi % 8; buf = phi % 4
        if s in (0, 2):
            return kread(i, 1 if s == 0 else 0, buf) if part == 0 else None
        return vread(i // 4, i % 4, 0 if s == 1 else 1, part, buf)
    for i in range(8):
        phi = seg * 8 + i
        if mfma and "nowait" not in XP: lq.wait(A, [("f", phi)])
        for qt in range(2):
            slot = seg * 16 + 2 * i + qt
            if mfma:
                if seg in (0, 2):
                    sb = 1 if seg == 0 else 0
                    d = vr(vS + (sb * 2 + qt) * 16, 16)
                    mf32(A, d, vr(vF + (phi % 4) * 4, 4), vr(vQ + (qt * 8 + i) * 4, 4), "0" if i == 0 else None)
                else:
                    ks, dt = i // 4, i % 4
                    mf32(A, ar(aO + (qt * 4 + dt) * 16, 16), vr(vF + (phi % 4) * 4, 4), vr(vP + (qt * 2 + ks) * 4, 4))
            for it in extra.get((slot, "pre"), []): A(it)
            nphi = (phi + 3) % 32
            nseg = nphi // 8
            if look is True or nseg in look:
                r = rd(nphi, qt)
                if r and "noread" not in XP: A(r); lq.issue(("f", nphi))
            for it in extra.get((slot, "ds"), []):
                A(it); lq.issue(("side", 0))
            for it in extra.get(slot, []):
                if it.startswith("v_"): continue
                if "lds" in it and " m0," in A.lines[-1]: A("s_nop 0")
                A(it)
            for (buf, start) in ((1, 22), (0, 54)):
                e = (slot - start) % 64
                if e < 32 and (buf, "exp") in sm_ok(slot, sm_lo, sm_hi, buf, e):
                    for x in sm_exp(buf, e): A(x)
            for (buf, start) in ((1, 22), (0, 54)):
                e = (slot - start - 1) % 64
                if e < 32 and (buf, "exp") in sm_ok((slot - 1) % 64, sm_lo, sm_hi, buf, e):
                    for x in sm_post(buf, e): A(x)
            for it in extra.get(slot, []):
                if it.startswith("v_"): A(it)
            for it in extra.get((slot, "post"), []): A(it)
def sm_ok(slot, lo, hi, buf, e):
    return {(buf, "exp")} if (lo <= slot < hi) else set()

def wp_src_voff(A, d, n=8):
    t = vTm
    A(f"v_lshrrev_b32 v{t+12}, 4, v{vLane}")
    A(f"v_lshlrev_b32 v{t+12}, 1, v{t+12}")
    A(f"v_and_b32 v{t+13}, 7, v{vLane}")
    A(f"v_xor_b32 v{t+12}, v{t+12}, v{t+13}")
    A(f"v_lshlrev_b32 v{t+12}, 4, v{t+12}")
    A(f"v_lshrrev_b32 v{t+13}, 3, v{vLane}")
    A(f"v_mul_u32_u24 v{t+13}, 1280, v{t+13}")
    A(f"v_add_u32 v{d}, v{t+12}, v{t+13}")
    for j in range(1, n): A(f"v_add_u32 v{d+j}, {(j%4)*9216 + (j//4)*128}, v{d}")

def wp_addr(A, sh, note="", reg=R3, n=4, dst=None):
    t = vTm
    A(f"v_bfe_u32 v{t+14}, v{vLane}, 2, 2")
    A(f"v_bfe_u32 v{t+16}, v{vLane}, 4, 1")
    A(f"v_lshl_add_u32 v{t+14}, v{t+16}, 2, v{t+14}")
    A(f"v_lshrrev_b32 v{t+13}, 1, v{t+14}")
    A(f"v_lshlrev_b32 v{t+13}, 5, v{t+13}")
    A(f"v_lshl_add_u32 v{t+13}, v{t+14}, 7, v{t+13}")
    A(f"v_lshrrev_b32 v{t+15}, 5, v{vLane}")
    A(f"v_lshl_add_u32 v{t+13}, v{t+15}, 10, v{t+13}")
    A(f"v_and_b32 v{t+15}, 3, v{vLane}")
    A(f"v_lshl_add_u32 v{t+13}, v{t+15}, 3, v{t+13}")
    A(f"s_lshl_b32 s6, s{sWave}, {sh}")
    A(f"s_add_u32 s6, s6, {reg}")
    A(f"v_add_u32 v{dst or t+4}, s6, v{t+13}{note}")
    for i4 in range(1, n): A(f"v_xor_b32 v{t+4+i4}, {32*i4}, v{t+4}")
def wp_reads(A, stride):
    for su in range(2):
        for i4 in range(4):
            for sec in range(2):
                A(f"ds_read_b64_tr_b16 {ar(aWq+(su*4+i4)*4+2*sec,2)}, v{vTm+4+i4} offset:{su*stride+sec*2048}")
def wp_stores(A, so):
    for su in range(2):
        for i4 in range(4):
            A(f"buffer_store_dwordx4 {ar(aWq+(su*4+i4)*4,4)}, v{vL16}, s[{sWp}:{sWp+3}], s{so} offen offset:{i4*1024} sc1")
        if su == 0: A(f"s_add_u32 s{so}, s{so}, 4096")

def set_flag(A, phase, lab, cls="H"):
    A(f"s_cmp_lg_u32 s{sWave}, 0")
    A(f"s_cbranch_scc1 {lab}")
    A(f"s_add_u32 s6, s{sNo}, {phase}")
    A(f"v_mov_b32 v{vFv}, s6")
    A(f"v_mov_b32 v{vFv+1}, s{sNo+1}")
    A("s_mov_b64 exec, 1")
    A(f"global_store_dwordx2 v{vFo}, {vr(vFv,2)}, s[{pFl}:{pFl+1}] sc1")
    A("s_mov_b64 exec, -1")
def flag_load(A, dst, ad):
    A(f"global_load_dwordx2 {vr(dst,2)}, v{ad}, s[{pFl}:{pFl+1}] sc1")
def flag_wait(A, lab, phase, polls):
    A(f"s_add_u32 s{sT0}, s{sNo}, {phase}")
    A(f"s_mov_b32 s{sT1}, 0")
    A(f"{lab}c:")
    for n, (d, ad) in enumerate(polls):
        A(f"v_subrev_u32 v{d}, s{sT0}, v{d}")
        A(f"v_cmp_ne_u32 s[{sE0+2*n}:{sE0+2*n+1}], s{sNo+1}, v{d+1}")
    for n, (d, ad) in enumerate(polls):
        A(f"v_cmp_lt_u32 " + ("vcc" if n == 0 else "s[6:7]") + f", {3-phase}, v{d}")
    A("s_nop 3")
    A(f"s_or_b64 s[{sE0}:{sE0+1}], s[{sE0}:{sE0+1}], vcc")
    if len(polls) > 1:
        A(f"s_or_b64 s[6:7], s[6:7], s[{sE0+2}:{sE0+3}]")
        A(f"s_or_b64 s[{sE0}:{sE0+1}], s[{sE0}:{sE0+1}], s[6:7]")
    A(f"s_cbranch_scc0 {lab}r ; pollbr")
    A(f"s_add_u32 s{sT1}, s{sT1}, 1")
    A(f"s_cmp_ge_u32 s{sT1}, 0x40000")
    A(f"s_cbranch_scc1 {lab}r")
    if SLP[0]: A(f"s_sleep {SLP[0]}")
    for d, ad in polls: flag_load(A, d, ad)
    A("s_waitcnt vmcnt(0)")
    A(f"s_branch {lab}c")
    A(f"{lab}r:")

def q_setup():
    w = sWave
    return [
     f"s_lshl_b32 s6, s{qP}, 3\ns_lshr_b32 s{qT0}, {hex(0x402b1600)}, s6\ns_and_b32 s{qT0}, s{qT0}, 0xff",
     f"s_lshr_b32 s{qT1}, {hex(0x5b402b16)}, s6\ns_and_b32 s{qT1}, s{qT1}, 0xff",
     f"s_and_b32 s{sT2}, s{w}, 1\ns_lshl_b32 s6, s{sT2}, 11\ns_lshl_b32 s{qAs}, s{qT0}, 13",
     f"s_add_u32 s{qAs}, s{qAs}, s6\ns_lshr_b32 s7, s{w}, 1\ns_lshl_b32 s6, s{qCb}, 1",
     f"s_add_u32 s6, s6, s7\ns_mul_i32 s6, s6, 5120\ns_mul_i32 s{qWs}, s{qT0}, 81920",
     f"s_add_u32 s{qWs}, s{qWs}, s6\ns_mul_i32 s6, s{sT2}, 40960\ns_add_u32 s{qWs}, s{qWs}, s6",
     f"s_lshl_b32 s{qAe}, s{qT1}, 13\ns_mul_i32 s{qWe}, s{qT1}, 81920\ns_mov_b32 s{qAo}, s{qAs}",
     f"s_mov_b32 s{qWo}, s{qWs}\ns_mul_i32 s{qWm}, s{sT2}, 10240\ns_mul_i32 s6, s7, 5120",
     f"s_add_u32 s{qWm}, s{qWm}, s6\ns_lshl_b32 s6, s{qRb}, 1\ns_add_u32 s6, s6, s7",
     f"s_mul_i32 s6, s6, {A_BLK}\ns_add_u32 s{qA}, s{pWs}, s6\ns_addc_u32 s{qA+1}, s{pWs+1}, 0",
     f"s_and_b32 s{qA+1}, s{qA+1}, 0xffff\ns_cmp_eq_u32 s{qP}, 3\ns_cselect_b32 s{qA+2}, s{qAe}, 0\ns_cselect_b32 s{qW+2}, s{qWe}, 0\ns_mov_b32 s{qA+3}, 0x20000",
     f"s_mov_b32 s{qW}, s{sWp}\ns_mov_b32 s{qW+1}, s{sWp+1}\ns_mov_b32 s{qW+3}, 0x20000",
     f"s_lshl2_add_u32 s6, s{qRb}, s{qP}\ns_lshl_b32 s6, s6, 1\ns_add_u32 s6, s6, s7\ns_mul_i32 s{qXo}, s6, 20480",
     f"s_lshl_b32 s6, s{qCb}, 1\ns_add_u32 s6, s6, s{sT2}\ns_mul_i32 s6, s6, 160\ns_add_u32 s{qXo}, s{qXo}, s6",
     f"s_xor_b32 s{qT0}, s{w}, s{qP}\ns_mul_i32 s{qT1}, s{w}, 3\ns_add_u32 s{qT1}, s{qT1}, s{qT0}\ns_sub_u32 s{qT1}, s{qT1}, 1",
     f"s_mul_i32 s{qT1}, s{qT1}, 10240\ns_cmp_eq_u32 s{qT0}, 0\ns_cselect_b32 s{qSo}, 0x100000, s{qT1}",
    ]

def q_loads(slot):
    it = [f"s_add_u32 m0, s{qWm}, {slot*20480}"]
    for j in range(4):
        it.append(f"buffer_load_dwordx4 v{vL16}, s[{qW}:{qW+3}], s{qWo} offen offset:{j*1024} sc1 lds ; @put W2")
    it.append(f"s_add_u32 m0, s{qWm}, {slot*20480+4096}")
    it.append(f"buffer_load_dwordx4 v{vL16+1}, s[{qW}:{qW+3}], s{qWo} offen sc1 lds ; @put W2")
    for k in range(2):
        for rt in range(2):
            it.append(f"buffer_load_dwordx4 {ar(aA2+(slot*4+k*2+rt)*4,4)}, v{vL16+k}, s[{qA}:{qA+3}], s{qAo} offen offset:{rt*1024} sc1")
    it.append(f"s_add_u32 s{qWo}, s{qWo}, 81920\ns_add_u32 s{qAo}, s{qAo}, 8192")
    return it

def gemm2(A, L, emit, stamp, cold):
    ac, vT, vX, vZ = 64, 144, 168, 180
    srd(A, qX, pX, pX + 1, X_SIZE)
    srd(A, qO, pOut, pOut + 1, X_SIZE)
    for i in range(4): A(f"v_mov_b32 v{vZ+i}, 0")
    A(f"v_and_b32 v{vT}, 15, v{vLane}")
    A(f"v_mul_u32_u24 v{vT}, 1280, v{vT}")
    A(f"v_lshrrev_b32 v{vT+1}, 4, v{vLane}")
    A(f"v_lshl_add_u32 v{vXo2}, v{vT+1}, 3, v{vT}")
    def zero():
        for i in range(5): mf32(A, vr(ac + 16 * i, 16), vr(vZ, 4), vr(vZ, 4), "0")
    zero()
    A(f"v_mov_b32 v{vWr2}, v{vL16}")
    A(f"v_add_u32 v{vWr2+1}, 40960, v{vL16}")
    A(f"v_lshlrev_b32 v{vL8}, 3, v{vLane}")
    A(f"v_add_u32 v{vOwn}, {RING2}, v{vL16}")
    A(f"s_mov_b32 s{qN}, 0")
    def wread2(slot, f, buf):
        k, ct = f // 10, f % 10
        return f"ds_read_b128 {ar(aW2+buf*4,4)}, v{vWr2+slot//2} offset:{(slot%2)*20480+k*10240+ct*1024}"
    def xload():
        for ct in range(5):
            A(f"buffer_load_dwordx2 {vr(vX+2*ct,2)}, v{vXo2}, s[{qX}:{qX+3}], s{qXo} offen offset:{ct*32}")
    A(f"s_cmp_eq_u32 s{qP}, 3")
    A(f"s_cselect_b32 s{qT0}, 18, 99")
    A(f"s_cselect_b32 s{qNl}, 24, 19")
    A(f"s_cbranch_scc1 {L}qh")
    flag_load(A, vPa, vAo)
    A("s_waitcnt vmcnt(0)")
    A("s_barrier")
    set_flag(A, 3, f"{L}f2")
    A(f"{L}f2:")
    A(f"s_mov_b32 s{qA+2}, s{qAe}")
    A(f"s_mov_b32 s{qW+2}, s{qWe}")
    A(f"s_mov_b32 s{qAo}, s{qAs}")
    A(f"s_mov_b32 s{qWo}, s{qWs}")
    flag_wait(A, f"{L}w2", 2, [(vPa, vAo)])
    flag_load(A, vPb, vAb)
    A(f"s_cmp_lg_u32 s{qP}, 0")
    A(f"s_cbranch_scc1 {L}qb")
    for s0 in (1, 2):
        if s0 == 2:
            A(f"{L}qb:")
            A(f"s_mov_b32 s{qNl}, 18")
        for s_ in range(s0, s0 + 3):
            emit(q_loads(s_ % 4)[:7])
            A(f"s_add_u32 s{qWo}, s{qWo}, 81920")
        xload()
        A("s_waitcnt vmcnt(20)")
        if True:
            A(f"s_cmp_lg_u32 s{sWave}, 0")
            A(f"s_cbranch_scc1 {L}w4{s0}r")
        flag_wait(A, f"{L}w4{s0}", 3, [(vPb, vAb)])
        A("s_waitcnt vmcnt(5)")
        A("s_barrier ; @need W2 0")
        stamp(8)
        for s_ in range(s0, s0 + 3):
            emit(q_loads(s_ % 4)[7:11])
            A(f"s_add_u32 s{qAo}, s{qAo}, 8192")
        for f in range(3): A(wread2(s0, f, f))
        A("s_waitcnt vmcnt(4)")
        stamp(9)
        A(f"s_branch {L}q{s0}")
    A(f"{L}qh:")
    stamp(8)
    xload()
    A(f"s_waitcnt vmcnt(5)")
    A("s_barrier ; @need W2 0")
    set_flag(A, 3, f"{L}f3")
    A(f"{L}f3:")
    stamp(9)
    for f in range(3): A(wread2(0, f, f))
    lq = LQ()
    for f in range(3): lq.issue(f)
    if "q_oob" in XP:
        A(f"s_mov_b32 s{qA+2}, 0"); A(f"s_mov_b32 s{qW+2}, 0")
    A(".p2align 6")
    A(f"{L}q:")
    for slot in range(4):
        ns = (slot + 1) % 4
        if slot in (1, 2): A(f"{L}q{slot}:")
        slots = spread(q_loads((slot + 3) % 4), 16)
        if "q_noload" in XP: slots = [[] for _ in range(16)]
        if "q_noA" in XP: slots = [[x for x in sl if "a[" not in x] for sl in slots]
        if "q_noW" in XP: slots = [[x for x in sl if "lds" not in x] for sl in slots]
        for f in range(20):
            k, ct = f // 10, f % 10
            lq.wait(A, [f])
            for r in range(2):
                rt = r if f % 2 == 0 else 1 - r
                mf16(A, vr(ac + (rt * 10 + ct) * 4, 4), ar(aW2 + (f % 4) * 4, 4), ar(aA2 + (slot * 4 + k * 2 + rt) * 4, 4))
                if r == 0 and f + 3 < 20:
                    A(wread2(slot, f + 3, (f + 3) % 4)); lq.issue(f + 3)
                if f == 18:
                    A(wread2(ns, r, r)); lq.issue(r)
                if f == 19 and r == 0:
                    A(wread2(ns, 2, 2)); lq.issue(2)
                if r == 1 and f < 16: emit(slots[f])
            if f == 17:
                A("s_waitcnt vmcnt(18) lgkmcnt(0)")
                lq.clear()
                if "q_nobar" not in XP: A("s_barrier ; @need W2 10")
            if f == 19:
                A(f"s_add_u32 s{qN}, s{qN}, 1")
        if slot == 1:
            A(f"s_cmp_eq_u32 s{qT0}, s{qN}")
            A(f"s_cbranch_scc1 {L}qe1")
            A(f"{L}qr1:")
    A(f"s_cmp_lg_u32 s{qNl}, s{qN}")
    A(f"s_cbranch_scc1 {L}q")
    mkq = len(A.lines)
    A(f"{L}qe1:")
    flag_load(A, vPb, vAp)
    A(f"s_branch {L}qr1")
    cold(mkq, f"{L}c4", None)
    A(f"s_cmp_lg_u32 s{qP}, 3")
    A(f"s_cbranch_scc1 {L}qy")
    flag_wait(A, f"{L}w3", 3, [(vPb, vAp)])
    A(f"{L}qy:")
    def send(c, so):
        b = vT + (c // 2) * 12
        it = [f"v_cvt_pk_bf16_f32 v{b+i}, v{ac+c*20+2*i}, v{ac+c*20+2*i+1}" for i in range(10)]
        it += [f"v_min_u32 v{b+i}, -2, v{b+i}" for i in range(10)]
        return it + [f"buffer_store_dwordx4 {vr(b,4)}, v{vL16}, s[{qI}:{qI+3}], s{so} offen sc1",
                     f"buffer_store_dwordx4 {vr(b+4,4)}, v{vL16}, s[{qI}:{qI+3}], s{so} offen offset:1024 sc1",
                     f"buffer_store_dwordx2 {vr(b+8,2)}, v{vL8}, s[{qI}:{qI+3}], s{so} offen offset:2048 sc1"]
    order_ = [(sl, k * 10 + h * 5 + i) for h in range(2) for sl in range(3) for k in range(2) for i in range(5)]
    fill = spread(send(0, qSo) + send(2, sT0), 30)
    nq = len(order_)
    held = []
    for n, (sl, f) in enumerate(order_):
        k, ct = f // 10, f % 10
        lq.wait(A, [n])
        for r in range(2):
            rt = r if n % 2 == 0 else 1 - r
            mf16(A, vr(ac + (rt * 10 + ct) * 4, 4), ar(aW2 + (n % 4) * 4, 4), ar(aA2 + (sl * 4 + k * 2 + rt) * 4, 4))
            if n in (7, 17) and r == 0: held.append(n + 3)
            elif r == 0 and n + 3 < nq:
                if held:
                    m = held.pop(); A(wread2(*order_[m], m % 4)); lq.issue(m); held.append(-(n + 3))
                else:
                    A(wread2(*order_[n + 3], (n + 3) % 4)); lq.issue(n + 3)
            elif r == 1 and held and held[0] < 0:
                m = -held.pop(); A(wread2(*order_[m], m % 4)); lq.issue(m)
            if n == 0 and r == 1: A(f"s_add_u32 s{sT0}, s{qSo}, 5120\ns_add_u32 s{sT1}, s{qSo}, 2560\ns_add_u32 s{sT2}, s{qSo}, 7680")
            g_ = 2 * n + r - 63
            if 0 <= g_ < 30:
                for it in fill[g_]: A(it)
        if n in (7, 17):
            A(f"s_waitcnt vmcnt({9 if n == 7 else 0})")
            A(f"s_barrier")
    stamp(10)
    A("s_nop 1")
    for it in send(1, sT1) + send(3, sT2): A(it)
    A(f"s_cmp_lg_u32 s{sWave}, s{qP}")
    A(f"s_cbranch_scc1 {L}no1")
    for i in range(20): A(f"ds_write_b128 v{vOwn}, {vr(ac+4*i,4)} offset:{i*1024}")
    A("s_waitcnt lgkmcnt(0)")
    A(f"{L}no1:")
    S, U, IN, XR, E, T = 64, 84, 104, 184, 204, 224
    A(f"s_mul_i32 s{sT0}, s{sWave}, 5120")
    A(f"v_add_u32 v{vOwn}, s{sT0}, v{vOwn}")
    A(f"s_mul_i32 s{sT0}, s{qP}, 30720")
    A(f"s_mul_i32 s{sT1}, s{sWave}, 2560")
    A(f"s_add_u32 s{sT0}, s{sT0}, s{sT1}")
    A(f"s_lshl_b32 s6, s{qP}, 3")
    A(f"s_lshr_b32 s6, {hex(0x24094218 >> 0 if False else (0x24 | 0x18 << 8 | 0x09 << 16 | 0x24 << 24))}, s6")
    for i in range(3):
        A(f"s_bfe_u32 s7, s6, {hex(0x20000 | 2*i)}")
        A(f"s_mul_i32 s7, s7, 10240")
        A(f"s_add_u32 s{qIn+i}, s{sT0}, s7")
    def inload(sl):
        b = IN + sl * 10
        A(f"buffer_load_dwordx4 {vr(b,4)}, v{vL16}, s[{qI}:{qI+3}], s{qIn+sl} offen sc1")
        A(f"buffer_load_dwordx4 {vr(b+4,4)}, v{vL16}, s[{qI}:{qI+3}], s{qIn+sl} offen offset:1024 sc1")
        A(f"buffer_load_dwordx2 {vr(b+8,2)}, v{vL8}, s[{qI}:{qI+3}], s{qIn+sl} offen offset:2048 sc1")
    A("s_barrier")
    stamp(11)
    if SLP[2] == 1: A("s_waitcnt vmcnt(0)")
    if SLP[2] > 1: A(f"s_sleep {SLP[2]}")
    for sl in range(3): inload(sl)
    for i in range(5): A(f"ds_read_b128 {vr(S+4*i,4)}, v{vOwn} offset:{i*1024}")
    for i in range(10):
        A(f"v_lshlrev_b32 v{XR+2*i}, 16, v{vX+i}")
        A(f"v_and_b32 v{XR+2*i+1}, 0xffff0000, v{vX+i}")
    def unpack(sl, dst):
        for i in range(10):
            A(f"v_lshlrev_b32 v{dst+2*i}, 16, v{IN+sl*10+i}")
            A(f"v_and_b32 v{dst+2*i+1}, 0xffff0000, v{IN+sl*10+i}")
    def addin(sl, dst):
        unpack(sl, T)
        for i in range(10): A(f"v_pk_add_f32 {vr(dst+2*i,2)}, {vr(dst+2*i,2)}, {vr(T+2*i,2)}")
    def gate(src):
        for i in range(20): A(f"v_mul_f32 v{E+i}, s{sT0}, v{src+i}")
        for i in range(20): A(f"v_exp_f32 v{E+i}, v{E+i}")
        for i in range(20): A(f"v_add_f32 v{E+i}, 1.0, v{E+i}")
        for i in range(20): A(f"v_rcp_f32 v{E+i}, v{E+i}")
        A("s_nop 0")
        for i in range(10): A(f"v_pk_mul_f32 {vr(U+2*i,2)}, {vr(src+2*i,2)}, {vr(E+2*i,2)}")
    A(f"s_mov_b32 s{sT0}, {hex(f2u(-LOG2E))}")
    A(f"s_mov_b32 s{sT1}, 0")
    A(f"s_mov_b32 s{sT2}, 7")
    A(f"s_cmp_lg_u32 s{qP}, 3")
    A("s_waitcnt lgkmcnt(0)")
    A(f"s_cbranch_scc1 {L}sc")
    gate(S)
    A(f"{L}sc:")
    A("s_waitcnt vmcnt(0)")
    for sl in (2, 0, 1):
        b = IN + 10 * sl
        A(f"s_bitcmp1_b32 s{sT2}, {sl}")
        A(f"s_cbranch_scc0 {L}sn{sl}")
        A(f"v_max3_u32 v154, v{b}, v{b+1}, v{b+2}")
        A(f"v_max3_u32 v155, v{b+3}, v{b+4}, v{b+5}")
        A(f"v_max3_u32 v154, v154, v{b+6}, v{b+7}")
        A(f"v_max3_u32 v155, v155, v{b+8}, v{b+9}")
        A(f"v_max_u32 v154, v154, v155")
        A(f"v_cmp_eq_u32 vcc, -1, v154")
        A(f"s_cmp_ge_u32 s{sT1}, 0x40000")
        A(f"s_cbranch_scc1 {L}sy{sl}")
        A("s_nop 1")
        A(f"s_cbranch_vccnz {L}sm{sl} ; missbr")
        A(f"{L}sy{sl}:")
        A(f"s_bitset0_b32 s{sT2}, {sl}")
        if sl == 2:
            A(f"s_cmp_eq_u32 s{qP}, 3")
            A(f"s_cbranch_scc1 {L}s3")
            unpack(2, U)
            gate(U)
            A(f"s_branch {L}sn{sl}")
            A(f"{L}s3:")
        unpack(sl, (134, 224, S)[sl])
        A(f"s_branch {L}sn{sl}")
        A(f"{L}sm{sl}:")
        inload(sl)
        A(f"{L}sn{sl}:")
    A(f"s_add_u32 s{sT1}, s{sT1}, 1")
    A(f"s_cmp_lg_u32 s{sT2}, 0")
    A(f"s_cbranch_scc1 {L}sc")
    stamp(12)
    for b in (134, 224):
        for i in range(10): A(f"v_pk_add_f32 {vr(S+2*i,2)}, {vr(S+2*i,2)}, {vr(b+2*i,2)}")
    for i in range(10): A(f"v_pk_fma_f32 {vr(XR+2*i,2)}, {vr(S+2*i,2)}, {vr(U+2*i,2)}, {vr(XR+2*i,2)}")
    for i in range(10): A(f"v_cvt_pk_bf16_f32 v{vX+i}, v{XR+2*i}, v{XR+2*i+1}")
    for ct in range(5):
        A(f"buffer_store_dwordx2 {vr(vX+2*ct,2)}, v{vXo2}, s[{qO}:{qO+3}], s{qXo} offen offset:{ct*32}" + (" sc1" if "outsc1" in OPT else ""))
    stamp(13)

def gen_p1(A, name, stamps=False, code_bytes=32768, pf_rounds=2):
    head(A, name)
    L = "p1_"
    A("s_cmp_ge_u32 s2, 256")
    A(f"s_cbranch_scc1 {L}end")
    A("s_load_dwordx16 s[64:79], s[0:1], 0")
    A("s_load_dwordx8 s[80:87], s[0:1], 64")
    A(f"s_memrealtime s[{sNo}:{sNo+1}]")
    if stamps: A("s_memtime s[94:95]")
    def stamp(i, att=False):
        if not stamps: return
        if "attst" in OPT:
            if i >= 5 and not att: return
        elif att: return
        A(f"s_memtime s[96:97]")
        A(f"s_memrealtime s[98:99]")
        A("s_waitcnt lgkmcnt(0)")
        A(f"v_mov_b32 v{vTm+18}, s96"); A(f"v_mov_b32 v{vTm+19}, s98")
        A(f"s_lshl_b32 s96, s2, 2"); A(f"s_add_u32 s96, s96, s{sWave}"); A("s_lshl_b32 s96, s96, 7")
        A(f"v_mov_b32 v{vZero}, s96")
        if i == 0: A(f"v_mov_b32 v{vTm+16}, s94")
        A(f"s_add_u32 s96, s{pWs}, 0x3100000"); A(f"s_addc_u32 s97, s{pWs+1}, 0")
        A(f"global_store_dwordx2 v{vZero}, {vr(vTm+18,2)}, s[96:97] offset:{i*8}")
        if i == 0: A(f"global_store_dword v{vZero}, v{vTm+16}, s[96:97] offset:120")
    t = vTm
    COLD = []
    def cold(mark, lab, back):
        blk = A.lines[mark:]; del A.lines[mark:]
        COLD.extend([f"{lab}:"] + blk + ([f"s_branch {back}"] if back else []))
    def emit(items):
        for it in items:
            if "lds" in it and " m0," in A.lines[-1]: A("s_nop 0")
            A(it)
    A(f"v_and_b32 v{vLane}, 63, v0")
    A("v_lshrrev_b32 v0, 6, v0")
    A("s_and_b32 s6, s2, 7")
    A(f"v_readfirstlane_b32 s{sWave}, v0")
    A(f"s_lshr_b32 s{sT0}, s2, 3")
    A(f"s_lshr_b32 s{sRb}, s{sT0}, 2")
    A(f"s_and_b32 s{sT1}, s{sT0}, 3")
    if True:
        A("s_getpc_b64 s[4:5]")
        A(f"{L}pc:")
        A(f"s_lshl2_add_u32 s7, s{sT0}, s{sWave}")
        A(f"s_mul_i32 s7, s7, ({L}last-{L}pc)/1024")
        A("s_lshr_b32 s7, s7, 7")
        A("s_lshl_b32 s7, s7, 10")
        A(f"v_lshl_add_u32 v{vTm+4}, v{vLane}, 4, s7")
        A(f"global_load_dwordx4 {ar(240,4)}, v{vTm+4}, s[4:5]")
    A(f"s_lshl2_add_u32 s{sHead}, s6, s{sT1}")
    A(f"s_sub_u32 s{sT2}, s6, s{sRb}")
    A(f"s_add_u32 s{sT2}, s{sT2}, 3")
    A(f"s_and_b32 s{sT2}, s{sT2}, 7")
    A(f"s_mul_i32 s{sFb}, s6, 3")
    A(f"s_add_u32 s{sFb}, s{sFb}, s{sT1}")
    A(f"s_add_u32 s7, s{sT2}, 24")
    A(f"s_cmp_eq_u32 s{sT1}, 3")
    A(f"s_cselect_b32 s{sFb}, s7, s{sFb}")
    A(f"s_cmp_lt_u32 s{sFb}, 27")
    A(f"s_cselect_b32 s{sHasF}, 1, 0")
    A(f"s_sub_u32 s{sProd}, s{sFb}, 27")
    A(f"v_lshrrev_b32 v{t+7}, 3, v{vLane}")
    A(f"v_and_b32 v{t+6}, 7, v{vLane}")
    A(f"v_lshrrev_b32 v{t+12}, 4, v{vLane}")
    A(f"v_xor_b32 v{t+13}, v{t+6}, v{t+12}")
    A(f"v_lshlrev_b32 v{t+13}, 4, v{t+13}")
    A(f"s_movk_i32 s6, 1280")
    A(f"v_mad_u32_u24 v{vXd}, v{t+7}, s6, v{t+13}")
    A(f"v_xor_b32 v{t+13}, 64, v{vXd}")
    for j in range(1, 8):
        A(f"v_add_u32 v{vXd+j}, {j*10240-(j%4)*1024}, v{(t+13) if j&1 else vXd}")
    A(f"s_lshl2_add_u32 s6, s{sRb}, s{sWave}")
    A(f"s_mul_i32 s{sXo}, s6, {64*1280}")
    A(f"s_mul_i32 s{sKVo}, s6, {A_BLK}")
    A(f"s_lshl_b32 s{sM0X}, s{sWave}, 13")
    A(f"s_add_u32 s{sM0X}, s{sM0X}, {R1}")
    A(f"s_mov_b32 s{sTail}, 0")
    A(f"s_and_b32 s6, s{sWave}, 1")
    A(f"s_lshl_b32 s7, s6, 2")
    A(f"v_add_u32 v{t+13}, s7, v{t+12}")
    A(f"v_lshlrev_b32 v{t+13}, 1, v{t+13}")
    A(f"v_and_b32 v{t+14}, 15, v{vLane}")
    A(f"v_xor_b32 v{t+13}, v{t+13}, v{t+14}")
    A(f"v_lshlrev_b32 v{t+13}, 4, v{t+13}")
    A(f"s_lshl_b32 s7, s{sWave}, 3")
    A(f"v_add_u32 v{t+15}, s7, v{t+12}")
    A(f"v_lshl_add_u32 v{vWqd}, v{t+15}, 13, v{t+13}")
    A(f"v_add_u32 v{vWqd+1}, {4*8192-1024}, v{vWqd}")
    A(f"v_bfe_u32 v{t+13}, v{vLane}, 4, 1")
    A(f"s_lshl_b32 s6, s6, 1")
    A(f"v_add_u32 v{t+13}, s6, v{t+13}")
    A(f"v_lshlrev_b32 v{t+13}, 1, v{t+13}")
    A(f"v_xor_b32 v{t+13}, v{t+13}, v{t+6}")
    A(f"v_lshlrev_b32 v{t+13}, 4, v{t+13}")
    A(f"v_add_u32 v{t+15}, s7, v{t+7}")
    A(f"s_movk_i32 s6, 3456")
    A(f"v_mad_u32_u24 v{vW13d}, v{t+15}, s6, v{t+13}")
    A(f"s_lshl_b32 s{sWqo}, s{sHead}, 8")
    A(f"s_lshl_b32 s{sW13o}, s{sFb}, 7")
    A(f"s_mov_b32 s{sSlot}, 0")
    A(f"s_lshl_b32 s{sM0W}, s{sWave}, 12")
    A(f"s_add_u32 s{sM0W}, s{sM0W}, {R3}")
    for d, sz in ((sX, X_SIZE), (sWq, 640 * 8192)):
        A(f"s_mov_b32 s{d+2}, {sz}")
        A(f"s_mov_b32 s{d+3}, 0x20000")
    for (d, p, sh) in ((sW1, pW1, 2048), (sW3, pW3, 3072)):
        A(f"s_mul_i32 s{d+2}, s{sHasF}, {640*3456+sh}")
        A(f"s_mov_b32 s{d+3}, 0x20000")
    A("s_waitcnt lgkmcnt(0)")
    A(f"s_mov_b32 s{sC0}, s{sM0W}")
    for d, p in ((sX, pX), (sWq, pWq)):
        A(f"s_mov_b32 s{d}, s{p}")
        A(f"s_and_b32 s{d+1}, s{p+1}, 0xffff")
    for (d, p, sh) in ((sW1, pW1, 2048), (sW3, pW3, 3072)):
        A(f"s_sub_u32 s{d}, s{p}, {sh}")
        A(f"s_subb_u32 s{d+1}, s{p+1}, 0")
        A(f"s_and_b32 s{d+1}, s{d+1}, 0xffff")
    A(f"s_mov_b64 s[{sX2}:{sX2+1}], s[{sX}:{sX+1}]")
    A(f"s_mov_b64 s[{sX2+2}:{sX2+3}], s[{sX+2}:{sX+3}]")
    A(f"s_movk_i32 s{sM0d}, 4096")
    A(f"s_movk_i32 s{sXst}, 128")
    A(f"s_mov_b32 s{sM0t}, 0x18000")
    RAW, UNP = 64, 96
    A(f"v_mov_b32 v{t+5}, 0")
    A(f"s_cmp_ge_u32 s{sProd}, 4")
    A(f"s_cbranch_scc0 {L}c1")
    mk_ = len(A.lines)
    A(f"v_lshrrev_b32 v{t+5}, 2, v{vLane}")
    A(f"v_and_b32 v{t+13}, 3, v{vLane}")
    A(f"v_lshlrev_b32 v{t+13}, 4, v{t+13}")
    A(f"s_movk_i32 s6, 1280")
    A(f"v_mad_u32_u24 v{t+13}, v{t+5}, s6, v{t+13}")
    A(f"s_lshl2_add_u32 s6, s{sRb}, s{sProd}")
    A(f"s_lshl2_add_u32 s6, s6, s{sWave}")
    A(f"s_lshl_b32 s7, s6, 8")
    A(f"v_lshl_add_u32 v{t+5}, v{t+5}, 4, s7")
    A(f"s_mul_i32 s6, s6, {16*1280}")
    for i in range(20):
        A(f"buffer_load_dwordx4 {vr(RAW+4*i,4)}, v{t+13}, s[{sX}:{sX+3}], s6 offen offset:{i*64}")
    cold(mk_, f"{L}c1", f"{L}np1")
    A(f"{L}np1:")
    if "coop" in OPT:
        A(f"s_and_b32 s6, s{sHead}, 3")
        A(f"s_lshl2_add_u32 s6, s{sRb}, s6")
        A(f"s_lshl2_add_u32 s6, s6, s{sWave}")
        A(f"s_mul_i32 s6, s6, {16*1280}")
        A(f"v_and_b32 v{t+13}, 15, v{vLane}")
        A(f"v_mul_u32_u24 v{t+13}, 1280, v{t+13}")
        A(f"v_bfe_u32 v{t+14}, v{vLane}, 4, {COOPX}")
        A(f"v_lshl_add_u32 v{t+13}, v{t+14}, 7, v{t+13}")
        A(f"buffer_load_dword v0, v{t+13}, s[{sX}:{sX+3}], s6 offen")
        A(f"s_lshl2_add_u32 s7, s{sRb}, s{sWave}")
        A(f"v_and_b32 v{t+14}, 3, v{vLane}")
        A(f"v_lshl_add_u32 v{t+14}, v{t+14}, 5, s7")
        A(f"v_bfe_u32 v{t+15}, v{vLane}, 2, 1")
        A(f"v_lshlrev_b32 v{t+15}, 7, v{t+15}")
        A(f"v_lshl_add_u32 v{t+15}, v{t+14}, 13, v{t+15}")
        A(f"v_mul_u32_u24 v{t+14}, 3456, v{t+14}")
        A(f"buffer_load_dword v0, v{t+15}, s[{sWq}:{sWq+3}], s{sWqo} offen")
        A(f"buffer_load_dword v0, v{t+14}, s[{sW1}:{sW1+3}], s{sW13o} offen offset:2048")
        A(f"buffer_load_dword v0, v{t+14}, s[{sW3}:{sW3+3}], s{sW13o} offen offset:3072")
    emit(dma_w(True)); emit(dma_x(0))
    stamp(0)
    A(f"s_add_u32 s{sA}, s{pWs}, s{sKVo}")
    A(f"s_addc_u32 s{sA+1}, s{pWs+1}, 0")
    srd(A, sA, sA, sA + 1, A_BLK)
    A(f"s_add_u32 s{sWp}, s{pWs}, {W_OFF}")
    A(f"s_addc_u32 s{sWp+1}, s{pWs+1}, 0")
    srd(A, sWp, sWp, sWp + 1, W_SIZE)
    A(f"s_lshl2_add_u32 s{sT1}, s{sHead}, s{sWave}")
    A(f"s_mul_i32 s{sU}, s{sT1}, 10")
    A(f"s_lshl_b32 s{sT2}, s{sRb}, 1")
    A(f"s_add_u32 s{sU}, s{sU}, s{sT2}")
    A(f"s_mul_i32 s{sT1}, s{sT1}, 40960")
    A(f"s_lshl_b32 s{sT2}, s{sRb}, 8")
    A(f"s_add_u32 s{sPo}, s{sT1}, s{sT2}")
    srd(A, sSrc, pWo, pWo + 1, 4096 * 1280)
    A(f"s_cmp_lt_u32 s{sRb}, 5")
    A(f"s_cselect_b32 s{sSrc+2}, s{sSrc+2}, 0")
    A(f"s_cselect_b32 s{sU}, s{sU}, 2000")
    A(f"v_mov_b32 v{t+6}, 0")
    A(f"s_or_b32 s6, s2, s{sWave}")
    A(f"s_cbranch_scc1 {L}ntag")
    A(f"s_lshl_b64 s[6:7], s[{sNo}:{sNo+1}], 2")
    A(f"s_or_b32 s7, s7, 0x80000000")
    A(f"v_mov_b32 v{t+14}, s6")
    A(f"v_mov_b32 v{t+15}, s7")
    A("s_mov_b64 exec, 1")
    A(f"global_store_dwordx2 v{t+6}, {vr(t+14,2)}, s[{pDbg}:{pDbg+1}] offset:128 sc1")
    A("s_mov_b64 exec, -1")
    A(f"{L}ntag:")
    A(f"v_and_b32 v{t+14}, 15, v{vLane}")
    A(f"v_lshrrev_b32 v{t+13}, 1, v{t+14}")
    A(f"v_xor_b32 v{t+13}, v{t+13}, v{t+12}")
    A(f"v_lshlrev_b32 v{t+13}, 4, v{t+13}")
    A(f"v_lshl_add_u32 v{t+13}, v{t+14}, 7, v{t+13}")
    A(f"s_lshl_b32 s6, s{sWave}, 13")
    A(f"s_add_u32 s6, s6, {R1}")
    A(f"v_add_u32 v{vXr}, s6, v{t+13}")
    A(f"v_xor_b32 v{vXr+1}, 64, v{vXr}")
    A(f"v_lshlrev_b32 v{t+3}, 4, v{t+14}")
    A(f"v_bfe_u32 v{t+14}, v{vLane}, 2, 2")
    A(f"v_and_b32 v{t+15}, 3, v{vLane}")
    A(f"v_lshlrev_b32 v{t+15}, 3, v{t+15}")
    A(f"v_lshl_add_u32 v{t+15}, v{t+12}, 12, v{t+15}")
    A(f"v_add_u32 v{t+15}, {R3}, v{t+15}")
    A(f"v_bfe_u32 v{t+16}, v{vLane}, 4, 1")
    A(f"v_lshl_add_u32 v{t+13}, v{t+16}, 2, v{t+14}")
    A(f"s_lshl_b32 s6, s{sWave}, 1")
    A(f"v_xor_b32 v{t+13}, s6, v{t+13}")
    A(f"v_lshl_add_u32 v{t+13}, v{t+13}, 5, v{t+15}")
    A(f"v_lshl_add_u32 v{vWqr}, v{t+14}, 8, v{t+13}")
    for p in range(1, 8): A(f"v_xor_b32 v{vWqr+p}, {32*p}, v{vWqr}")
    A(f"v_lshrrev_b32 v{t+13}, 1, v{t+14}")
    A(f"v_lshl_add_u32 v{t+13}, v{t+16}, 1, v{t+13}")
    A(f"v_xor_b32 v{t+13}, s{sWave}, v{t+13}")
    A(f"v_lshl_add_u32 v{t+13}, v{t+13}, 5, v{t+15}")
    A(f"v_lshl_add_u32 v{vW13r}, v{t+14}, 7, v{t+13}")
    for p in range(1, 4): A(f"v_xor_b32 v{vW13r+p}, {32*p}, v{vW13r}")
    srd(A, sK, pK, pK + 1, 16777216)
    srd(A, sV, pV, pV + 1, 16777216)
    A(f"s_add_u32 s{sSt}, s{pWs}, {ST_OFF}")
    A(f"s_addc_u32 s{sSt+1}, s{pWs+1}, 0")
    srd(A, sSt, sSt, sSt + 1, 2048 * 16)
    A(f"s_lshl_b32 s6, s{sRb}, 2")
    A(f"v_mov_b32 v{t+2}, s6")
    A(f"s_movk_i32 s{sMask}, {EVMASK}")
    A(f"s_mov_b32 s{sD}, 0")
    A(f"s_cmp_ge_u32 s{sProd}, 4")
    A(f"s_cbranch_scc0 {L}c2")
    mk_ = len(A.lines)
    A("s_waitcnt vmcnt(8)")
    for i in range(79, -1, -1):
        A(f"v_and_b32 v{UNP+2*i+1}, 0xffff0000, v{RAW+i}")
        A(f"v_lshlrev_b32 v{UNP+2*i}, 16, v{RAW+i}")
    a = 64
    def red(first):
        for i in range(80):
            first(i)
        A(f"v_pk_add_f32 {vr(a,2)}, {vr(a,2)}, {vr(a+2,2)}")
        A(f"v_pk_add_f32 {vr(a+4,2)}, {vr(a+4,2)}, {vr(a+6,2)}")
        A(f"v_pk_add_f32 {vr(a,2)}, {vr(a,2)}, {vr(a+4,2)}")
        A(f"v_add_f32 v{a}, v{a}, v{a+1}")
        for qp in ("[1,0,3,2]", "[2,3,0,1]"):
            A("s_nop 1")
            A(f"v_add_f32_dpp v{a}, v{a}, v{a} quad_perm:{qp} row_mask:0xf bank_mask:0xf")
    def f1(i):
        d = vr(a + 2 * (i % 4), 2)
        if i < 4: A(f"v_pk_add_f32 {d}, {vr(UNP+2*i,2)}, {vr(UNP+2*i+8,2)}")
        elif i >= 8: A(f"v_pk_add_f32 {d}, {d}, {vr(UNP+2*i,2)}")
    red(f1)
    o = 72
    A(f"v_mul_f32 v{o}, {hex(f2u(-1.0/640))}, v{a}")
    for i in range(80): A(f"v_pk_add_f32 {vr(UNP+2*i,2)}, {vr(UNP+2*i,2)}, {vr(o,2)} op_sel_hi:[1,0]")
    def f2(i):
        d = vr(a + 2 * (i % 4), 2); x_ = vr(UNP + 2 * i, 2)
        if i < 4: A(f"v_pk_mul_f32 {d}, {x_}, {x_}")
        else: A(f"v_pk_fma_f32 {d}, {x_}, {x_}, {d}")
    red(f2)
    A(f"v_mov_b32 v{o+3}, {hex(f2u(1e-5))}")
    A(f"v_fmac_f32 v{o+3}, {hex(f2u(1.0/640))}, v{a}")
    A(f"v_mov_b32 v{o+2}, v{o+3}")
    A(f"v_rsq_f32 v{o+1}, v{o+3}")
    A("s_mov_b32 exec_lo, 0x11111111")
    A("s_mov_b32 exec_hi, 0x11111111")
    A(f"buffer_store_dwordx4 {vr(o,4)}, v{t+5}, s[{sSt}:{sSt+3}], 0 offen sc1 ; @put S")
    A("s_mov_b64 exec, -1")
    A("s_waitcnt vmcnt(0)")
    cold(mk_, f"{L}c2", f"{L}np2")
    A(f"{L}np2:")
    if "dummy" in OPT:
        A(f"v_lshlrev_b32 v{t+13}, 4, v{vLane}")
        for i in range(16): A(f"buffer_load_dwordx4 {vr(64+4*i,4)}, v{t+13}, s[{sWq}:{sWq+3}], 0 offen offset:{(i%4)*1024}")
        for i in range(128): A(f"v_mov_b32 v{128+i}, 0")
        A("s_waitcnt vmcnt(0)")
        A("s_mov_b32 s6, 0")
        A(f"{L}dmy:")
        for i in range(64): mf16(A, vr(128 + 4 * (i % 32), 4), vr(64 + 4 * (i // 4 % 12), 4), vr(112 + 4 * (i % 4), 4))
        A("s_add_u32 s6, s6, 1")
        A("s_cmp_lt_u32 s6, 40")
        A(f"s_cbranch_scc1 {L}dmy")
        A("s_nop 7")
    if "idle" in OPT:
        A("s_mov_b32 s6, 0")
        A(f"{L}dmy:")
        for i in range(64): A("s_nop 15")
        A("s_add_u32 s6, s6, 1")
        A("s_cmp_lt_u32 s6, 40")
        A(f"s_cbranch_scc1 {L}dmy")
    kv_dma_voff(A, vQ, vQ + 4, 1)
    A(f"s_mov_b32 s{sT1}, {R0}")
    kv_addr(A, sT1, only=(vQ + 5, vQ + 6))
    wp_addr(A, 13, reg=R4, n=1, dst=vQ + 7)
    wp_src_voff(A, vQ + 8, 1)
    A(f"v_mov_b32 v{vKb}, v{vQ+5}")
    A(f"v_mov_b32 v{vVb}, v{vQ+6}")
    A(f"v_mov_b32 v{vWpB}, v{vQ+7}")
    A(f"v_mov_b32 v{vWs}, v{vQ+8}")
    A(f"v_lshrrev_b32 v{t+7}, 4, v{vLane}")
    A(f"v_lshlrev_b32 v{t+7}, 4, v{t+7}")
    A(f"s_lshl_b32 s6, s{sWave}, 7")
    A(f"s_add_u32 s6, s6, {CS}")
    A(f"v_add_u32 v{t+8}, s6, v{t+7}")
    A(f"s_lshl_b32 s6, s{sWave}, 6")
    A(f"s_add_u32 s6, s6, {CS+512}")
    A(f"v_add_u32 v{t+9}, s6, v{t+7}")
    A(f"v_lshlrev_b32 v{t+10}, 4, v{vLane}")
    A(f"s_lshl_b32 s6, s{sWave}, 12")
    A(f"s_lshl_b32 s{sKVo}, s{sHead}, 19")
    A(f"s_add_u32 s{sKVo}, s{sKVo}, s6")
    A(f"s_add_u32 s{sKVo}, s{sKVo}, {1536*256}")
    if "tlbw" in OPT:
        A("s_mov_b64 exec, 1")
        A(f"buffer_load_dword v0, v{t+6}, s[{sK}:{sK+3}], s{sKVo} offen")
        A(f"buffer_load_dword v0, v{t+6}, s[{sV}:{sV+3}], s{sKVo} offen")
        A(f"buffer_load_dword v0, v{t+6}, s[{sSrc}:{sSrc+3}], s{sPo} offen")
        A("s_mov_b64 exec, -1")
    if "tlbs" in OPT:
        A(f"s_lshl_b32 s6, s{sHead}, 14")
        A(f"s_lshl_b32 s7, s{sFb}, 13")
        A(f"s_add_u32 s7, s7, {128*4096}")
        A("s_mov_b64 exec, 1")
        A(f"buffer_store_dword v{t+6}, v{t+6}, s[{sA}:{sA+3}], s6 offen sc1")
        A(f"buffer_store_dword v{t+6}, v{t+6}, s[{sA}:{sA+3}], s7 offen sc1")
        A("s_mov_b64 exec, -1")
    for i in range(4): A(f"v_mov_b32 v{vSt+i}, 0")
    A(f"v_mov_b32 v{t+1}, 0x3f803f80")
    for i in range(4): A(f"v_accvgpr_write_b32 a{aOne+i}, v{t+1}")
    z = vr(vSt, 4)
    for i in range(8): mf32(A, vr(vAcc + 16 * i, 16), z, z, "0")
    for i in range(9): mf32(A, ar(16 * i, 16), z, z, "0")
    emit(dma_x(1)); emit(dma_w(True)); emit(dma_x(0)); emit(dma_w(True))
    A(f"s_waitcnt vmcnt({15 if 'tlbw' in OPT else 14 if 'tlbs' in OPT else 12})")
    A("s_barrier")
    A(f"s_lshl2_add_u32 s6, s{sProd}, s{sWave}")
    A(f"s_and_b32 s6, s6, 0xfffffff3")
    A(f"s_cbranch_scc1 {L}np3")
    A(f"v_mov_b32 v{t+1}, 1")
    A(f"v_add_u32 v{t+7}, s{sProd}, v{t+2}")
    A(f"s_mov_b64 exec, 1")
    A(f"global_store_byte v{t+7}, v{t+1}, s[{pDbg}:{pDbg+1}] sc1")
    A(f"s_mov_b64 exec, -1")
    A(f"{L}np3:")
    stamp(1)
    for rt in range(4): A(xread(0, 0, rt))
    A(f"s_cmp_eq_u32 s{sHasF}, 0")
    fr = frag_list(True)
    for f in range(3):
        for sec in range(2): A(wread(fr[f], 0, sec, f))
    A("s_waitcnt lgkmcnt(6)")
    if FINE: A("s_mov_b32 s7, 0")
    A(f"s_cbranch_scc1 {L}gn")
    gemm_loop(A, True, L + "gf")
    mk_ = len(A.lines)
    gemm_events(A, L + "gn")
    gemm_loop(A, False, L + "gn")
    for it in cs_writes()[:2]: A(it)
    A(f"s_mov_b32 s{sKVo}, s{sXo}")
    A(f"s_mov_b32 s{sKVm}, s{sM0X}")
    A(qp_code())
    for it in stats_scale(): A(it)
    A("s_waitcnt lgkmcnt(0)")
    A("s_barrier")
    A(f"ds_read_b128 {vr(CSB[0],4)}, v{t+8}")
    A(f"v_xor_b32 v{t+11}, 64, v{t+8}")
    A(f"ds_read_b128 {vr(CSB[1],4)}, v{t+11}")
    cold(mk_, f"{L}c3", f"{L}gdone")
    A(f"{L}gdone:")
    stamp(2)
    z = vr(vTm + 4, 4)
    class Grp(list):
        def __call__(self, x): self.append(x)
    IDS = Grp()
    IDS(f"s_lshr_b32 s{qCb}, s2, 6")
    IDS(f"s_bfe_u32 s{qRb}, s2, 0x30003")
    IDS(f"s_and_b32 s6, s2, 4\ns_lshl_b32 s6, s6, 1")
    IDS(f"s_add_u32 s{qRb}, s{qRb}, s6")
    IDS(f"s_lshl2_add_u32 s{qG}, s{qRb}, s{qCb}")
    IDS(f"s_mul_i32 s6, s{qG}, {IB_G}")
    IDS(f"s_add_u32 s6, s6, {IB_OFF}")
    IDS(f"s_add_u32 s{qI}, s{pWs}, s6\ns_addc_u32 s{qI+1}, s{pWs+1}, 0")
    srd(IDS, qI, qI, qI + 1, IB_G)
    kvadv = [f"s_add_u32 s{sKVo}, s{sKVo}, 16384\ns_add_u32 s{sKVm}, s{sKVm}, 32768"]
    def kvq(): return kv_dma() + kvadv
    csb = [14, 18, 22]
    lq = LQ()
    def csread_q(p):
        A(f"v_xor_b32 v{t+11}, {64*p}, v{t+8}")
        A(f"ds_read_b128 {vr(csb[p%3],4)}, v{t+11}"); lq.issue(("c", p))
    lq.issue(("c", 0)); lq.issue(("c", 1))
    wo_dma = []
    for su in range(2):
        wo_dma.append(f"s_lshl_b32 s6, s{sWave}, 13\ns_add_u32 m0, s6, {R4+su*4096}")
        wo_dma += [f"buffer_load_dwordx4 v{vWs}, s[{sSrc}:{sSrc+3}], s{sPo} offen offset:{j*1024} lds ; @put P\n" +
                   (f"s_add_u32 s{sPo}, s{sPo}, 9216" if j < 3 else f"s_sub_u32 s{sPo}, s{sPo}, {3*9216-128}") for j in range(4)]
    kq = spread([f"s_add_u32 m0, s{sKVm}, 16384"] + kv_dma()[6:] + kvadv + wo_dma[:5 * SPL[0]], 24)
    for p in range(8):
        if p + 2 < 8: csread_q(p + 2)
        lq.wait(A, [("c", p)])
        c = csb[p % 3]
        for rt in range(4):
            d = vAcc + (p * 4 + rt) * 4; q = vSt + 4 * rt
            for h in range(2):
                A(f"v_pk_fma_f32 {vr(d+2*h,2)}, {vr(c+2*h,2)}, {vr(q,2)}, {vr(d+2*h,2)} op_sel_hi:[1,0,1]")
        emit(kq[3*p])
        for rt in range(4):
            d = vAcc + (p * 4 + rt) * 4; q = vSt + 4 * rt
            for h in range(2):
                A(f"v_pk_mul_f32 {vr(d+2*h,2)}, {vr(d+2*h,2)}, {vr(q+2,2)} op_sel:[0,1]")
        emit(kq[3*p+1])
        for rt in range(4):
            d = vAcc + (p * 4 + rt) * 4
            f = vQ + ((rt // 2) * 8 + p) * 4 + (rt & 1) * 2
            for h in range(2): A(f"v_cvt_pk_bf16_f32 v{f+h}, v{d+2*h}, v{d+2*h+1}")
        mf32(A, ar(aO + 16 * p, 16), z, z, "0")
        emit(kq[3*p+2])
        if p > 0:
            for qt in range(2):
                f = vQ + (qt * 8 + p - 1) * 4
                for h in range(2): A(f"v_permlane16_swap_b32 v{f+h}, v{f+2+h}")
    A("s_nop 0")
    for qt in range(2):
        f = vQ + (qt * 8 + 7) * 4
        for h in range(2): A(f"v_permlane16_swap_b32 v{f+h}, v{f+2+h}")
    stamp(3)
    for p in range(8): A(f"v_xor_b32 v{vKr+p}, {32*p}, v{vKb}")
    v2q = [f"s_add_u32 m0, s{sKVm}, 16384"] + kvq()[6:]
    A(f"s_cmp_eq_u32 s{sHasF}, 0")
    A(f"s_cbranch_scc1 {L}noffn")
    def hst(pi, rt): return f"buffer_store_dwordx4 {vr(vAcc+96+pi*16+rt*4,4)}, v{t+10}, s[{sA}:{sA+3}], s{qT0+pi} offen offset:{rt*1024}" + ("" if "wbl2" in OPT else " sc1") + " ; @put H @put HH"
    T = vAcc + 32; H = vAcc + 96; C = vAcc + 56
    def csf(p):
        A(f"v_xor_b32 v{t+11}, {64*p}, v{t+9}")
        A(f"ds_read_b128 {vr(C+8*(p%3),4)}, v{t+11}")
        A(f"ds_read_b128 {vr(C+8*(p%3)+4,4)}, v{t+11} offset:256")
    for p in range(3): csf(p)
    A(f"s_lshr_b32 s7, s{sWave}, 1")
    A(f"s_lshl_b32 s6, s{sFb}, 1")
    A(f"s_add_u32 s6, s6, 128")
    A(f"s_add_u32 s{sT0}, s6, s7")
    A(f"s_xor_b32 s7, s7, 1")
    A(f"s_add_u32 s{sT1}, s6, s7")
    A(f"s_lshl_b32 s{qT0}, s{sT0}, 12")
    A(f"s_lshl_b32 s{qT1}, s{sT1}, 12")
    A("s_waitcnt lgkmcnt(0)")
    ffq = wo_dma[5 * SPL[0]:] + kv_dma()[:5 * SPL[1]]
    kq = spread(ffq, 24) if ffq else [[]] * 24
    for p in range(4):
        for r2 in range(2):
            g_ = 3 * (p * 2 + r2)
            G = [(2 * r2 + i, T + 12 * i) for i in range(2)]
            if p == 1 and r2 == 0: csf(3)
            if p == 2 and r2 == 0:
                qk_at = len(A.lines)
                A("s_waitcnt lgkmcnt(0)")
            for rt, b in G:
                for i in range(4): A(f"v_accvgpr_read_b32 v{b+i}, a{aG+(p*4+rt)*4+i}")
                for i in range(4): A(f"v_accvgpr_read_b32 v{b+4+i}, a{aUp+(p*4+rt)*4+i}")
            emit(kq[g_])
            for rt, b in G:
                for h in range(4):
                    A(f"v_pk_fma_f32 {vr(b+2*h,2)}, {vr(C+8*(p%3)+2*h,2)}, {vr(vSt+4*rt,2)}, {vr(b+2*h,2)} op_sel_hi:[1,0,1]")
            for rt, b in G:
                for h in range(2): A(f"v_pk_mul_f32 {vr(b+8+2*h,2)}, {vr(b+2*h,2)}, {vr(vSt+4*rt,2)} op_sel:[0,1]")
            for rt, b in G:
                for i in range(4): A(f"v_exp_f32 v{b+8+i}, v{b+8+i}")
            emit(kq[g_+1])
            for rt, b in G:
                for h in range(2): A(f"v_pk_mul_f32 {vr(b+2*h,2)}, {vr(b+2*h,2)}, {vr(b+4+2*h,2)}")
            for rt, b in G:
                for h in range(2):
                    A(f"v_pk_fma_f32 {vr(b+8+2*h,2)}, {vr(b+8+2*h,2)}, {vr(vSt+4*rt+2,2)}, {vr(vSt+4*rt+2,2)} op_sel_hi:[1,0,0]")
            for rt, b in G:
                for i in range(4): A(f"v_rcp_f32 v{b+8+i}, v{b+8+i}")
            emit(kq[g_+2])
            for n, (rt, b) in enumerate(G):
                for h in range(2): A(f"v_pk_mul_f32 {vr(b+2*h,2)}, {vr(b+2*h,2)}, {vr(b+8+2*h,2)}")
            for rt, b in G:
                for h in range(2): A(f"v_cvt_pk_bf16_f32 v{H+(p//2)*16+rt*4+(p&1)*2+h}, v{b+2*h}, v{b+2*h+1}")
        if p & 1:
            pi = p // 2
            A(f"s_bitcmp1_b32 s{sWave}, 0")
            A(f"s_cbranch_scc0 {L}nsw{pi}")
            for rt in range(4):
                for h in range(2): A(f"v_swap_b32 v{H+pi*16+rt*4+h}, v{H+pi*16+rt*4+2+h}")
            A(f"{L}nsw{pi}:")
    B_ = Asm(); lq = LQ()
    for p in range(3):
        B_(kread(p, 0, p)); lq.issue(("f", 16 + p))
    attn_seg(B_, lq, 2, {}, sm_lo=0, sm_hi=0, look=[2])
    QK0 = list(B_.lines)
    grp = [QK0[:3]]; cur = []
    for l_ in QK0[3:]:
        if l_.startswith(("s_waitcnt", "v_mfma")) and any(x.startswith("v_mfma") for x in cur): grp.append(cur); cur = []
        cur.append(l_)
    grp.append(cur)
    half = A.lines[qk_at + 1:]; del A.lines[qk_at + 1:]
    stop = max(i for i, x in enumerate(half) if x.startswith("s_bitcmp1"))
    pos = {4 + (i * (stop - 24)) // len(grp): g for i, g in enumerate(grp)}
    pend = []
    for i, l_ in enumerate(half):
        if i in pos: pend = pend + pos[i]
        if pend and " lds" not in l_ and not l_.startswith("s_nop") and not any(x.startswith("v_pk_") for x in A.lines[-2:]):
            A.lines += pend; pend = []
        A.lines.append(l_)
    emit(v2q)
    mk_ = len(A.lines)
    emit(ffq)
    A(f"s_mov_b32 s{qT0}, 0x1000000")
    A(f"s_mov_b32 s{qT1}, 0x1000000")
    A("s_barrier")
    srd(A, qA, pW2, pW2 + 1, 1728 * 1280)
    A(f"v_mov_b32 v{vAcc+8}, v{vKb}")
    A(f"v_mov_b32 v{vAcc+9}, v{vVb}")
    A(f"v_mov_b32 v{vAcc+10}, v{vWpB}")
    wp_src_voff(A, vAcc)
    wp_addr(A, 13)
    A(f"v_mov_b32 v{vKb}, v{vAcc+8}")
    A(f"v_mov_b32 v{vVb}, v{vAcc+9}")
    A(f"v_mov_b32 v{vWpB}, v{vAcc+10}")
    A(f"s_mul_i32 s{sT2}, s{sRb}, 5")
    A(f"s_add_u32 s{sT2}, s{sT2}, s{sProd}")
    A(f"s_lshl2_add_u32 s{sT2}, s{sT2}, s{sWave}")
    A(f"{L}w2j:")
    A(f"s_mul_hi_u32 s{sT0}, s{sT2}, 0x33333334")
    A(f"s_mul_i32 s{sT1}, s{sT0}, 5")
    A(f"s_sub_u32 s{sT1}, s{sT2}, s{sT1}")
    A(f"s_mul_i32 s7, s{sT0}, 40960")
    A(f"s_lshl_b32 s6, s{sT1}, 8")
    A(f"s_add_u32 s{sT0}, s7, s6")
    A(f"s_lshl_b32 s6, s{sT1}, 13")
    A(f"s_add_u32 s7, s7, s6")
    A(f"s_add_u32 s{sT1}, s7, {128*40960}")
    A(f"s_lshl_b32 s6, s{sWave}, 13")
    for su in range(2):
        A(f"s_add_u32 m0, s6, {R3+su*4096}")
        A("s_nop 0")
        for j in range(4): A(f"buffer_load_dwordx4 v{vAcc+4*su+j}, s[{qA}:{qA+3}], s{sT0} offen offset:{j*1024} lds")
    A("s_waitcnt vmcnt(0)")
    wp_reads(A, 4096)
    A("s_waitcnt lgkmcnt(0)")
    wp_stores(A, sT1)
    A(f"s_add_u32 s{sT2}, s{sT2}, 160")
    A(f"s_cmp_lt_u32 s{sT2}, 270")
    A(f"s_cbranch_scc1 {L}w2j")
    A.lines += QK0
    emit(v2q)
    cold(mk_, f"{L}noffn", f"{L}ffnd")
    A(f"{L}ffnd:")
    for i in range(4): IDS(f"v_mov_b32 v{vOnes+i}, -1")
    IDS(f"s_mul_i32 s6, s{qP}, 30720\ns_mul_i32 s7, s{sWave}, 7680")
    IDS(f"s_min_u32 s7, s7, 22528\ns_add_u32 s{sSen}, s6, s7")
    IDS(f"s_lshl_b32 s{sWpO}, s{sU}, 12")
    IDS(f"v_add_u32 v{vL16+1}, 4096, v{vL16}")
    IDS(f"s_lshl_b32 s6, s{sRb}, 5\ns_add_u32 s7, s6, s{sHead}\ns_lshl_b32 s7, s7, 7")
    IDS(f"v_mov_b32 v{vFo}, s7")
    IDS(f"s_cmp_eq_u32 s{sWave}, 0\ns_cselect_b32 s{sTail}, 0, 0x8000")
    srd(IDS, qX, pFl, pFl + 1, 0x8000)
    IDS(f"s_add_u32 s6, s{sNo}, 1")
    IDS(f"v_mov_b32 v{vFv}, s6")
    IDS(f"v_mov_b32 v{vFv+1}, s{sNo+1}")
    stamp(4)
    for dt in range(4): A(f"v_xor_b32 v{vVr+dt}, {64*dt}, v{vVb}")
    A(f"v_mov_b32 v{vL}, 0")
    A(f"v_mov_b32 v{vL+1}, 0")
    A(f"s_waitcnt vmcnt(24)")
    A("s_barrier")
    stamp(5, True)
    lq = LQ()
    for p in range(3):
        A(kread(p, 1, p)); lq.issue(("f", p))
    for e in range(10):
        for x in sm_exp(0, e): A(x)
        if e:
            for x in sm_post(0, e - 1): A(x)
    assert XP or lq.q == [("f", 0), ("f", 1), ("f", 2)]
    def put(ex, slots, items):
        for sl, its in zip(slots, spread(items, len(slots))): ex.setdefault(sl, []).extend(its)
    PA = Asm()
    PA(f"s_lshl_b32 s6, s{sRb}, 5")
    PA(f"v_and_b32 v{vAp}, 3, v{vLane}")
    PA(f"v_lshlrev_b32 v{vAp}, 2, v{vAp}")
    PA(f"s_and_b32 s7, s{sHead}, 0x13")
    PA(f"s_add_u32 s7, s7, s6")
    PA(f"v_add_lshl_u32 v{vAp}, v{vAp}, s7, 7")
    PA(f"s_lshr_b32 s7, s{qRb}, 1")
    PA(f"s_lshl_b32 s6, s7, 5")
    PA(f"s_lshl_b32 s{sT0}, s{sWave}, 3")
    PA(f"s_add_u32 s6, s6, s{sT0}")
    PA(f"v_add_lshl_u32 v{vAa}, v{vLane}, s6, 7")
    PA(f"v_cmp_gt_u32 vcc, 8, v{vLane}")
    PA(f"v_and_b32 v{vAb}, 15, v{vLane}")
    PA(f"v_lshlrev_b32 v{vAb}, 2, v{vAb}")
    PA(f"s_lshl_b32 s6, s{sWave}, 6")
    PA(f"s_add_u32 s6, s6, 3")
    PA(f"v_add_lshl_u32 v{vAb}, v{vAb}, s6, 7")
    PA(f"v_cndmask_b32 v{vAa}, v{vAb}, v{vAa}, vcc")
    PA(f"v_bfe_u32 v{vAo}, v{vLane}, 4, 1")
    PA(f"v_add_u32 v{vAo}, s{qCb}, v{vAo}")
    PA(f"s_mul_i32 s6, s{qP}, 21")
    PA(f"s_add_u32 s6, s6, 1")
    PA(f"s_lshr_b32 s6, s6, 1")
    PA(f"v_and_b32 v{vPb}, 15, v{vLane}")
    PA(f"v_min_u32 v{vPb}, 10, v{vPb}")
    PA(f"v_add_u32 v{vPb}, s6, v{vPb}")
    PA(f"v_cmp_gt_u32 vcc, 16, v{vLane}")
    PA(f"s_lshl_b32 s7, s7, 5")
    PA(f"v_lshl_add_u32 v{vAo}, v{vAo}, 5, v{vPb}")
    PA(f"v_lshlrev_b32 v{vAo}, 7, v{vAo}")
    PA(f"v_add_lshl_u32 v{vAb}, v{vPb}, s7, 7")
    PA(f"v_cndmask_b32 v{vAb}, v{vAp}, v{vAb}, vcc")
    odd = lambda a, b: [x for x in range(a, b) if x & 1]
    def wo_job(ex, f, s0, s1):
        r = aWq + 4 * (f % 3)
        ex.setdefault(s0 - 1, []).append(f"v_xor_b32 v{vWpA}, {((f&3)<<5)|((f&4)<<10)}, v{vWpB}")
        ex[(s0, "ds")] = [f"ds_read_b64_tr_b16 {ar(r,2)}, v{vWpA} ; @need P 0"]
        ex[(s0 + 2, "ds")] = [f"ds_read_b64_tr_b16 {ar(r+2,2)}, v{vWpA} offset:2048"]
        if "nowo" not in XP: ex.setdefault(s1, []).append(f"buffer_store_dwordx4 {ar(r,4)}, v{vL16+f//4}, s[{sWp}:{sWp+3}], s{sWpO} offen offset:{(f&3)*1024} sc1")
    def mark(f): return "s_nop 0" if "nosent" in XP else f"buffer_store_dwordx4 {vr(vOnes,4)}, v{vL16+f//4}, s[{qI}:{qI+3}], s{sSen} offen offset:{(f&3)*1024} sc1 ; @put H"
    stamp(6, True)
    BW = {0: 10, 1: 13, 2: 13, 3: 13, 4: 13, 5: 13}
    bg = [("h", i) for i in range(8)] + [("w", i) for i in range(8)] + [("m", i) for i in range(8)]
    BG = [bg[0:3], bg[3:6], bg[6:9], bg[9:12], bg[12:15], bg[15:19], bg[19:22], bg[22:24]]
    if "bg2" in OPT: BG[5:] = [bg[15:22], bg[22:24], []]
    if "bg3" in OPT: BG[5:] = [bg[15:24], [], []]
    for t_ in range(8):
        ex = {}
        delta = hex((-98304) & 0xffffffff) if t_ == 3 else "0x8000"
        if t_ < 7:
            for p in range(8):
                ex.setdefault(max(2 * (p - 3) + 1, 1) if p >= 3 else 2 * p, []).append(f"v_add_u32 v{vKr+p}, {delta}, v{vKr+p}")
            for dt in range(4):
                ex.setdefault(2 * (28 + dt - 3) + 2, []).append(f"v_add_u32 v{vVr+dt}, {delta}, v{vVr+dt}")
        if t_ < 5:
            for sl, it in zip([32, 33, 37, 41, 45, 47, 49, 53, 57, 61], kv_dma()): ex.setdefault(sl, []).append(it)
            ex.setdefault(62, []).append(f"s_add_u32 s{sKVo}, s{sKVo}, 16384")
            ex.setdefault(59, []).append(f"s_add_u32 s{sKVm}, s{sKVm}, {hex((-98304) & 0xffffffff) if t_ == 0 else 32768}")
        if t_ < 6: ex[(26, "pre")] = [f"s_waitcnt vmcnt({BW[t_]})", "s_barrier ; @need KV 8 @need Xa 0" + (" @need HH 0" if t_ == 4 else "")]
        for j, (kind, f) in enumerate(BG[t_]):
            sl = (3, 19, 51, 39, 31, 45, 59, 35, 55)[j]
            if kind == "h": put(ex, [sl], [hst(f // 4, f % 4)])
            elif kind == "m": put(ex, [sl], [mark(f)])
            else: wo_job(ex, f, (1, 7, 35)[j], (13, 21, 51)[j])
        if t_ == 0:
            for sl, its in zip([x for x in range(11, 52) if x not in (26, 32, 47)], spread(IDS, 38)): ex.setdefault((sl, "post"), []).extend(its)
        if t_ == 4:
            put(ex, [39], [f"buffer_store_dwordx2 {vr(vFv,2)}, v{vFo}, s[{qX}:{qX+3}], s{sTail} offen sc1"])
        if t_ == 5:
            for sl, its in zip([x for x in range(10, 47) if x != 26], spread(PA.lines, 36)): ex.setdefault((sl, "post"), []).extend(its)
            put(ex, [x for x in range(47, 64) if x != 51], q_setup())
        elif t_ == 6:
            put(ex, [1], [f"global_load_dwordx2 {vr(vPa,2)}, v{vAa}, s[{pFl}:{pFl+1}] sc1"])
            B_ = Asm(); B_(f"s_waitcnt vmcnt({min(2, len(BG[6]))})"); B_(f"s_cmp_lg_u32 s{qP}, 3"); B_(f"s_cbranch_scc1 {L}w1r")
            flag_wait(B_, f"{L}w1", 1, [(vPa, vAa)]); B_("s_barrier")
            ex[(26, "pre")] = B_.lines
            put(ex, [x for x in odd(31, 64) if x != 51], q_loads(0) + q_loads(1)[:6])
        elif t_ == 7:
            ex[(26, "pre")] = ["s_waitcnt vmcnt(30)", "s_barrier"]
            ex.setdefault(24, []).append(f"v_add_u32 v{vFv}, 1, v{vFv}")
            put(ex, [28], [f"buffer_store_dwordx2 {vr(vFv,2)}, v{vFo}, s[{qX}:{qX+3}], s{sTail} offen sc1"])
            put(ex, [1, 5, 7, 9, 11, 13, 15, 17, 21, 23, 25, 27, 29, 31], q_loads(1)[6:] + q_loads(2)[:7])
        if t_ >= 1: stamp(t_ + 6, True)
        attn_seg(A, lq, 0, ex)
        attn_seg(A, lq, 1, ex, look=(True if t_ < 7 else [1]))
        if t_ < 7:
            attn_seg(A, lq, 2, ex)
            attn_seg(A, lq, 3, ex)
    ex = {}
    def vrd(f, sec):
        A(vread(f % 2, f // 2, 1, sec, f % 4)); lq.issue(("v", f))
    for f in range(3):
        vrd(f, 0); vrd(f, 1)
    ql = dict(zip((11, 14, 17, 20, 23), q_loads(2)[7:]))
    for e in range(10, 32):
        if e in ql: A(ql[e])
        for x in sm_exp(1, e) + sm_post(1, e - 1): A(x)
    A(f"v_bfe_u32 v{t+2}, v{vLane}, 4, 1")
    for x in sm_post(1, 31): A(x)
    def o_items(plain):
        it = []
        for n, (dt, qt) in enumerate((dt, qt) for dt in range(4) for qt in range(2)):
            b = vS + (n % 4) * 16; pk = 224 + (n % 4) * 8
            it += [f"v_accvgpr_read_b32 v{b+i}, a{aO+(qt*4+dt)*16+i}" for i in range(16)]
            if n < plain: it += [f"v_mul_f32 v{b+i}, v{t+qt}, v{b+i}" for i in range(16)]
            else: it += [f"v_pk_mul_f32 {vr(b+2*i,2)}, {vr(b+2*i,2)}, {vr(t,2)} " + ("op_sel_hi:[1,0]" if qt == 0 else "op_sel:[0,1]") for i in range(8)]
            it += [f"v_cvt_pk_bf16_f32 v{pk+i}, v{b+2*i}, v{b+2*i+1}" for i in range(8)]
            it += [f"buffer_store_dwordx4 {vr(pk+4*j,4)}, v{vOo}, s[{sA}:{sA+3}], s{sKVm} offen offset:{qt*2048+j*512} sc1 ; @put H" for j in range(2)]
            if qt and dt < 3: it.append(f"s_add_u32 s{sKVm}, s{sKVm}, 4096")
        return it
    chk = [[f"v_mov_b32 v{t}, v{vL}", f"v_mov_b32 v{t+1}, v{vL+1}", f"v_lshrrev_b32 v{t+3}, 5, v{vLane}", f"v_lshlrev_b32 v{t+3}, 8, v{t+3}"],
           [f"v_permlane32_swap_b32 v{t}, v{vL}", f"v_permlane32_swap_b32 v{t+1}, v{vL+1}", f"v_lshl_add_u32 v{t+3}, v{t+2}, 10, v{t+3}"],
           [f"v_add_f32 v{vL}, v{vL}, v{t}", f"v_add_f32 v{vL+1}, v{vL+1}, v{t+1}", f"v_mov_b32 v{t+8}, {hex(f2u(2.0**-40))}", f"v_mov_b32 v{t+9}, {hex(f2u(2.0**40))}"],
           [f"v_cmp_gt_f32 s[{sE0}:{sE0+1}], v{vL}, v{t+8}", f"v_cmp_lt_f32 s[{sE0+2}:{sE0+3}], v{vL}, v{t+9}", f"v_and_b32 v{t+2}, 15, v{vLane}"],
           [f"v_cmp_gt_f32 s[4:5], v{vL+1}, v{t+8}", f"v_cmp_lt_f32 s[6:7], v{vL+1}, v{t+9}", f"v_rcp_f32 v{t}, v{vL}", f"v_lshl_add_u32 v{vOo}, v{t+2}, 4, v{t+3}"],
           [f"v_rcp_f32 v{t+1}, v{vL+1}", f"s_lshl_b32 s{sKVm}, s{sHead}, 14", f"s_and_b64 s[{sE0}:{sE0+1}], s[{sE0}:{sE0+1}], s[{sE0+2}:{sE0+3}]",
            "s_and_b64 s[4:5], s[4:5], s[6:7]", f"s_and_b64 s[4:5], s[4:5], s[{sE0}:{sE0+1}]", "s_cmp_eq_u64 s[4:5], exec"] + ([] if XP else [f"s_cbranch_scc0 {L}slow ; slowbr"])]
    oi = o_items(2)
    for f in range(8):
        lq.wait(A, [("v", f)])
        for qt in range(2):
            g = 2 * f + qt
            mf32(A, ar(aO + (qt * 4 + f // 2) * 16, 16), vr(vF + (f % 4) * 4, 4), vr(vP + (qt * 2 + f % 2) * 4, 4))
            if f + 3 < 8: vrd(f + 3, qt)
            if g < 6:
                for x in chk[g]: A(x)
            elif g < 15:
                k_ = 4 if f + 3 < 8 else 5
                for x in oi[:k_]: A(x)
                oi = oi[k_:]
    stamp(5)
    for x in oi: A(x)
    mk_ = len(A.lines)
    A(f"s_lshl_b32 s{sKVm}, s{sHead}, 14")
    for x in o_items(0): A(x)
    cold(mk_, f"{L}oep", f"{L}oed")
    A(f"{L}oed:")
    stamp(6); stamp(7)
    gemm2(A, L, emit, stamp, cold)
    A(f"{L}end:")
    A("s_endpgm")
    A.lines += COLD
    A(f"{L}slow:")
    A("s_waitcnt vmcnt(0) lgkmcnt(0)")
    srd(A, sK, pK, pK + 1, 16777216)
    srd(A, sV, pV, pV + 1, 16777216)
    kv_dma_voff(A, vKd, vVd, 1)
    A(f"s_lshl_b32 s{sT1}, s{sWave}, 13")
    A(f"s_add_u32 s{sT1}, s{sT1}, {R2}")
    kv_addr(A, sT1)
    for dt in range(4): A(f"v_add_u32 v{vVr+dt}, {R4-R2-16384}, v{vVr+dt}")
    vM = vTm + 6
    A(f"v_mov_b32 v{vM}, 0xff800000")
    A(f"v_mov_b32 v{vM+1}, 0xff800000")
    A(f"v_mov_b32 v{vL}, 0")
    A(f"v_mov_b32 v{vL+1}, 0")
    for i in range(4): A(f"v_mov_b32 v{vTm+12+i}, 0")
    A("s_nop 1")
    for i in range(8): mf32(A, ar(aO + 16 * i, 16), vr(vTm + 12, 4), vr(vTm + 12, 4), "0")
    A(f"s_mov_b32 s{sT}, 0")
    A(f"{L}sl:")
    A(f"s_and_b32 s{sT0}, s{sT}, 15")
    A(f"s_lshl_b32 s{sT0}, s{sT0}, 13")
    A(f"s_lshl_b32 s{sKVo}, s{sHead}, 19")
    A(f"s_add_u32 s{sKVo}, s{sKVo}, s{sT0}")
    A(f"s_add_u32 s{sKVo}, s{sKVo}, {1536*256}")
    for hf in range(2):
        A(f"s_add_u32 m0, s{sT1}, {hf*4096}")
        A("s_nop 0")
        for j in range(4): A(f"buffer_load_dwordx4 v{vKd+j}, s[{sK}:{sK+3}], s{sKVo} offen offset:{j*1024} lds")
        A(f"s_add_u32 m0, s{sT1}, {R4-R2+hf*4096}")
        A("s_nop 0")
        for j in range(4): A(f"buffer_load_dwordx4 v{vVd}, s[{sV}:{sV+3}], s{sKVo} offen offset:{j*1024} lds")
        if hf == 0: A(f"s_add_u32 s{sKVo}, s{sKVo}, 4096")
    A("s_waitcnt vmcnt(0)")
    for p in range(8):
        A(kread(p, 0, p % 4))
        A("s_waitcnt lgkmcnt(0)")
        for qt in range(2): mf32(A, vr(vS + qt * 16, 16), vr(vF + (p % 4) * 4, 4), vr(vQ + (qt * 8 + p) * 4, 4), "0" if p == 0 else None)
    A("s_nop 11")
    A(f"s_cmp_ge_u32 s{sT}, 16")
    A(f"s_cbranch_scc1 {L}sl2")
    for qt in range(2):
        for i in range(8): A(f"v_max3_f32 v{vM+qt}, v{vS+qt*16+2*i}, v{vS+qt*16+2*i+1}, v{vM+qt}")
    A(f"s_cmp_lg_u32 s{sT}, 15")
    A(f"s_cbranch_scc1 {L}sl3")
    A(f"v_mov_b32 v{vM+2}, v{vM}")
    A(f"v_mov_b32 v{vM+3}, v{vM+1}")
    A("s_nop 1")
    A(f"v_permlane32_swap_b32 v{vM+2}, v{vM}")
    A(f"v_permlane32_swap_b32 v{vM+3}, v{vM+1}")
    A(f"v_max_f32 v{vM}, v{vM}, v{vM+2}")
    A(f"v_max_f32 v{vM+1}, v{vM+1}, v{vM+3}")
    A(f"s_branch {L}sl3")
    A(f"{L}sl2:")
    for e in range(32):
        r, qt, ks = sm_reg(0, e)
        A(f"v_sub_f32 v{r}, v{r}, v{vM+qt}")
        A(f"v_exp_f32 v{r}, v{r}")
        A("s_nop 0")
        for x in sm_post(0, e): A(x)
    for i in range(8):
        for sec in range(2): A(vread(i // 4, i % 4, 0, sec, i % 4))
        A("s_waitcnt lgkmcnt(0)")
        for qt in range(2): mf32(A, ar(aO + (qt * 4 + i % 4) * 16, 16), vr(vF + (i % 4) * 4, 4), vr(vP + (qt * 2 + i // 4) * 4, 4))
    A(f"{L}sl3:")
    A(f"s_add_u32 s{sT}, s{sT}, 1")
    A(f"s_cmp_lt_u32 s{sT}, 32")
    A(f"s_cbranch_scc1 {L}sl")
    A(f"v_mov_b32 v{t}, v{vL}")
    A(f"v_mov_b32 v{t+1}, v{vL+1}")
    A("s_nop 1")
    A(f"v_permlane32_swap_b32 v{t}, v{vL}")
    A(f"v_permlane32_swap_b32 v{t+1}, v{vL+1}")
    A(f"v_add_f32 v{vL}, v{vL}, v{t}")
    A(f"v_add_f32 v{vL+1}, v{vL+1}, v{t+1}")
    A(f"v_rcp_f32 v{t}, v{vL}")
    A(f"v_rcp_f32 v{t+1}, v{vL+1}")
    A("s_nop 7")
    A(f"s_branch {L}oep")
    A(f"{L}last:")
    kd(A, name, 512, 256)

def checks(A, entry):
    if XP: return
    nb = check_hazards(A.lines)
    tot = 0
    for wg in (0, 5, 6, 31, 24, 28, 255):
        for w in (0, 1, 3):
            for slow in (0, 1):
                miss = iter([1, 0, 1, 1, 0] if slow else [])
                def hk(x, S):
                    if x.opn == "v_readfirstlane_b32" and "tag" not in x.text:
                        S[sWave] = w
                    if "slowbr" in x.text: return slow
                    if "pollbr" in x.text: return 1
                    if "missbr" in x.text: return next(miss, 0)
                p, c = check_waits(A.lines, entry, {2: wg}, hk)
                tot += p
    print("hazards:", nb, "waits:", tot, c)

DOC = """;
; One persistent launch, 256 workgroups x 4 waves (one workgroup per CU, 512 registers per lane, 160 KiB LDS).
;
;          h = silu(gate)*up goes to the workspace in MFMA fragment order.
; Phase 2  attention over the last 512 keys (32x32x16 MFMA, S^T = K Q^T, P^T feeds V^T P^T without shuffles), exp2 with the scale
;          folded into Q. Softmax guard: the fast pass uses the offset 0; every row sum is then checked against (2^-40, 2^40)
;          max pass, then exp(s - max) pass). Inside the range exp2 neither overflows nor loses the row, so both are the same softmax.
;          wo / w2 are re-laid into fragment order on the side.
; Hand-offs: write-through (sc1) stores, drained, workgroup barrier, then a flag line per workgroup holding {launch tag + phase};
;          the tag is a clock value published once per launch in d_debug, so words left in d_ws by other launches never match.
;          Inboxes are marked all-ones by their owner in this launch before a partner may write them. All hand-off loads are sc1.
;          Workgroup -> data mapping assumes id%8 shares an L2 for speed only. Every spin is bounded."""
def build(fn, stamps=False):
    HDR = open("cdna_kernels/" + NAME + ".s.ref").read().split("; Override")[0]
    A = Asm()
    A(HDR)
    A(f"; @launch grid=(256,1,1) block=(256,1,1) lds={P1_LDS}")
    A.lines += DOC.split("\n")
    A('.amdgcn_target "amdgcn-amd-amdhsa--gfx950"')
    A(".text")
    gen_p1(A, NAME + "_kernel", stamps=stamps)
    checks(A, NAME + "_kernel")
    if "ub" in XP:
        A.lines = [l.replace("0x402b1600", "0x422c1600").replace("0x5b402b16", "0x5b422c16") for l in A.lines]
        out = []
        pend = 0
        for i, l in enumerate(A.lines):
            if l == f"s_cmp_eq_u32 s{qP}, 3": l = "s_cmp_eq_u32 0, 0"
            out.append(l)
        A.lines = out
    if any(x.startswith("g_") for x in XP):
        i0 = A.lines.index("p1_gf:"); i1 = A.lines.index("p1_gdone:")
        body = A.lines[i0:i1]
        if "g_nodma" in XP: body = [l for l in body if " lds" not in l]
        if "g_nobar" in XP: body = [l for l in body if not l.startswith("s_barrier")]
        if "g_nowait" in XP: body = [l for l in body if not l.startswith("s_waitcnt lgkmcnt")]
        if "g_noread" in XP: body = [l for l in body if not l.startswith("ds_read")]
        if "g_nop" in XP: body = [("s_nop 0" if " lds" in l else l) for l in body]
        A.lines[i0:i1] = body
    if "hplain" in XP: A.lines = [l.replace(" sc1", "") if ("store" in l and f"s[{sA}:{sA+3}], s6 " not in l and f"s[{sA}:{sA+3}]" in l) else l for l in A.lines]
    if "oplain" in XP: A.lines = [l.replace(" sc1", "") if ("store" in l and f"s[{sA}:{sA+3}], s6 " in l) else l for l in A.lines]
    if "iplain" in XP: A.lines = [l.replace(" sc1", "") if ("store" in l and f"s[{qI}:{qI+3}], s{sT0}" in l) else l for l in A.lines]
    if "nt" in XP: A.lines = [l.replace(" sc1", " sc1 nt") if ("buffer_store" in l) else l for l in A.lines]
    if "sc01" in XP: A.lines = [l.replace(" sc1", " sc0 sc1") if ("buffer_store" in l) else l for l in A.lines]
    open(fn, "w").write(A.text())
if __name__ == "__main__":
    build("fu.s")
    build("fu_st.s", stamps=True)
```

```python
from asmlib import *
from common import *

P1_LDS = 163840
R0, R1, R2, R3, R4 = 0, 32768, 65536, 98304, 131072
CS = R3
TAILBIT = 0x30000
ROT = False
TLBW = True
FLAG = 'byte'
FINE = False
EVMASK = 0x180
vFin = 60
XP = set()

class LQ:
    def __init__(s): s.q = []
    def issue(s, tag): s.q.append(tag)
    def wait(s, A, tags):
        idx = max([i for i, t in enumerate(s.q) if t in tags], default=-1)
        if idx < 0: return
        n = len(s.q) - 1 - idx
        assert n <= 15
        A(f"s_waitcnt lgkmcnt({n})")
        s.q = s.q[idx + 1:]
    def clear(s): s.q = []

sX, sWq, sW1, sW3, sK, sV, sA, sWp, sSrc, sSt = 8, 12, 16, 20, 24, 28, 32, 36, 40, 44
sWave, sHead, sRb, sFb, sHasF = 48, 49, 50, 51, 52
sXo, sWqo, sW13o, sM0X, sM0W, sD, sTail, sSlot = 53, 54, 55, 56, 57, 58, 59, 60
sT0, sT1, sT2 = 61, 62, 63
pX, pK, pV, pWq, pWo, pBx, pW1, pW3, pW2, pOut, pDbg, pWs = range(64, 88, 2)
sKVo, sKVm, sDelta, sT, sU, sMask, sXb, sC0 = 88, 89, 90, 91, 92, 93, 94, 95
sX2, sM0d, sXst, sM0t, sProd, sPo = 76, 74, 75, 3, 4, 5
sE0 = 96
vLane = 1
vXd, vWqd, vW13d, vXr, vWqr, vW13r = 2, 10, 12, 13, 15, 23
vZero = 27
vSt = 28
vTm = 44
vQ = 64
vAcc = 128
aG, aUp, aCs, aXf, aWf, aOne, aWp = 0, 64, 128, 144, 176, 192, 196
vKr, vVr, vKd, vVd, vL, vOo = 14, 10, 2, 6, 22, 24
vWs, vKb, vVb = 56, 57, 58
vS, vP, vF = 128, 192, 208
aO = 128
sNo = 100
pFl = 84
qA, qW, qX, qO, qI = 8, 12, 16, 20, 44
qP, qG, qAo, qWo, qWm, qN, qAs, qWs = 53, 54, 55, 56, 57, 58, 51, 60
qAe, qWe, qNl, qSo, qXo, qRb, qCb, qT0, qT1, qIn = 74, 75, 3, 93, 94, 76, 77, 78, 79, 24
vFo, vFv, vPa, vPb, vAa, vAb, vAo, vAp = 25, 28, 30, 32, 34, 35, 36, 37
vL16, vWr2, vXo2, vL8, vOwn = 54, 2, 8, 5, 6
aA2, aW2, aWq = 0, 64, 64
RING2 = 81920
aX = 96
TOUCH = 0
PMAP = 0x3210
SLP = (0, 0, 0)
COOPX = 1
SPL = (1, 1)
OPT = set()
vTch, sTch = 26, 92
vOnes = 40
vWpB, vWpA = 59, 39
sWpO, sSen = 5, 4


def mf16(A, d, a, b, c=None):
    A(f"v_mfma_f32_16x16x32_bf16 {d}, {a}, {b}, {d if c is None else c}")
def mf32(A, d, a, b, c=None):
    A(f"v_mfma_f32_32x32x16_bf16 {d}, {a}, {b}, {d if c is None else c}")

def spread(items, nslots):
    out = [[] for _ in range(nslots)]
    n = len(items)
    for i, it in enumerate(items):
        out[min(nslots - 1, (i * nslots) // n)].append(it)
    return out

def frag_list(ffn):
    fr = [("Q", p) for p in range(8)]
    if ffn:
        for p in range(4): fr += [("G", p), ("U", p)]
    return fr

def wread(fr, k, sec, buf):
    c, p = fr
    if c == "Q": ad, off = vWqr + p, sec * 1024
    else: ad, off = vW13r + p, (2048 if c == "G" else 3072) + sec * 512
    return f"ds_read_b64_tr_b16 {ar(aWf+buf*4+2*sec,2)}, v{ad} offset:{off + k*16384}"

def xread(s, st, rt):
    return f"ds_read_b128 {ar(aXf+st*16+rt*4,4)}, v{vXr+s} offset:{rt*2048}"

def dma_w(ffn, force=False):
    it = [f"s_max_u32 m0, s{sM0W}, s{sTail}",
          f"buffer_load_dwordx4 v{vWqd}, s[{sWq}:{sWq+3}], s{sWqo} offen lds ; @put W",
          f"buffer_load_dwordx4 v{vWqd+1}, s[{sWq}:{sWq+3}], s{sWqo} offen offset:1024 lds ; @put W"]
    if ffn or force:
        it += [f"buffer_load_dwordx4 v{vW13d}, s[{sW1}:{sW1+3}], s{sW13o} offen offset:2048 lds ; @put W",
               f"buffer_load_dwordx4 v{vW13d}, s[{sW3}:{sW3+3}], s{sW13o} offen offset:3072 lds ; @put W"]
    it += [f"s_add_u32 s{sWqo}, s{sWqo}, {32*8192}"]
    if ffn or force: it += [f"s_add_u32 s{sW13o}, s{sW13o}, {32*3456}"]
    it += [f"s_add_u32 s{sSlot}, s{sSlot}, 16384\ns_and_b32 s{sSlot}, s{sSlot}, 0xffff",
           f"s_add_u32 s{sM0W}, s{sSlot}, s{sC0}"]
    return it

def dma_x(half):
    if half == 0: it = [f"s_mov_b32 m0, s{sM0X}"]
    else: it = [f"s_add_u32 m0, s{sM0X}, s{sM0d}"]
    sd = sX if half == 0 else sX2
    for j in range(4):
        it.append(f"buffer_load_dwordx4 v{vXd+4*half+j}, s[{sd}:{sd+3}], s{sXo} offen offset:{j*1024} lds")
    if half: it += [f"s_add_u32 s{sXo}, s{sXo}, s{sXst}\ns_xor_b32 s{sM0X}, s{sM0X}, s{sM0t}"]
    return it

def fine(A):
    A("s_memtime s[98:99]"); A("s_waitcnt lgkmcnt(0)")
    A("s_mov_b32 m0, s7")
    A(f"v_writelane_b32 v{vFin}, s96, m0")
    A(f"v_writelane_b32 v{vFin+1}, s100, m0")
    A(f"v_writelane_b32 v{vFin-1}, s98, m0")
    A("s_add_u32 s7, s7, 1")

def kstep(A, lq, ffn, k, slots, sal, tog, bar, last=None):
    fr = frag_list(ffn); nf = len(fr)
    ones = {("Q", 0): 0, ("Q", 1): 1, ("G", 0): 2, ("U", 0): 3}
    for f in range(nf):
        c, p = fr[f]
        lq.wait(A, [("w", f)] + ([("x", k)] if f == 0 else []))
        buf = f % 4
        for rt in range(4):
            r_ = rt if f % 2 == 0 else 3 - rt
            if c == "Q": d = vr(vAcc + (p * 4 + r_) * 4, 4)
            else: d = ar((aG if c == "G" else aUp) + (p * 4 + r_) * 4, 4)
            mf16(A, d, ar(aWf + buf * 4, 4), ar(aXf + k * 16 + r_ * 4, 4))
            if f + 3 < nf and rt < 2:
                A(wread(fr[f + 3], k, rt, (f + 3) % 4)); lq.issue(("w", f + 3))
            if last is not None and f >= nf - 2:
                for it in last[4 * (f - nf + 2) + rt]: A(it)
            elif f == nf - 2:
                A(wread(fr[rt // 2], 1 - k, rt % 2, (rt // 2) % 4)); lq.issue(("w", rt // 2))
            elif f == nf - 1 and rt < 2:
                A(wread(fr[2], 1 - k, rt, 2)); lq.issue(("w", 2))
            if rt == 1:
                for it in sal.get(f, []): A(it)
            if rt >= 2 and f < nf - 2:
                for it in slots[2 * f + rt - 2]:
                    if isinstance(it, tuple):
                        A(xread(1 - k, 1 - k, it[1])); lq.issue(("x", 1 - k))
                    else:
                        if "lds" in it and " m0," in A.lines[-1]: A("s_nop 0")
                        A(it)
                        if it.startswith("ds_"): lq.issue(("o", 0))
            if rt == 3:
                for t in tog.get(f, []): A(t)
        if fr[f] in ones:
            mf16(A, ar(aCs + ones[fr[f]] * 4, 4), ar(aWf + buf * 4, 4), ar(aOne, 4))
        if f == nf - 3:
            A(f"s_waitcnt vmcnt({bar[0]}) lgkmcnt(0)")
            lq.clear()
            A(f"s_barrier ; {bar[1]}")

def poll_check(A, L):
    A(f"s_mov_b32 s{sT1}, 0")
    A(f"{L}_chk:")
    A(f"v_cmp_ne_u32 vcc, 0x01010101, v{vTm}")
    A(f"v_cmp_eq_u32 s[6:7], 0, v{vTm+5}")
    A("s_nop 3")
    A(f"s_or_b64 s[6:7], s[6:7], vcc")
    A(f"s_cbranch_scc0 {L}_rdy ; pollbr")
    A(f"s_add_u32 s{sT1}, s{sT1}, 1")
    A(f"s_cmp_ge_u32 s{sT1}, 0x40000")
    A(f"s_cbranch_scc1 {L}_rdy")
    for it in poll_loads(): A(it)
    A("s_waitcnt vmcnt(0)")
    A(f"s_branch {L}_chk")
    A(f"{L}_rdy:")
def poll_loads():
    return [f"global_load_dword v{vTm}, v{vTm+2}, s[{pDbg}:{pDbg+1}] sc1",
            f"global_load_dwordx2 {vr(vTm+4,2)}, v{vTm+6}, s[{pDbg}:{pDbg+1}] offset:128 sc1"]
def stats_scale():
    o = []
    for rt in range(4):
        q = vSt + 4 * rt
        o += [f"v_mul_f32 v{q+3}, {hex(f2u(LOG2E/128**0.5))}, v{q+1}", f"v_mul_f32 v{q+1}, {hex(f2u(-LOG2E))}, v{q+1}"]
    return o + [f"v_mov_b32 v{vTm+4+i}, 0" for i in range(4)]
CSB = [14, 18, 22]
def qp_code():
    if PMAP == 0x3210: return f"s_and_b32 s{qP}, s2, 3"
    return f"s_and_b32 s6, s2, 3\ns_lshl_b32 s6, s6, 2\ns_lshr_b32 s6, {PMAP}, s6\ns_and_b32 s{qP}, s6, 3"
def cs_writes():
    t = vTm
    return [f"ds_write_b128 v{t+8}, {ar(aCs,4)}", f"ds_write_b128 v{t+8}, {ar(aCs+4,4)} offset:64",
            f"ds_write_b128 v{t+9}, {ar(aCs+8,4)}", f"ds_write_b128 v{t+9}, {ar(aCs+12,4)} offset:256"]

def gemm_loop(A, ffn, L):
    fr = frag_list(ffn); nf = len(fr)
    nw = 4 if ffn else 2
    lq = LQ()
    for f in range(3):
        lq.issue(("w", f)); lq.issue(("w", f))
    tg = lambda r, m: [f"v_xor_b32 v{r}, {m}, v{r}"]
    bar = (2 * nw + 8, f"@need W {2*nw}")
    A(".p2align 6")
    A(f"{L}:")
    if not ffn:
        items = [("x", rt) for rt in range(4)] + dma_x(1) + dma_w(ffn)
        kstep(A, lq, ffn, 0, spread(items, 2 * (nf - 2)), {}, {2: tg(vXr, "0x18000")}, bar)
        A(f"s_bitcmp1_b32 s{sMask}, s{sD}")
        A(f"s_cbranch_scc1 {L}_ev")
        A(f"{L}_evret:")
        slots = spread(dma_x(0) + dma_w(ffn) + [f"s_add_u32 s{sD}, s{sD}, 1"], 2 * (nf - 5))
        slots += [[f"s_cmp_eq_u32 s{sD}, 10\ns_cbranch_scc1 {L}_nw\ns_waitcnt vmcnt({2*nw+4})\n{L}_nw:"],
                  [("x", 0)], [("x", 1)], [("x", 2)], [("x", 3)], []]
        tog = {0: tg(vXr + 1, "0x18000")}
        for f, (c, p) in enumerate(fr): tog.setdefault(max(f - 3, -1) + 1, []).extend(tg(vWqr + p, "0x38000"))
        kstep(A, lq, ffn, 1, slots, {}, tog, bar)
        A(f"s_cmp_lt_u32 s{sD}, 10")
        A(f"s_cbranch_scc1 {L}")
        return
    def one(items):
        sl = [[] for _ in range(2 * (nf - 2))]
        for i, it in enumerate(items): sl[2 * i] = [it] if it else []
        return sl
    X = [("x", rt) for rt in range(4)]
    tog0 = {2: tg(vXr, "0x18000")}
    tog1 = {i: tg(vWqr + i, "0x38000") for i in range(7)}
    tog1.update({8: tg(vWqr + 7, "0x38000"), 9: tg(vW13r, "0x38000"), 10: tg(vW13r + 1, "0x38000"), 11: tg(vW13r + 2, "0x38000"),
                 12: tg(vW13r + 3, "0x38000"), 14: tg(vXr + 1, "0x18000")})
    xs, ws_ = dma_x(1), dma_w(True)
    kstep(A, lq, True, 0, one(X[:2] + xs[1:5] + X[2:] + ws_[1:5]),
          {1: [xs[0]], 6: [xs[5]], 7: [ws_[0]], 12: ws_[5:7], 13: ws_[7:], 15: [f"s_cmp_eq_u32 s{sD}, 8"]}, tog0, bar)
    A(f"s_cbranch_scc1 {L}_end")
    q_mid = list(lq.q)
    xs = dma_x(0)
    sl = one(xs[1:5] + ws_[1:5] + X)
    sl[2 * 7 + 1] = [f"s_waitcnt vmcnt({2*nw+4})"]
    kstep(A, lq, True, 1, sl, {0: [xs[0]], 4: [ws_[0]], 8: ws_[5:7], 9: ws_[7:8], 10: ws_[8:], 11: [f"s_add_u32 s{sD}, s{sD}, 1"]}, tog1, bar)
    A(f"s_branch {L}")
    A(f"{L}_end:")
    lq.q = q_mid
    kv = kv_dma()
    sl = one(poll_loads() + [None, None] + kv[1:5] + X)
    sl[2 * 7 + 1] = ["s_waitcnt vmcnt(10)"]
    for j in range(5): sl[2 * j + 1] = []
    tA = {f: list(v) for f, v in tog1.items()}
    mv = {f: [f"v_mov_b32 v{vKd+f}, v{vQ+f}"] for f in range(5)}
    kstep(A, lq, True, 1, sl, {**mv, 3: mv[3] + [f"s_lshl_b32 s{sKVm}, s{sWave}, 12", kv[0]]}, tA, (14, "@need W 4"))
    B_ = Asm(); B_("s_waitcnt vmcnt(4)"); poll_check(B_, L)
    st = [f"buffer_load_dwordx4 {vr(vSt+4*rt,4)}, v{vTm+3}, s[{sSt}:{sSt+3}], s{sT0} offen offset:{rt*256} sc1" for rt in range(4)]
    sl = one(X[:2] + st + X[2:] + kv[6:10])
    sl[1] = ["\n".join(B_.lines)]
    kstep(A, lq, True, 0, sl, {0: [f"s_lshl2_add_u32 s{sT0}, s{sRb}, s{sWave}\ns_lshl_b32 s{sT0}, s{sT0}, 10"], 7: [kv[5]],
                               2: [f"v_readfirstlane_b32 s{sNo}, v{vTm+4} ; tag"], 3: [f"v_readfirstlane_b32 s{sNo+1}, v{vTm+5} ; tag"],
                               4: [f"s_add_u32 s{pFl}, s{pWs}, {FL_OFF}\ns_addc_u32 s{pFl+1}, s{pWs+1}, 0"],
                               12: [f"s_add_u32 s{sKVo}, s{sKVo}, 16384\ns_add_u32 s{sKVm}, s{sKVm}, 32768"]}, {}, (14, "@need W 0"))
    cw = cs_writes()
    sl = one([None] + kv[1:3] + cw[:2] + kv[3:5] + [None] * 3 + [None] + cw[2:])
    ss = stats_scale()
    t = vTm
    last = [[f"ds_read_b128 {vr(CSB[0],4)}, v{t+8}", f"v_xor_b32 v{t+11}, 64, v{t+8}"], ss[0:2], [f"ds_read_b128 {vr(CSB[1],4)}, v{t+11}", ss[2]],
            ss[3:5], ss[5:7], ss[7:9], ss[9:11], ss[11:12] + [qp_code()]]
    kstep(A, lq, True, 1, sl, {0: [kv[0]]}, {}, (8, "@need KV 8"), last=last)

def kv_dma_voff(A, kd_, vd_, nv=4):
    t = vTm
    A(f"v_lshrrev_b32 v{t+12}, 4, v{vLane}")
    A(f"v_and_b32 v{t+14}, 15, v{vLane}")
    A(f"v_xor_b32 v{t+13}, v{t+14}, v{t+12}")
    A(f"v_lshlrev_b32 v{t+13}, 4, v{t+13}")
    A(f"v_lshl_add_u32 v{kd_}, v{t+12}, 8, v{t+13}")
    for j in range(1, 4): A(f"v_xor_b32 v{kd_+j}, {64*j}, v{kd_}")
    A(f"v_lshlrev_b32 v{t+13}, 2, v{t+12}")
    A(f"v_xor_b32 v{t+13}, v{t+13}, v{t+14}")
    A(f"v_lshlrev_b32 v{t+13}, 4, v{t+13}")
    A(f"v_lshl_add_u32 v{vd_}, v{t+12}, 8, v{t+13}")
    for j in range(1, nv): A(f"v_mov_b32 v{vd_+j}, v{vd_}")

def gemm_events(A, L):
    A(f"{L}_ev:")
    A(f"s_cmp_eq_u32 s{sD}, 8")
    A(f"s_cbranch_scc1 {L}_ev8")
    for it in poll_loads(): A(it)
    A(f"s_branch {L}_evret")
    A(f"{L}_ev8:")
    A(f"s_mov_b32 s{sTail}, {TAILBIT}")
    for d in (sWq, sW1, sW3): A(f"s_mov_b32 s{d+2}, 0")
    for d, s_ in ((sX, sK), (sX2, sV)):
        A(f"s_mov_b64 s[{d}:{d+1}], s[{s_}:{s_+1}]")
        A(f"s_mov_b64 s[{d+2}:{d+3}], s[{s_+2}:{s_+3}]")
    for j in range(8): A(f"v_mov_b32 v{vXd+j}, v{vQ+min(j,4)}")
    A(f"s_lshl_b32 s{sM0X}, s{sWave}, 12")
    A(f"s_mov_b32 s{sXo}, s{sKVo}")
    A(f"s_movk_i32 s{sM0d}, 16384")
    A(f"s_movk_i32 s{sXst}, 16384")
    A(f"s_mov_b32 s{sM0t}, 0x8000")
    A(f"s_waitcnt vmcnt(12)")
    poll_check(A, L)
    A(f"v_readfirstlane_b32 s{sNo}, v{vTm+4} ; tag")
    A(f"v_readfirstlane_b32 s{sNo+1}, v{vTm+5} ; tag")
    A(f"s_add_u32 s{pFl}, s{pWs}, {FL_OFF}")
    A(f"s_addc_u32 s{pFl+1}, s{pWs+1}, 0")
    A(f"s_lshl2_add_u32 s{sT0}, s{sRb}, s{sWave}")
    A(f"s_lshl_b32 s{sT0}, s{sT0}, 10")
    for rt in range(4):
        A(f"buffer_load_dwordx4 {vr(vSt+4*rt,4)}, v{vTm+3}, s[{sSt}:{sSt+3}], s{sT0} offen offset:{rt*256} sc1")
    A(f"s_branch {L}_evret")

def kv_addr(A, base_expr_sgpr, only=None):
    vKr, vVr = only or (globals()["vKr"], globals()["vVr"])
    t0, t1, t2, t3 = vTm + 12, vTm + 13, vTm + 14, vTm + 15
    A(f"v_and_b32 v{t0}, 31, v{vLane}")
    A(f"v_lshrrev_b32 v{t1}, 5, v{vLane}")
    A(f"v_and_b32 v{t2}, 15, v{vLane}")
    A(f"v_xor_b32 v{t2}, v{t2}, v{t1}")
    A(f"s_lshl_b32 s{sT0}, s{sWave}, 2")
    A(f"v_xor_b32 v{t2}, s{sT0}, v{t2}")
    A(f"v_lshlrev_b32 v{t2}, 4, v{t2}")
    A(f"v_lshl_add_u32 v{t2}, v{t0}, 8, v{t2}")
    A(f"v_add_u32 v{vKr}, s{base_expr_sgpr}, v{t2}")
    for p in range(1, 1 if only else 8): A(f"v_xor_b32 v{vKr+p}, {32*p}, v{vKr}")
    A(f"v_bfe_u32 v{t0}, v{vLane}, 2, 2")
    A(f"v_lshl_add_u32 v{t2}, v{t1}, 2, v{t0}")
    A(f"v_lshlrev_b32 v{t2}, 8, v{t2}")
    A(f"v_lshl_add_u32 v{t2}, v{t0}, 6, v{t2}")
    A(f"v_bfe_u32 v{t3}, v{vLane}, 1, 1")
    A(f"v_lshl_add_u32 v{t2}, v{t3}, 5, v{t2}")
    A(f"v_bfe_u32 v{t3}, v{vLane}, 4, 1")
    A(f"v_lshl_add_u32 v{t2}, v{t3}, 4, v{t2}")
    A(f"v_and_b32 v{t3}, 1, v{vLane}")
    A(f"v_lshl_add_u32 v{t2}, v{t3}, 3, v{t2}")
    A(f"s_add_u32 s{sT0}, s{base_expr_sgpr}, 16384")
    A(f"v_add_u32 v{vVr}, s{sT0}, v{t2}")
    for dt in range(1, 1 if only else 4): A(f"v_xor_b32 v{vVr+dt}, {64*dt}, v{vVr}")

def kv_dma():
    it = [f"s_mov_b32 m0, s{sKVm}"]
    for j in range(4):
        it.append(f"buffer_load_dwordx4 v{vKd+j}, s[{sK}:{sK+3}], s{sKVo} offen offset:{j*1024} lds")
    it.append("s_add_u32 m0, m0, 16384")
    for j in range(4):
        it.append(f"buffer_load_dwordx4 v{vVd}, s[{sV}:{sV+3}], s{sKVo} offen offset:{j*1024} lds")
    return it

def kread(p, tile, buf):
    return f"ds_read_b128 {vr(vF+buf*4,4)}, v{vKr+p} offset:{tile*8192}"
def vread(ks, dt, tile, sec, buf):
    return f"ds_read_b64_tr_b16 {vr(vF+buf*4+2*sec,2)}, v{vVr+dt} offset:{(32*tile+16*ks+8*sec)*256}"

def sm_reg(buf, e):
    qt = (e >> 3) & 1; ks = e >> 4
    return vS + (buf * 2 + qt) * 16 + ks * 8 + (e & 7), qt, ks
def sm_exp(buf, e):
    r, _, _ = sm_reg(buf, e)
    if "noexp" in XP: return []
    if "movexp" in XP: return [f"v_mov_b32 v{r}, v{r}"]
    return [f"v_exp_f32 v{r}, v{r}"]
def sm_post(buf, e):
    r, qt, ks = sm_reg(buf, e)
    o = [f"v_add_f32 v{vL+qt}, v{vL+qt}, v{r}"]
    if "noadd" in XP: o = []
    if e & 1 and "nocvt" not in XP: o.append(f"v_cvt_pk_bf16_f32 v{vP+(qt*2+ks)*4+((e&7)>>1)}, v{r-1}, v{r}")
    return o

def attn_seg(A, lq, seg, extra, mfma=True, sm_lo=0, sm_hi=64, look=True):
    def rd(phi, part):
        s = (phi // 8) % 4; i = phi % 8; buf = phi % 4
        if s in (0, 2):
            return kread(i, 1 if s == 0 else 0, buf) if part == 0 else None
        return vread(i // 4, i % 4, 0 if s == 1 else 1, part, buf)
    for i in range(8):
        phi = seg * 8 + i
        if mfma and "nowait" not in XP: lq.wait(A, [("f", phi)])
        for qt in range(2):
            slot = seg * 16 + 2 * i + qt
            if mfma:
                if seg in (0, 2):
                    sb = 1 if seg == 0 else 0
                    d = vr(vS + (sb * 2 + qt) * 16, 16)
                    mf32(A, d, vr(vF + (phi % 4) * 4, 4), vr(vQ + (qt * 8 + i) * 4, 4), "0" if i == 0 else None)
                else:
                    ks, dt = i // 4, i % 4
                    mf32(A, ar(aO + (qt * 4 + dt) * 16, 16), vr(vF + (phi % 4) * 4, 4), vr(vP + (qt * 2 + ks) * 4, 4))
            for it in extra.get((slot, "pre"), []): A(it)
            nphi = (phi + 3) % 32
            nseg = nphi // 8
            if look is True or nseg in look:
                r = rd(nphi, qt)
                if r and "noread" not in XP: A(r); lq.issue(("f", nphi))
            for it in extra.get((slot, "ds"), []):
                A(it); lq.issue(("side", 0))
            for it in extra.get(slot, []):
                if it.startswith("v_"): continue
                if "lds" in it and " m0," in A.lines[-1]: A("s_nop 0")
                A(it)
            for (buf, start) in ((1, 22), (0, 54)):
                e = (slot - start) % 64
                if e < 32 and (buf, "exp") in sm_ok(slot, sm_lo, sm_hi, buf, e):
                    for x in sm_exp(buf, e): A(x)
            for (buf, start) in ((1, 22), (0, 54)):
                e = (slot - start - 1) % 64
                if e < 32 and (buf, "exp") in sm_ok((slot - 1) % 64, sm_lo, sm_hi, buf, e):
                    for x in sm_post(buf, e): A(x)
            for it in extra.get(slot, []):
                if it.startswith("v_"): A(it)
            for it in extra.get((slot, "post"), []): A(it)
def sm_ok(slot, lo, hi, buf, e):
    return {(buf, "exp")} if (lo <= slot < hi) else set()

def wp_src_voff(A, d, n=8):
    t = vTm
    A(f"v_lshrrev_b32 v{t+12}, 4, v{vLane}")
    A(f"v_lshlrev_b32 v{t+12}, 1, v{t+12}")
    A(f"v_and_b32 v{t+13}, 7, v{vLane}")
    A(f"v_xor_b32 v{t+12}, v{t+12}, v{t+13}")
    A(f"v_lshlrev_b32 v{t+12}, 4, v{t+12}")
    A(f"v_lshrrev_b32 v{t+13}, 3, v{vLane}")
    A(f"v_mul_u32_u24 v{t+13}, 1280, v{t+13}")
    A(f"v_add_u32 v{d}, v{t+12}, v{t+13}")
    for j in range(1, n): A(f"v_add_u32 v{d+j}, {(j%4)*9216 + (j//4)*128}, v{d}")

def wp_addr(A, sh, note="", reg=R3, n=4, dst=None):
    t = vTm
    A(f"v_bfe_u32 v{t+14}, v{vLane}, 2, 2")
    A(f"v_bfe_u32 v{t+16}, v{vLane}, 4, 1")
    A(f"v_lshl_add_u32 v{t+14}, v{t+16}, 2, v{t+14}")
    A(f"v_lshrrev_b32 v{t+13}, 1, v{t+14}")
    A(f"v_lshlrev_b32 v{t+13}, 5, v{t+13}")
    A(f"v_lshl_add_u32 v{t+13}, v{t+14}, 7, v{t+13}")
    A(f"v_lshrrev_b32 v{t+15}, 5, v{vLane}")
    A(f"v_lshl_add_u32 v{t+13}, v{t+15}, 10, v{t+13}")
    A(f"v_and_b32 v{t+15}, 3, v{vLane}")
    A(f"v_lshl_add_u32 v{t+13}, v{t+15}, 3, v{t+13}")
    A(f"s_lshl_b32 s6, s{sWave}, {sh}")
    A(f"s_add_u32 s6, s6, {reg}")
    A(f"v_add_u32 v{dst or t+4}, s6, v{t+13}{note}")
    for i4 in range(1, n): A(f"v_xor_b32 v{t+4+i4}, {32*i4}, v{t+4}")
def wp_reads(A, stride):
    for su in range(2):
        for i4 in range(4):
            for sec in range(2):
                A(f"ds_read_b64_tr_b16 {ar(aWq+(su*4+i4)*4+2*sec,2)}, v{vTm+4+i4} offset:{su*stride+sec*2048}")
def wp_stores(A, so):
    for su in range(2):
        for i4 in range(4):
            A(f"buffer_store_dwordx4 {ar(aWq+(su*4+i4)*4,4)}, v{vL16}, s[{sWp}:{sWp+3}], s{so} offen offset:{i4*1024} sc1")
        if su == 0: A(f"s_add_u32 s{so}, s{so}, 4096")

def set_flag(A, phase, lab, cls="H"):
    A(f"s_cmp_lg_u32 s{sWave}, 0")
    A(f"s_cbranch_scc1 {lab}")
    A(f"s_add_u32 s6, s{sNo}, {phase}")
    A(f"v_mov_b32 v{vFv}, s6")
    A(f"v_mov_b32 v{vFv+1}, s{sNo+1}")
    A("s_mov_b64 exec, 1")
    A(f"global_store_dwordx2 v{vFo}, {vr(vFv,2)}, s[{pFl}:{pFl+1}] sc1")
    A("s_mov_b64 exec, -1")
def flag_load(A, dst, ad):
    A(f"global_load_dwordx2 {vr(dst,2)}, v{ad}, s[{pFl}:{pFl+1}] sc1")
def flag_wait(A, lab, phase, polls):
    A(f"s_add_u32 s{sT0}, s{sNo}, {phase}")
    A(f"s_mov_b32 s{sT1}, 0")
    A(f"{lab}c:")
    for n, (d, ad) in enumerate(polls):
        A(f"v_subrev_u32 v{d}, s{sT0}, v{d}")
        A(f"v_cmp_ne_u32 s[{sE0+2*n}:{sE0+2*n+1}], s{sNo+1}, v{d+1}")
    for n, (d, ad) in enumerate(polls):
        A(f"v_cmp_lt_u32 " + ("vcc" if n == 0 else "s[6:7]") + f", {3-phase}, v{d}")
    A("s_nop 3")
    A(f"s_or_b64 s[{sE0}:{sE0+1}], s[{sE0}:{sE0+1}], vcc")
    if len(polls) > 1:
        A(f"s_or_b64 s[6:7], s[6:7], s[{sE0+2}:{sE0+3}]")
        A(f"s_or_b64 s[{sE0}:{sE0+1}], s[{sE0}:{sE0+1}], s[6:7]")
    A(f"s_cbranch_scc0 {lab}r ; pollbr")
    A(f"s_add_u32 s{sT1}, s{sT1}, 1")
    A(f"s_cmp_ge_u32 s{sT1}, 0x40000")
    A(f"s_cbranch_scc1 {lab}r")
    if SLP[0]: A(f"s_sleep {SLP[0]}")
    for d, ad in polls: flag_load(A, d, ad)
    A("s_waitcnt vmcnt(0)")
    A(f"s_branch {lab}c")
    A(f"{lab}r:")

def q_setup():
    w = sWave
    return [
     f"s_lshl_b32 s6, s{qP}, 3\ns_lshr_b32 s{qT0}, {hex(0x402b1600)}, s6\ns_and_b32 s{qT0}, s{qT0}, 0xff",
     f"s_lshr_b32 s{qT1}, {hex(0x5b402b16)}, s6\ns_and_b32 s{qT1}, s{qT1}, 0xff",
     f"s_and_b32 s{sT2}, s{w}, 1\ns_lshl_b32 s6, s{sT2}, 11\ns_lshl_b32 s{qAs}, s{qT0}, 13",
     f"s_add_u32 s{qAs}, s{qAs}, s6\ns_lshr_b32 s7, s{w}, 1\ns_lshl_b32 s6, s{qCb}, 1",
     f"s_add_u32 s6, s6, s7\ns_mul_i32 s6, s6, 5120\ns_mul_i32 s{qWs}, s{qT0}, 81920",
     f"s_add_u32 s{qWs}, s{qWs}, s6\ns_mul_i32 s6, s{sT2}, 40960\ns_add_u32 s{qWs}, s{qWs}, s6",
     f"s_lshl_b32 s{qAe}, s{qT1}, 13\ns_mul_i32 s{qWe}, s{qT1}, 81920\ns_mov_b32 s{qAo}, s{qAs}",
     f"s_mov_b32 s{qWo}, s{qWs}\ns_mul_i32 s{qWm}, s{sT2}, 10240\ns_mul_i32 s6, s7, 5120",
     f"s_add_u32 s{qWm}, s{qWm}, s6\ns_lshl_b32 s6, s{qRb}, 1\ns_add_u32 s6, s6, s7",
     f"s_mul_i32 s6, s6, {A_BLK}\ns_add_u32 s{qA}, s{pWs}, s6\ns_addc_u32 s{qA+1}, s{pWs+1}, 0",
     f"s_and_b32 s{qA+1}, s{qA+1}, 0xffff\ns_cmp_eq_u32 s{qP}, 3\ns_cselect_b32 s{qA+2}, s{qAe}, 0\ns_cselect_b32 s{qW+2}, s{qWe}, 0\ns_mov_b32 s{qA+3}, 0x20000",
     f"s_mov_b32 s{qW}, s{sWp}\ns_mov_b32 s{qW+1}, s{sWp+1}\ns_mov_b32 s{qW+3}, 0x20000",
     f"s_lshl2_add_u32 s6, s{qRb}, s{qP}\ns_lshl_b32 s6, s6, 1\ns_add_u32 s6, s6, s7\ns_mul_i32 s{qXo}, s6, 20480",
     f"s_lshl_b32 s6, s{qCb}, 1\ns_add_u32 s6, s6, s{sT2}\ns_mul_i32 s6, s6, 160\ns_add_u32 s{qXo}, s{qXo}, s6",
     f"s_xor_b32 s{qT0}, s{w}, s{qP}\ns_mul_i32 s{qT1}, s{w}, 3\ns_add_u32 s{qT1}, s{qT1}, s{qT0}\ns_sub_u32 s{qT1}, s{qT1}, 1",
     f"s_mul_i32 s{qT1}, s{qT1}, 10240\ns_cmp_eq_u32 s{qT0}, 0\ns_cselect_b32 s{qSo}, 0x100000, s{qT1}",
    ]

def q_loads(slot):
    it = [f"s_add_u32 m0, s{qWm}, {slot*20480}"]
    for j in range(4):
        it.append(f"buffer_load_dwordx4 v{vL16}, s[{qW}:{qW+3}], s{qWo} offen offset:{j*1024} sc1 lds ; @put W2")
    it.append(f"s_add_u32 m0, s{qWm}, {slot*20480+4096}")
    it.append(f"buffer_load_dwordx4 v{vL16+1}, s[{qW}:{qW+3}], s{qWo} offen sc1 lds ; @put W2")
    for k in range(2):
        for rt in range(2):
            it.append(f"buffer_load_dwordx4 {ar(aA2+(slot*4+k*2+rt)*4,4)}, v{vL16+k}, s[{qA}:{qA+3}], s{qAo} offen offset:{rt*1024} sc1")
    it.append(f"s_add_u32 s{qWo}, s{qWo}, 81920\ns_add_u32 s{qAo}, s{qAo}, 8192")
    return it

def gemm2(A, L, emit, stamp, cold):
    ac, vT, vX, vZ = 64, 144, 168, 180
    srd(A, qO, pOut, pOut + 1, X_SIZE)
    for i in range(4): A(f"v_mov_b32 v{vZ+i}, 0")
    A("s_nop 1")
    def zero():
        for i in range(5): mf32(A, vr(ac + 16 * i, 16), vr(vZ, 4), vr(vZ, 4), "0")
    zero()
    A(f"v_mov_b32 v{vWr2}, v{vL16}")
    A(f"v_add_u32 v{vWr2+1}, 40960, v{vL16}")
    A(f"v_lshlrev_b32 v{vL8}, 3, v{vLane}")
    A(f"v_add_u32 v{vOwn}, {RING2}, v{vL16}")
    A(f"s_mov_b32 s{qN}, 0")
    def wread2(slot, f, buf):
        k, ct = f // 10, f % 10
        return f"ds_read_b128 {ar(aW2+buf*4,4)}, v{vWr2+slot//2} offset:{(slot%2)*20480+k*10240+ct*1024}"
    def xload():
        for ct in range(5):
            A(f"buffer_load_dwordx2 {vr(vX+2*ct,2)}, v{vXo2}, s[{qX}:{qX+3}], s{qXo} offen offset:{ct*32}")
    A(f"s_cmp_eq_u32 s{qP}, 3")
    A(f"s_cselect_b32 s{qT0}, 18, 99")
    A(f"s_cselect_b32 s{qNl}, 24, 19")
    A(f"s_cbranch_scc1 {L}qh")
    flag_load(A, vPa, vAo)
    A("s_waitcnt vmcnt(0)")
    A("s_barrier")
    set_flag(A, 3, f"{L}f2")
    A(f"{L}f2:")
    A(f"s_mov_b32 s{qA+2}, s{qAe}")
    A(f"s_mov_b32 s{qW+2}, s{qWe}")
    A(f"s_mov_b32 s{qAo}, s{qAs}")
    A(f"s_mov_b32 s{qWo}, s{qWs}")
    flag_wait(A, f"{L}w2", 2, [(vPa, vAo)])
    flag_load(A, vPb, vAb)
    A(f"s_cmp_lg_u32 s{qP}, 0")
    A(f"s_cbranch_scc1 {L}qb")
    for s0 in (1, 2):
        if s0 == 2:
            A(f"{L}qb:")
            A(f"s_mov_b32 s{qNl}, 18")
        for s_ in range(s0, s0 + 3):
            emit(q_loads(s_ % 4)[:7])
            A(f"s_add_u32 s{qWo}, s{qWo}, 81920")
        A("s_waitcnt vmcnt(15)")
        if True:
            A(f"s_cmp_lg_u32 s{sWave}, 0")
            A(f"s_cbranch_scc1 {L}w4{s0}r")
        flag_wait(A, f"{L}w4{s0}", 3, [(vPb, vAb)])
        A("s_waitcnt vmcnt(0)")
        A("s_barrier ; @need W2 0")
        stamp(8)
        for s_ in range(s0, s0 + 3):
            emit(q_loads(s_ % 4)[7:11])
            A(f"s_add_u32 s{qAo}, s{qAo}, 8192")
        for f in range(3): A(wread2(s0, f, f))
        A("s_waitcnt vmcnt(4)")
        stamp(9)
        A(f"s_branch {L}q{s0}")
    A(f"{L}qh:")
    stamp(8)
    A(f"s_waitcnt vmcnt(0)")
    A("s_barrier ; @need W2 0")
    set_flag(A, 3, f"{L}f3")
    A(f"{L}f3:")
    stamp(9)
    for f in range(3): A(wread2(0, f, f))
    lq = LQ()
    for f in range(3): lq.issue(f)
    if "q_oob" in XP:
        A(f"s_mov_b32 s{qA+2}, 0"); A(f"s_mov_b32 s{qW+2}, 0")
    A(".p2align 6")
    A(f"{L}q:")
    for slot in range(4):
        ns = (slot + 1) % 4
        if slot in (1, 2): A(f"{L}q{slot}:")
        slots = spread(q_loads((slot + 3) % 4), 16)
        if "q_noload" in XP: slots = [[] for _ in range(16)]
        if "q_noA" in XP: slots = [[x for x in sl if "a[" not in x] for sl in slots]
        if "q_noW" in XP: slots = [[x for x in sl if "lds" not in x] for sl in slots]
        for f in range(20):
            k, ct = f // 10, f % 10
            lq.wait(A, [f])
            for r in range(2):
                rt = r if f % 2 == 0 else 1 - r
                mf16(A, vr(ac + (rt * 10 + ct) * 4, 4), ar(aW2 + (f % 4) * 4, 4), ar(aA2 + (slot * 4 + k * 2 + rt) * 4, 4))
                if r == 0 and f + 3 < 20:
                    A(wread2(slot, f + 3, (f + 3) % 4)); lq.issue(f + 3)
                if f == 18:
                    A(wread2(ns, r, r)); lq.issue(r)
                if f == 19 and r == 0:
                    A(wread2(ns, 2, 2)); lq.issue(2)
                if r == 1 and f < 16: emit(slots[f])
            if f == 17:
                A("s_waitcnt vmcnt(18) lgkmcnt(0)")
                lq.clear()
                if "q_nobar" not in XP: A("s_barrier ; @need W2 10")
            if f == 19:
                A(f"s_add_u32 s{qN}, s{qN}, 1")
        if slot == 1:
            A(f"s_cmp_eq_u32 s{qT0}, s{qN}")
            A(f"s_cbranch_scc1 {L}qe1")
            A(f"{L}qr1:")
    A(f"s_cmp_lg_u32 s{qNl}, s{qN}")
    A(f"s_cbranch_scc1 {L}q")
    mkq = len(A.lines)
    A(f"{L}qe1:")
    flag_load(A, vPb, vAp)
    A(f"s_branch {L}qr1")
    cold(mkq, f"{L}c4", None)
    A(f"s_cmp_lg_u32 s{qP}, 3")
    A(f"s_cbranch_scc1 {L}qy")
    flag_wait(A, f"{L}w3", 3, [(vPb, vAp)])
    A(f"{L}qy:")
    def send(c, so):
        b = vT + (c // 2) * 12
        it = [f"v_cvt_pk_bf16_f32 v{b+i}, v{ac+c*20+2*i}, v{ac+c*20+2*i+1}" for i in range(10)]
        it += [f"v_min_u32 v{b+i}, -2, v{b+i}" for i in range(10)]
        return it + [f"buffer_store_dwordx4 {vr(b,4)}, v{vL16}, s[{qI}:{qI+3}], s{so} offen sc1",
                     f"buffer_store_dwordx4 {vr(b+4,4)}, v{vL16}, s[{qI}:{qI+3}], s{so} offen offset:1024 sc1",
                     f"buffer_store_dwordx2 {vr(b+8,2)}, v{vL8}, s[{qI}:{qI+3}], s{so} offen offset:2048 sc1"]
    order_ = [(sl, k * 10 + h * 5 + i) for h in range(2) for sl in range(3) for k in range(2) for i in range(5)]
    fill = spread(send(0, qSo) + send(2, sT0), 30)
    nq = len(order_)
    held = []
    for n, (sl, f) in enumerate(order_):
        k, ct = f // 10, f % 10
        lq.wait(A, [n])
        for r in range(2):
            rt = r if n % 2 == 0 else 1 - r
            mf16(A, vr(ac + (rt * 10 + ct) * 4, 4), ar(aW2 + (n % 4) * 4, 4), ar(aA2 + (sl * 4 + k * 2 + rt) * 4, 4))
            if n in (7, 17) and r == 0: held.append(n + 3)
            elif r == 0 and n + 3 < nq:
                if held:
                    m = held.pop(); A(wread2(*order_[m], m % 4)); lq.issue(m); held.append(-(n + 3))
                else:
                    A(wread2(*order_[n + 3], (n + 3) % 4)); lq.issue(n + 3)
            elif r == 1 and held and held[0] < 0:
                m = -held.pop(); A(wread2(*order_[m], m % 4)); lq.issue(m)
            if n == 0 and r == 1: A(f"s_add_u32 s{sT0}, s{qSo}, 5120\ns_add_u32 s{sT1}, s{qSo}, 2560\ns_add_u32 s{sT2}, s{qSo}, 7680")
            g_ = 2 * n + r - 63
            if 0 <= g_ < 30:
                for it in fill[g_]: A(it)
        if n in (7, 17):
            A(f"s_waitcnt vmcnt({9 if n == 7 else 0})")
            A(f"s_barrier")
    stamp(10)
    A("s_nop 1")
    for it in send(1, sT1) + send(3, sT2): A(it)
    A(f"s_cmp_lg_u32 s{sWave}, s{qP}")
    A(f"s_cbranch_scc1 {L}no1")
    for i in range(20): A(f"ds_write_b128 v{vOwn}, {vr(ac+4*i,4)} offset:{i*1024}")
    A("s_waitcnt lgkmcnt(0)")
    A(f"{L}no1:")
    S, U, IN, XR, E, T = 64, 84, 104, 184, 204, 224
    A(f"s_mul_i32 s{sT0}, s{sWave}, 5120")
    A(f"v_add_u32 v{vOwn}, s{sT0}, v{vOwn}")
    A(f"s_mul_i32 s{sT0}, s{qP}, 30720")
    A(f"s_mul_i32 s{sT1}, s{sWave}, 2560")
    A(f"s_add_u32 s{sT0}, s{sT0}, s{sT1}")
    A(f"s_lshl_b32 s6, s{qP}, 3")
    A(f"s_lshr_b32 s6, {hex(0x24094218 >> 0 if False else (0x24 | 0x18 << 8 | 0x09 << 16 | 0x24 << 24))}, s6")
    for i in range(3):
        A(f"s_bfe_u32 s7, s6, {hex(0x20000 | 2*i)}")
        A(f"s_mul_i32 s7, s7, 10240")
        A(f"s_add_u32 s{qIn+i}, s{sT0}, s7")
    def inload(sl):
        b = IN + sl * 10
        A(f"buffer_load_dwordx4 {vr(b,4)}, v{vL16}, s[{qI}:{qI+3}], s{qIn+sl} offen sc1")
        A(f"buffer_load_dwordx4 {vr(b+4,4)}, v{vL16}, s[{qI}:{qI+3}], s{qIn+sl} offen offset:1024 sc1")
        A(f"buffer_load_dwordx2 {vr(b+8,2)}, v{vL8}, s[{qI}:{qI+3}], s{qIn+sl} offen offset:2048 sc1")
    A("s_barrier")
    stamp(11)
    if SLP[2] == 1: A("s_waitcnt vmcnt(0)")
    if SLP[2] > 1: A(f"s_sleep {SLP[2]}")
    for sl in range(3): inload(sl)
    for i in range(5): A(f"ds_read_b128 {vr(S+4*i,4)}, v{vOwn} offset:{i*1024}")
    for i in range(10): A(f"v_accvgpr_read_b32 v{vX+i}, a{aX+i}")
    for i in range(10):
        A(f"v_lshlrev_b32 v{XR+2*i}, 16, v{vX+i}")
        A(f"v_and_b32 v{XR+2*i+1}, 0xffff0000, v{vX+i}")
    def unpack(sl, dst):
        for i in range(10):
            A(f"v_lshlrev_b32 v{dst+2*i}, 16, v{IN+sl*10+i}")
            A(f"v_and_b32 v{dst+2*i+1}, 0xffff0000, v{IN+sl*10+i}")
    def addin(sl, dst):
        unpack(sl, T)
        for i in range(10): A(f"v_pk_add_f32 {vr(dst+2*i,2)}, {vr(dst+2*i,2)}, {vr(T+2*i,2)}")
    def gate(src):
        for i in range(20): A(f"v_mul_f32 v{E+i}, s{sT0}, v{src+i}")
        for i in range(20): A(f"v_exp_f32 v{E+i}, v{E+i}")
        for i in range(20): A(f"v_add_f32 v{E+i}, 1.0, v{E+i}")
        for i in range(20): A(f"v_rcp_f32 v{E+i}, v{E+i}")
        A("s_nop 0")
        for i in range(10): A(f"v_pk_mul_f32 {vr(U+2*i,2)}, {vr(src+2*i,2)}, {vr(E+2*i,2)}")
    A(f"s_mov_b32 s{sT0}, {hex(f2u(-LOG2E))}")
    A(f"s_mov_b32 s{sT1}, 0")
    A(f"s_mov_b32 s{sT2}, 7")
    A(f"s_cmp_lg_u32 s{qP}, 3")
    A("s_waitcnt lgkmcnt(0)")
    A(f"s_cbranch_scc1 {L}sc")
    gate(S)
    A(f"{L}sc:")
    A("s_waitcnt vmcnt(0)")
    for sl in (2, 0, 1):
        b = IN + 10 * sl
        A(f"s_bitcmp1_b32 s{sT2}, {sl}")
        A(f"s_cbranch_scc0 {L}sn{sl}")
        A(f"v_max3_u32 v154, v{b}, v{b+1}, v{b+2}")
        A(f"v_max3_u32 v155, v{b+3}, v{b+4}, v{b+5}")
        A(f"v_max3_u32 v154, v154, v{b+6}, v{b+7}")
        A(f"v_max3_u32 v155, v155, v{b+8}, v{b+9}")
        A(f"v_max_u32 v154, v154, v155")
        A(f"v_cmp_eq_u32 vcc, -1, v154")
        A(f"s_cmp_ge_u32 s{sT1}, 0x40000")
        A(f"s_cbranch_scc1 {L}sy{sl}")
        A("s_nop 1")
        A(f"s_cbranch_vccnz {L}sm{sl} ; missbr")
        A(f"{L}sy{sl}:")
        A(f"s_bitset0_b32 s{sT2}, {sl}")
        if sl == 2:
            A(f"s_cmp_eq_u32 s{qP}, 3")
            A(f"s_cbranch_scc1 {L}s3")
            unpack(2, U)
            gate(U)
            A(f"s_branch {L}sn{sl}")
            A(f"{L}s3:")
        unpack(sl, (134, 224, S)[sl])
        A(f"s_branch {L}sn{sl}")
        A(f"{L}sm{sl}:")
        inload(sl)
        A(f"{L}sn{sl}:")
    A(f"s_add_u32 s{sT1}, s{sT1}, 1")
    A(f"s_cmp_lg_u32 s{sT2}, 0")
    A(f"s_cbranch_scc1 {L}sc")
    stamp(12)
    for b in (134, 224):
        for i in range(10): A(f"v_pk_add_f32 {vr(S+2*i,2)}, {vr(S+2*i,2)}, {vr(b+2*i,2)}")
    for i in range(10): A(f"v_pk_fma_f32 {vr(XR+2*i,2)}, {vr(S+2*i,2)}, {vr(U+2*i,2)}, {vr(XR+2*i,2)}")
    for i in range(10): A(f"v_cvt_pk_bf16_f32 v{vX+i}, v{XR+2*i}, v{XR+2*i+1}")
    for ct in range(5):
        A(f"buffer_store_dwordx2 {vr(vX+2*ct,2)}, v{vXo2}, s[{qO}:{qO+3}], s{qXo} offen offset:{ct*32}" + (" sc1" if "outsc1" in OPT else ""))
    stamp(13)

def gen_p1(A, name, stamps=False, code_bytes=32768, pf_rounds=2):
    head(A, name)
    L = "p1_"
    A("s_cmp_ge_u32 s2, 256")
    A(f"s_cbranch_scc1 {L}end")
    A("s_load_dwordx16 s[64:79], s[0:1], 0")
    A("s_load_dwordx8 s[80:87], s[0:1], 64")
    A(f"s_memrealtime s[{sNo}:{sNo+1}]")
    if stamps: A("s_memtime s[94:95]")
    def stamp(i, att=False):
        if not stamps: return
        if "attst" in OPT:
            if i >= 5 and not att: return
        elif att: return
        A(f"s_memtime s[96:97]")
        A(f"s_memrealtime s[98:99]")
        A("s_waitcnt lgkmcnt(0)")
        A(f"v_mov_b32 v{vTm+18}, s96"); A(f"v_mov_b32 v{vTm+19}, s98")
        A(f"s_lshl_b32 s96, s2, 2"); A(f"s_add_u32 s96, s96, s{sWave}"); A("s_lshl_b32 s96, s96, 7")
        A(f"v_mov_b32 v{vZero}, s96")
        if i == 0: A(f"v_mov_b32 v{vTm+16}, s94")
        A(f"s_add_u32 s96, s{pWs}, 0x3100000"); A(f"s_addc_u32 s97, s{pWs+1}, 0")
        A(f"global_store_dwordx2 v{vZero}, {vr(vTm+18,2)}, s[96:97] offset:{i*8}")
        if i == 0: A(f"global_store_dword v{vZero}, v{vTm+16}, s[96:97] offset:120")
    t = vTm
    COLD = []
    def cold(mark, lab, back):
        blk = A.lines[mark:]; del A.lines[mark:]
        COLD.extend([f"{lab}:"] + blk + ([f"s_branch {back}"] if back else []))
    def emit(items):
        for it in items:
            if "lds" in it and " m0," in A.lines[-1]: A("s_nop 0")
            A(it)
    A(f"v_and_b32 v{vLane}, 63, v0")
    A("v_lshrrev_b32 v0, 6, v0")
    A("s_and_b32 s6, s2, 7")
    A(f"v_readfirstlane_b32 s{sWave}, v0")
    A(f"s_lshr_b32 s{sT0}, s2, 3")
    A(f"s_lshr_b32 s{sRb}, s{sT0}, 2")
    A(f"s_and_b32 s{sT1}, s{sT0}, 3")
    if True:
        A("s_getpc_b64 s[4:5]")
        A(f"{L}pc:")
        A(f"s_lshl2_add_u32 s7, s{sT0}, s{sWave}")
        A(f"s_mul_i32 s7, s7, ({L}last-{L}pc)/1024")
        A("s_lshr_b32 s7, s7, 7")
        A("s_lshl_b32 s7, s7, 10")
        A(f"v_lshl_add_u32 v{vTm+4}, v{vLane}, 4, s7")
        A(f"global_load_dwordx4 {ar(240,4)}, v{vTm+4}, s[4:5]")
    A(f"s_lshl2_add_u32 s{sHead}, s6, s{sT1}")
    A(f"s_sub_u32 s{sT2}, s6, s{sRb}")
    A(f"s_add_u32 s{sT2}, s{sT2}, 3")
    A(f"s_and_b32 s{sT2}, s{sT2}, 7")
    A(f"s_mul_i32 s{sFb}, s6, 3")
    A(f"s_add_u32 s{sFb}, s{sFb}, s{sT1}")
    A(f"s_add_u32 s7, s{sT2}, 24")
    A(f"s_cmp_eq_u32 s{sT1}, 3")
    A(f"s_cselect_b32 s{sFb}, s7, s{sFb}")
    A(f"s_cmp_lt_u32 s{sFb}, 27")
    A(f"s_cselect_b32 s{sHasF}, 1, 0")
    A(f"s_sub_u32 s{sProd}, s{sFb}, 27")
    A(f"v_lshrrev_b32 v{t+7}, 3, v{vLane}")
    A(f"v_and_b32 v{t+6}, 7, v{vLane}")
    A(f"v_lshrrev_b32 v{t+12}, 4, v{vLane}")
    A(f"v_xor_b32 v{t+13}, v{t+6}, v{t+12}")
    A(f"v_lshlrev_b32 v{t+13}, 4, v{t+13}")
    A(f"s_movk_i32 s6, 1280")
    A(f"v_mad_u32_u24 v{vXd}, v{t+7}, s6, v{t+13}")
    A(f"v_xor_b32 v{t+13}, 64, v{vXd}")
    for j in range(1, 8):
        A(f"v_add_u32 v{vXd+j}, {j*10240-(j%4)*1024}, v{(t+13) if j&1 else vXd}")
    A(f"s_lshl2_add_u32 s6, s{sRb}, s{sWave}")
    A(f"s_mul_i32 s{sXo}, s6, {64*1280}")
    A(f"s_mul_i32 s{sKVo}, s6, {A_BLK}")
    A(f"s_lshl_b32 s{sM0X}, s{sWave}, 13")
    A(f"s_add_u32 s{sM0X}, s{sM0X}, {R1}")
    A(f"s_mov_b32 s{sTail}, 0")
    A(f"s_and_b32 s6, s{sWave}, 1")
    A(f"s_lshl_b32 s7, s6, 2")
    A(f"v_add_u32 v{t+13}, s7, v{t+12}")
    A(f"v_lshlrev_b32 v{t+13}, 1, v{t+13}")
    A(f"v_and_b32 v{t+14}, 15, v{vLane}")
    A(f"v_xor_b32 v{t+13}, v{t+13}, v{t+14}")
    A(f"v_lshlrev_b32 v{t+13}, 4, v{t+13}")
    A(f"s_lshl_b32 s7, s{sWave}, 3")
    A(f"v_add_u32 v{t+15}, s7, v{t+12}")
    A(f"v_lshl_add_u32 v{vWqd}, v{t+15}, 13, v{t+13}")
    A(f"v_add_u32 v{vWqd+1}, {4*8192-1024}, v{vWqd}")
    A(f"v_bfe_u32 v{t+13}, v{vLane}, 4, 1")
    A(f"s_lshl_b32 s6, s6, 1")
    A(f"v_add_u32 v{t+13}, s6, v{t+13}")
    A(f"v_lshlrev_b32 v{t+13}, 1, v{t+13}")
    A(f"v_xor_b32 v{t+13}, v{t+13}, v{t+6}")
    A(f"v_lshlrev_b32 v{t+13}, 4, v{t+13}")
    A(f"v_add_u32 v{t+15}, s7, v{t+7}")
    A(f"s_movk_i32 s6, 3456")
    A(f"v_mad_u32_u24 v{vW13d}, v{t+15}, s6, v{t+13}")
    A(f"s_lshl_b32 s{sWqo}, s{sHead}, 8")
    A(f"s_lshl_b32 s{sW13o}, s{sFb}, 7")
    A(f"s_mov_b32 s{sSlot}, 0")
    A(f"s_lshl_b32 s{sM0W}, s{sWave}, 12")
    A(f"s_add_u32 s{sM0W}, s{sM0W}, {R3}")
    for d, sz in ((sX, X_SIZE), (sWq, 640 * 8192)):
        A(f"s_mov_b32 s{d+2}, {sz}")
        A(f"s_mov_b32 s{d+3}, 0x20000")
    for (d, p, sh) in ((sW1, pW1, 2048), (sW3, pW3, 3072)):
        A(f"s_mul_i32 s{d+2}, s{sHasF}, {640*3456+sh}")
        A(f"s_mov_b32 s{d+3}, 0x20000")
    A("s_waitcnt lgkmcnt(0)")
    A(f"s_mov_b32 s{sC0}, s{sM0W}")
    for d, p in ((sX, pX), (sWq, pWq)):
        A(f"s_mov_b32 s{d}, s{p}")
        A(f"s_and_b32 s{d+1}, s{p+1}, 0xffff")
    for (d, p, sh) in ((sW1, pW1, 2048), (sW3, pW3, 3072)):
        A(f"s_sub_u32 s{d}, s{p}, {sh}")
        A(f"s_subb_u32 s{d+1}, s{p+1}, 0")
        A(f"s_and_b32 s{d+1}, s{d+1}, 0xffff")
    A(f"s_mov_b64 s[{sX2}:{sX2+1}], s[{sX}:{sX+1}]")
    A(f"s_mov_b64 s[{sX2+2}:{sX2+3}], s[{sX+2}:{sX+3}]")
    A(f"s_movk_i32 s{sM0d}, 4096")
    A(f"s_movk_i32 s{sXst}, 128")
    A(f"s_mov_b32 s{sM0t}, 0x18000")
    RAW, UNP = 64, 96
    A(f"v_mov_b32 v{t+5}, 0")
    A(f"s_cmp_ge_u32 s{sProd}, 4")
    A(f"s_cbranch_scc0 {L}c1")
    mk_ = len(A.lines)
    A(f"v_lshrrev_b32 v{t+5}, 2, v{vLane}")
    A(f"v_and_b32 v{t+13}, 3, v{vLane}")
    A(f"v_lshlrev_b32 v{t+13}, 4, v{t+13}")
    A(f"s_movk_i32 s6, 1280")
    A(f"v_mad_u32_u24 v{t+13}, v{t+5}, s6, v{t+13}")
    A(f"s_lshl2_add_u32 s6, s{sRb}, s{sProd}")
    A(f"s_lshl2_add_u32 s6, s6, s{sWave}")
    A(f"s_lshl_b32 s7, s6, 8")
    A(f"v_lshl_add_u32 v{t+5}, v{t+5}, 4, s7")
    A(f"s_mul_i32 s6, s6, {16*1280}")
    for i in range(20):
        A(f"buffer_load_dwordx4 {vr(RAW+4*i,4)}, v{t+13}, s[{sX}:{sX+3}], s6 offen offset:{i*64}")
    cold(mk_, f"{L}c1", f"{L}np1")
    A(f"{L}np1:")
    if "coop" in OPT:
        A(f"s_and_b32 s6, s{sHead}, 3")
        A(f"s_lshl2_add_u32 s6, s{sRb}, s6")
        A(f"s_lshl2_add_u32 s6, s6, s{sWave}")
        A(f"s_mul_i32 s6, s6, {16*1280}")
        A(f"v_and_b32 v{t+13}, 15, v{vLane}")
        A(f"v_mul_u32_u24 v{t+13}, 1280, v{t+13}")
        A(f"v_bfe_u32 v{t+14}, v{vLane}, 4, {COOPX}")
        A(f"v_lshl_add_u32 v{t+13}, v{t+14}, 7, v{t+13}")
        A(f"buffer_load_dword v0, v{t+13}, s[{sX}:{sX+3}], s6 offen")
        A(f"s_lshl2_add_u32 s7, s{sRb}, s{sWave}")
        A(f"v_and_b32 v{t+14}, 3, v{vLane}")
        A(f"v_lshl_add_u32 v{t+14}, v{t+14}, 5, s7")
        A(f"v_bfe_u32 v{t+15}, v{vLane}, 2, 1")
        A(f"v_lshlrev_b32 v{t+15}, 7, v{t+15}")
        A(f"v_lshl_add_u32 v{t+15}, v{t+14}, 13, v{t+15}")
        A(f"v_mul_u32_u24 v{t+14}, 3456, v{t+14}")
        A(f"buffer_load_dword v0, v{t+15}, s[{sWq}:{sWq+3}], s{sWqo} offen")
        A(f"buffer_load_dword v0, v{t+14}, s[{sW1}:{sW1+3}], s{sW13o} offen offset:2048")
        A(f"buffer_load_dword v0, v{t+14}, s[{sW3}:{sW3+3}], s{sW13o} offen offset:3072")
    emit(dma_w(True)); emit(dma_x(0))
    stamp(0)
    A(f"s_add_u32 s{sA}, s{pWs}, s{sKVo}")
    A(f"s_addc_u32 s{sA+1}, s{pWs+1}, 0")
    srd(A, sA, sA, sA + 1, A_BLK)
    A(f"s_add_u32 s{sWp}, s{pWs}, {W_OFF}")
    A(f"s_addc_u32 s{sWp+1}, s{pWs+1}, 0")
    srd(A, sWp, sWp, sWp + 1, W_SIZE)
    A(f"s_lshl2_add_u32 s{sT1}, s{sHead}, s{sWave}")
    A(f"s_mul_i32 s{sU}, s{sT1}, 10")
    A(f"s_lshl_b32 s{sT2}, s{sRb}, 1")
    A(f"s_add_u32 s{sU}, s{sU}, s{sT2}")
    A(f"s_mul_i32 s{sT1}, s{sT1}, 40960")
    A(f"s_lshl_b32 s{sT2}, s{sRb}, 8")
    A(f"s_add_u32 s{sPo}, s{sT1}, s{sT2}")
    srd(A, sSrc, pWo, pWo + 1, 4096 * 1280)
    A(f"s_cmp_lt_u32 s{sRb}, 5")
    A(f"s_cselect_b32 s{sSrc+2}, s{sSrc+2}, 0")
    A(f"s_cselect_b32 s{sU}, s{sU}, 2000")
    A(f"v_mov_b32 v{t+6}, 0")
    A(f"s_or_b32 s6, s2, s{sWave}")
    A(f"s_cbranch_scc1 {L}ntag")
    A(f"s_lshl_b64 s[6:7], s[{sNo}:{sNo+1}], 2")
    A(f"s_or_b32 s7, s7, 0x80000000")
    A(f"v_mov_b32 v{t+14}, s6")
    A(f"v_mov_b32 v{t+15}, s7")
    A("s_mov_b64 exec, 1")
    A(f"global_store_dwordx2 v{t+6}, {vr(t+14,2)}, s[{pDbg}:{pDbg+1}] offset:128 sc1")
    A("s_mov_b64 exec, -1")
    A(f"{L}ntag:")
    A(f"v_and_b32 v{t+14}, 15, v{vLane}")
    A(f"v_lshrrev_b32 v{t+13}, 1, v{t+14}")
    A(f"v_xor_b32 v{t+13}, v{t+13}, v{t+12}")
    A(f"v_lshlrev_b32 v{t+13}, 4, v{t+13}")
    A(f"v_lshl_add_u32 v{t+13}, v{t+14}, 7, v{t+13}")
    A(f"s_lshl_b32 s6, s{sWave}, 13")
    A(f"s_add_u32 s6, s6, {R1}")
    A(f"v_add_u32 v{vXr}, s6, v{t+13}")
    A(f"v_xor_b32 v{vXr+1}, 64, v{vXr}")
    A(f"v_lshlrev_b32 v{t+3}, 4, v{t+14}")
    A(f"v_bfe_u32 v{t+14}, v{vLane}, 2, 2")
    A(f"v_and_b32 v{t+15}, 3, v{vLane}")
    A(f"v_lshlrev_b32 v{t+15}, 3, v{t+15}")
    A(f"v_lshl_add_u32 v{t+15}, v{t+12}, 12, v{t+15}")
    A(f"v_add_u32 v{t+15}, {R3}, v{t+15}")
    A(f"v_bfe_u32 v{t+16}, v{vLane}, 4, 1")
    A(f"v_lshl_add_u32 v{t+13}, v{t+16}, 2, v{t+14}")
    A(f"s_lshl_b32 s6, s{sWave}, 1")
    A(f"v_xor_b32 v{t+13}, s6, v{t+13}")
    A(f"v_lshl_add_u32 v{t+13}, v{t+13}, 5, v{t+15}")
    A(f"v_lshl_add_u32 v{vWqr}, v{t+14}, 8, v{t+13}")
    for p in range(1, 8): A(f"v_xor_b32 v{vWqr+p}, {32*p}, v{vWqr}")
    A(f"v_lshrrev_b32 v{t+13}, 1, v{t+14}")
    A(f"v_lshl_add_u32 v{t+13}, v{t+16}, 1, v{t+13}")
    A(f"v_xor_b32 v{t+13}, s{sWave}, v{t+13}")
    A(f"v_lshl_add_u32 v{t+13}, v{t+13}, 5, v{t+15}")
    A(f"v_lshl_add_u32 v{vW13r}, v{t+14}, 7, v{t+13}")
    for p in range(1, 4): A(f"v_xor_b32 v{vW13r+p}, {32*p}, v{vW13r}")
    srd(A, sK, pK, pK + 1, 16777216)
    srd(A, sV, pV, pV + 1, 16777216)
    A(f"s_add_u32 s{sSt}, s{pWs}, {ST_OFF}")
    A(f"s_addc_u32 s{sSt+1}, s{pWs+1}, 0")
    srd(A, sSt, sSt, sSt + 1, 2048 * 16)
    A(f"s_lshl_b32 s6, s{sRb}, 2")
    A(f"v_mov_b32 v{t+2}, s6")
    A(f"s_movk_i32 s{sMask}, {EVMASK}")
    A(f"s_mov_b32 s{sD}, 0")
    A(f"s_cmp_ge_u32 s{sProd}, 4")
    A(f"s_cbranch_scc0 {L}c2")
    mk_ = len(A.lines)
    A("s_waitcnt vmcnt(8)")
    for i in range(79, -1, -1):
        A(f"v_and_b32 v{UNP+2*i+1}, 0xffff0000, v{RAW+i}")
        A(f"v_lshlrev_b32 v{UNP+2*i}, 16, v{RAW+i}")
    a = 64
    def red(first):
        for i in range(80):
            first(i)
        A(f"v_pk_add_f32 {vr(a,2)}, {vr(a,2)}, {vr(a+2,2)}")
        A(f"v_pk_add_f32 {vr(a+4,2)}, {vr(a+4,2)}, {vr(a+6,2)}")
        A(f"v_pk_add_f32 {vr(a,2)}, {vr(a,2)}, {vr(a+4,2)}")
        A(f"v_add_f32 v{a}, v{a}, v{a+1}")
        for qp in ("[1,0,3,2]", "[2,3,0,1]"):
            A("s_nop 1")
            A(f"v_add_f32_dpp v{a}, v{a}, v{a} quad_perm:{qp} row_mask:0xf bank_mask:0xf")
    def f1(i):
        d = vr(a + 2 * (i % 4), 2)
        if i < 4: A(f"v_pk_add_f32 {d}, {vr(UNP+2*i,2)}, {vr(UNP+2*i+8,2)}")
        elif i >= 8: A(f"v_pk_add_f32 {d}, {d}, {vr(UNP+2*i,2)}")
    red(f1)
    o = 72
    A(f"v_mul_f32 v{o}, {hex(f2u(-1.0/640))}, v{a}")
    for i in range(80): A(f"v_pk_add_f32 {vr(UNP+2*i,2)}, {vr(UNP+2*i,2)}, {vr(o,2)} op_sel_hi:[1,0]")
    def f2(i):
        d = vr(a + 2 * (i % 4), 2); x_ = vr(UNP + 2 * i, 2)
        if i < 4: A(f"v_pk_mul_f32 {d}, {x_}, {x_}")
        else: A(f"v_pk_fma_f32 {d}, {x_}, {x_}, {d}")
    red(f2)
    A(f"v_mov_b32 v{o+3}, {hex(f2u(1e-5))}")
    A(f"v_fmac_f32 v{o+3}, {hex(f2u(1.0/640))}, v{a}")
    A(f"v_mov_b32 v{o+2}, v{o+3}")
    A(f"v_rsq_f32 v{o+1}, v{o+3}")
    A("s_mov_b32 exec_lo, 0x11111111")
    A("s_mov_b32 exec_hi, 0x11111111")
    A(f"buffer_store_dwordx4 {vr(o,4)}, v{t+5}, s[{sSt}:{sSt+3}], 0 offen sc1 ; @put S")
    A("s_mov_b64 exec, -1")
    A("s_waitcnt vmcnt(0)")
    cold(mk_, f"{L}c2", f"{L}np2")
    A(f"{L}np2:")
    if "dummy" in OPT:
        A(f"v_lshlrev_b32 v{t+13}, 4, v{vLane}")
        for i in range(16): A(f"buffer_load_dwordx4 {vr(64+4*i,4)}, v{t+13}, s[{sWq}:{sWq+3}], 0 offen offset:{(i%4)*1024}")
        for i in range(128): A(f"v_mov_b32 v{128+i}, 0")
        A("s_waitcnt vmcnt(0)")
        A("s_mov_b32 s6, 0")
        A(f"{L}dmy:")
        for i in range(64): mf16(A, vr(128 + 4 * (i % 32), 4), vr(64 + 4 * (i // 4 % 12), 4), vr(112 + 4 * (i % 4), 4))
        A("s_add_u32 s6, s6, 1")
        A("s_cmp_lt_u32 s6, 40")
        A(f"s_cbranch_scc1 {L}dmy")
        A("s_nop 7")
    if "idle" in OPT:
        A("s_mov_b32 s6, 0")
        A(f"{L}dmy:")
        for i in range(64): A("s_nop 15")
        A("s_add_u32 s6, s6, 1")
        A("s_cmp_lt_u32 s6, 40")
        A(f"s_cbranch_scc1 {L}dmy")
    kv_dma_voff(A, vQ, vQ + 4, 1)
    A(f"s_mov_b32 s{sT1}, {R0}")
    kv_addr(A, sT1, only=(vQ + 5, vQ + 6))
    wp_addr(A, 13, reg=R4, n=1, dst=vQ + 7)
    wp_src_voff(A, vQ + 8, 1)
    A(f"v_mov_b32 v{vKb}, v{vQ+5}")
    A(f"v_mov_b32 v{vVb}, v{vQ+6}")
    A(f"v_mov_b32 v{vWpB}, v{vQ+7}")
    A(f"v_mov_b32 v{vWs}, v{vQ+8}")
    A(f"v_lshrrev_b32 v{t+7}, 4, v{vLane}")
    A(f"v_lshlrev_b32 v{t+7}, 4, v{t+7}")
    A(f"s_lshl_b32 s6, s{sWave}, 7")
    A(f"s_add_u32 s6, s6, {CS}")
    A(f"v_add_u32 v{t+8}, s6, v{t+7}")
    A(f"s_lshl_b32 s6, s{sWave}, 6")
    A(f"s_add_u32 s6, s6, {CS+512}")
    A(f"v_add_u32 v{t+9}, s6, v{t+7}")
    A(f"v_lshlrev_b32 v{t+10}, 4, v{vLane}")
    A(f"s_lshl_b32 s6, s{sWave}, 12")
    A(f"s_lshl_b32 s{sKVo}, s{sHead}, 19")
    A(f"s_add_u32 s{sKVo}, s{sKVo}, s6")
    A(f"s_add_u32 s{sKVo}, s{sKVo}, {1536*256}")
    if "tlbw" in OPT:
        A("s_mov_b64 exec, 1")
        A(f"buffer_load_dword v0, v{t+6}, s[{sK}:{sK+3}], s{sKVo} offen")
        A(f"buffer_load_dword v0, v{t+6}, s[{sV}:{sV+3}], s{sKVo} offen")
        A(f"buffer_load_dword v0, v{t+6}, s[{sSrc}:{sSrc+3}], s{sPo} offen")
        A("s_mov_b64 exec, -1")
    if "tlbs" in OPT:
        A(f"s_lshl_b32 s6, s{sHead}, 14")
        A(f"s_lshl_b32 s7, s{sFb}, 13")
        A(f"s_add_u32 s7, s7, {128*4096}")
        A("s_mov_b64 exec, 1")
        A(f"buffer_store_dword v{t+6}, v{t+6}, s[{sA}:{sA+3}], s6 offen sc1")
        A(f"buffer_store_dword v{t+6}, v{t+6}, s[{sA}:{sA+3}], s7 offen sc1")
        A("s_mov_b64 exec, -1")
    for i in range(4): A(f"v_mov_b32 v{vSt+i}, 0")
    A(f"v_mov_b32 v{t+1}, 0x3f803f80")
    for i in range(4): A(f"v_accvgpr_write_b32 a{aOne+i}, v{t+1}")
    z = vr(vSt, 4)
    for i in range(8): mf32(A, vr(vAcc + 16 * i, 16), z, z, "0")
    for i in range(9): mf32(A, ar(16 * i, 16), z, z, "0")
    emit(dma_x(1)); emit(dma_w(True)); emit(dma_x(0)); emit(dma_w(True))
    A(f"s_waitcnt vmcnt({15 if 'tlbw' in OPT else 14 if 'tlbs' in OPT else 12})")
    A("s_barrier")
    A(f"s_lshl2_add_u32 s6, s{sProd}, s{sWave}")
    A(f"s_and_b32 s6, s6, 0xfffffff3")
    A(f"s_cbranch_scc1 {L}np3")
    A(f"v_mov_b32 v{t+1}, 1")
    A(f"v_add_u32 v{t+7}, s{sProd}, v{t+2}")
    A(f"s_mov_b64 exec, 1")
    A(f"global_store_byte v{t+7}, v{t+1}, s[{pDbg}:{pDbg+1}] sc1")
    A(f"s_mov_b64 exec, -1")
    A(f"{L}np3:")
    stamp(1)
    for rt in range(4): A(xread(0, 0, rt))
    A(f"s_cmp_eq_u32 s{sHasF}, 0")
    fr = frag_list(True)
    for f in range(3):
        for sec in range(2): A(wread(fr[f], 0, sec, f))
    A("s_waitcnt lgkmcnt(6)")
    if FINE: A("s_mov_b32 s7, 0")
    A(f"s_cbranch_scc1 {L}gn")
    gemm_loop(A, True, L + "gf")
    mk_ = len(A.lines)
    gemm_events(A, L + "gn")
    gemm_loop(A, False, L + "gn")
    for it in cs_writes()[:2]: A(it)
    A(f"s_mov_b32 s{sKVo}, s{sXo}")
    A(f"s_mov_b32 s{sKVm}, s{sM0X}")
    A(qp_code())
    for it in stats_scale(): A(it)
    A("s_waitcnt lgkmcnt(0)")
    A("s_barrier")
    A(f"ds_read_b128 {vr(CSB[0],4)}, v{t+8}")
    A(f"v_xor_b32 v{t+11}, 64, v{t+8}")
    A(f"ds_read_b128 {vr(CSB[1],4)}, v{t+11}")
    cold(mk_, f"{L}c3", f"{L}gdone")
    A(f"{L}gdone:")
    stamp(2)
    z = vr(vTm + 4, 4)
    class Grp(list):
        def __call__(self, x): self.append(x)
    IDS = Grp()
    IDS(f"s_lshr_b32 s{qCb}, s2, 6")
    IDS(f"s_bfe_u32 s{qRb}, s2, 0x30003")
    IDS(f"s_and_b32 s6, s2, 4\ns_lshl_b32 s6, s6, 1")
    IDS(f"s_add_u32 s{qRb}, s{qRb}, s6")
    IDS(f"s_lshl2_add_u32 s{qG}, s{qRb}, s{qCb}")
    IDS(f"s_mul_i32 s6, s{qG}, {IB_G}")
    IDS(f"s_add_u32 s6, s6, {IB_OFF}")
    IDS(f"s_add_u32 s{qI}, s{pWs}, s6\ns_addc_u32 s{qI+1}, s{pWs+1}, 0")
    srd(IDS, qI, qI, qI + 1, IB_G)
    kvadv = [f"s_add_u32 s{sKVo}, s{sKVo}, 16384\ns_add_u32 s{sKVm}, s{sKVm}, 32768"]
    def kvq(): return kv_dma() + kvadv
    csb = [14, 18, 22]
    lq = LQ()
    def csread_q(p):
        A(f"v_xor_b32 v{t+11}, {64*p}, v{t+8}")
        A(f"ds_read_b128 {vr(csb[p%3],4)}, v{t+11}"); lq.issue(("c", p))
    lq.issue(("c", 0)); lq.issue(("c", 1))
    wo_dma = []
    for su in range(2):
        wo_dma.append(f"s_lshl_b32 s6, s{sWave}, 13\ns_add_u32 m0, s6, {R4+su*4096}")
        wo_dma += [f"buffer_load_dwordx4 v{vWs}, s[{sSrc}:{sSrc+3}], s{sPo} offen offset:{j*1024} lds ; @put P\n" +
                   (f"s_add_u32 s{sPo}, s{sPo}, 9216" if j < 3 else f"s_sub_u32 s{sPo}, s{sPo}, {3*9216-128}") for j in range(4)]
    kq = spread([f"s_add_u32 m0, s{sKVm}, 16384"] + kv_dma()[6:] + kvadv + wo_dma[:5 * SPL[0]], 24)
    for p in range(8):
        if p + 2 < 8: csread_q(p + 2)
        lq.wait(A, [("c", p)])
        c = csb[p % 3]
        for rt in range(4):
            d = vAcc + (p * 4 + rt) * 4; q = vSt + 4 * rt
            for h in range(2):
                A(f"v_pk_fma_f32 {vr(d+2*h,2)}, {vr(c+2*h,2)}, {vr(q,2)}, {vr(d+2*h,2)} op_sel_hi:[1,0,1]")
        emit(kq[3*p])
        for rt in range(4):
            d = vAcc + (p * 4 + rt) * 4; q = vSt + 4 * rt
            for h in range(2):
                A(f"v_pk_mul_f32 {vr(d+2*h,2)}, {vr(d+2*h,2)}, {vr(q+2,2)} op_sel:[0,1]")
        emit(kq[3*p+1])
        for rt in range(4):
            d = vAcc + (p * 4 + rt) * 4
            f = vQ + ((rt // 2) * 8 + p) * 4 + (rt & 1) * 2
            for h in range(2): A(f"v_cvt_pk_bf16_f32 v{f+h}, v{d+2*h}, v{d+2*h+1}")
        mf32(A, ar(aO + 16 * p, 16), z, z, "0")
        emit(kq[3*p+2])
        if p > 0:
            for qt in range(2):
                f = vQ + (qt * 8 + p - 1) * 4
                for h in range(2): A(f"v_permlane16_swap_b32 v{f+h}, v{f+2+h}")
    A("s_nop 0")
    for qt in range(2):
        f = vQ + (qt * 8 + 7) * 4
        for h in range(2): A(f"v_permlane16_swap_b32 v{f+h}, v{f+2+h}")
    stamp(3)
    for p in range(8): A(f"v_xor_b32 v{vKr+p}, {32*p}, v{vKb}")
    v2q = [f"s_add_u32 m0, s{sKVm}, 16384"] + kvq()[6:]
    A(f"s_cmp_eq_u32 s{sHasF}, 0")
    A(f"s_cbranch_scc1 {L}noffn")
    def hst(pi, rt): return f"buffer_store_dwordx4 {vr(vAcc+96+pi*16+rt*4,4)}, v{t+10}, s[{sA}:{sA+3}], s{qT0+pi} offen offset:{rt*1024}" + ("" if "wbl2" in OPT else " sc1") + " ; @put H @put HH"
    T = vAcc + 32; H = vAcc + 96; C = vAcc + 56
    def csf(p):
        A(f"v_xor_b32 v{t+11}, {64*p}, v{t+9}")
        A(f"ds_read_b128 {vr(C+8*(p%3),4)}, v{t+11}")
        A(f"ds_read_b128 {vr(C+8*(p%3)+4,4)}, v{t+11} offset:256")
    for p in range(3): csf(p)
    A(f"s_lshr_b32 s7, s{sWave}, 1")
    A(f"s_lshl_b32 s6, s{sFb}, 1")
    A(f"s_add_u32 s6, s6, 128")
    A(f"s_add_u32 s{sT0}, s6, s7")
    A(f"s_xor_b32 s7, s7, 1")
    A(f"s_add_u32 s{sT1}, s6, s7")
    A(f"s_lshl_b32 s{qT0}, s{sT0}, 12")
    A(f"s_lshl_b32 s{qT1}, s{sT1}, 12")
    A("s_waitcnt lgkmcnt(0)")
    ffq = wo_dma[5 * SPL[0]:] + kv_dma()[:5 * SPL[1]]
    kq = spread(ffq, 24) if ffq else [[]] * 24
    for p in range(4):
        for r2 in range(2):
            g_ = 3 * (p * 2 + r2)
            G = [(2 * r2 + i, T + 12 * i) for i in range(2)]
            if p == 1 and r2 == 0: csf(3)
            if p == 2 and r2 == 0:
                qk_at = len(A.lines)
                A("s_waitcnt lgkmcnt(0)")
            for rt, b in G:
                for i in range(4): A(f"v_accvgpr_read_b32 v{b+i}, a{aG+(p*4+rt)*4+i}")
                for i in range(4): A(f"v_accvgpr_read_b32 v{b+4+i}, a{aUp+(p*4+rt)*4+i}")
            emit(kq[g_])
            for rt, b in G:
                for h in range(4):
                    A(f"v_pk_fma_f32 {vr(b+2*h,2)}, {vr(C+8*(p%3)+2*h,2)}, {vr(vSt+4*rt,2)}, {vr(b+2*h,2)} op_sel_hi:[1,0,1]")
            for rt, b in G:
                for h in range(2): A(f"v_pk_mul_f32 {vr(b+8+2*h,2)}, {vr(b+2*h,2)}, {vr(vSt+4*rt,2)} op_sel:[0,1]")
            for rt, b in G:
                for i in range(4): A(f"v_exp_f32 v{b+8+i}, v{b+8+i}")
            emit(kq[g_+1])
            for rt, b in G:
                for h in range(2): A(f"v_pk_mul_f32 {vr(b+2*h,2)}, {vr(b+2*h,2)}, {vr(b+4+2*h,2)}")
            for rt, b in G:
                for h in range(2):
                    A(f"v_pk_fma_f32 {vr(b+8+2*h,2)}, {vr(b+8+2*h,2)}, {vr(vSt+4*rt+2,2)}, {vr(vSt+4*rt+2,2)} op_sel_hi:[1,0,0]")
            for rt, b in G:
                for i in range(4): A(f"v_rcp_f32 v{b+8+i}, v{b+8+i}")
            emit(kq[g_+2])
            for n, (rt, b) in enumerate(G):
                for h in range(2): A(f"v_pk_mul_f32 {vr(b+2*h,2)}, {vr(b+2*h,2)}, {vr(b+8+2*h,2)}")
            for rt, b in G:
                for h in range(2): A(f"v_cvt_pk_bf16_f32 v{H+(p//2)*16+rt*4+(p&1)*2+h}, v{b+2*h}, v{b+2*h+1}")
        if p & 1:
            pi = p // 2
            A(f"s_bitcmp1_b32 s{sWave}, 0")
            A(f"s_cbranch_scc0 {L}nsw{pi}")
            for rt in range(4):
                for h in range(2): A(f"v_swap_b32 v{H+pi*16+rt*4+h}, v{H+pi*16+rt*4+2+h}")
            A(f"{L}nsw{pi}:")
    B_ = Asm(); lq = LQ()
    for p in range(3):
        B_(kread(p, 0, p)); lq.issue(("f", 16 + p))
    attn_seg(B_, lq, 2, {}, sm_lo=0, sm_hi=0, look=[2])
    QK0 = list(B_.lines)
    grp = [QK0[:3]]; cur = []
    for l_ in QK0[3:]:
        if l_.startswith(("s_waitcnt", "v_mfma")) and any(x.startswith("v_mfma") for x in cur): grp.append(cur); cur = []
        cur.append(l_)
    grp.append(cur)
    half = A.lines[qk_at + 1:]; del A.lines[qk_at + 1:]
    stop = max(i for i, x in enumerate(half) if x.startswith("s_bitcmp1"))
    pos = {4 + (i * (stop - 24)) // len(grp): g for i, g in enumerate(grp)}
    pend = []
    for i, l_ in enumerate(half):
        if i in pos: pend = pend + pos[i]
        if pend and " lds" not in l_ and not l_.startswith("s_nop") and not any(x.startswith("v_pk_") for x in A.lines[-2:]):
            A.lines += pend; pend = []
        A.lines.append(l_)
    emit(v2q)
    mk_ = len(A.lines)
    emit(ffq)
    A(f"s_mov_b32 s{qT0}, 0x1000000")
    A(f"s_mov_b32 s{qT1}, 0x1000000")
    A("s_barrier")
    srd(A, qA, pW2, pW2 + 1, 1728 * 1280)
    A(f"v_mov_b32 v{vAcc+8}, v{vKb}")
    A(f"v_mov_b32 v{vAcc+9}, v{vVb}")
    A(f"v_mov_b32 v{vAcc+10}, v{vWpB}")
    wp_src_voff(A, vAcc)
    wp_addr(A, 13)
    A(f"v_mov_b32 v{vKb}, v{vAcc+8}")
    A(f"v_mov_b32 v{vVb}, v{vAcc+9}")
    A(f"v_mov_b32 v{vWpB}, v{vAcc+10}")
    A(f"s_mul_i32 s{sT2}, s{sRb}, 5")
    A(f"s_add_u32 s{sT2}, s{sT2}, s{sProd}")
    A(f"s_lshl2_add_u32 s{sT2}, s{sT2}, s{sWave}")
    A(f"{L}w2j:")
    A(f"s_mul_hi_u32 s{sT0}, s{sT2}, 0x33333334")
    A(f"s_mul_i32 s{sT1}, s{sT0}, 5")
    A(f"s_sub_u32 s{sT1}, s{sT2}, s{sT1}")
    A(f"s_mul_i32 s7, s{sT0}, 40960")
    A(f"s_lshl_b32 s6, s{sT1}, 8")
    A(f"s_add_u32 s{sT0}, s7, s6")
    A(f"s_lshl_b32 s6, s{sT1}, 13")
    A(f"s_add_u32 s7, s7, s6")
    A(f"s_add_u32 s{sT1}, s7, {128*40960}")
    A(f"s_lshl_b32 s6, s{sWave}, 13")
    for su in range(2):
        A(f"s_add_u32 m0, s6, {R3+su*4096}")
        A("s_nop 0")
        for j in range(4): A(f"buffer_load_dwordx4 v{vAcc+4*su+j}, s[{qA}:{qA+3}], s{sT0} offen offset:{j*1024} lds")
    A("s_waitcnt vmcnt(0)")
    wp_reads(A, 4096)
    A("s_waitcnt lgkmcnt(0)")
    wp_stores(A, sT1)
    A(f"s_add_u32 s{sT2}, s{sT2}, 160")
    A(f"s_cmp_lt_u32 s{sT2}, 270")
    A(f"s_cbranch_scc1 {L}w2j")
    A.lines += QK0
    emit(v2q)
    cold(mk_, f"{L}noffn", f"{L}ffnd")
    A(f"{L}ffnd:")
    for i in range(4): IDS(f"v_mov_b32 v{vOnes+i}, -1")
    IDS(f"s_mul_i32 s6, s{qP}, 30720\ns_mul_i32 s7, s{sWave}, 7680")
    IDS(f"s_min_u32 s7, s7, 22528\ns_add_u32 s{sSen}, s6, s7")
    IDS(f"s_lshl_b32 s{sWpO}, s{sU}, 12")
    IDS(f"v_add_u32 v{vL16+1}, 4096, v{vL16}")
    IDS(f"s_lshl_b32 s6, s{sRb}, 5\ns_add_u32 s7, s6, s{sHead}\ns_lshl_b32 s7, s7, 7")
    IDS(f"v_mov_b32 v{vFo}, s7")
    IDS(f"s_cmp_eq_u32 s{sWave}, 0\ns_cselect_b32 s{sTail}, 0, 0x8000")
    srd(IDS, qX, pFl, pFl + 1, 0x8000)
    IDS(f"s_add_u32 s6, s{sNo}, 1")
    IDS(f"v_mov_b32 v{vFv}, s6")
    IDS(f"v_mov_b32 v{vFv+1}, s{sNo+1}")
    stamp(4)
    for dt in range(4): A(f"v_xor_b32 v{vVr+dt}, {64*dt}, v{vVb}")
    A(f"v_mov_b32 v{vL}, 0")
    A(f"v_mov_b32 v{vL+1}, 0")
    A(f"s_waitcnt vmcnt(24)")
    A("s_barrier")
    stamp(5, True)
    lq = LQ()
    for p in range(3):
        A(kread(p, 1, p)); lq.issue(("f", p))
    for e in range(10):
        for x in sm_exp(0, e): A(x)
        if e:
            for x in sm_post(0, e - 1): A(x)
    assert XP or lq.q == [("f", 0), ("f", 1), ("f", 2)]
    def put(ex, slots, items):
        for sl, its in zip(slots, spread(items, len(slots))): ex.setdefault(sl, []).extend(its)
    PA = Asm()
    PA(f"s_lshl_b32 s6, s{sRb}, 5")
    PA(f"v_and_b32 v{vAp}, 3, v{vLane}")
    PA(f"v_lshlrev_b32 v{vAp}, 2, v{vAp}")
    PA(f"s_and_b32 s7, s{sHead}, 0x13")
    PA(f"s_add_u32 s7, s7, s6")
    PA(f"v_add_lshl_u32 v{vAp}, v{vAp}, s7, 7")
    PA(f"s_lshr_b32 s7, s{qRb}, 1")
    PA(f"s_lshl_b32 s6, s7, 5")
    PA(f"s_lshl_b32 s{sT0}, s{sWave}, 3")
    PA(f"s_add_u32 s6, s6, s{sT0}")
    PA(f"v_add_lshl_u32 v{vAa}, v{vLane}, s6, 7")
    PA(f"v_cmp_gt_u32 vcc, 8, v{vLane}")
    PA(f"v_and_b32 v{vAb}, 15, v{vLane}")
    PA(f"v_lshlrev_b32 v{vAb}, 2, v{vAb}")
    PA(f"s_lshl_b32 s6, s{sWave}, 6")
    PA(f"s_add_u32 s6, s6, 3")
    PA(f"v_add_lshl_u32 v{vAb}, v{vAb}, s6, 7")
    PA(f"v_cndmask_b32 v{vAa}, v{vAb}, v{vAa}, vcc")
    PA(f"v_bfe_u32 v{vAo}, v{vLane}, 4, 1")
    PA(f"v_add_u32 v{vAo}, s{qCb}, v{vAo}")
    PA(f"s_mul_i32 s6, s{qP}, 21")
    PA(f"s_add_u32 s6, s6, 1")
    PA(f"s_lshr_b32 s6, s6, 1")
    PA(f"v_and_b32 v{vPb}, 15, v{vLane}")
    PA(f"v_min_u32 v{vPb}, 10, v{vPb}")
    PA(f"v_add_u32 v{vPb}, s6, v{vPb}")
    PA(f"v_cmp_gt_u32 vcc, 16, v{vLane}")
    PA(f"s_lshl_b32 s7, s7, 5")
    PA(f"v_lshl_add_u32 v{vAo}, v{vAo}, 5, v{vPb}")
    PA(f"v_lshlrev_b32 v{vAo}, 7, v{vAo}")
    PA(f"v_add_lshl_u32 v{vAb}, v{vPb}, s7, 7")
    PA(f"v_cndmask_b32 v{vAb}, v{vAp}, v{vAb}, vcc")
    PA(f"v_and_b32 v{vXo2+1}, 15, v{vLane}")
    PA(f"v_mul_u32_u24 v{vXo2+1}, 1280, v{vXo2+1}")
    PA(f"v_lshrrev_b32 v{vXo2}, 4, v{vLane}")
    PA(f"v_lshl_add_u32 v{vXo2}, v{vXo2}, 3, v{vXo2+1}")
    srd(PA, qO, pX, pX + 1, X_SIZE)
    odd = lambda a, b: [x for x in range(a, b) if x & 1]
    def wo_job(ex, f, s0, s1):
        r = aWq + 4 * (f % 3)
        ex.setdefault(s0 - 1, []).append(f"v_xor_b32 v{vWpA}, {((f&3)<<5)|((f&4)<<10)}, v{vWpB}")
        ex[(s0, "ds")] = [f"ds_read_b64_tr_b16 {ar(r,2)}, v{vWpA} ; @need P 0"]
        ex[(s0 + 2, "ds")] = [f"ds_read_b64_tr_b16 {ar(r+2,2)}, v{vWpA} offset:2048"]
        if "nowo" not in XP: ex.setdefault(s1, []).append(f"buffer_store_dwordx4 {ar(r,4)}, v{vL16+f//4}, s[{sWp}:{sWp+3}], s{sWpO} offen offset:{(f&3)*1024} sc1")
    def mark(f): return "s_nop 0" if "nosent" in XP else f"buffer_store_dwordx4 {vr(vOnes,4)}, v{vL16+f//4}, s[{qI}:{qI+3}], s{sSen} offen offset:{(f&3)*1024} sc1 ; @put H"
    stamp(6, True)
    BW = {0: 10, 1: 13, 2: 13, 3: 13, 4: 13, 5: 13}
    bg = [("h", i) for i in range(8)] + [("w", i) for i in range(8)] + [("m", i) for i in range(8)]
    BG = [bg[0:3], bg[3:6], bg[6:9], bg[9:12], bg[12:15], bg[15:19], bg[19:22], bg[22:24]]
    if "bg2" in OPT: BG[5:] = [bg[15:22], bg[22:24], []]
    if "bg3" in OPT: BG[5:] = [bg[15:24], [], []]
    for t_ in range(8):
        ex = {}
        delta = hex((-98304) & 0xffffffff) if t_ == 3 else "0x8000"
        if t_ < 7:
            for p in range(8):
                ex.setdefault(max(2 * (p - 3) + 1, 1) if p >= 3 else 2 * p, []).append(f"v_add_u32 v{vKr+p}, {delta}, v{vKr+p}")
            for dt in range(4):
                ex.setdefault(2 * (28 + dt - 3) + 2, []).append(f"v_add_u32 v{vVr+dt}, {delta}, v{vVr+dt}")
        if t_ < 5:
            for sl, it in zip([32, 33, 37, 41, 45, 47, 49, 53, 57, 61], kv_dma()): ex.setdefault(sl, []).append(it)
            ex.setdefault(62, []).append(f"s_add_u32 s{sKVo}, s{sKVo}, 16384")
            ex.setdefault(59, []).append(f"s_add_u32 s{sKVm}, s{sKVm}, {hex((-98304) & 0xffffffff) if t_ == 0 else 32768}")
        if t_ < 6: ex[(26, "pre")] = [f"s_waitcnt vmcnt({BW[t_]})", "s_barrier ; @need KV 8 @need Xa 0" + (" @need HH 0" if t_ == 4 else "")]
        for j, (kind, f) in enumerate(BG[t_]):
            sl = (3, 19, 51, 39, 31, 45, 59, 35, 55)[j]
            if kind == "h": put(ex, [sl], [hst(f // 4, f % 4)])
            elif kind == "m": put(ex, [sl], [mark(f)])
            else: wo_job(ex, f, (1, 7, 35)[j], (13, 21, 51)[j])
        if t_ == 0:
            for sl, its in zip([x for x in range(11, 52) if x not in (26, 32, 47)], spread(IDS, 38)): ex.setdefault((sl, "post"), []).extend(its)
        if t_ == 4:
            put(ex, [39], [f"buffer_store_dwordx2 {vr(vFv,2)}, v{vFo}, s[{qX}:{qX+3}], s{sTail} offen sc1"])
        if t_ == 5:
            for sl, its in zip([x for x in range(10, 47) if x != 26], spread(PA.lines, 36)): ex.setdefault((sl, "post"), []).extend(its)
            put(ex, [x for x in range(47, 64) if x != 51], q_setup())
        elif t_ == 6:
            put(ex, [1], [f"global_load_dwordx2 {vr(vPa,2)}, v{vAa}, s[{pFl}:{pFl+1}] sc1"])
            put(ex, [5, 7, 9, 13, 23], [f"buffer_load_dwordx2 {ar(aX+2*ct,2)}, v{vXo2}, s[{qO}:{qO+3}], s{qXo} offen offset:{ct*32}" for ct in range(5)])
            B_ = Asm(); B_(f"s_waitcnt vmcnt({5 + min(2, len(BG[6]))})"); B_(f"s_cmp_lg_u32 s{qP}, 3"); B_(f"s_cbranch_scc1 {L}w1r")
            flag_wait(B_, f"{L}w1", 1, [(vPa, vAa)]); B_("s_barrier")
            ex[(26, "pre")] = B_.lines
            put(ex, [x for x in odd(31, 64) if x != 51], q_loads(0) + q_loads(1)[:6])
        elif t_ == 7:
            ex[(26, "pre")] = ["s_waitcnt vmcnt(30)", "s_barrier"]
            ex.setdefault(24, []).append(f"v_add_u32 v{vFv}, 1, v{vFv}")
            put(ex, [28], [f"buffer_store_dwordx2 {vr(vFv,2)}, v{vFo}, s[{qX}:{qX+3}], s{sTail} offen sc1"])
            put(ex, [1, 5, 7, 9, 11, 13, 15, 17, 21, 23, 25, 27, 29, 31], q_loads(1)[6:] + q_loads(2)[:7])
        if t_ >= 1: stamp(t_ + 6, True)
        attn_seg(A, lq, 0, ex)
        attn_seg(A, lq, 1, ex, look=(True if t_ < 7 else [1]))
        if t_ < 7:
            attn_seg(A, lq, 2, ex)
            attn_seg(A, lq, 3, ex)
    ex = {}
    def vrd(f, sec):
        A(vread(f % 2, f // 2, 1, sec, f % 4)); lq.issue(("v", f))
    for f in range(3):
        vrd(f, 0); vrd(f, 1)
    ql = dict(zip((11, 14, 17, 20, 23), q_loads(2)[7:]))
    for e in range(10, 32):
        if e in ql: A(ql[e])
        for x in sm_exp(1, e) + sm_post(1, e - 1): A(x)
    A(f"v_bfe_u32 v{t+2}, v{vLane}, 4, 1")
    for x in sm_post(1, 31): A(x)
    def o_items(plain):
        it = []
        for n, (dt, qt) in enumerate((dt, qt) for dt in range(4) for qt in range(2)):
            b = vS + (n % 4) * 16; pk = 224 + (n % 4) * 8
            it += [f"v_accvgpr_read_b32 v{b+i}, a{aO+(qt*4+dt)*16+i}" for i in range(16)]
            if n < plain: it += [f"v_mul_f32 v{b+i}, v{t+qt}, v{b+i}" for i in range(16)]
            else: it += [f"v_pk_mul_f32 {vr(b+2*i,2)}, {vr(b+2*i,2)}, {vr(t,2)} " + ("op_sel_hi:[1,0]" if qt == 0 else "op_sel:[0,1]") for i in range(8)]
            it += [f"v_cvt_pk_bf16_f32 v{pk+i}, v{b+2*i}, v{b+2*i+1}" for i in range(8)]
            it += [f"buffer_store_dwordx4 {vr(pk+4*j,4)}, v{vOo}, s[{sA}:{sA+3}], s{sKVm} offen offset:{qt*2048+j*512} sc1 ; @put H" for j in range(2)]
            if qt and dt < 3: it.append(f"s_add_u32 s{sKVm}, s{sKVm}, 4096")
        return it
    chk = [[f"v_mov_b32 v{t}, v{vL}", f"v_mov_b32 v{t+1}, v{vL+1}", f"v_lshrrev_b32 v{t+3}, 5, v{vLane}", f"v_lshlrev_b32 v{t+3}, 8, v{t+3}"],
           [f"v_permlane32_swap_b32 v{t}, v{vL}", f"v_permlane32_swap_b32 v{t+1}, v{vL+1}", f"v_lshl_add_u32 v{t+3}, v{t+2}, 10, v{t+3}"],
           [f"v_add_f32 v{vL}, v{vL}, v{t}", f"v_add_f32 v{vL+1}, v{vL+1}, v{t+1}", f"v_mov_b32 v{t+8}, {hex(f2u(2.0**-40))}", f"v_mov_b32 v{t+9}, {hex(f2u(2.0**40))}"],
           [f"v_cmp_gt_f32 s[{sE0}:{sE0+1}], v{vL}, v{t+8}", f"v_cmp_lt_f32 s[{sE0+2}:{sE0+3}], v{vL}, v{t+9}", f"v_and_b32 v{t+2}, 15, v{vLane}"],
           [f"v_cmp_gt_f32 s[4:5], v{vL+1}, v{t+8}", f"v_cmp_lt_f32 s[6:7], v{vL+1}, v{t+9}", f"v_rcp_f32 v{t}, v{vL}", f"v_lshl_add_u32 v{vOo}, v{t+2}, 4, v{t+3}"],
           [f"v_rcp_f32 v{t+1}, v{vL+1}", f"s_lshl_b32 s{sKVm}, s{sHead}, 14", f"s_and_b64 s[{sE0}:{sE0+1}], s[{sE0}:{sE0+1}], s[{sE0+2}:{sE0+3}]",
            "s_and_b64 s[4:5], s[4:5], s[6:7]", f"s_and_b64 s[4:5], s[4:5], s[{sE0}:{sE0+1}]", "s_cmp_eq_u64 s[4:5], exec"] + ([] if XP else [f"s_cbranch_scc0 {L}slow ; slowbr"])]
    oi = o_items(2)
    for f in range(8):
        lq.wait(A, [("v", f)])
        for qt in range(2):
            g = 2 * f + qt
            mf32(A, ar(aO + (qt * 4 + f // 2) * 16, 16), vr(vF + (f % 4) * 4, 4), vr(vP + (qt * 2 + f % 2) * 4, 4))
            if f + 3 < 8: vrd(f + 3, qt)
            if g < 6:
                for x in chk[g]: A(x)
            elif g < 15:
                k_ = 4 if f + 3 < 8 else 5
                for x in oi[:k_]: A(x)
                oi = oi[k_:]
    stamp(5)
    for x in oi: A(x)
    mk_ = len(A.lines)
    A(f"s_lshl_b32 s{sKVm}, s{sHead}, 14")
    for x in o_items(0): A(x)
    cold(mk_, f"{L}oep", f"{L}oed")
    A(f"{L}oed:")
    stamp(6); stamp(7)
    gemm2(A, L, emit, stamp, cold)
    A(f"{L}end:")
    A("s_endpgm")
    A.lines += COLD
    A(f"{L}slow:")
    A("s_waitcnt vmcnt(0) lgkmcnt(0)")
    srd(A, sK, pK, pK + 1, 16777216)
    srd(A, sV, pV, pV + 1, 16777216)
    kv_dma_voff(A, vKd, vVd, 1)
    A(f"s_lshl_b32 s{sT1}, s{sWave}, 13")
    A(f"s_add_u32 s{sT1}, s{sT1}, {R2}")
    kv_addr(A, sT1)
    for dt in range(4): A(f"v_add_u32 v{vVr+dt}, {R4-R2-16384}, v{vVr+dt}")
    vM = vTm + 6
    A(f"v_mov_b32 v{vM}, 0xff800000")
    A(f"v_mov_b32 v{vM+1}, 0xff800000")
    A(f"v_mov_b32 v{vL}, 0")
    A(f"v_mov_b32 v{vL+1}, 0")
    for i in range(4): A(f"v_mov_b32 v{vTm+12+i}, 0")
    A("s_nop 1")
    for i in range(8): mf32(A, ar(aO + 16 * i, 16), vr(vTm + 12, 4), vr(vTm + 12, 4), "0")
    A(f"s_mov_b32 s{sT}, 0")
    A(f"{L}sl:")
    A(f"s_and_b32 s{sT0}, s{sT}, 15")
    A(f"s_lshl_b32 s{sT0}, s{sT0}, 13")
    A(f"s_lshl_b32 s{sKVo}, s{sHead}, 19")
    A(f"s_add_u32 s{sKVo}, s{sKVo}, s{sT0}")
    A(f"s_add_u32 s{sKVo}, s{sKVo}, {1536*256}")
    for hf in range(2):
        A(f"s_add_u32 m0, s{sT1}, {hf*4096}")
        A("s_nop 0")
        for j in range(4): A(f"buffer_load_dwordx4 v{vKd+j}, s[{sK}:{sK+3}], s{sKVo} offen offset:{j*1024} lds")
        A(f"s_add_u32 m0, s{sT1}, {R4-R2+hf*4096}")
        A("s_nop 0")
        for j in range(4): A(f"buffer_load_dwordx4 v{vVd}, s[{sV}:{sV+3}], s{sKVo} offen offset:{j*1024} lds")
        if hf == 0: A(f"s_add_u32 s{sKVo}, s{sKVo}, 4096")
    A("s_waitcnt vmcnt(0)")
    for p in range(8):
        A(kread(p, 0, p % 4))
        A("s_waitcnt lgkmcnt(0)")
        for qt in range(2): mf32(A, vr(vS + qt * 16, 16), vr(vF + (p % 4) * 4, 4), vr(vQ + (qt * 8 + p) * 4, 4), "0" if p == 0 else None)
    A("s_nop 11")
    A(f"s_cmp_ge_u32 s{sT}, 16")
    A(f"s_cbranch_scc1 {L}sl2")
    for qt in range(2):
        for i in range(8): A(f"v_max3_f32 v{vM+qt}, v{vS+qt*16+2*i}, v{vS+qt*16+2*i+1}, v{vM+qt}")
    A(f"s_cmp_lg_u32 s{sT}, 15")
    A(f"s_cbranch_scc1 {L}sl3")
    A(f"v_mov_b32 v{vM+2}, v{vM}")
    A(f"v_mov_b32 v{vM+3}, v{vM+1}")
    A("s_nop 1")
    A(f"v_permlane32_swap_b32 v{vM+2}, v{vM}")
    A(f"v_permlane32_swap_b32 v{vM+3}, v{vM+1}")
    A(f"v_max_f32 v{vM}, v{vM}, v{vM+2}")
    A(f"v_max_f32 v{vM+1}, v{vM+1}, v{vM+3}")
    A(f"s_branch {L}sl3")
    A(f"{L}sl2:")
    for e in range(32):
        r, qt, ks = sm_reg(0, e)
        A(f"v_sub_f32 v{r}, v{r}, v{vM+qt}")
        A(f"v_exp_f32 v{r}, v{r}")
        A("s_nop 0")
        for x in sm_post(0, e): A(x)
    for i in range(8):
        for sec in range(2): A(vread(i // 4, i % 4, 0, sec, i % 4))
        A("s_waitcnt lgkmcnt(0)")
        for qt in range(2): mf32(A, ar(aO + (qt * 4 + i % 4) * 16, 16), vr(vF + (i % 4) * 4, 4), vr(vP + (qt * 2 + i // 4) * 4, 4))
    A(f"{L}sl3:")
    A(f"s_add_u32 s{sT}, s{sT}, 1")
    A(f"s_cmp_lt_u32 s{sT}, 32")
    A(f"s_cbranch_scc1 {L}sl")
    A(f"v_mov_b32 v{t}, v{vL}")
    A(f"v_mov_b32 v{t+1}, v{vL+1}")
    A("s_nop 1")
    A(f"v_permlane32_swap_b32 v{t}, v{vL}")
    A(f"v_permlane32_swap_b32 v{t+1}, v{vL+1}")
    A(f"v_add_f32 v{vL}, v{vL}, v{t}")
    A(f"v_add_f32 v{vL+1}, v{vL+1}, v{t+1}")
    A(f"v_rcp_f32 v{t}, v{vL}")
    A(f"v_rcp_f32 v{t+1}, v{vL+1}")
    A("s_nop 7")
    A(f"s_branch {L}oep")
    A(f"{L}last:")
    kd(A, name, 512, 256)

def checks(A, entry):
    if XP: return
    nb = check_hazards(A.lines)
    tot = 0
    for wg in (0, 5, 6, 31, 24, 28, 255):
        for w in (0, 1, 3):
            for slow in (0, 1):
                miss = iter([1, 0, 1, 1, 0] if slow else [])
                def hk(x, S):
                    if x.opn == "v_readfirstlane_b32" and "tag" not in x.text:
                        S[sWave] = w
                    if "slowbr" in x.text: return slow
                    if "pollbr" in x.text: return 1
                    if "missbr" in x.text: return next(miss, 0)
                p, c = check_waits(A.lines, entry, {2: wg}, hk)
                tot += p
    print("hazards:", nb, "waits:", tot, c)

DOC = """;
; One persistent launch, 256 workgroups x 4 waves (one workgroup per CU, 512 registers per lane, 160 KiB LDS).
;
;          h = silu(gate)*up goes to the workspace in MFMA fragment order.
; Phase 2  attention over the last 512 keys (32x32x16 MFMA, S^T = K Q^T, P^T feeds V^T P^T without shuffles), exp2 with the scale
;          folded into Q. Softmax guard: the fast pass uses the offset 0; every row sum is then checked against (2^-40, 2^40)
;          max pass, then exp(s - max) pass). Inside the range exp2 neither overflows nor loses the row, so both are the same softmax.
;          wo / w2 are re-laid into fragment order on the side.
; Hand-offs: write-through (sc1) stores, drained, workgroup barrier, then a flag line per workgroup holding {launch tag + phase};
;          the tag is a clock value published once per launch in d_debug, so words left in d_ws by other launches never match.
;          Inboxes are marked all-ones by their owner in this launch before a partner may write them. All hand-off loads are sc1.
;          Workgroup -> data mapping assumes id%8 shares an L2 for speed only. Every spin is bounded."""
def build(fn, stamps=False):
    HDR = open("cdna_kernels/" + NAME + ".s.ref").read().split("; Override")[0]
    A = Asm()
    A(HDR)
    A(f"; @launch grid=(256,1,1) block=(256,1,1) lds={P1_LDS}")
    A.lines += DOC.split("\n")
    A('.amdgcn_target "amdgcn-amd-amdhsa--gfx950"')
    A(".text")
    gen_p1(A, NAME + "_kernel", stamps=stamps)
    checks(A, NAME + "_kernel")
    if "ub" in XP:
        A.lines = [l.replace("0x402b1600", "0x422c1600").replace("0x5b402b16", "0x5b422c16") for l in A.lines]
        out = []
        pend = 0
        for i, l in enumerate(A.lines):
            if l == f"s_cmp_eq_u32 s{qP}, 3": l = "s_cmp_eq_u32 0, 0"
            out.append(l)
        A.lines = out
    if any(x.startswith("g_") for x in XP):
        i0 = A.lines.index("p1_gf:"); i1 = A.lines.index("p1_gdone:")
        body = A.lines[i0:i1]
        if "g_nodma" in XP: body = [l for l in body if " lds" not in l]
        if "g_nobar" in XP: body = [l for l in body if not l.startswith("s_barrier")]
        if "g_nowait" in XP: body = [l for l in body if not l.startswith("s_waitcnt lgkmcnt")]
        if "g_noread" in XP: body = [l for l in body if not l.startswith("ds_read")]
        if "g_nop" in XP: body = [("s_nop 0" if " lds" in l else l) for l in body]
        A.lines[i0:i1] = body
    if "hplain" in XP: A.lines = [l.replace(" sc1", "") if ("store" in l and f"s[{sA}:{sA+3}], s6 " not in l and f"s[{sA}:{sA+3}]" in l) else l for l in A.lines]
    if "oplain" in XP: A.lines = [l.replace(" sc1", "") if ("store" in l and f"s[{sA}:{sA+3}], s6 " in l) else l for l in A.lines]
    if "iplain" in XP: A.lines = [l.replace(" sc1", "") if ("store" in l and f"s[{qI}:{qI+3}], s{sT0}" in l) else l for l in A.lines]
    if "nt" in XP: A.lines = [l.replace(" sc1", " sc1 nt") if ("buffer_store" in l) else l for l in A.lines]
    if "sc01" in XP: A.lines = [l.replace(" sc1", " sc0 sc1") if ("buffer_store" in l) else l for l in A.lines]
    open(fn, "w").write(A.text())
if __name__ == "__main__":
    build("fu.s")
    build("fu_st.s", stamps=True)
```
